```python
import torch

def _softmax(x, axis=-1):
    return torch.softmax(x, dim=axis)
def _gelu(x):
    return torch.nn.functional.gelu(x, approximate="tanh")
def _silu(x):
    return torch.nn.functional.silu(x)
def _sigmoid(x):
    return torch.sigmoid(x)
def _layernorm(x, axis=-1, eps=1e-5):
    m = x.mean(dim=axis, keepdim=True)
    v = x.var(dim=axis, keepdim=True, unbiased=False)
    return (x - m) / torch.sqrt(v + eps)
def _scatter_add(tgt, idx, src, axis=0):
    return tgt.clone().index_add_(axis, idx, src)
def _segment_sum(src, seg, n):
    out = torch.zeros((n,) + src.shape[1:], dtype=src.dtype)
    return out.index_add_(0, seg, src)
def _pad(x, pw):
    flat = tuple(v for pair in reversed(pw) for v in pair)
    return torch.nn.functional.pad(x, flat)

kernel_name = 'parallel_sum__sliding_local_dilated__dense_activation_relu__prompt'

def setup_inputs():

    _w = (lambda a: (lambda t: t.to(torch.bfloat16) if t.is_floating_point() else t)(torch.as_tensor(a)))
    def _A_setup():
        B, S, D = 1, 2048, 640
        return {
            "x": _w((lambda *s: torch.randn(*s, dtype=torch.bfloat16) * 0.05)(B, S, D)),
            "wqkv": _w((lambda *s: torch.randn(*s, dtype=torch.bfloat16) * 0.05)(D, 3 * D)),
            "wo": _w((lambda *s: torch.randn(*s, dtype=torch.bfloat16) * 0.05)(D, D)),
        }
    _A_in = _A_setup()

    def _B_setup():
        B, S, D, Dff = 1, 2048, 640, 1728
        return {
            "x": _w((lambda *s: torch.randn(*s, dtype=torch.bfloat16) * 0.05)(B, S, D)),
            "w1": _w((lambda *s: torch.randn(*s, dtype=torch.bfloat16) * 0.05)(D, Dff)),
            "w2": _w((lambda *s: torch.randn(*s, dtype=torch.bfloat16) * 0.05)(Dff, D)),
        }
    _B_in = _B_setup()

    return {
        "A_x": _A_in["x"],
        "A_wqkv": _A_in["wqkv"],
        "A_wo": _A_in["wo"],
        "B_x": _B_in["x"],
        "B_w1": _B_in["w1"],
        "B_w2": _B_in["w2"],
    }

def reference(A_x, A_wqkv, A_wo, B_x, B_w1, B_w2):
    def _A_ref(x, wqkv, wo):
        B, S, D = x.shape
        H = 32; Dh = D // H
        W, dil = 8, 2
        qkv = (lambda x, *d: x.permute(*d))((x @ wqkv).reshape(B, S, 3, H, Dh), 2, 0, 3, 1, 4)
        q, k, v = qkv[0], qkv[1], qkv[2]
        scale = Dh ** -0.5
        pos = torch.arange(S)
        off = torch.arange(W) * dil
        idx = pos[:, None] - off[None, :]
        mask = idx >= 0
        idx_c = torch.where(mask, idx, 0).reshape(-1)
        kg = k[:, :, idx_c, :].reshape(B, H, S, W, Dh)
        vg = v[:, :, idx_c, :].reshape(B, H, S, W, Dh)
        logits = torch.einsum("bhsd,bhswd->bhsw", q, kg) * scale
        logits = torch.where(mask[None, None, :, :], logits, -1e9)
        attn = _softmax(logits, axis=-1)
        o = torch.einsum("bhsw,bhswd->bhsd", attn, vg)
        return (lambda x, *d: x.permute(*d))(o, 0, 2, 1, 3).reshape(B, S, D) @ wo

    def _B_ref(x, w1, w2):
        h = torch.einsum("bsd,df->bsf", x, w1)
        zero = torch.zeros_like(h)
        h = torch.maximum(h, zero)
        return torch.einsum("bsf,fd->bsd", h, w2)

    x = A_x
    xn = _layernorm(x, axis=-1)
    return x + _A_ref(xn, A_wqkv, A_wo) + _B_ref(xn, B_w1, B_w2)
```

```python
import re
REG_RE = re.compile(r'^(-|\|)?([vas])(\d+)\|?$')
RNG_RE = re.compile(r'^(-)?([vas])\[(\d+):(\d+)\]$')
def regs_of(tok):
    tok = tok.strip()
    if tok.startswith('abs(') and tok.endswith(')'): tok = tok[4:-1]
    m = REG_RE.match(tok)
    if m: return [(m.group(2), int(m.group(3)))]
    m = RNG_RE.match(tok)
    if m: return [(m.group(2), i) for i in range(int(m.group(3)), int(m.group(4))+1)]
    if tok in ('vcc',): return [('s','vcc')]
    if tok in ('vcc_lo','vcc_hi'): return [('s','vcc')]
    if tok in ('exec','exec_lo','exec_hi'): return [('s','exec')]
    if tok == 'm0': return [('s','m0')]
    return []
TRANS = ('v_exp_f32','v_log_f32','v_rcp_f32','v_rsq_f32','v_sqrt_f32','v_sin_f32','v_cos_f32')
RMW = ('v_fmac_f32','v_dot2c_f32_bf16','v_pk_fmac_f16','v_writelane_b32')
class Ins:
    def __init__(self, text):
        self.text = text
        t = text.split(';')[0].strip()
        self.label = t.endswith(':')
        self.defs = []; self.uses = []; self.kind = 'other'; self.passes = 0; self.cuse = []
        self.nstates = 1
        if self.label or not t:
            self.kind = 'label' if self.label else 'comment'; self.nstates = 0; self.op = ''
            return
        parts = t.split(None, 1)
        op = parts[0]; self.op = op
        rest = parts[1] if len(parts) > 1 else ''
        ops = [o.strip() for o in rest.split(',')] if rest else []
        mods = ''
        if ops:
            sp = ops[-1].split(None, 1)
            ops[-1] = sp[0]
            mods = sp[1] if len(sp) > 1 else ''
        self.mods = mods
        base = op
        for suf in ('_e32','_e64','_dpp','_sdwa'):
            if base.endswith(suf): base = base[:-len(suf)]
        self.base = base
        R = lambda i: regs_of(ops[i]) if i < len(ops) else []
        allregs = lambda a: sum((regs_of(o) for o in ops[a:]), [])
        if op.startswith('v_mfma'):
            self.kind = 'mfma'; self.defs = R(0); self.uses = R(1)+R(2)+R(3); self.cuse = R(3); self.abuse = R(1)+R(2)
            self.passes = 8 if '32x32' in op else 4
        elif op.startswith('ds_read') or op.startswith('ds_bpermute') :
            self.kind = 'ds_read'; self.defs = R(0); self.uses = allregs(1)
        elif op.startswith('ds_write'):
            self.kind = 'ds_write'; self.uses = allregs(0)
        elif op.startswith('buffer_load') or op.startswith('global_load'):
            if 'lds' in mods.split():
                self.kind = 'dma'; self.uses = allregs(0) + [('s','m0')]
            else:
                self.kind = 'vmem_load'; self.defs = R(0); self.uses = allregs(1)
        elif op.startswith('buffer_store') or op.startswith('global_store'):
            self.kind = 'vmem_store'; self.uses = allregs(0)
            self.wide = ('x4' in op or 'x3' in op)
            self.data = R(0) if op.startswith('buffer') else R(1)
        elif op.startswith('buffer_atomic') or op.startswith('global_atomic'):
            self.kind = 'vmem_store'; self.uses = allregs(0); self.wide = False; self.data = []
            if 'sc0' in mods.split():
                self.kind = 'vmem_load'; self.defs = R(0)
        elif op.startswith('buffer_wbl2') or op.startswith('buffer_inv'):
            self.kind = 'vmem_store'; self.wide = False; self.data = []
        elif op.startswith('s_load') or op.startswith('s_memtime') or op.startswith('s_memrealtime'):
            self.kind = 'smem'; self.defs = R(0); self.uses = allregs(1)
        elif op == 's_waitcnt':
            self.kind = 'waitcnt'
            self.vm = None; self.lgkm = None
            m = re.search(r'vmcnt\((\d+)\)', t);
            if m: self.vm = int(m.group(1))
            m = re.search(r'lgkmcnt\((\d+)\)', t)
            if m: self.lgkm = int(m.group(1))
        elif op == 's_nop':
            self.kind = 'nop'; self.nstates = int(ops[0], 0) + 1
        elif op == 's_barrier': self.kind = 'barrier'
        elif op.startswith('s_cbranch') or op == 's_branch':
            self.kind = 'branch'
            if 'vcc' in op: self.uses = [('s','vcc')]
            if 'exec' in op: self.uses = [('s','exec')]
        elif op in ('s_endpgm','s_setprio','s_sleep'): self.kind = 'salu'
        elif op.startswith('s_cmp') or op.startswith('s_bitcmp'):
            self.kind = 'salu'; self.uses = allregs(0)
        elif op.startswith('s_'):
            self.kind = 'salu'; self.defs = R(0); self.uses = allregs(1)
            if 'saveexec' in op: self.defs += [('s','exec')]; self.uses += [('s','exec')]
            if op in ('s_addk_i32','s_mulk_i32'): self.uses += R(0)
        elif op.startswith('v_cmp'):
            self.kind = 'valu'; self.defs = R(0); self.uses = allregs(1)
        elif op.startswith('v_readfirstlane') or op.startswith('v_readlane'):
            self.kind = 'valu'; self.sub = 'readlane'; self.defs = R(0); self.uses = allregs(1)
        elif op.startswith('v_permlane'):
            self.kind = 'valu'; self.sub = 'permlane'; self.defs = R(0)+R(1); self.uses = R(0)+R(1)
        elif op.startswith('v_'):
            self.kind = 'valu'; self.defs = R(0); self.uses = allregs(1)
            if base in RMW: self.uses += R(0)
            if base == 'v_cndmask_b32' and len(ops) == 3: self.uses += [('s','vcc')]
            if base in ('v_add_co_u32','v_sub_co_u32','v_addc_co_u32'):
                self.defs = R(0)+R(1); self.uses = allregs(2)
            if base in TRANS: self.sub = 'trans'
            if 'row_' in mods or 'quad_perm' in mods or op.endswith('_dpp'):
                self.sub = 'dpp'; self.uses += R(0)
            if base == 'v_nop': self.defs = []
        else:
            raise ValueError("unknown op: " + text)
    def sub_is(self, s): return getattr(self, 'sub', None) == s

def is_vreg(r): return r[0] in ('v','a')

class State:
    def __init__(self):
        self.lg = {}; self.vm = {}
        self.hist = []
    def copy(self):
        s = State(); s.lg = dict(self.lg); s.vm = dict(self.vm); s.hist = list(self.hist); return s
    def merge(self, o):
        ch = False
        for a, b in ((self.lg, o.lg), (self.vm, o.vm)):
            for r, age in b.items():
                if r not in a or age < a[r]:
                    a[r] = age; ch = True
        return ch

def need_nops(hist, ins):
    need = 0
    dist = 0
    uses = set(ins.uses); defs = set(ins.defs)
    for p in reversed(hist):
        if dist > 20: break
        if p.kind in ('label','comment'): continue
        pd = set(p.defs)
        req = 0
        if p.kind == 'valu':
            pv = {r for r in pd if is_vreg(r)}
            ps = {r for r in pd if r[0] == 's'}
            if ins.kind == 'mfma' and (pv & uses): req = max(req, 2)
            if ins.kind == 'valu':
                if ins.sub_is('readlane') and (pv & uses): req = max(req, 1)
                if ins.sub_is('permlane') and (pv & uses): req = max(req, 2)
                if ins.sub_is('dpp') and (pv & uses): req = max(req, 2)
                if p.sub_is('trans') and not ins.sub_is('trans') and (pv & uses): req = max(req, 1)
                if ps & uses: req = max(req, 2 if not ins.sub_is('readlane') else 4)
                if 'sdwa' in p.op and (pv & (uses|defs)): req = max(req, 1)
            if p.sub_is('trans') and ins.kind in ('mfma','ds_write','ds_read','vmem_store','vmem_load','dma') and (pv & uses): req = max(req, 2 if ins.kind=='mfma' else 1)
            if ins.kind in ('vmem_load','vmem_store','dma') and (ps & uses): req = max(req, 5)
            if ('s','exec') in ps: raise ValueError("VALU exec write not supported")
        if p.kind == 'mfma':
            np_ = p.passes
            raw = {4: 8, 8: 12}[np_]; ovl = {4: 6, 8: 10}[np_]; war = {4: 3, 8: 7}[np_]
            if ins.kind == 'mfma':
                if pd & set(ins.abuse): req = max(req, raw)
                c = set(ins.cuse)
                if pd & c:
                    if not (p.defs == ins.cuse and p.passes == ins.passes): req = max(req, ovl)
                if (pd & defs) and not (p.defs == ins.defs): req = max(req, ovl)
            elif ins.kind == 'valu':
                if pd & (uses | defs): req = max(req, raw)
                if set(p.cuse) & defs: req = max(req, war)
            elif ins.kind in ('ds_read','ds_write','vmem_load','vmem_store','dma'):
                if pd & (uses | defs): req = max(req, raw)
        if p.kind == 'salu' and ('s','m0') in pd and ins.kind == 'dma': req = max(req, 1)
        if p.kind == 'vmem_store' and getattr(p,'wide',False):
            if set(p.data) & defs:
                req = max(req, 2 if ins.kind == 'valu' else 1)
        if req > dist: need = max(need, req - dist)
        dist += p.nstates
    return need

def process(lines, st, out, auto_wait=True):
    for text in lines:
        ins = Ins(text)
        if ins.kind in ('label','comment'):
            out.append(text); st.hist.append(ins); continue
        if auto_wait and ins.kind not in ('waitcnt',):
            touched = set(ins.uses) | set(ins.defs)
            wl = None; wv = None
            for r in touched:
                if r in st.lg: wl = st.lg[r] if wl is None else min(wl, st.lg[r])
                if r in st.vm: wv = st.vm[r] if wv is None else min(wv, st.vm[r])
            if wl is not None or wv is not None:
                parts = []
                if wv is not None: parts.append("vmcnt(%d)" % min(wv, 63))
                if wl is not None: parts.append("lgkmcnt(%d)" % min(wl, 15))
                w = Ins("  s_waitcnt " + " ".join(parts))
                apply_wait(st, w); out.append(w.text); st.hist.append(w)
        n = need_nops(st.hist, ins)
        while n > 0:
            k = min(n, 16)
            nop = Ins("  s_nop %d" % (k-1)); out.append(nop.text); st.hist.append(nop); n -= k
        if ins.kind == 'waitcnt': apply_wait(st, ins)
        if ins.kind in ('ds_read','ds_write'):
            for r in list(st.lg): st.lg[r] += 1
            for r in ins.defs: st.lg[r] = 0
        elif ins.kind == 'smem':
            for r in list(st.lg): st.lg[r] = 0
            for r in ins.defs: st.lg[r] = 0
        elif ins.kind in ('vmem_load','vmem_store','dma'):
            for r in list(st.vm): st.vm[r] += 1
            for r in ins.defs: st.vm[r] = 0
        out.append(text); st.hist.append(ins)
        if len(st.hist) > 64: st.hist = st.hist[-40:]
    return st
def apply_wait(st, w):
    if w.lgkm is not None:
        for r in list(st.lg):
            if st.lg[r] >= w.lgkm: del st.lg[r]
    if w.vm is not None:
        for r in list(st.vm):
            if st.vm[r] >= w.vm: del st.vm[r]

def process_path(pre, loop_label, body, post, st=None):
    st = st or State()
    out = []
    st = process(pre, st, out)
    if body is not None:
        entry = st.copy()
        for _ in range(6):
            tmp = []
            s = entry.copy()
            s = process(body, s, tmp)
            hist_end = s.hist
            if not entry.merge(s): break
        outA = []; sA = entry.copy(); sA = process(body, sA, outA)
        outB = []; sB = entry.copy(); sB.hist = list(sA.hist); sB = process(body, sB, outB)
        if outA != outB:
            head_pad = ["  s_nop 7", "  s_nop 7"]
            outA2 = []; sA = entry.copy(); sA.hist = list(sB.hist); sA = process(body, sA, outA2)
            assert outA2 == outB, "loop hazard analysis did not converge"
            outA = outB
            chk = []; sC = entry.copy(); sC = process(outB, sC, chk)
            assert chk == outB, "entry path needs more nops than back edge"
            sA = sB
        out.append(loop_label + ":")
        out += outA
        st = sA
    st = process(post, st, out)
    return out
```

```python
import sys
from irlib import *

NAME = "parallel_sum__sliding_local_dilated__dense_activation_relu__prompt"

S_, D_, DFF = 2048, 640, 1728
X_BYTES = S_*D_*2
WQKV_BYTES = D_*3*D_*2
WO_BYTES = D_*D_*2
W1_BYTES = D_*DFF*2
W2_BYTES = DFF*D_*2
NKS = 74
ACT_OFF = 0
ACT_TB = NKS*4096
W2F_OFF = 10*1024*1024
W2F_CB = NKS*5120
RSTD_OFF = 14*1024*1024
WS_USED = 15*1024*1024
OOB = 0x7F000000

def v(i): return "v%d" % i
def vr(i, n): return "v[%d:%d]" % (i, i+n-1)
def a(i): return "a%d" % i
def ar(i, n): return "a[%d:%d]" % (i, i+n-1)
def s(i): return "s%d" % i
def sr(i, n): return "s[%d:%d]" % (i, i+n-1)

class E:
    def __init__(self): self.L = []
    def __call__(self, t): self.L.append("  " + t)
    def lab(self, t): self.L.append(t + ":")
    def c(self, t): self.L.append("  ; " + t)
    def ext(self, lines): self.L += lines

MFMA = "v_mfma_f32_16x16x32_bf16"

sX, sW, sWS = 24, 28, 32
sWave = 22
sRB, sCB = 36, 37
sKC, sSoX, sSoW, sDSlot, sRDelta, sIter = 38, 39, 40, 41, 42, 43
sRSlot = 44
sT0, sT1, sT2, sT3 = 46, 47, 48, 49
sM = 50

def srd(e, base, ptr, nbytes):
    e("s_mov_b32 %s, %s" % (s(base), s(ptr)))
    e("s_and_b32 %s, %s, 0xffff" % (s(base+1), s(ptr+1)))
    e("s_mov_b32 %s, %d" % (s(base+2), nbytes))
    e("s_mov_b32 %s, 0x20000" % s(base+3))

class LoopCfg: pass

def k1_main(cfg, tag):
    NT = cfg.ntile; NF = 2*NT; R = cfg.ring; L = cfg.look; TAIL = cfg.tail
    assert NF % R == 0
    wreg = lambda f: cfg.wbase + (f % R)*4
    def wreads(f):
        kh, c = divmod(f % NF, NT)
        return cfg.wread(kh, c, wreg(f))
    def mf(f):
        kh, c = divmod(f % NF, NT)
        return cfg.mf(kh, c, wreg(f))
    body = []
    aux = []
    e = body.append
    start = list(cfg.addr_update)
    start += cfg.xreads(0)
    first = [f for f in range(0, NF) if f - L < -TAIL]
    for f in first: start += wreads(f)
    body += ["  " + t for t in start]
    body += ["  " + t for t in cfg.scal_update]
    seq = []
    for f in range(-TAIL, NF - TAIL):
        pre_reads = []
        g = f + L
        if g >= len(first) and g < NF and g >= 0 and g not in first: pre_reads = wreads(g)
        ms = []
        if f == 0: ms += cfg.stats(0)
        if f == NT: ms += cfg.stats(1)
        ms += mf(f % NF if f >= 0 else f + NF)
        extra = []
        if f == cfg.xread1_at: extra = cfg.xreads(1)
        seq.append((pre_reads + extra, ms))
    issued = set(first) | {f + L for f in range(-TAIL, NF - TAIL) if 0 <= f + L < NF}
    assert issued == set(range(NF)), (issued, NF)
    nm = sum(len(m) for _, m in seq)
    dma = list(cfg.dma)
    startpos = cfg.dma_start; endpos = nm - cfg.dma_endgap
    nd = len(dma)
    pos = [startpos + (endpos - startpos) * i // max(nd, 1) for i in range(nd)]
    cnt = 0; di = 0
    for reads, ms in seq:
        rq = list(reads)
        for k, m in enumerate(ms):
            if rq:
                take = (len(rq) + (len(ms) - k) - 1) // (len(ms) - k)
                for _ in range(take): body.append("  " + rq.pop(0))
            body.append("  " + m)
            cnt += 1
            while di < nd and pos[di] <= cnt:
                for t in dma[di]: body.append("  " + t)
                di += 1
    assert di == nd
    body.append("  s_waitcnt vmcnt(%d) lgkmcnt(0)" % cfg.nd_instr)
    body.append("  s_barrier")
    body.append("  s_add_u32 %s, %s, 1" % (s(sIter), s(sIter)))
    body.append("  s_cmp_lt_u32 %s, 10" % s(sIter))
    body.append("  s_cbranch_scc1 L_loop_%s" % tag)
    post = []
    for f in range(NF - TAIL, NF):
        for m in mf(f): post.append("  " + m)
    return body, post

def scal_update(slot, wstep):
    t = []
    t.append("s_add_u32 %s, %s, 1" % (s(sKC), s(sKC)))
    t.append("s_cmp_eq_u32 %s, 10" % s(sKC))
    t.append("s_cselect_b32 %s, 0, %s" % (s(sKC), s(sKC)))
    t.append("s_lshl_b32 %s, %s, 7" % (s(sSoX), s(sKC)))
    t.append("s_mul_i32 %s, %s, %d" % (s(sSoW), s(sKC), wstep))
    t.append("s_cmp_ge_u32 %s, 8" % s(sIter))
    t.append("s_cselect_b32 %s, 0x%x, %s" % (s(sSoX), OOB, s(sSoX)))
    t.append("s_cselect_b32 %s, 0x%x, %s" % (s(sSoW), OOB, s(sSoW)))
    t.append("s_add_u32 %s, %s, %d" % (s(sDSlot), s(sDSlot), slot))
    t.append("s_cmp_eq_u32 %s, %d" % (s(sDSlot), 3*slot))
    t.append("s_cselect_b32 %s, 0, %s" % (s(sDSlot), s(sDSlot)))
    return t

def addr_update(slot, regs):
    t = []
    t.append("s_mov_b32 %s, %s" % (s(sRDelta), s(sRSlot)))
    t.append("s_add_u32 %s, %s, %d" % (s(sRSlot), s(sRSlot), slot))
    t.append("s_cmp_eq_u32 %s, %d" % (s(sRSlot), 3*slot))
    t.append("s_cselect_b32 %s, 0, %s" % (s(sRSlot), s(sRSlot)))
    t.append("s_sub_u32 %s, %s, %s" % (s(sRDelta), s(sRSlot), s(sRDelta)))
    for r in regs:
        t.append("v_add_u32 %s, %s, %s" % (v(r), s(sRDelta), v(r)))
    return t

A_SLOT = 53248; A_XB = 18432; A_WPAIR = 1088
A_XJ = [[0,1,2,3,4],[5,6,7,8,9],[10,11,12,13],[14,15,16,17]]
vLane = 255
vWA, vX0, vX1 = 160, 161, 162
vDX, vDW = 163, 168
aW, aXF, aONE = 0, 40, 64
def acc_own(T, c): return (T*15 + c)*4
def acc_halo(eidx): return 120 + eidx*4
vSumT = [136, 140]; vSqT = [144, 148]; vSumH, vSqH = 152, 156
def xf(kh, T): return aXF + (kh*3 + T)*4

def attn_prologue(w, e):
    xj = A_XJ[w]
    e("v_lshrrev_b32 v1, 3, %s" % v(vLane))
    e("v_mul_u32_u24 v1, 1280, v1")
    e("v_and_b32 v2, 7, %s" % v(vLane))
    e("v_lshrrev_b32 v3, 4, %s" % v(vLane))
    e("v_xor_b32 v4, v2, v3")
    e("v_lshlrev_b32 v4, 4, v4")
    e("v_add_u32 v4, v4, v1")
    e("v_xor_b32 v5, 64, v4")
    e("s_lshl_b32 %s, %s, 7" % (s(sT0), s(sRB)))
    e("s_mul_i32 %s, %s, 1280" % (s(sT0), s(sT0)))
    e("s_sub_u32 %s, %s, %d" % (s(sT1), s(sT0), 16*1280))
    e("s_cmp_eq_u32 %s, 0" % s(sRB))
    e("s_cselect_b32 %s, 0, %s" % (s(sT1), s(sT1)))
    for m, j in enumerate(xj):
        imm = (m % 4)*1024
        if j < 2: e("s_add_u32 %s, %s, %d" % (s(sT2), s(sT1), j*8*1280 - imm))
        else:     e("s_add_u32 %s, %s, %d" % (s(sT2), s(sT0), (j-2)*8*1280 - imm))
        e("v_add_u32 %s, %s, %s" % (v(vDX+m), s(sT2), v(5 if j & 1 else 4)))
    e("v_cmp_le_u32 vcc, 30, %s" % v(vLane))
    e("v_cndmask_b32_e64 v6, 0, 1, vcc")
    e("v_mul_u32_u24 v7, 30, v6")
    e("v_sub_u32 v7, %s, v7" % v(vLane))
    e("v_mul_u32_u24 v8, 26, v7")
    e("v_lshrrev_b32 v8, 8, v8")
    e("v_mul_u32_u24 v8, 1120, v8")
    e("v_mul_u32_u24 v6, 3840, v6")
    e("v_lshlrev_b32 v7, 4, v7")
    e("v_add3_u32 v6, v6, v7, v8")
    e("v_mov_b32 v7, 0x40000000")
    e("v_cmp_le_u32 vcc, 60, %s" % v(vLane))
    e("v_cndmask_b32_e64 v6, v6, v7, vcc")
    e("s_mul_i32 %s, %s, 160" % (s(sT0), s(sCB)))
    kh = w >> 1; rd = w & 1
    for m in range(8):
        k = 32*kh + 8*(m >> 1) + 4*rd + 2*(m & 1)
        e("s_add_u32 %s, %s, %d" % (s(sT2), s(sT0), k*3840 - (m & 3)*1088))
        e("v_add_u32 %s, %s, v6" % (v(vDW+m), s(sT2)))
    if w == 0:
        e("v_lshlrev_b32 v7, 4, v2")
        e("v_mov_b32 v8, 0x3f803f80"); e("v_mov_b32 v9, v8"); e("v_mov_b32 v10, v8"); e("v_mov_b32 v11, v8")
        e("ds_write_b128 v7, v[8:11]")
        e("v_add_u32 v12, %d, v7" % A_SLOT)
        e("ds_write_b128 v12, v[8:11]")
        e("v_add_u32 v13, %d, v7" % (2*A_SLOT))
        e("ds_write_b128 v13, v[8:11]")

def attn_dma_groups(w, slot_expr_s):
    xj = A_XJ[w]; G = []
    for m, j in enumerate(xj):
        g = []
        if m % 4 == 0:
            g.append("s_add_u32 m0, %s, %d" % (s(slot_expr_s), j*1024))
        if w == 0 and j == 0: g.append("s_mov_b32 exec_lo, 0xffffff00")
        elif m % 4 == 0: g.append("s_nop 0")
        g.append("buffer_load_dwordx4 %s, %s, %s offen offset:%d lds" % (v(vDX+m), sr(sX,4), s(sSoX), (m % 4)*1024))
        if w == 0 and j == 0: g.append("s_mov_b32 exec_lo, -1")
        G.append(g)
    for m in range(8):
        g = []
        if m % 4 == 0:
            g.append("s_add_u32 m0, %s, %d" % (s(slot_expr_s), A_XB + (8*w + m)*A_WPAIR))
            g.append("s_nop 0")
        g.append("buffer_load_dwordx4 %s, %s, %s offen offset:%d lds" % (v(vDW+m), sr(sW,4), s(sSoW), (m % 4)*A_WPAIR))
        G.append(g)
    return G

def attn_loop_cfg(w):
    cfg = LoopCfg()
    cfg.slot = A_SLOT; cfg.ntile = 15; cfg.ring = 10; cfg.look = 6; cfg.tail = 4; cfg.wbase = aW
    H = [c for c in range(15) if c % 4 == w]
    def wread(kh, c, reg):
        off = kh*16*A_WPAIR + 32*c
        return ["ds_read_b64_tr_b16 %s, %s offset:%d" % (ar(reg,2), v(vWA), off),
                "ds_read_b64_tr_b16 %s, %s offset:%d" % (ar(reg+2,2), v(vWA), off + 8*A_WPAIR)]
    def mf(kh, c, reg):
        out = []
        for T in (0, 1):
            d = vr(acc_own(T, c), 4)
            if c < 10: out.append("%s %s, %s, %s, %s" % (MFMA, d, ar(reg,4), ar(xf(kh,T),4), d))
            else:      out.append("%s %s, %s, %s, %s" % (MFMA, d, ar(xf(kh,T),4), ar(reg,4), d))
        if c in H:
            d = vr(acc_halo(c >> 2), 4)
            if c < 10: out.append("%s %s, %s, %s, %s" % (MFMA, d, ar(reg,4), ar(xf(kh,2),4), d))
            else:      out.append("%s %s, %s, %s, %s" % (MFMA, d, ar(xf(kh,2),4), ar(reg,4), d))
        return out
    def stats(kh):
        out = []
        for T in (0, 1):
            out.append("%s %s, %s, %s, %s" % (MFMA, vr(vSumT[T],4), ar(aONE,4), ar(xf(kh,T),4), vr(vSumT[T],4)))
            out.append("%s %s, %s, %s, %s" % (MFMA, vr(vSqT[T],4), ar(xf(kh,T),4), ar(xf(kh,T),4), vr(vSqT[T],4)))
        if w == 3:
            out.append("%s %s, %s, %s, %s" % (MFMA, vr(vSumH,4), ar(aONE,4), ar(xf(kh,2),4), vr(vSumH,4)))
            out.append("%s %s, %s, %s, %s" % (MFMA, vr(vSqH,4), ar(xf(kh,2),4), ar(xf(kh,2),4), vr(vSqH,4)))
        return out
    def xreads(kh):
        ad = vX1 if kh else vX0
        return ["ds_read_b128 %s, %s offset:%d" % (ar(xf(kh,0),4), v(ad), (1+2*w)*2048),
                "ds_read_b128 %s, %s offset:%d" % (ar(xf(kh,1),4), v(ad), (2+2*w)*2048),
                "ds_read_b128 %s, %s offset:%d" % (ar(xf(kh,2),4), v(ad), 0)]
    cfg.wread = wread; cfg.mf = mf; cfg.stats = stats; cfg.xreads = xreads
    cfg.xread1_at = 6
    cfg.addr_update = addr_update(A_SLOT, [vWA, vX0, vX1])
    cfg.scal_update = scal_update(A_SLOT, 64*3840)
    cfg.dma = attn_dma_groups(w, sDSlot)
    cfg.nd_instr = len(A_XJ[w]) + 8
    cfg.dma_start = 12; cfg.dma_endgap = 14
    return cfg

def read_addr_setup_attn(e):
    e("v_and_b32 v1, 15, %s" % v(vLane))
    e("v_lshrrev_b32 v2, 2, v1")
    e("v_and_b32 v3, 3, v1")
    e("v_lshrrev_b32 v4, 4, %s" % v(vLane))
    e("v_lshrrev_b32 v5, 1, v2")
    e("v_lshl_add_u32 v5, v4, 1, v5")
    e("v_mul_u32_u24 v5, %d, v5" % A_WPAIR)
    e("v_and_b32 v2, 1, v2")
    e("v_mul_u32_u24 v2, 480, v2")
    e("v_lshlrev_b32 v3, 3, v3")
    e("v_add3_u32 v5, v5, v2, v3")
    e("v_add_u32 %s, %d, v5" % (v(vWA), 2*A_SLOT + A_XB))
    xaddr_setup(e, 2*A_SLOT)

def xaddr_setup(e, base):
    e("v_and_b32 v1, 15, %s" % v(vLane))
    e("v_lshrrev_b32 v4, 4, %s" % v(vLane))
    e("v_lshrrev_b32 v2, 1, v1")
    e("v_xor_b32 v2, v2, v4")
    e("v_lshlrev_b32 v2, 4, v2")
    e("v_lshl_add_u32 v2, v1, 7, v2")
    e("v_add_u32 %s, %d, v2" % (v(vX0), base))
    e("v_xor_b32 v2, 64, v2")
    e("v_add_u32 %s, %d, v2" % (v(vX1), base))

def issue_prologue_dma(e, groups_fn, slot, wstep):
    e("s_lshl_b32 %s, %s, 7" % (s(sSoX), s(sKC)))
    e("s_mul_i32 %s, %s, %d" % (s(sSoW), s(sKC), wstep))
    e("s_mov_b32 %s, 0" % s(sDSlot))
    for g in groups_fn(sDSlot):
        for t in g: e(t)
    e("s_add_u32 %s, %s, 1" % (s(sKC), s(sKC)))
    e("s_cmp_eq_u32 %s, 10" % s(sKC))
    e("s_cselect_b32 %s, 0, %s" % (s(sKC), s(sKC)))
    e("s_lshl_b32 %s, %s, 7" % (s(sSoX), s(sKC)))
    e("s_mul_i32 %s, %s, %d" % (s(sSoW), s(sKC), wstep))
    e("s_mov_b32 %s, %d" % (s(sDSlot), slot))
    for g in groups_fn(sDSlot):
        for t in g: e(t)
    e("s_mov_b32 %s, %d" % (s(sRSlot), 2*slot))
    e("s_mov_b32 %s, 0" % s(sIter))

def zero_state(e, nacc, areg_lo, areg_hi, ones_at):
    for i in range(nacc): e("v_mov_b32 %s, 0" % v(i))
    e("v_mov_b32 %s, 0x3f803f80" % v(254))
    for i in range(areg_lo, areg_hi): e("v_accvgpr_write_b32 %s, 0" % a(i))
    for i in range(4): e("v_accvgpr_write_b32 %s, %s" % (a(ones_at+i), v(254)))

X_CS = 0
X_NM = 1024
X_RS = 2048
X_EX = 4096
vQp = 160
vKA, vKB, vKP = 180, 190, 200
vVp = 210
NEG = 0xf149f2ca
def stats_finalize(e, vsum, vsq, vt, out_nm, out_rs, out_std, smask):
    e("v_cndmask_b32_e64 %s, 0, %s, %s" % (v(vt), v(vsq+0), sr(smask,2)))
    for r in (1,2,3):
        e("v_cndmask_b32_e64 %s, %s, %s, %s" % (v(vt), v(vt), v(vsq+r), sr(smask+2*r,2)))
    e("v_mov_b32 %s, %s" % (v(vt+1), v(vt)))
    e("v_permlane32_swap_b32 %s, %s" % (v(vt), v(vt+1)))
    e("v_add_f32 %s, %s, %s" % (v(vt), v(vt), v(vt+1)))
    e("v_mov_b32 %s, %s" % (v(vt+1), v(vt)))
    e("v_permlane16_swap_b32 %s, %s" % (v(vt), v(vt+1)))
    e("v_add_f32 %s, %s, %s" % (v(vt), v(vt), v(vt+1)))
    e("v_mul_f32 %s, 0x%08x, %s" % (v(out_nm), f2u(-1.0/640), v(vsum)))
    e("v_mul_f32 %s, 0x%08x, %s" % (v(vt), f2u(1.0/640), v(vt)))
    e("v_fma_f32 %s, -%s, %s, %s" % (v(vt), v(out_nm), v(out_nm), v(vt)))
    e("v_max_f32 %s, 0, %s" % (v(vt), v(vt)))
    e("v_add_f32 %s, 0x%08x, %s" % (v(vt), f2u(1e-5), v(vt)))
    e("v_rsq_f32 %s, %s" % (v(out_rs), v(vt)))
    if out_std is not None:
        e("v_mul_f32 %s, %s, %s" % (v(out_std), v(vt), v(out_rs)))

import struct
def f2u(x): return struct.unpack("<I", struct.pack("<f", x))[0]

def attn_epilogue(w, e):
    H = [c for c in range(15) if c % 4 == w]
    tNM = [240, 242]; tRS = [244, 246]
    tSTD = [248, 249]
    vt = 250
    smask = sM
    for r in range(4):
        e("s_mov_b32 %s, 0x%08x" % (s(smask+2*r), 0x00100001 << r))
        e("s_mov_b32 %s, 0x%08x" % (s(smask+2*r+1), 0x10000100 << r))
    e("v_and_b32 v253, 15, %s" % v(vLane))
    e("v_lshlrev_b32 v253, 2, v253")
    for T in (0, 1):
        stats_finalize(e, vSumT[T], vSqT[T], vt, tNM[T], tRS[T], tSTD[T], smask)
        e("ds_write_b32 v253, %s offset:%d" % (v(tNM[T]), X_NM + (1+2*w+T)*64))
        e("ds_write_b32 v253, %s offset:%d" % (v(tRS[T]), X_RS + (1+2*w+T)*64))
    if w == 3:
        stats_finalize(e, vSumH, vSqH, vt, 136, 137, None, smask)
        e("ds_write_b32 v253, v136 offset:%d" % (X_NM))
        e("ds_write_b32 v253, v137 offset:%d" % (X_RS))
    e("s_cmp_lg_u32 %s, 0" % s(sCB))
    e("s_cbranch_scc1 L_nors_%d" % w)
    e("s_lshl_b32 %s, %s, 9" % (s(sT0), s(sRB)))
    e("s_add_u32 %s, %s, %d" % (s(sT0), s(sT0), RSTD_OFF + w*128))
    e("buffer_store_dword %s, v253, %s, %s offen" % (v(tRS[0]), sr(sWS,4), s(sT0)))
    e("buffer_store_dword %s, v253, %s, %s offen offset:64" % (v(tRS[1]), sr(sWS,4), s(sT0)))
    e.lab("L_nors_%d" % w)
    e("v_lshrrev_b32 v252, 4, %s" % v(vLane))
    e("v_lshlrev_b32 v252, 4, v252")
    e("s_mov_b32 exec_lo, 0x00010001"); e("s_mov_b32 exec_hi, 0x00010001")
    for c in H:
        if c < 10: e("ds_write_b128 v252, %s offset:%d" % (vr(acc_halo(c >> 2),4), X_CS + c*64))
    e("s_mov_b32 exec_lo, 0x0000ffff"); e("s_mov_b32 exec_hi, 0")
    for c in H:
        if c >= 10: e("ds_write_b32 v253, %s offset:%d" % (v(acc_halo(c >> 2)), X_CS + c*64))
    e("s_mov_b64 exec, -1")
    e("s_waitcnt lgkmcnt(0)")
    e("s_barrier")
    nm4 = [136, 140]; rs4 = [144, 148]
    for T in (0, 1):
        e("ds_read_b128 %s, v252 offset:%d" % (vr(nm4[T],4), X_NM + (1+2*w+T)*64))
        e("ds_read_b128 %s, v252 offset:%d" % (vr(rs4[T],4), X_RS + (1+2*w+T)*64))
    hK = [c for c in H if 5 <= c < 10]; hV = [c for c in H if c >= 10]
    tHN, tHR = 152, 154
    hn4, hr4 = 156, 236+4
    hr4 = 232
    e("ds_read_b32 %s, v253 offset:%d" % (v(tHN), X_NM))
    e("ds_read_b32 %s, v253 offset:%d" % (v(tHR), X_RS))
    csA, csB = 250, 120
    cs_buf = [236, 0]
    def pkfma_bc(d, s0, sc):
        e("v_pk_fma_f32 %s, %s, %s, %s op_sel_hi:[1,0,1]" % (vr(d,2), vr(s0,2), vr(sc,2), vr(d,2)))
    def pkmul_bc(d, sc):
        e("v_pk_mul_f32 %s, %s, %s op_sel_hi:[1,0]" % (vr(d,2), vr(d,2), vr(sc,2)))
    csr = [224, 228]
    for c in range(10):
        e("ds_read_b128 %s, v252 offset:%d" % (vr(csr[c & 1],4), X_CS + c*64))
        cs4 = csr[c & 1]
        for T in (0, 1):
            d = acc_own(T, c)
            pkfma_bc(d, cs4, tNM[T]); pkfma_bc(d+2, cs4+2, tNM[T])
            if c >= 5:
                pkmul_bc(d, tRS[T]); pkmul_bc(d+2, tRS[T])
            dst = (vQp + T*10 + 2*c) if c < 5 else ((vKA, vKB)[T] + 2*(c-5))
            e("v_cvt_pk_bf16_f32 %s, %s, %s" % (v(dst), v(d), v(d+1)))
            e("v_cvt_pk_bf16_f32 %s, %s, %s" % (v(dst+1), v(d+2), v(d+3)))
        if c in hK:
            d = acc_halo(c >> 2)
            pkfma_bc(d, cs4, tHN); pkfma_bc(d+2, cs4+2, tHN)
            pkmul_bc(d, tHR); pkmul_bc(d+2, tHR)
            e("v_cvt_pk_bf16_f32 %s, %s, %s" % (v(d), v(d), v(d+1)))
            e("v_cvt_pk_bf16_f32 %s, %s, %s" % (v(d+1), v(d+2), v(d+3)))
    e("v_lshlrev_b32 v251, 3, %s" % v(vLane))
    for c in hK:
        e("ds_write_b64 v251, %s offset:%d" % (vr(acc_halo(c >> 2),2), X_EX + (c-5)*512))
    if w < 3:
        for i in range(5):
            e("ds_write_b64 v251, %s offset:%d" % (vr(vKB+2*i,2), X_EX + (w+1)*5120 + i*512))
    hn4, hr4 = 0, 4
    if hV:
        e("ds_read_b128 %s, v252 offset:%d" % (vr(hn4,4), X_NM))
        e("ds_read_b128 %s, v252 offset:%d" % (vr(hr4,4), X_RS))
    csd = 8
    for i in range(5):
        e("ds_read_b32 %s, v253 offset:%d" % (v(csd + 2*i), X_CS + (10+i)*64))
    for i in range(5):
        c = 10 + i
        for T in (0, 1):
            d = acc_own(T, c)
            for h_ in (0, 2):
                e("v_pk_fma_f32 %s, %s, %s, %s op_sel_hi:[1,0,1]" % (vr(d+h_,2), vr(nm4[T]+h_,2), vr(csd+2*i,2), vr(d+h_,2)))
                e("v_pk_mul_f32 %s, %s, %s" % (vr(d+h_,2), vr(d+h_,2), vr(rs4[T]+h_,2)))
            dst = vVp + 6*i + 2 + 2*T
            e("v_cvt_pk_bf16_f32 %s, %s, %s" % (v(dst), v(d), v(d+1)))
            e("v_cvt_pk_bf16_f32 %s, %s, %s" % (v(dst+1), v(d+2), v(d+3)))
        if c in hV:
            d = acc_halo(c >> 2)
            for h_ in (0, 2):
                e("v_pk_fma_f32 %s, %s, %s, %s op_sel_hi:[1,0,1]" % (vr(d+h_,2), vr(hn4+h_,2), vr(csd+2*i,2), vr(d+h_,2)))
                e("v_pk_mul_f32 %s, %s, %s" % (vr(d+h_,2), vr(d+h_,2), vr(hr4+h_,2)))
            e("v_cvt_pk_bf16_f32 %s, %s, %s" % (v(d), v(d), v(d+1)))
            e("v_cvt_pk_bf16_f32 %s, %s, %s" % (v(d+1), v(d+2), v(d+3)))
            e("ds_write_b64 v251, %s offset:%d" % (vr(d,2), X_EX + (5+i)*512))
        if w < 3:
            e("ds_write_b64 v251, %s offset:%d" % (vr(vVp+6*i+4,2), X_EX + (w+1)*5120 + (5+i)*512))
    vBP, vBC, vBPA = 0, 4, 8
    vSel = 12
    vML, vMH = 16, 20
    vONE = 24
    vT16, vG = 28, 29
    attn_consts(w, e, vBP, vBC, vBPA, vSel, vML, vMH, vONE, vT16, vG)
    cF = [30, 31]
    for T in (0, 1):
        e("v_mul_f32 %s, 0x%08x, %s" % (v(cF[T]), f2u((20.0 ** -0.5) * 1.4426950408889634), v(tRS[T])))
    e("s_mov_b32 %s, 0xffff" % s(sM+8)); e("s_mov_b32 %s, 0" % s(sM+9))
    e("s_mov_b32 %s, -1" % s(sM+10)); e("s_mov_b32 %s, 0" % s(sM+11))
    e("s_mov_b32 %s, -1" % s(sM+12)); e("s_mov_b32 %s, 0xffff" % s(sM+13))
    e("v_lshlrev_b32 v250, 4, %s" % v(vLane))
    attn_tile(e, w, 1, vKA, vKB, lambda i: vVp+6*i+2, vBP, vBC, vSel, vML, vMH, vONE, cF[1], tSTD[1])
    e("s_waitcnt lgkmcnt(0)")
    e("s_barrier")
    for i in range(5):
        e("ds_read_b64 %s, v251 offset:%d" % (vr(vKP+2*i,2), X_EX + w*5120 + i*512))
        e("ds_read_b64 %s, v251 offset:%d" % (vr(vVp+6*i,2), X_EX + w*5120 + (5+i)*512))
    attn_tile(e, w, 0, vKP, vKA, lambda i: vVp+6*i, vBPA, vBC, vSel, vML, vMH, vONE, cF[0], tSTD[0])

def attn_consts(w, e, vBP, vBC, vBPA, vSel, vML, vMH, vONE, vT16, vG):
    e("v_and_b32 %s, 15, %s" % (v(vT16), v(vLane)))
    e("v_lshrrev_b32 %s, 4, %s" % (v(vG), v(vLane)))
    t0, t1, t2 = 32, 33, 34
    e("v_lshlrev_b32 %s, 2, %s" % (v(t0), v(vG)))
    e("v_sub_u32 %s, %s, %s" % (v(t0), v(vT16), v(t0)))
    e("v_and_b32 %s, 1, %s" % (v(t1), v(vT16)))
    e("v_mov_b32 %s, 0x%08x" % (v(t2), NEG))
    e("v_cmp_eq_u32 %s, 0, %s" % (sr(sM+14,2), v(t1)))
    for r in range(4):
        e("v_subrev_u32 %s, %d, %s" % (v(35), r, v(t0)))
        e("v_cmp_le_i32 %s, 0, %s" % (sr(sM+16,2), v(35)))
        if r & 1: e("s_andn2_b64 %s, %s, %s" % (sr(sM+18,2), "exec", sr(sM+14,2)))
        else:     e("s_mov_b64 %s, %s" % (sr(sM+18,2), sr(sM+14,2)))
        e("s_and_b64 %s, %s, %s" % (sr(sM+20,2), sr(sM+18,2), sr(sM+16,2)))
        e("s_andn2_b64 %s, %s, %s" % (sr(sM+22,2), sr(sM+18,2), sr(sM+16,2)))
        e("v_cndmask_b32_e64 %s, %s, 0, %s" % (v(vBC+r), v(t2), sr(sM+20,2)))
        e("v_cndmask_b32_e64 %s, %s, 0, %s" % (v(vBP+r), v(t2), sr(sM+22,2)))
    for r in range(4): e("v_mov_b32 %s, %s" % (v(vBPA+r), v(vBP+r)))
    if w == 0:
        e("s_cmp_lg_u32 %s, 0" % s(sRB))
        e("s_cbranch_scc1 L_notfirst")
        for r in range(4): e("v_mov_b32 %s, %s" % (v(vBPA+r), v(t2)))
        e.lab("L_notfirst")
    e("v_sub_u32 %s, %s, %s" % (v(35), v(t0), v(t1)))
    e("v_mov_b32 %s, 0x0c0c0100" % v(36)); e("v_mov_b32 %s, 0x01000c0c" % v(37))
    e("v_cndmask_b32_e64 %s, %s, %s, %s" % (v(36), v(37), v(36), sr(sM+14,2)))
    e("v_mov_b32 %s, 0x0c0c0302" % v(37)); e("v_mov_b32 %s, 0x03020c0c" % v(38))
    e("v_cndmask_b32_e64 %s, %s, %s, %s" % (v(37), v(38), v(37), sr(sM+14,2)))
    e("v_mov_b32 %s, 0x0c0c0c0c" % v(38))
    e("v_cmp_le_i32 %s, 0, %s" % (sr(sM+16,2), v(35)))
    e("v_cndmask_b32_e64 %s, %s, %s, %s" % (v(vSel+0), v(36), v(38), sr(sM+16,2)))
    e("v_cndmask_b32_e64 %s, %s, %s, %s" % (v(vSel+2), v(38), v(36), sr(sM+16,2)))
    e("v_cmp_le_i32 %s, 2, %s" % (sr(sM+16,2), v(35)))
    e("v_cndmask_b32_e64 %s, %s, %s, %s" % (v(vSel+1), v(37), v(38), sr(sM+16,2)))
    e("v_cndmask_b32_e64 %s, %s, %s, %s" % (v(vSel+3), v(38), v(37), sr(sM+16,2)))
    for h in (1, 2, 3):
        e("v_cmp_le_u32 %s, %d, %s" % (sr(sM+16,2), h, v(vG)))
        e("v_cndmask_b32_e64 %s, 0, -1, %s" % (v(vML+h), sr(sM+16,2)))
    for h in (0, 1, 2):
        e("v_cmp_ge_u32 %s, %d, %s" % (sr(sM+16,2), h, v(vG)))
        e("v_cndmask_b32_e64 %s, 0, -1, %s" % (v(vMH+h), sr(sM+16,2)))
    for r in range(4): e("v_mov_b32 %s, 0x3f803f80" % v(vONE+r))

def attn_tile(e, w, T, kprev, kcur, vfrag, bP, bC, vSel, vML, vMH, vONE, cF, std):
    Qm = [40, 44, 48, 52]
    S0 = [56, 60, 64, 68]; S1 = [72, 76, 80, 84]
    P  = [88, 92, 96, 100]
    Lh = [104, 108, 112, 116]
    O  = {}
    qp = vQp + T*10
    for h in range(4):
        for k in range(2):
            if h == 0: e("v_mov_b32 %s, %s" % (v(Qm[h]+k), v(qp+2*h+k)))
            else:      e("v_and_b32 %s, %s, %s" % (v(Qm[h]+k), v(qp+2*h+k), v(vML+h)))
            if h == 3: e("v_mov_b32 %s, %s" % (v(Qm[h]+2+k), v(qp+2*h+2+k)))
            else:      e("v_and_b32 %s, %s, %s" % (v(Qm[h]+2+k), v(qp+2*h+2+k), v(vMH+h)))
    for h in range(4):
        e("%s %s, %s, %s, %s" % (MFMA, vr(S0[h],4), vr(kprev+2*h,4), vr(Qm[h],4), vr(bP,4)))
        e("%s %s, %s, %s, %s" % (MFMA, vr(S1[h],4), vr(kcur+2*h,4), vr(Qm[h],4), vr(bC,4)))
    va = [120, 122, 124, 126]; mx = [128, 129, 130, 131]; tmp = 132
    for h in range(4):
        e("v_max3_f32 %s, %s, %s, %s" % (v(va[h]), v(S0[h]), v(S0[h]+1), v(S1[h])))
        e("v_max3_f32 %s, %s, %s, %s" % (v(va[h]+1), v(S0[h]+2), v(S0[h]+3), v(S1[h]+2)))
        e("v_max_f32 %s, %s, %s" % (v(va[h]), v(va[h]), v(S1[h]+1)))
        e("v_max_f32 %s, %s, %s" % (v(va[h]+1), v(va[h]+1), v(S1[h]+3)))
        e("v_max_f32 %s, %s, %s" % (v(mx[h]), v(va[h]), v(va[h]+1)))
    e("v_permlane32_swap_b32 %s, %s" % (v(mx[0]), v(mx[1])))
    e("v_permlane32_swap_b32 %s, %s" % (v(mx[2]), v(mx[3])))
    e("v_max_f32 %s, %s, %s" % (v(mx[0]), v(mx[0]), v(mx[1])))
    e("v_max_f32 %s, %s, %s" % (v(mx[2]), v(mx[2]), v(mx[3])))
    e("v_permlane16_swap_b32 %s, %s" % (v(mx[0]), v(mx[2])))
    e("v_max_f32 %s, %s, %s" % (v(mx[0]), v(mx[0]), v(mx[2])))
    e("v_mov_b32 %s, %s" % (v(mx[2]), v(mx[0])))
    e("v_permlane16_swap_b32 %s, %s" % (v(mx[0]), v(mx[2])))
    e("v_mov_b32 %s, %s" % (v(mx[1]), v(mx[0])))
    e("v_mov_b32 %s, %s" % (v(mx[3]), v(mx[2])))
    e("v_permlane32_swap_b32 %s, %s" % (v(mx[0]), v(mx[1])))
    e("v_permlane32_swap_b32 %s, %s" % (v(mx[2]), v(mx[3])))
    for h in range(4):
        e("v_mul_f32 %s, %s, %s" % (v(mx[h]), v(mx[h]), v(cF)))
        e("v_fma_f32 %s, %s, %s, -%s" % (v(va[h]), v(va[h]), v(cF), v(mx[h])))
        e("v_fma_f32 %s, %s, %s, -%s" % (v(va[h]+1), v(va[h]+1), v(cF), v(mx[h])))
    for h in range(4):
        e("v_exp_f32 %s, %s" % (v(va[h]), v(va[h])))
        e("v_exp_f32 %s, %s" % (v(va[h]+1), v(va[h]+1)))
    for h in range(4):
        e("v_cvt_pk_bf16_f32 %s, %s, %s" % (v(va[h]), v(va[h]), v(va[h]+1)))
        for k in range(4):
            e("v_perm_b32 %s, %s, %s, %s" % (v(P[h]+k), v(va[h]), v(va[h]), v(vSel+k)))
    pairs = [(0,0),(1,0),(1,1),(2,1),(2,2),(3,2),(3,3),(4,3)]
    free = Qm + S0
    for n, (i, h) in enumerate(pairs):
        O[(i,h)] = free[n]
    for h in range(4):
        e("%s %s, %s, %s, 0" % (MFMA, vr(Lh[h],4), vr(vONE,4), vr(P[h],4)))
    for (i, h) in pairs:
        e("%s %s, %s, %s, 0" % (MFMA, vr(O[(i,h)],4), vr(vfrag(i),4), vr(P[h],4)))
    for h in range(4):
        e("v_rcp_f32 %s, %s" % (v(Lh[h]), v(Lh[h])))
    for h in range(4):
        e("v_mul_f32 %s, %s, %s" % (v(Lh[h]), v(Lh[h]), v(std)))
    F = [Lh[0], 72, 74, 76, Lh[3]]
    e("v_cndmask_b32_e64 %s, %s, %s, %s" % (v(F[1]), v(Lh[1]), v(Lh[0]), sr(sM+8,2)))
    e("v_cndmask_b32_e64 %s, %s, %s, %s" % (v(F[2]), v(Lh[2]), v(Lh[1]), sr(sM+10,2)))
    e("v_cndmask_b32_e64 %s, %s, %s, %s" % (v(F[3]), v(Lh[3]), v(Lh[2]), sr(sM+12,2)))
    R = {}
    R[0] = O[(0,0)]; R[4] = O[(4,3)]
    for i in (1, 2, 3):
        lo, hi = O[(i,i-1)], O[(i,i)]
        for r in range(4):
            e("v_cndmask_b32_e64 %s, %s, %s, %s" % (v(hi+r), v(hi+r), v(lo+r), sr(sM+8+2*(i-1),2)))
        R[i] = hi
    out = P[0]
    for i in range(5):
        e("v_pk_mul_f32 %s, %s, %s op_sel_hi:[1,0]" % (vr(R[i],2), vr(R[i],2), vr(F[i],2)))
        e("v_pk_mul_f32 %s, %s, %s op_sel_hi:[1,0]" % (vr(R[i]+2,2), vr(R[i]+2,2), vr(F[i],2)))
        e("v_cvt_pk_bf16_f32 %s, %s, %s" % (v(out+2*i), v(R[i]), v(R[i]+1)))
        e("v_cvt_pk_bf16_f32 %s, %s, %s" % (v(out+2*i+1), v(R[i]+2), v(R[i]+3)))
    gl = 2*w + T
    e("s_lshl_b32 %s, %s, 1" % (s(sT0), s(sRB)))
    e("s_add_u32 %s, %s, %d" % (s(sT0), s(sT0), gl >> 2))
    e("s_mul_i32 %s, %s, %d" % (s(sT0), s(sT0), ACT_TB))
    e("s_lshr_b32 %s, %s, 1" % (s(sT1), s(sCB)))
    e("s_mul_i32 %s, %s, 5" % (s(sT1), s(sT1)))
    e("s_and_b32 %s, %s, 1" % (s(sT2), s(sCB)))
    e("s_lshl_b32 %s, %s, 1" % (s(sT3), s(sT2)))
    e("s_add_u32 %s, %s, %s" % (s(sT3), s(sT3), s(sT1)))
    e("s_lshl_b32 %s, %s, 12" % (s(sT3), s(sT3)))
    e("s_add_u32 %s, %s, %s" % (s(sT3), s(sT3), s(sT0)))
    e("s_add_u32 %s, %s, %d" % (s(sT3), s(sT3), ACT_OFF + (gl & 3)*1024))
    e("buffer_store_dwordx4 %s, v250, %s, %s offen" % (vr(out,4), sr(sWS,4), s(sT3)))
    e("s_add_u32 %s, %s, 4096" % (s(sT3), s(sT3)))
    e("buffer_store_dwordx4 %s, v250, %s, %s offen" % (vr(out+4,4), sr(sWS,4), s(sT3)))
    e("s_add_u32 %s, %s, 4" % (s(sT1), s(sT1)))
    e("s_lshl_b32 %s, %s, 12" % (s(sT1), s(sT1)))
    e("s_add_u32 %s, %s, %s" % (s(sT1), s(sT1), s(sT0)))
    e("s_lshl_b32 %s, %s, 3" % (s(sT2), s(sT2)))
    e("s_add_u32 %s, %s, %s" % (s(sT1), s(sT1), s(sT2)))
    e("s_add_u32 %s, %s, %d" % (s(sT1), s(sT1), ACT_OFF + (gl & 3)*1024))
    e("buffer_store_dwordx2 %s, v250, %s, %s offen" % (vr(out+8,2), sr(sWS,4), s(sT1)))

F_SLOT = 49152; F_XB = 16384
fWA = [160, 161, 162, 163]
fDX, fDW = 164, 168
def facc(T, c): return (T*16 + c)*4
fCS = 128
fSUM = [144, 148]
F_X0, F_X1 = 176, 177
def fxf(kh, T): return aXF + (kh*2 + T)*4

def ffn_prologue(w, e):
    e("v_lshrrev_b32 v1, 3, %s" % v(vLane))
    e("v_mul_u32_u24 v6, 1280, v1")
    e("v_and_b32 v2, 7, %s" % v(vLane))
    e("v_lshrrev_b32 v3, 4, %s" % v(vLane))
    e("v_xor_b32 v4, v2, v3")
    e("v_lshlrev_b32 v4, 4, v4")
    e("v_add_u32 v4, v4, v6")
    e("v_xor_b32 v5, 64, v4")
    e("s_lshl_b32 %s, %s, 7" % (s(sT0), s(sRB)))
    e("s_mul_i32 %s, %s, 1280" % (s(sT0), s(sT0)))
    for m in range(4):
        j = 4*w + m
        e("s_add_u32 %s, %s, %d" % (s(sT2), s(sT0), j*8*1280 - m*1024))
        e("v_add_u32 %s, %s, %s" % (v(fDX+m), s(sT2), v(5 if j & 1 else 4)))
    e("v_lshrrev_b32 v6, 2, v1")
    e("v_lshlrev_b32 v6, 3, v6")
    e("v_and_b32 v7, 3, v1")
    e("v_add_u32 v6, v6, v7")
    e("v_mul_u32_u24 v6, 3456, v6")
    e("v_lshrrev_b32 v7, 1, v2")
    e("v_xor_b32 v7, v7, v3")
    e("v_lshlrev_b32 v7, 5, v7")
    e("v_and_b32 v8, 1, v2")
    e("v_lshlrev_b32 v8, 4, v8")
    e("v_add3_u32 v6, v6, v7, v8")
    e("s_lshl_b32 %s, %s, 9" % (s(sT0), s(sCB)))
    for m in range(8):
        kh, grp = m >> 2, m & 3
        k = 32*kh + 16*(grp & 1) + 4*(grp >> 1)
        e("s_add_u32 %s, %s, %d" % (s(sT2), s(sT0), k*3456 + w*128 - (m & 3)*1024))
        e("v_add_u32 %s, %s, v6" % (v(fDW+m), s(sT2)))

def ffn_dma_groups(w, slot_s):
    G = []
    for m in range(4):
        g = []
        if m == 0:
            g.append("s_add_u32 m0, %s, %d" % (s(slot_s), 4*w*1024)); g.append("s_nop 0")
        g.append("buffer_load_dwordx4 %s, %s, %s offen offset:%d lds" % (v(fDX+m), sr(sX,4), s(sSoX), m*1024))
        G.append(g)
    for m in range(8):
        g = []
        if m % 4 == 0:
            g.append("s_add_u32 m0, %s, %d" % (s(slot_s), F_XB + w*8192 + m*1024)); g.append("s_nop 0")
        g.append("buffer_load_dwordx4 %s, %s, %s offen offset:%d lds" % (v(fDW+m), sr(sW,4), s(sSoW), (m % 4)*1024))
        G.append(g)
    return G

def ffn_loop_cfg(w):
    cfg = LoopCfg()
    cfg.slot = F_SLOT; cfg.ntile = 16; cfg.ring = 8; cfg.look = 6; cfg.tail = 4; cfg.wbase = aW
    H = [c for c in range(16) if c % 4 == w]
    def wread(kh, c, reg):
        off = (c >> 2)*8192 + kh*4096
        ad = v(fWA[c & 3])
        return ["ds_read_b64_tr_b16 %s, %s offset:%d" % (ar(reg,2), ad, off),
                "ds_read_b64_tr_b16 %s, %s offset:%d" % (ar(reg+2,2), ad, off + 2048)]
    def mf(kh, c, reg):
        out = []
        for T in (0, 1):
            d = vr(facc(T, c), 4)
            out.append("%s %s, %s, %s, %s" % (MFMA, d, ar(reg,4), ar(fxf(kh,T),4), d))
        if c in H:
            d = vr(fCS + (c >> 2)*4, 4)
            out.append("%s %s, %s, %s, %s" % (MFMA, d, ar(reg,4), ar(aONE,4), d))
        return out
    def stats(kh):
        return ["%s %s, %s, %s, %s" % (MFMA, vr(fSUM[T],4), ar(aONE,4), ar(fxf(kh,T),4), vr(fSUM[T],4)) for T in (0,1)]
    def xreads(kh):
        ad = F_X1 if kh else F_X0
        return ["ds_read_b128 %s, %s offset:%d" % (ar(fxf(kh,T),4), v(ad), (2*w+T)*2048) for T in (0,1)]
    cfg.wread = wread; cfg.mf = mf; cfg.stats = stats; cfg.xreads = xreads
    cfg.xread1_at = 6
    cfg.addr_update = addr_update(F_SLOT, fWA + [F_X0, F_X1])
    cfg.scal_update = scal_update(F_SLOT, 64*3456)
    cfg.dma = ffn_dma_groups(w, sDSlot)
    cfg.nd_instr = 12
    cfg.dma_start = 12; cfg.dma_endgap = 14
    return cfg

def read_addr_setup_ffn(e):
    e("v_and_b32 v1, 15, %s" % v(vLane))
    e("v_lshrrev_b32 v2, 2, v1")
    e("v_and_b32 v3, 3, v1")
    e("v_lshrrev_b32 v4, 4, %s" % v(vLane))
    e("v_lshl_add_u32 v2, v4, 2, v2")
    e("v_lshrrev_b32 v5, 1, v2")
    e("v_and_b32 v5, 3, v5")
    e("v_lshlrev_b32 v2, 7, v2")
    e("v_lshl_add_u32 v2, v3, 3, v2")
    e("v_add_u32 v2, %d, v2" % (2*F_SLOT + F_XB))
    for u in range(4):
        e("v_xor_b32 v6, %d, v5" % u)
        e("v_lshl_add_u32 %s, v6, 5, v2" % v(fWA[u]))
    e("v_and_b32 v1, 15, %s" % v(vLane))
    e("v_lshrrev_b32 v2, 1, v1")
    e("v_xor_b32 v2, v2, v4")
    e("v_lshlrev_b32 v2, 4, v2")
    e("v_lshl_add_u32 v2, v1, 7, v2")
    e("v_add_u32 %s, %d, v2" % (v(F_X0), 2*F_SLOT))
    e("v_xor_b32 v2, 64, v2")
    e("v_add_u32 %s, %d, v2" % (v(F_X1), 2*F_SLOT))

def ffn_epilogue(w, e):
    H = [c for c in range(16) if c % 4 == w]
    nm = [150, 152]
    for T in (0, 1):
        e("v_mul_f32 %s, 0x%08x, %s" % (v(nm[T]), f2u(-1.0/640), v(fSUM[T])))
    e("v_lshrrev_b32 v252, 4, %s" % v(vLane))
    e("v_lshlrev_b32 v252, 4, v252")
    e("s_mov_b32 exec_lo, 0x00010001"); e("s_mov_b32 exec_hi, 0x00010001")
    for c in H:
        e("ds_write_b128 v252, %s offset:%d" % (vr(fCS + (c >> 2)*4, 4), c*64))
    e("s_mov_b64 exec, -1")
    e("s_waitcnt lgkmcnt(0)")
    e("s_barrier")
    e("v_lshlrev_b32 v250, 4, %s" % v(vLane))
    e("s_lshl_b32 %s, %s, 1" % (s(sT0), s(sRB)))
    e("s_add_u32 %s, %s, %d" % (s(sT0), s(sT0), (2*w) >> 2))
    e("s_mul_i32 %s, %s, %d" % (s(sT0), s(sT0), ACT_TB))
    e("s_lshl_b32 %s, %s, 3" % (s(sT1), s(sCB)))
    e("s_add_u32 %s, %s, 20" % (s(sT1), s(sT1)))
    e("s_lshl_b32 %s, %s, 12" % (s(sT1), s(sT1)))
    e("s_add_u32 %s, %s, %s" % (s(sT0), s(sT0), s(sT1)))
    e("s_add_u32 %s, %s, %d" % (s(sT0), s(sT0), ACT_OFF + ((2*w) & 3)*1024))
    cs = [160, 164, 168, 172]
    pk = [180, 184, 188, 192]
    for a_ in range(8):
        if a_ == 6:
            e("s_cmp_eq_u32 %s, 6" % s(sCB))
            e("s_cbranch_scc1 L_ffn_done_%d" % w)
        for k in range(2):
            c = 2*a_ + k
            e("ds_read_b128 %s, v252 offset:%d" % (vr(cs[(2*a_+k) & 3],4), c*64))
        for T in (0, 1):
            o = pk[(2*a_ + T) & 3]
            for k in range(2):
                c = 2*a_ + k; d = facc(T, c); q = cs[c & 3]
                e("v_pk_fma_f32 %s, %s, %s, %s op_sel_hi:[1,0,1]" % (vr(d,2), vr(q,2), vr(nm[T],2), vr(d,2)))
                e("v_pk_fma_f32 %s, %s, %s, %s op_sel_hi:[1,0,1]" % (vr(d+2,2), vr(q+2,2), vr(nm[T],2), vr(d+2,2)))
                e("v_cvt_pk_bf16_f32 %s, %s, %s" % (v(o+2*k), v(d), v(d+1)))
                e("v_cvt_pk_bf16_f32 %s, %s, %s" % (v(o+2*k+1), v(d+2), v(d+3)))
                e("v_pk_max_i16 %s, %s, 0" % (v(o+2*k), v(o+2*k)))
                e("v_pk_max_i16 %s, %s, 0" % (v(o+2*k+1), v(o+2*k+1)))
            e("buffer_store_dwordx4 %s, v250, %s, %s offen offset:%d" % (vr(o,4), sr(sWS,4), s(sT0), T*1024))
        e("s_add_u32 %s, %s, 4096" % (s(sT0), s(sT0)))
    e.lab("L_ffn_done_%d" % w)

P_STRIDE = 1312
def preformat(e):
    e("v_lshlrev_b32 v250, 4, %s" % v(vLane))
    for i in range(10):
        e("v_add_u32 v1, %d, %s" % (64*i, v(vLane)))
        e("v_mul_u32_u24 v2, 205, v1"); e("v_lshrrev_b32 v2, 14, v2")
        e("v_mul_u32_u24 v3, 80, v2"); e("v_sub_u32 v3, v1, v3")
        e("v_mul_u32_u24 v4, 1280, v2"); e("v_lshl_add_u32 %s, v3, 4, v4" % v(200+i))
        e("v_mul_u32_u24 v4, %d, v2" % P_STRIDE); e("v_lshl_add_u32 %s, v3, 4, v4" % v(210+i))
    e("s_mul_i32 %s, %s, %d" % (s(sT0), s(sWave), 8*P_STRIDE))
    for i in range(10): e("v_add_u32 %s, %s, %s" % (v(210+i), s(sT0), v(210+i)))
    e("v_and_b32 v1, 15, %s" % v(vLane)); e("v_lshrrev_b32 v2, 2, v1"); e("v_and_b32 v3, 3, v1")
    e("v_lshrrev_b32 v4, 4, %s" % v(vLane)); e("v_lshl_add_u32 v2, v4, 2, v2")
    e("v_mul_u32_u24 v2, %d, v2" % P_STRIDE)
    e("v_lshl_add_u32 v220, v3, 4, v2")
    e("v_lshl_add_u32 v221, v3, 3, v2")
    e("s_mul_i32 %s, %s, 320" % (s(sT0), s(sWave)))
    e("v_add_u32 v220, %s, v220" % s(sT0)); e("v_add_u32 v221, %s, v221" % s(sT0))
    e("s_mul_i32 %s, %s, 5" % (s(sKC), s(sCB)))
    e("s_mov_b32 %s, 0" % s(sIter))
    e.lab("L_pf_loop")
    e("s_cmp_ge_u32 %s, %d" % (s(sKC), NKS))
    e("s_cbranch_scc1 L_pf_done")
    e("s_mul_i32 %s, %s, 52" % (s(sT0), s(sKC))); e("s_lshr_b32 %s, %s, 8" % (s(sT0), s(sT0)))
    e("s_mul_i32 %s, %s, 5" % (s(sT1), s(sT0))); e("s_sub_u32 %s, %s, %s" % (s(sT1), s(sKC), s(sT1)))
    e("s_mul_i32 %s, %s, 160" % (s(sT0), s(sT0)))
    e("s_lshl_b32 %s, %s, 5" % (s(sT2), s(sT1)))
    e("s_cmp_ge_u32 %s, 2" % s(sT1))
    e("s_cselect_b32 %s, 16, 0" % s(sT3))
    e("s_add_u32 %s, %s, %s" % (s(sT2), s(sT2), s(sT3)))
    e("s_add_u32 %s, %s, %s" % (s(sT2), s(sT2), s(sT0)))
    e("s_add_u32 %s, %s, 16" % (s(sT3), s(sT2)))
    e("s_cmp_eq_u32 %s, 4" % s(sT1))
    e("s_cbranch_scc0 L_pf_notshared")
    e("s_add_u32 %s, %s, 64" % (s(sT2), s(sT0)))
    e("s_add_u32 %s, %s, 144" % (s(sT3), s(sT0)))
    e.lab("L_pf_notshared")
    e("s_cmp_lt_u32 %s, 20" % s(sKC))
    e("s_cbranch_scc1 L_pf_wo")
    e("s_sub_u32 %s, %s, 20" % (s(sT2), s(sKC)))
    e("s_lshl_b32 %s, %s, 5" % (s(sT2), s(sT2)))
    e("s_add_u32 %s, %s, 16" % (s(sT3), s(sT2)))
    e("s_mov_b32 %s, %s" % (s(sX), s(14))); e("s_and_b32 %s, %s, 0xffff" % (s(sX+1), s(15))); e("s_mov_b32 %s, %d" % (s(sX+2), W2_BYTES))
    e.lab("L_pf_wo")
    e("s_cmp_ge_u32 %s, 2" % s(sWave))
    e("s_cselect_b32 %s, %s, %s" % (s(sT2), s(sT3), s(sT2)))
    e("s_and_b32 %s, %s, 1" % (s(sT3), s(sWave)))
    e("s_lshl_b32 %s, %s, 3" % (s(sT3), s(sT3)))
    e("s_add_u32 %s, %s, %s" % (s(sT2), s(sT2), s(sT3)))
    e("s_mul_i32 %s, %s, 1280" % (s(sT2), s(sT2)))
    for i in range(10):
        e("buffer_load_dwordx4 %s, %s, %s, %s offen" % (vr(4*i,4), v(200+i), sr(sX,4), s(sT2)))
    for i in range(10):
        e("ds_write_b128 %s, %s" % (v(210+i), vr(4*i,4)))
    e("s_waitcnt lgkmcnt(0)")
    e("s_barrier")
    e("s_mul_i32 %s, %s, 5120" % (s(sT0), s(sKC)))
    e("s_mul_i32 %s, %s, %d" % (s(sT1), s(sWave), 2*W2F_CB))
    e("s_add_u32 %s, %s, %s" % (s(sT0), s(sT0), s(sT1)))
    e("s_add_u32 %s, %s, %d" % (s(sT0), s(sT0), W2F_OFF))
    for half in range(2):
        for ct in range(5):
            d = 40 + (half*5 + ct)*4
            if ct < 4:
                off = half*160 + (ct >> 1)*64 + (ct & 1)*8; ad = 220
            else:
                off = half*160 + 128; ad = 221
            e("ds_read_b64_tr_b16 %s, %s offset:%d" % (vr(d,2), v(ad), off))
            e("ds_read_b64_tr_b16 %s, %s offset:%d" % (vr(d+2,2), v(ad), off + 16*P_STRIDE))
    for half in range(2):
        for ct in range(5):
            d = 40 + (half*5 + ct)*4
            if ct == 4 or (half == 1 and ct == 0):
                pass
            e("s_add_u32 %s, %s, %d" % (s(sT1), s(sT0), half*W2F_CB + ct*1024))
            e("buffer_store_dwordx4 %s, v250, %s, %s offen" % (vr(d,4), sr(sWS,4), s(sT1)))
    e("s_waitcnt lgkmcnt(0)")
    e("s_barrier")
    e("s_add_u32 %s, %s, 1" % (s(sKC), s(sKC)))
    e("s_add_u32 %s, %s, 1" % (s(sIter), s(sIter)))
    e("s_cmp_lt_u32 %s, 5" % s(sIter))
    e("s_cbranch_scc1 L_pf_loop")
    e.lab("L_pf_done")

K2_DEPTH = 6
def k2_body():
    e = E()
    sTB, sC2, sI, sKS, sA, sB = 36, 37, 38, 39, 40, 41
    sOUT = 28
    e("s_cmp_ge_u32 s2, 256")
    e("s_cbranch_scc1 L_k2_end")
    e("s_load_dwordx2 s[4:5], s[0:1], 0")
    e("s_load_dwordx2 s[16:17], s[0:1], 48")
    e("s_load_dwordx2 s[20:21], s[0:1], 64")
    e("v_and_b32 %s, 63, v0" % v(vLane))
    e("v_lshrrev_b32 v1, 6, v0")
    e("s_and_b32 s3, s2, 7")
    e("v_readfirstlane_b32 %s, v1" % s(sWave))
    e("s_lshr_b32 %s, s2, 3" % s(sT0))
    e("s_and_b32 %s, s3, 3" % s(sT1))
    e("s_lshl_b32 %s, %s, 3" % (s(sTB), s(sT1)))
    e("s_and_b32 %s, %s, 7" % (s(sT2), s(sT0)))
    e("s_add_u32 %s, %s, %s" % (s(sTB), s(sTB), s(sT2)))
    e("s_lshr_b32 %s, s3, 2" % s(sT1))
    e("s_lshl_b32 %s, %s, 2" % (s(sC2), s(sT1)))
    e("s_lshr_b32 %s, %s, 3" % (s(sT3), s(sT0)))
    e("s_add_u32 %s, %s, %s" % (s(sC2), s(sC2), s(sT3)))
    e("s_lshl_b32 %s, %s, 1" % (s(sI), s(sT2)))
    e("s_mul_i32 %s, %s, 5" % (s(sT3), s(sT3)))
    e("s_add_u32 %s, %s, %s" % (s(sI), s(sI), s(sT3)))
    e("s_cmp_ge_u32 %s, 19" % s(sI))
    e("s_cselect_b32 %s, 19, 0" % s(sT3))
    e("s_sub_u32 %s, %s, %s" % (s(sI), s(sI), s(sT3)))
    e("v_lshlrev_b32 v250, 4, %s" % v(vLane))
    e("v_add_u32 v251, 4096, v250")
    e("s_waitcnt lgkmcnt(0)")
    srd(e, sX, 4, X_BYTES); srd(e, sOUT, 16, X_BYTES); srd(e, sWS, 20, WS_USED)
    e("s_mul_i32 %s, %s, %d" % (s(42), s(sTB), ACT_TB))
    e("s_add_u32 %s, %s, %d" % (s(42), s(42), ACT_OFF))
    e("s_mul_i32 %s, %s, %d" % (s(43), s(sC2), W2F_CB))
    e("s_add_u32 %s, %s, %d" % (s(43), s(43), W2F_OFF))
    def step_scalars():
        e("s_lshl_b32 %s, %s, 2" % (s(sKS), s(sI)))
        e("s_add_u32 %s, %s, %s" % (s(sKS), s(sKS), s(sWave)))
        e("s_lshl_b32 %s, %s, 12" % (s(sA), s(sKS)))
        e("s_add_u32 %s, %s, %s" % (s(sA), s(sA), s(42)))
        e("s_mul_i32 %s, %s, 5120" % (s(sB), s(sKS)))
        e("s_add_u32 %s, %s, %s" % (s(sB), s(sB), s(43)))
        e("s_cmp_ge_u32 %s, %d" % (s(sKS), NKS))
        e("s_cselect_b32 %s, 0x%x, %s" % (s(sA), OOB, s(sA)))
        e("s_cselect_b32 %s, 0x%x, %s" % (s(sB), OOB, s(sB)))
        e("s_add_u32 %s, %s, 1" % (s(sI), s(sI)))
        e("s_cmp_eq_u32 %s, 19" % s(sI))
        e("s_cselect_b32 %s, 0, %s" % (s(sI), s(sI)))
    def loads(i):
        st = (i % K2_DEPTH)*36
        L = []
        for ct in range(4):
            L.append("buffer_load_dwordx4 %s, v250, %s, %s offen offset:%d" % (ar(st+16+4*ct,4), sr(sWS,4), s(sB), ct*1024))
        L.append("buffer_load_dwordx4 %s, v251, %s, %s offen" % (ar(st+32,4), sr(sWS,4), s(sB)))
        for tt in range(4):
            L.append("buffer_load_dwordx4 %s, v250, %s, %s offen offset:%d" % (ar(st+4*tt,4), sr(sWS,4), s(sA), tt*1024))
        return L
    for i in range(K2_DEPTH - 1):
        step_scalars()
        for t in loads(i): e(t)
    e("v_and_b32 v1, 15, %s" % v(vLane))
    e("v_lshrrev_b32 v2, 4, %s" % v(vLane))
    e("s_lshl_b32 %s, %s, 6" % (s(sT0), s(sTB)))
    e("s_lshl_b32 %s, %s, 4" % (s(sT1), s(sWave)))
    e("s_add_u32 %s, %s, %s" % (s(sT0), s(sT0), s(sT1)))
    e("v_add_u32 v3, %s, v1" % s(sT0))
    e("v_lshlrev_b32 v4, 2, v3")
    e("v_mul_u32_u24 v3, 1280, v3")
    e("s_mul_i32 %s, %s, 160" % (s(sT1), s(sC2)))
    e("v_add_u32 v3, %s, v3" % s(sT1))
    e("v_lshl_add_u32 v240, v2, 4, v3")
    e("v_lshl_add_u32 v241, v2, 3, v3")
    e("s_mov_b32 %s, %d" % (s(sT2), RSTD_OFF))
    e("buffer_load_dwordx4 v[224:227], v240, %s, 0 offen" % sr(sX,4))
    e("buffer_load_dwordx4 v[228:231], v240, %s, 0 offen offset:64" % sr(sX,4))
    e("buffer_load_dwordx2 v[232:233], v241, %s, 0 offen offset:128" % sr(sX,4))
    e("buffer_load_dword v234, v4, %s, %s offen" % (sr(sWS,4), s(sT2)))
    for i in range(80): e("v_mov_b32 %s, 0" % v(i))
    NST = 19
    for i in range(NST):
        nxt = i + K2_DEPTH - 1
        L = []
        if nxt < NST:
            step_scalars()
            L = loads(nxt)
        st = (i % K2_DEPTH)*36
        ms = []
        for ct in range(5):
            for tt in range(4):
                d = vr((tt*5+ct)*4, 4)
                ms.append("%s %s, %s, %s, %s" % (MFMA, d, ar(st+16+4*ct,4), ar(st+4*tt,4), d))
        k = 0
        for n, m in enumerate(ms):
            e(m)
            if L and n % 2 == 1: e(L.pop(0))
        for t in L: e(t)
    e("s_nop 7"); e("s_nop 7")
    e("v_lshlrev_b32 v242, 4, %s" % v(vLane))
    e("s_mul_i32 %s, %s, %d" % (s(sT0), s(sWave), 20*1024))
    e("v_add_u32 v243, %s, v242" % s(sT0))
    for w in range(4):
        e("s_cmp_lg_u32 %s, %d" % (s(sWave), w))
        e("s_cbranch_scc1 L_k2_w%d" % w)
        for tt in range(4):
            if tt == w: continue
            for ct in range(5):
                e("ds_write_b128 v243, %s offset:%d" % (vr((tt*5+ct)*4,4), (tt*5+ct)*1024))
        if w != 0:
            for r in range(20): e("v_mov_b32 %s, %s" % (v(r), v(w*20 + r)))
        e("s_branch L_k2_red")
        e.lab("L_k2_w%d" % w)
    e.lab("L_k2_red")
    e("s_waitcnt lgkmcnt(0)")
    e("s_barrier")
    e("s_mul_i32 %s, %s, 5120" % (s(sT0), s(sWave)))
    e("v_add_u32 v243, %s, v242" % s(sT0))
    for k in range(1, 4):
        e("s_add_u32 %s, %s, %d" % (s(sT1), s(sWave), k))
        e("s_and_b32 %s, %s, 3" % (s(sT1), s(sT1)))
        e("s_mul_i32 %s, %s, %d" % (s(sT1), s(sT1), 20*1024))
        e("v_add_u32 %s, %s, v243" % (v(243+k), s(sT1)))
        for ct in range(5):
            e("ds_read_b128 %s, %s offset:%d" % (vr(80 + ((k-1)*5+ct)*4, 4), v(243+k), ct*1024))
    for k in range(3):
        for r in range(0, 20, 2):
            e("v_pk_add_f32 %s, %s, %s" % (vr(r,2), vr(r,2), vr(80 + k*20 + r, 2)))
    xr = [224, 226, 228, 230, 232]
    o = 150
    for ct in range(5):
        xp = xr[ct]
        for hh in range(2):
            e("v_lshlrev_b32 v140, 16, %s" % v(xp+hh))
            e("v_and_b32 v141, 0xffff0000, %s" % v(xp+hh))
            d = ct*4 + 2*hh
            e("v_pk_fma_f32 %s, %s, %s, %s op_sel_hi:[1,0,1]" % (vr(140,2), vr(d,2), vr(234,2), vr(140,2)))
            e("v_cvt_pk_bf16_f32 %s, v140, v141" % v(o + 2*ct + hh))
    e("buffer_store_dwordx4 %s, v240, %s, 0 offen" % (vr(o,4), sr(sOUT,4)))
    e("buffer_store_dwordx4 %s, v240, %s, 0 offen offset:64" % (vr(o+4,4), sr(sOUT,4)))
    e("buffer_store_dwordx2 %s, v241, %s, 0 offen offset:128" % (vr(o+8,2), sr(sOUT,4)))
    e.lab("L_k2_end")
    return e.L

ROT = True
def k1_text():
    out = []
    e = E()
    e("s_cmp_ge_u32 s2, 256")
    e("s_cbranch_scc1 L_k1_end")
    e("s_load_dwordx16 s[4:19], s[0:1], 0")
    e("s_load_dwordx2 s[20:21], s[0:1], 64")
    e("v_and_b32 %s, 63, v0" % v(vLane))
    e("v_lshrrev_b32 v1, 6, v0")
    e("s_and_b32 s3, s2, 7")
    e("v_readfirstlane_b32 %s, v1" % s(sWave))
    e("s_lshr_b32 %s, s2, 3" % s(sT0))
    e("s_and_b32 %s, s3, 1" % s(sT1))
    e("s_lshr_b32 %s, s3, 1" % s(sT2))
    e("s_lshl_b32 %s, %s, 3" % (s(sT1), s(sT1)))
    e("s_cmp_ge_u32 %s, 30" % s(sT0))
    e("s_cbranch_scc1 L_role_pf")
    e("s_cmp_ge_u32 %s, 16" % s(sT0))
    e("s_cbranch_scc1 L_role_ffn")
    e("s_lshl_b32 %s, %s, 1" % (s(sCB), s(sT2)))
    e("s_lshr_b32 %s, %s, 3" % (s(sT3), s(sT0)))
    e("s_add_u32 %s, %s, %s" % (s(sCB), s(sCB), s(sT3)))
    e("s_and_b32 %s, %s, 7" % (s(sKC), s(sT0)))
    e("s_add_u32 %s, %s, %s" % (s(sRB), s(sT1), s(sKC)))
    e("s_mul_i32 %s, %s, 5" % (s(sT3), s(sT3)))
    e("s_add_u32 %s, %s, %s" % (s(sKC), s(sKC), s(sT3)))
    e("s_cmp_ge_u32 %s, 10" % s(sKC))
    e("s_cselect_b32 %s, 10, 0" % s(sT3))
    e("s_sub_u32 %s, %s, %s" % (s(sKC), s(sKC), s(sT3)))
    if not ROT: e("s_mov_b32 %s, 0" % s(sKC))
    e("s_waitcnt lgkmcnt(0)")
    srd(e, sX, 4, X_BYTES); srd(e, sW, 6, WQKV_BYTES); srd(e, sWS, 20, WS_USED)
    for w in range(3):
        e("s_cmp_eq_u32 %s, %d" % (s(sWave), w))
        e("s_cbranch_scc1 L_attn_%d" % w)
    e("s_branch L_attn_3")
    e.lab("L_role_ffn")
    e("s_mul_i32 %s, %s, 14" % (s(sT2), s(sT2)))
    e("s_add_u32 %s, %s, %s" % (s(sT2), s(sT2), s(sT0)))
    e("s_sub_u32 %s, %s, 16" % (s(sT2), s(sT2)))
    e("s_lshr_b32 %s, %s, 3" % (s(sCB), s(sT2)))
    e("s_and_b32 %s, %s, 7" % (s(sKC), s(sT2)))
    e("s_add_u32 %s, %s, %s" % (s(sRB), s(sT1), s(sKC)))
    e("s_and_b32 %s, %s, 1" % (s(sT3), s(sCB)))
    e("s_mul_i32 %s, %s, 5" % (s(sT3), s(sT3)))
    e("s_add_u32 %s, %s, %s" % (s(sKC), s(sKC), s(sT3)))
    e("s_add_u32 %s, %s, 2" % (s(sKC), s(sKC)))
    e("s_cmp_ge_u32 %s, 10" % s(sKC))
    e("s_cselect_b32 %s, 10, 0" % s(sT3))
    e("s_sub_u32 %s, %s, %s" % (s(sKC), s(sKC), s(sT3)))
    if not ROT: e("s_mov_b32 %s, 0" % s(sKC))
    e("s_waitcnt lgkmcnt(0)")
    srd(e, sX, 4, X_BYTES); srd(e, sW, 12, W1_BYTES); srd(e, sWS, 20, WS_USED)
    for w in range(3):
        e("s_cmp_eq_u32 %s, %d" % (s(sWave), w))
        e("s_cbranch_scc1 L_ffn_%d" % w)
    e("s_branch L_ffn_3")
    e.lab("L_role_pf")
    e("s_lshl_b32 %s, s3, 1" % s(sCB))
    e("s_add_u32 %s, %s, %s" % (s(sCB), s(sCB), s(sT0)))
    e("s_sub_u32 %s, %s, 30" % (s(sCB), s(sCB)))
    e("s_waitcnt lgkmcnt(0)")
    srd(e, sX, 8, WO_BYTES); srd(e, sWS, 20, WS_USED)
    out += process_path(e.L, None, None, [])
    e = E(); preformat(e)
    i0 = e.L.index("L_pf_loop:"); i1 = e.L.index("L_pf_done:")
    out += process_path(e.L[:i0], "L_pf_loop", e.L[i0+1:i1], e.L[i1:])
    out.append("  s_endpgm")
    for w in range(4):
        pre = E(); pre.lab("L_attn_%d" % w)
        attn_prologue(w, pre)
        issue_prologue_dma(pre, lambda sl: attn_dma_groups(w, sl), A_SLOT, 64*3840)
        read_addr_setup_attn(pre)
        zero_state(pre, 160, 0, 64, aONE)
        cfg = attn_loop_cfg(w)
        pre("s_waitcnt vmcnt(%d) lgkmcnt(0)" % cfg.nd_instr)
        pre("s_barrier")
        body, post = k1_main(cfg, "attn_%d" % w)
        ep = E(); attn_epilogue(w, ep)
        out += process_path(pre.L, "L_loop_attn_%d" % w, body, post + ep.L)
        out.append("  s_endpgm")
    for w in range(4):
        pre = E(); pre.lab("L_ffn_%d" % w)
        ffn_prologue(w, pre)
        issue_prologue_dma(pre, lambda sl: ffn_dma_groups(w, sl), F_SLOT, 64*3456)
        read_addr_setup_ffn(pre)
        zero_state(pre, 152, 0, 64, aONE)
        cfg = ffn_loop_cfg(w)
        pre("s_waitcnt vmcnt(%d) lgkmcnt(0)" % cfg.nd_instr)
        pre("s_barrier")
        body, post = k1_main(cfg, "ffn_%d" % w)
        ep = E(); ffn_epilogue(w, ep)
        out += process_path(pre.L, "L_loop_ffn_%d" % w, body, post + ep.L)
        out.append("  s_endpgm")
    out.append("L_k1_end:")
    return out

def kd(name, nfv, accum, sg=102):
    return """.section .rodata,"a"
.p2align 6
.amdhsa_kernel %s
  .amdhsa_next_free_vgpr %d
  .amdhsa_next_free_sgpr %d
  .amdhsa_accum_offset %d
  .amdhsa_group_segment_fixed_size 0
  .amdhsa_kernarg_size 72
  .amdhsa_user_sgpr_count 2
  .amdhsa_user_sgpr_kernarg_segment_ptr 1
  .amdhsa_system_sgpr_workgroup_id_x 1
  .amdhsa_float_denorm_mode_32 3
.end_amdhsa_kernel
""" % (name, nfv, sg, accum)

HEADER = """; Kernarg layout (72 bytes): [0] A_x [8] A_wqkv [16] A_wo [24] B_x [32] B_w1 [40] B_w2 [48] out [56] debug [64] ws
; @launch kernel=fa_k1_kernel grid=(256,1,1) block=(256,1,1) lds=163840
; @launch kernel=fa_k2_kernel grid=(256,1,1) block=(256,1,1) lds=81920
.amdgcn_target "amdgcn-amd-amdhsa--gfx950"
"""
def kernel(name, lines):
    return ".text\n.globl %s\n.p2align 8\n.type %s,@function\n%s:\n" % (name, name, name) + "\n".join(lines) + "\ns_endpgm\n"

def main():
    k1 = k1_text()
    k2 = process_path(k2_body(), None, None, [])
    txt = HEADER + kernel("fa_k1_kernel", k1) + kd("fa_k1_kernel", 256+68, 256) + kernel("fa_k2_kernel", k2) + kd("fa_k2_kernel", 256+216, 256)
    path = sys.argv[1] if len(sys.argv) > 1 else "out.s"
    open(path, "w").write(txt)
    print("wrote", path, len(txt), "bytes;", len(k1), "k1 lines,", len(k2), "k2 lines")
if __name__ == "__main__": main()
```

```python
import sys
from irlib import *

NAME = "parallel_sum__sliding_local_dilated__dense_activation_relu__prompt"

S_, D_, DFF = 2048, 640, 1728
X_BYTES = S_*D_*2
WQKV_BYTES = D_*3*D_*2
WO_BYTES = D_*D_*2
W1_BYTES = D_*DFF*2
W2_BYTES = DFF*D_*2
NKS = 74
ACT_OFF = 0
ACT_TB = NKS*4096
W2F_OFF = 10*1024*1024
W2F_CB = NKS*5120
RSTD_OFF = 14*1024*1024
WS_USED = 17*1024*1024
OOB = 0x7F000000

def v(i): return "v%d" % i
def vr(i, n): return "v[%d:%d]" % (i, i+n-1)
def a(i): return "a%d" % i
def ar(i, n): return "a[%d:%d]" % (i, i+n-1)
def s(i): return "s%d" % i
def sr(i, n): return "s[%d:%d]" % (i, i+n-1)

STAMP = False
OPTS = set()
STAMP_OFF = 16*1024*1024
sST = 76
def stamp(e, i):
    if STAMP:
        e("s_memrealtime %s" % sr(sST + 4*i, 2))
        e("s_memtime %s" % sr(sST + 4*i + 2, 2))
def stamp_flush(e, kern, n):
    if not STAMP: return
    e("s_waitcnt lgkmcnt(0)")
    if "dbg" in OPTS:
        lab = "L_dbg_%d_%d" % (kern, len(e.L) + id(e) % 100000)
        e("s_cmp_lg_u32 %s, 0" % s(sWave))
        e("s_cbranch_scc1 %s" % lab)
        e("s_mov_b32 s72, s18"); e("s_and_b32 s73, s19, 0xffff"); e("s_mov_b32 s74, 256"); e("s_mov_b32 s75, 0x20000")
        if kern == 0:
            e("s_cmp_eq_u32 s2, 0"); e("s_cselect_b32 s3, 0, 24")
            e("s_cmp_eq_u32 s2, 0"); e("s_cbranch_scc1 %s_go" % lab)
            e("s_cmp_eq_u32 s2, 128"); e("s_cbranch_scc0 %s" % lab)
            idx = list(range(6))
        else:
            e("s_sub_u32 s72, s72, 512"); e("s_subb_u32 s73, s73, 0")
            e("s_mov_b32 s3, 48")
            e("s_cmp_eq_u32 s2, 0"); e("s_cbranch_scc0 %s" % lab)
            idx = [0, 2, 3, 5]
        e.lab(lab + "_go")
        for n_, i in enumerate(idx):
            e("v_mov_b32 v1, %s" % s(sST + 4*i))
            e("v_mov_b32 v2, %d" % (4*n_))
            e("buffer_store_dword v1, v2, s[72:75], s3 offen")
        e.lab(lab)
        return
    e("s_lshl_b32 s3, s2, 2")
    e("s_add_u32 s3, s3, %s" % s(sWave))
    e("s_lshl_b32 s3, s3, 6")
    e("s_add_u32 s3, s3, %d" % (STAMP_OFF + kern*65536))
    for i in range(n):
        for k in range(2):
            e("v_mov_b32 v1, %s" % s(sST + 4*i + 2*k))
            e("v_mov_b32 v2, %d" % (4*i + 32*k))
            e("buffer_store_dword v1, v2, %s, s3 offen" % sr(sWS,4))
class E:
    def __init__(self): self.L = []
    def __call__(self, t): self.L.append("  " + t)
    def lab(self, t): self.L.append(t + ":")
    def c(self, t): self.L.append("  ; " + t)
    def ext(self, lines): self.L += lines

MFMA = "v_mfma_f32_16x16x32_bf16"

sX, sW, sWS = 24, 28, 32
sWave = 22
sRB, sCB = 36, 37
sKC, sSoX, sSoW, sDSlot, sRDelta, sIter = 38, 39, 40, 41, 42, 43
sRSlot = 44
sT0, sT1, sT2, sT3 = 46, 47, 48, 49
sM = 50

def srd(e, base, ptr, nbytes):
    e("s_mov_b32 %s, %s" % (s(base), s(ptr)))
    e("s_and_b32 %s, %s, 0xffff" % (s(base+1), s(ptr+1)))
    e("s_mov_b32 %s, %d" % (s(base+2), nbytes))
    e("s_mov_b32 %s, 0x20000" % s(base+3))

class LoopCfg: pass

def k1_main(cfg, tag):
    NT = cfg.ntile; NF = 2*NT; R = cfg.ring; L = cfg.look; TAIL = cfg.tail
    assert NF % R == 0
    wreg = lambda f: cfg.wbase + (f % R)*4
    def wreads(f):
        kh, c = divmod(f % NF, NT)
        return cfg.wread(kh, c, wreg(f))
    def mf(f):
        kh, c = divmod(f % NF, NT)
        return cfg.mf(kh, c, wreg(f))
    body = []
    aux = []
    e = body.append
    start = list(cfg.addr_update)
    start += cfg.xreads(0)
    first = [f for f in range(0, NF) if f - L < -TAIL]
    for f in first: start += wreads(f)
    body += ["  " + t for t in start]
    body += ["  " + t for t in cfg.scal_update]
    seq = []
    for f in range(-TAIL, NF - TAIL):
        pre_reads = []
        g = f + L
        if g >= len(first) and g < NF and g >= 0 and g not in first: pre_reads = wreads(g)
        ms = []
        if f == 0 and "nostats" not in OPTS: ms += cfg.stats(0)
        if f == NT and "nostats" not in OPTS: ms += cfg.stats(1)
        ms += mf(f % NF if f >= 0 else f + NF)
        extra = []
        if f == cfg.xread1_at: extra = cfg.xreads(1)
        seq.append((pre_reads + extra, ms))
    issued = set(first) | {f + L for f in range(-TAIL, NF - TAIL) if 0 <= f + L < NF}
    assert issued == set(range(NF)), (issued, NF)
    nm = sum(len(m) for _, m in seq)
    dma = list(cfg.dma)
    if "nodma" in OPTS: dma = []
    startpos = cfg.dma_start; endpos = nm - cfg.dma_endgap
    nd = len(dma)
    pos = [startpos + (endpos - startpos) * i // max(nd, 1) for i in range(nd)]
    cnt = 0; di = 0
    for reads, ms in seq:
        rq = list(reads)
        for k, m in enumerate(ms):
            if rq:
                take = (len(rq) + (len(ms) - k) - 1) // (len(ms) - k)
                for _ in range(take): body.append("  " + rq.pop(0))
            body.append("  " + m)
            cnt += 1
            while di < nd and pos[di] <= cnt:
                for t in dma[di]: body.append("  " + t)
                di += 1
    assert di == nd
    body.append("  s_waitcnt vmcnt(%d) lgkmcnt(0)" % (cfg.nd_instr if "nodma" not in OPTS else 0))
    body.append("  s_barrier")
    body.append("  s_add_u32 %s, %s, 1" % (s(sIter), s(sIter)))
    body.append("  s_cmp_lt_u32 %s, 10" % s(sIter))
    body.append("  s_cbranch_scc1 L_loop_%s" % tag)
    post = []
    for f in range(NF - TAIL, NF):
        for m in mf(f): post.append("  " + m)
    return body, post

def scal_update(slot, wstep):
    t = []
    t.append("s_add_u32 %s, %s, 1" % (s(sKC), s(sKC)))
    t.append("s_cmp_eq_u32 %s, 10" % s(sKC))
    t.append("s_cselect_b32 %s, 0, %s" % (s(sKC), s(sKC)))
    t.append("s_lshl_b32 %s, %s, 7" % (s(sSoX), s(sKC)))
    t.append("s_mul_i32 %s, %s, %d" % (s(sSoW), s(sKC), wstep))
    t.append("s_cmp_ge_u32 %s, 8" % s(sIter))
    t.append("s_cselect_b32 %s, 0x%x, %s" % (s(sSoX), OOB, s(sSoX)))
    t.append("s_cselect_b32 %s, 0x%x, %s" % (s(sSoW), OOB, s(sSoW)))
    t.append("s_add_u32 %s, %s, %d" % (s(sDSlot), s(sDSlot), slot))
    t.append("s_cmp_eq_u32 %s, %d" % (s(sDSlot), 3*slot))
    t.append("s_cselect_b32 %s, 0, %s" % (s(sDSlot), s(sDSlot)))
    return t

def addr_update(slot, regs):
    t = []
    t.append("s_mov_b32 %s, %s" % (s(sRDelta), s(sRSlot)))
    t.append("s_add_u32 %s, %s, %d" % (s(sRSlot), s(sRSlot), slot))
    t.append("s_cmp_eq_u32 %s, %d" % (s(sRSlot), 3*slot))
    t.append("s_cselect_b32 %s, 0, %s" % (s(sRSlot), s(sRSlot)))
    t.append("s_sub_u32 %s, %s, %s" % (s(sRDelta), s(sRSlot), s(sRDelta)))
    for r in regs:
        t.append("v_add_u32 %s, %s, %s" % (v(r), s(sRDelta), v(r)))
    return t

A_SLOT = 53248; A_XB = 18432; A_WPAIR = 1088
A_XJ = [[0,1,2,3,4],[5,6,7,8,9],[10,11,12,13],[14,15,16,17]]
vLane = 255
vWA, vX0, vX1 = 160, 161, 162
vDX, vDW = 163, 168
aW, aXF, aONE = 0, 40, 64
def acc_own(T, c): return (T*15 + c)*4
def acc_halo(eidx): return 120 + eidx*4
vSumT = [136, 140]; vSqT = [144, 148]; vSumH, vSqH = 152, 156
def xf(kh, T): return aXF + (kh*3 + T)*4

def attn_prologue(w, e):
    xj = A_XJ[w]
    e("v_lshrrev_b32 v1, 3, %s" % v(vLane))
    e("v_mul_u32_u24 v1, 1280, v1")
    e("v_and_b32 v2, 7, %s" % v(vLane))
    e("v_lshrrev_b32 v3, 4, %s" % v(vLane))
    e("v_xor_b32 v4, v2, v3")
    e("v_lshlrev_b32 v4, 4, v4")
    e("v_add_u32 v4, v4, v1")
    e("v_xor_b32 v5, 64, v4")
    e("s_lshl_b32 %s, %s, 7" % (s(sT0), s(sRB)))
    e("s_mul_i32 %s, %s, 1280" % (s(sT0), s(sT0)))
    e("s_sub_u32 %s, %s, %d" % (s(sT1), s(sT0), 16*1280))
    e("s_cmp_eq_u32 %s, 0" % s(sRB))
    e("s_cselect_b32 %s, 0, %s" % (s(sT1), s(sT1)))
    for m, j in enumerate(xj):
        imm = (m % 4)*1024
        if j < 2: e("s_add_u32 %s, %s, %d" % (s(sT2), s(sT1), j*8*1280 - imm))
        else:     e("s_add_u32 %s, %s, %d" % (s(sT2), s(sT0), (j-2)*8*1280 - imm))
        e("v_add_u32 %s, %s, %s" % (v(vDX+m), s(sT2), v(5 if j & 1 else 4)))
    e("v_cmp_le_u32 vcc, 30, %s" % v(vLane))
    e("v_cndmask_b32_e64 v6, 0, 1, vcc")
    e("v_mul_u32_u24 v7, 30, v6")
    e("v_sub_u32 v7, %s, v7" % v(vLane))
    e("v_mul_u32_u24 v8, 26, v7")
    e("v_lshrrev_b32 v8, 8, v8")
    e("v_mul_u32_u24 v8, 1120, v8")
    e("v_mul_u32_u24 v6, 3840, v6")
    e("v_lshlrev_b32 v7, 4, v7")
    e("v_add3_u32 v6, v6, v7, v8")
    e("v_mov_b32 v7, 0x40000000")
    e("v_cmp_le_u32 vcc, 60, %s" % v(vLane))
    e("v_cndmask_b32_e64 v6, v6, v7, vcc")
    e("s_mul_i32 %s, %s, 160" % (s(sT0), s(sCB)))
    kh = w >> 1; rd = w & 1
    for m in range(8):
        k = 32*kh + 8*(m >> 1) + 4*rd + 2*(m & 1)
        e("s_add_u32 %s, %s, %d" % (s(sT2), s(sT0), k*3840 - (m & 3)*1088))
        e("v_add_u32 %s, %s, v6" % (v(vDW+m), s(sT2)))
    if w == 0:
        e("v_lshlrev_b32 v7, 4, v2")
        e("v_mov_b32 v8, 0x3f803f80"); e("v_mov_b32 v9, v8"); e("v_mov_b32 v10, v8"); e("v_mov_b32 v11, v8")
        e("ds_write_b128 v7, v[8:11]")
        e("v_add_u32 v12, %d, v7" % A_SLOT)
        e("ds_write_b128 v12, v[8:11]")
        e("v_add_u32 v13, %d, v7" % (2*A_SLOT))
        e("ds_write_b128 v13, v[8:11]")

def attn_dma_groups(w, slot_expr_s):
    xj = A_XJ[w]; G = []
    for m, j in enumerate(xj):
        g = []
        if m % 4 == 0:
            g.append("s_add_u32 m0, %s, %d" % (s(slot_expr_s), j*1024))
        if w == 0 and j == 0: g.append("s_mov_b32 exec_lo, 0xffffff00")
        elif m % 4 == 0: g.append("s_nop 0")
        g.append("buffer_load_dwordx4 %s, %s, %s offen offset:%d lds" % (v(vDX+m), sr(sX,4), s(sSoX), (m % 4)*1024))
        if w == 0 and j == 0: g.append("s_mov_b32 exec_lo, -1")
        G.append(g)
    for m in range(8):
        g = []
        if m % 4 == 0:
            g.append("s_add_u32 m0, %s, %d" % (s(slot_expr_s), A_XB + (8*w + m)*A_WPAIR))
            g.append("s_nop 0")
        g.append("buffer_load_dwordx4 %s, %s, %s offen offset:%d lds" % (v(vDW+m), sr(sW,4), s(sSoW), (m % 4)*A_WPAIR))
        G.append(g)
    return G

def attn_loop_cfg(w):
    cfg = LoopCfg()
    cfg.slot = A_SLOT; cfg.ntile = 15; cfg.ring = 10; cfg.look = 6; cfg.tail = 4; cfg.wbase = aW
    H = [c for c in range(15) if c % 4 == w]
    def wread(kh, c, reg):
        off = kh*16*A_WPAIR + 32*c
        return ["ds_read_b64_tr_b16 %s, %s offset:%d" % (ar(reg,2), v(vWA), off),
                "ds_read_b64_tr_b16 %s, %s offset:%d" % (ar(reg+2,2), v(vWA), off + 8*A_WPAIR)]
    def mf(kh, c, reg):
        out = []
        for T in (0, 1):
            d = vr(acc_own(T, c), 4)
            if c < 10: out.append("%s %s, %s, %s, %s" % (MFMA, d, ar(reg,4), ar(xf(kh,T),4), d))
            else:      out.append("%s %s, %s, %s, %s" % (MFMA, d, ar(xf(kh,T),4), ar(reg,4), d))
        if c in H and "nohalo" not in OPTS:
            d = vr(acc_halo(c >> 2), 4)
            if c < 10: out.append("%s %s, %s, %s, %s" % (MFMA, d, ar(reg,4), ar(xf(kh,2),4), d))
            else:      out.append("%s %s, %s, %s, %s" % (MFMA, d, ar(xf(kh,2),4), ar(reg,4), d))
        return out
    def stats(kh):
        out = []
        for T in (0, 1):
            out.append("%s %s, %s, %s, %s" % (MFMA, vr(vSumT[T],4), ar(aONE,4), ar(xf(kh,T),4), vr(vSumT[T],4)))
            out.append("%s %s, %s, %s, %s" % (MFMA, vr(vSqT[T],4), ar(xf(kh,T),4), ar(xf(kh,T),4), vr(vSqT[T],4)))
        if w == 3:
            out.append("%s %s, %s, %s, %s" % (MFMA, vr(vSumH,4), ar(aONE,4), ar(xf(kh,2),4), vr(vSumH,4)))
            out.append("%s %s, %s, %s, %s" % (MFMA, vr(vSqH,4), ar(xf(kh,2),4), ar(xf(kh,2),4), vr(vSqH,4)))
        return out
    def xreads(kh):
        ad = vX1 if kh else vX0
        return ["ds_read_b128 %s, %s offset:%d" % (ar(xf(kh,0),4), v(ad), (1+2*w)*2048),
                "ds_read_b128 %s, %s offset:%d" % (ar(xf(kh,1),4), v(ad), (2+2*w)*2048),
                "ds_read_b128 %s, %s offset:%d" % (ar(xf(kh,2),4), v(ad), 0)]
    cfg.wread = wread; cfg.mf = mf; cfg.stats = stats; cfg.xreads = xreads
    cfg.xread1_at = 6
    cfg.addr_update = addr_update(A_SLOT, [vWA, vX0, vX1])
    cfg.scal_update = scal_update(A_SLOT, 64*3840)
    cfg.dma = attn_dma_groups(w, sDSlot)
    cfg.nd_instr = len(A_XJ[w]) + 8
    cfg.dma_start = 12; cfg.dma_endgap = 14
    return cfg

def read_addr_setup_attn(e):
    e("v_and_b32 v1, 15, %s" % v(vLane))
    e("v_lshrrev_b32 v2, 2, v1")
    e("v_and_b32 v3, 3, v1")
    e("v_lshrrev_b32 v4, 4, %s" % v(vLane))
    e("v_lshrrev_b32 v5, 1, v2")
    e("v_lshl_add_u32 v5, v4, 1, v5")
    e("v_mul_u32_u24 v5, %d, v5" % A_WPAIR)
    e("v_and_b32 v2, 1, v2")
    e("v_mul_u32_u24 v2, 480, v2")
    e("v_lshlrev_b32 v3, 3, v3")
    e("v_add3_u32 v5, v5, v2, v3")
    e("v_add_u32 %s, %d, v5" % (v(vWA), 2*A_SLOT + A_XB))
    xaddr_setup(e, 2*A_SLOT)

def xaddr_setup(e, base):
    e("v_and_b32 v1, 15, %s" % v(vLane))
    e("v_lshrrev_b32 v4, 4, %s" % v(vLane))
    e("v_lshrrev_b32 v2, 1, v1")
    e("v_xor_b32 v2, v2, v4")
    e("v_lshlrev_b32 v2, 4, v2")
    e("v_lshl_add_u32 v2, v1, 7, v2")
    e("v_add_u32 %s, %d, v2" % (v(vX0), base))
    e("v_xor_b32 v2, 64, v2")
    e("v_add_u32 %s, %d, v2" % (v(vX1), base))

def issue_prologue_dma(e, groups_fn, slot, wstep):
    e("s_lshl_b32 %s, %s, 7" % (s(sSoX), s(sKC)))
    e("s_mul_i32 %s, %s, %d" % (s(sSoW), s(sKC), wstep))
    e("s_mov_b32 %s, 0" % s(sDSlot))
    for g in groups_fn(sDSlot):
        for t in g: e(t)
    e("s_add_u32 %s, %s, 1" % (s(sKC), s(sKC)))
    e("s_cmp_eq_u32 %s, 10" % s(sKC))
    e("s_cselect_b32 %s, 0, %s" % (s(sKC), s(sKC)))
    e("s_lshl_b32 %s, %s, 7" % (s(sSoX), s(sKC)))
    e("s_mul_i32 %s, %s, %d" % (s(sSoW), s(sKC), wstep))
    e("s_mov_b32 %s, %d" % (s(sDSlot), slot))
    for g in groups_fn(sDSlot):
        for t in g: e(t)
    e("s_mov_b32 %s, %d" % (s(sRSlot), 2*slot))
    e("s_mov_b32 %s, 0" % s(sIter))

def zero_state(e, nacc, areg_lo, areg_hi, ones_at):
    for i in range(nacc): e("v_mov_b32 %s, 0" % v(i))
    e("v_mov_b32 %s, 0x3f803f80" % v(254))
    for i in range(areg_lo, areg_hi): e("v_accvgpr_write_b32 %s, 0" % a(i))
    for i in range(4): e("v_accvgpr_write_b32 %s, %s" % (a(ones_at+i), v(254)))

X_CS = 0
X_NM = 1024
X_RS = 2048
X_EX = 4096
vQp = 160
vKA, vKB, vKP = 180, 190, 200
vVp = 210
NEG = 0xf149f2ca
def stats_finalize(e, vsum, vsq, vt, out_nm, out_rs, out_std, smask):
    e("v_cndmask_b32_e64 %s, 0, %s, %s" % (v(vt), v(vsq+0), sr(smask,2)))
    for r in (1,2,3):
        e("v_cndmask_b32_e64 %s, %s, %s, %s" % (v(vt), v(vt), v(vsq+r), sr(smask+2*r,2)))
    e("v_mov_b32 %s, %s" % (v(vt+1), v(vt)))
    e("v_permlane32_swap_b32 %s, %s" % (v(vt), v(vt+1)))
    e("v_add_f32 %s, %s, %s" % (v(vt), v(vt), v(vt+1)))
    e("v_mov_b32 %s, %s" % (v(vt+1), v(vt)))
    e("v_permlane16_swap_b32 %s, %s" % (v(vt), v(vt+1)))
    e("v_add_f32 %s, %s, %s" % (v(vt), v(vt), v(vt+1)))
    e("v_mul_f32 %s, 0x%08x, %s" % (v(out_nm), f2u(-1.0/640), v(vsum)))
    e("v_mul_f32 %s, 0x%08x, %s" % (v(vt), f2u(1.0/640), v(vt)))
    e("v_fma_f32 %s, -%s, %s, %s" % (v(vt), v(out_nm), v(out_nm), v(vt)))
    e("v_max_f32 %s, 0, %s" % (v(vt), v(vt)))
    e("v_add_f32 %s, 0x%08x, %s" % (v(vt), f2u(1e-5), v(vt)))
    e("v_rsq_f32 %s, %s" % (v(out_rs), v(vt)))
    if out_std is not None:
        e("v_mul_f32 %s, %s, %s" % (v(out_std), v(vt), v(out_rs)))

import struct
def f2u(x): return struct.unpack("<I", struct.pack("<f", x))[0]

def attn_epilogue(w, e):
    H = [c for c in range(15) if c % 4 == w]
    tNM = [240, 242]; tRS = [244, 246]
    tSTD = [248, 249]
    vt = 250
    smask = sM
    for r in range(4):
        e("s_mov_b32 %s, 0x%08x" % (s(smask+2*r), 0x00100001 << r))
        e("s_mov_b32 %s, 0x%08x" % (s(smask+2*r+1), 0x10000100 << r))
    e("v_and_b32 v253, 15, %s" % v(vLane))
    e("v_lshlrev_b32 v253, 2, v253")
    for T in (0, 1):
        stats_finalize(e, vSumT[T], vSqT[T], vt, tNM[T], tRS[T], tSTD[T], smask)
        e("ds_write_b32 v253, %s offset:%d" % (v(tNM[T]), X_NM + (1+2*w+T)*64))
        e("ds_write_b32 v253, %s offset:%d" % (v(tRS[T]), X_RS + (1+2*w+T)*64))
    if w == 3:
        stats_finalize(e, vSumH, vSqH, vt, 136, 137, None, smask)
        e("ds_write_b32 v253, v136 offset:%d" % (X_NM))
        e("ds_write_b32 v253, v137 offset:%d" % (X_RS))
    e("s_cmp_lg_u32 %s, 0" % s(sCB))
    e("s_cbranch_scc1 L_nors_%d" % w)
    e("s_lshl_b32 %s, %s, 9" % (s(sT0), s(sRB)))
    e("s_add_u32 %s, %s, %d" % (s(sT0), s(sT0), RSTD_OFF + w*128))
    e("buffer_store_dword %s, v253, %s, %s offen" % (v(tRS[0]), sr(sWS,4), s(sT0)))
    e("buffer_store_dword %s, v253, %s, %s offen offset:64" % (v(tRS[1]), sr(sWS,4), s(sT0)))
    e.lab("L_nors_%d" % w)
    e("v_lshrrev_b32 v252, 4, %s" % v(vLane))
    e("v_lshlrev_b32 v252, 4, v252")
    e("s_mov_b32 exec_lo, 0x00010001"); e("s_mov_b32 exec_hi, 0x00010001")
    for c in H:
        if c < 10: e("ds_write_b128 v252, %s offset:%d" % (vr(acc_halo(c >> 2),4), X_CS + c*64))
    e("s_mov_b32 exec_lo, 0x0000ffff"); e("s_mov_b32 exec_hi, 0")
    for c in H:
        if c >= 10: e("ds_write_b32 v253, %s offset:%d" % (v(acc_halo(c >> 2)), X_CS + c*64))
    e("s_mov_b64 exec, -1")
    e("s_waitcnt lgkmcnt(0)")
    e("s_barrier")
    nm4 = [136, 140]; rs4 = [144, 148]
    for T in (0, 1):
        e("ds_read_b128 %s, v252 offset:%d" % (vr(nm4[T],4), X_NM + (1+2*w+T)*64))
        e("ds_read_b128 %s, v252 offset:%d" % (vr(rs4[T],4), X_RS + (1+2*w+T)*64))
    hK = [c for c in H if 5 <= c < 10]; hV = [c for c in H if c >= 10]
    tHN, tHR = 152, 154
    hn4, hr4 = 156, 236+4
    hr4 = 232
    e("ds_read_b32 %s, v253 offset:%d" % (v(tHN), X_NM))
    e("ds_read_b32 %s, v253 offset:%d" % (v(tHR), X_RS))
    csA, csB = 250, 120
    cs_buf = [236, 0]
    def pkfma_bc(d, s0, sc):
        e("v_pk_fma_f32 %s, %s, %s, %s op_sel_hi:[1,0,1]" % (vr(d,2), vr(s0,2), vr(sc,2), vr(d,2)))
    def pkmul_bc(d, sc):
        e("v_pk_mul_f32 %s, %s, %s op_sel_hi:[1,0]" % (vr(d,2), vr(d,2), vr(sc,2)))
    csr = [224, 228]
    for c in range(10):
        e("ds_read_b128 %s, v252 offset:%d" % (vr(csr[c & 1],4), X_CS + c*64))
        cs4 = csr[c & 1]
        for T in (0, 1):
            d = acc_own(T, c)
            pkfma_bc(d, cs4, tNM[T]); pkfma_bc(d+2, cs4+2, tNM[T])
            if c >= 5:
                pkmul_bc(d, tRS[T]); pkmul_bc(d+2, tRS[T])
            dst = (vQp + T*10 + 2*c) if c < 5 else ((vKA, vKB)[T] + 2*(c-5))
            e("v_cvt_pk_bf16_f32 %s, %s, %s" % (v(dst), v(d), v(d+1)))
            e("v_cvt_pk_bf16_f32 %s, %s, %s" % (v(dst+1), v(d+2), v(d+3)))
        if c in hK:
            d = acc_halo(c >> 2)
            pkfma_bc(d, cs4, tHN); pkfma_bc(d+2, cs4+2, tHN)
            pkmul_bc(d, tHR); pkmul_bc(d+2, tHR)
            e("v_cvt_pk_bf16_f32 %s, %s, %s" % (v(d), v(d), v(d+1)))
            e("v_cvt_pk_bf16_f32 %s, %s, %s" % (v(d+1), v(d+2), v(d+3)))
    e("v_lshlrev_b32 v251, 3, %s" % v(vLane))
    for c in hK:
        e("ds_write_b64 v251, %s offset:%d" % (vr(acc_halo(c >> 2),2), X_EX + (c-5)*512))
    if w < 3:
        for i in range(5):
            e("ds_write_b64 v251, %s offset:%d" % (vr(vKB+2*i,2), X_EX + (w+1)*5120 + i*512))
    hn4, hr4 = 0, 4
    if hV:
        e("ds_read_b128 %s, v252 offset:%d" % (vr(hn4,4), X_NM))
        e("ds_read_b128 %s, v252 offset:%d" % (vr(hr4,4), X_RS))
    csd = 8
    for i in range(5):
        e("ds_read_b32 %s, v253 offset:%d" % (v(csd + 2*i), X_CS + (10+i)*64))
    for i in range(5):
        c = 10 + i
        for T in (0, 1):
            d = acc_own(T, c)
            for h_ in (0, 2):
                e("v_pk_fma_f32 %s, %s, %s, %s op_sel_hi:[1,0,1]" % (vr(d+h_,2), vr(nm4[T]+h_,2), vr(csd+2*i,2), vr(d+h_,2)))
                e("v_pk_mul_f32 %s, %s, %s" % (vr(d+h_,2), vr(d+h_,2), vr(rs4[T]+h_,2)))
            dst = vVp + 6*i + 2 + 2*T
            e("v_cvt_pk_bf16_f32 %s, %s, %s" % (v(dst), v(d), v(d+1)))
            e("v_cvt_pk_bf16_f32 %s, %s, %s" % (v(dst+1), v(d+2), v(d+3)))
        if c in hV:
            d = acc_halo(c >> 2)
            for h_ in (0, 2):
                e("v_pk_fma_f32 %s, %s, %s, %s op_sel_hi:[1,0,1]" % (vr(d+h_,2), vr(hn4+h_,2), vr(csd+2*i,2), vr(d+h_,2)))
                e("v_pk_mul_f32 %s, %s, %s" % (vr(d+h_,2), vr(d+h_,2), vr(hr4+h_,2)))
            e("v_cvt_pk_bf16_f32 %s, %s, %s" % (v(d), v(d), v(d+1)))
            e("v_cvt_pk_bf16_f32 %s, %s, %s" % (v(d+1), v(d+2), v(d+3)))
            e("ds_write_b64 v251, %s offset:%d" % (vr(d,2), X_EX + (5+i)*512))
        if w < 3:
            e("ds_write_b64 v251, %s offset:%d" % (vr(vVp+6*i+4,2), X_EX + (w+1)*5120 + (5+i)*512))
    vBP, vBC, vBPA = 0, 4, 8
    vSel = 12
    vML, vMH = 16, 20
    vONE = 24
    vT16, vG = 28, 29
    attn_consts(w, e, vBP, vBC, vBPA, vSel, vML, vMH, vONE, vT16, vG)
    cF = [30, 31]
    for T in (0, 1):
        e("v_mul_f32 %s, 0x%08x, %s" % (v(cF[T]), f2u((20.0 ** -0.5) * 1.4426950408889634), v(tRS[T])))
    e("s_mov_b32 %s, 0xffff" % s(sM+8)); e("s_mov_b32 %s, 0" % s(sM+9))
    e("s_mov_b32 %s, -1" % s(sM+10)); e("s_mov_b32 %s, 0" % s(sM+11))
    e("s_mov_b32 %s, -1" % s(sM+12)); e("s_mov_b32 %s, 0xffff" % s(sM+13))
    e("v_lshlrev_b32 v250, 4, %s" % v(vLane))
    attn_tile(e, w, 1, vKA, vKB, lambda i: vVp+6*i+2, vBP, vBC, vSel, vML, vMH, vONE, cF[1], tSTD[1])
    e("s_waitcnt lgkmcnt(0)")
    e("s_barrier")
    for i in range(5):
        e("ds_read_b64 %s, v251 offset:%d" % (vr(vKP+2*i,2), X_EX + w*5120 + i*512))
        e("ds_read_b64 %s, v251 offset:%d" % (vr(vVp+6*i,2), X_EX + w*5120 + (5+i)*512))
    attn_tile(e, w, 0, vKP, vKA, lambda i: vVp+6*i, vBPA, vBC, vSel, vML, vMH, vONE, cF[0], tSTD[0])

def attn_consts(w, e, vBP, vBC, vBPA, vSel, vML, vMH, vONE, vT16, vG):
    e("v_and_b32 %s, 15, %s" % (v(vT16), v(vLane)))
    e("v_lshrrev_b32 %s, 4, %s" % (v(vG), v(vLane)))
    t0, t1, t2 = 32, 33, 34
    e("v_lshlrev_b32 %s, 2, %s" % (v(t0), v(vG)))
    e("v_sub_u32 %s, %s, %s" % (v(t0), v(vT16), v(t0)))
    e("v_and_b32 %s, 1, %s" % (v(t1), v(vT16)))
    e("v_mov_b32 %s, 0x%08x" % (v(t2), NEG))
    e("v_cmp_eq_u32 %s, 0, %s" % (sr(sM+14,2), v(t1)))
    for r in range(4):
        e("v_subrev_u32 %s, %d, %s" % (v(35), r, v(t0)))
        e("v_cmp_le_i32 %s, 0, %s" % (sr(sM+16,2), v(35)))
        if r & 1: e("s_andn2_b64 %s, %s, %s" % (sr(sM+18,2), "exec", sr(sM+14,2)))
        else:     e("s_mov_b64 %s, %s" % (sr(sM+18,2), sr(sM+14,2)))
        e("s_and_b64 %s, %s, %s" % (sr(sM+20,2), sr(sM+18,2), sr(sM+16,2)))
        e("s_andn2_b64 %s, %s, %s" % (sr(sM+22,2), sr(sM+18,2), sr(sM+16,2)))
        e("v_cndmask_b32_e64 %s, %s, 0, %s" % (v(vBC+r), v(t2), sr(sM+20,2)))
        e("v_cndmask_b32_e64 %s, %s, 0, %s" % (v(vBP+r), v(t2), sr(sM+22,2)))
    for r in range(4): e("v_mov_b32 %s, %s" % (v(vBPA+r), v(vBP+r)))
    if w == 0:
        e("s_cmp_lg_u32 %s, 0" % s(sRB))
        e("s_cbranch_scc1 L_notfirst")
        for r in range(4): e("v_mov_b32 %s, %s" % (v(vBPA+r), v(t2)))
        e.lab("L_notfirst")
    e("v_sub_u32 %s, %s, %s" % (v(35), v(t0), v(t1)))
    e("v_mov_b32 %s, 0x0c0c0100" % v(36)); e("v_mov_b32 %s, 0x01000c0c" % v(37))
    e("v_cndmask_b32_e64 %s, %s, %s, %s" % (v(36), v(37), v(36), sr(sM+14,2)))
    e("v_mov_b32 %s, 0x0c0c0302" % v(37)); e("v_mov_b32 %s, 0x03020c0c" % v(38))
    e("v_cndmask_b32_e64 %s, %s, %s, %s" % (v(37), v(38), v(37), sr(sM+14,2)))
    e("v_mov_b32 %s, 0x0c0c0c0c" % v(38))
    e("v_cmp_le_i32 %s, 0, %s" % (sr(sM+16,2), v(35)))
    e("v_cndmask_b32_e64 %s, %s, %s, %s" % (v(vSel+0), v(36), v(38), sr(sM+16,2)))
    e("v_cndmask_b32_e64 %s, %s, %s, %s" % (v(vSel+2), v(38), v(36), sr(sM+16,2)))
    e("v_cmp_le_i32 %s, 2, %s" % (sr(sM+16,2), v(35)))
    e("v_cndmask_b32_e64 %s, %s, %s, %s" % (v(vSel+1), v(37), v(38), sr(sM+16,2)))
    e("v_cndmask_b32_e64 %s, %s, %s, %s" % (v(vSel+3), v(38), v(37), sr(sM+16,2)))
    for h in (1, 2, 3):
        e("v_cmp_le_u32 %s, %d, %s" % (sr(sM+16,2), h, v(vG)))
        e("v_cndmask_b32_e64 %s, 0, -1, %s" % (v(vML+h), sr(sM+16,2)))
    for h in (0, 1, 2):
        e("v_cmp_ge_u32 %s, %d, %s" % (sr(sM+16,2), h, v(vG)))
        e("v_cndmask_b32_e64 %s, 0, -1, %s" % (v(vMH+h), sr(sM+16,2)))
    for r in range(4): e("v_mov_b32 %s, 0x3f803f80" % v(vONE+r))

def attn_tile(e, w, T, kprev, kcur, vfrag, bP, bC, vSel, vML, vMH, vONE, cF, std):
    Qm = [40, 44, 48, 52]
    S0 = [56, 60, 64, 68]; S1 = [72, 76, 80, 84]
    P  = [88, 92, 96, 100]
    Lh = [104, 108, 112, 116]
    O  = {}
    qp = vQp + T*10
    for h in range(4):
        for k in range(2):
            if h == 0: e("v_mov_b32 %s, %s" % (v(Qm[h]+k), v(qp+2*h+k)))
            else:      e("v_and_b32 %s, %s, %s" % (v(Qm[h]+k), v(qp+2*h+k), v(vML+h)))
            if h == 3: e("v_mov_b32 %s, %s" % (v(Qm[h]+2+k), v(qp+2*h+2+k)))
            else:      e("v_and_b32 %s, %s, %s" % (v(Qm[h]+2+k), v(qp+2*h+2+k), v(vMH+h)))
    for h in range(4):
        e("%s %s, %s, %s, %s" % (MFMA, vr(S0[h],4), vr(kprev+2*h,4), vr(Qm[h],4), vr(bP,4)))
        e("%s %s, %s, %s, %s" % (MFMA, vr(S1[h],4), vr(kcur+2*h,4), vr(Qm[h],4), vr(bC,4)))
    va = [120, 122, 124, 126]; mx = [128, 129, 130, 131]; tmp = 132
    for h in range(4):
        e("v_max3_f32 %s, %s, %s, %s" % (v(va[h]), v(S0[h]), v(S0[h]+1), v(S1[h])))
        e("v_max3_f32 %s, %s, %s, %s" % (v(va[h]+1), v(S0[h]+2), v(S0[h]+3), v(S1[h]+2)))
        e("v_max_f32 %s, %s, %s" % (v(va[h]), v(va[h]), v(S1[h]+1)))
        e("v_max_f32 %s, %s, %s" % (v(va[h]+1), v(va[h]+1), v(S1[h]+3)))
        e("v_max_f32 %s, %s, %s" % (v(mx[h]), v(va[h]), v(va[h]+1)))
    e("v_permlane32_swap_b32 %s, %s" % (v(mx[0]), v(mx[1])))
    e("v_permlane32_swap_b32 %s, %s" % (v(mx[2]), v(mx[3])))
    e("v_max_f32 %s, %s, %s" % (v(mx[0]), v(mx[0]), v(mx[1])))
    e("v_max_f32 %s, %s, %s" % (v(mx[2]), v(mx[2]), v(mx[3])))
    e("v_permlane16_swap_b32 %s, %s" % (v(mx[0]), v(mx[2])))
    e("v_max_f32 %s, %s, %s" % (v(mx[0]), v(mx[0]), v(mx[2])))
    e("v_mov_b32 %s, %s" % (v(mx[2]), v(mx[0])))
    e("v_permlane16_swap_b32 %s, %s" % (v(mx[0]), v(mx[2])))
    e("v_mov_b32 %s, %s" % (v(mx[1]), v(mx[0])))
    e("v_mov_b32 %s, %s" % (v(mx[3]), v(mx[2])))
    e("v_permlane32_swap_b32 %s, %s" % (v(mx[0]), v(mx[1])))
    e("v_permlane32_swap_b32 %s, %s" % (v(mx[2]), v(mx[3])))
    for h in range(4):
        e("v_mul_f32 %s, %s, %s" % (v(mx[h]), v(mx[h]), v(cF)))
        e("v_fma_f32 %s, %s, %s, -%s" % (v(va[h]), v(va[h]), v(cF), v(mx[h])))
        e("v_fma_f32 %s, %s, %s, -%s" % (v(va[h]+1), v(va[h]+1), v(cF), v(mx[h])))
    for h in range(4):
        e("v_exp_f32 %s, %s" % (v(va[h]), v(va[h])))
        e("v_exp_f32 %s, %s" % (v(va[h]+1), v(va[h]+1)))
    for h in range(4):
        e("v_cvt_pk_bf16_f32 %s, %s, %s" % (v(va[h]), v(va[h]), v(va[h]+1)))
        for k in range(4):
            e("v_perm_b32 %s, %s, %s, %s" % (v(P[h]+k), v(va[h]), v(va[h]), v(vSel+k)))
    pairs = [(0,0),(1,0),(1,1),(2,1),(2,2),(3,2),(3,3),(4,3)]
    free = Qm + S0
    for n, (i, h) in enumerate(pairs):
        O[(i,h)] = free[n]
    for h in range(4):
        e("%s %s, %s, %s, 0" % (MFMA, vr(Lh[h],4), vr(vONE,4), vr(P[h],4)))
    for (i, h) in pairs:
        e("%s %s, %s, %s, 0" % (MFMA, vr(O[(i,h)],4), vr(vfrag(i),4), vr(P[h],4)))
    for h in range(4):
        e("v_rcp_f32 %s, %s" % (v(Lh[h]), v(Lh[h])))
    for h in range(4):
        e("v_mul_f32 %s, %s, %s" % (v(Lh[h]), v(Lh[h]), v(std)))
    F = [Lh[0], 72, 74, 76, Lh[3]]
    e("v_cndmask_b32_e64 %s, %s, %s, %s" % (v(F[1]), v(Lh[1]), v(Lh[0]), sr(sM+8,2)))
    e("v_cndmask_b32_e64 %s, %s, %s, %s" % (v(F[2]), v(Lh[2]), v(Lh[1]), sr(sM+10,2)))
    e("v_cndmask_b32_e64 %s, %s, %s, %s" % (v(F[3]), v(Lh[3]), v(Lh[2]), sr(sM+12,2)))
    R = {}
    R[0] = O[(0,0)]; R[4] = O[(4,3)]
    for i in (1, 2, 3):
        lo, hi = O[(i,i-1)], O[(i,i)]
        for r in range(4):
            e("v_cndmask_b32_e64 %s, %s, %s, %s" % (v(hi+r), v(hi+r), v(lo+r), sr(sM+8+2*(i-1),2)))
        R[i] = hi
    out = P[0]
    for i in range(5):
        e("v_pk_mul_f32 %s, %s, %s op_sel_hi:[1,0]" % (vr(R[i],2), vr(R[i],2), vr(F[i],2)))
        e("v_pk_mul_f32 %s, %s, %s op_sel_hi:[1,0]" % (vr(R[i]+2,2), vr(R[i]+2,2), vr(F[i],2)))
        e("v_cvt_pk_bf16_f32 %s, %s, %s" % (v(out+2*i), v(R[i]), v(R[i]+1)))
        e("v_cvt_pk_bf16_f32 %s, %s, %s" % (v(out+2*i+1), v(R[i]+2), v(R[i]+3)))
    gl = 2*w + T
    e("s_lshl_b32 %s, %s, 1" % (s(sT0), s(sRB)))
    e("s_add_u32 %s, %s, %d" % (s(sT0), s(sT0), gl >> 2))
    e("s_mul_i32 %s, %s, %d" % (s(sT0), s(sT0), ACT_TB))
    e("s_lshr_b32 %s, %s, 1" % (s(sT1), s(sCB)))
    e("s_mul_i32 %s, %s, 5" % (s(sT1), s(sT1)))
    e("s_and_b32 %s, %s, 1" % (s(sT2), s(sCB)))
    e("s_lshl_b32 %s, %s, 1" % (s(sT3), s(sT2)))
    e("s_add_u32 %s, %s, %s" % (s(sT3), s(sT3), s(sT1)))
    e("s_lshl_b32 %s, %s, 12" % (s(sT3), s(sT3)))
    e("s_add_u32 %s, %s, %s" % (s(sT3), s(sT3), s(sT0)))
    e("s_add_u32 %s, %s, %d" % (s(sT3), s(sT3), ACT_OFF + (gl & 3)*1024))
    e("buffer_store_dwordx4 %s, v250, %s, %s offen" % (vr(out,4), sr(sWS,4), s(sT3)))
    e("s_add_u32 %s, %s, 4096" % (s(sT3), s(sT3)))
    e("buffer_store_dwordx4 %s, v250, %s, %s offen" % (vr(out+4,4), sr(sWS,4), s(sT3)))
    e("s_add_u32 %s, %s, 4" % (s(sT1), s(sT1)))
    e("s_lshl_b32 %s, %s, 12" % (s(sT1), s(sT1)))
    e("s_add_u32 %s, %s, %s" % (s(sT1), s(sT1), s(sT0)))
    e("s_lshl_b32 %s, %s, 3" % (s(sT2), s(sT2)))
    e("s_add_u32 %s, %s, %s" % (s(sT1), s(sT1), s(sT2)))
    e("s_add_u32 %s, %s, %d" % (s(sT1), s(sT1), ACT_OFF + (gl & 3)*1024))
    e("buffer_store_dwordx2 %s, v250, %s, %s offen" % (vr(out+8,2), sr(sWS,4), s(sT1)))

F_SLOT = 49152; F_XB = 16384
fWA = [160, 161, 162, 163]
fDX, fDW = 164, 168
def facc(T, c): return (T*16 + c)*4
fCS = 128
fSUM = [144, 148]
F_X0, F_X1 = 176, 177
def fxf(kh, T): return aXF + (kh*2 + T)*4

def ffn_prologue(w, e):
    e("v_lshrrev_b32 v1, 3, %s" % v(vLane))
    e("v_mul_u32_u24 v6, 1280, v1")
    e("v_and_b32 v2, 7, %s" % v(vLane))
    e("v_lshrrev_b32 v3, 4, %s" % v(vLane))
    e("v_xor_b32 v4, v2, v3")
    e("v_lshlrev_b32 v4, 4, v4")
    e("v_add_u32 v4, v4, v6")
    e("v_xor_b32 v5, 64, v4")
    e("s_lshl_b32 %s, %s, 7" % (s(sT0), s(sRB)))
    e("s_mul_i32 %s, %s, 1280" % (s(sT0), s(sT0)))
    for m in range(4):
        j = 4*w + m
        e("s_add_u32 %s, %s, %d" % (s(sT2), s(sT0), j*8*1280 - m*1024))
        e("v_add_u32 %s, %s, %s" % (v(fDX+m), s(sT2), v(5 if j & 1 else 4)))
    e("v_lshrrev_b32 v6, 2, v1")
    e("v_lshlrev_b32 v6, 3, v6")
    e("v_and_b32 v7, 3, v1")
    e("v_add_u32 v6, v6, v7")
    e("v_mul_u32_u24 v6, 3456, v6")
    e("v_lshrrev_b32 v7, 1, v2")
    e("v_xor_b32 v7, v7, v3")
    e("v_lshlrev_b32 v7, 5, v7")
    e("v_and_b32 v8, 1, v2")
    e("v_lshlrev_b32 v8, 4, v8")
    e("v_add3_u32 v6, v6, v7, v8")
    e("s_lshl_b32 %s, %s, 9" % (s(sT0), s(sCB)))
    for m in range(8):
        kh, grp = m >> 2, m & 3
        k = 32*kh + 16*(grp & 1) + 4*(grp >> 1)
        e("s_add_u32 %s, %s, %d" % (s(sT2), s(sT0), k*3456 + w*128 - (m & 3)*1024))
        e("v_add_u32 %s, %s, v6" % (v(fDW+m), s(sT2)))

def ffn_dma_groups(w, slot_s):
    G = []
    for m in range(4):
        g = []
        if m == 0:
            g.append("s_add_u32 m0, %s, %d" % (s(slot_s), 4*w*1024)); g.append("s_nop 0")
        g.append("buffer_load_dwordx4 %s, %s, %s offen offset:%d lds" % (v(fDX+m), sr(sX,4), s(sSoX), m*1024))
        G.append(g)
    for m in range(8):
        g = []
        if m % 4 == 0:
            g.append("s_add_u32 m0, %s, %d" % (s(slot_s), F_XB + w*8192 + m*1024)); g.append("s_nop 0")
        g.append("buffer_load_dwordx4 %s, %s, %s offen offset:%d lds" % (v(fDW+m), sr(sW,4), s(sSoW), (m % 4)*1024))
        G.append(g)
    return G

def ffn_loop_cfg(w):
    cfg = LoopCfg()
    cfg.slot = F_SLOT; cfg.ntile = 16; cfg.ring = 8; cfg.look = 6; cfg.tail = 4; cfg.wbase = aW
    H = [c for c in range(16) if c % 4 == w]
    def wread(kh, c, reg):
        off = (c >> 2)*8192 + kh*4096
        ad = v(fWA[c & 3])
        return ["ds_read_b64_tr_b16 %s, %s offset:%d" % (ar(reg,2), ad, off),
                "ds_read_b64_tr_b16 %s, %s offset:%d" % (ar(reg+2,2), ad, off + 2048)]
    def mf(kh, c, reg):
        out = []
        for T in (0, 1):
            d = vr(facc(T, c), 4)
            out.append("%s %s, %s, %s, %s" % (MFMA, d, ar(reg,4), ar(fxf(kh,T),4), d))
        if c in H and "nohalo" not in OPTS:
            d = vr(fCS + (c >> 2)*4, 4)
            out.append("%s %s, %s, %s, %s" % (MFMA, d, ar(reg,4), ar(aONE,4), d))
        return out
    def stats(kh):
        return ["%s %s, %s, %s, %s" % (MFMA, vr(fSUM[T],4), ar(aONE,4), ar(fxf(kh,T),4), vr(fSUM[T],4)) for T in (0,1)]
    def xreads(kh):
        ad = F_X1 if kh else F_X0
        return ["ds_read_b128 %s, %s offset:%d" % (ar(fxf(kh,T),4), v(ad), (2*w+T)*2048) for T in (0,1)]
    cfg.wread = wread; cfg.mf = mf; cfg.stats = stats; cfg.xreads = xreads
    cfg.xread1_at = 6
    cfg.addr_update = addr_update(F_SLOT, fWA + [F_X0, F_X1])
    cfg.scal_update = scal_update(F_SLOT, 64*3456)
    cfg.dma = ffn_dma_groups(w, sDSlot)
    cfg.nd_instr = 12
    cfg.dma_start = 12; cfg.dma_endgap = 14
    return cfg

def read_addr_setup_ffn(e):
    e("v_and_b32 v1, 15, %s" % v(vLane))
    e("v_lshrrev_b32 v2, 2, v1")
    e("v_and_b32 v3, 3, v1")
    e("v_lshrrev_b32 v4, 4, %s" % v(vLane))
    e("v_lshl_add_u32 v2, v4, 2, v2")
    e("v_lshrrev_b32 v5, 1, v2")
    e("v_and_b32 v5, 3, v5")
    e("v_lshlrev_b32 v2, 7, v2")
    e("v_lshl_add_u32 v2, v3, 3, v2")
    e("v_add_u32 v2, %d, v2" % (2*F_SLOT + F_XB))
    for u in range(4):
        e("v_xor_b32 v6, %d, v5" % u)
        e("v_lshl_add_u32 %s, v6, 5, v2" % v(fWA[u]))
    e("v_and_b32 v1, 15, %s" % v(vLane))
    e("v_lshrrev_b32 v2, 1, v1")
    e("v_xor_b32 v2, v2, v4")
    e("v_lshlrev_b32 v2, 4, v2")
    e("v_lshl_add_u32 v2, v1, 7, v2")
    e("v_add_u32 %s, %d, v2" % (v(F_X0), 2*F_SLOT))
    e("v_xor_b32 v2, 64, v2")
    e("v_add_u32 %s, %d, v2" % (v(F_X1), 2*F_SLOT))

def ffn_epilogue(w, e):
    H = [c for c in range(16) if c % 4 == w]
    nm = [150, 152]
    for T in (0, 1):
        e("v_mul_f32 %s, 0x%08x, %s" % (v(nm[T]), f2u(-1.0/640), v(fSUM[T])))
    e("v_lshrrev_b32 v252, 4, %s" % v(vLane))
    e("v_lshlrev_b32 v252, 4, v252")
    e("s_mov_b32 exec_lo, 0x00010001"); e("s_mov_b32 exec_hi, 0x00010001")
    for c in H:
        e("ds_write_b128 v252, %s offset:%d" % (vr(fCS + (c >> 2)*4, 4), c*64))
    e("s_mov_b64 exec, -1")
    e("s_waitcnt lgkmcnt(0)")
    e("s_barrier")
    e("v_lshlrev_b32 v250, 4, %s" % v(vLane))
    e("s_lshl_b32 %s, %s, 1" % (s(sT0), s(sRB)))
    e("s_add_u32 %s, %s, %d" % (s(sT0), s(sT0), (2*w) >> 2))
    e("s_mul_i32 %s, %s, %d" % (s(sT0), s(sT0), ACT_TB))
    e("s_lshl_b32 %s, %s, 3" % (s(sT1), s(sCB)))
    e("s_add_u32 %s, %s, 20" % (s(sT1), s(sT1)))
    e("s_lshl_b32 %s, %s, 12" % (s(sT1), s(sT1)))
    e("s_add_u32 %s, %s, %s" % (s(sT0), s(sT0), s(sT1)))
    e("s_add_u32 %s, %s, %d" % (s(sT0), s(sT0), ACT_OFF + ((2*w) & 3)*1024))
    cs = [160, 164, 168, 172]
    pk = [180, 184, 188, 192]
    for a_ in range(8):
        if a_ == 6:
            e("s_cmp_eq_u32 %s, 6" % s(sCB))
            e("s_cbranch_scc1 L_ffn_done_%d" % w)
        for k in range(2):
            c = 2*a_ + k
            e("ds_read_b128 %s, v252 offset:%d" % (vr(cs[(2*a_+k) & 3],4), c*64))
        for T in (0, 1):
            o = pk[(2*a_ + T) & 3]
            for k in range(2):
                c = 2*a_ + k; d = facc(T, c); q = cs[c & 3]
                e("v_pk_fma_f32 %s, %s, %s, %s op_sel_hi:[1,0,1]" % (vr(d,2), vr(q,2), vr(nm[T],2), vr(d,2)))
                e("v_pk_fma_f32 %s, %s, %s, %s op_sel_hi:[1,0,1]" % (vr(d+2,2), vr(q+2,2), vr(nm[T],2), vr(d+2,2)))
                e("v_cvt_pk_bf16_f32 %s, %s, %s" % (v(o+2*k), v(d), v(d+1)))
                e("v_cvt_pk_bf16_f32 %s, %s, %s" % (v(o+2*k+1), v(d+2), v(d+3)))
                e("v_pk_max_i16 %s, %s, 0" % (v(o+2*k), v(o+2*k)))
                e("v_pk_max_i16 %s, %s, 0" % (v(o+2*k+1), v(o+2*k+1)))
            e("buffer_store_dwordx4 %s, v250, %s, %s offen offset:%d" % (vr(o,4), sr(sWS,4), s(sT0), T*1024))
        e("s_add_u32 %s, %s, 4096" % (s(sT0), s(sT0)))
    e.lab("L_ffn_done_%d" % w)

P_STRIDE = 1312
def preformat(e):
    e("v_lshlrev_b32 v250, 4, %s" % v(vLane))
    for i in range(10):
        e("v_add_u32 v1, %d, %s" % (64*i, v(vLane)))
        e("v_mul_u32_u24 v2, 205, v1"); e("v_lshrrev_b32 v2, 14, v2")
        e("v_mul_u32_u24 v3, 80, v2"); e("v_sub_u32 v3, v1, v3")
        e("v_mul_u32_u24 v4, 1280, v2"); e("v_lshl_add_u32 %s, v3, 4, v4" % v(200+i))
        e("v_mul_u32_u24 v4, %d, v2" % P_STRIDE); e("v_lshl_add_u32 %s, v3, 4, v4" % v(210+i))
    e("s_mul_i32 %s, %s, %d" % (s(sT0), s(sWave), 8*P_STRIDE))
    for i in range(10): e("v_add_u32 %s, %s, %s" % (v(210+i), s(sT0), v(210+i)))
    e("v_and_b32 v1, 15, %s" % v(vLane)); e("v_lshrrev_b32 v2, 2, v1"); e("v_and_b32 v3, 3, v1")
    e("v_lshrrev_b32 v4, 4, %s" % v(vLane)); e("v_lshl_add_u32 v2, v4, 2, v2")
    e("v_mul_u32_u24 v2, %d, v2" % P_STRIDE)
    e("v_lshl_add_u32 v220, v3, 4, v2")
    e("v_lshl_add_u32 v221, v3, 3, v2")
    e("s_mul_i32 %s, %s, 320" % (s(sT0), s(sWave)))
    e("v_add_u32 v220, %s, v220" % s(sT0)); e("v_add_u32 v221, %s, v221" % s(sT0))
    e("s_mul_i32 %s, %s, 5" % (s(sKC), s(sCB)))
    e("s_mov_b32 %s, 0" % s(sIter))
    e.lab("L_pf_loop")
    e("s_cmp_ge_u32 %s, %d" % (s(sKC), NKS))
    e("s_cbranch_scc1 L_pf_done")
    e("s_mul_i32 %s, %s, 52" % (s(sT0), s(sKC))); e("s_lshr_b32 %s, %s, 8" % (s(sT0), s(sT0)))
    e("s_mul_i32 %s, %s, 5" % (s(sT1), s(sT0))); e("s_sub_u32 %s, %s, %s" % (s(sT1), s(sKC), s(sT1)))
    e("s_mul_i32 %s, %s, 160" % (s(sT0), s(sT0)))
    e("s_lshl_b32 %s, %s, 5" % (s(sT2), s(sT1)))
    e("s_cmp_ge_u32 %s, 2" % s(sT1))
    e("s_cselect_b32 %s, 16, 0" % s(sT3))
    e("s_add_u32 %s, %s, %s" % (s(sT2), s(sT2), s(sT3)))
    e("s_add_u32 %s, %s, %s" % (s(sT2), s(sT2), s(sT0)))
    e("s_add_u32 %s, %s, 16" % (s(sT3), s(sT2)))
    e("s_cmp_eq_u32 %s, 4" % s(sT1))
    e("s_cbranch_scc0 L_pf_notshared")
    e("s_add_u32 %s, %s, 64" % (s(sT2), s(sT0)))
    e("s_add_u32 %s, %s, 144" % (s(sT3), s(sT0)))
    e.lab("L_pf_notshared")
    e("s_cmp_lt_u32 %s, 20" % s(sKC))
    e("s_cbranch_scc1 L_pf_wo")
    e("s_sub_u32 %s, %s, 20" % (s(sT2), s(sKC)))
    e("s_lshl_b32 %s, %s, 5" % (s(sT2), s(sT2)))
    e("s_add_u32 %s, %s, 16" % (s(sT3), s(sT2)))
    e("s_mov_b32 %s, %s" % (s(sX), s(14))); e("s_and_b32 %s, %s, 0xffff" % (s(sX+1), s(15))); e("s_mov_b32 %s, %d" % (s(sX+2), W2_BYTES))
    e.lab("L_pf_wo")
    e("s_cmp_ge_u32 %s, 2" % s(sWave))
    e("s_cselect_b32 %s, %s, %s" % (s(sT2), s(sT3), s(sT2)))
    e("s_and_b32 %s, %s, 1" % (s(sT3), s(sWave)))
    e("s_lshl_b32 %s, %s, 3" % (s(sT3), s(sT3)))
    e("s_add_u32 %s, %s, %s" % (s(sT2), s(sT2), s(sT3)))
    e("s_mul_i32 %s, %s, 1280" % (s(sT2), s(sT2)))
    for i in range(10):
        e("buffer_load_dwordx4 %s, %s, %s, %s offen" % (vr(4*i,4), v(200+i), sr(sX,4), s(sT2)))
    for i in range(10):
        e("ds_write_b128 %s, %s" % (v(210+i), vr(4*i,4)))
    e("s_waitcnt lgkmcnt(0)")
    e("s_barrier")
    e("s_mul_i32 %s, %s, 5120" % (s(sT0), s(sKC)))
    e("s_mul_i32 %s, %s, %d" % (s(sT1), s(sWave), 2*W2F_CB))
    e("s_add_u32 %s, %s, %s" % (s(sT0), s(sT0), s(sT1)))
    e("s_add_u32 %s, %s, %d" % (s(sT0), s(sT0), W2F_OFF))
    for half in range(2):
        for ct in range(5):
            d = 40 + (half*5 + ct)*4
            if ct < 4:
                off = half*160 + (ct >> 1)*64 + (ct & 1)*8; ad = 220
            else:
                off = half*160 + 128; ad = 221
            e("ds_read_b64_tr_b16 %s, %s offset:%d" % (vr(d,2), v(ad), off))
            e("ds_read_b64_tr_b16 %s, %s offset:%d" % (vr(d+2,2), v(ad), off + 16*P_STRIDE))
    for half in range(2):
        for ct in range(5):
            d = 40 + (half*5 + ct)*4
            if ct == 4 or (half == 1 and ct == 0):
                pass
            e("s_add_u32 %s, %s, %d" % (s(sT1), s(sT0), half*W2F_CB + ct*1024))
            e("buffer_store_dwordx4 %s, v250, %s, %s offen" % (vr(d,4), sr(sWS,4), s(sT1)))
    e("s_waitcnt lgkmcnt(0)")
    e("s_barrier")
    e("s_add_u32 %s, %s, 1" % (s(sKC), s(sKC)))
    e("s_add_u32 %s, %s, 1" % (s(sIter), s(sIter)))
    e("s_cmp_lt_u32 %s, 5" % s(sIter))
    e("s_cbranch_scc1 L_pf_loop")
    e.lab("L_pf_done")

K2_DEPTH = 6
def k2_body():
    e = E()
    sTB, sC2, sI, sKS, sA, sB = 36, 37, 38, 39, 40, 41
    sOUT = 28
    e("s_cmp_ge_u32 s2, 256")
    e("s_cbranch_scc1 L_k2_end")
    stamp(e, 0)
    e("s_load_dwordx2 s[4:5], s[0:1], 0")
    e("s_load_dwordx2 s[16:17], s[0:1], 48")
    e("s_load_dwordx2 s[20:21], s[0:1], 64")
    e("s_load_dwordx2 s[18:19], s[0:1], 56")
    e("v_and_b32 %s, 63, v0" % v(vLane))
    e("v_lshrrev_b32 v1, 6, v0")
    e("s_and_b32 s3, s2, 7")
    e("v_readfirstlane_b32 %s, v1" % s(sWave))
    e("s_lshr_b32 %s, s2, 3" % s(sT0))
    e("s_and_b32 %s, s3, 3" % s(sT1))
    e("s_lshl_b32 %s, %s, 3" % (s(sTB), s(sT1)))
    e("s_and_b32 %s, %s, 7" % (s(sT2), s(sT0)))
    e("s_add_u32 %s, %s, %s" % (s(sTB), s(sTB), s(sT2)))
    e("s_lshr_b32 %s, s3, 2" % s(sT1))
    e("s_lshl_b32 %s, %s, 2" % (s(sC2), s(sT1)))
    e("s_lshr_b32 %s, %s, 3" % (s(sT3), s(sT0)))
    e("s_add_u32 %s, %s, %s" % (s(sC2), s(sC2), s(sT3)))
    e("s_lshl_b32 %s, %s, 1" % (s(sI), s(sT2)))
    e("s_mul_i32 %s, %s, 5" % (s(sT3), s(sT3)))
    e("s_add_u32 %s, %s, %s" % (s(sI), s(sI), s(sT3)))
    e("s_cmp_ge_u32 %s, 19" % s(sI))
    e("s_cselect_b32 %s, 19, 0" % s(sT3))
    e("s_sub_u32 %s, %s, %s" % (s(sI), s(sI), s(sT3)))
    e("v_lshlrev_b32 v250, 4, %s" % v(vLane))
    e("v_add_u32 v251, 4096, v250")
    e("s_waitcnt lgkmcnt(0)")
    srd(e, sX, 4, X_BYTES); srd(e, sOUT, 16, X_BYTES); srd(e, sWS, 20, WS_USED)
    e("s_mul_i32 %s, %s, %d" % (s(42), s(sTB), ACT_TB))
    e("s_add_u32 %s, %s, %d" % (s(42), s(42), ACT_OFF))
    e("s_mul_i32 %s, %s, %d" % (s(43), s(sC2), W2F_CB))
    e("s_add_u32 %s, %s, %d" % (s(43), s(43), W2F_OFF))
    def step_scalars():
        e("s_lshl_b32 %s, %s, 2" % (s(sKS), s(sI)))
        e("s_add_u32 %s, %s, %s" % (s(sKS), s(sKS), s(sWave)))
        e("s_lshl_b32 %s, %s, 12" % (s(sA), s(sKS)))
        e("s_add_u32 %s, %s, %s" % (s(sA), s(sA), s(42)))
        e("s_mul_i32 %s, %s, 5120" % (s(sB), s(sKS)))
        e("s_add_u32 %s, %s, %s" % (s(sB), s(sB), s(43)))
        e("s_cmp_ge_u32 %s, %d" % (s(sKS), NKS))
        e("s_cselect_b32 %s, 0x%x, %s" % (s(sA), OOB, s(sA)))
        e("s_cselect_b32 %s, 0x%x, %s" % (s(sB), OOB, s(sB)))
        e("s_add_u32 %s, %s, 1" % (s(sI), s(sI)))
        e("s_cmp_eq_u32 %s, 19" % s(sI))
        e("s_cselect_b32 %s, 0, %s" % (s(sI), s(sI)))
    def loads(i):
        st = (i % K2_DEPTH)*36
        L = []
        for ct in range(4):
            L.append("buffer_load_dwordx4 %s, v250, %s, %s offen offset:%d" % (ar(st+16+4*ct,4), sr(sWS,4), s(sB), ct*1024))
        L.append("buffer_load_dwordx4 %s, v251, %s, %s offen" % (ar(st+32,4), sr(sWS,4), s(sB)))
        for tt in range(4):
            L.append("buffer_load_dwordx4 %s, v250, %s, %s offen offset:%d" % (ar(st+4*tt,4), sr(sWS,4), s(sA), tt*1024))
        return L
    for i in range(K2_DEPTH - 1):
        step_scalars()
        for t in loads(i): e(t)
    e("v_and_b32 v1, 15, %s" % v(vLane))
    e("v_lshrrev_b32 v2, 4, %s" % v(vLane))
    e("s_lshl_b32 %s, %s, 6" % (s(sT0), s(sTB)))
    e("s_lshl_b32 %s, %s, 4" % (s(sT1), s(sWave)))
    e("s_add_u32 %s, %s, %s" % (s(sT0), s(sT0), s(sT1)))
    e("v_add_u32 v3, %s, v1" % s(sT0))
    e("v_lshlrev_b32 v4, 2, v3")
    e("v_mul_u32_u24 v3, 1280, v3")
    e("s_mul_i32 %s, %s, 160" % (s(sT1), s(sC2)))
    e("v_add_u32 v3, %s, v3" % s(sT1))
    e("v_lshl_add_u32 v240, v2, 4, v3")
    e("v_lshl_add_u32 v241, v2, 3, v3")
    e("s_mov_b32 %s, %d" % (s(sT2), RSTD_OFF))
    e("buffer_load_dwordx4 v[224:227], v240, %s, 0 offen" % sr(sX,4))
    e("buffer_load_dwordx4 v[228:231], v240, %s, 0 offen offset:64" % sr(sX,4))
    e("buffer_load_dwordx2 v[232:233], v241, %s, 0 offen offset:128" % sr(sX,4))
    e("buffer_load_dword v234, v4, %s, %s offen" % (sr(sWS,4), s(sT2)))
    for i in range(80): e("v_mov_b32 %s, 0" % v(i))
    stamp(e, 1)
    if STAMP: e("s_waitcnt lgkmcnt(0)")
    NST = 19
    for i in range(NST):
        if i == 1:
            stamp(e, 2)
            if STAMP: e("s_waitcnt lgkmcnt(0)")
        nxt = i + K2_DEPTH - 1
        L = []
        if nxt < NST:
            step_scalars()
            L = loads(nxt)
        st = (i % K2_DEPTH)*36
        ms = []
        for ct in range(5):
            for tt in range(4):
                d = vr((tt*5+ct)*4, 4)
                ms.append("%s %s, %s, %s, %s" % (MFMA, d, ar(st+16+4*ct,4), ar(st+4*tt,4), d))
        k = 0
        for n, m in enumerate(ms):
            e(m)
            if L and n % 2 == 1: e(L.pop(0))
        for t in L: e(t)
    stamp(e, 3)
    if STAMP: e("s_waitcnt lgkmcnt(0)")
    e("s_nop 7"); e("s_nop 7")
    e("v_lshlrev_b32 v242, 4, %s" % v(vLane))
    e("s_mul_i32 %s, %s, %d" % (s(sT0), s(sWave), 20*1024))
    e("v_add_u32 v243, %s, v242" % s(sT0))
    for w in range(4):
        e("s_cmp_lg_u32 %s, %d" % (s(sWave), w))
        e("s_cbranch_scc1 L_k2_w%d" % w)
        for tt in range(4):
            if tt == w: continue
            for ct in range(5):
                e("ds_write_b128 v243, %s offset:%d" % (vr((tt*5+ct)*4,4), (tt*5+ct)*1024))
        if w != 0:
            for r in range(20): e("v_mov_b32 %s, %s" % (v(r), v(w*20 + r)))
        e("s_branch L_k2_red")
        e.lab("L_k2_w%d" % w)
    e.lab("L_k2_red")
    e("s_waitcnt lgkmcnt(0)")
    e("s_barrier")
    e("s_mul_i32 %s, %s, 5120" % (s(sT0), s(sWave)))
    e("v_add_u32 v243, %s, v242" % s(sT0))
    for k in range(1, 4):
        e("s_add_u32 %s, %s, %d" % (s(sT1), s(sWave), k))
        e("s_and_b32 %s, %s, 3" % (s(sT1), s(sT1)))
        e("s_mul_i32 %s, %s, %d" % (s(sT1), s(sT1), 20*1024))
        e("v_add_u32 %s, %s, v243" % (v(243+k), s(sT1)))
        for ct in range(5):
            e("ds_read_b128 %s, %s offset:%d" % (vr(80 + ((k-1)*5+ct)*4, 4), v(243+k), ct*1024))
    for k in range(3):
        for r in range(0, 20, 2):
            e("v_pk_add_f32 %s, %s, %s" % (vr(r,2), vr(r,2), vr(80 + k*20 + r, 2)))
    xr = [224, 226, 228, 230, 232]
    o = 150
    for ct in range(5):
        xp = xr[ct]
        for hh in range(2):
            e("v_lshlrev_b32 v140, 16, %s" % v(xp+hh))
            e("v_and_b32 v141, 0xffff0000, %s" % v(xp+hh))
            d = ct*4 + 2*hh
            e("v_pk_fma_f32 %s, %s, %s, %s op_sel_hi:[1,0,1]" % (vr(140,2), vr(d,2), vr(234,2), vr(140,2)))
            e("v_cvt_pk_bf16_f32 %s, v140, v141" % v(o + 2*ct + hh))
    e("buffer_store_dwordx4 %s, v240, %s, 0 offen" % (vr(o,4), sr(sOUT,4)))
    e("buffer_store_dwordx4 %s, v240, %s, 0 offen offset:64" % (vr(o+4,4), sr(sOUT,4)))
    e("buffer_store_dwordx2 %s, v241, %s, 0 offen offset:128" % (vr(o+8,2), sr(sOUT,4)))
    stamp(e, 4)
    if STAMP: e("s_waitcnt vmcnt(0)")
    stamp(e, 5); stamp_flush(e, 1, 6)
    e.lab("L_k2_end")
    return e.L

ROT = True
def k1_text():
    out = []
    e = E()
    e("s_cmp_ge_u32 s2, 256")
    e("s_cbranch_scc1 L_k1_end")
    stamp(e, 0)
    e("s_load_dwordx16 s[4:19], s[0:1], 0")
    e("s_load_dwordx2 s[20:21], s[0:1], 64")
    e("v_and_b32 %s, 63, v0" % v(vLane))
    e("v_lshrrev_b32 v1, 6, v0")
    e("s_and_b32 s3, s2, 7")
    e("v_readfirstlane_b32 %s, v1" % s(sWave))
    e("s_lshr_b32 %s, s2, 3" % s(sT0))
    e("s_and_b32 %s, s3, 1" % s(sT1))
    e("s_lshr_b32 %s, s3, 1" % s(sT2))
    e("s_lshl_b32 %s, %s, 3" % (s(sT1), s(sT1)))
    e("s_cmp_ge_u32 %s, 30" % s(sT0))
    e("s_cbranch_scc1 L_role_pf")
    e("s_cmp_ge_u32 %s, 16" % s(sT0))
    e("s_cbranch_scc1 L_role_ffn")
    e("s_lshl_b32 %s, %s, 1" % (s(sCB), s(sT2)))
    e("s_lshr_b32 %s, %s, 3" % (s(sT3), s(sT0)))
    e("s_add_u32 %s, %s, %s" % (s(sCB), s(sCB), s(sT3)))
    e("s_and_b32 %s, %s, 7" % (s(sKC), s(sT0)))
    e("s_add_u32 %s, %s, %s" % (s(sRB), s(sT1), s(sKC)))
    e("s_mul_i32 %s, %s, 5" % (s(sT3), s(sT3)))
    e("s_add_u32 %s, %s, %s" % (s(sKC), s(sKC), s(sT3)))
    e("s_cmp_ge_u32 %s, 10" % s(sKC))
    e("s_cselect_b32 %s, 10, 0" % s(sT3))
    e("s_sub_u32 %s, %s, %s" % (s(sKC), s(sKC), s(sT3)))
    if not ROT: e("s_mov_b32 %s, 0" % s(sKC))
    e("s_waitcnt lgkmcnt(0)")
    srd(e, sX, 4, X_BYTES); srd(e, sW, 6, WQKV_BYTES); srd(e, sWS, 20, WS_USED)
    for w in range(3):
        e("s_cmp_eq_u32 %s, %d" % (s(sWave), w))
        e("s_cbranch_scc1 L_attn_%d" % w)
    e("s_branch L_attn_3")
    e.lab("L_role_ffn")
    e("s_mul_i32 %s, %s, 14" % (s(sT2), s(sT2)))
    e("s_add_u32 %s, %s, %s" % (s(sT2), s(sT2), s(sT0)))
    e("s_sub_u32 %s, %s, 16" % (s(sT2), s(sT2)))
    e("s_lshr_b32 %s, %s, 3" % (s(sCB), s(sT2)))
    e("s_and_b32 %s, %s, 7" % (s(sKC), s(sT2)))
    e("s_add_u32 %s, %s, %s" % (s(sRB), s(sT1), s(sKC)))
    e("s_and_b32 %s, %s, 1" % (s(sT3), s(sCB)))
    e("s_mul_i32 %s, %s, 5" % (s(sT3), s(sT3)))
    e("s_add_u32 %s, %s, %s" % (s(sKC), s(sKC), s(sT3)))
    e("s_add_u32 %s, %s, 2" % (s(sKC), s(sKC)))
    e("s_cmp_ge_u32 %s, 10" % s(sKC))
    e("s_cselect_b32 %s, 10, 0" % s(sT3))
    e("s_sub_u32 %s, %s, %s" % (s(sKC), s(sKC), s(sT3)))
    if not ROT: e("s_mov_b32 %s, 0" % s(sKC))
    e("s_waitcnt lgkmcnt(0)")
    srd(e, sX, 4, X_BYTES); srd(e, sW, 12, W1_BYTES); srd(e, sWS, 20, WS_USED)
    for w in range(3):
        e("s_cmp_eq_u32 %s, %d" % (s(sWave), w))
        e("s_cbranch_scc1 L_ffn_%d" % w)
    e("s_branch L_ffn_3")
    e.lab("L_role_pf")
    e("s_lshl_b32 %s, s3, 1" % s(sCB))
    e("s_add_u32 %s, %s, %s" % (s(sCB), s(sCB), s(sT0)))
    e("s_sub_u32 %s, %s, 30" % (s(sCB), s(sCB)))
    e("s_waitcnt lgkmcnt(0)")
    srd(e, sX, 8, WO_BYTES); srd(e, sWS, 20, WS_USED)
    out += process_path(e.L, None, None, [])
    e = E(); preformat(e)
    i0 = e.L.index("L_pf_loop:"); i1 = e.L.index("L_pf_done:")
    fin = E(); stamp(fin, 1); stamp(fin, 2); stamp(fin, 3); stamp(fin, 4)
    if STAMP: fin("s_waitcnt vmcnt(0)")
    stamp(fin, 5); stamp_flush(fin, 0, 6)
    out += process_path(e.L[:i0], "L_pf_loop", e.L[i0+1:i1], e.L[i1:] + fin.L)
    out.append("  s_endpgm")
    for w in range(4):
        pre = E(); pre.lab("L_attn_%d" % w)
        attn_prologue(w, pre)
        issue_prologue_dma(pre, lambda sl: attn_dma_groups(w, sl), A_SLOT, 64*3840)
        read_addr_setup_attn(pre)
        zero_state(pre, 160, 0, 64, aONE)
        cfg = attn_loop_cfg(w)
        stamp(pre, 1)
        pre("s_waitcnt vmcnt(%d) lgkmcnt(0)" % cfg.nd_instr)
        pre("s_barrier")
        stamp(pre, 2)
        if STAMP: pre("s_waitcnt lgkmcnt(0)")
        body, post = k1_main(cfg, "attn_%d" % w)
        ep = E(); stamp(ep, 3)
        if STAMP: ep("s_waitcnt lgkmcnt(0)")
        attn_epilogue(w, ep)
        stamp(ep, 4)
        if STAMP: ep("s_waitcnt vmcnt(0)")
        stamp(ep, 5); stamp_flush(ep, 0, 6)
        out += process_path(pre.L, "L_loop_attn_%d" % w, body, post + ep.L)
        out.append("  s_endpgm")
    for w in range(4):
        pre = E(); pre.lab("L_ffn_%d" % w)
        ffn_prologue(w, pre)
        issue_prologue_dma(pre, lambda sl: ffn_dma_groups(w, sl), F_SLOT, 64*3456)
        read_addr_setup_ffn(pre)
        zero_state(pre, 152, 0, 64, aONE)
        cfg = ffn_loop_cfg(w)
        stamp(pre, 1)
        pre("s_waitcnt vmcnt(%d) lgkmcnt(0)" % cfg.nd_instr)
        pre("s_barrier")
        stamp(pre, 2)
        if STAMP: pre("s_waitcnt lgkmcnt(0)")
        body, post = k1_main(cfg, "ffn_%d" % w)
        ep = E(); stamp(ep, 3)
        if STAMP: ep("s_waitcnt lgkmcnt(0)")
        ffn_epilogue(w, ep)
        stamp(ep, 4)
        if STAMP: ep("s_waitcnt vmcnt(0)")
        stamp(ep, 5); stamp_flush(ep, 0, 6)
        out += process_path(pre.L, "L_loop_ffn_%d" % w, body, post + ep.L)
        out.append("  s_endpgm")
    out.append("L_k1_end:")
    return out

def kd(name, nfv, accum, sg=102):
    return """.section .rodata,"a"
.p2align 6
.amdhsa_kernel %s
  .amdhsa_next_free_vgpr %d
  .amdhsa_next_free_sgpr %d
  .amdhsa_accum_offset %d
  .amdhsa_group_segment_fixed_size 0
  .amdhsa_kernarg_size 72
  .amdhsa_user_sgpr_count 2
  .amdhsa_user_sgpr_kernarg_segment_ptr 1
  .amdhsa_system_sgpr_workgroup_id_x 1
  .amdhsa_float_denorm_mode_32 3
.end_amdhsa_kernel
""" % (name, nfv, sg, accum)

HEADER = """; Kernarg layout (72 bytes): [0] A_x [8] A_wqkv [16] A_wo [24] B_x [32] B_w1 [40] B_w2 [48] out [56] debug [64] ws
; @launch kernel=fa_k1_kernel grid=(256,1,1) block=(256,1,1) lds=163840
; @launch kernel=fa_k2_kernel grid=(256,1,1) block=(256,1,1) lds=81920
.amdgcn_target "amdgcn-amd-amdhsa--gfx950"
"""
def kernel(name, lines):
    return ".text\n.globl %s\n.p2align 8\n.type %s,@function\n%s:\n" % (name, name, name) + "\n".join(lines) + "\ns_endpgm\n"

def main():
    global STAMP
    if len(sys.argv) > 2:
        OPTS.update(sys.argv[2].split(","))
    if "stamp" in OPTS: STAMP = True
    k1 = k1_text()
    k2 = process_path(k2_body(), None, None, [])
    txt = HEADER + kernel("fa_k1_kernel", k1) + kd("fa_k1_kernel", 256+68, 256) + kernel("fa_k2_kernel", k2) + kd("fa_k2_kernel", 256+216, 256)
    path = sys.argv[1] if len(sys.argv) > 1 else "out.s"
    open(path, "w").write(txt)
    print("wrote", path, len(txt), "bytes;", len(k1), "k1 lines,", len(k2), "k2 lines")
if __name__ == "__main__": main()
```

```python
import sys
from irlib import *

NAME = "parallel_sum__sliding_local_dilated__dense_activation_relu__prompt"

S_, D_, DFF = 2048, 640, 1728
X_BYTES = S_*D_*2
WQKV_BYTES = D_*3*D_*2
WO_BYTES = D_*D_*2
W1_BYTES = D_*DFF*2
W2_BYTES = DFF*D_*2
NKS = 74
ACT_OFF = 0
ACT_TB = NKS*4096
W2F_OFF = 10*1024*1024
W2F_CB = NKS*5120
RSTD_OFF = 14*1024*1024
WS_USED = 17*1024*1024
OOB = 0x7F000000

def v(i): return "v%d" % i
def vr(i, n): return "v[%d:%d]" % (i, i+n-1)
def a(i): return "a%d" % i
def ar(i, n): return "a[%d:%d]" % (i, i+n-1)
def s(i): return "s%d" % i
def sr(i, n): return "s[%d:%d]" % (i, i+n-1)

STAMP = False
OPTS = set()
STAMP_OFF = 16*1024*1024
sST = 76
def stamp(e, i):
    if STAMP:
        e("s_memrealtime %s" % sr(sST + 4*i, 2))
        e("s_memtime %s" % sr(sST + 4*i + 2, 2))
def stamp_flush(e, kern, n):
    if not STAMP: return
    e("s_waitcnt lgkmcnt(0)")
    if "dbg" in OPTS and kern == 1:
        lab = "L_dbg_k2"
        e("s_cmp_lg_u32 %s, 0" % s(sWave))
        e("s_cbranch_scc1 %s" % lab)
        e("s_cmp_eq_u32 s2, 0"); e("s_cbranch_scc0 %s" % lab)
        e("s_mov_b32 s72, s18"); e("s_and_b32 s73, s19, 0xffff"); e("s_mov_b32 s74, 256"); e("s_mov_b32 s75, 0x20000")
        for n_, i in enumerate([0, 2, 3, 5]):
            e("v_mov_b32 v1, %s" % s(sST + 4*i))
            e("v_mov_b32 v2, %d" % (48 + 4*n_))
            e("buffer_store_dword v1, v2, s[72:75], 0 offen")
        e("v_lshlrev_b32 v3, 2, %s" % v(vLane))
        e("s_mov_b32 s3, %d" % STAMP_OFF)
        e("buffer_load_dword v4, v3, %s, s3 offen" % sr(sWS,4))
        e("s_mov_b32 s3, %d" % (STAMP_OFF + 128*4*64))
        e("buffer_load_dword v5, v3, %s, s3 offen" % sr(sWS,4))
        e("v_cmp_gt_u32 vcc, 6, %s" % v(vLane))
        e("s_and_saveexec_b64 s[70:71], vcc")
        e("buffer_store_dword v4, v3, s[72:75], 0 offen")
        e("buffer_store_dword v5, v3, s[72:75], 0 offen offset:24")
        e("s_mov_b64 exec, s[70:71]")
        e.lab(lab)
        return
    e("s_lshl_b32 s3, s2, 2")
    e("s_add_u32 s3, s3, %s" % s(sWave))
    e("s_lshl_b32 s3, s3, 6")
    e("s_add_u32 s3, s3, %d" % (STAMP_OFF + kern*65536))
    for i in range(n):
        for k in range(2):
            e("v_mov_b32 v1, %s" % s(sST + 4*i + 2*k))
            e("v_mov_b32 v2, %d" % (4*i + 32*k))
            e("buffer_store_dword v1, v2, %s, s3 offen" % sr(sWS,4))
class E:
    def __init__(self): self.L = []
    def __call__(self, t): self.L.append("  " + t)
    def lab(self, t): self.L.append(t + ":")
    def c(self, t): self.L.append("  ; " + t)
    def ext(self, lines): self.L += lines

MFMA = "v_mfma_f32_16x16x32_bf16"

sX, sW, sWS = 24, 28, 32
sWave = 22
sRB, sCB = 36, 37
sKC, sSoX, sSoW, sDSlot, sRDelta, sIter = 38, 39, 40, 41, 42, 43
sRSlot = 44
sT0, sT1, sT2, sT3 = 46, 47, 48, 49
sM = 50

def srd(e, base, ptr, nbytes):
    e("s_mov_b32 %s, %s" % (s(base), s(ptr)))
    e("s_and_b32 %s, %s, 0xffff" % (s(base+1), s(ptr+1)))
    e("s_mov_b32 %s, %d" % (s(base+2), nbytes))
    e("s_mov_b32 %s, 0x20000" % s(base+3))

class LoopCfg: pass

def k1_main(cfg, tag):
    NT = cfg.ntile; NF = 2*NT; R = cfg.ring; L = cfg.look; TAIL = cfg.tail
    assert NF % R == 0
    wreg = lambda f: cfg.wbase + (f % R)*4
    def wreads(f):
        kh, c = divmod(f % NF, NT)
        return cfg.wread(kh, c, wreg(f))
    def mf(f):
        kh, c = divmod(f % NF, NT)
        return cfg.mf(kh, c, wreg(f))
    body = []
    aux = []
    e = body.append
    start = list(cfg.addr_update)
    start += cfg.xreads(0)
    first = [f for f in range(0, NF) if f - L < -TAIL]
    for f in first: start += wreads(f)
    body += ["  " + t for t in start]
    body += ["  " + t for t in cfg.scal_update]
    seq = []
    for f in range(-TAIL, NF - TAIL):
        pre_reads = []
        g = f + L
        if g >= len(first) and g < NF and g >= 0 and g not in first: pre_reads = wreads(g)
        ms = []
        if f == 0 and "nostats" not in OPTS: ms += cfg.stats(0)
        if f == NT and "nostats" not in OPTS: ms += cfg.stats(1)
        ms += mf(f % NF if f >= 0 else f + NF)
        extra = []
        if f == cfg.xread1_at: extra = cfg.xreads(1)
        seq.append((pre_reads + extra, ms))
    issued = set(first) | {f + L for f in range(-TAIL, NF - TAIL) if 0 <= f + L < NF}
    assert issued == set(range(NF)), (issued, NF)
    nm = sum(len(m) for _, m in seq)
    dma = list(cfg.dma)
    if "nodma" in OPTS: dma = []
    startpos = cfg.dma_start; endpos = nm - cfg.dma_endgap
    nd = len(dma)
    pos = [startpos + (endpos - startpos) * i // max(nd, 1) for i in range(nd)]
    cnt = 0; di = 0
    for reads, ms in seq:
        rq = list(reads)
        for k, m in enumerate(ms):
            if rq:
                take = (len(rq) + (len(ms) - k) - 1) // (len(ms) - k)
                for _ in range(take): body.append("  " + rq.pop(0))
            body.append("  " + m)
            cnt += 1
            while di < nd and pos[di] <= cnt:
                for t in dma[di]: body.append("  " + t)
                di += 1
    assert di == nd
    body.append("  s_waitcnt vmcnt(%d) lgkmcnt(0)" % (cfg.nd_instr if "nodma" not in OPTS else 0))
    body.append("  s_barrier")
    body.append("  s_add_u32 %s, %s, 1" % (s(sIter), s(sIter)))
    body.append("  s_cmp_lt_u32 %s, 10" % s(sIter))
    body.append("  s_cbranch_scc1 L_loop_%s" % tag)
    post = []
    for f in range(NF - TAIL, NF):
        for m in mf(f): post.append("  " + m)
    return body, post

def scal_update(slot, wstep):
    t = []
    t.append("s_add_u32 %s, %s, 1" % (s(sKC), s(sKC)))
    t.append("s_cmp_eq_u32 %s, 10" % s(sKC))
    t.append("s_cselect_b32 %s, 0, %s" % (s(sKC), s(sKC)))
    t.append("s_lshl_b32 %s, %s, 7" % (s(sSoX), s(sKC)))
    t.append("s_mul_i32 %s, %s, %d" % (s(sSoW), s(sKC), wstep))
    t.append("s_cmp_ge_u32 %s, 8" % s(sIter))
    t.append("s_cselect_b32 %s, 0x%x, %s" % (s(sSoX), OOB, s(sSoX)))
    t.append("s_cselect_b32 %s, 0x%x, %s" % (s(sSoW), OOB, s(sSoW)))
    t.append("s_add_u32 %s, %s, %d" % (s(sDSlot), s(sDSlot), slot))
    t.append("s_cmp_eq_u32 %s, %d" % (s(sDSlot), 3*slot))
    t.append("s_cselect_b32 %s, 0, %s" % (s(sDSlot), s(sDSlot)))
    return t

def addr_update(slot, regs):
    t = []
    t.append("s_mov_b32 %s, %s" % (s(sRDelta), s(sRSlot)))
    t.append("s_add_u32 %s, %s, %d" % (s(sRSlot), s(sRSlot), slot))
    t.append("s_cmp_eq_u32 %s, %d" % (s(sRSlot), 3*slot))
    t.append("s_cselect_b32 %s, 0, %s" % (s(sRSlot), s(sRSlot)))
    t.append("s_sub_u32 %s, %s, %s" % (s(sRDelta), s(sRSlot), s(sRDelta)))
    for r in regs:
        t.append("v_add_u32 %s, %s, %s" % (v(r), s(sRDelta), v(r)))
    return t

A_SLOT = 53248; A_XB = 18432; A_WPAIR = 1088
A_XJ = [[0,1,2,3,4],[5,6,7,8,9],[10,11,12,13],[14,15,16,17]]
vLane = 255
vWA, vX0, vX1 = 160, 161, 162
vDX, vDW = 163, 168
aW, aXF, aONE = 0, 40, 64
def acc_own(T, c): return (T*15 + c)*4
def acc_halo(eidx): return 120 + eidx*4
vSumT = [136, 140]; vSqT = [144, 148]; vSumH, vSqH = 152, 156
def xf(kh, T): return aXF + (kh*3 + T)*4

def attn_prologue(w, e):
    xj = A_XJ[w]
    e("v_lshrrev_b32 v1, 3, %s" % v(vLane))
    e("v_mul_u32_u24 v1, 1280, v1")
    e("v_and_b32 v2, 7, %s" % v(vLane))
    e("v_lshrrev_b32 v3, 4, %s" % v(vLane))
    e("v_xor_b32 v4, v2, v3")
    e("v_lshlrev_b32 v4, 4, v4")
    e("v_add_u32 v4, v4, v1")
    e("v_xor_b32 v5, 64, v4")
    e("s_lshl_b32 %s, %s, 7" % (s(sT0), s(sRB)))
    e("s_mul_i32 %s, %s, 1280" % (s(sT0), s(sT0)))
    e("s_sub_u32 %s, %s, %d" % (s(sT1), s(sT0), 16*1280))
    e("s_cmp_eq_u32 %s, 0" % s(sRB))
    e("s_cselect_b32 %s, 0, %s" % (s(sT1), s(sT1)))
    for m, j in enumerate(xj):
        imm = (m % 4)*1024
        if j < 2: e("s_add_u32 %s, %s, %d" % (s(sT2), s(sT1), j*8*1280 - imm))
        else:     e("s_add_u32 %s, %s, %d" % (s(sT2), s(sT0), (j-2)*8*1280 - imm))
        e("v_add_u32 %s, %s, %s" % (v(vDX+m), s(sT2), v(5 if j & 1 else 4)))
    e("v_cmp_le_u32 vcc, 30, %s" % v(vLane))
    e("v_cndmask_b32_e64 v6, 0, 1, vcc")
    e("v_mul_u32_u24 v7, 30, v6")
    e("v_sub_u32 v7, %s, v7" % v(vLane))
    e("v_mul_u32_u24 v8, 26, v7")
    e("v_lshrrev_b32 v8, 8, v8")
    e("v_mul_u32_u24 v8, 1120, v8")
    e("v_mul_u32_u24 v6, 3840, v6")
    e("v_lshlrev_b32 v7, 4, v7")
    e("v_add3_u32 v6, v6, v7, v8")
    e("v_mov_b32 v7, 0x40000000")
    e("v_cmp_le_u32 vcc, 60, %s" % v(vLane))
    e("v_cndmask_b32_e64 v6, v6, v7, vcc")
    e("s_mul_i32 %s, %s, 160" % (s(sT0), s(sCB)))
    kh = w >> 1; rd = w & 1
    for m in range(8):
        k = 32*kh + 8*(m >> 1) + 4*rd + 2*(m & 1)
        e("s_add_u32 %s, %s, %d" % (s(sT2), s(sT0), k*3840 - (m & 3)*1088))
        e("v_add_u32 %s, %s, v6" % (v(vDW+m), s(sT2)))
    if w == 0:
        e("v_lshlrev_b32 v7, 4, v2")
        e("v_mov_b32 v8, 0x3f803f80"); e("v_mov_b32 v9, v8"); e("v_mov_b32 v10, v8"); e("v_mov_b32 v11, v8")
        e("ds_write_b128 v7, v[8:11]")
        e("v_add_u32 v12, %d, v7" % A_SLOT)
        e("ds_write_b128 v12, v[8:11]")
        e("v_add_u32 v13, %d, v7" % (2*A_SLOT))
        e("ds_write_b128 v13, v[8:11]")

def attn_dma_groups(w, slot_expr_s):
    xj = A_XJ[w]; G = []
    for m, j in enumerate(xj):
        g = []
        if m % 4 == 0:
            g.append("s_add_u32 m0, %s, %d" % (s(slot_expr_s), j*1024))
        if w == 0 and j == 0: g.append("s_mov_b32 exec_lo, 0xffffff00")
        elif m % 4 == 0: g.append("s_nop 0")
        g.append("buffer_load_dwordx4 %s, %s, %s offen offset:%d lds" % (v(vDX+m), sr(sX,4), s(sSoX), (m % 4)*1024))
        if w == 0 and j == 0: g.append("s_mov_b32 exec_lo, -1")
        G.append(g)
    for m in range(8):
        g = []
        if m % 4 == 0:
            g.append("s_add_u32 m0, %s, %d" % (s(slot_expr_s), A_XB + (8*w + m)*A_WPAIR))
            g.append("s_nop 0")
        g.append("buffer_load_dwordx4 %s, %s, %s offen offset:%d lds" % (v(vDW+m), sr(sW,4), s(sSoW), (m % 4)*A_WPAIR))
        G.append(g)
    return G

def attn_loop_cfg(w):
    cfg = LoopCfg()
    cfg.slot = A_SLOT; cfg.ntile = 15; cfg.ring = 10; cfg.look = 6; cfg.tail = 4; cfg.wbase = aW
    H = [c for c in range(15) if c % 4 == w]
    def wread(kh, c, reg):
        off = kh*16*A_WPAIR + 32*c
        return ["ds_read_b64_tr_b16 %s, %s offset:%d" % (ar(reg,2), v(vWA), off),
                "ds_read_b64_tr_b16 %s, %s offset:%d" % (ar(reg+2,2), v(vWA), off + 8*A_WPAIR)]
    def mf(kh, c, reg):
        out = []
        for T in (0, 1):
            d = vr(acc_own(T, c), 4)
            if c < 10: out.append("%s %s, %s, %s, %s" % (MFMA, d, ar(reg,4), ar(xf(kh,T),4), d))
            else:      out.append("%s %s, %s, %s, %s" % (MFMA, d, ar(xf(kh,T),4), ar(reg,4), d))
        if c in H and "nohalo" not in OPTS:
            d = vr(acc_halo(c >> 2), 4)
            if c < 10: out.append("%s %s, %s, %s, %s" % (MFMA, d, ar(reg,4), ar(xf(kh,2),4), d))
            else:      out.append("%s %s, %s, %s, %s" % (MFMA, d, ar(xf(kh,2),4), ar(reg,4), d))
        return out
    def stats(kh):
        out = []
        for T in (0, 1):
            out.append("%s %s, %s, %s, %s" % (MFMA, vr(vSumT[T],4), ar(aONE,4), ar(xf(kh,T),4), vr(vSumT[T],4)))
            out.append("%s %s, %s, %s, %s" % (MFMA, vr(vSqT[T],4), ar(xf(kh,T),4), ar(xf(kh,T),4), vr(vSqT[T],4)))
        if w == 3:
            out.append("%s %s, %s, %s, %s" % (MFMA, vr(vSumH,4), ar(aONE,4), ar(xf(kh,2),4), vr(vSumH,4)))
            out.append("%s %s, %s, %s, %s" % (MFMA, vr(vSqH,4), ar(xf(kh,2),4), ar(xf(kh,2),4), vr(vSqH,4)))
        return out
    def xreads(kh):
        ad = vX1 if kh else vX0
        return ["ds_read_b128 %s, %s offset:%d" % (ar(xf(kh,0),4), v(ad), (1+2*w)*2048),
                "ds_read_b128 %s, %s offset:%d" % (ar(xf(kh,1),4), v(ad), (2+2*w)*2048),
                "ds_read_b128 %s, %s offset:%d" % (ar(xf(kh,2),4), v(ad), 0)]
    cfg.wread = wread; cfg.mf = mf; cfg.stats = stats; cfg.xreads = xreads
    cfg.xread1_at = 6
    cfg.addr_update = addr_update(A_SLOT, [vWA, vX0, vX1])
    cfg.scal_update = scal_update(A_SLOT, 64*3840)
    cfg.dma = attn_dma_groups(w, sDSlot)
    cfg.nd_instr = len(A_XJ[w]) + 8
    cfg.dma_start = 12; cfg.dma_endgap = 14
    return cfg

def read_addr_setup_attn(e):
    e("v_and_b32 v1, 15, %s" % v(vLane))
    e("v_lshrrev_b32 v2, 2, v1")
    e("v_and_b32 v3, 3, v1")
    e("v_lshrrev_b32 v4, 4, %s" % v(vLane))
    e("v_lshrrev_b32 v5, 1, v2")
    e("v_lshl_add_u32 v5, v4, 1, v5")
    e("v_mul_u32_u24 v5, %d, v5" % A_WPAIR)
    e("v_and_b32 v2, 1, v2")
    e("v_mul_u32_u24 v2, 480, v2")
    e("v_lshlrev_b32 v3, 3, v3")
    e("v_add3_u32 v5, v5, v2, v3")
    e("v_add_u32 %s, %d, v5" % (v(vWA), 2*A_SLOT + A_XB))
    xaddr_setup(e, 2*A_SLOT)

def xaddr_setup(e, base):
    e("v_and_b32 v1, 15, %s" % v(vLane))
    e("v_lshrrev_b32 v4, 4, %s" % v(vLane))
    e("v_lshrrev_b32 v2, 1, v1")
    e("v_xor_b32 v2, v2, v4")
    e("v_lshlrev_b32 v2, 4, v2")
    e("v_lshl_add_u32 v2, v1, 7, v2")
    e("v_add_u32 %s, %d, v2" % (v(vX0), base))
    e("v_xor_b32 v2, 64, v2")
    e("v_add_u32 %s, %d, v2" % (v(vX1), base))

def issue_prologue_dma(e, groups_fn, slot, wstep):
    e("s_lshl_b32 %s, %s, 7" % (s(sSoX), s(sKC)))
    e("s_mul_i32 %s, %s, %d" % (s(sSoW), s(sKC), wstep))
    e("s_mov_b32 %s, 0" % s(sDSlot))
    for g in groups_fn(sDSlot):
        for t in g: e(t)
    e("s_add_u32 %s, %s, 1" % (s(sKC), s(sKC)))
    e("s_cmp_eq_u32 %s, 10" % s(sKC))
    e("s_cselect_b32 %s, 0, %s" % (s(sKC), s(sKC)))
    e("s_lshl_b32 %s, %s, 7" % (s(sSoX), s(sKC)))
    e("s_mul_i32 %s, %s, %d" % (s(sSoW), s(sKC), wstep))
    e("s_mov_b32 %s, %d" % (s(sDSlot), slot))
    for g in groups_fn(sDSlot):
        for t in g: e(t)
    e("s_mov_b32 %s, %d" % (s(sRSlot), 2*slot))
    e("s_mov_b32 %s, 0" % s(sIter))

def zero_state(e, nacc, areg_lo, areg_hi, ones_at):
    for i in range(nacc): e("v_mov_b32 %s, 0" % v(i))
    e("v_mov_b32 %s, 0x3f803f80" % v(254))
    for i in range(areg_lo, areg_hi): e("v_accvgpr_write_b32 %s, 0" % a(i))
    for i in range(4): e("v_accvgpr_write_b32 %s, %s" % (a(ones_at+i), v(254)))

X_CS = 0
X_NM = 1024
X_RS = 2048
X_EX = 4096
vQp = 160
vKA, vKB, vKP = 180, 190, 200
vVp = 210
NEG = 0xf149f2ca
def stats_finalize(e, vsum, vsq, vt, out_nm, out_rs, out_std, smask):
    e("v_cndmask_b32_e64 %s, 0, %s, %s" % (v(vt), v(vsq+0), sr(smask,2)))
    for r in (1,2,3):
        e("v_cndmask_b32_e64 %s, %s, %s, %s" % (v(vt), v(vt), v(vsq+r), sr(smask+2*r,2)))
    e("v_mov_b32 %s, %s" % (v(vt+1), v(vt)))
    e("v_permlane32_swap_b32 %s, %s" % (v(vt), v(vt+1)))
    e("v_add_f32 %s, %s, %s" % (v(vt), v(vt), v(vt+1)))
    e("v_mov_b32 %s, %s" % (v(vt+1), v(vt)))
    e("v_permlane16_swap_b32 %s, %s" % (v(vt), v(vt+1)))
    e("v_add_f32 %s, %s, %s" % (v(vt), v(vt), v(vt+1)))
    e("v_mul_f32 %s, 0x%08x, %s" % (v(out_nm), f2u(-1.0/640), v(vsum)))
    e("v_mul_f32 %s, 0x%08x, %s" % (v(vt), f2u(1.0/640), v(vt)))
    e("v_fma_f32 %s, -%s, %s, %s" % (v(vt), v(out_nm), v(out_nm), v(vt)))
    e("v_max_f32 %s, 0, %s" % (v(vt), v(vt)))
    e("v_add_f32 %s, 0x%08x, %s" % (v(vt), f2u(1e-5), v(vt)))
    e("v_rsq_f32 %s, %s" % (v(out_rs), v(vt)))
    if out_std is not None:
        e("v_mul_f32 %s, %s, %s" % (v(out_std), v(vt), v(out_rs)))

import struct
def f2u(x): return struct.unpack("<I", struct.pack("<f", x))[0]

def attn_epilogue(w, e):
    H = [c for c in range(15) if c % 4 == w]
    tNM = [240, 242]; tRS = [244, 246]
    tSTD = [248, 249]
    vt = 250
    smask = sM
    for r in range(4):
        e("s_mov_b32 %s, 0x%08x" % (s(smask+2*r), 0x00100001 << r))
        e("s_mov_b32 %s, 0x%08x" % (s(smask+2*r+1), 0x10000100 << r))
    e("v_and_b32 v253, 15, %s" % v(vLane))
    e("v_lshlrev_b32 v253, 2, v253")
    for T in (0, 1):
        stats_finalize(e, vSumT[T], vSqT[T], vt, tNM[T], tRS[T], tSTD[T], smask)
        e("ds_write_b32 v253, %s offset:%d" % (v(tNM[T]), X_NM + (1+2*w+T)*64))
        e("ds_write_b32 v253, %s offset:%d" % (v(tRS[T]), X_RS + (1+2*w+T)*64))
    if w == 3:
        stats_finalize(e, vSumH, vSqH, vt, 136, 137, None, smask)
        e("ds_write_b32 v253, v136 offset:%d" % (X_NM))
        e("ds_write_b32 v253, v137 offset:%d" % (X_RS))
    e("s_cmp_lg_u32 %s, 0" % s(sCB))
    e("s_cbranch_scc1 L_nors_%d" % w)
    e("s_lshl_b32 %s, %s, 9" % (s(sT0), s(sRB)))
    e("s_add_u32 %s, %s, %d" % (s(sT0), s(sT0), RSTD_OFF + w*128))
    e("buffer_store_dword %s, v253, %s, %s offen" % (v(tRS[0]), sr(sWS,4), s(sT0)))
    e("buffer_store_dword %s, v253, %s, %s offen offset:64" % (v(tRS[1]), sr(sWS,4), s(sT0)))
    e.lab("L_nors_%d" % w)
    e("v_lshrrev_b32 v252, 4, %s" % v(vLane))
    e("v_lshlrev_b32 v252, 4, v252")
    e("s_mov_b32 exec_lo, 0x00010001"); e("s_mov_b32 exec_hi, 0x00010001")
    for c in H:
        if c < 10: e("ds_write_b128 v252, %s offset:%d" % (vr(acc_halo(c >> 2),4), X_CS + c*64))
    e("s_mov_b32 exec_lo, 0x0000ffff"); e("s_mov_b32 exec_hi, 0")
    for c in H:
        if c >= 10: e("ds_write_b32 v253, %s offset:%d" % (v(acc_halo(c >> 2)), X_CS + c*64))
    e("s_mov_b64 exec, -1")
    e("s_waitcnt lgkmcnt(0)")
    e("s_barrier")
    nm4 = [136, 140]; rs4 = [144, 148]
    for T in (0, 1):
        e("ds_read_b128 %s, v252 offset:%d" % (vr(nm4[T],4), X_NM + (1+2*w+T)*64))
        e("ds_read_b128 %s, v252 offset:%d" % (vr(rs4[T],4), X_RS + (1+2*w+T)*64))
    hK = [c for c in H if 5 <= c < 10]; hV = [c for c in H if c >= 10]
    tHN, tHR = 152, 154
    hn4, hr4 = 156, 236+4
    hr4 = 232
    e("ds_read_b32 %s, v253 offset:%d" % (v(tHN), X_NM))
    e("ds_read_b32 %s, v253 offset:%d" % (v(tHR), X_RS))
    csA, csB = 250, 120
    cs_buf = [236, 0]
    def pkfma_bc(d, s0, sc):
        e("v_pk_fma_f32 %s, %s, %s, %s op_sel_hi:[1,0,1]" % (vr(d,2), vr(s0,2), vr(sc,2), vr(d,2)))
    def pkmul_bc(d, sc):
        e("v_pk_mul_f32 %s, %s, %s op_sel_hi:[1,0]" % (vr(d,2), vr(d,2), vr(sc,2)))
    csr = [224, 228]
    for c in range(10):
        e("ds_read_b128 %s, v252 offset:%d" % (vr(csr[c & 1],4), X_CS + c*64))
        cs4 = csr[c & 1]
        for T in (0, 1):
            d = acc_own(T, c)
            pkfma_bc(d, cs4, tNM[T]); pkfma_bc(d+2, cs4+2, tNM[T])
            if c >= 5:
                pkmul_bc(d, tRS[T]); pkmul_bc(d+2, tRS[T])
            dst = (vQp + T*10 + 2*c) if c < 5 else ((vKA, vKB)[T] + 2*(c-5))
            e("v_cvt_pk_bf16_f32 %s, %s, %s" % (v(dst), v(d), v(d+1)))
            e("v_cvt_pk_bf16_f32 %s, %s, %s" % (v(dst+1), v(d+2), v(d+3)))
        if c in hK:
            d = acc_halo(c >> 2)
            pkfma_bc(d, cs4, tHN); pkfma_bc(d+2, cs4+2, tHN)
            pkmul_bc(d, tHR); pkmul_bc(d+2, tHR)
            e("v_cvt_pk_bf16_f32 %s, %s, %s" % (v(d), v(d), v(d+1)))
            e("v_cvt_pk_bf16_f32 %s, %s, %s" % (v(d+1), v(d+2), v(d+3)))
    e("v_lshlrev_b32 v251, 3, %s" % v(vLane))
    for c in hK:
        e("ds_write_b64 v251, %s offset:%d" % (vr(acc_halo(c >> 2),2), X_EX + (c-5)*512))
    if w < 3:
        for i in range(5):
            e("ds_write_b64 v251, %s offset:%d" % (vr(vKB+2*i,2), X_EX + (w+1)*5120 + i*512))
    hn4, hr4 = 0, 4
    if hV:
        e("ds_read_b128 %s, v252 offset:%d" % (vr(hn4,4), X_NM))
        e("ds_read_b128 %s, v252 offset:%d" % (vr(hr4,4), X_RS))
    csd = 8
    for i in range(5):
        e("ds_read_b32 %s, v253 offset:%d" % (v(csd + 2*i), X_CS + (10+i)*64))
    for i in range(5):
        c = 10 + i
        for T in (0, 1):
            d = acc_own(T, c)
            for h_ in (0, 2):
                e("v_pk_fma_f32 %s, %s, %s, %s op_sel_hi:[1,0,1]" % (vr(d+h_,2), vr(nm4[T]+h_,2), vr(csd+2*i,2), vr(d+h_,2)))
                e("v_pk_mul_f32 %s, %s, %s" % (vr(d+h_,2), vr(d+h_,2), vr(rs4[T]+h_,2)))
            dst = vVp + 6*i + 2 + 2*T
            e("v_cvt_pk_bf16_f32 %s, %s, %s" % (v(dst), v(d), v(d+1)))
            e("v_cvt_pk_bf16_f32 %s, %s, %s" % (v(dst+1), v(d+2), v(d+3)))
        if c in hV:
            d = acc_halo(c >> 2)
            for h_ in (0, 2):
                e("v_pk_fma_f32 %s, %s, %s, %s op_sel_hi:[1,0,1]" % (vr(d+h_,2), vr(hn4+h_,2), vr(csd+2*i,2), vr(d+h_,2)))
                e("v_pk_mul_f32 %s, %s, %s" % (vr(d+h_,2), vr(d+h_,2), vr(hr4+h_,2)))
            e("v_cvt_pk_bf16_f32 %s, %s, %s" % (v(d), v(d), v(d+1)))
            e("v_cvt_pk_bf16_f32 %s, %s, %s" % (v(d+1), v(d+2), v(d+3)))
            e("ds_write_b64 v251, %s offset:%d" % (vr(d,2), X_EX + (5+i)*512))
        if w < 3:
            e("ds_write_b64 v251, %s offset:%d" % (vr(vVp+6*i+4,2), X_EX + (w+1)*5120 + (5+i)*512))
    vBP, vBC, vBPA = 0, 4, 8
    vSel = 12
    vML, vMH = 16, 20
    vONE = 24
    vT16, vG = 28, 29
    attn_consts(w, e, vBP, vBC, vBPA, vSel, vML, vMH, vONE, vT16, vG)
    cF = [30, 31]
    for T in (0, 1):
        e("v_mul_f32 %s, 0x%08x, %s" % (v(cF[T]), f2u((20.0 ** -0.5) * 1.4426950408889634), v(tRS[T])))
    e("s_mov_b32 %s, 0xffff" % s(sM+8)); e("s_mov_b32 %s, 0" % s(sM+9))
    e("s_mov_b32 %s, -1" % s(sM+10)); e("s_mov_b32 %s, 0" % s(sM+11))
    e("s_mov_b32 %s, -1" % s(sM+12)); e("s_mov_b32 %s, 0xffff" % s(sM+13))
    e("v_lshlrev_b32 v250, 4, %s" % v(vLane))
    attn_tile(e, w, 1, vKA, vKB, lambda i: vVp+6*i+2, vBP, vBC, vSel, vML, vMH, vONE, cF[1], tSTD[1])
    e("s_waitcnt lgkmcnt(0)")
    e("s_barrier")
    for i in range(5):
        e("ds_read_b64 %s, v251 offset:%d" % (vr(vKP+2*i,2), X_EX + w*5120 + i*512))
        e("ds_read_b64 %s, v251 offset:%d" % (vr(vVp+6*i,2), X_EX + w*5120 + (5+i)*512))
    attn_tile(e, w, 0, vKP, vKA, lambda i: vVp+6*i, vBPA, vBC, vSel, vML, vMH, vONE, cF[0], tSTD[0])

def attn_consts(w, e, vBP, vBC, vBPA, vSel, vML, vMH, vONE, vT16, vG):
    e("v_and_b32 %s, 15, %s" % (v(vT16), v(vLane)))
    e("v_lshrrev_b32 %s, 4, %s" % (v(vG), v(vLane)))
    t0, t1, t2 = 32, 33, 34
    e("v_lshlrev_b32 %s, 2, %s" % (v(t0), v(vG)))
    e("v_sub_u32 %s, %s, %s" % (v(t0), v(vT16), v(t0)))
    e("v_and_b32 %s, 1, %s" % (v(t1), v(vT16)))
    e("v_mov_b32 %s, 0x%08x" % (v(t2), NEG))
    e("v_cmp_eq_u32 %s, 0, %s" % (sr(sM+14,2), v(t1)))
    for r in range(4):
        e("v_subrev_u32 %s, %d, %s" % (v(35), r, v(t0)))
        e("v_cmp_le_i32 %s, 0, %s" % (sr(sM+16,2), v(35)))
        if r & 1: e("s_andn2_b64 %s, %s, %s" % (sr(sM+18,2), "exec", sr(sM+14,2)))
        else:     e("s_mov_b64 %s, %s" % (sr(sM+18,2), sr(sM+14,2)))
        e("s_and_b64 %s, %s, %s" % (sr(sM+20,2), sr(sM+18,2), sr(sM+16,2)))
        e("s_andn2_b64 %s, %s, %s" % (sr(sM+22,2), sr(sM+18,2), sr(sM+16,2)))
        e("v_cndmask_b32_e64 %s, %s, 0, %s" % (v(vBC+r), v(t2), sr(sM+20,2)))
        e("v_cndmask_b32_e64 %s, %s, 0, %s" % (v(vBP+r), v(t2), sr(sM+22,2)))
    for r in range(4): e("v_mov_b32 %s, %s" % (v(vBPA+r), v(vBP+r)))
    if w == 0:
        e("s_cmp_lg_u32 %s, 0" % s(sRB))
        e("s_cbranch_scc1 L_notfirst")
        for r in range(4): e("v_mov_b32 %s, %s" % (v(vBPA+r), v(t2)))
        e.lab("L_notfirst")
    e("v_sub_u32 %s, %s, %s" % (v(35), v(t0), v(t1)))
    e("v_mov_b32 %s, 0x0c0c0100" % v(36)); e("v_mov_b32 %s, 0x01000c0c" % v(37))
    e("v_cndmask_b32_e64 %s, %s, %s, %s" % (v(36), v(37), v(36), sr(sM+14,2)))
    e("v_mov_b32 %s, 0x0c0c0302" % v(37)); e("v_mov_b32 %s, 0x03020c0c" % v(38))
    e("v_cndmask_b32_e64 %s, %s, %s, %s" % (v(37), v(38), v(37), sr(sM+14,2)))
    e("v_mov_b32 %s, 0x0c0c0c0c" % v(38))
    e("v_cmp_le_i32 %s, 0, %s" % (sr(sM+16,2), v(35)))
    e("v_cndmask_b32_e64 %s, %s, %s, %s" % (v(vSel+0), v(36), v(38), sr(sM+16,2)))
    e("v_cndmask_b32_e64 %s, %s, %s, %s" % (v(vSel+2), v(38), v(36), sr(sM+16,2)))
    e("v_cmp_le_i32 %s, 2, %s" % (sr(sM+16,2), v(35)))
    e("v_cndmask_b32_e64 %s, %s, %s, %s" % (v(vSel+1), v(37), v(38), sr(sM+16,2)))
    e("v_cndmask_b32_e64 %s, %s, %s, %s" % (v(vSel+3), v(38), v(37), sr(sM+16,2)))
    for h in (1, 2, 3):
        e("v_cmp_le_u32 %s, %d, %s" % (sr(sM+16,2), h, v(vG)))
        e("v_cndmask_b32_e64 %s, 0, -1, %s" % (v(vML+h), sr(sM+16,2)))
    for h in (0, 1, 2):
        e("v_cmp_ge_u32 %s, %d, %s" % (sr(sM+16,2), h, v(vG)))
        e("v_cndmask_b32_e64 %s, 0, -1, %s" % (v(vMH+h), sr(sM+16,2)))
    for r in range(4): e("v_mov_b32 %s, 0x3f803f80" % v(vONE+r))

def attn_tile(e, w, T, kprev, kcur, vfrag, bP, bC, vSel, vML, vMH, vONE, cF, std):
    Qm = [40, 44, 48, 52]
    S0 = [56, 60, 64, 68]; S1 = [72, 76, 80, 84]
    P  = [88, 92, 96, 100]
    Lh = [104, 108, 112, 116]
    O  = {}
    qp = vQp + T*10
    for h in range(4):
        for k in range(2):
            if h == 0: e("v_mov_b32 %s, %s" % (v(Qm[h]+k), v(qp+2*h+k)))
            else:      e("v_and_b32 %s, %s, %s" % (v(Qm[h]+k), v(qp+2*h+k), v(vML+h)))
            if h == 3: e("v_mov_b32 %s, %s" % (v(Qm[h]+2+k), v(qp+2*h+2+k)))
            else:      e("v_and_b32 %s, %s, %s" % (v(Qm[h]+2+k), v(qp+2*h+2+k), v(vMH+h)))
    for h in range(4):
        e("%s %s, %s, %s, %s" % (MFMA, vr(S0[h],4), vr(kprev+2*h,4), vr(Qm[h],4), vr(bP,4)))
        e("%s %s, %s, %s, %s" % (MFMA, vr(S1[h],4), vr(kcur+2*h,4), vr(Qm[h],4), vr(bC,4)))
    va = [120, 122, 124, 126]; mx = [128, 129, 130, 131]; tmp = 132
    for h in range(4):
        e("v_max3_f32 %s, %s, %s, %s" % (v(va[h]), v(S0[h]), v(S0[h]+1), v(S1[h])))
        e("v_max3_f32 %s, %s, %s, %s" % (v(va[h]+1), v(S0[h]+2), v(S0[h]+3), v(S1[h]+2)))
        e("v_max_f32 %s, %s, %s" % (v(va[h]), v(va[h]), v(S1[h]+1)))
        e("v_max_f32 %s, %s, %s" % (v(va[h]+1), v(va[h]+1), v(S1[h]+3)))
        e("v_max_f32 %s, %s, %s" % (v(mx[h]), v(va[h]), v(va[h]+1)))
    e("v_permlane32_swap_b32 %s, %s" % (v(mx[0]), v(mx[1])))
    e("v_permlane32_swap_b32 %s, %s" % (v(mx[2]), v(mx[3])))
    e("v_max_f32 %s, %s, %s" % (v(mx[0]), v(mx[0]), v(mx[1])))
    e("v_max_f32 %s, %s, %s" % (v(mx[2]), v(mx[2]), v(mx[3])))
    e("v_permlane16_swap_b32 %s, %s" % (v(mx[0]), v(mx[2])))
    e("v_max_f32 %s, %s, %s" % (v(mx[0]), v(mx[0]), v(mx[2])))
    e("v_mov_b32 %s, %s" % (v(mx[2]), v(mx[0])))
    e("v_permlane16_swap_b32 %s, %s" % (v(mx[0]), v(mx[2])))
    e("v_mov_b32 %s, %s" % (v(mx[1]), v(mx[0])))
    e("v_mov_b32 %s, %s" % (v(mx[3]), v(mx[2])))
    e("v_permlane32_swap_b32 %s, %s" % (v(mx[0]), v(mx[1])))
    e("v_permlane32_swap_b32 %s, %s" % (v(mx[2]), v(mx[3])))
    for h in range(4):
        e("v_mul_f32 %s, %s, %s" % (v(mx[h]), v(mx[h]), v(cF)))
        e("v_fma_f32 %s, %s, %s, -%s" % (v(va[h]), v(va[h]), v(cF), v(mx[h])))
        e("v_fma_f32 %s, %s, %s, -%s" % (v(va[h]+1), v(va[h]+1), v(cF), v(mx[h])))
    for h in range(4):
        e("v_exp_f32 %s, %s" % (v(va[h]), v(va[h])))
        e("v_exp_f32 %s, %s" % (v(va[h]+1), v(va[h]+1)))
    for h in range(4):
        e("v_cvt_pk_bf16_f32 %s, %s, %s" % (v(va[h]), v(va[h]), v(va[h]+1)))
        for k in range(4):
            e("v_perm_b32 %s, %s, %s, %s" % (v(P[h]+k), v(va[h]), v(va[h]), v(vSel+k)))
    pairs = [(0,0),(1,0),(1,1),(2,1),(2,2),(3,2),(3,3),(4,3)]
    free = Qm + S0
    for n, (i, h) in enumerate(pairs):
        O[(i,h)] = free[n]
    for h in range(4):
        e("%s %s, %s, %s, 0" % (MFMA, vr(Lh[h],4), vr(vONE,4), vr(P[h],4)))
    for (i, h) in pairs:
        e("%s %s, %s, %s, 0" % (MFMA, vr(O[(i,h)],4), vr(vfrag(i),4), vr(P[h],4)))
    for h in range(4):
        e("v_rcp_f32 %s, %s" % (v(Lh[h]), v(Lh[h])))
    for h in range(4):
        e("v_mul_f32 %s, %s, %s" % (v(Lh[h]), v(Lh[h]), v(std)))
    F = [Lh[0], 72, 74, 76, Lh[3]]
    e("v_cndmask_b32_e64 %s, %s, %s, %s" % (v(F[1]), v(Lh[1]), v(Lh[0]), sr(sM+8,2)))
    e("v_cndmask_b32_e64 %s, %s, %s, %s" % (v(F[2]), v(Lh[2]), v(Lh[1]), sr(sM+10,2)))
    e("v_cndmask_b32_e64 %s, %s, %s, %s" % (v(F[3]), v(Lh[3]), v(Lh[2]), sr(sM+12,2)))
    R = {}
    R[0] = O[(0,0)]; R[4] = O[(4,3)]
    for i in (1, 2, 3):
        lo, hi = O[(i,i-1)], O[(i,i)]
        for r in range(4):
            e("v_cndmask_b32_e64 %s, %s, %s, %s" % (v(hi+r), v(hi+r), v(lo+r), sr(sM+8+2*(i-1),2)))
        R[i] = hi
    out = P[0]
    for i in range(5):
        e("v_pk_mul_f32 %s, %s, %s op_sel_hi:[1,0]" % (vr(R[i],2), vr(R[i],2), vr(F[i],2)))
        e("v_pk_mul_f32 %s, %s, %s op_sel_hi:[1,0]" % (vr(R[i]+2,2), vr(R[i]+2,2), vr(F[i],2)))
        e("v_cvt_pk_bf16_f32 %s, %s, %s" % (v(out+2*i), v(R[i]), v(R[i]+1)))
        e("v_cvt_pk_bf16_f32 %s, %s, %s" % (v(out+2*i+1), v(R[i]+2), v(R[i]+3)))
    gl = 2*w + T
    e("s_lshl_b32 %s, %s, 1" % (s(sT0), s(sRB)))
    e("s_add_u32 %s, %s, %d" % (s(sT0), s(sT0), gl >> 2))
    e("s_mul_i32 %s, %s, %d" % (s(sT0), s(sT0), ACT_TB))
    e("s_lshr_b32 %s, %s, 1" % (s(sT1), s(sCB)))
    e("s_mul_i32 %s, %s, 5" % (s(sT1), s(sT1)))
    e("s_and_b32 %s, %s, 1" % (s(sT2), s(sCB)))
    e("s_lshl_b32 %s, %s, 1" % (s(sT3), s(sT2)))
    e("s_add_u32 %s, %s, %s" % (s(sT3), s(sT3), s(sT1)))
    e("s_lshl_b32 %s, %s, 12" % (s(sT3), s(sT3)))
    e("s_add_u32 %s, %s, %s" % (s(sT3), s(sT3), s(sT0)))
    e("s_add_u32 %s, %s, %d" % (s(sT3), s(sT3), ACT_OFF + (gl & 3)*1024))
    e("buffer_store_dwordx4 %s, v250, %s, %s offen" % (vr(out,4), sr(sWS,4), s(sT3)))
    e("s_add_u32 %s, %s, 4096" % (s(sT3), s(sT3)))
    e("buffer_store_dwordx4 %s, v250, %s, %s offen" % (vr(out+4,4), sr(sWS,4), s(sT3)))
    e("s_add_u32 %s, %s, 4" % (s(sT1), s(sT1)))
    e("s_lshl_b32 %s, %s, 12" % (s(sT1), s(sT1)))
    e("s_add_u32 %s, %s, %s" % (s(sT1), s(sT1), s(sT0)))
    e("s_lshl_b32 %s, %s, 3" % (s(sT2), s(sT2)))
    e("s_add_u32 %s, %s, %s" % (s(sT1), s(sT1), s(sT2)))
    e("s_add_u32 %s, %s, %d" % (s(sT1), s(sT1), ACT_OFF + (gl & 3)*1024))
    e("buffer_store_dwordx2 %s, v250, %s, %s offen" % (vr(out+8,2), sr(sWS,4), s(sT1)))

F_SLOT = 49152; F_XB = 16384
fWA = [160, 161, 162, 163]
fDX, fDW = 164, 168
def facc(T, c): return (T*16 + c)*4
fCS = 128
fSUM = [144, 148]
F_X0, F_X1 = 176, 177
def fxf(kh, T): return aXF + (kh*2 + T)*4

def ffn_prologue(w, e):
    e("v_lshrrev_b32 v1, 3, %s" % v(vLane))
    e("v_mul_u32_u24 v6, 1280, v1")
    e("v_and_b32 v2, 7, %s" % v(vLane))
    e("v_lshrrev_b32 v3, 4, %s" % v(vLane))
    e("v_xor_b32 v4, v2, v3")
    e("v_lshlrev_b32 v4, 4, v4")
    e("v_add_u32 v4, v4, v6")
    e("v_xor_b32 v5, 64, v4")
    e("s_lshl_b32 %s, %s, 7" % (s(sT0), s(sRB)))
    e("s_mul_i32 %s, %s, 1280" % (s(sT0), s(sT0)))
    for m in range(4):
        j = 4*w + m
        e("s_add_u32 %s, %s, %d" % (s(sT2), s(sT0), j*8*1280 - m*1024))
        e("v_add_u32 %s, %s, %s" % (v(fDX+m), s(sT2), v(5 if j & 1 else 4)))
    e("v_lshrrev_b32 v6, 2, v1")
    e("v_lshlrev_b32 v6, 3, v6")
    e("v_and_b32 v7, 3, v1")
    e("v_add_u32 v6, v6, v7")
    e("v_mul_u32_u24 v6, 3456, v6")
    e("v_lshrrev_b32 v7, 1, v2")
    e("v_xor_b32 v7, v7, v3")
    e("v_lshlrev_b32 v7, 5, v7")
    e("v_and_b32 v8, 1, v2")
    e("v_lshlrev_b32 v8, 4, v8")
    e("v_add3_u32 v6, v6, v7, v8")
    e("s_lshl_b32 %s, %s, 9" % (s(sT0), s(sCB)))
    for m in range(8):
        kh, grp = m >> 2, m & 3
        k = 32*kh + 16*(grp & 1) + 4*(grp >> 1)
        e("s_add_u32 %s, %s, %d" % (s(sT2), s(sT0), k*3456 + w*128 - (m & 3)*1024))
        e("v_add_u32 %s, %s, v6" % (v(fDW+m), s(sT2)))

def ffn_dma_groups(w, slot_s):
    G = []
    for m in range(4):
        g = []
        if m == 0:
            g.append("s_add_u32 m0, %s, %d" % (s(slot_s), 4*w*1024)); g.append("s_nop 0")
        g.append("buffer_load_dwordx4 %s, %s, %s offen offset:%d lds" % (v(fDX+m), sr(sX,4), s(sSoX), m*1024))
        G.append(g)
    for m in range(8):
        g = []
        if m % 4 == 0:
            g.append("s_add_u32 m0, %s, %d" % (s(slot_s), F_XB + w*8192 + m*1024)); g.append("s_nop 0")
        g.append("buffer_load_dwordx4 %s, %s, %s offen offset:%d lds" % (v(fDW+m), sr(sW,4), s(sSoW), (m % 4)*1024))
        G.append(g)
    return G

def ffn_loop_cfg(w):
    cfg = LoopCfg()
    cfg.slot = F_SLOT; cfg.ntile = 16; cfg.ring = 8; cfg.look = 6; cfg.tail = 4; cfg.wbase = aW
    H = [c for c in range(16) if c % 4 == w]
    def wread(kh, c, reg):
        off = (c >> 2)*8192 + kh*4096
        ad = v(fWA[c & 3])
        return ["ds_read_b64_tr_b16 %s, %s offset:%d" % (ar(reg,2), ad, off),
                "ds_read_b64_tr_b16 %s, %s offset:%d" % (ar(reg+2,2), ad, off + 2048)]
    def mf(kh, c, reg):
        out = []
        for T in (0, 1):
            d = vr(facc(T, c), 4)
            out.append("%s %s, %s, %s, %s" % (MFMA, d, ar(reg,4), ar(fxf(kh,T),4), d))
        if c in H and "nohalo" not in OPTS:
            d = vr(fCS + (c >> 2)*4, 4)
            out.append("%s %s, %s, %s, %s" % (MFMA, d, ar(reg,4), ar(aONE,4), d))
        return out
    def stats(kh):
        return ["%s %s, %s, %s, %s" % (MFMA, vr(fSUM[T],4), ar(aONE,4), ar(fxf(kh,T),4), vr(fSUM[T],4)) for T in (0,1)]
    def xreads(kh):
        ad = F_X1 if kh else F_X0
        return ["ds_read_b128 %s, %s offset:%d" % (ar(fxf(kh,T),4), v(ad), (2*w+T)*2048) for T in (0,1)]
    cfg.wread = wread; cfg.mf = mf; cfg.stats = stats; cfg.xreads = xreads
    cfg.xread1_at = 6
    cfg.addr_update = addr_update(F_SLOT, fWA + [F_X0, F_X1])
    cfg.scal_update = scal_update(F_SLOT, 64*3456)
    cfg.dma = ffn_dma_groups(w, sDSlot)
    cfg.nd_instr = 12
    cfg.dma_start = 12; cfg.dma_endgap = 14
    return cfg

def read_addr_setup_ffn(e):
    e("v_and_b32 v1, 15, %s" % v(vLane))
    e("v_lshrrev_b32 v2, 2, v1")
    e("v_and_b32 v3, 3, v1")
    e("v_lshrrev_b32 v4, 4, %s" % v(vLane))
    e("v_lshl_add_u32 v2, v4, 2, v2")
    e("v_lshrrev_b32 v5, 1, v2")
    e("v_and_b32 v5, 3, v5")
    e("v_lshlrev_b32 v2, 7, v2")
    e("v_lshl_add_u32 v2, v3, 3, v2")
    e("v_add_u32 v2, %d, v2" % (2*F_SLOT + F_XB))
    for u in range(4):
        e("v_xor_b32 v6, %d, v5" % u)
        e("v_lshl_add_u32 %s, v6, 5, v2" % v(fWA[u]))
    e("v_and_b32 v1, 15, %s" % v(vLane))
    e("v_lshrrev_b32 v2, 1, v1")
    e("v_xor_b32 v2, v2, v4")
    e("v_lshlrev_b32 v2, 4, v2")
    e("v_lshl_add_u32 v2, v1, 7, v2")
    e("v_add_u32 %s, %d, v2" % (v(F_X0), 2*F_SLOT))
    e("v_xor_b32 v2, 64, v2")
    e("v_add_u32 %s, %d, v2" % (v(F_X1), 2*F_SLOT))

def ffn_epilogue(w, e):
    H = [c for c in range(16) if c % 4 == w]
    nm = [150, 152]
    for T in (0, 1):
        e("v_mul_f32 %s, 0x%08x, %s" % (v(nm[T]), f2u(-1.0/640), v(fSUM[T])))
    e("v_lshrrev_b32 v252, 4, %s" % v(vLane))
    e("v_lshlrev_b32 v252, 4, v252")
    e("s_mov_b32 exec_lo, 0x00010001"); e("s_mov_b32 exec_hi, 0x00010001")
    for c in H:
        e("ds_write_b128 v252, %s offset:%d" % (vr(fCS + (c >> 2)*4, 4), c*64))
    e("s_mov_b64 exec, -1")
    e("s_waitcnt lgkmcnt(0)")
    e("s_barrier")
    e("v_lshlrev_b32 v250, 4, %s" % v(vLane))
    e("s_lshl_b32 %s, %s, 1" % (s(sT0), s(sRB)))
    e("s_add_u32 %s, %s, %d" % (s(sT0), s(sT0), (2*w) >> 2))
    e("s_mul_i32 %s, %s, %d" % (s(sT0), s(sT0), ACT_TB))
    e("s_lshl_b32 %s, %s, 3" % (s(sT1), s(sCB)))
    e("s_add_u32 %s, %s, 20" % (s(sT1), s(sT1)))
    e("s_lshl_b32 %s, %s, 12" % (s(sT1), s(sT1)))
    e("s_add_u32 %s, %s, %s" % (s(sT0), s(sT0), s(sT1)))
    e("s_add_u32 %s, %s, %d" % (s(sT0), s(sT0), ACT_OFF + ((2*w) & 3)*1024))
    cs = [160, 164, 168, 172]
    pk = [180, 184, 188, 192]
    for a_ in range(8):
        if a_ == 6:
            e("s_cmp_eq_u32 %s, 6" % s(sCB))
            e("s_cbranch_scc1 L_ffn_done_%d" % w)
        for k in range(2):
            c = 2*a_ + k
            e("ds_read_b128 %s, v252 offset:%d" % (vr(cs[(2*a_+k) & 3],4), c*64))
        for T in (0, 1):
            o = pk[(2*a_ + T) & 3]
            for k in range(2):
                c = 2*a_ + k; d = facc(T, c); q = cs[c & 3]
                e("v_pk_fma_f32 %s, %s, %s, %s op_sel_hi:[1,0,1]" % (vr(d,2), vr(q,2), vr(nm[T],2), vr(d,2)))
                e("v_pk_fma_f32 %s, %s, %s, %s op_sel_hi:[1,0,1]" % (vr(d+2,2), vr(q+2,2), vr(nm[T],2), vr(d+2,2)))
                e("v_cvt_pk_bf16_f32 %s, %s, %s" % (v(o+2*k), v(d), v(d+1)))
                e("v_cvt_pk_bf16_f32 %s, %s, %s" % (v(o+2*k+1), v(d+2), v(d+3)))
                e("v_pk_max_i16 %s, %s, 0" % (v(o+2*k), v(o+2*k)))
                e("v_pk_max_i16 %s, %s, 0" % (v(o+2*k+1), v(o+2*k+1)))
            e("buffer_store_dwordx4 %s, v250, %s, %s offen offset:%d" % (vr(o,4), sr(sWS,4), s(sT0), T*1024))
        e("s_add_u32 %s, %s, 4096" % (s(sT0), s(sT0)))
    e.lab("L_ffn_done_%d" % w)

P_STRIDE = 1312
def preformat(e):
    e("v_lshlrev_b32 v250, 4, %s" % v(vLane))
    for i in range(10):
        e("v_add_u32 v1, %d, %s" % (64*i, v(vLane)))
        e("v_mul_u32_u24 v2, 205, v1"); e("v_lshrrev_b32 v2, 14, v2")
        e("v_mul_u32_u24 v3, 80, v2"); e("v_sub_u32 v3, v1, v3")
        e("v_mul_u32_u24 v4, 1280, v2"); e("v_lshl_add_u32 %s, v3, 4, v4" % v(200+i))
        e("v_mul_u32_u24 v4, %d, v2" % P_STRIDE); e("v_lshl_add_u32 %s, v3, 4, v4" % v(210+i))
    e("s_mul_i32 %s, %s, %d" % (s(sT0), s(sWave), 8*P_STRIDE))
    for i in range(10): e("v_add_u32 %s, %s, %s" % (v(210+i), s(sT0), v(210+i)))
    e("v_and_b32 v1, 15, %s" % v(vLane)); e("v_lshrrev_b32 v2, 2, v1"); e("v_and_b32 v3, 3, v1")
    e("v_lshrrev_b32 v4, 4, %s" % v(vLane)); e("v_lshl_add_u32 v2, v4, 2, v2")
    e("v_mul_u32_u24 v2, %d, v2" % P_STRIDE)
    e("v_lshl_add_u32 v220, v3, 4, v2")
    e("v_lshl_add_u32 v221, v3, 3, v2")
    e("s_mul_i32 %s, %s, 320" % (s(sT0), s(sWave)))
    e("v_add_u32 v220, %s, v220" % s(sT0)); e("v_add_u32 v221, %s, v221" % s(sT0))
    e("s_mul_i32 %s, %s, 5" % (s(sKC), s(sCB)))
    e("s_mov_b32 %s, 0" % s(sIter))
    e.lab("L_pf_loop")
    e("s_cmp_ge_u32 %s, %d" % (s(sKC), NKS))
    e("s_cbranch_scc1 L_pf_done")
    e("s_mul_i32 %s, %s, 52" % (s(sT0), s(sKC))); e("s_lshr_b32 %s, %s, 8" % (s(sT0), s(sT0)))
    e("s_mul_i32 %s, %s, 5" % (s(sT1), s(sT0))); e("s_sub_u32 %s, %s, %s" % (s(sT1), s(sKC), s(sT1)))
    e("s_mul_i32 %s, %s, 160" % (s(sT0), s(sT0)))
    e("s_lshl_b32 %s, %s, 5" % (s(sT2), s(sT1)))
    e("s_cmp_ge_u32 %s, 2" % s(sT1))
    e("s_cselect_b32 %s, 16, 0" % s(sT3))
    e("s_add_u32 %s, %s, %s" % (s(sT2), s(sT2), s(sT3)))
    e("s_add_u32 %s, %s, %s" % (s(sT2), s(sT2), s(sT0)))
    e("s_add_u32 %s, %s, 16" % (s(sT3), s(sT2)))
    e("s_cmp_eq_u32 %s, 4" % s(sT1))
    e("s_cbranch_scc0 L_pf_notshared")
    e("s_add_u32 %s, %s, 64" % (s(sT2), s(sT0)))
    e("s_add_u32 %s, %s, 144" % (s(sT3), s(sT0)))
    e.lab("L_pf_notshared")
    e("s_cmp_lt_u32 %s, 20" % s(sKC))
    e("s_cbranch_scc1 L_pf_wo")
    e("s_sub_u32 %s, %s, 20" % (s(sT2), s(sKC)))
    e("s_lshl_b32 %s, %s, 5" % (s(sT2), s(sT2)))
    e("s_add_u32 %s, %s, 16" % (s(sT3), s(sT2)))
    e("s_mov_b32 %s, %s" % (s(sX), s(14))); e("s_and_b32 %s, %s, 0xffff" % (s(sX+1), s(15))); e("s_mov_b32 %s, %d" % (s(sX+2), W2_BYTES))
    e.lab("L_pf_wo")
    e("s_cmp_ge_u32 %s, 2" % s(sWave))
    e("s_cselect_b32 %s, %s, %s" % (s(sT2), s(sT3), s(sT2)))
    e("s_and_b32 %s, %s, 1" % (s(sT3), s(sWave)))
    e("s_lshl_b32 %s, %s, 3" % (s(sT3), s(sT3)))
    e("s_add_u32 %s, %s, %s" % (s(sT2), s(sT2), s(sT3)))
    e("s_mul_i32 %s, %s, 1280" % (s(sT2), s(sT2)))
    for i in range(10):
        e("buffer_load_dwordx4 %s, %s, %s, %s offen" % (vr(4*i,4), v(200+i), sr(sX,4), s(sT2)))
    for i in range(10):
        e("ds_write_b128 %s, %s" % (v(210+i), vr(4*i,4)))
    e("s_waitcnt lgkmcnt(0)")
    e("s_barrier")
    e("s_mul_i32 %s, %s, 5120" % (s(sT0), s(sKC)))
    e("s_mul_i32 %s, %s, %d" % (s(sT1), s(sWave), 2*W2F_CB))
    e("s_add_u32 %s, %s, %s" % (s(sT0), s(sT0), s(sT1)))
    e("s_add_u32 %s, %s, %d" % (s(sT0), s(sT0), W2F_OFF))
    for half in range(2):
        for ct in range(5):
            d = 40 + (half*5 + ct)*4
            if ct < 4:
                off = half*160 + (ct >> 1)*64 + (ct & 1)*8; ad = 220
            else:
                off = half*160 + 128; ad = 221
            e("ds_read_b64_tr_b16 %s, %s offset:%d" % (vr(d,2), v(ad), off))
            e("ds_read_b64_tr_b16 %s, %s offset:%d" % (vr(d+2,2), v(ad), off + 16*P_STRIDE))
    for half in range(2):
        for ct in range(5):
            d = 40 + (half*5 + ct)*4
            if ct == 4 or (half == 1 and ct == 0):
                pass
            e("s_add_u32 %s, %s, %d" % (s(sT1), s(sT0), half*W2F_CB + ct*1024))
            e("buffer_store_dwordx4 %s, v250, %s, %s offen" % (vr(d,4), sr(sWS,4), s(sT1)))
    e("s_waitcnt lgkmcnt(0)")
    e("s_barrier")
    e("s_add_u32 %s, %s, 1" % (s(sKC), s(sKC)))
    e("s_add_u32 %s, %s, 1" % (s(sIter), s(sIter)))
    e("s_cmp_lt_u32 %s, 5" % s(sIter))
    e("s_cbranch_scc1 L_pf_loop")
    e.lab("L_pf_done")

K2_DEPTH = 6
def k2_body():
    e = E()
    sTB, sC2, sI, sKS, sA, sB = 36, 37, 38, 39, 40, 41
    sOUT = 28
    e("s_cmp_ge_u32 s2, 256")
    e("s_cbranch_scc1 L_k2_end")
    stamp(e, 0)
    e("s_load_dwordx2 s[4:5], s[0:1], 0")
    e("s_load_dwordx2 s[16:17], s[0:1], 48")
    e("s_load_dwordx2 s[20:21], s[0:1], 64")
    e("s_load_dwordx2 s[18:19], s[0:1], 56")
    e("v_and_b32 %s, 63, v0" % v(vLane))
    e("v_lshrrev_b32 v1, 6, v0")
    e("s_and_b32 s3, s2, 7")
    e("v_readfirstlane_b32 %s, v1" % s(sWave))
    e("s_lshr_b32 %s, s2, 3" % s(sT0))
    e("s_and_b32 %s, s3, 3" % s(sT1))
    e("s_lshl_b32 %s, %s, 3" % (s(sTB), s(sT1)))
    e("s_and_b32 %s, %s, 7" % (s(sT2), s(sT0)))
    e("s_add_u32 %s, %s, %s" % (s(sTB), s(sTB), s(sT2)))
    e("s_lshr_b32 %s, s3, 2" % s(sT1))
    e("s_lshl_b32 %s, %s, 2" % (s(sC2), s(sT1)))
    e("s_lshr_b32 %s, %s, 3" % (s(sT3), s(sT0)))
    e("s_add_u32 %s, %s, %s" % (s(sC2), s(sC2), s(sT3)))
    e("s_lshl_b32 %s, %s, 1" % (s(sI), s(sT2)))
    e("s_mul_i32 %s, %s, 5" % (s(sT3), s(sT3)))
    e("s_add_u32 %s, %s, %s" % (s(sI), s(sI), s(sT3)))
    e("s_cmp_ge_u32 %s, 19" % s(sI))
    e("s_cselect_b32 %s, 19, 0" % s(sT3))
    e("s_sub_u32 %s, %s, %s" % (s(sI), s(sI), s(sT3)))
    e("v_lshlrev_b32 v250, 4, %s" % v(vLane))
    e("v_add_u32 v251, 4096, v250")
    e("s_waitcnt lgkmcnt(0)")
    srd(e, sX, 4, X_BYTES); srd(e, sOUT, 16, X_BYTES); srd(e, sWS, 20, WS_USED)
    e("s_mul_i32 %s, %s, %d" % (s(42), s(sTB), ACT_TB))
    e("s_add_u32 %s, %s, %d" % (s(42), s(42), ACT_OFF))
    e("s_mul_i32 %s, %s, %d" % (s(43), s(sC2), W2F_CB))
    e("s_add_u32 %s, %s, %d" % (s(43), s(43), W2F_OFF))
    def step_scalars():
        e("s_lshl_b32 %s, %s, 2" % (s(sKS), s(sI)))
        e("s_add_u32 %s, %s, %s" % (s(sKS), s(sKS), s(sWave)))
        e("s_lshl_b32 %s, %s, 12" % (s(sA), s(sKS)))
        e("s_add_u32 %s, %s, %s" % (s(sA), s(sA), s(42)))
        e("s_mul_i32 %s, %s, 5120" % (s(sB), s(sKS)))
        e("s_add_u32 %s, %s, %s" % (s(sB), s(sB), s(43)))
        e("s_cmp_ge_u32 %s, %d" % (s(sKS), NKS))
        e("s_cselect_b32 %s, 0x%x, %s" % (s(sA), OOB, s(sA)))
        e("s_cselect_b32 %s, 0x%x, %s" % (s(sB), OOB, s(sB)))
        e("s_add_u32 %s, %s, 1" % (s(sI), s(sI)))
        e("s_cmp_eq_u32 %s, 19" % s(sI))
        e("s_cselect_b32 %s, 0, %s" % (s(sI), s(sI)))
    def loads(i):
        st = (i % K2_DEPTH)*36
        L = []
        for ct in range(4):
            L.append("buffer_load_dwordx4 %s, v250, %s, %s offen offset:%d" % (ar(st+16+4*ct,4), sr(sWS,4), s(sB), ct*1024))
        L.append("buffer_load_dwordx4 %s, v251, %s, %s offen" % (ar(st+32,4), sr(sWS,4), s(sB)))
        for tt in range(4):
            L.append("buffer_load_dwordx4 %s, v250, %s, %s offen offset:%d" % (ar(st+4*tt,4), sr(sWS,4), s(sA), tt*1024))
        return L
    for i in range(K2_DEPTH - 1):
        step_scalars()
        for t in loads(i): e(t)
    e("v_and_b32 v1, 15, %s" % v(vLane))
    e("v_lshrrev_b32 v2, 4, %s" % v(vLane))
    e("s_lshl_b32 %s, %s, 6" % (s(sT0), s(sTB)))
    e("s_lshl_b32 %s, %s, 4" % (s(sT1), s(sWave)))
    e("s_add_u32 %s, %s, %s" % (s(sT0), s(sT0), s(sT1)))
    e("v_add_u32 v3, %s, v1" % s(sT0))
    e("v_lshlrev_b32 v4, 2, v3")
    e("v_mul_u32_u24 v3, 1280, v3")
    e("s_mul_i32 %s, %s, 160" % (s(sT1), s(sC2)))
    e("v_add_u32 v3, %s, v3" % s(sT1))
    e("v_lshl_add_u32 v240, v2, 4, v3")
    e("v_lshl_add_u32 v241, v2, 3, v3")
    e("s_mov_b32 %s, %d" % (s(sT2), RSTD_OFF))
    e("buffer_load_dwordx4 v[224:227], v240, %s, 0 offen" % sr(sX,4))
    e("buffer_load_dwordx4 v[228:231], v240, %s, 0 offen offset:64" % sr(sX,4))
    e("buffer_load_dwordx2 v[232:233], v241, %s, 0 offen offset:128" % sr(sX,4))
    e("buffer_load_dword v234, v4, %s, %s offen" % (sr(sWS,4), s(sT2)))
    for i in range(80): e("v_mov_b32 %s, 0" % v(i))
    stamp(e, 1)
    if STAMP: e("s_waitcnt lgkmcnt(0)")
    NST = 19
    for i in range(NST):
        if i == 1:
            stamp(e, 2)
            if STAMP: e("s_waitcnt lgkmcnt(0)")
        nxt = i + K2_DEPTH - 1
        L = []
        if nxt < NST:
            step_scalars()
            L = loads(nxt)
        st = (i % K2_DEPTH)*36
        ms = []
        for ct in range(5):
            for tt in range(4):
                d = vr((tt*5+ct)*4, 4)
                ms.append("%s %s, %s, %s, %s" % (MFMA, d, ar(st+16+4*ct,4), ar(st+4*tt,4), d))
        k = 0
        for n, m in enumerate(ms):
            e(m)
            if L and n % 2 == 1: e(L.pop(0))
        for t in L: e(t)
    stamp(e, 3)
    if STAMP: e("s_waitcnt lgkmcnt(0)")
    e("s_nop 7"); e("s_nop 7")
    e("v_lshlrev_b32 v242, 4, %s" % v(vLane))
    e("s_mul_i32 %s, %s, %d" % (s(sT0), s(sWave), 20*1024))
    e("v_add_u32 v243, %s, v242" % s(sT0))
    for w in range(4):
        e("s_cmp_lg_u32 %s, %d" % (s(sWave), w))
        e("s_cbranch_scc1 L_k2_w%d" % w)
        for tt in range(4):
            if tt == w: continue
            for ct in range(5):
                e("ds_write_b128 v243, %s offset:%d" % (vr((tt*5+ct)*4,4), (tt*5+ct)*1024))
        if w != 0:
            for r in range(20): e("v_mov_b32 %s, %s" % (v(r), v(w*20 + r)))
        e("s_branch L_k2_red")
        e.lab("L_k2_w%d" % w)
    e.lab("L_k2_red")
    e("s_waitcnt lgkmcnt(0)")
    e("s_barrier")
    e("s_mul_i32 %s, %s, 5120" % (s(sT0), s(sWave)))
    e("v_add_u32 v243, %s, v242" % s(sT0))
    for k in range(1, 4):
        e("s_add_u32 %s, %s, %d" % (s(sT1), s(sWave), k))
        e("s_and_b32 %s, %s, 3" % (s(sT1), s(sT1)))
        e("s_mul_i32 %s, %s, %d" % (s(sT1), s(sT1), 20*1024))
        e("v_add_u32 %s, %s, v243" % (v(243+k), s(sT1)))
        for ct in range(5):
            e("ds_read_b128 %s, %s offset:%d" % (vr(80 + ((k-1)*5+ct)*4, 4), v(243+k), ct*1024))
    for k in range(3):
        for r in range(0, 20, 2):
            e("v_pk_add_f32 %s, %s, %s" % (vr(r,2), vr(r,2), vr(80 + k*20 + r, 2)))
    xr = [224, 226, 228, 230, 232]
    o = 150
    for ct in range(5):
        xp = xr[ct]
        for hh in range(2):
            e("v_lshlrev_b32 v140, 16, %s" % v(xp+hh))
            e("v_and_b32 v141, 0xffff0000, %s" % v(xp+hh))
            d = ct*4 + 2*hh
            e("v_pk_fma_f32 %s, %s, %s, %s op_sel_hi:[1,0,1]" % (vr(140,2), vr(d,2), vr(234,2), vr(140,2)))
            e("v_cvt_pk_bf16_f32 %s, v140, v141" % v(o + 2*ct + hh))
    e("buffer_store_dwordx4 %s, v240, %s, 0 offen" % (vr(o,4), sr(sOUT,4)))
    e("buffer_store_dwordx4 %s, v240, %s, 0 offen offset:64" % (vr(o+4,4), sr(sOUT,4)))
    e("buffer_store_dwordx2 %s, v241, %s, 0 offen offset:128" % (vr(o+8,2), sr(sOUT,4)))
    stamp(e, 4)
    if STAMP: e("s_waitcnt vmcnt(0)")
    stamp(e, 5); stamp_flush(e, 1, 6)
    e.lab("L_k2_end")
    return e.L

ROT = True
def k1_text():
    out = []
    e = E()
    e("s_cmp_ge_u32 s2, 256")
    e("s_cbranch_scc1 L_k1_end")
    stamp(e, 0)
    e("s_load_dwordx16 s[4:19], s[0:1], 0")
    e("s_load_dwordx2 s[20:21], s[0:1], 64")
    e("v_and_b32 %s, 63, v0" % v(vLane))
    e("v_lshrrev_b32 v1, 6, v0")
    e("s_and_b32 s3, s2, 7")
    e("v_readfirstlane_b32 %s, v1" % s(sWave))
    e("s_lshr_b32 %s, s2, 3" % s(sT0))
    e("s_and_b32 %s, s3, 1" % s(sT1))
    e("s_lshr_b32 %s, s3, 1" % s(sT2))
    e("s_lshl_b32 %s, %s, 3" % (s(sT1), s(sT1)))
    e("s_cmp_ge_u32 %s, 30" % s(sT0))
    e("s_cbranch_scc1 L_role_pf")
    e("s_cmp_ge_u32 %s, 16" % s(sT0))
    e("s_cbranch_scc1 L_role_ffn")
    e("s_lshl_b32 %s, %s, 1" % (s(sCB), s(sT2)))
    e("s_lshr_b32 %s, %s, 3" % (s(sT3), s(sT0)))
    e("s_add_u32 %s, %s, %s" % (s(sCB), s(sCB), s(sT3)))
    e("s_and_b32 %s, %s, 7" % (s(sKC), s(sT0)))
    e("s_add_u32 %s, %s, %s" % (s(sRB), s(sT1), s(sKC)))
    e("s_mul_i32 %s, %s, 5" % (s(sT3), s(sT3)))
    e("s_add_u32 %s, %s, %s" % (s(sKC), s(sKC), s(sT3)))
    e("s_cmp_ge_u32 %s, 10" % s(sKC))
    e("s_cselect_b32 %s, 10, 0" % s(sT3))
    e("s_sub_u32 %s, %s, %s" % (s(sKC), s(sKC), s(sT3)))
    if not ROT: e("s_mov_b32 %s, 0" % s(sKC))
    e("s_waitcnt lgkmcnt(0)")
    srd(e, sX, 4, X_BYTES); srd(e, sW, 6, WQKV_BYTES); srd(e, sWS, 20, WS_USED)
    for w in range(3):
        e("s_cmp_eq_u32 %s, %d" % (s(sWave), w))
        e("s_cbranch_scc1 L_attn_%d" % w)
    e("s_branch L_attn_3")
    e.lab("L_role_ffn")
    e("s_mul_i32 %s, %s, 14" % (s(sT2), s(sT2)))
    e("s_add_u32 %s, %s, %s" % (s(sT2), s(sT2), s(sT0)))
    e("s_sub_u32 %s, %s, 16" % (s(sT2), s(sT2)))
    e("s_lshr_b32 %s, %s, 3" % (s(sCB), s(sT2)))
    e("s_and_b32 %s, %s, 7" % (s(sKC), s(sT2)))
    e("s_add_u32 %s, %s, %s" % (s(sRB), s(sT1), s(sKC)))
    e("s_and_b32 %s, %s, 1" % (s(sT3), s(sCB)))
    e("s_mul_i32 %s, %s, 5" % (s(sT3), s(sT3)))
    e("s_add_u32 %s, %s, %s" % (s(sKC), s(sKC), s(sT3)))
    e("s_add_u32 %s, %s, 2" % (s(sKC), s(sKC)))
    e("s_cmp_ge_u32 %s, 10" % s(sKC))
    e("s_cselect_b32 %s, 10, 0" % s(sT3))
    e("s_sub_u32 %s, %s, %s" % (s(sKC), s(sKC), s(sT3)))
    if not ROT: e("s_mov_b32 %s, 0" % s(sKC))
    e("s_waitcnt lgkmcnt(0)")
    srd(e, sX, 4, X_BYTES); srd(e, sW, 12, W1_BYTES); srd(e, sWS, 20, WS_USED)
    for w in range(3):
        e("s_cmp_eq_u32 %s, %d" % (s(sWave), w))
        e("s_cbranch_scc1 L_ffn_%d" % w)
    e("s_branch L_ffn_3")
    e.lab("L_role_pf")
    e("s_lshl_b32 %s, s3, 1" % s(sCB))
    e("s_add_u32 %s, %s, %s" % (s(sCB), s(sCB), s(sT0)))
    e("s_sub_u32 %s, %s, 30" % (s(sCB), s(sCB)))
    e("s_waitcnt lgkmcnt(0)")
    srd(e, sX, 8, WO_BYTES); srd(e, sWS, 20, WS_USED)
    out += process_path(e.L, None, None, [])
    e = E(); preformat(e)
    i0 = e.L.index("L_pf_loop:"); i1 = e.L.index("L_pf_done:")
    fin = E(); stamp(fin, 1); stamp(fin, 2); stamp(fin, 3); stamp(fin, 4)
    if STAMP: fin("s_waitcnt vmcnt(0)")
    stamp(fin, 5); stamp_flush(fin, 0, 6)
    out += process_path(e.L[:i0], "L_pf_loop", e.L[i0+1:i1], e.L[i1:] + fin.L)
    out.append("  s_endpgm")
    for w in range(4):
        pre = E(); pre.lab("L_attn_%d" % w)
        attn_prologue(w, pre)
        issue_prologue_dma(pre, lambda sl: attn_dma_groups(w, sl), A_SLOT, 64*3840)
        read_addr_setup_attn(pre)
        zero_state(pre, 160, 0, 64, aONE)
        cfg = attn_loop_cfg(w)
        stamp(pre, 1)
        pre("s_waitcnt vmcnt(%d) lgkmcnt(0)" % cfg.nd_instr)
        pre("s_barrier")
        stamp(pre, 2)
        if STAMP: pre("s_waitcnt lgkmcnt(0)")
        body, post = k1_main(cfg, "attn_%d" % w)
        ep = E(); stamp(ep, 3)
        if STAMP: ep("s_waitcnt lgkmcnt(0)")
        attn_epilogue(w, ep)
        stamp(ep, 4)
        if STAMP: ep("s_waitcnt vmcnt(0)")
        stamp(ep, 5); stamp_flush(ep, 0, 6)
        out += process_path(pre.L, "L_loop_attn_%d" % w, body, post + ep.L)
        out.append("  s_endpgm")
    for w in range(4):
        pre = E(); pre.lab("L_ffn_%d" % w)
        ffn_prologue(w, pre)
        issue_prologue_dma(pre, lambda sl: ffn_dma_groups(w, sl), F_SLOT, 64*3456)
        read_addr_setup_ffn(pre)
        zero_state(pre, 152, 0, 64, aONE)
        cfg = ffn_loop_cfg(w)
        stamp(pre, 1)
        pre("s_waitcnt vmcnt(%d) lgkmcnt(0)" % cfg.nd_instr)
        pre("s_barrier")
        stamp(pre, 2)
        if STAMP: pre("s_waitcnt lgkmcnt(0)")
        body, post = k1_main(cfg, "ffn_%d" % w)
        ep = E(); stamp(ep, 3)
        if STAMP: ep("s_waitcnt lgkmcnt(0)")
        ffn_epilogue(w, ep)
        stamp(ep, 4)
        if STAMP: ep("s_waitcnt vmcnt(0)")
        stamp(ep, 5); stamp_flush(ep, 0, 6)
        out += process_path(pre.L, "L_loop_ffn_%d" % w, body, post + ep.L)
        out.append("  s_endpgm")
    out.append("L_k1_end:")
    return out

def kd(name, nfv, accum, sg=102):
    return """.section .rodata,"a"
.p2align 6
.amdhsa_kernel %s
  .amdhsa_next_free_vgpr %d
  .amdhsa_next_free_sgpr %d
  .amdhsa_accum_offset %d
  .amdhsa_group_segment_fixed_size 0
  .amdhsa_kernarg_size 72
  .amdhsa_user_sgpr_count 2
  .amdhsa_user_sgpr_kernarg_segment_ptr 1
  .amdhsa_system_sgpr_workgroup_id_x 1
  .amdhsa_float_denorm_mode_32 3
.end_amdhsa_kernel
""" % (name, nfv, sg, accum)

HEADER = """; Kernarg layout (72 bytes): [0] A_x [8] A_wqkv [16] A_wo [24] B_x [32] B_w1 [40] B_w2 [48] out [56] debug [64] ws
; @launch kernel=fa_k1_kernel grid=(256,1,1) block=(256,1,1) lds=163840
; @launch kernel=fa_k2_kernel grid=(256,1,1) block=(256,1,1) lds=81920
.amdgcn_target "amdgcn-amd-amdhsa--gfx950"
"""
def kernel(name, lines):
    return ".text\n.globl %s\n.p2align 8\n.type %s,@function\n%s:\n" % (name, name, name) + "\n".join(lines) + "\ns_endpgm\n"

def main():
    global STAMP
    if len(sys.argv) > 2:
        OPTS.update(sys.argv[2].split(","))
    if "stamp" in OPTS: STAMP = True
    k1 = k1_text()
    k2 = process_path(k2_body(), None, None, [])
    txt = HEADER + kernel("fa_k1_kernel", k1) + kd("fa_k1_kernel", 256+68, 256) + kernel("fa_k2_kernel", k2) + kd("fa_k2_kernel", 256+216, 256)
    path = sys.argv[1] if len(sys.argv) > 1 else "out.s"
    open(path, "w").write(txt)
    print("wrote", path, len(txt), "bytes;", len(k1), "k1 lines,", len(k2), "k2 lines")
if __name__ == "__main__": main()
```

```python
import re
REG_RE = re.compile(r'^(-|\|)?([vas])(\d+)\|?$')
RNG_RE = re.compile(r'^(-)?([vas])\[(\d+):(\d+)\]$')
def regs_of(tok):
    tok = tok.strip()
    if tok.startswith('abs(') and tok.endswith(')'): tok = tok[4:-1]
    m = REG_RE.match(tok)
    if m: return [(m.group(2), int(m.group(3)))]
    m = RNG_RE.match(tok)
    if m: return [(m.group(2), i) for i in range(int(m.group(3)), int(m.group(4))+1)]
    if tok in ('vcc',): return [('s','vcc')]
    if tok in ('vcc_lo','vcc_hi'): return [('s','vcc')]
    if tok in ('exec','exec_lo','exec_hi'): return [('s','exec')]
    if tok == 'm0': return [('s','m0')]
    return []
TRANS = ('v_exp_f32','v_log_f32','v_rcp_f32','v_rsq_f32','v_sqrt_f32','v_sin_f32','v_cos_f32')
RMW = ('v_fmac_f32','v_dot2c_f32_bf16','v_pk_fmac_f16','v_writelane_b32')
class Ins:
    def __init__(self, text):
        self.text = text
        t = text.split(';')[0].strip()
        self.label = t.endswith(':')
        self.defs = []; self.uses = []; self.kind = 'other'; self.passes = 0; self.cuse = []
        self.nstates = 1
        if self.label or not t:
            self.kind = 'label' if self.label else 'comment'; self.nstates = 0; self.op = ''
            return
        parts = t.split(None, 1)
        op = parts[0]; self.op = op
        rest = parts[1] if len(parts) > 1 else ''
        ops = [o.strip() for o in rest.split(',')] if rest else []
        mods = ''
        if ops:
            sp = ops[-1].split(None, 1)
            ops[-1] = sp[0]
            mods = sp[1] if len(sp) > 1 else ''
        self.mods = mods
        base = op
        for suf in ('_e32','_e64','_dpp','_sdwa'):
            if base.endswith(suf): base = base[:-len(suf)]
        self.base = base
        R = lambda i: regs_of(ops[i]) if i < len(ops) else []
        allregs = lambda a: sum((regs_of(o) for o in ops[a:]), [])
        if op.startswith('v_mfma'):
            self.kind = 'mfma'; self.defs = R(0); self.uses = R(1)+R(2)+R(3); self.cuse = R(3); self.abuse = R(1)+R(2)
            self.passes = 8 if '32x32' in op else 4
        elif op.startswith('ds_read') or op.startswith('ds_bpermute') :
            self.kind = 'ds_read'; self.defs = R(0); self.uses = allregs(1)
        elif op.startswith('ds_write'):
            self.kind = 'ds_write'; self.uses = allregs(0)
        elif op.startswith('buffer_load') or op.startswith('global_load'):
            if 'lds' in mods.split():
                self.kind = 'dma'; self.uses = allregs(0) + [('s','m0')]
            else:
                self.kind = 'vmem_load'; self.defs = R(0); self.uses = allregs(1)
        elif op.startswith('buffer_store') or op.startswith('global_store'):
            self.kind = 'vmem_store'; self.uses = allregs(0)
            self.wide = ('x4' in op or 'x3' in op)
            self.data = R(0) if op.startswith('buffer') else R(1)
        elif op.startswith('buffer_atomic') or op.startswith('global_atomic'):
            self.kind = 'vmem_store'; self.uses = allregs(0); self.wide = False; self.data = []
            if 'sc0' in mods.split():
                self.kind = 'vmem_load'; self.defs = R(0)
        elif op.startswith('buffer_wbl2') or op.startswith('buffer_inv'):
            self.kind = 'vmem_store'; self.wide = False; self.data = []
        elif op.startswith('s_load') or op.startswith('s_memtime') or op.startswith('s_memrealtime'):
            self.kind = 'smem'; self.defs = R(0); self.uses = allregs(1)
        elif op == 's_waitcnt':
            self.kind = 'waitcnt'
            self.vm = None; self.lgkm = None
            m = re.search(r'vmcnt\((\d+)\)', t);
            if m: self.vm = int(m.group(1))
            m = re.search(r'lgkmcnt\((\d+)\)', t)
            if m: self.lgkm = int(m.group(1))
        elif op == 's_nop':
            self.kind = 'nop'; self.nstates = int(ops[0], 0) + 1
        elif op == 's_barrier': self.kind = 'barrier'
        elif op.startswith('s_cbranch') or op == 's_branch':
            self.kind = 'branch'
            if 'vcc' in op: self.uses = [('s','vcc')]
            if 'exec' in op: self.uses = [('s','exec')]
        elif op in ('s_endpgm','s_setprio','s_sleep'): self.kind = 'salu'
        elif op.startswith('s_cmp') or op.startswith('s_bitcmp'):
            self.kind = 'salu'; self.uses = allregs(0)
        elif op.startswith('s_'):
            self.kind = 'salu'; self.defs = R(0); self.uses = allregs(1)
            if 'saveexec' in op: self.defs += [('s','exec')]; self.uses += [('s','exec')]
            if op in ('s_addk_i32','s_mulk_i32'): self.uses += R(0)
        elif op.startswith('v_cmp'):
            self.kind = 'valu'; self.defs = R(0); self.uses = allregs(1)
        elif op.startswith('v_readfirstlane') or op.startswith('v_readlane'):
            self.kind = 'valu'; self.sub = 'readlane'; self.defs = R(0); self.uses = allregs(1)
        elif op.startswith('v_permlane'):
            self.kind = 'valu'; self.sub = 'permlane'; self.defs = R(0)+R(1); self.uses = R(0)+R(1)
        elif op.startswith('v_'):
            self.kind = 'valu'; self.defs = R(0); self.uses = allregs(1)
            if base in RMW: self.uses += R(0)
            if base == 'v_cndmask_b32' and len(ops) == 3: self.uses += [('s','vcc')]
            if base in ('v_add_co_u32','v_sub_co_u32','v_addc_co_u32'):
                self.defs = R(0)+R(1); self.uses = allregs(2)
            if base in TRANS: self.sub = 'trans'
            if 'row_' in mods or 'quad_perm' in mods or op.endswith('_dpp'):
                self.sub = 'dpp'; self.uses += R(0)
            if base == 'v_nop': self.defs = []
        else:
            raise ValueError("unknown op: " + text)
    def sub_is(self, s): return getattr(self, 'sub', None) == s

def is_vreg(r): return r[0] in ('v','a')

class State:
    def __init__(self):
        self.lg = {}; self.vm = {}
        self.hist = []
    def copy(self):
        s = State(); s.lg = dict(self.lg); s.vm = dict(self.vm); s.hist = list(self.hist); s.lgx = getattr(self, 'lgx', 0); return s
    def merge(self, o):
        ch = False
        for a, b in ((self.lg, o.lg), (self.vm, o.vm)):
            for r, age in b.items():
                if r not in a or age < a[r]:
                    a[r] = age; ch = True
        return ch

def need_nops(hist, ins):
    need = 0
    dist = 0
    uses = set(ins.uses); defs = set(ins.defs)
    for p in reversed(hist):
        if dist > 20: break
        if p.kind in ('label','comment'): continue
        pd = set(p.defs)
        req = 0
        if p.kind == 'valu':
            pv = {r for r in pd if is_vreg(r)}
            ps = {r for r in pd if r[0] == 's'}
            if ins.kind == 'mfma' and (pv & uses): req = max(req, 2)
            if ins.kind == 'valu':
                if ins.sub_is('readlane') and (pv & uses): req = max(req, 1)
                if ins.sub_is('permlane') and (pv & uses): req = max(req, 2)
                if ins.sub_is('dpp') and (pv & uses): req = max(req, 2)
                if p.sub_is('trans') and not ins.sub_is('trans') and (pv & uses): req = max(req, 1)
                if ps & uses: req = max(req, 2 if not ins.sub_is('readlane') else 4)
                if 'sdwa' in p.op and (pv & (uses|defs)): req = max(req, 1)
            if p.sub_is('trans') and ins.kind in ('mfma','ds_write','ds_read','vmem_store','vmem_load','dma') and (pv & uses): req = max(req, 2 if ins.kind=='mfma' else 1)
            if ins.kind in ('vmem_load','vmem_store','dma') and (ps & uses): req = max(req, 5)
            if ('s','exec') in ps: raise ValueError("VALU exec write not supported")
        if p.kind == 'mfma':
            np_ = p.passes
            raw = {4: 8, 8: 12}[np_]; ovl = {4: 6, 8: 10}[np_]; war = {4: 3, 8: 7}[np_]
            if ins.kind == 'mfma':
                if pd & set(ins.abuse): req = max(req, raw)
                c = set(ins.cuse)
                if pd & c:
                    if not (p.defs == ins.cuse and p.passes == ins.passes): req = max(req, ovl)
                if (pd & defs) and not (p.defs == ins.defs): req = max(req, ovl)
            elif ins.kind == 'valu':
                if pd & (uses | defs): req = max(req, raw)
                if set(p.cuse) & defs: req = max(req, war)
            elif ins.kind in ('ds_read','ds_write','vmem_load','vmem_store','dma'):
                if pd & (uses | defs): req = max(req, raw)
        if p.kind == 'salu' and ('s','m0') in pd and ins.kind == 'dma': req = max(req, 1)
        if p.kind == 'vmem_store' and getattr(p,'wide',False):
            if set(p.data) & defs:
                req = max(req, 2 if ins.kind == 'valu' else 1)
        if req > dist: need = max(need, req - dist)
        dist += p.nstates
    return need

def process(lines, st, out, auto_wait=True):
    for text in lines:
        if '; lgextra' in text:
            st.lgx = int(text.split()[-1]); continue
        ins = Ins(text)
        if ins.kind in ('label','comment'):
            out.append(text); st.hist.append(ins); continue
        if '; rare' in text:
            out.append(text); st.hist.append(ins); continue
        if auto_wait and ins.kind not in ('waitcnt',):
            touched = set(ins.uses) | set(ins.defs)
            wl = None; wv = None
            for r in touched:
                if r in st.lg: wl = st.lg[r] if wl is None else min(wl, st.lg[r])
                if r in st.vm: wv = st.vm[r] if wv is None else min(wv, st.vm[r])
            if wl is not None or wv is not None:
                parts = []
                if wv is not None: parts.append("vmcnt(%d)" % min(wv, 63))
                if wl is not None:
                    lx = getattr(st, 'lgx', 0)
                    if lx and ins.kind == 'mfma' and min(wl, 15) >= lx + 2: wl = min(wl, 15) - lx
                    parts.append("lgkmcnt(%d)" % min(wl, 15))
                w = Ins("  s_waitcnt " + " ".join(parts))
                apply_wait(st, w); out.append(w.text); st.hist.append(w)
        n = need_nops(st.hist, ins)
        while n > 0:
            k = min(n, 16)
            nop = Ins("  s_nop %d" % (k-1)); out.append(nop.text); st.hist.append(nop); n -= k
        if ins.kind == 'waitcnt': apply_wait(st, ins)
        if ins.kind in ('ds_read','ds_write'):
            for r in list(st.lg): st.lg[r] += 1
            for r in ins.defs: st.lg[r] = 0
        elif ins.kind == 'smem':
            for r in list(st.lg): st.lg[r] = 0
            for r in ins.defs: st.lg[r] = 0
        elif ins.kind in ('vmem_load','vmem_store','dma'):
            for r in list(st.vm): st.vm[r] += 1
            for r in ins.defs: st.vm[r] = 0
        out.append(text); st.hist.append(ins)
        if len(st.hist) > 64: st.hist = st.hist[-40:]
    return st
def apply_wait(st, w):
    if w.lgkm is not None:
        for r in list(st.lg):
            if st.lg[r] >= w.lgkm: del st.lg[r]
    if w.vm is not None:
        for r in list(st.vm):
            if st.vm[r] >= w.vm: del st.vm[r]

def process_path(pre, loop_label, body, post, st=None):
    st = st or State()
    out = []
    st = process(pre, st, out)
    if body is not None:
        entry = st.copy()
        for _ in range(6):
            tmp = []
            s = entry.copy()
            s = process(body, s, tmp)
            hist_end = s.hist
            if not entry.merge(s): break
        outA = []; sA = entry.copy(); sA = process(body, sA, outA)
        outB = []; sB = entry.copy(); sB.hist = list(sA.hist); sB = process(body, sB, outB)
        if outA != outB:
            head_pad = ["  s_nop 7", "  s_nop 7"]
            outA2 = []; sA = entry.copy(); sA.hist = list(sB.hist); sA = process(body, sA, outA2)
            assert outA2 == outB, "loop hazard analysis did not converge"
            outA = outB
            chk = []; sC = entry.copy(); sC = process(outB, sC, chk)
            assert chk == outB, "entry path needs more nops than back edge"
            sA = sB
        import os
        al = os.environ.get("LALIGN")
        if al: out.append(".p2align %s" % al)
        out.append(loop_label + ":")
        out += outA
        st = sA
    st = process(post, st, out)
    return out
```

```python
import sys, struct
from irlib import *

KNAME = "parallel_sum__sliding_local_dilated__dense_activation_relu__prompt_kernel"
S_, D_, DFF = 2048, 640, 1728
X_BYTES = S_*D_*2; WQKV_BYTES = D_*3*D_*2; WO_BYTES = D_*D_*2; W1_BYTES = D_*DFF*2; W2_BYTES = DFF*D_*2
NKS = 74
ACT_OFF = 0; ACT_TB = NKS*4096
W2F_OFF = 10*1024*1024; W2F_CB = NKS*5120
RSTD_OFF = 14*1024*1024
STAMP_OFF = 16*1024*1024
WS_USED = 17*1024*1024
OOB = 0x7F000000
FLAG_OFF = 15*1024*1024
MASK_F, MASK_A, MASK_P = 0x7f, 0xff00, 0xffff0000
SPIN_MAX = 200000
OPTS = set()
def f2u(x): return struct.unpack("<I", struct.pack("<f", x))[0]
def v(i): return "v%d" % i
def vr(i, n): return "v[%d:%d]" % (i, i+n-1)
def a(i): return "a%d" % i
def ar(i, n): return "a[%d:%d]" % (i, i+n-1)
def s(i): return "s%d" % i
def sr(i, n): return "s[%d:%d]" % (i, i+n-1)
MFMA = "v_mfma_f32_16x16x32_bf16"

class E:
    def __init__(self): self.L = []
    def __call__(self, t): self.L.append("  " + t)
    def lab(self, t): self.L.append(t + ":")
    def ext(self, lines):
        for t in lines: self.L.append(t if t.startswith("  ") or t.endswith(":") else "  " + t)

sWave = 22
sX, sW, sWS, sDBG = 24, 28, 32, 76
sRB, sCB, sKC, sSoX, sSoW, sDSlot, sRDelta, sIter = 36, 37, 38, 39, 40, 41, 42, 43
sT0, sT1, sT2, sT3 = 46, 47, 48, 49
sM = 50
sTB, sC2, sSig, sWB, sAB, sLA, sLB, sP0, sP1, sRB2 = 80, 81, 82, 83, 84, 85, 86, 87, 88, 89
sKQ = [4,5,6,7,8,9,10,11,12,13,14,15,18,19]
sNonce, sFL = 23, 45
sD0, sD1 = 90, 91
sXO, sXH = 92, 93
vLane = 255
vSt = 247
vPoll = 243
vNon = 253
vL4 = 252

def stamp(e, i):
    if "stamp" in OPTS:
        e("s_memrealtime s[96:97]"); e("s_memtime s[98:99]"); e("s_waitcnt lgkmcnt(0)")
        e("v_writelane_b32 %s, s96, %d" % (v(vSt), 2*i)); e("v_writelane_b32 %s, s98, %d" % (v(vSt), 2*i+1))
def stamp_flush(e):
    if "stamp" not in OPTS: return
    e("s_lshl_b32 s3, s2, 2"); e("s_add_u32 s3, s3, %s" % s(sWave)); e("s_lshl_b32 s3, s3, 8")
    e("s_add_u32 s3, s3, %d" % STAMP_OFF)
    e("v_lshlrev_b32 v1, 2, %s" % v(vLane))
    e("buffer_store_dword %s, v1, %s, s3 offen" % (v(vSt), sr(sWS,4)))

def srd(e, base, ptr, nbytes):
    e("s_mov_b32 %s, %s" % (s(base), s(ptr)))
    e("s_and_b32 %s, %s, 0xffff" % (s(base+1), s(ptr+1)))
    e("s_mov_b32 %s, %d" % (s(base+2), nbytes))
    e("s_mov_b32 %s, 0x20000" % s(base+3))

def check_flags(e, mask, val, oklab, rare=""):
    e("v_cmp_eq_u32 vcc, %s, %s%s" % (s(sNonce), v(val), rare))
    e("s_nop 3" + rare)
    e("s_and_b32 %s, vcc_lo, 0x%x%s" % (s(sT0), mask, rare))
    e("s_cmp_eq_u32 %s, 0x%x%s" % (s(sT0), mask, rare))
    e("s_cbranch_scc1 %s%s" % (oklab, rare))
def spin_flags(e, tag, mask, vtmp, have_first=None):
    R = " ; rare"
    if have_first is not None: check_flags(e, mask, have_first, "L_ok_%s" % tag)
    e("s_mov_b32 %s, 0" % s(sT1) + R)
    e("v_lshlrev_b32 %s, 2, %s" % (v(vtmp+1), v(vLane)) + R)
    e.lab("L_spin_%s" % tag)
    e("buffer_load_dword %s, %s, %s, %s offen sc1" % (v(vtmp), v(vtmp+1), sr(sWS,4), s(sFL)) + R)
    e("s_waitcnt vmcnt(0)" + R)
    check_flags(e, mask, vtmp, "L_ok_%s" % tag, R)
    e("s_sleep 2" + R)
    e("s_add_u32 %s, %s, 1" % (s(sT1), s(sT1)) + R)
    e("s_cmp_lt_u32 %s, %d" % (s(sT1), SPIN_MAX) + R)
    e("s_cbranch_scc1 L_spin_%s" % tag + R)
    e.lab("L_ok_%s" % tag)
def get_nonce(e, tag, vtmp, have_first=None):
    R = " ; rare"
    if have_first is not None:
        e("v_readfirstlane_b32 %s, %s" % (s(sNonce), v(have_first)))
        e("s_nop 3")
        e("s_cmp_lg_u32 %s, 0" % s(sNonce))
        e("s_cbranch_scc1 L_nok_%s" % tag)
    e("s_mov_b32 %s, 0" % s(sT1) + R)
    e("v_mov_b32 %s, 0" % v(vtmp+1) + R)
    e.lab("L_nspin_%s" % tag)
    e("buffer_load_dword %s, %s, %s, 0 offen sc1" % (v(vtmp), v(vtmp+1), sr(sDBG,4)) + R)
    e("s_waitcnt vmcnt(0)" + R)
    e("v_readfirstlane_b32 %s, %s" % (s(sNonce), v(vtmp)) + R)
    e("s_nop 3" + R)
    e("s_cmp_lg_u32 %s, 0" % s(sNonce) + R)
    e("s_cbranch_scc1 L_nok_%s" % tag + R)
    e("s_sleep 8" + R)
    e("s_add_u32 %s, %s, 1" % (s(sT1), s(sT1)) + R)
    e("s_cmp_lt_u32 %s, %d" % (s(sT1), SPIN_MAX) + R)
    e("s_cbranch_scc1 L_nspin_%s" % tag + R)
    e.lab("L_nok_%s" % tag)
def signal_rb(e, tag, word_sgpr_expr):
    e("s_cmp_lg_u32 %s, 0" % s(sWave))
    e("s_cbranch_scc1 L_nosig_%s" % tag)
    R = " ; rare"
    e("v_lshrrev_b32 v1, 1, %s" % v(vLane) + R)
    e("v_lshlrev_b32 v1, 2, v1" + R)
    e("v_and_b32 v2, 1, %s" % v(vLane) + R)
    e("v_add_u32 v1, v1, v2" + R)
    e("s_and_b32 %s, %s, 1" % (s(sT0), s(sRB)) + R)
    e("s_lshl_b32 %s, %s, 1" % (s(sT0), s(sT0)) + R)
    e("v_add_u32 v1, %s, v1" % s(sT0) + R)
    e("v_lshlrev_b32 v1, 3, v1" + R)
    e("s_lshr_b32 %s, %s, 1" % (s(sT0), s(sRB)) + R)
    e("v_add_u32 v1, %s, v1" % s(sT0) + R)
    e("v_lshlrev_b32 v1, 7, v1" + R)
    e("s_lshl_b32 %s, %s, 2" % (s(sT0), s(sSig)) + R)
    e("s_add_u32 %s, %s, %d" % (s(sT0), s(sT0), FLAG_OFF) + R)
    e("v_mov_b32 v2, %s" % s(sNonce) + R)
    e("s_mov_b32 exec_lo, 0xffff" + R); e("s_mov_b32 exec_hi, 0" + R)
    e("buffer_store_dword v2, v1, %s, %s offen sc1" % (sr(sWS,4), s(sT0)) + R)
    e("s_mov_b64 exec, -1" + R)
    e.lab("L_nosig_%s" % tag)

class Cfg: pass

def chunk_body(cfg, dma, last=False, rolled_tag=None, closing_vm=None):
    NT = cfg.ntile; NF = 2*NT; R = cfg.ring; L = cfg.look; TAIL = cfg.tail
    assert NF % R == 0
    wreg = lambda f: cfg.wbase + (f % R)*4
    def wreads(f):
        kh, c = divmod(f % NF, NT); return cfg.wread(kh, c, wreg(f))
    def mf(f):
        kh, c = divmod(f % NF, NT); return cfg.mf(kh, c, wreg(f))
    NFIRST = cfg.nfirst
    items = []
    for f in range(0, NF - TAIL):
        g = f + L
        rd = wreads(g) if NFIRST <= g < NF else []
        if f == cfg.xread1_at: rd = rd + cfg.xreads(1)
        ms = []
        if f == 0 and "nostats" not in OPTS: ms += cfg.stats(0)
        if f == NT and "nostats" not in OPTS: ms += cfg.stats(1)
        ms += mf(f)
        items.append((rd, ms))
    issued = set(range(NFIRST)) | {f + L for f in range(0, NF - TAIL) if NFIRST <= f + L < NF}
    assert issued == set(range(NF)), (sorted(set(range(NF)) - issued))
    nm = sum(len(m) for _, m in items)
    out = []
    nd = len(dma)
    st = cfg.dma_start + cfg.dma_skew; en = nm - cfg.dma_endgap
    pos = [st + (en - st)*i // max(nd, 1) for i in range(nd)]
    cnt = 0; di = 0
    for rd, ms in items:
        rq = list(rd)
        for k, m in enumerate(ms):
            if rq:
                take = (len(rq) + (len(ms) - k) - 1) // (len(ms) - k)
                for _ in range(take): out.append(rq.pop(0))
            out.append(m); cnt += 1
            while di < nd and pos[di] <= cnt:
                out += dma[di]; di += 1
    assert di == nd
    if closing_vm is None: out.append("s_waitcnt lgkmcnt(0)")
    else: out.append("s_waitcnt vmcnt(%d) lgkmcnt(0)" % closing_vm)
    out.append("s_barrier")
    aux = []
    if not last:
        aux += cfg.addr_update + cfg.xreads(0)
        for f in range(NFIRST): aux += wreads(f)
    if rolled_tag: aux += cfg.scal_update
    tail = []
    for f in range(NF - TAIL, NF): tail += mf(f)
    per = -(-len(aux) // max(len(tail), 1))
    for m in tail:
        out.append(m)
        for _ in range(per):
            if aux: out.append(aux.pop(0))
    out += aux
    if rolled_tag:
        out.append("s_cbranch_scc1 L_loop_%s" % rolled_tag)
    return ["  ; lgextra 2"] + [t if t.endswith(":") else "  " + t for t in out] + ["  ; lgextra 0"]

sCp, sCm = 94, 95
def scal_update(slot, wstep, halo=False):
    t = []
    if "rotk" in OPTS:
        t.append("s_add_u32 %s, %s, 1" % (s(sKC), s(sKC)))
        t.append("s_cmp_eq_u32 %s, 10" % s(sKC))
        t.append("s_cselect_b32 %s, 0, %s" % (s(sKC), s(sKC)))
        t.append("s_lshl_b32 %s, %s, 7" % (s(sSoX), s(sKC)))
        t.append("s_mul_i32 %s, %s, %d" % (s(sSoW), s(sKC), wstep))
    else:
        t.append("s_add_u32 %s, %s, 128" % (s(sSoX), s(sSoX)))
        t.append("s_add_u32 %s, %s, %d" % (s(sSoW), s(sSoW), wstep))
    t.append("s_cmp_eq_u32 %s, %d" % (s(sDSlot), 2*slot))
    t.append("s_cselect_b32 %s, %s, %s" % (s(sRDelta), s(sCm), s(sCp)))
    t.append("s_add_u32 %s, %s, %s" % (s(sDSlot), s(sDSlot), s(sRDelta)))
    t.append("s_add_u32 %s, %s, 1" % (s(sIter), s(sIter)))
    t.append("s_cmp_lt_u32 %s, 8" % s(sIter))
    return t
def addr_update(slot, regs):
    t = []
    t.append("s_cmp_eq_u32 %s, %d" % (s(sDSlot), slot))
    t.append("s_cselect_b32 %s, %s, %s" % (s(sRDelta), s(sCm), s(sCp)))
    for r in regs: t.append("v_add_u32 %s, %s, %s" % (v(r), s(sRDelta), v(r)))
    return t

vL16, vL16b = 241, 245
def w2_soff(p, dst):
    if p < 14: return ["s_mul_i32 %s, %s, 5" % (s(dst), s(sKQ[p])), "s_add_u32 %s, %s, %s" % (s(dst), s(dst), s(sWB))]
    return ["s_mul_i32 %s, %s, 5120" % (s(dst), s(sWave)), "s_add_u32 %s, %s, %s" % (s(dst), s(dst), s(sWB)),
            "s_add_u32 %s, %s, %d" % (s(dst), s(dst), 4*(p-14)*5120)]
def w2l_groups(q0, q1):
    G = []
    for q in range(q0, q1):
        p, ct = divmod(q, 5)
        g = []
        if ct == 0 or q == q0: g += w2_soff(p, sP0)
        g.append("s_add_u32 m0, %s, %d" % (s(sLA if q < 12 else sLB), (q if q < 12 else q - 12)*1024))
        g.append("s_add_u32 %s, %s, %d" % (s(sP1), s(sP0), ct*1024))
        g.append("buffer_load_dwordx4 %s, %s, %s offen sc1 lds" % (v(vL16), sr(sWS,4), s(sP1)))
        G.append(g)
    return G
def w2a_groups(p0, p1):
    G = []
    for p in range(p0, p1):
        base = ((p - 5) % 12)*20
        for ct in range(5):
            g = []
            if ct == 0: g += w2_soff(p, sP0)
            if ct < 4: g.append("buffer_load_dwordx4 %s, %s, %s, %s offen offset:%d sc1" % (ar(base+4*ct,4), v(vL16), sr(sWS,4), s(sP0), ct*1024))
            else:      g.append("buffer_load_dwordx4 %s, %s, %s, %s offen sc1" % (ar(base+16,4), v(vL16b), sr(sWS,4), s(sP0)))
            G.append(g)
    return G
def ph2_setup(e, slot):
    e("s_and_b32 %s, s2, 7" % s(sT0))
    e("s_lshr_b32 %s, s2, 3" % s(sT1))
    e("s_and_b32 %s, %s, 3" % (s(sTB), s(sT1)))
    e("s_lshl_b32 %s, %s, 2" % (s(sT0), s(sT0)))
    e("s_add_u32 %s, %s, %s" % (s(sTB), s(sTB), s(sT0)))
    e("s_lshr_b32 %s, %s, 2" % (s(sC2), s(sT1)))
    e("s_lshr_b32 %s, %s, 1" % (s(sRB2), s(sTB)))
    e("s_lshl_b32 %s, %s, 2" % (s(sRB2), s(sRB2)))
    e("s_mul_i32 %s, %s, %d" % (s(sWB), s(sC2), W2F_CB))
    e("s_add_u32 %s, %s, %d" % (s(sWB), s(sWB), W2F_OFF))
    e("s_mul_i32 %s, %s, %d" % (s(sAB), s(sTB), ACT_TB))
    if ACT_OFF: e("s_add_u32 %s, %s, %d" % (s(sAB), s(sAB), ACT_OFF))
    e("s_mul_i32 %s, %s, 12288" % (s(sLA), s(sWave)))
    e("s_add_u32 %s, %s, %d" % (s(sLA), s(sLA), slot))
    e("s_mul_i32 %s, %s, 13312" % (s(sLB), s(sWave)))
    e("s_add_u32 %s, %s, %d" % (s(sLB), s(sLB), 2*slot))
    e("s_mul_i32 %s, %s, 7" % (s(sT0), s(sC2)))
    e("s_lshr_b32 %s, %s, 2" % (s(sT0), s(sT0)))
    e("s_lshl_b32 %s, %s, 2" % (s(sT0), s(sT0)))
    e("s_add_u32 %s, %s, %s" % (s(sT0), s(sT0), s(sWave)))
    e("s_add_u32 %s, %s, 20" % (s(sT0), s(sT0)))
    for p in range(14):
        e("s_lshl_b32 %s, %s, 10" % (s(sKQ[p]), s(sT0)))
        e("s_cmp_ge_u32 %s, %d" % (s(sT0), NKS))
        e("s_cselect_b32 %s, 0x10000000, %s" % (s(sKQ[p]), s(sKQ[p])))
        if p < 13:
            e("s_add_u32 %s, %s, 4" % (s(sT0), s(sT0)))
            e("s_sub_u32 %s, %s, 56" % (s(sT1), s(sT0)))
            e("s_cmp_ge_u32 %s, 76" % s(sT0))
            e("s_cselect_b32 %s, %s, %s" % (s(sT0), s(sT1), s(sT0)))
    e("v_lshlrev_b32 %s, 4, %s" % (v(vL16), v(vLane)))
    e("v_add_u32 %s, 4096, %s" % (v(vL16b), v(vL16)))
    e("s_lshl_b32 %s, s2, 7" % s(sFL))
    e("s_add_u32 %s, %s, %d" % (s(sFL), s(sFL), FLAG_OFF))

vZero = 249

A_SLOT = 53248; A_XB = 18432; A_WPAIR = 1088
A_XJ = [[0,1,2,3,4],[5,6,7,8,9],[10,11,12,13],[14,15,16,17]]
vWA, vX0, vX1 = 160, 161, 162
vXE, vXOd, vWL = 163, 164, 165
aW, aXF, aONE = 0, 40, 64
def acc_own(T, c): return (T*15 + c)*4
def acc_halo(eidx): return 120 + eidx*4
vSumT = [136, 140]; vSqT = [144, 148]; vSumH, vSqH = 152, 156
def xf(kh, T): return aXF + (kh*3 + T)*4

def x_lane_setup(e, vE, vO):
    e("v_lshrrev_b32 v1, 3, %s" % v(vLane))
    e("v_and_b32 v2, 7, %s" % v(vLane))
    e("v_lshrrev_b32 v3, 4, %s" % v(vLane))
    e("v_mul_u32_u24 v4, 1280, v1")
    e("v_xor_b32 v5, v2, v3")
    e("v_lshl_add_u32 %s, v5, 4, v4" % v(vE))
    e("v_xor_b32 %s, 64, %s" % (v(vO), v(vE)))

def attn_lane_setup(e):
    x_lane_setup(e, vXE, vXOd)
    e("v_cmp_le_u32 vcc, 30, %s" % v(vLane))
    e("v_mov_b32 v9, 0x40000000")
    e("v_cndmask_b32_e64 v6, 0, 1, vcc")
    e("v_cmp_le_u32 vcc, 60, %s" % v(vLane))
    e("v_mul_u32_u24 v7, 30, v6")
    e("v_sub_u32 v7, %s, v7" % v(vLane))
    e("v_mul_u32_u24 v8, 26, v7")
    e("v_lshrrev_b32 v8, 8, v8")
    e("v_mul_u32_u24 v8, 1120, v8")
    e("v_mul_u32_u24 v6, 3840, v6")
    e("v_lshlrev_b32 v7, 4, v7")
    e("v_add3_u32 v6, v6, v7, v8")
    e("s_mul_i32 %s, %s, 160" % (s(sT0), s(sCB)))
    e("v_add_u32 v6, %s, v6" % s(sT0))
    e("v_cndmask_b32_e64 %s, v6, v9, vcc" % v(vWL))

vDO = 166
def attn_dma_list(w):
    L = []
    for grp in ([[0,1],[2,3,4]], [[5,6,7,8],[9]], [[10,11,12,13]], [[14,15,16,17]])[w]:
        for m, j in enumerate(grp):
            imm = m*1024
            L.append(("x", j*1024 if m == 0 else None, imm, vXOd if j & 1 else vXE, (j*8*1280 if j < 2 else (j-2)*8*1280) - imm, j < 2, w == 0 and j == 0))
    kh = w >> 1; rd = w & 1
    for m in range(8):
        k = 32*kh + 8*(m >> 1) + 4*rd + 2*(m & 1)
        L.append(("w", A_XB + (8*w + m)*A_WPAIR if m % 4 == 0 else None, (m & 3)*A_WPAIR, vWL, k*3840 - (m & 3)*A_WPAIR, False, False))
    return L
def ffn_dma_list(w):
    L = []
    for m in range(4):
        j = 4*w + m
        L.append(("x", 4*w*1024 if m == 0 else None, m*1024, fXOd if j & 1 else fXE, j*8*1280 - m*1024, False, False))
    for m in range(8):
        kh, grp = m >> 2, m & 3
        k = 32*kh + 16*(grp & 1) + 4*(grp >> 1)
        L.append(("w", F_XB + w*8192 + m*1024 if m % 4 == 0 else None, (m & 3)*1024, fWL, k*3456 + w*128 - (m & 3)*1024, False, False))
    return L
def dma_groups_salu(L):
    G = []; tmp = [sD0, sD1]
    for n, (kind, m0c, imm, lane, uc, halo, mask) in enumerate(L):
        g = []; t = tmp[n & 1]
        if m0c is not None: g.append("s_add_u32 m0, %s, %d" % (s(sDSlot), m0c))
        if kind == "x":
            g.append("s_add_u32 %s, %s, %s" % (s(t), s(sSoX), s(sXH if halo else sXO)))
            if uc: g.append("s_add_u32 %s, %s, %d" % (s(t), s(t), uc))
        else: g.append("s_add_u32 %s, %s, %d" % (s(t), s(sSoW), uc))
        if mask: g.append("s_mov_b32 exec_lo, 0xffffff00")
        g.append("buffer_load_dwordx4 %s, %s, %s offen offset:%d lds" % (v(lane), sr(sX if kind == "x" else sW,4), s(t), imm))
        if mask: g.append("s_mov_b32 exec_lo, -1")
        G.append(g)
    return G
def dma_offsets_setup(e, L, base):
    for n, (kind, m0c, imm, lane, uc, halo, mask) in enumerate(L):
        if kind == "x":
            e("s_add_u32 %s, %s, %d" % (s(sD0), s(sXH if halo else sXO), uc))
            e("v_add_u32 %s, %s, %s" % (v(base+n), s(sD0), v(lane)))
        else:
            e("v_add_u32 %s, %d, %s" % (v(base+n), uc, v(lane)))
def dma_groups_vgpr(L, base):
    G = []
    for n, (kind, m0c, imm, lane, uc, halo, mask) in enumerate(L):
        g = []
        if m0c is not None:
            m0 = "s_add_u32 m0, %s, %d" % (s(sDSlot), m0c)
            if G: G[-1].append(m0)
            else: G.append([m0])
        if mask: g.append("s_mov_b32 exec_lo, 0xffffff00")
        g.append("buffer_load_dwordx4 %s, %s, %s offen offset:%d lds" % (v(base+n), sr(sX if kind == "x" else sW,4), s(sSoX if kind == "x" else sSoW), imm))
        if mask: g.append("s_mov_b32 exec_lo, -1")
        G.append(g)
    return G

def attn_cfg(w):
    cfg = Cfg()
    cfg.ntile = 15; cfg.ring = 10; cfg.look = 6; cfg.tail = 4; cfg.nfirst = 6; cfg.wbase = aW
    H = [c for c in range(15) if c % 4 == w]
    def wread(kh, c, reg):
        off = kh*16*A_WPAIR + 32*c
        return ["ds_read_b64_tr_b16 %s, %s offset:%d" % (ar(reg,2), v(vWA), off),
                "ds_read_b64_tr_b16 %s, %s offset:%d" % (ar(reg+2,2), v(vWA), off + 8*A_WPAIR)]
    def mf(kh, c, reg):
        out = []
        for T in (0, 1):
            d = vr(acc_own(T, c), 4)
            if c < 10: out.append("%s %s, %s, %s, %s" % (MFMA, d, ar(reg,4), ar(xf(kh,T),4), d))
            else:      out.append("%s %s, %s, %s, %s" % (MFMA, d, ar(xf(kh,T),4), ar(reg,4), d))
        if c in H and "nohalo" not in OPTS:
            d = vr(acc_halo(c >> 2), 4)
            if c < 10: out.append("%s %s, %s, %s, %s" % (MFMA, d, ar(reg,4), ar(xf(kh,2),4), d))
            else:      out.append("%s %s, %s, %s, %s" % (MFMA, d, ar(xf(kh,2),4), ar(reg,4), d))
        return out
    def stats(kh):
        out = []
        for T in (0, 1):
            out.append("%s %s, %s, %s, %s" % (MFMA, vr(vSumT[T],4), ar(aONE,4), ar(xf(kh,T),4), vr(vSumT[T],4)))
            out.append("%s %s, %s, %s, %s" % (MFMA, vr(vSqT[T],4), ar(xf(kh,T),4), ar(xf(kh,T),4), vr(vSqT[T],4)))
        if w == 3:
            out.append("%s %s, %s, %s, %s" % (MFMA, vr(vSumH,4), ar(aONE,4), ar(xf(kh,2),4), vr(vSumH,4)))
            out.append("%s %s, %s, %s, %s" % (MFMA, vr(vSqH,4), ar(xf(kh,2),4), ar(xf(kh,2),4), vr(vSqH,4)))
        return out
    def xreads(kh):
        ad = vX1 if kh else vX0
        return ["ds_read_b128 %s, %s offset:%d" % (ar(xf(kh,0),4), v(ad), (1+2*w)*2048),
                "ds_read_b128 %s, %s offset:%d" % (ar(xf(kh,1),4), v(ad), (2+2*w)*2048),
                "ds_read_b128 %s, %s offset:%d" % (ar(xf(kh,2),4), v(ad), 0)]
    cfg.wread = wread; cfg.mf = mf; cfg.stats = stats; cfg.xreads = xreads
    cfg.xread1_at = 4
    cfg.addr_update = addr_update(A_SLOT, [vWA, vX0, vX1])
    cfg.scal_update = scal_update(A_SLOT, 64*3840, halo=(w == 0))
    cfg.dma_start = 2; cfg.dma_skew = w; cfg.dma_endgap = 8
    cfg.wstep = 64*3840; cfg.slot = A_SLOT
    return cfg

def xaddr_setup(e, X0, X1, base):
    e("v_and_b32 v1, 15, %s" % v(vLane))
    e("v_lshrrev_b32 v4, 4, %s" % v(vLane))
    e("v_lshrrev_b32 v2, 1, v1")
    e("v_xor_b32 v2, v2, v4")
    e("v_lshlrev_b32 v2, 4, v2")
    e("v_lshl_add_u32 v2, v1, 7, v2")
    e("v_add_u32 %s, %d, v2" % (v(X0), base))
    e("v_xor_b32 v2, 64, v2")
    e("v_add_u32 %s, %d, v2" % (v(X1), base))

def read_addr_setup_attn(e):
    e("v_and_b32 v1, 15, %s" % v(vLane))
    e("v_lshrrev_b32 v2, 2, v1")
    e("v_and_b32 v3, 3, v1")
    e("v_lshrrev_b32 v4, 4, %s" % v(vLane))
    e("v_lshrrev_b32 v5, 1, v2")
    e("v_lshl_add_u32 v5, v4, 1, v5")
    e("v_mul_u32_u24 v5, %d, v5" % A_WPAIR)
    e("v_and_b32 v2, 1, v2")
    e("v_mul_u32_u24 v2, 480, v2")
    e("v_lshlrev_b32 v3, 3, v3")
    e("v_add3_u32 v5, v5, v2, v3")
    e("v_add_u32 %s, %d, v5" % (v(vWA), A_XB))
    xaddr_setup(e, vX0, vX1, 0)

def role_main(e, tag, cfg, L, dobase, halo, zero_n, extra_pre=None):
    wstep, slot = cfg.wstep, cfg.slot
    nd = len(L)
    def set_soff():
        e("s_lshl_b32 %s, %s, 7" % (s(sSoX), s(sKC)))
        e("s_mul_i32 %s, %s, %d" % (s(sSoW), s(sKC), wstep))
    def adv():
        e("s_add_u32 %s, %s, 1" % (s(sKC), s(sKC)))
        if "rotk" in OPTS:
            e("s_cmp_eq_u32 %s, 10" % s(sKC))
            e("s_cselect_b32 %s, 0, %s" % (s(sKC), s(sKC)))
    set_soff()
    e("s_mov_b32 %s, 0" % s(sDSlot))
    for g in dma_groups_salu(L): e.ext(g)
    stamp(e, 1)
    if extra_pre: extra_pre(e)
    dma_offsets_setup(e, L, dobase)
    for i in range(zero_n): e("v_mov_b32 %s, 0" % v(i))
    adv(); set_soff()
    e("s_mov_b32 %s, %d" % (s(sDSlot), slot))
    for g in dma_groups_vgpr(L, dobase): e.ext(g)
    e("v_mov_b32 v254, 0x3f803f80")
    for i in range(4): e("v_accvgpr_write_b32 %s, v254" % a(aONE+i))
    e("v_mov_b32 %s, 0" % v(vZero))
    e("v_lshlrev_b32 %s, 2, %s" % (v(vL4), v(vLane)))
    ph2_setup(e, slot)
    adv(); set_soff()
    e("s_mov_b32 %s, %d" % (s(sDSlot), 2*slot))
    e("s_mov_b32 %s, %d" % (s(sCp), slot))
    e("s_mov_b32 %s, %d" % (s(sCm), (-2*slot) & 0xffffffff))
    e("s_mov_b32 %s, 0" % s(sIter))
    stamp(e, 2)
    e("s_waitcnt vmcnt(%d) lgkmcnt(0)" % nd)
    e("s_barrier")
    stamp(e, 3)
    R = cfg.ring
    e.ext(cfg.xreads(0))
    for f in range(cfg.nfirst):
        e.ext(cfg.wread(0, f, cfg.wbase + (f % R)*4))
    dma = dma_groups_vgpr(L, dobase)
    if "nopoll" not in OPTS:
        pg = ["s_cmp_lg_u32 %s, 6 ; rare" % s(sIter), "s_cbranch_scc1 L_np_%s ; rare" % tag,
              "buffer_load_dword %s, %s, %s, 0 offen sc1 ; rare" % (v(vNon), v(vZero), sr(sDBG,4)),
              "buffer_load_dword %s, %s, %s, %s offen sc1 ; rare" % (v(vPoll), v(vL4), sr(sWS,4), s(sFL)), "L_np_%s:" % tag]
        dma = [pg] + dma
    if "nodma" in OPTS: dma = []
    body = chunk_body(cfg, dma, rolled_tag=tag, closing_vm=nd if "nodma" not in OPTS else 0)
    if "nobar" in OPTS: body = [t for t in body if "s_barrier" not in t]
    if "noreads" in OPTS: body = [t for t in body if "ds_read" not in t]
    if "nowait" in OPTS: body = [t for t in body if "s_waitcnt" not in t]
    post = E()
    stamp(post, 4)
    if "nopoll" not in OPTS:
        get_nonce(post, tag, 250, have_first=vNon)
        spin_flags(post, "p_" + tag, MASK_P, 250, have_first=vPoll)
    if "ph1only" in OPTS:
        post.ext(chunk_body(cfg, [], closing_vm=0))
        post.ext(chunk_body(cfg, [], last=True, closing_vm=None))
    else:
        post.ext(chunk_body(cfg, w2l_groups(0, 12), closing_vm=12))
        post.ext(chunk_body(cfg, w2l_groups(12, 25), last=True, closing_vm=None))
    stamp(post, 5)
    return body, post

A_ND = [13, 13, 12, 12]

X_CS = 0
X_NM = 1024
X_RS = 2048
X_EX = 4096
vQp = 160
vKA, vKB, vKP = 180, 190, 200
vVp = 210
NEG = 0xf149f2ca
def stats_finalize(e, vsum, vsq, vt, out_nm, out_rs, out_std, smask):
    e("v_cndmask_b32_e64 %s, 0, %s, %s" % (v(vt), v(vsq+0), sr(smask,2)))
    for r in (1,2,3):
        e("v_cndmask_b32_e64 %s, %s, %s, %s" % (v(vt), v(vt), v(vsq+r), sr(smask+2*r,2)))
    e("v_mov_b32 %s, %s" % (v(vt+1), v(vt)))
    e("v_permlane32_swap_b32 %s, %s" % (v(vt), v(vt+1)))
    e("v_add_f32 %s, %s, %s" % (v(vt), v(vt), v(vt+1)))
    e("v_mov_b32 %s, %s" % (v(vt+1), v(vt)))
    e("v_permlane16_swap_b32 %s, %s" % (v(vt), v(vt+1)))
    e("v_add_f32 %s, %s, %s" % (v(vt), v(vt), v(vt+1)))
    e("v_mul_f32 %s, 0x%08x, %s" % (v(out_nm), f2u(-1.0/640), v(vsum)))
    e("v_mul_f32 %s, 0x%08x, %s" % (v(vt), f2u(1.0/640), v(vt)))
    e("v_fma_f32 %s, -%s, %s, %s" % (v(vt), v(out_nm), v(out_nm), v(vt)))
    e("v_max_f32 %s, 0, %s" % (v(vt), v(vt)))
    e("v_add_f32 %s, 0x%08x, %s" % (v(vt), f2u(1e-5), v(vt)))
    e("v_rsq_f32 %s, %s" % (v(out_rs), v(vt)))
    if out_std is not None:
        e("v_mul_f32 %s, %s, %s" % (v(out_std), v(vt), v(out_rs)))


def attn_epilogue(w, e):
    H = [c for c in range(15) if c % 4 == w]
    tNM = [240, 242]; tRS = [244, 246]
    tSTD = [248, 249]
    vt = 250
    smask = sM
    for r in range(4):
        e("s_mov_b32 %s, 0x%08x" % (s(smask+2*r), 0x00100001 << r))
        e("s_mov_b32 %s, 0x%08x" % (s(smask+2*r+1), 0x10000100 << r))
    e("v_and_b32 v253, 15, %s" % v(vLane))
    e("v_lshlrev_b32 v253, 2, v253")
    for T in (0, 1):
        stats_finalize(e, vSumT[T], vSqT[T], vt, tNM[T], tRS[T], tSTD[T], smask)
        e("ds_write_b32 v253, %s offset:%d" % (v(tNM[T]), X_NM + (1+2*w+T)*64))
        e("ds_write_b32 v253, %s offset:%d" % (v(tRS[T]), X_RS + (1+2*w+T)*64))
    if w == 3:
        stats_finalize(e, vSumH, vSqH, vt, 136, 137, None, smask)
        e("ds_write_b32 v253, v136 offset:%d" % (X_NM))
        e("ds_write_b32 v253, v137 offset:%d" % (X_RS))
    e("s_cmp_lg_u32 %s, 0" % s(sCB))
    e("s_cbranch_scc1 L_nors_%d" % w)
    e("s_lshl_b32 %s, %s, 9" % (s(sT0), s(sRB)))
    e("s_add_u32 %s, %s, %d" % (s(sT0), s(sT0), RSTD_OFF + w*128))
    e("buffer_store_dword %s, v253, %s, %s offen sc1 ; rare" % (v(tRS[0]), sr(sWS,4), s(sT0)))
    e("buffer_store_dword %s, v253, %s, %s offen offset:64 sc1 ; rare" % (v(tRS[1]), sr(sWS,4), s(sT0)))
    e.lab("L_nors_%d" % w)
    e("v_lshrrev_b32 v252, 4, %s" % v(vLane))
    e("v_lshlrev_b32 v252, 4, v252")
    e("s_mov_b32 exec_lo, 0x00010001"); e("s_mov_b32 exec_hi, 0x00010001")
    for c in H:
        if c < 10: e("ds_write_b128 v252, %s offset:%d" % (vr(acc_halo(c >> 2),4), X_CS + c*64))
    e("s_mov_b32 exec_lo, 0x0000ffff"); e("s_mov_b32 exec_hi, 0")
    for c in H:
        if c >= 10: e("ds_write_b32 v253, %s offset:%d" % (v(acc_halo(c >> 2)), X_CS + c*64))
    e("s_mov_b64 exec, -1")
    e("s_waitcnt lgkmcnt(0)")
    e("s_barrier")
    nm4 = [136, 140]; rs4 = [144, 148]
    for T in (0, 1):
        e("ds_read_b128 %s, v252 offset:%d" % (vr(nm4[T],4), X_NM + (1+2*w+T)*64))
        e("ds_read_b128 %s, v252 offset:%d" % (vr(rs4[T],4), X_RS + (1+2*w+T)*64))
    hK = [c for c in H if 5 <= c < 10]; hV = [c for c in H if c >= 10]
    tHN, tHR = 152, 154
    hn4, hr4 = 156, 236+4
    hr4 = 232
    e("ds_read_b32 %s, v253 offset:%d" % (v(tHN), X_NM))
    e("ds_read_b32 %s, v253 offset:%d" % (v(tHR), X_RS))
    csA, csB = 250, 120
    cs_buf = [236, 0]
    def pkfma_bc(d, s0, sc):
        e("v_pk_fma_f32 %s, %s, %s, %s op_sel_hi:[1,0,1]" % (vr(d,2), vr(s0,2), vr(sc,2), vr(d,2)))
    def pkmul_bc(d, sc):
        e("v_pk_mul_f32 %s, %s, %s op_sel_hi:[1,0]" % (vr(d,2), vr(d,2), vr(sc,2)))
    csr = [224, 228]
    for c in range(10):
        e("ds_read_b128 %s, v252 offset:%d" % (vr(csr[c & 1],4), X_CS + c*64))
        cs4 = csr[c & 1]
        for T in (0, 1):
            d = acc_own(T, c)
            pkfma_bc(d, cs4, tNM[T]); pkfma_bc(d+2, cs4+2, tNM[T])
            if c >= 5:
                pkmul_bc(d, tRS[T]); pkmul_bc(d+2, tRS[T])
            dst = (vQp + T*10 + 2*c) if c < 5 else ((vKA, vKB)[T] + 2*(c-5))
            e("v_cvt_pk_bf16_f32 %s, %s, %s" % (v(dst), v(d), v(d+1)))
            e("v_cvt_pk_bf16_f32 %s, %s, %s" % (v(dst+1), v(d+2), v(d+3)))
        if c in hK:
            d = acc_halo(c >> 2)
            pkfma_bc(d, cs4, tHN); pkfma_bc(d+2, cs4+2, tHN)
            pkmul_bc(d, tHR); pkmul_bc(d+2, tHR)
            e("v_cvt_pk_bf16_f32 %s, %s, %s" % (v(d), v(d), v(d+1)))
            e("v_cvt_pk_bf16_f32 %s, %s, %s" % (v(d+1), v(d+2), v(d+3)))
    e("v_lshlrev_b32 v251, 3, %s" % v(vLane))
    for c in hK:
        e("ds_write_b64 v251, %s offset:%d" % (vr(acc_halo(c >> 2),2), X_EX + (c-5)*512))
    if w < 3:
        for i in range(5):
            e("ds_write_b64 v251, %s offset:%d" % (vr(vKB+2*i,2), X_EX + (w+1)*5120 + i*512))
    hn4, hr4 = 0, 4
    if hV:
        e("ds_read_b128 %s, v252 offset:%d" % (vr(hn4,4), X_NM))
        e("ds_read_b128 %s, v252 offset:%d" % (vr(hr4,4), X_RS))
    csd = 8
    for i in range(5):
        e("ds_read_b32 %s, v253 offset:%d" % (v(csd + 2*i), X_CS + (10+i)*64))
    for i in range(5):
        c = 10 + i
        for T in (0, 1):
            d = acc_own(T, c)
            for h_ in (0, 2):
                e("v_pk_fma_f32 %s, %s, %s, %s op_sel_hi:[1,0,1]" % (vr(d+h_,2), vr(nm4[T]+h_,2), vr(csd+2*i,2), vr(d+h_,2)))
                e("v_pk_mul_f32 %s, %s, %s" % (vr(d+h_,2), vr(d+h_,2), vr(rs4[T]+h_,2)))
            dst = vVp + 6*i + 2 + 2*T
            e("v_cvt_pk_bf16_f32 %s, %s, %s" % (v(dst), v(d), v(d+1)))
            e("v_cvt_pk_bf16_f32 %s, %s, %s" % (v(dst+1), v(d+2), v(d+3)))
        if c in hV:
            d = acc_halo(c >> 2)
            for h_ in (0, 2):
                e("v_pk_fma_f32 %s, %s, %s, %s op_sel_hi:[1,0,1]" % (vr(d+h_,2), vr(hn4+h_,2), vr(csd+2*i,2), vr(d+h_,2)))
                e("v_pk_mul_f32 %s, %s, %s" % (vr(d+h_,2), vr(d+h_,2), vr(hr4+h_,2)))
            e("v_cvt_pk_bf16_f32 %s, %s, %s" % (v(d), v(d), v(d+1)))
            e("v_cvt_pk_bf16_f32 %s, %s, %s" % (v(d+1), v(d+2), v(d+3)))
            e("ds_write_b64 v251, %s offset:%d" % (vr(d,2), X_EX + (5+i)*512))
        if w < 3:
            e("ds_write_b64 v251, %s offset:%d" % (vr(vVp+6*i+4,2), X_EX + (w+1)*5120 + (5+i)*512))
    vBP, vBC, vBPA = 0, 4, 8
    vSel = 12
    vML, vMH = 16, 20
    vONE = 24
    vT16, vG = 28, 29
    attn_consts(w, e, vBP, vBC, vBPA, vSel, vML, vMH, vONE, vT16, vG)
    cF = [30, 31]
    for T in (0, 1):
        e("v_mul_f32 %s, 0x%08x, %s" % (v(cF[T]), f2u((20.0 ** -0.5) * 1.4426950408889634), v(tRS[T])))
    e("s_mov_b32 %s, 0xffff" % s(sM+8)); e("s_mov_b32 %s, 0" % s(sM+9))
    e("s_mov_b32 %s, -1" % s(sM+10)); e("s_mov_b32 %s, 0" % s(sM+11))
    e("s_mov_b32 %s, -1" % s(sM+12)); e("s_mov_b32 %s, 0xffff" % s(sM+13))
    e("v_lshlrev_b32 v250, 4, %s" % v(vLane))
    attn_tile(e, w, 1, vKA, vKB, lambda i: vVp+6*i+2, vBP, vBC, vSel, vML, vMH, vONE, cF[1], tSTD[1])
    e("s_waitcnt lgkmcnt(0)")
    e("s_barrier")
    for i in range(5):
        e("ds_read_b64 %s, v251 offset:%d" % (vr(vKP+2*i,2), X_EX + w*5120 + i*512))
        e("ds_read_b64 %s, v251 offset:%d" % (vr(vVp+6*i,2), X_EX + w*5120 + (5+i)*512))
    attn_tile(e, w, 0, vKP, vKA, lambda i: vVp+6*i, vBPA, vBC, vSel, vML, vMH, vONE, cF[0], tSTD[0])

def attn_consts(w, e, vBP, vBC, vBPA, vSel, vML, vMH, vONE, vT16, vG):
    e("v_and_b32 %s, 15, %s" % (v(vT16), v(vLane)))
    e("v_lshrrev_b32 %s, 4, %s" % (v(vG), v(vLane)))
    t0, t1, t2 = 32, 33, 34
    e("v_lshlrev_b32 %s, 2, %s" % (v(t0), v(vG)))
    e("v_sub_u32 %s, %s, %s" % (v(t0), v(vT16), v(t0)))
    e("v_and_b32 %s, 1, %s" % (v(t1), v(vT16)))
    e("v_mov_b32 %s, 0x%08x" % (v(t2), NEG))
    e("v_cmp_eq_u32 %s, 0, %s" % (sr(sM+14,2), v(t1)))
    for r in range(4):
        e("v_subrev_u32 %s, %d, %s" % (v(35), r, v(t0)))
        e("v_cmp_le_i32 %s, 0, %s" % (sr(sM+16,2), v(35)))
        if r & 1: e("s_andn2_b64 %s, %s, %s" % (sr(sM+18,2), "exec", sr(sM+14,2)))
        else:     e("s_mov_b64 %s, %s" % (sr(sM+18,2), sr(sM+14,2)))
        e("s_and_b64 %s, %s, %s" % (sr(sM+20,2), sr(sM+18,2), sr(sM+16,2)))
        e("s_andn2_b64 %s, %s, %s" % (sr(sM+22,2), sr(sM+18,2), sr(sM+16,2)))
        e("v_cndmask_b32_e64 %s, %s, 0, %s" % (v(vBC+r), v(t2), sr(sM+20,2)))
        e("v_cndmask_b32_e64 %s, %s, 0, %s" % (v(vBP+r), v(t2), sr(sM+22,2)))
    for r in range(4): e("v_mov_b32 %s, %s" % (v(vBPA+r), v(vBP+r)))
    if w == 0:
        e("s_cmp_lg_u32 %s, 0" % s(sRB))
        e("s_cbranch_scc1 L_notfirst")
        for r in range(4): e("v_mov_b32 %s, %s" % (v(vBPA+r), v(t2)))
        e.lab("L_notfirst")
    e("v_sub_u32 %s, %s, %s" % (v(35), v(t0), v(t1)))
    e("v_mov_b32 %s, 0x0c0c0100" % v(36)); e("v_mov_b32 %s, 0x01000c0c" % v(37))
    e("v_cndmask_b32_e64 %s, %s, %s, %s" % (v(36), v(37), v(36), sr(sM+14,2)))
    e("v_mov_b32 %s, 0x0c0c0302" % v(37)); e("v_mov_b32 %s, 0x03020c0c" % v(38))
    e("v_cndmask_b32_e64 %s, %s, %s, %s" % (v(37), v(38), v(37), sr(sM+14,2)))
    e("v_mov_b32 %s, 0x0c0c0c0c" % v(38))
    e("v_cmp_le_i32 %s, 0, %s" % (sr(sM+16,2), v(35)))
    e("v_cndmask_b32_e64 %s, %s, %s, %s" % (v(vSel+0), v(36), v(38), sr(sM+16,2)))
    e("v_cndmask_b32_e64 %s, %s, %s, %s" % (v(vSel+2), v(38), v(36), sr(sM+16,2)))
    e("v_cmp_le_i32 %s, 2, %s" % (sr(sM+16,2), v(35)))
    e("v_cndmask_b32_e64 %s, %s, %s, %s" % (v(vSel+1), v(37), v(38), sr(sM+16,2)))
    e("v_cndmask_b32_e64 %s, %s, %s, %s" % (v(vSel+3), v(38), v(37), sr(sM+16,2)))
    for h in (1, 2, 3):
        e("v_cmp_le_u32 %s, %d, %s" % (sr(sM+16,2), h, v(vG)))
        e("v_cndmask_b32_e64 %s, 0, -1, %s" % (v(vML+h), sr(sM+16,2)))
    for h in (0, 1, 2):
        e("v_cmp_ge_u32 %s, %d, %s" % (sr(sM+16,2), h, v(vG)))
        e("v_cndmask_b32_e64 %s, 0, -1, %s" % (v(vMH+h), sr(sM+16,2)))
    for r in range(4): e("v_mov_b32 %s, 0x3f803f80" % v(vONE+r))

def attn_tile(e, w, T, kprev, kcur, vfrag, bP, bC, vSel, vML, vMH, vONE, cF, std):
    Qm = [40, 44, 48, 52]
    S0 = [56, 60, 64, 68]; S1 = [72, 76, 80, 84]
    P  = [88, 92, 96, 100]
    Lh = [104, 108, 112, 116]
    O  = {}
    qp = vQp + T*10
    for h in range(4):
        for k in range(2):
            if h == 0: e("v_mov_b32 %s, %s" % (v(Qm[h]+k), v(qp+2*h+k)))
            else:      e("v_and_b32 %s, %s, %s" % (v(Qm[h]+k), v(qp+2*h+k), v(vML+h)))
            if h == 3: e("v_mov_b32 %s, %s" % (v(Qm[h]+2+k), v(qp+2*h+2+k)))
            else:      e("v_and_b32 %s, %s, %s" % (v(Qm[h]+2+k), v(qp+2*h+2+k), v(vMH+h)))
    for h in range(4):
        e("%s %s, %s, %s, %s" % (MFMA, vr(S0[h],4), vr(kprev+2*h,4), vr(Qm[h],4), vr(bP,4)))
        e("%s %s, %s, %s, %s" % (MFMA, vr(S1[h],4), vr(kcur+2*h,4), vr(Qm[h],4), vr(bC,4)))
    va = [120, 122, 124, 126]; mx = [128, 129, 130, 131]; tmp = 132
    for h in range(4):
        e("v_max3_f32 %s, %s, %s, %s" % (v(va[h]), v(S0[h]), v(S0[h]+1), v(S1[h])))
        e("v_max3_f32 %s, %s, %s, %s" % (v(va[h]+1), v(S0[h]+2), v(S0[h]+3), v(S1[h]+2)))
        e("v_max_f32 %s, %s, %s" % (v(va[h]), v(va[h]), v(S1[h]+1)))
        e("v_max_f32 %s, %s, %s" % (v(va[h]+1), v(va[h]+1), v(S1[h]+3)))
        e("v_max_f32 %s, %s, %s" % (v(mx[h]), v(va[h]), v(va[h]+1)))
    e("v_permlane32_swap_b32 %s, %s" % (v(mx[0]), v(mx[1])))
    e("v_permlane32_swap_b32 %s, %s" % (v(mx[2]), v(mx[3])))
    e("v_max_f32 %s, %s, %s" % (v(mx[0]), v(mx[0]), v(mx[1])))
    e("v_max_f32 %s, %s, %s" % (v(mx[2]), v(mx[2]), v(mx[3])))
    e("v_permlane16_swap_b32 %s, %s" % (v(mx[0]), v(mx[2])))
    e("v_max_f32 %s, %s, %s" % (v(mx[0]), v(mx[0]), v(mx[2])))
    e("v_mov_b32 %s, %s" % (v(mx[2]), v(mx[0])))
    e("v_permlane16_swap_b32 %s, %s" % (v(mx[0]), v(mx[2])))
    e("v_mov_b32 %s, %s" % (v(mx[1]), v(mx[0])))
    e("v_mov_b32 %s, %s" % (v(mx[3]), v(mx[2])))
    e("v_permlane32_swap_b32 %s, %s" % (v(mx[0]), v(mx[1])))
    e("v_permlane32_swap_b32 %s, %s" % (v(mx[2]), v(mx[3])))
    for h in range(4):
        e("v_mul_f32 %s, %s, %s" % (v(mx[h]), v(mx[h]), v(cF)))
        e("v_fma_f32 %s, %s, %s, -%s" % (v(va[h]), v(va[h]), v(cF), v(mx[h])))
        e("v_fma_f32 %s, %s, %s, -%s" % (v(va[h]+1), v(va[h]+1), v(cF), v(mx[h])))
    for h in range(4):
        e("v_exp_f32 %s, %s" % (v(va[h]), v(va[h])))
        e("v_exp_f32 %s, %s" % (v(va[h]+1), v(va[h]+1)))
    for h in range(4):
        e("v_cvt_pk_bf16_f32 %s, %s, %s" % (v(va[h]), v(va[h]), v(va[h]+1)))
        for k in range(4):
            e("v_perm_b32 %s, %s, %s, %s" % (v(P[h]+k), v(va[h]), v(va[h]), v(vSel+k)))
    pairs = [(0,0),(1,0),(1,1),(2,1),(2,2),(3,2),(3,3),(4,3)]
    free = Qm + S0
    for n, (i, h) in enumerate(pairs):
        O[(i,h)] = free[n]
    for h in range(4):
        e("%s %s, %s, %s, 0" % (MFMA, vr(Lh[h],4), vr(vONE,4), vr(P[h],4)))
    for (i, h) in pairs:
        e("%s %s, %s, %s, 0" % (MFMA, vr(O[(i,h)],4), vr(vfrag(i),4), vr(P[h],4)))
    for h in range(4):
        e("v_rcp_f32 %s, %s" % (v(Lh[h]), v(Lh[h])))
    for h in range(4):
        e("v_mul_f32 %s, %s, %s" % (v(Lh[h]), v(Lh[h]), v(std)))
    F = [Lh[0], 72, 74, 76, Lh[3]]
    e("v_cndmask_b32_e64 %s, %s, %s, %s" % (v(F[1]), v(Lh[1]), v(Lh[0]), sr(sM+8,2)))
    e("v_cndmask_b32_e64 %s, %s, %s, %s" % (v(F[2]), v(Lh[2]), v(Lh[1]), sr(sM+10,2)))
    e("v_cndmask_b32_e64 %s, %s, %s, %s" % (v(F[3]), v(Lh[3]), v(Lh[2]), sr(sM+12,2)))
    R = {}
    R[0] = O[(0,0)]; R[4] = O[(4,3)]
    for i in (1, 2, 3):
        lo, hi = O[(i,i-1)], O[(i,i)]
        for r in range(4):
            e("v_cndmask_b32_e64 %s, %s, %s, %s" % (v(hi+r), v(hi+r), v(lo+r), sr(sM+8+2*(i-1),2)))
        R[i] = hi
    out = P[0]
    for i in range(5):
        e("v_pk_mul_f32 %s, %s, %s op_sel_hi:[1,0]" % (vr(R[i],2), vr(R[i],2), vr(F[i],2)))
        e("v_pk_mul_f32 %s, %s, %s op_sel_hi:[1,0]" % (vr(R[i]+2,2), vr(R[i]+2,2), vr(F[i],2)))
        e("v_cvt_pk_bf16_f32 %s, %s, %s" % (v(out+2*i), v(R[i]), v(R[i]+1)))
        e("v_cvt_pk_bf16_f32 %s, %s, %s" % (v(out+2*i+1), v(R[i]+2), v(R[i]+3)))
    gl = 2*w + T
    e("s_lshl_b32 %s, %s, 1" % (s(sT0), s(sRB)))
    e("s_add_u32 %s, %s, %d" % (s(sT0), s(sT0), gl >> 2))
    e("s_mul_i32 %s, %s, %d" % (s(sT0), s(sT0), ACT_TB))
    e("s_lshr_b32 %s, %s, 1" % (s(sT1), s(sCB)))
    e("s_mul_i32 %s, %s, 5" % (s(sT1), s(sT1)))
    e("s_and_b32 %s, %s, 1" % (s(sT2), s(sCB)))
    e("s_lshl_b32 %s, %s, 1" % (s(sT3), s(sT2)))
    e("s_add_u32 %s, %s, %s" % (s(sT3), s(sT3), s(sT1)))
    e("s_lshl_b32 %s, %s, 12" % (s(sT3), s(sT3)))
    e("s_add_u32 %s, %s, %s" % (s(sT3), s(sT3), s(sT0)))
    e("s_add_u32 %s, %s, %d" % (s(sT3), s(sT3), ACT_OFF + (gl & 3)*1024))
    e("buffer_store_dwordx4 %s, v250, %s, %s offen sc1" % (vr(out,4), sr(sWS,4), s(sT3)))
    e("s_add_u32 %s, %s, 4096" % (s(sT3), s(sT3)))
    e("buffer_store_dwordx4 %s, v250, %s, %s offen sc1" % (vr(out+4,4), sr(sWS,4), s(sT3)))
    e("s_add_u32 %s, %s, 4" % (s(sT1), s(sT1)))
    e("s_lshl_b32 %s, %s, 12" % (s(sT1), s(sT1)))
    e("s_add_u32 %s, %s, %s" % (s(sT1), s(sT1), s(sT0)))
    e("s_lshl_b32 %s, %s, 3" % (s(sT2), s(sT2)))
    e("s_add_u32 %s, %s, %s" % (s(sT1), s(sT1), s(sT2)))
    e("s_add_u32 %s, %s, %d" % (s(sT1), s(sT1), ACT_OFF + (gl & 3)*1024))
    e("buffer_store_dwordx2 %s, v250, %s, %s offen sc1" % (vr(out+8,2), sr(sWS,4), s(sT1)))


def sprinkle(lines, groups, start=0, end_gap=0):
    safe = []
    exec_full = True; skip = None
    n = len(lines)
    for i, t in enumerate(lines):
        tt = t.strip()
        prev = lines[i-1].strip() if i else ""
        ok = exec_full and skip is None
        if prev.startswith("s_cmp") or prev.startswith("v_cmp") or prev.startswith("s_and_b64") or prev.startswith("s_andn2") : ok = False
        if tt.startswith("s_cbranch") or tt.startswith("s_cselect") or tt.startswith("s_addc") or tt.endswith(":"): ok = False
        if tt.startswith("s_barrier") or tt.startswith("s_waitcnt"): ok = False
        if ok and start <= i < n - end_gap: safe.append(i)
        if tt.startswith("s_mov_b32 exec") : exec_full = False
        if tt.startswith("s_mov_b64 exec, -1"): exec_full = True
        if tt.startswith("s_cbranch"): skip = tt.split()[-1]
        if skip and tt == skip + ":": skip = None
    ng = len(groups)
    assert len(safe) >= ng, (len(safe), ng)
    at = {}
    for k in range(ng):
        at.setdefault(safe[k*len(safe)//ng], []).extend(groups[k])
    out = []
    for i, t in enumerate(lines):
        if i in at: out += ["  " + x for x in at[i]]
        out.append(t)
    return out

F_SLOT = 49152; F_XB = 16384
fWA = [160, 161, 162, 163]
F_X0, F_X1 = 164, 165
fXE, fXOd, fWL = 166, 167, 168
fDO = 169
def facc(T, c): return (T*16 + c)*4
fCS = 128
fSUM = [144, 148]
def fxf(kh, T): return aXF + (kh*2 + T)*4

def ffn_lane_setup(e):
    x_lane_setup(e, fXE, fXOd)
    e("v_lshrrev_b32 v6, 2, v1")
    e("v_lshlrev_b32 v6, 3, v6")
    e("v_and_b32 v7, 3, v1")
    e("v_add_u32 v6, v6, v7")
    e("v_mul_u32_u24 v6, 3456, v6")
    e("v_lshrrev_b32 v7, 1, v2")
    e("v_xor_b32 v7, v7, v3")
    e("v_lshlrev_b32 v7, 5, v7")
    e("v_and_b32 v8, 1, v2")
    e("v_lshlrev_b32 v8, 4, v8")
    e("v_add3_u32 v6, v6, v7, v8")
    e("s_lshl_b32 %s, %s, 9" % (s(sT0), s(sCB)))
    e("v_add_u32 %s, %s, v6" % (v(fWL), s(sT0)))

def ffn_cfg(w):
    cfg = Cfg()
    cfg.ntile = 16; cfg.ring = 8; cfg.look = 6; cfg.tail = 2; cfg.nfirst = 6; cfg.wbase = aW
    H = [c for c in range(16) if c % 4 == w]
    def wread(kh, c, reg):
        off = (c >> 2)*8192 + kh*4096
        ad = v(fWA[c & 3])
        return ["ds_read_b64_tr_b16 %s, %s offset:%d" % (ar(reg,2), ad, off),
                "ds_read_b64_tr_b16 %s, %s offset:%d" % (ar(reg+2,2), ad, off + 2048)]
    def mf(kh, c, reg):
        out = []
        for T in (0, 1):
            d = vr(facc(T, c), 4)
            out.append("%s %s, %s, %s, %s" % (MFMA, d, ar(reg,4), ar(fxf(kh,T),4), d))
        if c in H and "nohalo" not in OPTS:
            d = vr(fCS + (c >> 2)*4, 4)
            out.append("%s %s, %s, %s, %s" % (MFMA, d, ar(reg,4), ar(aONE,4), d))
        return out
    def stats(kh):
        return ["%s %s, %s, %s, %s" % (MFMA, vr(fSUM[T],4), ar(aONE,4), ar(fxf(kh,T),4), vr(fSUM[T],4)) for T in (0,1)]
    def xreads(kh):
        ad = F_X1 if kh else F_X0
        return ["ds_read_b128 %s, %s offset:%d" % (ar(fxf(kh,T),4), v(ad), (2*w+T)*2048) for T in (0,1)]
    cfg.wread = wread; cfg.mf = mf; cfg.stats = stats; cfg.xreads = xreads
    cfg.xread1_at = 4
    cfg.addr_update = addr_update(F_SLOT, fWA + [F_X0, F_X1])
    cfg.scal_update = scal_update(F_SLOT, 64*3456)
    cfg.dma_start = 2; cfg.dma_skew = w; cfg.dma_endgap = 8
    cfg.wstep = 64*3456; cfg.slot = F_SLOT
    return cfg

def read_addr_setup_ffn(e):
    e("v_and_b32 v1, 15, %s" % v(vLane))
    e("v_lshrrev_b32 v2, 2, v1")
    e("v_and_b32 v3, 3, v1")
    e("v_lshrrev_b32 v4, 4, %s" % v(vLane))
    e("v_lshl_add_u32 v2, v4, 2, v2")
    e("v_lshrrev_b32 v5, 1, v2")
    e("v_and_b32 v5, 3, v5")
    e("v_lshlrev_b32 v2, 7, v2")
    e("v_lshl_add_u32 v2, v3, 3, v2")
    e("v_add_u32 v2, %d, v2" % F_XB)
    for u in range(4):
        e("v_xor_b32 v6, %d, v5" % u)
        e("v_lshl_add_u32 %s, v6, 5, v2" % v(fWA[u]))
    xaddr_setup(e, F_X0, F_X1, 0)

def ffn_epilogue(w, e):
    H = [c for c in range(16) if c % 4 == w]
    nm = [150, 152]
    for T in (0, 1):
        e("v_mul_f32 %s, 0x%08x, %s" % (v(nm[T]), f2u(-1.0/640), v(fSUM[T])))
    e("v_lshrrev_b32 v252, 4, %s" % v(vLane))
    e("v_lshlrev_b32 v252, 4, v252")
    e("s_mov_b32 exec_lo, 0x00010001"); e("s_mov_b32 exec_hi, 0x00010001")
    for c in H:
        e("ds_write_b128 v252, %s offset:%d" % (vr(fCS + (c >> 2)*4, 4), c*64))
    e("s_mov_b64 exec, -1")
    e("s_waitcnt lgkmcnt(0)")
    e("s_barrier")
    e("v_lshlrev_b32 v250, 4, %s" % v(vLane))
    e("s_lshl_b32 %s, %s, 1" % (s(sT0), s(sRB)))
    e("s_add_u32 %s, %s, %d" % (s(sT0), s(sT0), (2*w) >> 2))
    e("s_mul_i32 %s, %s, %d" % (s(sT0), s(sT0), ACT_TB))
    e("s_lshl_b32 %s, %s, 3" % (s(sT1), s(sCB)))
    e("s_add_u32 %s, %s, 20" % (s(sT1), s(sT1)))
    e("s_lshl_b32 %s, %s, 12" % (s(sT1), s(sT1)))
    e("s_add_u32 %s, %s, %s" % (s(sT0), s(sT0), s(sT1)))
    e("s_add_u32 %s, %s, %d" % (s(sT0), s(sT0), ACT_OFF + ((2*w) & 3)*1024))
    e("s_mov_b32 %s, 0" % s(sT2))
    e("s_cmp_eq_u32 %s, 6" % s(sCB))
    e("s_cselect_b32 %s, 0x%x, 0" % (s(sT2), OOB))
    cs = [160, 164, 168, 172]
    pk = [180, 184, 188, 192]
    for a_ in range(8):
        if a_ == 6: e("s_add_u32 %s, %s, %s" % (s(sT0), s(sT0), s(sT2)))
        for k in range(2):
            c = 2*a_ + k
            e("ds_read_b128 %s, v252 offset:%d" % (vr(cs[(2*a_+k) & 3],4), c*64))
        for T in (0, 1):
            o = pk[(2*a_ + T) & 3]
            for k in range(2):
                c = 2*a_ + k; d = facc(T, c); q = cs[c & 3]
                e("v_pk_fma_f32 %s, %s, %s, %s op_sel_hi:[1,0,1]" % (vr(d,2), vr(q,2), vr(nm[T],2), vr(d,2)))
                e("v_pk_fma_f32 %s, %s, %s, %s op_sel_hi:[1,0,1]" % (vr(d+2,2), vr(q+2,2), vr(nm[T],2), vr(d+2,2)))
                e("v_cvt_pk_bf16_f32 %s, %s, %s" % (v(o+2*k), v(d), v(d+1)))
                e("v_cvt_pk_bf16_f32 %s, %s, %s" % (v(o+2*k+1), v(d+2), v(d+3)))
                e("v_pk_max_i16 %s, %s, 0" % (v(o+2*k), v(o+2*k)))
                e("v_pk_max_i16 %s, %s, 0" % (v(o+2*k+1), v(o+2*k+1)))
            e("buffer_store_dwordx4 %s, v250, %s, %s offen offset:%d sc1" % (vr(o,4), sr(sWS,4), s(sT0), T*1024))
        e("s_add_u32 %s, %s, 4096" % (s(sT0), s(sT0)))

P_STRIDE = 1312
def preformat(e):
    e("s_mov_b32 s63, 0x20000")
    for i in range(10):
        e("v_add_u32 v1, %d, %s" % (64*i, v(vLane)))
        e("v_mul_u32_u24 v2, 205, v1"); e("v_lshrrev_b32 v2, 14, v2")
        e("v_mul_u32_u24 v3, 80, v2"); e("v_sub_u32 v3, v1, v3")
        e("v_mul_u32_u24 v4, 1280, v2"); e("v_lshl_add_u32 %s, v3, 4, v4" % v(200+i))
        e("v_mul_u32_u24 v4, %d, v2" % P_STRIDE); e("v_lshl_add_u32 %s, v3, 4, v4" % v(210+i))
    for n in range(5):
        e("s_mul_i32 %s, %s, 5" % (s(sKC), s(sCB)))
        e("s_add_u32 %s, %s, %d" % (s(sKC), s(sKC), n))
        e("s_mul_i32 %s, %s, 52" % (s(sT0), s(sKC))); e("s_lshr_b32 %s, %s, 8" % (s(sT0), s(sT0)))
        e("s_mul_i32 %s, %s, 5" % (s(sT1), s(sT0))); e("s_sub_u32 %s, %s, %s" % (s(sT1), s(sKC), s(sT1)))
        e("s_mul_i32 %s, %s, 160" % (s(sT0), s(sT0)))
        e("s_lshl_b32 %s, %s, 5" % (s(sT2), s(sT1)))
        e("s_cmp_ge_u32 %s, 2" % s(sT1)); e("s_cselect_b32 %s, 16, 0" % s(sT3))
        e("s_add_u32 %s, %s, %s" % (s(sT2), s(sT2), s(sT3)))
        e("s_add_u32 %s, %s, %s" % (s(sT2), s(sT2), s(sT0)))
        e("s_add_u32 %s, %s, 16" % (s(sT3), s(sT2)))
        e("s_add_u32 %s, %s, 64" % (s(sD0), s(sT0))); e("s_add_u32 %s, %s, 144" % (s(sD1), s(sT0)))
        e("s_cmp_eq_u32 %s, 4" % s(sT1))
        e("s_cselect_b32 %s, %s, %s" % (s(sT2), s(sD0), s(sT2))); e("s_cselect_b32 %s, %s, %s" % (s(sT3), s(sD1), s(sT3)))
        e("s_sub_u32 %s, %s, 20" % (s(sD0), s(sKC))); e("s_lshl_b32 %s, %s, 5" % (s(sD0), s(sD0))); e("s_add_u32 %s, %s, 16" % (s(sD1), s(sD0)))
        e("s_cmp_lt_u32 %s, 20" % s(sKC))
        e("s_cselect_b32 %s, %s, %s" % (s(sT2), s(sT2), s(sD0))); e("s_cselect_b32 %s, %s, %s" % (s(sT3), s(sT3), s(sD1)))
        e("s_cmp_ge_u32 %s, 2" % s(sWave)); e("s_cselect_b32 %s, %s, %s" % (s(sT2), s(sT3), s(sT2)))
        e("s_and_b32 %s, %s, 1" % (s(sT3), s(sWave))); e("s_lshl_b32 %s, %s, 3" % (s(sT3), s(sT3)))
        e("s_add_u32 %s, %s, %s" % (s(sT2), s(sT2), s(sT3)))
        e("s_mul_i32 %s, %s, 1280" % (s(sT2), s(sT2)))
        e("s_cmp_lt_u32 %s, 20" % s(sKC))
        e("s_cselect_b32 s60, %s, %s" % (s(sX), s(sW)))
        e("s_cselect_b32 s61, %s, %s" % (s(sX+1), s(sW+1)))
        e("s_cselect_b32 s62, %s, %s" % (s(sX+2), s(sW+2)))
        for i in range(10):
            e("buffer_load_dwordx4 %s, %s, s[60:63], %s offen" % (vr(40*n+4*i,4), v(200+i), s(sT2)))
    e("s_mul_i32 %s, %s, %d" % (s(sT0), s(sWave), 8*P_STRIDE))
    for i in range(10): e("v_add_u32 %s, %s, %s" % (v(210+i), s(sT0), v(210+i)))
    e("v_and_b32 v222, 15, %s" % v(vLane)); e("v_lshrrev_b32 v223, 2, v222"); e("v_and_b32 v224, 3, v222")
    e("v_lshrrev_b32 v225, 4, %s" % v(vLane)); e("v_lshl_add_u32 v223, v225, 2, v223")
    e("v_mul_u32_u24 v223, %d, v223" % P_STRIDE)
    e("v_lshl_add_u32 v220, v224, 4, v223")
    e("v_lshl_add_u32 v221, v224, 3, v223")
    e("s_mul_i32 %s, %s, 320" % (s(sT0), s(sWave)))
    e("v_add_u32 v220, %s, v220" % s(sT0)); e("v_add_u32 v221, %s, v221" % s(sT0))
    e("v_lshlrev_b32 v250, 4, %s" % v(vLane))
    for n in range(5):
        base = (n & 1)*43008
        for i in range(10):
            e("ds_write_b128 %s, %s offset:%d" % (v(210+i), vr(40*n+4*i,4), base))
        e("s_waitcnt lgkmcnt(0)")
        e("s_barrier")
        e("s_mul_i32 %s, %s, 5" % (s(sKC), s(sCB)))
        e("s_add_u32 %s, %s, %d" % (s(sKC), s(sKC), n))
        e("s_mul_i32 %s, %s, 5120" % (s(sT0), s(sKC)))
        e("s_mul_i32 %s, %s, %d" % (s(sT1), s(sWave), 2*W2F_CB))
        e("s_add_u32 %s, %s, %s" % (s(sT0), s(sT0), s(sT1)))
        e("s_add_u32 %s, %s, %d" % (s(sT0), s(sT0), W2F_OFF))
        e("s_cmp_ge_u32 %s, %d" % (s(sKC), NKS))
        e("s_cselect_b32 %s, 0x%x, %s" % (s(sT0), OOB, s(sT0)))
        for half in range(2):
            for ct in range(5):
                d = 40*n + (half*5 + ct)*4
                if ct < 4: off = half*160 + (ct >> 1)*64 + (ct & 1)*8; ad = 220
                else: off = half*160 + 128; ad = 221
                e("ds_read_b64_tr_b16 %s, %s offset:%d" % (vr(d,2), v(ad), base + off))
                e("ds_read_b64_tr_b16 %s, %s offset:%d" % (vr(d+2,2), v(ad), base + off + 16*P_STRIDE))
        for half in range(2):
            for ct in range(5):
                d = 40*n + (half*5 + ct)*4
                e("s_add_u32 %s, %s, %d" % (s(sT1), s(sT0), half*W2F_CB + ct*1024))
                e("buffer_store_dwordx4 %s, v250, %s, %s offen sc1" % (vr(d,4), sr(sWS,4), s(sT1)))

DA = 6
POLL_A_AT = 6
FFN_W2A_IN = 20
vAR = 80
vWR = 176
def act_soff(p, dst):
    if p < 14: return ["s_lshl_b32 %s, %s, 2" % (s(dst), s(sKQ[p])), "s_add_u32 %s, %s, %s" % (s(dst), s(dst), s(sAB))]
    return ["s_lshl_b32 %s, %s, 12" % (s(dst), s(sWave)), "s_add_u32 %s, %s, %s" % (s(dst), s(dst), s(sAB)),
            "s_add_u32 %s, %s, %d" % (s(dst), s(dst), 4*(p-14)*4096)]
def act_loads(p):
    st = vAR + (p % DA)*16
    G = []
    for tt in range(4):
        g = act_soff(p, sD0) if tt == 0 else []
        g.append("buffer_load_dwordx4 %s, %s, %s, %s offen offset:%d sc1" % (vr(st+4*tt,4), v(vL16), sr(sWS,4), s(sD0), tt*1024))
        G.append(g)
    return G

def phase2():
    e = E()
    e.lab("L_ph2")
    stamp(e, 8)
    spin_flags(e, "f", MASK_F, 250, have_first=vPoll)
    st = State()
    main = E()
    for p in range(DA):
        for g in act_loads(p): main.ext(g)
    for i in range(80): main("v_mov_b32 %s, 0" % v(i))
    main("v_add_u32 v216, %s, %s" % (s(sLA), v(vL16)))
    main("v_add_u32 v217, %s, %s" % (s(sLB), v(vL16)))
    def wl_reads(p):
        out = []
        for ct in range(5):
            q = 5*p + ct
            ad, off = (216, q*1024) if q < 12 else (217, (q-12)*1024)
            out.append("ds_read_b128 %s, %s offset:%d" % (vr(vWR + (p & 1)*20 + ct*4, 4), v(ad), off))
        return out
    main.ext(wl_reads(0))
    main("v_lshlrev_b32 v218, 2, %s" % v(vLane))
    stamp(main, 9)
    NP = 19
    for p in range(NP):
        ms = []
        for ct in range(5):
            if p < 5: wsrc = vr(vWR + (p & 1)*20 + ct*4, 4)
            else:     wsrc = ar(((p - 5) % 12)*20 + ct*4, 4)
            for tt in range(4):
                d = vr((tt*5+ct)*4, 4)
                ms.append("%s %s, %s, %s, %s" % (MFMA, d, wsrc, vr(vAR + (p % DA)*16 + 4*tt, 4), d))
        aux = []
        if p + 1 < 5: aux += [[t] for t in wl_reads(p + 1)]
        q = p - 1 + DA
        if p >= 1 and q < NP:
            if q == 14:
                sp = E(); spin_flags(sp, "a", MASK_A, 250, have_first=219)
                main.ext(sp.L)
                rx = E()
                rx("v_and_b32 v220, 15, %s" % v(vLane)); rx("v_lshrrev_b32 v221, 4, %s" % v(vLane))
                rx("s_lshl_b32 %s, %s, 6" % (s(sT0), s(sTB))); rx("s_lshl_b32 %s, %s, 4" % (s(sT1), s(sWave)))
                rx("s_add_u32 %s, %s, %s" % (s(sT0), s(sT0), s(sT1)))
                rx("v_add_u32 v220, %s, v220" % s(sT0)); rx("v_lshlrev_b32 v222, 2, v220")
                rx("v_mul_u32_u24 v220, 1280, v220")
                rx("s_mul_i32 %s, %s, 160" % (s(sT1), s(sC2))); rx("v_add_u32 v220, %s, v220" % s(sT1))
                rx("v_lshl_add_u32 v240, v221, 4, v220"); rx("v_lshl_add_u32 v242, v221, 3, v220")
                rx("s_mov_b32 %s, %d" % (s(sT2), RSTD_OFF))
                rx("buffer_load_dwordx4 v[224:227], v240, %s, 0 offen" % sr(sX,4))
                rx("buffer_load_dwordx4 v[228:231], v240, %s, 0 offen offset:64" % sr(sX,4))
                rx("buffer_load_dwordx2 v[232:233], v242, %s, 0 offen offset:128" % sr(sX,4))
                rx("buffer_load_dword v234, v222, %s, %s offen sc1" % (sr(sWS,4), s(sT2)))
                main.ext(rx.L)
            aux += act_loads(q)
        if p == POLL_A_AT:
            aux.append(["buffer_load_dword v219, v218, %s, %s offen sc1" % (sr(sWS,4), s(sFL))])
        if p == 6: aux += w2a_groups(17, 18)
        if p == 7: aux += w2a_groups(18, 19)
        flat = []
        n = len(ms); k = 0
        for i_, m in enumerate(ms):
            main(m)
            want = (i_ + 1)*len(aux) // n
            while k < want:
                main.ext(aux[k]); k += 1
    stamp(main, 10)
    main("s_barrier")
    main("v_lshlrev_b32 v236, 4, %s" % v(vLane))
    main("s_mul_i32 %s, %s, %d" % (s(sT0), s(sWave), 20*1024))
    main("v_add_u32 v237, %s, v236" % s(sT0))
    main("s_nop 7"); main("s_nop 3")
    for w in range(4):
        main("s_cmp_lg_u32 %s, %d" % (s(sWave), w))
        main("s_cbranch_scc1 L_k2_w%d" % w)
        for tt in range(4):
            if tt == w: continue
            for ct in range(5):
                main("ds_write_b128 v237, %s offset:%d" % (vr((tt*5+ct)*4,4), (tt*5+ct)*1024))
        if w != 0:
            for r in range(20): main("v_mov_b32 %s, %s" % (v(r), v(w*20 + r)))
        main("s_branch L_k2_red")
        main.lab("L_k2_w%d" % w)
    main.lab("L_k2_red")
    main("s_waitcnt lgkmcnt(0)")
    main("s_barrier")
    main("s_mul_i32 %s, %s, 5120" % (s(sT0), s(sWave)))
    main("v_add_u32 v237, %s, v236" % s(sT0))
    for k in range(1, 4):
        main("s_add_u32 %s, %s, %d" % (s(sT1), s(sWave), k))
        main("s_and_b32 %s, %s, 3" % (s(sT1), s(sT1)))
        main("s_mul_i32 %s, %s, %d" % (s(sT1), s(sT1), 20*1024))
        main("v_add_u32 %s, %s, v237" % (v(208+k), s(sT1)))
        for ct in range(5):
            main("ds_read_b128 %s, %s offset:%d" % (vr(80 + ((k-1)*5+ct)*4, 4), v(208+k), ct*1024))
    for k in range(3):
        for r in range(0, 20, 2):
            main("v_pk_add_f32 %s, %s, %s" % (vr(r,2), vr(r,2), vr(80 + k*20 + r, 2)))
    srd(main, sW, 16, X_BYTES)
    xr = [224, 226, 228, 230, 232]
    o = 150
    for ct in range(5):
        xp = xr[ct]
        for hh in range(2):
            main("v_lshlrev_b32 v140, 16, %s" % v(xp+hh))
            main("v_and_b32 v141, 0xffff0000, %s" % v(xp+hh))
            d = ct*4 + 2*hh
            main("v_pk_fma_f32 %s, %s, %s, %s op_sel_hi:[1,0,1]" % (vr(140,2), vr(d,2), vr(234,2), vr(140,2)))
            main("v_cvt_pk_bf16_f32 %s, v140, v141" % v(o + 2*ct + hh))
    main("buffer_store_dwordx4 %s, v240, %s, 0 offen" % (vr(o,4), sr(sW,4)))
    main("buffer_store_dwordx4 %s, v240, %s, 0 offen offset:64" % (vr(o+4,4), sr(sW,4)))
    main("buffer_store_dwordx2 %s, v242, %s, 0 offen offset:128" % (vr(o+8,2), sr(sW,4)))
    stamp(main, 11)
    if "stamp" in OPTS: main("s_waitcnt vmcnt(0)")
    stamp(main, 12)
    stamp_flush(main)
    st = State(); dummy = []
    pre = []
    for g in w2a_groups(5, 17): pre += ["  " + t for t in g]
    st = process(pre, st, dummy)
    o1 = []; st = process(e.L, st, o1)
    o2 = []; st = process(main.L, st, o2)
    return o1 + o2

def top():
    out = []
    e = E()
    e("s_load_dwordx16 s[4:19], s[0:1], 0")
    e("s_load_dwordx2 s[20:21], s[0:1], 64")
    e("s_cmp_ge_u32 s2, 256")
    e("s_cbranch_scc1 L_end")
    if "stamp" in OPTS: e("v_mov_b32 %s, 0" % v(vSt))
    e("s_getpc_b64 s[60:61]")
    e.lab("L_pcbase")
    e("s_lshr_b32 s3, s2, 3")
    e("s_lshl_b32 s3, s3, 12")
    e("v_lshl_add_u32 v2, v0, 4, s3")
    e("v_min_u32 v2, L_codeend-L_pcbase-16, v2")
    if "nopf" not in OPTS: e("global_load_dwordx4 v[236:239], v2, s[60:61]")
    e("v_and_b32 %s, 63, v0" % v(vLane))
    e("v_lshrrev_b32 v1, 6, v0")
    e("s_and_b32 s3, s2, 7")
    e("v_readfirstlane_b32 %s, v1" % s(sWave))
    e("s_lshr_b32 %s, s2, 3" % s(sT0))
    e("s_and_b32 %s, s3, 1" % s(sT1))
    e("s_lshr_b32 %s, s3, 1" % s(sT2))
    e("s_lshl_b32 %s, %s, 3" % (s(sT1), s(sT1)))
    e("s_cmp_ge_u32 %s, 30" % s(sT0))
    e("s_cbranch_scc1 L_role_pf")
    e("s_cmp_ge_u32 %s, 16" % s(sT0))
    e("s_cbranch_scc1 L_role_ffn")
    e("s_lshl_b32 %s, %s, 1" % (s(sCB), s(sT2)))
    e("s_lshr_b32 %s, %s, 3" % (s(sT3), s(sT0)))
    e("s_add_u32 %s, %s, %s" % (s(sCB), s(sCB), s(sT3)))
    e("s_and_b32 %s, %s, 7" % (s(sKC), s(sT0)))
    e("s_add_u32 %s, %s, %s" % (s(sRB), s(sT1), s(sKC)))
    e("s_mul_i32 %s, %s, 5" % (s(sT3), s(sT3)))
    e("s_add_u32 %s, %s, %s" % (s(sKC), s(sKC), s(sT3)))
    e("s_cmp_ge_u32 %s, 10" % s(sKC))
    e("s_cselect_b32 %s, 10, 0" % s(sT3))
    e("s_sub_u32 %s, %s, %s" % (s(sKC), s(sKC), s(sT3)))
    if "rotk" not in OPTS: e("s_mov_b32 %s, 0" % s(sKC))
    e("s_mul_i32 %s, %s, %d" % (s(sXO), s(sRB), 128*1280))
    e("s_sub_u32 %s, %s, %d" % (s(sXH), s(sXO), 16*1280))
    e("s_cmp_eq_u32 %s, 0" % s(sRB))
    e("s_cselect_b32 %s, 0, %s" % (s(sXH), s(sXH)))
    e("s_add_u32 %s, %s, 8" % (s(sSig), s(sCB)))
    attn_lane_setup(e)
    e("s_waitcnt lgkmcnt(0)")
    srd(e, sX, 4, X_BYTES); srd(e, sW, 6, WQKV_BYTES); srd(e, sWS, 20, WS_USED); srd(e, sDBG, 18, 256)
    stamp(e, 0)
    for w in range(3):
        e("s_cmp_eq_u32 %s, %d" % (s(sWave), w))
        e("s_cbranch_scc1 L_attn_%d" % w)
    e("s_branch L_attn_3")
    e.lab("L_role_ffn")
    e("s_mul_i32 %s, %s, 14" % (s(sT2), s(sT2)))
    e("s_add_u32 %s, %s, %s" % (s(sT2), s(sT2), s(sT0)))
    e("s_sub_u32 %s, %s, 16" % (s(sT2), s(sT2)))
    e("s_lshr_b32 %s, %s, 3" % (s(sCB), s(sT2)))
    e("s_and_b32 %s, %s, 7" % (s(sKC), s(sT2)))
    e("s_add_u32 %s, %s, %s" % (s(sRB), s(sT1), s(sKC)))
    e("s_and_b32 %s, %s, 1" % (s(sT3), s(sCB)))
    e("s_mul_i32 %s, %s, 5" % (s(sT3), s(sT3)))
    e("s_add_u32 %s, %s, %s" % (s(sKC), s(sKC), s(sT3)))
    e("s_add_u32 %s, %s, 2" % (s(sKC), s(sKC)))
    e("s_cmp_ge_u32 %s, 10" % s(sKC))
    e("s_cselect_b32 %s, 10, 0" % s(sT3))
    e("s_sub_u32 %s, %s, %s" % (s(sKC), s(sKC), s(sT3)))
    if "rotk" not in OPTS: e("s_mov_b32 %s, 0" % s(sKC))
    e("s_mul_i32 %s, %s, %d" % (s(sXO), s(sRB), 128*1280))
    e("s_mov_b32 %s, %s" % (s(sSig), s(sCB)))
    ffn_lane_setup(e)
    e("s_waitcnt lgkmcnt(0)")
    srd(e, sX, 4, X_BYTES); srd(e, sW, 12, W1_BYTES); srd(e, sWS, 20, WS_USED); srd(e, sDBG, 18, 256)
    stamp(e, 0)
    for w in range(3):
        e("s_cmp_eq_u32 %s, %d" % (s(sWave), w))
        e("s_cbranch_scc1 L_ffn_%d" % w)
    e("s_branch L_ffn_3")
    e.lab("L_role_pf")
    e("s_lshl_b32 %s, s3, 1" % s(sCB))
    e("s_add_u32 %s, %s, %s" % (s(sCB), s(sCB), s(sT0)))
    e("s_sub_u32 %s, %s, 30" % (s(sCB), s(sCB)))
    e("s_waitcnt lgkmcnt(0)")
    srd(e, sX, 8, WO_BYTES); srd(e, sW, 14, W2_BYTES); srd(e, sWS, 20, WS_USED); srd(e, sDBG, 18, 256)
    stamp(e, 0)
    out += process_path(e.L, None, None, [])
    e = E(); preformat(e)
    stamp(e, 4)
    get_nonce(e, "pf", 250)
    e("s_waitcnt vmcnt(0)")
    e("s_barrier")
    e("s_lshl_b32 %s, %s, 6" % (s(sT0), s(sWave)))
    e("v_add_u32 v1, %s, %s" % (s(sT0), v(vLane)))
    e("v_lshlrev_b32 v1, 7, v1")
    e("s_lshl_b32 %s, %s, 2" % (s(sT0), s(sCB)))
    e("s_add_u32 %s, %s, %d" % (s(sT0), s(sT0), FLAG_OFF + 64))
    e("v_mov_b32 v2, %s" % s(sNonce))
    e("buffer_store_dword v2, v1, %s, %s offen sc1" % (sr(sWS,4), s(sT0)))
    srd(e, sX, 4, X_BYTES)
    ph2_setup(e, F_SLOT)
    spin_flags(e, "pfp", MASK_P, 250)
    stamp(e, 5)
    if "ph1only" in OPTS: stamp_flush(e); e("s_endpgm")
    for g in w2l_groups(0, 25): e.ext(g)
    e("v_lshlrev_b32 v2, 2, %s" % v(vLane))
    e("buffer_load_dword %s, v2, %s, %s offen sc1" % (v(vPoll), sr(sWS,4), s(sFL)))
    for g in w2a_groups(5, 17): e.ext(g)
    e("s_waitcnt vmcnt(60)")
    e("s_branch L_ph2")
    out += process_path(e.L, None, None, [])
    for role in ("attn", "ffn"):
        for w in range(4):
            tag = "%s_%d" % (role, w)
            pre = E(); pre.lab("L_" + tag)
            if role == "attn":
                cfg = attn_cfg(w)
                def extra(e, w=w):
                    read_addr_setup_attn(e)
                    if w == 0:
                        e("s_cmp_lg_u32 s2, 0 ; rare"); e("s_cbranch_scc1 L_nononce ; rare")
                        e("s_memrealtime s[96:97] ; rare"); e("s_waitcnt lgkmcnt(0) ; rare")
                        e("s_or_b32 s96, s96, 1 ; rare"); e("v_mov_b32 v14, s96 ; rare"); e("v_mov_b32 v15, 0 ; rare")
                        e("buffer_store_dword v14, v15, %s, 0 offen sc1 ; rare" % sr(sDBG,4))
                        e.lab("L_nononce")
                        e("v_and_b32 v2, 7, %s" % v(vLane))
                        e("v_lshlrev_b32 v7, 4, v2")
                        e("v_mov_b32 v8, 0x3f803f80"); e("v_mov_b32 v9, v8"); e("v_mov_b32 v10, v8"); e("v_mov_b32 v11, v8")
                        e("ds_write_b128 v7, v[8:11]")
                        e("v_add_u32 v12, %d, v7" % A_SLOT); e("ds_write_b128 v12, v[8:11]")
                        e("v_add_u32 v13, %d, v7" % (2*A_SLOT)); e("ds_write_b128 v13, v[8:11]")
                body, post = role_main(pre, tag, cfg, attn_dma_list(w), vDO, w == 0, 160, extra)
                ep = E(); attn_epilogue(w, ep)
            else:
                cfg = ffn_cfg(w)
                body, post = role_main(pre, tag, cfg, ffn_dma_list(w), fDO, False, 152, read_addr_setup_ffn)
                ep = E(); ffn_epilogue(w, ep)
            groups = w2a_groups(5, 17) if "ph1only" not in OPTS else []
            nin = (60 if role == "attn" else FFN_W2A_IN) if groups else 0
            epl = sprinkle(ep.L, groups[:nin], start=4, end_gap=(30 if role == "attn" else 10)) if nin else ep.L
            fin = E()
            stamp(fin, 6)
            fin("v_lshlrev_b32 v2, 2, %s" % v(vLane))
            if "nopoll" not in OPTS: fin("buffer_load_dword %s, v2, %s, %s offen sc1" % (v(vPoll), sr(sWS,4), s(sFL)))
            for g in groups[nin:]: fin.ext(g)
            fin("s_waitcnt vmcnt(%d)" % (len(groups) - nin))
            stamp(fin, 7)
            if "ph1only" in OPTS:
                stamp_flush(fin); fin("s_endpgm")
            else:
                fin("s_barrier")
                signal_rb(fin, tag, None)
                fin("s_branch L_ph2")
            out += process_path(pre.L, "L_loop_" + tag, body, post.L + epl + fin.L)
    out += phase2()
    out.append("L_end:")
    return out

def kd(name, nfv, accum, sg=102):
    return """.section .rodata,"a"
.p2align 6
.amdhsa_kernel %s
  .amdhsa_next_free_vgpr %d
  .amdhsa_next_free_sgpr %d
  .amdhsa_accum_offset %d
  .amdhsa_group_segment_fixed_size 0
  .amdhsa_kernarg_size 72
  .amdhsa_user_sgpr_count 2
  .amdhsa_user_sgpr_kernarg_segment_ptr 1
  .amdhsa_system_sgpr_workgroup_id_x 1
  .amdhsa_float_denorm_mode_32 3
.end_amdhsa_kernel
""" % (name, nfv, sg, accum)

HEADER = """; Kernarg (72 bytes): [0] A_x [8] A_wqkv [16] A_wo [24] B_x [32] B_w1 [40] B_w2 [48] out [56] debug [64] ws
; @launch grid=(256,1,1) block=(256,1,1) lds=163840
.amdgcn_target "amdgcn-amd-amdhsa--gfx950"
"""
def main():
    if len(sys.argv) > 2: OPTS.update(sys.argv[2].split(","))
    k = top()
    txt = HEADER + ".text\n.globl %s\n.p2align 8\n.type %s,@function\n%s:\n" % (KNAME, KNAME, KNAME) + "\n".join(k) + "\ns_endpgm\nL_codeend:\n" + kd(KNAME, 512, 256)
    path = sys.argv[1] if len(sys.argv) > 1 else "out2.s"
    open(path, "w").write(txt)
    print("wrote", path, len(txt), "bytes;", len(k), "lines")
if __name__ == "__main__": main()
```

```python
import sys, struct
from irlib import *

KNAME = "parallel_sum__sliding_local_dilated__dense_activation_relu__prompt_kernel"
S_, D_, DFF = 2048, 640, 1728
X_BYTES = S_*D_*2; WQKV_BYTES = D_*3*D_*2; WO_BYTES = D_*D_*2; W1_BYTES = D_*DFF*2; W2_BYTES = DFF*D_*2
NKS = 74
ACT_OFF = 0; ACT_TB = NKS*4096
W2F_OFF = 10*1024*1024; W2F_CB = NKS*5120
RSTD_OFF = 14*1024*1024
STAMP_OFF = 16*1024*1024
WS_USED = 17*1024*1024
OOB = 0x7F000000
FLAG_OFF = 15*1024*1024
MASK_F, MASK_A, MASK_P = 0x7f, 0xff00, 0xffff0000
SPIN_MAX = 200000
OPTS = set()
def f2u(x): return struct.unpack("<I", struct.pack("<f", x))[0]
def v(i): return "v%d" % i
def vr(i, n): return "v[%d:%d]" % (i, i+n-1)
def a(i): return "a%d" % i
def ar(i, n): return "a[%d:%d]" % (i, i+n-1)
def s(i): return "s%d" % i
def sr(i, n): return "s[%d:%d]" % (i, i+n-1)
MFMA = "v_mfma_f32_16x16x32_bf16"

class E:
    def __init__(self): self.L = []
    def __call__(self, t): self.L.append("  " + t)
    def lab(self, t): self.L.append(t + ":")
    def ext(self, lines):
        for t in lines: self.L.append(t if t.startswith("  ") or t.endswith(":") else "  " + t)

sWave = 22
sX, sW, sWS, sDBG = 24, 28, 32, 76
sRB, sCB, sKC, sSoX, sSoW, sDSlot, sRDelta, sIter = 36, 37, 38, 39, 40, 41, 42, 43
sT0, sT1, sT2, sT3 = 46, 47, 48, 49
sM = 50
sTB, sC2, sSig, sWB, sAB, sLA, sLB, sP0, sP1, sRB2 = 80, 81, 82, 83, 84, 85, 86, 87, 88, 89
sKQ = [4,5,6,7,8,9,10,11,12,13,14,15,18,19]
sNonce, sFL = 23, 45
sD0, sD1 = 90, 91
sXO, sXH = 92, 93
vLane = 255
vSt = 247
vPoll = 243
vNon = 252

def stamp(e, i):
    if "stamp" in OPTS:
        e("s_memrealtime s[96:97]"); e("s_memtime s[98:99]"); e("s_waitcnt lgkmcnt(0)")
        e("v_writelane_b32 %s, s96, %d" % (v(vSt), 2*i)); e("v_writelane_b32 %s, s98, %d" % (v(vSt), 2*i+1))
def stamp_flush(e):
    if "stamp" not in OPTS: return
    e("s_lshl_b32 s3, s2, 2"); e("s_add_u32 s3, s3, %s" % s(sWave)); e("s_lshl_b32 s3, s3, 8")
    e("s_add_u32 s3, s3, %d" % STAMP_OFF)
    e("v_lshlrev_b32 v1, 2, %s" % v(vLane))
    e("buffer_store_dword %s, v1, %s, s3 offen" % (v(vSt), sr(sWS,4)))

def srd(e, base, ptr, nbytes):
    e("s_mov_b32 %s, %s" % (s(base), s(ptr)))
    e("s_and_b32 %s, %s, 0xffff" % (s(base+1), s(ptr+1)))
    e("s_mov_b32 %s, %d" % (s(base+2), nbytes))
    e("s_mov_b32 %s, 0x20000" % s(base+3))

def check_flags(e, mask, val, oklab, rare=""):
    e("v_cmp_eq_u32 vcc, %s, %s%s" % (s(sNonce), v(val), rare))
    e("s_nop 3" + rare)
    e("s_and_b32 %s, vcc_lo, 0x%x%s" % (s(sT0), mask, rare))
    e("s_cmp_eq_u32 %s, 0x%x%s" % (s(sT0), mask, rare))
    e("s_cbranch_scc1 %s%s" % (oklab, rare))
def spin_flags(e, tag, mask, vtmp, have_first=None):
    R = " ; rare"
    if have_first is not None: check_flags(e, mask, have_first, "L_ok_%s" % tag)
    e("s_mov_b32 %s, 0" % s(sT1) + R)
    e("v_lshlrev_b32 %s, 2, %s" % (v(vtmp+1), v(vLane)) + R)
    e.lab("L_spin_%s" % tag)
    e("buffer_load_dword %s, %s, %s, %s offen sc1" % (v(vtmp), v(vtmp+1), sr(sWS,4), s(sFL)) + R)
    e("s_waitcnt vmcnt(0)" + R)
    check_flags(e, mask, vtmp, "L_ok_%s" % tag, R)
    e("s_sleep %d" % FSLEEP + R)
    e("s_add_u32 %s, %s, 1" % (s(sT1), s(sT1)) + R)
    e("s_cmp_lt_u32 %s, %d" % (s(sT1), SPIN_MAX) + R)
    e("s_cbranch_scc1 L_spin_%s" % tag + R)
    e.lab("L_ok_%s" % tag)
def get_nonce(e, tag, vtmp, have_first=None):
    R = " ; rare"
    if have_first is not None:
        e("v_readfirstlane_b32 %s, %s" % (s(sNonce), v(have_first)))
        e("s_nop 3")
        e("s_cmp_lg_u32 %s, 0" % s(sNonce))
        e("s_cbranch_scc1 L_nok_%s" % tag)
    e("s_mov_b32 %s, 0" % s(sT1) + R)
    e("v_mov_b32 %s, 0" % v(vtmp+1) + R)
    e.lab("L_nspin_%s" % tag)
    e("buffer_load_dword %s, %s, %s, 0 offen sc1" % (v(vtmp), v(vtmp+1), sr(sDBG,4)) + R)
    e("s_waitcnt vmcnt(0)" + R)
    e("v_readfirstlane_b32 %s, %s" % (s(sNonce), v(vtmp)) + R)
    e("s_nop 3" + R)
    e("s_cmp_lg_u32 %s, 0" % s(sNonce) + R)
    e("s_cbranch_scc1 L_nok_%s" % tag + R)
    e("s_sleep 8" + R)
    e("s_add_u32 %s, %s, 1" % (s(sT1), s(sT1)) + R)
    e("s_cmp_lt_u32 %s, %d" % (s(sT1), SPIN_MAX) + R)
    e("s_cbranch_scc1 L_nspin_%s" % tag + R)
    e.lab("L_nok_%s" % tag)
def signal_rb(e, tag, word_sgpr_expr):
    e("s_cmp_lg_u32 %s, 0" % s(sWave))
    e("s_cbranch_scc1 L_nosig_%s" % tag)
    R = " ; rare"
    e("s_and_b32 %s, %s, 1" % (s(sT0), s(sRB)) + R)
    e("s_lshl_b32 %s, %s, 4" % (s(sT0), s(sT0)) + R)
    e("v_add_u32 v1, %s, %s" % (s(sT0), v(vLane)) + R)
    e("v_lshlrev_b32 v1, 3, v1" + R)
    e("s_lshr_b32 %s, %s, 1" % (s(sT0), s(sRB)) + R)
    e("v_add_u32 v1, %s, v1" % s(sT0) + R)
    e("v_lshlrev_b32 v1, 7, v1" + R)
    e("s_lshl_b32 %s, %s, 2" % (s(sT0), s(sSig)) + R)
    e("s_add_u32 %s, %s, %d" % (s(sT0), s(sT0), FLAG_OFF) + R)
    e("v_mov_b32 v2, %s" % s(sNonce) + R)
    e("s_mov_b32 exec_lo, 0xffff" + R); e("s_mov_b32 exec_hi, 0" + R)
    e("buffer_store_dword v2, v1, %s, %s offen sc1" % (sr(sWS,4), s(sT0)) + R)
    e("s_mov_b64 exec, -1" + R)
    e.lab("L_nosig_%s" % tag)

class Cfg: pass

def chunk_body(cfg, dma, last=False, rolled_tag=None, closing_vm=None, first_vm=None):
    NT = cfg.ntile; NF = 2*NT; R = cfg.ring; L = cfg.look; TAIL = cfg.tail
    assert NF % R == 0
    wreg = lambda f: cfg.wbase + (f % R)*4
    def wreads(f):
        kh, c = divmod(f % NF, NT); return cfg.wread(kh, c, wreg(f))
    def mf(f):
        kh, c = divmod(f % NF, NT); return cfg.mf(kh, c, wreg(f))
    NFIRST = cfg.nfirst
    items = []
    for f in range(0, NF - TAIL):
        g = f + L
        rd = wreads(g) if NFIRST <= g < NF else []
        if f == cfg.xread1_at: rd = rd + cfg.xreads(1)
        ms = []
        if f == 0 and "nostats" not in OPTS: ms += cfg.stats(0)
        if f == NT and "nostats" not in OPTS: ms += cfg.stats(1)
        ms += mf(f)
        items.append((rd, ms))
    issued = set(range(NFIRST)) | {f + L for f in range(0, NF - TAIL) if NFIRST <= f + L < NF}
    assert issued == set(range(NF)), (sorted(set(range(NF)) - issued))
    nm = sum(len(m) for _, m in items)
    out = []
    nd = len(dma)
    st = cfg.dma_start + cfg.dma_skew; en = nm - cfg.dma_endgap
    pos = [st + (en - st)*i // max(nd, 1) for i in range(nd)]
    cnt = 0; di = 0
    for rd, ms in items:
        rq = list(rd)
        for k, m in enumerate(ms):
            if rq:
                take = (len(rq) + (len(ms) - k) - 1) // (len(ms) - k)
                for _ in range(take): out.append(rq.pop(0))
            out.append(m); cnt += 1
            while di < nd and pos[di] <= cnt:
                out += dma[di]; di += 1
    assert di == nd
    if closing_vm is None: out.append("s_waitcnt lgkmcnt(0)")
    elif first_vm is not None:
        out.append("s_cmp_eq_u32 %s, 0" % s(sIter))
        out.append("s_cbranch_scc1 L_first_%s" % rolled_tag)
        out.append("s_waitcnt vmcnt(%d) lgkmcnt(0)" % closing_vm)
        out.append("L_join_%s:" % rolled_tag)
    else: out.append("s_waitcnt vmcnt(%d) lgkmcnt(0)" % closing_vm)
    out.append("s_barrier")
    aux = []
    if not last:
        aux += cfg.addr_update + cfg.xreads(0)
        for f in range(NFIRST): aux += wreads(f)
    if rolled_tag: aux += cfg.scal_update
    tail = []
    for f in range(NF - TAIL, NF): tail += mf(f)
    per = -(-len(aux) // max(len(tail), 1))
    for m in tail:
        out.append(m)
        for _ in range(per):
            if aux: out.append(aux.pop(0))
    out += aux
    if rolled_tag:
        out.append("s_cbranch_scc1 L_loop_%s" % rolled_tag)
    return ["  ; lgextra 2"] + [t if t.endswith(":") else "  " + t for t in out] + ["  ; lgextra 0"]

sCp, sCm = 94, 95
def scal_update(slot, wstep, halo=False):
    t = []
    if "rotk" in OPTS:
        t.append("s_add_u32 %s, %s, 1" % (s(sKC), s(sKC)))
        t.append("s_cmp_eq_u32 %s, 10" % s(sKC))
        t.append("s_cselect_b32 %s, 0, %s" % (s(sKC), s(sKC)))
        t.append("s_lshl_b32 %s, %s, 7" % (s(sSoX), s(sKC)))
        t.append("s_mul_i32 %s, %s, %d" % (s(sSoW), s(sKC), wstep))
    else:
        t.append("s_add_u32 %s, %s, 128" % (s(sSoX), s(sSoX)))
        t.append("s_add_u32 %s, %s, %d" % (s(sSoW), s(sSoW), wstep))
    t.append("s_cmp_eq_u32 %s, %d" % (s(sDSlot), 2*slot))
    t.append("s_cselect_b32 %s, %s, %s" % (s(sRDelta), s(sCm), s(sCp)))
    t.append("s_add_u32 %s, %s, %s" % (s(sDSlot), s(sDSlot), s(sRDelta)))
    t.append("s_add_u32 %s, %s, 1" % (s(sIter), s(sIter)))
    t.append("s_cmp_lt_u32 %s, 8" % s(sIter))
    return t
def addr_update(slot, regs):
    t = []
    t.append("s_cmp_eq_u32 %s, %d" % (s(sDSlot), slot))
    t.append("s_cselect_b32 %s, %s, %s" % (s(sRDelta), s(sCm), s(sCp)))
    for r in regs: t.append("v_add_u32 %s, %s, %s" % (v(r), s(sRDelta), v(r)))
    return t

vL16, vL16b = 241, 245
def w2_soff(p, dst):
    if p < 14: return ["s_mul_i32 %s, %s, 5" % (s(dst), s(sKQ[p])), "s_add_u32 %s, %s, %s" % (s(dst), s(dst), s(sWB))]
    return ["s_mul_i32 %s, %s, 5120" % (s(dst), s(sWave)), "s_add_u32 %s, %s, %s" % (s(dst), s(dst), s(sWB)),
            "s_add_u32 %s, %s, %d" % (s(dst), s(dst), 4*(p-14)*5120)]
def w2l_groups(q0, q1):
    G = []
    for q in range(q0, q1):
        p, ct = divmod(q, 5)
        g = []
        if ct == 0 or q == q0: g += w2_soff(p, sP0)
        g.append("s_add_u32 m0, %s, %d" % (s(sLA if q < 12 else sLB), (q if q < 12 else q - 12)*1024))
        g.append("s_add_u32 %s, %s, %d" % (s(sP1), s(sP0), ct*1024))
        g.append("buffer_load_dwordx4 %s, %s, %s offen sc1 lds" % (v(vL16), sr(sWS,4), s(sP1)))
        G.append(g)
    return G
def w2a_groups(p0, p1):
    G = []
    for p in range(p0, p1):
        base = ((p - 5) % 12)*20
        for ct in range(5):
            g = []
            if ct == 0: g += w2_soff(p, sP0)
            if ct < 4: g.append("buffer_load_dwordx4 %s, %s, %s, %s offen offset:%d sc1" % (ar(base+4*ct,4), v(vL16), sr(sWS,4), s(sP0), ct*1024))
            else:      g.append("buffer_load_dwordx4 %s, %s, %s, %s offen sc1" % (ar(base+16,4), v(vL16b), sr(sWS,4), s(sP0)))
            G.append(g)
    return G
def ph2_setup(e, slot):
    e("s_and_b32 %s, s2, 7" % s(sT0))
    e("s_lshr_b32 %s, s2, 3" % s(sT1))
    e("s_lshr_b32 %s, %s, 3" % (s(sTB), s(sT1)))
    e("s_lshl_b32 %s, %s, 2" % (s(sT0), s(sT0)))
    e("s_add_u32 %s, %s, %s" % (s(sTB), s(sTB), s(sT0)))
    e("s_and_b32 %s, %s, 7" % (s(sC2), s(sT1)))
    e("s_lshr_b32 %s, %s, 1" % (s(sRB2), s(sTB)))
    e("s_lshl_b32 %s, %s, 2" % (s(sRB2), s(sRB2)))
    e("s_mul_i32 %s, %s, %d" % (s(sWB), s(sC2), W2F_CB))
    e("s_add_u32 %s, %s, %d" % (s(sWB), s(sWB), W2F_OFF))
    e("s_mul_i32 %s, %s, %d" % (s(sAB), s(sTB), ACT_TB))
    if ACT_OFF: e("s_add_u32 %s, %s, %d" % (s(sAB), s(sAB), ACT_OFF))
    e("s_mul_i32 %s, %s, 12288" % (s(sLA), s(sWave)))
    e("s_add_u32 %s, %s, %d" % (s(sLA), s(sLA), slot))
    e("s_mul_i32 %s, %s, 13312" % (s(sLB), s(sWave)))
    e("s_add_u32 %s, %s, %d" % (s(sLB), s(sLB), 2*slot))
    e("s_mul_i32 %s, %s, 7" % (s(sT0), s(sC2)))
    e("s_lshr_b32 %s, %s, 2" % (s(sT0), s(sT0)))
    e("s_and_b32 %s, %s, 3" % (s(sT1), s(sTB)))
    e("s_mul_i32 %s, %s, 7" % (s(sT1), s(sT1)))
    e("s_lshr_b32 %s, %s, 1" % (s(sT1), s(sT1)))
    e("s_add_u32 %s, %s, %s" % (s(sT0), s(sT0), s(sT1)))
    e("s_sub_u32 %s, %s, 14" % (s(sT1), s(sT0)))
    e("s_cmp_ge_u32 %s, 14" % s(sT0))
    e("s_cselect_b32 %s, %s, %s" % (s(sT0), s(sT1), s(sT0)))
    e("s_lshl_b32 %s, %s, 2" % (s(sT0), s(sT0)))
    e("s_add_u32 %s, %s, %s" % (s(sT0), s(sT0), s(sWave)))
    e("s_add_u32 %s, %s, 20" % (s(sT0), s(sT0)))
    for p in range(14):
        e("s_lshl_b32 %s, %s, 10" % (s(sKQ[p]), s(sT0)))
        e("s_cmp_ge_u32 %s, %d" % (s(sT0), NKS))
        e("s_cselect_b32 %s, 0x10000000, %s" % (s(sKQ[p]), s(sKQ[p])))
        if p < 13:
            e("s_add_u32 %s, %s, 4" % (s(sT0), s(sT0)))
            e("s_sub_u32 %s, %s, 56" % (s(sT1), s(sT0)))
            e("s_cmp_ge_u32 %s, 76" % s(sT0))
            e("s_cselect_b32 %s, %s, %s" % (s(sT0), s(sT1), s(sT0)))
    e("v_add_u32 %s, 4096, %s" % (v(vL16b), v(vL16)))
    e("s_lshl_b32 %s, s2, 7" % s(sFL))
    e("s_add_u32 %s, %s, %d" % (s(sFL), s(sFL), FLAG_OFF))

vZero = 249

A_SLOT = 53248; A_XB = 18432; A_WPAIR = 1088
A_XJ = [[0,1,2,3,4],[5,6,7,8,9],[10,11,12,13],[14,15,16,17]]
vWA, vX0, vX1 = 160, 161, 162
vXE, vXOd, vWL = 163, 164, 165
aW, aXF, aONE = 0, 40, 64
def acc_own(T, c): return (T*15 + c)*4
def acc_halo(eidx): return 120 + eidx*4
vSumT = [136, 140]; vSqT = [144, 148]; vSumH, vSqH = 152, 156
def xf(kh, T): return aXF + (kh*3 + T)*4

def x_lane_setup(e, vE, vO):
    e("v_lshrrev_b32 v1, 3, %s" % v(vLane))
    e("v_and_b32 v2, 7, %s" % v(vLane))
    e("v_lshrrev_b32 v3, 4, %s" % v(vLane))
    e("v_mul_u32_u24 v4, 1280, v1")
    e("v_xor_b32 v5, v2, v3")
    e("v_lshl_add_u32 %s, v5, 4, v4" % v(vE))
    e("v_xor_b32 %s, 64, %s" % (v(vO), v(vE)))

def attn_lane_setup(e):
    x_lane_setup(e, vXE, vXOd)
    e("v_cmp_le_u32 vcc, 30, %s" % v(vLane))
    e("v_mov_b32 v9, 0x40000000")
    e("v_cndmask_b32_e64 v6, 0, 1, vcc")
    e("v_cmp_le_u32 vcc, 60, %s" % v(vLane))
    e("v_mul_u32_u24 v7, 30, v6")
    e("v_sub_u32 v7, %s, v7" % v(vLane))
    e("v_mul_u32_u24 v8, 26, v7")
    e("v_lshrrev_b32 v8, 8, v8")
    e("v_mul_u32_u24 v8, 1120, v8")
    e("v_mul_u32_u24 v6, 3840, v6")
    e("v_lshlrev_b32 v7, 4, v7")
    e("v_add3_u32 v6, v6, v7, v8")
    e("s_mul_i32 %s, %s, 160" % (s(sT0), s(sCB)))
    e("v_add_u32 v6, %s, v6" % s(sT0))
    e("v_cndmask_b32_e64 %s, v6, v9, vcc" % v(vWL))

vDO = 166
def attn_dma_list(w):
    L = []
    for grp in ([[0,1],[2,3,4]], [[5,6,7,8],[9]], [[10,11,12,13]], [[14,15,16,17]])[w]:
        for m, j in enumerate(grp):
            imm = m*1024
            L.append(("x", j*1024 if m == 0 else None, imm, vXOd if j & 1 else vXE, (j*8*1280 if j < 2 else (j-2)*8*1280) - imm, j < 2, w == 0 and j == 0))
    kh = w >> 1; rd = w & 1
    for m in range(8):
        k = 32*kh + 8*(m >> 1) + 4*rd + 2*(m & 1)
        L.append(("w", A_XB + (8*w + m)*A_WPAIR if m % 4 == 0 else None, (m & 3)*A_WPAIR, vWL, k*3840 - (m & 3)*A_WPAIR, False, False))
    return L
def ffn_dma_list(w):
    L = []
    for m in range(4):
        j = 4*w + m
        L.append(("x", 4*w*1024 if m == 0 else None, m*1024, fXOd if j & 1 else fXE, j*8*1280 - m*1024, False, False))
    for m in range(8):
        kh, grp = m >> 2, m & 3
        k = 32*kh + 16*(grp & 1) + 4*(grp >> 1)
        L.append(("w", F_XB + w*8192 + m*1024 if m % 4 == 0 else None, (m & 3)*1024, fWL, k*3456 + w*128 - (m & 3)*1024, False, False))
    return L
def dma_groups_salu(L):
    G = []; tmp = [sD0, sD1]
    for n, (kind, m0c, imm, lane, uc, halo, mask) in enumerate(L):
        g = []; t = tmp[n & 1]
        if m0c is not None: g.append("s_add_u32 m0, %s, %d" % (s(sDSlot), m0c))
        if kind == "x":
            g.append("s_add_u32 %s, %s, %s" % (s(t), s(sSoX), s(sXH if halo else sXO)))
            if uc: g.append("s_add_u32 %s, %s, %d" % (s(t), s(t), uc))
        else: g.append("s_add_u32 %s, %s, %d" % (s(t), s(sSoW), uc))
        if mask: g.append("s_mov_b32 exec_lo, 0xffffff00")
        g.append("buffer_load_dwordx4 %s, %s, %s offen offset:%d lds" % (v(lane), sr(sX if kind == "x" else sW,4), s(t), imm))
        if mask: g.append("s_mov_b32 exec_lo, -1")
        G.append(g)
    return G
def dma_offsets_setup(e, L, base):
    for n, (kind, m0c, imm, lane, uc, halo, mask) in enumerate(L):
        if kind == "x":
            e("s_add_u32 %s, %s, %d" % (s(sD0), s(sXH if halo else sXO), uc))
            e("v_add_u32 %s, %s, %s" % (v(base+n), s(sD0), v(lane)))
        else:
            e("v_add_u32 %s, %d, %s" % (v(base+n), uc, v(lane)))
def dma_groups_vgpr(L, base):
    G = []
    for n, (kind, m0c, imm, lane, uc, halo, mask) in enumerate(L):
        g = []
        if m0c is not None:
            m0 = "s_add_u32 m0, %s, %d" % (s(sDSlot), m0c)
            if G: G[-1].append(m0)
            else: G.append([m0])
        if mask: g.append("s_mov_b32 exec_lo, 0xffffff00")
        g.append("buffer_load_dwordx4 %s, %s, %s offen offset:%d lds" % (v(base+n), sr(sX if kind == "x" else sW,4), s(sSoX if kind == "x" else sSoW), imm))
        if mask: g.append("s_mov_b32 exec_lo, -1")
        G.append(g)
    return G

def attn_cfg(w):
    cfg = Cfg()
    cfg.ntile = 15; cfg.ring = 10; cfg.look = 6; cfg.tail = 4; cfg.nfirst = 6; cfg.wbase = aW
    H = [c for c in range(15) if c % 4 == w]
    def wread(kh, c, reg):
        off = kh*16*A_WPAIR + 32*c
        return ["ds_read_b64_tr_b16 %s, %s offset:%d" % (ar(reg,2), v(vWA), off),
                "ds_read_b64_tr_b16 %s, %s offset:%d" % (ar(reg+2,2), v(vWA), off + 8*A_WPAIR)]
    def mf(kh, c, reg):
        out = []
        for T in (0, 1):
            d = vr(acc_own(T, c), 4)
            if c < 10: out.append("%s %s, %s, %s, %s" % (MFMA, d, ar(reg,4), ar(xf(kh,T),4), d))
            else:      out.append("%s %s, %s, %s, %s" % (MFMA, d, ar(xf(kh,T),4), ar(reg,4), d))
        if c in H and "nohalo" not in OPTS:
            d = vr(acc_halo(c >> 2), 4)
            if c < 10: out.append("%s %s, %s, %s, %s" % (MFMA, d, ar(reg,4), ar(xf(kh,2),4), d))
            else:      out.append("%s %s, %s, %s, %s" % (MFMA, d, ar(xf(kh,2),4), ar(reg,4), d))
        return out
    def stats(kh):
        out = []
        for T in (0, 1):
            out.append("%s %s, %s, %s, %s" % (MFMA, vr(vSumT[T],4), ar(aONE,4), ar(xf(kh,T),4), vr(vSumT[T],4)))
            out.append("%s %s, %s, %s, %s" % (MFMA, vr(vSqT[T],4), ar(xf(kh,T),4), ar(xf(kh,T),4), vr(vSqT[T],4)))
        if w == 3:
            out.append("%s %s, %s, %s, %s" % (MFMA, vr(vSumH,4), ar(aONE,4), ar(xf(kh,2),4), vr(vSumH,4)))
            out.append("%s %s, %s, %s, %s" % (MFMA, vr(vSqH,4), ar(xf(kh,2),4), ar(xf(kh,2),4), vr(vSqH,4)))
        return out
    def xreads(kh):
        ad = vX1 if kh else vX0
        return ["ds_read_b128 %s, %s offset:%d" % (ar(xf(kh,0),4), v(ad), (1+2*w)*2048),
                "ds_read_b128 %s, %s offset:%d" % (ar(xf(kh,1),4), v(ad), (2+2*w)*2048),
                "ds_read_b128 %s, %s offset:%d" % (ar(xf(kh,2),4), v(ad), 0)]
    cfg.wread = wread; cfg.mf = mf; cfg.stats = stats; cfg.xreads = xreads
    cfg.xread1_at = 4
    cfg.addr_update = addr_update(A_SLOT, [vWA, vX0, vX1])
    cfg.scal_update = scal_update(A_SLOT, 64*3840, halo=(w == 0))
    cfg.dma_start = 2; cfg.dma_skew = w; cfg.dma_endgap = 8
    cfg.wstep = 64*3840; cfg.slot = A_SLOT
    return cfg

def xaddr_setup(e, X0, X1, base):
    e("v_and_b32 v1, 15, %s" % v(vLane))
    e("v_lshrrev_b32 v4, 4, %s" % v(vLane))
    e("v_lshrrev_b32 v2, 1, v1")
    e("v_xor_b32 v2, v2, v4")
    e("v_lshlrev_b32 v2, 4, v2")
    e("v_lshl_add_u32 v2, v1, 7, v2")
    e("v_add_u32 %s, %d, v2" % (v(X0), base))
    e("v_xor_b32 v2, 64, v2")
    e("v_add_u32 %s, %d, v2" % (v(X1), base))

def read_addr_setup_attn(e):
    e("v_and_b32 v1, 15, %s" % v(vLane))
    e("v_lshrrev_b32 v2, 2, v1")
    e("v_and_b32 v3, 3, v1")
    e("v_lshrrev_b32 v4, 4, %s" % v(vLane))
    e("v_lshrrev_b32 v5, 1, v2")
    e("v_lshl_add_u32 v5, v4, 1, v5")
    e("v_mul_u32_u24 v5, %d, v5" % A_WPAIR)
    e("v_and_b32 v2, 1, v2")
    e("v_mul_u32_u24 v2, 480, v2")
    e("v_lshlrev_b32 v3, 3, v3")
    e("v_add3_u32 v5, v5, v2, v3")
    e("v_add_u32 %s, %d, v5" % (v(vWA), A_XB))
    xaddr_setup(e, vX0, vX1, 0)

sSzO, sSz2 = 69, 70
sQ = 72
vPFo, vPFd = 182, 183
def coop_setup(e, w):
    e("s_lshr_b32 %s, s2, 3" % s(sT0)); e("s_sub_u32 %s, %s, 16" % (s(sT0), s(sT0)))
    e("s_and_b32 %s, s2, 1" % s(sT1))
    e("s_and_b32 %s, s2, 7" % s(sT2)); e("s_lshr_b32 %s, %s, 1" % (s(sT2), s(sT2)))
    e("v_mov_b32 v3, 0x40000000")
    if w < 2:
        e("s_mul_i32 %s, %s, 75" % (s(sT0), s(sT0)))
        e("s_lshl_b32 %s, %s, 10" % (s(sT1), s(sT1)))
        e("s_add_u32 %s, %s, %s" % (s(sT0), s(sT0), s(sT1)))
        e("s_add_u32 %s, %s, %d" % (s(sT0), s(sT0), (38*w - 16) & 0xffffffff))
        e("v_add_u32 v1, %s, %s" % (s(sT0), v(vLane)))
        e("v_max_i32 v1, 0, v1")
        e("v_mul_u32_u24 v1, 1280, v1")
        e("v_cmp_gt_u32 vcc, 38, %s" % v(vLane))
    elif w == 2:
        e("s_mul_i32 %s, %s, 42" % (s(sT0), s(sT0)))
        e("v_add_u32 v1, %s, %s" % (s(sT0), v(vLane)))
        e("v_mul_u32_u24 v2, 7282, v1"); e("v_lshrrev_b32 v2, 16, v2")
        e("v_mul_u32_u24 v4, 9, v2"); e("v_sub_u32 v4, v1, v4")
        e("v_mul_u32_u24 v5, 86, v4"); e("v_lshrrev_b32 v5, 8, v5")
        e("v_mul_u32_u24 v6, 3, v5"); e("v_sub_u32 v6, v4, v6")
        e("s_mul_i32 %s, %s, 320" % (s(sT2), s(sT2))); e("s_lshr_b32 %s, %s, 7" % (s(sT2), s(sT2)))
        e("v_add_u32 v6, %s, v6" % s(sT2))
        e("v_mul_u32_u24 v1, 3840, v2"); e("v_mul_u32_u24 v5, 1280, v5")
        e("v_lshl_add_u32 v1, v6, 7, v1"); e("v_add_u32 v1, v1, v5")
        e("v_cmp_gt_u32 vcc, 42, %s" % v(vLane))
    else:
        e("s_mul_i32 %s, %s, 55" % (s(sT0), s(sT0)))
        e("v_add_u32 v1, %s, %s" % (s(sT0), v(vLane)))
        e("v_mul_u32_u24 v2, 5462, v1"); e("v_lshrrev_b32 v2, 16, v2")
        e("v_mul_u32_u24 v4, 12, v2"); e("v_sub_u32 v4, v1, v4")
        e("s_mul_i32 %s, %s, 14" % (s(sT2), s(sT2))); e("s_lshr_b32 %s, %s, 3" % (s(sT2), s(sT2))); e("s_lshl_b32 %s, %s, 2" % (s(sT2), s(sT2)))
        e("v_add_u32 v4, %s, v4" % s(sT2))
        e("v_mul_u32_u24 v1, 3456, v2"); e("v_lshl_add_u32 v1, v4, 7, v1")
        e("v_cmp_gt_u32 vcc, 55, %s" % v(vLane))
    e("v_cndmask_b32_e64 %s, v3, v1, vcc" % v(vPFo))
COOP_D = 4
sSoQ = 44
def coop_load(w, extra_chunks):
    if w < 2: return ["buffer_load_dword %s, %s, %s, %s offen offset:%d ; rare" % (v(vPFd), v(vPFo), sr(sX,4), s(sSoX), 128*extra_chunks)]
    st_ = 64*3840 if w == 2 else 64*3456
    return ["s_add_u32 %s, %s, %d" % (s(sD1), s(sSoQ if w == 2 else sSoW), extra_chunks*st_),
            "buffer_load_dword %s, %s, %s, %s offen ; rare" % (v(vPFd), v(vPFo), sr(sQ if w == 2 else sW,4), s(sD1))]
def zero_acc(e, n):
    for i in range(4): e("v_mov_b32 %s, 0" % v(246 if False else 232+i))
    k = 0
    while k + 16 <= n:
        e("v_mfma_f32_32x32x16_bf16 %s, v[232:235], v[232:235], 0" % vr(k,16)); k += 16
    while k < n:
        e("v_mov_b32 %s, 0" % v(k)); k += 1
def role_main(e, tag, cfg, L, dobase, w, zero_n, extra_pre=None, units=False):
    wstep, slot = cfg.wstep, cfg.slot
    nd = len(L)
    coop = tag.startswith("ffn") and "coop" in OPTS
    def set_soff():
        e("s_lshl_b32 %s, %s, 7" % (s(sSoX), s(sKC)))
        e("s_mul_i32 %s, %s, %d" % (s(sSoW), s(sKC), wstep))
    def adv():
        e("s_add_u32 %s, %s, 1" % (s(sKC), s(sKC)))
        if "rotk" in OPTS:
            e("s_cmp_eq_u32 %s, 10" % s(sKC))
            e("s_cselect_b32 %s, 0, %s" % (s(sKC), s(sKC)))
    set_soff()
    e("s_mov_b32 %s, 0" % s(sDSlot))
    for g in dma_groups_salu(L): e.ext(g)
    stamp(e, 1)
    e("v_lshlrev_b32 %s, 4, %s" % (v(vL16), v(vLane)))
    if units:
        unit_setup_dyn(e)
        e("s_mov_b32 %s, %d" % (s(sSzO), WO_BYTES)); e("s_mov_b32 %s, %d" % (s(sSz2), W2_BYTES))
        e("s_mov_b32 %s, %d" % (s(sUl), 3*slot))
        unit_loads_dyn(e)
    adv(); set_soff()
    e("s_mov_b32 %s, %d" % (s(sDSlot), slot))
    for g in dma_groups_salu(L): e.ext(g)
    npre = 0
    if coop:
        coop_setup(e, w)
        if w == 2: e("s_mov_b32 %s, %d" % (s(sSoQ), 64*3840))
        for x in range(1, COOP_D + 1):
            e.ext(coop_load(w, x)); npre += 1
    if extra_pre: extra_pre(e)
    dma_offsets_setup(e, L, dobase)
    zero_acc(e, zero_n)
    e("v_mov_b32 v254, 0x3f803f80")
    for i in range(4): e("v_accvgpr_write_b32 %s, v254" % a(aONE+i))
    e("v_mov_b32 %s, 0" % v(vZero))
    ph2_setup(e, slot)
    adv(); set_soff()
    e("s_mov_b32 %s, %d" % (s(sDSlot), 2*slot))
    e("s_mov_b32 %s, %d" % (s(sCp), slot))
    e("s_mov_b32 %s, %d" % (s(sCm), (-2*slot) & 0xffffffff))
    e("s_mov_b32 %s, 0" % s(sIter))
    if coop and w == 2: e("s_mov_b32 %s, %d" % (s(sSoQ), 2*64*3840))
    stamp(e, 2)
    e("s_waitcnt vmcnt(%d) lgkmcnt(0)" % (nd + npre))
    e("s_barrier")
    stamp(e, 3)
    R = cfg.ring
    e.ext(cfg.xreads(0))
    for f in range(cfg.nfirst):
        e.ext(cfg.wread(0, f, cfg.wbase + (f % R)*4))
    dma = dma_groups_vgpr(L, dobase)
    if "nopoll" not in OPTS:
        pg = ["s_cmp_lg_u32 %s, 6 ; rare" % s(sIter), "s_cbranch_scc0 L_pp_%s ; rare" % tag, "L_np_%s:" % tag]
        side = ["L_pp_%s:" % tag, "  buffer_load_dwordx2 %s, %s, %s, 0 offen sc1 ; rare" % (vr(vNon,2), v(vZero), sr(sDBG,4)), "  s_branch L_np_%s ; rare" % tag]
        if units:
            us = E(); unit_store_dyn(us, 216, full_wait=True)
            pg += ["s_cmp_lg_u32 %s, 1 ; rare" % s(sIter), "s_cbranch_scc0 L_pu_%s ; rare" % tag, "L_nu_%s:" % tag]
            side += ["L_pu_%s:" % tag] + us.L + ["  s_branch L_nu_%s" % tag]
        if units and w == 0:
            sg = E(); signal_count(sg, CNT_P)
            pg += ["s_cmp_lg_u32 %s, 3 ; rare" % s(sIter), "s_cbranch_scc0 L_ps_%s ; rare" % tag, "L_ns_%s:" % tag]
            side += ["L_ps_%s:" % tag] + sg.L + ["  s_branch L_ns_%s ; rare" % tag]
        dma = [pg] + dma
    else: side = []
    ncl = nd
    if coop:
        g = coop_load(w, COOP_D)
        if w == 2: g.append("s_add_u32 %s, %s, %d" % (s(sSoQ), s(sSoQ), 64*3840))
        dma = dma + [g]; ncl = nd + 2
    if "nodma" in OPTS: dma = []
    first_vm = None
    if coop:
        first_vm = min(63, nd + 1 + npre)
        side += ["L_first_%s:" % tag, "  s_waitcnt vmcnt(%d) lgkmcnt(0) ; rare" % first_vm, "  s_branch L_join_%s ; rare" % tag]
    body = chunk_body(cfg, dma, rolled_tag=tag, closing_vm=ncl if "nodma" not in OPTS else 0, first_vm=first_vm)
    post = E()
    stamp(post, 4)
    if "nopoll" not in OPTS:
        get_nonce(post, tag, 250, have_first=vNon)
        spin_count(post, "p_" + tag, CNT_P, N_P, 250, have_first=vNon+1)
    if "ph1only" in OPTS:
        post.ext(chunk_body(cfg, [], closing_vm=0))
        post.ext(chunk_body(cfg, [], last=True, closing_vm=None))
    else:
        post.ext(chunk_body(cfg, w2l_groups(0, 12), closing_vm=12))
        post.ext(chunk_body(cfg, w2l_groups(12, 25), last=True, closing_vm=None))
    stamp(post, 5)
    return body, post, side

A_ND = [13, 13, 12, 12]

X_CS = 0
X_NM = 1024
X_RS = 2048
X_EX = 4096
vQp = 160
vKA, vKB, vKP = 180, 190, 200
vVp = 210
NEG = 0xf149f2ca
def stats_finalize(e, vsum, vsq, vt, out_nm, out_rs, out_std, smask):
    e("v_cndmask_b32_e64 %s, 0, %s, %s" % (v(vt), v(vsq+0), sr(smask,2)))
    for r in (1,2,3):
        e("v_cndmask_b32_e64 %s, %s, %s, %s" % (v(vt), v(vt), v(vsq+r), sr(smask+2*r,2)))
    e("v_mov_b32 %s, %s" % (v(vt+1), v(vt)))
    e("v_permlane32_swap_b32 %s, %s" % (v(vt), v(vt+1)))
    e("v_add_f32 %s, %s, %s" % (v(vt), v(vt), v(vt+1)))
    e("v_mov_b32 %s, %s" % (v(vt+1), v(vt)))
    e("v_permlane16_swap_b32 %s, %s" % (v(vt), v(vt+1)))
    e("v_add_f32 %s, %s, %s" % (v(vt), v(vt), v(vt+1)))
    e("v_mul_f32 %s, 0x%08x, %s" % (v(out_nm), f2u(-1.0/640), v(vsum)))
    e("v_mul_f32 %s, 0x%08x, %s" % (v(vt), f2u(1.0/640), v(vt)))
    e("v_fma_f32 %s, -%s, %s, %s" % (v(vt), v(out_nm), v(out_nm), v(vt)))
    e("v_max_f32 %s, 0, %s" % (v(vt), v(vt)))
    e("v_add_f32 %s, 0x%08x, %s" % (v(vt), f2u(1e-5), v(vt)))
    e("v_rsq_f32 %s, %s" % (v(out_rs), v(vt)))
    if out_std is not None:
        e("v_mul_f32 %s, %s, %s" % (v(out_std), v(vt), v(out_rs)))


def attn_epilogue(w, e):
    H = [c for c in range(15) if c % 4 == w]
    tNM = [240, 242]; tRS = [244, 246]
    tSTD = [248, 249]
    vt = 250
    smask = sM
    for r in range(4):
        e("s_mov_b32 %s, 0x%08x" % (s(smask+2*r), 0x00100001 << r))
        e("s_mov_b32 %s, 0x%08x" % (s(smask+2*r+1), 0x10000100 << r))
    e("v_and_b32 v253, 15, %s" % v(vLane))
    e("v_lshlrev_b32 v253, 2, v253")
    for T in (0, 1):
        stats_finalize(e, vSumT[T], vSqT[T], vt, tNM[T], tRS[T], tSTD[T], smask)
        e("ds_write_b32 v253, %s offset:%d" % (v(tNM[T]), X_NM + (1+2*w+T)*64))
        e("ds_write_b32 v253, %s offset:%d" % (v(tRS[T]), X_RS + (1+2*w+T)*64))
    if w == 3:
        stats_finalize(e, vSumH, vSqH, vt, 136, 137, None, smask)
        e("ds_write_b32 v253, v136 offset:%d" % (X_NM))
        e("ds_write_b32 v253, v137 offset:%d" % (X_RS))
    e("s_cmp_lg_u32 %s, 0" % s(sCB))
    e("s_cbranch_scc1 L_nors_%d" % w)
    e("s_lshl_b32 %s, %s, 9" % (s(sT0), s(sRB)))
    e("s_add_u32 %s, %s, %d" % (s(sT0), s(sT0), RSTD_OFF + w*128))
    e("buffer_store_dword %s, v253, %s, %s offen sc1 ; rare" % (v(tRS[0]), sr(sWS,4), s(sT0)))
    e("buffer_store_dword %s, v253, %s, %s offen offset:64 sc1 ; rare" % (v(tRS[1]), sr(sWS,4), s(sT0)))
    e.lab("L_nors_%d" % w)
    e("v_lshrrev_b32 v252, 4, %s" % v(vLane))
    e("v_lshlrev_b32 v252, 4, v252")
    e("s_mov_b32 exec_lo, 0x00010001"); e("s_mov_b32 exec_hi, 0x00010001")
    for c in H:
        if c < 10: e("ds_write_b128 v252, %s offset:%d" % (vr(acc_halo(c >> 2),4), X_CS + c*64))
    e("s_mov_b32 exec_lo, 0x0000ffff"); e("s_mov_b32 exec_hi, 0")
    for c in H:
        if c >= 10: e("ds_write_b32 v253, %s offset:%d" % (v(acc_halo(c >> 2)), X_CS + c*64))
    e("s_mov_b64 exec, -1")
    e("s_waitcnt lgkmcnt(0)")
    e("s_barrier")
    nm4 = [136, 140]; rs4 = [144, 148]
    for T in (0, 1):
        e("ds_read_b128 %s, v252 offset:%d" % (vr(nm4[T],4), X_NM + (1+2*w+T)*64))
        e("ds_read_b128 %s, v252 offset:%d" % (vr(rs4[T],4), X_RS + (1+2*w+T)*64))
    hK = [c for c in H if 5 <= c < 10]; hV = [c for c in H if c >= 10]
    tHN, tHR = 152, 154
    hn4, hr4 = 156, 236+4
    hr4 = 232
    e("ds_read_b32 %s, v253 offset:%d" % (v(tHN), X_NM))
    e("ds_read_b32 %s, v253 offset:%d" % (v(tHR), X_RS))
    csA, csB = 250, 120
    cs_buf = [236, 0]
    def pkfma_bc(d, s0, sc):
        e("v_pk_fma_f32 %s, %s, %s, %s op_sel_hi:[1,0,1]" % (vr(d,2), vr(s0,2), vr(sc,2), vr(d,2)))
    def pkmul_bc(d, sc):
        e("v_pk_mul_f32 %s, %s, %s op_sel_hi:[1,0]" % (vr(d,2), vr(d,2), vr(sc,2)))
    csr = [224, 228]
    for c in range(10):
        e("ds_read_b128 %s, v252 offset:%d" % (vr(csr[c & 1],4), X_CS + c*64))
        cs4 = csr[c & 1]
        for T in (0, 1):
            d = acc_own(T, c)
            pkfma_bc(d, cs4, tNM[T]); pkfma_bc(d+2, cs4+2, tNM[T])
            if c >= 5:
                pkmul_bc(d, tRS[T]); pkmul_bc(d+2, tRS[T])
            dst = (vQp + T*10 + 2*c) if c < 5 else ((vKA, vKB)[T] + 2*(c-5))
            e("v_cvt_pk_bf16_f32 %s, %s, %s" % (v(dst), v(d), v(d+1)))
            e("v_cvt_pk_bf16_f32 %s, %s, %s" % (v(dst+1), v(d+2), v(d+3)))
        if c in hK:
            d = acc_halo(c >> 2)
            pkfma_bc(d, cs4, tHN); pkfma_bc(d+2, cs4+2, tHN)
            pkmul_bc(d, tHR); pkmul_bc(d+2, tHR)
            e("v_cvt_pk_bf16_f32 %s, %s, %s" % (v(d), v(d), v(d+1)))
            e("v_cvt_pk_bf16_f32 %s, %s, %s" % (v(d+1), v(d+2), v(d+3)))
    e("v_lshlrev_b32 v251, 3, %s" % v(vLane))
    for c in hK:
        e("ds_write_b64 v251, %s offset:%d" % (vr(acc_halo(c >> 2),2), X_EX + (c-5)*512))
    if w < 3:
        for i in range(5):
            e("ds_write_b64 v251, %s offset:%d" % (vr(vKB+2*i,2), X_EX + (w+1)*5120 + i*512))
    hn4, hr4 = 0, 4
    if hV:
        e("ds_read_b128 %s, v252 offset:%d" % (vr(hn4,4), X_NM))
        e("ds_read_b128 %s, v252 offset:%d" % (vr(hr4,4), X_RS))
    csd = 8
    for i in range(5):
        e("ds_read_b32 %s, v253 offset:%d" % (v(csd + 2*i), X_CS + (10+i)*64))
    for i in range(5):
        c = 10 + i
        for T in (0, 1):
            d = acc_own(T, c)
            for h_ in (0, 2):
                e("v_pk_fma_f32 %s, %s, %s, %s op_sel_hi:[1,0,1]" % (vr(d+h_,2), vr(nm4[T]+h_,2), vr(csd+2*i,2), vr(d+h_,2)))
                e("v_pk_mul_f32 %s, %s, %s" % (vr(d+h_,2), vr(d+h_,2), vr(rs4[T]+h_,2)))
            dst = vVp + 6*i + 2 + 2*T
            e("v_cvt_pk_bf16_f32 %s, %s, %s" % (v(dst), v(d), v(d+1)))
            e("v_cvt_pk_bf16_f32 %s, %s, %s" % (v(dst+1), v(d+2), v(d+3)))
        if c in hV:
            d = acc_halo(c >> 2)
            for h_ in (0, 2):
                e("v_pk_fma_f32 %s, %s, %s, %s op_sel_hi:[1,0,1]" % (vr(d+h_,2), vr(hn4+h_,2), vr(csd+2*i,2), vr(d+h_,2)))
                e("v_pk_mul_f32 %s, %s, %s" % (vr(d+h_,2), vr(d+h_,2), vr(hr4+h_,2)))
            e("v_cvt_pk_bf16_f32 %s, %s, %s" % (v(d), v(d), v(d+1)))
            e("v_cvt_pk_bf16_f32 %s, %s, %s" % (v(d+1), v(d+2), v(d+3)))
            e("ds_write_b64 v251, %s offset:%d" % (vr(d,2), X_EX + (5+i)*512))
        if w < 3:
            e("ds_write_b64 v251, %s offset:%d" % (vr(vVp+6*i+4,2), X_EX + (w+1)*5120 + (5+i)*512))
    vBP, vBC, vBPA = 0, 4, 8
    vSel = 12
    vML, vMH = 16, 20
    vONE = 24
    vT16, vG = 28, 29
    attn_consts(w, e, vBP, vBC, vBPA, vSel, vML, vMH, vONE, vT16, vG)
    cF = [30, 31]
    for T in (0, 1):
        e("v_mul_f32 %s, 0x%08x, %s" % (v(cF[T]), f2u((20.0 ** -0.5) * 1.4426950408889634), v(tRS[T])))
    e("s_mov_b32 %s, 0xffff" % s(sM+8)); e("s_mov_b32 %s, 0" % s(sM+9))
    e("s_mov_b32 %s, -1" % s(sM+10)); e("s_mov_b32 %s, 0" % s(sM+11))
    e("s_mov_b32 %s, -1" % s(sM+12)); e("s_mov_b32 %s, 0xffff" % s(sM+13))
    e("v_lshlrev_b32 v250, 4, %s" % v(vLane))
    attn_tile(e, w, 1, vKA, vKB, lambda i: vVp+6*i+2, vBP, vBC, vSel, vML, vMH, vONE, cF[1], tSTD[1])
    e("s_waitcnt lgkmcnt(0)")
    e("s_barrier")
    for i in range(5):
        e("ds_read_b64 %s, v251 offset:%d" % (vr(vKP+2*i,2), X_EX + w*5120 + i*512))
        e("ds_read_b64 %s, v251 offset:%d" % (vr(vVp+6*i,2), X_EX + w*5120 + (5+i)*512))
    attn_tile(e, w, 0, vKP, vKA, lambda i: vVp+6*i, vBPA, vBC, vSel, vML, vMH, vONE, cF[0], tSTD[0])

def attn_consts(w, e, vBP, vBC, vBPA, vSel, vML, vMH, vONE, vT16, vG):
    e("v_and_b32 %s, 15, %s" % (v(vT16), v(vLane)))
    e("v_lshrrev_b32 %s, 4, %s" % (v(vG), v(vLane)))
    t0, t1, t2 = 32, 33, 34
    e("v_lshlrev_b32 %s, 2, %s" % (v(t0), v(vG)))
    e("v_sub_u32 %s, %s, %s" % (v(t0), v(vT16), v(t0)))
    e("v_and_b32 %s, 1, %s" % (v(t1), v(vT16)))
    e("v_mov_b32 %s, 0x%08x" % (v(t2), NEG))
    e("v_cmp_eq_u32 %s, 0, %s" % (sr(sM+14,2), v(t1)))
    for r in range(4):
        e("v_subrev_u32 %s, %d, %s" % (v(35), r, v(t0)))
        e("v_cmp_le_i32 %s, 0, %s" % (sr(sM+16,2), v(35)))
        if r & 1: e("s_andn2_b64 %s, %s, %s" % (sr(sM+18,2), "exec", sr(sM+14,2)))
        else:     e("s_mov_b64 %s, %s" % (sr(sM+18,2), sr(sM+14,2)))
        e("s_and_b64 %s, %s, %s" % (sr(sM+20,2), sr(sM+18,2), sr(sM+16,2)))
        e("s_andn2_b64 %s, %s, %s" % (sr(sM+22,2), sr(sM+18,2), sr(sM+16,2)))
        e("v_cndmask_b32_e64 %s, %s, 0, %s" % (v(vBC+r), v(t2), sr(sM+20,2)))
        e("v_cndmask_b32_e64 %s, %s, 0, %s" % (v(vBP+r), v(t2), sr(sM+22,2)))
    for r in range(4): e("v_mov_b32 %s, %s" % (v(vBPA+r), v(vBP+r)))
    if w == 0:
        e("s_cmp_lg_u32 %s, 0" % s(sRB))
        e("s_cbranch_scc1 L_notfirst")
        for r in range(4): e("v_mov_b32 %s, %s" % (v(vBPA+r), v(t2)))
        e.lab("L_notfirst")
    e("v_sub_u32 %s, %s, %s" % (v(35), v(t0), v(t1)))
    e("v_mov_b32 %s, 0x0c0c0100" % v(36)); e("v_mov_b32 %s, 0x01000c0c" % v(37))
    e("v_cndmask_b32_e64 %s, %s, %s, %s" % (v(36), v(37), v(36), sr(sM+14,2)))
    e("v_mov_b32 %s, 0x0c0c0302" % v(37)); e("v_mov_b32 %s, 0x03020c0c" % v(38))
    e("v_cndmask_b32_e64 %s, %s, %s, %s" % (v(37), v(38), v(37), sr(sM+14,2)))
    e("v_mov_b32 %s, 0x0c0c0c0c" % v(38))
    e("v_cmp_le_i32 %s, 0, %s" % (sr(sM+16,2), v(35)))
    e("v_cndmask_b32_e64 %s, %s, %s, %s" % (v(vSel+0), v(36), v(38), sr(sM+16,2)))
    e("v_cndmask_b32_e64 %s, %s, %s, %s" % (v(vSel+2), v(38), v(36), sr(sM+16,2)))
    e("v_cmp_le_i32 %s, 2, %s" % (sr(sM+16,2), v(35)))
    e("v_cndmask_b32_e64 %s, %s, %s, %s" % (v(vSel+1), v(37), v(38), sr(sM+16,2)))
    e("v_cndmask_b32_e64 %s, %s, %s, %s" % (v(vSel+3), v(38), v(37), sr(sM+16,2)))
    for h in (1, 2, 3):
        e("v_cmp_le_u32 %s, %d, %s" % (sr(sM+16,2), h, v(vG)))
        e("v_cndmask_b32_e64 %s, 0, -1, %s" % (v(vML+h), sr(sM+16,2)))
    for h in (0, 1, 2):
        e("v_cmp_ge_u32 %s, %d, %s" % (sr(sM+16,2), h, v(vG)))
        e("v_cndmask_b32_e64 %s, 0, -1, %s" % (v(vMH+h), sr(sM+16,2)))
    for r in range(4): e("v_mov_b32 %s, 0x3f803f80" % v(vONE+r))

def attn_tile(e, w, T, kprev, kcur, vfrag, bP, bC, vSel, vML, vMH, vONE, cF, std):
    Qm = [40, 44, 48, 52]
    S0 = [56, 60, 64, 68]; S1 = [72, 76, 80, 84]
    P  = [88, 92, 96, 100]
    Lh = [104, 108, 112, 116]
    O  = {}
    qp = vQp + T*10
    for h in range(4):
        for k in range(2):
            if h == 0: e("v_mov_b32 %s, %s" % (v(Qm[h]+k), v(qp+2*h+k)))
            else:      e("v_and_b32 %s, %s, %s" % (v(Qm[h]+k), v(qp+2*h+k), v(vML+h)))
            if h == 3: e("v_mov_b32 %s, %s" % (v(Qm[h]+2+k), v(qp+2*h+2+k)))
            else:      e("v_and_b32 %s, %s, %s" % (v(Qm[h]+2+k), v(qp+2*h+2+k), v(vMH+h)))
    for h in range(4):
        e("%s %s, %s, %s, %s" % (MFMA, vr(S0[h],4), vr(kprev+2*h,4), vr(Qm[h],4), vr(bP,4)))
        e("%s %s, %s, %s, %s" % (MFMA, vr(S1[h],4), vr(kcur+2*h,4), vr(Qm[h],4), vr(bC,4)))
    va = [120, 122, 124, 126]; mx = [128, 129, 130, 131]; tmp = 132
    for h in range(4):
        e("v_max3_f32 %s, %s, %s, %s" % (v(va[h]), v(S0[h]), v(S0[h]+1), v(S1[h])))
        e("v_max3_f32 %s, %s, %s, %s" % (v(va[h]+1), v(S0[h]+2), v(S0[h]+3), v(S1[h]+2)))
        e("v_max_f32 %s, %s, %s" % (v(va[h]), v(va[h]), v(S1[h]+1)))
        e("v_max_f32 %s, %s, %s" % (v(va[h]+1), v(va[h]+1), v(S1[h]+3)))
        e("v_max_f32 %s, %s, %s" % (v(mx[h]), v(va[h]), v(va[h]+1)))
    e("v_permlane32_swap_b32 %s, %s" % (v(mx[0]), v(mx[1])))
    e("v_permlane32_swap_b32 %s, %s" % (v(mx[2]), v(mx[3])))
    e("v_max_f32 %s, %s, %s" % (v(mx[0]), v(mx[0]), v(mx[1])))
    e("v_max_f32 %s, %s, %s" % (v(mx[2]), v(mx[2]), v(mx[3])))
    e("v_permlane16_swap_b32 %s, %s" % (v(mx[0]), v(mx[2])))
    e("v_max_f32 %s, %s, %s" % (v(mx[0]), v(mx[0]), v(mx[2])))
    e("v_mov_b32 %s, %s" % (v(mx[2]), v(mx[0])))
    e("v_permlane16_swap_b32 %s, %s" % (v(mx[0]), v(mx[2])))
    e("v_mov_b32 %s, %s" % (v(mx[1]), v(mx[0])))
    e("v_mov_b32 %s, %s" % (v(mx[3]), v(mx[2])))
    e("v_permlane32_swap_b32 %s, %s" % (v(mx[0]), v(mx[1])))
    e("v_permlane32_swap_b32 %s, %s" % (v(mx[2]), v(mx[3])))
    for h in range(4):
        e("v_mul_f32 %s, %s, %s" % (v(mx[h]), v(mx[h]), v(cF)))
        e("v_fma_f32 %s, %s, %s, -%s" % (v(va[h]), v(va[h]), v(cF), v(mx[h])))
        e("v_fma_f32 %s, %s, %s, -%s" % (v(va[h]+1), v(va[h]+1), v(cF), v(mx[h])))
    for h in range(4):
        e("v_exp_f32 %s, %s" % (v(va[h]), v(va[h])))
        e("v_exp_f32 %s, %s" % (v(va[h]+1), v(va[h]+1)))
    for h in range(4):
        e("v_cvt_pk_bf16_f32 %s, %s, %s" % (v(va[h]), v(va[h]), v(va[h]+1)))
        for k in range(4):
            e("v_perm_b32 %s, %s, %s, %s" % (v(P[h]+k), v(va[h]), v(va[h]), v(vSel+k)))
    pairs = [(0,0),(1,0),(1,1),(2,1),(2,2),(3,2),(3,3),(4,3)]
    free = Qm + S0
    for n, (i, h) in enumerate(pairs):
        O[(i,h)] = free[n]
    for h in range(4):
        e("%s %s, %s, %s, 0" % (MFMA, vr(Lh[h],4), vr(vONE,4), vr(P[h],4)))
    for (i, h) in pairs:
        e("%s %s, %s, %s, 0" % (MFMA, vr(O[(i,h)],4), vr(vfrag(i),4), vr(P[h],4)))
    for h in range(4):
        e("v_rcp_f32 %s, %s" % (v(Lh[h]), v(Lh[h])))
    for h in range(4):
        e("v_mul_f32 %s, %s, %s" % (v(Lh[h]), v(Lh[h]), v(std)))
    F = [Lh[0], 72, 74, 76, Lh[3]]
    e("v_cndmask_b32_e64 %s, %s, %s, %s" % (v(F[1]), v(Lh[1]), v(Lh[0]), sr(sM+8,2)))
    e("v_cndmask_b32_e64 %s, %s, %s, %s" % (v(F[2]), v(Lh[2]), v(Lh[1]), sr(sM+10,2)))
    e("v_cndmask_b32_e64 %s, %s, %s, %s" % (v(F[3]), v(Lh[3]), v(Lh[2]), sr(sM+12,2)))
    R = {}
    R[0] = O[(0,0)]; R[4] = O[(4,3)]
    for i in (1, 2, 3):
        lo, hi = O[(i,i-1)], O[(i,i)]
        for r in range(4):
            e("v_cndmask_b32_e64 %s, %s, %s, %s" % (v(hi+r), v(hi+r), v(lo+r), sr(sM+8+2*(i-1),2)))
        R[i] = hi
    out = P[0]
    for i in range(5):
        e("v_pk_mul_f32 %s, %s, %s op_sel_hi:[1,0]" % (vr(R[i],2), vr(R[i],2), vr(F[i],2)))
        e("v_pk_mul_f32 %s, %s, %s op_sel_hi:[1,0]" % (vr(R[i]+2,2), vr(R[i]+2,2), vr(F[i],2)))
        e("v_cvt_pk_bf16_f32 %s, %s, %s" % (v(out+2*i), v(R[i]), v(R[i]+1)))
        e("v_cvt_pk_bf16_f32 %s, %s, %s" % (v(out+2*i+1), v(R[i]+2), v(R[i]+3)))
    gl = 2*w + T
    e("s_lshl_b32 %s, %s, 1" % (s(sT0), s(sRB)))
    e("s_add_u32 %s, %s, %d" % (s(sT0), s(sT0), gl >> 2))
    e("s_mul_i32 %s, %s, %d" % (s(sT0), s(sT0), ACT_TB))
    e("s_lshr_b32 %s, %s, 1" % (s(sT1), s(sCB)))
    e("s_mul_i32 %s, %s, 5" % (s(sT1), s(sT1)))
    e("s_and_b32 %s, %s, 1" % (s(sT2), s(sCB)))
    e("s_lshl_b32 %s, %s, 1" % (s(sT3), s(sT2)))
    e("s_add_u32 %s, %s, %s" % (s(sT3), s(sT3), s(sT1)))
    e("s_lshl_b32 %s, %s, 12" % (s(sT3), s(sT3)))
    e("s_add_u32 %s, %s, %s" % (s(sT3), s(sT3), s(sT0)))
    e("s_add_u32 %s, %s, %d" % (s(sT3), s(sT3), ACT_OFF + (gl & 3)*1024))
    e("buffer_store_dwordx4 %s, v250, %s, %s offen sc1" % (vr(out,4), sr(sWS,4), s(sT3)))
    e("s_add_u32 %s, %s, 4096" % (s(sT3), s(sT3)))
    e("buffer_store_dwordx4 %s, v250, %s, %s offen sc1" % (vr(out+4,4), sr(sWS,4), s(sT3)))
    e("s_add_u32 %s, %s, 4" % (s(sT1), s(sT1)))
    e("s_lshl_b32 %s, %s, 12" % (s(sT1), s(sT1)))
    e("s_add_u32 %s, %s, %s" % (s(sT1), s(sT1), s(sT0)))
    e("s_lshl_b32 %s, %s, 3" % (s(sT2), s(sT2)))
    e("s_add_u32 %s, %s, %s" % (s(sT1), s(sT1), s(sT2)))
    e("s_add_u32 %s, %s, %d" % (s(sT1), s(sT1), ACT_OFF + (gl & 3)*1024))
    e("buffer_store_dwordx2 %s, v250, %s, %s offen sc1" % (vr(out+8,2), sr(sWS,4), s(sT1)))


def sprinkle(lines, groups, start=0, end_gap=0):
    safe = []
    exec_full = True; skip = None
    n = len(lines)
    for i, t in enumerate(lines):
        tt = t.strip()
        prev = lines[i-1].strip() if i else ""
        ok = exec_full and skip is None
        if prev.startswith("s_cmp") or prev.startswith("v_cmp") or prev.startswith("s_and_b64") or prev.startswith("s_andn2") : ok = False
        if tt.startswith("s_cbranch") or tt.startswith("s_cselect") or tt.startswith("s_addc") or tt.endswith(":"): ok = False
        if tt.startswith("s_barrier") or tt.startswith("s_waitcnt"): ok = False
        if ok and start <= i < n - end_gap: safe.append(i)
        if tt.startswith("s_mov_b32 exec") : exec_full = False
        if tt.startswith("s_mov_b64 exec, -1"): exec_full = True
        if tt.startswith("s_cbranch"): skip = tt.split()[-1]
        if skip and tt == skip + ":": skip = None
    ng = len(groups)
    assert len(safe) >= ng, (len(safe), ng)
    at = {}
    for k in range(ng):
        at.setdefault(safe[k*len(safe)//ng], []).extend(groups[k])
    out = []
    for i, t in enumerate(lines):
        if i in at: out += ["  " + x for x in at[i]]
        out.append(t)
    return out

F_SLOT = 49152; F_XB = 16384
fWA = [160, 161, 162, 163]
F_X0, F_X1 = 164, 165
fXE, fXOd, fWL = 166, 167, 168
fDO = 169
def facc(T, c): return (T*16 + c)*4
fCS = 128
fSUM = [144, 148]
def fxf(kh, T): return aXF + (kh*2 + T)*4

def ffn_lane_setup(e):
    x_lane_setup(e, fXE, fXOd)
    e("v_lshrrev_b32 v6, 2, v1")
    e("v_lshlrev_b32 v6, 3, v6")
    e("v_and_b32 v7, 3, v1")
    e("v_add_u32 v6, v6, v7")
    e("v_mul_u32_u24 v6, 3456, v6")
    e("v_lshrrev_b32 v7, 1, v2")
    e("v_xor_b32 v7, v7, v3")
    e("v_lshlrev_b32 v7, 5, v7")
    e("v_and_b32 v8, 1, v2")
    e("v_lshlrev_b32 v8, 4, v8")
    e("v_add3_u32 v6, v6, v7, v8")
    e("s_lshl_b32 %s, %s, 9" % (s(sT0), s(sCB)))
    e("v_add_u32 %s, %s, v6" % (v(fWL), s(sT0)))

def ffn_cfg(w):
    cfg = Cfg()
    cfg.ntile = 16; cfg.ring = 8; cfg.look = 6; cfg.tail = 2; cfg.nfirst = 6; cfg.wbase = aW
    H = [c for c in range(16) if c % 4 == w]
    def wread(kh, c, reg):
        off = (c >> 2)*8192 + kh*4096
        ad = v(fWA[c & 3])
        return ["ds_read_b64_tr_b16 %s, %s offset:%d" % (ar(reg,2), ad, off),
                "ds_read_b64_tr_b16 %s, %s offset:%d" % (ar(reg+2,2), ad, off + 2048)]
    def mf(kh, c, reg):
        out = []
        for T in (0, 1):
            d = vr(facc(T, c), 4)
            out.append("%s %s, %s, %s, %s" % (MFMA, d, ar(reg,4), ar(fxf(kh,T),4), d))
        if c in H and "nohalo" not in OPTS:
            d = vr(fCS + (c >> 2)*4, 4)
            out.append("%s %s, %s, %s, %s" % (MFMA, d, ar(reg,4), ar(aONE,4), d))
        return out
    def stats(kh):
        return ["%s %s, %s, %s, %s" % (MFMA, vr(fSUM[T],4), ar(aONE,4), ar(fxf(kh,T),4), vr(fSUM[T],4)) for T in (0,1)]
    def xreads(kh):
        ad = F_X1 if kh else F_X0
        return ["ds_read_b128 %s, %s offset:%d" % (ar(fxf(kh,T),4), v(ad), (2*w+T)*2048) for T in (0,1)]
    cfg.wread = wread; cfg.mf = mf; cfg.stats = stats; cfg.xreads = xreads
    cfg.xread1_at = 4
    cfg.addr_update = addr_update(F_SLOT, fWA + [F_X0, F_X1])
    cfg.scal_update = scal_update(F_SLOT, 64*3456)
    cfg.dma_start = 2; cfg.dma_skew = w; cfg.dma_endgap = 8
    cfg.wstep = 64*3456; cfg.slot = F_SLOT
    return cfg

def read_addr_setup_ffn(e):
    e("v_and_b32 v1, 15, %s" % v(vLane))
    e("v_lshrrev_b32 v2, 2, v1")
    e("v_and_b32 v3, 3, v1")
    e("v_lshrrev_b32 v4, 4, %s" % v(vLane))
    e("v_lshl_add_u32 v2, v4, 2, v2")
    e("v_lshrrev_b32 v5, 1, v2")
    e("v_and_b32 v5, 3, v5")
    e("v_lshlrev_b32 v2, 7, v2")
    e("v_lshl_add_u32 v2, v3, 3, v2")
    e("v_add_u32 v2, %d, v2" % F_XB)
    for u in range(4):
        e("v_xor_b32 v6, %d, v5" % u)
        e("v_lshl_add_u32 %s, v6, 5, v2" % v(fWA[u]))
    xaddr_setup(e, F_X0, F_X1, 0)

def ffn_epilogue(w, e):
    H = [c for c in range(16) if c % 4 == w]
    nm = [150, 152]
    for T in (0, 1):
        e("v_mul_f32 %s, 0x%08x, %s" % (v(nm[T]), f2u(-1.0/640), v(fSUM[T])))
    e("v_lshrrev_b32 v252, 4, %s" % v(vLane))
    e("v_lshlrev_b32 v252, 4, v252")
    e("s_mov_b32 exec_lo, 0x00010001"); e("s_mov_b32 exec_hi, 0x00010001")
    for c in H:
        e("ds_write_b128 v252, %s offset:%d" % (vr(fCS + (c >> 2)*4, 4), c*64))
    e("s_mov_b64 exec, -1")
    e("s_waitcnt lgkmcnt(0)")
    e("s_barrier")
    e("v_lshlrev_b32 v250, 4, %s" % v(vLane))
    e("s_lshl_b32 %s, %s, 1" % (s(sT0), s(sRB)))
    e("s_add_u32 %s, %s, %d" % (s(sT0), s(sT0), (2*w) >> 2))
    e("s_mul_i32 %s, %s, %d" % (s(sT0), s(sT0), ACT_TB))
    e("s_lshl_b32 %s, %s, 3" % (s(sT1), s(sCB)))
    e("s_add_u32 %s, %s, 20" % (s(sT1), s(sT1)))
    e("s_lshl_b32 %s, %s, 12" % (s(sT1), s(sT1)))
    e("s_add_u32 %s, %s, %s" % (s(sT0), s(sT0), s(sT1)))
    e("s_add_u32 %s, %s, %d" % (s(sT0), s(sT0), ACT_OFF + ((2*w) & 3)*1024))
    e("s_mov_b32 %s, 0" % s(sT2))
    e("s_cmp_eq_u32 %s, 6" % s(sCB))
    e("s_cselect_b32 %s, 0x%x, 0" % (s(sT2), OOB))
    cs = [160, 164, 168, 172]
    pk = [180, 184, 188, 192]
    for a_ in range(8):
        if a_ == 6: e("s_add_u32 %s, %s, %s" % (s(sT0), s(sT0), s(sT2)))
        for k in range(2):
            c = 2*a_ + k
            e("ds_read_b128 %s, v252 offset:%d" % (vr(cs[(2*a_+k) & 3],4), c*64))
        for T in (0, 1):
            o = pk[(2*a_ + T) & 3]
            for k in range(2):
                c = 2*a_ + k; d = facc(T, c); q = cs[c & 3]
                e("v_pk_fma_f32 %s, %s, %s, %s op_sel_hi:[1,0,1]" % (vr(d,2), vr(q,2), vr(nm[T],2), vr(d,2)))
                e("v_pk_fma_f32 %s, %s, %s, %s op_sel_hi:[1,0,1]" % (vr(d+2,2), vr(q+2,2), vr(nm[T],2), vr(d+2,2)))
                e("v_cvt_pk_bf16_f32 %s, %s, %s" % (v(o+2*k), v(d), v(d+1)))
                e("v_cvt_pk_bf16_f32 %s, %s, %s" % (v(o+2*k+1), v(d+2), v(d+3)))
                e("v_pk_max_i16 %s, %s, 0" % (v(o+2*k), v(o+2*k)))
                e("v_pk_max_i16 %s, %s, 0" % (v(o+2*k+1), v(o+2*k+1)))
            e("buffer_store_dwordx4 %s, v250, %s, %s offen offset:%d sc1" % (vr(o,4), sr(sWS,4), s(sT0), T*1024))
        e("s_add_u32 %s, %s, 4096" % (s(sT0), s(sT0)))

U_ROW = 320
U_BYTES = 32*U_ROW
sPF = 60
vUO = [200, 201, 202]; vUH = [203, 204, 205]; vUT = [206, 207, 208]
sUW = [64, 65, 66]
sUl, sUn = 67, 68
def unit_setup_dyn(e):
    e("s_lshl_b32 %s, %s, 6" % (s(sT0), s(sWave)))
    for m in range(3):
        e("v_add_u32 v1, %s, %s" % (s(sT0), v(vLane)))
        if m: e("v_add_u32 v1, %d, v1" % (256*m))
        e("v_mul_u32_u24 v2, 3277, v1"); e("v_lshrrev_b32 v2, 16, v2")
        e("v_mul_u32_u24 v3, 20, v2"); e("v_sub_u32 v3, v1, v3")
        e("v_mul_u32_u24 v4, 1280, v2"); e("v_lshl_add_u32 %s, v3, 4, v4" % v(vUO[m]))
        e("v_lshrrev_b32 %s, 4, v2" % v(vUH[m]))
        if m == 2:
            e("v_mov_b32 v5, 0x40000000")
            e("v_cmp_le_u32 vcc, 640, v1")
            e("v_cndmask_b32_e64 %s, %s, v5, vcc" % (v(vUO[m]), v(vUO[m])))
            e("v_cndmask_b32_e64 %s, %s, 0, vcc" % (v(vUH[m]), v(vUH[m])))
    e("v_and_b32 v1, 15, %s" % v(vLane)); e("v_lshrrev_b32 v2, 2, v1"); e("v_and_b32 v3, 3, v1")
    e("v_lshrrev_b32 v4, 4, %s" % v(vLane)); e("v_lshl_add_u32 v2, v4, 2, v2")
    e("v_mul_u32_u24 v2, %d, v2" % U_ROW)
    for m in range(3):
        e("s_add_u32 %s, %s, %d" % (s(sT0), s(sWave), 4*m))
        e("s_cmp_ge_u32 %s, 5" % s(sT0)); e("s_cselect_b32 %s, 1, 0" % s(sT1))
        e("s_mul_i32 %s, %s, 5" % (s(sT2), s(sT1))); e("s_sub_u32 %s, %s, %s" % (s(sT2), s(sT0), s(sT2)))
        e("s_lshr_b32 %s, %s, 1" % (s(sT3), s(sT2))); e("s_lshl_b32 %s, %s, 6" % (s(sT3), s(sT3)))
        e("s_and_b32 %s, %s, 1" % (s(sD0), s(sT2))); e("s_lshl_b32 %s, %s, 3" % (s(sD0), s(sD0)))
        e("s_add_u32 %s, %s, %s" % (s(sT3), s(sT3), s(sD0)))
        e("s_mul_i32 %s, %s, 160" % (s(sD0), s(sT1))); e("s_add_u32 %s, %s, %s" % (s(sT3), s(sT3), s(sD0)))
        e("s_cmp_eq_u32 %s, 4" % s(sT2)); e("s_cselect_b32 %s, 3, 4" % s(sD0))
        e("v_lshlrev_b32 v5, %s, v3" % s(sD0))
        e("v_add3_u32 %s, v5, v2, %s" % (v(vUT[m]), s(sT3)))
        e("s_mul_i32 %s, %s, %d" % (s(sUW[m]), s(sT1), W2F_CB))
        e("s_lshl_b32 %s, %s, 10" % (s(sD0), s(sT2)))
        e("s_add_u32 %s, %s, %s" % (s(sUW[m]), s(sUW[m]), s(sD0)))
        e("s_cmp_ge_u32 %s, 10" % s(sT0)); e("s_cselect_b32 %s, 0x%x, %s" % (s(sUW[m]), 0x40000000, s(sUW[m])))
def unit_loads_dyn(e):
    sU = sUn
    e("s_lshr_b32 %s, %s, 2" % (s(sT0), s(sU)))
    e("s_and_b32 %s, %s, 3" % (s(sT1), s(sU)))
    e("s_mul_i32 %s, %s, 52" % (s(sT2), s(sT0))); e("s_lshr_b32 %s, %s, 8" % (s(sT2), s(sT2)))
    e("s_mul_i32 %s, %s, 5" % (s(sT3), s(sT2))); e("s_sub_u32 %s, %s, %s" % (s(sT3), s(sT0), s(sT3)))
    e("s_mul_i32 %s, %s, 160" % (s(sT2), s(sT2)))
    e("s_lshl_b32 %s, %s, 5" % (s(sD0), s(sT3)))
    e("s_cmp_ge_u32 %s, 2" % s(sT3)); e("s_cselect_b32 %s, 16, 0" % s(sD1))
    e("s_add_u32 %s, %s, %s" % (s(sD0), s(sD0), s(sD1)))
    e("s_cmp_eq_u32 %s, 4" % s(sT3)); e("s_cselect_b32 %s, 64, %s" % (s(sD0), s(sD0)))
    e("s_cselect_b32 %s, %d, 0" % (s(sD1), 64*1280))
    e("s_add_u32 %s, %s, %s" % (s(sD0), s(sD0), s(sT2)))
    e("s_sub_u32 %s, %s, 20" % (s(sT2), s(sT0))); e("s_lshl_b32 %s, %s, 5" % (s(sT2), s(sT2)))
    e("s_cmp_lt_u32 %s, 20" % s(sT0))
    e("s_cselect_b32 %s, %s, %s" % (s(sD0), s(sD0), s(sT2)))
    e("s_cselect_b32 %s, %s, 0" % (s(sD1), s(sD1)))
    e("s_cselect_b32 %s, s8, s14" % s(sPF))
    e("s_cselect_b32 %s, s9, s15" % s(sPF+1))
    e("s_cselect_b32 %s, %s, %s" % (s(sPF+2), s(sSzO), s(sSz2)))
    e("s_and_b32 %s, %s, 0xffff" % (s(sPF+1), s(sPF+1)))
    e("s_mov_b32 %s, 0x20000" % s(sPF+3))
    e("s_mul_i32 %s, %s, 1280" % (s(sD0), s(sD0)))
    e("s_mul_i32 %s, %s, 320" % (s(sT1), s(sT1)))
    e("s_add_u32 %s, %s, %s" % (s(sD0), s(sD0), s(sT1)))
    e("s_cmp_ge_u32 %s, %d" % (s(sU), 4*NKS)); e("s_cselect_b32 %s, 0x%x, %s" % (s(sD0), OOB, s(sD0)))
    e("s_lshl_b32 %s, %s, 10" % (s(sT0), s(sWave)))
    e("s_add_u32 %s, %s, %s" % (s(sT0), s(sT0), s(sUl)))
    for m in range(3):
        e("v_mad_u32_u24 %s, %s, %s, %s" % (v(210+m), v(vUH[m]), s(sD1), v(vUO[m])))
        if m < 2: e("s_add_u32 m0, %s, %d" % (s(sT0), 4096*m))
        else:
            e("s_add_u32 %s, %s, %d" % (s(sT1), s(sT0), 4096*m))
            e("s_cmp_ge_u32 %s, 2" % s(sWave))
            e("s_cselect_b32 m0, %d, %s" % (161792, s(sT1)))
        e("s_nop 0")
        e("buffer_load_dwordx4 %s, %s, %s offen lds" % (v(210+m), sr(sPF,4), s(sD0)))
def unit_store_dyn(e, vd=0, full_wait=False):
    sU = sUn
    e("s_lshr_b32 %s, %s, 2" % (s(sT0), s(sU)))
    e("s_and_b32 %s, %s, 3" % (s(sT1), s(sU)))
    e("s_mul_i32 %s, %s, 5120" % (s(sT0), s(sT0)))
    e("s_mul_i32 %s, %s, %d" % (s(sT1), s(sT1), 2*W2F_CB))
    e("s_add_u32 %s, %s, %s" % (s(sT0), s(sT0), s(sT1)))
    e("s_add_u32 %s, %s, %d" % (s(sT0), s(sT0), W2F_OFF))
    e("s_cmp_ge_u32 %s, %d" % (s(sU), 4*NKS)); e("s_cselect_b32 %s, 0x%x, %s" % (s(sT0), 0x30000000, s(sT0)))
    for m in range(3):
        e("v_add_u32 %s, %s, %s" % (v(213+m), s(sUl), v(vUT[m])))
        e("ds_read_b64_tr_b16 %s, %s" % (vr(vd+4*m,2), v(213+m)))
        e("ds_read_b64_tr_b16 %s, %s offset:%d" % (vr(vd+4*m+2,2), v(213+m), 16*U_ROW))
    for m in range(3):
        e("s_add_u32 %s, %s, %s" % (s(sT1), s(sT0), s(sUW[m])))
        e("s_waitcnt lgkmcnt(%d)" % (4 - 2*m if not full_wait else 0))
        e("buffer_store_dwordx4 %s, %s, %s, %s offen sc1" % (vr(vd+4*m,4), v(vL16), sr(sWS,4), s(sT1)))
def pf_loop(e, tag, fn, u0, n, lds0):
    e("s_add_u32 %s, %s, %d" % (s(sUn), s(sCB), 16*u0))
    e("s_mov_b32 %s, %d" % (s(sUl), lds0))
    e("s_mov_b32 %s, 0" % s(sIter))
    e.lab("L_pfl_%s" % tag)
    fn(e)
    e("s_add_u32 %s, %s, 16" % (s(sUn), s(sUn)))
    e("s_add_u32 %s, %s, %d" % (s(sUl), s(sUl), U_BYTES))
    e("s_add_u32 %s, %s, 1" % (s(sIter), s(sIter)))
    e("s_cmp_lt_u32 %s, %d" % (s(sIter), n))
    e("s_cbranch_scc1 L_pfl_%s" % tag)
N_FFN_UNITS = 2
def signal_count(e, off):
    R = " ; rare"
    e("v_mov_b32 v250, 1" + R); e("v_mov_b32 v251, 0" + R)
    e("s_mov_b32 exec_lo, 1" + R); e("s_mov_b32 exec_hi, 0" + R)
    e("buffer_atomic_add v250, v251, %s, 0 offen offset:%d sc1" % (sr(sDBG,4), off) + R)
    e("s_mov_b64 exec, -1" + R)
def spin_count(e, tag, off, target, vtmp, have_first=None):
    R = " ; rare"
    if have_first is not None:
        e("v_readfirstlane_b32 %s, %s" % (s(sT0), v(have_first)))
        e("s_nop 3")
        e("s_cmp_ge_u32 %s, %d" % (s(sT0), target))
        e("s_cbranch_scc1 L_cok_%s" % tag)
    e("s_mov_b32 %s, 0" % s(sT1) + R)
    e("v_mov_b32 %s, 0" % v(vtmp+1) + R)
    e.lab("L_cspin_%s" % tag)
    e("buffer_load_dword %s, %s, %s, 0 offen offset:%d sc1" % (v(vtmp), v(vtmp+1), sr(sDBG,4), off) + R)
    e("s_waitcnt vmcnt(0)" + R)
    e("v_readfirstlane_b32 %s, %s" % (s(sT0), v(vtmp)) + R)
    e("s_nop 3" + R)
    e("s_cmp_ge_u32 %s, %d" % (s(sT0), target) + R)
    e("s_cbranch_scc1 L_cok_%s" % tag + R)
    e("s_sleep %d" % CSLEEP + R)
    e("s_add_u32 %s, %s, 1" % (s(sT1), s(sT1)) + R)
    e("s_cmp_lt_u32 %s, %d" % (s(sT1), SPIN_MAX) + R)
    e("s_cbranch_scc1 L_cspin_%s" % tag + R)
    e.lab("L_cok_%s" % tag)
CSLEEP = 40
FSLEEP = 8
CNT_P, N_P = 4, 128

DA = 6
POLL_A_AT = 6
FFN_W2A_IN = 0
ATT_W2A_IN = 35
ATT_ENDGAP = 260
W2A_BEFORE_SIG = 12
P0 = 12
vAR = 80
vWR = 176
def act_soff(p, dst):
    if p < 14: return ["s_lshl_b32 %s, %s, 2" % (s(dst), s(sKQ[p])), "s_add_u32 %s, %s, %s" % (s(dst), s(dst), s(sAB))]
    return ["s_lshl_b32 %s, %s, 12" % (s(dst), s(sWave)), "s_add_u32 %s, %s, %s" % (s(dst), s(dst), s(sAB)),
            "s_add_u32 %s, %s, %d" % (s(dst), s(dst), 4*(p-14)*4096)]
def act_loads(p):
    st = vAR + (p % DA)*16
    G = []
    for tt in range(4):
        g = act_soff(p, sD0) if tt == 0 else []
        g.append("buffer_load_dwordx4 %s, %s, %s, %s offen offset:%d sc1" % (vr(st+4*tt,4), v(vL16), sr(sWS,4), s(sD0), tt*1024))
        G.append(g)
    return G

def phase2():
    e = E()
    e.lab("L_ph2")
    stamp(e, 8)
    spin_flags(e, "f", MASK_F, 250, have_first=vPoll)
    st = State()
    main = E()
    for p in range(DA):
        for g in act_loads(p): main.ext(g)
    for i in range(80): main("v_mov_b32 %s, 0" % v(i))
    main("v_add_u32 v216, %s, %s" % (s(sLA), v(vL16)))
    main("v_add_u32 v217, %s, %s" % (s(sLB), v(vL16)))
    def wl_reads(p):
        out = []
        for ct in range(5):
            q = 5*p + ct
            ad, off = (216, q*1024) if q < 12 else (217, (q-12)*1024)
            out.append("ds_read_b128 %s, %s offset:%d" % (vr(vWR + (p & 1)*20 + ct*4, 4), v(ad), off))
        return out
    main.ext(wl_reads(0))
    main("v_lshlrev_b32 v218, 2, %s" % v(vLane))
    stamp(main, 9)
    NP = 19
    for p in range(NP):
        ms = []
        for ct in range(5):
            if p < 5: wsrc = vr(vWR + (p & 1)*20 + ct*4, 4)
            else:     wsrc = ar(((p - 5) % 12)*20 + ct*4, 4)
            for tt in range(4):
                d = vr((tt*5+ct)*4, 4)
                ms.append("%s %s, %s, %s, %s" % (MFMA, d, wsrc, vr(vAR + (p % DA)*16 + 4*tt, 4), d))
        aux = []
        if p + 1 < 5: aux += [[t] for t in wl_reads(p + 1)]
        q = p - 1 + DA
        if p >= 1 and q < NP:
            if q == 14:
                sp = E(); spin_flags(sp, "a", MASK_A, 250, have_first=219)
                main.ext(sp.L)
                rx = E()
                rx("v_and_b32 v220, 15, %s" % v(vLane)); rx("v_lshrrev_b32 v221, 4, %s" % v(vLane))
                rx("s_lshl_b32 %s, %s, 6" % (s(sT0), s(sTB))); rx("s_lshl_b32 %s, %s, 4" % (s(sT1), s(sWave)))
                rx("s_add_u32 %s, %s, %s" % (s(sT0), s(sT0), s(sT1)))
                rx("v_add_u32 v220, %s, v220" % s(sT0)); rx("v_lshlrev_b32 v222, 2, v220")
                rx("v_mul_u32_u24 v220, 1280, v220")
                rx("s_mul_i32 %s, %s, 160" % (s(sT1), s(sC2))); rx("v_add_u32 v220, %s, v220" % s(sT1))
                rx("v_lshl_add_u32 v240, v221, 4, v220"); rx("v_lshl_add_u32 v242, v221, 3, v220")
                rx("s_mov_b32 %s, %d" % (s(sT2), RSTD_OFF))
                rx("buffer_load_dwordx4 v[224:227], v240, %s, 0 offen" % sr(sX,4))
                rx("buffer_load_dwordx4 v[228:231], v240, %s, 0 offen offset:64" % sr(sX,4))
                rx("buffer_load_dwordx2 v[232:233], v242, %s, 0 offen offset:128" % sr(sX,4))
                rx("buffer_load_dword v234, v222, %s, %s offen sc1" % (sr(sWS,4), s(sT2)))
                main.ext(rx.L)
            aux += act_loads(q)
        if p == POLL_A_AT:
            aux.append(["buffer_load_dword v219, v218, %s, %s offen sc1" % (sr(sWS,4), s(sFL))])
        if P0 <= p + 7 <= 16: aux += w2a_groups(p + 7, p + 8)
        if p == 10: aux += w2a_groups(17, 18)
        if p == 11: aux += w2a_groups(18, 19)
        flat = []
        n = len(ms); k = 0
        for i_, m in enumerate(ms):
            main(m)
            want = (i_ + 1)*len(aux) // n
            while k < want:
                main.ext(aux[k]); k += 1
    stamp(main, 10)
    main("s_barrier")
    main("v_lshlrev_b32 v236, 4, %s" % v(vLane))
    main("s_mul_i32 %s, %s, %d" % (s(sT0), s(sWave), 20*1024))
    main("v_add_u32 v237, %s, v236" % s(sT0))
    main("s_nop 7"); main("s_nop 3")
    for w in range(4):
        main("s_cmp_lg_u32 %s, %d" % (s(sWave), w))
        main("s_cbranch_scc1 L_k2_w%d" % w)
        for tt in range(4):
            if tt == w: continue
            for ct in range(5):
                main("ds_write_b128 v237, %s offset:%d" % (vr((tt*5+ct)*4,4), (tt*5+ct)*1024))
        if w != 0:
            for r in range(20): main("v_mov_b32 %s, %s" % (v(r), v(w*20 + r)))
        main("s_branch L_k2_red")
        main.lab("L_k2_w%d" % w)
    main.lab("L_k2_red")
    main("s_waitcnt lgkmcnt(0)")
    main("s_barrier")
    main("s_mul_i32 %s, %s, 5120" % (s(sT0), s(sWave)))
    main("v_add_u32 v237, %s, v236" % s(sT0))
    for k in range(1, 4):
        main("s_add_u32 %s, %s, %d" % (s(sT1), s(sWave), k))
        main("s_and_b32 %s, %s, 3" % (s(sT1), s(sT1)))
        main("s_mul_i32 %s, %s, %d" % (s(sT1), s(sT1), 20*1024))
        main("v_add_u32 %s, %s, v237" % (v(208+k), s(sT1)))
        for ct in range(5):
            main("ds_read_b128 %s, %s offset:%d" % (vr(80 + ((k-1)*5+ct)*4, 4), v(208+k), ct*1024))
    for k in range(3):
        for r in range(0, 20, 2):
            main("v_pk_add_f32 %s, %s, %s" % (vr(r,2), vr(r,2), vr(80 + k*20 + r, 2)))
    srd(main, sW, 16, X_BYTES)
    xr = [224, 226, 228, 230, 232]
    o = 150
    for ct in range(5):
        xp = xr[ct]
        for hh in range(2):
            main("v_lshlrev_b32 v140, 16, %s" % v(xp+hh))
            main("v_and_b32 v141, 0xffff0000, %s" % v(xp+hh))
            d = ct*4 + 2*hh
            main("v_pk_fma_f32 %s, %s, %s, %s op_sel_hi:[1,0,1]" % (vr(140,2), vr(d,2), vr(234,2), vr(140,2)))
            main("v_cvt_pk_bf16_f32 %s, v140, v141" % v(o + 2*ct + hh))
    main("buffer_store_dwordx4 %s, v240, %s, 0 offen" % (vr(o,4), sr(sW,4)))
    main("buffer_store_dwordx4 %s, v240, %s, 0 offen offset:64" % (vr(o+4,4), sr(sW,4)))
    main("buffer_store_dwordx2 %s, v242, %s, 0 offen offset:128" % (vr(o+8,2), sr(sW,4)))
    stamp(main, 11)
    if "stamp" in OPTS: main("s_waitcnt vmcnt(0)")
    stamp(main, 12)
    stamp_flush(main)
    st = State(); dummy = []
    pre = []
    for g in w2a_groups(5, P0): pre += ["  " + t for t in g]
    st = process(pre, st, dummy)
    o1 = []; st = process(e.L, st, o1)
    o2 = []; st = process(main.L, st, o2)
    return o1 + o2

def top():
    out = []
    e = E()
    e("s_load_dwordx16 s[4:19], s[0:1], 0")
    e("s_load_dwordx2 s[20:21], s[0:1], 64")
    e("s_cmp_ge_u32 s2, 256")
    e("s_cbranch_scc1 L_end")
    if "stamp" in OPTS: e("v_mov_b32 %s, 0" % v(vSt))
    e("s_getpc_b64 s[60:61]")
    e.lab("L_pcbase")
    e("s_lshr_b32 s3, s2, 3")
    e("s_lshl_b32 s3, s3, 12")
    e("v_lshl_add_u32 v2, v0, 4, s3")
    e("v_min_u32 v2, L_codeend-L_pcbase-16, v2")
    if "nopf" not in OPTS: e("global_load_dwordx4 v[236:239], v2, s[60:61]")
    e("v_and_b32 %s, 63, v0" % v(vLane))
    e("v_lshrrev_b32 v1, 6, v0")
    e("s_and_b32 s3, s2, 7")
    e("v_readfirstlane_b32 %s, v1" % s(sWave))
    e("s_lshr_b32 %s, s2, 3" % s(sT0))
    e("s_and_b32 %s, s3, 1" % s(sT1))
    e("s_lshr_b32 %s, s3, 1" % s(sT2))
    e("s_lshl_b32 %s, %s, 3" % (s(sT1), s(sT1)))
    e("s_cmp_ge_u32 %s, 30" % s(sT0))
    e("s_cbranch_scc1 L_role_pf")
    e("s_cmp_ge_u32 %s, 16" % s(sT0))
    e("s_cbranch_scc1 L_role_ffn")
    e("s_lshl_b32 %s, %s, 1" % (s(sCB), s(sT2)))
    e("s_lshr_b32 %s, %s, 3" % (s(sT3), s(sT0)))
    e("s_add_u32 %s, %s, %s" % (s(sCB), s(sCB), s(sT3)))
    e("s_and_b32 %s, %s, 7" % (s(sKC), s(sT0)))
    e("s_add_u32 %s, %s, %s" % (s(sRB), s(sT1), s(sKC)))
    e("s_mul_i32 %s, %s, 5" % (s(sT3), s(sT3)))
    e("s_add_u32 %s, %s, %s" % (s(sKC), s(sKC), s(sT3)))
    e("s_cmp_ge_u32 %s, 10" % s(sKC))
    e("s_cselect_b32 %s, 10, 0" % s(sT3))
    e("s_sub_u32 %s, %s, %s" % (s(sKC), s(sKC), s(sT3)))
    if "rotk" not in OPTS: e("s_mov_b32 %s, 0" % s(sKC))
    if "rot4" in OPTS:
        e("s_and_b32 %s, %s, 1" % (s(sT3), s(sCB))); e("s_lshl_b32 %s, %s, 1" % (s(sT3), s(sT3)))
        e("s_add_u32 %s, %s, %s" % (s(sT3), s(sT3), s(sRB))); e("s_and_b32 %s, %s, 3" % (s(sT3), s(sT3)))
        e("s_mul_i32 %s, %s, 5" % (s(sT3), s(sT3))); e("s_lshr_b32 %s, %s, 1" % (s(sKC), s(sT3)))
    e("s_mul_i32 %s, %s, %d" % (s(sXO), s(sRB), 128*1280))
    e("s_sub_u32 %s, %s, %d" % (s(sXH), s(sXO), 16*1280))
    e("s_cmp_eq_u32 %s, 0" % s(sRB))
    e("s_cselect_b32 %s, 0, %s" % (s(sXH), s(sXH)))
    e("s_add_u32 %s, %s, 8" % (s(sSig), s(sCB)))
    attn_lane_setup(e)
    e("s_waitcnt lgkmcnt(0)")
    srd(e, sX, 4, X_BYTES); srd(e, sW, 6, WQKV_BYTES); srd(e, sWS, 20, WS_USED); srd(e, sDBG, 18, 256)
    stamp(e, 0)
    for w in range(3):
        e("s_cmp_eq_u32 %s, %d" % (s(sWave), w))
        e("s_cbranch_scc1 L_attn_%d" % w)
    e("s_branch L_attn_3")
    e.lab("L_role_ffn")
    e("s_mul_i32 %s, %s, 14" % (s(sT2), s(sT2)))
    e("s_add_u32 %s, %s, %s" % (s(sT2), s(sT2), s(sT0)))
    e("s_sub_u32 %s, %s, 16" % (s(sT2), s(sT2)))
    e("s_lshr_b32 %s, %s, 3" % (s(sCB), s(sT2)))
    e("s_and_b32 %s, %s, 7" % (s(sKC), s(sT2)))
    e("s_add_u32 %s, %s, %s" % (s(sRB), s(sT1), s(sKC)))
    e("s_and_b32 %s, %s, 1" % (s(sT3), s(sCB)))
    e("s_mul_i32 %s, %s, 5" % (s(sT3), s(sT3)))
    e("s_add_u32 %s, %s, %s" % (s(sKC), s(sKC), s(sT3)))
    e("s_add_u32 %s, %s, 2" % (s(sKC), s(sKC)))
    e("s_cmp_ge_u32 %s, 10" % s(sKC))
    e("s_cselect_b32 %s, 10, 0" % s(sT3))
    e("s_sub_u32 %s, %s, %s" % (s(sKC), s(sKC), s(sT3)))
    if "rotk" not in OPTS: e("s_mov_b32 %s, 0" % s(sKC))
    if "rot4" in OPTS:
        e("s_and_b32 %s, %s, 1" % (s(sT3), s(sCB))); e("s_lshl_b32 %s, %s, 1" % (s(sT3), s(sT3)))
        e("s_add_u32 %s, %s, %s" % (s(sT3), s(sT3), s(sRB))); e("s_add_u32 %s, %s, 1" % (s(sT3), s(sT3))); e("s_and_b32 %s, %s, 3" % (s(sT3), s(sT3)))
        e("s_mul_i32 %s, %s, 5" % (s(sT3), s(sT3))); e("s_lshr_b32 %s, %s, 1" % (s(sKC), s(sT3)))
    e("s_mul_i32 %s, %s, %d" % (s(sXO), s(sRB), 128*1280))
    e("s_mov_b32 %s, %s" % (s(sSig), s(sCB)))
    e("s_mul_i32 %s, %s, 7" % (s(sUn), s(sT1)))
    e("s_add_u32 %s, %s, %s" % (s(sUn), s(sUn), s(sT2)))
    ffn_lane_setup(e)
    e("s_waitcnt lgkmcnt(0)")
    srd(e, sX, 4, X_BYTES); srd(e, sW, 12, W1_BYTES); srd(e, sWS, 20, WS_USED); srd(e, sDBG, 18, 256); srd(e, sQ, 6, WQKV_BYTES)
    stamp(e, 0)
    for w in range(3):
        e("s_cmp_eq_u32 %s, %d" % (s(sWave), w))
        e("s_cbranch_scc1 L_ffn_%d" % w)
    e("s_branch L_ffn_3")
    e.lab("L_role_pf")
    e("s_lshl_b32 %s, s3, 1" % s(sCB))
    e("s_add_u32 %s, %s, %s" % (s(sCB), s(sCB), s(sT0)))
    e("s_sub_u32 %s, %s, 30" % (s(sCB), s(sCB)))
    e("s_waitcnt lgkmcnt(0)")
    srd(e, sX, 4, X_BYTES); srd(e, sWS, 20, WS_USED); srd(e, sDBG, 18, 256)
    stamp(e, 0)
    e("v_lshlrev_b32 %s, 4, %s" % (v(vL16), v(vLane)))
    unit_setup_dyn(e)
    e("s_mov_b32 %s, %d" % (s(sSzO), WO_BYTES)); e("s_mov_b32 %s, %d" % (s(sSz2), W2_BYTES))
    pf_loop(e, "l0", unit_loads_dyn, 7, 12, 0)
    stamp(e, 1)
    e("s_waitcnt vmcnt(0)")
    e("s_barrier")
    stamp(e, 2)
    pf_loop(e, "s0", unit_store_dyn, 7, 12, 0)
    stamp(e, 3)
    e("s_waitcnt vmcnt(0)")
    e("s_barrier")
    e("s_cmp_lg_u32 %s, 0" % s(sWave))
    e("s_cbranch_scc1 L_pf_nosig")
    signal_count(e, CNT_P)
    e.lab("L_pf_nosig")
    stamp(e, 4)
    ph2_setup(e, F_SLOT)
    e("s_cmp_lg_u32 %s, 0" % s(sWave))
    e("s_cbranch_scc1 L_pf_nospin")
    spin_count(e, "pf", CNT_P, N_P, 250)
    e.lab("L_pf_nospin")
    e("s_barrier")
    get_nonce(e, "pf", 250)
    stamp(e, 5)
    if "ph1only" in OPTS: stamp_flush(e); e("s_endpgm")
    for g in w2l_groups(0, 25): e.ext(g)
    e("v_lshlrev_b32 v2, 2, %s" % v(vLane))
    e("buffer_load_dword %s, v2, %s, %s offen sc1" % (v(vPoll), sr(sWS,4), s(sFL)))
    for g in w2a_groups(5, P0): e.ext(g)
    e("s_waitcnt vmcnt(%d)" % (5*(P0-5)))
    e("s_branch L_ph2")
    out += process_path(e.L, None, None, [])
    for role in ("attn", "ffn"):
        for w in range(4):
            tag = "%s_%d" % (role, w)
            pre = E(); pre.lab("L_" + tag)
            if role == "attn":
                cfg = attn_cfg(w)
                def extra(e, w=w):
                    read_addr_setup_attn(e)
                    if w == 0:
                        e("s_cmp_lg_u32 s2, 0 ; rare"); e("s_cbranch_scc1 L_nononce ; rare")
                        e("s_memrealtime s[96:97] ; rare"); e("s_waitcnt lgkmcnt(0) ; rare")
                        e("s_or_b32 s96, s96, 1 ; rare"); e("v_mov_b32 v14, s96 ; rare"); e("v_mov_b32 v15, 0 ; rare")
                        e("buffer_store_dword v14, v15, %s, 0 offen sc1 ; rare" % sr(sDBG,4))
                        e.lab("L_nononce")
                        e("v_and_b32 v2, 7, %s" % v(vLane))
                        e("v_lshlrev_b32 v7, 4, v2")
                        e("v_mov_b32 v8, 0x3f803f80"); e("v_mov_b32 v9, v8"); e("v_mov_b32 v10, v8"); e("v_mov_b32 v11, v8")
                        e("ds_write_b128 v7, v[8:11]")
                        e("v_add_u32 v12, %d, v7" % A_SLOT); e("ds_write_b128 v12, v[8:11]")
                        e("v_add_u32 v13, %d, v7" % (2*A_SLOT)); e("ds_write_b128 v13, v[8:11]")
                body, post, side = role_main(pre, tag, cfg, attn_dma_list(w), vDO, w, 160, extra)
                ep = E(); attn_epilogue(w, ep)
            else:
                cfg = ffn_cfg(w)
                body, post, side = role_main(pre, tag, cfg, ffn_dma_list(w), fDO, w, 152, read_addr_setup_ffn, units=("nounits" not in OPTS))
                ep = E(); ffn_epilogue(w, ep)
            groups = w2a_groups(5, P0) if "ph1only" not in OPTS else []
            nin = (ATT_W2A_IN if role == "attn" else FFN_W2A_IN) if groups else 0
            epl = sprinkle(ep.L, groups[:nin], start=4, end_gap=(ATT_ENDGAP if role == "attn" else 10)) if nin else ep.L
            fin = E()
            stamp(fin, 6)
            fin("v_lshlrev_b32 v2, 2, %s" % v(vLane))
            if "nopoll" not in OPTS: fin("buffer_load_dword %s, v2, %s, %s offen sc1" % (v(vPoll), sr(sWS,4), s(sFL)))
            nb = min(W2A_BEFORE_SIG, len(groups) - nin)
            for g in groups[nin:nin+nb]: fin.ext(g)
            fin("s_waitcnt vmcnt(%d)" % nb)
            stamp(fin, 7)
            if "ph1only" in OPTS:
                stamp_flush(fin); fin("s_endpgm")
            else:
                fin("s_barrier")
                signal_rb(fin, tag, None)
                for g in groups[nin+nb:]: fin.ext(g)
                fin("s_branch L_ph2")
            out += process_path(pre.L, "L_loop_" + tag, body, post.L + epl + fin.L)
            out += side
    out += phase2()
    out.append("L_end:")
    return out

def kd(name, nfv, accum, sg=102):
    return """.section .rodata,"a"
.p2align 6
.amdhsa_kernel %s
  .amdhsa_next_free_vgpr %d
  .amdhsa_next_free_sgpr %d
  .amdhsa_accum_offset %d
  .amdhsa_group_segment_fixed_size 0
  .amdhsa_kernarg_size 72
  .amdhsa_user_sgpr_count 2
  .amdhsa_user_sgpr_kernarg_segment_ptr 1
  .amdhsa_system_sgpr_workgroup_id_x 1
  .amdhsa_float_denorm_mode_32 3
.end_amdhsa_kernel
""" % (name, nfv, sg, accum)

HEADER = """; Kernarg (72 bytes): [0] A_x [8] A_wqkv [16] A_wo [24] B_x [32] B_w1 [40] B_w2 [48] out [56] debug [64] ws
; @launch grid=(256,1,1) block=(256,1,1) lds=163840
.amdgcn_target "amdgcn-amd-amdhsa--gfx950"
"""
def main():
    if len(sys.argv) > 2: OPTS.update(sys.argv[2].split(","))
    k = top()
    txt = HEADER + ".text\n.globl %s\n.p2align 8\n.type %s,@function\n%s:\n" % (KNAME, KNAME, KNAME) + "\n".join(k) + "\ns_endpgm\nL_codeend:\n" + kd(KNAME, 512, 256)
    path = sys.argv[1] if len(sys.argv) > 1 else "out2.s"
    open(path, "w").write(txt)
    print("wrote", path, len(txt), "bytes;", len(k), "lines")
if __name__ == "__main__": main()
```

```python
import sys, struct
from irlib import *

KNAME = "parallel_sum__sliding_local_dilated__dense_activation_relu__prompt_kernel"
S_, D_, DFF = 2048, 640, 1728
X_BYTES = S_*D_*2; WQKV_BYTES = D_*3*D_*2; WO_BYTES = D_*D_*2; W1_BYTES = D_*DFF*2; W2_BYTES = DFF*D_*2
NKS = 74
ACT_OFF = 0; ACT_TB = NKS*4096
W2F_OFF = 10*1024*1024; W2F_CB = NKS*5120
RSTD_OFF = 14*1024*1024
STAMP_OFF = 16*1024*1024
WS_USED = 17*1024*1024
OOB = 0x7F000000
FLAG_OFF = 15*1024*1024
MASK_F, MASK_A, MASK_P = 0x7f, 0xff00, 0xffff0000
SPIN_MAX = 200000
OPTS = set()
def f2u(x): return struct.unpack("<I", struct.pack("<f", x))[0]
def v(i): return "v%d" % i
def vr(i, n): return "v[%d:%d]" % (i, i+n-1)
def a(i): return "a%d" % i
def ar(i, n): return "a[%d:%d]" % (i, i+n-1)
def s(i): return "s%d" % i
def sr(i, n): return "s[%d:%d]" % (i, i+n-1)
MFMA = "v_mfma_f32_16x16x32_bf16"

class E:
    def __init__(self): self.L = []
    def __call__(self, t): self.L.append("  " + t)
    def lab(self, t): self.L.append(t + ":")
    def ext(self, lines):
        for t in lines: self.L.append(t if t.startswith("  ") or t.endswith(":") else "  " + t)

sWave = 22
sX, sW, sWS, sDBG = 24, 28, 32, 76
sRB, sCB, sKC, sSoX, sSoW, sDSlot, sRDelta, sIter = 36, 37, 38, 39, 40, 41, 42, 43
sT0, sT1, sT2, sT3 = 46, 47, 48, 49
sM = 50
sTB, sC2, sSig, sWB, sAB, sLA, sLB, sP0, sP1, sRB2 = 80, 81, 82, 83, 84, 85, 86, 87, 88, 89
sKQ = [4,5,6,7,8,9,10,11,12,13,14,15,18,19]
sNonce, sFL = 23, 45
sD0, sD1 = 90, 91
sXO, sXH = 92, 93
vLane = 255
vSt = 247
vPoll = 243
vNon = 252

def stamp(e, i):
    if "stamp" in OPTS:
        e("s_memrealtime s[96:97]"); e("s_memtime s[98:99]"); e("s_waitcnt lgkmcnt(0)")
        e("v_writelane_b32 %s, s96, %d" % (v(vSt), 2*i)); e("v_writelane_b32 %s, s98, %d" % (v(vSt), 2*i+1))
def stamp_flush(e):
    if "stamp" not in OPTS: return
    if "dbgst" in OPTS:
        uid = len(e.L)
        for wg, lst, base in ((0, [3,4,5,6,9,12], 2), (128, [3,4,5,7,9], 8), (240, [4,5,8], 13)):
            lab = "L_ds_%d_%d" % (wg, uid)
            e("s_cmp_lg_u32 s2, %d" % wg); e("s_cbranch_scc1 %s" % lab)
            e("s_cmp_lg_u32 %s, 0" % s(sWave)); e("s_cbranch_scc1 %s" % lab)
            e("v_readlane_b32 s96, %s, 0" % v(vSt))
            for n_, i in enumerate(lst):
                e("v_readlane_b32 s97, %s, %d" % (v(vSt), 2*i))
                e("s_nop 4")
                e("s_sub_u32 s97, s97, s96")
                e("v_mov_b32 v1, s97"); e("v_mov_b32 v2, %d" % (4*(base+n_)))
                e("buffer_store_dword v1, v2, %s, 0 offen" % sr(sDBG,4))
            e.lab(lab)
        return
    e("s_lshl_b32 s3, s2, 2"); e("s_add_u32 s3, s3, %s" % s(sWave)); e("s_lshl_b32 s3, s3, 8")
    e("s_add_u32 s3, s3, %d" % STAMP_OFF)
    e("v_lshlrev_b32 v1, 2, %s" % v(vLane))
    e("buffer_store_dword %s, v1, %s, s3 offen" % (v(vSt), sr(sWS,4)))

def srd(e, base, ptr, nbytes):
    e("s_mov_b32 %s, %s" % (s(base), s(ptr)))
    e("s_and_b32 %s, %s, 0xffff" % (s(base+1), s(ptr+1)))
    e("s_mov_b32 %s, %d" % (s(base+2), nbytes))
    e("s_mov_b32 %s, 0x20000" % s(base+3))

def check_flags(e, mask, val, oklab, rare=""):
    e("v_cmp_eq_u32 vcc, %s, %s%s" % (s(sNonce), v(val), rare))
    e("s_nop 3" + rare)
    e("s_and_b32 %s, vcc_lo, 0x%x%s" % (s(sT0), mask, rare))
    e("s_cmp_eq_u32 %s, 0x%x%s" % (s(sT0), mask, rare))
    e("s_cbranch_scc1 %s%s" % (oklab, rare))
def spin_flags(e, tag, mask, vtmp, have_first=None):
    R = " ; rare"
    if have_first is not None: check_flags(e, mask, have_first, "L_ok_%s" % tag)
    e("s_mov_b32 %s, 0" % s(sT1) + R)
    e("v_lshlrev_b32 %s, 2, %s" % (v(vtmp+1), v(vLane)) + R)
    e.lab("L_spin_%s" % tag)
    e("buffer_load_dword %s, %s, %s, %s offen sc1" % (v(vtmp), v(vtmp+1), sr(sWS,4), s(sFL)) + R)
    e("s_waitcnt vmcnt(0)" + R)
    check_flags(e, mask, vtmp, "L_ok_%s" % tag, R)
    e("s_sleep %d" % FSLEEP + R)
    e("s_add_u32 %s, %s, 1" % (s(sT1), s(sT1)) + R)
    e("s_cmp_lt_u32 %s, %d" % (s(sT1), SPIN_MAX) + R)
    e("s_cbranch_scc1 L_spin_%s" % tag + R)
    e.lab("L_ok_%s" % tag)
def get_nonce(e, tag, vtmp, have_first=None):
    R = " ; rare"
    if have_first is not None:
        e("v_readfirstlane_b32 %s, %s" % (s(sNonce), v(have_first)))
        e("s_nop 3")
        e("s_cmp_lg_u32 %s, 0" % s(sNonce))
        e("s_cbranch_scc1 L_nok_%s" % tag)
    e("s_mov_b32 %s, 0" % s(sT1) + R)
    e("v_mov_b32 %s, 0" % v(vtmp+1) + R)
    e.lab("L_nspin_%s" % tag)
    e("buffer_load_dword %s, %s, %s, 0 offen sc1" % (v(vtmp), v(vtmp+1), sr(sDBG,4)) + R)
    e("s_waitcnt vmcnt(0)" + R)
    e("v_readfirstlane_b32 %s, %s" % (s(sNonce), v(vtmp)) + R)
    e("s_nop 3" + R)
    e("s_cmp_lg_u32 %s, 0" % s(sNonce) + R)
    e("s_cbranch_scc1 L_nok_%s" % tag + R)
    e("s_sleep 8" + R)
    e("s_add_u32 %s, %s, 1" % (s(sT1), s(sT1)) + R)
    e("s_cmp_lt_u32 %s, %d" % (s(sT1), SPIN_MAX) + R)
    e("s_cbranch_scc1 L_nspin_%s" % tag + R)
    e.lab("L_nok_%s" % tag)
def signal_rb(e, tag, word_sgpr_expr):
    e("s_cmp_lg_u32 %s, 0" % s(sWave))
    e("s_cbranch_scc1 L_nosig_%s" % tag)
    R = " ; rare"
    e("s_and_b32 %s, %s, 1" % (s(sT0), s(sRB)) + R)
    e("s_lshl_b32 %s, %s, 4" % (s(sT0), s(sT0)) + R)
    e("v_add_u32 v1, %s, %s" % (s(sT0), v(vLane)) + R)
    e("v_lshlrev_b32 v1, 3, v1" + R)
    e("s_lshr_b32 %s, %s, 1" % (s(sT0), s(sRB)) + R)
    e("v_add_u32 v1, %s, v1" % s(sT0) + R)
    e("v_lshlrev_b32 v1, 7, v1" + R)
    e("s_lshl_b32 %s, %s, 2" % (s(sT0), s(sSig)) + R)
    e("s_add_u32 %s, %s, %d" % (s(sT0), s(sT0), FLAG_OFF) + R)
    e("v_mov_b32 v2, %s" % s(sNonce) + R)
    e("s_mov_b32 exec_lo, 0xffff" + R); e("s_mov_b32 exec_hi, 0" + R)
    e("buffer_store_dword v2, v1, %s, %s offen sc1" % (sr(sWS,4), s(sT0)) + R)
    e("s_mov_b64 exec, -1" + R)
    e.lab("L_nosig_%s" % tag)

class Cfg: pass

def chunk_body(cfg, dma, last=False, rolled_tag=None, closing_vm=None, first_vm=None):
    NT = cfg.ntile; NF = 2*NT; R = cfg.ring; L = cfg.look; TAIL = cfg.tail
    assert NF % R == 0
    wreg = lambda f: cfg.wbase + (f % R)*4
    def wreads(f):
        kh, c = divmod(f % NF, NT); return cfg.wread(kh, c, wreg(f))
    def mf(f):
        kh, c = divmod(f % NF, NT); return cfg.mf(kh, c, wreg(f))
    NFIRST = cfg.nfirst
    items = []
    for f in range(0, NF - TAIL):
        g = f + L
        rd = wreads(g) if NFIRST <= g < NF else []
        if f == cfg.xread1_at: rd = rd + cfg.xreads(1)
        ms = []
        if f == 0 and "nostats" not in OPTS: ms += cfg.stats(0)
        if f == NT and "nostats" not in OPTS: ms += cfg.stats(1)
        ms += mf(f)
        items.append((rd, ms))
    issued = set(range(NFIRST)) | {f + L for f in range(0, NF - TAIL) if NFIRST <= f + L < NF}
    assert issued == set(range(NF)), (sorted(set(range(NF)) - issued))
    nm = sum(len(m) for _, m in items)
    out = []
    nd = len(dma)
    st = cfg.dma_start + cfg.dma_skew; en = nm - cfg.dma_endgap
    pos = [st + (en - st)*i // max(nd, 1) for i in range(nd)]
    cnt = 0; di = 0
    for rd, ms in items:
        rq = list(rd)
        for k, m in enumerate(ms):
            if rq:
                take = (len(rq) + (len(ms) - k) - 1) // (len(ms) - k)
                for _ in range(take): out.append(rq.pop(0))
            out.append(m); cnt += 1
            while di < nd and pos[di] <= cnt:
                out += dma[di]; di += 1
    assert di == nd
    if closing_vm is None: out.append("s_waitcnt lgkmcnt(0)")
    elif first_vm is not None:
        out.append("s_cmp_eq_u32 %s, 0" % s(sIter))
        out.append("s_cbranch_scc1 L_first_%s" % rolled_tag)
        out.append("s_waitcnt vmcnt(%d) lgkmcnt(0)" % closing_vm)
        out.append("L_join_%s:" % rolled_tag)
    else: out.append("s_waitcnt vmcnt(%d) lgkmcnt(0)" % closing_vm)
    out.append("s_barrier")
    aux = []
    if not last:
        aux += cfg.addr_update + cfg.xreads(0)
        for f in range(NFIRST): aux += wreads(f)
    if rolled_tag: aux += cfg.scal_update
    tail = []
    for f in range(NF - TAIL, NF): tail += mf(f)
    per = -(-len(aux) // max(len(tail), 1))
    for m in tail:
        out.append(m)
        for _ in range(per):
            if aux: out.append(aux.pop(0))
    out += aux
    if rolled_tag:
        out.append("s_cbranch_scc1 L_loop_%s" % rolled_tag)
    return ["  ; lgextra 2"] + [t if t.endswith(":") else "  " + t for t in out] + ["  ; lgextra 0"]

sCp, sCm = 94, 95
def scal_update(slot, wstep, halo=False):
    t = []
    if "rotk" in OPTS:
        t.append("s_add_u32 %s, %s, 1" % (s(sKC), s(sKC)))
        t.append("s_cmp_eq_u32 %s, 10" % s(sKC))
        t.append("s_cselect_b32 %s, 0, %s" % (s(sKC), s(sKC)))
        t.append("s_lshl_b32 %s, %s, 7" % (s(sSoX), s(sKC)))
        t.append("s_mul_i32 %s, %s, %d" % (s(sSoW), s(sKC), wstep))
    else:
        t.append("s_add_u32 %s, %s, 128" % (s(sSoX), s(sSoX)))
        t.append("s_add_u32 %s, %s, %d" % (s(sSoW), s(sSoW), wstep))
    t.append("s_cmp_eq_u32 %s, %d" % (s(sDSlot), 2*slot))
    t.append("s_cselect_b32 %s, %s, %s" % (s(sRDelta), s(sCm), s(sCp)))
    t.append("s_add_u32 %s, %s, %s" % (s(sDSlot), s(sDSlot), s(sRDelta)))
    t.append("s_add_u32 %s, %s, 1" % (s(sIter), s(sIter)))
    t.append("s_cmp_lt_u32 %s, 8" % s(sIter))
    return t
def addr_update(slot, regs):
    t = []
    t.append("s_cmp_eq_u32 %s, %d" % (s(sDSlot), slot))
    t.append("s_cselect_b32 %s, %s, %s" % (s(sRDelta), s(sCm), s(sCp)))
    for r in regs: t.append("v_add_u32 %s, %s, %s" % (v(r), s(sRDelta), v(r)))
    return t

vL16, vL16b = 241, 245
def w2_soff(p, dst):
    if p < 14: return ["s_mul_i32 %s, %s, 5" % (s(dst), s(sKQ[p])), "s_add_u32 %s, %s, %s" % (s(dst), s(dst), s(sWB))]
    return ["s_mul_i32 %s, %s, 5120" % (s(dst), s(sWave)), "s_add_u32 %s, %s, %s" % (s(dst), s(dst), s(sWB)),
            "s_add_u32 %s, %s, %d" % (s(dst), s(dst), 4*(p-14)*5120)]
def w2l_groups(q0, q1):
    G = []
    for q in range(q0, q1):
        p, ct = divmod(q, 5)
        g = []
        if ct == 0 or q == q0: g += w2_soff(p, sP0)
        g.append("s_add_u32 m0, %s, %d" % (s(sLA if q < 12 else sLB), (q if q < 12 else q - 12)*1024))
        g.append("s_add_u32 %s, %s, %d" % (s(sP1), s(sP0), ct*1024))
        g.append("buffer_load_dwordx4 %s, %s, %s offen sc1 lds" % (v(vL16), sr(sWS,4), s(sP1)))
        G.append(g)
    return G
def w2a_groups(p0, p1):
    G = []
    for p in range(p0, p1):
        base = ((p - 5) % 12)*20
        for ct in range(5):
            g = []
            if ct == 0: g += w2_soff(p, sP0)
            if ct < 4: g.append("buffer_load_dwordx4 %s, %s, %s, %s offen offset:%d sc1" % (ar(base+4*ct,4), v(vL16), sr(sWS,4), s(sP0), ct*1024))
            else:      g.append("buffer_load_dwordx4 %s, %s, %s, %s offen sc1" % (ar(base+16,4), v(vL16b), sr(sWS,4), s(sP0)))
            G.append(g)
    return G
def ph2_setup(e, slot):
    e("s_and_b32 %s, s2, 7" % s(sT0))
    e("s_lshr_b32 %s, s2, 3" % s(sT1))
    e("s_lshr_b32 %s, %s, 3" % (s(sTB), s(sT1)))
    e("s_lshl_b32 %s, %s, 2" % (s(sT0), s(sT0)))
    e("s_add_u32 %s, %s, %s" % (s(sTB), s(sTB), s(sT0)))
    e("s_and_b32 %s, %s, 7" % (s(sC2), s(sT1)))
    e("s_lshr_b32 %s, %s, 1" % (s(sRB2), s(sTB)))
    e("s_lshl_b32 %s, %s, 2" % (s(sRB2), s(sRB2)))
    e("s_mul_i32 %s, %s, %d" % (s(sWB), s(sC2), W2F_CB))
    e("s_add_u32 %s, %s, %d" % (s(sWB), s(sWB), W2F_OFF))
    e("s_mul_i32 %s, %s, %d" % (s(sAB), s(sTB), ACT_TB))
    if ACT_OFF: e("s_add_u32 %s, %s, %d" % (s(sAB), s(sAB), ACT_OFF))
    e("s_mul_i32 %s, %s, 12288" % (s(sLA), s(sWave)))
    e("s_add_u32 %s, %s, %d" % (s(sLA), s(sLA), slot))
    e("s_mul_i32 %s, %s, 13312" % (s(sLB), s(sWave)))
    e("s_add_u32 %s, %s, %d" % (s(sLB), s(sLB), 2*slot))
    e("s_mul_i32 %s, %s, 7" % (s(sT0), s(sC2)))
    e("s_lshr_b32 %s, %s, 2" % (s(sT0), s(sT0)))
    e("s_and_b32 %s, %s, 3" % (s(sT1), s(sTB)))
    e("s_mul_i32 %s, %s, 7" % (s(sT1), s(sT1)))
    e("s_lshr_b32 %s, %s, 1" % (s(sT1), s(sT1)))
    e("s_add_u32 %s, %s, %s" % (s(sT0), s(sT0), s(sT1)))
    e("s_sub_u32 %s, %s, 14" % (s(sT1), s(sT0)))
    e("s_cmp_ge_u32 %s, 14" % s(sT0))
    e("s_cselect_b32 %s, %s, %s" % (s(sT0), s(sT1), s(sT0)))
    e("s_lshl_b32 %s, %s, 2" % (s(sT0), s(sT0)))
    e("s_add_u32 %s, %s, %s" % (s(sT0), s(sT0), s(sWave)))
    e("s_add_u32 %s, %s, 20" % (s(sT0), s(sT0)))
    for p in range(14):
        e("s_lshl_b32 %s, %s, 10" % (s(sKQ[p]), s(sT0)))
        e("s_cmp_ge_u32 %s, %d" % (s(sT0), NKS))
        e("s_cselect_b32 %s, 0x10000000, %s" % (s(sKQ[p]), s(sKQ[p])))
        if p < 13:
            e("s_add_u32 %s, %s, 4" % (s(sT0), s(sT0)))
            e("s_sub_u32 %s, %s, 56" % (s(sT1), s(sT0)))
            e("s_cmp_ge_u32 %s, 76" % s(sT0))
            e("s_cselect_b32 %s, %s, %s" % (s(sT0), s(sT1), s(sT0)))
    e("v_add_u32 %s, 4096, %s" % (v(vL16b), v(vL16)))
    e("s_lshl_b32 %s, s2, 7" % s(sFL))
    e("s_add_u32 %s, %s, %d" % (s(sFL), s(sFL), FLAG_OFF))

vZero = 249

A_SLOT = 53248; A_XB = 18432; A_WPAIR = 1088
A_XJ = [[0,1,2,3,4],[5,6,7,8,9],[10,11,12,13],[14,15,16,17]]
vWA, vX0, vX1 = 160, 161, 162
vXE, vXOd, vWL = 163, 164, 165
aW, aXF, aONE = 0, 40, 64
def acc_own(T, c): return (T*15 + c)*4
def acc_halo(eidx): return 120 + eidx*4
vSumT = [136, 140]; vSqT = [144, 148]; vSumH, vSqH = 152, 156
def xf(kh, T): return aXF + (kh*3 + T)*4

def x_lane_setup(e, vE, vO):
    e("v_lshrrev_b32 v1, 3, %s" % v(vLane))
    e("v_and_b32 v2, 7, %s" % v(vLane))
    e("v_lshrrev_b32 v3, 4, %s" % v(vLane))
    e("v_mul_u32_u24 v4, 1280, v1")
    e("v_xor_b32 v5, v2, v3")
    e("v_lshl_add_u32 %s, v5, 4, v4" % v(vE))
    e("v_xor_b32 %s, 64, %s" % (v(vO), v(vE)))

def attn_lane_setup(e):
    x_lane_setup(e, vXE, vXOd)
    e("v_cmp_le_u32 vcc, 30, %s" % v(vLane))
    e("v_mov_b32 v9, 0x40000000")
    e("v_cndmask_b32_e64 v6, 0, 1, vcc")
    e("v_cmp_le_u32 vcc, 60, %s" % v(vLane))
    e("v_mul_u32_u24 v7, 30, v6")
    e("v_sub_u32 v7, %s, v7" % v(vLane))
    e("v_mul_u32_u24 v8, 26, v7")
    e("v_lshrrev_b32 v8, 8, v8")
    e("v_mul_u32_u24 v8, 1120, v8")
    e("v_mul_u32_u24 v6, 3840, v6")
    e("v_lshlrev_b32 v7, 4, v7")
    e("v_add3_u32 v6, v6, v7, v8")
    e("s_mul_i32 %s, %s, 160" % (s(sT0), s(sCB)))
    e("v_add_u32 v6, %s, v6" % s(sT0))
    e("v_cndmask_b32_e64 %s, v6, v9, vcc" % v(vWL))

vDO = 166
def attn_dma_list(w):
    L = []
    for grp in ([[0,1],[2,3,4]], [[5,6,7,8],[9]], [[10,11,12,13]], [[14,15,16,17]])[w]:
        for m, j in enumerate(grp):
            imm = m*1024
            L.append(("x", j*1024 if m == 0 else None, imm, vXOd if j & 1 else vXE, (j*8*1280 if j < 2 else (j-2)*8*1280) - imm, j < 2, w == 0 and j == 0))
    kh = w >> 1; rd = w & 1
    for m in range(8):
        k = 32*kh + 8*(m >> 1) + 4*rd + 2*(m & 1)
        L.append(("w", A_XB + (8*w + m)*A_WPAIR if m % 4 == 0 else None, (m & 3)*A_WPAIR, vWL, k*3840 - (m & 3)*A_WPAIR, False, False))
    return L
def ffn_dma_list(w):
    L = []
    for m in range(4):
        j = 4*w + m
        L.append(("x", 4*w*1024 if m == 0 else None, m*1024, fXOd if j & 1 else fXE, j*8*1280 - m*1024, False, False))
    for m in range(8):
        kh, grp = m >> 2, m & 3
        k = 32*kh + 16*(grp & 1) + 4*(grp >> 1)
        L.append(("w", F_XB + w*8192 + m*1024 if m % 4 == 0 else None, (m & 3)*1024, fWL, k*3456 + w*128 - (m & 3)*1024, False, False))
    return L
def dma_groups_salu(L):
    G = []; tmp = [sD0, sD1]
    for n, (kind, m0c, imm, lane, uc, halo, mask) in enumerate(L):
        g = []; t = tmp[n & 1]
        if m0c is not None: g.append("s_add_u32 m0, %s, %d" % (s(sDSlot), m0c))
        if kind == "x":
            g.append("s_add_u32 %s, %s, %s" % (s(t), s(sSoX), s(sXH if halo else sXO)))
            if uc: g.append("s_add_u32 %s, %s, %d" % (s(t), s(t), uc))
        else: g.append("s_add_u32 %s, %s, %d" % (s(t), s(sSoW), uc))
        if mask: g.append("s_mov_b32 exec_lo, 0xffffff00")
        g.append("buffer_load_dwordx4 %s, %s, %s offen offset:%d lds" % (v(lane), sr(sX if kind == "x" else sW,4), s(t), imm))
        if mask: g.append("s_mov_b32 exec_lo, -1")
        G.append(g)
    return G
def dma_offsets_setup(e, L, base):
    for n, (kind, m0c, imm, lane, uc, halo, mask) in enumerate(L):
        if kind == "x":
            e("s_add_u32 %s, %s, %d" % (s(sD0), s(sXH if halo else sXO), uc))
            e("v_add_u32 %s, %s, %s" % (v(base+n), s(sD0), v(lane)))
        else:
            e("v_add_u32 %s, %d, %s" % (v(base+n), uc, v(lane)))
def dma_groups_vgpr(L, base):
    G = []
    for n, (kind, m0c, imm, lane, uc, halo, mask) in enumerate(L):
        g = []
        if m0c is not None:
            m0 = "s_add_u32 m0, %s, %d" % (s(sDSlot), m0c)
            if G: G[-1].append(m0)
            else: G.append([m0])
        if mask: g.append("s_mov_b32 exec_lo, 0xffffff00")
        g.append("buffer_load_dwordx4 %s, %s, %s offen offset:%d lds" % (v(base+n), sr(sX if kind == "x" else sW,4), s(sSoX if kind == "x" else sSoW), imm))
        if mask: g.append("s_mov_b32 exec_lo, -1")
        G.append(g)
    return G

def attn_cfg(w):
    cfg = Cfg()
    cfg.ntile = 15; cfg.ring = 10; cfg.look = 6; cfg.tail = 4; cfg.nfirst = 6; cfg.wbase = aW
    H = [c for c in range(15) if c % 4 == w]
    def wread(kh, c, reg):
        off = kh*16*A_WPAIR + 32*c
        return ["ds_read_b64_tr_b16 %s, %s offset:%d" % (ar(reg,2), v(vWA), off),
                "ds_read_b64_tr_b16 %s, %s offset:%d" % (ar(reg+2,2), v(vWA), off + 8*A_WPAIR)]
    def mf(kh, c, reg):
        out = []
        for T in (0, 1):
            d = vr(acc_own(T, c), 4)
            if c < 10: out.append("%s %s, %s, %s, %s" % (MFMA, d, ar(reg,4), ar(xf(kh,T),4), d))
            else:      out.append("%s %s, %s, %s, %s" % (MFMA, d, ar(xf(kh,T),4), ar(reg,4), d))
        if c in H and "nohalo" not in OPTS:
            d = vr(acc_halo(c >> 2), 4)
            if c < 10: out.append("%s %s, %s, %s, %s" % (MFMA, d, ar(reg,4), ar(xf(kh,2),4), d))
            else:      out.append("%s %s, %s, %s, %s" % (MFMA, d, ar(xf(kh,2),4), ar(reg,4), d))
        return out
    def stats(kh):
        out = []
        for T in (0, 1):
            out.append("%s %s, %s, %s, %s" % (MFMA, vr(vSumT[T],4), ar(aONE,4), ar(xf(kh,T),4), vr(vSumT[T],4)))
            out.append("%s %s, %s, %s, %s" % (MFMA, vr(vSqT[T],4), ar(xf(kh,T),4), ar(xf(kh,T),4), vr(vSqT[T],4)))
        if w == 3:
            out.append("%s %s, %s, %s, %s" % (MFMA, vr(vSumH,4), ar(aONE,4), ar(xf(kh,2),4), vr(vSumH,4)))
            out.append("%s %s, %s, %s, %s" % (MFMA, vr(vSqH,4), ar(xf(kh,2),4), ar(xf(kh,2),4), vr(vSqH,4)))
        return out
    def xreads(kh):
        ad = vX1 if kh else vX0
        return ["ds_read_b128 %s, %s offset:%d" % (ar(xf(kh,0),4), v(ad), (1+2*w)*2048),
                "ds_read_b128 %s, %s offset:%d" % (ar(xf(kh,1),4), v(ad), (2+2*w)*2048),
                "ds_read_b128 %s, %s offset:%d" % (ar(xf(kh,2),4), v(ad), 0)]
    cfg.wread = wread; cfg.mf = mf; cfg.stats = stats; cfg.xreads = xreads
    cfg.xread1_at = 4
    cfg.addr_update = addr_update(A_SLOT, [vWA, vX0, vX1])
    cfg.scal_update = scal_update(A_SLOT, 64*3840, halo=(w == 0))
    cfg.dma_start = 2; cfg.dma_skew = w; cfg.dma_endgap = 8
    cfg.wstep = 64*3840; cfg.slot = A_SLOT
    return cfg

def xaddr_setup(e, X0, X1, base):
    e("v_and_b32 v1, 15, %s" % v(vLane))
    e("v_lshrrev_b32 v4, 4, %s" % v(vLane))
    e("v_lshrrev_b32 v2, 1, v1")
    e("v_xor_b32 v2, v2, v4")
    e("v_lshlrev_b32 v2, 4, v2")
    e("v_lshl_add_u32 v2, v1, 7, v2")
    e("v_add_u32 %s, %d, v2" % (v(X0), base))
    e("v_xor_b32 v2, 64, v2")
    e("v_add_u32 %s, %d, v2" % (v(X1), base))

def read_addr_setup_attn(e):
    e("v_and_b32 v1, 15, %s" % v(vLane))
    e("v_lshrrev_b32 v2, 2, v1")
    e("v_and_b32 v3, 3, v1")
    e("v_lshrrev_b32 v4, 4, %s" % v(vLane))
    e("v_lshrrev_b32 v5, 1, v2")
    e("v_lshl_add_u32 v5, v4, 1, v5")
    e("v_mul_u32_u24 v5, %d, v5" % A_WPAIR)
    e("v_and_b32 v2, 1, v2")
    e("v_mul_u32_u24 v2, 480, v2")
    e("v_lshlrev_b32 v3, 3, v3")
    e("v_add3_u32 v5, v5, v2, v3")
    e("v_add_u32 %s, %d, v5" % (v(vWA), A_XB))
    xaddr_setup(e, vX0, vX1, 0)

sSzO, sSz2 = 69, 70
sQ = 72
vPFo, vPFd = 182, 183
def coop_setup(e, w):
    e("s_lshr_b32 %s, s2, 3" % s(sT0)); e("s_sub_u32 %s, %s, 16" % (s(sT0), s(sT0)))
    e("s_and_b32 %s, s2, 1" % s(sT1))
    e("s_and_b32 %s, s2, 7" % s(sT2)); e("s_lshr_b32 %s, %s, 1" % (s(sT2), s(sT2)))
    e("v_mov_b32 v3, 0x40000000")
    if w < 2:
        e("s_mul_i32 %s, %s, 75" % (s(sT0), s(sT0)))
        e("s_lshl_b32 %s, %s, 10" % (s(sT1), s(sT1)))
        e("s_add_u32 %s, %s, %s" % (s(sT0), s(sT0), s(sT1)))
        e("s_add_u32 %s, %s, %d" % (s(sT0), s(sT0), (38*w - 16) & 0xffffffff))
        e("v_add_u32 v1, %s, %s" % (s(sT0), v(vLane)))
        e("v_max_i32 v1, 0, v1")
        e("v_mul_u32_u24 v1, 1280, v1")
        e("v_cmp_gt_u32 vcc, 38, %s" % v(vLane))
    elif w == 2:
        e("s_mul_i32 %s, %s, 42" % (s(sT0), s(sT0)))
        e("v_add_u32 v1, %s, %s" % (s(sT0), v(vLane)))
        e("v_mul_u32_u24 v2, 7282, v1"); e("v_lshrrev_b32 v2, 16, v2")
        e("v_mul_u32_u24 v4, 9, v2"); e("v_sub_u32 v4, v1, v4")
        e("v_mul_u32_u24 v5, 86, v4"); e("v_lshrrev_b32 v5, 8, v5")
        e("v_mul_u32_u24 v6, 3, v5"); e("v_sub_u32 v6, v4, v6")
        e("s_mul_i32 %s, %s, 320" % (s(sT2), s(sT2))); e("s_lshr_b32 %s, %s, 7" % (s(sT2), s(sT2)))
        e("v_add_u32 v6, %s, v6" % s(sT2))
        e("v_mul_u32_u24 v1, 3840, v2"); e("v_mul_u32_u24 v5, 1280, v5")
        e("v_lshl_add_u32 v1, v6, 7, v1"); e("v_add_u32 v1, v1, v5")
        e("v_cmp_gt_u32 vcc, 42, %s" % v(vLane))
    else:
        e("s_mul_i32 %s, %s, 55" % (s(sT0), s(sT0)))
        e("v_add_u32 v1, %s, %s" % (s(sT0), v(vLane)))
        e("v_mul_u32_u24 v2, 5462, v1"); e("v_lshrrev_b32 v2, 16, v2")
        e("v_mul_u32_u24 v4, 12, v2"); e("v_sub_u32 v4, v1, v4")
        e("s_mul_i32 %s, %s, 14" % (s(sT2), s(sT2))); e("s_lshr_b32 %s, %s, 3" % (s(sT2), s(sT2))); e("s_lshl_b32 %s, %s, 2" % (s(sT2), s(sT2)))
        e("v_add_u32 v4, %s, v4" % s(sT2))
        e("v_mul_u32_u24 v1, 3456, v2"); e("v_lshl_add_u32 v1, v4, 7, v1")
        e("v_cmp_gt_u32 vcc, 55, %s" % v(vLane))
    e("v_cndmask_b32_e64 %s, v3, v1, vcc" % v(vPFo))
COOP_D = 4
sSoQ = 44
def coop_load(w, extra_chunks):
    if w < 2: return ["buffer_load_dword %s, %s, %s, %s offen offset:%d ; rare" % (v(vPFd), v(vPFo), sr(sX,4), s(sSoX), 128*extra_chunks)]
    st_ = 64*3840 if w == 2 else 64*3456
    return ["s_add_u32 %s, %s, %d" % (s(sD1), s(sSoQ if w == 2 else sSoW), extra_chunks*st_),
            "buffer_load_dword %s, %s, %s, %s offen ; rare" % (v(vPFd), v(vPFo), sr(sQ if w == 2 else sW,4), s(sD1))]
def zero_acc(e, n):
    for i in range(4): e("v_mov_b32 %s, 0" % v(246 if False else 232+i))
    k = 0
    while k + 16 <= n:
        e("v_mfma_f32_32x32x16_bf16 %s, v[232:235], v[232:235], 0" % vr(k,16)); k += 16
    while k < n:
        e("v_mov_b32 %s, 0" % v(k)); k += 1
def role_main(e, tag, cfg, L, dobase, w, zero_n, extra_pre=None, units=False):
    wstep, slot = cfg.wstep, cfg.slot
    nd = len(L)
    coop = tag.startswith("ffn") and "coop" in OPTS
    def set_soff():
        e("s_lshl_b32 %s, %s, 7" % (s(sSoX), s(sKC)))
        e("s_mul_i32 %s, %s, %d" % (s(sSoW), s(sKC), wstep))
    def adv():
        e("s_add_u32 %s, %s, 1" % (s(sKC), s(sKC)))
        if "rotk" in OPTS:
            e("s_cmp_eq_u32 %s, 10" % s(sKC))
            e("s_cselect_b32 %s, 0, %s" % (s(sKC), s(sKC)))
    set_soff()
    e("s_mov_b32 %s, 0" % s(sDSlot))
    for g in dma_groups_salu(L): e.ext(g)
    stamp(e, 1)
    e("v_lshlrev_b32 %s, 4, %s" % (v(vL16), v(vLane)))
    if units:
        unit_setup_dyn(e)
        e("s_mov_b32 %s, %d" % (s(sSzO), WO_BYTES)); e("s_mov_b32 %s, %d" % (s(sSz2), W2_BYTES))
        e("s_mov_b32 %s, %d" % (s(sUl), 3*slot))
        unit_loads_dyn(e)
    adv(); set_soff()
    e("s_mov_b32 %s, %d" % (s(sDSlot), slot))
    for g in dma_groups_salu(L): e.ext(g)
    npre = 0
    if coop:
        coop_setup(e, w)
        if w == 2: e("s_mov_b32 %s, %d" % (s(sSoQ), 64*3840))
        for x in range(1, COOP_D + 1):
            e.ext(coop_load(w, x)); npre += 1
    if extra_pre: extra_pre(e)
    dma_offsets_setup(e, L, dobase)
    zero_acc(e, zero_n)
    e("v_mov_b32 v254, 0x3f803f80")
    for i in range(4): e("v_accvgpr_write_b32 %s, v254" % a(aONE+i))
    e("v_mov_b32 %s, 0" % v(vZero))
    ph2_setup(e, slot)
    adv(); set_soff()
    e("s_mov_b32 %s, %d" % (s(sDSlot), 2*slot))
    e("s_mov_b32 %s, %d" % (s(sCp), slot))
    e("s_mov_b32 %s, %d" % (s(sCm), (-2*slot) & 0xffffffff))
    e("s_mov_b32 %s, 0" % s(sIter))
    if coop and w == 2: e("s_mov_b32 %s, %d" % (s(sSoQ), 2*64*3840))
    stamp(e, 2)
    e("s_waitcnt vmcnt(%d) lgkmcnt(0)" % (nd + npre))
    e("s_barrier")
    stamp(e, 3)
    R = cfg.ring
    e.ext(cfg.xreads(0))
    for f in range(cfg.nfirst):
        e.ext(cfg.wread(0, f, cfg.wbase + (f % R)*4))
    dma = dma_groups_vgpr(L, dobase)
    if "nopoll" not in OPTS:
        pg = ["s_cmp_lg_u32 %s, 6 ; rare" % s(sIter), "s_cbranch_scc0 L_pp_%s ; rare" % tag, "L_np_%s:" % tag]
        side = ["L_pp_%s:" % tag, "  buffer_load_dwordx2 %s, %s, %s, 0 offen sc1 ; rare" % (vr(vNon,2), v(vZero), sr(sDBG,4)), "  s_branch L_np_%s ; rare" % tag]
        if units:
            us = E(); unit_store_dyn(us, 216, full_wait=True)
            pg += ["s_cmp_lg_u32 %s, 1 ; rare" % s(sIter), "s_cbranch_scc0 L_pu_%s ; rare" % tag, "L_nu_%s:" % tag]
            side += ["L_pu_%s:" % tag] + us.L + ["  s_branch L_nu_%s" % tag]
        if units and w == 0:
            sg = E(); signal_count(sg, CNT_P)
            pg += ["s_cmp_lg_u32 %s, 3 ; rare" % s(sIter), "s_cbranch_scc0 L_ps_%s ; rare" % tag, "L_ns_%s:" % tag]
            side += ["L_ps_%s:" % tag] + sg.L + ["  s_branch L_ns_%s ; rare" % tag]
        dma = [pg] + dma
    else: side = []
    ncl = nd
    if coop:
        g = coop_load(w, COOP_D)
        if w == 2: g.append("s_add_u32 %s, %s, %d" % (s(sSoQ), s(sSoQ), 64*3840))
        dma = dma + [g]; ncl = nd + 2
    if "nodma" in OPTS: dma = []
    first_vm = None
    if coop:
        first_vm = min(63, nd + 1 + npre)
        side += ["L_first_%s:" % tag, "  s_waitcnt vmcnt(%d) lgkmcnt(0) ; rare" % first_vm, "  s_branch L_join_%s ; rare" % tag]
    body = chunk_body(cfg, dma, rolled_tag=tag, closing_vm=ncl if "nodma" not in OPTS else 0, first_vm=first_vm)
    post = E()
    stamp(post, 4)
    if "nopoll" not in OPTS:
        get_nonce(post, tag, 250, have_first=vNon)
        spin_count(post, "p_" + tag, CNT_P, N_P, 250, have_first=vNon+1)
    if "ph1only" in OPTS:
        post.ext(chunk_body(cfg, [], closing_vm=0))
        post.ext(chunk_body(cfg, [], last=True, closing_vm=None))
    else:
        post.ext(chunk_body(cfg, w2l_groups(0, 12), closing_vm=12))
        post.ext(chunk_body(cfg, w2l_groups(12, 25), last=True, closing_vm=None))
    stamp(post, 5)
    return body, post, side

A_ND = [13, 13, 12, 12]

X_CS = 0
X_NM = 1024
X_RS = 2048
X_EX = 4096
vQp = 160
vKA, vKB, vKP = 180, 190, 200
vVp = 210
NEG = 0xf149f2ca
def stats_finalize(e, vsum, vsq, vt, out_nm, out_rs, out_std, smask):
    e("v_cndmask_b32_e64 %s, 0, %s, %s" % (v(vt), v(vsq+0), sr(smask,2)))
    for r in (1,2,3):
        e("v_cndmask_b32_e64 %s, %s, %s, %s" % (v(vt), v(vt), v(vsq+r), sr(smask+2*r,2)))
    e("v_mov_b32 %s, %s" % (v(vt+1), v(vt)))
    e("v_permlane32_swap_b32 %s, %s" % (v(vt), v(vt+1)))
    e("v_add_f32 %s, %s, %s" % (v(vt), v(vt), v(vt+1)))
    e("v_mov_b32 %s, %s" % (v(vt+1), v(vt)))
    e("v_permlane16_swap_b32 %s, %s" % (v(vt), v(vt+1)))
    e("v_add_f32 %s, %s, %s" % (v(vt), v(vt), v(vt+1)))
    e("v_mul_f32 %s, 0x%08x, %s" % (v(out_nm), f2u(-1.0/640), v(vsum)))
    e("v_mul_f32 %s, 0x%08x, %s" % (v(vt), f2u(1.0/640), v(vt)))
    e("v_fma_f32 %s, -%s, %s, %s" % (v(vt), v(out_nm), v(out_nm), v(vt)))
    e("v_max_f32 %s, 0, %s" % (v(vt), v(vt)))
    e("v_add_f32 %s, 0x%08x, %s" % (v(vt), f2u(1e-5), v(vt)))
    e("v_rsq_f32 %s, %s" % (v(out_rs), v(vt)))
    if out_std is not None:
        e("v_mul_f32 %s, %s, %s" % (v(out_std), v(vt), v(out_rs)))


def attn_epilogue(w, e):
    H = [c for c in range(15) if c % 4 == w]
    tNM = [240, 242]; tRS = [244, 246]
    tSTD = [248, 249]
    vt = 250
    smask = sM
    for r in range(4):
        e("s_mov_b32 %s, 0x%08x" % (s(smask+2*r), 0x00100001 << r))
        e("s_mov_b32 %s, 0x%08x" % (s(smask+2*r+1), 0x10000100 << r))
    e("v_and_b32 v253, 15, %s" % v(vLane))
    e("v_lshlrev_b32 v253, 2, v253")
    for T in (0, 1):
        stats_finalize(e, vSumT[T], vSqT[T], vt, tNM[T], tRS[T], tSTD[T], smask)
        e("ds_write_b32 v253, %s offset:%d" % (v(tNM[T]), X_NM + (1+2*w+T)*64))
        e("ds_write_b32 v253, %s offset:%d" % (v(tRS[T]), X_RS + (1+2*w+T)*64))
    if w == 3:
        stats_finalize(e, vSumH, vSqH, vt, 136, 137, None, smask)
        e("ds_write_b32 v253, v136 offset:%d" % (X_NM))
        e("ds_write_b32 v253, v137 offset:%d" % (X_RS))
    e("s_cmp_lg_u32 %s, 0" % s(sCB))
    e("s_cbranch_scc1 L_nors_%d" % w)
    e("s_lshl_b32 %s, %s, 9" % (s(sT0), s(sRB)))
    e("s_add_u32 %s, %s, %d" % (s(sT0), s(sT0), RSTD_OFF + w*128))
    e("buffer_store_dword %s, v253, %s, %s offen sc1 ; rare" % (v(tRS[0]), sr(sWS,4), s(sT0)))
    e("buffer_store_dword %s, v253, %s, %s offen offset:64 sc1 ; rare" % (v(tRS[1]), sr(sWS,4), s(sT0)))
    e.lab("L_nors_%d" % w)
    e("v_lshrrev_b32 v252, 4, %s" % v(vLane))
    e("v_lshlrev_b32 v252, 4, v252")
    e("s_mov_b32 exec_lo, 0x00010001"); e("s_mov_b32 exec_hi, 0x00010001")
    for c in H:
        if c < 10: e("ds_write_b128 v252, %s offset:%d" % (vr(acc_halo(c >> 2),4), X_CS + c*64))
    e("s_mov_b32 exec_lo, 0x0000ffff"); e("s_mov_b32 exec_hi, 0")
    for c in H:
        if c >= 10: e("ds_write_b32 v253, %s offset:%d" % (v(acc_halo(c >> 2)), X_CS + c*64))
    e("s_mov_b64 exec, -1")
    e("s_waitcnt lgkmcnt(0)")
    e("s_barrier")
    nm4 = [136, 140]; rs4 = [144, 148]
    for T in (0, 1):
        e("ds_read_b128 %s, v252 offset:%d" % (vr(nm4[T],4), X_NM + (1+2*w+T)*64))
        e("ds_read_b128 %s, v252 offset:%d" % (vr(rs4[T],4), X_RS + (1+2*w+T)*64))
    hK = [c for c in H if 5 <= c < 10]; hV = [c for c in H if c >= 10]
    tHN, tHR = 152, 154
    hn4, hr4 = 156, 236+4
    hr4 = 232
    e("ds_read_b32 %s, v253 offset:%d" % (v(tHN), X_NM))
    e("ds_read_b32 %s, v253 offset:%d" % (v(tHR), X_RS))
    csA, csB = 250, 120
    cs_buf = [236, 0]
    def pkfma_bc(d, s0, sc):
        e("v_pk_fma_f32 %s, %s, %s, %s op_sel_hi:[1,0,1]" % (vr(d,2), vr(s0,2), vr(sc,2), vr(d,2)))
    def pkmul_bc(d, sc):
        e("v_pk_mul_f32 %s, %s, %s op_sel_hi:[1,0]" % (vr(d,2), vr(d,2), vr(sc,2)))
    csr = [224, 228]
    for c in range(10):
        e("ds_read_b128 %s, v252 offset:%d" % (vr(csr[c & 1],4), X_CS + c*64))
        cs4 = csr[c & 1]
        for T in (0, 1):
            d = acc_own(T, c)
            pkfma_bc(d, cs4, tNM[T]); pkfma_bc(d+2, cs4+2, tNM[T])
            if c >= 5:
                pkmul_bc(d, tRS[T]); pkmul_bc(d+2, tRS[T])
            dst = (vQp + T*10 + 2*c) if c < 5 else ((vKA, vKB)[T] + 2*(c-5))
            e("v_cvt_pk_bf16_f32 %s, %s, %s" % (v(dst), v(d), v(d+1)))
            e("v_cvt_pk_bf16_f32 %s, %s, %s" % (v(dst+1), v(d+2), v(d+3)))
        if c in hK:
            d = acc_halo(c >> 2)
            pkfma_bc(d, cs4, tHN); pkfma_bc(d+2, cs4+2, tHN)
            pkmul_bc(d, tHR); pkmul_bc(d+2, tHR)
            e("v_cvt_pk_bf16_f32 %s, %s, %s" % (v(d), v(d), v(d+1)))
            e("v_cvt_pk_bf16_f32 %s, %s, %s" % (v(d+1), v(d+2), v(d+3)))
    e("v_lshlrev_b32 v251, 3, %s" % v(vLane))
    for c in hK:
        e("ds_write_b64 v251, %s offset:%d" % (vr(acc_halo(c >> 2),2), X_EX + (c-5)*512))
    if w < 3:
        for i in range(5):
            e("ds_write_b64 v251, %s offset:%d" % (vr(vKB+2*i,2), X_EX + (w+1)*5120 + i*512))
    hn4, hr4 = 0, 4
    if hV:
        e("ds_read_b128 %s, v252 offset:%d" % (vr(hn4,4), X_NM))
        e("ds_read_b128 %s, v252 offset:%d" % (vr(hr4,4), X_RS))
    csd = 8
    for i in range(5):
        e("ds_read_b32 %s, v253 offset:%d" % (v(csd + 2*i), X_CS + (10+i)*64))
    for i in range(5):
        c = 10 + i
        for T in (0, 1):
            d = acc_own(T, c)
            for h_ in (0, 2):
                e("v_pk_fma_f32 %s, %s, %s, %s op_sel_hi:[1,0,1]" % (vr(d+h_,2), vr(nm4[T]+h_,2), vr(csd+2*i,2), vr(d+h_,2)))
                e("v_pk_mul_f32 %s, %s, %s" % (vr(d+h_,2), vr(d+h_,2), vr(rs4[T]+h_,2)))
            dst = vVp + 6*i + 2 + 2*T
            e("v_cvt_pk_bf16_f32 %s, %s, %s" % (v(dst), v(d), v(d+1)))
            e("v_cvt_pk_bf16_f32 %s, %s, %s" % (v(dst+1), v(d+2), v(d+3)))
        if c in hV:
            d = acc_halo(c >> 2)
            for h_ in (0, 2):
                e("v_pk_fma_f32 %s, %s, %s, %s op_sel_hi:[1,0,1]" % (vr(d+h_,2), vr(hn4+h_,2), vr(csd+2*i,2), vr(d+h_,2)))
                e("v_pk_mul_f32 %s, %s, %s" % (vr(d+h_,2), vr(d+h_,2), vr(hr4+h_,2)))
            e("v_cvt_pk_bf16_f32 %s, %s, %s" % (v(d), v(d), v(d+1)))
            e("v_cvt_pk_bf16_f32 %s, %s, %s" % (v(d+1), v(d+2), v(d+3)))
            e("ds_write_b64 v251, %s offset:%d" % (vr(d,2), X_EX + (5+i)*512))
        if w < 3:
            e("ds_write_b64 v251, %s offset:%d" % (vr(vVp+6*i+4,2), X_EX + (w+1)*5120 + (5+i)*512))
    vBP, vBC, vBPA = 0, 4, 8
    vSel = 12
    vML, vMH = 16, 20
    vONE = 24
    vT16, vG = 28, 29
    attn_consts(w, e, vBP, vBC, vBPA, vSel, vML, vMH, vONE, vT16, vG)
    cF = [30, 31]
    for T in (0, 1):
        e("v_mul_f32 %s, 0x%08x, %s" % (v(cF[T]), f2u((20.0 ** -0.5) * 1.4426950408889634), v(tRS[T])))
    e("s_mov_b32 %s, 0xffff" % s(sM+8)); e("s_mov_b32 %s, 0" % s(sM+9))
    e("s_mov_b32 %s, -1" % s(sM+10)); e("s_mov_b32 %s, 0" % s(sM+11))
    e("s_mov_b32 %s, -1" % s(sM+12)); e("s_mov_b32 %s, 0xffff" % s(sM+13))
    e("v_lshlrev_b32 v250, 4, %s" % v(vLane))
    attn_tile(e, w, 1, vKA, vKB, lambda i: vVp+6*i+2, vBP, vBC, vSel, vML, vMH, vONE, cF[1], tSTD[1])
    e("s_waitcnt lgkmcnt(0)")
    e("s_barrier")
    for i in range(5):
        e("ds_read_b64 %s, v251 offset:%d" % (vr(vKP+2*i,2), X_EX + w*5120 + i*512))
        e("ds_read_b64 %s, v251 offset:%d" % (vr(vVp+6*i,2), X_EX + w*5120 + (5+i)*512))
    attn_tile(e, w, 0, vKP, vKA, lambda i: vVp+6*i, vBPA, vBC, vSel, vML, vMH, vONE, cF[0], tSTD[0])

def attn_consts(w, e, vBP, vBC, vBPA, vSel, vML, vMH, vONE, vT16, vG):
    e("v_and_b32 %s, 15, %s" % (v(vT16), v(vLane)))
    e("v_lshrrev_b32 %s, 4, %s" % (v(vG), v(vLane)))
    t0, t1, t2 = 32, 33, 34
    e("v_lshlrev_b32 %s, 2, %s" % (v(t0), v(vG)))
    e("v_sub_u32 %s, %s, %s" % (v(t0), v(vT16), v(t0)))
    e("v_and_b32 %s, 1, %s" % (v(t1), v(vT16)))
    e("v_mov_b32 %s, 0x%08x" % (v(t2), NEG))
    e("v_cmp_eq_u32 %s, 0, %s" % (sr(sM+14,2), v(t1)))
    for r in range(4):
        e("v_subrev_u32 %s, %d, %s" % (v(35), r, v(t0)))
        e("v_cmp_le_i32 %s, 0, %s" % (sr(sM+16,2), v(35)))
        if r & 1: e("s_andn2_b64 %s, %s, %s" % (sr(sM+18,2), "exec", sr(sM+14,2)))
        else:     e("s_mov_b64 %s, %s" % (sr(sM+18,2), sr(sM+14,2)))
        e("s_and_b64 %s, %s, %s" % (sr(sM+20,2), sr(sM+18,2), sr(sM+16,2)))
        e("s_andn2_b64 %s, %s, %s" % (sr(sM+22,2), sr(sM+18,2), sr(sM+16,2)))
        e("v_cndmask_b32_e64 %s, %s, 0, %s" % (v(vBC+r), v(t2), sr(sM+20,2)))
        e("v_cndmask_b32_e64 %s, %s, 0, %s" % (v(vBP+r), v(t2), sr(sM+22,2)))
    for r in range(4): e("v_mov_b32 %s, %s" % (v(vBPA+r), v(vBP+r)))
    if w == 0:
        e("s_cmp_lg_u32 %s, 0" % s(sRB))
        e("s_cbranch_scc1 L_notfirst")
        for r in range(4): e("v_mov_b32 %s, %s" % (v(vBPA+r), v(t2)))
        e.lab("L_notfirst")
    e("v_sub_u32 %s, %s, %s" % (v(35), v(t0), v(t1)))
    e("v_mov_b32 %s, 0x0c0c0100" % v(36)); e("v_mov_b32 %s, 0x01000c0c" % v(37))
    e("v_cndmask_b32_e64 %s, %s, %s, %s" % (v(36), v(37), v(36), sr(sM+14,2)))
    e("v_mov_b32 %s, 0x0c0c0302" % v(37)); e("v_mov_b32 %s, 0x03020c0c" % v(38))
    e("v_cndmask_b32_e64 %s, %s, %s, %s" % (v(37), v(38), v(37), sr(sM+14,2)))
    e("v_mov_b32 %s, 0x0c0c0c0c" % v(38))
    e("v_cmp_le_i32 %s, 0, %s" % (sr(sM+16,2), v(35)))
    e("v_cndmask_b32_e64 %s, %s, %s, %s" % (v(vSel+0), v(36), v(38), sr(sM+16,2)))
    e("v_cndmask_b32_e64 %s, %s, %s, %s" % (v(vSel+2), v(38), v(36), sr(sM+16,2)))
    e("v_cmp_le_i32 %s, 2, %s" % (sr(sM+16,2), v(35)))
    e("v_cndmask_b32_e64 %s, %s, %s, %s" % (v(vSel+1), v(37), v(38), sr(sM+16,2)))
    e("v_cndmask_b32_e64 %s, %s, %s, %s" % (v(vSel+3), v(38), v(37), sr(sM+16,2)))
    for h in (1, 2, 3):
        e("v_cmp_le_u32 %s, %d, %s" % (sr(sM+16,2), h, v(vG)))
        e("v_cndmask_b32_e64 %s, 0, -1, %s" % (v(vML+h), sr(sM+16,2)))
    for h in (0, 1, 2):
        e("v_cmp_ge_u32 %s, %d, %s" % (sr(sM+16,2), h, v(vG)))
        e("v_cndmask_b32_e64 %s, 0, -1, %s" % (v(vMH+h), sr(sM+16,2)))
    for r in range(4): e("v_mov_b32 %s, 0x3f803f80" % v(vONE+r))

def attn_tile(e, w, T, kprev, kcur, vfrag, bP, bC, vSel, vML, vMH, vONE, cF, std):
    Qm = [40, 44, 48, 52]
    S0 = [56, 60, 64, 68]; S1 = [72, 76, 80, 84]
    P  = [88, 92, 96, 100]
    Lh = [104, 108, 112, 116]
    O  = {}
    qp = vQp + T*10
    for h in range(4):
        for k in range(2):
            if h == 0: e("v_mov_b32 %s, %s" % (v(Qm[h]+k), v(qp+2*h+k)))
            else:      e("v_and_b32 %s, %s, %s" % (v(Qm[h]+k), v(qp+2*h+k), v(vML+h)))
            if h == 3: e("v_mov_b32 %s, %s" % (v(Qm[h]+2+k), v(qp+2*h+2+k)))
            else:      e("v_and_b32 %s, %s, %s" % (v(Qm[h]+2+k), v(qp+2*h+2+k), v(vMH+h)))
    for h in range(4):
        e("%s %s, %s, %s, %s" % (MFMA, vr(S0[h],4), vr(kprev+2*h,4), vr(Qm[h],4), vr(bP,4)))
        e("%s %s, %s, %s, %s" % (MFMA, vr(S1[h],4), vr(kcur+2*h,4), vr(Qm[h],4), vr(bC,4)))
    va = [120, 122, 124, 126]; mx = [128, 129, 130, 131]; tmp = 132
    for h in range(4):
        e("v_max3_f32 %s, %s, %s, %s" % (v(va[h]), v(S0[h]), v(S0[h]+1), v(S1[h])))
        e("v_max3_f32 %s, %s, %s, %s" % (v(va[h]+1), v(S0[h]+2), v(S0[h]+3), v(S1[h]+2)))
        e("v_max_f32 %s, %s, %s" % (v(va[h]), v(va[h]), v(S1[h]+1)))
        e("v_max_f32 %s, %s, %s" % (v(va[h]+1), v(va[h]+1), v(S1[h]+3)))
        e("v_max_f32 %s, %s, %s" % (v(mx[h]), v(va[h]), v(va[h]+1)))
    e("v_permlane32_swap_b32 %s, %s" % (v(mx[0]), v(mx[1])))
    e("v_permlane32_swap_b32 %s, %s" % (v(mx[2]), v(mx[3])))
    e("v_max_f32 %s, %s, %s" % (v(mx[0]), v(mx[0]), v(mx[1])))
    e("v_max_f32 %s, %s, %s" % (v(mx[2]), v(mx[2]), v(mx[3])))
    e("v_permlane16_swap_b32 %s, %s" % (v(mx[0]), v(mx[2])))
    e("v_max_f32 %s, %s, %s" % (v(mx[0]), v(mx[0]), v(mx[2])))
    e("v_mov_b32 %s, %s" % (v(mx[2]), v(mx[0])))
    e("v_permlane16_swap_b32 %s, %s" % (v(mx[0]), v(mx[2])))
    e("v_mov_b32 %s, %s" % (v(mx[1]), v(mx[0])))
    e("v_mov_b32 %s, %s" % (v(mx[3]), v(mx[2])))
    e("v_permlane32_swap_b32 %s, %s" % (v(mx[0]), v(mx[1])))
    e("v_permlane32_swap_b32 %s, %s" % (v(mx[2]), v(mx[3])))
    for h in range(4):
        e("v_mul_f32 %s, %s, %s" % (v(mx[h]), v(mx[h]), v(cF)))
        e("v_fma_f32 %s, %s, %s, -%s" % (v(va[h]), v(va[h]), v(cF), v(mx[h])))
        e("v_fma_f32 %s, %s, %s, -%s" % (v(va[h]+1), v(va[h]+1), v(cF), v(mx[h])))
    for h in range(4):
        e("v_exp_f32 %s, %s" % (v(va[h]), v(va[h])))
        e("v_exp_f32 %s, %s" % (v(va[h]+1), v(va[h]+1)))
    for h in range(4):
        e("v_cvt_pk_bf16_f32 %s, %s, %s" % (v(va[h]), v(va[h]), v(va[h]+1)))
        for k in range(4):
            e("v_perm_b32 %s, %s, %s, %s" % (v(P[h]+k), v(va[h]), v(va[h]), v(vSel+k)))
    pairs = [(0,0),(1,0),(1,1),(2,1),(2,2),(3,2),(3,3),(4,3)]
    free = Qm + S0
    for n, (i, h) in enumerate(pairs):
        O[(i,h)] = free[n]
    for h in range(4):
        e("%s %s, %s, %s, 0" % (MFMA, vr(Lh[h],4), vr(vONE,4), vr(P[h],4)))
    for (i, h) in pairs:
        e("%s %s, %s, %s, 0" % (MFMA, vr(O[(i,h)],4), vr(vfrag(i),4), vr(P[h],4)))
    for h in range(4):
        e("v_rcp_f32 %s, %s" % (v(Lh[h]), v(Lh[h])))
    for h in range(4):
        e("v_mul_f32 %s, %s, %s" % (v(Lh[h]), v(Lh[h]), v(std)))
    F = [Lh[0], 72, 74, 76, Lh[3]]
    e("v_cndmask_b32_e64 %s, %s, %s, %s" % (v(F[1]), v(Lh[1]), v(Lh[0]), sr(sM+8,2)))
    e("v_cndmask_b32_e64 %s, %s, %s, %s" % (v(F[2]), v(Lh[2]), v(Lh[1]), sr(sM+10,2)))
    e("v_cndmask_b32_e64 %s, %s, %s, %s" % (v(F[3]), v(Lh[3]), v(Lh[2]), sr(sM+12,2)))
    R = {}
    R[0] = O[(0,0)]; R[4] = O[(4,3)]
    for i in (1, 2, 3):
        lo, hi = O[(i,i-1)], O[(i,i)]
        for r in range(4):
            e("v_cndmask_b32_e64 %s, %s, %s, %s" % (v(hi+r), v(hi+r), v(lo+r), sr(sM+8+2*(i-1),2)))
        R[i] = hi
    out = P[0]
    for i in range(5):
        e("v_pk_mul_f32 %s, %s, %s op_sel_hi:[1,0]" % (vr(R[i],2), vr(R[i],2), vr(F[i],2)))
        e("v_pk_mul_f32 %s, %s, %s op_sel_hi:[1,0]" % (vr(R[i]+2,2), vr(R[i]+2,2), vr(F[i],2)))
        e("v_cvt_pk_bf16_f32 %s, %s, %s" % (v(out+2*i), v(R[i]), v(R[i]+1)))
        e("v_cvt_pk_bf16_f32 %s, %s, %s" % (v(out+2*i+1), v(R[i]+2), v(R[i]+3)))
    gl = 2*w + T
    e("s_lshl_b32 %s, %s, 1" % (s(sT0), s(sRB)))
    e("s_add_u32 %s, %s, %d" % (s(sT0), s(sT0), gl >> 2))
    e("s_mul_i32 %s, %s, %d" % (s(sT0), s(sT0), ACT_TB))
    e("s_lshr_b32 %s, %s, 1" % (s(sT1), s(sCB)))
    e("s_mul_i32 %s, %s, 5" % (s(sT1), s(sT1)))
    e("s_and_b32 %s, %s, 1" % (s(sT2), s(sCB)))
    e("s_lshl_b32 %s, %s, 1" % (s(sT3), s(sT2)))
    e("s_add_u32 %s, %s, %s" % (s(sT3), s(sT3), s(sT1)))
    e("s_lshl_b32 %s, %s, 12" % (s(sT3), s(sT3)))
    e("s_add_u32 %s, %s, %s" % (s(sT3), s(sT3), s(sT0)))
    e("s_add_u32 %s, %s, %d" % (s(sT3), s(sT3), ACT_OFF + (gl & 3)*1024))
    e("buffer_store_dwordx4 %s, v250, %s, %s offen sc1" % (vr(out,4), sr(sWS,4), s(sT3)))
    e("s_add_u32 %s, %s, 4096" % (s(sT3), s(sT3)))
    e("buffer_store_dwordx4 %s, v250, %s, %s offen sc1" % (vr(out+4,4), sr(sWS,4), s(sT3)))
    e("s_add_u32 %s, %s, 4" % (s(sT1), s(sT1)))
    e("s_lshl_b32 %s, %s, 12" % (s(sT1), s(sT1)))
    e("s_add_u32 %s, %s, %s" % (s(sT1), s(sT1), s(sT0)))
    e("s_lshl_b32 %s, %s, 3" % (s(sT2), s(sT2)))
    e("s_add_u32 %s, %s, %s" % (s(sT1), s(sT1), s(sT2)))
    e("s_add_u32 %s, %s, %d" % (s(sT1), s(sT1), ACT_OFF + (gl & 3)*1024))
    e("buffer_store_dwordx2 %s, v250, %s, %s offen sc1" % (vr(out+8,2), sr(sWS,4), s(sT1)))


def sprinkle(lines, groups, start=0, end_gap=0):
    safe = []
    exec_full = True; skip = None
    n = len(lines)
    for i, t in enumerate(lines):
        tt = t.strip()
        prev = lines[i-1].strip() if i else ""
        ok = exec_full and skip is None
        if prev.startswith("s_cmp") or prev.startswith("v_cmp") or prev.startswith("s_and_b64") or prev.startswith("s_andn2") : ok = False
        if tt.startswith("s_cbranch") or tt.startswith("s_cselect") or tt.startswith("s_addc") or tt.endswith(":"): ok = False
        if tt.startswith("s_barrier") or tt.startswith("s_waitcnt"): ok = False
        if ok and start <= i < n - end_gap: safe.append(i)
        if tt.startswith("s_mov_b32 exec") : exec_full = False
        if tt.startswith("s_mov_b64 exec, -1"): exec_full = True
        if tt.startswith("s_cbranch"): skip = tt.split()[-1]
        if skip and tt == skip + ":": skip = None
    ng = len(groups)
    assert len(safe) >= ng, (len(safe), ng)
    at = {}
    for k in range(ng):
        at.setdefault(safe[k*len(safe)//ng], []).extend(groups[k])
    out = []
    for i, t in enumerate(lines):
        if i in at: out += ["  " + x for x in at[i]]
        out.append(t)
    return out

F_SLOT = 49152; F_XB = 16384
fWA = [160, 161, 162, 163]
F_X0, F_X1 = 164, 165
fXE, fXOd, fWL = 166, 167, 168
fDO = 169
def facc(T, c): return (T*16 + c)*4
fCS = 128
fSUM = [144, 148]
def fxf(kh, T): return aXF + (kh*2 + T)*4

def ffn_lane_setup(e):
    x_lane_setup(e, fXE, fXOd)
    e("v_lshrrev_b32 v6, 2, v1")
    e("v_lshlrev_b32 v6, 3, v6")
    e("v_and_b32 v7, 3, v1")
    e("v_add_u32 v6, v6, v7")
    e("v_mul_u32_u24 v6, 3456, v6")
    e("v_lshrrev_b32 v7, 1, v2")
    e("v_xor_b32 v7, v7, v3")
    e("v_lshlrev_b32 v7, 5, v7")
    e("v_and_b32 v8, 1, v2")
    e("v_lshlrev_b32 v8, 4, v8")
    e("v_add3_u32 v6, v6, v7, v8")
    e("s_lshl_b32 %s, %s, 9" % (s(sT0), s(sCB)))
    e("v_add_u32 %s, %s, v6" % (v(fWL), s(sT0)))

def ffn_cfg(w):
    cfg = Cfg()
    cfg.ntile = 16; cfg.ring = 8; cfg.look = 6; cfg.tail = 2; cfg.nfirst = 6; cfg.wbase = aW
    H = [c for c in range(16) if c % 4 == w]
    def wread(kh, c, reg):
        off = (c >> 2)*8192 + kh*4096
        ad = v(fWA[c & 3])
        return ["ds_read_b64_tr_b16 %s, %s offset:%d" % (ar(reg,2), ad, off),
                "ds_read_b64_tr_b16 %s, %s offset:%d" % (ar(reg+2,2), ad, off + 2048)]
    def mf(kh, c, reg):
        out = []
        for T in (0, 1):
            d = vr(facc(T, c), 4)
            out.append("%s %s, %s, %s, %s" % (MFMA, d, ar(reg,4), ar(fxf(kh,T),4), d))
        if c in H and "nohalo" not in OPTS:
            d = vr(fCS + (c >> 2)*4, 4)
            out.append("%s %s, %s, %s, %s" % (MFMA, d, ar(reg,4), ar(aONE,4), d))
        return out
    def stats(kh):
        return ["%s %s, %s, %s, %s" % (MFMA, vr(fSUM[T],4), ar(aONE,4), ar(fxf(kh,T),4), vr(fSUM[T],4)) for T in (0,1)]
    def xreads(kh):
        ad = F_X1 if kh else F_X0
        return ["ds_read_b128 %s, %s offset:%d" % (ar(fxf(kh,T),4), v(ad), (2*w+T)*2048) for T in (0,1)]
    cfg.wread = wread; cfg.mf = mf; cfg.stats = stats; cfg.xreads = xreads
    cfg.xread1_at = 4
    cfg.addr_update = addr_update(F_SLOT, fWA + [F_X0, F_X1])
    cfg.scal_update = scal_update(F_SLOT, 64*3456)
    cfg.dma_start = 2; cfg.dma_skew = w; cfg.dma_endgap = 8
    cfg.wstep = 64*3456; cfg.slot = F_SLOT
    return cfg

def read_addr_setup_ffn(e):
    e("v_and_b32 v1, 15, %s" % v(vLane))
    e("v_lshrrev_b32 v2, 2, v1")
    e("v_and_b32 v3, 3, v1")
    e("v_lshrrev_b32 v4, 4, %s" % v(vLane))
    e("v_lshl_add_u32 v2, v4, 2, v2")
    e("v_lshrrev_b32 v5, 1, v2")
    e("v_and_b32 v5, 3, v5")
    e("v_lshlrev_b32 v2, 7, v2")
    e("v_lshl_add_u32 v2, v3, 3, v2")
    e("v_add_u32 v2, %d, v2" % F_XB)
    for u in range(4):
        e("v_xor_b32 v6, %d, v5" % u)
        e("v_lshl_add_u32 %s, v6, 5, v2" % v(fWA[u]))
    xaddr_setup(e, F_X0, F_X1, 0)

def ffn_epilogue(w, e):
    H = [c for c in range(16) if c % 4 == w]
    nm = [150, 152]
    for T in (0, 1):
        e("v_mul_f32 %s, 0x%08x, %s" % (v(nm[T]), f2u(-1.0/640), v(fSUM[T])))
    e("v_lshrrev_b32 v252, 4, %s" % v(vLane))
    e("v_lshlrev_b32 v252, 4, v252")
    e("s_mov_b32 exec_lo, 0x00010001"); e("s_mov_b32 exec_hi, 0x00010001")
    for c in H:
        e("ds_write_b128 v252, %s offset:%d" % (vr(fCS + (c >> 2)*4, 4), c*64))
    e("s_mov_b64 exec, -1")
    e("s_waitcnt lgkmcnt(0)")
    e("s_barrier")
    e("v_lshlrev_b32 v250, 4, %s" % v(vLane))
    e("s_lshl_b32 %s, %s, 1" % (s(sT0), s(sRB)))
    e("s_add_u32 %s, %s, %d" % (s(sT0), s(sT0), (2*w) >> 2))
    e("s_mul_i32 %s, %s, %d" % (s(sT0), s(sT0), ACT_TB))
    e("s_lshl_b32 %s, %s, 3" % (s(sT1), s(sCB)))
    e("s_add_u32 %s, %s, 20" % (s(sT1), s(sT1)))
    e("s_lshl_b32 %s, %s, 12" % (s(sT1), s(sT1)))
    e("s_add_u32 %s, %s, %s" % (s(sT0), s(sT0), s(sT1)))
    e("s_add_u32 %s, %s, %d" % (s(sT0), s(sT0), ACT_OFF + ((2*w) & 3)*1024))
    e("s_mov_b32 %s, 0" % s(sT2))
    e("s_cmp_eq_u32 %s, 6" % s(sCB))
    e("s_cselect_b32 %s, 0x%x, 0" % (s(sT2), OOB))
    cs = [160, 164, 168, 172]
    pk = [180, 184, 188, 192]
    for a_ in range(8):
        if a_ == 6: e("s_add_u32 %s, %s, %s" % (s(sT0), s(sT0), s(sT2)))
        for k in range(2):
            c = 2*a_ + k
            e("ds_read_b128 %s, v252 offset:%d" % (vr(cs[(2*a_+k) & 3],4), c*64))
        for T in (0, 1):
            o = pk[(2*a_ + T) & 3]
            for k in range(2):
                c = 2*a_ + k; d = facc(T, c); q = cs[c & 3]
                e("v_pk_fma_f32 %s, %s, %s, %s op_sel_hi:[1,0,1]" % (vr(d,2), vr(q,2), vr(nm[T],2), vr(d,2)))
                e("v_pk_fma_f32 %s, %s, %s, %s op_sel_hi:[1,0,1]" % (vr(d+2,2), vr(q+2,2), vr(nm[T],2), vr(d+2,2)))
                e("v_cvt_pk_bf16_f32 %s, %s, %s" % (v(o+2*k), v(d), v(d+1)))
                e("v_cvt_pk_bf16_f32 %s, %s, %s" % (v(o+2*k+1), v(d+2), v(d+3)))
                e("v_pk_max_i16 %s, %s, 0" % (v(o+2*k), v(o+2*k)))
                e("v_pk_max_i16 %s, %s, 0" % (v(o+2*k+1), v(o+2*k+1)))
            e("buffer_store_dwordx4 %s, v250, %s, %s offen offset:%d sc1" % (vr(o,4), sr(sWS,4), s(sT0), T*1024))
        e("s_add_u32 %s, %s, 4096" % (s(sT0), s(sT0)))

U_ROW = 320
U_BYTES = 32*U_ROW
sPF = 60
vUO = [200, 201, 202]; vUH = [203, 204, 205]; vUT = [206, 207, 208]
sUW = [64, 65, 66]
sUl, sUn = 67, 68
def unit_setup_dyn(e):
    e("s_lshl_b32 %s, %s, 6" % (s(sT0), s(sWave)))
    for m in range(3):
        e("v_add_u32 v1, %s, %s" % (s(sT0), v(vLane)))
        if m: e("v_add_u32 v1, %d, v1" % (256*m))
        e("v_mul_u32_u24 v2, 3277, v1"); e("v_lshrrev_b32 v2, 16, v2")
        e("v_mul_u32_u24 v3, 20, v2"); e("v_sub_u32 v3, v1, v3")
        e("v_mul_u32_u24 v4, 1280, v2"); e("v_lshl_add_u32 %s, v3, 4, v4" % v(vUO[m]))
        e("v_lshrrev_b32 %s, 4, v2" % v(vUH[m]))
        if m == 2:
            e("v_mov_b32 v5, 0x40000000")
            e("v_cmp_le_u32 vcc, 640, v1")
            e("v_cndmask_b32_e64 %s, %s, v5, vcc" % (v(vUO[m]), v(vUO[m])))
            e("v_cndmask_b32_e64 %s, %s, 0, vcc" % (v(vUH[m]), v(vUH[m])))
    e("v_and_b32 v1, 15, %s" % v(vLane)); e("v_lshrrev_b32 v2, 2, v1"); e("v_and_b32 v3, 3, v1")
    e("v_lshrrev_b32 v4, 4, %s" % v(vLane)); e("v_lshl_add_u32 v2, v4, 2, v2")
    e("v_mul_u32_u24 v2, %d, v2" % U_ROW)
    for m in range(3):
        e("s_add_u32 %s, %s, %d" % (s(sT0), s(sWave), 4*m))
        e("s_cmp_ge_u32 %s, 5" % s(sT0)); e("s_cselect_b32 %s, 1, 0" % s(sT1))
        e("s_mul_i32 %s, %s, 5" % (s(sT2), s(sT1))); e("s_sub_u32 %s, %s, %s" % (s(sT2), s(sT0), s(sT2)))
        e("s_lshr_b32 %s, %s, 1" % (s(sT3), s(sT2))); e("s_lshl_b32 %s, %s, 6" % (s(sT3), s(sT3)))
        e("s_and_b32 %s, %s, 1" % (s(sD0), s(sT2))); e("s_lshl_b32 %s, %s, 3" % (s(sD0), s(sD0)))
        e("s_add_u32 %s, %s, %s" % (s(sT3), s(sT3), s(sD0)))
        e("s_mul_i32 %s, %s, 160" % (s(sD0), s(sT1))); e("s_add_u32 %s, %s, %s" % (s(sT3), s(sT3), s(sD0)))
        e("s_cmp_eq_u32 %s, 4" % s(sT2)); e("s_cselect_b32 %s, 3, 4" % s(sD0))
        e("v_lshlrev_b32 v5, %s, v3" % s(sD0))
        e("v_add3_u32 %s, v5, v2, %s" % (v(vUT[m]), s(sT3)))
        e("s_mul_i32 %s, %s, %d" % (s(sUW[m]), s(sT1), W2F_CB))
        e("s_lshl_b32 %s, %s, 10" % (s(sD0), s(sT2)))
        e("s_add_u32 %s, %s, %s" % (s(sUW[m]), s(sUW[m]), s(sD0)))
        e("s_cmp_ge_u32 %s, 10" % s(sT0)); e("s_cselect_b32 %s, 0x%x, %s" % (s(sUW[m]), 0x40000000, s(sUW[m])))
def unit_loads_dyn(e):
    sU = sUn
    e("s_lshr_b32 %s, %s, 2" % (s(sT0), s(sU)))
    e("s_and_b32 %s, %s, 3" % (s(sT1), s(sU)))
    e("s_mul_i32 %s, %s, 52" % (s(sT2), s(sT0))); e("s_lshr_b32 %s, %s, 8" % (s(sT2), s(sT2)))
    e("s_mul_i32 %s, %s, 5" % (s(sT3), s(sT2))); e("s_sub_u32 %s, %s, %s" % (s(sT3), s(sT0), s(sT3)))
    e("s_mul_i32 %s, %s, 160" % (s(sT2), s(sT2)))
    e("s_lshl_b32 %s, %s, 5" % (s(sD0), s(sT3)))
    e("s_cmp_ge_u32 %s, 2" % s(sT3)); e("s_cselect_b32 %s, 16, 0" % s(sD1))
    e("s_add_u32 %s, %s, %s" % (s(sD0), s(sD0), s(sD1)))
    e("s_cmp_eq_u32 %s, 4" % s(sT3)); e("s_cselect_b32 %s, 64, %s" % (s(sD0), s(sD0)))
    e("s_cselect_b32 %s, %d, 0" % (s(sD1), 64*1280))
    e("s_add_u32 %s, %s, %s" % (s(sD0), s(sD0), s(sT2)))
    e("s_sub_u32 %s, %s, 20" % (s(sT2), s(sT0))); e("s_lshl_b32 %s, %s, 5" % (s(sT2), s(sT2)))
    e("s_cmp_lt_u32 %s, 20" % s(sT0))
    e("s_cselect_b32 %s, %s, %s" % (s(sD0), s(sD0), s(sT2)))
    e("s_cselect_b32 %s, %s, 0" % (s(sD1), s(sD1)))
    e("s_cselect_b32 %s, s8, s14" % s(sPF))
    e("s_cselect_b32 %s, s9, s15" % s(sPF+1))
    e("s_cselect_b32 %s, %s, %s" % (s(sPF+2), s(sSzO), s(sSz2)))
    e("s_and_b32 %s, %s, 0xffff" % (s(sPF+1), s(sPF+1)))
    e("s_mov_b32 %s, 0x20000" % s(sPF+3))
    e("s_mul_i32 %s, %s, 1280" % (s(sD0), s(sD0)))
    e("s_mul_i32 %s, %s, 320" % (s(sT1), s(sT1)))
    e("s_add_u32 %s, %s, %s" % (s(sD0), s(sD0), s(sT1)))
    e("s_cmp_ge_u32 %s, %d" % (s(sU), 4*NKS)); e("s_cselect_b32 %s, 0x%x, %s" % (s(sD0), OOB, s(sD0)))
    e("s_lshl_b32 %s, %s, 10" % (s(sT0), s(sWave)))
    e("s_add_u32 %s, %s, %s" % (s(sT0), s(sT0), s(sUl)))
    for m in range(3):
        e("v_mad_u32_u24 %s, %s, %s, %s" % (v(210+m), v(vUH[m]), s(sD1), v(vUO[m])))
        if m < 2: e("s_add_u32 m0, %s, %d" % (s(sT0), 4096*m))
        else:
            e("s_add_u32 %s, %s, %d" % (s(sT1), s(sT0), 4096*m))
            e("s_cmp_ge_u32 %s, 2" % s(sWave))
            e("s_cselect_b32 m0, %d, %s" % (161792, s(sT1)))
        e("s_nop 0")
        e("buffer_load_dwordx4 %s, %s, %s offen lds" % (v(210+m), sr(sPF,4), s(sD0)))
def unit_store_dyn(e, vd=0, full_wait=False):
    sU = sUn
    e("s_lshr_b32 %s, %s, 2" % (s(sT0), s(sU)))
    e("s_and_b32 %s, %s, 3" % (s(sT1), s(sU)))
    e("s_mul_i32 %s, %s, 5120" % (s(sT0), s(sT0)))
    e("s_mul_i32 %s, %s, %d" % (s(sT1), s(sT1), 2*W2F_CB))
    e("s_add_u32 %s, %s, %s" % (s(sT0), s(sT0), s(sT1)))
    e("s_add_u32 %s, %s, %d" % (s(sT0), s(sT0), W2F_OFF))
    e("s_cmp_ge_u32 %s, %d" % (s(sU), 4*NKS)); e("s_cselect_b32 %s, 0x%x, %s" % (s(sT0), 0x30000000, s(sT0)))
    for m in range(3):
        e("v_add_u32 %s, %s, %s" % (v(213+m), s(sUl), v(vUT[m])))
        e("ds_read_b64_tr_b16 %s, %s" % (vr(vd+4*m,2), v(213+m)))
        e("ds_read_b64_tr_b16 %s, %s offset:%d" % (vr(vd+4*m+2,2), v(213+m), 16*U_ROW))
    for m in range(3):
        e("s_add_u32 %s, %s, %s" % (s(sT1), s(sT0), s(sUW[m])))
        e("s_waitcnt lgkmcnt(%d)" % (4 - 2*m if not full_wait else 0))
        e("buffer_store_dwordx4 %s, %s, %s, %s offen sc1" % (vr(vd+4*m,4), v(vL16), sr(sWS,4), s(sT1)))
def pf_loop(e, tag, fn, u0, n, lds0):
    e("s_add_u32 %s, %s, %d" % (s(sUn), s(sCB), 16*u0))
    e("s_mov_b32 %s, %d" % (s(sUl), lds0))
    e("s_mov_b32 %s, 0" % s(sIter))
    e.lab("L_pfl_%s" % tag)
    fn(e)
    e("s_add_u32 %s, %s, 16" % (s(sUn), s(sUn)))
    e("s_add_u32 %s, %s, %d" % (s(sUl), s(sUl), U_BYTES))
    e("s_add_u32 %s, %s, 1" % (s(sIter), s(sIter)))
    e("s_cmp_lt_u32 %s, %d" % (s(sIter), n))
    e("s_cbranch_scc1 L_pfl_%s" % tag)
N_FFN_UNITS = 2
def signal_count(e, off):
    R = " ; rare"
    e("v_mov_b32 v250, 1" + R); e("v_mov_b32 v251, 0" + R)
    e("s_mov_b32 exec_lo, 1" + R); e("s_mov_b32 exec_hi, 0" + R)
    e("buffer_atomic_add v250, v251, %s, 0 offen offset:%d sc1" % (sr(sDBG,4), off) + R)
    e("s_mov_b64 exec, -1" + R)
def spin_count(e, tag, off, target, vtmp, have_first=None):
    R = " ; rare"
    if have_first is not None:
        e("v_readfirstlane_b32 %s, %s" % (s(sT0), v(have_first)))
        e("s_nop 3")
        e("s_cmp_ge_u32 %s, %d" % (s(sT0), target))
        e("s_cbranch_scc1 L_cok_%s" % tag)
    e("s_mov_b32 %s, 0" % s(sT1) + R)
    e("v_mov_b32 %s, 0" % v(vtmp+1) + R)
    e.lab("L_cspin_%s" % tag)
    e("buffer_load_dword %s, %s, %s, 0 offen offset:%d sc1" % (v(vtmp), v(vtmp+1), sr(sDBG,4), off) + R)
    e("s_waitcnt vmcnt(0)" + R)
    e("v_readfirstlane_b32 %s, %s" % (s(sT0), v(vtmp)) + R)
    e("s_nop 3" + R)
    e("s_cmp_ge_u32 %s, %d" % (s(sT0), target) + R)
    e("s_cbranch_scc1 L_cok_%s" % tag + R)
    e("s_sleep %d" % CSLEEP + R)
    e("s_add_u32 %s, %s, 1" % (s(sT1), s(sT1)) + R)
    e("s_cmp_lt_u32 %s, %d" % (s(sT1), SPIN_MAX) + R)
    e("s_cbranch_scc1 L_cspin_%s" % tag + R)
    e.lab("L_cok_%s" % tag)
CSLEEP = 40
FSLEEP = 8
CNT_P, N_P = 4, 128

DA = 6
POLL_A_AT = 6
FFN_W2A_IN = 0
ATT_W2A_IN = 35
ATT_ENDGAP = 260
W2A_BEFORE_SIG = 12
P0 = 12
vAR = 80
vWR = 176
def act_soff(p, dst):
    if p < 14: return ["s_lshl_b32 %s, %s, 2" % (s(dst), s(sKQ[p])), "s_add_u32 %s, %s, %s" % (s(dst), s(dst), s(sAB))]
    return ["s_lshl_b32 %s, %s, 12" % (s(dst), s(sWave)), "s_add_u32 %s, %s, %s" % (s(dst), s(dst), s(sAB)),
            "s_add_u32 %s, %s, %d" % (s(dst), s(dst), 4*(p-14)*4096)]
def act_loads(p):
    st = vAR + (p % DA)*16
    G = []
    for tt in range(4):
        g = act_soff(p, sD0) if tt == 0 else []
        g.append("buffer_load_dwordx4 %s, %s, %s, %s offen offset:%d sc1" % (vr(st+4*tt,4), v(vL16), sr(sWS,4), s(sD0), tt*1024))
        G.append(g)
    return G

def phase2():
    e = E()
    e.lab("L_ph2")
    stamp(e, 8)
    spin_flags(e, "f", MASK_F, 250, have_first=vPoll)
    st = State()
    main = E()
    for p in range(DA):
        for g in act_loads(p): main.ext(g)
    for i in range(80): main("v_mov_b32 %s, 0" % v(i))
    main("v_add_u32 v216, %s, %s" % (s(sLA), v(vL16)))
    main("v_add_u32 v217, %s, %s" % (s(sLB), v(vL16)))
    def wl_reads(p):
        out = []
        for ct in range(5):
            q = 5*p + ct
            ad, off = (216, q*1024) if q < 12 else (217, (q-12)*1024)
            out.append("ds_read_b128 %s, %s offset:%d" % (vr(vWR + (p & 1)*20 + ct*4, 4), v(ad), off))
        return out
    main.ext(wl_reads(0))
    main("v_lshlrev_b32 v218, 2, %s" % v(vLane))
    stamp(main, 9)
    NP = 19
    for p in range(NP):
        ms = []
        for ct in range(5):
            if p < 5: wsrc = vr(vWR + (p & 1)*20 + ct*4, 4)
            else:     wsrc = ar(((p - 5) % 12)*20 + ct*4, 4)
            for tt in range(4):
                d = vr((tt*5+ct)*4, 4)
                ms.append("%s %s, %s, %s, %s" % (MFMA, d, wsrc, vr(vAR + (p % DA)*16 + 4*tt, 4), d))
        aux = []
        if p + 1 < 5: aux += [[t] for t in wl_reads(p + 1)]
        q = p - 1 + DA
        if p >= 1 and q < NP:
            if q == 14:
                sp = E(); spin_flags(sp, "a", MASK_A, 250, have_first=219)
                main.ext(sp.L)
                rx = E()
                rx("v_and_b32 v220, 15, %s" % v(vLane)); rx("v_lshrrev_b32 v221, 4, %s" % v(vLane))
                rx("s_lshl_b32 %s, %s, 6" % (s(sT0), s(sTB))); rx("s_lshl_b32 %s, %s, 4" % (s(sT1), s(sWave)))
                rx("s_add_u32 %s, %s, %s" % (s(sT0), s(sT0), s(sT1)))
                rx("v_add_u32 v220, %s, v220" % s(sT0)); rx("v_lshlrev_b32 v222, 2, v220")
                rx("v_mul_u32_u24 v220, 1280, v220")
                rx("s_mul_i32 %s, %s, 160" % (s(sT1), s(sC2))); rx("v_add_u32 v220, %s, v220" % s(sT1))
                rx("v_lshl_add_u32 v240, v221, 4, v220"); rx("v_lshl_add_u32 v242, v221, 3, v220")
                rx("s_mov_b32 %s, %d" % (s(sT2), RSTD_OFF))
                rx("buffer_load_dwordx4 v[224:227], v240, %s, 0 offen" % sr(sX,4))
                rx("buffer_load_dwordx4 v[228:231], v240, %s, 0 offen offset:64" % sr(sX,4))
                rx("buffer_load_dwordx2 v[232:233], v242, %s, 0 offen offset:128" % sr(sX,4))
                rx("buffer_load_dword v234, v222, %s, %s offen sc1" % (sr(sWS,4), s(sT2)))
                main.ext(rx.L)
            aux += act_loads(q)
        if p == POLL_A_AT:
            aux.append(["buffer_load_dword v219, v218, %s, %s offen sc1" % (sr(sWS,4), s(sFL))])
        if P0 <= p + 7 <= 16: aux += w2a_groups(p + 7, p + 8)
        if p == 10: aux += w2a_groups(17, 18)
        if p == 11: aux += w2a_groups(18, 19)
        flat = []
        n = len(ms); k = 0
        for i_, m in enumerate(ms):
            main(m)
            want = (i_ + 1)*len(aux) // n
            while k < want:
                main.ext(aux[k]); k += 1
    stamp(main, 10)
    main("s_barrier")
    main("v_lshlrev_b32 v236, 4, %s" % v(vLane))
    main("s_mul_i32 %s, %s, %d" % (s(sT0), s(sWave), 20*1024))
    main("v_add_u32 v237, %s, v236" % s(sT0))
    main("s_nop 7"); main("s_nop 3")
    for w in range(4):
        main("s_cmp_lg_u32 %s, %d" % (s(sWave), w))
        main("s_cbranch_scc1 L_k2_w%d" % w)
        for tt in range(4):
            if tt == w: continue
            for ct in range(5):
                main("ds_write_b128 v237, %s offset:%d" % (vr((tt*5+ct)*4,4), (tt*5+ct)*1024))
        if w != 0:
            for r in range(20): main("v_mov_b32 %s, %s" % (v(r), v(w*20 + r)))
        main("s_branch L_k2_red")
        main.lab("L_k2_w%d" % w)
    main.lab("L_k2_red")
    main("s_waitcnt lgkmcnt(0)")
    main("s_barrier")
    main("s_mul_i32 %s, %s, 5120" % (s(sT0), s(sWave)))
    main("v_add_u32 v237, %s, v236" % s(sT0))
    for k in range(1, 4):
        main("s_add_u32 %s, %s, %d" % (s(sT1), s(sWave), k))
        main("s_and_b32 %s, %s, 3" % (s(sT1), s(sT1)))
        main("s_mul_i32 %s, %s, %d" % (s(sT1), s(sT1), 20*1024))
        main("v_add_u32 %s, %s, v237" % (v(208+k), s(sT1)))
        for ct in range(5):
            main("ds_read_b128 %s, %s offset:%d" % (vr(80 + ((k-1)*5+ct)*4, 4), v(208+k), ct*1024))
    for k in range(3):
        for r in range(0, 20, 2):
            main("v_pk_add_f32 %s, %s, %s" % (vr(r,2), vr(r,2), vr(80 + k*20 + r, 2)))
    srd(main, sW, 16, X_BYTES)
    xr = [224, 226, 228, 230, 232]
    o = 150
    for ct in range(5):
        xp = xr[ct]
        for hh in range(2):
            main("v_lshlrev_b32 v140, 16, %s" % v(xp+hh))
            main("v_and_b32 v141, 0xffff0000, %s" % v(xp+hh))
            d = ct*4 + 2*hh
            main("v_pk_fma_f32 %s, %s, %s, %s op_sel_hi:[1,0,1]" % (vr(140,2), vr(d,2), vr(234,2), vr(140,2)))
            main("v_cvt_pk_bf16_f32 %s, v140, v141" % v(o + 2*ct + hh))
    main("buffer_store_dwordx4 %s, v240, %s, 0 offen" % (vr(o,4), sr(sW,4)))
    main("buffer_store_dwordx4 %s, v240, %s, 0 offen offset:64" % (vr(o+4,4), sr(sW,4)))
    main("buffer_store_dwordx2 %s, v242, %s, 0 offen offset:128" % (vr(o+8,2), sr(sW,4)))
    stamp(main, 11)
    if "stamp" in OPTS: main("s_waitcnt vmcnt(0)")
    stamp(main, 12)
    stamp_flush(main)
    st = State(); dummy = []
    pre = []
    for g in w2a_groups(5, P0): pre += ["  " + t for t in g]
    st = process(pre, st, dummy)
    o1 = []; st = process(e.L, st, o1)
    o2 = []; st = process(main.L, st, o2)
    return o1 + o2

def top():
    out = []
    e = E()
    e("s_load_dwordx16 s[4:19], s[0:1], 0")
    e("s_load_dwordx2 s[20:21], s[0:1], 64")
    e("s_cmp_ge_u32 s2, 256")
    e("s_cbranch_scc1 L_end")
    if "stamp" in OPTS: e("v_mov_b32 %s, 0" % v(vSt))
    e("s_getpc_b64 s[60:61]")
    e.lab("L_pcbase")
    e("s_lshr_b32 s3, s2, 3")
    e("s_lshl_b32 s3, s3, 12")
    e("v_lshl_add_u32 v2, v0, 4, s3")
    e("v_min_u32 v2, L_codeend-L_pcbase-16, v2")
    if "nopf" not in OPTS: e("global_load_dwordx4 v[236:239], v2, s[60:61]")
    e("v_and_b32 %s, 63, v0" % v(vLane))
    e("v_lshrrev_b32 v1, 6, v0")
    e("s_and_b32 s3, s2, 7")
    e("v_readfirstlane_b32 %s, v1" % s(sWave))
    e("s_lshr_b32 %s, s2, 3" % s(sT0))
    e("s_and_b32 %s, s3, 1" % s(sT1))
    e("s_lshr_b32 %s, s3, 1" % s(sT2))
    e("s_lshl_b32 %s, %s, 3" % (s(sT1), s(sT1)))
    e("s_cmp_ge_u32 %s, 30" % s(sT0))
    e("s_cbranch_scc1 L_role_pf")
    e("s_cmp_ge_u32 %s, 16" % s(sT0))
    e("s_cbranch_scc1 L_role_ffn")
    e("s_lshl_b32 %s, %s, 1" % (s(sCB), s(sT2)))
    e("s_lshr_b32 %s, %s, 3" % (s(sT3), s(sT0)))
    e("s_add_u32 %s, %s, %s" % (s(sCB), s(sCB), s(sT3)))
    e("s_and_b32 %s, %s, 7" % (s(sKC), s(sT0)))
    e("s_add_u32 %s, %s, %s" % (s(sRB), s(sT1), s(sKC)))
    e("s_mul_i32 %s, %s, 5" % (s(sT3), s(sT3)))
    e("s_add_u32 %s, %s, %s" % (s(sKC), s(sKC), s(sT3)))
    e("s_cmp_ge_u32 %s, 10" % s(sKC))
    e("s_cselect_b32 %s, 10, 0" % s(sT3))
    e("s_sub_u32 %s, %s, %s" % (s(sKC), s(sKC), s(sT3)))
    if "rotk" not in OPTS: e("s_mov_b32 %s, 0" % s(sKC))
    if "rot4" in OPTS:
        e("s_and_b32 %s, %s, 1" % (s(sT3), s(sCB))); e("s_lshl_b32 %s, %s, 1" % (s(sT3), s(sT3)))
        e("s_add_u32 %s, %s, %s" % (s(sT3), s(sT3), s(sRB))); e("s_and_b32 %s, %s, 3" % (s(sT3), s(sT3)))
        e("s_mul_i32 %s, %s, 5" % (s(sT3), s(sT3))); e("s_lshr_b32 %s, %s, 1" % (s(sKC), s(sT3)))
    e("s_mul_i32 %s, %s, %d" % (s(sXO), s(sRB), 128*1280))
    e("s_sub_u32 %s, %s, %d" % (s(sXH), s(sXO), 16*1280))
    e("s_cmp_eq_u32 %s, 0" % s(sRB))
    e("s_cselect_b32 %s, 0, %s" % (s(sXH), s(sXH)))
    e("s_add_u32 %s, %s, 8" % (s(sSig), s(sCB)))
    attn_lane_setup(e)
    e("s_waitcnt lgkmcnt(0)")
    srd(e, sX, 4, X_BYTES); srd(e, sW, 6, WQKV_BYTES); srd(e, sWS, 20, WS_USED); srd(e, sDBG, 18, 256)
    stamp(e, 0)
    for w in range(3):
        e("s_cmp_eq_u32 %s, %d" % (s(sWave), w))
        e("s_cbranch_scc1 L_attn_%d" % w)
    e("s_branch L_attn_3")
    e.lab("L_role_ffn")
    e("s_mul_i32 %s, %s, 14" % (s(sT2), s(sT2)))
    e("s_add_u32 %s, %s, %s" % (s(sT2), s(sT2), s(sT0)))
    e("s_sub_u32 %s, %s, 16" % (s(sT2), s(sT2)))
    e("s_lshr_b32 %s, %s, 3" % (s(sCB), s(sT2)))
    e("s_and_b32 %s, %s, 7" % (s(sKC), s(sT2)))
    e("s_add_u32 %s, %s, %s" % (s(sRB), s(sT1), s(sKC)))
    e("s_and_b32 %s, %s, 1" % (s(sT3), s(sCB)))
    e("s_mul_i32 %s, %s, 5" % (s(sT3), s(sT3)))
    e("s_add_u32 %s, %s, %s" % (s(sKC), s(sKC), s(sT3)))
    e("s_add_u32 %s, %s, 2" % (s(sKC), s(sKC)))
    e("s_cmp_ge_u32 %s, 10" % s(sKC))
    e("s_cselect_b32 %s, 10, 0" % s(sT3))
    e("s_sub_u32 %s, %s, %s" % (s(sKC), s(sKC), s(sT3)))
    if "rotk" not in OPTS: e("s_mov_b32 %s, 0" % s(sKC))
    if "rot4" in OPTS:
        e("s_and_b32 %s, %s, 1" % (s(sT3), s(sCB))); e("s_lshl_b32 %s, %s, 1" % (s(sT3), s(sT3)))
        e("s_add_u32 %s, %s, %s" % (s(sT3), s(sT3), s(sRB))); e("s_add_u32 %s, %s, 1" % (s(sT3), s(sT3))); e("s_and_b32 %s, %s, 3" % (s(sT3), s(sT3)))
        e("s_mul_i32 %s, %s, 5" % (s(sT3), s(sT3))); e("s_lshr_b32 %s, %s, 1" % (s(sKC), s(sT3)))
    e("s_mul_i32 %s, %s, %d" % (s(sXO), s(sRB), 128*1280))
    e("s_mov_b32 %s, %s" % (s(sSig), s(sCB)))
    e("s_mul_i32 %s, %s, 7" % (s(sUn), s(sT1)))
    e("s_add_u32 %s, %s, %s" % (s(sUn), s(sUn), s(sT2)))
    ffn_lane_setup(e)
    e("s_waitcnt lgkmcnt(0)")
    srd(e, sX, 4, X_BYTES); srd(e, sW, 12, W1_BYTES); srd(e, sWS, 20, WS_USED); srd(e, sDBG, 18, 256); srd(e, sQ, 6, WQKV_BYTES)
    stamp(e, 0)
    for w in range(3):
        e("s_cmp_eq_u32 %s, %d" % (s(sWave), w))
        e("s_cbranch_scc1 L_ffn_%d" % w)
    e("s_branch L_ffn_3")
    e.lab("L_role_pf")
    e("s_lshl_b32 %s, s3, 1" % s(sCB))
    e("s_add_u32 %s, %s, %s" % (s(sCB), s(sCB), s(sT0)))
    e("s_sub_u32 %s, %s, 30" % (s(sCB), s(sCB)))
    e("s_waitcnt lgkmcnt(0)")
    srd(e, sX, 4, X_BYTES); srd(e, sWS, 20, WS_USED); srd(e, sDBG, 18, 256)
    stamp(e, 0)
    e("v_lshlrev_b32 %s, 4, %s" % (v(vL16), v(vLane)))
    unit_setup_dyn(e)
    e("s_mov_b32 %s, %d" % (s(sSzO), WO_BYTES)); e("s_mov_b32 %s, %d" % (s(sSz2), W2_BYTES))
    pf_loop(e, "l0", unit_loads_dyn, 7, 12, 0)
    stamp(e, 1)
    e("s_waitcnt vmcnt(0)")
    e("s_barrier")
    stamp(e, 2)
    pf_loop(e, "s0", unit_store_dyn, 7, 12, 0)
    stamp(e, 3)
    e("s_waitcnt vmcnt(0)")
    e("s_barrier")
    e("s_cmp_lg_u32 %s, 0" % s(sWave))
    e("s_cbranch_scc1 L_pf_nosig")
    signal_count(e, CNT_P)
    e.lab("L_pf_nosig")
    stamp(e, 4)
    ph2_setup(e, F_SLOT)
    e("s_cmp_lg_u32 %s, 0" % s(sWave))
    e("s_cbranch_scc1 L_pf_nospin")
    spin_count(e, "pf", CNT_P, N_P, 250)
    e.lab("L_pf_nospin")
    e("s_barrier")
    get_nonce(e, "pf", 250)
    stamp(e, 5)
    if "ph1only" in OPTS: stamp_flush(e); e("s_endpgm")
    for g in w2l_groups(0, 25): e.ext(g)
    e("v_lshlrev_b32 v2, 2, %s" % v(vLane))
    e("buffer_load_dword %s, v2, %s, %s offen sc1" % (v(vPoll), sr(sWS,4), s(sFL)))
    for g in w2a_groups(5, P0): e.ext(g)
    e("s_waitcnt vmcnt(%d)" % (5*(P0-5)))
    e("s_branch L_ph2")
    out += process_path(e.L, None, None, [])
    for role in ("attn", "ffn"):
        for w in range(4):
            tag = "%s_%d" % (role, w)
            pre = E(); pre.lab("L_" + tag)
            if role == "attn":
                cfg = attn_cfg(w)
                def extra(e, w=w):
                    read_addr_setup_attn(e)
                    if w == 0:
                        e("s_cmp_lg_u32 s2, 0 ; rare"); e("s_cbranch_scc1 L_nononce ; rare")
                        e("s_memrealtime s[96:97] ; rare"); e("s_waitcnt lgkmcnt(0) ; rare")
                        e("s_or_b32 s96, s96, 1 ; rare"); e("v_mov_b32 v14, s96 ; rare"); e("v_mov_b32 v15, 0 ; rare")
                        e("buffer_store_dword v14, v15, %s, 0 offen sc1 ; rare" % sr(sDBG,4))
                        e.lab("L_nononce")
                        e("v_and_b32 v2, 7, %s" % v(vLane))
                        e("v_lshlrev_b32 v7, 4, v2")
                        e("v_mov_b32 v8, 0x3f803f80"); e("v_mov_b32 v9, v8"); e("v_mov_b32 v10, v8"); e("v_mov_b32 v11, v8")
                        e("ds_write_b128 v7, v[8:11]")
                        e("v_add_u32 v12, %d, v7" % A_SLOT); e("ds_write_b128 v12, v[8:11]")
                        e("v_add_u32 v13, %d, v7" % (2*A_SLOT)); e("ds_write_b128 v13, v[8:11]")
                body, post, side = role_main(pre, tag, cfg, attn_dma_list(w), vDO, w, 160, extra)
                ep = E(); attn_epilogue(w, ep)
            else:
                cfg = ffn_cfg(w)
                body, post, side = role_main(pre, tag, cfg, ffn_dma_list(w), fDO, w, 152, read_addr_setup_ffn, units=("nounits" not in OPTS))
                ep = E(); ffn_epilogue(w, ep)
            groups = w2a_groups(5, P0) if "ph1only" not in OPTS else []
            nin = (ATT_W2A_IN if role == "attn" else FFN_W2A_IN) if groups else 0
            epl = sprinkle(ep.L, groups[:nin], start=4, end_gap=(ATT_ENDGAP if role == "attn" else 10)) if nin else ep.L
            fin = E()
            stamp(fin, 6)
            fin("v_lshlrev_b32 v2, 2, %s" % v(vLane))
            if "nopoll" not in OPTS: fin("buffer_load_dword %s, v2, %s, %s offen sc1" % (v(vPoll), sr(sWS,4), s(sFL)))
            nb = min(W2A_BEFORE_SIG, len(groups) - nin)
            for g in groups[nin:nin+nb]: fin.ext(g)
            fin("s_waitcnt vmcnt(%d)" % nb)
            stamp(fin, 7)
            if "ph1only" in OPTS:
                stamp_flush(fin); fin("s_endpgm")
            else:
                fin("s_barrier")
                signal_rb(fin, tag, None)
                for g in groups[nin+nb:]: fin.ext(g)
                fin("s_branch L_ph2")
            out += process_path(pre.L, "L_loop_" + tag, body, post.L + epl + fin.L)
            out += side
    out += phase2()
    out.append("L_end:")
    return out

def kd(name, nfv, accum, sg=102):
    return """.section .rodata,"a"
.p2align 6
.amdhsa_kernel %s
  .amdhsa_next_free_vgpr %d
  .amdhsa_next_free_sgpr %d
  .amdhsa_accum_offset %d
  .amdhsa_group_segment_fixed_size 0
  .amdhsa_kernarg_size 72
  .amdhsa_user_sgpr_count 2
  .amdhsa_user_sgpr_kernarg_segment_ptr 1
  .amdhsa_system_sgpr_workgroup_id_x 1
  .amdhsa_float_denorm_mode_32 3
.end_amdhsa_kernel
""" % (name, nfv, sg, accum)

HEADER = """; Kernarg (72 bytes): [0] A_x [8] A_wqkv [16] A_wo [24] B_x [32] B_w1 [40] B_w2 [48] out [56] debug [64] ws
; @launch grid=(256,1,1) block=(256,1,1) lds=163840
.amdgcn_target "amdgcn-amd-amdhsa--gfx950"
"""
def main():
    if len(sys.argv) > 2: OPTS.update(sys.argv[2].split(","))
    k = top()
    txt = HEADER + ".text\n.globl %s\n.p2align 8\n.type %s,@function\n%s:\n" % (KNAME, KNAME, KNAME) + "\n".join(k) + "\ns_endpgm\nL_codeend:\n" + kd(KNAME, 512, 256)
    path = sys.argv[1] if len(sys.argv) > 1 else "out2.s"
    open(path, "w").write(txt)
    print("wrote", path, len(txt), "bytes;", len(k), "lines")
if __name__ == "__main__": main()
```

```python
import sys, struct, os
from irlib import *

KNAME = "parallel_sum__sliding_local_dilated__dense_activation_relu__prompt_kernel"
S_, D_, DFF = 2048, 640, 1728
X_BYTES = S_*D_*2; WQKV_BYTES = D_*3*D_*2; WO_BYTES = D_*D_*2; W1_BYTES = D_*DFF*2; W2_BYTES = DFF*D_*2
NKS = 74
ACT_OFF = 0; ACT_TB = NKS*4096
W2F_OFF = 10*1024*1024; W2F_CB = NKS*5120
RSTD_OFF = 14*1024*1024
STAMP_OFF = 16*1024*1024
WS_USED = 17*1024*1024
OOB = 0x7F000000
FLAG_OFF = 15*1024*1024
MASK_F, MASK_A, MASK_P = 0x7f, 0xff00, 0xffff0000
SPIN_MAX = 200000
OPTS = set()
def f2u(x): return struct.unpack("<I", struct.pack("<f", x))[0]
def v(i): return "v%d" % i
def vr(i, n): return "v[%d:%d]" % (i, i+n-1)
def a(i): return "a%d" % i
def ar(i, n): return "a[%d:%d]" % (i, i+n-1)
def s(i): return "s%d" % i
def sr(i, n): return "s[%d:%d]" % (i, i+n-1)
MFMA = "v_mfma_f32_16x16x32_bf16"

class E:
    def __init__(self): self.L = []
    def __call__(self, t): self.L.append("  " + t)
    def lab(self, t): self.L.append(t + ":")
    def ext(self, lines):
        for t in lines: self.L.append(t if t.startswith("  ") or t.endswith(":") else "  " + t)

sWave = 22
sX, sW, sWS, sDBG = 24, 28, 32, 76
sRB, sCB, sKC, sSoX, sSoW, sDSlot, sRDelta, sIter = 36, 37, 38, 39, 40, 41, 42, 43
sT0, sT1, sT2, sT3 = 46, 47, 48, 49
sM = 50
sTB, sC2, sSig, sWB, sAB, sLA, sLB, sP0, sP1, sRB2 = 80, 81, 82, 83, 84, 85, 86, 87, 88, 89
sKQ = [4,5,6,7,8,9,10,11,12,13,14,15,18,19]
sNonce, sFL = 23, 45
sD0, sD1 = 90, 91
sXO, sXH = 92, 93
vLane = 255
vSt = 247
vPoll = 243
vNon = 252

def stamp(e, i):
    if "stamp" in OPTS:
        e("s_memrealtime s[96:97]"); e("s_memtime s[98:99]"); e("s_waitcnt lgkmcnt(0)")
        e("v_writelane_b32 %s, s96, %d" % (v(vSt), 2*i)); e("v_writelane_b32 %s, s98, %d" % (v(vSt), 2*i+1))
def stamp_flush(e):
    if "stamp" not in OPTS: return
    if "dbgst" in OPTS:
        uid = len(e.L)
        for wg, lst, base in ((0, [3,4,5,6,9,12], 2), (128, [3,4,5,7,9], 8), (240, [4,5,8], 13)):
            lab = "L_ds_%d_%d" % (wg, uid)
            e("s_cmp_lg_u32 s2, %d" % wg); e("s_cbranch_scc1 %s" % lab)
            e("s_cmp_lg_u32 %s, 0" % s(sWave)); e("s_cbranch_scc1 %s" % lab)
            e("v_readlane_b32 s96, %s, 0" % v(vSt))
            for n_, i in enumerate(lst):
                e("v_readlane_b32 s97, %s, %d" % (v(vSt), 2*i))
                e("s_nop 4")
                e("s_sub_u32 s97, s97, s96")
                e("v_mov_b32 v1, s97"); e("v_mov_b32 v2, %d" % (4*(base+n_)))
                e("buffer_store_dword v1, v2, %s, 0 offen" % sr(sDBG,4))
            e.lab(lab)
        return
    e("s_lshl_b32 s3, s2, 2"); e("s_add_u32 s3, s3, %s" % s(sWave)); e("s_lshl_b32 s3, s3, 8")
    e("s_add_u32 s3, s3, %d" % STAMP_OFF)
    e("v_lshlrev_b32 v1, 2, %s" % v(vLane))
    e("buffer_store_dword %s, v1, %s, s3 offen" % (v(vSt), sr(sWS,4)))

def srd(e, base, ptr, nbytes):
    e("s_mov_b32 %s, %s" % (s(base), s(ptr)))
    e("s_and_b32 %s, %s, 0xffff" % (s(base+1), s(ptr+1)))
    e("s_mov_b32 %s, %d" % (s(base+2), nbytes))
    e("s_mov_b32 %s, 0x20000" % s(base+3))

def check_flags(e, mask, val, oklab, rare=""):
    e("v_cmp_eq_u32 vcc, %s, %s%s" % (s(sNonce), v(val), rare))
    e("s_nop 3" + rare)
    e("s_and_b32 %s, vcc_lo, 0x%x%s" % (s(sT0), mask, rare))
    e("s_cmp_eq_u32 %s, 0x%x%s" % (s(sT0), mask, rare))
    e("s_cbranch_scc1 %s%s" % (oklab, rare))
def spin_flags(e, tag, mask, vtmp, have_first=None):
    R = " ; rare"
    if have_first is not None: check_flags(e, mask, have_first, "L_ok_%s" % tag)
    e("s_mov_b32 %s, 0" % s(sT1) + R)
    e("v_lshlrev_b32 %s, 2, %s" % (v(vtmp+1), v(vLane)) + R)
    e.lab("L_spin_%s" % tag)
    e("buffer_load_dword %s, %s, %s, %s offen sc1" % (v(vtmp), v(vtmp+1), sr(sWS,4), s(sFL)) + R)
    e("s_waitcnt vmcnt(0)" + R)
    check_flags(e, mask, vtmp, "L_ok_%s" % tag, R)
    e("s_sleep %d" % FSLEEP + R)
    e("s_add_u32 %s, %s, 1" % (s(sT1), s(sT1)) + R)
    e("s_cmp_lt_u32 %s, %d" % (s(sT1), SPIN_MAX) + R)
    e("s_cbranch_scc1 L_spin_%s" % tag + R)
    e.lab("L_ok_%s" % tag)
def get_nonce(e, tag, vtmp, have_first=None):
    R = " ; rare"
    if have_first is not None:
        e("v_readfirstlane_b32 %s, %s" % (s(sNonce), v(have_first)))
        e("s_nop 3")
        e("s_cmp_lg_u32 %s, 0" % s(sNonce))
        e("s_cbranch_scc1 L_nok_%s" % tag)
    e("s_mov_b32 %s, 0" % s(sT1) + R)
    e("v_mov_b32 %s, 0" % v(vtmp+1) + R)
    e.lab("L_nspin_%s" % tag)
    e("buffer_load_dword %s, %s, %s, 0 offen sc1" % (v(vtmp), v(vtmp+1), sr(sDBG,4)) + R)
    e("s_waitcnt vmcnt(0)" + R)
    e("v_readfirstlane_b32 %s, %s" % (s(sNonce), v(vtmp)) + R)
    e("s_nop 3" + R)
    e("s_cmp_lg_u32 %s, 0" % s(sNonce) + R)
    e("s_cbranch_scc1 L_nok_%s" % tag + R)
    e("s_sleep 8" + R)
    e("s_add_u32 %s, %s, 1" % (s(sT1), s(sT1)) + R)
    e("s_cmp_lt_u32 %s, %d" % (s(sT1), SPIN_MAX) + R)
    e("s_cbranch_scc1 L_nspin_%s" % tag + R)
    e.lab("L_nok_%s" % tag)
def signal_rb(e, tag, word_sgpr_expr):
    e("s_cmp_lg_u32 %s, 0" % s(sWave))
    e("s_cbranch_scc1 L_nosig_%s" % tag)
    R = " ; rare"
    e("s_and_b32 %s, %s, 1" % (s(sT0), s(sRB)) + R)
    e("s_lshl_b32 %s, %s, 4" % (s(sT0), s(sT0)) + R)
    e("v_add_u32 v1, %s, %s" % (s(sT0), v(vLane)) + R)
    e("v_lshlrev_b32 v1, 3, v1" + R)
    e("s_lshr_b32 %s, %s, 1" % (s(sT0), s(sRB)) + R)
    e("v_add_u32 v1, %s, v1" % s(sT0) + R)
    e("v_lshlrev_b32 v1, 7, v1" + R)
    e("s_lshl_b32 %s, %s, 2" % (s(sT0), s(sSig)) + R)
    e("s_add_u32 %s, %s, %d" % (s(sT0), s(sT0), FLAG_OFF) + R)
    e("v_mov_b32 v2, %s" % s(sNonce) + R)
    e("s_mov_b32 exec_lo, 0xffff" + R); e("s_mov_b32 exec_hi, 0" + R)
    e("buffer_store_dword v2, v1, %s, %s offen sc1" % (sr(sWS,4), s(sT0)) + R)
    e("s_mov_b64 exec, -1" + R)
    e.lab("L_nosig_%s" % tag)

class Cfg: pass

def chunk_body(cfg, dma, last=False, rolled_tag=None, closing_vm=None, first_vm=None):
    NT = cfg.ntile; NF = 2*NT; R = cfg.ring; L = cfg.look; TAIL = cfg.tail
    assert NF % R == 0
    wreg = lambda f: cfg.wbase + (f % R)*4
    def wreads(f):
        kh, c = divmod(f % NF, NT); return cfg.wread(kh, c, wreg(f))
    def mf(f):
        kh, c = divmod(f % NF, NT); return cfg.mf(kh, c, wreg(f))
    NFIRST = cfg.nfirst
    items = []
    for f in range(0, NF - TAIL):
        g = f + L
        rd = wreads(g) if NFIRST <= g < NF else []
        if f == cfg.xread1_at: rd = rd + cfg.xreads(1)
        ms = []
        if f == 0 and "nostats" not in OPTS: ms += cfg.stats(0)
        if f == NT and "nostats" not in OPTS: ms += cfg.stats(1)
        ms += mf(f)
        items.append((rd, ms))
    issued = set(range(NFIRST)) | {f + L for f in range(0, NF - TAIL) if NFIRST <= f + L < NF}
    assert issued == set(range(NF)), (sorted(set(range(NF)) - issued))
    nm = sum(len(m) for _, m in items)
    out = []
    nd = len(dma)
    st = cfg.dma_start + cfg.dma_skew; en = nm - cfg.dma_endgap
    pos = [st + (en - st)*i // max(nd, 1) for i in range(nd)]
    cnt = 0; di = 0
    for rd, ms in items:
        rq = list(rd)
        for k, m in enumerate(ms):
            if rq:
                take = (len(rq) + (len(ms) - k) - 1) // (len(ms) - k)
                for _ in range(take): out.append(rq.pop(0))
            out.append(m); cnt += 1
            while di < nd and pos[di] <= cnt:
                out += dma[di]; di += 1
    assert di == nd
    if closing_vm is None: out.append("s_waitcnt lgkmcnt(0)")
    elif first_vm is not None:
        out.append("s_cmp_eq_u32 %s, 0" % s(sIter))
        out.append("s_cbranch_scc1 L_first_%s" % rolled_tag)
        out.append("s_waitcnt vmcnt(%d) lgkmcnt(0)" % closing_vm)
        out.append("L_join_%s:" % rolled_tag)
    else: out.append("s_waitcnt vmcnt(%d) lgkmcnt(0)" % closing_vm)
    out.append("s_barrier")
    aux = []
    if not last:
        aux += cfg.addr_update + cfg.xreads(0)
        for f in range(NFIRST): aux += wreads(f)
    if rolled_tag: aux += cfg.scal_update
    tail = []
    for f in range(NF - TAIL, NF): tail += mf(f)
    per = -(-len(aux) // max(len(tail), 1))
    for m in tail:
        out.append(m)
        for _ in range(per):
            if aux: out.append(aux.pop(0))
    out += aux
    if rolled_tag:
        out.append("s_cbranch_scc1 L_loop_%s" % rolled_tag)
    return ["  ; lgextra 2"] + [t if t.endswith(":") else "  " + t for t in out] + ["  ; lgextra 0"]

sCp, sCm = 94, 95
def scal_update(slot, wstep, halo=False):
    t = []
    if "rotk" in OPTS:
        t.append("s_add_u32 %s, %s, 1" % (s(sKC), s(sKC)))
        t.append("s_cmp_eq_u32 %s, 10" % s(sKC))
        t.append("s_cselect_b32 %s, 0, %s" % (s(sKC), s(sKC)))
        t.append("s_lshl_b32 %s, %s, 7" % (s(sSoX), s(sKC)))
        t.append("s_mul_i32 %s, %s, %d" % (s(sSoW), s(sKC), wstep))
    else:
        t.append("s_add_u32 %s, %s, 128" % (s(sSoX), s(sSoX)))
        t.append("s_add_u32 %s, %s, %d" % (s(sSoW), s(sSoW), wstep))
    t.append("s_cmp_eq_u32 %s, %d" % (s(sDSlot), 2*slot))
    t.append("s_cselect_b32 %s, %s, %s" % (s(sRDelta), s(sCm), s(sCp)))
    t.append("s_add_u32 %s, %s, %s" % (s(sDSlot), s(sDSlot), s(sRDelta)))
    t.append("s_add_u32 %s, %s, 1" % (s(sIter), s(sIter)))
    t.append("s_cmp_lt_u32 %s, 8" % s(sIter))
    return t
def addr_update(slot, regs):
    t = []
    t.append("s_cmp_eq_u32 %s, %d" % (s(sDSlot), slot))
    t.append("s_cselect_b32 %s, %s, %s" % (s(sRDelta), s(sCm), s(sCp)))
    for r in regs: t.append("v_add_u32 %s, %s, %s" % (v(r), s(sRDelta), v(r)))
    return t

vL16, vL16b = 241, 245
def w2_soff(p, dst):
    if p < 14: return ["s_mul_i32 %s, %s, 5" % (s(dst), s(sKQ[p])), "s_add_u32 %s, %s, %s" % (s(dst), s(dst), s(sWB))]
    return ["s_mul_i32 %s, %s, 5120" % (s(dst), s(sWave)), "s_add_u32 %s, %s, %s" % (s(dst), s(dst), s(sWB)),
            "s_add_u32 %s, %s, %d" % (s(dst), s(dst), 4*(p-14)*5120)]
def w2l_groups(q0, q1):
    G = []
    for q in range(q0, q1):
        p, ct = divmod(q, 5)
        g = []
        if ct == 0 or q == q0: g += w2_soff(p, sP0)
        g.append("s_add_u32 m0, %s, %d" % (s(sLA if q < 12 else sLB), (q if q < 12 else q - 12)*1024))
        g.append("s_add_u32 %s, %s, %d" % (s(sP1), s(sP0), ct*1024))
        g.append("buffer_load_dwordx4 %s, %s, %s offen sc1 lds" % (v(vL16), sr(sWS,4), s(sP1)))
        G.append(g)
    return G
def w2a_groups(p0, p1):
    G = []
    for p in range(p0, p1):
        base = ((p - 5) % 12)*20
        for ct in range(5):
            g = []
            if ct == 0: g += w2_soff(p, sP0)
            if ct < 4: g.append("buffer_load_dwordx4 %s, %s, %s, %s offen offset:%d sc1" % (ar(base+4*ct,4), v(vL16), sr(sWS,4), s(sP0), ct*1024))
            else:      g.append("buffer_load_dwordx4 %s, %s, %s, %s offen sc1" % (ar(base+16,4), v(vL16b), sr(sWS,4), s(sP0)))
            G.append(g)
    return G
def ph2_setup(e, slot):
    e("s_and_b32 %s, s2, 7" % s(sT0))
    e("s_lshr_b32 %s, s2, 3" % s(sT1))
    e("s_lshr_b32 %s, %s, 3" % (s(sTB), s(sT1)))
    e("s_lshl_b32 %s, %s, 2" % (s(sT0), s(sT0)))
    e("s_add_u32 %s, %s, %s" % (s(sTB), s(sTB), s(sT0)))
    e("s_and_b32 %s, %s, 7" % (s(sC2), s(sT1)))
    e("s_lshr_b32 %s, %s, 1" % (s(sRB2), s(sTB)))
    e("s_lshl_b32 %s, %s, 2" % (s(sRB2), s(sRB2)))
    e("s_mul_i32 %s, %s, %d" % (s(sWB), s(sC2), W2F_CB))
    e("s_add_u32 %s, %s, %d" % (s(sWB), s(sWB), W2F_OFF))
    e("s_mul_i32 %s, %s, %d" % (s(sAB), s(sTB), ACT_TB))
    if ACT_OFF: e("s_add_u32 %s, %s, %d" % (s(sAB), s(sAB), ACT_OFF))
    e("s_mul_i32 %s, %s, 12288" % (s(sLA), s(sWave)))
    e("s_add_u32 %s, %s, %d" % (s(sLA), s(sLA), slot))
    e("s_mul_i32 %s, %s, 13312" % (s(sLB), s(sWave)))
    e("s_add_u32 %s, %s, %d" % (s(sLB), s(sLB), 2*slot))
    e("s_mul_i32 %s, %s, 7" % (s(sT0), s(sC2)))
    e("s_lshr_b32 %s, %s, 2" % (s(sT0), s(sT0)))
    e("s_and_b32 %s, %s, 3" % (s(sT1), s(sTB)))
    e("s_mul_i32 %s, %s, 7" % (s(sT1), s(sT1)))
    e("s_lshr_b32 %s, %s, 1" % (s(sT1), s(sT1)))
    e("s_add_u32 %s, %s, %s" % (s(sT0), s(sT0), s(sT1)))
    e("s_sub_u32 %s, %s, 14" % (s(sT1), s(sT0)))
    e("s_cmp_ge_u32 %s, 14" % s(sT0))
    e("s_cselect_b32 %s, %s, %s" % (s(sT0), s(sT1), s(sT0)))
    e("s_lshl_b32 %s, %s, 2" % (s(sT0), s(sT0)))
    e("s_add_u32 %s, %s, %s" % (s(sT0), s(sT0), s(sWave)))
    e("s_add_u32 %s, %s, 20" % (s(sT0), s(sT0)))
    for p in range(14):
        e("s_lshl_b32 %s, %s, 10" % (s(sKQ[p]), s(sT0)))
        e("s_cmp_ge_u32 %s, %d" % (s(sT0), NKS))
        e("s_cselect_b32 %s, 0x10000000, %s" % (s(sKQ[p]), s(sKQ[p])))
        if p < 13:
            e("s_add_u32 %s, %s, 4" % (s(sT0), s(sT0)))
            e("s_sub_u32 %s, %s, 56" % (s(sT1), s(sT0)))
            e("s_cmp_ge_u32 %s, 76" % s(sT0))
            e("s_cselect_b32 %s, %s, %s" % (s(sT0), s(sT1), s(sT0)))
    e("v_add_u32 %s, 4096, %s" % (v(vL16b), v(vL16)))
    e("s_lshl_b32 %s, s2, 7" % s(sFL))
    e("s_add_u32 %s, %s, %d" % (s(sFL), s(sFL), FLAG_OFF))

vZero = 249

A_SLOT = 53248; A_XB = 18432; A_WPAIR = 1088
A_XJ = [[0,1,2,3,4],[5,6,7,8,9],[10,11,12,13],[14,15,16,17]]
vWA, vX0, vX1 = 160, 161, 162
vXE, vXOd, vWL = 163, 164, 165
aW, aXF, aONE = 0, 40, 240
aST = 244
def acc_own(T, c): return (T*15 + c)*4
def acc_halo(eidx): return 120 + eidx*4
vSumT = [136, 140]; vSqT = [144, 148]; vSumH, vSqH = 152, 156
def xf(kh, T): return aXF + (kh*3 + T)*4

def x_lane_setup(e, vE, vO):
    e("v_lshrrev_b32 v1, 3, %s" % v(vLane))
    e("v_and_b32 v2, 7, %s" % v(vLane))
    e("v_lshrrev_b32 v3, 4, %s" % v(vLane))
    e("v_mul_u32_u24 v4, 1280, v1")
    e("v_xor_b32 v5, v2, v3")
    e("v_lshl_add_u32 %s, v5, 4, v4" % v(vE))
    e("v_xor_b32 %s, 64, %s" % (v(vO), v(vE)))

def attn_lane_setup(e):
    x_lane_setup(e, vXE, vXOd)
    e("v_cmp_le_u32 vcc, 30, %s" % v(vLane))
    e("v_mov_b32 v9, 0x40000000")
    e("v_cndmask_b32_e64 v6, 0, 1, vcc")
    e("v_cmp_le_u32 vcc, 60, %s" % v(vLane))
    e("v_mul_u32_u24 v7, 30, v6")
    e("v_sub_u32 v7, %s, v7" % v(vLane))
    e("v_mul_u32_u24 v8, 26, v7")
    e("v_lshrrev_b32 v8, 8, v8")
    e("v_mul_u32_u24 v8, 1120, v8")
    e("v_mul_u32_u24 v6, 3840, v6")
    e("v_lshlrev_b32 v7, 4, v7")
    e("v_add3_u32 v6, v6, v7, v8")
    e("s_mul_i32 %s, %s, 160" % (s(sT0), s(sCB)))
    e("v_add_u32 v6, %s, v6" % s(sT0))
    e("v_cndmask_b32_e64 %s, v6, v9, vcc" % v(vWL))

vDO = 166
def attn_dma_list(w):
    L = []
    for grp in ([[0,1],[2,3,4]], [[5,6,7,8],[9]], [[10,11,12,13]], [[14,15,16,17]])[w]:
        for m, j in enumerate(grp):
            imm = m*1024
            L.append(("x", j*1024 if m == 0 else None, imm, vXOd if j & 1 else vXE, (j*8*1280 if j < 2 else (j-2)*8*1280) - imm, j < 2, w == 0 and j == 0))
    kh = w >> 1; rd = w & 1
    for m in range(8):
        k = 32*kh + 8*(m >> 1) + 4*rd + 2*(m & 1)
        L.append(("w", A_XB + (8*w + m)*A_WPAIR if m % 4 == 0 else None, (m & 3)*A_WPAIR, vWL, k*3840 - (m & 3)*A_WPAIR, False, False))
    return L
def ffn_dma_list(w):
    L = []
    for m in range(4):
        j = 4*w + m
        L.append(("x", 4*w*1024 if m == 0 else None, m*1024, fXOd if j & 1 else fXE, j*8*1280 - m*1024, False, False))
    for m in range(8):
        kh, grp = m >> 2, m & 3
        k = 32*kh + 16*(grp & 1) + 4*(grp >> 1)
        L.append(("w", F_XB + w*8192 + m*1024 if m % 4 == 0 else None, (m & 3)*1024, fWL, k*3456 + w*128 - (m & 3)*1024, False, False))
    return L
def dma_groups_salu(L):
    G = []; tmp = [sD0, sD1]
    for n, (kind, m0c, imm, lane, uc, halo, mask) in enumerate(L):
        g = []; t = tmp[n & 1]
        if m0c is not None: g.append("s_add_u32 m0, %s, %d" % (s(sDSlot), m0c))
        if kind == "x":
            g.append("s_add_u32 %s, %s, %s" % (s(t), s(sSoX), s(sXH if halo else sXO)))
            if uc: g.append("s_add_u32 %s, %s, %d" % (s(t), s(t), uc))
        else: g.append("s_add_u32 %s, %s, %d" % (s(t), s(sSoW), uc))
        if mask: g.append("s_mov_b32 exec_lo, 0xffffff00")
        g.append("buffer_load_dwordx4 %s, %s, %s offen offset:%d lds" % (v(lane), sr(sX if kind == "x" else sW,4), s(t), imm))
        if mask: g.append("s_mov_b32 exec_lo, -1")
        G.append(g)
    return G
def dma_offsets_setup(e, L, base):
    for n, (kind, m0c, imm, lane, uc, halo, mask) in enumerate(L):
        if kind == "x":
            e("s_add_u32 %s, %s, %d" % (s(sD0), s(sXH if halo else sXO), uc))
            e("v_add_u32 %s, %s, %s" % (v(base+n), s(sD0), v(lane)))
        else:
            e("v_add_u32 %s, %d, %s" % (v(base+n), uc, v(lane)))
def dma_groups_vgpr(L, base):
    G = []
    for n, (kind, m0c, imm, lane, uc, halo, mask) in enumerate(L):
        g = []
        if m0c is not None:
            m0 = "s_add_u32 m0, %s, %d" % (s(sDSlot), m0c)
            if G: G[-1].append(m0)
            else: G.append([m0])
        if mask: g.append("s_mov_b32 exec_lo, 0xffffff00")
        g.append("buffer_load_dwordx4 %s, %s, %s offen offset:%d lds" % (v(base+n), sr(sX if kind == "x" else sW,4), s(sSoX if kind == "x" else sSoW), imm))
        if mask: g.append("s_mov_b32 exec_lo, -1")
        G.append(g)
    return G

def attn_cfg(w):
    cfg = Cfg()
    cfg.ntile = 15; cfg.ring = 10; cfg.look = 6; cfg.tail = 4; cfg.nfirst = 6; cfg.wbase = aW
    H = {w: 0, 5 + w: 1, 10 + w: 2}
    if w < 3: H[(4, 9, 14)[w]] = 3
    def wread(kh, c, reg):
        off = kh*16*A_WPAIR + 32*c
        return ["ds_read_b64_tr_b16 %s, %s offset:%d" % (ar(reg,2), v(vWA), off),
                "ds_read_b64_tr_b16 %s, %s offset:%d" % (ar(reg+2,2), v(vWA), off + 8*A_WPAIR)]
    def mf(kh, c, reg):
        out = []
        for T in (0, 1):
            d = vr(acc_own(T, c), 4)
            if c < 10: out.append("%s %s, %s, %s, %s" % (MFMA, d, ar(reg,4), ar(xf(kh,T),4), d))
            else:      out.append("%s %s, %s, %s, %s" % (MFMA, d, ar(xf(kh,T),4), ar(reg,4), d))
        if c in H and "nohalo" not in OPTS:
            d = vr(acc_halo(H[c]), 4)
            if c < 10: out.append("%s %s, %s, %s, %s" % (MFMA, d, ar(reg,4), ar(xf(kh,2),4), d))
            else:      out.append("%s %s, %s, %s, %s" % (MFMA, d, ar(xf(kh,2),4), ar(reg,4), d))
        return out
    def stats(kh):
        out = []
        for T in (0, 1):
            out.append("%s %s, %s, %s, %s" % (MFMA, vr(vSumT[T],4), ar(aONE,4), ar(xf(kh,T),4), vr(vSumT[T],4)))
            out.append("%s %s, %s, %s, %s" % (MFMA, vr(vSqT[T],4), ar(xf(kh,T),4), ar(xf(kh,T),4), vr(vSqT[T],4)))
        if w == 3:
            out.append("%s %s, %s, %s, %s" % (MFMA, vr(vSumH,4), ar(aONE,4), ar(xf(kh,2),4), vr(vSumH,4)))
            out.append("%s %s, %s, %s, %s" % (MFMA, vr(vSqH,4), ar(xf(kh,2),4), ar(xf(kh,2),4), vr(vSqH,4)))
        return out
    def xreads(kh):
        ad = vX1 if kh else vX0
        return ["ds_read_b128 %s, %s offset:%d" % (ar(xf(kh,0),4), v(ad), (1+2*w)*2048),
                "ds_read_b128 %s, %s offset:%d" % (ar(xf(kh,1),4), v(ad), (2+2*w)*2048),
                "ds_read_b128 %s, %s offset:%d" % (ar(xf(kh,2),4), v(ad), 0)]
    cfg.wread = wread; cfg.mf = mf; cfg.stats = stats; cfg.xreads = xreads
    cfg.xread1_at = 4
    cfg.addr_update = addr_update(A_SLOT, [vWA, vX0, vX1])
    cfg.scal_update = scal_update(A_SLOT, 64*3840, halo=(w == 0))
    cfg.dma_start = 2; cfg.dma_skew = w; cfg.dma_endgap = 8
    cfg.wstep = 64*3840; cfg.slot = A_SLOT
    return cfg

def xaddr_setup(e, X0, X1, base):
    e("v_and_b32 v1, 15, %s" % v(vLane))
    e("v_lshrrev_b32 v4, 4, %s" % v(vLane))
    e("v_lshrrev_b32 v2, 1, v1")
    e("v_xor_b32 v2, v2, v4")
    e("v_lshlrev_b32 v2, 4, v2")
    e("v_lshl_add_u32 v2, v1, 7, v2")
    e("v_add_u32 %s, %d, v2" % (v(X0), base))
    e("v_xor_b32 v2, 64, v2")
    e("v_add_u32 %s, %d, v2" % (v(X1), base))

def read_addr_setup_attn(e):
    e("v_and_b32 v1, 15, %s" % v(vLane))
    e("v_lshrrev_b32 v2, 2, v1")
    e("v_and_b32 v3, 3, v1")
    e("v_lshrrev_b32 v4, 4, %s" % v(vLane))
    e("v_lshrrev_b32 v5, 1, v2")
    e("v_lshl_add_u32 v5, v4, 1, v5")
    e("v_mul_u32_u24 v5, %d, v5" % A_WPAIR)
    e("v_and_b32 v2, 1, v2")
    e("v_mul_u32_u24 v2, 480, v2")
    e("v_lshlrev_b32 v3, 3, v3")
    e("v_add3_u32 v5, v5, v2, v3")
    e("v_add_u32 %s, %d, v5" % (v(vWA), A_XB))
    xaddr_setup(e, vX0, vX1, 0)

sSzO, sSz2 = 69, 70
sQ = 72
vPFo, vPFd = 182, 183
def coop_setup(e, w):
    e("s_lshr_b32 %s, s2, 3" % s(sT0)); e("s_sub_u32 %s, %s, 16" % (s(sT0), s(sT0)))
    e("s_and_b32 %s, s2, 1" % s(sT1))
    e("s_and_b32 %s, s2, 7" % s(sT2)); e("s_lshr_b32 %s, %s, 1" % (s(sT2), s(sT2)))
    e("v_mov_b32 v3, 0x40000000")
    if w < 2:
        e("s_mul_i32 %s, %s, 75" % (s(sT0), s(sT0)))
        e("s_lshl_b32 %s, %s, 10" % (s(sT1), s(sT1)))
        e("s_add_u32 %s, %s, %s" % (s(sT0), s(sT0), s(sT1)))
        e("s_add_u32 %s, %s, %d" % (s(sT0), s(sT0), (38*w - 16) & 0xffffffff))
        e("v_add_u32 v1, %s, %s" % (s(sT0), v(vLane)))
        e("v_max_i32 v1, 0, v1")
        e("v_mul_u32_u24 v1, 1280, v1")
        e("v_cmp_gt_u32 vcc, 38, %s" % v(vLane))
    elif w == 2:
        e("s_mul_i32 %s, %s, 42" % (s(sT0), s(sT0)))
        e("v_add_u32 v1, %s, %s" % (s(sT0), v(vLane)))
        e("v_mul_u32_u24 v2, 7282, v1"); e("v_lshrrev_b32 v2, 16, v2")
        e("v_mul_u32_u24 v4, 9, v2"); e("v_sub_u32 v4, v1, v4")
        e("v_mul_u32_u24 v5, 86, v4"); e("v_lshrrev_b32 v5, 8, v5")
        e("v_mul_u32_u24 v6, 3, v5"); e("v_sub_u32 v6, v4, v6")
        e("s_mul_i32 %s, %s, 320" % (s(sT2), s(sT2))); e("s_lshr_b32 %s, %s, 7" % (s(sT2), s(sT2)))
        e("v_add_u32 v6, %s, v6" % s(sT2))
        e("v_mul_u32_u24 v1, 3840, v2"); e("v_mul_u32_u24 v5, 1280, v5")
        e("v_lshl_add_u32 v1, v6, 7, v1"); e("v_add_u32 v1, v1, v5")
        e("v_cmp_gt_u32 vcc, 42, %s" % v(vLane))
    else:
        e("s_mul_i32 %s, %s, 55" % (s(sT0), s(sT0)))
        e("v_add_u32 v1, %s, %s" % (s(sT0), v(vLane)))
        e("v_mul_u32_u24 v2, 5462, v1"); e("v_lshrrev_b32 v2, 16, v2")
        e("v_mul_u32_u24 v4, 12, v2"); e("v_sub_u32 v4, v1, v4")
        e("s_mul_i32 %s, %s, 14" % (s(sT2), s(sT2))); e("s_lshr_b32 %s, %s, 3" % (s(sT2), s(sT2))); e("s_lshl_b32 %s, %s, 2" % (s(sT2), s(sT2)))
        e("v_add_u32 v4, %s, v4" % s(sT2))
        e("v_mul_u32_u24 v1, 3456, v2"); e("v_lshl_add_u32 v1, v4, 7, v1")
        e("v_cmp_gt_u32 vcc, 55, %s" % v(vLane))
    e("v_cndmask_b32_e64 %s, v3, v1, vcc" % v(vPFo))
COOP_D = 4
sSoQ = 44
def coop_load(w, extra_chunks):
    if w < 2: return ["buffer_load_dword %s, %s, %s, %s offen offset:%d ; rare" % (v(vPFd), v(vPFo), sr(sX,4), s(sSoX), 128*extra_chunks)]
    st_ = 64*3840 if w == 2 else 64*3456
    return ["s_add_u32 %s, %s, %d" % (s(sD1), s(sSoQ if w == 2 else sSoW), extra_chunks*st_),
            "buffer_load_dword %s, %s, %s, %s offen ; rare" % (v(vPFd), v(vPFo), sr(sQ if w == 2 else sW,4), s(sD1))]
def zero_acc(e, n):
    for i in range(4): e("v_mov_b32 %s, 0" % v(246 if False else 232+i))
    k = 0
    while k + 16 <= n:
        e("v_mfma_f32_32x32x16_bf16 %s, v[232:235], v[232:235], 0" % vr(k,16)); k += 16
    while k < n:
        e("v_mov_b32 %s, 0" % v(k)); k += 1
def role_main(e, tag, cfg, L, dobase, w, zero_n, extra_pre=None, units=False):
    wstep, slot = cfg.wstep, cfg.slot
    nd = len(L)
    coop = tag.startswith("ffn") and "coop" in OPTS
    def set_soff():
        e("s_lshl_b32 %s, %s, 7" % (s(sSoX), s(sKC)))
        e("s_mul_i32 %s, %s, %d" % (s(sSoW), s(sKC), wstep))
    def adv():
        e("s_add_u32 %s, %s, 1" % (s(sKC), s(sKC)))
        if "rotk" in OPTS:
            e("s_cmp_eq_u32 %s, 10" % s(sKC))
            e("s_cselect_b32 %s, 0, %s" % (s(sKC), s(sKC)))
    set_soff()
    e("s_mov_b32 %s, 0" % s(sDSlot))
    for g in dma_groups_salu(L): e.ext(g)
    stamp(e, 1)
    e("v_lshlrev_b32 %s, 4, %s" % (v(vL16), v(vLane)))
    if units:
        unit_setup_dyn(e)
        e("s_mov_b32 %s, %d" % (s(sSzO), WO_BYTES)); e("s_mov_b32 %s, %d" % (s(sSz2), W2_BYTES))
        e("s_mov_b32 %s, %d" % (s(sUl), 3*slot))
        unit_loads_dyn(e)
    adv(); set_soff()
    e("s_mov_b32 %s, %d" % (s(sDSlot), slot))
    for g in dma_groups_salu(L): e.ext(g)
    npre = 0
    if coop:
        coop_setup(e, w)
        if w == 2: e("s_mov_b32 %s, %d" % (s(sSoQ), 64*3840))
        for x in range(1, COOP_D + 1):
            e.ext(coop_load(w, x)); npre += 1
    if extra_pre: extra_pre(e)
    dma_offsets_setup(e, L, dobase)
    zero_acc(e, zero_n)
    e("v_mov_b32 v254, 0x3f803f80")
    for i in range(4): e("v_accvgpr_write_b32 %s, v254" % a(aONE+i))
    e("v_mov_b32 %s, 0" % v(vZero))
    ph2_setup(e, slot)
    adv(); set_soff()
    e("s_mov_b32 %s, %d" % (s(sDSlot), 2*slot))
    e("s_mov_b32 %s, %d" % (s(sCp), slot))
    e("s_mov_b32 %s, %d" % (s(sCm), (-2*slot) & 0xffffffff))
    e("s_mov_b32 %s, 0" % s(sIter))
    if coop and w == 2: e("s_mov_b32 %s, %d" % (s(sSoQ), 2*64*3840))
    stamp(e, 2)
    e("s_waitcnt vmcnt(%d) lgkmcnt(0)" % (nd + npre))
    e("s_barrier")
    stamp(e, 3)
    R = cfg.ring
    e.ext(cfg.xreads(0))
    for f in range(cfg.nfirst):
        e.ext(cfg.wread(0, f, cfg.wbase + (f % R)*4))
    dma = dma_groups_vgpr(L, dobase)
    if "nopoll" not in OPTS:
        pg = ["s_cmp_lg_u32 %s, 6 ; rare" % s(sIter), "s_cbranch_scc0 L_pp_%s ; rare" % tag, "L_np_%s:" % tag]
        side = ["L_pp_%s:" % tag, "  buffer_load_dwordx2 %s, %s, %s, 0 offen sc1 ; rare" % (vr(vNon,2), v(vZero), sr(sDBG,4)), "  s_branch L_np_%s ; rare" % tag]
        if units:
            us = E(); unit_store_dyn(us, 216, full_wait=True)
            pg += ["s_cmp_lg_u32 %s, 1 ; rare" % s(sIter), "s_cbranch_scc0 L_pu_%s ; rare" % tag, "L_nu_%s:" % tag]
            side += ["L_pu_%s:" % tag] + us.L + ["  s_branch L_nu_%s" % tag]
        if units and w == 0:
            sg = E(); signal_count(sg, CNT_P)
            pg += ["s_cmp_lg_u32 %s, 3 ; rare" % s(sIter), "s_cbranch_scc0 L_ps_%s ; rare" % tag, "L_ns_%s:" % tag]
            side += ["L_ps_%s:" % tag] + sg.L + ["  s_branch L_ns_%s ; rare" % tag]
        dma = [pg] + dma
    else: side = []
    ncl = nd
    if coop:
        g = coop_load(w, COOP_D)
        if w == 2: g.append("s_add_u32 %s, %s, %d" % (s(sSoQ), s(sSoQ), 64*3840))
        dma = dma + [g]; ncl = nd + 2
    if "nodma" in OPTS: dma = []
    first_vm = None
    if coop:
        first_vm = min(63, nd + 1 + npre)
        side += ["L_first_%s:" % tag, "  s_waitcnt vmcnt(%d) lgkmcnt(0) ; rare" % first_vm, "  s_branch L_join_%s ; rare" % tag]
    body = chunk_body(cfg, dma, rolled_tag=tag, closing_vm=ncl if "nodma" not in OPTS else 0, first_vm=first_vm)
    post = E()
    stamp(post, 4)
    if "nopoll" not in OPTS:
        get_nonce(post, tag, 250, have_first=vNon)
        spin_count(post, "p_" + tag, CNT_P, N_P, 250, have_first=vNon+1)
    if "ph1only" in OPTS:
        post.ext(chunk_body(cfg, [], closing_vm=0))
        post.ext(chunk_body(cfg, [], last=True, closing_vm=None))
    else:
        post.ext(chunk_body(cfg, w2l_groups(0, 12), closing_vm=12))
        post.ext(chunk_body(cfg, w2l_groups(12, 25), last=True, closing_vm=None))
    stamp(post, 5)
    return body, post, side

A_ND = [13, 13, 12, 12]

X_CS = 0
X_NM = 1024
X_RS = 2048
X_EX = 4096
vQp = 160
vKA, vKB, vKP = 180, 190, 200
vVp = 210
NEG = 0xf149f2ca
def stats_finalize(e, vsum, vsq, vt, out_nm, out_rs, out_std, smask):
    e("v_cndmask_b32_e64 %s, 0, %s, %s" % (v(vt), v(vsq+0), sr(smask,2)))
    for r in (1,2,3):
        e("v_cndmask_b32_e64 %s, %s, %s, %s" % (v(vt), v(vt), v(vsq+r), sr(smask+2*r,2)))
    e("v_mov_b32 %s, %s" % (v(vt+1), v(vt)))
    e("v_permlane32_swap_b32 %s, %s" % (v(vt), v(vt+1)))
    e("v_add_f32 %s, %s, %s" % (v(vt), v(vt), v(vt+1)))
    e("v_mov_b32 %s, %s" % (v(vt+1), v(vt)))
    e("v_permlane16_swap_b32 %s, %s" % (v(vt), v(vt+1)))
    e("v_add_f32 %s, %s, %s" % (v(vt), v(vt), v(vt+1)))
    e("v_mul_f32 %s, 0x%08x, %s" % (v(out_nm), f2u(-1.0/640), v(vsum)))
    e("v_mul_f32 %s, 0x%08x, %s" % (v(vt), f2u(1.0/640), v(vt)))
    e("v_fma_f32 %s, -%s, %s, %s" % (v(vt), v(out_nm), v(out_nm), v(vt)))
    e("v_max_f32 %s, 0, %s" % (v(vt), v(vt)))
    e("v_add_f32 %s, 0x%08x, %s" % (v(vt), f2u(1e-5), v(vt)))
    e("v_rsq_f32 %s, %s" % (v(out_rs), v(vt)))
    if out_std is not None:
        e("v_mul_f32 %s, %s, %s" % (v(out_std), v(vt), v(out_rs)))


def attn_stash(e):
    e("v_and_b32 v1, 15, %s" % v(vLane))
    e("v_lshrrev_b32 v2, 4, %s" % v(vLane))
    e("v_lshlrev_b32 v3, 2, v2")
    e("v_sub_u32 v3, v1, v3")
    e("v_and_b32 v4, 1, v1")
    e("v_mov_b32 v5, 0x%08x" % NEG)
    e("v_cmp_eq_u32 %s, 0, v4" % sr(sM+14,2))
    for r in range(4):
        e("v_subrev_u32 v6, %d, v3" % r)
        e("v_cmp_le_i32 %s, 0, v6" % sr(sM+16,2))
        if r & 1: e("s_andn2_b64 %s, exec, %s" % (sr(sM+18,2), sr(sM+14,2)))
        else:     e("s_mov_b64 %s, %s" % (sr(sM+18,2), sr(sM+14,2)))
        e("s_and_b64 %s, %s, %s" % (sr(sM+20,2), sr(sM+18,2), sr(sM+16,2)))
        e("s_andn2_b64 %s, %s, %s" % (sr(sM+22,2), sr(sM+18,2), sr(sM+16,2)))
        e("v_cndmask_b32_e64 v7, v5, 0, %s" % sr(sM+22,2)); e("v_accvgpr_write_b32 %s, v7" % a(aST+r))
        e("v_cndmask_b32_e64 v8, v5, 0, %s" % sr(sM+20,2)); e("v_accvgpr_write_b32 %s, v8" % a(aST+4+r))
    e("v_sub_u32 v6, v3, v4")
    e("v_mov_b32 v9, 0x0c0c0100"); e("v_mov_b32 v10, 0x01000c0c")
    e("v_cndmask_b32_e64 v9, v10, v9, %s" % sr(sM+14,2))
    e("v_mov_b32 v10, 0x0c0c0302"); e("v_mov_b32 v11, 0x03020c0c")
    e("v_cndmask_b32_e64 v10, v11, v10, %s" % sr(sM+14,2))
    e("v_mov_b32 v11, 0x0c0c0c0c")
    e("v_cmp_le_i32 %s, 0, v6" % sr(sM+16,2))
    e("v_cndmask_b32_e64 v12, v9, v11, %s" % sr(sM+16,2)); e("v_accvgpr_write_b32 %s, v12" % a(aST+8))
    e("v_cndmask_b32_e64 v13, v11, v9, %s" % sr(sM+16,2)); e("v_accvgpr_write_b32 %s, v13" % a(aST+10))
    e("v_cmp_le_i32 %s, 2, v6" % sr(sM+16,2))
    e("v_cndmask_b32_e64 v12, v10, v11, %s" % sr(sM+16,2)); e("v_accvgpr_write_b32 %s, v12" % a(aST+9))
    e("v_cndmask_b32_e64 v13, v11, v10, %s" % sr(sM+16,2)); e("v_accvgpr_write_b32 %s, v13" % a(aST+11))

def attn_epilogue(e):
    R = " ; rare"
    tNM = [240, 242]; tRS = [244, 246]; tSTD = [248, 249]
    vt = 166
    smask = sM
    A1, A2, A3, A4, A5, A6 = 176, 177, 178, 179, 250, 254
    ML = {1: 160, 2: 161, 3: 162}; MH = {0: 163, 1: 164, 2: 165}
    for r in range(4):
        e("s_mov_b32 %s, 0x%08x" % (s(smask+2*r), 0x00100001 << r))
        e("s_mov_b32 %s, 0x%08x" % (s(smask+2*r+1), 0x10000100 << r))
    e("v_and_b32 v253, 15, %s" % v(vLane))
    e("v_lshlrev_b32 v253, 2, v253")
    e("v_lshrrev_b32 v252, 4, %s" % v(vLane))
    e("s_lshl_b32 %s, %s, 7" % (s(sT0), s(sWave)))
    e("s_lshl_b32 %s, %s, 6" % (s(sT1), s(sWave)))
    e("v_add_u32 %s, %s, v253" % (v(A1), s(sT0)))
    e("v_add_u32 %s, %s, v253" % (v(A4), s(sT1)))
    for T in (0, 1):
        stats_finalize(e, vSumT[T], vSqT[T], vt, tNM[T], tRS[T], tSTD[T], smask)
        e("ds_write_b32 %s, %s offset:%d" % (v(A1), v(tNM[T]), X_NM + 64 + T*64))
        e("ds_write_b32 %s, %s offset:%d" % (v(A1), v(tRS[T]), X_RS + 64 + T*64))
    for h in (1, 2, 3):
        e("v_cmp_le_u32 %s, %d, v252" % (sr(sM+16,2), h))
        e("v_cndmask_b32_e64 %s, 0, -1, %s" % (v(ML[h]), sr(sM+16,2)))
    for h in (0, 1, 2): e("v_not_b32 %s, %s" % (v(MH[h]), v(ML[h+1])))
    e("v_lshlrev_b32 v252, 4, v252")
    e("v_add_u32 %s, %s, v252" % (v(A2), s(sT0)))
    e("v_add_u32 %s, %s, v252" % (v(A3), s(sT1)))
    e("s_cmp_lg_u32 %s, 3" % s(sWave))
    e("s_cbranch_scc1 L_nohs")
    hs = E(); stats_finalize(hs, vSumH, vSqH, vt, 136, 137, None, smask)
    hs("ds_write_b32 v253, v136 offset:%d" % X_NM); hs("ds_write_b32 v253, v137 offset:%d" % X_RS)
    HS = process(hs.L, State(), [])
    tmp = []; process(hs.L, State(), tmp)
    for t in tmp: e.L.append(t + R)
    e.lab("L_nohs")
    e("s_cmp_lg_u32 %s, 0" % s(sCB))
    e("s_cbranch_scc1 L_nors")
    e("s_lshl_b32 %s, %s, 9" % (s(sT2), s(sRB)) + R)
    e("s_add_u32 %s, %s, %s" % (s(sT2), s(sT2), s(sT0)) + R)
    e("s_add_u32 %s, %s, %d" % (s(sT2), s(sT2), RSTD_OFF) + R)
    e("buffer_store_dword %s, v253, %s, %s offen sc1" % (v(tRS[0]), sr(sWS,4), s(sT2)) + R)
    e("buffer_store_dword %s, v253, %s, %s offen offset:64 sc1" % (v(tRS[1]), sr(sWS,4), s(sT2)) + R)
    e.lab("L_nors")
    e("s_mov_b32 exec_lo, 0x00010001"); e("s_mov_b32 exec_hi, 0x00010001")
    e("ds_write_b128 %s, %s offset:%d" % (v(A3), vr(acc_halo(0),4), X_CS))
    e("ds_write_b128 %s, %s offset:%d" % (v(A3), vr(acc_halo(1),4), X_CS + 5*64))
    e("s_cmp_gt_u32 %s, 1" % s(sWave))
    e("s_cbranch_scc1 L_e3a")
    e("s_mul_i32 %s, %s, 320" % (s(sT2), s(sWave)) + R)
    e("v_add_u32 v167, %s, v252" % s(sT2) + R)
    e("ds_write_b128 v167, %s offset:%d" % (vr(acc_halo(3),4), X_CS + 4*64) + R)
    e.lab("L_e3a")
    e("s_mov_b32 exec_lo, 0x0000ffff"); e("s_mov_b32 exec_hi, 0")
    e("ds_write_b32 %s, %s offset:%d" % (v(A4), v(acc_halo(2)), X_CS + 10*64))
    e("s_cmp_lg_u32 %s, 2" % s(sWave))
    e("s_cbranch_scc1 L_e3b")
    e("ds_write_b32 v253, %s offset:%d" % (v(acc_halo(3)), X_CS + 14*64) + R)
    e.lab("L_e3b")
    e("s_mov_b64 exec, -1")
    e("v_lshlrev_b32 v251, 3, %s" % v(vLane))
    e("s_lshl_b32 %s, %s, 9" % (s(sT2), s(sWave)))
    e("v_add_u32 %s, %s, v251" % (v(A5), s(sT2)))
    e("s_mul_i32 %s, %s, 5120" % (s(sT2), s(sWave)))
    e("v_add_u32 %s, %s, v251" % (v(A6), s(sT2)))
    e("s_waitcnt lgkmcnt(0)")
    e("s_barrier")
    if "epst" in OPTS: stamp(e, 8)
    CS4 = lambda c: 200 + 4*c
    nm4 = [136, 140]; rs4 = [144, 148]
    tHN, tHR = 152, 154
    csK = 156
    hn4, hr4 = 168, 172
    for c in range(5): e("ds_read_b128 %s, v252 offset:%d" % (vr(CS4(c),4), X_CS + c*64))
    e("ds_read_b32 %s, v253 offset:%d" % (v(tHN), X_NM))
    e("ds_read_b32 %s, v253 offset:%d" % (v(tHR), X_RS))
    for c in range(5, 10): e("ds_read_b128 %s, v252 offset:%d" % (vr(CS4(c),4), X_CS + c*64))
    e("ds_read_b128 %s, %s offset:%d" % (vr(csK,4), v(A3), X_CS + 5*64))
    def pkfma_bc(d, s0, sc, sfx=""):
        e("v_pk_fma_f32 %s, %s, %s, %s op_sel_hi:[1,0,1]%s" % (vr(d,2), vr(s0,2), vr(sc,2), vr(d,2), sfx))
    def pkmul_bc(d, sc, sfx=""):
        e("v_pk_mul_f32 %s, %s, %s op_sel_hi:[1,0]%s" % (vr(d,2), vr(d,2), vr(sc,2), sfx))
    t0, t1 = 166, 167
    for c in range(5):
        for T in (0, 1):
            d = acc_own(T, c); b = acc_own(T, 0)
            pkfma_bc(d, CS4(c), tNM[T]); pkfma_bc(d+2, CS4(c)+2, tNM[T])
            if c == 0:
                e("v_cvt_pk_bf16_f32 %s, %s, %s" % (v(d), v(d), v(d+1))); e("v_cvt_pk_bf16_f32 %s, %s, %s" % (v(d+1), v(d+2), v(d+3)))
            elif c == 4:
                e("v_cvt_pk_bf16_f32 %s, %s, %s" % (v(b+14), v(d), v(d+1))); e("v_cvt_pk_bf16_f32 %s, %s, %s" % (v(b+15), v(d+2), v(d+3)))
            else:
                e("v_cvt_pk_bf16_f32 %s, %s, %s" % (v(t0), v(d), v(d+1))); e("v_cvt_pk_bf16_f32 %s, %s, %s" % (v(t1), v(d+2), v(d+3)))
                e("v_and_b32 %s, %s, %s" % (v(d), v(t0), v(ML[c]))); e("v_and_b32 %s, %s, %s" % (v(d+1), v(t1), v(ML[c])))
                e("v_and_b32 %s, %s, %s" % (v(b+4*(c-1)+2), v(t0), v(MH[c-1]))); e("v_and_b32 %s, %s, %s" % (v(b+4*(c-1)+3), v(t1), v(MH[c-1])))
    for T in (0, 1):
        e("ds_read_b128 %s, %s offset:%d" % (vr(nm4[T],4), v(A2), X_NM + 64 + T*64))
        e("ds_read_b128 %s, %s offset:%d" % (vr(rs4[T],4), v(A2), X_RS + 64 + T*64))
    e("ds_read_b128 %s, v252 offset:%d" % (vr(hn4,4), X_NM))
    e("ds_read_b128 %s, v252 offset:%d" % (vr(hr4,4), X_RS))
    if "epst" in OPTS: stamp(e, 9)
    csd = [16, 18, 76, 78, 20]; csdW = 22
    for c in range(5, 10):
        for T in (0, 1):
            d = acc_own(T, c)
            pkfma_bc(d, CS4(c), tNM[T]); pkfma_bc(d+2, CS4(c)+2, tNM[T])
            pkmul_bc(d, tRS[T]); pkmul_bc(d+2, tRS[T])
            dst = (vKA, vKB)[T] + 2*(c-5)
            e("v_cvt_pk_bf16_f32 %s, %s, %s" % (v(dst), v(d), v(d+1)))
            e("v_cvt_pk_bf16_f32 %s, %s, %s" % (v(dst+1), v(d+2), v(d+3)))
        e("ds_write_b64 %s, %s offset:%d" % (v(A6), vr(vKB+2*(c-5),2), X_EX + 5120 + (c-5)*512))
        if c == 5:
            for i in range(5): e("ds_read_b32 %s, v253 offset:%d" % (v(csd[i]), X_CS + (10+i)*64))
            e("ds_read_b32 %s, %s offset:%d" % (v(csdW), v(A4), X_CS + 10*64))
    d = acc_halo(1)
    pkfma_bc(d, csK, tHN); pkfma_bc(d+2, csK+2, tHN); pkmul_bc(d, tHR); pkmul_bc(d+2, tHR)
    e("v_cvt_pk_bf16_f32 %s, %s, %s" % (v(d), v(d), v(d+1))); e("v_cvt_pk_bf16_f32 %s, %s, %s" % (v(d+1), v(d+2), v(d+3)))
    e("ds_write_b64 %s, %s offset:%d" % (v(A5), vr(d,2), X_EX))
    e("s_cmp_lg_u32 %s, 1" % s(sWave))
    e("s_cbranch_scc1 L_e3k")
    d = acc_halo(3)
    pkfma_bc(d, CS4(9), tHN, R); pkfma_bc(d+2, CS4(9)+2, tHN, R); pkmul_bc(d, tHR, R); pkmul_bc(d+2, tHR, R)
    e("v_cvt_pk_bf16_f32 %s, %s, %s" % (v(d), v(d), v(d+1)) + R); e("v_cvt_pk_bf16_f32 %s, %s, %s" % (v(d+1), v(d+2), v(d+3)) + R)
    e("ds_write_b64 v251, %s offset:%d" % (vr(d,2), X_EX + 4*512) + R)
    e.lab("L_e3k")
    def vtile(d, nm, rs, cd, sfx=""):
        for h_ in (0, 2):
            e("v_pk_fma_f32 %s, %s, %s, %s op_sel_hi:[1,0,1]%s" % (vr(d+h_,2), vr(nm+h_,2), vr(cd,2), vr(d+h_,2), sfx))
            e("v_pk_mul_f32 %s, %s, %s%s" % (vr(d+h_,2), vr(d+h_,2), vr(rs+h_,2), sfx))
    for i in range(5):
        c = 10 + i
        for T in (0, 1):
            d = acc_own(T, c)
            vtile(d, nm4[T], rs4[T], csd[i])
            dst = vVp + 6*i + 2 + 2*T
            e("v_cvt_pk_bf16_f32 %s, %s, %s" % (v(dst), v(d), v(d+1)))
            e("v_cvt_pk_bf16_f32 %s, %s, %s" % (v(dst+1), v(d+2), v(d+3)))
        e("ds_write_b64 %s, %s offset:%d" % (v(A6), vr(vVp+6*i+4,2), X_EX + 5120 + (5+i)*512))
    d = acc_halo(2)
    vtile(d, hn4, hr4, csdW)
    e("v_cvt_pk_bf16_f32 %s, %s, %s" % (v(d), v(d), v(d+1))); e("v_cvt_pk_bf16_f32 %s, %s, %s" % (v(d+1), v(d+2), v(d+3)))
    e("ds_write_b64 %s, %s offset:%d" % (v(A5), vr(d,2), X_EX + 5*512))
    e("s_cmp_lg_u32 %s, 2" % s(sWave))
    e("s_cbranch_scc1 L_e3v")
    d = acc_halo(3)
    vtile(d, hn4, hr4, csd[4], R)
    e("v_cvt_pk_bf16_f32 %s, %s, %s" % (v(d), v(d), v(d+1)) + R); e("v_cvt_pk_bf16_f32 %s, %s, %s" % (v(d+1), v(d+2), v(d+3)) + R)
    e("s_nop 1" + R)
    e("ds_write_b64 v251, %s offset:%d" % (vr(d,2), X_EX + 9*512) + R)
    e.lab("L_e3v")
    if "epst" in OPTS: stamp(e, 10)
    vBP, vBC, vBPA, vSel = 20, 24, 28, 32
    for r in range(4):
        e("v_accvgpr_read_b32 %s, %s" % (v(vBP+r), a(aST+r)))
        e("v_accvgpr_read_b32 %s, %s" % (v(vBC+r), a(aST+4+r)))
        e("v_accvgpr_read_b32 %s, %s" % (v(vSel+r), a(aST+8+r)))
    e("s_or_b32 %s, %s, %s" % (s(sT2), s(sWave), s(sRB)))
    e("s_cmp_eq_u32 %s, 0" % s(sT2))
    e("s_cselect_b32 %s, -1, 0" % s(sM+16)); e("s_cselect_b32 %s, -1, 0" % s(sM+17))
    e("v_mov_b32 v36, 0x%08x" % NEG)
    for r in range(4): e("v_cndmask_b32_e64 %s, %s, v36, %s" % (v(vBPA+r), v(vBP+r), sr(sM+16,2)))
    cF = [37, 38]
    for T in (0, 1):
        e("v_mul_f32 %s, 0x%08x, %s" % (v(cF[T]), f2u((20.0 ** -0.5) * 1.4426950408889634), v(tRS[T])))
    e("s_mov_b32 %s, 0xffff" % s(sM+8)); e("s_mov_b32 %s, 0" % s(sM+9))
    e("s_mov_b32 %s, -1" % s(sM+10)); e("s_mov_b32 %s, 0" % s(sM+11))
    e("s_mov_b32 %s, -1" % s(sM+12)); e("s_mov_b32 %s, 0xffff" % s(sM+13))
    attn_tile(e, 1, acc_own(1,0), vKA, vKB, lambda i: vVp+6*i+2, vBP, vBC, vSel, cF[1], tSTD[1])
    if "epst" in OPTS: stamp(e, 11)
    e("s_waitcnt lgkmcnt(0)")
    e("s_barrier")
    for i in range(5):
        e("ds_read_b64 %s, %s offset:%d" % (vr(vKP+2*i,2), v(A6), X_EX + i*512))
        e("ds_read_b64 %s, %s offset:%d" % (vr(vVp+6*i,2), v(A6), X_EX + (5+i)*512))
    attn_tile(e, 0, acc_own(0,0), vKP, vKA, lambda i: vVp+6*i, vBPA, vBC, vSel, cF[0], tSTD[0])

def attn_tile(e, T, qm, kprev, kcur, vfrag, bP, bC, vSel, cF, std):
    Qm = [qm + 4*h for h in range(4)]
    S0 = [80, 84, 88, 92]; S1 = [96, 100, 104, 108]
    P  = [112, 116, 120, 124]
    Lh = [128, 132, 40, 44]
    for h in range(4):
        e("%s %s, %s, %s, %s" % (MFMA, vr(S0[h],4), vr(kprev+2*h,4), vr(Qm[h],4), vr(bP,4)))
        e("%s %s, %s, %s, %s" % (MFMA, vr(S1[h],4), vr(kcur+2*h,4), vr(Qm[h],4), vr(bC,4)))
    va = [48, 50, 52, 54]; mx = [56, 57, 58, 59]
    for h in range(4):
        e("v_max3_f32 %s, %s, %s, %s" % (v(va[h]), v(S0[h]), v(S0[h]+1), v(S1[h])))
        e("v_max3_f32 %s, %s, %s, %s" % (v(va[h]+1), v(S0[h]+2), v(S0[h]+3), v(S1[h]+2)))
        e("v_max_f32 %s, %s, %s" % (v(va[h]), v(va[h]), v(S1[h]+1)))
        e("v_max_f32 %s, %s, %s" % (v(va[h]+1), v(va[h]+1), v(S1[h]+3)))
        e("v_max_f32 %s, %s, %s" % (v(mx[h]), v(va[h]), v(va[h]+1)))
    e("v_permlane32_swap_b32 %s, %s" % (v(mx[0]), v(mx[1])))
    e("v_permlane32_swap_b32 %s, %s" % (v(mx[2]), v(mx[3])))
    e("v_max_f32 %s, %s, %s" % (v(mx[0]), v(mx[0]), v(mx[1])))
    e("v_max_f32 %s, %s, %s" % (v(mx[2]), v(mx[2]), v(mx[3])))
    e("v_permlane16_swap_b32 %s, %s" % (v(mx[0]), v(mx[2])))
    e("v_max_f32 %s, %s, %s" % (v(mx[0]), v(mx[0]), v(mx[2])))
    e("v_mov_b32 %s, %s" % (v(mx[2]), v(mx[0])))
    e("v_permlane16_swap_b32 %s, %s" % (v(mx[0]), v(mx[2])))
    e("v_mov_b32 %s, %s" % (v(mx[1]), v(mx[0])))
    e("v_mov_b32 %s, %s" % (v(mx[3]), v(mx[2])))
    e("v_permlane32_swap_b32 %s, %s" % (v(mx[0]), v(mx[1])))
    e("v_permlane32_swap_b32 %s, %s" % (v(mx[2]), v(mx[3])))
    for h in range(4):
        e("v_mul_f32 %s, %s, %s" % (v(mx[h]), v(mx[h]), v(cF)))
    for h in range(4):
        e("v_fma_f32 %s, %s, %s, -%s" % (v(va[h]), v(va[h]), v(cF), v(mx[h])))
        e("v_fma_f32 %s, %s, %s, -%s" % (v(va[h]+1), v(va[h]+1), v(cF), v(mx[h])))
    for h in range(4):
        e("v_exp_f32 %s, %s" % (v(va[h]), v(va[h])))
        e("v_exp_f32 %s, %s" % (v(va[h]+1), v(va[h]+1)))
    for h in range(4):
        e("v_cvt_pk_bf16_f32 %s, %s, %s" % (v(va[h]), v(va[h]), v(va[h]+1)))
    for h in range(4):
        for k in range(4):
            e("v_perm_b32 %s, %s, %s, %s" % (v(P[h]+k), v(va[h]), v(va[h]), v(vSel+k)))
    pairs = [(0,0),(1,0),(1,1),(2,1),(2,2),(3,2),(3,3),(4,3)]
    O = {}
    free = S0 + S1
    for n, p_ in enumerate(pairs): O[p_] = free[n]
    for h in range(4):
        e("%s %s, %s, %s, 0" % (MFMA, vr(Lh[h],4), ar(aONE,4), vr(P[h],4)))
    for (i, h) in pairs:
        e("%s %s, %s, %s, 0" % (MFMA, vr(O[(i,h)],4), vr(vfrag(i),4), vr(P[h],4)))
    for h in range(4):
        e("v_rcp_f32 %s, %s" % (v(Lh[h]), v(Lh[h])))
    for h in range(4):
        e("v_mul_f32 %s, %s, %s" % (v(Lh[h]), v(Lh[h]), v(std)))
    F = [Lh[0], 60, 62, 64, Lh[3]]
    e("v_cndmask_b32_e64 %s, %s, %s, %s" % (v(F[1]), v(Lh[1]), v(Lh[0]), sr(sM+8,2)))
    e("v_cndmask_b32_e64 %s, %s, %s, %s" % (v(F[2]), v(Lh[2]), v(Lh[1]), sr(sM+10,2)))
    e("v_cndmask_b32_e64 %s, %s, %s, %s" % (v(F[3]), v(Lh[3]), v(Lh[2]), sr(sM+12,2)))
    Rr = {}
    Rr[0] = O[(0,0)]; Rr[4] = O[(4,3)]
    for i in (1, 2, 3):
        lo, hi = O[(i,i-1)], O[(i,i)]
        for r in range(4):
            e("v_cndmask_b32_e64 %s, %s, %s, %s" % (v(hi+r), v(hi+r), v(lo+r), sr(sM+8+2*(i-1),2)))
        Rr[i] = hi
    out = P[0]
    for i in range(5):
        e("v_pk_mul_f32 %s, %s, %s op_sel_hi:[1,0]" % (vr(Rr[i],2), vr(Rr[i],2), vr(F[i],2)))
        e("v_pk_mul_f32 %s, %s, %s op_sel_hi:[1,0]" % (vr(Rr[i]+2,2), vr(Rr[i]+2,2), vr(F[i],2)))
        e("v_cvt_pk_bf16_f32 %s, %s, %s" % (v(out+2*i), v(Rr[i]), v(Rr[i]+1)))
        e("v_cvt_pk_bf16_f32 %s, %s, %s" % (v(out+2*i+1), v(Rr[i]+2), v(Rr[i]+3)))
    e("s_lshl_b32 %s, %s, 1" % (s(sT0), s(sRB)))
    e("s_lshr_b32 %s, %s, 1" % (s(sT1), s(sWave)))
    e("s_add_u32 %s, %s, %s" % (s(sT0), s(sT0), s(sT1)))
    e("s_mul_i32 %s, %s, %d" % (s(sT0), s(sT0), ACT_TB))
    e("s_and_b32 %s, %s, 1" % (s(sT1), s(sWave)))
    e("s_lshl_b32 %s, %s, 11" % (s(sT1), s(sT1)))
    e("s_add_u32 %s, %s, %s" % (s(sT0), s(sT0), s(sT1)))
    e("s_add_u32 %s, %s, %d" % (s(sT0), s(sT0), ACT_OFF + T*1024))
    e("s_lshr_b32 %s, %s, 1" % (s(sT1), s(sCB)))
    e("s_mul_i32 %s, %s, 5" % (s(sT1), s(sT1)))
    e("s_and_b32 %s, %s, 1" % (s(sT2), s(sCB)))
    e("s_lshl_b32 %s, %s, 1" % (s(sT3), s(sT2)))
    e("s_add_u32 %s, %s, %s" % (s(sT3), s(sT3), s(sT1)))
    e("s_lshl_b32 %s, %s, 12" % (s(sT3), s(sT3)))
    e("s_add_u32 %s, %s, %s" % (s(sT3), s(sT3), s(sT0)))
    e("buffer_store_dwordx4 %s, %s, %s, %s offen sc1" % (vr(out,4), v(vL16), sr(sWS,4), s(sT3)))
    e("s_add_u32 %s, %s, 4096" % (s(sT3), s(sT3)))
    e("buffer_store_dwordx4 %s, %s, %s, %s offen sc1" % (vr(out+4,4), v(vL16), sr(sWS,4), s(sT3)))
    e("s_add_u32 %s, %s, 4" % (s(sT1), s(sT1)))
    e("s_lshl_b32 %s, %s, 12" % (s(sT1), s(sT1)))
    e("s_add_u32 %s, %s, %s" % (s(sT1), s(sT1), s(sT0)))
    e("s_lshl_b32 %s, %s, 3" % (s(sT2), s(sT2)))
    e("s_add_u32 %s, %s, %s" % (s(sT1), s(sT1), s(sT2)))
    e("buffer_store_dwordx2 %s, %s, %s, %s offen sc1" % (vr(out+8,2), v(vL16), sr(sWS,4), s(sT1)))

def sprinkle(lines, groups, start=0, end_gap=0):
    safe = []
    exec_full = True; skip = None
    n = len(lines)
    for i, t in enumerate(lines):
        tt = t.strip()
        prev = lines[i-1].strip() if i else ""
        ok = exec_full and skip is None
        if prev.startswith("s_cmp") or prev.startswith("v_cmp") or prev.startswith("s_and_b64") or prev.startswith("s_andn2") : ok = False
        if tt.startswith("s_cbranch") or tt.startswith("s_cselect") or tt.startswith("s_addc") or tt.endswith(":"): ok = False
        if tt.startswith("s_barrier") or tt.startswith("s_waitcnt"): ok = False
        if ok and start <= i < n - end_gap: safe.append(i)
        if tt.startswith("s_mov_b32 exec") : exec_full = False
        if tt.startswith("s_mov_b64 exec, -1"): exec_full = True
        if tt.startswith("s_cbranch"): skip = tt.split()[-1]
        if skip and tt == skip + ":": skip = None
    ng = len(groups)
    assert len(safe) >= ng, (len(safe), ng)
    at = {}
    for k in range(ng):
        at.setdefault(safe[k*len(safe)//ng], []).extend(groups[k])
    out = []
    for i, t in enumerate(lines):
        if i in at: out += ["  " + x for x in at[i]]
        out.append(t)
    return out

F_SLOT = 49152; F_XB = 16384
fWA = [160, 161, 162, 163]
F_X0, F_X1 = 164, 165
fXE, fXOd, fWL = 166, 167, 168
fDO = 169
def facc(T, c): return (T*16 + c)*4
fCS = 128
fSUM = [144, 148]
def fxf(kh, T): return aXF + (kh*2 + T)*4

def ffn_lane_setup(e):
    x_lane_setup(e, fXE, fXOd)
    e("v_lshrrev_b32 v6, 2, v1")
    e("v_lshlrev_b32 v6, 3, v6")
    e("v_and_b32 v7, 3, v1")
    e("v_add_u32 v6, v6, v7")
    e("v_mul_u32_u24 v6, 3456, v6")
    e("v_lshrrev_b32 v7, 1, v2")
    e("v_xor_b32 v7, v7, v3")
    e("v_lshlrev_b32 v7, 5, v7")
    e("v_and_b32 v8, 1, v2")
    e("v_lshlrev_b32 v8, 4, v8")
    e("v_add3_u32 v6, v6, v7, v8")
    e("s_lshl_b32 %s, %s, 9" % (s(sT0), s(sCB)))
    e("v_add_u32 %s, %s, v6" % (v(fWL), s(sT0)))

def ffn_cfg(w):
    cfg = Cfg()
    cfg.ntile = 16; cfg.ring = 8; cfg.look = 6; cfg.tail = 2; cfg.nfirst = 6; cfg.wbase = aW
    H = [c for c in range(16) if c % 4 == w]
    def wread(kh, c, reg):
        off = (c >> 2)*8192 + kh*4096
        ad = v(fWA[c & 3])
        return ["ds_read_b64_tr_b16 %s, %s offset:%d" % (ar(reg,2), ad, off),
                "ds_read_b64_tr_b16 %s, %s offset:%d" % (ar(reg+2,2), ad, off + 2048)]
    def mf(kh, c, reg):
        out = []
        for T in (0, 1):
            d = vr(facc(T, c), 4)
            out.append("%s %s, %s, %s, %s" % (MFMA, d, ar(reg,4), ar(fxf(kh,T),4), d))
        if c in H and "nohalo" not in OPTS:
            d = vr(fCS + (c >> 2)*4, 4)
            out.append("%s %s, %s, %s, %s" % (MFMA, d, ar(reg,4), ar(aONE,4), d))
        return out
    def stats(kh):
        return ["%s %s, %s, %s, %s" % (MFMA, vr(fSUM[T],4), ar(aONE,4), ar(fxf(kh,T),4), vr(fSUM[T],4)) for T in (0,1)]
    def xreads(kh):
        ad = F_X1 if kh else F_X0
        return ["ds_read_b128 %s, %s offset:%d" % (ar(fxf(kh,T),4), v(ad), (2*w+T)*2048) for T in (0,1)]
    cfg.wread = wread; cfg.mf = mf; cfg.stats = stats; cfg.xreads = xreads
    cfg.xread1_at = 4
    cfg.addr_update = addr_update(F_SLOT, fWA + [F_X0, F_X1])
    cfg.scal_update = scal_update(F_SLOT, 64*3456)
    cfg.dma_start = 2; cfg.dma_skew = w; cfg.dma_endgap = 8
    cfg.wstep = 64*3456; cfg.slot = F_SLOT
    return cfg

def read_addr_setup_ffn(e):
    e("v_and_b32 v1, 15, %s" % v(vLane))
    e("v_lshrrev_b32 v2, 2, v1")
    e("v_and_b32 v3, 3, v1")
    e("v_lshrrev_b32 v4, 4, %s" % v(vLane))
    e("v_lshl_add_u32 v2, v4, 2, v2")
    e("v_lshrrev_b32 v5, 1, v2")
    e("v_and_b32 v5, 3, v5")
    e("v_lshlrev_b32 v2, 7, v2")
    e("v_lshl_add_u32 v2, v3, 3, v2")
    e("v_add_u32 v2, %d, v2" % F_XB)
    for u in range(4):
        e("v_xor_b32 v6, %d, v5" % u)
        e("v_lshl_add_u32 %s, v6, 5, v2" % v(fWA[u]))
    xaddr_setup(e, F_X0, F_X1, 0)

def ffn_epilogue(e):
    nm = [150, 152]
    for T in (0, 1):
        e("v_mul_f32 %s, 0x%08x, %s" % (v(nm[T]), f2u(-1.0/640), v(fSUM[T])))
    e("v_lshrrev_b32 v252, 4, %s" % v(vLane))
    e("v_lshlrev_b32 v252, 4, v252")
    e("s_lshl_b32 %s, %s, 6" % (s(sT0), s(sWave)))
    e("v_add_u32 v253, %s, v252" % s(sT0))
    e("s_mov_b32 exec_lo, 0x00010001"); e("s_mov_b32 exec_hi, 0x00010001")
    for q in range(4):
        e("ds_write_b128 v253, %s offset:%d" % (vr(fCS + q*4, 4), q*256))
    e("s_mov_b64 exec, -1")
    e("s_lshl_b32 %s, %s, 1" % (s(sT0), s(sRB)))
    e("s_lshr_b32 %s, %s, 1" % (s(sT1), s(sWave)))
    e("s_add_u32 %s, %s, %s" % (s(sT0), s(sT0), s(sT1)))
    e("s_mul_i32 %s, %s, %d" % (s(sT0), s(sT0), ACT_TB))
    e("s_and_b32 %s, %s, 1" % (s(sT1), s(sWave)))
    e("s_lshl_b32 %s, %s, 11" % (s(sT1), s(sT1)))
    e("s_add_u32 %s, %s, %s" % (s(sT0), s(sT0), s(sT1)))
    e("s_lshl_b32 %s, %s, 3" % (s(sT1), s(sCB)))
    e("s_add_u32 %s, %s, 20" % (s(sT1), s(sT1)))
    e("s_lshl_b32 %s, %s, 12" % (s(sT1), s(sT1)))
    e("s_add_u32 %s, %s, %s" % (s(sT0), s(sT0), s(sT1)))
    if ACT_OFF: e("s_add_u32 %s, %s, %d" % (s(sT0), s(sT0), ACT_OFF))
    e("s_cmp_eq_u32 %s, 6" % s(sCB))
    e("s_cselect_b32 %s, 0x%x, 0" % (s(sT2), OOB))
    e("s_waitcnt lgkmcnt(0)")
    e("s_barrier")
    CS = lambda c: 160 + 4*c
    for c in range(16):
        e("ds_read_b128 %s, v252 offset:%d" % (vr(CS(c),4), c*64))
    pk = [224, 228, 232, 236]
    for a_ in range(8):
        if a_ == 6: e("s_add_u32 %s, %s, %s" % (s(sT0), s(sT0), s(sT2)))
        for T in (0, 1):
            o = pk[(2*a_ + T) & 3]
            for k in range(2):
                c = 2*a_ + k; d = facc(T, c); q = CS(c)
                e("v_pk_fma_f32 %s, %s, %s, %s op_sel_hi:[1,0,1]" % (vr(d,2), vr(q,2), vr(nm[T],2), vr(d,2)))
                e("v_pk_fma_f32 %s, %s, %s, %s op_sel_hi:[1,0,1]" % (vr(d+2,2), vr(q+2,2), vr(nm[T],2), vr(d+2,2)))
                e("v_cvt_pk_bf16_f32 %s, %s, %s" % (v(o+2*k), v(d), v(d+1)))
                e("v_cvt_pk_bf16_f32 %s, %s, %s" % (v(o+2*k+1), v(d+2), v(d+3)))
                e("v_pk_max_i16 %s, %s, 0" % (v(o+2*k), v(o+2*k)))
                e("v_pk_max_i16 %s, %s, 0" % (v(o+2*k+1), v(o+2*k+1)))
            e("buffer_store_dwordx4 %s, %s, %s, %s offen offset:%d sc1" % (vr(o,4), v(vL16), sr(sWS,4), s(sT0), T*1024))
        e("s_add_u32 %s, %s, 4096" % (s(sT0), s(sT0)))

U_ROW = 320
U_BYTES = 32*U_ROW
sPF = 60
vUO = [200, 201, 202]; vUH = [203, 204, 205]; vUT = [206, 207, 208]
sUW = [64, 65, 66]
sUl, sUn = 67, 68
def unit_setup_dyn(e):
    e("s_lshl_b32 %s, %s, 6" % (s(sT0), s(sWave)))
    for m in range(3):
        e("v_add_u32 v1, %s, %s" % (s(sT0), v(vLane)))
        if m: e("v_add_u32 v1, %d, v1" % (256*m))
        e("v_mul_u32_u24 v2, 3277, v1"); e("v_lshrrev_b32 v2, 16, v2")
        e("v_mul_u32_u24 v3, 20, v2"); e("v_sub_u32 v3, v1, v3")
        e("v_mul_u32_u24 v4, 1280, v2"); e("v_lshl_add_u32 %s, v3, 4, v4" % v(vUO[m]))
        e("v_lshrrev_b32 %s, 4, v2" % v(vUH[m]))
        if m == 2:
            e("v_mov_b32 v5, 0x40000000")
            e("v_cmp_le_u32 vcc, 640, v1")
            e("v_cndmask_b32_e64 %s, %s, v5, vcc" % (v(vUO[m]), v(vUO[m])))
            e("v_cndmask_b32_e64 %s, %s, 0, vcc" % (v(vUH[m]), v(vUH[m])))
    e("v_and_b32 v1, 15, %s" % v(vLane)); e("v_lshrrev_b32 v2, 2, v1"); e("v_and_b32 v3, 3, v1")
    e("v_lshrrev_b32 v4, 4, %s" % v(vLane)); e("v_lshl_add_u32 v2, v4, 2, v2")
    e("v_mul_u32_u24 v2, %d, v2" % U_ROW)
    for m in range(3):
        e("s_add_u32 %s, %s, %d" % (s(sT0), s(sWave), 4*m))
        e("s_cmp_ge_u32 %s, 5" % s(sT0)); e("s_cselect_b32 %s, 1, 0" % s(sT1))
        e("s_mul_i32 %s, %s, 5" % (s(sT2), s(sT1))); e("s_sub_u32 %s, %s, %s" % (s(sT2), s(sT0), s(sT2)))
        e("s_lshr_b32 %s, %s, 1" % (s(sT3), s(sT2))); e("s_lshl_b32 %s, %s, 6" % (s(sT3), s(sT3)))
        e("s_and_b32 %s, %s, 1" % (s(sD0), s(sT2))); e("s_lshl_b32 %s, %s, 3" % (s(sD0), s(sD0)))
        e("s_add_u32 %s, %s, %s" % (s(sT3), s(sT3), s(sD0)))
        e("s_mul_i32 %s, %s, 160" % (s(sD0), s(sT1))); e("s_add_u32 %s, %s, %s" % (s(sT3), s(sT3), s(sD0)))
        e("s_cmp_eq_u32 %s, 4" % s(sT2)); e("s_cselect_b32 %s, 3, 4" % s(sD0))
        e("v_lshlrev_b32 v5, %s, v3" % s(sD0))
        e("v_add3_u32 %s, v5, v2, %s" % (v(vUT[m]), s(sT3)))
        e("s_mul_i32 %s, %s, %d" % (s(sUW[m]), s(sT1), W2F_CB))
        e("s_lshl_b32 %s, %s, 10" % (s(sD0), s(sT2)))
        e("s_add_u32 %s, %s, %s" % (s(sUW[m]), s(sUW[m]), s(sD0)))
        e("s_cmp_ge_u32 %s, 10" % s(sT0)); e("s_cselect_b32 %s, 0x%x, %s" % (s(sUW[m]), 0x40000000, s(sUW[m])))
def unit_loads_dyn(e):
    sU = sUn
    e("s_lshr_b32 %s, %s, 2" % (s(sT0), s(sU)))
    e("s_and_b32 %s, %s, 3" % (s(sT1), s(sU)))
    e("s_mul_i32 %s, %s, 52" % (s(sT2), s(sT0))); e("s_lshr_b32 %s, %s, 8" % (s(sT2), s(sT2)))
    e("s_mul_i32 %s, %s, 5" % (s(sT3), s(sT2))); e("s_sub_u32 %s, %s, %s" % (s(sT3), s(sT0), s(sT3)))
    e("s_mul_i32 %s, %s, 160" % (s(sT2), s(sT2)))
    e("s_lshl_b32 %s, %s, 5" % (s(sD0), s(sT3)))
    e("s_cmp_ge_u32 %s, 2" % s(sT3)); e("s_cselect_b32 %s, 16, 0" % s(sD1))
    e("s_add_u32 %s, %s, %s" % (s(sD0), s(sD0), s(sD1)))
    e("s_cmp_eq_u32 %s, 4" % s(sT3)); e("s_cselect_b32 %s, 64, %s" % (s(sD0), s(sD0)))
    e("s_cselect_b32 %s, %d, 0" % (s(sD1), 64*1280))
    e("s_add_u32 %s, %s, %s" % (s(sD0), s(sD0), s(sT2)))
    e("s_sub_u32 %s, %s, 20" % (s(sT2), s(sT0))); e("s_lshl_b32 %s, %s, 5" % (s(sT2), s(sT2)))
    e("s_cmp_lt_u32 %s, 20" % s(sT0))
    e("s_cselect_b32 %s, %s, %s" % (s(sD0), s(sD0), s(sT2)))
    e("s_cselect_b32 %s, %s, 0" % (s(sD1), s(sD1)))
    e("s_cselect_b32 %s, s8, s14" % s(sPF))
    e("s_cselect_b32 %s, s9, s15" % s(sPF+1))
    e("s_cselect_b32 %s, %s, %s" % (s(sPF+2), s(sSzO), s(sSz2)))
    e("s_and_b32 %s, %s, 0xffff" % (s(sPF+1), s(sPF+1)))
    e("s_mov_b32 %s, 0x20000" % s(sPF+3))
    e("s_mul_i32 %s, %s, 1280" % (s(sD0), s(sD0)))
    e("s_mul_i32 %s, %s, 320" % (s(sT1), s(sT1)))
    e("s_add_u32 %s, %s, %s" % (s(sD0), s(sD0), s(sT1)))
    e("s_cmp_ge_u32 %s, %d" % (s(sU), 4*NKS)); e("s_cselect_b32 %s, 0x%x, %s" % (s(sD0), OOB, s(sD0)))
    e("s_lshl_b32 %s, %s, 10" % (s(sT0), s(sWave)))
    e("s_add_u32 %s, %s, %s" % (s(sT0), s(sT0), s(sUl)))
    for m in range(3):
        e("v_mad_u32_u24 %s, %s, %s, %s" % (v(210+m), v(vUH[m]), s(sD1), v(vUO[m])))
        if m < 2: e("s_add_u32 m0, %s, %d" % (s(sT0), 4096*m))
        else:
            e("s_add_u32 %s, %s, %d" % (s(sT1), s(sT0), 4096*m))
            e("s_cmp_ge_u32 %s, 2" % s(sWave))
            e("s_cselect_b32 m0, %d, %s" % (161792, s(sT1)))
        e("s_nop 0")
        e("buffer_load_dwordx4 %s, %s, %s offen lds" % (v(210+m), sr(sPF,4), s(sD0)))
def unit_store_dyn(e, vd=0, full_wait=False):
    sU = sUn
    e("s_lshr_b32 %s, %s, 2" % (s(sT0), s(sU)))
    e("s_and_b32 %s, %s, 3" % (s(sT1), s(sU)))
    e("s_mul_i32 %s, %s, 5120" % (s(sT0), s(sT0)))
    e("s_mul_i32 %s, %s, %d" % (s(sT1), s(sT1), 2*W2F_CB))
    e("s_add_u32 %s, %s, %s" % (s(sT0), s(sT0), s(sT1)))
    e("s_add_u32 %s, %s, %d" % (s(sT0), s(sT0), W2F_OFF))
    e("s_cmp_ge_u32 %s, %d" % (s(sU), 4*NKS)); e("s_cselect_b32 %s, 0x%x, %s" % (s(sT0), 0x30000000, s(sT0)))
    for m in range(3):
        e("v_add_u32 %s, %s, %s" % (v(213+m), s(sUl), v(vUT[m])))
        e("ds_read_b64_tr_b16 %s, %s" % (vr(vd+4*m,2), v(213+m)))
        e("ds_read_b64_tr_b16 %s, %s offset:%d" % (vr(vd+4*m+2,2), v(213+m), 16*U_ROW))
    for m in range(3):
        e("s_add_u32 %s, %s, %s" % (s(sT1), s(sT0), s(sUW[m])))
        e("s_waitcnt lgkmcnt(%d)" % (4 - 2*m if not full_wait else 0))
        e("buffer_store_dwordx4 %s, %s, %s, %s offen sc1" % (vr(vd+4*m,4), v(vL16), sr(sWS,4), s(sT1)))
def pf_loop(e, tag, fn, u0, n, lds0):
    e("s_add_u32 %s, %s, %d" % (s(sUn), s(sCB), 16*u0))
    e("s_mov_b32 %s, %d" % (s(sUl), lds0))
    e("s_mov_b32 %s, 0" % s(sIter))
    e.lab("L_pfl_%s" % tag)
    fn(e)
    e("s_add_u32 %s, %s, 16" % (s(sUn), s(sUn)))
    e("s_add_u32 %s, %s, %d" % (s(sUl), s(sUl), U_BYTES))
    e("s_add_u32 %s, %s, 1" % (s(sIter), s(sIter)))
    e("s_cmp_lt_u32 %s, %d" % (s(sIter), n))
    e("s_cbranch_scc1 L_pfl_%s" % tag)
N_FFN_UNITS = 2
def signal_count(e, off):
    R = " ; rare"
    e("v_mov_b32 v250, 1" + R); e("v_mov_b32 v251, 0" + R)
    e("s_mov_b32 exec_lo, 1" + R); e("s_mov_b32 exec_hi, 0" + R)
    e("buffer_atomic_add v250, v251, %s, 0 offen offset:%d sc1" % (sr(sDBG,4), off) + R)
    e("s_mov_b64 exec, -1" + R)
def spin_count(e, tag, off, target, vtmp, have_first=None):
    R = " ; rare"
    if have_first is not None:
        e("v_readfirstlane_b32 %s, %s" % (s(sT0), v(have_first)))
        e("s_nop 3")
        e("s_cmp_ge_u32 %s, %d" % (s(sT0), target))
        e("s_cbranch_scc1 L_cok_%s" % tag)
    e("s_mov_b32 %s, 0" % s(sT1) + R)
    e("v_mov_b32 %s, 0" % v(vtmp+1) + R)
    e.lab("L_cspin_%s" % tag)
    e("buffer_load_dword %s, %s, %s, 0 offen offset:%d sc1" % (v(vtmp), v(vtmp+1), sr(sDBG,4), off) + R)
    e("s_waitcnt vmcnt(0)" + R)
    e("v_readfirstlane_b32 %s, %s" % (s(sT0), v(vtmp)) + R)
    e("s_nop 3" + R)
    e("s_cmp_ge_u32 %s, %d" % (s(sT0), target) + R)
    e("s_cbranch_scc1 L_cok_%s" % tag + R)
    e("s_sleep %d" % CSLEEP + R)
    e("s_add_u32 %s, %s, 1" % (s(sT1), s(sT1)) + R)
    e("s_cmp_lt_u32 %s, %d" % (s(sT1), SPIN_MAX) + R)
    e("s_cbranch_scc1 L_cspin_%s" % tag + R)
    e.lab("L_cok_%s" % tag)
CSLEEP = 40
FSLEEP = 8
CNT_P, N_P = 4, 128

DA = 6
POLL_A_AT = int(os.environ.get('PAA', 2))
FFN_W2A_IN = 0
ATT_W2A_IN = int(os.environ.get('ATT_IN', 25))
ATT_ENDGAP = int(os.environ.get('ATT_GAP', 260))
W2A_BEFORE_SIG = int(os.environ.get('WBS', 12))
P0 = int(os.environ.get('P0', 12))
vAR = 80
vWR = 176
def act_soff(p, dst):
    if p < 14: return ["s_lshl_b32 %s, %s, 2" % (s(dst), s(sKQ[p])), "s_add_u32 %s, %s, %s" % (s(dst), s(dst), s(sAB))]
    return ["s_lshl_b32 %s, %s, 12" % (s(dst), s(sWave)), "s_add_u32 %s, %s, %s" % (s(dst), s(dst), s(sAB)),
            "s_add_u32 %s, %s, %d" % (s(dst), s(dst), 4*(p-14)*4096)]
vAO = [244, 246, 248, 249]
def act_loads(p):
    st = vAR + (p % DA)*16
    G = []
    for tt in range(4):
        g = act_soff(p, sD0) if tt == 0 else []
        g.append("buffer_load_dwordx4 %s, %s, %s, %s offen sc1" % (vr(st+4*tt,4), v(vAO[tt]), sr(sWS,4), s(sD0)))
        G.append(g)
    return G
PE = int(os.environ.get('PE', 10))

def phase2():
    e = E()
    e.lab("L_ph2")
    if "dlymid" in OPTS: e("s_sleep 64")
    stamp(e, 8)
    for tt in range(4):
        e("s_add_u32 %s, %s, %d" % (s(sT0), s(sWave), tt))
        e("s_and_b32 %s, %s, 3" % (s(sT0), s(sT0)))
        e("s_lshl_b32 %s, %s, 10" % (s(sT0), s(sT0)))
        e("v_add_u32 %s, %s, %s" % (v(vAO[tt]), s(sT0), v(vL16)))
    check_flags(e, MASK_F, vPoll, "L_ph2_fast")
    R = " ; rare"
    e("v_lshlrev_b32 v251, 2, %s" % v(vLane) + R)
    e("buffer_load_dword v250, v251, %s, %s offen sc1" % (sr(sWS,4), s(sFL)) + R)
    for g in w2a_groups(PE, P0):
        for t in g: e(t + R)
    e("s_waitcnt vmcnt(%d)" % (5*(P0-PE)) + R)
    check_flags(e, MASK_F, 250, "L_ph2_ok2", R)
    spin_flags(e, "f", MASK_F, 250)
    e.lab("L_ph2_ok2")
    for p in range(DA):
        for g in act_loads(p):
            for t in g: e(t + R)
    e("s_branch L_ph2_main" + R)
    e.lab("L_ph2_fast")
    f = E()
    for p in range(DA):
        for g in act_loads(p): f.ext(g)
    for g in w2a_groups(PE, P0): f.ext(g)
    main = E()
    main.lab("L_ph2_main")
    main("v_add_u32 v216, %s, %s" % (s(sLA), v(vL16)))
    main("v_add_u32 v217, %s, %s" % (s(sLB), v(vL16)))
    def wl_reads(p):
        out = []
        for ct in range(5):
            q = 5*p + ct
            ad, off = (216, q*1024) if q < 12 else (217, (q-12)*1024)
            out.append("ds_read_b128 %s, %s offset:%d" % (vr(vWR + (p & 1)*20 + ct*4, 4), v(ad), off))
        return out
    main.ext(wl_reads(0))
    main("v_lshlrev_b32 v218, 2, %s" % v(vLane))
    for tt in range(1, 4):
        main("s_add_u32 %s, %s, %d" % (s(sT0), s(sWave), tt))
        main("s_and_b32 %s, %s, 3" % (s(sT0), s(sT0)))
        main("s_mul_i32 %s, %s, 15360" % (s(sT0), s(sT0)))
        main("s_add_u32 %s, %s, %d" % (s(sT0), s(sT0), (tt-1)*5120))
        main("v_add_u32 %s, %s, %s" % (v(236+tt), s(sT0), v(vL16)))
    stamp(main, 9)
    NP = 19
    for p in range(NP):
        if "p2st" in OPTS and p in (1, 5, 9, 10, 14): stamp(main, {1: 1, 5: 2, 9: 3, 10: 4, 14: 5}[p])
        ms = []
        order = [(ct, tt) for ct in range(5) for tt in range(4)] if p < NP - 1 else [(ct, tt) for tt in (1, 2, 3, 0) for ct in range(5)]
        for ct, tt in order:
            if p < 5: wsrc = vr(vWR + (p & 1)*20 + ct*4, 4)
            else:     wsrc = ar(((p - 5) % 12)*20 + ct*4, 4)
            d = vr((tt*5+ct)*4, 4)
            ms.append("%s %s, %s, %s, %s" % (MFMA, d, wsrc, vr(vAR + (p % DA)*16 + 4*tt, 4), d if p else "0"))
        aux = []
        if p + 1 < 5: aux += [[t] for t in wl_reads(p + 1)]
        q = p - 1 + DA
        if p >= 1 and q < NP:
            if q == 14:
                sp = E(); spin_flags(sp, "a", MASK_A, 250, have_first=219)
                main.ext(sp.L)
                main("buffer_load_dword v234, v222, %s, %s offen sc1" % (sr(sWS,4), s(sT2)))
            aux += act_loads(q)
        if p == 1:
            rx = E()
            rx("v_and_b32 v220, 15, %s" % v(vLane)); rx("v_lshrrev_b32 v221, 4, %s" % v(vLane))
            rx("s_lshl_b32 %s, %s, 6" % (s(sT0), s(sTB))); rx("s_lshl_b32 %s, %s, 4" % (s(sT1), s(sWave)))
            rx("s_add_u32 %s, %s, %s" % (s(sT0), s(sT0), s(sT1)))
            rx("v_add_u32 v220, %s, v220" % s(sT0)); rx("v_lshlrev_b32 v222, 2, v220")
            rx("v_mul_u32_u24 v220, 1280, v220")
            rx("s_mul_i32 %s, %s, 160" % (s(sT1), s(sC2))); rx("v_add_u32 v220, %s, v220" % s(sT1))
            rx("v_lshl_add_u32 v240, v221, 4, v220"); rx("v_lshl_add_u32 v242, v221, 3, v220")
            rx("s_mov_b32 %s, %d" % (s(sT2), RSTD_OFF))
            rx("buffer_load_dwordx4 v[224:227], v240, %s, 0 offen" % sr(sX,4))
            rx("buffer_load_dwordx4 v[228:231], v240, %s, 0 offen offset:64" % sr(sX,4))
            rx("buffer_load_dwordx2 v[232:233], v242, %s, 0 offen offset:128" % sr(sX,4))
            aux += [[t.strip()] for t in rx.L]
        if p == POLL_A_AT:
            aux.append(["buffer_load_dword v219, v218, %s, %s offen sc1" % (sr(sWS,4), s(sFL))])
        if P0 <= p + 7 <= 16: aux += w2a_groups(p + 7, p + 8)
        if p == 10: aux += w2a_groups(17, 18)
        if p == 11: aux += w2a_groups(18, 19)
        if p == 12: aux.append(["s_barrier"])
        n = len(ms); k = 0
        for i_, m in enumerate(ms):
            main(m)
            want = (i_ + 1)*len(aux) // n
            while k < want:
                main.ext(aux[k]); k += 1
            if p == NP - 1 and i_ >= 7:
                j = i_ - 7
                if j < 15 and True:
                    tt = 1 + j // 5; ct = j % 5
                    if i_ - j >= 7 and j <= i_ - 7: pass
        if p == NP - 1:
            pass
    for tt in range(1, 4):
        for ct in range(5):
            main("ds_write_b128 %s, %s offset:%d" % (v(236+tt), vr((tt*5+ct)*4,4), ct*1024))
    stamp(main, 10)
    srd(main, sW, 16, X_BYTES)
    main("s_mul_i32 %s, %s, 15360" % (s(sT0), s(sWave)))
    main("v_add_u32 v236, %s, %s" % (s(sT0), v(vL16)))
    xr = [224, 226, 228, 230, 232]
    X = 180
    for ct in range(5):
        for hh in range(2):
            main("v_lshlrev_b32 %s, 16, %s" % (v(X + ct*4 + 2*hh), v(xr[ct]+hh)))
            main("v_and_b32 %s, 0xffff0000, %s" % (v(X + ct*4 + 2*hh + 1), v(xr[ct]+hh)))
    main("s_waitcnt lgkmcnt(0)")
    main("s_barrier")
    for k in range(3):
        for ct in range(5):
            main("ds_read_b128 %s, v236 offset:%d" % (vr(80 + (k*5+ct)*4, 4), (k*5+ct)*1024))
    o = 150
    for ct in range(5):
        for hh in range(2):
            r = ct*4 + 2*hh
            main("v_pk_add_f32 %s, %s, %s" % (vr(r,2), vr(r,2), vr(80 + r, 2)))
    for ct in range(5):
        for hh in range(2):
            r = ct*4 + 2*hh
            main("v_pk_add_f32 %s, %s, %s" % (vr(r,2), vr(r,2), vr(100 + r, 2)))
    for ct in range(5):
        for hh in range(2):
            r = ct*4 + 2*hh
            main("v_pk_add_f32 %s, %s, %s" % (vr(r,2), vr(r,2), vr(120 + r, 2)))
            main("v_pk_fma_f32 %s, %s, %s, %s op_sel_hi:[1,0,1]" % (vr(X+r,2), vr(r,2), vr(234,2), vr(X+r,2)))
            main("v_cvt_pk_bf16_f32 %s, %s, %s" % (v(o + 2*ct + hh), v(X+r), v(X+r+1)))
    main("buffer_store_dwordx4 %s, v240, %s, 0 offen" % (vr(o,4), sr(sW,4)))
    main("buffer_store_dwordx4 %s, v240, %s, 0 offen offset:64" % (vr(o+4,4), sr(sW,4)))
    main("buffer_store_dwordx2 %s, v242, %s, 0 offen offset:128" % (vr(o+8,2), sr(sW,4)))
    if "dlyend" in OPTS: main("s_sleep 64")
    stamp(main, 11)
    if "stamp" in OPTS: main("s_waitcnt vmcnt(0)")
    stamp(main, 12)
    stamp_flush(main)
    def sim(seq):
        st = State(); d = []
        pre = []
        for g in w2a_groups(5, PE): pre += ["  " + t for t in g]
        st = process(pre, st, d)
        return process(seq, st, d)
    fa = []
    for p in range(DA):
        for g in act_loads(p): fa += ["  " + t for t in g]
    fw = []
    for g in w2a_groups(PE, P0): fw += ["  " + t for t in g]
    s1 = sim(fa + fw); s2 = sim(fw + fa)
    s1.merge(s2); s1.hist = []
    o1 = []; st0 = State()
    pre = []
    for g in w2a_groups(5, PE): pre += ["  " + t for t in g]
    st0 = process(pre, st0, [])
    process(e.L + f.L, st0, o1)
    o2 = []; process(main.L, s1, o2)
    return o1 + o2

def top():
    out = []
    e = E()
    e("s_load_dwordx16 s[4:19], s[0:1], 0")
    e("s_load_dwordx2 s[20:21], s[0:1], 64")
    e("s_cmp_ge_u32 s2, 256")
    e("s_cbranch_scc1 L_end")
    if "stamp" in OPTS: e("v_mov_b32 %s, 0" % v(vSt))
    if "ep2x" in OPTS: e("s_mov_b32 s100, 0")
    if "dlystart" in OPTS: e("s_sleep 64")
    e("s_getpc_b64 s[60:61]")
    e.lab("L_pcbase")
    e("s_lshr_b32 s3, s2, 3")
    e("s_lshl_b32 s3, s3, 12")
    e("v_lshl_add_u32 v2, v0, 4, s3")
    e("v_min_u32 v2, L_codeend-L_pcbase-16, v2")
    if "nopf" not in OPTS: e("global_load_dwordx4 v[236:239], v2, s[60:61]")
    e("v_and_b32 %s, 63, v0" % v(vLane))
    e("v_lshrrev_b32 v1, 6, v0")
    e("s_and_b32 s3, s2, 7")
    e("v_readfirstlane_b32 %s, v1" % s(sWave))
    e("s_lshr_b32 %s, s2, 3" % s(sT0))
    e("s_and_b32 %s, s3, 1" % s(sT1))
    e("s_lshr_b32 %s, s3, 1" % s(sT2))
    e("s_lshl_b32 %s, %s, 3" % (s(sT1), s(sT1)))
    e("s_cmp_ge_u32 %s, 30" % s(sT0))
    e("s_cbranch_scc1 L_role_pf")
    e("s_cmp_ge_u32 %s, 16" % s(sT0))
    e("s_cbranch_scc1 L_role_ffn")
    e("s_lshl_b32 %s, %s, 1" % (s(sCB), s(sT2)))
    e("s_lshr_b32 %s, %s, 3" % (s(sT3), s(sT0)))
    e("s_add_u32 %s, %s, %s" % (s(sCB), s(sCB), s(sT3)))
    e("s_and_b32 %s, %s, 7" % (s(sKC), s(sT0)))
    e("s_add_u32 %s, %s, %s" % (s(sRB), s(sT1), s(sKC)))
    e("s_mul_i32 %s, %s, 5" % (s(sT3), s(sT3)))
    e("s_add_u32 %s, %s, %s" % (s(sKC), s(sKC), s(sT3)))
    e("s_cmp_ge_u32 %s, 10" % s(sKC))
    e("s_cselect_b32 %s, 10, 0" % s(sT3))
    e("s_sub_u32 %s, %s, %s" % (s(sKC), s(sKC), s(sT3)))
    if "rotk" not in OPTS: e("s_mov_b32 %s, 0" % s(sKC))
    if "rot4" in OPTS:
        e("s_and_b32 %s, %s, 1" % (s(sT3), s(sCB))); e("s_lshl_b32 %s, %s, 1" % (s(sT3), s(sT3)))
        e("s_add_u32 %s, %s, %s" % (s(sT3), s(sT3), s(sRB))); e("s_and_b32 %s, %s, 3" % (s(sT3), s(sT3)))
        e("s_mul_i32 %s, %s, 5" % (s(sT3), s(sT3))); e("s_lshr_b32 %s, %s, 1" % (s(sKC), s(sT3)))
    e("s_mul_i32 %s, %s, %d" % (s(sXO), s(sRB), 128*1280))
    e("s_sub_u32 %s, %s, %d" % (s(sXH), s(sXO), 16*1280))
    e("s_cmp_eq_u32 %s, 0" % s(sRB))
    e("s_cselect_b32 %s, 0, %s" % (s(sXH), s(sXH)))
    e("s_add_u32 %s, %s, 8" % (s(sSig), s(sCB)))
    attn_lane_setup(e)
    e("s_waitcnt lgkmcnt(0)")
    srd(e, sX, 4, X_BYTES); srd(e, sW, 6, WQKV_BYTES); srd(e, sWS, 20, WS_USED); srd(e, sDBG, 18, 256)
    stamp(e, 0)
    for w in range(3):
        e("s_cmp_eq_u32 %s, %d" % (s(sWave), w))
        e("s_cbranch_scc1 L_attn_%d" % w)
    e("s_branch L_attn_3")
    e.lab("L_role_ffn")
    e("s_mul_i32 %s, %s, 14" % (s(sT2), s(sT2)))
    e("s_add_u32 %s, %s, %s" % (s(sT2), s(sT2), s(sT0)))
    e("s_sub_u32 %s, %s, 16" % (s(sT2), s(sT2)))
    e("s_lshr_b32 %s, %s, 3" % (s(sCB), s(sT2)))
    e("s_and_b32 %s, %s, 7" % (s(sKC), s(sT2)))
    e("s_add_u32 %s, %s, %s" % (s(sRB), s(sT1), s(sKC)))
    e("s_and_b32 %s, %s, 1" % (s(sT3), s(sCB)))
    e("s_mul_i32 %s, %s, 5" % (s(sT3), s(sT3)))
    e("s_add_u32 %s, %s, %s" % (s(sKC), s(sKC), s(sT3)))
    e("s_add_u32 %s, %s, 2" % (s(sKC), s(sKC)))
    e("s_cmp_ge_u32 %s, 10" % s(sKC))
    e("s_cselect_b32 %s, 10, 0" % s(sT3))
    e("s_sub_u32 %s, %s, %s" % (s(sKC), s(sKC), s(sT3)))
    if "rotk" not in OPTS: e("s_mov_b32 %s, 0" % s(sKC))
    if "rot4" in OPTS:
        e("s_and_b32 %s, %s, 1" % (s(sT3), s(sCB))); e("s_lshl_b32 %s, %s, 1" % (s(sT3), s(sT3)))
        e("s_add_u32 %s, %s, %s" % (s(sT3), s(sT3), s(sRB))); e("s_add_u32 %s, %s, 1" % (s(sT3), s(sT3))); e("s_and_b32 %s, %s, 3" % (s(sT3), s(sT3)))
        e("s_mul_i32 %s, %s, 5" % (s(sT3), s(sT3))); e("s_lshr_b32 %s, %s, 1" % (s(sKC), s(sT3)))
    e("s_mul_i32 %s, %s, %d" % (s(sXO), s(sRB), 128*1280))
    e("s_mov_b32 %s, %s" % (s(sSig), s(sCB)))
    e("s_mul_i32 %s, %s, 7" % (s(sUn), s(sT1)))
    e("s_add_u32 %s, %s, %s" % (s(sUn), s(sUn), s(sT2)))
    ffn_lane_setup(e)
    e("s_waitcnt lgkmcnt(0)")
    srd(e, sX, 4, X_BYTES); srd(e, sW, 12, W1_BYTES); srd(e, sWS, 20, WS_USED); srd(e, sDBG, 18, 256); srd(e, sQ, 6, WQKV_BYTES)
    stamp(e, 0)
    for w in range(3):
        e("s_cmp_eq_u32 %s, %d" % (s(sWave), w))
        e("s_cbranch_scc1 L_ffn_%d" % w)
    e("s_branch L_ffn_3")
    e.lab("L_role_pf")
    e("s_lshl_b32 %s, s3, 1" % s(sCB))
    e("s_add_u32 %s, %s, %s" % (s(sCB), s(sCB), s(sT0)))
    e("s_sub_u32 %s, %s, 30" % (s(sCB), s(sCB)))
    e("s_waitcnt lgkmcnt(0)")
    srd(e, sX, 4, X_BYTES); srd(e, sWS, 20, WS_USED); srd(e, sDBG, 18, 256)
    stamp(e, 0)
    e("v_lshlrev_b32 %s, 4, %s" % (v(vL16), v(vLane)))
    unit_setup_dyn(e)
    e("s_mov_b32 %s, %d" % (s(sSzO), WO_BYTES)); e("s_mov_b32 %s, %d" % (s(sSz2), W2_BYTES))
    pf_loop(e, "l0", unit_loads_dyn, 7, 12, 0)
    stamp(e, 1)
    e("s_waitcnt vmcnt(0)")
    e("s_barrier")
    stamp(e, 2)
    pf_loop(e, "s0", unit_store_dyn, 7, 12, 0)
    stamp(e, 3)
    e("s_waitcnt vmcnt(0)")
    e("s_barrier")
    e("s_cmp_lg_u32 %s, 0" % s(sWave))
    e("s_cbranch_scc1 L_pf_nosig")
    signal_count(e, CNT_P)
    e.lab("L_pf_nosig")
    stamp(e, 4)
    ph2_setup(e, F_SLOT)
    e("s_cmp_lg_u32 %s, 0" % s(sWave))
    e("s_cbranch_scc1 L_pf_nospin")
    spin_count(e, "pf", CNT_P, N_P, 250)
    e.lab("L_pf_nospin")
    e("s_barrier")
    get_nonce(e, "pf", 250)
    stamp(e, 5)
    if "ph1only" in OPTS: stamp_flush(e); e("s_endpgm")
    for g in w2l_groups(0, 25): e.ext(g)
    e("v_lshlrev_b32 v2, 2, %s" % v(vLane))
    e("buffer_load_dword %s, v2, %s, %s offen sc1" % (v(vPoll), sr(sWS,4), s(sFL)))
    for g in w2a_groups(5, PE): e.ext(g)
    e("s_waitcnt vmcnt(%d)" % (5*(PE-5)))
    e("s_branch L_ph2")
    out += process_path(e.L, None, None, [])
    for role in ("attn", "ffn"):
        for w in range(4):
            tag = "%s_%d" % (role, w)
            pre = E(); pre.lab("L_" + tag)
            if role == "attn":
                cfg = attn_cfg(w)
                def extra(e, w=w):
                    read_addr_setup_attn(e)
                    attn_stash(e)
                    if w == 0:
                        e("s_cmp_lg_u32 s2, 0 ; rare"); e("s_cbranch_scc1 L_nononce ; rare")
                        e("s_memrealtime s[96:97] ; rare"); e("s_waitcnt lgkmcnt(0) ; rare")
                        e("s_or_b32 s96, s96, 1 ; rare"); e("v_mov_b32 v14, s96 ; rare"); e("v_mov_b32 v15, 0 ; rare")
                        e("buffer_store_dword v14, v15, %s, 0 offen sc1 ; rare" % sr(sDBG,4))
                        e.lab("L_nononce")
                        e("v_and_b32 v2, 7, %s" % v(vLane))
                        e("v_lshlrev_b32 v7, 4, v2")
                        e("v_mov_b32 v8, 0x3f803f80"); e("v_mov_b32 v9, v8"); e("v_mov_b32 v10, v8"); e("v_mov_b32 v11, v8")
                        e("ds_write_b128 v7, v[8:11]")
                        e("v_add_u32 v12, %d, v7" % A_SLOT); e("ds_write_b128 v12, v[8:11]")
                        e("v_add_u32 v13, %d, v7" % (2*A_SLOT)); e("ds_write_b128 v13, v[8:11]")
                body, post, side = role_main(pre, tag, cfg, attn_dma_list(w), vDO, w, 160, extra)
            else:
                cfg = ffn_cfg(w)
                body, post, side = role_main(pre, tag, cfg, ffn_dma_list(w), fDO, w, 152, read_addr_setup_ffn, units=("nounits" not in OPTS))
            post("s_branch L_ep_%s" % role)
            out += process_path(pre.L, "L_loop_" + tag, body, post.L)
            out += side
        ep = E()
        if role == "attn": attn_epilogue(ep)
        else: ffn_epilogue(ep)
        groups = w2a_groups(5, PE) if "ph1only" not in OPTS else []
        nin = (ATT_W2A_IN if role == "attn" else FFN_W2A_IN) if groups else 0
        epl = sprinkle(ep.L, groups[:nin], start=4, end_gap=(ATT_ENDGAP if role == "attn" else 10)) if nin else ep.L
        fin = E()
        stamp(fin, 6)
        fin("v_lshlrev_b32 v2, 2, %s" % v(vLane))
        if "nopoll" not in OPTS: fin("buffer_load_dword %s, v2, %s, %s offen sc1" % (v(vPoll), sr(sWS,4), s(sFL)))
        nb = min(W2A_BEFORE_SIG, len(groups) - nin)
        for g in groups[nin:nin+nb]: fin.ext(g)
        fin("s_waitcnt vmcnt(%d)" % nb)
        stamp(fin, 7)
        if "ph1only" in OPTS:
            stamp_flush(fin); fin("s_endpgm")
        else:
            fin("s_barrier")
            signal_rb(fin, role, None)
            for g in groups[nin+nb:]: fin.ext(g)
            fin("s_branch L_ph2")
        if "ep2x" in OPTS:
            rep = E()
            rep("s_waitcnt vmcnt(0) lgkmcnt(0)"); rep("s_barrier")
            stamp(rep, 12)
            rep("s_add_u32 s100, s100, 1"); rep("s_cmp_lt_u32 s100, 2"); rep("s_cbranch_scc1 L_ep_%s" % role)
            epl = epl + rep.L
        out += process_path(["L_ep_%s:" % role, "  s_nop 7", "  s_nop 1"] + epl + fin.L, None, None, [])
    out += phase2()
    out.append("L_end:")
    return out

def kd(name, nfv, accum, sg=102):
    return """.section .rodata,"a"
.p2align 6
.amdhsa_kernel %s
  .amdhsa_next_free_vgpr %d
  .amdhsa_next_free_sgpr %d
  .amdhsa_accum_offset %d
  .amdhsa_group_segment_fixed_size 0
  .amdhsa_kernarg_size 72
  .amdhsa_user_sgpr_count 2
  .amdhsa_user_sgpr_kernarg_segment_ptr 1
  .amdhsa_system_sgpr_workgroup_id_x 1
  .amdhsa_float_denorm_mode_32 3
.end_amdhsa_kernel
""" % (name, nfv, sg, accum)

HEADER = """; Kernarg (72 bytes): [0] A_x [8] A_wqkv [16] A_wo [24] B_x [32] B_w1 [40] B_w2 [48] out [56] debug [64] ws
; @launch grid=(256,1,1) block=(256,1,1) lds=163840
.amdgcn_target "amdgcn-amd-amdhsa--gfx950"
"""
def main():
    if len(sys.argv) > 2: OPTS.update(sys.argv[2].split(","))
    k = top()
    if "noalign" not in OPTS:
        from alignpass import align
        head = '.amdgcn_target "amdgcn-amd-amdhsa--gfx950"\n.text\n.p2align 8\nk:\n'
        k = align(head, k, "\ns_endpgm\nL_codeend:\n")
    txt = HEADER + ".text\n.globl %s\n.p2align 8\n.type %s,@function\n%s:\n" % (KNAME, KNAME, KNAME) + "\n".join(k) + "\ns_endpgm\nL_codeend:\n" + kd(KNAME, 512, 256)
    path = sys.argv[1] if len(sys.argv) > 1 else "out2.s"
    open(path, "w").write(txt)
    print("wrote", path, len(txt), "bytes;", len(k), "lines")
if __name__ == "__main__": main()
```

```python
import sys, struct, os
from irlib import *

KNAME = "parallel_sum__sliding_local_dilated__dense_activation_relu__prompt_kernel"
S_, D_, DFF = 2048, 640, 1728
X_BYTES = S_*D_*2; WQKV_BYTES = D_*3*D_*2; WO_BYTES = D_*D_*2; W1_BYTES = D_*DFF*2; W2_BYTES = DFF*D_*2
NKS = 74
ACT_OFF = 0; ACT_TB = NKS*4096
W2F_OFF = 10*1024*1024; W2F_CB = NKS*5120
RSTD_OFF = 14*1024*1024
STAMP_OFF = 16*1024*1024
WS_USED = 17*1024*1024
OOB = 0x7F000000
FLAG_OFF = 15*1024*1024
MASK_F, MASK_A, MASK_P = 0x7f, 0xff00, 0xffff0000
SPIN_MAX = 200000
OPTS = set()
def f2u(x): return struct.unpack("<I", struct.pack("<f", x))[0]
def v(i): return "v%d" % i
def vr(i, n): return "v[%d:%d]" % (i, i+n-1)
def a(i): return "a%d" % i
def ar(i, n): return "a[%d:%d]" % (i, i+n-1)
def s(i): return "s%d" % i
def sr(i, n): return "s[%d:%d]" % (i, i+n-1)
MFMA = "v_mfma_f32_16x16x32_bf16"

class E:
    def __init__(self): self.L = []
    def __call__(self, t): self.L.append("  " + t)
    def lab(self, t): self.L.append(t + ":")
    def ext(self, lines):
        for t in lines: self.L.append(t if t.startswith("  ") or t.endswith(":") else "  " + t)

sWave = 22
sX, sW, sWS, sDBG = 24, 28, 32, 76
sRB, sCB, sKC, sSoX, sSoW, sDSlot, sRDelta, sIter = 36, 37, 38, 39, 40, 41, 42, 43
sT0, sT1, sT2, sT3 = 46, 47, 48, 49
sM = 50
sTB, sC2, sSig, sWB, sAB, sLA, sLB, sP0, sP1, sRB2 = 80, 81, 82, 83, 84, 85, 86, 87, 88, 89
sKQ = [4,5,6,7,8,9,10,11,12,13,14,15,18,19]
sNonce, sFL = 23, 45
sD0, sD1 = 90, 91
sXO, sXH = 92, 93
vLane = 255
vSt = 247
vPoll = 243
vNon = 252

def stamp(e, i):
    if "stamp" in OPTS:
        e("s_memrealtime s[96:97]"); e("s_memtime s[98:99]"); e("s_waitcnt lgkmcnt(0)")
        e("v_writelane_b32 %s, s96, %d" % (v(vSt), 2*i)); e("v_writelane_b32 %s, s98, %d" % (v(vSt), 2*i+1))
def stamp_flush(e):
    if "stamp" not in OPTS: return
    if "dbgst" in OPTS:
        uid = len(e.L)
        for wg, lst, base in ((0, [3,4,5,6,9,12], 2), (128, [3,4,5,7,9], 8), (240, [4,5,8], 13)):
            lab = "L_ds_%d_%d" % (wg, uid)
            e("s_cmp_lg_u32 s2, %d" % wg); e("s_cbranch_scc1 %s" % lab)
            e("s_cmp_lg_u32 %s, 0" % s(sWave)); e("s_cbranch_scc1 %s" % lab)
            e("v_readlane_b32 s96, %s, 0" % v(vSt))
            for n_, i in enumerate(lst):
                e("v_readlane_b32 s97, %s, %d" % (v(vSt), 2*i))
                e("s_nop 4")
                e("s_sub_u32 s97, s97, s96")
                e("v_mov_b32 v1, s97"); e("v_mov_b32 v2, %d" % (4*(base+n_)))
                e("buffer_store_dword v1, v2, %s, 0 offen" % sr(sDBG,4))
            e.lab(lab)
        return
    e("s_lshl_b32 s3, s2, 2"); e("s_add_u32 s3, s3, %s" % s(sWave)); e("s_lshl_b32 s3, s3, 8")
    e("s_add_u32 s3, s3, %d" % STAMP_OFF)
    e("v_lshlrev_b32 v1, 2, %s" % v(vLane))
    e("buffer_store_dword %s, v1, %s, s3 offen" % (v(vSt), sr(sWS,4)))

def srd(e, base, ptr, nbytes):
    e("s_mov_b32 %s, %s" % (s(base), s(ptr)))
    e("s_and_b32 %s, %s, 0xffff" % (s(base+1), s(ptr+1)))
    e("s_mov_b32 %s, %d" % (s(base+2), nbytes))
    e("s_mov_b32 %s, 0x20000" % s(base+3))

def check_flags(e, mask, val, oklab, rare=""):
    e("v_cmp_eq_u32 vcc, %s, %s%s" % (s(sNonce), v(val), rare))
    e("s_nop 3" + rare)
    e("s_and_b32 %s, vcc_lo, 0x%x%s" % (s(sT0), mask, rare))
    e("s_cmp_eq_u32 %s, 0x%x%s" % (s(sT0), mask, rare))
    e("s_cbranch_scc1 %s%s" % (oklab, rare))
def spin_flags(e, tag, mask, vtmp, have_first=None):
    R = " ; rare"
    if have_first is not None: check_flags(e, mask, have_first, "L_ok_%s" % tag)
    e("s_mov_b32 %s, 0" % s(sT1) + R)
    e("v_lshlrev_b32 %s, 2, %s" % (v(vtmp+1), v(vLane)) + R)
    e.lab("L_spin_%s" % tag)
    e("buffer_load_dword %s, %s, %s, %s offen sc1" % (v(vtmp), v(vtmp+1), sr(sWS,4), s(sFL)) + R)
    e("s_waitcnt vmcnt(0)" + R)
    check_flags(e, mask, vtmp, "L_ok_%s" % tag, R)
    e("s_sleep %d" % FSLEEP + R)
    e("s_add_u32 %s, %s, 1" % (s(sT1), s(sT1)) + R)
    e("s_cmp_lt_u32 %s, %d" % (s(sT1), SPIN_MAX) + R)
    e("s_cbranch_scc1 L_spin_%s" % tag + R)
    e.lab("L_ok_%s" % tag)
def get_nonce(e, tag, vtmp, have_first=None):
    R = " ; rare"
    if have_first is not None:
        e("v_readfirstlane_b32 %s, %s" % (s(sNonce), v(have_first)))
        e("s_nop 3")
        e("s_cmp_lg_u32 %s, 0" % s(sNonce))
        e("s_cbranch_scc1 L_nok_%s" % tag)
    e("s_mov_b32 %s, 0" % s(sT1) + R)
    e("v_mov_b32 %s, 0" % v(vtmp+1) + R)
    e.lab("L_nspin_%s" % tag)
    e("buffer_load_dword %s, %s, %s, 0 offen sc1" % (v(vtmp), v(vtmp+1), sr(sDBG,4)) + R)
    e("s_waitcnt vmcnt(0)" + R)
    e("v_readfirstlane_b32 %s, %s" % (s(sNonce), v(vtmp)) + R)
    e("s_nop 3" + R)
    e("s_cmp_lg_u32 %s, 0" % s(sNonce) + R)
    e("s_cbranch_scc1 L_nok_%s" % tag + R)
    e("s_sleep 8" + R)
    e("s_add_u32 %s, %s, 1" % (s(sT1), s(sT1)) + R)
    e("s_cmp_lt_u32 %s, %d" % (s(sT1), SPIN_MAX) + R)
    e("s_cbranch_scc1 L_nspin_%s" % tag + R)
    e.lab("L_nok_%s" % tag)
def signal_rb(e, tag, word_sgpr_expr, vt=(1, 2)):
    e("s_cmp_lg_u32 %s, 0" % s(sWave))
    e("s_cbranch_scc1 L_nosig_%s" % tag)
    R = " ; rare"
    e("s_and_b32 %s, %s, 1" % (s(sT0), s(sRB)) + R)
    e("s_lshl_b32 %s, %s, 4" % (s(sT0), s(sT0)) + R)
    a_, b_ = v(vt[0]), v(vt[1])
    e("v_add_u32 %s, %s, %s" % (a_, s(sT0), v(vLane)) + R)
    e("v_lshlrev_b32 %s, 3, %s" % (a_, a_) + R)
    e("s_lshr_b32 %s, %s, 1" % (s(sT0), s(sRB)) + R)
    e("v_add_u32 %s, %s, %s" % (a_, s(sT0), a_) + R)
    e("v_lshlrev_b32 %s, 7, %s" % (a_, a_) + R)
    e("s_lshl_b32 %s, %s, 2" % (s(sT0), s(sSig)) + R)
    e("s_add_u32 %s, %s, %d" % (s(sT0), s(sT0), FLAG_OFF) + R)
    e("v_mov_b32 %s, %s" % (b_, s(sNonce)) + R)
    e("s_mov_b32 exec_lo, 0xffff" + R); e("s_mov_b32 exec_hi, 0" + R)
    e("buffer_store_dword %s, %s, %s, %s offen sc1" % (b_, a_, sr(sWS,4), s(sT0)) + R)
    e("s_mov_b64 exec, -1" + R)
    e.lab("L_nosig_%s" % tag)

class Cfg: pass

def chunk_body(cfg, dma, last=False, rolled_tag=None, closing_vm=None, first_vm=None):
    NT = cfg.ntile; NF = 2*NT; R = cfg.ring; L = cfg.look; TAIL = cfg.tail
    assert NF % R == 0
    wreg = lambda f: cfg.wbase + (f % R)*4
    def wreads(f):
        kh, c = divmod(f % NF, NT); return cfg.wread(kh, c, wreg(f))
    def mf(f):
        kh, c = divmod(f % NF, NT); return cfg.mf(kh, c, wreg(f))
    NFIRST = cfg.nfirst
    items = []
    for f in range(0, NF - TAIL):
        g = f + L
        rd = wreads(g) if NFIRST <= g < NF else []
        if f == cfg.xread1_at: rd = rd + cfg.xreads(1)
        ms = []
        if f == 0 and "nostats" not in OPTS: ms += cfg.stats(0)
        if f == NT and "nostats" not in OPTS: ms += cfg.stats(1)
        ms += mf(f)
        items.append((rd, ms))
    issued = set(range(NFIRST)) | {f + L for f in range(0, NF - TAIL) if NFIRST <= f + L < NF}
    assert issued == set(range(NF)), (sorted(set(range(NF)) - issued))
    nm = sum(len(m) for _, m in items)
    out = []
    nd = len(dma)
    st = cfg.dma_start + cfg.dma_skew; en = nm - cfg.dma_endgap
    pos = [st + (en - st)*i // max(nd, 1) for i in range(nd)]
    cnt = 0; di = 0
    for rd, ms in items:
        rq = list(rd)
        for k, m in enumerate(ms):
            if rq:
                take = (len(rq) + (len(ms) - k) - 1) // (len(ms) - k)
                for _ in range(take): out.append(rq.pop(0))
            out.append(m); cnt += 1
            while di < nd and pos[di] <= cnt:
                out += dma[di]; di += 1
    assert di == nd
    if closing_vm is None: out.append("s_waitcnt lgkmcnt(0)")
    elif first_vm is not None:
        out.append("s_cmp_eq_u32 %s, 0" % s(sIter))
        out.append("s_cbranch_scc1 L_first_%s" % rolled_tag)
        out.append("s_waitcnt vmcnt(%d) lgkmcnt(0)" % closing_vm)
        out.append("L_join_%s:" % rolled_tag)
    else: out.append("s_waitcnt vmcnt(%d) lgkmcnt(0)" % closing_vm)
    out.append("s_barrier")
    aux = []
    if not last:
        aux += cfg.addr_update + cfg.xreads(0)
        for f in range(NFIRST): aux += wreads(f)
    if rolled_tag: aux += cfg.scal_update
    tail = []
    for f in range(NF - TAIL, NF): tail += mf(f)
    per = -(-len(aux) // max(len(tail), 1))
    for m in tail:
        out.append(m)
        for _ in range(per):
            if aux: out.append(aux.pop(0))
    out += aux
    if rolled_tag:
        out.append("s_cbranch_scc1 L_loop_%s" % rolled_tag)
    return ["  ; lgextra 2"] + [t if t.endswith(":") else "  " + t for t in out] + ["  ; lgextra 0"]

sCp, sCm = 94, 95
def scal_update(slot, wstep, halo=False):
    t = []
    if "rotk" in OPTS:
        t.append("s_add_u32 %s, %s, 1" % (s(sKC), s(sKC)))
        t.append("s_cmp_eq_u32 %s, 10" % s(sKC))
        t.append("s_cselect_b32 %s, 0, %s" % (s(sKC), s(sKC)))
        t.append("s_lshl_b32 %s, %s, 7" % (s(sSoX), s(sKC)))
        t.append("s_mul_i32 %s, %s, %d" % (s(sSoW), s(sKC), wstep))
    else:
        t.append("s_add_u32 %s, %s, 128" % (s(sSoX), s(sSoX)))
        t.append("s_add_u32 %s, %s, %d" % (s(sSoW), s(sSoW), wstep))
    t.append("s_cmp_eq_u32 %s, %d" % (s(sDSlot), 2*slot))
    t.append("s_cselect_b32 %s, %s, %s" % (s(sRDelta), s(sCm), s(sCp)))
    t.append("s_add_u32 %s, %s, %s" % (s(sDSlot), s(sDSlot), s(sRDelta)))
    t.append("s_add_u32 %s, %s, 1" % (s(sIter), s(sIter)))
    t.append("s_cmp_lt_u32 %s, 8" % s(sIter))
    return t
def addr_update(slot, regs):
    t = []
    t.append("s_cmp_eq_u32 %s, %d" % (s(sDSlot), slot))
    t.append("s_cselect_b32 %s, %s, %s" % (s(sRDelta), s(sCm), s(sCp)))
    for r in regs: t.append("v_add_u32 %s, %s, %s" % (v(r), s(sRDelta), v(r)))
    return t

vL16, vL16b = 241, 245
def w2_soff(p, dst):
    if p < 14: return ["s_mul_i32 %s, %s, 5" % (s(dst), s(sKQ[p])), "s_add_u32 %s, %s, %s" % (s(dst), s(dst), s(sWB))]
    return ["s_mul_i32 %s, %s, 5120" % (s(dst), s(sWave)), "s_add_u32 %s, %s, %s" % (s(dst), s(dst), s(sWB)),
            "s_add_u32 %s, %s, %d" % (s(dst), s(dst), 4*(p-14)*5120)]
def w2l_groups(q0, q1):
    G = []
    for q in range(q0, q1):
        p, ct = divmod(q, 5)
        g = []
        if ct == 0 or q == q0: g += w2_soff(p, sP0)
        g.append("s_add_u32 m0, %s, %d" % (s(sLA if q < 12 else sLB), (q if q < 12 else q - 12)*1024))
        g.append("s_add_u32 %s, %s, %d" % (s(sP1), s(sP0), ct*1024))
        g.append("buffer_load_dwordx4 %s, %s, %s offen sc1 lds" % (v(vL16), sr(sWS,4), s(sP1)))
        G.append(g)
    return G
def w2a_groups(p0, p1):
    G = []
    for p in range(p0, p1):
        base = ((p - 5) % 12)*20
        for ct in range(5):
            g = []
            if ct == 0: g += w2_soff(p, sP0)
            if ct < 4: g.append("buffer_load_dwordx4 %s, %s, %s, %s offen offset:%d sc1" % (ar(base+4*ct,4), v(vL16), sr(sWS,4), s(sP0), ct*1024))
            else:      g.append("buffer_load_dwordx4 %s, %s, %s, %s offen sc1" % (ar(base+16,4), v(vL16b), sr(sWS,4), s(sP0)))
            G.append(g)
    return G
def ph2_setup(e, slot):
    e("s_and_b32 %s, s2, 7" % s(sT0))
    e("s_lshr_b32 %s, s2, 3" % s(sT1))
    e("s_lshr_b32 %s, %s, 3" % (s(sTB), s(sT1)))
    e("s_lshl_b32 %s, %s, 2" % (s(sT0), s(sT0)))
    e("s_add_u32 %s, %s, %s" % (s(sTB), s(sTB), s(sT0)))
    e("s_and_b32 %s, %s, 7" % (s(sC2), s(sT1)))
    e("s_lshr_b32 %s, %s, 1" % (s(sRB2), s(sTB)))
    e("s_lshl_b32 %s, %s, 2" % (s(sRB2), s(sRB2)))
    e("s_mul_i32 %s, %s, %d" % (s(sWB), s(sC2), W2F_CB))
    if "fakecb" in OPTS: e("s_mov_b32 %s, 0" % s(sWB))
    e("s_add_u32 %s, %s, %d" % (s(sWB), s(sWB), W2F_OFF))
    e("s_mul_i32 %s, %s, %d" % (s(sAB), s(sTB), ACT_TB))
    if "faketb" in OPTS: e("s_and_b32 %s, s2, 7" % s(sAB)); e("s_mul_i32 %s, %s, %d" % (s(sAB), s(sAB), ACT_TB))
    if ACT_OFF: e("s_add_u32 %s, %s, %d" % (s(sAB), s(sAB), ACT_OFF))
    e("s_mul_i32 %s, %s, 12288" % (s(sLA), s(sWave)))
    e("s_add_u32 %s, %s, %d" % (s(sLA), s(sLA), slot))
    e("s_mul_i32 %s, %s, 13312" % (s(sLB), s(sWave)))
    e("s_add_u32 %s, %s, %d" % (s(sLB), s(sLB), 2*slot))
    e("s_mul_i32 %s, %s, 7" % (s(sT0), s(sC2)))
    e("s_lshr_b32 %s, %s, 2" % (s(sT0), s(sT0)))
    e("s_and_b32 %s, %s, 3" % (s(sT1), s(sTB)))
    e("s_mul_i32 %s, %s, 7" % (s(sT1), s(sT1)))
    e("s_lshr_b32 %s, %s, 1" % (s(sT1), s(sT1)))
    e("s_add_u32 %s, %s, %s" % (s(sT0), s(sT0), s(sT1)))
    e("s_sub_u32 %s, %s, 14" % (s(sT1), s(sT0)))
    e("s_cmp_ge_u32 %s, 14" % s(sT0))
    e("s_cselect_b32 %s, %s, %s" % (s(sT0), s(sT1), s(sT0)))
    e("s_lshl_b32 %s, %s, 2" % (s(sT0), s(sT0)))
    e("s_add_u32 %s, %s, %s" % (s(sT0), s(sT0), s(sWave)))
    e("s_add_u32 %s, %s, 20" % (s(sT0), s(sT0)))
    for p in range(14):
        e("s_lshl_b32 %s, %s, 10" % (s(sKQ[p]), s(sT0)))
        e("s_cmp_ge_u32 %s, %d" % (s(sT0), NKS))
        e("s_cselect_b32 %s, 0x10000000, %s" % (s(sKQ[p]), s(sKQ[p])))
        if p < 13:
            e("s_add_u32 %s, %s, 4" % (s(sT0), s(sT0)))
            e("s_sub_u32 %s, %s, 56" % (s(sT1), s(sT0)))
            e("s_cmp_ge_u32 %s, 76" % s(sT0))
            e("s_cselect_b32 %s, %s, %s" % (s(sT0), s(sT1), s(sT0)))
    e("v_add_u32 %s, 4096, %s" % (v(vL16b), v(vL16)))
    e("s_lshl_b32 %s, s2, 7" % s(sFL))
    e("s_add_u32 %s, %s, %d" % (s(sFL), s(sFL), FLAG_OFF))

vZero = 249

A_SLOT = 53248; A_XB = 18432; A_WPAIR = 1088
A_XJ = [[0,1,2,3,4],[5,6,7,8,9],[10,11,12,13],[14,15,16,17]]
vWA, vX0, vX1 = 160, 161, 162
vXE, vXOd, vWL = 163, 164, 165
aW, aXF, aONE = 0, 40, 240
aST = 244
def acc_own(T, c): return (T*15 + c)*4
def acc_halo(eidx): return 120 + eidx*4
vSumT = [136, 140]; vSqT = [144, 148]; vSumH, vSqH = 152, 156
def xf(kh, T): return aXF + (kh*3 + T)*4

def x_lane_setup(e, vE, vO):
    e("v_lshrrev_b32 v1, 3, %s" % v(vLane))
    e("v_and_b32 v2, 7, %s" % v(vLane))
    e("v_lshrrev_b32 v3, 4, %s" % v(vLane))
    e("v_mul_u32_u24 v4, 1280, v1")
    e("v_xor_b32 v5, v2, v3")
    e("v_lshl_add_u32 %s, v5, 4, v4" % v(vE))
    e("v_xor_b32 %s, 64, %s" % (v(vO), v(vE)))

def attn_lane_setup(e):
    x_lane_setup(e, vXE, vXOd)
    e("v_cmp_le_u32 vcc, 30, %s" % v(vLane))
    e("v_mov_b32 v9, 0x40000000")
    e("v_cndmask_b32_e64 v6, 0, 1, vcc")
    e("v_cmp_le_u32 vcc, 60, %s" % v(vLane))
    e("v_mul_u32_u24 v7, 30, v6")
    e("v_sub_u32 v7, %s, v7" % v(vLane))
    e("v_mul_u32_u24 v8, 26, v7")
    e("v_lshrrev_b32 v8, 8, v8")
    e("v_mul_u32_u24 v8, 1120, v8")
    e("v_mul_u32_u24 v6, 3840, v6")
    e("v_lshlrev_b32 v7, 4, v7")
    e("v_add3_u32 v6, v6, v7, v8")
    e("s_mul_i32 %s, %s, 160" % (s(sT0), s(sCB)))
    e("v_add_u32 v6, %s, v6" % s(sT0))
    e("v_cndmask_b32_e64 %s, v6, v9, vcc" % v(vWL))

vDO = 166
def attn_dma_list(w):
    L = []
    for grp in ([[0,1],[2,3,4]], [[5,6,7,8],[9]], [[10,11,12,13]], [[14,15,16,17]])[w]:
        for m, j in enumerate(grp):
            imm = m*1024
            L.append(("x", j*1024 if m == 0 else None, imm, vXOd if j & 1 else vXE, (j*8*1280 if j < 2 else (j-2)*8*1280) - imm, j < 2, w == 0 and j == 0))
    kh = w >> 1; rd = w & 1
    for m in range(8):
        k = 32*kh + 8*(m >> 1) + 4*rd + 2*(m & 1)
        L.append(("w", A_XB + (8*w + m)*A_WPAIR if m % 4 == 0 else None, (m & 3)*A_WPAIR, vWL, k*3840 - (m & 3)*A_WPAIR, False, False))
    return L
def ffn_dma_list(w):
    L = []
    for m in range(4):
        j = 4*w + m
        L.append(("x", 4*w*1024 if m == 0 else None, m*1024, fXOd if j & 1 else fXE, j*8*1280 - m*1024, False, False))
    for m in range(8):
        kh, grp = m >> 2, m & 3
        k = 32*kh + 16*(grp & 1) + 4*(grp >> 1)
        L.append(("w", F_XB + w*8192 + m*1024 if m % 4 == 0 else None, (m & 3)*1024, fWL, k*3456 + w*128 - (m & 3)*1024, False, False))
    return L
def dma_groups_salu(L):
    G = []; tmp = [sD0, sD1]
    for n, (kind, m0c, imm, lane, uc, halo, mask) in enumerate(L):
        g = []; t = tmp[n & 1]
        if m0c is not None: g.append("s_add_u32 m0, %s, %d" % (s(sDSlot), m0c))
        if kind == "x":
            g.append("s_add_u32 %s, %s, %s" % (s(t), s(sSoX), s(sXH if halo else sXO)))
            if uc: g.append("s_add_u32 %s, %s, %d" % (s(t), s(t), uc))
        else: g.append("s_add_u32 %s, %s, %d" % (s(t), s(sSoW), uc))
        if mask: g.append("s_mov_b32 exec_lo, 0xffffff00")
        g.append("buffer_load_dwordx4 %s, %s, %s offen offset:%d lds" % (v(lane), sr(sX if kind == "x" else sW,4), s(t), imm))
        if mask: g.append("s_mov_b32 exec_lo, -1")
        G.append(g)
    return G
def dma_offsets_setup(e, L, base):
    for n, (kind, m0c, imm, lane, uc, halo, mask) in enumerate(L):
        if kind == "x":
            e("s_add_u32 %s, %s, %d" % (s(sD0), s(sXH if halo else sXO), uc))
            e("v_add_u32 %s, %s, %s" % (v(base+n), s(sD0), v(lane)))
        else:
            e("v_add_u32 %s, %d, %s" % (v(base+n), uc, v(lane)))
def dma_groups_vgpr(L, base):
    G = []
    for n, (kind, m0c, imm, lane, uc, halo, mask) in enumerate(L):
        g = []
        if m0c is not None:
            m0 = "s_add_u32 m0, %s, %d" % (s(sDSlot), m0c)
            if G: G[-1].append(m0)
            else: G.append([m0])
        if mask: g.append("s_mov_b32 exec_lo, 0xffffff00")
        g.append("buffer_load_dwordx4 %s, %s, %s offen offset:%d lds" % (v(base+n), sr(sX if kind == "x" else sW,4), s(sSoX if kind == "x" else sSoW), imm))
        if mask: g.append("s_mov_b32 exec_lo, -1")
        G.append(g)
    return G

def attn_cfg(w):
    cfg = Cfg()
    cfg.ntile = 15; cfg.ring = 10; cfg.look = 6; cfg.tail = 4; cfg.nfirst = 6; cfg.wbase = aW
    H = {w: 0, 5 + w: 1, 10 + w: 2}
    if w < 3: H[(4, 9, 14)[w]] = 3
    def wread(kh, c, reg):
        off = kh*16*A_WPAIR + 32*c
        return ["ds_read_b64_tr_b16 %s, %s offset:%d" % (ar(reg,2), v(vWA), off),
                "ds_read_b64_tr_b16 %s, %s offset:%d" % (ar(reg+2,2), v(vWA), off + 8*A_WPAIR)]
    def mf(kh, c, reg):
        out = []
        for T in (0, 1):
            d = vr(acc_own(T, c), 4)
            if c < 10: out.append("%s %s, %s, %s, %s" % (MFMA, d, ar(reg,4), ar(xf(kh,T),4), d))
            else:      out.append("%s %s, %s, %s, %s" % (MFMA, d, ar(xf(kh,T),4), ar(reg,4), d))
        if c in H and "nohalo" not in OPTS:
            d = vr(acc_halo(H[c]), 4)
            if c < 10: out.append("%s %s, %s, %s, %s" % (MFMA, d, ar(reg,4), ar(xf(kh,2),4), d))
            else:      out.append("%s %s, %s, %s, %s" % (MFMA, d, ar(xf(kh,2),4), ar(reg,4), d))
        return out
    def stats(kh):
        out = []
        for T in (0, 1):
            out.append("%s %s, %s, %s, %s" % (MFMA, vr(vSumT[T],4), ar(aONE,4), ar(xf(kh,T),4), vr(vSumT[T],4)))
            out.append("%s %s, %s, %s, %s" % (MFMA, vr(vSqT[T],4), ar(xf(kh,T),4), ar(xf(kh,T),4), vr(vSqT[T],4)))
        if w == 3:
            out.append("%s %s, %s, %s, %s" % (MFMA, vr(vSumH,4), ar(aONE,4), ar(xf(kh,2),4), vr(vSumH,4)))
            out.append("%s %s, %s, %s, %s" % (MFMA, vr(vSqH,4), ar(xf(kh,2),4), ar(xf(kh,2),4), vr(vSqH,4)))
        return out
    def xreads(kh):
        ad = vX1 if kh else vX0
        return ["ds_read_b128 %s, %s offset:%d" % (ar(xf(kh,0),4), v(ad), (1+2*w)*2048),
                "ds_read_b128 %s, %s offset:%d" % (ar(xf(kh,1),4), v(ad), (2+2*w)*2048),
                "ds_read_b128 %s, %s offset:%d" % (ar(xf(kh,2),4), v(ad), 0)]
    cfg.wread = wread; cfg.mf = mf; cfg.stats = stats; cfg.xreads = xreads
    cfg.xread1_at = 4
    cfg.addr_update = addr_update(A_SLOT, [vWA, vX0, vX1])
    cfg.scal_update = scal_update(A_SLOT, 64*3840, halo=(w == 0))
    cfg.dma_start = 2; cfg.dma_skew = w; cfg.dma_endgap = 8
    cfg.wstep = 64*3840; cfg.slot = A_SLOT
    return cfg

def xaddr_setup(e, X0, X1, base):
    e("v_and_b32 v1, 15, %s" % v(vLane))
    e("v_lshrrev_b32 v4, 4, %s" % v(vLane))
    e("v_lshrrev_b32 v2, 1, v1")
    e("v_xor_b32 v2, v2, v4")
    e("v_lshlrev_b32 v2, 4, v2")
    e("v_lshl_add_u32 v2, v1, 7, v2")
    e("v_add_u32 %s, %d, v2" % (v(X0), base))
    e("v_xor_b32 v2, 64, v2")
    e("v_add_u32 %s, %d, v2" % (v(X1), base))

def read_addr_setup_attn(e):
    e("v_and_b32 v1, 15, %s" % v(vLane))
    e("v_lshrrev_b32 v2, 2, v1")
    e("v_and_b32 v3, 3, v1")
    e("v_lshrrev_b32 v4, 4, %s" % v(vLane))
    e("v_lshrrev_b32 v5, 1, v2")
    e("v_lshl_add_u32 v5, v4, 1, v5")
    e("v_mul_u32_u24 v5, %d, v5" % A_WPAIR)
    e("v_and_b32 v2, 1, v2")
    e("v_mul_u32_u24 v2, 480, v2")
    e("v_lshlrev_b32 v3, 3, v3")
    e("v_add3_u32 v5, v5, v2, v3")
    e("v_add_u32 %s, %d, v5" % (v(vWA), A_XB))
    xaddr_setup(e, vX0, vX1, 0)

sSzO, sSz2 = 69, 70
sQ = 72
vPFo, vPFd = 182, 183
def coop_setup(e, w):
    e("s_lshr_b32 %s, s2, 3" % s(sT0)); e("s_sub_u32 %s, %s, 16" % (s(sT0), s(sT0)))
    e("s_and_b32 %s, s2, 1" % s(sT1))
    e("s_and_b32 %s, s2, 7" % s(sT2)); e("s_lshr_b32 %s, %s, 1" % (s(sT2), s(sT2)))
    e("v_mov_b32 v3, 0x40000000")
    if w < 2:
        e("s_mul_i32 %s, %s, 75" % (s(sT0), s(sT0)))
        e("s_lshl_b32 %s, %s, 10" % (s(sT1), s(sT1)))
        e("s_add_u32 %s, %s, %s" % (s(sT0), s(sT0), s(sT1)))
        e("s_add_u32 %s, %s, %d" % (s(sT0), s(sT0), (38*w - 16) & 0xffffffff))
        e("v_add_u32 v1, %s, %s" % (s(sT0), v(vLane)))
        e("v_max_i32 v1, 0, v1")
        e("v_mul_u32_u24 v1, 1280, v1")
        e("v_cmp_gt_u32 vcc, 38, %s" % v(vLane))
    elif w == 2:
        e("s_mul_i32 %s, %s, 42" % (s(sT0), s(sT0)))
        e("v_add_u32 v1, %s, %s" % (s(sT0), v(vLane)))
        e("v_mul_u32_u24 v2, 7282, v1"); e("v_lshrrev_b32 v2, 16, v2")
        e("v_mul_u32_u24 v4, 9, v2"); e("v_sub_u32 v4, v1, v4")
        e("v_mul_u32_u24 v5, 86, v4"); e("v_lshrrev_b32 v5, 8, v5")
        e("v_mul_u32_u24 v6, 3, v5"); e("v_sub_u32 v6, v4, v6")
        e("s_mul_i32 %s, %s, 320" % (s(sT2), s(sT2))); e("s_lshr_b32 %s, %s, 7" % (s(sT2), s(sT2)))
        e("v_add_u32 v6, %s, v6" % s(sT2))
        e("v_mul_u32_u24 v1, 3840, v2"); e("v_mul_u32_u24 v5, 1280, v5")
        e("v_lshl_add_u32 v1, v6, 7, v1"); e("v_add_u32 v1, v1, v5")
        e("v_cmp_gt_u32 vcc, 42, %s" % v(vLane))
    else:
        e("s_mul_i32 %s, %s, 55" % (s(sT0), s(sT0)))
        e("v_add_u32 v1, %s, %s" % (s(sT0), v(vLane)))
        e("v_mul_u32_u24 v2, 5462, v1"); e("v_lshrrev_b32 v2, 16, v2")
        e("v_mul_u32_u24 v4, 12, v2"); e("v_sub_u32 v4, v1, v4")
        e("s_mul_i32 %s, %s, 14" % (s(sT2), s(sT2))); e("s_lshr_b32 %s, %s, 3" % (s(sT2), s(sT2))); e("s_lshl_b32 %s, %s, 2" % (s(sT2), s(sT2)))
        e("v_add_u32 v4, %s, v4" % s(sT2))
        e("v_mul_u32_u24 v1, 3456, v2"); e("v_lshl_add_u32 v1, v4, 7, v1")
        e("v_cmp_gt_u32 vcc, 55, %s" % v(vLane))
    e("v_cndmask_b32_e64 %s, v3, v1, vcc" % v(vPFo))
COOP_D = 4
sSoQ = 44
def coop_load(w, extra_chunks):
    if w < 2: return ["buffer_load_dword %s, %s, %s, %s offen offset:%d ; rare" % (v(vPFd), v(vPFo), sr(sX,4), s(sSoX), 128*extra_chunks)]
    st_ = 64*3840 if w == 2 else 64*3456
    return ["s_add_u32 %s, %s, %d" % (s(sD1), s(sSoQ if w == 2 else sSoW), extra_chunks*st_),
            "buffer_load_dword %s, %s, %s, %s offen ; rare" % (v(vPFd), v(vPFo), sr(sQ if w == 2 else sW,4), s(sD1))]
def zero_acc(e, n):
    for i in range(4): e("v_mov_b32 %s, 0" % v(246 if False else 232+i))
    k = 0
    while k + 16 <= n:
        e("v_mfma_f32_32x32x16_bf16 %s, v[232:235], v[232:235], 0" % vr(k,16)); k += 16
    while k < n:
        e("v_mov_b32 %s, 0" % v(k)); k += 1
def role_main(e, tag, cfg, L, dobase, w, zero_n, extra_pre=None, units=False):
    wstep, slot = cfg.wstep, cfg.slot
    nd = len(L)
    coop = tag.startswith("ffn") and "coop" in OPTS
    def set_soff():
        e("s_lshl_b32 %s, %s, 7" % (s(sSoX), s(sKC)))
        e("s_mul_i32 %s, %s, %d" % (s(sSoW), s(sKC), wstep))
    def adv():
        e("s_add_u32 %s, %s, 1" % (s(sKC), s(sKC)))
        if "rotk" in OPTS:
            e("s_cmp_eq_u32 %s, 10" % s(sKC))
            e("s_cselect_b32 %s, 0, %s" % (s(sKC), s(sKC)))
    set_soff()
    e("s_mov_b32 %s, 0" % s(sDSlot))
    for g in dma_groups_salu(L): e.ext(g)
    stamp(e, 1)
    e("v_lshlrev_b32 %s, 4, %s" % (v(vL16), v(vLane)))
    if units:
        unit_setup_dyn(e)
        e("s_mov_b32 %s, %d" % (s(sSzO), WO_BYTES)); e("s_mov_b32 %s, %d" % (s(sSz2), W2_BYTES))
        e("s_mov_b32 %s, %d" % (s(sUl), 3*slot))
        unit_loads_dyn(e)
    adv(); set_soff()
    e("s_mov_b32 %s, %d" % (s(sDSlot), slot))
    for g in dma_groups_salu(L): e.ext(g)
    npre = 0
    if coop:
        coop_setup(e, w)
        if w == 2: e("s_mov_b32 %s, %d" % (s(sSoQ), 64*3840))
        for x in range(1, COOP_D + 1):
            e.ext(coop_load(w, x)); npre += 1
    if extra_pre: extra_pre(e)
    dma_offsets_setup(e, L, dobase)
    zero_acc(e, zero_n)
    e("v_mov_b32 v254, 0x3f803f80")
    for i in range(4): e("v_accvgpr_write_b32 %s, v254" % a(aONE+i))
    e("v_mov_b32 %s, 0" % v(vZero))
    ph2_setup(e, slot)
    adv(); set_soff()
    e("s_mov_b32 %s, %d" % (s(sDSlot), 2*slot))
    e("s_mov_b32 %s, %d" % (s(sCp), slot))
    e("s_mov_b32 %s, %d" % (s(sCm), (-2*slot) & 0xffffffff))
    e("s_mov_b32 %s, 0" % s(sIter))
    if coop and w == 2: e("s_mov_b32 %s, %d" % (s(sSoQ), 2*64*3840))
    stamp(e, 2)
    e("s_waitcnt vmcnt(%d) lgkmcnt(0)" % (nd + npre))
    e("s_barrier")
    stamp(e, 3)
    R = cfg.ring
    e.ext(cfg.xreads(0))
    for f in range(cfg.nfirst):
        e.ext(cfg.wread(0, f, cfg.wbase + (f % R)*4))
    dma = dma_groups_vgpr(L, dobase)
    if "nopoll" not in OPTS:
        pg = ["s_cmp_lg_u32 %s, 6 ; rare" % s(sIter), "s_cbranch_scc0 L_pp_%s ; rare" % tag, "L_np_%s:" % tag]
        side = ["L_pp_%s:" % tag, "  buffer_load_dwordx2 %s, %s, %s, 0 offen sc1 ; rare" % (vr(vNon,2), v(vZero), sr(sDBG,4)), "  s_branch L_np_%s ; rare" % tag]
        if units:
            us = E(); unit_store_dyn(us, 216, full_wait=True)
            pg += ["s_cmp_lg_u32 %s, 1 ; rare" % s(sIter), "s_cbranch_scc0 L_pu_%s ; rare" % tag, "L_nu_%s:" % tag]
            side += ["L_pu_%s:" % tag] + us.L + ["  s_branch L_nu_%s" % tag]
        if units and w == 0:
            sg = E(); signal_count(sg, CNT_P)
            pg += ["s_cmp_lg_u32 %s, 3 ; rare" % s(sIter), "s_cbranch_scc0 L_ps_%s ; rare" % tag, "L_ns_%s:" % tag]
            side += ["L_ps_%s:" % tag] + sg.L + ["  s_branch L_ns_%s ; rare" % tag]
        dma = [pg] + dma
    else: side = []
    ncl = nd
    if coop:
        g = coop_load(w, COOP_D)
        if w == 2: g.append("s_add_u32 %s, %s, %d" % (s(sSoQ), s(sSoQ), 64*3840))
        dma = dma + [g]; ncl = nd + 2
    if "nodma" in OPTS: dma = []
    first_vm = None
    if coop:
        first_vm = min(63, nd + 1 + npre)
        side += ["L_first_%s:" % tag, "  s_waitcnt vmcnt(%d) lgkmcnt(0) ; rare" % first_vm, "  s_branch L_join_%s ; rare" % tag]
    body = chunk_body(cfg, dma, rolled_tag=tag, closing_vm=ncl if "nodma" not in OPTS else 0, first_vm=first_vm)
    post = E()
    stamp(post, 4)
    if "nopoll" not in OPTS:
        get_nonce(post, tag, 250, have_first=vNon)
        spin_count(post, "p_" + tag, CNT_P, N_P, 250, have_first=vNon+1)
    if "ph1only" in OPTS:
        post.ext(chunk_body(cfg, [], closing_vm=0))
        post.ext(chunk_body(cfg, [], last=True, closing_vm=None))
    else:
        post.ext(chunk_body(cfg, w2l_groups(0, 12), closing_vm=12))
        post.ext(chunk_body(cfg, w2l_groups(12, 25), last=True, closing_vm=None))
    stamp(post, 5)
    return body, post, side

A_ND = [13, 13, 12, 12]

X_CS = 0
X_NM = 1024
X_RS = 2048
X_EX = 4096
vQp = 160
vKA, vKB, vKP = 180, 190, 200
vVp = 210
NEG = 0xf149f2ca
def stats_finalize(e, vsum, vsq, vt, out_nm, out_rs, out_std, smask):
    e("v_cndmask_b32_e64 %s, 0, %s, %s" % (v(vt), v(vsq+0), sr(smask,2)))
    for r in (1,2,3):
        e("v_cndmask_b32_e64 %s, %s, %s, %s" % (v(vt), v(vt), v(vsq+r), sr(smask+2*r,2)))
    e("v_mov_b32 %s, %s" % (v(vt+1), v(vt)))
    e("v_permlane32_swap_b32 %s, %s" % (v(vt), v(vt+1)))
    e("v_add_f32 %s, %s, %s" % (v(vt), v(vt), v(vt+1)))
    e("v_mov_b32 %s, %s" % (v(vt+1), v(vt)))
    e("v_permlane16_swap_b32 %s, %s" % (v(vt), v(vt+1)))
    e("v_add_f32 %s, %s, %s" % (v(vt), v(vt), v(vt+1)))
    e("v_mul_f32 %s, 0x%08x, %s" % (v(out_nm), f2u(-1.0/640), v(vsum)))
    e("v_mul_f32 %s, 0x%08x, %s" % (v(vt), f2u(1.0/640), v(vt)))
    e("v_fma_f32 %s, -%s, %s, %s" % (v(vt), v(out_nm), v(out_nm), v(vt)))
    e("v_max_f32 %s, 0, %s" % (v(vt), v(vt)))
    e("v_add_f32 %s, 0x%08x, %s" % (v(vt), f2u(1e-5), v(vt)))
    e("v_rsq_f32 %s, %s" % (v(out_rs), v(vt)))
    if out_std is not None:
        e("v_mul_f32 %s, %s, %s" % (v(out_std), v(vt), v(out_rs)))


def attn_stash(e):
    e("v_and_b32 v1, 15, %s" % v(vLane))
    e("v_lshrrev_b32 v2, 4, %s" % v(vLane))
    e("v_lshlrev_b32 v3, 2, v2")
    e("v_sub_u32 v3, v1, v3")
    e("v_and_b32 v4, 1, v1")
    e("v_mov_b32 v5, 0x%08x" % NEG)
    e("v_cmp_eq_u32 %s, 0, v4" % sr(sM+14,2))
    for r in range(4):
        e("v_subrev_u32 v6, %d, v3" % r)
        e("v_cmp_le_i32 %s, 0, v6" % sr(sM+16,2))
        if r & 1: e("s_andn2_b64 %s, exec, %s" % (sr(sM+18,2), sr(sM+14,2)))
        else:     e("s_mov_b64 %s, %s" % (sr(sM+18,2), sr(sM+14,2)))
        e("s_and_b64 %s, %s, %s" % (sr(sM+20,2), sr(sM+18,2), sr(sM+16,2)))
        e("s_andn2_b64 %s, %s, %s" % (sr(sM+22,2), sr(sM+18,2), sr(sM+16,2)))
        e("v_cndmask_b32_e64 v7, v5, 0, %s" % sr(sM+22,2)); e("v_accvgpr_write_b32 %s, v7" % a(aST+r))
        e("v_cndmask_b32_e64 v8, v5, 0, %s" % sr(sM+20,2)); e("v_accvgpr_write_b32 %s, v8" % a(aST+4+r))
    e("v_sub_u32 v6, v3, v4")
    e("v_mov_b32 v9, 0x0c0c0100"); e("v_mov_b32 v10, 0x01000c0c")
    e("v_cndmask_b32_e64 v9, v10, v9, %s" % sr(sM+14,2))
    e("v_mov_b32 v10, 0x0c0c0302"); e("v_mov_b32 v11, 0x03020c0c")
    e("v_cndmask_b32_e64 v10, v11, v10, %s" % sr(sM+14,2))
    e("v_mov_b32 v11, 0x0c0c0c0c")
    e("v_cmp_le_i32 %s, 0, v6" % sr(sM+16,2))
    e("v_cndmask_b32_e64 v12, v9, v11, %s" % sr(sM+16,2)); e("v_accvgpr_write_b32 %s, v12" % a(aST+8))
    e("v_cndmask_b32_e64 v13, v11, v9, %s" % sr(sM+16,2)); e("v_accvgpr_write_b32 %s, v13" % a(aST+10))
    e("v_cmp_le_i32 %s, 2, v6" % sr(sM+16,2))
    e("v_cndmask_b32_e64 v12, v10, v11, %s" % sr(sM+16,2)); e("v_accvgpr_write_b32 %s, v12" % a(aST+9))
    e("v_cndmask_b32_e64 v13, v11, v10, %s" % sr(sM+16,2)); e("v_accvgpr_write_b32 %s, v13" % a(aST+11))

def attn_epilogue(e):
    R = " ; rare"
    tNM = [240, 242]; tRS = [244, 246]; tSTD = [248, 249]
    vt = 166
    smask = sM
    A1, A2, A3, A4, A5, A6 = 176, 177, 178, 179, 250, 254
    ML = {1: 160, 2: 161, 3: 162}; MH = {0: 163, 1: 164, 2: 165}
    for r in range(4):
        e("s_mov_b32 %s, 0x%08x" % (s(smask+2*r), 0x00100001 << r))
        e("s_mov_b32 %s, 0x%08x" % (s(smask+2*r+1), 0x10000100 << r))
    e("v_and_b32 v253, 15, %s" % v(vLane))
    e("v_lshlrev_b32 v253, 2, v253")
    e("v_lshrrev_b32 v252, 4, %s" % v(vLane))
    e("s_lshl_b32 %s, %s, 7" % (s(sT0), s(sWave)))
    e("s_lshl_b32 %s, %s, 6" % (s(sT1), s(sWave)))
    e("v_add_u32 %s, %s, v253" % (v(A1), s(sT0)))
    e("v_add_u32 %s, %s, v253" % (v(A4), s(sT1)))
    for T in (0, 1):
        stats_finalize(e, vSumT[T], vSqT[T], vt, tNM[T], tRS[T], tSTD[T], smask)
        e("ds_write_b32 %s, %s offset:%d" % (v(A1), v(tNM[T]), X_NM + 64 + T*64))
        e("ds_write_b32 %s, %s offset:%d" % (v(A1), v(tRS[T]), X_RS + 64 + T*64))
    for h in (1, 2, 3):
        e("v_cmp_le_u32 %s, %d, v252" % (sr(sM+16,2), h))
        e("v_cndmask_b32_e64 %s, 0, -1, %s" % (v(ML[h]), sr(sM+16,2)))
    for h in (0, 1, 2): e("v_not_b32 %s, %s" % (v(MH[h]), v(ML[h+1])))
    e("v_lshlrev_b32 v252, 4, v252")
    e("v_add_u32 %s, %s, v252" % (v(A2), s(sT0)))
    e("v_add_u32 %s, %s, v252" % (v(A3), s(sT1)))
    e("s_cmp_lg_u32 %s, 3" % s(sWave))
    e("s_cbranch_scc1 L_nohs")
    hs = E(); stats_finalize(hs, vSumH, vSqH, vt, 136, 137, None, smask)
    hs("ds_write_b32 v253, v136 offset:%d" % X_NM); hs("ds_write_b32 v253, v137 offset:%d" % X_RS)
    HS = process(hs.L, State(), [])
    tmp = []; process(hs.L, State(), tmp)
    for t in tmp: e.L.append(t + R)
    e.lab("L_nohs")
    e("s_cmp_lg_u32 %s, 0" % s(sCB))
    e("s_cbranch_scc1 L_nors")
    e("s_lshl_b32 %s, %s, 9" % (s(sT2), s(sRB)) + R)
    e("s_add_u32 %s, %s, %s" % (s(sT2), s(sT2), s(sT0)) + R)
    e("s_add_u32 %s, %s, %d" % (s(sT2), s(sT2), RSTD_OFF) + R)
    e("buffer_store_dword %s, v253, %s, %s offen sc1" % (v(tRS[0]), sr(sWS,4), s(sT2)) + R)
    e("buffer_store_dword %s, v253, %s, %s offen offset:64 sc1" % (v(tRS[1]), sr(sWS,4), s(sT2)) + R)
    e.lab("L_nors")
    e("s_mov_b32 exec_lo, 0x00010001"); e("s_mov_b32 exec_hi, 0x00010001")
    e("ds_write_b128 %s, %s offset:%d" % (v(A3), vr(acc_halo(0),4), X_CS))
    e("ds_write_b128 %s, %s offset:%d" % (v(A3), vr(acc_halo(1),4), X_CS + 5*64))
    e("s_cmp_gt_u32 %s, 1" % s(sWave))
    e("s_cbranch_scc1 L_e3a")
    e("s_mul_i32 %s, %s, 320" % (s(sT2), s(sWave)) + R)
    e("v_add_u32 v167, %s, v252" % s(sT2) + R)
    e("ds_write_b128 v167, %s offset:%d" % (vr(acc_halo(3),4), X_CS + 4*64) + R)
    e.lab("L_e3a")
    e("s_mov_b32 exec_lo, 0x0000ffff"); e("s_mov_b32 exec_hi, 0")
    e("ds_write_b32 %s, %s offset:%d" % (v(A4), v(acc_halo(2)), X_CS + 10*64))
    e("s_cmp_lg_u32 %s, 2" % s(sWave))
    e("s_cbranch_scc1 L_e3b")
    e("ds_write_b32 v253, %s offset:%d" % (v(acc_halo(3)), X_CS + 14*64) + R)
    e.lab("L_e3b")
    e("s_mov_b64 exec, -1")
    e("v_lshlrev_b32 v251, 3, %s" % v(vLane))
    e("s_lshl_b32 %s, %s, 9" % (s(sT2), s(sWave)))
    e("v_add_u32 %s, %s, v251" % (v(A5), s(sT2)))
    e("s_mul_i32 %s, %s, 5120" % (s(sT2), s(sWave)))
    e("v_add_u32 %s, %s, v251" % (v(A6), s(sT2)))
    e("s_waitcnt lgkmcnt(0)")
    e("s_barrier")
    if "epst" in OPTS: stamp(e, 8)
    CS4 = lambda c: 200 + 4*c
    nm4 = [136, 140]; rs4 = [144, 148]
    tHN, tHR = 152, 154
    csK = 156
    hn4, hr4 = 168, 172
    for c in range(5): e("ds_read_b128 %s, v252 offset:%d" % (vr(CS4(c),4), X_CS + c*64))
    e("ds_read_b32 %s, v253 offset:%d" % (v(tHN), X_NM))
    e("ds_read_b32 %s, v253 offset:%d" % (v(tHR), X_RS))
    for c in range(5, 10): e("ds_read_b128 %s, v252 offset:%d" % (vr(CS4(c),4), X_CS + c*64))
    e("ds_read_b128 %s, %s offset:%d" % (vr(csK,4), v(A3), X_CS + 5*64))
    def pkfma_bc(d, s0, sc, sfx=""):
        e("v_pk_fma_f32 %s, %s, %s, %s op_sel_hi:[1,0,1]%s" % (vr(d,2), vr(s0,2), vr(sc,2), vr(d,2), sfx))
    def pkmul_bc(d, sc, sfx=""):
        e("v_pk_mul_f32 %s, %s, %s op_sel_hi:[1,0]%s" % (vr(d,2), vr(d,2), vr(sc,2), sfx))
    t0, t1 = 166, 167
    for c in range(5):
        for T in (0, 1):
            d = acc_own(T, c); b = acc_own(T, 0)
            pkfma_bc(d, CS4(c), tNM[T]); pkfma_bc(d+2, CS4(c)+2, tNM[T])
            if c == 0:
                e("v_cvt_pk_bf16_f32 %s, %s, %s" % (v(d), v(d), v(d+1))); e("v_cvt_pk_bf16_f32 %s, %s, %s" % (v(d+1), v(d+2), v(d+3)))
            elif c == 4:
                e("v_cvt_pk_bf16_f32 %s, %s, %s" % (v(b+14), v(d), v(d+1))); e("v_cvt_pk_bf16_f32 %s, %s, %s" % (v(b+15), v(d+2), v(d+3)))
            else:
                e("v_cvt_pk_bf16_f32 %s, %s, %s" % (v(t0), v(d), v(d+1))); e("v_cvt_pk_bf16_f32 %s, %s, %s" % (v(t1), v(d+2), v(d+3)))
                e("v_and_b32 %s, %s, %s" % (v(d), v(t0), v(ML[c]))); e("v_and_b32 %s, %s, %s" % (v(d+1), v(t1), v(ML[c])))
                e("v_and_b32 %s, %s, %s" % (v(b+4*(c-1)+2), v(t0), v(MH[c-1]))); e("v_and_b32 %s, %s, %s" % (v(b+4*(c-1)+3), v(t1), v(MH[c-1])))
    for T in (0, 1):
        e("ds_read_b128 %s, %s offset:%d" % (vr(nm4[T],4), v(A2), X_NM + 64 + T*64))
        e("ds_read_b128 %s, %s offset:%d" % (vr(rs4[T],4), v(A2), X_RS + 64 + T*64))
    e("ds_read_b128 %s, v252 offset:%d" % (vr(hn4,4), X_NM))
    e("ds_read_b128 %s, v252 offset:%d" % (vr(hr4,4), X_RS))
    if "epst" in OPTS: stamp(e, 9)
    csd = [16, 18, 76, 78, 20]; csdW = 22
    for c in range(5, 10):
        for T in (0, 1):
            d = acc_own(T, c)
            pkfma_bc(d, CS4(c), tNM[T]); pkfma_bc(d+2, CS4(c)+2, tNM[T])
            pkmul_bc(d, tRS[T]); pkmul_bc(d+2, tRS[T])
            dst = (vKA, vKB)[T] + 2*(c-5)
            e("v_cvt_pk_bf16_f32 %s, %s, %s" % (v(dst), v(d), v(d+1)))
            e("v_cvt_pk_bf16_f32 %s, %s, %s" % (v(dst+1), v(d+2), v(d+3)))
        e("ds_write_b64 %s, %s offset:%d" % (v(A6), vr(vKB+2*(c-5),2), X_EX + 5120 + (c-5)*512))
        if c == 5:
            for i in range(5): e("ds_read_b32 %s, v253 offset:%d" % (v(csd[i]), X_CS + (10+i)*64))
            e("ds_read_b32 %s, %s offset:%d" % (v(csdW), v(A4), X_CS + 10*64))
    d = acc_halo(1)
    pkfma_bc(d, csK, tHN); pkfma_bc(d+2, csK+2, tHN); pkmul_bc(d, tHR); pkmul_bc(d+2, tHR)
    e("v_cvt_pk_bf16_f32 %s, %s, %s" % (v(d), v(d), v(d+1))); e("v_cvt_pk_bf16_f32 %s, %s, %s" % (v(d+1), v(d+2), v(d+3)))
    e("ds_write_b64 %s, %s offset:%d" % (v(A5), vr(d,2), X_EX))
    e("s_cmp_lg_u32 %s, 1" % s(sWave))
    e("s_cbranch_scc1 L_e3k")
    d = acc_halo(3)
    pkfma_bc(d, CS4(9), tHN, R); pkfma_bc(d+2, CS4(9)+2, tHN, R); pkmul_bc(d, tHR, R); pkmul_bc(d+2, tHR, R)
    e("v_cvt_pk_bf16_f32 %s, %s, %s" % (v(d), v(d), v(d+1)) + R); e("v_cvt_pk_bf16_f32 %s, %s, %s" % (v(d+1), v(d+2), v(d+3)) + R)
    e("ds_write_b64 v251, %s offset:%d" % (vr(d,2), X_EX + 4*512) + R)
    e.lab("L_e3k")
    def vtile(d, nm, rs, cd, sfx=""):
        for h_ in (0, 2):
            e("v_pk_fma_f32 %s, %s, %s, %s op_sel_hi:[1,0,1]%s" % (vr(d+h_,2), vr(nm+h_,2), vr(cd,2), vr(d+h_,2), sfx))
            e("v_pk_mul_f32 %s, %s, %s%s" % (vr(d+h_,2), vr(d+h_,2), vr(rs+h_,2), sfx))
    for i in range(5):
        c = 10 + i
        for T in (0, 1):
            d = acc_own(T, c)
            vtile(d, nm4[T], rs4[T], csd[i])
            dst = vVp + 6*i + 2 + 2*T
            e("v_cvt_pk_bf16_f32 %s, %s, %s" % (v(dst), v(d), v(d+1)))
            e("v_cvt_pk_bf16_f32 %s, %s, %s" % (v(dst+1), v(d+2), v(d+3)))
        e("ds_write_b64 %s, %s offset:%d" % (v(A6), vr(vVp+6*i+4,2), X_EX + 5120 + (5+i)*512))
    d = acc_halo(2)
    vtile(d, hn4, hr4, csdW)
    e("v_cvt_pk_bf16_f32 %s, %s, %s" % (v(d), v(d), v(d+1))); e("v_cvt_pk_bf16_f32 %s, %s, %s" % (v(d+1), v(d+2), v(d+3)))
    e("ds_write_b64 %s, %s offset:%d" % (v(A5), vr(d,2), X_EX + 5*512))
    e("s_cmp_lg_u32 %s, 2" % s(sWave))
    e("s_cbranch_scc1 L_e3v")
    d = acc_halo(3)
    vtile(d, hn4, hr4, csd[4], R)
    e("v_cvt_pk_bf16_f32 %s, %s, %s" % (v(d), v(d), v(d+1)) + R); e("v_cvt_pk_bf16_f32 %s, %s, %s" % (v(d+1), v(d+2), v(d+3)) + R)
    e("s_nop 1" + R)
    e("ds_write_b64 v251, %s offset:%d" % (vr(d,2), X_EX + 9*512) + R)
    e.lab("L_e3v")
    if "epst" in OPTS: stamp(e, 10)
    vBP, vBC, vBPA, vSel = 20, 24, 28, 32
    for r in range(4):
        e("v_accvgpr_read_b32 %s, %s" % (v(vBP+r), a(aST+r)))
        e("v_accvgpr_read_b32 %s, %s" % (v(vBC+r), a(aST+4+r)))
        e("v_accvgpr_read_b32 %s, %s" % (v(vSel+r), a(aST+8+r)))
    e("s_or_b32 %s, %s, %s" % (s(sT2), s(sWave), s(sRB)))
    e("s_cmp_eq_u32 %s, 0" % s(sT2))
    e("s_cselect_b32 %s, -1, 0" % s(sM+16)); e("s_cselect_b32 %s, -1, 0" % s(sM+17))
    e("v_mov_b32 v36, 0x%08x" % NEG)
    for r in range(4): e("v_cndmask_b32_e64 %s, %s, v36, %s" % (v(vBPA+r), v(vBP+r), sr(sM+16,2)))
    cF = [37, 38]
    for T in (0, 1):
        e("v_mul_f32 %s, 0x%08x, %s" % (v(cF[T]), f2u((20.0 ** -0.5) * 1.4426950408889634), v(tRS[T])))
    e("s_mov_b32 %s, 0xffff" % s(sM+8)); e("s_mov_b32 %s, 0" % s(sM+9))
    e("s_mov_b32 %s, -1" % s(sM+10)); e("s_mov_b32 %s, 0" % s(sM+11))
    e("s_mov_b32 %s, -1" % s(sM+12)); e("s_mov_b32 %s, 0xffff" % s(sM+13))
    attn_tile(e, 1, acc_own(1,0), vKA, vKB, lambda i: vVp+6*i+2, vBP, vBC, vSel, cF[1], tSTD[1])
    if "epst" in OPTS: stamp(e, 11)
    e("s_waitcnt lgkmcnt(0)")
    e("s_barrier")
    for i in range(5):
        e("ds_read_b64 %s, %s offset:%d" % (vr(vKP+2*i,2), v(A6), X_EX + i*512))
        e("ds_read_b64 %s, %s offset:%d" % (vr(vVp+6*i,2), v(A6), X_EX + (5+i)*512))
    attn_tile(e, 0, acc_own(0,0), vKP, vKA, lambda i: vVp+6*i, vBPA, vBC, vSel, cF[0], tSTD[0])

def attn_tile(e, T, qm, kprev, kcur, vfrag, bP, bC, vSel, cF, std):
    Qm = [qm + 4*h for h in range(4)]
    S0 = [80, 84, 88, 92]; S1 = [96, 100, 104, 108]
    P  = [112, 116, 120, 124]
    Lh = [128, 132, 40, 44]
    for h in range(4):
        e("%s %s, %s, %s, %s" % (MFMA, vr(S0[h],4), vr(kprev+2*h,4), vr(Qm[h],4), vr(bP,4)))
        e("%s %s, %s, %s, %s" % (MFMA, vr(S1[h],4), vr(kcur+2*h,4), vr(Qm[h],4), vr(bC,4)))
    va = [48, 50, 52, 54]; mx = [56, 57, 58, 59]
    for h in range(4):
        e("v_max3_f32 %s, %s, %s, %s" % (v(va[h]), v(S0[h]), v(S0[h]+1), v(S1[h])))
        e("v_max3_f32 %s, %s, %s, %s" % (v(va[h]+1), v(S0[h]+2), v(S0[h]+3), v(S1[h]+2)))
        e("v_max_f32 %s, %s, %s" % (v(va[h]), v(va[h]), v(S1[h]+1)))
        e("v_max_f32 %s, %s, %s" % (v(va[h]+1), v(va[h]+1), v(S1[h]+3)))
        e("v_max_f32 %s, %s, %s" % (v(mx[h]), v(va[h]), v(va[h]+1)))
    e("v_permlane32_swap_b32 %s, %s" % (v(mx[0]), v(mx[1])))
    e("v_permlane32_swap_b32 %s, %s" % (v(mx[2]), v(mx[3])))
    e("v_max_f32 %s, %s, %s" % (v(mx[0]), v(mx[0]), v(mx[1])))
    e("v_max_f32 %s, %s, %s" % (v(mx[2]), v(mx[2]), v(mx[3])))
    e("v_permlane16_swap_b32 %s, %s" % (v(mx[0]), v(mx[2])))
    e("v_max_f32 %s, %s, %s" % (v(mx[0]), v(mx[0]), v(mx[2])))
    e("v_mov_b32 %s, %s" % (v(mx[2]), v(mx[0])))
    e("v_permlane16_swap_b32 %s, %s" % (v(mx[0]), v(mx[2])))
    e("v_mov_b32 %s, %s" % (v(mx[1]), v(mx[0])))
    e("v_mov_b32 %s, %s" % (v(mx[3]), v(mx[2])))
    e("v_permlane32_swap_b32 %s, %s" % (v(mx[0]), v(mx[1])))
    e("v_permlane32_swap_b32 %s, %s" % (v(mx[2]), v(mx[3])))
    for h in range(4):
        e("v_mul_f32 %s, %s, %s" % (v(mx[h]), v(mx[h]), v(cF)))
    for h in range(4):
        e("v_fma_f32 %s, %s, %s, -%s" % (v(va[h]), v(va[h]), v(cF), v(mx[h])))
        e("v_fma_f32 %s, %s, %s, -%s" % (v(va[h]+1), v(va[h]+1), v(cF), v(mx[h])))
    for h in range(4):
        e("v_exp_f32 %s, %s" % (v(va[h]), v(va[h])))
        e("v_exp_f32 %s, %s" % (v(va[h]+1), v(va[h]+1)))
    for h in range(4):
        e("v_cvt_pk_bf16_f32 %s, %s, %s" % (v(va[h]), v(va[h]), v(va[h]+1)))
    for h in range(4):
        for k in range(4):
            e("v_perm_b32 %s, %s, %s, %s" % (v(P[h]+k), v(va[h]), v(va[h]), v(vSel+k)))
    pairs = [(0,0),(1,0),(1,1),(2,1),(2,2),(3,2),(3,3),(4,3)]
    O = {}
    free = S0 + S1
    for n, p_ in enumerate(pairs): O[p_] = free[n]
    for h in range(4):
        e("%s %s, %s, %s, 0" % (MFMA, vr(Lh[h],4), ar(aONE,4), vr(P[h],4)))
    for (i, h) in pairs:
        e("%s %s, %s, %s, 0" % (MFMA, vr(O[(i,h)],4), vr(vfrag(i),4), vr(P[h],4)))
    for h in range(4):
        e("v_rcp_f32 %s, %s" % (v(Lh[h]), v(Lh[h])))
    for h in range(4):
        e("v_mul_f32 %s, %s, %s" % (v(Lh[h]), v(Lh[h]), v(std)))
    F = [Lh[0], 60, 62, 64, Lh[3]]
    e("v_cndmask_b32_e64 %s, %s, %s, %s" % (v(F[1]), v(Lh[1]), v(Lh[0]), sr(sM+8,2)))
    e("v_cndmask_b32_e64 %s, %s, %s, %s" % (v(F[2]), v(Lh[2]), v(Lh[1]), sr(sM+10,2)))
    e("v_cndmask_b32_e64 %s, %s, %s, %s" % (v(F[3]), v(Lh[3]), v(Lh[2]), sr(sM+12,2)))
    Rr = {}
    Rr[0] = O[(0,0)]; Rr[4] = O[(4,3)]
    for i in (1, 2, 3):
        lo, hi = O[(i,i-1)], O[(i,i)]
        for r in range(4):
            e("v_cndmask_b32_e64 %s, %s, %s, %s" % (v(hi+r), v(hi+r), v(lo+r), sr(sM+8+2*(i-1),2)))
        Rr[i] = hi
    out = P[0]
    for i in range(5):
        e("v_pk_mul_f32 %s, %s, %s op_sel_hi:[1,0]" % (vr(Rr[i],2), vr(Rr[i],2), vr(F[i],2)))
        e("v_pk_mul_f32 %s, %s, %s op_sel_hi:[1,0]" % (vr(Rr[i]+2,2), vr(Rr[i]+2,2), vr(F[i],2)))
        e("v_cvt_pk_bf16_f32 %s, %s, %s" % (v(out+2*i), v(Rr[i]), v(Rr[i]+1)))
        e("v_cvt_pk_bf16_f32 %s, %s, %s" % (v(out+2*i+1), v(Rr[i]+2), v(Rr[i]+3)))
    e("s_lshl_b32 %s, %s, 1" % (s(sT0), s(sRB)))
    e("s_lshr_b32 %s, %s, 1" % (s(sT1), s(sWave)))
    e("s_add_u32 %s, %s, %s" % (s(sT0), s(sT0), s(sT1)))
    e("s_mul_i32 %s, %s, %d" % (s(sT0), s(sT0), ACT_TB))
    e("s_and_b32 %s, %s, 1" % (s(sT1), s(sWave)))
    e("s_lshl_b32 %s, %s, 11" % (s(sT1), s(sT1)))
    e("s_add_u32 %s, %s, %s" % (s(sT0), s(sT0), s(sT1)))
    e("s_add_u32 %s, %s, %d" % (s(sT0), s(sT0), ACT_OFF + T*1024))
    e("s_lshr_b32 %s, %s, 1" % (s(sT1), s(sCB)))
    e("s_mul_i32 %s, %s, 5" % (s(sT1), s(sT1)))
    e("s_and_b32 %s, %s, 1" % (s(sT2), s(sCB)))
    e("s_lshl_b32 %s, %s, 1" % (s(sT3), s(sT2)))
    e("s_add_u32 %s, %s, %s" % (s(sT3), s(sT3), s(sT1)))
    e("s_lshl_b32 %s, %s, 12" % (s(sT3), s(sT3)))
    e("s_add_u32 %s, %s, %s" % (s(sT3), s(sT3), s(sT0)))
    e("buffer_store_dwordx4 %s, %s, %s, %s offen sc1" % (vr(out,4), v(vL16), sr(sWS,4), s(sT3)))
    e("s_add_u32 %s, %s, 4096" % (s(sT3), s(sT3)))
    e("buffer_store_dwordx4 %s, %s, %s, %s offen sc1" % (vr(out+4,4), v(vL16), sr(sWS,4), s(sT3)))
    e("s_add_u32 %s, %s, 4" % (s(sT1), s(sT1)))
    e("s_lshl_b32 %s, %s, 12" % (s(sT1), s(sT1)))
    e("s_add_u32 %s, %s, %s" % (s(sT1), s(sT1), s(sT0)))
    e("s_lshl_b32 %s, %s, 3" % (s(sT2), s(sT2)))
    e("s_add_u32 %s, %s, %s" % (s(sT1), s(sT1), s(sT2)))
    e("buffer_store_dwordx2 %s, %s, %s, %s offen sc1" % (vr(out+8,2), v(vL16), sr(sWS,4), s(sT1)))

def sprinkle(lines, groups, start=0, end_gap=0):
    safe = []
    exec_full = True; skip = None
    n = len(lines)
    for i, t in enumerate(lines):
        tt = t.strip()
        prev = lines[i-1].strip() if i else ""
        ok = exec_full and skip is None
        if prev.startswith("s_cmp") or prev.startswith("v_cmp") or prev.startswith("s_and_b64") or prev.startswith("s_andn2") : ok = False
        if tt.startswith("s_cbranch") or tt.startswith("s_cselect") or tt.startswith("s_addc") or tt.endswith(":"): ok = False
        if tt.startswith("s_barrier") or tt.startswith("s_waitcnt"): ok = False
        if ok and start <= i < n - end_gap: safe.append(i)
        if tt.startswith("s_mov_b32 exec") : exec_full = False
        if tt.startswith("s_mov_b64 exec, -1"): exec_full = True
        if tt.startswith("s_cbranch"): skip = tt.split()[-1]
        if skip and tt == skip + ":": skip = None
    ng = len(groups)
    assert len(safe) >= ng, (len(safe), ng)
    at = {}
    for k in range(ng):
        at.setdefault(safe[k*len(safe)//ng], []).extend(groups[k])
    out = []
    for i, t in enumerate(lines):
        if i in at: out += ["  " + x for x in at[i]]
        out.append(t)
    return out

F_SLOT = 49152; F_XB = 16384
fWA = [160, 161, 162, 163]
F_X0, F_X1 = 164, 165
fXE, fXOd, fWL = 166, 167, 168
fDO = 169
def facc(T, c): return (T*16 + c)*4
fCS = 128
fSUM = [144, 148]
def fxf(kh, T): return aXF + (kh*2 + T)*4

def ffn_lane_setup(e):
    x_lane_setup(e, fXE, fXOd)
    e("v_lshrrev_b32 v6, 2, v1")
    e("v_lshlrev_b32 v6, 3, v6")
    e("v_and_b32 v7, 3, v1")
    e("v_add_u32 v6, v6, v7")
    e("v_mul_u32_u24 v6, 3456, v6")
    e("v_lshrrev_b32 v7, 1, v2")
    e("v_xor_b32 v7, v7, v3")
    e("v_lshlrev_b32 v7, 5, v7")
    e("v_and_b32 v8, 1, v2")
    e("v_lshlrev_b32 v8, 4, v8")
    e("v_add3_u32 v6, v6, v7, v8")
    e("s_lshl_b32 %s, %s, 9" % (s(sT0), s(sCB)))
    e("v_add_u32 %s, %s, v6" % (v(fWL), s(sT0)))

def ffn_cfg(w):
    cfg = Cfg()
    cfg.ntile = 16; cfg.ring = 8; cfg.look = 6; cfg.tail = 2; cfg.nfirst = 6; cfg.wbase = aW
    H = [c for c in range(16) if c % 4 == w]
    def wread(kh, c, reg):
        off = (c >> 2)*8192 + kh*4096
        ad = v(fWA[c & 3])
        return ["ds_read_b64_tr_b16 %s, %s offset:%d" % (ar(reg,2), ad, off),
                "ds_read_b64_tr_b16 %s, %s offset:%d" % (ar(reg+2,2), ad, off + 2048)]
    def mf(kh, c, reg):
        out = []
        for T in (0, 1):
            d = vr(facc(T, c), 4)
            out.append("%s %s, %s, %s, %s" % (MFMA, d, ar(reg,4), ar(fxf(kh,T),4), d))
        if c in H and "nohalo" not in OPTS:
            d = vr(fCS + (c >> 2)*4, 4)
            out.append("%s %s, %s, %s, %s" % (MFMA, d, ar(reg,4), ar(aONE,4), d))
        return out
    def stats(kh):
        return ["%s %s, %s, %s, %s" % (MFMA, vr(fSUM[T],4), ar(aONE,4), ar(fxf(kh,T),4), vr(fSUM[T],4)) for T in (0,1)]
    def xreads(kh):
        ad = F_X1 if kh else F_X0
        return ["ds_read_b128 %s, %s offset:%d" % (ar(fxf(kh,T),4), v(ad), (2*w+T)*2048) for T in (0,1)]
    cfg.wread = wread; cfg.mf = mf; cfg.stats = stats; cfg.xreads = xreads
    cfg.xread1_at = 4
    cfg.addr_update = addr_update(F_SLOT, fWA + [F_X0, F_X1])
    cfg.scal_update = scal_update(F_SLOT, 64*3456)
    cfg.dma_start = 2; cfg.dma_skew = w; cfg.dma_endgap = 8
    cfg.wstep = 64*3456; cfg.slot = F_SLOT
    return cfg

def read_addr_setup_ffn(e):
    e("v_and_b32 v1, 15, %s" % v(vLane))
    e("v_lshrrev_b32 v2, 2, v1")
    e("v_and_b32 v3, 3, v1")
    e("v_lshrrev_b32 v4, 4, %s" % v(vLane))
    e("v_lshl_add_u32 v2, v4, 2, v2")
    e("v_lshrrev_b32 v5, 1, v2")
    e("v_and_b32 v5, 3, v5")
    e("v_lshlrev_b32 v2, 7, v2")
    e("v_lshl_add_u32 v2, v3, 3, v2")
    e("v_add_u32 v2, %d, v2" % F_XB)
    for u in range(4):
        e("v_xor_b32 v6, %d, v5" % u)
        e("v_lshl_add_u32 %s, v6, 5, v2" % v(fWA[u]))
    xaddr_setup(e, F_X0, F_X1, 0)

def ffn_epilogue(e):
    nm = [150, 152]
    for T in (0, 1):
        e("v_mul_f32 %s, 0x%08x, %s" % (v(nm[T]), f2u(-1.0/640), v(fSUM[T])))
    e("v_lshrrev_b32 v252, 4, %s" % v(vLane))
    e("v_lshlrev_b32 v252, 4, v252")
    e("s_lshl_b32 %s, %s, 6" % (s(sT0), s(sWave)))
    e("v_add_u32 v253, %s, v252" % s(sT0))
    e("s_mov_b32 exec_lo, 0x00010001"); e("s_mov_b32 exec_hi, 0x00010001")
    for q in range(4):
        e("ds_write_b128 v253, %s offset:%d" % (vr(fCS + q*4, 4), q*256))
    e("s_mov_b64 exec, -1")
    e("s_lshl_b32 %s, %s, 1" % (s(sT0), s(sRB)))
    e("s_lshr_b32 %s, %s, 1" % (s(sT1), s(sWave)))
    e("s_add_u32 %s, %s, %s" % (s(sT0), s(sT0), s(sT1)))
    e("s_mul_i32 %s, %s, %d" % (s(sT0), s(sT0), ACT_TB))
    e("s_and_b32 %s, %s, 1" % (s(sT1), s(sWave)))
    e("s_lshl_b32 %s, %s, 11" % (s(sT1), s(sT1)))
    e("s_add_u32 %s, %s, %s" % (s(sT0), s(sT0), s(sT1)))
    e("s_lshl_b32 %s, %s, 3" % (s(sT1), s(sCB)))
    e("s_add_u32 %s, %s, 20" % (s(sT1), s(sT1)))
    e("s_lshl_b32 %s, %s, 12" % (s(sT1), s(sT1)))
    e("s_add_u32 %s, %s, %s" % (s(sT0), s(sT0), s(sT1)))
    if ACT_OFF: e("s_add_u32 %s, %s, %d" % (s(sT0), s(sT0), ACT_OFF))
    e("s_cmp_eq_u32 %s, 6" % s(sCB))
    e("s_cselect_b32 %s, 0x%x, 0" % (s(sT2), OOB))
    e("s_waitcnt lgkmcnt(0)")
    e("s_barrier")
    CS = lambda c: 160 + 4*c
    for c in range(16):
        e("ds_read_b128 %s, v252 offset:%d" % (vr(CS(c),4), c*64))
    pk = [224, 228, 232, 236]
    for a_ in range(8):
        if a_ == 6: e("s_add_u32 %s, %s, %s" % (s(sT0), s(sT0), s(sT2)))
        for T in (0, 1):
            o = pk[(2*a_ + T) & 3]
            for k in range(2):
                c = 2*a_ + k; d = facc(T, c); q = CS(c)
                e("v_pk_fma_f32 %s, %s, %s, %s op_sel_hi:[1,0,1]" % (vr(d,2), vr(q,2), vr(nm[T],2), vr(d,2)))
                e("v_pk_fma_f32 %s, %s, %s, %s op_sel_hi:[1,0,1]" % (vr(d+2,2), vr(q+2,2), vr(nm[T],2), vr(d+2,2)))
                e("v_cvt_pk_bf16_f32 %s, %s, %s" % (v(o+2*k), v(d), v(d+1)))
                e("v_cvt_pk_bf16_f32 %s, %s, %s" % (v(o+2*k+1), v(d+2), v(d+3)))
                e("v_pk_max_i16 %s, %s, 0" % (v(o+2*k), v(o+2*k)))
                e("v_pk_max_i16 %s, %s, 0" % (v(o+2*k+1), v(o+2*k+1)))
            e("buffer_store_dwordx4 %s, %s, %s, %s offen offset:%d sc1" % (vr(o,4), v(vL16), sr(sWS,4), s(sT0), T*1024))
        e("s_add_u32 %s, %s, 4096" % (s(sT0), s(sT0)))

U_ROW = 320
U_BYTES = 32*U_ROW
sPF = 60
vUO = [200, 201, 202]; vUH = [203, 204, 205]; vUT = [206, 207, 208]
sUW = [64, 65, 66]
sUl, sUn = 67, 68
def unit_setup_dyn(e):
    e("s_lshl_b32 %s, %s, 6" % (s(sT0), s(sWave)))
    for m in range(3):
        e("v_add_u32 v1, %s, %s" % (s(sT0), v(vLane)))
        if m: e("v_add_u32 v1, %d, v1" % (256*m))
        e("v_mul_u32_u24 v2, 3277, v1"); e("v_lshrrev_b32 v2, 16, v2")
        e("v_mul_u32_u24 v3, 20, v2"); e("v_sub_u32 v3, v1, v3")
        e("v_mul_u32_u24 v4, 1280, v2"); e("v_lshl_add_u32 %s, v3, 4, v4" % v(vUO[m]))
        e("v_lshrrev_b32 %s, 4, v2" % v(vUH[m]))
        if m == 2:
            e("v_mov_b32 v5, 0x40000000")
            e("v_cmp_le_u32 vcc, 640, v1")
            e("v_cndmask_b32_e64 %s, %s, v5, vcc" % (v(vUO[m]), v(vUO[m])))
            e("v_cndmask_b32_e64 %s, %s, 0, vcc" % (v(vUH[m]), v(vUH[m])))
    e("v_and_b32 v1, 15, %s" % v(vLane)); e("v_lshrrev_b32 v2, 2, v1"); e("v_and_b32 v3, 3, v1")
    e("v_lshrrev_b32 v4, 4, %s" % v(vLane)); e("v_lshl_add_u32 v2, v4, 2, v2")
    e("v_mul_u32_u24 v2, %d, v2" % U_ROW)
    for m in range(3):
        e("s_add_u32 %s, %s, %d" % (s(sT0), s(sWave), 4*m))
        e("s_cmp_ge_u32 %s, 5" % s(sT0)); e("s_cselect_b32 %s, 1, 0" % s(sT1))
        e("s_mul_i32 %s, %s, 5" % (s(sT2), s(sT1))); e("s_sub_u32 %s, %s, %s" % (s(sT2), s(sT0), s(sT2)))
        e("s_lshr_b32 %s, %s, 1" % (s(sT3), s(sT2))); e("s_lshl_b32 %s, %s, 6" % (s(sT3), s(sT3)))
        e("s_and_b32 %s, %s, 1" % (s(sD0), s(sT2))); e("s_lshl_b32 %s, %s, 3" % (s(sD0), s(sD0)))
        e("s_add_u32 %s, %s, %s" % (s(sT3), s(sT3), s(sD0)))
        e("s_mul_i32 %s, %s, 160" % (s(sD0), s(sT1))); e("s_add_u32 %s, %s, %s" % (s(sT3), s(sT3), s(sD0)))
        e("s_cmp_eq_u32 %s, 4" % s(sT2)); e("s_cselect_b32 %s, 3, 4" % s(sD0))
        e("v_lshlrev_b32 v5, %s, v3" % s(sD0))
        e("v_add3_u32 %s, v5, v2, %s" % (v(vUT[m]), s(sT3)))
        e("s_mul_i32 %s, %s, %d" % (s(sUW[m]), s(sT1), W2F_CB))
        e("s_lshl_b32 %s, %s, 10" % (s(sD0), s(sT2)))
        e("s_add_u32 %s, %s, %s" % (s(sUW[m]), s(sUW[m]), s(sD0)))
        e("s_cmp_ge_u32 %s, 10" % s(sT0)); e("s_cselect_b32 %s, 0x%x, %s" % (s(sUW[m]), 0x40000000, s(sUW[m])))
def unit_loads_dyn(e):
    sU = sUn
    e("s_lshr_b32 %s, %s, 2" % (s(sT0), s(sU)))
    e("s_and_b32 %s, %s, 3" % (s(sT1), s(sU)))
    e("s_mul_i32 %s, %s, 52" % (s(sT2), s(sT0))); e("s_lshr_b32 %s, %s, 8" % (s(sT2), s(sT2)))
    e("s_mul_i32 %s, %s, 5" % (s(sT3), s(sT2))); e("s_sub_u32 %s, %s, %s" % (s(sT3), s(sT0), s(sT3)))
    e("s_mul_i32 %s, %s, 160" % (s(sT2), s(sT2)))
    e("s_lshl_b32 %s, %s, 5" % (s(sD0), s(sT3)))
    e("s_cmp_ge_u32 %s, 2" % s(sT3)); e("s_cselect_b32 %s, 16, 0" % s(sD1))
    e("s_add_u32 %s, %s, %s" % (s(sD0), s(sD0), s(sD1)))
    e("s_cmp_eq_u32 %s, 4" % s(sT3)); e("s_cselect_b32 %s, 64, %s" % (s(sD0), s(sD0)))
    e("s_cselect_b32 %s, %d, 0" % (s(sD1), 64*1280))
    e("s_add_u32 %s, %s, %s" % (s(sD0), s(sD0), s(sT2)))
    e("s_sub_u32 %s, %s, 20" % (s(sT2), s(sT0))); e("s_lshl_b32 %s, %s, 5" % (s(sT2), s(sT2)))
    e("s_cmp_lt_u32 %s, 20" % s(sT0))
    e("s_cselect_b32 %s, %s, %s" % (s(sD0), s(sD0), s(sT2)))
    e("s_cselect_b32 %s, %s, 0" % (s(sD1), s(sD1)))
    e("s_cselect_b32 %s, s8, s14" % s(sPF))
    e("s_cselect_b32 %s, s9, s15" % s(sPF+1))
    e("s_cselect_b32 %s, %s, %s" % (s(sPF+2), s(sSzO), s(sSz2)))
    e("s_and_b32 %s, %s, 0xffff" % (s(sPF+1), s(sPF+1)))
    e("s_mov_b32 %s, 0x20000" % s(sPF+3))
    e("s_mul_i32 %s, %s, 1280" % (s(sD0), s(sD0)))
    e("s_mul_i32 %s, %s, 320" % (s(sT1), s(sT1)))
    e("s_add_u32 %s, %s, %s" % (s(sD0), s(sD0), s(sT1)))
    e("s_cmp_ge_u32 %s, %d" % (s(sU), 4*NKS)); e("s_cselect_b32 %s, 0x%x, %s" % (s(sD0), OOB, s(sD0)))
    e("s_lshl_b32 %s, %s, 10" % (s(sT0), s(sWave)))
    e("s_add_u32 %s, %s, %s" % (s(sT0), s(sT0), s(sUl)))
    for m in range(3):
        e("v_mad_u32_u24 %s, %s, %s, %s" % (v(210+m), v(vUH[m]), s(sD1), v(vUO[m])))
        if m < 2: e("s_add_u32 m0, %s, %d" % (s(sT0), 4096*m))
        else:
            e("s_add_u32 %s, %s, %d" % (s(sT1), s(sT0), 4096*m))
            e("s_cmp_ge_u32 %s, 2" % s(sWave))
            e("s_cselect_b32 m0, %d, %s" % (161792, s(sT1)))
        e("s_nop 0")
        e("buffer_load_dwordx4 %s, %s, %s offen lds" % (v(210+m), sr(sPF,4), s(sD0)))
def unit_store_dyn(e, vd=0, full_wait=False):
    sU = sUn
    e("s_lshr_b32 %s, %s, 2" % (s(sT0), s(sU)))
    e("s_and_b32 %s, %s, 3" % (s(sT1), s(sU)))
    e("s_mul_i32 %s, %s, 5120" % (s(sT0), s(sT0)))
    e("s_mul_i32 %s, %s, %d" % (s(sT1), s(sT1), 2*W2F_CB))
    e("s_add_u32 %s, %s, %s" % (s(sT0), s(sT0), s(sT1)))
    e("s_add_u32 %s, %s, %d" % (s(sT0), s(sT0), W2F_OFF))
    e("s_cmp_ge_u32 %s, %d" % (s(sU), 4*NKS)); e("s_cselect_b32 %s, 0x%x, %s" % (s(sT0), 0x30000000, s(sT0)))
    for m in range(3):
        e("v_add_u32 %s, %s, %s" % (v(213+m), s(sUl), v(vUT[m])))
        e("ds_read_b64_tr_b16 %s, %s" % (vr(vd+4*m,2), v(213+m)))
        e("ds_read_b64_tr_b16 %s, %s offset:%d" % (vr(vd+4*m+2,2), v(213+m), 16*U_ROW))
    for m in range(3):
        e("s_add_u32 %s, %s, %s" % (s(sT1), s(sT0), s(sUW[m])))
        e("s_waitcnt lgkmcnt(%d)" % (4 - 2*m if not full_wait else 0))
        e("buffer_store_dwordx4 %s, %s, %s, %s offen sc1" % (vr(vd+4*m,4), v(vL16), sr(sWS,4), s(sT1)))
def pf_loop(e, tag, fn, u0, n, lds0):
    e("s_add_u32 %s, %s, %d" % (s(sUn), s(sCB), 16*u0))
    e("s_mov_b32 %s, %d" % (s(sUl), lds0))
    e("s_mov_b32 %s, 0" % s(sIter))
    e.lab("L_pfl_%s" % tag)
    fn(e)
    e("s_add_u32 %s, %s, 16" % (s(sUn), s(sUn)))
    e("s_add_u32 %s, %s, %d" % (s(sUl), s(sUl), U_BYTES))
    e("s_add_u32 %s, %s, 1" % (s(sIter), s(sIter)))
    e("s_cmp_lt_u32 %s, %d" % (s(sIter), n))
    e("s_cbranch_scc1 L_pfl_%s" % tag)
N_FFN_UNITS = 2
def signal_count(e, off):
    R = " ; rare"
    e("v_mov_b32 v250, 1" + R); e("v_mov_b32 v251, 0" + R)
    e("s_mov_b32 exec_lo, 1" + R); e("s_mov_b32 exec_hi, 0" + R)
    e("buffer_atomic_add v250, v251, %s, 0 offen offset:%d sc1" % (sr(sDBG,4), off) + R)
    e("s_mov_b64 exec, -1" + R)
def spin_count(e, tag, off, target, vtmp, have_first=None):
    R = " ; rare"
    if have_first is not None:
        e("v_readfirstlane_b32 %s, %s" % (s(sT0), v(have_first)))
        e("s_nop 3")
        e("s_cmp_ge_u32 %s, %d" % (s(sT0), target))
        e("s_cbranch_scc1 L_cok_%s" % tag)
    e("s_mov_b32 %s, 0" % s(sT1) + R)
    e("v_mov_b32 %s, 0" % v(vtmp+1) + R)
    e.lab("L_cspin_%s" % tag)
    e("buffer_load_dword %s, %s, %s, 0 offen offset:%d sc1" % (v(vtmp), v(vtmp+1), sr(sDBG,4), off) + R)
    e("s_waitcnt vmcnt(0)" + R)
    e("v_readfirstlane_b32 %s, %s" % (s(sT0), v(vtmp)) + R)
    e("s_nop 3" + R)
    e("s_cmp_ge_u32 %s, %d" % (s(sT0), target) + R)
    e("s_cbranch_scc1 L_cok_%s" % tag + R)
    e("s_sleep %d" % CSLEEP + R)
    e("s_add_u32 %s, %s, 1" % (s(sT1), s(sT1)) + R)
    e("s_cmp_lt_u32 %s, %d" % (s(sT1), SPIN_MAX) + R)
    e("s_cbranch_scc1 L_cspin_%s" % tag + R)
    e.lab("L_cok_%s" % tag)
CSLEEP = 40
FSLEEP = 8
CNT_P, N_P = 4, 128

DA = 6
POLL_A_AT = int(os.environ.get('PAA', 5))
FFN_W2A_IN = 0
ATT_POLL_BACK = int(os.environ.get('APB', 90))
ATT_W2A_IN = int(os.environ.get('ATT_IN', 60))
ATT_ENDGAP = int(os.environ.get('ATT_GAP', 40))
W2A_BEFORE_SIG = int(os.environ.get('WBS', 12))

vAR = 80
vWR = 176
def act_soff(p, dst):
    if p < 14: return ["s_lshl_b32 %s, %s, 2" % (s(dst), s(sKQ[p])), "s_add_u32 %s, %s, %s" % (s(dst), s(dst), s(sAB))]
    return ["s_lshl_b32 %s, %s, 12" % (s(dst), s(sWave)), "s_add_u32 %s, %s, %s" % (s(dst), s(dst), s(sAB)),
            "s_add_u32 %s, %s, %d" % (s(dst), s(dst), 4*(p-14)*4096)]
vAO = [244, 246, 248, 249]
def act_loads(p):
    st = vAR + (p % DA)*16
    G = []
    for tt in range(4):
        g = act_soff(p, sD0) if tt == 0 else []
        g.append("buffer_load_dwordx4 %s, %s, %s, %s offen sc1" % (vr(st+4*tt,4), v(vAO[tt]), sr(sWS,4), s(sD0)))
        G.append(g)
    return G
PE_F = int(os.environ.get('PEF', 9))
XRES_AT = 14
BAR_AT = int(os.environ.get('BARAT', 5))
sMain = 100

def ao_setup(e, sfx=""):
    for tt in range(4):
        e("s_add_u32 %s, %s, %d%s" % (s(sT0), s(sWave), tt, sfx))
        e("s_and_b32 %s, %s, 3%s" % (s(sT0), s(sT0), sfx))
        e("s_lshl_b32 %s, %s, 10%s" % (s(sT0), s(sT0), sfx))
        e("v_add_u32 %s, %s, %s%s" % (v(vAO[tt]), s(sT0), v(vL16), sfx))

def build_main(tag, P0v):
    main = E()
    main.lab("L_ph2_main_" + tag)
    main("v_add_u32 v216, %s, %s" % (s(sLA), v(vL16)))
    main("v_add_u32 v217, %s, %s" % (s(sLB), v(vL16)))
    def wl_reads(p):
        out = []
        for ct in range(5):
            q = 5*p + ct
            ad, off = (216, q*1024) if q < 12 else (217, (q-12)*1024)
            out.append("ds_read_b128 %s, %s offset:%d" % (vr(vWR + (p & 1)*20 + ct*4, 4), v(ad), off))
        return out
    main.ext(wl_reads(0))
    main("v_lshlrev_b32 v218, 2, %s" % v(vLane))
    for tt in range(1, 4):
        main("s_add_u32 %s, %s, %d" % (s(sT0), s(sWave), tt))
        main("s_and_b32 %s, %s, 3" % (s(sT0), s(sT0)))
        main("s_mul_i32 %s, %s, 15360" % (s(sT0), s(sT0)))
        main("s_add_u32 %s, %s, %d" % (s(sT0), s(sT0), (tt-1)*5120))
        main("v_add_u32 %s, %s, %s" % (v(236+tt), s(sT0), v(vL16)))
    stamp(main, 9)
    NP = 19
    for p in range(NP):
        if "p2st" in OPTS and p in (1, 5, 9, 10, 14): stamp(main, {1: 1, 5: 2, 9: 3, 10: 4, 14: 5}[p])
        if "p2stb" in OPTS and p in (10, 12, 14, 16, 18): stamp(main, {10: 1, 12: 2, 14: 3, 16: 4, 18: 5}[p])
        ms = []
        order = [(ct, tt) for ct in range(5) for tt in range(4)] if p < NP - 1 else [(ct, tt) for tt in (1, 2, 3, 0) for ct in range(5)]
        for ct, tt in order:
            if p < 5: wsrc = vr(vWR + (p & 1)*20 + ct*4, 4)
            else:     wsrc = ar(((p - 5) % 12)*20 + ct*4, 4)
            d = vr((tt*5+ct)*4, 4)
            ms.append("%s %s, %s, %s, %s" % (MFMA, d, wsrc, vr(vAR + (p % DA)*16 + 4*tt, 4), d if p else "0"))
        aux = []
        if p + 1 < 5: aux += [[t] for t in wl_reads(p + 1)]
        q = p - 1 + DA
        if p >= 1 and q < NP:
            if q == 14:
                sp = E(); spin_flags(sp, "a" + tag, MASK_A, 250, have_first=219)
                main.ext(sp.L)
            aux += act_loads(q)
        if p == XRES_AT:
            rx = E()
            rx("v_and_b32 v220, 15, %s" % v(vLane)); rx("v_lshrrev_b32 v221, 4, %s" % v(vLane))
            rx("s_lshl_b32 %s, %s, 6" % (s(sT0), s(sTB))); rx("s_lshl_b32 %s, %s, 4" % (s(sT1), s(sWave)))
            rx("s_add_u32 %s, %s, %s" % (s(sT0), s(sT0), s(sT1)))
            rx("v_add_u32 v220, %s, v220" % s(sT0)); rx("v_lshlrev_b32 v222, 2, v220")
            rx("v_mul_u32_u24 v220, 1280, v220")
            rx("s_mul_i32 %s, %s, 160" % (s(sT1), s(sC2))); rx("v_add_u32 v220, %s, v220" % s(sT1))
            rx("v_lshl_add_u32 v240, v221, 4, v220"); rx("v_lshl_add_u32 v242, v221, 3, v220")
            rx("s_mov_b32 %s, %d" % (s(sT2), RSTD_OFF))
            rx("buffer_load_dwordx4 v[224:227], v240, %s, 0 offen" % sr(sX,4))
            rx("buffer_load_dwordx4 v[228:231], v240, %s, 0 offen offset:64" % sr(sX,4))
            rx("buffer_load_dwordx2 v[232:233], v242, %s, 0 offen offset:128" % sr(sX,4))
            rx("buffer_load_dword v234, v222, %s, %s offen sc1" % (sr(sWS,4), s(sT2)))
            aux += [[t.strip()] for t in rx.L]
        if p == POLL_A_AT:
            aux.append(["buffer_load_dword v219, v218, %s, %s offen sc1" % (sr(sWS,4), s(sFL))])
        if P0v <= p + 7 <= 16: aux += w2a_groups(p + 7, p + 8)
        if p == 10: aux += w2a_groups(17, 18)
        if p == 11: aux += w2a_groups(18, 19)
        if p == BAR_AT: aux.append(["s_barrier"])
        if tag == "A" and p == 1:
            sg = E(); sg("s_barrier"); signal_rb(sg, "attn", None, vt=(220, 221))
            main.ext(sg.L)
        n = len(ms); k = 0
        wq = [(tt, ct) for tt in range(1, 4) for ct in range(5)] if p == NP - 1 else []
        for i_, m in enumerate(ms):
            main(m)
            want = (i_ + 1)*len(aux) // n
            while k < want:
                main.ext(aux[k]); k += 1
            if wq and i_ >= 5:
                tt, ct = wq.pop(0)
                main("ds_write_b128 %s, %s offset:%d" % (v(236+tt), vr((tt*5+ct)*4,4), ct*1024))
        for tt, ct in wq:
            main("ds_write_b128 %s, %s offset:%d" % (v(236+tt), vr((tt*5+ct)*4,4), ct*1024))
    stamp(main, 10)
    main("s_branch L_ph2_tail")
    st = State(); d = []
    pre = []
    for g in w2a_groups(5, P0v): pre += ["  " + t for t in g]
    for p in range(DA):
        for g in act_loads(p): pre += ["  " + t for t in g]
    st = process(pre, st, d); st.hist = []
    o = []; st = process(main.L, st, o)
    return o, st

def phase2():
    e = E()
    e.lab("L_ph2")
    if "dlymid" in OPTS: e("s_sleep 64")
    stamp(e, 8)
    ao_setup(e)
    check_flags(e, MASK_F, vPoll, "L_ph2_ok2")
    spin_flags(e, "f", MASK_F, 250)
    e.lab("L_ph2_ok2")
    for p in range(DA):
        for g in act_loads(p): e.ext(["%s ; rare" % t for t in g])
    e("s_branch L_ph2_main_F")
    o0 = []; process(e.L, State(), o0)
    oF, stF = build_main("F", PE_F)
    oA, stA = build_main("A", 17)
    stA.merge(stF); stA.hist = []
    main = E()
    main.lab("L_ph2_tail")
    srd(main, sW, 16, X_BYTES)
    main("s_mul_i32 %s, %s, 15360" % (s(sT0), s(sWave)))
    main("v_add_u32 v236, %s, %s" % (s(sT0), v(vL16)))
    xr = [224, 226, 228, 230, 232]
    X = 180
    for ct in range(5):
        for hh in range(2):
            main("v_lshlrev_b32 %s, 16, %s" % (v(X + ct*4 + 2*hh), v(xr[ct]+hh)))
            main("v_and_b32 %s, 0xffff0000, %s" % (v(X + ct*4 + 2*hh + 1), v(xr[ct]+hh)))
    main("s_waitcnt lgkmcnt(0)")
    main("s_barrier")
    for k in range(3):
        for ct in range(5):
            main("ds_read_b128 %s, v236 offset:%d" % (vr(80 + (k*5+ct)*4, 4), (k*5+ct)*1024))
    o = 150
    for kk in range(2):
        for ct in range(5):
            for hh in range(2):
                r = ct*4 + 2*hh
                main("v_pk_add_f32 %s, %s, %s" % (vr(r,2), vr(r,2), vr(80 + 20*kk + r, 2)))
    for ct in range(5):
        for hh in range(2):
            r = ct*4 + 2*hh
            main("v_pk_add_f32 %s, %s, %s" % (vr(r,2), vr(r,2), vr(120 + r, 2)))
            main("v_pk_fma_f32 %s, %s, %s, %s op_sel_hi:[1,0,1]" % (vr(X+r,2), vr(r,2), vr(234,2), vr(X+r,2)))
            main("v_cvt_pk_bf16_f32 %s, %s, %s" % (v(o + 2*ct + hh), v(X+r), v(X+r+1)))
    fl = " sc1" if "outsc1" in OPTS else (" nt" if "outnt" in OPTS else "")
    main("buffer_store_dwordx4 %s, v240, %s, 0 offen%s" % (vr(o,4), sr(sW,4), fl))
    main("buffer_store_dwordx4 %s, v240, %s, 0 offen offset:64%s" % (vr(o+4,4), sr(sW,4), fl))
    main("buffer_store_dwordx2 %s, v242, %s, 0 offen offset:128%s" % (vr(o+8,2), sr(sW,4), fl))
    if "dlyend" in OPTS: main("s_sleep 64")
    stamp(main, 11)
    if "stamp" in OPTS: main("s_waitcnt vmcnt(0)")
    stamp(main, 12)
    stamp_flush(main)
    o2 = []; process(["  s_nop 7"] + main.L, stA, o2)
    return o0 + oF + oA + o2

def top():
    out = []
    e = E()
    e("s_load_dwordx16 s[4:19], s[0:1], 0")
    e("s_load_dwordx2 s[20:21], s[0:1], 64")
    e("s_cmp_ge_u32 s2, 256")
    e("s_cbranch_scc1 L_end")
    if "stamp" in OPTS: e("v_mov_b32 %s, 0" % v(vSt))
    if "ep2x" in OPTS: e("s_mov_b32 s100, 0")
    if "dlystart" in OPTS: e("s_sleep 64")
    e("s_getpc_b64 s[60:61]")
    e.lab("L_pcbase")
    e("s_lshr_b32 s3, s2, 3")
    e("s_lshl_b32 s3, s3, 12")
    e("v_lshl_add_u32 v2, v0, 4, s3")
    e("v_min_u32 v2, L_codeend-L_pcbase-16, v2")
    if "nopf" not in OPTS: e("global_load_dwordx4 v[236:239], v2, s[60:61]")
    e("v_and_b32 %s, 63, v0" % v(vLane))
    e("v_lshrrev_b32 v1, 6, v0")
    e("s_and_b32 s3, s2, 7")
    e("v_readfirstlane_b32 %s, v1" % s(sWave))
    e("s_lshr_b32 %s, s2, 3" % s(sT0))
    e("s_and_b32 %s, s3, 1" % s(sT1))
    e("s_lshr_b32 %s, s3, 1" % s(sT2))
    e("s_lshl_b32 %s, %s, 3" % (s(sT1), s(sT1)))
    e("s_cmp_ge_u32 %s, 30" % s(sT0))
    e("s_cbranch_scc1 L_role_pf")
    e("s_cmp_ge_u32 %s, 16" % s(sT0))
    e("s_cbranch_scc1 L_role_ffn")
    e("s_lshl_b32 %s, %s, 1" % (s(sCB), s(sT2)))
    e("s_lshr_b32 %s, %s, 3" % (s(sT3), s(sT0)))
    e("s_add_u32 %s, %s, %s" % (s(sCB), s(sCB), s(sT3)))
    e("s_and_b32 %s, %s, 7" % (s(sKC), s(sT0)))
    e("s_add_u32 %s, %s, %s" % (s(sRB), s(sT1), s(sKC)))
    e("s_mul_i32 %s, %s, 5" % (s(sT3), s(sT3)))
    e("s_add_u32 %s, %s, %s" % (s(sKC), s(sKC), s(sT3)))
    e("s_cmp_ge_u32 %s, 10" % s(sKC))
    e("s_cselect_b32 %s, 10, 0" % s(sT3))
    e("s_sub_u32 %s, %s, %s" % (s(sKC), s(sKC), s(sT3)))
    if "rotk" not in OPTS: e("s_mov_b32 %s, 0" % s(sKC))
    if "rot4" in OPTS:
        e("s_and_b32 %s, %s, 1" % (s(sT3), s(sCB))); e("s_lshl_b32 %s, %s, 1" % (s(sT3), s(sT3)))
        e("s_add_u32 %s, %s, %s" % (s(sT3), s(sT3), s(sRB))); e("s_and_b32 %s, %s, 3" % (s(sT3), s(sT3)))
        e("s_mul_i32 %s, %s, 5" % (s(sT3), s(sT3))); e("s_lshr_b32 %s, %s, 1" % (s(sKC), s(sT3)))
    e("s_mul_i32 %s, %s, %d" % (s(sXO), s(sRB), 128*1280))
    e("s_sub_u32 %s, %s, %d" % (s(sXH), s(sXO), 16*1280))
    e("s_cmp_eq_u32 %s, 0" % s(sRB))
    e("s_cselect_b32 %s, 0, %s" % (s(sXH), s(sXH)))
    e("s_add_u32 %s, %s, 8" % (s(sSig), s(sCB)))
    attn_lane_setup(e)
    e("s_waitcnt lgkmcnt(0)")
    srd(e, sX, 4, X_BYTES); srd(e, sW, 6, WQKV_BYTES); srd(e, sWS, 20, WS_USED); srd(e, sDBG, 18, 256)
    stamp(e, 0)
    for w in range(3):
        e("s_cmp_eq_u32 %s, %d" % (s(sWave), w))
        e("s_cbranch_scc1 L_attn_%d" % w)
    e("s_branch L_attn_3")
    e.lab("L_role_ffn")
    e("s_mul_i32 %s, %s, 14" % (s(sT2), s(sT2)))
    e("s_add_u32 %s, %s, %s" % (s(sT2), s(sT2), s(sT0)))
    e("s_sub_u32 %s, %s, 16" % (s(sT2), s(sT2)))
    e("s_lshr_b32 %s, %s, 3" % (s(sCB), s(sT2)))
    e("s_and_b32 %s, %s, 7" % (s(sKC), s(sT2)))
    e("s_add_u32 %s, %s, %s" % (s(sRB), s(sT1), s(sKC)))
    e("s_and_b32 %s, %s, 1" % (s(sT3), s(sCB)))
    e("s_mul_i32 %s, %s, 5" % (s(sT3), s(sT3)))
    e("s_add_u32 %s, %s, %s" % (s(sKC), s(sKC), s(sT3)))
    e("s_add_u32 %s, %s, 2" % (s(sKC), s(sKC)))
    e("s_cmp_ge_u32 %s, 10" % s(sKC))
    e("s_cselect_b32 %s, 10, 0" % s(sT3))
    e("s_sub_u32 %s, %s, %s" % (s(sKC), s(sKC), s(sT3)))
    if "rotk" not in OPTS: e("s_mov_b32 %s, 0" % s(sKC))
    if "rot4" in OPTS:
        e("s_and_b32 %s, %s, 1" % (s(sT3), s(sCB))); e("s_lshl_b32 %s, %s, 1" % (s(sT3), s(sT3)))
        e("s_add_u32 %s, %s, %s" % (s(sT3), s(sT3), s(sRB))); e("s_add_u32 %s, %s, 1" % (s(sT3), s(sT3))); e("s_and_b32 %s, %s, 3" % (s(sT3), s(sT3)))
        e("s_mul_i32 %s, %s, 5" % (s(sT3), s(sT3))); e("s_lshr_b32 %s, %s, 1" % (s(sKC), s(sT3)))
    e("s_mul_i32 %s, %s, %d" % (s(sXO), s(sRB), 128*1280))
    e("s_mov_b32 %s, %s" % (s(sSig), s(sCB)))
    e("s_mul_i32 %s, %s, 7" % (s(sUn), s(sT1)))
    e("s_add_u32 %s, %s, %s" % (s(sUn), s(sUn), s(sT2)))
    ffn_lane_setup(e)
    e("s_waitcnt lgkmcnt(0)")
    srd(e, sX, 4, X_BYTES); srd(e, sW, 12, W1_BYTES); srd(e, sWS, 20, WS_USED); srd(e, sDBG, 18, 256); srd(e, sQ, 6, WQKV_BYTES)
    stamp(e, 0)
    for w in range(3):
        e("s_cmp_eq_u32 %s, %d" % (s(sWave), w))
        e("s_cbranch_scc1 L_ffn_%d" % w)
    e("s_branch L_ffn_3")
    e.lab("L_role_pf")
    e("s_lshl_b32 %s, s3, 1" % s(sCB))
    e("s_add_u32 %s, %s, %s" % (s(sCB), s(sCB), s(sT0)))
    e("s_sub_u32 %s, %s, 30" % (s(sCB), s(sCB)))
    e("s_waitcnt lgkmcnt(0)")
    srd(e, sX, 4, X_BYTES); srd(e, sWS, 20, WS_USED); srd(e, sDBG, 18, 256)
    stamp(e, 0)
    e("v_lshlrev_b32 %s, 4, %s" % (v(vL16), v(vLane)))
    unit_setup_dyn(e)
    e("s_mov_b32 %s, %d" % (s(sSzO), WO_BYTES)); e("s_mov_b32 %s, %d" % (s(sSz2), W2_BYTES))
    pf_loop(e, "l0", unit_loads_dyn, 7, 12, 0)
    stamp(e, 1)
    e("s_waitcnt vmcnt(0)")
    e("s_barrier")
    stamp(e, 2)
    pf_loop(e, "s0", unit_store_dyn, 7, 12, 0)
    stamp(e, 3)
    e("s_waitcnt vmcnt(0)")
    e("s_barrier")
    e("s_cmp_lg_u32 %s, 0" % s(sWave))
    e("s_cbranch_scc1 L_pf_nosig")
    signal_count(e, CNT_P)
    e.lab("L_pf_nosig")
    stamp(e, 4)
    ph2_setup(e, F_SLOT)
    e("s_cmp_lg_u32 %s, 0" % s(sWave))
    e("s_cbranch_scc1 L_pf_nospin")
    spin_count(e, "pf", CNT_P, N_P, 250)
    e.lab("L_pf_nospin")
    e("s_barrier")
    get_nonce(e, "pf", 250)
    stamp(e, 5)
    if "ph1only" in OPTS: stamp_flush(e); e("s_endpgm")
    for g in w2l_groups(0, 25): e.ext(g)
    e("v_lshlrev_b32 v2, 2, %s" % v(vLane))
    e("buffer_load_dword %s, v2, %s, %s offen sc1" % (v(vPoll), sr(sWS,4), s(sFL)))
    for g in w2a_groups(5, PE_F): e.ext(g)
    e("s_mov_b32 %s, 1" % s(sMain))
    e("s_waitcnt vmcnt(%d)" % (5*(PE_F-5)))
    e("s_branch L_ph2")
    out += process_path(e.L, None, None, [])
    for role in ("attn", "ffn"):
        for w in range(4):
            tag = "%s_%d" % (role, w)
            pre = E(); pre.lab("L_" + tag)
            if role == "attn":
                cfg = attn_cfg(w)
                def extra(e, w=w):
                    read_addr_setup_attn(e)
                    attn_stash(e)
                    if w == 0:
                        e("s_cmp_lg_u32 s2, 0 ; rare"); e("s_cbranch_scc1 L_nononce ; rare")
                        e("s_memrealtime s[96:97] ; rare"); e("s_waitcnt lgkmcnt(0) ; rare")
                        e("s_or_b32 s96, s96, 1 ; rare"); e("v_mov_b32 v14, s96 ; rare"); e("v_mov_b32 v15, 0 ; rare")
                        e("buffer_store_dword v14, v15, %s, 0 offen sc1 ; rare" % sr(sDBG,4))
                        e.lab("L_nononce")
                        e("v_and_b32 v2, 7, %s" % v(vLane))
                        e("v_lshlrev_b32 v7, 4, v2")
                        e("v_mov_b32 v8, 0x3f803f80"); e("v_mov_b32 v9, v8"); e("v_mov_b32 v10, v8"); e("v_mov_b32 v11, v8")
                        e("ds_write_b128 v7, v[8:11]")
                        e("v_add_u32 v12, %d, v7" % A_SLOT); e("ds_write_b128 v12, v[8:11]")
                        e("v_add_u32 v13, %d, v7" % (2*A_SLOT)); e("ds_write_b128 v13, v[8:11]")
                body, post, side = role_main(pre, tag, cfg, attn_dma_list(w), vDO, w, 160, extra)
            else:
                cfg = ffn_cfg(w)
                body, post, side = role_main(pre, tag, cfg, ffn_dma_list(w), fDO, w, 152, read_addr_setup_ffn, units=("nounits" not in OPTS))
            post("s_branch L_ep_%s" % role)
            out += process_path(pre.L, "L_loop_" + tag, body, post.L)
            out += side
        ep = E()
        if role == "attn": attn_epilogue(ep)
        else: ffn_epilogue(ep)
        last = 17 if role == "attn" else PE_F
        groups = w2a_groups(5, last) if "ph1only" not in OPTS else []
        nin = (min(ATT_W2A_IN, len(groups)) if role == "attn" else FFN_W2A_IN) if groups else 0
        poll = ["  v_lshlrev_b32 %s, 2, %s" % (v(vPoll), v(vLane)), "  buffer_load_dword %s, %s, %s, %s offen sc1" % (v(vPoll), v(vPoll), sr(sWS,4), s(sFL))]
        lines = ep.L
        if role == "attn" and "nopoll" not in OPTS:
            k = len(lines) - ATT_POLL_BACK
            while lines[k].strip().startswith(("s_cbranch", "s_cselect")) or lines[k-1].strip().startswith(("s_cmp", "v_cmp")): k -= 1
            lines = lines[:k] + poll + lines[k:]
        epl = sprinkle(lines, groups[:nin], start=4, end_gap=(ATT_ENDGAP if role == "attn" else 10)) if nin else lines
        fin = E()
        stamp(fin, 6)
        if role == "attn" and "ph1only" not in OPTS:
            fin("s_mov_b32 %s, 0" % s(sMain))
            for g in groups[nin:]: fin.ext(g)
            ao_setup(fin)
            check_flags(fin, MASK_F, vPoll, "L_att_fast")
            spin_flags(fin, "attf", MASK_F, 250)
            fin.lab("L_att_fast")
            stamp(fin, 7)
            for p in range(DA):
                for g in act_loads(p): fin.ext(["%s ; rare" % t for t in g])
            fin("s_branch L_ph2_main_A")
        else:
            fin("s_mov_b32 %s, 1" % s(sMain))
            if "nopoll" not in OPTS: fin.ext(poll)
            nb = min(W2A_BEFORE_SIG, len(groups) - nin)
            for g in groups[nin:nin+nb]: fin.ext(g)
            fin("s_waitcnt vmcnt(%d)" % nb)
            stamp(fin, 7)
            if "ph1only" in OPTS:
                stamp_flush(fin); fin("s_endpgm")
            else:
                fin("s_barrier")
                signal_rb(fin, role, None)
                for g in groups[nin+nb:]: fin.ext(g)
                fin("s_branch L_ph2")
        if "ep2x" in OPTS:
            rep = E()
            rep("s_waitcnt vmcnt(0) lgkmcnt(0)"); rep("s_barrier")
            stamp(rep, 12)
            rep("s_add_u32 s100, s100, 1"); rep("s_cmp_lt_u32 s100, 2"); rep("s_cbranch_scc1 L_ep_%s" % role)
            epl = epl + rep.L
        out += process_path(["L_ep_%s:" % role, "  s_nop 7", "  s_nop 1"] + epl + fin.L, None, None, [])
    out += phase2()
    out.append("L_end:")
    return out

def kd(name, nfv, accum, sg=102):
    return """.section .rodata,"a"
.p2align 6
.amdhsa_kernel %s
  .amdhsa_next_free_vgpr %d
  .amdhsa_next_free_sgpr %d
  .amdhsa_accum_offset %d
  .amdhsa_group_segment_fixed_size 0
  .amdhsa_kernarg_size 72
  .amdhsa_user_sgpr_count 2
  .amdhsa_user_sgpr_kernarg_segment_ptr 1
  .amdhsa_system_sgpr_workgroup_id_x 1
  .amdhsa_float_denorm_mode_32 3
.end_amdhsa_kernel
""" % (name, nfv, sg, accum)

HEADER = """; Kernarg (72 bytes): [0] A_x [8] A_wqkv [16] A_wo [24] B_x [32] B_w1 [40] B_w2 [48] out [56] debug [64] ws
; @launch grid=(256,1,1) block=(256,1,1) lds=163840
.amdgcn_target "amdgcn-amd-amdhsa--gfx950"
"""
def main():
    if len(sys.argv) > 2: OPTS.update(sys.argv[2].split(","))
    k = top()
    if "noalign" not in OPTS:
        from alignpass import align
        head = '.amdgcn_target "amdgcn-amd-amdhsa--gfx950"\n.text\n.p2align 8\nk:\n'
        k = align(head, k, "\ns_endpgm\nL_codeend:\n")
    txt = HEADER + ".text\n.globl %s\n.p2align 8\n.type %s,@function\n%s:\n" % (KNAME, KNAME, KNAME) + "\n".join(k) + "\ns_endpgm\nL_codeend:\n" + kd(KNAME, 512, 256)
    path = sys.argv[1] if len(sys.argv) > 1 else "out2.s"
    open(path, "w").write(txt)
    print("wrote", path, len(txt), "bytes;", len(k), "lines")
if __name__ == "__main__": main()
```

```python
import sys, struct, os
from irlib import *

KNAME = "parallel_sum__sliding_local_dilated__dense_activation_relu__prompt_kernel"
S_, D_, DFF = 2048, 640, 1728
X_BYTES = S_*D_*2; WQKV_BYTES = D_*3*D_*2; WO_BYTES = D_*D_*2; W1_BYTES = D_*DFF*2; W2_BYTES = DFF*D_*2
NKS = 74
ACT_OFF = 0; ACT_TB = NKS*4096
W2F_OFF = 10*1024*1024; W2F_CB = NKS*5120
RSTD_OFF = 14*1024*1024
STAMP_OFF = 16*1024*1024
WS_USED = 17*1024*1024
OOB = 0x7F000000
FLAG_OFF = 15*1024*1024
MASK_F, MASK_A, MASK_P = 0x7f, 0xff00, 0xffff0000
SPIN_MAX = 200000
OPTS = set()
def f2u(x): return struct.unpack("<I", struct.pack("<f", x))[0]
def v(i): return "v%d" % i
def vr(i, n): return "v[%d:%d]" % (i, i+n-1)
def a(i): return "a%d" % i
def ar(i, n): return "a[%d:%d]" % (i, i+n-1)
def s(i): return "s%d" % i
def sr(i, n): return "s[%d:%d]" % (i, i+n-1)
MFMA = "v_mfma_f32_16x16x32_bf16"

class E:
    def __init__(self): self.L = []
    def __call__(self, t): self.L.append("  " + t)
    def lab(self, t): self.L.append(t + ":")
    def ext(self, lines):
        for t in lines: self.L.append(t if t.startswith("  ") or t.endswith(":") else "  " + t)

sWave = 22
sX, sW, sWS, sDBG = 24, 28, 32, 76
sRB, sCB, sKC, sSoX, sSoW, sDSlot, sRDelta, sIter = 36, 37, 38, 39, 40, 41, 42, 43
sT0, sT1, sT2, sT3 = 46, 47, 48, 49
sM = 50
sTB, sC2, sSig, sWB, sAB, sLA, sLB, sP0, sP1, sRB2 = 80, 81, 82, 83, 84, 85, 86, 87, 88, 89
sKQ = [4,5,6,7,8,9,10,11,12,13,14,15,18,19]
sNonce, sFL = 23, 45
sD0, sD1 = 90, 91
sXO, sXH = 92, 93
vLane = 255
vSt = 247
vPoll = 243
vNon = 252

def stamp(e, i):
    if "stamp" in OPTS:
        e("s_memrealtime s[96:97]"); e("s_memtime s[98:99]"); e("s_waitcnt lgkmcnt(0)")
        e("v_writelane_b32 %s, s96, %d" % (v(vSt), 2*i)); e("v_writelane_b32 %s, s98, %d" % (v(vSt), 2*i+1))
def stamp_flush(e):
    if "stamp" not in OPTS: return
    if "dbgst" in OPTS:
        uid = len(e.L)
        for wg, lst, base in ((0, [3,4,5,6,9,12], 2), (128, [3,4,5,7,9], 8), (240, [4,5,8], 13)):
            lab = "L_ds_%d_%d" % (wg, uid)
            e("s_cmp_lg_u32 s2, %d" % wg); e("s_cbranch_scc1 %s" % lab)
            e("s_cmp_lg_u32 %s, 0" % s(sWave)); e("s_cbranch_scc1 %s" % lab)
            e("v_readlane_b32 s96, %s, 0" % v(vSt))
            for n_, i in enumerate(lst):
                e("v_readlane_b32 s97, %s, %d" % (v(vSt), 2*i))
                e("s_nop 4")
                e("s_sub_u32 s97, s97, s96")
                e("v_mov_b32 v1, s97"); e("v_mov_b32 v2, %d" % (4*(base+n_)))
                e("buffer_store_dword v1, v2, %s, 0 offen" % sr(sDBG,4))
            e.lab(lab)
        return
    e("s_lshl_b32 s3, s2, 2"); e("s_add_u32 s3, s3, %s" % s(sWave)); e("s_lshl_b32 s3, s3, 8")
    e("s_add_u32 s3, s3, %d" % STAMP_OFF)
    e("v_lshlrev_b32 v1, 2, %s" % v(vLane))
    e("buffer_store_dword %s, v1, %s, s3 offen" % (v(vSt), sr(sWS,4)))

def srd(e, base, ptr, nbytes):
    e("s_mov_b32 %s, %s" % (s(base), s(ptr)))
    e("s_and_b32 %s, %s, 0xffff" % (s(base+1), s(ptr+1)))
    e("s_mov_b32 %s, %d" % (s(base+2), nbytes))
    e("s_mov_b32 %s, 0x20000" % s(base+3))

def check_flags(e, mask, val, oklab, rare=""):
    e("v_cmp_eq_u32 vcc, %s, %s%s" % (s(sNonce), v(val), rare))
    e("s_nop 3" + rare)
    e("s_and_b32 %s, vcc_lo, 0x%x%s" % (s(sT0), mask, rare))
    e("s_cmp_eq_u32 %s, 0x%x%s" % (s(sT0), mask, rare))
    e("s_cbranch_scc1 %s%s" % (oklab, rare))
def spin_flags(e, tag, mask, vtmp, have_first=None):
    R = " ; rare"
    if have_first is not None: check_flags(e, mask, have_first, "L_ok_%s" % tag)
    e("s_mov_b32 %s, 0" % s(sT1) + R)
    e("v_lshlrev_b32 %s, 2, %s" % (v(vtmp+1), v(vLane)) + R)
    e.lab("L_spin_%s" % tag)
    e("buffer_load_dword %s, %s, %s, %s offen sc1" % (v(vtmp), v(vtmp+1), sr(sWS,4), s(sFL)) + R)
    e("s_waitcnt vmcnt(0)" + R)
    check_flags(e, mask, vtmp, "L_ok_%s" % tag, R)
    e("s_sleep %d" % FSLEEP + R)
    e("s_add_u32 %s, %s, 1" % (s(sT1), s(sT1)) + R)
    e("s_cmp_lt_u32 %s, %d" % (s(sT1), SPIN_MAX) + R)
    e("s_cbranch_scc1 L_spin_%s" % tag + R)
    e.lab("L_ok_%s" % tag)
def get_nonce(e, tag, vtmp, have_first=None):
    R = " ; rare"
    if have_first is not None:
        e("v_readfirstlane_b32 %s, %s" % (s(sNonce), v(have_first)))
        e("s_nop 3")
        e("s_cmp_lg_u32 %s, 0" % s(sNonce))
        e("s_cbranch_scc1 L_nok_%s" % tag)
    e("s_mov_b32 %s, 0" % s(sT1) + R)
    e("v_mov_b32 %s, 0" % v(vtmp+1) + R)
    e.lab("L_nspin_%s" % tag)
    e("buffer_load_dword %s, %s, %s, 0 offen sc1" % (v(vtmp), v(vtmp+1), sr(sDBG,4)) + R)
    e("s_waitcnt vmcnt(0)" + R)
    e("v_readfirstlane_b32 %s, %s" % (s(sNonce), v(vtmp)) + R)
    e("s_nop 3" + R)
    e("s_cmp_lg_u32 %s, 0" % s(sNonce) + R)
    e("s_cbranch_scc1 L_nok_%s" % tag + R)
    e("s_sleep 8" + R)
    e("s_add_u32 %s, %s, 1" % (s(sT1), s(sT1)) + R)
    e("s_cmp_lt_u32 %s, %d" % (s(sT1), SPIN_MAX) + R)
    e("s_cbranch_scc1 L_nspin_%s" % tag + R)
    e.lab("L_nok_%s" % tag)
def signal_rb(e, tag, word_sgpr_expr, vt=(1, 2)):
    e("s_cmp_lg_u32 %s, 0" % s(sWave))
    e("s_cbranch_scc1 L_nosig_%s" % tag)
    R = " ; rare"
    e("s_and_b32 %s, %s, 1" % (s(sT0), s(sRB)) + R)
    e("s_lshl_b32 %s, %s, 4" % (s(sT0), s(sT0)) + R)
    a_, b_ = v(vt[0]), v(vt[1])
    e("v_add_u32 %s, %s, %s" % (a_, s(sT0), v(vLane)) + R)
    e("v_lshlrev_b32 %s, 3, %s" % (a_, a_) + R)
    e("s_lshr_b32 %s, %s, 1" % (s(sT0), s(sRB)) + R)
    e("v_add_u32 %s, %s, %s" % (a_, s(sT0), a_) + R)
    e("v_lshlrev_b32 %s, 7, %s" % (a_, a_) + R)
    e("s_lshl_b32 %s, %s, 2" % (s(sT0), s(sSig)) + R)
    e("s_add_u32 %s, %s, %d" % (s(sT0), s(sT0), FLAG_OFF) + R)
    e("v_mov_b32 %s, %s" % (b_, s(sNonce)) + R)
    e("s_mov_b32 exec_lo, 0xffff" + R); e("s_mov_b32 exec_hi, 0" + R)
    e("buffer_store_dword %s, %s, %s, %s offen sc1" % (b_, a_, sr(sWS,4), s(sT0)) + R)
    e("s_mov_b64 exec, -1" + R)
    e.lab("L_nosig_%s" % tag)

class Cfg: pass

def chunk_body(cfg, dma, last=False, rolled_tag=None, closing_vm=None, first_vm=None):
    NT = cfg.ntile; NF = 2*NT; R = cfg.ring; L = cfg.look; TAIL = cfg.tail
    assert NF % R == 0
    wreg = lambda f: cfg.wbase + (f % R)*4
    def wreads(f):
        kh, c = divmod(f % NF, NT); return cfg.wread(kh, c, wreg(f))
    def mf(f):
        kh, c = divmod(f % NF, NT); return cfg.mf(kh, c, wreg(f))
    NFIRST = cfg.nfirst
    items = []
    for f in range(0, NF - TAIL):
        g = f + L
        rd = wreads(g) if NFIRST <= g < NF else []
        if f == cfg.xread1_at: rd = rd + cfg.xreads(1)
        ms = []
        if f == 0 and "nostats" not in OPTS: ms += cfg.stats(0)
        if f == NT and "nostats" not in OPTS: ms += cfg.stats(1)
        ms += mf(f)
        items.append((rd, ms))
    issued = set(range(NFIRST)) | {f + L for f in range(0, NF - TAIL) if NFIRST <= f + L < NF}
    assert issued == set(range(NF)), (sorted(set(range(NF)) - issued))
    nm = sum(len(m) for _, m in items)
    out = []
    nd = len(dma)
    st = cfg.dma_start + cfg.dma_skew; en = nm - cfg.dma_endgap
    pos = [st + (en - st)*i // max(nd, 1) for i in range(nd)]
    cnt = 0; di = 0
    for rd, ms in items:
        rq = list(rd)
        for k, m in enumerate(ms):
            if rq:
                take = (len(rq) + (len(ms) - k) - 1) // (len(ms) - k)
                for _ in range(take): out.append(rq.pop(0))
            out.append(m); cnt += 1
            while di < nd and pos[di] <= cnt:
                out += dma[di]; di += 1
    assert di == nd
    if closing_vm is None: out.append("s_waitcnt lgkmcnt(0)")
    elif first_vm is not None:
        out.append("s_cmp_eq_u32 %s, 0" % s(sIter))
        out.append("s_cbranch_scc1 L_first_%s" % rolled_tag)
        out.append("s_waitcnt vmcnt(%d) lgkmcnt(0)" % closing_vm)
        out.append("L_join_%s:" % rolled_tag)
    else: out.append("s_waitcnt vmcnt(%d) lgkmcnt(0)" % closing_vm)
    out.append("s_barrier")
    aux = []
    if not last:
        aux += cfg.addr_update + cfg.xreads(0)
        for f in range(NFIRST): aux += wreads(f)
    if rolled_tag: aux += cfg.scal_update
    tail = []
    for f in range(NF - TAIL, NF): tail += mf(f)
    per = -(-len(aux) // max(len(tail), 1))
    for m in tail:
        out.append(m)
        for _ in range(per):
            if aux: out.append(aux.pop(0))
    out += aux
    if rolled_tag:
        out.append("s_cbranch_scc1 L_loop_%s" % rolled_tag)
    return ["  ; lgextra 2"] + [t if t.endswith(":") else "  " + t for t in out] + ["  ; lgextra 0"]

sCp, sCm = 94, 95
def scal_update(slot, wstep, halo=False):
    t = []
    if "rotk" in OPTS:
        t.append("s_add_u32 %s, %s, 1" % (s(sKC), s(sKC)))
        t.append("s_cmp_eq_u32 %s, 10" % s(sKC))
        t.append("s_cselect_b32 %s, 0, %s" % (s(sKC), s(sKC)))
        t.append("s_lshl_b32 %s, %s, 7" % (s(sSoX), s(sKC)))
        t.append("s_mul_i32 %s, %s, %d" % (s(sSoW), s(sKC), wstep))
    else:
        t.append("s_add_u32 %s, %s, 128" % (s(sSoX), s(sSoX)))
        t.append("s_add_u32 %s, %s, %d" % (s(sSoW), s(sSoW), wstep))
    t.append("s_cmp_eq_u32 %s, %d" % (s(sDSlot), 2*slot))
    t.append("s_cselect_b32 %s, %s, %s" % (s(sRDelta), s(sCm), s(sCp)))
    t.append("s_add_u32 %s, %s, %s" % (s(sDSlot), s(sDSlot), s(sRDelta)))
    t.append("s_add_u32 %s, %s, 1" % (s(sIter), s(sIter)))
    t.append("s_cmp_lt_u32 %s, 8" % s(sIter))
    return t
def addr_update(slot, regs):
    t = []
    t.append("s_cmp_eq_u32 %s, %d" % (s(sDSlot), slot))
    t.append("s_cselect_b32 %s, %s, %s" % (s(sRDelta), s(sCm), s(sCp)))
    for r in regs: t.append("v_add_u32 %s, %s, %s" % (v(r), s(sRDelta), v(r)))
    return t

vL16, vL16b = 241, 245
def w2_soff(p, dst):
    if p < 14: return ["s_mul_i32 %s, %s, 5" % (s(dst), s(sKQ[p])), "s_add_u32 %s, %s, %s" % (s(dst), s(dst), s(sWB))]
    return ["s_mul_i32 %s, %s, 5120" % (s(dst), s(sWave)), "s_add_u32 %s, %s, %s" % (s(dst), s(dst), s(sWB)),
            "s_add_u32 %s, %s, %d" % (s(dst), s(dst), 4*(p-14)*5120)]
def w2l_groups(q0, q1):
    G = []
    for q in range(q0, q1):
        p, ct = divmod(q, 5)
        g = []
        if ct == 0 or q == q0: g += w2_soff(p, sP0)
        g.append("s_add_u32 m0, %s, %d" % (s(sLA if q < 12 else sLB), (q if q < 12 else q - 12)*1024))
        g.append("s_add_u32 %s, %s, %d" % (s(sP1), s(sP0), ct*1024))
        g.append("buffer_load_dwordx4 %s, %s, %s offen sc1 lds" % (v(vL16), sr(sWS,4), s(sP1)))
        G.append(g)
    return G
def w2a_groups(p0, p1):
    G = []
    for p in range(p0, p1):
        base = ((p - 5) % 12)*20
        for ct in range(5):
            g = []
            if ct == 0: g += w2_soff(p, sP0)
            if ct < 4: g.append("buffer_load_dwordx4 %s, %s, %s, %s offen offset:%d sc1" % (ar(base+4*ct,4), v(vL16), sr(sWS,4), s(sP0), ct*1024))
            else:      g.append("buffer_load_dwordx4 %s, %s, %s, %s offen sc1" % (ar(base+16,4), v(vL16b), sr(sWS,4), s(sP0)))
            G.append(g)
    return G
def ph2_setup(e, slot):
    e("s_and_b32 %s, s2, 7" % s(sT0))
    e("s_lshr_b32 %s, s2, 3" % s(sT1))
    e("s_lshr_b32 %s, %s, 3" % (s(sTB), s(sT1)))
    e("s_lshl_b32 %s, %s, 2" % (s(sT0), s(sT0)))
    e("s_add_u32 %s, %s, %s" % (s(sTB), s(sTB), s(sT0)))
    e("s_and_b32 %s, %s, 7" % (s(sC2), s(sT1)))
    e("s_lshr_b32 %s, %s, 1" % (s(sRB2), s(sTB)))
    e("s_lshl_b32 %s, %s, 2" % (s(sRB2), s(sRB2)))
    e("s_mul_i32 %s, %s, %d" % (s(sWB), s(sC2), W2F_CB))
    if "fakecb" in OPTS: e("s_mov_b32 %s, 0" % s(sWB))
    e("s_add_u32 %s, %s, %d" % (s(sWB), s(sWB), W2F_OFF))
    e("s_mul_i32 %s, %s, %d" % (s(sAB), s(sTB), ACT_TB))
    if "faketb" in OPTS: e("s_and_b32 %s, s2, 7" % s(sAB)); e("s_mul_i32 %s, %s, %d" % (s(sAB), s(sAB), ACT_TB))
    if ACT_OFF: e("s_add_u32 %s, %s, %d" % (s(sAB), s(sAB), ACT_OFF))
    e("s_mul_i32 %s, %s, 12288" % (s(sLA), s(sWave)))
    e("s_add_u32 %s, %s, %d" % (s(sLA), s(sLA), slot))
    e("s_mul_i32 %s, %s, 13312" % (s(sLB), s(sWave)))
    e("s_add_u32 %s, %s, %d" % (s(sLB), s(sLB), 2*slot))
    e("s_mul_i32 %s, %s, 7" % (s(sT0), s(sC2)))
    e("s_lshr_b32 %s, %s, 2" % (s(sT0), s(sT0)))
    e("s_and_b32 %s, %s, 3" % (s(sT1), s(sTB)))
    e("s_mul_i32 %s, %s, 7" % (s(sT1), s(sT1)))
    e("s_lshr_b32 %s, %s, 1" % (s(sT1), s(sT1)))
    e("s_add_u32 %s, %s, %s" % (s(sT0), s(sT0), s(sT1)))
    e("s_sub_u32 %s, %s, 14" % (s(sT1), s(sT0)))
    e("s_cmp_ge_u32 %s, 14" % s(sT0))
    e("s_cselect_b32 %s, %s, %s" % (s(sT0), s(sT1), s(sT0)))
    e("s_lshl_b32 %s, %s, 2" % (s(sT0), s(sT0)))
    e("s_add_u32 %s, %s, %s" % (s(sT0), s(sT0), s(sWave)))
    e("s_add_u32 %s, %s, 20" % (s(sT0), s(sT0)))
    for p in range(14):
        e("s_lshl_b32 %s, %s, 10" % (s(sKQ[p]), s(sT0)))
        e("s_cmp_ge_u32 %s, %d" % (s(sT0), NKS))
        e("s_cselect_b32 %s, 0x10000000, %s" % (s(sKQ[p]), s(sKQ[p])))
        if p < 13:
            e("s_add_u32 %s, %s, 4" % (s(sT0), s(sT0)))
            e("s_sub_u32 %s, %s, 56" % (s(sT1), s(sT0)))
            e("s_cmp_ge_u32 %s, 76" % s(sT0))
            e("s_cselect_b32 %s, %s, %s" % (s(sT0), s(sT1), s(sT0)))
    e("v_add_u32 %s, 4096, %s" % (v(vL16b), v(vL16)))
    e("s_lshl_b32 %s, s2, 7" % s(sFL))
    e("s_add_u32 %s, %s, %d" % (s(sFL), s(sFL), FLAG_OFF))

vZero = 249

A_SLOT = 53248; A_XB = 18432; A_WPAIR = 1088
A_XJ = [[0,1,2,3,4],[5,6,7,8,9],[10,11,12,13],[14,15,16,17]]
vWA, vX0, vX1 = 160, 161, 162
vXE, vXOd, vWL = 163, 164, 165
aW, aXF, aONE = 0, 40, 240
aST = 244
def acc_own(T, c): return (T*15 + c)*4
def acc_halo(eidx): return 120 + eidx*4
vSumT = [136, 140]; vSqT = [144, 148]; vSumH, vSqH = 152, 156
def xf(kh, T): return aXF + (kh*3 + T)*4

def x_lane_setup(e, vE, vO):
    e("v_lshrrev_b32 v1, 3, %s" % v(vLane))
    e("v_and_b32 v2, 7, %s" % v(vLane))
    e("v_lshrrev_b32 v3, 4, %s" % v(vLane))
    e("v_mul_u32_u24 v4, 1280, v1")
    e("v_xor_b32 v5, v2, v3")
    e("v_lshl_add_u32 %s, v5, 4, v4" % v(vE))
    e("v_xor_b32 %s, 64, %s" % (v(vO), v(vE)))

def attn_lane_setup(e):
    x_lane_setup(e, vXE, vXOd)
    e("v_cmp_le_u32 vcc, 30, %s" % v(vLane))
    e("v_mov_b32 v9, 0x40000000")
    e("v_cndmask_b32_e64 v6, 0, 1, vcc")
    e("v_cmp_le_u32 vcc, 60, %s" % v(vLane))
    e("v_mul_u32_u24 v7, 30, v6")
    e("v_sub_u32 v7, %s, v7" % v(vLane))
    e("v_mul_u32_u24 v8, 26, v7")
    e("v_lshrrev_b32 v8, 8, v8")
    e("v_mul_u32_u24 v8, 1120, v8")
    e("v_mul_u32_u24 v6, 3840, v6")
    e("v_lshlrev_b32 v7, 4, v7")
    e("v_add3_u32 v6, v6, v7, v8")
    e("s_mul_i32 %s, %s, 160" % (s(sT0), s(sCB)))
    e("v_add_u32 v6, %s, v6" % s(sT0))
    e("v_cndmask_b32_e64 %s, v6, v9, vcc" % v(vWL))

vDO = 166
def attn_dma_list(w):
    L = []
    for grp in ([[0,1],[2,3,4]], [[5,6,7,8],[9]], [[10,11,12,13]], [[14,15,16,17]])[w]:
        for m, j in enumerate(grp):
            imm = m*1024
            L.append(("x", j*1024 if m == 0 else None, imm, vXOd if j & 1 else vXE, (j*8*1280 if j < 2 else (j-2)*8*1280) - imm, j < 2, w == 0 and j == 0))
    kh = w >> 1; rd = w & 1
    for m in range(8):
        k = 32*kh + 8*(m >> 1) + 4*rd + 2*(m & 1)
        L.append(("w", A_XB + (8*w + m)*A_WPAIR if m % 4 == 0 else None, (m & 3)*A_WPAIR, vWL, k*3840 - (m & 3)*A_WPAIR, False, False))
    return L
def ffn_dma_list(w):
    L = []
    for m in range(4):
        j = 4*w + m
        L.append(("x", 4*w*1024 if m == 0 else None, m*1024, fXOd if j & 1 else fXE, j*8*1280 - m*1024, False, False))
    for m in range(8):
        kh, grp = m >> 2, m & 3
        k = 32*kh + 16*(grp & 1) + 4*(grp >> 1)
        L.append(("w", F_XB + w*8192 + m*1024 if m % 4 == 0 else None, (m & 3)*1024, fWL, k*3456 + w*128 - (m & 3)*1024, False, False))
    return L
def dma_groups_salu(L):
    G = []; tmp = [sD0, sD1]
    for n, (kind, m0c, imm, lane, uc, halo, mask) in enumerate(L):
        g = []; t = tmp[n & 1]
        if m0c is not None: g.append("s_add_u32 m0, %s, %d" % (s(sDSlot), m0c))
        if kind == "x":
            g.append("s_add_u32 %s, %s, %s" % (s(t), s(sSoX), s(sXH if halo else sXO)))
            if uc: g.append("s_add_u32 %s, %s, %d" % (s(t), s(t), uc))
        else: g.append("s_add_u32 %s, %s, %d" % (s(t), s(sSoW), uc))
        if mask: g.append("s_mov_b32 exec_lo, 0xffffff00")
        g.append("buffer_load_dwordx4 %s, %s, %s offen offset:%d lds" % (v(lane), sr(sX if kind == "x" else sW,4), s(t), imm))
        if mask: g.append("s_mov_b32 exec_lo, -1")
        G.append(g)
    return G
def dma_offsets_setup(e, L, base):
    for n, (kind, m0c, imm, lane, uc, halo, mask) in enumerate(L):
        if kind == "x":
            e("s_add_u32 %s, %s, %d" % (s(sD0), s(sXH if halo else sXO), uc))
            e("v_add_u32 %s, %s, %s" % (v(base+n), s(sD0), v(lane)))
        else:
            e("v_add_u32 %s, %d, %s" % (v(base+n), uc, v(lane)))
def dma_groups_vgpr(L, base):
    G = []
    for n, (kind, m0c, imm, lane, uc, halo, mask) in enumerate(L):
        g = []
        if m0c is not None:
            m0 = "s_add_u32 m0, %s, %d" % (s(sDSlot), m0c)
            if G: G[-1].append(m0)
            else: G.append([m0])
        if mask: g.append("s_mov_b32 exec_lo, 0xffffff00")
        g.append("buffer_load_dwordx4 %s, %s, %s offen offset:%d lds" % (v(base+n), sr(sX if kind == "x" else sW,4), s(sSoX if kind == "x" else sSoW), imm))
        if mask: g.append("s_mov_b32 exec_lo, -1")
        G.append(g)
    return G

def attn_cfg(w):
    cfg = Cfg()
    cfg.ntile = 15; cfg.ring = 10; cfg.look = 6; cfg.tail = 4; cfg.nfirst = 6; cfg.wbase = aW
    H = {w: 0, 5 + w: 1, 10 + w: 2}
    if w < 3: H[(4, 9, 14)[w]] = 3
    def wread(kh, c, reg):
        off = kh*16*A_WPAIR + 32*c
        return ["ds_read_b64_tr_b16 %s, %s offset:%d" % (ar(reg,2), v(vWA), off),
                "ds_read_b64_tr_b16 %s, %s offset:%d" % (ar(reg+2,2), v(vWA), off + 8*A_WPAIR)]
    def mf(kh, c, reg):
        out = []
        for T in (0, 1):
            d = vr(acc_own(T, c), 4)
            if c < 10: out.append("%s %s, %s, %s, %s" % (MFMA, d, ar(reg,4), ar(xf(kh,T),4), d))
            else:      out.append("%s %s, %s, %s, %s" % (MFMA, d, ar(xf(kh,T),4), ar(reg,4), d))
        if c in H and "nohalo" not in OPTS:
            d = vr(acc_halo(H[c]), 4)
            if c < 10: out.append("%s %s, %s, %s, %s" % (MFMA, d, ar(reg,4), ar(xf(kh,2),4), d))
            else:      out.append("%s %s, %s, %s, %s" % (MFMA, d, ar(xf(kh,2),4), ar(reg,4), d))
        return out
    def stats(kh):
        out = []
        for T in (0, 1):
            out.append("%s %s, %s, %s, %s" % (MFMA, vr(vSumT[T],4), ar(aONE,4), ar(xf(kh,T),4), vr(vSumT[T],4)))
            out.append("%s %s, %s, %s, %s" % (MFMA, vr(vSqT[T],4), ar(xf(kh,T),4), ar(xf(kh,T),4), vr(vSqT[T],4)))
        if w == 3:
            out.append("%s %s, %s, %s, %s" % (MFMA, vr(vSumH,4), ar(aONE,4), ar(xf(kh,2),4), vr(vSumH,4)))
            out.append("%s %s, %s, %s, %s" % (MFMA, vr(vSqH,4), ar(xf(kh,2),4), ar(xf(kh,2),4), vr(vSqH,4)))
        return out
    def xreads(kh):
        ad = vX1 if kh else vX0
        return ["ds_read_b128 %s, %s offset:%d" % (ar(xf(kh,0),4), v(ad), (1+2*w)*2048),
                "ds_read_b128 %s, %s offset:%d" % (ar(xf(kh,1),4), v(ad), (2+2*w)*2048),
                "ds_read_b128 %s, %s offset:%d" % (ar(xf(kh,2),4), v(ad), 0)]
    cfg.wread = wread; cfg.mf = mf; cfg.stats = stats; cfg.xreads = xreads
    cfg.xread1_at = 4
    cfg.addr_update = addr_update(A_SLOT, [vWA, vX0, vX1])
    cfg.scal_update = scal_update(A_SLOT, 64*3840, halo=(w == 0))
    cfg.dma_start = 2; cfg.dma_skew = w; cfg.dma_endgap = 8
    cfg.wstep = 64*3840; cfg.slot = A_SLOT
    return cfg

def xaddr_setup(e, X0, X1, base):
    e("v_and_b32 v1, 15, %s" % v(vLane))
    e("v_lshrrev_b32 v4, 4, %s" % v(vLane))
    e("v_lshrrev_b32 v2, 1, v1")
    e("v_xor_b32 v2, v2, v4")
    e("v_lshlrev_b32 v2, 4, v2")
    e("v_lshl_add_u32 v2, v1, 7, v2")
    e("v_add_u32 %s, %d, v2" % (v(X0), base))
    e("v_xor_b32 v2, 64, v2")
    e("v_add_u32 %s, %d, v2" % (v(X1), base))

def read_addr_setup_attn(e):
    e("v_and_b32 v1, 15, %s" % v(vLane))
    e("v_lshrrev_b32 v2, 2, v1")
    e("v_and_b32 v3, 3, v1")
    e("v_lshrrev_b32 v4, 4, %s" % v(vLane))
    e("v_lshrrev_b32 v5, 1, v2")
    e("v_lshl_add_u32 v5, v4, 1, v5")
    e("v_mul_u32_u24 v5, %d, v5" % A_WPAIR)
    e("v_and_b32 v2, 1, v2")
    e("v_mul_u32_u24 v2, 480, v2")
    e("v_lshlrev_b32 v3, 3, v3")
    e("v_add3_u32 v5, v5, v2, v3")
    e("v_add_u32 %s, %d, v5" % (v(vWA), A_XB))
    xaddr_setup(e, vX0, vX1, 0)

sSzO, sSz2 = 69, 70

def attn_first_dma(e, nchunks=2):
    e("s_and_b32 %s, %s, 1" % (s(sT0), s(sWave)))
    e("s_cmp_eq_u32 %s, 1" % s(sT0))
    e("s_cselect_b32 %s, 64, 0" % s(sT1))
    e("v_xor_b32 v10, %s, %s" % (s(sT1), v(vXE)))
    e("s_mul_i32 %s, %s, 10240" % (s(sT1), s(sWave)))
    e("s_add_u32 %s, %s, %s" % (s(sT2), s(sXH), s(sT1)))
    e("s_add_u32 %s, %s, %s" % (s(sT3), s(sXO), s(sT1)))
    e("s_sub_u32 %s, %s, 20480" % (s(sT3), s(sT3)))
    e("s_cmp_lt_u32 %s, 2" % s(sWave))
    e("s_cselect_b32 %s, %s, %s" % (s(sD0), s(sT2), s(sT3)))
    e("s_cselect_b32 %s, 0, 0x%x" % (s(sD1), OOB))
    e("s_cmp_eq_u32 %s, 0" % s(sWave))
    e("s_cselect_b32 %s, 0xffffff00, -1" % s(sP1))
    e("s_lshl_b32 %s, %s, 10" % (s(sP0), s(sWave)))
    e("s_lshr_b32 %s, %s, 1" % (s(sT1), s(sWave))); e("s_lshl_b32 %s, %s, 5" % (s(sT1), s(sT1)))
    e("s_lshl_b32 %s, %s, 2" % (s(sT0), s(sT0))); e("s_add_u32 %s, %s, %s" % (s(sT1), s(sT1), s(sT0)))
    e("s_mul_i32 %s, %s, 3840" % (s(sT1), s(sT1)))
    e("s_mul_i32 %s, %s, %d" % (s(sT0), s(sWave), 8*A_WPAIR))
    for ch in range(nchunks):
        slot = ch*A_SLOT
        e("s_lshl_b32 %s, %s, 7" % (s(sSoX), s(sKC)))
        e("s_mul_i32 %s, %s, %d" % (s(sSoW), s(sKC), 64*3840))
        e("s_add_u32 %s, %s, %s" % (s(sSoW), s(sSoW), s(sT1)))
        for m in range(5):
            if m == 0:
                e("s_add_u32 %s, %s, %s" % (s(sT2), s(sD0), s(sSoX)))
                e("s_add_u32 m0, %s, %d" % (s(sP0), slot))
                e("s_mov_b32 exec_lo, %s" % s(sP1))
            else:
                e("s_add_u32 %s, %s, %s" % (s(sT2), s(sT3), s(sSoX)))
                e("s_add_u32 %s, %s, %d" % (s(sT2), s(sT2), m*4*10240))
                if m == 4:
                    e("s_add_u32 %s, %s, %s" % (s(sT2), s(sT2), s(sD1)))
                    e("s_add_u32 %s, %s, %d" % (s(sIter), s(sP0), slot + m*4096))
                    e("s_cmp_lt_u32 %s, 2" % s(sWave))
                    e("s_cselect_b32 m0, %s, %d" % (s(sIter), 161792))
                else: e("s_add_u32 m0, %s, %d" % (s(sP0), slot + m*4096))
                e("s_nop 0")
            e("buffer_load_dwordx4 v10, %s, %s offen lds" % (sr(sX,4), s(sT2)))
            if m == 0: e("s_mov_b32 exec_lo, -1")
        for m in range(8):
            if m % 4 == 0: e("s_add_u32 m0, %s, %d" % (s(sT0), slot + A_XB + m*A_WPAIR))
            k = 8*(m >> 1) + 2*(m & 1)
            e("s_add_u32 %s, %s, %d" % (s(sT2), s(sSoW), k*3840 - (m & 3)*A_WPAIR))
            e("buffer_load_dwordx4 %s, %s, %s offen offset:%d lds" % (v(vWL), sr(sW,4), s(sT2), (m & 3)*A_WPAIR))
        e("s_add_u32 %s, %s, 1" % (s(sKC), s(sKC)))
        if "rotk" in OPTS:
            e("s_cmp_eq_u32 %s, 10" % s(sKC))
            e("s_cselect_b32 %s, 0, %s" % (s(sKC), s(sKC)))
    return 13
def ffn_first_dma(e, nchunks=2):
    e("s_mul_i32 %s, %s, %d" % (s(sT3), s(sWave), 4*10240))
    e("s_add_u32 %s, %s, %s" % (s(sT3), s(sT3), s(sXO)))
    e("s_lshl_b32 %s, %s, 12" % (s(sP0), s(sWave)))
    e("s_lshl_b32 %s, %s, 7" % (s(sT1), s(sWave)))
    e("s_lshl_b32 %s, %s, 13" % (s(sT0), s(sWave)))
    for ch in range(nchunks):
        slot = ch*F_SLOT
        e("s_lshl_b32 %s, %s, 7" % (s(sSoX), s(sKC)))
        e("s_add_u32 %s, %s, %s" % (s(sSoX), s(sSoX), s(sT3)))
        e("s_mul_i32 %s, %s, %d" % (s(sSoW), s(sKC), 64*3456))
        e("s_add_u32 %s, %s, %s" % (s(sSoW), s(sSoW), s(sT1)))
        e("s_add_u32 m0, %s, %d" % (s(sP0), slot))
        for m in range(4):
            e("s_add_u32 %s, %s, %d" % (s(sT2), s(sSoX), m*10240 - m*1024))
            e("buffer_load_dwordx4 %s, %s, %s offen offset:%d lds" % (v(fXOd if m & 1 else fXE), sr(sX,4), s(sT2), m*1024))
        for m in range(8):
            kh, grp = m >> 2, m & 3
            k = 32*kh + 16*(grp & 1) + 4*(grp >> 1)
            if m % 4 == 0: e("s_add_u32 m0, %s, %d" % (s(sT0), slot + F_XB + m*1024))
            e("s_add_u32 %s, %s, %d" % (s(sT2), s(sSoW), k*3456 - (m & 3)*1024))
            e("buffer_load_dwordx4 %s, %s, %s offen offset:%d lds" % (v(fWL), sr(sW,4), s(sT2), (m & 3)*1024))
        e("s_add_u32 %s, %s, 1" % (s(sKC), s(sKC)))
        if "rotk" in OPTS:
            e("s_cmp_eq_u32 %s, 10" % s(sKC))
            e("s_cselect_b32 %s, 0, %s" % (s(sKC), s(sKC)))
    return 12

sQ = 72
vPFo, vPFd = 182, 183
def coop_setup(e, w):
    e("s_lshr_b32 %s, s2, 3" % s(sT0)); e("s_sub_u32 %s, %s, 16" % (s(sT0), s(sT0)))
    e("s_and_b32 %s, s2, 1" % s(sT1))
    e("s_and_b32 %s, s2, 7" % s(sT2)); e("s_lshr_b32 %s, %s, 1" % (s(sT2), s(sT2)))
    e("v_mov_b32 v3, 0x40000000")
    if w < 2:
        e("s_mul_i32 %s, %s, 75" % (s(sT0), s(sT0)))
        e("s_lshl_b32 %s, %s, 10" % (s(sT1), s(sT1)))
        e("s_add_u32 %s, %s, %s" % (s(sT0), s(sT0), s(sT1)))
        e("s_add_u32 %s, %s, %d" % (s(sT0), s(sT0), (38*w - 16) & 0xffffffff))
        e("v_add_u32 v1, %s, %s" % (s(sT0), v(vLane)))
        e("v_max_i32 v1, 0, v1")
        e("v_mul_u32_u24 v1, 1280, v1")
        e("v_cmp_gt_u32 vcc, 38, %s" % v(vLane))
    elif w == 2:
        e("s_mul_i32 %s, %s, 42" % (s(sT0), s(sT0)))
        e("v_add_u32 v1, %s, %s" % (s(sT0), v(vLane)))
        e("v_mul_u32_u24 v2, 7282, v1"); e("v_lshrrev_b32 v2, 16, v2")
        e("v_mul_u32_u24 v4, 9, v2"); e("v_sub_u32 v4, v1, v4")
        e("v_mul_u32_u24 v5, 86, v4"); e("v_lshrrev_b32 v5, 8, v5")
        e("v_mul_u32_u24 v6, 3, v5"); e("v_sub_u32 v6, v4, v6")
        e("s_mul_i32 %s, %s, 320" % (s(sT2), s(sT2))); e("s_lshr_b32 %s, %s, 7" % (s(sT2), s(sT2)))
        e("v_add_u32 v6, %s, v6" % s(sT2))
        e("v_mul_u32_u24 v1, 3840, v2"); e("v_mul_u32_u24 v5, 1280, v5")
        e("v_lshl_add_u32 v1, v6, 7, v1"); e("v_add_u32 v1, v1, v5")
        e("v_cmp_gt_u32 vcc, 42, %s" % v(vLane))
    else:
        e("s_mul_i32 %s, %s, 55" % (s(sT0), s(sT0)))
        e("v_add_u32 v1, %s, %s" % (s(sT0), v(vLane)))
        e("v_mul_u32_u24 v2, 5462, v1"); e("v_lshrrev_b32 v2, 16, v2")
        e("v_mul_u32_u24 v4, 12, v2"); e("v_sub_u32 v4, v1, v4")
        e("s_mul_i32 %s, %s, 14" % (s(sT2), s(sT2))); e("s_lshr_b32 %s, %s, 3" % (s(sT2), s(sT2))); e("s_lshl_b32 %s, %s, 2" % (s(sT2), s(sT2)))
        e("v_add_u32 v4, %s, v4" % s(sT2))
        e("v_mul_u32_u24 v1, 3456, v2"); e("v_lshl_add_u32 v1, v4, 7, v1")
        e("v_cmp_gt_u32 vcc, 55, %s" % v(vLane))
    e("v_cndmask_b32_e64 %s, v3, v1, vcc" % v(vPFo))
COOP_D = 4
sSoQ = 44
def coop_load(w, extra_chunks):
    if w < 2: return ["buffer_load_dword %s, %s, %s, %s offen offset:%d ; rare" % (v(vPFd), v(vPFo), sr(sX,4), s(sSoX), 128*extra_chunks)]
    st_ = 64*3840 if w == 2 else 64*3456
    return ["s_add_u32 %s, %s, %d" % (s(sD1), s(sSoQ if w == 2 else sSoW), extra_chunks*st_),
            "buffer_load_dword %s, %s, %s, %s offen ; rare" % (v(vPFd), v(vPFo), sr(sQ if w == 2 else sW,4), s(sD1))]
def zero_acc(e, n):
    for i in range(4): e("v_mov_b32 %s, 0" % v(246 if False else 232+i))
    k = 0
    while k + 16 <= n:
        e("v_mfma_f32_32x32x16_bf16 %s, v[232:235], v[232:235], 0" % vr(k,16)); k += 16
    while k < n:
        e("v_mov_b32 %s, 0" % v(k)); k += 1
def role_main(e, tag, cfg, L, dobase, w, zero_n, extra_pre=None, units=False):
    wstep, slot = cfg.wstep, cfg.slot
    nd = len(L)
    coop = tag.startswith("ffn") and "coop" in OPTS
    def set_soff():
        e("s_lshl_b32 %s, %s, 7" % (s(sSoX), s(sKC)))
        e("s_mul_i32 %s, %s, %d" % (s(sSoW), s(sKC), wstep))
    def adv():
        e("s_add_u32 %s, %s, 1" % (s(sKC), s(sKC)))
        if "rotk" in OPTS:
            e("s_cmp_eq_u32 %s, 10" % s(sKC))
            e("s_cselect_b32 %s, 0, %s" % (s(sKC), s(sKC)))
    npro = 13 if tag.startswith("attn") else 12
    e("v_lshlrev_b32 %s, 4, %s" % (v(vL16), v(vLane)))
    if units:
        unit_setup_dyn(e)
        e("s_mov_b32 %s, %d" % (s(sSzO), WO_BYTES)); e("s_mov_b32 %s, %d" % (s(sSz2), W2_BYTES))
        e("s_mov_b32 %s, %d" % (s(sUl), 3*slot))
        unit_loads_dyn(e)
    npre = 0
    if coop:
        coop_setup(e, w)
        if w == 2: e("s_mov_b32 %s, %d" % (s(sSoQ), 64*3840))
        for x in range(1, COOP_D + 1):
            e.ext(coop_load(w, x)); npre += 1
    if extra_pre: extra_pre(e)
    dma_offsets_setup(e, L, dobase)
    zero_acc(e, zero_n)
    e("v_mov_b32 v254, 0x3f803f80")
    for i in range(4): e("v_accvgpr_write_b32 %s, v254" % a(aONE+i))
    e("v_mov_b32 %s, 0" % v(vZero))
    nyoung = npro + npre + (3 if units else 0)
    if "late1" in OPTS:
        set_soff()
        e("s_mov_b32 %s, %d" % (s(sDSlot), slot))
        for g in dma_groups_vgpr(L, dobase): e.ext(g)
        adv()
        nyoung = nd
    ph2_setup(e, slot)
    set_soff()
    e("s_mov_b32 %s, %d" % (s(sDSlot), 2*slot))
    e("s_mov_b32 %s, %d" % (s(sCp), slot))
    e("s_mov_b32 %s, %d" % (s(sCm), (-2*slot) & 0xffffffff))
    e("s_mov_b32 %s, 0" % s(sIter))
    if coop and w == 2: e("s_mov_b32 %s, %d" % (s(sSoQ), 2*64*3840))
    stamp(e, 2)
    e("s_waitcnt vmcnt(%d) lgkmcnt(0)" % nyoung)
    e("s_barrier")
    stamp(e, 3)
    R = cfg.ring
    e.ext(cfg.xreads(0))
    for f in range(cfg.nfirst):
        e.ext(cfg.wread(0, f, cfg.wbase + (f % R)*4))
    dma = dma_groups_vgpr(L, dobase)
    if "nopoll" not in OPTS:
        pg = ["s_cmp_lg_u32 %s, 6 ; rare" % s(sIter), "s_cbranch_scc0 L_pp_%s ; rare" % tag, "L_np_%s:" % tag]
        side = ["L_pp_%s:" % tag, "  buffer_load_dwordx2 %s, %s, %s, 0 offen sc1 ; rare" % (vr(vNon,2), v(vZero), sr(sDBG,4)), "  s_branch L_np_%s ; rare" % tag]
        if units:
            us = E(); unit_store_dyn(us, 216, full_wait=True)
            pg += ["s_cmp_lg_u32 %s, 1 ; rare" % s(sIter), "s_cbranch_scc0 L_pu_%s ; rare" % tag, "L_nu_%s:" % tag]
            side += ["L_pu_%s:" % tag] + us.L + ["  s_branch L_nu_%s" % tag]
        if units and w == 0:
            sg = E(); signal_count(sg, CNT_P)
            pg += ["s_cmp_lg_u32 %s, 3 ; rare" % s(sIter), "s_cbranch_scc0 L_ps_%s ; rare" % tag, "L_ns_%s:" % tag]
            side += ["L_ps_%s:" % tag] + sg.L + ["  s_branch L_ns_%s ; rare" % tag]
        dma = [pg] + dma
    else: side = []
    ncl = nd
    if coop:
        g = coop_load(w, COOP_D)
        if w == 2: g.append("s_add_u32 %s, %s, %d" % (s(sSoQ), s(sSoQ), 64*3840))
        dma = dma + [g]; ncl = nd + 2
    if "nodma" in OPTS: dma = []
    first_vm = None
    if coop:
        first_vm = min(63, nd + 1 + npre)
        side += ["L_first_%s:" % tag, "  s_waitcnt vmcnt(%d) lgkmcnt(0) ; rare" % first_vm, "  s_branch L_join_%s ; rare" % tag]
    body = chunk_body(cfg, dma, rolled_tag=tag, closing_vm=ncl if "nodma" not in OPTS else 0, first_vm=first_vm)
    post = E()
    stamp(post, 4)
    if "nopoll" not in OPTS:
        get_nonce(post, tag, 250, have_first=vNon)
        spin_count(post, "p_" + tag, CNT_P, N_P, 250, have_first=vNon+1)
    if "ph1only" in OPTS:
        post.ext(chunk_body(cfg, [], closing_vm=0))
        post.ext(chunk_body(cfg, [], last=True, closing_vm=None))
    else:
        post.ext(chunk_body(cfg, w2l_groups(0, 12), closing_vm=12))
        post.ext(chunk_body(cfg, w2l_groups(12, 25), last=True, closing_vm=None))
    stamp(post, 5)
    return body, post, side

A_ND = [13, 13, 12, 12]

X_CS = 0
X_NM = 1024
X_RS = 2048
X_EX = 4096
vQp = 160
vKA, vKB, vKP = 180, 190, 200
vVp = 210
NEG = 0xf149f2ca
def stats_finalize(e, vsum, vsq, vt, out_nm, out_rs, out_std, smask):
    e("v_cndmask_b32_e64 %s, 0, %s, %s" % (v(vt), v(vsq+0), sr(smask,2)))
    for r in (1,2,3):
        e("v_cndmask_b32_e64 %s, %s, %s, %s" % (v(vt), v(vt), v(vsq+r), sr(smask+2*r,2)))
    e("v_mov_b32 %s, %s" % (v(vt+1), v(vt)))
    e("v_permlane32_swap_b32 %s, %s" % (v(vt), v(vt+1)))
    e("v_add_f32 %s, %s, %s" % (v(vt), v(vt), v(vt+1)))
    e("v_mov_b32 %s, %s" % (v(vt+1), v(vt)))
    e("v_permlane16_swap_b32 %s, %s" % (v(vt), v(vt+1)))
    e("v_add_f32 %s, %s, %s" % (v(vt), v(vt), v(vt+1)))
    e("v_mul_f32 %s, 0x%08x, %s" % (v(out_nm), f2u(-1.0/640), v(vsum)))
    e("v_mul_f32 %s, 0x%08x, %s" % (v(vt), f2u(1.0/640), v(vt)))
    e("v_fma_f32 %s, -%s, %s, %s" % (v(vt), v(out_nm), v(out_nm), v(vt)))
    e("v_max_f32 %s, 0, %s" % (v(vt), v(vt)))
    e("v_add_f32 %s, 0x%08x, %s" % (v(vt), f2u(1e-5), v(vt)))
    e("v_rsq_f32 %s, %s" % (v(out_rs), v(vt)))
    if out_std is not None:
        e("v_mul_f32 %s, %s, %s" % (v(out_std), v(vt), v(out_rs)))


def attn_stash(e):
    e("v_and_b32 v1, 15, %s" % v(vLane))
    e("v_lshrrev_b32 v2, 4, %s" % v(vLane))
    e("v_lshlrev_b32 v3, 2, v2")
    e("v_sub_u32 v3, v1, v3")
    e("v_and_b32 v4, 1, v1")
    e("v_mov_b32 v5, 0x%08x" % NEG)
    e("v_cmp_eq_u32 %s, 0, v4" % sr(sM+14,2))
    for r in range(4):
        e("v_subrev_u32 v6, %d, v3" % r)
        e("v_cmp_le_i32 %s, 0, v6" % sr(sM+16,2))
        if r & 1: e("s_andn2_b64 %s, exec, %s" % (sr(sM+18,2), sr(sM+14,2)))
        else:     e("s_mov_b64 %s, %s" % (sr(sM+18,2), sr(sM+14,2)))
        e("s_and_b64 %s, %s, %s" % (sr(sM+20,2), sr(sM+18,2), sr(sM+16,2)))
        e("s_andn2_b64 %s, %s, %s" % (sr(sM+22,2), sr(sM+18,2), sr(sM+16,2)))
        e("v_cndmask_b32_e64 v7, v5, 0, %s" % sr(sM+22,2)); e("v_accvgpr_write_b32 %s, v7" % a(aST+r))
        e("v_cndmask_b32_e64 v8, v5, 0, %s" % sr(sM+20,2)); e("v_accvgpr_write_b32 %s, v8" % a(aST+4+r))
    e("v_sub_u32 v6, v3, v4")
    e("v_mov_b32 v9, 0x0c0c0100"); e("v_mov_b32 v10, 0x01000c0c")
    e("v_cndmask_b32_e64 v9, v10, v9, %s" % sr(sM+14,2))
    e("v_mov_b32 v10, 0x0c0c0302"); e("v_mov_b32 v11, 0x03020c0c")
    e("v_cndmask_b32_e64 v10, v11, v10, %s" % sr(sM+14,2))
    e("v_mov_b32 v11, 0x0c0c0c0c")
    e("v_cmp_le_i32 %s, 0, v6" % sr(sM+16,2))
    e("v_cndmask_b32_e64 v12, v9, v11, %s" % sr(sM+16,2)); e("v_accvgpr_write_b32 %s, v12" % a(aST+8))
    e("v_cndmask_b32_e64 v13, v11, v9, %s" % sr(sM+16,2)); e("v_accvgpr_write_b32 %s, v13" % a(aST+10))
    e("v_cmp_le_i32 %s, 2, v6" % sr(sM+16,2))
    e("v_cndmask_b32_e64 v12, v10, v11, %s" % sr(sM+16,2)); e("v_accvgpr_write_b32 %s, v12" % a(aST+9))
    e("v_cndmask_b32_e64 v13, v11, v10, %s" % sr(sM+16,2)); e("v_accvgpr_write_b32 %s, v13" % a(aST+11))

def attn_epilogue(e):
    R = " ; rare"
    tNM = [240, 242]; tRS = [244, 246]; tSTD = [248, 249]
    vt = 166
    smask = sM
    A1, A2, A3, A4, A5, A6 = 176, 177, 178, 179, 250, 254
    ML = {1: 160, 2: 161, 3: 162}; MH = {0: 163, 1: 164, 2: 165}
    for r in range(4):
        e("s_mov_b32 %s, 0x%08x" % (s(smask+2*r), 0x00100001 << r))
        e("s_mov_b32 %s, 0x%08x" % (s(smask+2*r+1), 0x10000100 << r))
    e("v_and_b32 v253, 15, %s" % v(vLane))
    e("v_lshlrev_b32 v253, 2, v253")
    e("v_lshrrev_b32 v252, 4, %s" % v(vLane))
    e("s_lshl_b32 %s, %s, 7" % (s(sT0), s(sWave)))
    e("s_lshl_b32 %s, %s, 6" % (s(sT1), s(sWave)))
    e("v_add_u32 %s, %s, v253" % (v(A1), s(sT0)))
    e("v_add_u32 %s, %s, v253" % (v(A4), s(sT1)))
    for T in (0, 1):
        stats_finalize(e, vSumT[T], vSqT[T], vt, tNM[T], tRS[T], tSTD[T], smask)
        e("ds_write_b32 %s, %s offset:%d" % (v(A1), v(tNM[T]), X_NM + 64 + T*64))
        e("ds_write_b32 %s, %s offset:%d" % (v(A1), v(tRS[T]), X_RS + 64 + T*64))
    for h in (1, 2, 3):
        e("v_cmp_le_u32 %s, %d, v252" % (sr(sM+16,2), h))
        e("v_cndmask_b32_e64 %s, 0, -1, %s" % (v(ML[h]), sr(sM+16,2)))
    for h in (0, 1, 2): e("v_not_b32 %s, %s" % (v(MH[h]), v(ML[h+1])))
    e("v_lshlrev_b32 v252, 4, v252")
    e("v_add_u32 %s, %s, v252" % (v(A2), s(sT0)))
    e("v_add_u32 %s, %s, v252" % (v(A3), s(sT1)))
    e("s_cmp_lg_u32 %s, 3" % s(sWave))
    e("s_cbranch_scc1 L_nohs")
    hs = E(); stats_finalize(hs, vSumH, vSqH, vt, 136, 137, None, smask)
    hs("ds_write_b32 v253, v136 offset:%d" % X_NM); hs("ds_write_b32 v253, v137 offset:%d" % X_RS)
    HS = process(hs.L, State(), [])
    tmp = []; process(hs.L, State(), tmp)
    for t in tmp: e.L.append(t + R)
    e.lab("L_nohs")
    e("s_cmp_lg_u32 %s, 0" % s(sCB))
    e("s_cbranch_scc1 L_nors")
    e("s_lshl_b32 %s, %s, 9" % (s(sT2), s(sRB)) + R)
    e("s_add_u32 %s, %s, %s" % (s(sT2), s(sT2), s(sT0)) + R)
    e("s_add_u32 %s, %s, %d" % (s(sT2), s(sT2), RSTD_OFF) + R)
    e("buffer_store_dword %s, v253, %s, %s offen sc1" % (v(tRS[0]), sr(sWS,4), s(sT2)) + R)
    e("buffer_store_dword %s, v253, %s, %s offen offset:64 sc1" % (v(tRS[1]), sr(sWS,4), s(sT2)) + R)
    e.lab("L_nors")
    e("s_mov_b32 exec_lo, 0x00010001"); e("s_mov_b32 exec_hi, 0x00010001")
    e("ds_write_b128 %s, %s offset:%d" % (v(A3), vr(acc_halo(0),4), X_CS))
    e("ds_write_b128 %s, %s offset:%d" % (v(A3), vr(acc_halo(1),4), X_CS + 5*64))
    e("s_cmp_gt_u32 %s, 1" % s(sWave))
    e("s_cbranch_scc1 L_e3a")
    e("s_mul_i32 %s, %s, 320" % (s(sT2), s(sWave)) + R)
    e("v_add_u32 v167, %s, v252" % s(sT2) + R)
    e("ds_write_b128 v167, %s offset:%d" % (vr(acc_halo(3),4), X_CS + 4*64) + R)
    e.lab("L_e3a")
    e("s_mov_b32 exec_lo, 0x0000ffff"); e("s_mov_b32 exec_hi, 0")
    e("ds_write_b32 %s, %s offset:%d" % (v(A4), v(acc_halo(2)), X_CS + 10*64))
    e("s_cmp_lg_u32 %s, 2" % s(sWave))
    e("s_cbranch_scc1 L_e3b")
    e("ds_write_b32 v253, %s offset:%d" % (v(acc_halo(3)), X_CS + 14*64) + R)
    e.lab("L_e3b")
    e("s_mov_b64 exec, -1")
    e("v_lshlrev_b32 v251, 3, %s" % v(vLane))
    e("s_lshl_b32 %s, %s, 9" % (s(sT2), s(sWave)))
    e("v_add_u32 %s, %s, v251" % (v(A5), s(sT2)))
    e("s_mul_i32 %s, %s, 5120" % (s(sT2), s(sWave)))
    e("v_add_u32 %s, %s, v251" % (v(A6), s(sT2)))
    e("s_waitcnt lgkmcnt(0)")
    e("s_barrier")
    if "epst" in OPTS: stamp(e, 8)
    CS4 = lambda c: 200 + 4*c
    nm4 = [136, 140]; rs4 = [144, 148]
    tHN, tHR = 152, 154
    csK = 156
    hn4, hr4 = 168, 172
    for c in range(5): e("ds_read_b128 %s, v252 offset:%d" % (vr(CS4(c),4), X_CS + c*64))
    e("ds_read_b32 %s, v253 offset:%d" % (v(tHN), X_NM))
    e("ds_read_b32 %s, v253 offset:%d" % (v(tHR), X_RS))
    for c in range(5, 10): e("ds_read_b128 %s, v252 offset:%d" % (vr(CS4(c),4), X_CS + c*64))
    e("ds_read_b128 %s, %s offset:%d" % (vr(csK,4), v(A3), X_CS + 5*64))
    def pkfma_bc(d, s0, sc, sfx=""):
        e("v_pk_fma_f32 %s, %s, %s, %s op_sel_hi:[1,0,1]%s" % (vr(d,2), vr(s0,2), vr(sc,2), vr(d,2), sfx))
    def pkmul_bc(d, sc, sfx=""):
        e("v_pk_mul_f32 %s, %s, %s op_sel_hi:[1,0]%s" % (vr(d,2), vr(d,2), vr(sc,2), sfx))
    t0, t1 = 166, 167
    for c in range(5):
        for T in (0, 1):
            d = acc_own(T, c); b = acc_own(T, 0)
            pkfma_bc(d, CS4(c), tNM[T]); pkfma_bc(d+2, CS4(c)+2, tNM[T])
            if c == 0:
                e("v_cvt_pk_bf16_f32 %s, %s, %s" % (v(d), v(d), v(d+1))); e("v_cvt_pk_bf16_f32 %s, %s, %s" % (v(d+1), v(d+2), v(d+3)))
            elif c == 4:
                e("v_cvt_pk_bf16_f32 %s, %s, %s" % (v(b+14), v(d), v(d+1))); e("v_cvt_pk_bf16_f32 %s, %s, %s" % (v(b+15), v(d+2), v(d+3)))
            else:
                e("v_cvt_pk_bf16_f32 %s, %s, %s" % (v(t0), v(d), v(d+1))); e("v_cvt_pk_bf16_f32 %s, %s, %s" % (v(t1), v(d+2), v(d+3)))
                e("v_and_b32 %s, %s, %s" % (v(d), v(t0), v(ML[c]))); e("v_and_b32 %s, %s, %s" % (v(d+1), v(t1), v(ML[c])))
                e("v_and_b32 %s, %s, %s" % (v(b+4*(c-1)+2), v(t0), v(MH[c-1]))); e("v_and_b32 %s, %s, %s" % (v(b+4*(c-1)+3), v(t1), v(MH[c-1])))
    for T in (0, 1):
        e("ds_read_b128 %s, %s offset:%d" % (vr(nm4[T],4), v(A2), X_NM + 64 + T*64))
        e("ds_read_b128 %s, %s offset:%d" % (vr(rs4[T],4), v(A2), X_RS + 64 + T*64))
    e("ds_read_b128 %s, v252 offset:%d" % (vr(hn4,4), X_NM))
    e("ds_read_b128 %s, v252 offset:%d" % (vr(hr4,4), X_RS))
    if "epst" in OPTS: stamp(e, 9)
    csd = [16, 18, 76, 78, 20]; csdW = 22
    for c in range(5, 10):
        for T in (0, 1):
            d = acc_own(T, c)
            pkfma_bc(d, CS4(c), tNM[T]); pkfma_bc(d+2, CS4(c)+2, tNM[T])
            pkmul_bc(d, tRS[T]); pkmul_bc(d+2, tRS[T])
            dst = (vKA, vKB)[T] + 2*(c-5)
            e("v_cvt_pk_bf16_f32 %s, %s, %s" % (v(dst), v(d), v(d+1)))
            e("v_cvt_pk_bf16_f32 %s, %s, %s" % (v(dst+1), v(d+2), v(d+3)))
        e("ds_write_b64 %s, %s offset:%d" % (v(A6), vr(vKB+2*(c-5),2), X_EX + 5120 + (c-5)*512))
        if c == 5:
            for i in range(5): e("ds_read_b32 %s, v253 offset:%d" % (v(csd[i]), X_CS + (10+i)*64))
            e("ds_read_b32 %s, %s offset:%d" % (v(csdW), v(A4), X_CS + 10*64))
    d = acc_halo(1)
    pkfma_bc(d, csK, tHN); pkfma_bc(d+2, csK+2, tHN); pkmul_bc(d, tHR); pkmul_bc(d+2, tHR)
    e("v_cvt_pk_bf16_f32 %s, %s, %s" % (v(d), v(d), v(d+1))); e("v_cvt_pk_bf16_f32 %s, %s, %s" % (v(d+1), v(d+2), v(d+3)))
    e("ds_write_b64 %s, %s offset:%d" % (v(A5), vr(d,2), X_EX))
    e("s_cmp_lg_u32 %s, 1" % s(sWave))
    e("s_cbranch_scc1 L_e3k")
    d = acc_halo(3)
    pkfma_bc(d, CS4(9), tHN, R); pkfma_bc(d+2, CS4(9)+2, tHN, R); pkmul_bc(d, tHR, R); pkmul_bc(d+2, tHR, R)
    e("v_cvt_pk_bf16_f32 %s, %s, %s" % (v(d), v(d), v(d+1)) + R); e("v_cvt_pk_bf16_f32 %s, %s, %s" % (v(d+1), v(d+2), v(d+3)) + R)
    e("ds_write_b64 v251, %s offset:%d" % (vr(d,2), X_EX + 4*512) + R)
    e.lab("L_e3k")
    def vtile(d, nm, rs, cd, sfx=""):
        for h_ in (0, 2):
            e("v_pk_fma_f32 %s, %s, %s, %s op_sel_hi:[1,0,1]%s" % (vr(d+h_,2), vr(nm+h_,2), vr(cd,2), vr(d+h_,2), sfx))
            e("v_pk_mul_f32 %s, %s, %s%s" % (vr(d+h_,2), vr(d+h_,2), vr(rs+h_,2), sfx))
    for i in range(5):
        c = 10 + i
        for T in (0, 1):
            d = acc_own(T, c)
            vtile(d, nm4[T], rs4[T], csd[i])
            dst = vVp + 6*i + 2 + 2*T
            e("v_cvt_pk_bf16_f32 %s, %s, %s" % (v(dst), v(d), v(d+1)))
            e("v_cvt_pk_bf16_f32 %s, %s, %s" % (v(dst+1), v(d+2), v(d+3)))
        e("ds_write_b64 %s, %s offset:%d" % (v(A6), vr(vVp+6*i+4,2), X_EX + 5120 + (5+i)*512))
    d = acc_halo(2)
    vtile(d, hn4, hr4, csdW)
    e("v_cvt_pk_bf16_f32 %s, %s, %s" % (v(d), v(d), v(d+1))); e("v_cvt_pk_bf16_f32 %s, %s, %s" % (v(d+1), v(d+2), v(d+3)))
    e("ds_write_b64 %s, %s offset:%d" % (v(A5), vr(d,2), X_EX + 5*512))
    e("s_cmp_lg_u32 %s, 2" % s(sWave))
    e("s_cbranch_scc1 L_e3v")
    d = acc_halo(3)
    vtile(d, hn4, hr4, csd[4], R)
    e("v_cvt_pk_bf16_f32 %s, %s, %s" % (v(d), v(d), v(d+1)) + R); e("v_cvt_pk_bf16_f32 %s, %s, %s" % (v(d+1), v(d+2), v(d+3)) + R)
    e("s_nop 1" + R)
    e("ds_write_b64 v251, %s offset:%d" % (vr(d,2), X_EX + 9*512) + R)
    e.lab("L_e3v")
    if "epst" in OPTS: stamp(e, 10)
    vBP, vBC, vBPA, vSel = 20, 24, 28, 32
    for r in range(4):
        e("v_accvgpr_read_b32 %s, %s" % (v(vBP+r), a(aST+r)))
        e("v_accvgpr_read_b32 %s, %s" % (v(vBC+r), a(aST+4+r)))
        e("v_accvgpr_read_b32 %s, %s" % (v(vSel+r), a(aST+8+r)))
    e("s_or_b32 %s, %s, %s" % (s(sT2), s(sWave), s(sRB)))
    e("s_cmp_eq_u32 %s, 0" % s(sT2))
    e("s_cselect_b32 %s, -1, 0" % s(sM+16)); e("s_cselect_b32 %s, -1, 0" % s(sM+17))
    e("v_mov_b32 v36, 0x%08x" % NEG)
    for r in range(4): e("v_cndmask_b32_e64 %s, %s, v36, %s" % (v(vBPA+r), v(vBP+r), sr(sM+16,2)))
    cF = [37, 38]
    for T in (0, 1):
        e("v_mul_f32 %s, 0x%08x, %s" % (v(cF[T]), f2u((20.0 ** -0.5) * 1.4426950408889634), v(tRS[T])))
    e("s_mov_b32 %s, 0xffff" % s(sM+8)); e("s_mov_b32 %s, 0" % s(sM+9))
    e("s_mov_b32 %s, -1" % s(sM+10)); e("s_mov_b32 %s, 0" % s(sM+11))
    e("s_mov_b32 %s, -1" % s(sM+12)); e("s_mov_b32 %s, 0xffff" % s(sM+13))
    attn_tile(e, 1, acc_own(1,0), vKA, vKB, lambda i: vVp+6*i+2, vBP, vBC, vSel, cF[1], tSTD[1])
    if "epst" in OPTS: stamp(e, 11)
    e("s_waitcnt lgkmcnt(0)")
    e("s_barrier")
    for i in range(5):
        e("ds_read_b64 %s, %s offset:%d" % (vr(vKP+2*i,2), v(A6), X_EX + i*512))
        e("ds_read_b64 %s, %s offset:%d" % (vr(vVp+6*i,2), v(A6), X_EX + (5+i)*512))
    attn_tile(e, 0, acc_own(0,0), vKP, vKA, lambda i: vVp+6*i, vBPA, vBC, vSel, cF[0], tSTD[0])

def attn_tile(e, T, qm, kprev, kcur, vfrag, bP, bC, vSel, cF, std):
    Qm = [qm + 4*h for h in range(4)]
    S0 = [80, 84, 88, 92]; S1 = [96, 100, 104, 108]
    P  = [112, 116, 120, 124]
    Lh = [128, 132, 40, 44]
    for h in range(4):
        e("%s %s, %s, %s, %s" % (MFMA, vr(S0[h],4), vr(kprev+2*h,4), vr(Qm[h],4), vr(bP,4)))
        e("%s %s, %s, %s, %s" % (MFMA, vr(S1[h],4), vr(kcur+2*h,4), vr(Qm[h],4), vr(bC,4)))
    va = [48, 50, 52, 54]; mx = [56, 57, 58, 59]
    for h in range(4):
        e("v_max3_f32 %s, %s, %s, %s" % (v(va[h]), v(S0[h]), v(S0[h]+1), v(S1[h])))
        e("v_max3_f32 %s, %s, %s, %s" % (v(va[h]+1), v(S0[h]+2), v(S0[h]+3), v(S1[h]+2)))
        e("v_max_f32 %s, %s, %s" % (v(va[h]), v(va[h]), v(S1[h]+1)))
        e("v_max_f32 %s, %s, %s" % (v(va[h]+1), v(va[h]+1), v(S1[h]+3)))
        e("v_max_f32 %s, %s, %s" % (v(mx[h]), v(va[h]), v(va[h]+1)))
    e("v_permlane32_swap_b32 %s, %s" % (v(mx[0]), v(mx[1])))
    e("v_permlane32_swap_b32 %s, %s" % (v(mx[2]), v(mx[3])))
    e("v_max_f32 %s, %s, %s" % (v(mx[0]), v(mx[0]), v(mx[1])))
    e("v_max_f32 %s, %s, %s" % (v(mx[2]), v(mx[2]), v(mx[3])))
    e("v_permlane16_swap_b32 %s, %s" % (v(mx[0]), v(mx[2])))
    e("v_max_f32 %s, %s, %s" % (v(mx[0]), v(mx[0]), v(mx[2])))
    e("v_mov_b32 %s, %s" % (v(mx[2]), v(mx[0])))
    e("v_permlane16_swap_b32 %s, %s" % (v(mx[0]), v(mx[2])))
    e("v_mov_b32 %s, %s" % (v(mx[1]), v(mx[0])))
    e("v_mov_b32 %s, %s" % (v(mx[3]), v(mx[2])))
    e("v_permlane32_swap_b32 %s, %s" % (v(mx[0]), v(mx[1])))
    e("v_permlane32_swap_b32 %s, %s" % (v(mx[2]), v(mx[3])))
    for h in range(4):
        e("v_mul_f32 %s, %s, %s" % (v(mx[h]), v(mx[h]), v(cF)))
    for h in range(4):
        e("v_fma_f32 %s, %s, %s, -%s" % (v(va[h]), v(va[h]), v(cF), v(mx[h])))
        e("v_fma_f32 %s, %s, %s, -%s" % (v(va[h]+1), v(va[h]+1), v(cF), v(mx[h])))
    for h in range(4):
        e("v_exp_f32 %s, %s" % (v(va[h]), v(va[h])))
        e("v_exp_f32 %s, %s" % (v(va[h]+1), v(va[h]+1)))
    for h in range(4):
        e("v_cvt_pk_bf16_f32 %s, %s, %s" % (v(va[h]), v(va[h]), v(va[h]+1)))
    for h in range(4):
        for k in range(4):
            e("v_perm_b32 %s, %s, %s, %s" % (v(P[h]+k), v(va[h]), v(va[h]), v(vSel+k)))
    pairs = [(0,0),(1,0),(1,1),(2,1),(2,2),(3,2),(3,3),(4,3)]
    O = {}
    free = S0 + S1
    for n, p_ in enumerate(pairs): O[p_] = free[n]
    for h in range(4):
        e("%s %s, %s, %s, 0" % (MFMA, vr(Lh[h],4), ar(aONE,4), vr(P[h],4)))
    for (i, h) in pairs:
        e("%s %s, %s, %s, 0" % (MFMA, vr(O[(i,h)],4), vr(vfrag(i),4), vr(P[h],4)))
    for h in range(4):
        e("v_rcp_f32 %s, %s" % (v(Lh[h]), v(Lh[h])))
    for h in range(4):
        e("v_mul_f32 %s, %s, %s" % (v(Lh[h]), v(Lh[h]), v(std)))
    F = [Lh[0], 60, 62, 64, Lh[3]]
    e("v_cndmask_b32_e64 %s, %s, %s, %s" % (v(F[1]), v(Lh[1]), v(Lh[0]), sr(sM+8,2)))
    e("v_cndmask_b32_e64 %s, %s, %s, %s" % (v(F[2]), v(Lh[2]), v(Lh[1]), sr(sM+10,2)))
    e("v_cndmask_b32_e64 %s, %s, %s, %s" % (v(F[3]), v(Lh[3]), v(Lh[2]), sr(sM+12,2)))
    Rr = {}
    Rr[0] = O[(0,0)]; Rr[4] = O[(4,3)]
    for i in (1, 2, 3):
        lo, hi = O[(i,i-1)], O[(i,i)]
        for r in range(4):
            e("v_cndmask_b32_e64 %s, %s, %s, %s" % (v(hi+r), v(hi+r), v(lo+r), sr(sM+8+2*(i-1),2)))
        Rr[i] = hi
    out = P[0]
    for i in range(5):
        e("v_pk_mul_f32 %s, %s, %s op_sel_hi:[1,0]" % (vr(Rr[i],2), vr(Rr[i],2), vr(F[i],2)))
        e("v_pk_mul_f32 %s, %s, %s op_sel_hi:[1,0]" % (vr(Rr[i]+2,2), vr(Rr[i]+2,2), vr(F[i],2)))
        e("v_cvt_pk_bf16_f32 %s, %s, %s" % (v(out+2*i), v(Rr[i]), v(Rr[i]+1)))
        e("v_cvt_pk_bf16_f32 %s, %s, %s" % (v(out+2*i+1), v(Rr[i]+2), v(Rr[i]+3)))
    e("s_lshl_b32 %s, %s, 1" % (s(sT0), s(sRB)))
    e("s_lshr_b32 %s, %s, 1" % (s(sT1), s(sWave)))
    e("s_add_u32 %s, %s, %s" % (s(sT0), s(sT0), s(sT1)))
    e("s_mul_i32 %s, %s, %d" % (s(sT0), s(sT0), ACT_TB))
    e("s_and_b32 %s, %s, 1" % (s(sT1), s(sWave)))
    e("s_lshl_b32 %s, %s, 11" % (s(sT1), s(sT1)))
    e("s_add_u32 %s, %s, %s" % (s(sT0), s(sT0), s(sT1)))
    e("s_add_u32 %s, %s, %d" % (s(sT0), s(sT0), ACT_OFF + T*1024))
    e("s_lshr_b32 %s, %s, 1" % (s(sT1), s(sCB)))
    e("s_mul_i32 %s, %s, 5" % (s(sT1), s(sT1)))
    e("s_and_b32 %s, %s, 1" % (s(sT2), s(sCB)))
    e("s_lshl_b32 %s, %s, 1" % (s(sT3), s(sT2)))
    e("s_add_u32 %s, %s, %s" % (s(sT3), s(sT3), s(sT1)))
    e("s_lshl_b32 %s, %s, 12" % (s(sT3), s(sT3)))
    e("s_add_u32 %s, %s, %s" % (s(sT3), s(sT3), s(sT0)))
    e("buffer_store_dwordx4 %s, %s, %s, %s offen sc1" % (vr(out,4), v(vL16), sr(sWS,4), s(sT3)))
    e("s_add_u32 %s, %s, 4096" % (s(sT3), s(sT3)))
    e("buffer_store_dwordx4 %s, %s, %s, %s offen sc1" % (vr(out+4,4), v(vL16), sr(sWS,4), s(sT3)))
    e("s_add_u32 %s, %s, 4" % (s(sT1), s(sT1)))
    e("s_lshl_b32 %s, %s, 12" % (s(sT1), s(sT1)))
    e("s_add_u32 %s, %s, %s" % (s(sT1), s(sT1), s(sT0)))
    e("s_lshl_b32 %s, %s, 3" % (s(sT2), s(sT2)))
    e("s_add_u32 %s, %s, %s" % (s(sT1), s(sT1), s(sT2)))
    e("buffer_store_dwordx2 %s, %s, %s, %s offen sc1" % (vr(out+8,2), v(vL16), sr(sWS,4), s(sT1)))

def sprinkle(lines, groups, start=0, end_gap=0):
    safe = []
    exec_full = True; skip = None
    n = len(lines)
    for i, t in enumerate(lines):
        tt = t.strip()
        prev = lines[i-1].strip() if i else ""
        ok = exec_full and skip is None
        if prev.startswith("s_cmp") or prev.startswith("v_cmp") or prev.startswith("s_and_b64") or prev.startswith("s_andn2") : ok = False
        if tt.startswith("s_cbranch") or tt.startswith("s_cselect") or tt.startswith("s_addc") or tt.endswith(":"): ok = False
        if tt.startswith("s_barrier") or tt.startswith("s_waitcnt"): ok = False
        if ok and start <= i < n - end_gap: safe.append(i)
        if tt.startswith("s_mov_b32 exec") : exec_full = False
        if tt.startswith("s_mov_b64 exec, -1"): exec_full = True
        if tt.startswith("s_cbranch"): skip = tt.split()[-1]
        if skip and tt == skip + ":": skip = None
    ng = len(groups)
    assert len(safe) >= ng, (len(safe), ng)
    at = {}
    for k in range(ng):
        at.setdefault(safe[k*len(safe)//ng], []).extend(groups[k])
    out = []
    for i, t in enumerate(lines):
        if i in at: out += ["  " + x for x in at[i]]
        out.append(t)
    return out

F_SLOT = 49152; F_XB = 16384
fWA = [160, 161, 162, 163]
F_X0, F_X1 = 164, 165
fXE, fXOd, fWL = 166, 167, 168
fDO = 169
def facc(T, c): return (T*16 + c)*4
fCS = 128
fSUM = [144, 148]
def fxf(kh, T): return aXF + (kh*2 + T)*4

def ffn_lane_setup(e):
    x_lane_setup(e, fXE, fXOd)
    e("v_lshrrev_b32 v6, 2, v1")
    e("v_lshlrev_b32 v6, 3, v6")
    e("v_and_b32 v7, 3, v1")
    e("v_add_u32 v6, v6, v7")
    e("v_mul_u32_u24 v6, 3456, v6")
    e("v_lshrrev_b32 v7, 1, v2")
    e("v_xor_b32 v7, v7, v3")
    e("v_lshlrev_b32 v7, 5, v7")
    e("v_and_b32 v8, 1, v2")
    e("v_lshlrev_b32 v8, 4, v8")
    e("v_add3_u32 v6, v6, v7, v8")
    e("s_lshl_b32 %s, %s, 9" % (s(sT0), s(sCB)))
    e("v_add_u32 %s, %s, v6" % (v(fWL), s(sT0)))

def ffn_cfg(w):
    cfg = Cfg()
    cfg.ntile = 16; cfg.ring = 8; cfg.look = 6; cfg.tail = 2; cfg.nfirst = 6; cfg.wbase = aW
    H = [c for c in range(16) if c % 4 == w]
    def wread(kh, c, reg):
        off = (c >> 2)*8192 + kh*4096
        ad = v(fWA[c & 3])
        return ["ds_read_b64_tr_b16 %s, %s offset:%d" % (ar(reg,2), ad, off),
                "ds_read_b64_tr_b16 %s, %s offset:%d" % (ar(reg+2,2), ad, off + 2048)]
    def mf(kh, c, reg):
        out = []
        for T in (0, 1):
            d = vr(facc(T, c), 4)
            out.append("%s %s, %s, %s, %s" % (MFMA, d, ar(reg,4), ar(fxf(kh,T),4), d))
        if c in H and "nohalo" not in OPTS:
            d = vr(fCS + (c >> 2)*4, 4)
            out.append("%s %s, %s, %s, %s" % (MFMA, d, ar(reg,4), ar(aONE,4), d))
        return out
    def stats(kh):
        return ["%s %s, %s, %s, %s" % (MFMA, vr(fSUM[T],4), ar(aONE,4), ar(fxf(kh,T),4), vr(fSUM[T],4)) for T in (0,1)]
    def xreads(kh):
        ad = F_X1 if kh else F_X0
        return ["ds_read_b128 %s, %s offset:%d" % (ar(fxf(kh,T),4), v(ad), (2*w+T)*2048) for T in (0,1)]
    cfg.wread = wread; cfg.mf = mf; cfg.stats = stats; cfg.xreads = xreads
    cfg.xread1_at = 4
    cfg.addr_update = addr_update(F_SLOT, fWA + [F_X0, F_X1])
    cfg.scal_update = scal_update(F_SLOT, 64*3456)
    cfg.dma_start = 2; cfg.dma_skew = w; cfg.dma_endgap = 8
    cfg.wstep = 64*3456; cfg.slot = F_SLOT
    return cfg

def read_addr_setup_ffn(e):
    e("v_and_b32 v1, 15, %s" % v(vLane))
    e("v_lshrrev_b32 v2, 2, v1")
    e("v_and_b32 v3, 3, v1")
    e("v_lshrrev_b32 v4, 4, %s" % v(vLane))
    e("v_lshl_add_u32 v2, v4, 2, v2")
    e("v_lshrrev_b32 v5, 1, v2")
    e("v_and_b32 v5, 3, v5")
    e("v_lshlrev_b32 v2, 7, v2")
    e("v_lshl_add_u32 v2, v3, 3, v2")
    e("v_add_u32 v2, %d, v2" % F_XB)
    for u in range(4):
        e("v_xor_b32 v6, %d, v5" % u)
        e("v_lshl_add_u32 %s, v6, 5, v2" % v(fWA[u]))
    xaddr_setup(e, F_X0, F_X1, 0)

def ffn_epilogue(e):
    nm = [150, 152]
    for T in (0, 1):
        e("v_mul_f32 %s, 0x%08x, %s" % (v(nm[T]), f2u(-1.0/640), v(fSUM[T])))
    e("v_lshrrev_b32 v252, 4, %s" % v(vLane))
    e("v_lshlrev_b32 v252, 4, v252")
    e("s_lshl_b32 %s, %s, 6" % (s(sT0), s(sWave)))
    e("v_add_u32 v253, %s, v252" % s(sT0))
    e("s_mov_b32 exec_lo, 0x00010001"); e("s_mov_b32 exec_hi, 0x00010001")
    for q in range(4):
        e("ds_write_b128 v253, %s offset:%d" % (vr(fCS + q*4, 4), q*256))
    e("s_mov_b64 exec, -1")
    e("s_lshl_b32 %s, %s, 1" % (s(sT0), s(sRB)))
    e("s_lshr_b32 %s, %s, 1" % (s(sT1), s(sWave)))
    e("s_add_u32 %s, %s, %s" % (s(sT0), s(sT0), s(sT1)))
    e("s_mul_i32 %s, %s, %d" % (s(sT0), s(sT0), ACT_TB))
    e("s_and_b32 %s, %s, 1" % (s(sT1), s(sWave)))
    e("s_lshl_b32 %s, %s, 11" % (s(sT1), s(sT1)))
    e("s_add_u32 %s, %s, %s" % (s(sT0), s(sT0), s(sT1)))
    e("s_lshl_b32 %s, %s, 3" % (s(sT1), s(sCB)))
    e("s_add_u32 %s, %s, 20" % (s(sT1), s(sT1)))
    e("s_lshl_b32 %s, %s, 12" % (s(sT1), s(sT1)))
    e("s_add_u32 %s, %s, %s" % (s(sT0), s(sT0), s(sT1)))
    if ACT_OFF: e("s_add_u32 %s, %s, %d" % (s(sT0), s(sT0), ACT_OFF))
    e("s_cmp_eq_u32 %s, 6" % s(sCB))
    e("s_cselect_b32 %s, 0x%x, 0" % (s(sT2), OOB))
    e("s_waitcnt lgkmcnt(0)")
    e("s_barrier")
    CS = lambda c: 160 + 4*c
    for c in range(16):
        e("ds_read_b128 %s, v252 offset:%d" % (vr(CS(c),4), c*64))
    pk = [224, 228, 232, 236]
    for a_ in range(8):
        if a_ == 6: e("s_add_u32 %s, %s, %s" % (s(sT0), s(sT0), s(sT2)))
        for T in (0, 1):
            o = pk[(2*a_ + T) & 3]
            for k in range(2):
                c = 2*a_ + k; d = facc(T, c); q = CS(c)
                e("v_pk_fma_f32 %s, %s, %s, %s op_sel_hi:[1,0,1]" % (vr(d,2), vr(q,2), vr(nm[T],2), vr(d,2)))
                e("v_pk_fma_f32 %s, %s, %s, %s op_sel_hi:[1,0,1]" % (vr(d+2,2), vr(q+2,2), vr(nm[T],2), vr(d+2,2)))
                e("v_cvt_pk_bf16_f32 %s, %s, %s" % (v(o+2*k), v(d), v(d+1)))
                e("v_cvt_pk_bf16_f32 %s, %s, %s" % (v(o+2*k+1), v(d+2), v(d+3)))
                e("v_pk_max_i16 %s, %s, 0" % (v(o+2*k), v(o+2*k)))
                e("v_pk_max_i16 %s, %s, 0" % (v(o+2*k+1), v(o+2*k+1)))
            e("buffer_store_dwordx4 %s, %s, %s, %s offen offset:%d sc1" % (vr(o,4), v(vL16), sr(sWS,4), s(sT0), T*1024))
        e("s_add_u32 %s, %s, 4096" % (s(sT0), s(sT0)))

U_ROW = 320
U_BYTES = 32*U_ROW
sPF = 60
vUO = [200, 201, 202]; vUH = [203, 204, 205]; vUT = [206, 207, 208]
sUW = [64, 65, 66]
sUl, sUn = 67, 68
def unit_setup_dyn(e):
    e("s_lshl_b32 %s, %s, 6" % (s(sT0), s(sWave)))
    for m in range(3):
        e("v_add_u32 v1, %s, %s" % (s(sT0), v(vLane)))
        if m: e("v_add_u32 v1, %d, v1" % (256*m))
        e("v_mul_u32_u24 v2, 3277, v1"); e("v_lshrrev_b32 v2, 16, v2")
        e("v_mul_u32_u24 v3, 20, v2"); e("v_sub_u32 v3, v1, v3")
        e("v_mul_u32_u24 v4, 1280, v2"); e("v_lshl_add_u32 %s, v3, 4, v4" % v(vUO[m]))
        e("v_lshrrev_b32 %s, 4, v2" % v(vUH[m]))
        if m == 2:
            e("v_mov_b32 v5, 0x40000000")
            e("v_cmp_le_u32 vcc, 640, v1")
            e("v_cndmask_b32_e64 %s, %s, v5, vcc" % (v(vUO[m]), v(vUO[m])))
            e("v_cndmask_b32_e64 %s, %s, 0, vcc" % (v(vUH[m]), v(vUH[m])))
    e("v_and_b32 v1, 15, %s" % v(vLane)); e("v_lshrrev_b32 v2, 2, v1"); e("v_and_b32 v3, 3, v1")
    e("v_lshrrev_b32 v4, 4, %s" % v(vLane)); e("v_lshl_add_u32 v2, v4, 2, v2")
    e("v_mul_u32_u24 v2, %d, v2" % U_ROW)
    for m in range(3):
        e("s_add_u32 %s, %s, %d" % (s(sT0), s(sWave), 4*m))
        e("s_cmp_ge_u32 %s, 5" % s(sT0)); e("s_cselect_b32 %s, 1, 0" % s(sT1))
        e("s_mul_i32 %s, %s, 5" % (s(sT2), s(sT1))); e("s_sub_u32 %s, %s, %s" % (s(sT2), s(sT0), s(sT2)))
        e("s_lshr_b32 %s, %s, 1" % (s(sT3), s(sT2))); e("s_lshl_b32 %s, %s, 6" % (s(sT3), s(sT3)))
        e("s_and_b32 %s, %s, 1" % (s(sD0), s(sT2))); e("s_lshl_b32 %s, %s, 3" % (s(sD0), s(sD0)))
        e("s_add_u32 %s, %s, %s" % (s(sT3), s(sT3), s(sD0)))
        e("s_mul_i32 %s, %s, 160" % (s(sD0), s(sT1))); e("s_add_u32 %s, %s, %s" % (s(sT3), s(sT3), s(sD0)))
        e("s_cmp_eq_u32 %s, 4" % s(sT2)); e("s_cselect_b32 %s, 3, 4" % s(sD0))
        e("v_lshlrev_b32 v5, %s, v3" % s(sD0))
        e("v_add3_u32 %s, v5, v2, %s" % (v(vUT[m]), s(sT3)))
        e("s_mul_i32 %s, %s, %d" % (s(sUW[m]), s(sT1), W2F_CB))
        e("s_lshl_b32 %s, %s, 10" % (s(sD0), s(sT2)))
        e("s_add_u32 %s, %s, %s" % (s(sUW[m]), s(sUW[m]), s(sD0)))
        e("s_cmp_ge_u32 %s, 10" % s(sT0)); e("s_cselect_b32 %s, 0x%x, %s" % (s(sUW[m]), 0x40000000, s(sUW[m])))
def unit_loads_dyn(e):
    sU = sUn
    e("s_lshr_b32 %s, %s, 2" % (s(sT0), s(sU)))
    e("s_and_b32 %s, %s, 3" % (s(sT1), s(sU)))
    e("s_mul_i32 %s, %s, 52" % (s(sT2), s(sT0))); e("s_lshr_b32 %s, %s, 8" % (s(sT2), s(sT2)))
    e("s_mul_i32 %s, %s, 5" % (s(sT3), s(sT2))); e("s_sub_u32 %s, %s, %s" % (s(sT3), s(sT0), s(sT3)))
    e("s_mul_i32 %s, %s, 160" % (s(sT2), s(sT2)))
    e("s_lshl_b32 %s, %s, 5" % (s(sD0), s(sT3)))
    e("s_cmp_ge_u32 %s, 2" % s(sT3)); e("s_cselect_b32 %s, 16, 0" % s(sD1))
    e("s_add_u32 %s, %s, %s" % (s(sD0), s(sD0), s(sD1)))
    e("s_cmp_eq_u32 %s, 4" % s(sT3)); e("s_cselect_b32 %s, 64, %s" % (s(sD0), s(sD0)))
    e("s_cselect_b32 %s, %d, 0" % (s(sD1), 64*1280))
    e("s_add_u32 %s, %s, %s" % (s(sD0), s(sD0), s(sT2)))
    e("s_sub_u32 %s, %s, 20" % (s(sT2), s(sT0))); e("s_lshl_b32 %s, %s, 5" % (s(sT2), s(sT2)))
    e("s_cmp_lt_u32 %s, 20" % s(sT0))
    e("s_cselect_b32 %s, %s, %s" % (s(sD0), s(sD0), s(sT2)))
    e("s_cselect_b32 %s, %s, 0" % (s(sD1), s(sD1)))
    e("s_cselect_b32 %s, s8, s14" % s(sPF))
    e("s_cselect_b32 %s, s9, s15" % s(sPF+1))
    e("s_cselect_b32 %s, %s, %s" % (s(sPF+2), s(sSzO), s(sSz2)))
    e("s_and_b32 %s, %s, 0xffff" % (s(sPF+1), s(sPF+1)))
    e("s_mov_b32 %s, 0x20000" % s(sPF+3))
    e("s_mul_i32 %s, %s, 1280" % (s(sD0), s(sD0)))
    e("s_mul_i32 %s, %s, 320" % (s(sT1), s(sT1)))
    e("s_add_u32 %s, %s, %s" % (s(sD0), s(sD0), s(sT1)))
    e("s_cmp_ge_u32 %s, %d" % (s(sU), 4*NKS)); e("s_cselect_b32 %s, 0x%x, %s" % (s(sD0), OOB, s(sD0)))
    e("s_lshl_b32 %s, %s, 10" % (s(sT0), s(sWave)))
    e("s_add_u32 %s, %s, %s" % (s(sT0), s(sT0), s(sUl)))
    for m in range(3):
        e("v_mad_u32_u24 %s, %s, %s, %s" % (v(210+m), v(vUH[m]), s(sD1), v(vUO[m])))
        if m < 2: e("s_add_u32 m0, %s, %d" % (s(sT0), 4096*m))
        else:
            e("s_add_u32 %s, %s, %d" % (s(sT1), s(sT0), 4096*m))
            e("s_cmp_ge_u32 %s, 2" % s(sWave))
            e("s_cselect_b32 m0, %d, %s" % (161792, s(sT1)))
        e("s_nop 0")
        e("buffer_load_dwordx4 %s, %s, %s offen lds" % (v(210+m), sr(sPF,4), s(sD0)))
def unit_store_dyn(e, vd=0, full_wait=False):
    sU = sUn
    e("s_lshr_b32 %s, %s, 2" % (s(sT0), s(sU)))
    e("s_and_b32 %s, %s, 3" % (s(sT1), s(sU)))
    e("s_mul_i32 %s, %s, 5120" % (s(sT0), s(sT0)))
    e("s_mul_i32 %s, %s, %d" % (s(sT1), s(sT1), 2*W2F_CB))
    e("s_add_u32 %s, %s, %s" % (s(sT0), s(sT0), s(sT1)))
    e("s_add_u32 %s, %s, %d" % (s(sT0), s(sT0), W2F_OFF))
    e("s_cmp_ge_u32 %s, %d" % (s(sU), 4*NKS)); e("s_cselect_b32 %s, 0x%x, %s" % (s(sT0), 0x30000000, s(sT0)))
    for m in range(3):
        e("v_add_u32 %s, %s, %s" % (v(213+m), s(sUl), v(vUT[m])))
        e("ds_read_b64_tr_b16 %s, %s" % (vr(vd+4*m,2), v(213+m)))
        e("ds_read_b64_tr_b16 %s, %s offset:%d" % (vr(vd+4*m+2,2), v(213+m), 16*U_ROW))
    for m in range(3):
        e("s_add_u32 %s, %s, %s" % (s(sT1), s(sT0), s(sUW[m])))
        e("s_waitcnt lgkmcnt(%d)" % (4 - 2*m if not full_wait else 0))
        e("buffer_store_dwordx4 %s, %s, %s, %s offen sc1" % (vr(vd+4*m,4), v(vL16), sr(sWS,4), s(sT1)))
def pf_loop(e, tag, fn, u0, n, lds0):
    e("s_add_u32 %s, %s, %d" % (s(sUn), s(sCB), 16*u0))
    e("s_mov_b32 %s, %d" % (s(sUl), lds0))
    e("s_mov_b32 %s, 0" % s(sIter))
    e.lab("L_pfl_%s" % tag)
    fn(e)
    e("s_add_u32 %s, %s, 16" % (s(sUn), s(sUn)))
    e("s_add_u32 %s, %s, %d" % (s(sUl), s(sUl), U_BYTES))
    e("s_add_u32 %s, %s, 1" % (s(sIter), s(sIter)))
    e("s_cmp_lt_u32 %s, %d" % (s(sIter), n))
    e("s_cbranch_scc1 L_pfl_%s" % tag)
N_FFN_UNITS = 2
def signal_count(e, off):
    R = " ; rare"
    e("v_mov_b32 v250, 1" + R); e("v_mov_b32 v251, 0" + R)
    e("s_mov_b32 exec_lo, 1" + R); e("s_mov_b32 exec_hi, 0" + R)
    e("buffer_atomic_add v250, v251, %s, 0 offen offset:%d sc1" % (sr(sDBG,4), off) + R)
    e("s_mov_b64 exec, -1" + R)
def spin_count(e, tag, off, target, vtmp, have_first=None):
    R = " ; rare"
    if have_first is not None:
        e("v_readfirstlane_b32 %s, %s" % (s(sT0), v(have_first)))
        e("s_nop 3")
        e("s_cmp_ge_u32 %s, %d" % (s(sT0), target))
        e("s_cbranch_scc1 L_cok_%s" % tag)
    e("s_mov_b32 %s, 0" % s(sT1) + R)
    e("v_mov_b32 %s, 0" % v(vtmp+1) + R)
    e.lab("L_cspin_%s" % tag)
    e("buffer_load_dword %s, %s, %s, 0 offen offset:%d sc1" % (v(vtmp), v(vtmp+1), sr(sDBG,4), off) + R)
    e("s_waitcnt vmcnt(0)" + R)
    e("v_readfirstlane_b32 %s, %s" % (s(sT0), v(vtmp)) + R)
    e("s_nop 3" + R)
    e("s_cmp_ge_u32 %s, %d" % (s(sT0), target) + R)
    e("s_cbranch_scc1 L_cok_%s" % tag + R)
    e("s_sleep %d" % CSLEEP + R)
    e("s_add_u32 %s, %s, 1" % (s(sT1), s(sT1)) + R)
    e("s_cmp_lt_u32 %s, %d" % (s(sT1), SPIN_MAX) + R)
    e("s_cbranch_scc1 L_cspin_%s" % tag + R)
    e.lab("L_cok_%s" % tag)
CSLEEP = 40
FSLEEP = int(os.environ.get('FSL', 8))
CNT_P, N_P = 4, 128

DA = 6
POLL_A_AT = int(os.environ.get('PAA', 5))
FFN_W2A_IN = 0
ATT_POLL_BACK = int(os.environ.get('APB', 90))
ATT_W2A_IN = int(os.environ.get('ATT_IN', 60))
ATT_ENDGAP = int(os.environ.get('ATT_GAP', 40))
W2A_BEFORE_SIG = int(os.environ.get('WBS', 12))

vAR = 80
vWR = 176
def act_soff(p, dst):
    if p < 14: return ["s_lshl_b32 %s, %s, 2" % (s(dst), s(sKQ[p])), "s_add_u32 %s, %s, %s" % (s(dst), s(dst), s(sAB))]
    return ["s_lshl_b32 %s, %s, 12" % (s(dst), s(sWave)), "s_add_u32 %s, %s, %s" % (s(dst), s(dst), s(sAB)),
            "s_add_u32 %s, %s, %d" % (s(dst), s(dst), 4*(p-14)*4096)]
vAO = [244, 246, 248, 249]
def act_loads(p):
    st = vAR + (p % DA)*16
    G = []
    for tt in range(4):
        g = act_soff(p, sD0) if tt == 0 else []
        g.append("buffer_load_dwordx4 %s, %s, %s, %s offen sc1" % (vr(st+4*tt,4), v(vAO[tt]), sr(sWS,4), s(sD0)))
        G.append(g)
    return G
PE_F = int(os.environ.get('PEF', 17))
XRES_AT = 14
BAR_AT = int(os.environ.get('BARAT', 5))
PE_A = int(os.environ.get('PEA', 17))
sMain = 100

def ao_setup(e, sfx=""):
    for tt in range(4):
        e("s_add_u32 %s, %s, %d%s" % (s(sT0), s(sWave), tt, sfx))
        e("s_and_b32 %s, %s, 3%s" % (s(sT0), s(sT0), sfx))
        e("s_lshl_b32 %s, %s, 10%s" % (s(sT0), s(sT0), sfx))
        e("v_add_u32 %s, %s, %s%s" % (v(vAO[tt]), s(sT0), v(vL16), sfx))

def build_main(tag, P0v):
    main = E()
    main.lab("L_ph2_main_" + tag)
    main("v_add_u32 v216, %s, %s" % (s(sLA), v(vL16)))
    main("v_add_u32 v217, %s, %s" % (s(sLB), v(vL16)))
    def wl_reads(p):
        out = []
        for ct in range(5):
            q = 5*p + ct
            ad, off = (216, q*1024) if q < 12 else (217, (q-12)*1024)
            out.append("ds_read_b128 %s, %s offset:%d" % (vr(vWR + (p & 1)*20 + ct*4, 4), v(ad), off))
        return out
    main.ext(wl_reads(0))
    main("v_lshlrev_b32 v218, 2, %s" % v(vLane))
    for tt in range(1, 4):
        main("s_add_u32 %s, %s, %d" % (s(sT0), s(sWave), tt))
        main("s_and_b32 %s, %s, 3" % (s(sT0), s(sT0)))
        main("s_mul_i32 %s, %s, 15360" % (s(sT0), s(sT0)))
        main("s_add_u32 %s, %s, %d" % (s(sT0), s(sT0), (tt-1)*5120))
        main("v_add_u32 %s, %s, %s" % (v(236+tt), s(sT0), v(vL16)))
    stamp(main, 9)
    NP = 19
    for p in range(NP):
        if "p2st" in OPTS and p in (1, 5, 9, 10, 14): stamp(main, {1: 1, 5: 2, 9: 3, 10: 4, 14: 5}[p])
        if "p2stb" in OPTS and p in (10, 12, 14, 16, 18): stamp(main, {10: 1, 12: 2, 14: 3, 16: 4, 18: 5}[p])
        ms = []
        order = [(ct, tt) for ct in range(5) for tt in range(4)] if p < NP - 1 else [(ct, tt) for tt in (1, 2, 3, 0) for ct in range(5)]
        for ct, tt in order:
            if p < 5: wsrc = vr(vWR + (p & 1)*20 + ct*4, 4)
            else:     wsrc = ar(((p - 5) % 12)*20 + ct*4, 4)
            d = vr((tt*5+ct)*4, 4)
            ms.append("%s %s, %s, %s, %s" % (MFMA, d, wsrc, vr(vAR + (p % DA)*16 + 4*tt, 4), d if p else "0"))
        aux = []
        if p + 1 < 5: aux += [[t] for t in wl_reads(p + 1)]
        q = p - 1 + DA
        if p >= 1 and q < NP:
            if q == 14:
                sp = E(); spin_flags(sp, "a" + tag, MASK_A, 250, have_first=219)
                main.ext(sp.L)
            aux += act_loads(q)
        if p == XRES_AT:
            rx = E()
            rx("v_and_b32 v220, 15, %s" % v(vLane)); rx("v_lshrrev_b32 v221, 4, %s" % v(vLane))
            rx("s_lshl_b32 %s, %s, 6" % (s(sT0), s(sTB))); rx("s_lshl_b32 %s, %s, 4" % (s(sT1), s(sWave)))
            rx("s_add_u32 %s, %s, %s" % (s(sT0), s(sT0), s(sT1)))
            rx("v_add_u32 v220, %s, v220" % s(sT0)); rx("v_lshlrev_b32 v222, 2, v220")
            rx("v_mul_u32_u24 v220, 1280, v220")
            rx("s_mul_i32 %s, %s, 160" % (s(sT1), s(sC2))); rx("v_add_u32 v220, %s, v220" % s(sT1))
            rx("v_lshl_add_u32 v240, v221, 4, v220"); rx("v_lshl_add_u32 v242, v221, 3, v220")
            rx("s_mov_b32 %s, %d" % (s(sT2), RSTD_OFF))
            rx("buffer_load_dwordx4 v[224:227], v240, %s, 0 offen" % sr(sX,4))
            rx("buffer_load_dwordx4 v[228:231], v240, %s, 0 offen offset:64" % sr(sX,4))
            rx("buffer_load_dwordx2 v[232:233], v242, %s, 0 offen offset:128" % sr(sX,4))
            rx("buffer_load_dword v234, v222, %s, %s offen sc1" % (sr(sWS,4), s(sT2)))
            aux += [[t.strip()] for t in rx.L]
        if p == POLL_A_AT:
            aux.append(["buffer_load_dword v219, v218, %s, %s offen sc1" % (sr(sWS,4), s(sFL))])
        if P0v <= p + 7 <= 16: aux += w2a_groups(p + 7, p + 8)
        if p == 10: aux += w2a_groups(17, 18)
        if p == 11: aux += w2a_groups(18, 19)
        if p == BAR_AT: aux.append(["s_barrier"])
        if tag == "A" and p == 1:
            sg = E(); sg("s_barrier"); signal_rb(sg, "attn", None, vt=(220, 221))
            main.ext(sg.L)
        n = len(ms); k = 0
        wq = [(tt, ct) for tt in range(1, 4) for ct in range(5)] if p == NP - 1 else []
        for i_, m in enumerate(ms):
            main(m)
            want = (i_ + 1)*len(aux) // n
            while k < want:
                main.ext(aux[k]); k += 1
            if wq and i_ >= 5:
                tt, ct = wq.pop(0)
                main("ds_write_b128 %s, %s offset:%d" % (v(236+tt), vr((tt*5+ct)*4,4), ct*1024))
        for tt, ct in wq:
            main("ds_write_b128 %s, %s offset:%d" % (v(236+tt), vr((tt*5+ct)*4,4), ct*1024))
    stamp(main, 10)
    main("s_branch L_ph2_tail")
    st = State(); d = []
    pre = []
    for g in w2a_groups(5, P0v): pre += ["  " + t for t in g]
    for p in range(DA):
        for g in act_loads(p): pre += ["  " + t for t in g]
    st = process(pre, st, d); st.hist = []
    o = []; st = process(main.L, st, o)
    return o, st

def phase2():
    e = E()
    e.lab("L_ph2")
    if "dlymid" in OPTS: e("s_sleep 64")
    stamp(e, 8)
    ao_setup(e)
    check_flags(e, MASK_F, vPoll, "L_ph2_ok2")
    spin_flags(e, "f", MASK_F, 250)
    e.lab("L_ph2_ok2")
    for p in range(DA):
        for g in act_loads(p): e.ext(["%s ; rare" % t for t in g])
    e("s_branch L_ph2_main_F")
    o0 = []; process(e.L, State(), o0)
    oF, stF = build_main("F", PE_F)
    oA, stA = build_main("A", PE_A)
    stA.merge(stF); stA.hist = []
    main = E()
    main.lab("L_ph2_tail")
    srd(main, sW, 16, X_BYTES)
    main("s_mul_i32 %s, %s, 15360" % (s(sT0), s(sWave)))
    main("v_add_u32 v236, %s, %s" % (s(sT0), v(vL16)))
    xr = [224, 226, 228, 230, 232]
    X = 180
    for ct in range(5):
        for hh in range(2):
            main("v_lshlrev_b32 %s, 16, %s" % (v(X + ct*4 + 2*hh), v(xr[ct]+hh)))
            main("v_and_b32 %s, 0xffff0000, %s" % (v(X + ct*4 + 2*hh + 1), v(xr[ct]+hh)))
    main("s_waitcnt lgkmcnt(0)")
    main("s_barrier")
    for k in range(3):
        for ct in range(5):
            main("ds_read_b128 %s, v236 offset:%d" % (vr(80 + (k*5+ct)*4, 4), (k*5+ct)*1024))
    o = 150
    for kk in range(2):
        for ct in range(5):
            for hh in range(2):
                r = ct*4 + 2*hh
                main("v_pk_add_f32 %s, %s, %s" % (vr(r,2), vr(r,2), vr(80 + 20*kk + r, 2)))
    for ct in range(5):
        for hh in range(2):
            r = ct*4 + 2*hh
            main("v_pk_add_f32 %s, %s, %s" % (vr(r,2), vr(r,2), vr(120 + r, 2)))
            main("v_pk_fma_f32 %s, %s, %s, %s op_sel_hi:[1,0,1]" % (vr(X+r,2), vr(r,2), vr(234,2), vr(X+r,2)))
            main("v_cvt_pk_bf16_f32 %s, %s, %s" % (v(o + 2*ct + hh), v(X+r), v(X+r+1)))
    fl = " sc1" if "outsc1" in OPTS else (" nt" if "outnt" in OPTS else "")
    main("buffer_store_dwordx4 %s, v240, %s, 0 offen%s" % (vr(o,4), sr(sW,4), fl))
    main("buffer_store_dwordx4 %s, v240, %s, 0 offen offset:64%s" % (vr(o+4,4), sr(sW,4), fl))
    main("buffer_store_dwordx2 %s, v242, %s, 0 offen offset:128%s" % (vr(o+8,2), sr(sW,4), fl))
    if "dlyend" in OPTS: main("s_sleep 64")
    stamp(main, 11)
    if "stamp" in OPTS: main("s_waitcnt vmcnt(0)")
    stamp(main, 12)
    stamp_flush(main)
    o2 = []; process(["  s_nop 7"] + main.L, stA, o2)
    return o0 + oF + oA + o2

def top():
    out = []
    e = E()
    e("s_load_dwordx16 s[4:19], s[0:1], 0")
    e("s_load_dwordx2 s[20:21], s[0:1], 64")
    e("s_cmp_ge_u32 s2, 256")
    e("s_cbranch_scc1 L_end")
    if "stamp" in OPTS: e("v_mov_b32 %s, 0" % v(vSt))
    if "ep2x" in OPTS: e("s_mov_b32 s100, 0")
    if "dlystart" in OPTS: e("s_sleep 64")
    e("s_getpc_b64 s[60:61]")
    e.lab("L_pcbase")
    e("s_lshr_b32 s3, s2, 3")
    e("s_lshl_b32 s3, s3, 12")
    e("v_lshl_add_u32 v2, v0, 4, s3")
    e("v_min_u32 v2, L_codeend-L_pcbase-16, v2")
    if "nopf" not in OPTS: e("global_load_dwordx4 v[236:239], v2, s[60:61]")
    e("v_and_b32 %s, 63, v0" % v(vLane))
    e("v_lshrrev_b32 v1, 6, v0")
    e("s_and_b32 s3, s2, 7")
    e("v_readfirstlane_b32 %s, v1" % s(sWave))
    e("s_lshr_b32 %s, s2, 3" % s(sT0))
    e("s_and_b32 %s, s3, 1" % s(sT1))
    e("s_lshr_b32 %s, s3, 1" % s(sT2))
    e("s_lshl_b32 %s, %s, 3" % (s(sT1), s(sT1)))
    e("s_cmp_ge_u32 %s, 30" % s(sT0))
    e("s_cbranch_scc1 L_role_pf")
    e("s_cmp_ge_u32 %s, 16" % s(sT0))
    e("s_cbranch_scc1 L_role_ffn")
    e("s_lshl_b32 %s, %s, 1" % (s(sCB), s(sT2)))
    e("s_lshr_b32 %s, %s, 3" % (s(sT3), s(sT0)))
    e("s_add_u32 %s, %s, %s" % (s(sCB), s(sCB), s(sT3)))
    e("s_and_b32 %s, %s, 7" % (s(sKC), s(sT0)))
    e("s_add_u32 %s, %s, %s" % (s(sRB), s(sT1), s(sKC)))
    e("s_mul_i32 %s, %s, 5" % (s(sT3), s(sT3)))
    e("s_add_u32 %s, %s, %s" % (s(sKC), s(sKC), s(sT3)))
    e("s_cmp_ge_u32 %s, 10" % s(sKC))
    e("s_cselect_b32 %s, 10, 0" % s(sT3))
    e("s_sub_u32 %s, %s, %s" % (s(sKC), s(sKC), s(sT3)))
    if "rotk" not in OPTS: e("s_mov_b32 %s, 0" % s(sKC))
    if "rot4" in OPTS:
        e("s_and_b32 %s, %s, 1" % (s(sT3), s(sCB))); e("s_lshl_b32 %s, %s, 1" % (s(sT3), s(sT3)))
        e("s_add_u32 %s, %s, %s" % (s(sT3), s(sT3), s(sRB))); e("s_and_b32 %s, %s, 3" % (s(sT3), s(sT3)))
        e("s_mul_i32 %s, %s, 5" % (s(sT3), s(sT3))); e("s_lshr_b32 %s, %s, 1" % (s(sKC), s(sT3)))
    e("s_mul_i32 %s, %s, %d" % (s(sXO), s(sRB), 128*1280))
    e("s_sub_u32 %s, %s, %d" % (s(sXH), s(sXO), 16*1280))
    e("s_cmp_eq_u32 %s, 0" % s(sRB))
    e("s_cselect_b32 %s, 0, %s" % (s(sXH), s(sXH)))
    e("s_add_u32 %s, %s, 8" % (s(sSig), s(sCB)))
    attn_lane_setup(e)
    e("s_waitcnt lgkmcnt(0)")
    srd(e, sX, 4, X_BYTES); srd(e, sW, 6, WQKV_BYTES); srd(e, sWS, 20, WS_USED); srd(e, sDBG, 18, 256)
    stamp(e, 0)
    attn_first_dma(e, 1 if 'late1' in OPTS else 2)
    stamp(e, 1)
    for w in range(3):
        e("s_cmp_eq_u32 %s, %d" % (s(sWave), w))
        e("s_cbranch_scc1 L_attn_%d" % w)
    e("s_branch L_attn_3")
    e.lab("L_role_ffn")
    e("s_mul_i32 %s, %s, 14" % (s(sT2), s(sT2)))
    e("s_add_u32 %s, %s, %s" % (s(sT2), s(sT2), s(sT0)))
    e("s_sub_u32 %s, %s, 16" % (s(sT2), s(sT2)))
    e("s_lshr_b32 %s, %s, 3" % (s(sCB), s(sT2)))
    e("s_and_b32 %s, %s, 7" % (s(sKC), s(sT2)))
    e("s_add_u32 %s, %s, %s" % (s(sRB), s(sT1), s(sKC)))
    e("s_and_b32 %s, %s, 1" % (s(sT3), s(sCB)))
    e("s_mul_i32 %s, %s, 5" % (s(sT3), s(sT3)))
    e("s_add_u32 %s, %s, %s" % (s(sKC), s(sKC), s(sT3)))
    e("s_add_u32 %s, %s, 2" % (s(sKC), s(sKC)))
    e("s_cmp_ge_u32 %s, 10" % s(sKC))
    e("s_cselect_b32 %s, 10, 0" % s(sT3))
    e("s_sub_u32 %s, %s, %s" % (s(sKC), s(sKC), s(sT3)))
    if "rotk" not in OPTS: e("s_mov_b32 %s, 0" % s(sKC))
    if "rot4" in OPTS:
        e("s_and_b32 %s, %s, 1" % (s(sT3), s(sCB))); e("s_lshl_b32 %s, %s, 1" % (s(sT3), s(sT3)))
        e("s_add_u32 %s, %s, %s" % (s(sT3), s(sT3), s(sRB))); e("s_add_u32 %s, %s, 1" % (s(sT3), s(sT3))); e("s_and_b32 %s, %s, 3" % (s(sT3), s(sT3)))
        e("s_mul_i32 %s, %s, 5" % (s(sT3), s(sT3))); e("s_lshr_b32 %s, %s, 1" % (s(sKC), s(sT3)))
    e("s_mul_i32 %s, %s, %d" % (s(sXO), s(sRB), 128*1280))
    e("s_mov_b32 %s, %s" % (s(sSig), s(sCB)))
    e("s_mul_i32 %s, %s, 7" % (s(sUn), s(sT1)))
    e("s_add_u32 %s, %s, %s" % (s(sUn), s(sUn), s(sT2)))
    ffn_lane_setup(e)
    e("s_waitcnt lgkmcnt(0)")
    srd(e, sX, 4, X_BYTES); srd(e, sW, 12, W1_BYTES); srd(e, sWS, 20, WS_USED); srd(e, sDBG, 18, 256); srd(e, sQ, 6, WQKV_BYTES)
    stamp(e, 0)
    ffn_first_dma(e, 1 if 'late1' in OPTS else 2)
    stamp(e, 1)
    for w in range(3):
        e("s_cmp_eq_u32 %s, %d" % (s(sWave), w))
        e("s_cbranch_scc1 L_ffn_%d" % w)
    e("s_branch L_ffn_3")
    e.lab("L_role_pf")
    e("s_lshl_b32 %s, s3, 1" % s(sCB))
    e("s_add_u32 %s, %s, %s" % (s(sCB), s(sCB), s(sT0)))
    e("s_sub_u32 %s, %s, 30" % (s(sCB), s(sCB)))
    e("s_waitcnt lgkmcnt(0)")
    srd(e, sX, 4, X_BYTES); srd(e, sWS, 20, WS_USED); srd(e, sDBG, 18, 256)
    stamp(e, 0)
    e("v_lshlrev_b32 %s, 4, %s" % (v(vL16), v(vLane)))
    unit_setup_dyn(e)
    e("s_mov_b32 %s, %d" % (s(sSzO), WO_BYTES)); e("s_mov_b32 %s, %d" % (s(sSz2), W2_BYTES))
    pf_loop(e, "l0", unit_loads_dyn, 7, 12, 0)
    stamp(e, 1)
    e("s_waitcnt vmcnt(0)")
    e("s_barrier")
    stamp(e, 2)
    pf_loop(e, "s0", unit_store_dyn, 7, 12, 0)
    stamp(e, 3)
    e("s_waitcnt vmcnt(0)")
    e("s_barrier")
    e("s_cmp_lg_u32 %s, 0" % s(sWave))
    e("s_cbranch_scc1 L_pf_nosig")
    signal_count(e, CNT_P)
    e.lab("L_pf_nosig")
    stamp(e, 4)
    ph2_setup(e, F_SLOT)
    e("s_cmp_lg_u32 %s, 0" % s(sWave))
    e("s_cbranch_scc1 L_pf_nospin")
    spin_count(e, "pf", CNT_P, N_P, 250)
    e.lab("L_pf_nospin")
    e("s_barrier")
    get_nonce(e, "pf", 250)
    stamp(e, 5)
    if "ph1only" in OPTS: stamp_flush(e); e("s_endpgm")
    for g in w2l_groups(0, 25): e.ext(g)
    e("v_lshlrev_b32 v2, 2, %s" % v(vLane))
    e("buffer_load_dword %s, v2, %s, %s offen sc1" % (v(vPoll), sr(sWS,4), s(sFL)))
    for g in w2a_groups(5, PE_F): e.ext(g)
    e("s_mov_b32 %s, 1" % s(sMain))
    e("s_waitcnt vmcnt(%d)" % (5*(PE_F-5)))
    e("s_branch L_ph2")
    out += process_path(e.L, None, None, [])
    for role in ("attn", "ffn"):
        for w in range(4):
            tag = "%s_%d" % (role, w)
            pre = E(); pre.lab("L_" + tag)
            if role == "attn":
                cfg = attn_cfg(w)
                def extra(e, w=w):
                    read_addr_setup_attn(e)
                    attn_stash(e)
                    if w == 0:
                        e("s_cmp_lg_u32 s2, 0 ; rare"); e("s_cbranch_scc1 L_nononce ; rare")
                        e("s_memrealtime s[96:97] ; rare"); e("s_waitcnt lgkmcnt(0) ; rare")
                        e("s_or_b32 s96, s96, 1 ; rare"); e("v_mov_b32 v14, s96 ; rare"); e("v_mov_b32 v15, 0 ; rare")
                        e("buffer_store_dword v14, v15, %s, 0 offen sc1 ; rare" % sr(sDBG,4))
                        e.lab("L_nononce")
                        e("v_and_b32 v2, 7, %s" % v(vLane))
                        e("v_lshlrev_b32 v7, 4, v2")
                        e("v_mov_b32 v8, 0x3f803f80"); e("v_mov_b32 v9, v8"); e("v_mov_b32 v10, v8"); e("v_mov_b32 v11, v8")
                        e("ds_write_b128 v7, v[8:11]")
                        e("v_add_u32 v12, %d, v7" % A_SLOT); e("ds_write_b128 v12, v[8:11]")
                        e("v_add_u32 v13, %d, v7" % (2*A_SLOT)); e("ds_write_b128 v13, v[8:11]")
                body, post, side = role_main(pre, tag, cfg, attn_dma_list(w), vDO, w, 160, extra)
            else:
                cfg = ffn_cfg(w)
                body, post, side = role_main(pre, tag, cfg, ffn_dma_list(w), fDO, w, 152, read_addr_setup_ffn, units=("nounits" not in OPTS))
            post("s_branch L_ep_%s" % role)
            out += process_path(pre.L, "L_loop_" + tag, body, post.L)
            out += side
        ep = E()
        if role == "attn": attn_epilogue(ep)
        else: ffn_epilogue(ep)
        last = PE_A if role == "attn" else PE_F
        groups = w2a_groups(5, last) if "ph1only" not in OPTS else []
        nin = (min(ATT_W2A_IN, len(groups)) if role == "attn" else FFN_W2A_IN) if groups else 0
        poll = ["  v_lshlrev_b32 %s, 2, %s" % (v(vPoll), v(vLane)), "  buffer_load_dword %s, %s, %s, %s offen sc1" % (v(vPoll), v(vPoll), sr(sWS,4), s(sFL))]
        lines = ep.L
        if role == "attn" and "nopoll" not in OPTS:
            k = len(lines) - ATT_POLL_BACK
            while lines[k].strip().startswith(("s_cbranch", "s_cselect")) or lines[k-1].strip().startswith(("s_cmp", "v_cmp")): k -= 1
            lines = lines[:k] + poll + lines[k:]
        epl = sprinkle(lines, groups[:nin], start=4, end_gap=(ATT_ENDGAP if role == "attn" else 10)) if nin else lines
        fin = E()
        stamp(fin, 6)
        if role == "attn" and "ph1only" not in OPTS:
            fin("s_mov_b32 %s, 0" % s(sMain))
            for g in groups[nin:]: fin.ext(g)
            ao_setup(fin)
            check_flags(fin, MASK_F, vPoll, "L_att_fast")
            spin_flags(fin, "attf", MASK_F, 250)
            fin.lab("L_att_fast")
            stamp(fin, 7)
            for p in range(DA):
                for g in act_loads(p): fin.ext(["%s ; rare" % t for t in g])
            fin("s_branch L_ph2_main_A")
        else:
            fin("s_mov_b32 %s, 1" % s(sMain))
            if "nopoll" not in OPTS: fin.ext(poll)
            nb = min(W2A_BEFORE_SIG, len(groups) - nin)
            for g in groups[nin:nin+nb]: fin.ext(g)
            fin("s_waitcnt vmcnt(%d)" % nb)
            stamp(fin, 7)
            if "ph1only" in OPTS:
                stamp_flush(fin); fin("s_endpgm")
            else:
                fin("s_barrier")
                signal_rb(fin, role, None)
                for g in groups[nin+nb:]: fin.ext(g)
                fin("s_branch L_ph2")
        if "ep2x" in OPTS:
            rep = E()
            rep("s_waitcnt vmcnt(0) lgkmcnt(0)"); rep("s_barrier")
            stamp(rep, 12)
            rep("s_add_u32 s100, s100, 1"); rep("s_cmp_lt_u32 s100, 2"); rep("s_cbranch_scc1 L_ep_%s" % role)
            epl = epl + rep.L
        out += process_path(["L_ep_%s:" % role, "  s_nop 7", "  s_nop 1"] + epl + fin.L, None, None, [])
    out += phase2()
    out.append("L_end:")
    return out

def kd(name, nfv, accum, sg=102):
    return """.section .rodata,"a"
.p2align 6
.amdhsa_kernel %s
  .amdhsa_next_free_vgpr %d
  .amdhsa_next_free_sgpr %d
  .amdhsa_accum_offset %d
  .amdhsa_group_segment_fixed_size 0
  .amdhsa_kernarg_size 72
  .amdhsa_user_sgpr_count 2
  .amdhsa_user_sgpr_kernarg_segment_ptr 1
  .amdhsa_system_sgpr_workgroup_id_x 1
  .amdhsa_float_denorm_mode_32 3
.end_amdhsa_kernel
""" % (name, nfv, sg, accum)

HEADER = """; Kernarg (72 bytes): [0] A_x [8] A_wqkv [16] A_wo [24] B_x [32] B_w1 [40] B_w2 [48] out [56] debug [64] ws
; @launch grid=(256,1,1) block=(256,1,1) lds=163840
.amdgcn_target "amdgcn-amd-amdhsa--gfx950"
"""
def main():
    if len(sys.argv) > 2: OPTS.update(sys.argv[2].split(","))
    k = top()
    if "noalign" not in OPTS:
        from alignpass import align
        head = '.amdgcn_target "amdgcn-amd-amdhsa--gfx950"\n.text\n.p2align 8\nk:\n'
        k = align(head, k, "\ns_endpgm\nL_codeend:\n")
    txt = HEADER + ".text\n.globl %s\n.p2align 8\n.type %s,@function\n%s:\n" % (KNAME, KNAME, KNAME) + "\n".join(k) + "\ns_endpgm\nL_codeend:\n" + kd(KNAME, 512, 256)
    path = sys.argv[1] if len(sys.argv) > 1 else "out2.s"
    open(path, "w").write(txt)
    print("wrote", path, len(txt), "bytes;", len(k), "lines")
if __name__ == "__main__": main()
```

```python
import sys, struct, os
from irlib import *

KNAME = "parallel_sum__sliding_local_dilated__dense_activation_relu__prompt_kernel"
S_, D_, DFF = 2048, 640, 1728
X_BYTES = S_*D_*2; WQKV_BYTES = D_*3*D_*2; WO_BYTES = D_*D_*2; W1_BYTES = D_*DFF*2; W2_BYTES = DFF*D_*2
NKS = 74
ACT_OFF = 0; ACT_TB = NKS*4096
W2F_OFF = 10*1024*1024; W2F_CB = NKS*5120
RSTD_OFF = 14*1024*1024
STATS_OFF = 14*1024*1024 + 65536
STAMP_OFF = 16*1024*1024
WS_USED = 17*1024*1024
OOB = 0x7F000000
FLAG_OFF = 15*1024*1024
MASK_F, MASK_A, MASK_P = 0x7f, 0xff00, 0xffff0000
SPIN_MAX = 200000
SSH = True
OPTS = set()
def f2u(x): return struct.unpack("<I", struct.pack("<f", x))[0]
def v(i): return "v%d" % i
def vr(i, n): return "v[%d:%d]" % (i, i+n-1)
def a(i): return "a%d" % i
def ar(i, n): return "a[%d:%d]" % (i, i+n-1)
def s(i): return "s%d" % i
def sr(i, n): return "s[%d:%d]" % (i, i+n-1)
MFMA = "v_mfma_f32_16x16x32_bf16"

class E:
    def __init__(self): self.L = []
    def __call__(self, t): self.L.append("  " + t)
    def lab(self, t): self.L.append(t + ":")
    def ext(self, lines):
        for t in lines: self.L.append(t if t.startswith("  ") or t.endswith(":") else "  " + t)

sWave = 22
sX, sW, sWS, sDBG = 24, 28, 32, 76
sRB, sCB, sKC, sSoX, sSoW, sDSlot, sRDelta, sIter = 36, 37, 38, 39, 40, 41, 42, 43
sT0, sT1, sT2, sT3 = 46, 47, 48, 49
sM = 50
sTB, sC2, sSig, sWB, sAB, sLA, sLB, sP0, sP1, sRB2 = 80, 81, 82, 83, 84, 85, 86, 87, 88, 89
sKQ = [4,5,6,7,8,9,10,11,12,13,14,15,18,19]
sNonce, sFL = 23, 45
sD0, sD1 = 90, 91
sXO, sXH = 92, 93
vLane = 255
vSt = 247
vPoll = 243
vNon = 252

def stamp(e, i):
    if "stamp" in OPTS:
        e("s_memrealtime s[96:97]"); e("s_memtime s[98:99]"); e("s_waitcnt lgkmcnt(0)")
        e("v_writelane_b32 %s, s96, %d" % (v(vSt), 2*i)); e("v_writelane_b32 %s, s98, %d" % (v(vSt), 2*i+1))
def stamp_flush(e):
    if "stamp" not in OPTS: return
    if "dbgst" in OPTS:
        uid = len(e.L)
        for wg, lst, base in ((0, [3,4,5,6,9,12], 2), (128, [3,4,5,7,9], 8), (240, [4,5,8], 13)):
            lab = "L_ds_%d_%d" % (wg, uid)
            e("s_cmp_lg_u32 s2, %d" % wg); e("s_cbranch_scc1 %s" % lab)
            e("s_cmp_lg_u32 %s, 0" % s(sWave)); e("s_cbranch_scc1 %s" % lab)
            e("v_readlane_b32 s96, %s, 0" % v(vSt))
            for n_, i in enumerate(lst):
                e("v_readlane_b32 s97, %s, %d" % (v(vSt), 2*i))
                e("s_nop 4")
                e("s_sub_u32 s97, s97, s96")
                e("v_mov_b32 v1, s97"); e("v_mov_b32 v2, %d" % (4*(base+n_)))
                e("buffer_store_dword v1, v2, %s, 0 offen" % sr(sDBG,4))
            e.lab(lab)
        return
    e("s_lshl_b32 s3, s2, 2"); e("s_add_u32 s3, s3, %s" % s(sWave)); e("s_lshl_b32 s3, s3, 8")
    e("s_add_u32 s3, s3, %d" % STAMP_OFF)
    e("v_lshlrev_b32 v1, 2, %s" % v(vLane))
    e("buffer_store_dword %s, v1, %s, s3 offen" % (v(vSt), sr(sWS,4)))

def srd(e, base, ptr, nbytes):
    e("s_mov_b32 %s, %s" % (s(base), s(ptr)))
    e("s_and_b32 %s, %s, 0xffff" % (s(base+1), s(ptr+1)))
    e("s_mov_b32 %s, %d" % (s(base+2), nbytes))
    e("s_mov_b32 %s, 0x20000" % s(base+3))

def check_flags(e, mask, val, oklab, rare=""):
    e("v_cmp_eq_u32 vcc, %s, %s%s" % (s(sNonce), v(val), rare))
    e("s_nop 3" + rare)
    e("s_and_b32 %s, vcc_lo, 0x%x%s" % (s(sT0), mask, rare))
    e("s_cmp_eq_u32 %s, 0x%x%s" % (s(sT0), mask, rare))
    e("s_cbranch_scc1 %s%s" % (oklab, rare))
def spin_flags(e, tag, mask, vtmp, have_first=None):
    R = " ; rare"
    if have_first is not None: check_flags(e, mask, have_first, "L_ok_%s" % tag)
    e("s_mov_b32 %s, 0" % s(sT1) + R)
    e("v_lshlrev_b32 %s, 2, %s" % (v(vtmp+1), v(vLane)) + R)
    e.lab("L_spin_%s" % tag)
    e("buffer_load_dword %s, %s, %s, %s offen sc1" % (v(vtmp), v(vtmp+1), sr(sWS,4), s(sFL)) + R)
    e("s_waitcnt vmcnt(0)" + R)
    check_flags(e, mask, vtmp, "L_ok_%s" % tag, R)
    e("s_sleep %d" % FSLEEP + R)
    e("s_add_u32 %s, %s, 1" % (s(sT1), s(sT1)) + R)
    e("s_cmp_lt_u32 %s, %d" % (s(sT1), SPIN_MAX) + R)
    e("s_cbranch_scc1 L_spin_%s" % tag + R)
    e.lab("L_ok_%s" % tag)
def get_nonce(e, tag, vtmp, have_first=None):
    R = " ; rare"
    if have_first is not None:
        e("v_readfirstlane_b32 %s, %s" % (s(sNonce), v(have_first)))
        e("s_nop 3")
        e("s_cmp_lg_u32 %s, 0" % s(sNonce))
        e("s_cbranch_scc1 L_nok_%s" % tag)
    e("s_mov_b32 %s, 0" % s(sT1) + R)
    e("v_mov_b32 %s, 0" % v(vtmp+1) + R)
    e.lab("L_nspin_%s" % tag)
    e("buffer_load_dword %s, %s, %s, 0 offen sc1" % (v(vtmp), v(vtmp+1), sr(sDBG,4)) + R)
    e("s_waitcnt vmcnt(0)" + R)
    e("v_readfirstlane_b32 %s, %s" % (s(sNonce), v(vtmp)) + R)
    e("s_nop 3" + R)
    e("s_cmp_lg_u32 %s, 0" % s(sNonce) + R)
    e("s_cbranch_scc1 L_nok_%s" % tag + R)
    e("s_sleep 8" + R)
    e("s_add_u32 %s, %s, 1" % (s(sT1), s(sT1)) + R)
    e("s_cmp_lt_u32 %s, %d" % (s(sT1), SPIN_MAX) + R)
    e("s_cbranch_scc1 L_nspin_%s" % tag + R)
    e.lab("L_nok_%s" % tag)
def signal_rb(e, tag, word_sgpr_expr, vt=(1, 2)):
    e("s_cmp_lg_u32 %s, 0" % s(sWave))
    e("s_cbranch_scc1 L_nosig_%s" % tag)
    R = " ; rare"
    e("s_and_b32 %s, %s, 1" % (s(sT0), s(sRB)) + R)
    e("s_lshl_b32 %s, %s, 4" % (s(sT0), s(sT0)) + R)
    a_, b_ = v(vt[0]), v(vt[1])
    e("v_add_u32 %s, %s, %s" % (a_, s(sT0), v(vLane)) + R)
    e("v_lshlrev_b32 %s, 3, %s" % (a_, a_) + R)
    e("s_lshr_b32 %s, %s, 1" % (s(sT0), s(sRB)) + R)
    e("v_add_u32 %s, %s, %s" % (a_, s(sT0), a_) + R)
    e("v_lshlrev_b32 %s, 7, %s" % (a_, a_) + R)
    e("s_lshl_b32 %s, %s, 2" % (s(sT0), s(sSig)) + R)
    e("s_add_u32 %s, %s, %d" % (s(sT0), s(sT0), FLAG_OFF) + R)
    e("v_mov_b32 %s, %s" % (b_, s(sNonce)) + R)
    e("s_mov_b32 exec_lo, 0xffff" + R); e("s_mov_b32 exec_hi, 0" + R)
    e("buffer_store_dword %s, %s, %s, %s offen sc1" % (b_, a_, sr(sWS,4), s(sT0)) + R)
    e("s_mov_b64 exec, -1" + R)
    e.lab("L_nosig_%s" % tag)

class Cfg: pass

def chunk_body(cfg, dma, last=False, rolled_tag=None, closing_vm=None, first_vm=None):
    NT = cfg.ntile; NF = 2*NT; R = cfg.ring; L = cfg.look; TAIL = cfg.tail
    assert NF % R == 0
    wreg = lambda f: cfg.wbase + (f % R)*4
    def wreads(f):
        kh, c = divmod(f % NF, NT); return cfg.wread(kh, c, wreg(f))
    def mf(f):
        kh, c = divmod(f % NF, NT); return cfg.mf(kh, c, wreg(f))
    NFIRST = cfg.nfirst
    items = []
    for f in range(0, NF - TAIL):
        g = f + L
        rd = wreads(g) if NFIRST <= g < NF else []
        if f == cfg.xread1_at: rd = rd + cfg.xreads(1)
        ms = []
        if f == 0 and "nostats" not in OPTS and not SSH: ms += cfg.stats(0)
        if f == NT and "nostats" not in OPTS and not SSH: ms += cfg.stats(1)
        ms += mf(f)
        items.append((rd, ms))
    issued = set(range(NFIRST)) | {f + L for f in range(0, NF - TAIL) if NFIRST <= f + L < NF}
    assert issued == set(range(NF)), (sorted(set(range(NF)) - issued))
    nm = sum(len(m) for _, m in items)
    out = []
    nd = len(dma)
    st = cfg.dma_start + cfg.dma_skew; en = nm - cfg.dma_endgap
    pos = [st + (en - st)*i // max(nd, 1) for i in range(nd)]
    cnt = 0; di = 0
    for rd, ms in items:
        rq = list(rd)
        for k, m in enumerate(ms):
            if rq:
                take = (len(rq) + (len(ms) - k) - 1) // (len(ms) - k)
                for _ in range(take): out.append(rq.pop(0))
            out.append(m); cnt += 1
            while di < nd and pos[di] <= cnt:
                out += dma[di]; di += 1
    assert di == nd
    if closing_vm is None: out.append("s_waitcnt lgkmcnt(0)")
    elif first_vm is not None:
        out.append("s_cmp_eq_u32 %s, 0" % s(sIter))
        out.append("s_cbranch_scc1 L_first_%s" % rolled_tag)
        out.append("s_waitcnt vmcnt(%d) lgkmcnt(0)" % closing_vm)
        out.append("L_join_%s:" % rolled_tag)
    else: out.append("s_waitcnt vmcnt(%d) lgkmcnt(0)" % closing_vm)
    out.append("s_barrier")
    aux = []
    if not last:
        aux += cfg.addr_update + cfg.xreads(0)
        for f in range(NFIRST): aux += wreads(f)
    if rolled_tag: aux += cfg.scal_update
    tail = []
    for f in range(NF - TAIL, NF): tail += mf(f)
    per = -(-len(aux) // max(len(tail), 1))
    for m in tail:
        out.append(m)
        for _ in range(per):
            if aux: out.append(aux.pop(0))
    out += aux
    if rolled_tag:
        out.append("s_cbranch_scc1 L_loop_%s" % rolled_tag)
    return ["  ; lgextra %d" % int(os.environ.get("LGX", 2))] + [t if t.endswith(":") else "  " + t for t in out] + ["  ; lgextra 0"]

sCp, sCm = 94, 95
def scal_update(slot, wstep, halo=False):
    t = []
    if "rotk" in OPTS:
        t.append("s_add_u32 %s, %s, 1" % (s(sKC), s(sKC)))
        t.append("s_cmp_eq_u32 %s, 10" % s(sKC))
        t.append("s_cselect_b32 %s, 0, %s" % (s(sKC), s(sKC)))
        t.append("s_lshl_b32 %s, %s, 7" % (s(sSoX), s(sKC)))
        t.append("s_mul_i32 %s, %s, %d" % (s(sSoW), s(sKC), wstep))
    else:
        t.append("s_add_u32 %s, %s, 128" % (s(sSoX), s(sSoX)))
        t.append("s_add_u32 %s, %s, %d" % (s(sSoW), s(sSoW), wstep))
    t.append("s_cmp_eq_u32 %s, %d" % (s(sDSlot), 2*slot))
    t.append("s_cselect_b32 %s, %s, %s" % (s(sRDelta), s(sCm), s(sCp)))
    t.append("s_add_u32 %s, %s, %s" % (s(sDSlot), s(sDSlot), s(sRDelta)))
    t.append("s_add_u32 %s, %s, 1" % (s(sIter), s(sIter)))
    t.append("s_cmp_lt_u32 %s, 8" % s(sIter))
    return t
def addr_update(slot, regs):
    t = []
    t.append("s_cmp_eq_u32 %s, %d" % (s(sDSlot), slot))
    t.append("s_cselect_b32 %s, %s, %s" % (s(sRDelta), s(sCm), s(sCp)))
    for r in regs: t.append("v_add_u32 %s, %s, %s" % (v(r), s(sRDelta), v(r)))
    return t

vL16, vL16b = 241, 245
def w2_soff(p, dst):
    if p < 14: return ["s_mul_i32 %s, %s, 5" % (s(dst), s(sKQ[p])), "s_add_u32 %s, %s, %s" % (s(dst), s(dst), s(sWB))]
    return ["s_mul_i32 %s, %s, 5120" % (s(dst), s(sWave)), "s_add_u32 %s, %s, %s" % (s(dst), s(dst), s(sWB)),
            "s_add_u32 %s, %s, %d" % (s(dst), s(dst), 4*(p-14)*5120)]
def w2l_groups(q0, q1):
    G = []
    for q in range(q0, q1):
        p, ct = divmod(q, 5)
        g = []
        if ct == 0 or q == q0: g += w2_soff(p, sP0)
        g.append("s_add_u32 m0, %s, %d" % (s(sLA if q < 12 else sLB), (q if q < 12 else q - 12)*1024))
        g.append("s_add_u32 %s, %s, %d" % (s(sP1), s(sP0), ct*1024))
        g.append("buffer_load_dwordx4 %s, %s, %s offen sc1 lds" % (v(vL16), sr(sWS,4), s(sP1)))
        G.append(g)
    return G
def w2a_groups(p0, p1):
    G = []
    for p in range(p0, p1):
        base = ((p - 5) % 12)*20
        for ct in range(5):
            g = []
            if ct == 0: g += w2_soff(p, sP0)
            if ct < 4: g.append("buffer_load_dwordx4 %s, %s, %s, %s offen offset:%d sc1" % (ar(base+4*ct,4), v(vL16), sr(sWS,4), s(sP0), ct*1024))
            else:      g.append("buffer_load_dwordx4 %s, %s, %s, %s offen sc1" % (ar(base+16,4), v(vL16b), sr(sWS,4), s(sP0)))
            G.append(g)
    return G
def ph2_setup(e, slot):
    e("s_and_b32 %s, s2, 7" % s(sT0))
    e("s_lshr_b32 %s, s2, 3" % s(sT1))
    e("s_lshr_b32 %s, %s, 3" % (s(sTB), s(sT1)))
    e("s_lshl_b32 %s, %s, 2" % (s(sT0), s(sT0)))
    e("s_add_u32 %s, %s, %s" % (s(sTB), s(sTB), s(sT0)))
    e("s_and_b32 %s, %s, 7" % (s(sC2), s(sT1)))
    e("s_lshr_b32 %s, %s, 1" % (s(sRB2), s(sTB)))
    e("s_lshl_b32 %s, %s, 2" % (s(sRB2), s(sRB2)))
    e("s_mul_i32 %s, %s, %d" % (s(sWB), s(sC2), W2F_CB))
    if "fakecb" in OPTS: e("s_mov_b32 %s, 0" % s(sWB))
    e("s_add_u32 %s, %s, %d" % (s(sWB), s(sWB), W2F_OFF))
    e("s_mul_i32 %s, %s, %d" % (s(sAB), s(sTB), ACT_TB))
    if "faketb" in OPTS: e("s_and_b32 %s, s2, 7" % s(sAB)); e("s_mul_i32 %s, %s, %d" % (s(sAB), s(sAB), ACT_TB))
    if ACT_OFF: e("s_add_u32 %s, %s, %d" % (s(sAB), s(sAB), ACT_OFF))
    e("s_mul_i32 %s, %s, 12288" % (s(sLA), s(sWave)))
    e("s_add_u32 %s, %s, %d" % (s(sLA), s(sLA), slot))
    e("s_mul_i32 %s, %s, 13312" % (s(sLB), s(sWave)))
    e("s_add_u32 %s, %s, %d" % (s(sLB), s(sLB), 2*slot))
    e("s_mul_i32 %s, %s, 7" % (s(sT0), s(sC2)))
    e("s_lshr_b32 %s, %s, 2" % (s(sT0), s(sT0)))
    e("s_and_b32 %s, %s, 3" % (s(sT1), s(sTB)))
    e("s_mul_i32 %s, %s, 7" % (s(sT1), s(sT1)))
    e("s_lshr_b32 %s, %s, 1" % (s(sT1), s(sT1)))
    e("s_add_u32 %s, %s, %s" % (s(sT0), s(sT0), s(sT1)))
    e("s_sub_u32 %s, %s, 14" % (s(sT1), s(sT0)))
    e("s_cmp_ge_u32 %s, 14" % s(sT0))
    e("s_cselect_b32 %s, %s, %s" % (s(sT0), s(sT1), s(sT0)))
    e("s_lshl_b32 %s, %s, 2" % (s(sT0), s(sT0)))
    e("s_add_u32 %s, %s, %s" % (s(sT0), s(sT0), s(sWave)))
    e("s_add_u32 %s, %s, 20" % (s(sT0), s(sT0)))
    for p in range(14):
        e("s_lshl_b32 %s, %s, 10" % (s(sKQ[p]), s(sT0)))
        e("s_cmp_ge_u32 %s, %d" % (s(sT0), NKS))
        e("s_cselect_b32 %s, 0x10000000, %s" % (s(sKQ[p]), s(sKQ[p])))
        if p < 13:
            e("s_add_u32 %s, %s, 4" % (s(sT0), s(sT0)))
            e("s_sub_u32 %s, %s, 56" % (s(sT1), s(sT0)))
            e("s_cmp_ge_u32 %s, 76" % s(sT0))
            e("s_cselect_b32 %s, %s, %s" % (s(sT0), s(sT1), s(sT0)))
    e("v_add_u32 %s, 4096, %s" % (v(vL16b), v(vL16)))
    e("s_lshl_b32 %s, s2, 7" % s(sFL))
    e("s_add_u32 %s, %s, %d" % (s(sFL), s(sFL), FLAG_OFF))

vZero = 249

A_SLOT = 53248; A_XB = 18432; A_WPAIR = 1088
A_XJ = [[0,1,2,3,4],[5,6,7,8,9],[10,11,12,13],[14,15,16,17]]
vWA, vX0, vX1 = 160, 161, 162
vXE, vXOd, vWL = 163, 164, 165
aW, aXF, aONE = 0, 40, 240
aST = 244
def acc_own(T, c): return (T*15 + c)*4
def acc_halo(eidx): return 120 + eidx*4
vSumT = [136, 140]; vSqT = [144, 148]; vSumH, vSqH = 152, 156
def xf(kh, T): return aXF + (kh*3 + T)*4

def x_lane_setup(e, vE, vO):
    e("v_lshrrev_b32 v1, 3, %s" % v(vLane))
    e("v_and_b32 v2, 7, %s" % v(vLane))
    e("v_lshrrev_b32 v3, 4, %s" % v(vLane))
    e("v_mul_u32_u24 v4, 1280, v1")
    e("v_xor_b32 v5, v2, v3")
    e("v_lshl_add_u32 %s, v5, 4, v4" % v(vE))
    e("v_xor_b32 %s, 64, %s" % (v(vO), v(vE)))

def attn_lane_setup(e):
    x_lane_setup(e, vXE, vXOd)
    e("v_cmp_le_u32 vcc, 30, %s" % v(vLane))
    e("v_mov_b32 v9, 0x40000000")
    e("v_cndmask_b32_e64 v6, 0, 1, vcc")
    e("v_cmp_le_u32 vcc, 60, %s" % v(vLane))
    e("v_mul_u32_u24 v7, 30, v6")
    e("v_sub_u32 v7, %s, v7" % v(vLane))
    e("v_mul_u32_u24 v8, 26, v7")
    e("v_lshrrev_b32 v8, 8, v8")
    e("v_mul_u32_u24 v8, 1120, v8")
    e("v_mul_u32_u24 v6, 3840, v6")
    e("v_lshlrev_b32 v7, 4, v7")
    e("v_add3_u32 v6, v6, v7, v8")
    e("s_mul_i32 %s, %s, 160" % (s(sT0), s(sCB)))
    e("v_add_u32 v6, %s, v6" % s(sT0))
    e("v_cndmask_b32_e64 %s, v6, v9, vcc" % v(vWL))

vDO = 166
def attn_dma_list(w):
    L = []
    for grp in ([[0,1],[2,3,4]], [[5,6,7,8],[9]], [[10,11,12,13]], [[14,15,16,17]])[w]:
        for m, j in enumerate(grp):
            imm = m*1024
            L.append(("x", j*1024 if m == 0 else None, imm, vXOd if j & 1 else vXE, (j*8*1280 if j < 2 else (j-2)*8*1280) - imm, j < 2, w == 0 and j == 0))
    kh = w >> 1; rd = w & 1
    for m in range(8):
        k = 32*kh + 8*(m >> 1) + 4*rd + 2*(m & 1)
        L.append(("w", A_XB + (8*w + m)*A_WPAIR if m % 4 == 0 else None, (m & 3)*A_WPAIR, vWL, k*3840 - (m & 3)*A_WPAIR, False, False))
    return L
def ffn_dma_list(w):
    L = []
    for m in range(4):
        j = 4*w + m
        L.append(("x", 4*w*1024 if m == 0 else None, m*1024, fXOd if j & 1 else fXE, j*8*1280 - m*1024, False, False))
    for m in range(8):
        kh, grp = m >> 2, m & 3
        k = 32*kh + 16*(grp & 1) + 4*(grp >> 1)
        L.append(("w", F_XB + w*8192 + m*1024 if m % 4 == 0 else None, (m & 3)*1024, fWL, k*3456 + w*128 - (m & 3)*1024, False, False))
    return L
def dma_groups_salu(L):
    G = []; tmp = [sD0, sD1]
    for n, (kind, m0c, imm, lane, uc, halo, mask) in enumerate(L):
        g = []; t = tmp[n & 1]
        if m0c is not None: g.append("s_add_u32 m0, %s, %d" % (s(sDSlot), m0c))
        if kind == "x":
            g.append("s_add_u32 %s, %s, %s" % (s(t), s(sSoX), s(sXH if halo else sXO)))
            if uc: g.append("s_add_u32 %s, %s, %d" % (s(t), s(t), uc))
        else: g.append("s_add_u32 %s, %s, %d" % (s(t), s(sSoW), uc))
        if mask: g.append("s_mov_b32 exec_lo, 0xffffff00")
        g.append("buffer_load_dwordx4 %s, %s, %s offen offset:%d lds" % (v(lane), sr(sX if kind == "x" else sW,4), s(t), imm))
        if mask: g.append("s_mov_b32 exec_lo, -1")
        G.append(g)
    return G
def dma_offsets_setup(e, L, base):
    for n, (kind, m0c, imm, lane, uc, halo, mask) in enumerate(L):
        if kind == "x":
            e("s_add_u32 %s, %s, %d" % (s(sD0), s(sXH if halo else sXO), uc))
            e("v_add_u32 %s, %s, %s" % (v(base+n), s(sD0), v(lane)))
        else:
            e("v_add_u32 %s, %d, %s" % (v(base+n), uc, v(lane)))
def dma_groups_vgpr(L, base):
    G = []
    for n, (kind, m0c, imm, lane, uc, halo, mask) in enumerate(L):
        g = []
        if m0c is not None:
            m0 = "s_add_u32 m0, %s, %d" % (s(sDSlot), m0c)
            if G: G[-1].append(m0)
            else: G.append([m0])
        if mask: g.append("s_mov_b32 exec_lo, 0xffffff00")
        g.append("buffer_load_dwordx4 %s, %s, %s offen offset:%d lds" % (v(base+n), sr(sX if kind == "x" else sW,4), s(sSoX if kind == "x" else sSoW), imm))
        if mask: g.append("s_mov_b32 exec_lo, -1")
        G.append(g)
    return G

def attn_cfg(w):
    cfg = Cfg()
    cfg.ntile = 15; cfg.ring = 10; cfg.look = int(os.environ.get('LOOK', 6)); cfg.tail = int(os.environ.get('TAILA', 4)); cfg.nfirst = cfg.look; cfg.wbase = aW
    H = {w: 0, 5 + w: 1, 10 + w: 2}
    if w < 3: H[(4, 9, 14)[w]] = 3
    def wread(kh, c, reg):
        off = kh*16*A_WPAIR + 32*c
        return ["ds_read_b64_tr_b16 %s, %s offset:%d" % (ar(reg,2), v(vWA), off),
                "ds_read_b64_tr_b16 %s, %s offset:%d" % (ar(reg+2,2), v(vWA), off + 8*A_WPAIR)]
    def mf(kh, c, reg):
        out = []
        for T in (0, 1):
            d = vr(acc_own(T, c), 4)
            if c < 10: out.append("%s %s, %s, %s, %s" % (MFMA, d, ar(reg,4), ar(xf(kh,T),4), d))
            else:      out.append("%s %s, %s, %s, %s" % (MFMA, d, ar(xf(kh,T),4), ar(reg,4), d))
        if c in H and "nohalo" not in OPTS:
            d = vr(acc_halo(H[c]), 4)
            if c < 10: out.append("%s %s, %s, %s, %s" % (MFMA, d, ar(reg,4), ar(xf(kh,2),4), d))
            else:      out.append("%s %s, %s, %s, %s" % (MFMA, d, ar(xf(kh,2),4), ar(reg,4), d))
        return out
    def stats(kh):
        out = []
        for T in (0, 1):
            out.append("%s %s, %s, %s, %s" % (MFMA, vr(vSumT[T],4), ar(aONE,4), ar(xf(kh,T),4), vr(vSumT[T],4)))
            out.append("%s %s, %s, %s, %s" % (MFMA, vr(vSqT[T],4), ar(xf(kh,T),4), ar(xf(kh,T),4), vr(vSqT[T],4)))
        if w == 3:
            out.append("%s %s, %s, %s, %s" % (MFMA, vr(vSumH,4), ar(aONE,4), ar(xf(kh,2),4), vr(vSumH,4)))
            out.append("%s %s, %s, %s, %s" % (MFMA, vr(vSqH,4), ar(xf(kh,2),4), ar(xf(kh,2),4), vr(vSqH,4)))
        return out
    def xreads(kh):
        ad = vX1 if kh else vX0
        return ["ds_read_b128 %s, %s offset:%d" % (ar(xf(kh,0),4), v(ad), (1+2*w)*2048),
                "ds_read_b128 %s, %s offset:%d" % (ar(xf(kh,1),4), v(ad), (2+2*w)*2048),
                "ds_read_b128 %s, %s offset:%d" % (ar(xf(kh,2),4), v(ad), 0)]
    cfg.wread = wread; cfg.mf = mf; cfg.stats = stats; cfg.xreads = xreads
    cfg.xread1_at = 4
    cfg.addr_update = addr_update(A_SLOT, [vWA, vX0, vX1])
    cfg.scal_update = scal_update(A_SLOT, 64*3840, halo=(w == 0))
    cfg.dma_start = int(os.environ.get('DST', 2)); cfg.dma_skew = w*int(os.environ.get('DSK', 1)); cfg.dma_endgap = int(os.environ.get('DEG', 8))
    cfg.wstep = 64*3840; cfg.slot = A_SLOT
    return cfg

def xaddr_setup(e, X0, X1, base):
    e("v_and_b32 v1, 15, %s" % v(vLane))
    e("v_lshrrev_b32 v4, 4, %s" % v(vLane))
    e("v_lshrrev_b32 v2, 1, v1")
    e("v_xor_b32 v2, v2, v4")
    e("v_lshlrev_b32 v2, 4, v2")
    e("v_lshl_add_u32 v2, v1, 7, v2")
    e("v_add_u32 %s, %d, v2" % (v(X0), base))
    e("v_xor_b32 v2, 64, v2")
    e("v_add_u32 %s, %d, v2" % (v(X1), base))

def read_addr_setup_attn(e):
    e("v_and_b32 v1, 15, %s" % v(vLane))
    e("v_lshrrev_b32 v2, 2, v1")
    e("v_and_b32 v3, 3, v1")
    e("v_lshrrev_b32 v4, 4, %s" % v(vLane))
    e("v_lshrrev_b32 v5, 1, v2")
    e("v_lshl_add_u32 v5, v4, 1, v5")
    e("v_mul_u32_u24 v5, %d, v5" % A_WPAIR)
    e("v_and_b32 v2, 1, v2")
    e("v_mul_u32_u24 v2, 480, v2")
    e("v_lshlrev_b32 v3, 3, v3")
    e("v_add3_u32 v5, v5, v2, v3")
    e("v_add_u32 %s, %d, v5" % (v(vWA), A_XB))
    xaddr_setup(e, vX0, vX1, 0)

sSzO, sSz2 = 69, 70

def attn_first_dma(e, nchunks=2):
    e("s_and_b32 %s, %s, 1" % (s(sT0), s(sWave)))
    e("s_cmp_eq_u32 %s, 1" % s(sT0))
    e("s_cselect_b32 %s, 64, 0" % s(sT1))
    e("v_xor_b32 v10, %s, %s" % (s(sT1), v(vXE)))
    e("s_mul_i32 %s, %s, 10240" % (s(sT1), s(sWave)))
    e("s_add_u32 %s, %s, %s" % (s(sT2), s(sXH), s(sT1)))
    e("s_add_u32 %s, %s, %s" % (s(sT3), s(sXO), s(sT1)))
    e("s_sub_u32 %s, %s, 20480" % (s(sT3), s(sT3)))
    e("s_cmp_lt_u32 %s, 2" % s(sWave))
    e("s_cselect_b32 %s, %s, %s" % (s(sD0), s(sT2), s(sT3)))
    e("s_cselect_b32 %s, 0, 0x%x" % (s(sD1), OOB))
    e("s_cmp_eq_u32 %s, 0" % s(sWave))
    e("s_cselect_b32 %s, 0xffffff00, -1" % s(sP1))
    e("s_lshl_b32 %s, %s, 10" % (s(sP0), s(sWave)))
    e("s_lshr_b32 %s, %s, 1" % (s(sT1), s(sWave))); e("s_lshl_b32 %s, %s, 5" % (s(sT1), s(sT1)))
    e("s_lshl_b32 %s, %s, 2" % (s(sT0), s(sT0))); e("s_add_u32 %s, %s, %s" % (s(sT1), s(sT1), s(sT0)))
    e("s_mul_i32 %s, %s, 3840" % (s(sT1), s(sT1)))
    e("s_mul_i32 %s, %s, %d" % (s(sT0), s(sWave), 8*A_WPAIR))
    for ch in range(nchunks):
        slot = ch*A_SLOT
        e("s_lshl_b32 %s, %s, 7" % (s(sSoX), s(sKC)))
        e("s_mul_i32 %s, %s, %d" % (s(sSoW), s(sKC), 64*3840))
        e("s_add_u32 %s, %s, %s" % (s(sSoW), s(sSoW), s(sT1)))
        for m in range(5):
            if m == 0:
                e("s_add_u32 %s, %s, %s" % (s(sT2), s(sD0), s(sSoX)))
                e("s_add_u32 m0, %s, %d" % (s(sP0), slot))
                e("s_mov_b32 exec_lo, %s" % s(sP1))
            else:
                e("s_add_u32 %s, %s, %s" % (s(sT2), s(sT3), s(sSoX)))
                e("s_add_u32 %s, %s, %d" % (s(sT2), s(sT2), m*4*10240))
                if m == 4:
                    e("s_add_u32 %s, %s, %s" % (s(sT2), s(sT2), s(sD1)))
                    e("s_add_u32 %s, %s, %d" % (s(sIter), s(sP0), slot + m*4096))
                    e("s_cmp_lt_u32 %s, 2" % s(sWave))
                    e("s_cselect_b32 m0, %s, %d" % (s(sIter), 161792))
                else: e("s_add_u32 m0, %s, %d" % (s(sP0), slot + m*4096))
                e("s_nop 0")
            e("buffer_load_dwordx4 v10, %s, %s offen lds" % (sr(sX,4), s(sT2)))
            if m == 0: e("s_mov_b32 exec_lo, -1")
        for m in range(8):
            if m % 4 == 0: e("s_add_u32 m0, %s, %d" % (s(sT0), slot + A_XB + m*A_WPAIR))
            k = 8*(m >> 1) + 2*(m & 1)
            e("s_add_u32 %s, %s, %d" % (s(sT2), s(sSoW), k*3840 - (m & 3)*A_WPAIR))
            e("buffer_load_dwordx4 %s, %s, %s offen offset:%d lds" % (v(vWL), sr(sW,4), s(sT2), (m & 3)*A_WPAIR))
        e("s_add_u32 %s, %s, 1" % (s(sKC), s(sKC)))
        if "rotk" in OPTS:
            e("s_cmp_eq_u32 %s, 10" % s(sKC))
            e("s_cselect_b32 %s, 0, %s" % (s(sKC), s(sKC)))
    return 13
def ffn_first_dma(e, nchunks=2):
    e("s_mul_i32 %s, %s, %d" % (s(sT3), s(sWave), 4*10240))
    e("s_add_u32 %s, %s, %s" % (s(sT3), s(sT3), s(sXO)))
    e("s_lshl_b32 %s, %s, 12" % (s(sP0), s(sWave)))
    e("s_lshl_b32 %s, %s, 7" % (s(sT1), s(sWave)))
    e("s_lshl_b32 %s, %s, 13" % (s(sT0), s(sWave)))
    for ch in range(nchunks):
        slot = ch*F_SLOT
        e("s_lshl_b32 %s, %s, 7" % (s(sSoX), s(sKC)))
        e("s_add_u32 %s, %s, %s" % (s(sSoX), s(sSoX), s(sT3)))
        e("s_mul_i32 %s, %s, %d" % (s(sSoW), s(sKC), 64*3456))
        e("s_add_u32 %s, %s, %s" % (s(sSoW), s(sSoW), s(sT1)))
        e("s_add_u32 m0, %s, %d" % (s(sP0), slot))
        for m in range(4):
            e("s_add_u32 %s, %s, %d" % (s(sT2), s(sSoX), m*10240 - m*1024))
            e("buffer_load_dwordx4 %s, %s, %s offen offset:%d lds" % (v(fXOd if m & 1 else fXE), sr(sX,4), s(sT2), m*1024))
        for m in range(8):
            kh, grp = m >> 2, m & 3
            k = 32*kh + 16*(grp & 1) + 4*(grp >> 1)
            if m % 4 == 0: e("s_add_u32 m0, %s, %d" % (s(sT0), slot + F_XB + m*1024))
            e("s_add_u32 %s, %s, %d" % (s(sT2), s(sSoW), k*3456 - (m & 3)*1024))
            e("buffer_load_dwordx4 %s, %s, %s offen offset:%d lds" % (v(fWL), sr(sW,4), s(sT2), (m & 3)*1024))
        e("s_add_u32 %s, %s, 1" % (s(sKC), s(sKC)))
        if "rotk" in OPTS:
            e("s_cmp_eq_u32 %s, 10" % s(sKC))
            e("s_cselect_b32 %s, 0, %s" % (s(sKC), s(sKC)))
    return 12

sQ = 72
vPFo, vPFd = 182, 183
def coop_setup(e, w):
    e("s_lshr_b32 %s, s2, 3" % s(sT0)); e("s_sub_u32 %s, %s, 16" % (s(sT0), s(sT0)))
    e("s_and_b32 %s, s2, 1" % s(sT1))
    e("s_and_b32 %s, s2, 7" % s(sT2)); e("s_lshr_b32 %s, %s, 1" % (s(sT2), s(sT2)))
    e("v_mov_b32 v3, 0x40000000")
    if w < 2:
        e("s_mul_i32 %s, %s, 75" % (s(sT0), s(sT0)))
        e("s_lshl_b32 %s, %s, 10" % (s(sT1), s(sT1)))
        e("s_add_u32 %s, %s, %s" % (s(sT0), s(sT0), s(sT1)))
        e("s_add_u32 %s, %s, %d" % (s(sT0), s(sT0), (38*w - 16) & 0xffffffff))
        e("v_add_u32 v1, %s, %s" % (s(sT0), v(vLane)))
        e("v_max_i32 v1, 0, v1")
        e("v_mul_u32_u24 v1, 1280, v1")
        e("v_cmp_gt_u32 vcc, 38, %s" % v(vLane))
    elif w == 2:
        e("s_mul_i32 %s, %s, 42" % (s(sT0), s(sT0)))
        e("v_add_u32 v1, %s, %s" % (s(sT0), v(vLane)))
        e("v_mul_u32_u24 v2, 7282, v1"); e("v_lshrrev_b32 v2, 16, v2")
        e("v_mul_u32_u24 v4, 9, v2"); e("v_sub_u32 v4, v1, v4")
        e("v_mul_u32_u24 v5, 86, v4"); e("v_lshrrev_b32 v5, 8, v5")
        e("v_mul_u32_u24 v6, 3, v5"); e("v_sub_u32 v6, v4, v6")
        e("s_mul_i32 %s, %s, 320" % (s(sT2), s(sT2))); e("s_lshr_b32 %s, %s, 7" % (s(sT2), s(sT2)))
        e("v_add_u32 v6, %s, v6" % s(sT2))
        e("v_mul_u32_u24 v1, 3840, v2"); e("v_mul_u32_u24 v5, 1280, v5")
        e("v_lshl_add_u32 v1, v6, 7, v1"); e("v_add_u32 v1, v1, v5")
        e("v_cmp_gt_u32 vcc, 42, %s" % v(vLane))
    else:
        e("s_mul_i32 %s, %s, 55" % (s(sT0), s(sT0)))
        e("v_add_u32 v1, %s, %s" % (s(sT0), v(vLane)))
        e("v_mul_u32_u24 v2, 5462, v1"); e("v_lshrrev_b32 v2, 16, v2")
        e("v_mul_u32_u24 v4, 12, v2"); e("v_sub_u32 v4, v1, v4")
        e("s_mul_i32 %s, %s, 14" % (s(sT2), s(sT2))); e("s_lshr_b32 %s, %s, 3" % (s(sT2), s(sT2))); e("s_lshl_b32 %s, %s, 2" % (s(sT2), s(sT2)))
        e("v_add_u32 v4, %s, v4" % s(sT2))
        e("v_mul_u32_u24 v1, 3456, v2"); e("v_lshl_add_u32 v1, v4, 7, v1")
        e("v_cmp_gt_u32 vcc, 55, %s" % v(vLane))
    e("v_cndmask_b32_e64 %s, v3, v1, vcc" % v(vPFo))
COOP_D = 4
sSoQ = 44
def coop_load(w, extra_chunks):
    if w < 2: return ["buffer_load_dword %s, %s, %s, %s offen offset:%d ; rare" % (v(vPFd), v(vPFo), sr(sX,4), s(sSoX), 128*extra_chunks)]
    st_ = 64*3840 if w == 2 else 64*3456
    return ["s_add_u32 %s, %s, %d" % (s(sD1), s(sSoQ if w == 2 else sSoW), extra_chunks*st_),
            "buffer_load_dword %s, %s, %s, %s offen ; rare" % (v(vPFd), v(vPFo), sr(sQ if w == 2 else sW,4), s(sD1))]
def zero_acc(e, n):
    for i in range(4): e("v_mov_b32 %s, 0" % v(246 if False else 232+i))
    k = 0
    while k + 16 <= n:
        e("v_mfma_f32_32x32x16_bf16 %s, v[232:235], v[232:235], 0" % vr(k,16)); k += 16
    while k < n:
        e("v_mov_b32 %s, 0" % v(k)); k += 1
def role_main(e, tag, cfg, L, dobase, w, zero_n, extra_pre=None, units=False):
    wstep, slot = cfg.wstep, cfg.slot
    nd = len(L)
    coop = tag.startswith("ffn") and "coop" in OPTS
    def set_soff():
        e("s_lshl_b32 %s, %s, 7" % (s(sSoX), s(sKC)))
        e("s_mul_i32 %s, %s, %d" % (s(sSoW), s(sKC), wstep))
    def adv():
        e("s_add_u32 %s, %s, 1" % (s(sKC), s(sKC)))
        if "rotk" in OPTS:
            e("s_cmp_eq_u32 %s, 10" % s(sKC))
            e("s_cselect_b32 %s, 0, %s" % (s(sKC), s(sKC)))
    npro = 13 if tag.startswith("attn") else 12
    e("v_lshlrev_b32 %s, 4, %s" % (v(vL16), v(vLane)))
    if units:
        unit_setup_dyn(e)
        e("s_mov_b32 %s, %d" % (s(sSzO), WO_BYTES)); e("s_mov_b32 %s, %d" % (s(sSz2), W2_BYTES))
        e("s_mov_b32 %s, %d" % (s(sUl), 3*slot))
        unit_loads_dyn(e)
    npre = 0
    if coop:
        coop_setup(e, w)
        if w == 2: e("s_mov_b32 %s, %d" % (s(sSoQ), 64*3840))
        for x in range(1, COOP_D + 1):
            e.ext(coop_load(w, x)); npre += 1
    if extra_pre: extra_pre(e)
    dma_offsets_setup(e, L, dobase)
    zero_acc(e, zero_n)
    e("v_mov_b32 v254, 0x3f803f80")
    for i in range(4): e("v_accvgpr_write_b32 %s, v254" % a(aONE+i))
    e("v_mov_b32 %s, 0" % v(vZero))
    nyoung = npro + npre + (3 if units else 0)
    if "late1" in OPTS:
        set_soff()
        e("s_mov_b32 %s, %d" % (s(sDSlot), slot))
        for g in dma_groups_vgpr(L, dobase): e.ext(g)
        adv()
        nyoung = nd
    ph2_setup(e, slot)
    set_soff()
    e("s_mov_b32 %s, %d" % (s(sDSlot), 2*slot))
    e("s_mov_b32 %s, %d" % (s(sCp), slot))
    e("s_mov_b32 %s, %d" % (s(sCm), (-2*slot) & 0xffffffff))
    e("s_mov_b32 %s, 0" % s(sIter))
    if coop and w == 2: e("s_mov_b32 %s, %d" % (s(sSoQ), 2*64*3840))
    stamp(e, 2)
    e("s_waitcnt vmcnt(%d) lgkmcnt(0)" % nyoung)
    e("s_barrier")
    stamp(e, 3)
    R = cfg.ring
    e.ext(cfg.xreads(0))
    for f in range(cfg.nfirst):
        e.ext(cfg.wread(0, f, cfg.wbase + (f % R)*4))
    dma = dma_groups_vgpr(L, dobase)
    if "nopoll" not in OPTS:
        pg = ["s_cmp_lg_u32 %s, 6 ; rare" % s(sIter), "s_cbranch_scc0 L_pp_%s ; rare" % tag, "L_np_%s:" % tag]
        side = ["L_pp_%s:" % tag, "  buffer_load_dwordx2 %s, %s, %s, 0 offen sc1 ; rare" % (vr(vNon,2), v(vZero), sr(sDBG,4)), "  s_branch L_np_%s ; rare" % tag]
        if units:
            us = E(); unit_store_dyn(us, 216, full_wait=True)
            pg += ["s_cmp_lg_u32 %s, 1 ; rare" % s(sIter), "s_cbranch_scc0 L_pu_%s ; rare" % tag, "L_nu_%s:" % tag]
            side += ["L_pu_%s:" % tag] + us.L + ["  s_branch L_nu_%s" % tag]
        if units and w == 0:
            sg = E(); signal_count(sg, CNT_P)
            pg += ["s_cmp_lg_u32 %s, 3 ; rare" % s(sIter), "s_cbranch_scc0 L_ps_%s ; rare" % tag, "L_ns_%s:" % tag]
            side += ["L_ps_%s:" % tag] + sg.L + ["  s_branch L_ns_%s ; rare" % tag]
        dma = [pg] + dma
    else: side = []
    ncl = nd
    if coop:
        g = coop_load(w, COOP_D)
        if w == 2: g.append("s_add_u32 %s, %s, %d" % (s(sSoQ), s(sSoQ), 64*3840))
        dma = dma + [g]; ncl = nd + 2
    if "nodma" in OPTS: dma = []
    first_vm = None
    if coop:
        first_vm = min(63, nd + 1 + npre)
        side += ["L_first_%s:" % tag, "  s_waitcnt vmcnt(%d) lgkmcnt(0) ; rare" % first_vm, "  s_branch L_join_%s ; rare" % tag]
    body = chunk_body(cfg, dma, rolled_tag=tag, closing_vm=ncl if "nodma" not in OPTS else 0, first_vm=first_vm)
    post = E()
    stamp(post, 4)
    if "nopoll" not in OPTS:
        get_nonce(post, tag, 250, have_first=vNon)
        spin_count(post, "p_" + tag, CNT_P, N_P, 250, have_first=vNon+1)
    if "ph1only" in OPTS:
        post.ext(chunk_body(cfg, [], closing_vm=0))
        post.ext(chunk_body(cfg, [], last=True, closing_vm=None))
    else:
        post.ext(chunk_body(cfg, w2l_groups(0, 12), closing_vm=12))
        sg = []
        if SSH:
            post("v_and_b32 %s, 15, %s" % (v(vT16), v(vLane))); post("v_lshlrev_b32 %s, 4, %s" % (v(vT16), v(vT16)))
            if tag.startswith("attn"):
                post("s_lshl_b32 s74, %s, 7" % s(sRB)); post("s_sub_u32 s101, s74, 16")
                post("s_cmp_eq_u32 %s, 0" % s(sRB)); post("s_cselect_b32 s101, 0, s101")
                post("s_add_u32 s74, s74, %d" % (32*w)); post("s_add_u32 s75, s74, 16")
                sg = [stats_load_group(d, t) for d, t in zip(A_STD, A_STT)]
            else:
                post("s_lshl_b32 s73, %s, 7" % s(sRB)); post("s_add_u32 s73, s73, %d" % (64*(w >> 1)))
                post("s_add_u32 s74, s73, 16"); post("s_add_u32 s75, s73, 32"); post("s_add_u32 s101, s73, 48")
                sg = [stats_load_group(d, t) for d, t in zip(F_STD, F_STT)]
        post.ext(chunk_body(cfg, sg + w2l_groups(12, 25), last=True, closing_vm=None))
    stamp(post, 5)
    return body, post, side

A_ND = [13, 13, 12, 12]

X_CS = 0
X_NM = 1024
X_RS = 2048
X_EX = 4096
vQp = 160
vKA, vKB, vKP = 180, 190, 200
vVp = 210
NEG = 0xf149f2ca
def stats_finalize(e, vsum, vsq, vt, out_nm, out_rs, out_std, smask):
    e("v_cndmask_b32_e64 %s, 0, %s, %s" % (v(vt), v(vsq+0), sr(smask,2)))
    for r in (1,2,3):
        e("v_cndmask_b32_e64 %s, %s, %s, %s" % (v(vt), v(vt), v(vsq+r), sr(smask+2*r,2)))
    e("v_mov_b32 %s, %s" % (v(vt+1), v(vt)))
    e("v_permlane32_swap_b32 %s, %s" % (v(vt), v(vt+1)))
    e("v_add_f32 %s, %s, %s" % (v(vt), v(vt), v(vt+1)))
    e("v_mov_b32 %s, %s" % (v(vt+1), v(vt)))
    e("v_permlane16_swap_b32 %s, %s" % (v(vt), v(vt+1)))
    e("v_add_f32 %s, %s, %s" % (v(vt), v(vt), v(vt+1)))
    e("v_mul_f32 %s, 0x%08x, %s" % (v(out_nm), f2u(-1.0/640), v(vsum)))
    e("v_mul_f32 %s, 0x%08x, %s" % (v(vt), f2u(1.0/640), v(vt)))
    e("v_fma_f32 %s, -%s, %s, %s" % (v(vt), v(out_nm), v(out_nm), v(vt)))
    e("v_max_f32 %s, 0, %s" % (v(vt), v(vt)))
    e("v_add_f32 %s, 0x%08x, %s" % (v(vt), f2u(1e-5), v(vt)))
    e("v_rsq_f32 %s, %s" % (v(out_rs), v(vt)))
    if out_std is not None:
        e("v_mul_f32 %s, %s, %s" % (v(out_std), v(vt), v(out_rs)))


def attn_stash(e):
    e("v_and_b32 v1, 15, %s" % v(vLane))
    e("v_lshrrev_b32 v2, 4, %s" % v(vLane))
    e("v_lshlrev_b32 v3, 2, v2")
    e("v_sub_u32 v3, v1, v3")
    e("v_and_b32 v4, 1, v1")
    e("v_mov_b32 v5, 0x%08x" % NEG)
    e("v_cmp_eq_u32 %s, 0, v4" % sr(sM+14,2))
    for r in range(4):
        e("v_subrev_u32 v6, %d, v3" % r)
        e("v_cmp_le_i32 %s, 0, v6" % sr(sM+16,2))
        if r & 1: e("s_andn2_b64 %s, exec, %s" % (sr(sM+18,2), sr(sM+14,2)))
        else:     e("s_mov_b64 %s, %s" % (sr(sM+18,2), sr(sM+14,2)))
        e("s_and_b64 %s, %s, %s" % (sr(sM+20,2), sr(sM+18,2), sr(sM+16,2)))
        e("s_andn2_b64 %s, %s, %s" % (sr(sM+22,2), sr(sM+18,2), sr(sM+16,2)))
        e("v_cndmask_b32_e64 v7, v5, 0, %s" % sr(sM+22,2)); e("v_accvgpr_write_b32 %s, v7" % a(aST+r))
        e("v_cndmask_b32_e64 v8, v5, 0, %s" % sr(sM+20,2)); e("v_accvgpr_write_b32 %s, v8" % a(aST+4+r))
    e("v_sub_u32 v6, v3, v4")
    e("v_mov_b32 v9, 0x0c0c0100"); e("v_mov_b32 v10, 0x01000c0c")
    e("v_cndmask_b32_e64 v9, v10, v9, %s" % sr(sM+14,2))
    e("v_mov_b32 v10, 0x0c0c0302"); e("v_mov_b32 v11, 0x03020c0c")
    e("v_cndmask_b32_e64 v10, v11, v10, %s" % sr(sM+14,2))
    e("v_mov_b32 v11, 0x0c0c0c0c")
    e("v_cmp_le_i32 %s, 0, v6" % sr(sM+16,2))
    e("v_cndmask_b32_e64 v12, v9, v11, %s" % sr(sM+16,2)); e("v_accvgpr_write_b32 %s, v12" % a(aST+8))
    e("v_cndmask_b32_e64 v13, v11, v9, %s" % sr(sM+16,2)); e("v_accvgpr_write_b32 %s, v13" % a(aST+10))
    e("v_cmp_le_i32 %s, 2, v6" % sr(sM+16,2))
    e("v_cndmask_b32_e64 v12, v10, v11, %s" % sr(sM+16,2)); e("v_accvgpr_write_b32 %s, v12" % a(aST+9))
    e("v_cndmask_b32_e64 v13, v11, v10, %s" % sr(sM+16,2)); e("v_accvgpr_write_b32 %s, v13" % a(aST+11))

def attn_epilogue(e):
    R = " ; rare"
    tNM = [240, 242]; tRS = [244, 246]; tSTD = [248, 249]
    vt = 166
    smask = sM
    A1, A2, A3, A4, A5, A6 = 176, 177, 178, 179, 250, 254
    ML = {1: 160, 2: 161, 3: 162}; MH = {0: 163, 1: 164, 2: 165}
    e("v_and_b32 v253, 15, %s" % v(vLane))
    e("v_lshlrev_b32 v253, 2, v253")
    e("v_lshrrev_b32 v252, 4, %s" % v(vLane))
    e("s_lshl_b32 %s, %s, 7" % (s(sT0), s(sWave)))
    e("s_lshl_b32 %s, %s, 6" % (s(sT1), s(sWave)))
    e("v_add_u32 %s, %s, v253" % (v(A1), s(sT0)))
    e("v_add_u32 %s, %s, v253" % (v(A4), s(sT1)))
    if SSH:
        e("s_waitcnt vmcnt(13)")
        e("s_mov_b32 %s, 0" % s(sIter))
        stats_check(e, "attn", A_STD, A_STT)
        for T in (0, 1):
            e("v_mov_b32 %s, %s" % (v(tNM[T]), v(A_STD[T]))); e("v_mov_b32 %s, %s" % (v(tRS[T]), v(A_STD[T]+1))); e("v_mov_b32 %s, %s" % (v(tSTD[T]), v(A_STD[T]+2)))
            e("ds_write_b32 %s, %s offset:%d" % (v(A1), v(A_STD[T]), X_NM + 64 + T*64))
            e("ds_write_b32 %s, %s offset:%d" % (v(A1), v(A_STD[T]+1), X_RS + 64 + T*64))
        e("v_mov_b32 v152, %s" % v(A_STD[2])); e("v_mov_b32 v154, %s" % v(A_STD[2]+1))
        e("ds_write_b32 v253, %s offset:%d" % (v(A_STD[2]), X_NM))
        e("ds_write_b32 v253, %s offset:%d" % (v(A_STD[2]+1), X_RS))
    else:
      for T in (0, 1):
        stats_finalize(e, vSumT[T], vSqT[T], vt, tNM[T], tRS[T], tSTD[T], smask)
        e("ds_write_b32 %s, %s offset:%d" % (v(A1), v(tNM[T]), X_NM + 64 + T*64))
        e("ds_write_b32 %s, %s offset:%d" % (v(A1), v(tRS[T]), X_RS + 64 + T*64))
    for h in (1, 2, 3):
        e("v_cmp_le_u32 %s, %d, v252" % (sr(sM+16,2), h))
        e("v_cndmask_b32_e64 %s, 0, -1, %s" % (v(ML[h]), sr(sM+16,2)))
    for h in (0, 1, 2): e("v_not_b32 %s, %s" % (v(MH[h]), v(ML[h+1])))
    e("v_lshlrev_b32 v252, 4, v252")
    e("v_add_u32 %s, %s, v252" % (v(A2), s(sT0)))
    e("v_add_u32 %s, %s, v252" % (v(A3), s(sT1)))
    if not SSH:
        raise NotImplementedError
    e("s_mov_b32 exec_lo, 0x00010001"); e("s_mov_b32 exec_hi, 0x00010001")
    e("ds_write_b128 %s, %s offset:%d" % (v(A3), vr(acc_halo(0),4), X_CS))
    e("ds_write_b128 %s, %s offset:%d" % (v(A3), vr(acc_halo(1),4), X_CS + 5*64))
    e("s_cmp_gt_u32 %s, 1" % s(sWave))
    e("s_cbranch_scc1 L_e3a")
    e("s_mul_i32 %s, %s, 320" % (s(sT2), s(sWave)) + R)
    e("v_add_u32 v167, %s, v252" % s(sT2) + R)
    e("ds_write_b128 v167, %s offset:%d" % (vr(acc_halo(3),4), X_CS + 4*64) + R)
    e.lab("L_e3a")
    e("s_mov_b32 exec_lo, 0x0000ffff"); e("s_mov_b32 exec_hi, 0")
    e("ds_write_b32 %s, %s offset:%d" % (v(A4), v(acc_halo(2)), X_CS + 10*64))
    e("s_cmp_lg_u32 %s, 2" % s(sWave))
    e("s_cbranch_scc1 L_e3b")
    e("ds_write_b32 v253, %s offset:%d" % (v(acc_halo(3)), X_CS + 14*64) + R)
    e.lab("L_e3b")
    e("s_mov_b64 exec, -1")
    e("v_lshlrev_b32 v251, 3, %s" % v(vLane))
    e("s_lshl_b32 %s, %s, 9" % (s(sT2), s(sWave)))
    e("v_add_u32 %s, %s, v251" % (v(A5), s(sT2)))
    e("s_mul_i32 %s, %s, 5120" % (s(sT2), s(sWave)))
    e("v_add_u32 %s, %s, v251" % (v(A6), s(sT2)))
    e("s_waitcnt lgkmcnt(0)")
    e("s_barrier")
    if "epst" in OPTS: stamp(e, 8)
    CS4 = lambda c: 200 + 4*c
    nm4 = [136, 140]; rs4 = [144, 148]
    tHN, tHR = 152, 154
    csK = 156
    hn4, hr4 = 168, 172
    for c in range(5): e("ds_read_b128 %s, v252 offset:%d" % (vr(CS4(c),4), X_CS + c*64))
    for c in range(5, 10): e("ds_read_b128 %s, v252 offset:%d" % (vr(CS4(c),4), X_CS + c*64))
    e("ds_read_b128 %s, %s offset:%d" % (vr(csK,4), v(A3), X_CS + 5*64))
    def pkfma_bc(d, s0, sc, sfx=""):
        e("v_pk_fma_f32 %s, %s, %s, %s op_sel_hi:[1,0,1]%s" % (vr(d,2), vr(s0,2), vr(sc,2), vr(d,2), sfx))
    def pkmul_bc(d, sc, sfx=""):
        e("v_pk_mul_f32 %s, %s, %s op_sel_hi:[1,0]%s" % (vr(d,2), vr(d,2), vr(sc,2), sfx))
    t0, t1 = 166, 167
    for c in range(5):
        for T in (0, 1):
            d = acc_own(T, c); b = acc_own(T, 0)
            pkfma_bc(d, CS4(c), tNM[T]); pkfma_bc(d+2, CS4(c)+2, tNM[T])
            if c == 0:
                e("v_cvt_pk_bf16_f32 %s, %s, %s" % (v(d), v(d), v(d+1))); e("v_cvt_pk_bf16_f32 %s, %s, %s" % (v(d+1), v(d+2), v(d+3)))
            elif c == 4:
                e("v_cvt_pk_bf16_f32 %s, %s, %s" % (v(b+14), v(d), v(d+1))); e("v_cvt_pk_bf16_f32 %s, %s, %s" % (v(b+15), v(d+2), v(d+3)))
            else:
                e("v_cvt_pk_bf16_f32 %s, %s, %s" % (v(t0), v(d), v(d+1))); e("v_cvt_pk_bf16_f32 %s, %s, %s" % (v(t1), v(d+2), v(d+3)))
                e("v_and_b32 %s, %s, %s" % (v(d), v(t0), v(ML[c]))); e("v_and_b32 %s, %s, %s" % (v(d+1), v(t1), v(ML[c])))
                e("v_and_b32 %s, %s, %s" % (v(b+4*(c-1)+2), v(t0), v(MH[c-1]))); e("v_and_b32 %s, %s, %s" % (v(b+4*(c-1)+3), v(t1), v(MH[c-1])))
    for T in (0, 1):
        e("ds_read_b128 %s, %s offset:%d" % (vr(nm4[T],4), v(A2), X_NM + 64 + T*64))
        e("ds_read_b128 %s, %s offset:%d" % (vr(rs4[T],4), v(A2), X_RS + 64 + T*64))
    e("ds_read_b128 %s, v252 offset:%d" % (vr(hn4,4), X_NM))
    e("ds_read_b128 %s, v252 offset:%d" % (vr(hr4,4), X_RS))
    if "epst" in OPTS: stamp(e, 9)
    csd = [16, 18, 76, 78, 20]; csdW = 22
    for c in range(5, 10):
        for T in (0, 1):
            d = acc_own(T, c)
            pkfma_bc(d, CS4(c), tNM[T]); pkfma_bc(d+2, CS4(c)+2, tNM[T])
            pkmul_bc(d, tRS[T]); pkmul_bc(d+2, tRS[T])
            dst = (vKA, vKB)[T] + 2*(c-5)
            e("v_cvt_pk_bf16_f32 %s, %s, %s" % (v(dst), v(d), v(d+1)))
            e("v_cvt_pk_bf16_f32 %s, %s, %s" % (v(dst+1), v(d+2), v(d+3)))
        e("ds_write_b64 %s, %s offset:%d" % (v(A6), vr(vKB+2*(c-5),2), X_EX + 5120 + (c-5)*512))
        if c == 5:
            for i in range(5): e("ds_read_b32 %s, v253 offset:%d" % (v(csd[i]), X_CS + (10+i)*64))
            e("ds_read_b32 %s, %s offset:%d" % (v(csdW), v(A4), X_CS + 10*64))
    d = acc_halo(1)
    pkfma_bc(d, csK, tHN); pkfma_bc(d+2, csK+2, tHN); pkmul_bc(d, tHR); pkmul_bc(d+2, tHR)
    e("v_cvt_pk_bf16_f32 %s, %s, %s" % (v(d), v(d), v(d+1))); e("v_cvt_pk_bf16_f32 %s, %s, %s" % (v(d+1), v(d+2), v(d+3)))
    e("ds_write_b64 %s, %s offset:%d" % (v(A5), vr(d,2), X_EX))
    e("s_cmp_lg_u32 %s, 1" % s(sWave))
    e("s_cbranch_scc1 L_e3k")
    d = acc_halo(3)
    pkfma_bc(d, CS4(9), tHN, R); pkfma_bc(d+2, CS4(9)+2, tHN, R); pkmul_bc(d, tHR, R); pkmul_bc(d+2, tHR, R)
    e("v_cvt_pk_bf16_f32 %s, %s, %s" % (v(d), v(d), v(d+1)) + R); e("v_cvt_pk_bf16_f32 %s, %s, %s" % (v(d+1), v(d+2), v(d+3)) + R)
    e("ds_write_b64 v251, %s offset:%d" % (vr(d,2), X_EX + 4*512) + R)
    e.lab("L_e3k")
    def vtile(d, nm, rs, cd, sfx=""):
        for h_ in (0, 2):
            e("v_pk_fma_f32 %s, %s, %s, %s op_sel_hi:[1,0,1]%s" % (vr(d+h_,2), vr(nm+h_,2), vr(cd,2), vr(d+h_,2), sfx))
            e("v_pk_mul_f32 %s, %s, %s%s" % (vr(d+h_,2), vr(d+h_,2), vr(rs+h_,2), sfx))
    for i in range(5):
        c = 10 + i
        for T in (0, 1):
            d = acc_own(T, c)
            vtile(d, nm4[T], rs4[T], csd[i])
            dst = vVp + 6*i + 2 + 2*T
            e("v_cvt_pk_bf16_f32 %s, %s, %s" % (v(dst), v(d), v(d+1)))
            e("v_cvt_pk_bf16_f32 %s, %s, %s" % (v(dst+1), v(d+2), v(d+3)))
        e("ds_write_b64 %s, %s offset:%d" % (v(A6), vr(vVp+6*i+4,2), X_EX + 5120 + (5+i)*512))
    d = acc_halo(2)
    vtile(d, hn4, hr4, csdW)
    e("v_cvt_pk_bf16_f32 %s, %s, %s" % (v(d), v(d), v(d+1))); e("v_cvt_pk_bf16_f32 %s, %s, %s" % (v(d+1), v(d+2), v(d+3)))
    e("ds_write_b64 %s, %s offset:%d" % (v(A5), vr(d,2), X_EX + 5*512))
    e("s_cmp_lg_u32 %s, 2" % s(sWave))
    e("s_cbranch_scc1 L_e3v")
    d = acc_halo(3)
    vtile(d, hn4, hr4, csd[4], R)
    e("v_cvt_pk_bf16_f32 %s, %s, %s" % (v(d), v(d), v(d+1)) + R); e("v_cvt_pk_bf16_f32 %s, %s, %s" % (v(d+1), v(d+2), v(d+3)) + R)
    e("s_nop 1" + R)
    e("ds_write_b64 v251, %s offset:%d" % (vr(d,2), X_EX + 9*512) + R)
    e.lab("L_e3v")
    if "epst" in OPTS: stamp(e, 10)
    vBP, vBC, vBPA, vSel = 20, 24, 28, 32
    for r in range(4):
        e("v_accvgpr_read_b32 %s, %s" % (v(vBP+r), a(aST+r)))
        e("v_accvgpr_read_b32 %s, %s" % (v(vBC+r), a(aST+4+r)))
        e("v_accvgpr_read_b32 %s, %s" % (v(vSel+r), a(aST+8+r)))
    e("s_or_b32 %s, %s, %s" % (s(sT2), s(sWave), s(sRB)))
    e("s_cmp_eq_u32 %s, 0" % s(sT2))
    e("s_cselect_b32 %s, -1, 0" % s(sM+16)); e("s_cselect_b32 %s, -1, 0" % s(sM+17))
    e("v_mov_b32 v36, 0x%08x" % NEG)
    for r in range(4): e("v_cndmask_b32_e64 %s, %s, v36, %s" % (v(vBPA+r), v(vBP+r), sr(sM+16,2)))
    cF = [37, 38]
    for T in (0, 1):
        e("v_mul_f32 %s, 0x%08x, %s" % (v(cF[T]), f2u((20.0 ** -0.5) * 1.4426950408889634), v(tRS[T])))
    e("s_mov_b32 %s, 0xffff" % s(sM+8)); e("s_mov_b32 %s, 0" % s(sM+9))
    e("s_mov_b32 %s, -1" % s(sM+10)); e("s_mov_b32 %s, 0" % s(sM+11))
    e("s_mov_b32 %s, -1" % s(sM+12)); e("s_mov_b32 %s, 0xffff" % s(sM+13))
    attn_tile(e, 1, acc_own(1,0), vKA, vKB, lambda i: vVp+6*i+2, vBP, vBC, vSel, cF[1], tSTD[1])
    if "epst" in OPTS: stamp(e, 11)
    e("s_waitcnt lgkmcnt(0)")
    e("s_barrier")
    for i in range(5):
        e("ds_read_b64 %s, %s offset:%d" % (vr(vKP+2*i,2), v(A6), X_EX + i*512))
        e("ds_read_b64 %s, %s offset:%d" % (vr(vVp+6*i,2), v(A6), X_EX + (5+i)*512))
    attn_tile(e, 0, acc_own(0,0), vKP, vKA, lambda i: vVp+6*i, vBPA, vBC, vSel, cF[0], tSTD[0])

def attn_tile(e, T, qm, kprev, kcur, vfrag, bP, bC, vSel, cF, std):
    Qm = [qm + 4*h for h in range(4)]
    S0 = [80, 84, 88, 92]; S1 = [96, 100, 104, 108]
    P  = [112, 116, 120, 124]
    Lh = [128, 132, 40, 44]
    for h in range(4):
        e("%s %s, %s, %s, %s" % (MFMA, vr(S0[h],4), vr(kprev+2*h,4), vr(Qm[h],4), vr(bP,4)))
        e("%s %s, %s, %s, %s" % (MFMA, vr(S1[h],4), vr(kcur+2*h,4), vr(Qm[h],4), vr(bC,4)))
    va = [48, 50, 52, 54]; mx = [56, 57, 58, 59]
    for h in range(4):
        e("v_max3_f32 %s, %s, %s, %s" % (v(va[h]), v(S0[h]), v(S0[h]+1), v(S1[h])))
        e("v_max3_f32 %s, %s, %s, %s" % (v(va[h]+1), v(S0[h]+2), v(S0[h]+3), v(S1[h]+2)))
        e("v_max_f32 %s, %s, %s" % (v(va[h]), v(va[h]), v(S1[h]+1)))
        e("v_max_f32 %s, %s, %s" % (v(va[h]+1), v(va[h]+1), v(S1[h]+3)))
        e("v_max_f32 %s, %s, %s" % (v(mx[h]), v(va[h]), v(va[h]+1)))
    e("v_permlane32_swap_b32 %s, %s" % (v(mx[0]), v(mx[1])))
    e("v_permlane32_swap_b32 %s, %s" % (v(mx[2]), v(mx[3])))
    e("v_max_f32 %s, %s, %s" % (v(mx[0]), v(mx[0]), v(mx[1])))
    e("v_max_f32 %s, %s, %s" % (v(mx[2]), v(mx[2]), v(mx[3])))
    e("v_permlane16_swap_b32 %s, %s" % (v(mx[0]), v(mx[2])))
    e("v_max_f32 %s, %s, %s" % (v(mx[0]), v(mx[0]), v(mx[2])))
    e("v_mov_b32 %s, %s" % (v(mx[2]), v(mx[0])))
    e("v_permlane16_swap_b32 %s, %s" % (v(mx[0]), v(mx[2])))
    e("v_mov_b32 %s, %s" % (v(mx[1]), v(mx[0])))
    e("v_mov_b32 %s, %s" % (v(mx[3]), v(mx[2])))
    e("v_permlane32_swap_b32 %s, %s" % (v(mx[0]), v(mx[1])))
    e("v_permlane32_swap_b32 %s, %s" % (v(mx[2]), v(mx[3])))
    for h in range(4):
        e("v_mul_f32 %s, %s, %s" % (v(mx[h]), v(mx[h]), v(cF)))
    for h in range(4):
        e("v_fma_f32 %s, %s, %s, -%s" % (v(va[h]), v(va[h]), v(cF), v(mx[h])))
        e("v_fma_f32 %s, %s, %s, -%s" % (v(va[h]+1), v(va[h]+1), v(cF), v(mx[h])))
    for h in range(4):
        e("v_exp_f32 %s, %s" % (v(va[h]), v(va[h])))
        e("v_exp_f32 %s, %s" % (v(va[h]+1), v(va[h]+1)))
    for h in range(4):
        e("v_cvt_pk_bf16_f32 %s, %s, %s" % (v(va[h]), v(va[h]), v(va[h]+1)))
    for h in range(4):
        for k in range(4):
            e("v_perm_b32 %s, %s, %s, %s" % (v(P[h]+k), v(va[h]), v(va[h]), v(vSel+k)))
    pairs = [(0,0),(1,0),(1,1),(2,1),(2,2),(3,2),(3,3),(4,3)]
    O = {}
    free = S0 + S1
    for n, p_ in enumerate(pairs): O[p_] = free[n]
    for h in range(4):
        e("%s %s, %s, %s, 0" % (MFMA, vr(Lh[h],4), ar(aONE,4), vr(P[h],4)))
    for (i, h) in pairs:
        e("%s %s, %s, %s, 0" % (MFMA, vr(O[(i,h)],4), vr(vfrag(i),4), vr(P[h],4)))
    for h in range(4):
        e("v_rcp_f32 %s, %s" % (v(Lh[h]), v(Lh[h])))
    for h in range(4):
        e("v_mul_f32 %s, %s, %s" % (v(Lh[h]), v(Lh[h]), v(std)))
    F = [Lh[0], 60, 62, 64, Lh[3]]
    e("v_cndmask_b32_e64 %s, %s, %s, %s" % (v(F[1]), v(Lh[1]), v(Lh[0]), sr(sM+8,2)))
    e("v_cndmask_b32_e64 %s, %s, %s, %s" % (v(F[2]), v(Lh[2]), v(Lh[1]), sr(sM+10,2)))
    e("v_cndmask_b32_e64 %s, %s, %s, %s" % (v(F[3]), v(Lh[3]), v(Lh[2]), sr(sM+12,2)))
    Rr = {}
    Rr[0] = O[(0,0)]; Rr[4] = O[(4,3)]
    for i in (1, 2, 3):
        lo, hi = O[(i,i-1)], O[(i,i)]
        for r in range(4):
            e("v_cndmask_b32_e64 %s, %s, %s, %s" % (v(hi+r), v(hi+r), v(lo+r), sr(sM+8+2*(i-1),2)))
        Rr[i] = hi
    out = P[0]
    for i in range(5):
        e("v_pk_mul_f32 %s, %s, %s op_sel_hi:[1,0]" % (vr(Rr[i],2), vr(Rr[i],2), vr(F[i],2)))
        e("v_pk_mul_f32 %s, %s, %s op_sel_hi:[1,0]" % (vr(Rr[i]+2,2), vr(Rr[i]+2,2), vr(F[i],2)))
        e("v_cvt_pk_bf16_f32 %s, %s, %s" % (v(out+2*i), v(Rr[i]), v(Rr[i]+1)))
        e("v_cvt_pk_bf16_f32 %s, %s, %s" % (v(out+2*i+1), v(Rr[i]+2), v(Rr[i]+3)))
    e("s_lshl_b32 %s, %s, 1" % (s(sT0), s(sRB)))
    e("s_lshr_b32 %s, %s, 1" % (s(sT1), s(sWave)))
    e("s_add_u32 %s, %s, %s" % (s(sT0), s(sT0), s(sT1)))
    e("s_mul_i32 %s, %s, %d" % (s(sT0), s(sT0), ACT_TB))
    e("s_and_b32 %s, %s, 1" % (s(sT1), s(sWave)))
    e("s_lshl_b32 %s, %s, 11" % (s(sT1), s(sT1)))
    e("s_add_u32 %s, %s, %s" % (s(sT0), s(sT0), s(sT1)))
    e("s_add_u32 %s, %s, %d" % (s(sT0), s(sT0), ACT_OFF + T*1024))
    e("s_lshr_b32 %s, %s, 1" % (s(sT1), s(sCB)))
    e("s_mul_i32 %s, %s, 5" % (s(sT1), s(sT1)))
    e("s_and_b32 %s, %s, 1" % (s(sT2), s(sCB)))
    e("s_lshl_b32 %s, %s, 1" % (s(sT3), s(sT2)))
    e("s_add_u32 %s, %s, %s" % (s(sT3), s(sT3), s(sT1)))
    e("s_lshl_b32 %s, %s, 12" % (s(sT3), s(sT3)))
    e("s_add_u32 %s, %s, %s" % (s(sT3), s(sT3), s(sT0)))
    e("buffer_store_dwordx4 %s, %s, %s, %s offen sc1" % (vr(out,4), v(vL16), sr(sWS,4), s(sT3)))
    e("s_add_u32 %s, %s, 4096" % (s(sT3), s(sT3)))
    e("buffer_store_dwordx4 %s, %s, %s, %s offen sc1" % (vr(out+4,4), v(vL16), sr(sWS,4), s(sT3)))
    e("s_add_u32 %s, %s, 4" % (s(sT1), s(sT1)))
    e("s_lshl_b32 %s, %s, 12" % (s(sT1), s(sT1)))
    e("s_add_u32 %s, %s, %s" % (s(sT1), s(sT1), s(sT0)))
    e("s_lshl_b32 %s, %s, 3" % (s(sT2), s(sT2)))
    e("s_add_u32 %s, %s, %s" % (s(sT1), s(sT1), s(sT2)))
    e("buffer_store_dwordx2 %s, %s, %s, %s offen sc1" % (vr(out+8,2), v(vL16), sr(sWS,4), s(sT1)))

def sprinkle(lines, groups, start=0, end_gap=0):
    safe = []
    exec_full = True; skip = None
    n = len(lines)
    for i, t in enumerate(lines):
        tt = t.strip()
        prev = lines[i-1].strip() if i else ""
        ok = exec_full and skip is None
        if prev.startswith("s_cmp") or prev.startswith("v_cmp") or prev.startswith("s_and_b64") or prev.startswith("s_andn2") : ok = False
        if tt.startswith("s_cbranch") or tt.startswith("s_cselect") or tt.startswith("s_addc") or tt.endswith(":"): ok = False
        if tt.startswith("s_barrier") or tt.startswith("s_waitcnt"): ok = False
        if ok and start <= i < n - end_gap: safe.append(i)
        if tt.startswith("s_mov_b32 exec") : exec_full = False
        if tt.startswith("s_mov_b64 exec, -1"): exec_full = True
        if tt.startswith("s_cbranch"): skip = tt.split()[-1]
        if skip and tt == skip + ":": skip = None
    ng = len(groups)
    assert len(safe) >= ng, (len(safe), ng)
    at = {}
    for k in range(ng):
        at.setdefault(safe[k*len(safe)//ng], []).extend(groups[k])
    out = []
    for i, t in enumerate(lines):
        if i in at: out += ["  " + x for x in at[i]]
        out.append(t)
    return out

F_SLOT = 49152; F_XB = 16384
fWA = [160, 161, 162, 163]
F_X0, F_X1 = 164, 165
fXE, fXOd, fWL = 166, 167, 168
fDO = 169
def facc(T, c): return (T*8 + c)*4
fCS = 128
fSUM = [144, 148]
def fxf(kh, T): return aXF + (kh*4 + T)*4

def ffn_lane_setup(e):
    x_lane_setup(e, fXE, fXOd)
    e("v_lshrrev_b32 v6, 2, v1")
    e("v_lshlrev_b32 v6, 3, v6")
    e("v_and_b32 v7, 3, v1")
    e("v_add_u32 v6, v6, v7")
    e("v_mul_u32_u24 v6, 3456, v6")
    e("v_lshrrev_b32 v7, 1, v2")
    e("v_xor_b32 v7, v7, v3")
    e("v_lshlrev_b32 v7, 5, v7")
    e("v_and_b32 v8, 1, v2")
    e("v_lshlrev_b32 v8, 4, v8")
    e("v_add3_u32 v6, v6, v7, v8")
    e("s_lshl_b32 %s, %s, 9" % (s(sT0), s(sCB)))
    e("v_add_u32 %s, %s, v6" % (v(fWL), s(sT0)))

def ffn_cfg(w):
    cfg = Cfg()
    th, ch = w >> 1, w & 1
    cfg.ntile = 8; cfg.ring = 8; cfg.look = int(os.environ.get('LOOKF', 4)); cfg.tail = int(os.environ.get('TAILF', 2)); cfg.nfirst = cfg.look; cfg.wbase = aW
    def wread(kh, c, reg):
        off = (2*ch + (c >> 2))*8192 + kh*4096
        ad = v(fWA[c & 3])
        return ["ds_read_b64_tr_b16 %s, %s offset:%d" % (ar(reg,2), ad, off),
                "ds_read_b64_tr_b16 %s, %s offset:%d" % (ar(reg+2,2), ad, off + 2048)]
    def mf(kh, c, reg):
        out = []
        for T in range(4):
            d = vr(facc(T, c), 4)
            out.append("%s %s, %s, %s, %s" % (MFMA, d, ar(reg,4), ar(fxf(kh,T),4), d))
        if (c >> 2) == th and "nohalo" not in OPTS:
            d = vr(fCS + (c & 3)*4, 4)
            out.append("%s %s, %s, %s, %s" % (MFMA, d, ar(reg,4), ar(aONE,4), d))
        return out
    def stats(kh):
        return ["%s %s, %s, %s, %s" % (MFMA, vr(fSUM[j],4), ar(aONE,4), ar(fxf(kh,2*ch+j),4), vr(fSUM[j],4)) for j in (0,1)]
    def xreads(kh):
        ad = F_X1 if kh else F_X0
        return ["ds_read_b128 %s, %s offset:%d" % (ar(fxf(kh,T),4), v(ad), (4*th+T)*2048) for T in range(4)]
    cfg.wread = wread; cfg.mf = mf; cfg.stats = stats; cfg.xreads = xreads
    cfg.xread1_at = 2
    cfg.addr_update = addr_update(F_SLOT, fWA + [F_X0, F_X1])
    cfg.scal_update = scal_update(F_SLOT, 64*3456)
    cfg.dma_start = int(os.environ.get('DST', 2)); cfg.dma_skew = w*int(os.environ.get('DSK', 1)); cfg.dma_endgap = int(os.environ.get('DEG', 8))
    cfg.wstep = 64*3456; cfg.slot = F_SLOT
    return cfg

def read_addr_setup_ffn(e):
    e("v_and_b32 v1, 15, %s" % v(vLane))
    e("v_lshrrev_b32 v2, 2, v1")
    e("v_and_b32 v3, 3, v1")
    e("v_lshrrev_b32 v4, 4, %s" % v(vLane))
    e("v_lshl_add_u32 v2, v4, 2, v2")
    e("v_lshrrev_b32 v5, 1, v2")
    e("v_and_b32 v5, 3, v5")
    e("v_lshlrev_b32 v2, 7, v2")
    e("v_lshl_add_u32 v2, v3, 3, v2")
    e("v_add_u32 v2, %d, v2" % F_XB)
    for u in range(4):
        e("v_xor_b32 v6, %d, v5" % u)
        e("v_lshl_add_u32 %s, v6, 5, v2" % v(fWA[u]))
    xaddr_setup(e, F_X0, F_X1, 0)

def ffn_epilogue(e):
    e("s_lshr_b32 %s, %s, 1" % (s(sT0), s(sWave)))
    e("s_and_b32 %s, %s, 1" % (s(sT1), s(sWave)))
    e("v_and_b32 v253, 15, %s" % v(vLane)); e("v_lshlrev_b32 v253, 2, v253")
    e("v_lshrrev_b32 v252, 4, %s" % v(vLane)); e("v_lshlrev_b32 v252, 4, v252")
    e("s_lshl_b32 %s, %s, 8" % (s(sT2), s(sT0)))
    e("s_waitcnt vmcnt(13)")
    e("s_mov_b32 %s, 0" % s(sIter))
    stats_check(e, "ffn", F_STD, F_STT)
    e("s_lshl_b32 %s, %s, 9" % (s(sT3), s(sT1)))
    e("v_add_u32 v254, %s, v252" % s(sT3))
    e("v_add_u32 v253, %s, v254" % s(sT2))
    e("s_mov_b32 exec_lo, 0x00010001"); e("s_mov_b32 exec_hi, 0x00010001")
    for q in range(4):
        e("ds_write_b128 v253, %s offset:%d" % (vr(fCS + q*4, 4), q*64))
    e("s_mov_b64 exec, -1")
    e("s_lshl_b32 %s, %s, 1" % (s(sT2), s(sRB)))
    e("s_add_u32 %s, %s, %s" % (s(sT0), s(sT0), s(sT2)))
    e("s_mul_i32 %s, %s, %d" % (s(sT0), s(sT0), ACT_TB))
    e("s_lshl_b32 %s, %s, 3" % (s(sT2), s(sCB)))
    e("s_lshl_b32 %s, %s, 2" % (s(sT3), s(sT1)))
    e("s_add_u32 %s, %s, %s" % (s(sT2), s(sT2), s(sT3)))
    e("s_add_u32 %s, %s, 20" % (s(sT2), s(sT2)))
    e("s_lshl_b32 %s, %s, 12" % (s(sT2), s(sT2)))
    e("s_add_u32 %s, %s, %s" % (s(sT0), s(sT0), s(sT2)))
    if ACT_OFF: e("s_add_u32 %s, %s, %d" % (s(sT0), s(sT0), ACT_OFF))
    e("s_mul_i32 %s, %s, 2" % (s(sT2), s(sCB)))
    e("s_add_u32 %s, %s, %s" % (s(sT2), s(sT2), s(sT1)))
    e("s_cmp_eq_u32 %s, 13" % s(sT2))
    e("s_cselect_b32 %s, 0x%x, 0" % (s(sT2), OOB))
    e("s_waitcnt lgkmcnt(0)")
    e("s_barrier")
    nm = F_STD
    CS = lambda c: 160 + 4*c
    for c in range(8): e("ds_read_b128 %s, v254 offset:%d" % (vr(CS(c),4), c*64))
    pk = [224, 228, 232, 236]
    n = 0
    for j in range(4):
        if j == 2: e("s_add_u32 %s, %s, %s" % (s(sT0), s(sT0), s(sT2)))
        for T in range(4):
            o = pk[n & 3]; n += 1
            for k in range(2):
                c = 2*j + k; d = facc(T, c); q = CS(c)
                e("v_pk_fma_f32 %s, %s, %s, %s op_sel_hi:[1,0,1]" % (vr(d,2), vr(q,2), vr(nm[T],2), vr(d,2)))
                e("v_pk_fma_f32 %s, %s, %s, %s op_sel_hi:[1,0,1]" % (vr(d+2,2), vr(q+2,2), vr(nm[T],2), vr(d+2,2)))
                e("v_cvt_pk_bf16_f32 %s, %s, %s" % (v(o+2*k), v(d), v(d+1)))
                e("v_cvt_pk_bf16_f32 %s, %s, %s" % (v(o+2*k+1), v(d+2), v(d+3)))
                e("v_pk_max_i16 %s, %s, 0" % (v(o+2*k), v(o+2*k)))
                e("v_pk_max_i16 %s, %s, 0" % (v(o+2*k+1), v(o+2*k+1)))
            e("buffer_store_dwordx4 %s, %s, %s, %s offen offset:%d sc1" % (vr(o,4), v(vL16), sr(sWS,4), s(sT0), T*1024))
        e("s_add_u32 %s, %s, 4096" % (s(sT0), s(sT0)))

U_ROW = 320
U_BYTES = 32*U_ROW
sPF = 60
vUO = [200, 201, 202]; vUH = [203, 204, 205]; vUT = [206, 207, 208]
sUW = [64, 65, 66]
sUl, sUn = 67, 68
def unit_setup_dyn(e):
    e("s_lshl_b32 %s, %s, 6" % (s(sT0), s(sWave)))
    for m in range(3):
        e("v_add_u32 v1, %s, %s" % (s(sT0), v(vLane)))
        if m: e("v_add_u32 v1, %d, v1" % (256*m))
        e("v_mul_u32_u24 v2, 3277, v1"); e("v_lshrrev_b32 v2, 16, v2")
        e("v_mul_u32_u24 v3, 20, v2"); e("v_sub_u32 v3, v1, v3")
        e("v_mul_u32_u24 v4, 1280, v2"); e("v_lshl_add_u32 %s, v3, 4, v4" % v(vUO[m]))
        e("v_lshrrev_b32 %s, 4, v2" % v(vUH[m]))
        if m == 2:
            e("v_mov_b32 v5, 0x40000000")
            e("v_cmp_le_u32 vcc, 640, v1")
            e("v_cndmask_b32_e64 %s, %s, v5, vcc" % (v(vUO[m]), v(vUO[m])))
            e("v_cndmask_b32_e64 %s, %s, 0, vcc" % (v(vUH[m]), v(vUH[m])))
    e("v_and_b32 v1, 15, %s" % v(vLane)); e("v_lshrrev_b32 v2, 2, v1"); e("v_and_b32 v3, 3, v1")
    e("v_lshrrev_b32 v4, 4, %s" % v(vLane)); e("v_lshl_add_u32 v2, v4, 2, v2")
    e("v_mul_u32_u24 v2, %d, v2" % U_ROW)
    for m in range(3):
        e("s_add_u32 %s, %s, %d" % (s(sT0), s(sWave), 4*m))
        e("s_cmp_ge_u32 %s, 5" % s(sT0)); e("s_cselect_b32 %s, 1, 0" % s(sT1))
        e("s_mul_i32 %s, %s, 5" % (s(sT2), s(sT1))); e("s_sub_u32 %s, %s, %s" % (s(sT2), s(sT0), s(sT2)))
        e("s_lshr_b32 %s, %s, 1" % (s(sT3), s(sT2))); e("s_lshl_b32 %s, %s, 6" % (s(sT3), s(sT3)))
        e("s_and_b32 %s, %s, 1" % (s(sD0), s(sT2))); e("s_lshl_b32 %s, %s, 3" % (s(sD0), s(sD0)))
        e("s_add_u32 %s, %s, %s" % (s(sT3), s(sT3), s(sD0)))
        e("s_mul_i32 %s, %s, 160" % (s(sD0), s(sT1))); e("s_add_u32 %s, %s, %s" % (s(sT3), s(sT3), s(sD0)))
        e("s_cmp_eq_u32 %s, 4" % s(sT2)); e("s_cselect_b32 %s, 3, 4" % s(sD0))
        e("v_lshlrev_b32 v5, %s, v3" % s(sD0))
        e("v_add3_u32 %s, v5, v2, %s" % (v(vUT[m]), s(sT3)))
        e("s_mul_i32 %s, %s, %d" % (s(sUW[m]), s(sT1), W2F_CB))
        e("s_lshl_b32 %s, %s, 10" % (s(sD0), s(sT2)))
        e("s_add_u32 %s, %s, %s" % (s(sUW[m]), s(sUW[m]), s(sD0)))
        e("s_cmp_ge_u32 %s, 10" % s(sT0)); e("s_cselect_b32 %s, 0x%x, %s" % (s(sUW[m]), 0x40000000, s(sUW[m])))
def unit_loads_dyn(e):
    sU = sUn
    e("s_lshr_b32 %s, %s, 2" % (s(sT0), s(sU)))
    e("s_and_b32 %s, %s, 3" % (s(sT1), s(sU)))
    e("s_mul_i32 %s, %s, 52" % (s(sT2), s(sT0))); e("s_lshr_b32 %s, %s, 8" % (s(sT2), s(sT2)))
    e("s_mul_i32 %s, %s, 5" % (s(sT3), s(sT2))); e("s_sub_u32 %s, %s, %s" % (s(sT3), s(sT0), s(sT3)))
    e("s_mul_i32 %s, %s, 160" % (s(sT2), s(sT2)))
    e("s_lshl_b32 %s, %s, 5" % (s(sD0), s(sT3)))
    e("s_cmp_ge_u32 %s, 2" % s(sT3)); e("s_cselect_b32 %s, 16, 0" % s(sD1))
    e("s_add_u32 %s, %s, %s" % (s(sD0), s(sD0), s(sD1)))
    e("s_cmp_eq_u32 %s, 4" % s(sT3)); e("s_cselect_b32 %s, 64, %s" % (s(sD0), s(sD0)))
    e("s_cselect_b32 %s, %d, 0" % (s(sD1), 64*1280))
    e("s_add_u32 %s, %s, %s" % (s(sD0), s(sD0), s(sT2)))
    e("s_sub_u32 %s, %s, 20" % (s(sT2), s(sT0))); e("s_lshl_b32 %s, %s, 5" % (s(sT2), s(sT2)))
    e("s_cmp_lt_u32 %s, 20" % s(sT0))
    e("s_cselect_b32 %s, %s, %s" % (s(sD0), s(sD0), s(sT2)))
    e("s_cselect_b32 %s, %s, 0" % (s(sD1), s(sD1)))
    e("s_cselect_b32 %s, s8, s14" % s(sPF))
    e("s_cselect_b32 %s, s9, s15" % s(sPF+1))
    e("s_cselect_b32 %s, %s, %s" % (s(sPF+2), s(sSzO), s(sSz2)))
    e("s_and_b32 %s, %s, 0xffff" % (s(sPF+1), s(sPF+1)))
    e("s_mov_b32 %s, 0x20000" % s(sPF+3))
    e("s_mul_i32 %s, %s, 1280" % (s(sD0), s(sD0)))
    e("s_mul_i32 %s, %s, 320" % (s(sT1), s(sT1)))
    e("s_add_u32 %s, %s, %s" % (s(sD0), s(sD0), s(sT1)))
    e("s_cmp_ge_u32 %s, %d" % (s(sU), 4*NKS)); e("s_cselect_b32 %s, 0x%x, %s" % (s(sD0), OOB, s(sD0)))
    e("s_lshl_b32 %s, %s, 10" % (s(sT0), s(sWave)))
    e("s_add_u32 %s, %s, %s" % (s(sT0), s(sT0), s(sUl)))
    for m in range(3):
        e("v_mad_u32_u24 %s, %s, %s, %s" % (v(210+m), v(vUH[m]), s(sD1), v(vUO[m])))
        if m < 2: e("s_add_u32 m0, %s, %d" % (s(sT0), 4096*m))
        else:
            e("s_add_u32 %s, %s, %d" % (s(sT1), s(sT0), 4096*m))
            e("s_cmp_ge_u32 %s, 2" % s(sWave))
            e("s_cselect_b32 m0, %d, %s" % (161792, s(sT1)))
        e("s_nop 0")
        e("buffer_load_dwordx4 %s, %s, %s offen lds" % (v(210+m), sr(sPF,4), s(sD0)))
def unit_store_dyn(e, vd=0, full_wait=False):
    sU = sUn
    e("s_lshr_b32 %s, %s, 2" % (s(sT0), s(sU)))
    e("s_and_b32 %s, %s, 3" % (s(sT1), s(sU)))
    e("s_mul_i32 %s, %s, 5120" % (s(sT0), s(sT0)))
    e("s_mul_i32 %s, %s, %d" % (s(sT1), s(sT1), 2*W2F_CB))
    e("s_add_u32 %s, %s, %s" % (s(sT0), s(sT0), s(sT1)))
    e("s_add_u32 %s, %s, %d" % (s(sT0), s(sT0), W2F_OFF))
    e("s_cmp_ge_u32 %s, %d" % (s(sU), 4*NKS)); e("s_cselect_b32 %s, 0x%x, %s" % (s(sT0), 0x30000000, s(sT0)))
    for m in range(3):
        e("v_add_u32 %s, %s, %s" % (v(213+m), s(sUl), v(vUT[m])))
        e("ds_read_b64_tr_b16 %s, %s" % (vr(vd+4*m,2), v(213+m)))
        e("ds_read_b64_tr_b16 %s, %s offset:%d" % (vr(vd+4*m+2,2), v(213+m), 16*U_ROW))
    for m in range(3):
        e("s_add_u32 %s, %s, %s" % (s(sT1), s(sT0), s(sUW[m])))
        e("s_waitcnt lgkmcnt(%d)" % (4 - 2*m if not full_wait else 0))
        e("buffer_store_dwordx4 %s, %s, %s, %s offen sc1" % (vr(vd+4*m,4), v(vL16), sr(sWS,4), s(sT1)))

def pf_stats_loads(e):
    e("v_lshrrev_b32 v1, 4, %s" % v(vLane)); e("v_mul_u32_u24 v1, 1280, v1")
    e("v_and_b32 v2, 15, %s" % v(vLane)); e("v_lshl_add_u32 v14, v2, 4, v1")
    e("s_lshl_b32 %s, %s, 7" % (s(sT0), s(sCB))); e("s_lshl_b32 %s, %s, 5" % (s(sT1), s(sWave)))
    e("s_add_u32 %s, %s, %s" % (s(sT0), s(sT0), s(sT1))); e("s_mul_i32 %s, %s, 1280" % (s(sT0), s(sT0)))
    for grp in range(8):
        for i in range(5):
            e("buffer_load_dwordx4 %s, v14, %s, %s offen offset:%d ; rare" % (vr(16 + grp*20 + i*4, 4), sr(sX,4), s(sT0), i*256))
        e("s_add_u32 %s, %s, %d" % (s(sT0), s(sT0), 4*1280))
def pf_stats_compute(e):
    e("v_mov_b32 v15, 0x3f803f80")
    for grp in range(8):
        b = 16 + grp*20
        sm, sq = 176 + 2*grp, 177 + 2*grp
        e("v_mov_b32 %s, 0" % v(sm)); e("v_mov_b32 %s, 0" % v(sq))
        for i in range(20):
            e("v_dot2c_f32_bf16 %s, %s, v15" % (v(sm), v(b+i)))
            e("v_dot2c_f32_bf16 %s, %s, %s" % (v(sq), v(b+i), v(b+i)))
    for sh in (8, 4, 2, 1):
        for r in range(176, 192):
            e("v_add_f32_dpp %s, %s, %s row_ror:%d row_mask:0xf bank_mask:0xf" % (v(r), v(r), v(r), sh))
    e("v_lshrrev_b32 v1, 4, %s" % v(vLane)); e("v_lshlrev_b32 v1, 4, v1")
    e("s_lshl_b32 %s, %s, 7" % (s(sT0), s(sCB))); e("s_lshl_b32 %s, %s, 5" % (s(sT1), s(sWave)))
    e("s_add_u32 %s, %s, %s" % (s(sT0), s(sT0), s(sT1))); e("s_lshl_b32 %s, %s, 4" % (s(sT0), s(sT0)))
    e("s_add_u32 %s, %s, %d" % (s(sT0), s(sT0), STATS_OFF))
    for grp in range(8):
        sm, sq = 176 + 2*grp, 177 + 2*grp
        o = 16 + 4*grp
        e("v_mul_f32 %s, 0x%08x, %s" % (v(o), f2u(-1.0/640), v(sm)))
        e("v_mul_f32 %s, 0x%08x, %s" % (v(sq), f2u(1.0/640), v(sq)))
        e("v_fma_f32 %s, -%s, %s, %s" % (v(sq), v(o), v(o), v(sq)))
        e("v_max_f32 %s, 0, %s" % (v(sq), v(sq)))
        e("v_add_f32 %s, 0x%08x, %s" % (v(sq), f2u(1e-5), v(sq)))
        e("v_rsq_f32 %s, %s" % (v(o+1), v(sq)))
        e("v_mov_b32 %s, %s" % (v(o+3), s(sNonce)))
        e("v_mul_f32 %s, %s, %s" % (v(o+2), v(sq), v(o+1)))
    e("s_mov_b32 exec_lo, 0x00010001"); e("s_mov_b32 exec_hi, 0x00010001")
    for grp in range(8):
        e("buffer_store_dwordx4 %s, v1, %s, %s offen offset:%d sc1" % (vr(16+4*grp,4), sr(sWS,4), s(sT0), grp*64))
    e("s_mov_b64 exec, -1")
def stats_load_group(dst, tok_sgpr):
    return ["s_lshl_b32 %s, %s, 4" % (s(sP1), s(tok_sgpr)), "s_add_u32 %s, %s, %d" % (s(sP1), s(sP1), STATS_OFF),
            "buffer_load_dwordx4 %s, %s, %s, %s offen sc1" % (vr(dst,4), v(vT16), sr(sWS,4), s(sP1))]
A_STD, A_STT = [180, 184, 188], [74, 75, 101]
F_STD, F_STT = [200, 204, 208, 212], [73, 74, 75, 101]
vT16 = 251
def stats_check(e, tag, dsts, toks):
    R = " ; rare"
    e.lab("L_stc_%s" % tag)
    e("s_mov_b64 %s, exec" % sr(sM+16,2))
    for d in dsts:
        e("v_cmp_eq_u32 vcc, %s, %s" % (s(sNonce), v(d+3)))
        e("s_nop 1")
        e("s_and_b64 %s, %s, vcc" % (sr(sM+16,2), sr(sM+16,2)))
    e("s_cmp_eq_u64 %s, exec" % sr(sM+16,2))
    e("s_cbranch_scc1 L_stok_%s" % tag)
    e("s_add_u32 %s, %s, 1" % (s(sIter), s(sIter)) + R)
    e("s_cmp_gt_u32 %s, %d" % (s(sIter), SPIN_MAX) + R)
    e("s_cbranch_scc1 L_stok_%s" % tag + R)
    e("s_sleep 8" + R)
    for d, t in zip(dsts, toks):
        for x in stats_load_group(d, t): e(x + R)
    e("s_waitcnt vmcnt(0)" + R)
    e("s_branch L_stc_%s" % tag + R)
    e.lab("L_stok_%s" % tag)

def pf_loop(e, tag, fn, u0, n, lds0):
    e("s_add_u32 %s, %s, %d" % (s(sUn), s(sCB), 16*u0))
    e("s_mov_b32 %s, %d" % (s(sUl), lds0))
    e("s_mov_b32 %s, 0" % s(sIter))
    e.lab("L_pfl_%s" % tag)
    fn(e)
    e("s_add_u32 %s, %s, 16" % (s(sUn), s(sUn)))
    e("s_add_u32 %s, %s, %d" % (s(sUl), s(sUl), U_BYTES))
    e("s_add_u32 %s, %s, 1" % (s(sIter), s(sIter)))
    e("s_cmp_lt_u32 %s, %d" % (s(sIter), n))
    e("s_cbranch_scc1 L_pfl_%s" % tag)
N_FFN_UNITS = 2
def signal_count(e, off):
    R = " ; rare"
    e("v_mov_b32 v250, 1" + R); e("v_mov_b32 v251, 0" + R)
    e("s_mov_b32 exec_lo, 1" + R); e("s_mov_b32 exec_hi, 0" + R)
    e("buffer_atomic_add v250, v251, %s, 0 offen offset:%d sc1" % (sr(sDBG,4), off) + R)
    e("s_mov_b64 exec, -1" + R)
def spin_count(e, tag, off, target, vtmp, have_first=None):
    R = " ; rare"
    if have_first is not None:
        e("v_readfirstlane_b32 %s, %s" % (s(sT0), v(have_first)))
        e("s_nop 3")
        e("s_cmp_ge_u32 %s, %d" % (s(sT0), target))
        e("s_cbranch_scc1 L_cok_%s" % tag)
    e("s_mov_b32 %s, 0" % s(sT1) + R)
    e("v_mov_b32 %s, 0" % v(vtmp+1) + R)
    e.lab("L_cspin_%s" % tag)
    e("buffer_load_dword %s, %s, %s, 0 offen offset:%d sc1" % (v(vtmp), v(vtmp+1), sr(sDBG,4), off) + R)
    e("s_waitcnt vmcnt(0)" + R)
    e("v_readfirstlane_b32 %s, %s" % (s(sT0), v(vtmp)) + R)
    e("s_nop 3" + R)
    e("s_cmp_ge_u32 %s, %d" % (s(sT0), target) + R)
    e("s_cbranch_scc1 L_cok_%s" % tag + R)
    e("s_sleep %d" % CSLEEP + R)
    e("s_add_u32 %s, %s, 1" % (s(sT1), s(sT1)) + R)
    e("s_cmp_lt_u32 %s, %d" % (s(sT1), SPIN_MAX) + R)
    e("s_cbranch_scc1 L_cspin_%s" % tag + R)
    e.lab("L_cok_%s" % tag)
CSLEEP = 40
FSLEEP = int(os.environ.get('FSL', 8))
CNT_P, N_P = 4, 128

DA = 6
POLL_A_AT = int(os.environ.get('PAA', 5))
FFN_W2A_IN = 0
ATT_POLL_BACK = int(os.environ.get('APB', 90))
ATT_W2A_IN = int(os.environ.get('ATT_IN', 60))
ATT_ENDGAP = int(os.environ.get('ATT_GAP', 40))
W2A_BEFORE_SIG = int(os.environ.get('WBS', 12))

vAR = 80
vWR = 176
def act_soff(p, dst):
    if p < 14: return ["s_lshl_b32 %s, %s, 2" % (s(dst), s(sKQ[p])), "s_add_u32 %s, %s, %s" % (s(dst), s(dst), s(sAB))]
    return ["s_lshl_b32 %s, %s, 12" % (s(dst), s(sWave)), "s_add_u32 %s, %s, %s" % (s(dst), s(dst), s(sAB)),
            "s_add_u32 %s, %s, %d" % (s(dst), s(dst), 4*(p-14)*4096)]
vAO = [244, 246, 248, 249]
def act_loads(p):
    st = vAR + (p % DA)*16
    G = []
    for tt in range(4):
        g = act_soff(p, sD0) if tt == 0 else []
        g.append("buffer_load_dwordx4 %s, %s, %s, %s offen sc1" % (vr(st+4*tt,4), v(vAO[tt]), sr(sWS,4), s(sD0)))
        G.append(g)
    return G
PE_F = int(os.environ.get('PEF', 17))
XRES_AT = 14
BAR_AT = int(os.environ.get('BARAT', 5))
PE_A = int(os.environ.get('PEA', 17))
sMain = 100

def ao_setup(e, sfx=""):
    for tt in range(4):
        e("s_add_u32 %s, %s, %d%s" % (s(sT0), s(sWave), tt, sfx))
        e("s_and_b32 %s, %s, 3%s" % (s(sT0), s(sT0), sfx))
        e("s_lshl_b32 %s, %s, 10%s" % (s(sT0), s(sT0), sfx))
        e("v_add_u32 %s, %s, %s%s" % (v(vAO[tt]), s(sT0), v(vL16), sfx))

def build_main(tag, P0v):
    main = E()
    main.lab("L_ph2_main_" + tag)
    main("v_add_u32 v216, %s, %s" % (s(sLA), v(vL16)))
    main("v_add_u32 v217, %s, %s" % (s(sLB), v(vL16)))
    def wl_reads(p):
        out = []
        for ct in range(5):
            q = 5*p + ct
            ad, off = (216, q*1024) if q < 12 else (217, (q-12)*1024)
            out.append("ds_read_b128 %s, %s offset:%d" % (vr(vWR + (p & 1)*20 + ct*4, 4), v(ad), off))
        return out
    main.ext(wl_reads(0))
    main("v_lshlrev_b32 v218, 2, %s" % v(vLane))
    for tt in range(1, 4):
        main("s_add_u32 %s, %s, %d" % (s(sT0), s(sWave), tt))
        main("s_and_b32 %s, %s, 3" % (s(sT0), s(sT0)))
        main("s_mul_i32 %s, %s, 15360" % (s(sT0), s(sT0)))
        main("s_add_u32 %s, %s, %d" % (s(sT0), s(sT0), (tt-1)*5120))
        main("v_add_u32 %s, %s, %s" % (v(236+tt), s(sT0), v(vL16)))
    stamp(main, 9)
    NP = 19
    for p in range(NP):
        if "p2st" in OPTS and p in (1, 5, 9, 10, 14): stamp(main, {1: 1, 5: 2, 9: 3, 10: 4, 14: 5}[p])
        if "p2stb" in OPTS and p in (10, 12, 14, 16, 18): stamp(main, {10: 1, 12: 2, 14: 3, 16: 4, 18: 5}[p])
        ms = []
        order = [(ct, tt) for ct in range(5) for tt in range(4)] if p < NP - 1 else [(ct, tt) for tt in (1, 2, 3, 0) for ct in range(5)]
        for ct, tt in order:
            if p < 5: wsrc = vr(vWR + (p & 1)*20 + ct*4, 4)
            else:     wsrc = ar(((p - 5) % 12)*20 + ct*4, 4)
            d = vr((tt*5+ct)*4, 4)
            ms.append("%s %s, %s, %s, %s" % (MFMA, d, wsrc, vr(vAR + (p % DA)*16 + 4*tt, 4), d if p else "0"))
        aux = []
        if p + 1 < 5: aux += [[t] for t in wl_reads(p + 1)]
        q = p - 1 + DA
        if p >= 1 and q < NP:
            if q == 14:
                sp = E(); spin_flags(sp, "a" + tag, MASK_A, 250, have_first=219)
                main.ext(sp.L)
            aux += act_loads(q)
        if p == XRES_AT:
            rx = E()
            rx("v_and_b32 v220, 15, %s" % v(vLane)); rx("v_lshrrev_b32 v221, 4, %s" % v(vLane))
            rx("s_lshl_b32 %s, %s, 6" % (s(sT0), s(sTB))); rx("s_lshl_b32 %s, %s, 4" % (s(sT1), s(sWave)))
            rx("s_add_u32 %s, %s, %s" % (s(sT0), s(sT0), s(sT1)))
            rx("v_add_u32 v220, %s, v220" % s(sT0)); rx("v_lshlrev_b32 v222, 4, v220")
            rx("v_mul_u32_u24 v220, 1280, v220")
            rx("s_mul_i32 %s, %s, 160" % (s(sT1), s(sC2))); rx("v_add_u32 v220, %s, v220" % s(sT1))
            rx("v_lshl_add_u32 v240, v221, 4, v220"); rx("v_lshl_add_u32 v242, v221, 3, v220")
            rx("s_mov_b32 %s, %d" % (s(sT2), STATS_OFF + 4))
            rx("buffer_load_dwordx4 v[224:227], v240, %s, 0 offen" % sr(sX,4))
            rx("buffer_load_dwordx4 v[228:231], v240, %s, 0 offen offset:64" % sr(sX,4))
            rx("buffer_load_dwordx2 v[232:233], v242, %s, 0 offen offset:128" % sr(sX,4))
            rx("buffer_load_dword v234, v222, %s, %s offen sc1" % (sr(sWS,4), s(sT2)))
            aux += [[t.strip()] for t in rx.L]
        if p == POLL_A_AT:
            aux.append(["buffer_load_dword v219, v218, %s, %s offen sc1" % (sr(sWS,4), s(sFL))])
        if P0v <= p + 7 <= 16: aux += w2a_groups(p + 7, p + 8)
        if p == 10: aux += w2a_groups(17, 18)
        if p == 11: aux += w2a_groups(18, 19)
        if p == BAR_AT: aux.append(["s_barrier"])
        if tag == "A" and p == 1:
            sg = E(); sg("s_barrier"); signal_rb(sg, "attn", None, vt=(220, 221))
            main.ext(sg.L)
        n = len(ms); k = 0
        wq = [(tt, ct) for tt in range(1, 4) for ct in range(5)] if p == NP - 1 else []
        for i_, m in enumerate(ms):
            main(m)
            want = (i_ + 1)*len(aux) // n
            while k < want:
                main.ext(aux[k]); k += 1
            if wq and i_ >= 5:
                tt, ct = wq.pop(0)
                main("ds_write_b128 %s, %s offset:%d" % (v(236+tt), vr((tt*5+ct)*4,4), ct*1024))
        for tt, ct in wq:
            main("ds_write_b128 %s, %s offset:%d" % (v(236+tt), vr((tt*5+ct)*4,4), ct*1024))
    stamp(main, 10)
    main("s_branch L_ph2_tail")
    st = State(); d = []
    pre = []
    for g in w2a_groups(5, P0v): pre += ["  " + t for t in g]
    for p in range(DA):
        for g in act_loads(p): pre += ["  " + t for t in g]
    st = process(pre, st, d); st.hist = []
    o = []; st = process(main.L, st, o)
    return o, st

def phase2():
    e = E()
    e.lab("L_ph2")
    if "dlymid" in OPTS: e("s_sleep 64")
    stamp(e, 8)
    ao_setup(e)
    check_flags(e, MASK_F, vPoll, "L_ph2_ok2")
    spin_flags(e, "f", MASK_F, 250)
    e.lab("L_ph2_ok2")
    for p in range(DA):
        for g in act_loads(p): e.ext(["%s ; rare" % t for t in g])
    e("s_branch L_ph2_main_F")
    o0 = []; process(e.L, State(), o0)
    oF, stF = build_main("F", PE_F)
    oA, stA = build_main("A", PE_A)
    stA.merge(stF); stA.hist = []
    main = E()
    main.lab("L_ph2_tail")
    srd(main, sW, 16, X_BYTES)
    main("s_mul_i32 %s, %s, 15360" % (s(sT0), s(sWave)))
    main("v_add_u32 v236, %s, %s" % (s(sT0), v(vL16)))
    xr = [224, 226, 228, 230, 232]
    X = 180
    for ct in range(5):
        for hh in range(2):
            main("v_lshlrev_b32 %s, 16, %s" % (v(X + ct*4 + 2*hh), v(xr[ct]+hh)))
            main("v_and_b32 %s, 0xffff0000, %s" % (v(X + ct*4 + 2*hh + 1), v(xr[ct]+hh)))
    main("s_waitcnt lgkmcnt(0)")
    main("s_barrier")
    for k in range(3):
        for ct in range(5):
            main("ds_read_b128 %s, v236 offset:%d" % (vr(80 + (k*5+ct)*4, 4), (k*5+ct)*1024))
    o = 150
    for kk in range(2):
        for ct in range(5):
            for hh in range(2):
                r = ct*4 + 2*hh
                main("v_pk_add_f32 %s, %s, %s" % (vr(r,2), vr(r,2), vr(80 + 20*kk + r, 2)))
    for ct in range(5):
        for hh in range(2):
            r = ct*4 + 2*hh
            main("v_pk_add_f32 %s, %s, %s" % (vr(r,2), vr(r,2), vr(120 + r, 2)))
            main("v_pk_fma_f32 %s, %s, %s, %s op_sel_hi:[1,0,1]" % (vr(X+r,2), vr(r,2), vr(234,2), vr(X+r,2)))
            main("v_cvt_pk_bf16_f32 %s, %s, %s" % (v(o + 2*ct + hh), v(X+r), v(X+r+1)))
    fl = " sc1" if "outsc1" in OPTS else (" nt" if "outnt" in OPTS else "")
    main("buffer_store_dwordx4 %s, v240, %s, 0 offen%s" % (vr(o,4), sr(sW,4), fl))
    main("buffer_store_dwordx4 %s, v240, %s, 0 offen offset:64%s" % (vr(o+4,4), sr(sW,4), fl))
    main("buffer_store_dwordx2 %s, v242, %s, 0 offen offset:128%s" % (vr(o+8,2), sr(sW,4), fl))
    if "dlyend" in OPTS: main("s_sleep 64")
    stamp(main, 11)
    if "stamp" in OPTS: main("s_waitcnt vmcnt(0)")
    stamp(main, 12)
    stamp_flush(main)
    o2 = []; process(["  s_nop 7"] + main.L, stA, o2)
    return o0 + oF + oA + o2

def top():
    out = []
    e = E()
    e("s_load_dwordx16 s[4:19], s[0:1], 0")
    e("s_load_dwordx2 s[20:21], s[0:1], 64")
    e("s_cmp_ge_u32 s2, 256")
    e("s_cbranch_scc1 L_end")
    if "stamp" in OPTS: e("v_mov_b32 %s, 0" % v(vSt))
    if "ep2x" in OPTS: e("s_mov_b32 s100, 0")
    if "dlystart" in OPTS: e("s_sleep 64")
    e("s_getpc_b64 s[60:61]")
    e.lab("L_pcbase")
    e("s_lshr_b32 s3, s2, 3")
    e("s_lshl_b32 s3, s3, 12")
    e("v_lshl_add_u32 v2, v0, 4, s3")
    e("v_min_u32 v2, L_codeend-L_pcbase-16, v2")
    if "nopf" not in OPTS: e("global_load_dwordx4 v[236:239], v2, s[60:61]")
    e("v_and_b32 %s, 63, v0" % v(vLane))
    e("v_lshrrev_b32 v1, 6, v0")
    e("s_and_b32 s3, s2, 7")
    e("v_readfirstlane_b32 %s, v1" % s(sWave))
    e("s_lshr_b32 %s, s2, 3" % s(sT0))
    e("s_and_b32 %s, s3, 1" % s(sT1))
    e("s_lshr_b32 %s, s3, 1" % s(sT2))
    e("s_lshl_b32 %s, %s, 3" % (s(sT1), s(sT1)))
    e("s_cmp_ge_u32 %s, 30" % s(sT0))
    e("s_cbranch_scc1 L_role_pf")
    e("s_cmp_ge_u32 %s, 16" % s(sT0))
    e("s_cbranch_scc1 L_role_ffn")
    e("s_lshl_b32 %s, %s, 1" % (s(sCB), s(sT2)))
    e("s_lshr_b32 %s, %s, 3" % (s(sT3), s(sT0)))
    e("s_add_u32 %s, %s, %s" % (s(sCB), s(sCB), s(sT3)))
    e("s_and_b32 %s, %s, 7" % (s(sKC), s(sT0)))
    e("s_add_u32 %s, %s, %s" % (s(sRB), s(sT1), s(sKC)))
    e("s_mul_i32 %s, %s, 5" % (s(sT3), s(sT3)))
    e("s_add_u32 %s, %s, %s" % (s(sKC), s(sKC), s(sT3)))
    e("s_cmp_ge_u32 %s, 10" % s(sKC))
    e("s_cselect_b32 %s, 10, 0" % s(sT3))
    e("s_sub_u32 %s, %s, %s" % (s(sKC), s(sKC), s(sT3)))
    if "rotk" not in OPTS: e("s_mov_b32 %s, 0" % s(sKC))
    if "rot4" in OPTS:
        e("s_and_b32 %s, %s, 1" % (s(sT3), s(sCB))); e("s_lshl_b32 %s, %s, 1" % (s(sT3), s(sT3)))
        e("s_add_u32 %s, %s, %s" % (s(sT3), s(sT3), s(sRB))); e("s_and_b32 %s, %s, 3" % (s(sT3), s(sT3)))
        e("s_mul_i32 %s, %s, 5" % (s(sT3), s(sT3))); e("s_lshr_b32 %s, %s, 1" % (s(sKC), s(sT3)))
    e("s_mul_i32 %s, %s, %d" % (s(sXO), s(sRB), 128*1280))
    e("s_sub_u32 %s, %s, %d" % (s(sXH), s(sXO), 16*1280))
    e("s_cmp_eq_u32 %s, 0" % s(sRB))
    e("s_cselect_b32 %s, 0, %s" % (s(sXH), s(sXH)))
    e("s_add_u32 %s, %s, 8" % (s(sSig), s(sCB)))
    attn_lane_setup(e)
    e("s_waitcnt lgkmcnt(0)")
    srd(e, sX, 4, X_BYTES); srd(e, sW, 6, WQKV_BYTES); srd(e, sWS, 20, WS_USED); srd(e, sDBG, 18, 256)
    stamp(e, 0)
    attn_first_dma(e, 1 if 'late1' in OPTS else 2)
    stamp(e, 1)
    for w in range(3):
        e("s_cmp_eq_u32 %s, %d" % (s(sWave), w))
        e("s_cbranch_scc1 L_attn_%d" % w)
    e("s_branch L_attn_3")
    e.lab("L_role_ffn")
    e("s_mul_i32 %s, %s, 14" % (s(sT2), s(sT2)))
    e("s_add_u32 %s, %s, %s" % (s(sT2), s(sT2), s(sT0)))
    e("s_sub_u32 %s, %s, 16" % (s(sT2), s(sT2)))
    e("s_lshr_b32 %s, %s, 3" % (s(sCB), s(sT2)))
    e("s_and_b32 %s, %s, 7" % (s(sKC), s(sT2)))
    e("s_add_u32 %s, %s, %s" % (s(sRB), s(sT1), s(sKC)))
    e("s_and_b32 %s, %s, 1" % (s(sT3), s(sCB)))
    e("s_mul_i32 %s, %s, 5" % (s(sT3), s(sT3)))
    e("s_add_u32 %s, %s, %s" % (s(sKC), s(sKC), s(sT3)))
    e("s_add_u32 %s, %s, 2" % (s(sKC), s(sKC)))
    e("s_cmp_ge_u32 %s, 10" % s(sKC))
    e("s_cselect_b32 %s, 10, 0" % s(sT3))
    e("s_sub_u32 %s, %s, %s" % (s(sKC), s(sKC), s(sT3)))
    if "rotk" not in OPTS: e("s_mov_b32 %s, 0" % s(sKC))
    if "rot4" in OPTS:
        e("s_and_b32 %s, %s, 1" % (s(sT3), s(sCB))); e("s_lshl_b32 %s, %s, 1" % (s(sT3), s(sT3)))
        e("s_add_u32 %s, %s, %s" % (s(sT3), s(sT3), s(sRB))); e("s_add_u32 %s, %s, 1" % (s(sT3), s(sT3))); e("s_and_b32 %s, %s, 3" % (s(sT3), s(sT3)))
        e("s_mul_i32 %s, %s, 5" % (s(sT3), s(sT3))); e("s_lshr_b32 %s, %s, 1" % (s(sKC), s(sT3)))
    e("s_mul_i32 %s, %s, %d" % (s(sXO), s(sRB), 128*1280))
    e("s_mov_b32 %s, %s" % (s(sSig), s(sCB)))
    e("s_mul_i32 %s, %s, 7" % (s(sUn), s(sT1)))
    e("s_add_u32 %s, %s, %s" % (s(sUn), s(sUn), s(sT2)))
    ffn_lane_setup(e)
    e("s_waitcnt lgkmcnt(0)")
    srd(e, sX, 4, X_BYTES); srd(e, sW, 12, W1_BYTES); srd(e, sWS, 20, WS_USED); srd(e, sDBG, 18, 256); srd(e, sQ, 6, WQKV_BYTES)
    stamp(e, 0)
    ffn_first_dma(e, 1 if 'late1' in OPTS else 2)
    stamp(e, 1)
    for w in range(3):
        e("s_cmp_eq_u32 %s, %d" % (s(sWave), w))
        e("s_cbranch_scc1 L_ffn_%d" % w)
    e("s_branch L_ffn_3")
    e.lab("L_role_pf")
    e("s_lshl_b32 %s, s3, 1" % s(sCB))
    e("s_add_u32 %s, %s, %s" % (s(sCB), s(sCB), s(sT0)))
    e("s_sub_u32 %s, %s, 30" % (s(sCB), s(sCB)))
    e("s_waitcnt lgkmcnt(0)")
    srd(e, sX, 4, X_BYTES); srd(e, sWS, 20, WS_USED); srd(e, sDBG, 18, 256)
    stamp(e, 0)
    e("v_lshlrev_b32 %s, 4, %s" % (v(vL16), v(vLane)))
    unit_setup_dyn(e)
    e("s_mov_b32 %s, %d" % (s(sSzO), WO_BYTES)); e("s_mov_b32 %s, %d" % (s(sSz2), W2_BYTES))
    pf_loop(e, "l0", unit_loads_dyn, 7, 12, 0)
    stamp(e, 1)
    e("s_waitcnt vmcnt(0)")
    e("s_barrier")
    stamp(e, 2)
    pf_loop(e, "s0", unit_store_dyn, 7, 12, 0)
    stamp(e, 3)
    if SSH:
        pf_stats_loads(e)
        e("s_waitcnt vmcnt(40)")
    else: e("s_waitcnt vmcnt(0)")
    e("s_barrier")
    e("s_cmp_lg_u32 %s, 0" % s(sWave))
    e("s_cbranch_scc1 L_pf_nosig")
    signal_count(e, CNT_P)
    e.lab("L_pf_nosig")
    stamp(e, 4)
    if SSH:
        get_nonce(e, "pfs", 250)
        e("s_waitcnt vmcnt(0)")
        pf_stats_compute(e)
        stamp(e, 6)
    ph2_setup(e, F_SLOT)
    e("s_cmp_lg_u32 %s, 0" % s(sWave))
    e("s_cbranch_scc1 L_pf_nospin")
    spin_count(e, "pf", CNT_P, N_P, 250)
    e.lab("L_pf_nospin")
    e("s_barrier")
    get_nonce(e, "pf", 250)
    stamp(e, 5)
    if "ph1only" in OPTS: stamp_flush(e); e("s_endpgm")
    for g in w2l_groups(0, 25): e.ext(g)
    e("v_lshlrev_b32 v2, 2, %s" % v(vLane))
    e("buffer_load_dword %s, v2, %s, %s offen sc1" % (v(vPoll), sr(sWS,4), s(sFL)))
    for g in w2a_groups(5, PE_F): e.ext(g)
    e("s_mov_b32 %s, 1" % s(sMain))
    e("s_waitcnt vmcnt(%d)" % (5*(PE_F-5)))
    e("s_branch L_ph2")
    out += process_path(e.L, None, None, [])
    for role in ("attn", "ffn"):
        for w in range(4):
            tag = "%s_%d" % (role, w)
            pre = E(); pre.lab("L_" + tag)
            if role == "attn":
                cfg = attn_cfg(w)
                def extra(e, w=w):
                    read_addr_setup_attn(e)
                    attn_stash(e)
                    if w == 0:
                        e("s_cmp_lg_u32 s2, 0 ; rare"); e("s_cbranch_scc1 L_nononce ; rare")
                        e("s_memrealtime s[96:97] ; rare"); e("s_waitcnt lgkmcnt(0) ; rare")
                        e("s_or_b32 s96, s96, 1 ; rare"); e("v_mov_b32 v14, s96 ; rare"); e("v_mov_b32 v15, 0 ; rare")
                        e("buffer_store_dword v14, v15, %s, 0 offen sc1 ; rare" % sr(sDBG,4))
                        e.lab("L_nononce")
                        e("v_and_b32 v2, 7, %s" % v(vLane))
                        e("v_lshlrev_b32 v7, 4, v2")
                        e("v_mov_b32 v8, 0x3f803f80"); e("v_mov_b32 v9, v8"); e("v_mov_b32 v10, v8"); e("v_mov_b32 v11, v8")
                        e("ds_write_b128 v7, v[8:11]")
                        e("v_add_u32 v12, %d, v7" % A_SLOT); e("ds_write_b128 v12, v[8:11]")
                        e("v_add_u32 v13, %d, v7" % (2*A_SLOT)); e("ds_write_b128 v13, v[8:11]")
                body, post, side = role_main(pre, tag, cfg, attn_dma_list(w), vDO, w, 136, extra)
            else:
                cfg = ffn_cfg(w)
                body, post, side = role_main(pre, tag, cfg, ffn_dma_list(w), fDO, w, 144, read_addr_setup_ffn, units=("nounits" not in OPTS))
            post("s_branch L_ep_%s" % role)
            out += process_path(pre.L, "L_loop_" + tag, body, post.L)
            out += side
        ep = E()
        if role == "attn": attn_epilogue(ep)
        else: ffn_epilogue(ep)
        last = PE_A if role == "attn" else PE_F
        groups = w2a_groups(5, last) if "ph1only" not in OPTS else []
        nin = (min(ATT_W2A_IN, len(groups)) if role == "attn" else FFN_W2A_IN) if groups else 0
        poll = ["  v_lshlrev_b32 %s, 2, %s" % (v(vPoll), v(vLane)), "  buffer_load_dword %s, %s, %s, %s offen sc1" % (v(vPoll), v(vPoll), sr(sWS,4), s(sFL))]
        lines = ep.L
        if role == "attn" and "nopoll" not in OPTS:
            k = len(lines) - ATT_POLL_BACK
            while lines[k].strip().startswith(("s_cbranch", "s_cselect")) or lines[k-1].strip().startswith(("s_cmp", "v_cmp")): k -= 1
            lines = lines[:k] + poll + lines[k:]
        epl = sprinkle(lines, groups[:nin], start=4, end_gap=(ATT_ENDGAP if role == "attn" else 10)) if nin else lines
        fin = E()
        stamp(fin, 6)
        if role == "attn" and "ph1only" not in OPTS:
            fin("s_mov_b32 %s, 0" % s(sMain))
            for g in groups[nin:]: fin.ext(g)
            ao_setup(fin)
            check_flags(fin, MASK_F, vPoll, "L_att_fast")
            spin_flags(fin, "attf", MASK_F, 250)
            fin.lab("L_att_fast")
            stamp(fin, 7)
            for p in range(DA):
                for g in act_loads(p): fin.ext(["%s ; rare" % t for t in g])
            fin("s_branch L_ph2_main_A")
        else:
            fin("s_mov_b32 %s, 1" % s(sMain))
            if "nopoll" not in OPTS: fin.ext(poll)
            nb = min(W2A_BEFORE_SIG, len(groups) - nin)
            for g in groups[nin:nin+nb]: fin.ext(g)
            fin("s_waitcnt vmcnt(%d)" % nb)
            stamp(fin, 7)
            if "ph1only" in OPTS:
                stamp_flush(fin); fin("s_endpgm")
            else:
                fin("s_barrier")
                signal_rb(fin, role, None)
                for g in groups[nin+nb:]: fin.ext(g)
                fin("s_branch L_ph2")
        if "ep2x" in OPTS:
            rep = E()
            rep("s_waitcnt vmcnt(0) lgkmcnt(0)"); rep("s_barrier")
            stamp(rep, 12)
            rep("s_add_u32 s100, s100, 1"); rep("s_cmp_lt_u32 s100, 2"); rep("s_cbranch_scc1 L_ep_%s" % role)
            epl = epl + rep.L
        out += process_path(["L_ep_%s:" % role, "  s_nop 7", "  s_nop 1"] + epl + fin.L, None, None, [])
    out += phase2()
    out.append("L_end:")
    return out

def kd(name, nfv, accum, sg=102):
    return """.section .rodata,"a"
.p2align 6
.amdhsa_kernel %s
  .amdhsa_next_free_vgpr %d
  .amdhsa_next_free_sgpr %d
  .amdhsa_accum_offset %d
  .amdhsa_group_segment_fixed_size 0
  .amdhsa_kernarg_size 72
  .amdhsa_user_sgpr_count 2
  .amdhsa_user_sgpr_kernarg_segment_ptr 1
  .amdhsa_system_sgpr_workgroup_id_x 1
  .amdhsa_float_denorm_mode_32 3
.end_amdhsa_kernel
""" % (name, nfv, sg, accum)

HEADER = """; Kernarg (72 bytes): [0] A_x [8] A_wqkv [16] A_wo [24] B_x [32] B_w1 [40] B_w2 [48] out [56] debug [64] ws
; @launch grid=(256,1,1) block=(256,1,1) lds=163840
.amdgcn_target "amdgcn-amd-amdhsa--gfx950"
"""
def main():
    if len(sys.argv) > 2: OPTS.update(sys.argv[2].split(","))
    k = top()
    if "noalign" not in OPTS:
        from alignpass import align
        head = '.amdgcn_target "amdgcn-amd-amdhsa--gfx950"\n.text\n.p2align 8\nk:\n'
        k = align(head, k, "\ns_endpgm\nL_codeend:\n")
    txt = HEADER + ".text\n.globl %s\n.p2align 8\n.type %s,@function\n%s:\n" % (KNAME, KNAME, KNAME) + "\n".join(k) + "\ns_endpgm\nL_codeend:\n" + kd(KNAME, 512, 256)
    path = sys.argv[1] if len(sys.argv) > 1 else "out2.s"
    open(path, "w").write(txt)
    print("wrote", path, len(txt), "bytes;", len(k), "lines")
if __name__ == "__main__": main()
```

```python
import sys, struct, os
from irlib import *

KNAME = "parallel_sum__sliding_local_dilated__dense_activation_relu__prompt_kernel"
S_, D_, DFF = 2048, 640, 1728
X_BYTES = S_*D_*2; WQKV_BYTES = D_*3*D_*2; WO_BYTES = D_*D_*2; W1_BYTES = D_*DFF*2; W2_BYTES = DFF*D_*2
NKS = 74
ACT_OFF = 0; ACT_TB = NKS*4096
W2F_OFF = 10*1024*1024; W2F_CB = NKS*5120
RSTD_OFF = 14*1024*1024
STATS_OFF = 14*1024*1024 + 65536
STAMP_OFF = 16*1024*1024
WS_USED = 17*1024*1024
OOB = 0x7F000000
FLAG_OFF = 15*1024*1024
MASK_F, MASK_A, MASK_P = 0x7f, 0xff00, 0xffff0000
SPIN_MAX = 200000
PF_DELAY = int(os.environ.get('PFD', 24))
UNIT_LATE = int(os.environ.get('ULATE', 0))
XL_AT = int(os.environ.get('XLAT', 1))
SSH = True
OPTS = set()
def f2u(x): return struct.unpack("<I", struct.pack("<f", x))[0]
def v(i): return "v%d" % i
def vr(i, n): return "v[%d:%d]" % (i, i+n-1)
def a(i): return "a%d" % i
def ar(i, n): return "a[%d:%d]" % (i, i+n-1)
def s(i): return "s%d" % i
def sr(i, n): return "s[%d:%d]" % (i, i+n-1)
MFMA = "v_mfma_f32_16x16x32_bf16"

class E:
    def __init__(self): self.L = []
    def __call__(self, t): self.L.append("  " + t)
    def lab(self, t): self.L.append(t + ":")
    def ext(self, lines):
        for t in lines: self.L.append(t if t.startswith("  ") or t.endswith(":") else "  " + t)

sWave = 22
sX, sW, sWS, sDBG = 24, 28, 32, 76
sRB, sCB, sKC, sSoX, sSoW, sDSlot, sRDelta, sIter = 36, 37, 38, 39, 40, 41, 42, 43
sT0, sT1, sT2, sT3 = 46, 47, 48, 49
sM = 50
sTB, sC2, sSig, sWB, sAB, sLA, sLB, sP0, sP1, sRB2 = 80, 81, 82, 83, 84, 85, 86, 87, 88, 89
sKQ = [4,5,6,7,8,9,10,11,12,13,14,15,18,19]
sNonce, sFL = 23, 45
sD0, sD1 = 90, 91
sXO, sXH = 92, 93
vLane = 255
vSt = 247
vPoll = 243
vNon = 252

def stamp(e, i):
    if "stamp" in OPTS:
        e("s_memrealtime s[96:97]"); e("s_memtime s[98:99]"); e("s_waitcnt lgkmcnt(0)")
        e("v_writelane_b32 %s, s96, %d" % (v(vSt), 2*i)); e("v_writelane_b32 %s, s98, %d" % (v(vSt), 2*i+1))
def stamp_flush(e):
    if "stamp" not in OPTS: return
    if "dbgst" in OPTS:
        uid = len(e.L)
        for wg, lst, base in ((0, [3,4,5,6,9,12], 2), (128, [3,4,5,7,9], 8), (240, [4,5,8], 13)):
            lab = "L_ds_%d_%d" % (wg, uid)
            e("s_cmp_lg_u32 s2, %d" % wg); e("s_cbranch_scc1 %s" % lab)
            e("s_cmp_lg_u32 %s, 0" % s(sWave)); e("s_cbranch_scc1 %s" % lab)
            e("v_readlane_b32 s96, %s, 0" % v(vSt))
            for n_, i in enumerate(lst):
                e("v_readlane_b32 s97, %s, %d" % (v(vSt), 2*i))
                e("s_nop 4")
                e("s_sub_u32 s97, s97, s96")
                e("v_mov_b32 v1, s97"); e("v_mov_b32 v2, %d" % (4*(base+n_)))
                e("buffer_store_dword v1, v2, %s, 0 offen" % sr(sDBG,4))
            e.lab(lab)
        return
    e("s_lshl_b32 s3, s2, 2"); e("s_add_u32 s3, s3, %s" % s(sWave)); e("s_lshl_b32 s3, s3, 8")
    e("s_add_u32 s3, s3, %d" % STAMP_OFF)
    e("v_lshlrev_b32 v1, 2, %s" % v(vLane))
    e("buffer_store_dword %s, v1, %s, s3 offen" % (v(vSt), sr(sWS,4)))

def srd(e, base, ptr, nbytes):
    e("s_mov_b32 %s, %s" % (s(base), s(ptr)))
    e("s_and_b32 %s, %s, 0xffff" % (s(base+1), s(ptr+1)))
    e("s_mov_b32 %s, %d" % (s(base+2), nbytes))
    e("s_mov_b32 %s, 0x20000" % s(base+3))

def check_flags(e, mask, val, oklab, rare=""):
    e("v_cmp_eq_u32 vcc, %s, %s%s" % (s(sNonce), v(val), rare))
    e("s_nop 3" + rare)
    e("s_and_b32 %s, vcc_lo, 0x%x%s" % (s(sT0), mask, rare))
    e("s_cmp_eq_u32 %s, 0x%x%s" % (s(sT0), mask, rare))
    e("s_cbranch_scc1 %s%s" % (oklab, rare))
def spin_flags(e, tag, mask, vtmp, have_first=None):
    R = " ; rare"
    if have_first is not None: check_flags(e, mask, have_first, "L_ok_%s" % tag)
    e("s_mov_b32 %s, 0" % s(sT1) + R)
    e("v_lshlrev_b32 %s, 2, %s" % (v(vtmp+1), v(vLane)) + R)
    e.lab("L_spin_%s" % tag)
    e("buffer_load_dword %s, %s, %s, %s offen sc1" % (v(vtmp), v(vtmp+1), sr(sWS,4), s(sFL)) + R)
    e("s_waitcnt vmcnt(0)" + R)
    check_flags(e, mask, vtmp, "L_ok_%s" % tag, R)
    e("s_sleep %d" % FSLEEP + R)
    e("s_add_u32 %s, %s, 1" % (s(sT1), s(sT1)) + R)
    e("s_cmp_lt_u32 %s, %d" % (s(sT1), SPIN_MAX) + R)
    e("s_cbranch_scc1 L_spin_%s" % tag + R)
    e.lab("L_ok_%s" % tag)
def get_nonce(e, tag, vtmp, have_first=None):
    R = " ; rare"
    if have_first is not None:
        e("v_readfirstlane_b32 %s, %s" % (s(sNonce), v(have_first)))
        e("s_nop 3")
        e("s_cmp_lg_u32 %s, 0" % s(sNonce))
        e("s_cbranch_scc1 L_nok_%s" % tag)
    e("s_mov_b32 %s, 0" % s(sT1) + R)
    e("v_mov_b32 %s, 0" % v(vtmp+1) + R)
    e.lab("L_nspin_%s" % tag)
    e("buffer_load_dword %s, %s, %s, 0 offen sc1" % (v(vtmp), v(vtmp+1), sr(sDBG,4)) + R)
    e("s_waitcnt vmcnt(0)" + R)
    e("v_readfirstlane_b32 %s, %s" % (s(sNonce), v(vtmp)) + R)
    e("s_nop 3" + R)
    e("s_cmp_lg_u32 %s, 0" % s(sNonce) + R)
    e("s_cbranch_scc1 L_nok_%s" % tag + R)
    e("s_sleep 8" + R)
    e("s_add_u32 %s, %s, 1" % (s(sT1), s(sT1)) + R)
    e("s_cmp_lt_u32 %s, %d" % (s(sT1), SPIN_MAX) + R)
    e("s_cbranch_scc1 L_nspin_%s" % tag + R)
    e.lab("L_nok_%s" % tag)
def signal_rb(e, tag, word_sgpr_expr, vt=(1, 2)):
    e("s_cmp_lg_u32 %s, 0" % s(sWave))
    e("s_cbranch_scc1 L_nosig_%s" % tag)
    R = " ; rare"
    e("s_and_b32 %s, %s, 1" % (s(sT0), s(sRB)) + R)
    e("s_lshl_b32 %s, %s, 4" % (s(sT0), s(sT0)) + R)
    a_, b_ = v(vt[0]), v(vt[1])
    e("v_add_u32 %s, %s, %s" % (a_, s(sT0), v(vLane)) + R)
    e("v_lshlrev_b32 %s, 3, %s" % (a_, a_) + R)
    e("s_lshr_b32 %s, %s, 1" % (s(sT0), s(sRB)) + R)
    e("v_add_u32 %s, %s, %s" % (a_, s(sT0), a_) + R)
    e("v_lshlrev_b32 %s, 7, %s" % (a_, a_) + R)
    e("s_lshl_b32 %s, %s, 2" % (s(sT0), s(sSig)) + R)
    e("s_add_u32 %s, %s, %d" % (s(sT0), s(sT0), FLAG_OFF) + R)
    e("v_mov_b32 %s, %s" % (b_, s(sNonce)) + R)
    e("s_mov_b32 exec_lo, 0xffff" + R); e("s_mov_b32 exec_hi, 0" + R)
    e("buffer_store_dword %s, %s, %s, %s offen sc1" % (b_, a_, sr(sWS,4), s(sT0)) + R)
    e("s_mov_b64 exec, -1" + R)
    e.lab("L_nosig_%s" % tag)

class Cfg: pass

def chunk_body(cfg, dma, last=False, rolled_tag=None, closing_vm=None, first_vm=None):
    NT = cfg.ntile; NF = 2*NT; R = cfg.ring; L = cfg.look; TAIL = cfg.tail
    assert NF % R == 0
    wreg = lambda f: cfg.wbase + (f % R)*4
    def wreads(f):
        kh, c = divmod(f % NF, NT); return cfg.wread(kh, c, wreg(f))
    def mf(f):
        kh, c = divmod(f % NF, NT); return cfg.mf(kh, c, wreg(f))
    NFIRST = cfg.nfirst
    items = []
    for f in range(0, NF - TAIL):
        g = f + L
        rd = wreads(g) if NFIRST <= g < NF else []
        if f == cfg.xread1_at: rd = rd + cfg.xreads(1)
        ms = []
        if f == 0 and "nostats" not in OPTS and not SSH: ms += cfg.stats(0)
        if f == NT and "nostats" not in OPTS and not SSH: ms += cfg.stats(1)
        ms += mf(f)
        items.append((rd, ms))
    issued = set(range(NFIRST)) | {f + L for f in range(0, NF - TAIL) if NFIRST <= f + L < NF}
    assert issued == set(range(NF)), (sorted(set(range(NF)) - issued))
    nm = sum(len(m) for _, m in items)
    out = []
    nd = len(dma)
    st = cfg.dma_start + cfg.dma_skew; en = nm - cfg.dma_endgap
    pos = [st + (en - st)*i // max(nd, 1) for i in range(nd)]
    cnt = 0; di = 0
    for rd, ms in items:
        rq = list(rd)
        for k, m in enumerate(ms):
            if rq:
                take = (len(rq) + (len(ms) - k) - 1) // (len(ms) - k)
                for _ in range(take): out.append(rq.pop(0))
            out.append(m); cnt += 1
            while di < nd and pos[di] <= cnt:
                out += dma[di]; di += 1
    assert di == nd
    if closing_vm is None: out.append("s_waitcnt lgkmcnt(0)")
    elif first_vm is not None:
        out.append("s_cmp_eq_u32 %s, 0" % s(sIter))
        out.append("s_cbranch_scc1 L_first_%s" % rolled_tag)
        out.append("s_waitcnt vmcnt(%d) lgkmcnt(0)" % closing_vm)
        out.append("L_join_%s:" % rolled_tag)
    else: out.append("s_waitcnt vmcnt(%d) lgkmcnt(0)" % closing_vm)
    out.append("s_barrier")
    aux = []
    if not last:
        aux += cfg.addr_update + cfg.xreads(0)
        for f in range(NFIRST): aux += wreads(f)
    if rolled_tag: aux += cfg.scal_update
    tail = []
    for f in range(NF - TAIL, NF): tail += mf(f)
    per = -(-len(aux) // max(len(tail), 1))
    for m in tail:
        out.append(m)
        for _ in range(per):
            if aux: out.append(aux.pop(0))
    out += aux
    if rolled_tag:
        out.append("s_cbranch_scc1 L_loop_%s" % rolled_tag)
    return ["  ; lgextra %d" % int(os.environ.get("LGX", 2))] + [t if t.endswith(":") else "  " + t for t in out] + ["  ; lgextra 0"]

sCp, sCm = 94, 95
def scal_update(slot, wstep, halo=False):
    t = []
    if "rotk" in OPTS:
        t.append("s_add_u32 %s, %s, 1" % (s(sKC), s(sKC)))
        t.append("s_cmp_eq_u32 %s, 10" % s(sKC))
        t.append("s_cselect_b32 %s, 0, %s" % (s(sKC), s(sKC)))
        t.append("s_lshl_b32 %s, %s, 7" % (s(sSoX), s(sKC)))
        t.append("s_mul_i32 %s, %s, %d" % (s(sSoW), s(sKC), wstep))
    else:
        t.append("s_add_u32 %s, %s, 128" % (s(sSoX), s(sSoX)))
        t.append("s_add_u32 %s, %s, %d" % (s(sSoW), s(sSoW), wstep))
    t.append("s_cmp_eq_u32 %s, %d" % (s(sDSlot), 2*slot))
    t.append("s_cselect_b32 %s, %s, %s" % (s(sRDelta), s(sCm), s(sCp)))
    t.append("s_add_u32 %s, %s, %s" % (s(sDSlot), s(sDSlot), s(sRDelta)))
    t.append("s_add_u32 %s, %s, 1" % (s(sIter), s(sIter)))
    t.append("s_cmp_lt_u32 %s, 8" % s(sIter))
    return t
def addr_update(slot, regs):
    t = []
    t.append("s_cmp_eq_u32 %s, %d" % (s(sDSlot), slot))
    t.append("s_cselect_b32 %s, %s, %s" % (s(sRDelta), s(sCm), s(sCp)))
    for r in regs: t.append("v_add_u32 %s, %s, %s" % (v(r), s(sRDelta), v(r)))
    return t

vL16, vL16b = 241, 245
def w2_soff(p, dst):
    if p < 14: return ["s_mul_i32 %s, %s, 5" % (s(dst), s(sKQ[p])), "s_add_u32 %s, %s, %s" % (s(dst), s(dst), s(sWB))]
    return ["s_mul_i32 %s, %s, 5120" % (s(dst), s(sWave)), "s_add_u32 %s, %s, %s" % (s(dst), s(dst), s(sWB)),
            "s_add_u32 %s, %s, %d" % (s(dst), s(dst), 4*(p-14)*5120)]
def w2l_groups(q0, q1):
    G = []
    for q in range(q0, q1):
        p, ct = divmod(q, 5)
        g = []
        if ct == 0 or q == q0: g += w2_soff(p, sP0)
        g.append("s_add_u32 m0, %s, %d" % (s(sLA if q < 12 else sLB), (q if q < 12 else q - 12)*1024))
        g.append("s_add_u32 %s, %s, %d" % (s(sP1), s(sP0), ct*1024))
        g.append("buffer_load_dwordx4 %s, %s, %s offen sc1 lds" % (v(vL16), sr(sWS,4), s(sP1)))
        G.append(g)
    return G
def w2a_groups(p0, p1):
    G = []
    for p in range(p0, p1):
        base = ((p - 5) % 12)*20
        for ct in range(5):
            g = []
            if ct == 0: g += w2_soff(p, sP0)
            if ct < 4: g.append("buffer_load_dwordx4 %s, %s, %s, %s offen offset:%d sc1" % (ar(base+4*ct,4), v(vL16), sr(sWS,4), s(sP0), ct*1024))
            else:      g.append("buffer_load_dwordx4 %s, %s, %s, %s offen sc1" % (ar(base+16,4), v(vL16b), sr(sWS,4), s(sP0)))
            G.append(g)
    return G
def ph2_setup(e, slot):
    e("s_and_b32 %s, s2, 7" % s(sT0))
    e("s_lshr_b32 %s, s2, 3" % s(sT1))
    e("s_lshr_b32 %s, %s, 3" % (s(sTB), s(sT1)))
    e("s_lshl_b32 %s, %s, 2" % (s(sT0), s(sT0)))
    e("s_add_u32 %s, %s, %s" % (s(sTB), s(sTB), s(sT0)))
    e("s_and_b32 %s, %s, 7" % (s(sC2), s(sT1)))
    e("s_lshr_b32 %s, %s, 1" % (s(sRB2), s(sTB)))
    e("s_lshl_b32 %s, %s, 2" % (s(sRB2), s(sRB2)))
    e("s_mul_i32 %s, %s, %d" % (s(sWB), s(sC2), W2F_CB))
    if "fakecb" in OPTS: e("s_mov_b32 %s, 0" % s(sWB))
    e("s_add_u32 %s, %s, %d" % (s(sWB), s(sWB), W2F_OFF))
    e("s_mul_i32 %s, %s, %d" % (s(sAB), s(sTB), ACT_TB))
    if "faketb" in OPTS: e("s_and_b32 %s, s2, 7" % s(sAB)); e("s_mul_i32 %s, %s, %d" % (s(sAB), s(sAB), ACT_TB))
    if ACT_OFF: e("s_add_u32 %s, %s, %d" % (s(sAB), s(sAB), ACT_OFF))
    e("s_mul_i32 %s, %s, 12288" % (s(sLA), s(sWave)))
    e("s_add_u32 %s, %s, %d" % (s(sLA), s(sLA), slot))
    e("s_mul_i32 %s, %s, 13312" % (s(sLB), s(sWave)))
    e("s_add_u32 %s, %s, %d" % (s(sLB), s(sLB), 2*slot))
    e("s_mul_i32 %s, %s, 7" % (s(sT0), s(sC2)))
    e("s_lshr_b32 %s, %s, 2" % (s(sT0), s(sT0)))
    e("s_and_b32 %s, %s, 3" % (s(sT1), s(sTB)))
    e("s_mul_i32 %s, %s, 7" % (s(sT1), s(sT1)))
    e("s_lshr_b32 %s, %s, 1" % (s(sT1), s(sT1)))
    e("s_add_u32 %s, %s, %s" % (s(sT0), s(sT0), s(sT1)))
    e("s_sub_u32 %s, %s, 14" % (s(sT1), s(sT0)))
    e("s_cmp_ge_u32 %s, 14" % s(sT0))
    e("s_cselect_b32 %s, %s, %s" % (s(sT0), s(sT1), s(sT0)))
    e("s_lshl_b32 %s, %s, 2" % (s(sT0), s(sT0)))
    e("s_add_u32 %s, %s, %s" % (s(sT0), s(sT0), s(sWave)))
    e("s_add_u32 %s, %s, 20" % (s(sT0), s(sT0)))
    for p in range(14):
        e("s_lshl_b32 %s, %s, 10" % (s(sKQ[p]), s(sT0)))
        e("s_cmp_ge_u32 %s, %d" % (s(sT0), NKS))
        e("s_cselect_b32 %s, 0x10000000, %s" % (s(sKQ[p]), s(sKQ[p])))
        if p < 13:
            e("s_add_u32 %s, %s, 4" % (s(sT0), s(sT0)))
            e("s_sub_u32 %s, %s, 56" % (s(sT1), s(sT0)))
            e("s_cmp_ge_u32 %s, 76" % s(sT0))
            e("s_cselect_b32 %s, %s, %s" % (s(sT0), s(sT1), s(sT0)))
    e("v_add_u32 %s, 4096, %s" % (v(vL16b), v(vL16)))
    e("s_lshl_b32 %s, s2, 7" % s(sFL))
    e("s_add_u32 %s, %s, %d" % (s(sFL), s(sFL), FLAG_OFF))

vZero = 249

A_SLOT = 53248; A_XB = 18432; A_WPAIR = 1088
A_XJ = [[0,1,2,3,4],[5,6,7,8,9],[10,11,12,13],[14,15,16,17]]
vWA, vX0, vX1 = 160, 161, 162
vXE, vXOd, vWL = 163, 164, 165
aW, aXF, aONE = 0, 40, 240
aST = 244
def acc_own(T, c): return (T*15 + c)*4
def acc_halo(eidx): return 120 + eidx*4
vSumT = [136, 140]; vSqT = [144, 148]; vSumH, vSqH = 152, 156
def xf(kh, T): return aXF + (kh*3 + T)*4

def x_lane_setup(e, vE, vO):
    e("v_lshrrev_b32 v1, 3, %s" % v(vLane))
    e("v_and_b32 v2, 7, %s" % v(vLane))
    e("v_lshrrev_b32 v3, 4, %s" % v(vLane))
    e("v_mul_u32_u24 v4, 1280, v1")
    e("v_xor_b32 v5, v2, v3")
    e("v_lshl_add_u32 %s, v5, 4, v4" % v(vE))
    e("v_xor_b32 %s, 64, %s" % (v(vO), v(vE)))

def attn_lane_setup(e):
    x_lane_setup(e, vXE, vXOd)
    e("v_cmp_le_u32 vcc, 30, %s" % v(vLane))
    e("v_mov_b32 v9, 0x40000000")
    e("v_cndmask_b32_e64 v6, 0, 1, vcc")
    e("v_cmp_le_u32 vcc, 60, %s" % v(vLane))
    e("v_mul_u32_u24 v7, 30, v6")
    e("v_sub_u32 v7, %s, v7" % v(vLane))
    e("v_mul_u32_u24 v8, 26, v7")
    e("v_lshrrev_b32 v8, 8, v8")
    e("v_mul_u32_u24 v8, 1120, v8")
    e("v_mul_u32_u24 v6, 3840, v6")
    e("v_lshlrev_b32 v7, 4, v7")
    e("v_add3_u32 v6, v6, v7, v8")
    e("s_mul_i32 %s, %s, 160" % (s(sT0), s(sCB)))
    e("v_add_u32 v6, %s, v6" % s(sT0))
    e("v_cndmask_b32_e64 %s, v6, v9, vcc" % v(vWL))

vDO = 166
def attn_dma_list(w):
    L = []
    for grp in ([[0,1],[2,3,4]], [[5,6,7,8],[9]], [[10,11,12,13]], [[14,15,16,17]])[w]:
        for m, j in enumerate(grp):
            imm = m*1024
            L.append(("x", j*1024 if m == 0 else None, imm, vXOd if j & 1 else vXE, (j*8*1280 if j < 2 else (j-2)*8*1280) - imm, j < 2, w == 0 and j == 0))
    kh = w >> 1; rd = w & 1
    for m in range(8):
        k = 32*kh + 8*(m >> 1) + 4*rd + 2*(m & 1)
        L.append(("w", A_XB + (8*w + m)*A_WPAIR if m % 4 == 0 else None, (m & 3)*A_WPAIR, vWL, k*3840 - (m & 3)*A_WPAIR, False, False))
    return L
def ffn_dma_list(w):
    L = []
    for m in range(4):
        j = 4*w + m
        L.append(("x", 4*w*1024 if m == 0 else None, m*1024, fXOd if j & 1 else fXE, j*8*1280 - m*1024, False, False))
    for m in range(8):
        kh, grp = m >> 2, m & 3
        k = 32*kh + 16*(grp & 1) + 4*(grp >> 1)
        L.append(("w", F_XB + w*8192 + m*1024 if m % 4 == 0 else None, (m & 3)*1024, fWL, k*3456 + w*128 - (m & 3)*1024, False, False))
    return L
def dma_groups_salu(L):
    G = []; tmp = [sD0, sD1]
    for n, (kind, m0c, imm, lane, uc, halo, mask) in enumerate(L):
        g = []; t = tmp[n & 1]
        if m0c is not None: g.append("s_add_u32 m0, %s, %d" % (s(sDSlot), m0c))
        if kind == "x":
            g.append("s_add_u32 %s, %s, %s" % (s(t), s(sSoX), s(sXH if halo else sXO)))
            if uc: g.append("s_add_u32 %s, %s, %d" % (s(t), s(t), uc))
        else: g.append("s_add_u32 %s, %s, %d" % (s(t), s(sSoW), uc))
        if mask: g.append("s_mov_b32 exec_lo, 0xffffff00")
        g.append("buffer_load_dwordx4 %s, %s, %s offen offset:%d lds" % (v(lane), sr(sX if kind == "x" else sW,4), s(t), imm))
        if mask: g.append("s_mov_b32 exec_lo, -1")
        G.append(g)
    return G
def dma_offsets_setup(e, L, base):
    for n, (kind, m0c, imm, lane, uc, halo, mask) in enumerate(L):
        if kind == "x":
            e("s_add_u32 %s, %s, %d" % (s(sD0), s(sXH if halo else sXO), uc))
            e("v_add_u32 %s, %s, %s" % (v(base+n), s(sD0), v(lane)))
        else:
            e("v_add_u32 %s, %d, %s" % (v(base+n), uc, v(lane)))
def dma_groups_vgpr(L, base):
    G = []
    for n, (kind, m0c, imm, lane, uc, halo, mask) in enumerate(L):
        g = []
        if m0c is not None:
            m0 = "s_add_u32 m0, %s, %d" % (s(sDSlot), m0c)
            if G: G[-1].append(m0)
            else: G.append([m0])
        if mask: g.append("s_mov_b32 exec_lo, 0xffffff00")
        g.append("buffer_load_dwordx4 %s, %s, %s offen offset:%d lds" % (v(base+n), sr(sX if kind == "x" else sW,4), s(sSoX if kind == "x" else sSoW), imm))
        if mask: g.append("s_mov_b32 exec_lo, -1")
        G.append(g)
    return G

def attn_cfg(w):
    cfg = Cfg()
    cfg.ntile = 15; cfg.ring = 10; cfg.look = int(os.environ.get('LOOK', 6)); cfg.tail = int(os.environ.get('TAILA', 4)); cfg.nfirst = cfg.look; cfg.wbase = aW
    H = {w: 0, 5 + w: 1, 10 + w: 2}
    if w < 3: H[(4, 9, 14)[w]] = 3
    def wread(kh, c, reg):
        off = kh*16*A_WPAIR + 32*c
        return ["ds_read_b64_tr_b16 %s, %s offset:%d" % (ar(reg,2), v(vWA), off),
                "ds_read_b64_tr_b16 %s, %s offset:%d" % (ar(reg+2,2), v(vWA), off + 8*A_WPAIR)]
    def mf(kh, c, reg):
        out = []
        for T in (0, 1):
            d = vr(acc_own(T, c), 4)
            if c < 10: out.append("%s %s, %s, %s, %s" % (MFMA, d, ar(reg,4), ar(xf(kh,T),4), d))
            else:      out.append("%s %s, %s, %s, %s" % (MFMA, d, ar(xf(kh,T),4), ar(reg,4), d))
        if c in H and "nohalo" not in OPTS:
            d = vr(acc_halo(H[c]), 4)
            if c < 10: out.append("%s %s, %s, %s, %s" % (MFMA, d, ar(reg,4), ar(xf(kh,2),4), d))
            else:      out.append("%s %s, %s, %s, %s" % (MFMA, d, ar(xf(kh,2),4), ar(reg,4), d))
        return out
    def stats(kh):
        out = []
        for T in (0, 1):
            out.append("%s %s, %s, %s, %s" % (MFMA, vr(vSumT[T],4), ar(aONE,4), ar(xf(kh,T),4), vr(vSumT[T],4)))
            out.append("%s %s, %s, %s, %s" % (MFMA, vr(vSqT[T],4), ar(xf(kh,T),4), ar(xf(kh,T),4), vr(vSqT[T],4)))
        if w == 3:
            out.append("%s %s, %s, %s, %s" % (MFMA, vr(vSumH,4), ar(aONE,4), ar(xf(kh,2),4), vr(vSumH,4)))
            out.append("%s %s, %s, %s, %s" % (MFMA, vr(vSqH,4), ar(xf(kh,2),4), ar(xf(kh,2),4), vr(vSqH,4)))
        return out
    def xreads(kh):
        ad = vX1 if kh else vX0
        return ["ds_read_b128 %s, %s offset:%d" % (ar(xf(kh,0),4), v(ad), (1+2*w)*2048),
                "ds_read_b128 %s, %s offset:%d" % (ar(xf(kh,1),4), v(ad), (2+2*w)*2048),
                "ds_read_b128 %s, %s offset:%d" % (ar(xf(kh,2),4), v(ad), 0)]
    cfg.wread = wread; cfg.mf = mf; cfg.stats = stats; cfg.xreads = xreads
    cfg.xread1_at = 4
    cfg.addr_update = addr_update(A_SLOT, [vWA, vX0, vX1])
    cfg.scal_update = scal_update(A_SLOT, 64*3840, halo=(w == 0))
    cfg.dma_start = int(os.environ.get('DST', 2)); cfg.dma_skew = w*int(os.environ.get('DSK', 1)); cfg.dma_endgap = int(os.environ.get('DEG', 8))
    cfg.wstep = 64*3840; cfg.slot = A_SLOT
    return cfg

def xaddr_setup(e, X0, X1, base):
    e("v_and_b32 v1, 15, %s" % v(vLane))
    e("v_lshrrev_b32 v4, 4, %s" % v(vLane))
    e("v_lshrrev_b32 v2, 1, v1")
    e("v_xor_b32 v2, v2, v4")
    e("v_lshlrev_b32 v2, 4, v2")
    e("v_lshl_add_u32 v2, v1, 7, v2")
    e("v_add_u32 %s, %d, v2" % (v(X0), base))
    e("v_xor_b32 v2, 64, v2")
    e("v_add_u32 %s, %d, v2" % (v(X1), base))

def read_addr_setup_attn(e):
    e("v_and_b32 v1, 15, %s" % v(vLane))
    e("v_lshrrev_b32 v2, 2, v1")
    e("v_and_b32 v3, 3, v1")
    e("v_lshrrev_b32 v4, 4, %s" % v(vLane))
    e("v_lshrrev_b32 v5, 1, v2")
    e("v_lshl_add_u32 v5, v4, 1, v5")
    e("v_mul_u32_u24 v5, %d, v5" % A_WPAIR)
    e("v_and_b32 v2, 1, v2")
    e("v_mul_u32_u24 v2, 480, v2")
    e("v_lshlrev_b32 v3, 3, v3")
    e("v_add3_u32 v5, v5, v2, v3")
    e("v_add_u32 %s, %d, v5" % (v(vWA), A_XB))
    xaddr_setup(e, vX0, vX1, 0)

sSzO, sSz2 = 69, 70

def attn_first_dma(e, nchunks=2):
    e("s_and_b32 %s, %s, 1" % (s(sT0), s(sWave)))
    e("s_cmp_eq_u32 %s, 1" % s(sT0))
    e("s_cselect_b32 %s, 64, 0" % s(sT1))
    e("v_xor_b32 v10, %s, %s" % (s(sT1), v(vXE)))
    e("s_mul_i32 %s, %s, 10240" % (s(sT1), s(sWave)))
    e("s_add_u32 %s, %s, %s" % (s(sT2), s(sXH), s(sT1)))
    e("s_add_u32 %s, %s, %s" % (s(sT3), s(sXO), s(sT1)))
    e("s_sub_u32 %s, %s, 20480" % (s(sT3), s(sT3)))
    e("s_cmp_lt_u32 %s, 2" % s(sWave))
    e("s_cselect_b32 %s, %s, %s" % (s(sD0), s(sT2), s(sT3)))
    e("s_cselect_b32 %s, 0, 0x%x" % (s(sD1), OOB))
    e("s_cmp_eq_u32 %s, 0" % s(sWave))
    e("s_cselect_b32 %s, 0xffffff00, -1" % s(sP1))
    e("s_lshl_b32 %s, %s, 10" % (s(sP0), s(sWave)))
    e("s_lshr_b32 %s, %s, 1" % (s(sT1), s(sWave))); e("s_lshl_b32 %s, %s, 5" % (s(sT1), s(sT1)))
    e("s_lshl_b32 %s, %s, 2" % (s(sT0), s(sT0))); e("s_add_u32 %s, %s, %s" % (s(sT1), s(sT1), s(sT0)))
    e("s_mul_i32 %s, %s, 3840" % (s(sT1), s(sT1)))
    e("s_mul_i32 %s, %s, %d" % (s(sT0), s(sWave), 8*A_WPAIR))
    for ch in range(nchunks):
        slot = ch*A_SLOT
        e("s_lshl_b32 %s, %s, 7" % (s(sSoX), s(sKC)))
        e("s_mul_i32 %s, %s, %d" % (s(sSoW), s(sKC), 64*3840))
        e("s_add_u32 %s, %s, %s" % (s(sSoW), s(sSoW), s(sT1)))
        for m in range(5):
            if m == 0:
                e("s_add_u32 %s, %s, %s" % (s(sT2), s(sD0), s(sSoX)))
                e("s_add_u32 m0, %s, %d" % (s(sP0), slot))
                e("s_mov_b32 exec_lo, %s" % s(sP1))
            else:
                e("s_add_u32 %s, %s, %s" % (s(sT2), s(sT3), s(sSoX)))
                e("s_add_u32 %s, %s, %d" % (s(sT2), s(sT2), m*4*10240))
                if m == 4:
                    e("s_add_u32 %s, %s, %s" % (s(sT2), s(sT2), s(sD1)))
                    e("s_add_u32 %s, %s, %d" % (s(sIter), s(sP0), slot + m*4096))
                    e("s_cmp_lt_u32 %s, 2" % s(sWave))
                    e("s_cselect_b32 m0, %s, %d" % (s(sIter), 161792))
                else: e("s_add_u32 m0, %s, %d" % (s(sP0), slot + m*4096))
                e("s_nop 0")
            e("buffer_load_dwordx4 v10, %s, %s offen lds" % (sr(sX,4), s(sT2)))
            if m == 0: e("s_mov_b32 exec_lo, -1")
        for m in range(8):
            if m % 4 == 0: e("s_add_u32 m0, %s, %d" % (s(sT0), slot + A_XB + m*A_WPAIR))
            k = 8*(m >> 1) + 2*(m & 1)
            e("s_add_u32 %s, %s, %d" % (s(sT2), s(sSoW), k*3840 - (m & 3)*A_WPAIR))
            e("buffer_load_dwordx4 %s, %s, %s offen offset:%d lds" % (v(vWL), sr(sW,4), s(sT2), (m & 3)*A_WPAIR))
        e("s_add_u32 %s, %s, 1" % (s(sKC), s(sKC)))
        if "rotk" in OPTS:
            e("s_cmp_eq_u32 %s, 10" % s(sKC))
            e("s_cselect_b32 %s, 0, %s" % (s(sKC), s(sKC)))
    return 13
def ffn_first_dma(e, nchunks=2):
    e("s_mul_i32 %s, %s, %d" % (s(sT3), s(sWave), 4*10240))
    e("s_add_u32 %s, %s, %s" % (s(sT3), s(sT3), s(sXO)))
    e("s_lshl_b32 %s, %s, 12" % (s(sP0), s(sWave)))
    e("s_lshl_b32 %s, %s, 7" % (s(sT1), s(sWave)))
    e("s_lshl_b32 %s, %s, 13" % (s(sT0), s(sWave)))
    for ch in range(nchunks):
        slot = ch*F_SLOT
        e("s_lshl_b32 %s, %s, 7" % (s(sSoX), s(sKC)))
        e("s_add_u32 %s, %s, %s" % (s(sSoX), s(sSoX), s(sT3)))
        e("s_mul_i32 %s, %s, %d" % (s(sSoW), s(sKC), 64*3456))
        e("s_add_u32 %s, %s, %s" % (s(sSoW), s(sSoW), s(sT1)))
        e("s_add_u32 m0, %s, %d" % (s(sP0), slot))
        for m in range(4):
            e("s_add_u32 %s, %s, %d" % (s(sT2), s(sSoX), m*10240 - m*1024))
            e("buffer_load_dwordx4 %s, %s, %s offen offset:%d lds" % (v(fXOd if m & 1 else fXE), sr(sX,4), s(sT2), m*1024))
        for m in range(8):
            kh, grp = m >> 2, m & 3
            k = 32*kh + 16*(grp & 1) + 4*(grp >> 1)
            if m % 4 == 0: e("s_add_u32 m0, %s, %d" % (s(sT0), slot + F_XB + m*1024))
            e("s_add_u32 %s, %s, %d" % (s(sT2), s(sSoW), k*3456 - (m & 3)*1024))
            e("buffer_load_dwordx4 %s, %s, %s offen offset:%d lds" % (v(fWL), sr(sW,4), s(sT2), (m & 3)*1024))
        e("s_add_u32 %s, %s, 1" % (s(sKC), s(sKC)))
        if "rotk" in OPTS:
            e("s_cmp_eq_u32 %s, 10" % s(sKC))
            e("s_cselect_b32 %s, 0, %s" % (s(sKC), s(sKC)))
    return 12

sQ = 72
vPFo, vPFd = 182, 183
def coop_setup(e, w):
    e("s_lshr_b32 %s, s2, 3" % s(sT0)); e("s_sub_u32 %s, %s, 16" % (s(sT0), s(sT0)))
    e("s_and_b32 %s, s2, 1" % s(sT1))
    e("s_and_b32 %s, s2, 7" % s(sT2)); e("s_lshr_b32 %s, %s, 1" % (s(sT2), s(sT2)))
    e("v_mov_b32 v3, 0x40000000")
    if w < 2:
        e("s_mul_i32 %s, %s, 75" % (s(sT0), s(sT0)))
        e("s_lshl_b32 %s, %s, 10" % (s(sT1), s(sT1)))
        e("s_add_u32 %s, %s, %s" % (s(sT0), s(sT0), s(sT1)))
        e("s_add_u32 %s, %s, %d" % (s(sT0), s(sT0), (38*w - 16) & 0xffffffff))
        e("v_add_u32 v1, %s, %s" % (s(sT0), v(vLane)))
        e("v_max_i32 v1, 0, v1")
        e("v_mul_u32_u24 v1, 1280, v1")
        e("v_cmp_gt_u32 vcc, 38, %s" % v(vLane))
    elif w == 2:
        e("s_mul_i32 %s, %s, 42" % (s(sT0), s(sT0)))
        e("v_add_u32 v1, %s, %s" % (s(sT0), v(vLane)))
        e("v_mul_u32_u24 v2, 7282, v1"); e("v_lshrrev_b32 v2, 16, v2")
        e("v_mul_u32_u24 v4, 9, v2"); e("v_sub_u32 v4, v1, v4")
        e("v_mul_u32_u24 v5, 86, v4"); e("v_lshrrev_b32 v5, 8, v5")
        e("v_mul_u32_u24 v6, 3, v5"); e("v_sub_u32 v6, v4, v6")
        e("s_mul_i32 %s, %s, 320" % (s(sT2), s(sT2))); e("s_lshr_b32 %s, %s, 7" % (s(sT2), s(sT2)))
        e("v_add_u32 v6, %s, v6" % s(sT2))
        e("v_mul_u32_u24 v1, 3840, v2"); e("v_mul_u32_u24 v5, 1280, v5")
        e("v_lshl_add_u32 v1, v6, 7, v1"); e("v_add_u32 v1, v1, v5")
        e("v_cmp_gt_u32 vcc, 42, %s" % v(vLane))
    else:
        e("s_mul_i32 %s, %s, 55" % (s(sT0), s(sT0)))
        e("v_add_u32 v1, %s, %s" % (s(sT0), v(vLane)))
        e("v_mul_u32_u24 v2, 5462, v1"); e("v_lshrrev_b32 v2, 16, v2")
        e("v_mul_u32_u24 v4, 12, v2"); e("v_sub_u32 v4, v1, v4")
        e("s_mul_i32 %s, %s, 14" % (s(sT2), s(sT2))); e("s_lshr_b32 %s, %s, 3" % (s(sT2), s(sT2))); e("s_lshl_b32 %s, %s, 2" % (s(sT2), s(sT2)))
        e("v_add_u32 v4, %s, v4" % s(sT2))
        e("v_mul_u32_u24 v1, 3456, v2"); e("v_lshl_add_u32 v1, v4, 7, v1")
        e("v_cmp_gt_u32 vcc, 55, %s" % v(vLane))
    e("v_cndmask_b32_e64 %s, v3, v1, vcc" % v(vPFo))
COOP_D = 4
sSoQ = 44
def coop_load(w, extra_chunks):
    if w < 2: return ["buffer_load_dword %s, %s, %s, %s offen offset:%d ; rare" % (v(vPFd), v(vPFo), sr(sX,4), s(sSoX), 128*extra_chunks)]
    st_ = 64*3840 if w == 2 else 64*3456
    return ["s_add_u32 %s, %s, %d" % (s(sD1), s(sSoQ if w == 2 else sSoW), extra_chunks*st_),
            "buffer_load_dword %s, %s, %s, %s offen ; rare" % (v(vPFd), v(vPFo), sr(sQ if w == 2 else sW,4), s(sD1))]
def zero_acc(e, n):
    for i in range(4): e("v_mov_b32 %s, 0" % v(246 if False else 232+i))
    k = 0
    while k + 16 <= n:
        e("v_mfma_f32_32x32x16_bf16 %s, v[232:235], v[232:235], 0" % vr(k,16)); k += 16
    while k < n:
        e("v_mov_b32 %s, 0" % v(k)); k += 1
def role_main(e, tag, cfg, L, dobase, w, zero_n, extra_pre=None, units=False):
    wstep, slot = cfg.wstep, cfg.slot
    nd = len(L)
    coop = tag.startswith("ffn") and "coop" in OPTS
    def set_soff():
        e("s_lshl_b32 %s, %s, 7" % (s(sSoX), s(sKC)))
        e("s_mul_i32 %s, %s, %d" % (s(sSoW), s(sKC), wstep))
    def adv():
        e("s_add_u32 %s, %s, 1" % (s(sKC), s(sKC)))
        if "rotk" in OPTS:
            e("s_cmp_eq_u32 %s, 10" % s(sKC))
            e("s_cselect_b32 %s, 0, %s" % (s(sKC), s(sKC)))
    npro = 13 if tag.startswith("attn") else 12
    e("v_lshlrev_b32 %s, 4, %s" % (v(vL16), v(vLane)))
    if units:
        unit_setup_dyn(e)
        e("s_mov_b32 %s, %d" % (s(sSzO), WO_BYTES)); e("s_mov_b32 %s, %d" % (s(sSz2), W2_BYTES))
        e("s_mov_b32 %s, %d" % (s(sUl), 3*slot))
        if 'late1' not in OPTS: unit_loads_dyn(e)
    npre = 0
    if coop:
        coop_setup(e, w)
        if w == 2: e("s_mov_b32 %s, %d" % (s(sSoQ), 64*3840))
        for x in range(1, COOP_D + 1):
            e.ext(coop_load(w, x)); npre += 1
    if extra_pre: extra_pre(e)
    dma_offsets_setup(e, L, dobase)
    zero_acc(e, zero_n)
    e("v_mov_b32 v254, 0x3f803f80")
    for i in range(4): e("v_accvgpr_write_b32 %s, v254" % a(aONE+i))
    e("v_mov_b32 %s, 0" % v(vZero))
    nyoung = npro + npre + (3 if units else 0)
    if "late1" in OPTS:
        set_soff()
        e("s_mov_b32 %s, %d" % (s(sDSlot), slot))
        for g in dma_groups_vgpr(L, dobase): e.ext(g)
        adv()
        nyoung = nd
        if units:
            unit_loads_dyn(e); nyoung += 3
    ph2_setup(e, slot)
    set_soff()
    e("s_mov_b32 %s, %d" % (s(sDSlot), 2*slot))
    e("s_mov_b32 %s, %d" % (s(sCp), slot))
    e("s_mov_b32 %s, %d" % (s(sCm), (-2*slot) & 0xffffffff))
    e("s_mov_b32 %s, 0" % s(sIter))
    if coop and w == 2: e("s_mov_b32 %s, %d" % (s(sSoQ), 2*64*3840))
    stamp(e, 2)
    e("s_waitcnt vmcnt(%d) lgkmcnt(0)" % nyoung)
    e("s_barrier")
    stamp(e, 3)
    R = cfg.ring
    e.ext(cfg.xreads(0))
    for f in range(cfg.nfirst):
        e.ext(cfg.wread(0, f, cfg.wbase + (f % R)*4))
    dma = dma_groups_vgpr(L, dobase)
    if "nopoll" not in OPTS:
        pg = ["s_cmp_lg_u32 %s, 7 ; rare" % s(sIter), "s_cbranch_scc0 L_pp_%s ; rare" % tag, "L_np_%s:" % tag]
        side = ["L_pp_%s:" % tag, "  buffer_load_dwordx2 %s, %s, %s, 0 offen sc1 ; rare" % (vr(vNon,2), v(vZero), sr(sDBG,4)), "  s_branch L_np_%s ; rare" % tag]
        if units:
            us = E(); unit_store_dyn(us, 216, full_wait=True)
            pg += ["s_cmp_lg_u32 %s, 1 ; rare" % s(sIter), "s_cbranch_scc0 L_pu_%s ; rare" % tag, "L_nu_%s:" % tag]
            side += ["L_pu_%s:" % tag] + us.L + ["  s_branch L_nu_%s" % tag]
        if units and w == 0:
            sg = E(); signal_count(sg, CNT_P)
            pg += ["s_cmp_lg_u32 %s, 2 ; rare" % s(sIter), "s_cbranch_scc0 L_ps_%s ; rare" % tag, "L_ns_%s:" % tag]
            side += ["L_ps_%s:" % tag] + sg.L + ["  s_branch L_ns_%s ; rare" % tag]
        dma = [pg] + dma
    else: side = []
    ncl = nd
    if coop:
        g = coop_load(w, COOP_D)
        if w == 2: g.append("s_add_u32 %s, %s, %d" % (s(sSoQ), s(sSoQ), 64*3840))
        dma = dma + [g]; ncl = nd + 2
    if "nodma" in OPTS: dma = []
    first_vm = None
    if coop:
        first_vm = min(63, nd + 1 + npre)
        side += ["L_first_%s:" % tag, "  s_waitcnt vmcnt(%d) lgkmcnt(0) ; rare" % first_vm, "  s_branch L_join_%s ; rare" % tag]
    body = chunk_body(cfg, dma, rolled_tag=tag, closing_vm=ncl if "nodma" not in OPTS else 0, first_vm=first_vm)
    post = E()
    stamp(post, 4)
    if "nopoll" not in OPTS:
        get_nonce(post, tag, 250, have_first=vNon)
        spin_count(post, "p_" + tag, CNT_P, N_P, 250, have_first=vNon+1)
    if "ph1only" in OPTS:
        post.ext(chunk_body(cfg, [], closing_vm=0))
        post.ext(chunk_body(cfg, [], last=True, closing_vm=None))
    else:
        post.ext(chunk_body(cfg, w2l_groups(0, 12), closing_vm=12))
        sg = []
        if SSH:
            post("v_and_b32 %s, 15, %s" % (v(vT16), v(vLane))); post("v_lshlrev_b32 %s, 4, %s" % (v(vT16), v(vT16)))
            if tag.startswith("attn"):
                post("s_lshl_b32 s74, %s, 7" % s(sRB)); post("s_sub_u32 s101, s74, 16")
                post("s_cmp_eq_u32 %s, 0" % s(sRB)); post("s_cselect_b32 s101, 0, s101")
                post("s_add_u32 s74, s74, %d" % (32*w)); post("s_add_u32 s75, s74, 16")
                sg = [stats_load_group(d, t) for d, t in zip(A_STD, A_STT)]
            else:
                post("s_lshl_b32 s73, %s, 7" % s(sRB)); post("s_add_u32 s73, s73, %d" % (64*(w >> 1)))
                post("s_add_u32 s74, s73, 16"); post("s_add_u32 s75, s73, 32"); post("s_add_u32 s101, s73, 48")
                sg = [stats_load_group(d, t) for d, t in zip(F_STD, F_STT)]
        post.ext(chunk_body(cfg, sg + w2l_groups(12, 25), last=True, closing_vm=None))
    stamp(post, 5)
    return body, post, side

A_ND = [13, 13, 12, 12]

X_CS = 0
X_NM = 1024
X_RS = 2048
X_EX = 4096
vQp = 160
vKA, vKB, vKP = 180, 190, 200
vVp = 210
NEG = 0xf149f2ca
def stats_finalize(e, vsum, vsq, vt, out_nm, out_rs, out_std, smask):
    e("v_cndmask_b32_e64 %s, 0, %s, %s" % (v(vt), v(vsq+0), sr(smask,2)))
    for r in (1,2,3):
        e("v_cndmask_b32_e64 %s, %s, %s, %s" % (v(vt), v(vt), v(vsq+r), sr(smask+2*r,2)))
    e("v_mov_b32 %s, %s" % (v(vt+1), v(vt)))
    e("v_permlane32_swap_b32 %s, %s" % (v(vt), v(vt+1)))
    e("v_add_f32 %s, %s, %s" % (v(vt), v(vt), v(vt+1)))
    e("v_mov_b32 %s, %s" % (v(vt+1), v(vt)))
    e("v_permlane16_swap_b32 %s, %s" % (v(vt), v(vt+1)))
    e("v_add_f32 %s, %s, %s" % (v(vt), v(vt), v(vt+1)))
    e("v_mul_f32 %s, 0x%08x, %s" % (v(out_nm), f2u(-1.0/640), v(vsum)))
    e("v_mul_f32 %s, 0x%08x, %s" % (v(vt), f2u(1.0/640), v(vt)))
    e("v_fma_f32 %s, -%s, %s, %s" % (v(vt), v(out_nm), v(out_nm), v(vt)))
    e("v_max_f32 %s, 0, %s" % (v(vt), v(vt)))
    e("v_add_f32 %s, 0x%08x, %s" % (v(vt), f2u(1e-5), v(vt)))
    e("v_rsq_f32 %s, %s" % (v(out_rs), v(vt)))
    if out_std is not None:
        e("v_mul_f32 %s, %s, %s" % (v(out_std), v(vt), v(out_rs)))


def attn_stash(e):
    e("v_and_b32 v1, 15, %s" % v(vLane))
    e("v_lshrrev_b32 v2, 4, %s" % v(vLane))
    e("v_lshlrev_b32 v3, 2, v2")
    e("v_sub_u32 v3, v1, v3")
    e("v_and_b32 v4, 1, v1")
    e("v_mov_b32 v5, 0x%08x" % NEG)
    e("v_cmp_eq_u32 %s, 0, v4" % sr(sM+14,2))
    for r in range(4):
        e("v_subrev_u32 v6, %d, v3" % r)
        e("v_cmp_le_i32 %s, 0, v6" % sr(sM+16,2))
        if r & 1: e("s_andn2_b64 %s, exec, %s" % (sr(sM+18,2), sr(sM+14,2)))
        else:     e("s_mov_b64 %s, %s" % (sr(sM+18,2), sr(sM+14,2)))
        e("s_and_b64 %s, %s, %s" % (sr(sM+20,2), sr(sM+18,2), sr(sM+16,2)))
        e("s_andn2_b64 %s, %s, %s" % (sr(sM+22,2), sr(sM+18,2), sr(sM+16,2)))
        e("v_cndmask_b32_e64 v7, v5, 0, %s" % sr(sM+22,2)); e("v_accvgpr_write_b32 %s, v7" % a(aST+r))
        e("v_cndmask_b32_e64 v8, v5, 0, %s" % sr(sM+20,2)); e("v_accvgpr_write_b32 %s, v8" % a(aST+4+r))
    e("v_sub_u32 v6, v3, v4")
    e("v_mov_b32 v9, 0x0c0c0100"); e("v_mov_b32 v10, 0x01000c0c")
    e("v_cndmask_b32_e64 v9, v10, v9, %s" % sr(sM+14,2))
    e("v_mov_b32 v10, 0x0c0c0302"); e("v_mov_b32 v11, 0x03020c0c")
    e("v_cndmask_b32_e64 v10, v11, v10, %s" % sr(sM+14,2))
    e("v_mov_b32 v11, 0x0c0c0c0c")
    e("v_cmp_le_i32 %s, 0, v6" % sr(sM+16,2))
    e("v_cndmask_b32_e64 v12, v9, v11, %s" % sr(sM+16,2)); e("v_accvgpr_write_b32 %s, v12" % a(aST+8))
    e("v_cndmask_b32_e64 v13, v11, v9, %s" % sr(sM+16,2)); e("v_accvgpr_write_b32 %s, v13" % a(aST+10))
    e("v_cmp_le_i32 %s, 2, v6" % sr(sM+16,2))
    e("v_cndmask_b32_e64 v12, v10, v11, %s" % sr(sM+16,2)); e("v_accvgpr_write_b32 %s, v12" % a(aST+9))
    e("v_cndmask_b32_e64 v13, v11, v10, %s" % sr(sM+16,2)); e("v_accvgpr_write_b32 %s, v13" % a(aST+11))

def attn_epilogue(e):
    R = " ; rare"
    tNM = [240, 242]; tRS = [244, 246]; tSTD = [248, 249]
    vt = 166
    smask = sM
    A1, A2, A3, A4, A5, A6 = 176, 177, 178, 179, 250, 254
    ML = {1: 160, 2: 161, 3: 162}; MH = {0: 163, 1: 164, 2: 165}
    e("v_and_b32 v253, 15, %s" % v(vLane))
    e("v_lshlrev_b32 v253, 2, v253")
    e("v_lshrrev_b32 v252, 4, %s" % v(vLane))
    e("s_lshl_b32 %s, %s, 7" % (s(sT0), s(sWave)))
    e("s_lshl_b32 %s, %s, 6" % (s(sT1), s(sWave)))
    e("v_add_u32 %s, %s, v253" % (v(A1), s(sT0)))
    e("v_add_u32 %s, %s, v253" % (v(A4), s(sT1)))
    if SSH:
        e("s_waitcnt vmcnt(13)")
        e("s_mov_b32 %s, 0" % s(sIter))
        stats_check(e, "attn", A_STD, A_STT)
        for T in (0, 1):
            e("v_mov_b32 %s, %s" % (v(tNM[T]), v(A_STD[T]))); e("v_mov_b32 %s, %s" % (v(tRS[T]), v(A_STD[T]+1))); e("v_mov_b32 %s, %s" % (v(tSTD[T]), v(A_STD[T]+2)))
            e("ds_write_b32 %s, %s offset:%d" % (v(A1), v(A_STD[T]), X_NM + 64 + T*64))
            e("ds_write_b32 %s, %s offset:%d" % (v(A1), v(A_STD[T]+1), X_RS + 64 + T*64))
        e("v_mov_b32 v152, %s" % v(A_STD[2])); e("v_mov_b32 v154, %s" % v(A_STD[2]+1))
        e("ds_write_b32 v253, %s offset:%d" % (v(A_STD[2]), X_NM))
        e("ds_write_b32 v253, %s offset:%d" % (v(A_STD[2]+1), X_RS))
    else:
      for T in (0, 1):
        stats_finalize(e, vSumT[T], vSqT[T], vt, tNM[T], tRS[T], tSTD[T], smask)
        e("ds_write_b32 %s, %s offset:%d" % (v(A1), v(tNM[T]), X_NM + 64 + T*64))
        e("ds_write_b32 %s, %s offset:%d" % (v(A1), v(tRS[T]), X_RS + 64 + T*64))
    for h in (1, 2, 3):
        e("v_cmp_le_u32 %s, %d, v252" % (sr(sM+16,2), h))
        e("v_cndmask_b32_e64 %s, 0, -1, %s" % (v(ML[h]), sr(sM+16,2)))
    for h in (0, 1, 2): e("v_not_b32 %s, %s" % (v(MH[h]), v(ML[h+1])))
    e("v_lshlrev_b32 v252, 4, v252")
    e("v_add_u32 %s, %s, v252" % (v(A2), s(sT0)))
    e("v_add_u32 %s, %s, v252" % (v(A3), s(sT1)))
    if not SSH:
        raise NotImplementedError
    e("s_mov_b32 exec_lo, 0x00010001"); e("s_mov_b32 exec_hi, 0x00010001")
    e("ds_write_b128 %s, %s offset:%d" % (v(A3), vr(acc_halo(0),4), X_CS))
    e("ds_write_b128 %s, %s offset:%d" % (v(A3), vr(acc_halo(1),4), X_CS + 5*64))
    e("s_cmp_gt_u32 %s, 1" % s(sWave))
    e("s_cbranch_scc1 L_e3a")
    e("s_mul_i32 %s, %s, 320" % (s(sT2), s(sWave)) + R)
    e("v_add_u32 v167, %s, v252" % s(sT2) + R)
    e("ds_write_b128 v167, %s offset:%d" % (vr(acc_halo(3),4), X_CS + 4*64) + R)
    e.lab("L_e3a")
    e("s_mov_b32 exec_lo, 0x0000ffff"); e("s_mov_b32 exec_hi, 0")
    e("ds_write_b32 %s, %s offset:%d" % (v(A4), v(acc_halo(2)), X_CS + 10*64))
    e("s_cmp_lg_u32 %s, 2" % s(sWave))
    e("s_cbranch_scc1 L_e3b")
    e("ds_write_b32 v253, %s offset:%d" % (v(acc_halo(3)), X_CS + 14*64) + R)
    e.lab("L_e3b")
    e("s_mov_b64 exec, -1")
    e("v_lshlrev_b32 v251, 3, %s" % v(vLane))
    e("s_lshl_b32 %s, %s, 9" % (s(sT2), s(sWave)))
    e("v_add_u32 %s, %s, v251" % (v(A5), s(sT2)))
    e("s_mul_i32 %s, %s, 5120" % (s(sT2), s(sWave)))
    e("v_add_u32 %s, %s, v251" % (v(A6), s(sT2)))
    e("s_waitcnt lgkmcnt(0)")
    e("s_barrier")
    if "epst" in OPTS: stamp(e, 8)
    CS4 = lambda c: 200 + 4*c
    nm4 = [136, 140]; rs4 = [144, 148]
    tHN, tHR = 152, 154
    csK = 156
    hn4, hr4 = 168, 172
    for c in range(5): e("ds_read_b128 %s, v252 offset:%d" % (vr(CS4(c),4), X_CS + c*64))
    for c in range(5, 10): e("ds_read_b128 %s, v252 offset:%d" % (vr(CS4(c),4), X_CS + c*64))
    e("ds_read_b128 %s, %s offset:%d" % (vr(csK,4), v(A3), X_CS + 5*64))
    def pkfma_bc(d, s0, sc, sfx=""):
        e("v_pk_fma_f32 %s, %s, %s, %s op_sel_hi:[1,0,1]%s" % (vr(d,2), vr(s0,2), vr(sc,2), vr(d,2), sfx))
    def pkmul_bc(d, sc, sfx=""):
        e("v_pk_mul_f32 %s, %s, %s op_sel_hi:[1,0]%s" % (vr(d,2), vr(d,2), vr(sc,2), sfx))
    t0, t1 = 166, 167
    for c in range(5):
        for T in (0, 1):
            d = acc_own(T, c); b = acc_own(T, 0)
            pkfma_bc(d, CS4(c), tNM[T]); pkfma_bc(d+2, CS4(c)+2, tNM[T])
            if c == 0:
                e("v_cvt_pk_bf16_f32 %s, %s, %s" % (v(d), v(d), v(d+1))); e("v_cvt_pk_bf16_f32 %s, %s, %s" % (v(d+1), v(d+2), v(d+3)))
            elif c == 4:
                e("v_cvt_pk_bf16_f32 %s, %s, %s" % (v(b+14), v(d), v(d+1))); e("v_cvt_pk_bf16_f32 %s, %s, %s" % (v(b+15), v(d+2), v(d+3)))
            else:
                e("v_cvt_pk_bf16_f32 %s, %s, %s" % (v(t0), v(d), v(d+1))); e("v_cvt_pk_bf16_f32 %s, %s, %s" % (v(t1), v(d+2), v(d+3)))
                e("v_and_b32 %s, %s, %s" % (v(d), v(t0), v(ML[c]))); e("v_and_b32 %s, %s, %s" % (v(d+1), v(t1), v(ML[c])))
                e("v_and_b32 %s, %s, %s" % (v(b+4*(c-1)+2), v(t0), v(MH[c-1]))); e("v_and_b32 %s, %s, %s" % (v(b+4*(c-1)+3), v(t1), v(MH[c-1])))
    for T in (0, 1):
        e("ds_read_b128 %s, %s offset:%d" % (vr(nm4[T],4), v(A2), X_NM + 64 + T*64))
        e("ds_read_b128 %s, %s offset:%d" % (vr(rs4[T],4), v(A2), X_RS + 64 + T*64))
    e("ds_read_b128 %s, v252 offset:%d" % (vr(hn4,4), X_NM))
    e("ds_read_b128 %s, v252 offset:%d" % (vr(hr4,4), X_RS))
    if "epst" in OPTS: stamp(e, 9)
    csd = [16, 18, 76, 78, 20]; csdW = 22
    for c in range(5, 10):
        for T in (0, 1):
            d = acc_own(T, c)
            pkfma_bc(d, CS4(c), tNM[T]); pkfma_bc(d+2, CS4(c)+2, tNM[T])
            pkmul_bc(d, tRS[T]); pkmul_bc(d+2, tRS[T])
            dst = (vKA, vKB)[T] + 2*(c-5)
            e("v_cvt_pk_bf16_f32 %s, %s, %s" % (v(dst), v(d), v(d+1)))
            e("v_cvt_pk_bf16_f32 %s, %s, %s" % (v(dst+1), v(d+2), v(d+3)))
        e("ds_write_b64 %s, %s offset:%d" % (v(A6), vr(vKB+2*(c-5),2), X_EX + 5120 + (c-5)*512))
        if c == 5:
            for i in range(5): e("ds_read_b32 %s, v253 offset:%d" % (v(csd[i]), X_CS + (10+i)*64))
            e("ds_read_b32 %s, %s offset:%d" % (v(csdW), v(A4), X_CS + 10*64))
    d = acc_halo(1)
    pkfma_bc(d, csK, tHN); pkfma_bc(d+2, csK+2, tHN); pkmul_bc(d, tHR); pkmul_bc(d+2, tHR)
    e("v_cvt_pk_bf16_f32 %s, %s, %s" % (v(d), v(d), v(d+1))); e("v_cvt_pk_bf16_f32 %s, %s, %s" % (v(d+1), v(d+2), v(d+3)))
    e("ds_write_b64 %s, %s offset:%d" % (v(A5), vr(d,2), X_EX))
    e("s_cmp_lg_u32 %s, 1" % s(sWave))
    e("s_cbranch_scc1 L_e3k")
    d = acc_halo(3)
    pkfma_bc(d, CS4(9), tHN, R); pkfma_bc(d+2, CS4(9)+2, tHN, R); pkmul_bc(d, tHR, R); pkmul_bc(d+2, tHR, R)
    e("v_cvt_pk_bf16_f32 %s, %s, %s" % (v(d), v(d), v(d+1)) + R); e("v_cvt_pk_bf16_f32 %s, %s, %s" % (v(d+1), v(d+2), v(d+3)) + R)
    e("ds_write_b64 v251, %s offset:%d" % (vr(d,2), X_EX + 4*512) + R)
    e.lab("L_e3k")
    def vtile(d, nm, rs, cd, sfx=""):
        for h_ in (0, 2):
            e("v_pk_fma_f32 %s, %s, %s, %s op_sel_hi:[1,0,1]%s" % (vr(d+h_,2), vr(nm+h_,2), vr(cd,2), vr(d+h_,2), sfx))
            e("v_pk_mul_f32 %s, %s, %s%s" % (vr(d+h_,2), vr(d+h_,2), vr(rs+h_,2), sfx))
    for i in range(5):
        c = 10 + i
        for T in (0, 1):
            d = acc_own(T, c)
            vtile(d, nm4[T], rs4[T], csd[i])
            dst = vVp + 6*i + 2 + 2*T
            e("v_cvt_pk_bf16_f32 %s, %s, %s" % (v(dst), v(d), v(d+1)))
            e("v_cvt_pk_bf16_f32 %s, %s, %s" % (v(dst+1), v(d+2), v(d+3)))
        e("ds_write_b64 %s, %s offset:%d" % (v(A6), vr(vVp+6*i+4,2), X_EX + 5120 + (5+i)*512))
    d = acc_halo(2)
    vtile(d, hn4, hr4, csdW)
    e("v_cvt_pk_bf16_f32 %s, %s, %s" % (v(d), v(d), v(d+1))); e("v_cvt_pk_bf16_f32 %s, %s, %s" % (v(d+1), v(d+2), v(d+3)))
    e("ds_write_b64 %s, %s offset:%d" % (v(A5), vr(d,2), X_EX + 5*512))
    e("s_cmp_lg_u32 %s, 2" % s(sWave))
    e("s_cbranch_scc1 L_e3v")
    d = acc_halo(3)
    vtile(d, hn4, hr4, csd[4], R)
    e("v_cvt_pk_bf16_f32 %s, %s, %s" % (v(d), v(d), v(d+1)) + R); e("v_cvt_pk_bf16_f32 %s, %s, %s" % (v(d+1), v(d+2), v(d+3)) + R)
    e("s_nop 1" + R)
    e("ds_write_b64 v251, %s offset:%d" % (vr(d,2), X_EX + 9*512) + R)
    e.lab("L_e3v")
    if "epst" in OPTS: stamp(e, 10)
    vBP, vBC, vBPA, vSel = 20, 24, 28, 32
    for r in range(4):
        e("v_accvgpr_read_b32 %s, %s" % (v(vBP+r), a(aST+r)))
        e("v_accvgpr_read_b32 %s, %s" % (v(vBC+r), a(aST+4+r)))
        e("v_accvgpr_read_b32 %s, %s" % (v(vSel+r), a(aST+8+r)))
    e("s_or_b32 %s, %s, %s" % (s(sT2), s(sWave), s(sRB)))
    e("s_cmp_eq_u32 %s, 0" % s(sT2))
    e("s_cselect_b32 %s, -1, 0" % s(sM+16)); e("s_cselect_b32 %s, -1, 0" % s(sM+17))
    e("v_mov_b32 v36, 0x%08x" % NEG)
    for r in range(4): e("v_cndmask_b32_e64 %s, %s, v36, %s" % (v(vBPA+r), v(vBP+r), sr(sM+16,2)))
    cF = [37, 38]
    for T in (0, 1):
        e("v_mul_f32 %s, 0x%08x, %s" % (v(cF[T]), f2u((20.0 ** -0.5) * 1.4426950408889634), v(tRS[T])))
    e("s_mov_b32 %s, 0xffff" % s(sM+8)); e("s_mov_b32 %s, 0" % s(sM+9))
    e("s_mov_b32 %s, -1" % s(sM+10)); e("s_mov_b32 %s, 0" % s(sM+11))
    e("s_mov_b32 %s, -1" % s(sM+12)); e("s_mov_b32 %s, 0xffff" % s(sM+13))
    attn_tile(e, 1, acc_own(1,0), vKA, vKB, lambda i: vVp+6*i+2, vBP, vBC, vSel, cF[1], tSTD[1])
    if "epst" in OPTS: stamp(e, 11)
    e("s_waitcnt lgkmcnt(0)")
    e("s_barrier")
    for i in range(5):
        e("ds_read_b64 %s, %s offset:%d" % (vr(vKP+2*i,2), v(A6), X_EX + i*512))
        e("ds_read_b64 %s, %s offset:%d" % (vr(vVp+6*i,2), v(A6), X_EX + (5+i)*512))
    attn_tile(e, 0, acc_own(0,0), vKP, vKA, lambda i: vVp+6*i, vBPA, vBC, vSel, cF[0], tSTD[0])

def attn_tile(e, T, qm, kprev, kcur, vfrag, bP, bC, vSel, cF, std):
    Qm = [qm + 4*h for h in range(4)]
    S0 = [80, 84, 88, 92]; S1 = [96, 100, 104, 108]
    P  = [112, 116, 120, 124]
    Lh = [128, 132, 40, 44]
    for h in range(4):
        e("%s %s, %s, %s, %s" % (MFMA, vr(S0[h],4), vr(kprev+2*h,4), vr(Qm[h],4), vr(bP,4)))
        e("%s %s, %s, %s, %s" % (MFMA, vr(S1[h],4), vr(kcur+2*h,4), vr(Qm[h],4), vr(bC,4)))
    va = [48, 50, 52, 54]; mx = [56, 57, 58, 59]
    for h in range(4):
        e("v_max3_f32 %s, %s, %s, %s" % (v(va[h]), v(S0[h]), v(S0[h]+1), v(S1[h])))
        e("v_max3_f32 %s, %s, %s, %s" % (v(va[h]+1), v(S0[h]+2), v(S0[h]+3), v(S1[h]+2)))
        e("v_max_f32 %s, %s, %s" % (v(va[h]), v(va[h]), v(S1[h]+1)))
        e("v_max_f32 %s, %s, %s" % (v(va[h]+1), v(va[h]+1), v(S1[h]+3)))
        e("v_max_f32 %s, %s, %s" % (v(mx[h]), v(va[h]), v(va[h]+1)))
    e("v_permlane32_swap_b32 %s, %s" % (v(mx[0]), v(mx[1])))
    e("v_permlane32_swap_b32 %s, %s" % (v(mx[2]), v(mx[3])))
    e("v_max_f32 %s, %s, %s" % (v(mx[0]), v(mx[0]), v(mx[1])))
    e("v_max_f32 %s, %s, %s" % (v(mx[2]), v(mx[2]), v(mx[3])))
    e("v_permlane16_swap_b32 %s, %s" % (v(mx[0]), v(mx[2])))
    e("v_max_f32 %s, %s, %s" % (v(mx[0]), v(mx[0]), v(mx[2])))
    e("v_mov_b32 %s, %s" % (v(mx[2]), v(mx[0])))
    e("v_permlane16_swap_b32 %s, %s" % (v(mx[0]), v(mx[2])))
    e("v_mov_b32 %s, %s" % (v(mx[1]), v(mx[0])))
    e("v_mov_b32 %s, %s" % (v(mx[3]), v(mx[2])))
    e("v_permlane32_swap_b32 %s, %s" % (v(mx[0]), v(mx[1])))
    e("v_permlane32_swap_b32 %s, %s" % (v(mx[2]), v(mx[3])))
    for h in range(4):
        e("v_mul_f32 %s, %s, %s" % (v(mx[h]), v(mx[h]), v(cF)))
    for h in range(4):
        e("v_fma_f32 %s, %s, %s, -%s" % (v(va[h]), v(va[h]), v(cF), v(mx[h])))
        e("v_fma_f32 %s, %s, %s, -%s" % (v(va[h]+1), v(va[h]+1), v(cF), v(mx[h])))
    for h in range(4):
        e("v_exp_f32 %s, %s" % (v(va[h]), v(va[h])))
        e("v_exp_f32 %s, %s" % (v(va[h]+1), v(va[h]+1)))
    for h in range(4):
        e("v_cvt_pk_bf16_f32 %s, %s, %s" % (v(va[h]), v(va[h]), v(va[h]+1)))
    for h in range(4):
        for k in range(4):
            e("v_perm_b32 %s, %s, %s, %s" % (v(P[h]+k), v(va[h]), v(va[h]), v(vSel+k)))
    pairs = [(0,0),(1,0),(1,1),(2,1),(2,2),(3,2),(3,3),(4,3)]
    O = {}
    free = S0 + S1
    for n, p_ in enumerate(pairs): O[p_] = free[n]
    for h in range(4):
        e("%s %s, %s, %s, 0" % (MFMA, vr(Lh[h],4), ar(aONE,4), vr(P[h],4)))
    for (i, h) in pairs:
        e("%s %s, %s, %s, 0" % (MFMA, vr(O[(i,h)],4), vr(vfrag(i),4), vr(P[h],4)))
    for h in range(4):
        e("v_rcp_f32 %s, %s" % (v(Lh[h]), v(Lh[h])))
    for h in range(4):
        e("v_mul_f32 %s, %s, %s" % (v(Lh[h]), v(Lh[h]), v(std)))
    F = [Lh[0], 60, 62, 64, Lh[3]]
    e("v_cndmask_b32_e64 %s, %s, %s, %s" % (v(F[1]), v(Lh[1]), v(Lh[0]), sr(sM+8,2)))
    e("v_cndmask_b32_e64 %s, %s, %s, %s" % (v(F[2]), v(Lh[2]), v(Lh[1]), sr(sM+10,2)))
    e("v_cndmask_b32_e64 %s, %s, %s, %s" % (v(F[3]), v(Lh[3]), v(Lh[2]), sr(sM+12,2)))
    Rr = {}
    Rr[0] = O[(0,0)]; Rr[4] = O[(4,3)]
    for i in (1, 2, 3):
        lo, hi = O[(i,i-1)], O[(i,i)]
        for r in range(4):
            e("v_cndmask_b32_e64 %s, %s, %s, %s" % (v(hi+r), v(hi+r), v(lo+r), sr(sM+8+2*(i-1),2)))
        Rr[i] = hi
    out = P[0]
    for i in range(5):
        e("v_pk_mul_f32 %s, %s, %s op_sel_hi:[1,0]" % (vr(Rr[i],2), vr(Rr[i],2), vr(F[i],2)))
        e("v_pk_mul_f32 %s, %s, %s op_sel_hi:[1,0]" % (vr(Rr[i]+2,2), vr(Rr[i]+2,2), vr(F[i],2)))
        e("v_cvt_pk_bf16_f32 %s, %s, %s" % (v(out+2*i), v(Rr[i]), v(Rr[i]+1)))
        e("v_cvt_pk_bf16_f32 %s, %s, %s" % (v(out+2*i+1), v(Rr[i]+2), v(Rr[i]+3)))
    e("s_lshl_b32 %s, %s, 1" % (s(sT0), s(sRB)))
    e("s_lshr_b32 %s, %s, 1" % (s(sT1), s(sWave)))
    e("s_add_u32 %s, %s, %s" % (s(sT0), s(sT0), s(sT1)))
    e("s_mul_i32 %s, %s, %d" % (s(sT0), s(sT0), ACT_TB))
    e("s_and_b32 %s, %s, 1" % (s(sT1), s(sWave)))
    e("s_lshl_b32 %s, %s, 11" % (s(sT1), s(sT1)))
    e("s_add_u32 %s, %s, %s" % (s(sT0), s(sT0), s(sT1)))
    e("s_add_u32 %s, %s, %d" % (s(sT0), s(sT0), ACT_OFF + T*1024))
    e("s_lshr_b32 %s, %s, 1" % (s(sT1), s(sCB)))
    e("s_mul_i32 %s, %s, 5" % (s(sT1), s(sT1)))
    e("s_and_b32 %s, %s, 1" % (s(sT2), s(sCB)))
    e("s_lshl_b32 %s, %s, 1" % (s(sT3), s(sT2)))
    e("s_add_u32 %s, %s, %s" % (s(sT3), s(sT3), s(sT1)))
    e("s_lshl_b32 %s, %s, 12" % (s(sT3), s(sT3)))
    e("s_add_u32 %s, %s, %s" % (s(sT3), s(sT3), s(sT0)))
    e("buffer_store_dwordx4 %s, %s, %s, %s offen sc1" % (vr(out,4), v(vL16), sr(sWS,4), s(sT3)))
    e("s_add_u32 %s, %s, 4096" % (s(sT3), s(sT3)))
    e("buffer_store_dwordx4 %s, %s, %s, %s offen sc1" % (vr(out+4,4), v(vL16), sr(sWS,4), s(sT3)))
    e("s_add_u32 %s, %s, 4" % (s(sT1), s(sT1)))
    e("s_lshl_b32 %s, %s, 12" % (s(sT1), s(sT1)))
    e("s_add_u32 %s, %s, %s" % (s(sT1), s(sT1), s(sT0)))
    e("s_lshl_b32 %s, %s, 3" % (s(sT2), s(sT2)))
    e("s_add_u32 %s, %s, %s" % (s(sT1), s(sT1), s(sT2)))
    e("buffer_store_dwordx2 %s, %s, %s, %s offen sc1" % (vr(out+8,2), v(vL16), sr(sWS,4), s(sT1)))

def sprinkle(lines, groups, start=0, end_gap=0):
    safe = []
    exec_full = True; skip = None
    n = len(lines)
    for i, t in enumerate(lines):
        tt = t.strip()
        prev = lines[i-1].strip() if i else ""
        ok = exec_full and skip is None
        if prev.startswith("s_cmp") or prev.startswith("v_cmp") or prev.startswith("s_and_b64") or prev.startswith("s_andn2") : ok = False
        if tt.startswith("s_cbranch") or tt.startswith("s_cselect") or tt.startswith("s_addc") or tt.endswith(":"): ok = False
        if tt.startswith("s_barrier") or tt.startswith("s_waitcnt"): ok = False
        if ok and start <= i < n - end_gap: safe.append(i)
        if tt.startswith("s_mov_b32 exec") : exec_full = False
        if tt.startswith("s_mov_b64 exec, -1"): exec_full = True
        if tt.startswith("s_cbranch"): skip = tt.split()[-1]
        if skip and tt == skip + ":": skip = None
    ng = len(groups)
    assert len(safe) >= ng, (len(safe), ng)
    at = {}
    for k in range(ng):
        at.setdefault(safe[k*len(safe)//ng], []).extend(groups[k])
    out = []
    for i, t in enumerate(lines):
        if i in at: out += ["  " + x for x in at[i]]
        out.append(t)
    return out

F_SLOT = 49152; F_XB = 16384
fWA = [160, 161, 162, 163]
F_X0, F_X1 = 164, 165
fXE, fXOd, fWL = 166, 167, 168
fDO = 169
def facc(T, c): return (T*8 + c)*4
fCS = 128
fSUM = [144, 148]
def fxf(kh, T): return aXF + (kh*4 + T)*4

def ffn_lane_setup(e):
    x_lane_setup(e, fXE, fXOd)
    e("v_lshrrev_b32 v6, 2, v1")
    e("v_lshlrev_b32 v6, 3, v6")
    e("v_and_b32 v7, 3, v1")
    e("v_add_u32 v6, v6, v7")
    e("v_mul_u32_u24 v6, 3456, v6")
    e("v_lshrrev_b32 v7, 1, v2")
    e("v_xor_b32 v7, v7, v3")
    e("v_lshlrev_b32 v7, 5, v7")
    e("v_and_b32 v8, 1, v2")
    e("v_lshlrev_b32 v8, 4, v8")
    e("v_add3_u32 v6, v6, v7, v8")
    e("s_lshl_b32 %s, %s, 9" % (s(sT0), s(sCB)))
    e("v_add_u32 %s, %s, v6" % (v(fWL), s(sT0)))

def ffn_cfg(w):
    cfg = Cfg()
    th, ch = w >> 1, w & 1
    cfg.ntile = 8; cfg.ring = 8; cfg.look = int(os.environ.get('LOOKF', 4)); cfg.tail = int(os.environ.get('TAILF', 2)); cfg.nfirst = cfg.look; cfg.wbase = aW
    def wread(kh, c, reg):
        off = (2*ch + (c >> 2))*8192 + kh*4096
        ad = v(fWA[c & 3])
        return ["ds_read_b64_tr_b16 %s, %s offset:%d" % (ar(reg,2), ad, off),
                "ds_read_b64_tr_b16 %s, %s offset:%d" % (ar(reg+2,2), ad, off + 2048)]
    def mf(kh, c, reg):
        out = []
        for T in range(4):
            d = vr(facc(T, c), 4)
            out.append("%s %s, %s, %s, %s" % (MFMA, d, ar(reg,4), ar(fxf(kh,T),4), d))
        if (c >> 2) == th and "nohalo" not in OPTS:
            d = vr(fCS + (c & 3)*4, 4)
            out.append("%s %s, %s, %s, %s" % (MFMA, d, ar(reg,4), ar(aONE,4), d))
        return out
    def stats(kh):
        return ["%s %s, %s, %s, %s" % (MFMA, vr(fSUM[j],4), ar(aONE,4), ar(fxf(kh,2*ch+j),4), vr(fSUM[j],4)) for j in (0,1)]
    def xreads(kh):
        ad = F_X1 if kh else F_X0
        return ["ds_read_b128 %s, %s offset:%d" % (ar(fxf(kh,T),4), v(ad), (4*th+T)*2048) for T in range(4)]
    cfg.wread = wread; cfg.mf = mf; cfg.stats = stats; cfg.xreads = xreads
    cfg.xread1_at = 2
    cfg.addr_update = addr_update(F_SLOT, fWA + [F_X0, F_X1])
    cfg.scal_update = scal_update(F_SLOT, 64*3456)
    cfg.dma_start = int(os.environ.get('DST', 2)); cfg.dma_skew = w*int(os.environ.get('DSK', 1)); cfg.dma_endgap = int(os.environ.get('DEG', 8))
    cfg.wstep = 64*3456; cfg.slot = F_SLOT
    return cfg

def read_addr_setup_ffn(e):
    e("v_and_b32 v1, 15, %s" % v(vLane))
    e("v_lshrrev_b32 v2, 2, v1")
    e("v_and_b32 v3, 3, v1")
    e("v_lshrrev_b32 v4, 4, %s" % v(vLane))
    e("v_lshl_add_u32 v2, v4, 2, v2")
    e("v_lshrrev_b32 v5, 1, v2")
    e("v_and_b32 v5, 3, v5")
    e("v_lshlrev_b32 v2, 7, v2")
    e("v_lshl_add_u32 v2, v3, 3, v2")
    e("v_add_u32 v2, %d, v2" % F_XB)
    for u in range(4):
        e("v_xor_b32 v6, %d, v5" % u)
        e("v_lshl_add_u32 %s, v6, 5, v2" % v(fWA[u]))
    xaddr_setup(e, F_X0, F_X1, 0)

def ffn_epilogue(e):
    e("s_lshr_b32 %s, %s, 1" % (s(sT0), s(sWave)))
    e("s_and_b32 %s, %s, 1" % (s(sT1), s(sWave)))
    e("v_and_b32 v253, 15, %s" % v(vLane)); e("v_lshlrev_b32 v253, 2, v253")
    e("v_lshrrev_b32 v252, 4, %s" % v(vLane)); e("v_lshlrev_b32 v252, 4, v252")
    e("s_lshl_b32 %s, %s, 8" % (s(sT2), s(sT0)))
    e("s_waitcnt vmcnt(13)")
    e("s_mov_b32 %s, 0" % s(sIter))
    stats_check(e, "ffn", F_STD, F_STT)
    e("s_lshl_b32 %s, %s, 9" % (s(sT3), s(sT1)))
    e("v_add_u32 v254, %s, v252" % s(sT3))
    e("v_add_u32 v253, %s, v254" % s(sT2))
    e("s_mov_b32 exec_lo, 0x00010001"); e("s_mov_b32 exec_hi, 0x00010001")
    for q in range(4):
        e("ds_write_b128 v253, %s offset:%d" % (vr(fCS + q*4, 4), q*64))
    e("s_mov_b64 exec, -1")
    e("s_lshl_b32 %s, %s, 1" % (s(sT2), s(sRB)))
    e("s_add_u32 %s, %s, %s" % (s(sT0), s(sT0), s(sT2)))
    e("s_mul_i32 %s, %s, %d" % (s(sT0), s(sT0), ACT_TB))
    e("s_lshl_b32 %s, %s, 3" % (s(sT2), s(sCB)))
    e("s_lshl_b32 %s, %s, 2" % (s(sT3), s(sT1)))
    e("s_add_u32 %s, %s, %s" % (s(sT2), s(sT2), s(sT3)))
    e("s_add_u32 %s, %s, 20" % (s(sT2), s(sT2)))
    e("s_lshl_b32 %s, %s, 12" % (s(sT2), s(sT2)))
    e("s_add_u32 %s, %s, %s" % (s(sT0), s(sT0), s(sT2)))
    if ACT_OFF: e("s_add_u32 %s, %s, %d" % (s(sT0), s(sT0), ACT_OFF))
    e("s_mul_i32 %s, %s, 2" % (s(sT2), s(sCB)))
    e("s_add_u32 %s, %s, %s" % (s(sT2), s(sT2), s(sT1)))
    e("s_cmp_eq_u32 %s, 13" % s(sT2))
    e("s_cselect_b32 %s, 0x%x, 0" % (s(sT2), OOB))
    e("s_waitcnt lgkmcnt(0)")
    e("s_barrier")
    nm = F_STD
    CS = lambda c: 160 + 4*c
    for c in range(8): e("ds_read_b128 %s, v254 offset:%d" % (vr(CS(c),4), c*64))
    pk = [224, 228, 232, 236]
    n = 0
    for j in range(4):
        if j == 2: e("s_add_u32 %s, %s, %s" % (s(sT0), s(sT0), s(sT2)))
        for T in range(4):
            o = pk[n & 3]; n += 1
            for k in range(2):
                c = 2*j + k; d = facc(T, c); q = CS(c)
                e("v_pk_fma_f32 %s, %s, %s, %s op_sel_hi:[1,0,1]" % (vr(d,2), vr(q,2), vr(nm[T],2), vr(d,2)))
                e("v_pk_fma_f32 %s, %s, %s, %s op_sel_hi:[1,0,1]" % (vr(d+2,2), vr(q+2,2), vr(nm[T],2), vr(d+2,2)))
                e("v_cvt_pk_bf16_f32 %s, %s, %s" % (v(o+2*k), v(d), v(d+1)))
                e("v_cvt_pk_bf16_f32 %s, %s, %s" % (v(o+2*k+1), v(d+2), v(d+3)))
                e("v_pk_max_i16 %s, %s, 0" % (v(o+2*k), v(o+2*k)))
                e("v_pk_max_i16 %s, %s, 0" % (v(o+2*k+1), v(o+2*k+1)))
            e("buffer_store_dwordx4 %s, %s, %s, %s offen offset:%d sc1" % (vr(o,4), v(vL16), sr(sWS,4), s(sT0), T*1024))
        e("s_add_u32 %s, %s, 4096" % (s(sT0), s(sT0)))

U_ROW = 320
U_BYTES = 32*U_ROW
sPF = 60
vUO = [200, 201, 202]; vUH = [203, 204, 205]; vUT = [206, 207, 208]
sUW = [64, 65, 66]
sUl, sUn = 67, 68
def unit_setup_dyn(e):
    e("s_lshl_b32 %s, %s, 6" % (s(sT0), s(sWave)))
    for m in range(3):
        e("v_add_u32 v1, %s, %s" % (s(sT0), v(vLane)))
        if m: e("v_add_u32 v1, %d, v1" % (256*m))
        e("v_mul_u32_u24 v2, 3277, v1"); e("v_lshrrev_b32 v2, 16, v2")
        e("v_mul_u32_u24 v3, 20, v2"); e("v_sub_u32 v3, v1, v3")
        e("v_mul_u32_u24 v4, 1280, v2"); e("v_lshl_add_u32 %s, v3, 4, v4" % v(vUO[m]))
        e("v_lshrrev_b32 %s, 4, v2" % v(vUH[m]))
        if m == 2:
            e("v_mov_b32 v5, 0x40000000")
            e("v_cmp_le_u32 vcc, 640, v1")
            e("v_cndmask_b32_e64 %s, %s, v5, vcc" % (v(vUO[m]), v(vUO[m])))
            e("v_cndmask_b32_e64 %s, %s, 0, vcc" % (v(vUH[m]), v(vUH[m])))
    e("v_and_b32 v1, 15, %s" % v(vLane)); e("v_lshrrev_b32 v2, 2, v1"); e("v_and_b32 v3, 3, v1")
    e("v_lshrrev_b32 v4, 4, %s" % v(vLane)); e("v_lshl_add_u32 v2, v4, 2, v2")
    e("v_mul_u32_u24 v2, %d, v2" % U_ROW)
    for m in range(3):
        e("s_add_u32 %s, %s, %d" % (s(sT0), s(sWave), 4*m))
        e("s_cmp_ge_u32 %s, 5" % s(sT0)); e("s_cselect_b32 %s, 1, 0" % s(sT1))
        e("s_mul_i32 %s, %s, 5" % (s(sT2), s(sT1))); e("s_sub_u32 %s, %s, %s" % (s(sT2), s(sT0), s(sT2)))
        e("s_lshr_b32 %s, %s, 1" % (s(sT3), s(sT2))); e("s_lshl_b32 %s, %s, 6" % (s(sT3), s(sT3)))
        e("s_and_b32 %s, %s, 1" % (s(sD0), s(sT2))); e("s_lshl_b32 %s, %s, 3" % (s(sD0), s(sD0)))
        e("s_add_u32 %s, %s, %s" % (s(sT3), s(sT3), s(sD0)))
        e("s_mul_i32 %s, %s, 160" % (s(sD0), s(sT1))); e("s_add_u32 %s, %s, %s" % (s(sT3), s(sT3), s(sD0)))
        e("s_cmp_eq_u32 %s, 4" % s(sT2)); e("s_cselect_b32 %s, 3, 4" % s(sD0))
        e("v_lshlrev_b32 v5, %s, v3" % s(sD0))
        e("v_add3_u32 %s, v5, v2, %s" % (v(vUT[m]), s(sT3)))
        e("s_mul_i32 %s, %s, %d" % (s(sUW[m]), s(sT1), W2F_CB))
        e("s_lshl_b32 %s, %s, 10" % (s(sD0), s(sT2)))
        e("s_add_u32 %s, %s, %s" % (s(sUW[m]), s(sUW[m]), s(sD0)))
        e("s_cmp_ge_u32 %s, 10" % s(sT0)); e("s_cselect_b32 %s, 0x%x, %s" % (s(sUW[m]), 0x40000000, s(sUW[m])))
def unit_loads_dyn(e):
    sU = sUn
    e("s_lshr_b32 %s, %s, 2" % (s(sT0), s(sU)))
    e("s_and_b32 %s, %s, 3" % (s(sT1), s(sU)))
    e("s_mul_i32 %s, %s, 52" % (s(sT2), s(sT0))); e("s_lshr_b32 %s, %s, 8" % (s(sT2), s(sT2)))
    e("s_mul_i32 %s, %s, 5" % (s(sT3), s(sT2))); e("s_sub_u32 %s, %s, %s" % (s(sT3), s(sT0), s(sT3)))
    e("s_mul_i32 %s, %s, 160" % (s(sT2), s(sT2)))
    e("s_lshl_b32 %s, %s, 5" % (s(sD0), s(sT3)))
    e("s_cmp_ge_u32 %s, 2" % s(sT3)); e("s_cselect_b32 %s, 16, 0" % s(sD1))
    e("s_add_u32 %s, %s, %s" % (s(sD0), s(sD0), s(sD1)))
    e("s_cmp_eq_u32 %s, 4" % s(sT3)); e("s_cselect_b32 %s, 64, %s" % (s(sD0), s(sD0)))
    e("s_cselect_b32 %s, %d, 0" % (s(sD1), 64*1280))
    e("s_add_u32 %s, %s, %s" % (s(sD0), s(sD0), s(sT2)))
    e("s_sub_u32 %s, %s, 20" % (s(sT2), s(sT0))); e("s_lshl_b32 %s, %s, 5" % (s(sT2), s(sT2)))
    e("s_cmp_lt_u32 %s, 20" % s(sT0))
    e("s_cselect_b32 %s, %s, %s" % (s(sD0), s(sD0), s(sT2)))
    e("s_cselect_b32 %s, %s, 0" % (s(sD1), s(sD1)))
    e("s_cselect_b32 %s, s8, s14" % s(sPF))
    e("s_cselect_b32 %s, s9, s15" % s(sPF+1))
    e("s_cselect_b32 %s, %s, %s" % (s(sPF+2), s(sSzO), s(sSz2)))
    e("s_and_b32 %s, %s, 0xffff" % (s(sPF+1), s(sPF+1)))
    e("s_mov_b32 %s, 0x20000" % s(sPF+3))
    e("s_mul_i32 %s, %s, 1280" % (s(sD0), s(sD0)))
    e("s_mul_i32 %s, %s, 320" % (s(sT1), s(sT1)))
    e("s_add_u32 %s, %s, %s" % (s(sD0), s(sD0), s(sT1)))
    e("s_cmp_ge_u32 %s, %d" % (s(sU), 4*NKS)); e("s_cselect_b32 %s, 0x%x, %s" % (s(sD0), OOB, s(sD0)))
    e("s_lshl_b32 %s, %s, 10" % (s(sT0), s(sWave)))
    e("s_add_u32 %s, %s, %s" % (s(sT0), s(sT0), s(sUl)))
    for m in range(3):
        e("v_mad_u32_u24 %s, %s, %s, %s" % (v(210+m), v(vUH[m]), s(sD1), v(vUO[m])))
        if m < 2: e("s_add_u32 m0, %s, %d" % (s(sT0), 4096*m))
        else:
            e("s_add_u32 %s, %s, %d" % (s(sT1), s(sT0), 4096*m))
            e("s_cmp_ge_u32 %s, 2" % s(sWave))
            e("s_cselect_b32 m0, %d, %s" % (161792, s(sT1)))
        e("s_nop 0")
        e("buffer_load_dwordx4 %s, %s, %s offen lds" % (v(210+m), sr(sPF,4), s(sD0)))
def unit_store_dyn(e, vd=0, full_wait=False):
    sU = sUn
    e("s_lshr_b32 %s, %s, 2" % (s(sT0), s(sU)))
    e("s_and_b32 %s, %s, 3" % (s(sT1), s(sU)))
    e("s_mul_i32 %s, %s, 5120" % (s(sT0), s(sT0)))
    e("s_mul_i32 %s, %s, %d" % (s(sT1), s(sT1), 2*W2F_CB))
    e("s_add_u32 %s, %s, %s" % (s(sT0), s(sT0), s(sT1)))
    e("s_add_u32 %s, %s, %d" % (s(sT0), s(sT0), W2F_OFF))
    e("s_cmp_ge_u32 %s, %d" % (s(sU), 4*NKS)); e("s_cselect_b32 %s, 0x%x, %s" % (s(sT0), 0x30000000, s(sT0)))
    for m in range(3):
        e("v_add_u32 %s, %s, %s" % (v(213+m), s(sUl), v(vUT[m])))
        e("ds_read_b64_tr_b16 %s, %s" % (vr(vd+4*m,2), v(213+m)))
        e("ds_read_b64_tr_b16 %s, %s offset:%d" % (vr(vd+4*m+2,2), v(213+m), 16*U_ROW))
    for m in range(3):
        e("s_add_u32 %s, %s, %s" % (s(sT1), s(sT0), s(sUW[m])))
        e("s_waitcnt lgkmcnt(%d)" % (4 - 2*m if not full_wait else 0))
        e("buffer_store_dwordx4 %s, %s, %s, %s offen sc1" % (vr(vd+4*m,4), v(vL16), sr(sWS,4), s(sT1)))

def pf_stats_loads(e):
    e("v_lshrrev_b32 v1, 4, %s" % v(vLane)); e("v_mul_u32_u24 v1, 1280, v1")
    e("v_and_b32 v2, 15, %s" % v(vLane)); e("v_lshl_add_u32 v14, v2, 4, v1")
    e("s_lshl_b32 %s, %s, 7" % (s(sT0), s(sCB))); e("s_lshl_b32 %s, %s, 5" % (s(sT1), s(sWave)))
    e("s_add_u32 %s, %s, %s" % (s(sT0), s(sT0), s(sT1))); e("s_mul_i32 %s, %s, 1280" % (s(sT0), s(sT0)))
    for grp in range(8):
        for i in range(5):
            e("buffer_load_dwordx4 %s, v14, %s, %s offen offset:%d ; rare" % (vr(16 + grp*20 + i*4, 4), sr(sX,4), s(sT0), i*256))
        e("s_add_u32 %s, %s, %d" % (s(sT0), s(sT0), 4*1280))
def pf_stats_compute(e):
    e("v_mov_b32 v15, 0x3f803f80")
    for grp in range(8):
        b = 16 + grp*20
        sm, sq = 176 + 2*grp, 177 + 2*grp
        e("v_mov_b32 %s, 0" % v(sm)); e("v_mov_b32 %s, 0" % v(sq))
        for i in range(20):
            e("v_dot2c_f32_bf16 %s, %s, v15" % (v(sm), v(b+i)))
            e("v_dot2c_f32_bf16 %s, %s, %s" % (v(sq), v(b+i), v(b+i)))
    for sh in (8, 4, 2, 1):
        for r in range(176, 192):
            e("v_add_f32_dpp %s, %s, %s row_ror:%d row_mask:0xf bank_mask:0xf" % (v(r), v(r), v(r), sh))
    e("v_lshrrev_b32 v1, 4, %s" % v(vLane)); e("v_lshlrev_b32 v1, 4, v1")
    e("s_lshl_b32 %s, %s, 7" % (s(sT0), s(sCB))); e("s_lshl_b32 %s, %s, 5" % (s(sT1), s(sWave)))
    e("s_add_u32 %s, %s, %s" % (s(sT0), s(sT0), s(sT1))); e("s_lshl_b32 %s, %s, 4" % (s(sT0), s(sT0)))
    e("s_add_u32 %s, %s, %d" % (s(sT0), s(sT0), STATS_OFF))
    for grp in range(8):
        sm, sq = 176 + 2*grp, 177 + 2*grp
        o = 16 + 4*grp
        e("v_mul_f32 %s, 0x%08x, %s" % (v(o), f2u(-1.0/640), v(sm)))
        e("v_mul_f32 %s, 0x%08x, %s" % (v(sq), f2u(1.0/640), v(sq)))
        e("v_fma_f32 %s, -%s, %s, %s" % (v(sq), v(o), v(o), v(sq)))
        e("v_max_f32 %s, 0, %s" % (v(sq), v(sq)))
        e("v_add_f32 %s, 0x%08x, %s" % (v(sq), f2u(1e-5), v(sq)))
        e("v_rsq_f32 %s, %s" % (v(o+1), v(sq)))
        e("v_mov_b32 %s, %s" % (v(o+3), s(sNonce)))
        e("v_mul_f32 %s, %s, %s" % (v(o+2), v(sq), v(o+1)))
    e("s_mov_b32 exec_lo, 0x00010001"); e("s_mov_b32 exec_hi, 0x00010001")
    for grp in range(8):
        e("buffer_store_dwordx4 %s, v1, %s, %s offen offset:%d sc1" % (vr(16+4*grp,4), sr(sWS,4), s(sT0), grp*64))
    e("s_mov_b64 exec, -1")
def stats_load_group(dst, tok_sgpr):
    return ["s_lshl_b32 %s, %s, 4" % (s(sP1), s(tok_sgpr)), "s_add_u32 %s, %s, %d" % (s(sP1), s(sP1), STATS_OFF),
            "buffer_load_dwordx4 %s, %s, %s, %s offen sc1" % (vr(dst,4), v(vT16), sr(sWS,4), s(sP1))]
A_STD, A_STT = [180, 184, 188], [74, 75, 101]
F_STD, F_STT = [200, 204, 208, 212], [73, 74, 75, 101]
vT16 = 251
def stats_check(e, tag, dsts, toks):
    R = " ; rare"
    e.lab("L_stc_%s" % tag)
    e("s_mov_b64 %s, exec" % sr(sM+16,2))
    for d in dsts:
        e("v_cmp_eq_u32 vcc, %s, %s" % (s(sNonce), v(d+3)))
        e("s_nop 1")
        e("s_and_b64 %s, %s, vcc" % (sr(sM+16,2), sr(sM+16,2)))
    e("s_cmp_eq_u64 %s, exec" % sr(sM+16,2))
    e("s_cbranch_scc1 L_stok_%s" % tag)
    e("s_add_u32 %s, %s, 1" % (s(sIter), s(sIter)) + R)
    e("s_cmp_gt_u32 %s, %d" % (s(sIter), SPIN_MAX) + R)
    e("s_cbranch_scc1 L_stok_%s" % tag + R)
    e("s_sleep 8" + R)
    for d, t in zip(dsts, toks):
        for x in stats_load_group(d, t): e(x + R)
    e("s_waitcnt vmcnt(0)" + R)
    e("s_branch L_stc_%s" % tag + R)
    e.lab("L_stok_%s" % tag)

def pf_loop(e, tag, fn, u0, n, lds0):
    e("s_add_u32 %s, %s, %d" % (s(sUn), s(sCB), 16*u0))
    e("s_mov_b32 %s, %d" % (s(sUl), lds0))
    e("s_mov_b32 %s, 0" % s(sIter))
    e.lab("L_pfl_%s" % tag)
    fn(e)
    e("s_add_u32 %s, %s, 16" % (s(sUn), s(sUn)))
    e("s_add_u32 %s, %s, %d" % (s(sUl), s(sUl), U_BYTES))
    e("s_add_u32 %s, %s, 1" % (s(sIter), s(sIter)))
    e("s_cmp_lt_u32 %s, %d" % (s(sIter), n))
    e("s_cbranch_scc1 L_pfl_%s" % tag)
N_FFN_UNITS = 2
def signal_count(e, off):
    R = " ; rare"
    e("v_mov_b32 v250, 1" + R); e("v_mov_b32 v251, 0" + R)
    e("s_mov_b32 exec_lo, 1" + R); e("s_mov_b32 exec_hi, 0" + R)
    e("buffer_atomic_add v250, v251, %s, 0 offen offset:%d sc1" % (sr(sDBG,4), off) + R)
    e("s_mov_b64 exec, -1" + R)
def spin_count(e, tag, off, target, vtmp, have_first=None):
    R = " ; rare"
    if have_first is not None:
        e("v_readfirstlane_b32 %s, %s" % (s(sT0), v(have_first)))
        e("s_nop 3")
        e("s_cmp_ge_u32 %s, %d" % (s(sT0), target))
        e("s_cbranch_scc1 L_cok_%s" % tag)
    e("s_mov_b32 %s, 0" % s(sT1) + R)
    e("v_mov_b32 %s, 0" % v(vtmp+1) + R)
    e.lab("L_cspin_%s" % tag)
    e("buffer_load_dword %s, %s, %s, 0 offen offset:%d sc1" % (v(vtmp), v(vtmp+1), sr(sDBG,4), off) + R)
    e("s_waitcnt vmcnt(0)" + R)
    e("v_readfirstlane_b32 %s, %s" % (s(sT0), v(vtmp)) + R)
    e("s_nop 3" + R)
    e("s_cmp_ge_u32 %s, %d" % (s(sT0), target) + R)
    e("s_cbranch_scc1 L_cok_%s" % tag + R)
    e("s_sleep %d" % CSLEEP + R)
    e("s_add_u32 %s, %s, 1" % (s(sT1), s(sT1)) + R)
    e("s_cmp_lt_u32 %s, %d" % (s(sT1), SPIN_MAX) + R)
    e("s_cbranch_scc1 L_cspin_%s" % tag + R)
    e.lab("L_cok_%s" % tag)
CSLEEP = 40
FSLEEP = int(os.environ.get('FSL', 8))
CNT_P, N_P = 4, 128

DA = 6
POLL_A_AT = int(os.environ.get('PAA', 5))
FFN_W2A_IN = 0
ATT_POLL_BACK = int(os.environ.get('APB', 90))
ATT_W2A_IN = int(os.environ.get('ATT_IN', 60))
ATT_ENDGAP = int(os.environ.get('ATT_GAP', 40))
W2A_BEFORE_SIG = int(os.environ.get('WBS', 12))

vAR = 80
vWR = 176
def act_soff(p, dst):
    if p < 14: return ["s_lshl_b32 %s, %s, 2" % (s(dst), s(sKQ[p])), "s_add_u32 %s, %s, %s" % (s(dst), s(dst), s(sAB))]
    return ["s_lshl_b32 %s, %s, 12" % (s(dst), s(sWave)), "s_add_u32 %s, %s, %s" % (s(dst), s(dst), s(sAB)),
            "s_add_u32 %s, %s, %d" % (s(dst), s(dst), 4*(p-14)*4096)]
vAO = [244, 246, 248, 249]
def act_loads(p):
    st = vAR + (p % DA)*16
    G = []
    for tt in range(4):
        g = act_soff(p, sD0) if tt == 0 else []
        g.append("buffer_load_dwordx4 %s, %s, %s, %s offen sc1" % (vr(st+4*tt,4), v(vAO[tt]), sr(sWS,4), s(sD0)))
        G.append(g)
    return G
PE_F = int(os.environ.get('PEF', 17))
XRES_AT = 14
BAR_AT = int(os.environ.get('BARAT', 5))
PE_A = int(os.environ.get('PEA', 17))
sMain = 100

def ao_setup(e, sfx=""):
    for tt in range(4):
        e("s_add_u32 %s, %s, %d%s" % (s(sT0), s(sWave), tt, sfx))
        e("s_and_b32 %s, %s, 3%s" % (s(sT0), s(sT0), sfx))
        e("s_lshl_b32 %s, %s, 10%s" % (s(sT0), s(sT0), sfx))
        e("v_add_u32 %s, %s, %s%s" % (v(vAO[tt]), s(sT0), v(vL16), sfx))

def build_main(tag, P0v):
    main = E()
    main.lab("L_ph2_main_" + tag)
    main("v_add_u32 v216, %s, %s" % (s(sLA), v(vL16)))
    main("v_add_u32 v217, %s, %s" % (s(sLB), v(vL16)))
    def wl_reads(p):
        out = []
        for ct in range(5):
            q = 5*p + ct
            ad, off = (216, q*1024) if q < 12 else (217, (q-12)*1024)
            out.append("ds_read_b128 %s, %s offset:%d" % (vr(vWR + (p & 1)*20 + ct*4, 4), v(ad), off))
        return out
    main.ext(wl_reads(0))
    main("v_lshlrev_b32 v218, 2, %s" % v(vLane))
    for tt in range(1, 4):
        main("s_add_u32 %s, %s, %d" % (s(sT0), s(sWave), tt))
        main("s_and_b32 %s, %s, 3" % (s(sT0), s(sT0)))
        main("s_mul_i32 %s, %s, 15360" % (s(sT0), s(sT0)))
        main("s_add_u32 %s, %s, %d" % (s(sT0), s(sT0), (tt-1)*5120))
        main("v_add_u32 %s, %s, %s" % (v(236+tt), s(sT0), v(vL16)))
    stamp(main, 9)
    NP = 19
    for p in range(NP):
        if "p2st" in OPTS and p in (1, 5, 9, 10, 14): stamp(main, {1: 1, 5: 2, 9: 3, 10: 4, 14: 5}[p])
        if "p2stb" in OPTS and p in (10, 12, 14, 16, 18): stamp(main, {10: 1, 12: 2, 14: 3, 16: 4, 18: 5}[p])
        ms = []
        order = [(ct, tt) for ct in range(5) for tt in range(4)] if p < NP - 1 else [(ct, tt) for tt in (1, 2, 3, 0) for ct in range(5)]
        for ct, tt in order:
            if p < 5: wsrc = vr(vWR + (p & 1)*20 + ct*4, 4)
            else:     wsrc = ar(((p - 5) % 12)*20 + ct*4, 4)
            d = vr((tt*5+ct)*4, 4)
            ms.append("%s %s, %s, %s, %s" % (MFMA, d, wsrc, vr(vAR + (p % DA)*16 + 4*tt, 4), d if p else "0"))
        aux = []
        if p + 1 < 5: aux += [[t] for t in wl_reads(p + 1)]
        q = p - 1 + DA
        if p >= 1 and q < NP:
            if q == 14:
                sp = E(); spin_flags(sp, "a" + tag, MASK_A, 250, have_first=219)
                main.ext(sp.L)
            aux += act_loads(q)
        if p == XRES_AT:
            rx = E()
            rx("v_and_b32 v220, 15, %s" % v(vLane)); rx("v_lshrrev_b32 v221, 4, %s" % v(vLane))
            rx("s_lshl_b32 %s, %s, 6" % (s(sT0), s(sTB))); rx("s_lshl_b32 %s, %s, 4" % (s(sT1), s(sWave)))
            rx("s_add_u32 %s, %s, %s" % (s(sT0), s(sT0), s(sT1)))
            rx("v_add_u32 v220, %s, v220" % s(sT0)); rx("v_lshlrev_b32 v222, 4, v220")
            rx("v_mul_u32_u24 v220, 1280, v220")
            rx("s_mul_i32 %s, %s, 160" % (s(sT1), s(sC2))); rx("v_add_u32 v220, %s, v220" % s(sT1))
            rx("v_lshl_add_u32 v240, v221, 4, v220"); rx("v_lshl_add_u32 v242, v221, 3, v220")
            rx("s_mov_b32 %s, %d" % (s(sT2), STATS_OFF + 4))
            rx("buffer_load_dwordx4 v[224:227], v240, %s, 0 offen" % sr(sX,4))
            rx("buffer_load_dwordx4 v[228:231], v240, %s, 0 offen offset:64" % sr(sX,4))
            rx("buffer_load_dwordx2 v[232:233], v242, %s, 0 offen offset:128" % sr(sX,4))
            rx("buffer_load_dword v234, v222, %s, %s offen sc1" % (sr(sWS,4), s(sT2)))
            aux += [[t.strip()] for t in rx.L]
        if p == POLL_A_AT:
            aux.append(["buffer_load_dword v219, v218, %s, %s offen sc1" % (sr(sWS,4), s(sFL))])
        if P0v <= p + 7 <= 16: aux += w2a_groups(p + 7, p + 8)
        if p == 10: aux += w2a_groups(17, 18)
        if p == 11: aux += w2a_groups(18, 19)
        if p == BAR_AT: aux.append(["s_barrier"])
        if tag == "A" and p == 1:
            sg = E(); sg("s_barrier"); signal_rb(sg, "attn", None, vt=(220, 221))
            main.ext(sg.L)
        n = len(ms); k = 0
        wq = [(tt, ct) for tt in range(1, 4) for ct in range(5)] if p == NP - 1 else []
        for i_, m in enumerate(ms):
            main(m)
            want = (i_ + 1)*len(aux) // n
            while k < want:
                main.ext(aux[k]); k += 1
            if wq and i_ >= 5:
                tt, ct = wq.pop(0)
                main("ds_write_b128 %s, %s offset:%d" % (v(236+tt), vr((tt*5+ct)*4,4), ct*1024))
        for tt, ct in wq:
            main("ds_write_b128 %s, %s offset:%d" % (v(236+tt), vr((tt*5+ct)*4,4), ct*1024))
    stamp(main, 10)
    main("s_branch L_ph2_tail")
    st = State(); d = []
    pre = []
    for g in w2a_groups(5, P0v): pre += ["  " + t for t in g]
    for p in range(DA):
        for g in act_loads(p): pre += ["  " + t for t in g]
    st = process(pre, st, d); st.hist = []
    o = []; st = process(main.L, st, o)
    return o, st

def phase2():
    e = E()
    e.lab("L_ph2")
    if "dlymid" in OPTS: e("s_sleep 64")
    stamp(e, 8)
    ao_setup(e)
    check_flags(e, MASK_F, vPoll, "L_ph2_ok2")
    spin_flags(e, "f", MASK_F, 250)
    e.lab("L_ph2_ok2")
    for p in range(DA):
        for g in act_loads(p): e.ext(["%s ; rare" % t for t in g])
    e("s_branch L_ph2_main_F")
    o0 = []; process(e.L, State(), o0)
    oF, stF = build_main("F", PE_F)
    oA, stA = build_main("A", PE_A)
    stA.merge(stF); stA.hist = []
    main = E()
    main.lab("L_ph2_tail")
    srd(main, sW, 16, X_BYTES)
    main("s_mul_i32 %s, %s, 15360" % (s(sT0), s(sWave)))
    main("v_add_u32 v236, %s, %s" % (s(sT0), v(vL16)))
    xr = [224, 226, 228, 230, 232]
    X = 180
    for ct in range(5):
        for hh in range(2):
            main("v_lshlrev_b32 %s, 16, %s" % (v(X + ct*4 + 2*hh), v(xr[ct]+hh)))
            main("v_and_b32 %s, 0xffff0000, %s" % (v(X + ct*4 + 2*hh + 1), v(xr[ct]+hh)))
    main("s_waitcnt lgkmcnt(0)")
    main("s_barrier")
    for k in range(3):
        for ct in range(5):
            main("ds_read_b128 %s, v236 offset:%d" % (vr(80 + (k*5+ct)*4, 4), (k*5+ct)*1024))
    o = 150
    for kk in range(2):
        for ct in range(5):
            for hh in range(2):
                r = ct*4 + 2*hh
                main("v_pk_add_f32 %s, %s, %s" % (vr(r,2), vr(r,2), vr(80 + 20*kk + r, 2)))
    for ct in range(5):
        for hh in range(2):
            r = ct*4 + 2*hh
            main("v_pk_add_f32 %s, %s, %s" % (vr(r,2), vr(r,2), vr(120 + r, 2)))
            main("v_pk_fma_f32 %s, %s, %s, %s op_sel_hi:[1,0,1]" % (vr(X+r,2), vr(r,2), vr(234,2), vr(X+r,2)))
            main("v_cvt_pk_bf16_f32 %s, %s, %s" % (v(o + 2*ct + hh), v(X+r), v(X+r+1)))
    fl = " sc1" if "outsc1" in OPTS else (" nt" if "outnt" in OPTS else "")
    main("buffer_store_dwordx4 %s, v240, %s, 0 offen%s" % (vr(o,4), sr(sW,4), fl))
    main("buffer_store_dwordx4 %s, v240, %s, 0 offen offset:64%s" % (vr(o+4,4), sr(sW,4), fl))
    main("buffer_store_dwordx2 %s, v242, %s, 0 offen offset:128%s" % (vr(o+8,2), sr(sW,4), fl))
    if "dlyend" in OPTS: main("s_sleep 64")
    stamp(main, 11)
    if "stamp" in OPTS: main("s_waitcnt vmcnt(0)")
    stamp(main, 12)
    stamp_flush(main)
    o2 = []; process(["  s_nop 7"] + main.L, stA, o2)
    return o0 + oF + oA + o2

def top():
    out = []
    e = E()
    e("s_load_dwordx16 s[4:19], s[0:1], 0")
    e("s_load_dwordx2 s[20:21], s[0:1], 64")
    e("s_cmp_ge_u32 s2, 256")
    e("s_cbranch_scc1 L_end")
    if "stamp" in OPTS: e("v_mov_b32 %s, 0" % v(vSt))
    if "ep2x" in OPTS: e("s_mov_b32 s100, 0")
    if "dlystart" in OPTS: e("s_sleep 64")
    e("s_getpc_b64 s[60:61]")
    e.lab("L_pcbase")
    e("s_lshr_b32 s3, s2, 3")
    e("s_lshl_b32 s3, s3, 12")
    e("v_lshl_add_u32 v2, v0, 4, s3")
    e("v_min_u32 v2, L_codeend-L_pcbase-16, v2")
    if "nopf" not in OPTS: e("global_load_dwordx4 v[236:239], v2, s[60:61]")
    e("v_and_b32 %s, 63, v0" % v(vLane))
    e("v_lshrrev_b32 v1, 6, v0")
    e("s_and_b32 s3, s2, 7")
    e("v_readfirstlane_b32 %s, v1" % s(sWave))
    e("s_lshr_b32 %s, s2, 3" % s(sT0))
    e("s_and_b32 %s, s3, 1" % s(sT1))
    e("s_lshr_b32 %s, s3, 1" % s(sT2))
    e("s_lshl_b32 %s, %s, 3" % (s(sT1), s(sT1)))
    e("s_cmp_ge_u32 %s, 30" % s(sT0))
    e("s_cbranch_scc1 L_role_pf")
    e("s_cmp_ge_u32 %s, 16" % s(sT0))
    e("s_cbranch_scc1 L_role_ffn")
    e("s_lshl_b32 %s, %s, 1" % (s(sCB), s(sT2)))
    e("s_lshr_b32 %s, %s, 3" % (s(sT3), s(sT0)))
    e("s_add_u32 %s, %s, %s" % (s(sCB), s(sCB), s(sT3)))
    e("s_and_b32 %s, %s, 7" % (s(sKC), s(sT0)))
    e("s_add_u32 %s, %s, %s" % (s(sRB), s(sT1), s(sKC)))
    e("s_mul_i32 %s, %s, 5" % (s(sT3), s(sT3)))
    e("s_add_u32 %s, %s, %s" % (s(sKC), s(sKC), s(sT3)))
    e("s_cmp_ge_u32 %s, 10" % s(sKC))
    e("s_cselect_b32 %s, 10, 0" % s(sT3))
    e("s_sub_u32 %s, %s, %s" % (s(sKC), s(sKC), s(sT3)))
    if "rotk" not in OPTS: e("s_mov_b32 %s, 0" % s(sKC))
    if "rot4" in OPTS:
        e("s_and_b32 %s, %s, 1" % (s(sT3), s(sCB))); e("s_lshl_b32 %s, %s, 1" % (s(sT3), s(sT3)))
        e("s_add_u32 %s, %s, %s" % (s(sT3), s(sT3), s(sRB))); e("s_and_b32 %s, %s, 3" % (s(sT3), s(sT3)))
        e("s_mul_i32 %s, %s, 5" % (s(sT3), s(sT3))); e("s_lshr_b32 %s, %s, 1" % (s(sKC), s(sT3)))
    e("s_mul_i32 %s, %s, %d" % (s(sXO), s(sRB), 128*1280))
    e("s_sub_u32 %s, %s, %d" % (s(sXH), s(sXO), 16*1280))
    e("s_cmp_eq_u32 %s, 0" % s(sRB))
    e("s_cselect_b32 %s, 0, %s" % (s(sXH), s(sXH)))
    e("s_add_u32 %s, %s, 8" % (s(sSig), s(sCB)))
    attn_lane_setup(e)
    e("s_waitcnt lgkmcnt(0)")
    srd(e, sX, 4, X_BYTES); srd(e, sW, 6, WQKV_BYTES); srd(e, sWS, 20, WS_USED); srd(e, sDBG, 18, 256)
    stamp(e, 0)
    attn_first_dma(e, 1 if 'late1' in OPTS else 2)
    stamp(e, 1)
    for w in range(3):
        e("s_cmp_eq_u32 %s, %d" % (s(sWave), w))
        e("s_cbranch_scc1 L_attn_%d" % w)
    e("s_branch L_attn_3")
    e.lab("L_role_ffn")
    e("s_mul_i32 %s, %s, 14" % (s(sT2), s(sT2)))
    e("s_add_u32 %s, %s, %s" % (s(sT2), s(sT2), s(sT0)))
    e("s_sub_u32 %s, %s, 16" % (s(sT2), s(sT2)))
    e("s_lshr_b32 %s, %s, 3" % (s(sCB), s(sT2)))
    e("s_and_b32 %s, %s, 7" % (s(sKC), s(sT2)))
    e("s_add_u32 %s, %s, %s" % (s(sRB), s(sT1), s(sKC)))
    e("s_and_b32 %s, %s, 1" % (s(sT3), s(sCB)))
    e("s_mul_i32 %s, %s, 5" % (s(sT3), s(sT3)))
    e("s_add_u32 %s, %s, %s" % (s(sKC), s(sKC), s(sT3)))
    e("s_add_u32 %s, %s, 2" % (s(sKC), s(sKC)))
    e("s_cmp_ge_u32 %s, 10" % s(sKC))
    e("s_cselect_b32 %s, 10, 0" % s(sT3))
    e("s_sub_u32 %s, %s, %s" % (s(sKC), s(sKC), s(sT3)))
    if "rotk" not in OPTS: e("s_mov_b32 %s, 0" % s(sKC))
    if "rot4" in OPTS:
        e("s_and_b32 %s, %s, 1" % (s(sT3), s(sCB))); e("s_lshl_b32 %s, %s, 1" % (s(sT3), s(sT3)))
        e("s_add_u32 %s, %s, %s" % (s(sT3), s(sT3), s(sRB))); e("s_add_u32 %s, %s, 1" % (s(sT3), s(sT3))); e("s_and_b32 %s, %s, 3" % (s(sT3), s(sT3)))
        e("s_mul_i32 %s, %s, 5" % (s(sT3), s(sT3))); e("s_lshr_b32 %s, %s, 1" % (s(sKC), s(sT3)))
    e("s_mul_i32 %s, %s, %d" % (s(sXO), s(sRB), 128*1280))
    e("s_mov_b32 %s, %s" % (s(sSig), s(sCB)))
    e("s_mul_i32 %s, %s, 7" % (s(sUn), s(sT1)))
    e("s_add_u32 %s, %s, %s" % (s(sUn), s(sUn), s(sT2)))
    ffn_lane_setup(e)
    e("s_waitcnt lgkmcnt(0)")
    srd(e, sX, 4, X_BYTES); srd(e, sW, 12, W1_BYTES); srd(e, sWS, 20, WS_USED); srd(e, sDBG, 18, 256); srd(e, sQ, 6, WQKV_BYTES)
    stamp(e, 0)
    ffn_first_dma(e, 1 if 'late1' in OPTS else 2)
    stamp(e, 1)
    for w in range(3):
        e("s_cmp_eq_u32 %s, %d" % (s(sWave), w))
        e("s_cbranch_scc1 L_ffn_%d" % w)
    e("s_branch L_ffn_3")
    e.lab("L_role_pf")
    e("s_lshl_b32 %s, s3, 1" % s(sCB))
    e("s_add_u32 %s, %s, %s" % (s(sCB), s(sCB), s(sT0)))
    e("s_sub_u32 %s, %s, 30" % (s(sCB), s(sCB)))
    e("s_waitcnt lgkmcnt(0)")
    srd(e, sX, 4, X_BYTES); srd(e, sWS, 20, WS_USED); srd(e, sDBG, 18, 256)
    stamp(e, 0)
    e("v_lshlrev_b32 %s, 4, %s" % (v(vL16), v(vLane)))
    srd(e, sPF, 14, W2_BYTES)
    e("s_mul_i32 %s, %s, 640" % (s(sT0), s(sWave)))
    for m in range(10):
        e("v_add_u32 v1, %s, %s" % (s(sT0), v(vLane)))
        if m: e("v_add_u32 v1, %d, v1" % (64*m))
        e("v_mul_u32_u24 v2, 3277, v1"); e("v_lshrrev_b32 v2, 18, v2")
        e("v_mul_u32_u24 v3, 80, v2"); e("v_sub_u32 v3, v1, v3")
        e("v_and_b32 v4, 7, v2"); e("v_lshlrev_b32 v4, 1, v4"); e("v_xor_b32 v3, v3, v4")
        e("v_mul_u32_u24 v2, 1280, v2"); e("v_lshl_add_u32 %s, v3, 4, v2" % v(216+m))
    if PF_DELAY: e("s_sleep %d" % PF_DELAY)
    for i in range(3):
        e("s_add_u32 %s, %s, %d" % (s(68+i), s(sCB), 28 + 16*i))
        e("s_sub_u32 %s, %s, 20" % (s(sT0), s(68+i)))
        e("s_mul_i32 %s, %s, 40960" % (s(sT0), s(sT0)))
        e("s_cmp_ge_u32 %s, %d" % (s(68+i), NKS)); e("s_cselect_b32 %s, 0x%x, %s" % (s(sT0), OOB, s(sT0)))
        e("s_mul_i32 %s, %s, 10240" % (s(sT1), s(sWave)))
        for m in range(10):
            e("s_add_u32 m0, %s, %d" % (s(sT1), i*40960 + 1024*m))
            e("s_nop 0")
            e("buffer_load_dwordx4 %s, %s, %s offen lds" % (v(216+m), sr(sPF,4), s(sT0)))
    stamp(e, 1)
    e("v_and_b32 v1, 15, %s" % v(vLane)); e("v_lshrrev_b32 v2, 2, v1"); e("v_and_b32 v3, 3, v1")
    e("v_lshrrev_b32 v4, 4, %s" % v(vLane)); e("v_lshl_add_u32 v2, v4, 2, v2")
    e("v_and_b32 v5, 7, v2"); e("v_lshlrev_b32 v5, 5, v5")
    e("v_mul_u32_u24 v2, 1280, v2")
    e("s_mul_i32 %s, %s, 320" % (s(sT0), s(sWave)))
    for half in range(2):
        for ct in range(5):
            if ct < 4: off = half*160 + (ct >> 1)*64 + (ct & 1)*8; sh = 4
            else: off = half*160 + 128; sh = 3
            d = 226 + half*5 + ct
            e("v_lshlrev_b32 v6, %d, v3" % sh)
            e("s_add_u32 %s, %s, %d" % (s(sT1), s(sT0), off))
            e("v_add_u32 v6, %s, v6" % s(sT1))
            e("v_xor_b32 v6, v6, v5")
            e("v_add_u32 %s, v6, v2" % v(d))
    e("s_waitcnt vmcnt(0)")
    e("s_barrier")
    stamp(e, 2)
    if SSH and XL_AT == 0: pf_stats_loads(e)
    for i in range(3):
        e("s_mul_i32 %s, %s, 5120" % (s(sT0), s(68+i)))
        e("s_mul_i32 %s, %s, %d" % (s(sT1), s(sWave), 2*W2F_CB))
        e("s_add_u32 %s, %s, %s" % (s(sT0), s(sT0), s(sT1)))
        e("s_add_u32 %s, %s, %d" % (s(sT0), s(sT0), W2F_OFF))
        e("s_cmp_ge_u32 %s, %d" % (s(68+i), NKS)); e("s_cselect_b32 %s, 0x%x, %s" % (s(sT0), 0x40000000, s(sT0)))
        for t in range(10):
            d = 176 + t*4
            e("ds_read_b64_tr_b16 %s, %s" % (vr(d,2), v(226+t)))
            e("ds_read_b64_tr_b16 %s, %s offset:%d" % (vr(d+2,2), v(226+t), 16*1280))
        if i < 2:
            for t in range(10): e("v_add_u32 %s, 40960, %s" % (v(226+t), v(226+t)))
        for t in range(10):
            half, ct = divmod(t, 5)
            d = 176 + t*4
            e("s_add_u32 %s, %s, %d" % (s(sT1), s(sT0), half*W2F_CB + ct*1024))
            e("buffer_store_dwordx4 %s, %s, %s, %s offen sc1" % (vr(d,4), v(vL16), sr(sWS,4), s(sT1)))
    stamp(e, 3)
    e("s_waitcnt vmcnt(0)")
    e("s_barrier")
    e("s_cmp_lg_u32 %s, 0" % s(sWave))
    e("s_cbranch_scc1 L_pf_nosig")
    signal_count(e, CNT_P)
    e.lab("L_pf_nosig")
    stamp(e, 4)
    if SSH:
        if XL_AT == 1: pf_stats_loads(e)
        get_nonce(e, "pfs", 250)
        e("s_waitcnt vmcnt(0)")
        pf_stats_compute(e)
        stamp(e, 6)
    ph2_setup(e, F_SLOT)
    e("s_cmp_lg_u32 %s, 0" % s(sWave))
    e("s_cbranch_scc1 L_pf_nospin")
    spin_count(e, "pf", CNT_P, N_P, 250)
    e.lab("L_pf_nospin")
    e("s_barrier")
    get_nonce(e, "pf", 250)
    stamp(e, 5)
    if "ph1only" in OPTS: stamp_flush(e); e("s_endpgm")
    for g in w2l_groups(0, 25): e.ext(g)
    e("v_lshlrev_b32 v2, 2, %s" % v(vLane))
    e("buffer_load_dword %s, v2, %s, %s offen sc1" % (v(vPoll), sr(sWS,4), s(sFL)))
    for g in w2a_groups(5, PE_F): e.ext(g)
    e("s_mov_b32 %s, 1" % s(sMain))
    e("s_waitcnt vmcnt(%d)" % (5*(PE_F-5)))
    e("s_branch L_ph2")
    out += process_path(e.L, None, None, [])
    for role in ("attn", "ffn"):
        for w in range(4):
            tag = "%s_%d" % (role, w)
            pre = E(); pre.lab("L_" + tag)
            if role == "attn":
                cfg = attn_cfg(w)
                def extra(e, w=w):
                    read_addr_setup_attn(e)
                    attn_stash(e)
                    if w == 0:
                        e("s_cmp_lg_u32 s2, 0 ; rare"); e("s_cbranch_scc1 L_nononce ; rare")
                        e("s_memrealtime s[96:97] ; rare"); e("s_waitcnt lgkmcnt(0) ; rare")
                        e("s_or_b32 s96, s96, 1 ; rare"); e("v_mov_b32 v14, s96 ; rare"); e("v_mov_b32 v15, 0 ; rare")
                        e("buffer_store_dword v14, v15, %s, 0 offen sc1 ; rare" % sr(sDBG,4))
                        e.lab("L_nononce")
                        e("v_and_b32 v2, 7, %s" % v(vLane))
                        e("v_lshlrev_b32 v7, 4, v2")
                        e("v_mov_b32 v8, 0x3f803f80"); e("v_mov_b32 v9, v8"); e("v_mov_b32 v10, v8"); e("v_mov_b32 v11, v8")
                        e("ds_write_b128 v7, v[8:11]")
                        e("v_add_u32 v12, %d, v7" % A_SLOT); e("ds_write_b128 v12, v[8:11]")
                        e("v_add_u32 v13, %d, v7" % (2*A_SLOT)); e("ds_write_b128 v13, v[8:11]")
                body, post, side = role_main(pre, tag, cfg, attn_dma_list(w), vDO, w, 136, extra)
            else:
                cfg = ffn_cfg(w)
                body, post, side = role_main(pre, tag, cfg, ffn_dma_list(w), fDO, w, 144, read_addr_setup_ffn, units=("nounits" not in OPTS))
            post("s_branch L_ep_%s" % role)
            out += process_path(pre.L, "L_loop_" + tag, body, post.L)
            out += side
        ep = E()
        if role == "attn": attn_epilogue(ep)
        else: ffn_epilogue(ep)
        last = PE_A if role == "attn" else PE_F
        groups = w2a_groups(5, last) if "ph1only" not in OPTS else []
        nin = (min(ATT_W2A_IN, len(groups)) if role == "attn" else FFN_W2A_IN) if groups else 0
        poll = ["  v_lshlrev_b32 %s, 2, %s" % (v(vPoll), v(vLane)), "  buffer_load_dword %s, %s, %s, %s offen sc1" % (v(vPoll), v(vPoll), sr(sWS,4), s(sFL))]
        lines = ep.L
        if role == "attn" and "nopoll" not in OPTS:
            k = len(lines) - ATT_POLL_BACK
            while lines[k].strip().startswith(("s_cbranch", "s_cselect")) or lines[k-1].strip().startswith(("s_cmp", "v_cmp")): k -= 1
            lines = lines[:k] + poll + lines[k:]
        epl = sprinkle(lines, groups[:nin], start=4, end_gap=(ATT_ENDGAP if role == "attn" else 10)) if nin else lines
        fin = E()
        stamp(fin, 6)
        if role == "attn" and "ph1only" not in OPTS:
            fin("s_mov_b32 %s, 0" % s(sMain))
            for g in groups[nin:]: fin.ext(g)
            ao_setup(fin)
            check_flags(fin, MASK_F, vPoll, "L_att_fast")
            spin_flags(fin, "attf", MASK_F, 250)
            fin.lab("L_att_fast")
            stamp(fin, 7)
            for p in range(DA):
                for g in act_loads(p): fin.ext(["%s ; rare" % t for t in g])
            fin("s_branch L_ph2_main_A")
        else:
            fin("s_mov_b32 %s, 1" % s(sMain))
            if "nopoll" not in OPTS: fin.ext(poll)
            nb = min(W2A_BEFORE_SIG, len(groups) - nin)
            for g in groups[nin:nin+nb]: fin.ext(g)
            fin("s_waitcnt vmcnt(%d)" % nb)
            stamp(fin, 7)
            if "ph1only" in OPTS:
                stamp_flush(fin); fin("s_endpgm")
            else:
                fin("s_barrier")
                signal_rb(fin, role, None)
                for g in groups[nin+nb:]: fin.ext(g)
                fin("s_branch L_ph2")
        if "ep2x" in OPTS:
            rep = E()
            rep("s_waitcnt vmcnt(0) lgkmcnt(0)"); rep("s_barrier")
            stamp(rep, 12)
            rep("s_add_u32 s100, s100, 1"); rep("s_cmp_lt_u32 s100, 2"); rep("s_cbranch_scc1 L_ep_%s" % role)
            epl = epl + rep.L
        out += process_path(["L_ep_%s:" % role, "  s_nop 7", "  s_nop 1"] + epl + fin.L, None, None, [])
    out += phase2()
    out.append("L_end:")
    return out

def kd(name, nfv, accum, sg=102):
    return """.section .rodata,"a"
.p2align 6
.amdhsa_kernel %s
  .amdhsa_next_free_vgpr %d
  .amdhsa_next_free_sgpr %d
  .amdhsa_accum_offset %d
  .amdhsa_group_segment_fixed_size 0
  .amdhsa_kernarg_size 72
  .amdhsa_user_sgpr_count 2
  .amdhsa_user_sgpr_kernarg_segment_ptr 1
  .amdhsa_system_sgpr_workgroup_id_x 1
  .amdhsa_float_denorm_mode_32 3
.end_amdhsa_kernel
""" % (name, nfv, sg, accum)

HEADER = """; Kernarg (72 bytes): [0] A_x [8] A_wqkv [16] A_wo [24] B_x [32] B_w1 [40] B_w2 [48] out [56] debug [64] ws
; @launch grid=(256,1,1) block=(256,1,1) lds=163840
.amdgcn_target "amdgcn-amd-amdhsa--gfx950"
"""
def main():
    if len(sys.argv) > 2: OPTS.update(sys.argv[2].split(","))
    k = top()
    if "noalign" not in OPTS:
        from alignpass import align
        head = '.amdgcn_target "amdgcn-amd-amdhsa--gfx950"\n.text\n.p2align 8\nk:\n'
        k = align(head, k, "\ns_endpgm\nL_codeend:\n")
    txt = HEADER + ".text\n.globl %s\n.p2align 8\n.type %s,@function\n%s:\n" % (KNAME, KNAME, KNAME) + "\n".join(k) + "\ns_endpgm\nL_codeend:\n" + kd(KNAME, 512, 256)
    path = sys.argv[1] if len(sys.argv) > 1 else "out2.s"
    open(path, "w").write(txt)
    print("wrote", path, len(txt), "bytes;", len(k), "lines")
if __name__ == "__main__": main()
```

```python
import sys, struct, os
from irlib import *

KNAME = "parallel_sum__sliding_local_dilated__dense_activation_relu__prompt_kernel"
S_, D_, DFF = 2048, 640, 1728
X_BYTES = S_*D_*2; WQKV_BYTES = D_*3*D_*2; WO_BYTES = D_*D_*2; W1_BYTES = D_*DFF*2; W2_BYTES = DFF*D_*2
NKS = 74
ACT_OFF = 0; ACT_TB = NKS*4096
W2F_OFF = 10*1024*1024; W2F_CB = NKS*5120
RSTD_OFF = 14*1024*1024
STATS_OFF = 14*1024*1024 + 65536
STAMP_OFF = 16*1024*1024
WS_USED = 17*1024*1024
OOB = 0x7F000000
FLAG_OFF = 15*1024*1024
MASK_F, MASK_A, MASK_P = 0x7f, 0xff00, 0xffff0000
SPIN_MAX = 200000
PF_DELAY = int(os.environ.get('PFD', 16))
UNIT_LATE = int(os.environ.get('ULATE', 0))
XL_AT = int(os.environ.get('XLAT', 1))
XL_DELAY = int(os.environ.get('XLD', 0))
SSH = True
OPTS = set()
def f2u(x): return struct.unpack("<I", struct.pack("<f", x))[0]
def v(i): return "v%d" % i
def vr(i, n): return "v[%d:%d]" % (i, i+n-1)
def a(i): return "a%d" % i
def ar(i, n): return "a[%d:%d]" % (i, i+n-1)
def s(i): return "s%d" % i
def sr(i, n): return "s[%d:%d]" % (i, i+n-1)
MFMA = "v_mfma_f32_16x16x32_bf16"

class E:
    def __init__(self): self.L = []
    def __call__(self, t): self.L.append("  " + t)
    def lab(self, t): self.L.append(t + ":")
    def ext(self, lines):
        for t in lines: self.L.append(t if t.startswith("  ") or t.endswith(":") else "  " + t)

sWave = 22
sX, sW, sWS, sDBG = 24, 28, 32, 76
sRB, sCB, sKC, sSoX, sSoW, sDSlot, sRDelta, sIter = 36, 37, 38, 39, 40, 41, 42, 43
sT0, sT1, sT2, sT3 = 46, 47, 48, 49
sM = 50
sTB, sC2, sSig, sWB, sAB, sLA, sLB, sP0, sP1, sRB2 = 80, 81, 82, 83, 84, 85, 86, 87, 88, 89
sKQ = [4,5,6,7,8,9,10,11,12,13,14,15,18,19]
sNonce, sFL = 23, 45
sD0, sD1 = 90, 91
sXO, sXH = 92, 93
vLane = 255
vSt = 247
vPoll = 243
vNon = 252

def stamp(e, i):
    if "stamp" in OPTS:
        e("s_memrealtime s[96:97]"); e("s_memtime s[98:99]"); e("s_waitcnt lgkmcnt(0)")
        e("v_writelane_b32 %s, s96, %d" % (v(vSt), 2*i)); e("v_writelane_b32 %s, s98, %d" % (v(vSt), 2*i+1))
def stamp_flush(e):
    if "stamp" not in OPTS: return
    if "dbgst" in OPTS:
        uid = len(e.L)
        for wg, lst, base in ((0, [3,4,5,6,9,12], 2), (128, [3,4,5,7,9], 8), (240, [4,5,8], 13)):
            lab = "L_ds_%d_%d" % (wg, uid)
            e("s_cmp_lg_u32 s2, %d" % wg); e("s_cbranch_scc1 %s" % lab)
            e("s_cmp_lg_u32 %s, 0" % s(sWave)); e("s_cbranch_scc1 %s" % lab)
            e("v_readlane_b32 s96, %s, 0" % v(vSt))
            for n_, i in enumerate(lst):
                e("v_readlane_b32 s97, %s, %d" % (v(vSt), 2*i))
                e("s_nop 4")
                e("s_sub_u32 s97, s97, s96")
                e("v_mov_b32 v1, s97"); e("v_mov_b32 v2, %d" % (4*(base+n_)))
                e("buffer_store_dword v1, v2, %s, 0 offen" % sr(sDBG,4))
            e.lab(lab)
        return
    e("s_lshl_b32 s3, s2, 2"); e("s_add_u32 s3, s3, %s" % s(sWave)); e("s_lshl_b32 s3, s3, 8")
    e("s_add_u32 s3, s3, %d" % STAMP_OFF)
    e("v_lshlrev_b32 v1, 2, %s" % v(vLane))
    e("buffer_store_dword %s, v1, %s, s3 offen" % (v(vSt), sr(sWS,4)))

def srd(e, base, ptr, nbytes):
    e("s_mov_b32 %s, %s" % (s(base), s(ptr)))
    e("s_and_b32 %s, %s, 0xffff" % (s(base+1), s(ptr+1)))
    e("s_mov_b32 %s, %d" % (s(base+2), nbytes))
    e("s_mov_b32 %s, 0x20000" % s(base+3))

def check_flags(e, mask, val, oklab, rare=""):
    e("v_cmp_eq_u32 vcc, %s, %s%s" % (s(sNonce), v(val), rare))
    e("s_nop 3" + rare)
    e("s_and_b32 %s, vcc_lo, 0x%x%s" % (s(sT0), mask, rare))
    e("s_cmp_eq_u32 %s, 0x%x%s" % (s(sT0), mask, rare))
    e("s_cbranch_scc1 %s%s" % (oklab, rare))
def spin_flags(e, tag, mask, vtmp, have_first=None):
    R = " ; rare"
    if have_first is not None: check_flags(e, mask, have_first, "L_ok_%s" % tag)
    e("s_mov_b32 %s, 0" % s(sT1) + R)
    e("v_lshlrev_b32 %s, 2, %s" % (v(vtmp+1), v(vLane)) + R)
    e.lab("L_spin_%s" % tag)
    e("buffer_load_dword %s, %s, %s, %s offen sc1" % (v(vtmp), v(vtmp+1), sr(sWS,4), s(sFL)) + R)
    e("s_waitcnt vmcnt(0)" + R)
    check_flags(e, mask, vtmp, "L_ok_%s" % tag, R)
    e("s_sleep %d" % FSLEEP + R)
    e("s_add_u32 %s, %s, 1" % (s(sT1), s(sT1)) + R)
    e("s_cmp_lt_u32 %s, %d" % (s(sT1), SPIN_MAX) + R)
    e("s_cbranch_scc1 L_spin_%s" % tag + R)
    e.lab("L_ok_%s" % tag)
def get_nonce(e, tag, vtmp, have_first=None):
    R = " ; rare"
    if have_first is not None:
        e("v_readfirstlane_b32 %s, %s" % (s(sNonce), v(have_first)))
        e("s_nop 3")
        e("s_cmp_lg_u32 %s, 0" % s(sNonce))
        e("s_cbranch_scc1 L_nok_%s" % tag)
    e("s_mov_b32 %s, 0" % s(sT1) + R)
    e("v_mov_b32 %s, 0" % v(vtmp+1) + R)
    e.lab("L_nspin_%s" % tag)
    e("buffer_load_dword %s, %s, %s, 0 offen sc1" % (v(vtmp), v(vtmp+1), sr(sDBG,4)) + R)
    e("s_waitcnt vmcnt(0)" + R)
    e("v_readfirstlane_b32 %s, %s" % (s(sNonce), v(vtmp)) + R)
    e("s_nop 3" + R)
    e("s_cmp_lg_u32 %s, 0" % s(sNonce) + R)
    e("s_cbranch_scc1 L_nok_%s" % tag + R)
    e("s_sleep 8" + R)
    e("s_add_u32 %s, %s, 1" % (s(sT1), s(sT1)) + R)
    e("s_cmp_lt_u32 %s, %d" % (s(sT1), SPIN_MAX) + R)
    e("s_cbranch_scc1 L_nspin_%s" % tag + R)
    e.lab("L_nok_%s" % tag)
def signal_rb(e, tag, word_sgpr_expr, vt=(1, 2)):
    e("s_cmp_lg_u32 %s, 0" % s(sWave))
    e("s_cbranch_scc1 L_nosig_%s" % tag)
    R = " ; rare"
    e("s_and_b32 %s, %s, 1" % (s(sT0), s(sRB)) + R)
    e("s_lshl_b32 %s, %s, 4" % (s(sT0), s(sT0)) + R)
    a_, b_ = v(vt[0]), v(vt[1])
    e("v_add_u32 %s, %s, %s" % (a_, s(sT0), v(vLane)) + R)
    e("v_lshlrev_b32 %s, 3, %s" % (a_, a_) + R)
    e("s_lshr_b32 %s, %s, 1" % (s(sT0), s(sRB)) + R)
    e("v_add_u32 %s, %s, %s" % (a_, s(sT0), a_) + R)
    e("v_lshlrev_b32 %s, 7, %s" % (a_, a_) + R)
    e("s_lshl_b32 %s, %s, 2" % (s(sT0), s(sSig)) + R)
    e("s_add_u32 %s, %s, %d" % (s(sT0), s(sT0), FLAG_OFF) + R)
    e("v_mov_b32 %s, %s" % (b_, s(sNonce)) + R)
    e("s_mov_b32 exec_lo, 0xffff" + R); e("s_mov_b32 exec_hi, 0" + R)
    e("buffer_store_dword %s, %s, %s, %s offen sc1" % (b_, a_, sr(sWS,4), s(sT0)) + R)
    e("s_mov_b64 exec, -1" + R)
    e.lab("L_nosig_%s" % tag)

class Cfg: pass

def chunk_body(cfg, dma, last=False, rolled_tag=None, closing_vm=None, first_vm=None):
    NT = cfg.ntile; NF = 2*NT; R = cfg.ring; L = cfg.look; TAIL = cfg.tail
    assert NF % R == 0
    wreg = lambda f: cfg.wbase + (f % R)*4
    def wreads(f):
        kh, c = divmod(f % NF, NT); return cfg.wread(kh, c, wreg(f))
    def mf(f):
        kh, c = divmod(f % NF, NT); return cfg.mf(kh, c, wreg(f))
    NFIRST = cfg.nfirst
    items = []
    for f in range(0, NF - TAIL):
        g = f + L
        rd = wreads(g) if NFIRST <= g < NF else []
        if f == cfg.xread1_at: rd = rd + cfg.xreads(1)
        ms = []
        if f == 0 and "nostats" not in OPTS and not SSH: ms += cfg.stats(0)
        if f == NT and "nostats" not in OPTS and not SSH: ms += cfg.stats(1)
        ms += mf(f)
        items.append((rd, ms))
    issued = set(range(NFIRST)) | {f + L for f in range(0, NF - TAIL) if NFIRST <= f + L < NF}
    assert issued == set(range(NF)), (sorted(set(range(NF)) - issued))
    nm = sum(len(m) for _, m in items)
    out = []
    nd = len(dma)
    st = cfg.dma_start + cfg.dma_skew; en = nm - cfg.dma_endgap
    pos = [st + (en - st)*i // max(nd, 1) for i in range(nd)]
    cnt = 0; di = 0
    for rd, ms in items:
        rq = list(rd)
        for k, m in enumerate(ms):
            if rq:
                take = (len(rq) + (len(ms) - k) - 1) // (len(ms) - k)
                for _ in range(take): out.append(rq.pop(0))
            out.append(m); cnt += 1
            while di < nd and pos[di] <= cnt:
                out += dma[di]; di += 1
    assert di == nd
    if closing_vm is None: out.append("s_waitcnt lgkmcnt(0)")
    elif first_vm is not None:
        out.append("s_cmp_eq_u32 %s, 0" % s(sIter))
        out.append("s_cbranch_scc1 L_first_%s" % rolled_tag)
        out.append("s_waitcnt vmcnt(%d) lgkmcnt(0)" % closing_vm)
        out.append("L_join_%s:" % rolled_tag)
    else: out.append("s_waitcnt vmcnt(%d) lgkmcnt(0)" % closing_vm)
    out.append("s_barrier")
    aux = []
    if not last:
        aux += cfg.addr_update + cfg.xreads(0)
        for f in range(NFIRST): aux += wreads(f)
    if rolled_tag: aux += cfg.scal_update
    tail = []
    for f in range(NF - TAIL, NF): tail += mf(f)
    per = -(-len(aux) // max(len(tail), 1))
    for m in tail:
        out.append(m)
        for _ in range(per):
            if aux: out.append(aux.pop(0))
    out += aux
    if rolled_tag:
        out.append("s_cbranch_scc1 L_loop_%s" % rolled_tag)
    return ["  ; lgextra %d" % int(os.environ.get("LGX", 2))] + [t if t.endswith(":") else "  " + t for t in out] + ["  ; lgextra 0"]

sCp, sCm = 94, 95
def scal_update(slot, wstep, halo=False):
    t = []
    if "rotk" in OPTS:
        t.append("s_add_u32 %s, %s, 1" % (s(sKC), s(sKC)))
        t.append("s_cmp_eq_u32 %s, 10" % s(sKC))
        t.append("s_cselect_b32 %s, 0, %s" % (s(sKC), s(sKC)))
        t.append("s_lshl_b32 %s, %s, 7" % (s(sSoX), s(sKC)))
        t.append("s_mul_i32 %s, %s, %d" % (s(sSoW), s(sKC), wstep))
    else:
        t.append("s_add_u32 %s, %s, 128" % (s(sSoX), s(sSoX)))
        t.append("s_add_u32 %s, %s, %d" % (s(sSoW), s(sSoW), wstep))
    t.append("s_cmp_eq_u32 %s, %d" % (s(sDSlot), 2*slot))
    t.append("s_cselect_b32 %s, %s, %s" % (s(sRDelta), s(sCm), s(sCp)))
    t.append("s_add_u32 %s, %s, %s" % (s(sDSlot), s(sDSlot), s(sRDelta)))
    t.append("s_add_u32 %s, %s, 1" % (s(sIter), s(sIter)))
    t.append("s_cmp_lt_u32 %s, 8" % s(sIter))
    return t
def addr_update(slot, regs):
    t = []
    t.append("s_cmp_eq_u32 %s, %d" % (s(sDSlot), slot))
    t.append("s_cselect_b32 %s, %s, %s" % (s(sRDelta), s(sCm), s(sCp)))
    for r in regs: t.append("v_add_u32 %s, %s, %s" % (v(r), s(sRDelta), v(r)))
    return t

vL16, vL16b = 241, 245
def w2_soff(p, dst):
    if p < 14: return ["s_mul_i32 %s, %s, 5" % (s(dst), s(sKQ[p])), "s_add_u32 %s, %s, %s" % (s(dst), s(dst), s(sWB))]
    return ["s_mul_i32 %s, %s, 5120" % (s(dst), s(sWave)), "s_add_u32 %s, %s, %s" % (s(dst), s(dst), s(sWB)),
            "s_add_u32 %s, %s, %d" % (s(dst), s(dst), 4*(p-14)*5120)]
def w2l_groups(q0, q1):
    G = []
    for q in range(q0, q1):
        p, ct = divmod(q, 5)
        g = []
        if ct == 0 or q == q0: g += w2_soff(p, sP0)
        g.append("s_add_u32 m0, %s, %d" % (s(sLA if q < 12 else sLB), (q if q < 12 else q - 12)*1024))
        g.append("s_add_u32 %s, %s, %d" % (s(sP1), s(sP0), ct*1024))
        g.append("buffer_load_dwordx4 %s, %s, %s offen sc1 lds" % (v(vL16), sr(sWS,4), s(sP1)))
        G.append(g)
    return G
def w2a_groups(p0, p1):
    G = []
    for p in range(p0, p1):
        base = ((p - 5) % 12)*20
        for ct in range(5):
            g = []
            if ct == 0: g += w2_soff(p, sP0)
            if ct < 4: g.append("buffer_load_dwordx4 %s, %s, %s, %s offen offset:%d sc1" % (ar(base+4*ct,4), v(vL16), sr(sWS,4), s(sP0), ct*1024))
            else:      g.append("buffer_load_dwordx4 %s, %s, %s, %s offen sc1" % (ar(base+16,4), v(vL16b), sr(sWS,4), s(sP0)))
            G.append(g)
    return G
def ph2_setup(e, slot):
    e("s_and_b32 %s, s2, 7" % s(sT0))
    e("s_lshr_b32 %s, s2, 3" % s(sT1))
    e("s_lshr_b32 %s, %s, 3" % (s(sTB), s(sT1)))
    e("s_lshl_b32 %s, %s, 2" % (s(sT0), s(sT0)))
    e("s_add_u32 %s, %s, %s" % (s(sTB), s(sTB), s(sT0)))
    e("s_and_b32 %s, %s, 7" % (s(sC2), s(sT1)))
    e("s_lshr_b32 %s, %s, 1" % (s(sRB2), s(sTB)))
    e("s_lshl_b32 %s, %s, 2" % (s(sRB2), s(sRB2)))
    e("s_mul_i32 %s, %s, %d" % (s(sWB), s(sC2), W2F_CB))
    if "fakecb" in OPTS: e("s_mov_b32 %s, 0" % s(sWB))
    e("s_add_u32 %s, %s, %d" % (s(sWB), s(sWB), W2F_OFF))
    e("s_mul_i32 %s, %s, %d" % (s(sAB), s(sTB), ACT_TB))
    if "faketb" in OPTS: e("s_and_b32 %s, s2, 7" % s(sAB)); e("s_mul_i32 %s, %s, %d" % (s(sAB), s(sAB), ACT_TB))
    if ACT_OFF: e("s_add_u32 %s, %s, %d" % (s(sAB), s(sAB), ACT_OFF))
    e("s_mul_i32 %s, %s, 12288" % (s(sLA), s(sWave)))
    e("s_add_u32 %s, %s, %d" % (s(sLA), s(sLA), slot))
    e("s_mul_i32 %s, %s, 13312" % (s(sLB), s(sWave)))
    e("s_add_u32 %s, %s, %d" % (s(sLB), s(sLB), 2*slot))
    e("s_mul_i32 %s, %s, 7" % (s(sT0), s(sC2)))
    e("s_lshr_b32 %s, %s, 2" % (s(sT0), s(sT0)))
    e("s_and_b32 %s, %s, 3" % (s(sT1), s(sTB)))
    e("s_mul_i32 %s, %s, 7" % (s(sT1), s(sT1)))
    e("s_lshr_b32 %s, %s, 1" % (s(sT1), s(sT1)))
    e("s_add_u32 %s, %s, %s" % (s(sT0), s(sT0), s(sT1)))
    e("s_sub_u32 %s, %s, 14" % (s(sT1), s(sT0)))
    e("s_cmp_ge_u32 %s, 14" % s(sT0))
    e("s_cselect_b32 %s, %s, %s" % (s(sT0), s(sT1), s(sT0)))
    e("s_lshl_b32 %s, %s, 2" % (s(sT0), s(sT0)))
    e("s_add_u32 %s, %s, %s" % (s(sT0), s(sT0), s(sWave)))
    e("s_add_u32 %s, %s, 20" % (s(sT0), s(sT0)))
    for p in range(14):
        e("s_lshl_b32 %s, %s, 10" % (s(sKQ[p]), s(sT0)))
        e("s_cmp_ge_u32 %s, %d" % (s(sT0), NKS))
        e("s_cselect_b32 %s, 0x10000000, %s" % (s(sKQ[p]), s(sKQ[p])))
        if p < 13:
            e("s_add_u32 %s, %s, 4" % (s(sT0), s(sT0)))
            e("s_sub_u32 %s, %s, 56" % (s(sT1), s(sT0)))
            e("s_cmp_ge_u32 %s, 76" % s(sT0))
            e("s_cselect_b32 %s, %s, %s" % (s(sT0), s(sT1), s(sT0)))
    e("v_add_u32 %s, 4096, %s" % (v(vL16b), v(vL16)))
    e("s_lshl_b32 %s, s2, 7" % s(sFL))
    e("s_add_u32 %s, %s, %d" % (s(sFL), s(sFL), FLAG_OFF))

vZero = 249

A_SLOT = 53248; A_XB = 18432; A_WPAIR = 1088
A_XJ = [[0,1,2,3,4],[5,6,7,8,9],[10,11,12,13],[14,15,16,17]]
vWA, vX0, vX1 = 160, 161, 162
vXE, vXOd, vWL = 163, 164, 165
aW, aXF, aONE = 0, 40, 240
aST = 244
def acc_own(T, c): return (T*15 + c)*4
def acc_halo(eidx): return 120 + eidx*4
vSumT = [136, 140]; vSqT = [144, 148]; vSumH, vSqH = 152, 156
def xf(kh, T): return aXF + (kh*3 + T)*4

def x_lane_setup(e, vE, vO):
    e("v_lshrrev_b32 v1, 3, %s" % v(vLane))
    e("v_and_b32 v2, 7, %s" % v(vLane))
    e("v_lshrrev_b32 v3, 4, %s" % v(vLane))
    e("v_mul_u32_u24 v4, 1280, v1")
    e("v_xor_b32 v5, v2, v3")
    e("v_lshl_add_u32 %s, v5, 4, v4" % v(vE))
    e("v_xor_b32 %s, 64, %s" % (v(vO), v(vE)))

def attn_lane_setup(e):
    x_lane_setup(e, vXE, vXOd)
    e("v_cmp_le_u32 vcc, 30, %s" % v(vLane))
    e("v_mov_b32 v9, 0x40000000")
    e("v_cndmask_b32_e64 v6, 0, 1, vcc")
    e("v_cmp_le_u32 vcc, 60, %s" % v(vLane))
    e("v_mul_u32_u24 v7, 30, v6")
    e("v_sub_u32 v7, %s, v7" % v(vLane))
    e("v_mul_u32_u24 v8, 26, v7")
    e("v_lshrrev_b32 v8, 8, v8")
    e("v_mul_u32_u24 v8, 1120, v8")
    e("v_mul_u32_u24 v6, 3840, v6")
    e("v_lshlrev_b32 v7, 4, v7")
    e("v_add3_u32 v6, v6, v7, v8")
    e("s_mul_i32 %s, %s, 160" % (s(sT0), s(sCB)))
    e("v_add_u32 v6, %s, v6" % s(sT0))
    e("v_cndmask_b32_e64 %s, v6, v9, vcc" % v(vWL))

vDO = 166
def attn_dma_list(w):
    L = []
    for grp in ([[0,1],[2,3,4]], [[5,6,7,8],[9]], [[10,11,12,13]], [[14,15,16,17]])[w]:
        for m, j in enumerate(grp):
            imm = m*1024
            L.append(("x", j*1024 if m == 0 else None, imm, vXOd if j & 1 else vXE, (j*8*1280 if j < 2 else (j-2)*8*1280) - imm, j < 2, w == 0 and j == 0))
    kh = w >> 1; rd = w & 1
    for m in range(8):
        k = 32*kh + 8*(m >> 1) + 4*rd + 2*(m & 1)
        L.append(("w", A_XB + (8*w + m)*A_WPAIR if m % 4 == 0 else None, (m & 3)*A_WPAIR, vWL, k*3840 - (m & 3)*A_WPAIR, False, False))
    return L
def ffn_dma_list(w):
    L = []
    for m in range(4):
        j = 4*w + m
        L.append(("x", 4*w*1024 if m == 0 else None, m*1024, fXOd if j & 1 else fXE, j*8*1280 - m*1024, False, False))
    for m in range(8):
        kh, grp = m >> 2, m & 3
        k = 32*kh + 16*(grp & 1) + 4*(grp >> 1)
        L.append(("w", F_XB + w*8192 + m*1024 if m % 4 == 0 else None, (m & 3)*1024, fWL, k*3456 + w*128 - (m & 3)*1024, False, False))
    return L
def dma_groups_salu(L):
    G = []; tmp = [sD0, sD1]
    for n, (kind, m0c, imm, lane, uc, halo, mask) in enumerate(L):
        g = []; t = tmp[n & 1]
        if m0c is not None: g.append("s_add_u32 m0, %s, %d" % (s(sDSlot), m0c))
        if kind == "x":
            g.append("s_add_u32 %s, %s, %s" % (s(t), s(sSoX), s(sXH if halo else sXO)))
            if uc: g.append("s_add_u32 %s, %s, %d" % (s(t), s(t), uc))
        else: g.append("s_add_u32 %s, %s, %d" % (s(t), s(sSoW), uc))
        if mask: g.append("s_mov_b32 exec_lo, 0xffffff00")
        g.append("buffer_load_dwordx4 %s, %s, %s offen offset:%d lds" % (v(lane), sr(sX if kind == "x" else sW,4), s(t), imm))
        if mask: g.append("s_mov_b32 exec_lo, -1")
        G.append(g)
    return G
def dma_offsets_setup(e, L, base):
    for n, (kind, m0c, imm, lane, uc, halo, mask) in enumerate(L):
        if kind == "x":
            e("s_add_u32 %s, %s, %d" % (s(sD0), s(sXH if halo else sXO), uc))
            e("v_add_u32 %s, %s, %s" % (v(base+n), s(sD0), v(lane)))
        else:
            e("v_add_u32 %s, %d, %s" % (v(base+n), uc, v(lane)))
def dma_groups_vgpr(L, base):
    G = []
    for n, (kind, m0c, imm, lane, uc, halo, mask) in enumerate(L):
        g = []
        if m0c is not None:
            m0 = "s_add_u32 m0, %s, %d" % (s(sDSlot), m0c)
            if G: G[-1].append(m0)
            else: G.append([m0])
        if mask: g.append("s_mov_b32 exec_lo, 0xffffff00")
        g.append("buffer_load_dwordx4 %s, %s, %s offen offset:%d lds" % (v(base+n), sr(sX if kind == "x" else sW,4), s(sSoX if kind == "x" else sSoW), imm))
        if mask: g.append("s_mov_b32 exec_lo, -1")
        G.append(g)
    return G

def attn_cfg(w):
    cfg = Cfg()
    cfg.ntile = 15; cfg.ring = 10; cfg.look = int(os.environ.get('LOOK', 6)); cfg.tail = int(os.environ.get('TAILA', 4)); cfg.nfirst = cfg.look; cfg.wbase = aW
    H = {w: 0, 5 + w: 1, 10 + w: 2}
    if w < 3: H[(4, 9, 14)[w]] = 3
    def wread(kh, c, reg):
        off = kh*16*A_WPAIR + 32*c
        return ["ds_read_b64_tr_b16 %s, %s offset:%d" % (ar(reg,2), v(vWA), off),
                "ds_read_b64_tr_b16 %s, %s offset:%d" % (ar(reg+2,2), v(vWA), off + 8*A_WPAIR)]
    def mf(kh, c, reg):
        out = []
        for T in (0, 1):
            d = vr(acc_own(T, c), 4)
            if c < 10: out.append("%s %s, %s, %s, %s" % (MFMA, d, ar(reg,4), ar(xf(kh,T),4), d))
            else:      out.append("%s %s, %s, %s, %s" % (MFMA, d, ar(xf(kh,T),4), ar(reg,4), d))
        if c in H and "nohalo" not in OPTS:
            d = vr(acc_halo(H[c]), 4)
            if c < 10: out.append("%s %s, %s, %s, %s" % (MFMA, d, ar(reg,4), ar(xf(kh,2),4), d))
            else:      out.append("%s %s, %s, %s, %s" % (MFMA, d, ar(xf(kh,2),4), ar(reg,4), d))
        return out
    def stats(kh):
        out = []
        for T in (0, 1):
            out.append("%s %s, %s, %s, %s" % (MFMA, vr(vSumT[T],4), ar(aONE,4), ar(xf(kh,T),4), vr(vSumT[T],4)))
            out.append("%s %s, %s, %s, %s" % (MFMA, vr(vSqT[T],4), ar(xf(kh,T),4), ar(xf(kh,T),4), vr(vSqT[T],4)))
        if w == 3:
            out.append("%s %s, %s, %s, %s" % (MFMA, vr(vSumH,4), ar(aONE,4), ar(xf(kh,2),4), vr(vSumH,4)))
            out.append("%s %s, %s, %s, %s" % (MFMA, vr(vSqH,4), ar(xf(kh,2),4), ar(xf(kh,2),4), vr(vSqH,4)))
        return out
    def xreads(kh):
        ad = vX1 if kh else vX0
        return ["ds_read_b128 %s, %s offset:%d" % (ar(xf(kh,0),4), v(ad), (1+2*w)*2048),
                "ds_read_b128 %s, %s offset:%d" % (ar(xf(kh,1),4), v(ad), (2+2*w)*2048),
                "ds_read_b128 %s, %s offset:%d" % (ar(xf(kh,2),4), v(ad), 0)]
    cfg.wread = wread; cfg.mf = mf; cfg.stats = stats; cfg.xreads = xreads
    cfg.xread1_at = 4
    cfg.addr_update = addr_update(A_SLOT, [vWA, vX0, vX1])
    cfg.scal_update = scal_update(A_SLOT, 64*3840, halo=(w == 0))
    cfg.dma_start = int(os.environ.get('DST', 2)); cfg.dma_skew = w*int(os.environ.get('DSK', 1)); cfg.dma_endgap = int(os.environ.get('DEG', 8))
    cfg.wstep = 64*3840; cfg.slot = A_SLOT
    return cfg

def xaddr_setup(e, X0, X1, base):
    e("v_and_b32 v1, 15, %s" % v(vLane))
    e("v_lshrrev_b32 v4, 4, %s" % v(vLane))
    e("v_lshrrev_b32 v2, 1, v1")
    e("v_xor_b32 v2, v2, v4")
    e("v_lshlrev_b32 v2, 4, v2")
    e("v_lshl_add_u32 v2, v1, 7, v2")
    e("v_add_u32 %s, %d, v2" % (v(X0), base))
    e("v_xor_b32 v2, 64, v2")
    e("v_add_u32 %s, %d, v2" % (v(X1), base))

def read_addr_setup_attn(e):
    e("v_and_b32 v1, 15, %s" % v(vLane))
    e("v_lshrrev_b32 v2, 2, v1")
    e("v_and_b32 v3, 3, v1")
    e("v_lshrrev_b32 v4, 4, %s" % v(vLane))
    e("v_lshrrev_b32 v5, 1, v2")
    e("v_lshl_add_u32 v5, v4, 1, v5")
    e("v_mul_u32_u24 v5, %d, v5" % A_WPAIR)
    e("v_and_b32 v2, 1, v2")
    e("v_mul_u32_u24 v2, 480, v2")
    e("v_lshlrev_b32 v3, 3, v3")
    e("v_add3_u32 v5, v5, v2, v3")
    e("v_add_u32 %s, %d, v5" % (v(vWA), A_XB))
    xaddr_setup(e, vX0, vX1, 0)

sSzO, sSz2 = 69, 70

def attn_first_dma(e, nchunks=2):
    e("s_and_b32 %s, %s, 1" % (s(sT0), s(sWave)))
    e("s_cmp_eq_u32 %s, 1" % s(sT0))
    e("s_cselect_b32 %s, 64, 0" % s(sT1))
    e("v_xor_b32 v10, %s, %s" % (s(sT1), v(vXE)))
    e("s_mul_i32 %s, %s, 10240" % (s(sT1), s(sWave)))
    e("s_add_u32 %s, %s, %s" % (s(sT2), s(sXH), s(sT1)))
    e("s_add_u32 %s, %s, %s" % (s(sT3), s(sXO), s(sT1)))
    e("s_sub_u32 %s, %s, 20480" % (s(sT3), s(sT3)))
    e("s_cmp_lt_u32 %s, 2" % s(sWave))
    e("s_cselect_b32 %s, %s, %s" % (s(sD0), s(sT2), s(sT3)))
    e("s_cselect_b32 %s, 0, 0x%x" % (s(sD1), OOB))
    e("s_cmp_eq_u32 %s, 0" % s(sWave))
    e("s_cselect_b32 %s, 0xffffff00, -1" % s(sP1))
    e("s_lshl_b32 %s, %s, 10" % (s(sP0), s(sWave)))
    e("s_lshr_b32 %s, %s, 1" % (s(sT1), s(sWave))); e("s_lshl_b32 %s, %s, 5" % (s(sT1), s(sT1)))
    e("s_lshl_b32 %s, %s, 2" % (s(sT0), s(sT0))); e("s_add_u32 %s, %s, %s" % (s(sT1), s(sT1), s(sT0)))
    e("s_mul_i32 %s, %s, 3840" % (s(sT1), s(sT1)))
    e("s_mul_i32 %s, %s, %d" % (s(sT0), s(sWave), 8*A_WPAIR))
    for ch in range(nchunks):
        slot = ch*A_SLOT
        e("s_lshl_b32 %s, %s, 7" % (s(sSoX), s(sKC)))
        e("s_mul_i32 %s, %s, %d" % (s(sSoW), s(sKC), 64*3840))
        e("s_add_u32 %s, %s, %s" % (s(sSoW), s(sSoW), s(sT1)))
        for m in range(5):
            if m == 0:
                e("s_add_u32 %s, %s, %s" % (s(sT2), s(sD0), s(sSoX)))
                e("s_add_u32 m0, %s, %d" % (s(sP0), slot))
                e("s_mov_b32 exec_lo, %s" % s(sP1))
            else:
                e("s_add_u32 %s, %s, %s" % (s(sT2), s(sT3), s(sSoX)))
                e("s_add_u32 %s, %s, %d" % (s(sT2), s(sT2), m*4*10240))
                if m == 4:
                    e("s_add_u32 %s, %s, %s" % (s(sT2), s(sT2), s(sD1)))
                    e("s_add_u32 %s, %s, %d" % (s(sIter), s(sP0), slot + m*4096))
                    e("s_cmp_lt_u32 %s, 2" % s(sWave))
                    e("s_cselect_b32 m0, %s, %d" % (s(sIter), 161792))
                else: e("s_add_u32 m0, %s, %d" % (s(sP0), slot + m*4096))
                e("s_nop 0")
            e("buffer_load_dwordx4 v10, %s, %s offen lds" % (sr(sX,4), s(sT2)))
            if m == 0: e("s_mov_b32 exec_lo, -1")
        for m in range(8):
            if m % 4 == 0: e("s_add_u32 m0, %s, %d" % (s(sT0), slot + A_XB + m*A_WPAIR))
            k = 8*(m >> 1) + 2*(m & 1)
            e("s_add_u32 %s, %s, %d" % (s(sT2), s(sSoW), k*3840 - (m & 3)*A_WPAIR))
            e("buffer_load_dwordx4 %s, %s, %s offen offset:%d lds" % (v(vWL), sr(sW,4), s(sT2), (m & 3)*A_WPAIR))
        e("s_add_u32 %s, %s, 1" % (s(sKC), s(sKC)))
        if "rotk" in OPTS:
            e("s_cmp_eq_u32 %s, 10" % s(sKC))
            e("s_cselect_b32 %s, 0, %s" % (s(sKC), s(sKC)))
    return 13
def ffn_first_dma(e, nchunks=2):
    e("s_mul_i32 %s, %s, %d" % (s(sT3), s(sWave), 4*10240))
    e("s_add_u32 %s, %s, %s" % (s(sT3), s(sT3), s(sXO)))
    e("s_lshl_b32 %s, %s, 12" % (s(sP0), s(sWave)))
    e("s_lshl_b32 %s, %s, 7" % (s(sT1), s(sWave)))
    e("s_lshl_b32 %s, %s, 13" % (s(sT0), s(sWave)))
    for ch in range(nchunks):
        slot = ch*F_SLOT
        e("s_lshl_b32 %s, %s, 7" % (s(sSoX), s(sKC)))
        e("s_add_u32 %s, %s, %s" % (s(sSoX), s(sSoX), s(sT3)))
        e("s_mul_i32 %s, %s, %d" % (s(sSoW), s(sKC), 64*3456))
        e("s_add_u32 %s, %s, %s" % (s(sSoW), s(sSoW), s(sT1)))
        e("s_add_u32 m0, %s, %d" % (s(sP0), slot))
        for m in range(4):
            e("s_add_u32 %s, %s, %d" % (s(sT2), s(sSoX), m*10240 - m*1024))
            e("buffer_load_dwordx4 %s, %s, %s offen offset:%d lds" % (v(fXOd if m & 1 else fXE), sr(sX,4), s(sT2), m*1024))
        for m in range(8):
            kh, grp = m >> 2, m & 3
            k = 32*kh + 16*(grp & 1) + 4*(grp >> 1)
            if m % 4 == 0: e("s_add_u32 m0, %s, %d" % (s(sT0), slot + F_XB + m*1024))
            e("s_add_u32 %s, %s, %d" % (s(sT2), s(sSoW), k*3456 - (m & 3)*1024))
            e("buffer_load_dwordx4 %s, %s, %s offen offset:%d lds" % (v(fWL), sr(sW,4), s(sT2), (m & 3)*1024))
        e("s_add_u32 %s, %s, 1" % (s(sKC), s(sKC)))
        if "rotk" in OPTS:
            e("s_cmp_eq_u32 %s, 10" % s(sKC))
            e("s_cselect_b32 %s, 0, %s" % (s(sKC), s(sKC)))
    return 12

sQ = 72
vPFo, vPFd = 182, 183
def coop_setup(e, w):
    e("s_lshr_b32 %s, s2, 3" % s(sT0)); e("s_sub_u32 %s, %s, 16" % (s(sT0), s(sT0)))
    e("s_and_b32 %s, s2, 1" % s(sT1))
    e("s_and_b32 %s, s2, 7" % s(sT2)); e("s_lshr_b32 %s, %s, 1" % (s(sT2), s(sT2)))
    e("v_mov_b32 v3, 0x40000000")
    if w < 2:
        e("s_mul_i32 %s, %s, 75" % (s(sT0), s(sT0)))
        e("s_lshl_b32 %s, %s, 10" % (s(sT1), s(sT1)))
        e("s_add_u32 %s, %s, %s" % (s(sT0), s(sT0), s(sT1)))
        e("s_add_u32 %s, %s, %d" % (s(sT0), s(sT0), (38*w - 16) & 0xffffffff))
        e("v_add_u32 v1, %s, %s" % (s(sT0), v(vLane)))
        e("v_max_i32 v1, 0, v1")
        e("v_mul_u32_u24 v1, 1280, v1")
        e("v_cmp_gt_u32 vcc, 38, %s" % v(vLane))
    elif w == 2:
        e("s_mul_i32 %s, %s, 42" % (s(sT0), s(sT0)))
        e("v_add_u32 v1, %s, %s" % (s(sT0), v(vLane)))
        e("v_mul_u32_u24 v2, 7282, v1"); e("v_lshrrev_b32 v2, 16, v2")
        e("v_mul_u32_u24 v4, 9, v2"); e("v_sub_u32 v4, v1, v4")
        e("v_mul_u32_u24 v5, 86, v4"); e("v_lshrrev_b32 v5, 8, v5")
        e("v_mul_u32_u24 v6, 3, v5"); e("v_sub_u32 v6, v4, v6")
        e("s_mul_i32 %s, %s, 320" % (s(sT2), s(sT2))); e("s_lshr_b32 %s, %s, 7" % (s(sT2), s(sT2)))
        e("v_add_u32 v6, %s, v6" % s(sT2))
        e("v_mul_u32_u24 v1, 3840, v2"); e("v_mul_u32_u24 v5, 1280, v5")
        e("v_lshl_add_u32 v1, v6, 7, v1"); e("v_add_u32 v1, v1, v5")
        e("v_cmp_gt_u32 vcc, 42, %s" % v(vLane))
    else:
        e("s_mul_i32 %s, %s, 55" % (s(sT0), s(sT0)))
        e("v_add_u32 v1, %s, %s" % (s(sT0), v(vLane)))
        e("v_mul_u32_u24 v2, 5462, v1"); e("v_lshrrev_b32 v2, 16, v2")
        e("v_mul_u32_u24 v4, 12, v2"); e("v_sub_u32 v4, v1, v4")
        e("s_mul_i32 %s, %s, 14" % (s(sT2), s(sT2))); e("s_lshr_b32 %s, %s, 3" % (s(sT2), s(sT2))); e("s_lshl_b32 %s, %s, 2" % (s(sT2), s(sT2)))
        e("v_add_u32 v4, %s, v4" % s(sT2))
        e("v_mul_u32_u24 v1, 3456, v2"); e("v_lshl_add_u32 v1, v4, 7, v1")
        e("v_cmp_gt_u32 vcc, 55, %s" % v(vLane))
    e("v_cndmask_b32_e64 %s, v3, v1, vcc" % v(vPFo))
COOP_D = 4
sSoQ = 44
def coop_load(w, extra_chunks):
    if w < 2: return ["buffer_load_dword %s, %s, %s, %s offen offset:%d ; rare" % (v(vPFd), v(vPFo), sr(sX,4), s(sSoX), 128*extra_chunks)]
    st_ = 64*3840 if w == 2 else 64*3456
    return ["s_add_u32 %s, %s, %d" % (s(sD1), s(sSoQ if w == 2 else sSoW), extra_chunks*st_),
            "buffer_load_dword %s, %s, %s, %s offen ; rare" % (v(vPFd), v(vPFo), sr(sQ if w == 2 else sW,4), s(sD1))]
def zero_acc(e, n):
    for i in range(4): e("v_mov_b32 %s, 0" % v(246 if False else 232+i))
    k = 0
    while k + 16 <= n:
        e("v_mfma_f32_32x32x16_bf16 %s, v[232:235], v[232:235], 0" % vr(k,16)); k += 16
    while k < n:
        e("v_mov_b32 %s, 0" % v(k)); k += 1
def role_main(e, tag, cfg, L, dobase, w, zero_n, extra_pre=None, units=False):
    wstep, slot = cfg.wstep, cfg.slot
    nd = len(L)
    coop = tag.startswith("ffn") and "coop" in OPTS
    def set_soff():
        e("s_lshl_b32 %s, %s, 7" % (s(sSoX), s(sKC)))
        e("s_mul_i32 %s, %s, %d" % (s(sSoW), s(sKC), wstep))
    def adv():
        e("s_add_u32 %s, %s, 1" % (s(sKC), s(sKC)))
        if "rotk" in OPTS:
            e("s_cmp_eq_u32 %s, 10" % s(sKC))
            e("s_cselect_b32 %s, 0, %s" % (s(sKC), s(sKC)))
    npro = 13 if tag.startswith("attn") else 12
    e("v_lshlrev_b32 %s, 4, %s" % (v(vL16), v(vLane)))
    if units:
        unit_setup_dyn(e)
        e("s_mov_b32 %s, %d" % (s(sSzO), WO_BYTES)); e("s_mov_b32 %s, %d" % (s(sSz2), W2_BYTES))
        e("s_mov_b32 %s, %d" % (s(sUl), 3*slot))
        if 'late1' not in OPTS: unit_loads_dyn(e)
    npre = 0
    if coop:
        coop_setup(e, w)
        if w == 2: e("s_mov_b32 %s, %d" % (s(sSoQ), 64*3840))
        for x in range(1, COOP_D + 1):
            e.ext(coop_load(w, x)); npre += 1
    if extra_pre: extra_pre(e)
    dma_offsets_setup(e, L, dobase)
    zero_acc(e, zero_n)
    e("v_mov_b32 v254, 0x3f803f80")
    for i in range(4): e("v_accvgpr_write_b32 %s, v254" % a(aONE+i))
    e("v_mov_b32 %s, 0" % v(vZero))
    nyoung = npro + npre + (3 if units else 0)
    if "late1" in OPTS:
        set_soff()
        e("s_mov_b32 %s, %d" % (s(sDSlot), slot))
        for g in dma_groups_vgpr(L, dobase): e.ext(g)
        adv()
        nyoung = nd
        if units:
            unit_loads_dyn(e); nyoung += 3
    ph2_setup(e, slot)
    set_soff()
    e("s_mov_b32 %s, %d" % (s(sDSlot), 2*slot))
    e("s_mov_b32 %s, %d" % (s(sCp), slot))
    e("s_mov_b32 %s, %d" % (s(sCm), (-2*slot) & 0xffffffff))
    e("s_mov_b32 %s, 0" % s(sIter))
    if coop and w == 2: e("s_mov_b32 %s, %d" % (s(sSoQ), 2*64*3840))
    stamp(e, 2)
    e("s_waitcnt vmcnt(%d) lgkmcnt(0)" % nyoung)
    e("s_barrier")
    stamp(e, 3)
    R = cfg.ring
    e.ext(cfg.xreads(0))
    for f in range(cfg.nfirst):
        e.ext(cfg.wread(0, f, cfg.wbase + (f % R)*4))
    dma = dma_groups_vgpr(L, dobase)
    if "nopoll" not in OPTS:
        pg = ["s_cmp_lg_u32 %s, 7 ; rare" % s(sIter), "s_cbranch_scc0 L_pp_%s ; rare" % tag, "L_np_%s:" % tag]
        side = ["L_pp_%s:" % tag, "  buffer_load_dwordx2 %s, %s, %s, 0 offen sc1 ; rare" % (vr(vNon,2), v(vZero), sr(sDBG,4)), "  s_branch L_np_%s ; rare" % tag]
        if units:
            us = E(); unit_store_dyn(us, 216, full_wait=True)
            pg += ["s_cmp_lg_u32 %s, 1 ; rare" % s(sIter), "s_cbranch_scc0 L_pu_%s ; rare" % tag, "L_nu_%s:" % tag]
            side += ["L_pu_%s:" % tag] + us.L + ["  s_branch L_nu_%s" % tag]
        if units and w == 0:
            sg = E(); signal_count(sg, CNT_P)
            pg += ["s_cmp_lg_u32 %s, 2 ; rare" % s(sIter), "s_cbranch_scc0 L_ps_%s ; rare" % tag, "L_ns_%s:" % tag]
            side += ["L_ps_%s:" % tag] + sg.L + ["  s_branch L_ns_%s ; rare" % tag]
        dma = [pg] + dma
    else: side = []
    ncl = nd
    if coop:
        g = coop_load(w, COOP_D)
        if w == 2: g.append("s_add_u32 %s, %s, %d" % (s(sSoQ), s(sSoQ), 64*3840))
        dma = dma + [g]; ncl = nd + 2
    if "nodma" in OPTS: dma = []
    first_vm = None
    if coop:
        first_vm = min(63, nd + 1 + npre)
        side += ["L_first_%s:" % tag, "  s_waitcnt vmcnt(%d) lgkmcnt(0) ; rare" % first_vm, "  s_branch L_join_%s ; rare" % tag]
    body = chunk_body(cfg, dma, rolled_tag=tag, closing_vm=ncl if "nodma" not in OPTS else 0, first_vm=first_vm)
    post = E()
    stamp(post, 4)
    if "nopoll" not in OPTS:
        get_nonce(post, tag, 250, have_first=vNon)
        spin_count(post, "p_" + tag, CNT_P, N_P, 250, have_first=vNon+1)
    if "ph1only" in OPTS:
        post.ext(chunk_body(cfg, [], closing_vm=0))
        post.ext(chunk_body(cfg, [], last=True, closing_vm=None))
    else:
        post.ext(chunk_body(cfg, w2l_groups(0, 12), closing_vm=12))
        sg = []
        if SSH:
            post("v_and_b32 %s, 15, %s" % (v(vT16), v(vLane))); post("v_lshlrev_b32 %s, 4, %s" % (v(vT16), v(vT16)))
            if tag.startswith("attn"):
                post("s_lshl_b32 s74, %s, 7" % s(sRB)); post("s_sub_u32 s101, s74, 16")
                post("s_cmp_eq_u32 %s, 0" % s(sRB)); post("s_cselect_b32 s101, 0, s101")
                post("s_add_u32 s74, s74, %d" % (32*w)); post("s_add_u32 s75, s74, 16")
                sg = [stats_load_group(d, t) for d, t in zip(A_STD, A_STT)]
            else:
                post("s_lshl_b32 s73, %s, 7" % s(sRB)); post("s_add_u32 s73, s73, %d" % (64*(w >> 1)))
                post("s_add_u32 s74, s73, 16"); post("s_add_u32 s75, s73, 32"); post("s_add_u32 s101, s73, 48")
                sg = [stats_load_group(d, t) for d, t in zip(F_STD, F_STT)]
        post.ext(chunk_body(cfg, sg + w2l_groups(12, 25), last=True, closing_vm=None))
    stamp(post, 5)
    return body, post, side

A_ND = [13, 13, 12, 12]

X_CS = 0
X_NM = 1024
X_RS = 2048
X_EX = 4096
vQp = 160
vKA, vKB, vKP = 180, 190, 200
vVp = 210
NEG = 0xf149f2ca
def stats_finalize(e, vsum, vsq, vt, out_nm, out_rs, out_std, smask):
    e("v_cndmask_b32_e64 %s, 0, %s, %s" % (v(vt), v(vsq+0), sr(smask,2)))
    for r in (1,2,3):
        e("v_cndmask_b32_e64 %s, %s, %s, %s" % (v(vt), v(vt), v(vsq+r), sr(smask+2*r,2)))
    e("v_mov_b32 %s, %s" % (v(vt+1), v(vt)))
    e("v_permlane32_swap_b32 %s, %s" % (v(vt), v(vt+1)))
    e("v_add_f32 %s, %s, %s" % (v(vt), v(vt), v(vt+1)))
    e("v_mov_b32 %s, %s" % (v(vt+1), v(vt)))
    e("v_permlane16_swap_b32 %s, %s" % (v(vt), v(vt+1)))
    e("v_add_f32 %s, %s, %s" % (v(vt), v(vt), v(vt+1)))
    e("v_mul_f32 %s, 0x%08x, %s" % (v(out_nm), f2u(-1.0/640), v(vsum)))
    e("v_mul_f32 %s, 0x%08x, %s" % (v(vt), f2u(1.0/640), v(vt)))
    e("v_fma_f32 %s, -%s, %s, %s" % (v(vt), v(out_nm), v(out_nm), v(vt)))
    e("v_max_f32 %s, 0, %s" % (v(vt), v(vt)))
    e("v_add_f32 %s, 0x%08x, %s" % (v(vt), f2u(1e-5), v(vt)))
    e("v_rsq_f32 %s, %s" % (v(out_rs), v(vt)))
    if out_std is not None:
        e("v_mul_f32 %s, %s, %s" % (v(out_std), v(vt), v(out_rs)))


def attn_stash(e):
    e("v_and_b32 v1, 15, %s" % v(vLane))
    e("v_lshrrev_b32 v2, 4, %s" % v(vLane))
    e("v_lshlrev_b32 v3, 2, v2")
    e("v_sub_u32 v3, v1, v3")
    e("v_and_b32 v4, 1, v1")
    e("v_mov_b32 v5, 0x%08x" % NEG)
    e("v_cmp_eq_u32 %s, 0, v4" % sr(sM+14,2))
    for r in range(4):
        e("v_subrev_u32 v6, %d, v3" % r)
        e("v_cmp_le_i32 %s, 0, v6" % sr(sM+16,2))
        if r & 1: e("s_andn2_b64 %s, exec, %s" % (sr(sM+18,2), sr(sM+14,2)))
        else:     e("s_mov_b64 %s, %s" % (sr(sM+18,2), sr(sM+14,2)))
        e("s_and_b64 %s, %s, %s" % (sr(sM+20,2), sr(sM+18,2), sr(sM+16,2)))
        e("s_andn2_b64 %s, %s, %s" % (sr(sM+22,2), sr(sM+18,2), sr(sM+16,2)))
        e("v_cndmask_b32_e64 v7, v5, 0, %s" % sr(sM+22,2)); e("v_accvgpr_write_b32 %s, v7" % a(aST+r))
        e("v_cndmask_b32_e64 v8, v5, 0, %s" % sr(sM+20,2)); e("v_accvgpr_write_b32 %s, v8" % a(aST+4+r))
    e("v_sub_u32 v6, v3, v4")
    e("v_mov_b32 v9, 0x0c0c0100"); e("v_mov_b32 v10, 0x01000c0c")
    e("v_cndmask_b32_e64 v9, v10, v9, %s" % sr(sM+14,2))
    e("v_mov_b32 v10, 0x0c0c0302"); e("v_mov_b32 v11, 0x03020c0c")
    e("v_cndmask_b32_e64 v10, v11, v10, %s" % sr(sM+14,2))
    e("v_mov_b32 v11, 0x0c0c0c0c")
    e("v_cmp_le_i32 %s, 0, v6" % sr(sM+16,2))
    e("v_cndmask_b32_e64 v12, v9, v11, %s" % sr(sM+16,2)); e("v_accvgpr_write_b32 %s, v12" % a(aST+8))
    e("v_cndmask_b32_e64 v13, v11, v9, %s" % sr(sM+16,2)); e("v_accvgpr_write_b32 %s, v13" % a(aST+10))
    e("v_cmp_le_i32 %s, 2, v6" % sr(sM+16,2))
    e("v_cndmask_b32_e64 v12, v10, v11, %s" % sr(sM+16,2)); e("v_accvgpr_write_b32 %s, v12" % a(aST+9))
    e("v_cndmask_b32_e64 v13, v11, v10, %s" % sr(sM+16,2)); e("v_accvgpr_write_b32 %s, v13" % a(aST+11))

def attn_epilogue(e):
    R = " ; rare"
    tNM = [240, 242]; tRS = [244, 246]; tSTD = [248, 249]
    vt = 166
    smask = sM
    A1, A2, A3, A4, A5, A6 = 176, 177, 178, 179, 250, 254
    ML = {1: 160, 2: 161, 3: 162}; MH = {0: 163, 1: 164, 2: 165}
    e("v_and_b32 v253, 15, %s" % v(vLane))
    e("v_lshlrev_b32 v253, 2, v253")
    e("v_lshrrev_b32 v252, 4, %s" % v(vLane))
    e("s_lshl_b32 %s, %s, 7" % (s(sT0), s(sWave)))
    e("s_lshl_b32 %s, %s, 6" % (s(sT1), s(sWave)))
    e("v_add_u32 %s, %s, v253" % (v(A1), s(sT0)))
    e("v_add_u32 %s, %s, v253" % (v(A4), s(sT1)))
    if SSH:
        e("s_waitcnt vmcnt(13)")
        e("s_mov_b32 %s, 0" % s(sIter))
        stats_check(e, "attn", A_STD, A_STT)
        for T in (0, 1):
            e("v_mov_b32 %s, %s" % (v(tNM[T]), v(A_STD[T]))); e("v_mov_b32 %s, %s" % (v(tRS[T]), v(A_STD[T]+1))); e("v_mov_b32 %s, %s" % (v(tSTD[T]), v(A_STD[T]+2)))
            e("ds_write_b32 %s, %s offset:%d" % (v(A1), v(A_STD[T]), X_NM + 64 + T*64))
            e("ds_write_b32 %s, %s offset:%d" % (v(A1), v(A_STD[T]+1), X_RS + 64 + T*64))
        e("v_mov_b32 v152, %s" % v(A_STD[2])); e("v_mov_b32 v154, %s" % v(A_STD[2]+1))
        e("ds_write_b32 v253, %s offset:%d" % (v(A_STD[2]), X_NM))
        e("ds_write_b32 v253, %s offset:%d" % (v(A_STD[2]+1), X_RS))
    else:
      for T in (0, 1):
        stats_finalize(e, vSumT[T], vSqT[T], vt, tNM[T], tRS[T], tSTD[T], smask)
        e("ds_write_b32 %s, %s offset:%d" % (v(A1), v(tNM[T]), X_NM + 64 + T*64))
        e("ds_write_b32 %s, %s offset:%d" % (v(A1), v(tRS[T]), X_RS + 64 + T*64))
    for h in (1, 2, 3):
        e("v_cmp_le_u32 %s, %d, v252" % (sr(sM+16,2), h))
        e("v_cndmask_b32_e64 %s, 0, -1, %s" % (v(ML[h]), sr(sM+16,2)))
    for h in (0, 1, 2): e("v_not_b32 %s, %s" % (v(MH[h]), v(ML[h+1])))
    e("v_lshlrev_b32 v252, 4, v252")
    e("v_add_u32 %s, %s, v252" % (v(A2), s(sT0)))
    e("v_add_u32 %s, %s, v252" % (v(A3), s(sT1)))
    if not SSH:
        raise NotImplementedError
    e("s_mov_b32 exec_lo, 0x00010001"); e("s_mov_b32 exec_hi, 0x00010001")
    e("ds_write_b128 %s, %s offset:%d" % (v(A3), vr(acc_halo(0),4), X_CS))
    e("ds_write_b128 %s, %s offset:%d" % (v(A3), vr(acc_halo(1),4), X_CS + 5*64))
    e("s_cmp_gt_u32 %s, 1" % s(sWave))
    e("s_cbranch_scc1 L_e3a")
    e("s_mul_i32 %s, %s, 320" % (s(sT2), s(sWave)) + R)
    e("v_add_u32 v167, %s, v252" % s(sT2) + R)
    e("ds_write_b128 v167, %s offset:%d" % (vr(acc_halo(3),4), X_CS + 4*64) + R)
    e.lab("L_e3a")
    e("s_mov_b32 exec_lo, 0x0000ffff"); e("s_mov_b32 exec_hi, 0")
    e("ds_write_b32 %s, %s offset:%d" % (v(A4), v(acc_halo(2)), X_CS + 10*64))
    e("s_cmp_lg_u32 %s, 2" % s(sWave))
    e("s_cbranch_scc1 L_e3b")
    e("ds_write_b32 v253, %s offset:%d" % (v(acc_halo(3)), X_CS + 14*64) + R)
    e.lab("L_e3b")
    e("s_mov_b64 exec, -1")
    e("v_lshlrev_b32 v251, 3, %s" % v(vLane))
    e("s_lshl_b32 %s, %s, 9" % (s(sT2), s(sWave)))
    e("v_add_u32 %s, %s, v251" % (v(A5), s(sT2)))
    e("s_mul_i32 %s, %s, 5120" % (s(sT2), s(sWave)))
    e("v_add_u32 %s, %s, v251" % (v(A6), s(sT2)))
    e("s_waitcnt lgkmcnt(0)")
    e("s_barrier")
    if "epst" in OPTS: stamp(e, 8)
    CS4 = lambda c: 200 + 4*c
    nm4 = [136, 140]; rs4 = [144, 148]
    tHN, tHR = 152, 154
    csK = 156
    hn4, hr4 = 168, 172
    for c in range(5): e("ds_read_b128 %s, v252 offset:%d" % (vr(CS4(c),4), X_CS + c*64))
    for c in range(5, 10): e("ds_read_b128 %s, v252 offset:%d" % (vr(CS4(c),4), X_CS + c*64))
    e("ds_read_b128 %s, %s offset:%d" % (vr(csK,4), v(A3), X_CS + 5*64))
    def pkfma_bc(d, s0, sc, sfx=""):
        e("v_pk_fma_f32 %s, %s, %s, %s op_sel_hi:[1,0,1]%s" % (vr(d,2), vr(s0,2), vr(sc,2), vr(d,2), sfx))
    def pkmul_bc(d, sc, sfx=""):
        e("v_pk_mul_f32 %s, %s, %s op_sel_hi:[1,0]%s" % (vr(d,2), vr(d,2), vr(sc,2), sfx))
    t0, t1 = 166, 167
    for c in range(5):
        for T in (0, 1):
            d = acc_own(T, c); b = acc_own(T, 0)
            pkfma_bc(d, CS4(c), tNM[T]); pkfma_bc(d+2, CS4(c)+2, tNM[T])
            if c == 0:
                e("v_cvt_pk_bf16_f32 %s, %s, %s" % (v(d), v(d), v(d+1))); e("v_cvt_pk_bf16_f32 %s, %s, %s" % (v(d+1), v(d+2), v(d+3)))
            elif c == 4:
                e("v_cvt_pk_bf16_f32 %s, %s, %s" % (v(b+14), v(d), v(d+1))); e("v_cvt_pk_bf16_f32 %s, %s, %s" % (v(b+15), v(d+2), v(d+3)))
            else:
                e("v_cvt_pk_bf16_f32 %s, %s, %s" % (v(t0), v(d), v(d+1))); e("v_cvt_pk_bf16_f32 %s, %s, %s" % (v(t1), v(d+2), v(d+3)))
                e("v_and_b32 %s, %s, %s" % (v(d), v(t0), v(ML[c]))); e("v_and_b32 %s, %s, %s" % (v(d+1), v(t1), v(ML[c])))
                e("v_and_b32 %s, %s, %s" % (v(b+4*(c-1)+2), v(t0), v(MH[c-1]))); e("v_and_b32 %s, %s, %s" % (v(b+4*(c-1)+3), v(t1), v(MH[c-1])))
    for T in (0, 1):
        e("ds_read_b128 %s, %s offset:%d" % (vr(nm4[T],4), v(A2), X_NM + 64 + T*64))
        e("ds_read_b128 %s, %s offset:%d" % (vr(rs4[T],4), v(A2), X_RS + 64 + T*64))
    e("ds_read_b128 %s, v252 offset:%d" % (vr(hn4,4), X_NM))
    e("ds_read_b128 %s, v252 offset:%d" % (vr(hr4,4), X_RS))
    if "epst" in OPTS: stamp(e, 9)
    csd = [16, 18, 76, 78, 20]; csdW = 22
    for c in range(5, 10):
        for T in (0, 1):
            d = acc_own(T, c)
            pkfma_bc(d, CS4(c), tNM[T]); pkfma_bc(d+2, CS4(c)+2, tNM[T])
            pkmul_bc(d, tRS[T]); pkmul_bc(d+2, tRS[T])
            dst = (vKA, vKB)[T] + 2*(c-5)
            e("v_cvt_pk_bf16_f32 %s, %s, %s" % (v(dst), v(d), v(d+1)))
            e("v_cvt_pk_bf16_f32 %s, %s, %s" % (v(dst+1), v(d+2), v(d+3)))
        e("ds_write_b64 %s, %s offset:%d" % (v(A6), vr(vKB+2*(c-5),2), X_EX + 5120 + (c-5)*512))
        if c == 5:
            for i in range(5): e("ds_read_b32 %s, v253 offset:%d" % (v(csd[i]), X_CS + (10+i)*64))
            e("ds_read_b32 %s, %s offset:%d" % (v(csdW), v(A4), X_CS + 10*64))
    d = acc_halo(1)
    pkfma_bc(d, csK, tHN); pkfma_bc(d+2, csK+2, tHN); pkmul_bc(d, tHR); pkmul_bc(d+2, tHR)
    e("v_cvt_pk_bf16_f32 %s, %s, %s" % (v(d), v(d), v(d+1))); e("v_cvt_pk_bf16_f32 %s, %s, %s" % (v(d+1), v(d+2), v(d+3)))
    e("ds_write_b64 %s, %s offset:%d" % (v(A5), vr(d,2), X_EX))
    e("s_cmp_lg_u32 %s, 1" % s(sWave))
    e("s_cbranch_scc1 L_e3k")
    d = acc_halo(3)
    pkfma_bc(d, CS4(9), tHN, R); pkfma_bc(d+2, CS4(9)+2, tHN, R); pkmul_bc(d, tHR, R); pkmul_bc(d+2, tHR, R)
    e("v_cvt_pk_bf16_f32 %s, %s, %s" % (v(d), v(d), v(d+1)) + R); e("v_cvt_pk_bf16_f32 %s, %s, %s" % (v(d+1), v(d+2), v(d+3)) + R)
    e("ds_write_b64 v251, %s offset:%d" % (vr(d,2), X_EX + 4*512) + R)
    e.lab("L_e3k")
    def vtile(d, nm, rs, cd, sfx=""):
        for h_ in (0, 2):
            e("v_pk_fma_f32 %s, %s, %s, %s op_sel_hi:[1,0,1]%s" % (vr(d+h_,2), vr(nm+h_,2), vr(cd,2), vr(d+h_,2), sfx))
            e("v_pk_mul_f32 %s, %s, %s%s" % (vr(d+h_,2), vr(d+h_,2), vr(rs+h_,2), sfx))
    for i in range(5):
        c = 10 + i
        for T in (0, 1):
            d = acc_own(T, c)
            vtile(d, nm4[T], rs4[T], csd[i])
            dst = vVp + 6*i + 2 + 2*T
            e("v_cvt_pk_bf16_f32 %s, %s, %s" % (v(dst), v(d), v(d+1)))
            e("v_cvt_pk_bf16_f32 %s, %s, %s" % (v(dst+1), v(d+2), v(d+3)))
        e("ds_write_b64 %s, %s offset:%d" % (v(A6), vr(vVp+6*i+4,2), X_EX + 5120 + (5+i)*512))
    d = acc_halo(2)
    vtile(d, hn4, hr4, csdW)
    e("v_cvt_pk_bf16_f32 %s, %s, %s" % (v(d), v(d), v(d+1))); e("v_cvt_pk_bf16_f32 %s, %s, %s" % (v(d+1), v(d+2), v(d+3)))
    e("ds_write_b64 %s, %s offset:%d" % (v(A5), vr(d,2), X_EX + 5*512))
    e("s_cmp_lg_u32 %s, 2" % s(sWave))
    e("s_cbranch_scc1 L_e3v")
    d = acc_halo(3)
    vtile(d, hn4, hr4, csd[4], R)
    e("v_cvt_pk_bf16_f32 %s, %s, %s" % (v(d), v(d), v(d+1)) + R); e("v_cvt_pk_bf16_f32 %s, %s, %s" % (v(d+1), v(d+2), v(d+3)) + R)
    e("s_nop 1" + R)
    e("ds_write_b64 v251, %s offset:%d" % (vr(d,2), X_EX + 9*512) + R)
    e.lab("L_e3v")
    if "epst" in OPTS: stamp(e, 10)
    vBP, vBC, vBPA, vSel = 20, 24, 28, 32
    for r in range(4):
        e("v_accvgpr_read_b32 %s, %s" % (v(vBP+r), a(aST+r)))
        e("v_accvgpr_read_b32 %s, %s" % (v(vBC+r), a(aST+4+r)))
        e("v_accvgpr_read_b32 %s, %s" % (v(vSel+r), a(aST+8+r)))
    e("s_or_b32 %s, %s, %s" % (s(sT2), s(sWave), s(sRB)))
    e("s_cmp_eq_u32 %s, 0" % s(sT2))
    e("s_cselect_b32 %s, -1, 0" % s(sM+16)); e("s_cselect_b32 %s, -1, 0" % s(sM+17))
    e("v_mov_b32 v36, 0x%08x" % NEG)
    for r in range(4): e("v_cndmask_b32_e64 %s, %s, v36, %s" % (v(vBPA+r), v(vBP+r), sr(sM+16,2)))
    cF = [37, 38]
    for T in (0, 1):
        e("v_mul_f32 %s, 0x%08x, %s" % (v(cF[T]), f2u((20.0 ** -0.5) * 1.4426950408889634), v(tRS[T])))
    e("s_mov_b32 %s, 0xffff" % s(sM+8)); e("s_mov_b32 %s, 0" % s(sM+9))
    e("s_mov_b32 %s, -1" % s(sM+10)); e("s_mov_b32 %s, 0" % s(sM+11))
    e("s_mov_b32 %s, -1" % s(sM+12)); e("s_mov_b32 %s, 0xffff" % s(sM+13))
    attn_tile(e, 1, acc_own(1,0), vKA, vKB, lambda i: vVp+6*i+2, vBP, vBC, vSel, cF[1], tSTD[1])
    if "epst" in OPTS: stamp(e, 11)
    e("s_waitcnt lgkmcnt(0)")
    e("s_barrier")
    for i in range(5):
        e("ds_read_b64 %s, %s offset:%d" % (vr(vKP+2*i,2), v(A6), X_EX + i*512))
        e("ds_read_b64 %s, %s offset:%d" % (vr(vVp+6*i,2), v(A6), X_EX + (5+i)*512))
    attn_tile(e, 0, acc_own(0,0), vKP, vKA, lambda i: vVp+6*i, vBPA, vBC, vSel, cF[0], tSTD[0])

def attn_tile(e, T, qm, kprev, kcur, vfrag, bP, bC, vSel, cF, std):
    Qm = [qm + 4*h for h in range(4)]
    S0 = [80, 84, 88, 92]; S1 = [96, 100, 104, 108]
    P  = [112, 116, 120, 124]
    Lh = [128, 132, 40, 44]
    for h in range(4):
        e("%s %s, %s, %s, %s" % (MFMA, vr(S0[h],4), vr(kprev+2*h,4), vr(Qm[h],4), vr(bP,4)))
        e("%s %s, %s, %s, %s" % (MFMA, vr(S1[h],4), vr(kcur+2*h,4), vr(Qm[h],4), vr(bC,4)))
    va = [48, 50, 52, 54]; mx = [56, 57, 58, 59]
    for h in range(4):
        e("v_max3_f32 %s, %s, %s, %s" % (v(va[h]), v(S0[h]), v(S0[h]+1), v(S1[h])))
        e("v_max3_f32 %s, %s, %s, %s" % (v(va[h]+1), v(S0[h]+2), v(S0[h]+3), v(S1[h]+2)))
        e("v_max_f32 %s, %s, %s" % (v(va[h]), v(va[h]), v(S1[h]+1)))
        e("v_max_f32 %s, %s, %s" % (v(va[h]+1), v(va[h]+1), v(S1[h]+3)))
        e("v_max_f32 %s, %s, %s" % (v(mx[h]), v(va[h]), v(va[h]+1)))
    e("v_permlane32_swap_b32 %s, %s" % (v(mx[0]), v(mx[1])))
    e("v_permlane32_swap_b32 %s, %s" % (v(mx[2]), v(mx[3])))
    e("v_max_f32 %s, %s, %s" % (v(mx[0]), v(mx[0]), v(mx[1])))
    e("v_max_f32 %s, %s, %s" % (v(mx[2]), v(mx[2]), v(mx[3])))
    e("v_permlane16_swap_b32 %s, %s" % (v(mx[0]), v(mx[2])))
    e("v_max_f32 %s, %s, %s" % (v(mx[0]), v(mx[0]), v(mx[2])))
    e("v_mov_b32 %s, %s" % (v(mx[2]), v(mx[0])))
    e("v_permlane16_swap_b32 %s, %s" % (v(mx[0]), v(mx[2])))
    e("v_mov_b32 %s, %s" % (v(mx[1]), v(mx[0])))
    e("v_mov_b32 %s, %s" % (v(mx[3]), v(mx[2])))
    e("v_permlane32_swap_b32 %s, %s" % (v(mx[0]), v(mx[1])))
    e("v_permlane32_swap_b32 %s, %s" % (v(mx[2]), v(mx[3])))
    for h in range(4):
        e("v_mul_f32 %s, %s, %s" % (v(mx[h]), v(mx[h]), v(cF)))
    for h in range(4):
        e("v_fma_f32 %s, %s, %s, -%s" % (v(va[h]), v(va[h]), v(cF), v(mx[h])))
        e("v_fma_f32 %s, %s, %s, -%s" % (v(va[h]+1), v(va[h]+1), v(cF), v(mx[h])))
    for h in range(4):
        e("v_exp_f32 %s, %s" % (v(va[h]), v(va[h])))
        e("v_exp_f32 %s, %s" % (v(va[h]+1), v(va[h]+1)))
    for h in range(4):
        e("v_cvt_pk_bf16_f32 %s, %s, %s" % (v(va[h]), v(va[h]), v(va[h]+1)))
    for h in range(4):
        for k in range(4):
            e("v_perm_b32 %s, %s, %s, %s" % (v(P[h]+k), v(va[h]), v(va[h]), v(vSel+k)))
    pairs = [(0,0),(1,0),(1,1),(2,1),(2,2),(3,2),(3,3),(4,3)]
    O = {}
    free = S0 + S1
    for n, p_ in enumerate(pairs): O[p_] = free[n]
    for h in range(4):
        e("%s %s, %s, %s, 0" % (MFMA, vr(Lh[h],4), ar(aONE,4), vr(P[h],4)))
    for (i, h) in pairs:
        e("%s %s, %s, %s, 0" % (MFMA, vr(O[(i,h)],4), vr(vfrag(i),4), vr(P[h],4)))
    for h in range(4):
        e("v_rcp_f32 %s, %s" % (v(Lh[h]), v(Lh[h])))
    for h in range(4):
        e("v_mul_f32 %s, %s, %s" % (v(Lh[h]), v(Lh[h]), v(std)))
    F = [Lh[0], 60, 62, 64, Lh[3]]
    e("v_cndmask_b32_e64 %s, %s, %s, %s" % (v(F[1]), v(Lh[1]), v(Lh[0]), sr(sM+8,2)))
    e("v_cndmask_b32_e64 %s, %s, %s, %s" % (v(F[2]), v(Lh[2]), v(Lh[1]), sr(sM+10,2)))
    e("v_cndmask_b32_e64 %s, %s, %s, %s" % (v(F[3]), v(Lh[3]), v(Lh[2]), sr(sM+12,2)))
    Rr = {}
    Rr[0] = O[(0,0)]; Rr[4] = O[(4,3)]
    for i in (1, 2, 3):
        lo, hi = O[(i,i-1)], O[(i,i)]
        for r in range(4):
            e("v_cndmask_b32_e64 %s, %s, %s, %s" % (v(hi+r), v(hi+r), v(lo+r), sr(sM+8+2*(i-1),2)))
        Rr[i] = hi
    out = P[0]
    for i in range(5):
        e("v_pk_mul_f32 %s, %s, %s op_sel_hi:[1,0]" % (vr(Rr[i],2), vr(Rr[i],2), vr(F[i],2)))
        e("v_pk_mul_f32 %s, %s, %s op_sel_hi:[1,0]" % (vr(Rr[i]+2,2), vr(Rr[i]+2,2), vr(F[i],2)))
        e("v_cvt_pk_bf16_f32 %s, %s, %s" % (v(out+2*i), v(Rr[i]), v(Rr[i]+1)))
        e("v_cvt_pk_bf16_f32 %s, %s, %s" % (v(out+2*i+1), v(Rr[i]+2), v(Rr[i]+3)))
    e("s_lshl_b32 %s, %s, 1" % (s(sT0), s(sRB)))
    e("s_lshr_b32 %s, %s, 1" % (s(sT1), s(sWave)))
    e("s_add_u32 %s, %s, %s" % (s(sT0), s(sT0), s(sT1)))
    e("s_mul_i32 %s, %s, %d" % (s(sT0), s(sT0), ACT_TB))
    e("s_and_b32 %s, %s, 1" % (s(sT1), s(sWave)))
    e("s_lshl_b32 %s, %s, 11" % (s(sT1), s(sT1)))
    e("s_add_u32 %s, %s, %s" % (s(sT0), s(sT0), s(sT1)))
    e("s_add_u32 %s, %s, %d" % (s(sT0), s(sT0), ACT_OFF + T*1024))
    e("s_lshr_b32 %s, %s, 1" % (s(sT1), s(sCB)))
    e("s_mul_i32 %s, %s, 5" % (s(sT1), s(sT1)))
    e("s_and_b32 %s, %s, 1" % (s(sT2), s(sCB)))
    e("s_lshl_b32 %s, %s, 1" % (s(sT3), s(sT2)))
    e("s_add_u32 %s, %s, %s" % (s(sT3), s(sT3), s(sT1)))
    e("s_lshl_b32 %s, %s, 12" % (s(sT3), s(sT3)))
    e("s_add_u32 %s, %s, %s" % (s(sT3), s(sT3), s(sT0)))
    e("buffer_store_dwordx4 %s, %s, %s, %s offen sc1" % (vr(out,4), v(vL16), sr(sWS,4), s(sT3)))
    e("s_add_u32 %s, %s, 4096" % (s(sT3), s(sT3)))
    e("buffer_store_dwordx4 %s, %s, %s, %s offen sc1" % (vr(out+4,4), v(vL16), sr(sWS,4), s(sT3)))
    e("s_add_u32 %s, %s, 4" % (s(sT1), s(sT1)))
    e("s_lshl_b32 %s, %s, 12" % (s(sT1), s(sT1)))
    e("s_add_u32 %s, %s, %s" % (s(sT1), s(sT1), s(sT0)))
    e("s_lshl_b32 %s, %s, 3" % (s(sT2), s(sT2)))
    e("s_add_u32 %s, %s, %s" % (s(sT1), s(sT1), s(sT2)))
    e("buffer_store_dwordx2 %s, %s, %s, %s offen sc1" % (vr(out+8,2), v(vL16), sr(sWS,4), s(sT1)))

def sprinkle(lines, groups, start=0, end_gap=0):
    safe = []
    exec_full = True; skip = None
    n = len(lines)
    for i, t in enumerate(lines):
        tt = t.strip()
        prev = lines[i-1].strip() if i else ""
        ok = exec_full and skip is None
        if prev.startswith("s_cmp") or prev.startswith("v_cmp") or prev.startswith("s_and_b64") or prev.startswith("s_andn2") : ok = False
        if tt.startswith("s_cbranch") or tt.startswith("s_cselect") or tt.startswith("s_addc") or tt.endswith(":"): ok = False
        if tt.startswith("s_barrier") or tt.startswith("s_waitcnt"): ok = False
        if ok and start <= i < n - end_gap: safe.append(i)
        if tt.startswith("s_mov_b32 exec") : exec_full = False
        if tt.startswith("s_mov_b64 exec, -1"): exec_full = True
        if tt.startswith("s_cbranch"): skip = tt.split()[-1]
        if skip and tt == skip + ":": skip = None
    ng = len(groups)
    assert len(safe) >= ng, (len(safe), ng)
    at = {}
    for k in range(ng):
        at.setdefault(safe[k*len(safe)//ng], []).extend(groups[k])
    out = []
    for i, t in enumerate(lines):
        if i in at: out += ["  " + x for x in at[i]]
        out.append(t)
    return out

F_SLOT = 49152; F_XB = 16384
fWA = [160, 161, 162, 163]
F_X0, F_X1 = 164, 165
fXE, fXOd, fWL = 166, 167, 168
fDO = 169
def facc(T, c): return (T*8 + c)*4
fCS = 128
fSUM = [144, 148]
def fxf(kh, T): return aXF + (kh*4 + T)*4

def ffn_lane_setup(e):
    x_lane_setup(e, fXE, fXOd)
    e("v_lshrrev_b32 v6, 2, v1")
    e("v_lshlrev_b32 v6, 3, v6")
    e("v_and_b32 v7, 3, v1")
    e("v_add_u32 v6, v6, v7")
    e("v_mul_u32_u24 v6, 3456, v6")
    e("v_lshrrev_b32 v7, 1, v2")
    e("v_xor_b32 v7, v7, v3")
    e("v_lshlrev_b32 v7, 5, v7")
    e("v_and_b32 v8, 1, v2")
    e("v_lshlrev_b32 v8, 4, v8")
    e("v_add3_u32 v6, v6, v7, v8")
    e("s_lshl_b32 %s, %s, 9" % (s(sT0), s(sCB)))
    e("v_add_u32 %s, %s, v6" % (v(fWL), s(sT0)))

def ffn_cfg(w):
    cfg = Cfg()
    th, ch = w >> 1, w & 1
    cfg.ntile = 8; cfg.ring = 8; cfg.look = int(os.environ.get('LOOKF', 4)); cfg.tail = int(os.environ.get('TAILF', 2)); cfg.nfirst = cfg.look; cfg.wbase = aW
    def wread(kh, c, reg):
        off = (2*ch + (c >> 2))*8192 + kh*4096
        ad = v(fWA[c & 3])
        return ["ds_read_b64_tr_b16 %s, %s offset:%d" % (ar(reg,2), ad, off),
                "ds_read_b64_tr_b16 %s, %s offset:%d" % (ar(reg+2,2), ad, off + 2048)]
    def mf(kh, c, reg):
        out = []
        for T in range(4):
            d = vr(facc(T, c), 4)
            out.append("%s %s, %s, %s, %s" % (MFMA, d, ar(reg,4), ar(fxf(kh,T),4), d))
        if (c >> 2) == th and "nohalo" not in OPTS:
            d = vr(fCS + (c & 3)*4, 4)
            out.append("%s %s, %s, %s, %s" % (MFMA, d, ar(reg,4), ar(aONE,4), d))
        return out
    def stats(kh):
        return ["%s %s, %s, %s, %s" % (MFMA, vr(fSUM[j],4), ar(aONE,4), ar(fxf(kh,2*ch+j),4), vr(fSUM[j],4)) for j in (0,1)]
    def xreads(kh):
        ad = F_X1 if kh else F_X0
        return ["ds_read_b128 %s, %s offset:%d" % (ar(fxf(kh,T),4), v(ad), (4*th+T)*2048) for T in range(4)]
    cfg.wread = wread; cfg.mf = mf; cfg.stats = stats; cfg.xreads = xreads
    cfg.xread1_at = 2
    cfg.addr_update = addr_update(F_SLOT, fWA + [F_X0, F_X1])
    cfg.scal_update = scal_update(F_SLOT, 64*3456)
    cfg.dma_start = int(os.environ.get('DST', 2)); cfg.dma_skew = w*int(os.environ.get('DSK', 1)); cfg.dma_endgap = int(os.environ.get('DEG', 8))
    cfg.wstep = 64*3456; cfg.slot = F_SLOT
    return cfg

def read_addr_setup_ffn(e):
    e("v_and_b32 v1, 15, %s" % v(vLane))
    e("v_lshrrev_b32 v2, 2, v1")
    e("v_and_b32 v3, 3, v1")
    e("v_lshrrev_b32 v4, 4, %s" % v(vLane))
    e("v_lshl_add_u32 v2, v4, 2, v2")
    e("v_lshrrev_b32 v5, 1, v2")
    e("v_and_b32 v5, 3, v5")
    e("v_lshlrev_b32 v2, 7, v2")
    e("v_lshl_add_u32 v2, v3, 3, v2")
    e("v_add_u32 v2, %d, v2" % F_XB)
    for u in range(4):
        e("v_xor_b32 v6, %d, v5" % u)
        e("v_lshl_add_u32 %s, v6, 5, v2" % v(fWA[u]))
    xaddr_setup(e, F_X0, F_X1, 0)

def ffn_epilogue(e):
    e("s_lshr_b32 %s, %s, 1" % (s(sT0), s(sWave)))
    e("s_and_b32 %s, %s, 1" % (s(sT1), s(sWave)))
    e("v_and_b32 v253, 15, %s" % v(vLane)); e("v_lshlrev_b32 v253, 2, v253")
    e("v_lshrrev_b32 v252, 4, %s" % v(vLane)); e("v_lshlrev_b32 v252, 4, v252")
    e("s_lshl_b32 %s, %s, 8" % (s(sT2), s(sT0)))
    e("s_waitcnt vmcnt(13)")
    e("s_mov_b32 %s, 0" % s(sIter))
    stats_check(e, "ffn", F_STD, F_STT)
    e("s_lshl_b32 %s, %s, 9" % (s(sT3), s(sT1)))
    e("v_add_u32 v254, %s, v252" % s(sT3))
    e("v_add_u32 v253, %s, v254" % s(sT2))
    e("s_mov_b32 exec_lo, 0x00010001"); e("s_mov_b32 exec_hi, 0x00010001")
    for q in range(4):
        e("ds_write_b128 v253, %s offset:%d" % (vr(fCS + q*4, 4), q*64))
    e("s_mov_b64 exec, -1")
    e("s_lshl_b32 %s, %s, 1" % (s(sT2), s(sRB)))
    e("s_add_u32 %s, %s, %s" % (s(sT0), s(sT0), s(sT2)))
    e("s_mul_i32 %s, %s, %d" % (s(sT0), s(sT0), ACT_TB))
    e("s_lshl_b32 %s, %s, 3" % (s(sT2), s(sCB)))
    e("s_lshl_b32 %s, %s, 2" % (s(sT3), s(sT1)))
    e("s_add_u32 %s, %s, %s" % (s(sT2), s(sT2), s(sT3)))
    e("s_add_u32 %s, %s, 20" % (s(sT2), s(sT2)))
    e("s_lshl_b32 %s, %s, 12" % (s(sT2), s(sT2)))
    e("s_add_u32 %s, %s, %s" % (s(sT0), s(sT0), s(sT2)))
    if ACT_OFF: e("s_add_u32 %s, %s, %d" % (s(sT0), s(sT0), ACT_OFF))
    e("s_mul_i32 %s, %s, 2" % (s(sT2), s(sCB)))
    e("s_add_u32 %s, %s, %s" % (s(sT2), s(sT2), s(sT1)))
    e("s_cmp_eq_u32 %s, 13" % s(sT2))
    e("s_cselect_b32 %s, 0x%x, 0" % (s(sT2), OOB))
    e("s_waitcnt lgkmcnt(0)")
    e("s_barrier")
    nm = F_STD
    CS = lambda c: 160 + 4*c
    for c in range(8): e("ds_read_b128 %s, v254 offset:%d" % (vr(CS(c),4), c*64))
    pk = [224, 228, 232, 236]
    n = 0
    for j in range(4):
        if j == 2: e("s_add_u32 %s, %s, %s" % (s(sT0), s(sT0), s(sT2)))
        for T in range(4):
            o = pk[n & 3]; n += 1
            for k in range(2):
                c = 2*j + k; d = facc(T, c); q = CS(c)
                e("v_pk_fma_f32 %s, %s, %s, %s op_sel_hi:[1,0,1]" % (vr(d,2), vr(q,2), vr(nm[T],2), vr(d,2)))
                e("v_pk_fma_f32 %s, %s, %s, %s op_sel_hi:[1,0,1]" % (vr(d+2,2), vr(q+2,2), vr(nm[T],2), vr(d+2,2)))
                e("v_cvt_pk_bf16_f32 %s, %s, %s" % (v(o+2*k), v(d), v(d+1)))
                e("v_cvt_pk_bf16_f32 %s, %s, %s" % (v(o+2*k+1), v(d+2), v(d+3)))
                e("v_pk_max_i16 %s, %s, 0" % (v(o+2*k), v(o+2*k)))
                e("v_pk_max_i16 %s, %s, 0" % (v(o+2*k+1), v(o+2*k+1)))
            e("buffer_store_dwordx4 %s, %s, %s, %s offen offset:%d sc1" % (vr(o,4), v(vL16), sr(sWS,4), s(sT0), T*1024))
        e("s_add_u32 %s, %s, 4096" % (s(sT0), s(sT0)))

U_ROW = 320
U_BYTES = 32*U_ROW
sPF = 60
vUO = [200, 201, 202]; vUH = [203, 204, 205]; vUT = [206, 207, 208]
sUW = [64, 65, 66]
sUl, sUn = 67, 68
def unit_setup_dyn(e):
    e("s_lshl_b32 %s, %s, 6" % (s(sT0), s(sWave)))
    for m in range(3):
        e("v_add_u32 v1, %s, %s" % (s(sT0), v(vLane)))
        if m: e("v_add_u32 v1, %d, v1" % (256*m))
        e("v_mul_u32_u24 v2, 3277, v1"); e("v_lshrrev_b32 v2, 16, v2")
        e("v_mul_u32_u24 v3, 20, v2"); e("v_sub_u32 v3, v1, v3")
        e("v_mul_u32_u24 v4, 1280, v2"); e("v_lshl_add_u32 %s, v3, 4, v4" % v(vUO[m]))
        e("v_lshrrev_b32 %s, 4, v2" % v(vUH[m]))
        if m == 2:
            e("v_mov_b32 v5, 0x40000000")
            e("v_cmp_le_u32 vcc, 640, v1")
            e("v_cndmask_b32_e64 %s, %s, v5, vcc" % (v(vUO[m]), v(vUO[m])))
            e("v_cndmask_b32_e64 %s, %s, 0, vcc" % (v(vUH[m]), v(vUH[m])))
    e("v_and_b32 v1, 15, %s" % v(vLane)); e("v_lshrrev_b32 v2, 2, v1"); e("v_and_b32 v3, 3, v1")
    e("v_lshrrev_b32 v4, 4, %s" % v(vLane)); e("v_lshl_add_u32 v2, v4, 2, v2")
    e("v_mul_u32_u24 v2, %d, v2" % U_ROW)
    for m in range(3):
        e("s_add_u32 %s, %s, %d" % (s(sT0), s(sWave), 4*m))
        e("s_cmp_ge_u32 %s, 5" % s(sT0)); e("s_cselect_b32 %s, 1, 0" % s(sT1))
        e("s_mul_i32 %s, %s, 5" % (s(sT2), s(sT1))); e("s_sub_u32 %s, %s, %s" % (s(sT2), s(sT0), s(sT2)))
        e("s_lshr_b32 %s, %s, 1" % (s(sT3), s(sT2))); e("s_lshl_b32 %s, %s, 6" % (s(sT3), s(sT3)))
        e("s_and_b32 %s, %s, 1" % (s(sD0), s(sT2))); e("s_lshl_b32 %s, %s, 3" % (s(sD0), s(sD0)))
        e("s_add_u32 %s, %s, %s" % (s(sT3), s(sT3), s(sD0)))
        e("s_mul_i32 %s, %s, 160" % (s(sD0), s(sT1))); e("s_add_u32 %s, %s, %s" % (s(sT3), s(sT3), s(sD0)))
        e("s_cmp_eq_u32 %s, 4" % s(sT2)); e("s_cselect_b32 %s, 3, 4" % s(sD0))
        e("v_lshlrev_b32 v5, %s, v3" % s(sD0))
        e("v_add3_u32 %s, v5, v2, %s" % (v(vUT[m]), s(sT3)))
        e("s_mul_i32 %s, %s, %d" % (s(sUW[m]), s(sT1), W2F_CB))
        e("s_lshl_b32 %s, %s, 10" % (s(sD0), s(sT2)))
        e("s_add_u32 %s, %s, %s" % (s(sUW[m]), s(sUW[m]), s(sD0)))
        e("s_cmp_ge_u32 %s, 10" % s(sT0)); e("s_cselect_b32 %s, 0x%x, %s" % (s(sUW[m]), 0x40000000, s(sUW[m])))
def unit_loads_dyn(e):
    sU = sUn
    e("s_lshr_b32 %s, %s, 2" % (s(sT0), s(sU)))
    e("s_and_b32 %s, %s, 3" % (s(sT1), s(sU)))
    e("s_mul_i32 %s, %s, 52" % (s(sT2), s(sT0))); e("s_lshr_b32 %s, %s, 8" % (s(sT2), s(sT2)))
    e("s_mul_i32 %s, %s, 5" % (s(sT3), s(sT2))); e("s_sub_u32 %s, %s, %s" % (s(sT3), s(sT0), s(sT3)))
    e("s_mul_i32 %s, %s, 160" % (s(sT2), s(sT2)))
    e("s_lshl_b32 %s, %s, 5" % (s(sD0), s(sT3)))
    e("s_cmp_ge_u32 %s, 2" % s(sT3)); e("s_cselect_b32 %s, 16, 0" % s(sD1))
    e("s_add_u32 %s, %s, %s" % (s(sD0), s(sD0), s(sD1)))
    e("s_cmp_eq_u32 %s, 4" % s(sT3)); e("s_cselect_b32 %s, 64, %s" % (s(sD0), s(sD0)))
    e("s_cselect_b32 %s, %d, 0" % (s(sD1), 64*1280))
    e("s_add_u32 %s, %s, %s" % (s(sD0), s(sD0), s(sT2)))
    e("s_sub_u32 %s, %s, 20" % (s(sT2), s(sT0))); e("s_lshl_b32 %s, %s, 5" % (s(sT2), s(sT2)))
    e("s_cmp_lt_u32 %s, 20" % s(sT0))
    e("s_cselect_b32 %s, %s, %s" % (s(sD0), s(sD0), s(sT2)))
    e("s_cselect_b32 %s, %s, 0" % (s(sD1), s(sD1)))
    e("s_cselect_b32 %s, s8, s14" % s(sPF))
    e("s_cselect_b32 %s, s9, s15" % s(sPF+1))
    e("s_cselect_b32 %s, %s, %s" % (s(sPF+2), s(sSzO), s(sSz2)))
    e("s_and_b32 %s, %s, 0xffff" % (s(sPF+1), s(sPF+1)))
    e("s_mov_b32 %s, 0x20000" % s(sPF+3))
    e("s_mul_i32 %s, %s, 1280" % (s(sD0), s(sD0)))
    e("s_mul_i32 %s, %s, 320" % (s(sT1), s(sT1)))
    e("s_add_u32 %s, %s, %s" % (s(sD0), s(sD0), s(sT1)))
    e("s_cmp_ge_u32 %s, %d" % (s(sU), 4*NKS)); e("s_cselect_b32 %s, 0x%x, %s" % (s(sD0), OOB, s(sD0)))
    e("s_lshl_b32 %s, %s, 10" % (s(sT0), s(sWave)))
    e("s_add_u32 %s, %s, %s" % (s(sT0), s(sT0), s(sUl)))
    for m in range(3):
        e("v_mad_u32_u24 %s, %s, %s, %s" % (v(210+m), v(vUH[m]), s(sD1), v(vUO[m])))
        if m < 2: e("s_add_u32 m0, %s, %d" % (s(sT0), 4096*m))
        else:
            e("s_add_u32 %s, %s, %d" % (s(sT1), s(sT0), 4096*m))
            e("s_cmp_ge_u32 %s, 2" % s(sWave))
            e("s_cselect_b32 m0, %d, %s" % (161792, s(sT1)))
        e("s_nop 0")
        e("buffer_load_dwordx4 %s, %s, %s offen lds" % (v(210+m), sr(sPF,4), s(sD0)))
def unit_store_dyn(e, vd=0, full_wait=False):
    sU = sUn
    e("s_lshr_b32 %s, %s, 2" % (s(sT0), s(sU)))
    e("s_and_b32 %s, %s, 3" % (s(sT1), s(sU)))
    e("s_mul_i32 %s, %s, 5120" % (s(sT0), s(sT0)))
    e("s_mul_i32 %s, %s, %d" % (s(sT1), s(sT1), 2*W2F_CB))
    e("s_add_u32 %s, %s, %s" % (s(sT0), s(sT0), s(sT1)))
    e("s_add_u32 %s, %s, %d" % (s(sT0), s(sT0), W2F_OFF))
    e("s_cmp_ge_u32 %s, %d" % (s(sU), 4*NKS)); e("s_cselect_b32 %s, 0x%x, %s" % (s(sT0), 0x30000000, s(sT0)))
    for m in range(3):
        e("v_add_u32 %s, %s, %s" % (v(213+m), s(sUl), v(vUT[m])))
        e("ds_read_b64_tr_b16 %s, %s" % (vr(vd+4*m,2), v(213+m)))
        e("ds_read_b64_tr_b16 %s, %s offset:%d" % (vr(vd+4*m+2,2), v(213+m), 16*U_ROW))
    for m in range(3):
        e("s_add_u32 %s, %s, %s" % (s(sT1), s(sT0), s(sUW[m])))
        e("s_waitcnt lgkmcnt(%d)" % (4 - 2*m if not full_wait else 0))
        e("buffer_store_dwordx4 %s, %s, %s, %s offen sc1" % (vr(vd+4*m,4), v(vL16), sr(sWS,4), s(sT1)))

def pf_stats_loads(e):
    e("v_lshrrev_b32 v1, 4, %s" % v(vLane)); e("v_mul_u32_u24 v1, 1280, v1")
    e("v_and_b32 v2, 15, %s" % v(vLane)); e("v_lshl_add_u32 v14, v2, 4, v1")
    e("s_lshl_b32 %s, %s, 7" % (s(sT0), s(sCB))); e("s_lshl_b32 %s, %s, 5" % (s(sT1), s(sWave)))
    e("s_add_u32 %s, %s, %s" % (s(sT0), s(sT0), s(sT1))); e("s_mul_i32 %s, %s, 1280" % (s(sT0), s(sT0)))
    for grp in range(8):
        for i in range(5):
            e("buffer_load_dwordx4 %s, v14, %s, %s offen offset:%d ; rare" % (vr(16 + grp*20 + i*4, 4), sr(sX,4), s(sT0), i*256))
        e("s_add_u32 %s, %s, %d" % (s(sT0), s(sT0), 4*1280))
def pf_stats_compute(e):
    e("v_mov_b32 v15, 0x3f803f80")
    for grp in range(8):
        b = 16 + grp*20
        sm, sq = 176 + 2*grp, 177 + 2*grp
        e("v_mov_b32 %s, 0" % v(sm)); e("v_mov_b32 %s, 0" % v(sq))
        e("s_waitcnt vmcnt(%d)" % (35 - 5*grp))
        for i in range(20):
            e("v_dot2c_f32_bf16 %s, %s, v15" % (v(sm), v(b+i)))
            e("v_dot2c_f32_bf16 %s, %s, %s" % (v(sq), v(b+i), v(b+i)))
    for sh in (8, 4, 2, 1):
        for r in range(176, 192):
            e("v_add_f32_dpp %s, %s, %s row_ror:%d row_mask:0xf bank_mask:0xf" % (v(r), v(r), v(r), sh))
    e("v_lshrrev_b32 v1, 4, %s" % v(vLane)); e("v_lshlrev_b32 v1, 4, v1")
    e("s_lshl_b32 %s, %s, 7" % (s(sT0), s(sCB))); e("s_lshl_b32 %s, %s, 5" % (s(sT1), s(sWave)))
    e("s_add_u32 %s, %s, %s" % (s(sT0), s(sT0), s(sT1))); e("s_lshl_b32 %s, %s, 4" % (s(sT0), s(sT0)))
    e("s_add_u32 %s, %s, %d" % (s(sT0), s(sT0), STATS_OFF))
    for grp in range(8):
        sm, sq = 176 + 2*grp, 177 + 2*grp
        o = 16 + 4*grp
        e("v_mul_f32 %s, 0x%08x, %s" % (v(o), f2u(-1.0/640), v(sm)))
        e("v_mul_f32 %s, 0x%08x, %s" % (v(sq), f2u(1.0/640), v(sq)))
        e("v_fma_f32 %s, -%s, %s, %s" % (v(sq), v(o), v(o), v(sq)))
        e("v_max_f32 %s, 0, %s" % (v(sq), v(sq)))
        e("v_add_f32 %s, 0x%08x, %s" % (v(sq), f2u(1e-5), v(sq)))
        e("v_rsq_f32 %s, %s" % (v(o+1), v(sq)))
        e("v_mov_b32 %s, %s" % (v(o+3), s(sNonce)))
        e("v_mul_f32 %s, %s, %s" % (v(o+2), v(sq), v(o+1)))
    e("s_mov_b32 exec_lo, 0x00010001"); e("s_mov_b32 exec_hi, 0x00010001")
    for grp in range(8):
        e("buffer_store_dwordx4 %s, v1, %s, %s offen offset:%d sc1" % (vr(16+4*grp,4), sr(sWS,4), s(sT0), grp*64))
    e("s_mov_b64 exec, -1")
def stats_load_group(dst, tok_sgpr):
    return ["s_lshl_b32 %s, %s, 4" % (s(sP1), s(tok_sgpr)), "s_add_u32 %s, %s, %d" % (s(sP1), s(sP1), STATS_OFF),
            "buffer_load_dwordx4 %s, %s, %s, %s offen sc1" % (vr(dst,4), v(vT16), sr(sWS,4), s(sP1))]
A_STD, A_STT = [180, 184, 188], [74, 75, 101]
F_STD, F_STT = [200, 204, 208, 212], [73, 74, 75, 101]
vT16 = 251
def stats_check(e, tag, dsts, toks):
    R = " ; rare"
    e.lab("L_stc_%s" % tag)
    e("s_mov_b64 %s, exec" % sr(sM+16,2))
    for d in dsts:
        e("v_cmp_eq_u32 vcc, %s, %s" % (s(sNonce), v(d+3)))
        e("s_nop 1")
        e("s_and_b64 %s, %s, vcc" % (sr(sM+16,2), sr(sM+16,2)))
    e("s_cmp_eq_u64 %s, exec" % sr(sM+16,2))
    e("s_cbranch_scc1 L_stok_%s" % tag)
    e("s_add_u32 %s, %s, 1" % (s(sIter), s(sIter)) + R)
    e("s_cmp_gt_u32 %s, %d" % (s(sIter), SPIN_MAX) + R)
    e("s_cbranch_scc1 L_stok_%s" % tag + R)
    e("s_sleep 8" + R)
    for d, t in zip(dsts, toks):
        for x in stats_load_group(d, t): e(x + R)
    e("s_waitcnt vmcnt(0)" + R)
    e("s_branch L_stc_%s" % tag + R)
    e.lab("L_stok_%s" % tag)

def pf_loop(e, tag, fn, u0, n, lds0):
    e("s_add_u32 %s, %s, %d" % (s(sUn), s(sCB), 16*u0))
    e("s_mov_b32 %s, %d" % (s(sUl), lds0))
    e("s_mov_b32 %s, 0" % s(sIter))
    e.lab("L_pfl_%s" % tag)
    fn(e)
    e("s_add_u32 %s, %s, 16" % (s(sUn), s(sUn)))
    e("s_add_u32 %s, %s, %d" % (s(sUl), s(sUl), U_BYTES))
    e("s_add_u32 %s, %s, 1" % (s(sIter), s(sIter)))
    e("s_cmp_lt_u32 %s, %d" % (s(sIter), n))
    e("s_cbranch_scc1 L_pfl_%s" % tag)
N_FFN_UNITS = 2
def signal_count(e, off):
    R = " ; rare"
    e("v_mov_b32 v250, 1" + R); e("v_mov_b32 v251, 0" + R)
    e("s_mov_b32 exec_lo, 1" + R); e("s_mov_b32 exec_hi, 0" + R)
    e("buffer_atomic_add v250, v251, %s, 0 offen offset:%d sc1" % (sr(sDBG,4), off) + R)
    e("s_mov_b64 exec, -1" + R)
def spin_count(e, tag, off, target, vtmp, have_first=None):
    R = " ; rare"
    if have_first is not None:
        e("v_readfirstlane_b32 %s, %s" % (s(sT0), v(have_first)))
        e("s_nop 3")
        e("s_cmp_ge_u32 %s, %d" % (s(sT0), target))
        e("s_cbranch_scc1 L_cok_%s" % tag)
    e("s_mov_b32 %s, 0" % s(sT1) + R)
    e("v_mov_b32 %s, 0" % v(vtmp+1) + R)
    e.lab("L_cspin_%s" % tag)
    e("buffer_load_dword %s, %s, %s, 0 offen offset:%d sc1" % (v(vtmp), v(vtmp+1), sr(sDBG,4), off) + R)
    e("s_waitcnt vmcnt(0)" + R)
    e("v_readfirstlane_b32 %s, %s" % (s(sT0), v(vtmp)) + R)
    e("s_nop 3" + R)
    e("s_cmp_ge_u32 %s, %d" % (s(sT0), target) + R)
    e("s_cbranch_scc1 L_cok_%s" % tag + R)
    e("s_sleep %d" % CSLEEP + R)
    e("s_add_u32 %s, %s, 1" % (s(sT1), s(sT1)) + R)
    e("s_cmp_lt_u32 %s, %d" % (s(sT1), SPIN_MAX) + R)
    e("s_cbranch_scc1 L_cspin_%s" % tag + R)
    e.lab("L_cok_%s" % tag)
CSLEEP = 40
FSLEEP = int(os.environ.get('FSL', 8))
CNT_P, N_P = 4, 128

DA = 6
POLL_A_AT = int(os.environ.get('PAA', 5))
FFN_W2A_IN = 0
ATT_POLL_BACK = int(os.environ.get('APB', 90))
ATT_W2A_IN = int(os.environ.get('ATT_IN', 60))
ATT_ENDGAP = int(os.environ.get('ATT_GAP', 40))
W2A_BEFORE_SIG = int(os.environ.get('WBS', 12))

vAR = 80
vWR = 176
def act_soff(p, dst):
    if p < 14: return ["s_lshl_b32 %s, %s, 2" % (s(dst), s(sKQ[p])), "s_add_u32 %s, %s, %s" % (s(dst), s(dst), s(sAB))]
    return ["s_lshl_b32 %s, %s, 12" % (s(dst), s(sWave)), "s_add_u32 %s, %s, %s" % (s(dst), s(dst), s(sAB)),
            "s_add_u32 %s, %s, %d" % (s(dst), s(dst), 4*(p-14)*4096)]
vAO = [244, 246, 248, 249]
def act_loads(p):
    st = vAR + (p % DA)*16
    G = []
    for tt in range(4):
        g = act_soff(p, sD0) if tt == 0 else []
        g.append("buffer_load_dwordx4 %s, %s, %s, %s offen sc1" % (vr(st+4*tt,4), v(vAO[tt]), sr(sWS,4), s(sD0)))
        G.append(g)
    return G
PE_F = int(os.environ.get('PEF', 17))
XRES_AT = 14
BAR_AT = int(os.environ.get('BARAT', 5))
PE_A = int(os.environ.get('PEA', 17))
sMain = 100

def ao_setup(e, sfx=""):
    for tt in range(4):
        e("s_add_u32 %s, %s, %d%s" % (s(sT0), s(sWave), tt, sfx))
        e("s_and_b32 %s, %s, 3%s" % (s(sT0), s(sT0), sfx))
        e("s_lshl_b32 %s, %s, 10%s" % (s(sT0), s(sT0), sfx))
        e("v_add_u32 %s, %s, %s%s" % (v(vAO[tt]), s(sT0), v(vL16), sfx))

def build_main(tag, P0v):
    main = E()
    main.lab("L_ph2_main_" + tag)
    main("v_add_u32 v216, %s, %s" % (s(sLA), v(vL16)))
    main("v_add_u32 v217, %s, %s" % (s(sLB), v(vL16)))
    def wl_reads(p):
        out = []
        for ct in range(5):
            q = 5*p + ct
            ad, off = (216, q*1024) if q < 12 else (217, (q-12)*1024)
            out.append("ds_read_b128 %s, %s offset:%d" % (vr(vWR + (p & 1)*20 + ct*4, 4), v(ad), off))
        return out
    main.ext(wl_reads(0))
    main("v_lshlrev_b32 v218, 2, %s" % v(vLane))
    for tt in range(1, 4):
        main("s_add_u32 %s, %s, %d" % (s(sT0), s(sWave), tt))
        main("s_and_b32 %s, %s, 3" % (s(sT0), s(sT0)))
        main("s_mul_i32 %s, %s, 15360" % (s(sT0), s(sT0)))
        main("s_add_u32 %s, %s, %d" % (s(sT0), s(sT0), (tt-1)*5120))
        main("v_add_u32 %s, %s, %s" % (v(236+tt), s(sT0), v(vL16)))
    stamp(main, 9)
    NP = 19
    for p in range(NP):
        if "p2st" in OPTS and p in (1, 5, 9, 10, 14): stamp(main, {1: 1, 5: 2, 9: 3, 10: 4, 14: 5}[p])
        if "p2stb" in OPTS and p in (10, 12, 14, 16, 18): stamp(main, {10: 1, 12: 2, 14: 3, 16: 4, 18: 5}[p])
        ms = []
        order = [(ct, tt) for ct in range(5) for tt in range(4)] if p < NP - 1 else [(ct, tt) for tt in (1, 2, 3, 0) for ct in range(5)]
        for ct, tt in order:
            if p < 5: wsrc = vr(vWR + (p & 1)*20 + ct*4, 4)
            else:     wsrc = ar(((p - 5) % 12)*20 + ct*4, 4)
            d = vr((tt*5+ct)*4, 4)
            ms.append("%s %s, %s, %s, %s" % (MFMA, d, wsrc, vr(vAR + (p % DA)*16 + 4*tt, 4), d if p else "0"))
        aux = []
        if p + 1 < 5: aux += [[t] for t in wl_reads(p + 1)]
        q = p - 1 + DA
        if p >= 1 and q < NP:
            if q == 14:
                sp = E(); spin_flags(sp, "a" + tag, MASK_A, 250, have_first=219)
                main.ext(sp.L)
            aux += act_loads(q)
        if p == XRES_AT:
            rx = E()
            rx("v_and_b32 v220, 15, %s" % v(vLane)); rx("v_lshrrev_b32 v221, 4, %s" % v(vLane))
            rx("s_lshl_b32 %s, %s, 6" % (s(sT0), s(sTB))); rx("s_lshl_b32 %s, %s, 4" % (s(sT1), s(sWave)))
            rx("s_add_u32 %s, %s, %s" % (s(sT0), s(sT0), s(sT1)))
            rx("v_add_u32 v220, %s, v220" % s(sT0)); rx("v_lshlrev_b32 v222, 4, v220")
            rx("v_mul_u32_u24 v220, 1280, v220")
            rx("s_mul_i32 %s, %s, 160" % (s(sT1), s(sC2))); rx("v_add_u32 v220, %s, v220" % s(sT1))
            rx("v_lshl_add_u32 v240, v221, 4, v220"); rx("v_lshl_add_u32 v242, v221, 3, v220")
            rx("s_mov_b32 %s, %d" % (s(sT2), STATS_OFF + 4))
            rx("buffer_load_dwordx4 v[224:227], v240, %s, 0 offen" % sr(sX,4))
            rx("buffer_load_dwordx4 v[228:231], v240, %s, 0 offen offset:64" % sr(sX,4))
            rx("buffer_load_dwordx2 v[232:233], v242, %s, 0 offen offset:128" % sr(sX,4))
            rx("buffer_load_dword v234, v222, %s, %s offen sc1" % (sr(sWS,4), s(sT2)))
            aux += [[t.strip()] for t in rx.L]
        if p == POLL_A_AT:
            aux.append(["buffer_load_dword v219, v218, %s, %s offen sc1" % (sr(sWS,4), s(sFL))])
        if P0v <= p + 7 <= 16: aux += w2a_groups(p + 7, p + 8)
        if p == 10: aux += w2a_groups(17, 18)
        if p == 11: aux += w2a_groups(18, 19)
        if p == BAR_AT: aux.append(["s_barrier"])
        if tag == "A" and p == 1:
            sg = E(); sg("s_barrier"); signal_rb(sg, "attn", None, vt=(220, 221))
            main.ext(sg.L)
        n = len(ms); k = 0
        wq = [(tt, ct) for tt in range(1, 4) for ct in range(5)] if p == NP - 1 else []
        for i_, m in enumerate(ms):
            main(m)
            want = (i_ + 1)*len(aux) // n
            while k < want:
                main.ext(aux[k]); k += 1
            if wq and i_ >= 5:
                tt, ct = wq.pop(0)
                main("ds_write_b128 %s, %s offset:%d" % (v(236+tt), vr((tt*5+ct)*4,4), ct*1024))
        for tt, ct in wq:
            main("ds_write_b128 %s, %s offset:%d" % (v(236+tt), vr((tt*5+ct)*4,4), ct*1024))
    stamp(main, 10)
    main("s_branch L_ph2_tail")
    st = State(); d = []
    pre = []
    for g in w2a_groups(5, P0v): pre += ["  " + t for t in g]
    for p in range(DA):
        for g in act_loads(p): pre += ["  " + t for t in g]
    st = process(pre, st, d); st.hist = []
    o = []; st = process(main.L, st, o)
    return o, st

def phase2():
    e = E()
    e.lab("L_ph2")
    if "dlymid" in OPTS: e("s_sleep 64")
    stamp(e, 8)
    ao_setup(e)
    check_flags(e, MASK_F, vPoll, "L_ph2_ok2")
    spin_flags(e, "f", MASK_F, 250)
    e.lab("L_ph2_ok2")
    for p in range(DA):
        for g in act_loads(p): e.ext(["%s ; rare" % t for t in g])
    e("s_branch L_ph2_main_F")
    o0 = []; process(e.L, State(), o0)
    oF, stF = build_main("F", PE_F)
    oA, stA = build_main("A", PE_A)
    stA.merge(stF); stA.hist = []
    main = E()
    main.lab("L_ph2_tail")
    srd(main, sW, 16, X_BYTES)
    main("s_mul_i32 %s, %s, 15360" % (s(sT0), s(sWave)))
    main("v_add_u32 v236, %s, %s" % (s(sT0), v(vL16)))
    xr = [224, 226, 228, 230, 232]
    X = 180
    for ct in range(5):
        for hh in range(2):
            main("v_lshlrev_b32 %s, 16, %s" % (v(X + ct*4 + 2*hh), v(xr[ct]+hh)))
            main("v_and_b32 %s, 0xffff0000, %s" % (v(X + ct*4 + 2*hh + 1), v(xr[ct]+hh)))
    main("s_waitcnt lgkmcnt(0)")
    main("s_barrier")
    for k in range(3):
        for ct in range(5):
            main("ds_read_b128 %s, v236 offset:%d" % (vr(80 + (k*5+ct)*4, 4), (k*5+ct)*1024))
    o = 150
    for kk in range(2):
        for ct in range(5):
            for hh in range(2):
                r = ct*4 + 2*hh
                main("v_pk_add_f32 %s, %s, %s" % (vr(r,2), vr(r,2), vr(80 + 20*kk + r, 2)))
    for ct in range(5):
        for hh in range(2):
            r = ct*4 + 2*hh
            main("v_pk_add_f32 %s, %s, %s" % (vr(r,2), vr(r,2), vr(120 + r, 2)))
            main("v_pk_fma_f32 %s, %s, %s, %s op_sel_hi:[1,0,1]" % (vr(X+r,2), vr(r,2), vr(234,2), vr(X+r,2)))
            main("v_cvt_pk_bf16_f32 %s, %s, %s" % (v(o + 2*ct + hh), v(X+r), v(X+r+1)))
    fl = " sc1" if "outsc1" in OPTS else (" nt" if "outnt" in OPTS else "")
    main("buffer_store_dwordx4 %s, v240, %s, 0 offen%s" % (vr(o,4), sr(sW,4), fl))
    main("buffer_store_dwordx4 %s, v240, %s, 0 offen offset:64%s" % (vr(o+4,4), sr(sW,4), fl))
    main("buffer_store_dwordx2 %s, v242, %s, 0 offen offset:128%s" % (vr(o+8,2), sr(sW,4), fl))
    if "dlyend" in OPTS: main("s_sleep 64")
    stamp(main, 11)
    if "stamp" in OPTS: main("s_waitcnt vmcnt(0)")
    stamp(main, 12)
    stamp_flush(main)
    o2 = []; process(["  s_nop 7"] + main.L, stA, o2)
    return o0 + oF + oA + o2

def top():
    out = []
    e = E()
    e("s_load_dwordx16 s[4:19], s[0:1], 0")
    e("s_load_dwordx2 s[20:21], s[0:1], 64")
    e("s_cmp_ge_u32 s2, 256")
    e("s_cbranch_scc1 L_end")
    if "stamp" in OPTS: e("v_mov_b32 %s, 0" % v(vSt))
    if "ep2x" in OPTS: e("s_mov_b32 s100, 0")
    if "dlystart" in OPTS: e("s_sleep 64")
    e("s_getpc_b64 s[60:61]")
    e.lab("L_pcbase")
    e("s_lshr_b32 s3, s2, 3")
    e("s_lshl_b32 s3, s3, 12")
    e("v_lshl_add_u32 v2, v0, 4, s3")
    e("v_min_u32 v2, L_codeend-L_pcbase-16, v2")
    if "nopf" not in OPTS: e("global_load_dwordx4 v[236:239], v2, s[60:61]")
    e("v_and_b32 %s, 63, v0" % v(vLane))
    e("v_lshrrev_b32 v1, 6, v0")
    e("s_and_b32 s3, s2, 7")
    e("v_readfirstlane_b32 %s, v1" % s(sWave))
    e("s_lshr_b32 %s, s2, 3" % s(sT0))
    e("s_and_b32 %s, s3, 1" % s(sT1))
    e("s_lshr_b32 %s, s3, 1" % s(sT2))
    e("s_lshl_b32 %s, %s, 3" % (s(sT1), s(sT1)))
    e("s_cmp_ge_u32 %s, 30" % s(sT0))
    e("s_cbranch_scc1 L_role_pf")
    e("s_cmp_ge_u32 %s, 16" % s(sT0))
    e("s_cbranch_scc1 L_role_ffn")
    e("s_lshl_b32 %s, %s, 1" % (s(sCB), s(sT2)))
    e("s_lshr_b32 %s, %s, 3" % (s(sT3), s(sT0)))
    e("s_add_u32 %s, %s, %s" % (s(sCB), s(sCB), s(sT3)))
    e("s_and_b32 %s, %s, 7" % (s(sKC), s(sT0)))
    e("s_add_u32 %s, %s, %s" % (s(sRB), s(sT1), s(sKC)))
    e("s_mul_i32 %s, %s, 5" % (s(sT3), s(sT3)))
    e("s_add_u32 %s, %s, %s" % (s(sKC), s(sKC), s(sT3)))
    e("s_cmp_ge_u32 %s, 10" % s(sKC))
    e("s_cselect_b32 %s, 10, 0" % s(sT3))
    e("s_sub_u32 %s, %s, %s" % (s(sKC), s(sKC), s(sT3)))
    if "rotk" not in OPTS: e("s_mov_b32 %s, 0" % s(sKC))
    if "rot4" in OPTS:
        e("s_and_b32 %s, %s, 1" % (s(sT3), s(sCB))); e("s_lshl_b32 %s, %s, 1" % (s(sT3), s(sT3)))
        e("s_add_u32 %s, %s, %s" % (s(sT3), s(sT3), s(sRB))); e("s_and_b32 %s, %s, 3" % (s(sT3), s(sT3)))
        e("s_mul_i32 %s, %s, 5" % (s(sT3), s(sT3))); e("s_lshr_b32 %s, %s, 1" % (s(sKC), s(sT3)))
    e("s_mul_i32 %s, %s, %d" % (s(sXO), s(sRB), 128*1280))
    e("s_sub_u32 %s, %s, %d" % (s(sXH), s(sXO), 16*1280))
    e("s_cmp_eq_u32 %s, 0" % s(sRB))
    e("s_cselect_b32 %s, 0, %s" % (s(sXH), s(sXH)))
    e("s_add_u32 %s, %s, 8" % (s(sSig), s(sCB)))
    attn_lane_setup(e)
    e("s_waitcnt lgkmcnt(0)")
    srd(e, sX, 4, X_BYTES); srd(e, sW, 6, WQKV_BYTES); srd(e, sWS, 20, WS_USED); srd(e, sDBG, 18, 256)
    stamp(e, 0)
    attn_first_dma(e, 1 if 'late1' in OPTS else 2)
    stamp(e, 1)
    for w in range(3):
        e("s_cmp_eq_u32 %s, %d" % (s(sWave), w))
        e("s_cbranch_scc1 L_attn_%d" % w)
    e("s_branch L_attn_3")
    e.lab("L_role_ffn")
    e("s_mul_i32 %s, %s, 14" % (s(sT2), s(sT2)))
    e("s_add_u32 %s, %s, %s" % (s(sT2), s(sT2), s(sT0)))
    e("s_sub_u32 %s, %s, 16" % (s(sT2), s(sT2)))
    e("s_lshr_b32 %s, %s, 3" % (s(sCB), s(sT2)))
    e("s_and_b32 %s, %s, 7" % (s(sKC), s(sT2)))
    e("s_add_u32 %s, %s, %s" % (s(sRB), s(sT1), s(sKC)))
    e("s_and_b32 %s, %s, 1" % (s(sT3), s(sCB)))
    e("s_mul_i32 %s, %s, 5" % (s(sT3), s(sT3)))
    e("s_add_u32 %s, %s, %s" % (s(sKC), s(sKC), s(sT3)))
    e("s_add_u32 %s, %s, 2" % (s(sKC), s(sKC)))
    e("s_cmp_ge_u32 %s, 10" % s(sKC))
    e("s_cselect_b32 %s, 10, 0" % s(sT3))
    e("s_sub_u32 %s, %s, %s" % (s(sKC), s(sKC), s(sT3)))
    if "rotk" not in OPTS: e("s_mov_b32 %s, 0" % s(sKC))
    if "rot4" in OPTS:
        e("s_and_b32 %s, %s, 1" % (s(sT3), s(sCB))); e("s_lshl_b32 %s, %s, 1" % (s(sT3), s(sT3)))
        e("s_add_u32 %s, %s, %s" % (s(sT3), s(sT3), s(sRB))); e("s_add_u32 %s, %s, 1" % (s(sT3), s(sT3))); e("s_and_b32 %s, %s, 3" % (s(sT3), s(sT3)))
        e("s_mul_i32 %s, %s, 5" % (s(sT3), s(sT3))); e("s_lshr_b32 %s, %s, 1" % (s(sKC), s(sT3)))
    e("s_mul_i32 %s, %s, %d" % (s(sXO), s(sRB), 128*1280))
    e("s_mov_b32 %s, %s" % (s(sSig), s(sCB)))
    e("s_mul_i32 %s, %s, 7" % (s(sUn), s(sT1)))
    e("s_add_u32 %s, %s, %s" % (s(sUn), s(sUn), s(sT2)))
    ffn_lane_setup(e)
    e("s_waitcnt lgkmcnt(0)")
    srd(e, sX, 4, X_BYTES); srd(e, sW, 12, W1_BYTES); srd(e, sWS, 20, WS_USED); srd(e, sDBG, 18, 256); srd(e, sQ, 6, WQKV_BYTES)
    stamp(e, 0)
    ffn_first_dma(e, 1 if 'late1' in OPTS else 2)
    stamp(e, 1)
    for w in range(3):
        e("s_cmp_eq_u32 %s, %d" % (s(sWave), w))
        e("s_cbranch_scc1 L_ffn_%d" % w)
    e("s_branch L_ffn_3")
    e.lab("L_role_pf")
    e("s_lshl_b32 %s, s3, 1" % s(sCB))
    e("s_add_u32 %s, %s, %s" % (s(sCB), s(sCB), s(sT0)))
    e("s_sub_u32 %s, %s, 30" % (s(sCB), s(sCB)))
    e("s_waitcnt lgkmcnt(0)")
    srd(e, sX, 4, X_BYTES); srd(e, sWS, 20, WS_USED); srd(e, sDBG, 18, 256)
    stamp(e, 0)
    e("v_lshlrev_b32 %s, 4, %s" % (v(vL16), v(vLane)))
    srd(e, sPF, 14, W2_BYTES)
    e("s_mul_i32 %s, %s, 640" % (s(sT0), s(sWave)))
    for m in range(10):
        e("v_add_u32 v1, %s, %s" % (s(sT0), v(vLane)))
        if m: e("v_add_u32 v1, %d, v1" % (64*m))
        e("v_mul_u32_u24 v2, 3277, v1"); e("v_lshrrev_b32 v2, 18, v2")
        e("v_mul_u32_u24 v3, 80, v2"); e("v_sub_u32 v3, v1, v3")
        e("v_and_b32 v4, 7, v2"); e("v_lshlrev_b32 v4, 1, v4"); e("v_xor_b32 v3, v3, v4")
        e("v_mul_u32_u24 v2, 1280, v2"); e("v_lshl_add_u32 %s, v3, 4, v2" % v(216+m))
    if PF_DELAY: e("s_sleep %d" % PF_DELAY)
    for i in range(3):
        e("s_add_u32 %s, %s, %d" % (s(68+i), s(sCB), 28 + 16*i))
        e("s_sub_u32 %s, %s, 20" % (s(sT0), s(68+i)))
        e("s_mul_i32 %s, %s, 40960" % (s(sT0), s(sT0)))
        e("s_cmp_ge_u32 %s, %d" % (s(68+i), NKS)); e("s_cselect_b32 %s, 0x%x, %s" % (s(sT0), OOB, s(sT0)))
        e("s_mul_i32 %s, %s, 10240" % (s(sT1), s(sWave)))
        for m in range(10):
            e("s_add_u32 m0, %s, %d" % (s(sT1), i*40960 + 1024*m))
            e("s_nop 0")
            e("buffer_load_dwordx4 %s, %s, %s offen lds" % (v(216+m), sr(sPF,4), s(sT0)))
    stamp(e, 1)
    e("v_and_b32 v1, 15, %s" % v(vLane)); e("v_lshrrev_b32 v2, 2, v1"); e("v_and_b32 v3, 3, v1")
    e("v_lshrrev_b32 v4, 4, %s" % v(vLane)); e("v_lshl_add_u32 v2, v4, 2, v2")
    e("v_and_b32 v5, 7, v2"); e("v_lshlrev_b32 v5, 5, v5")
    e("v_mul_u32_u24 v2, 1280, v2")
    e("s_mul_i32 %s, %s, 320" % (s(sT0), s(sWave)))
    for half in range(2):
        for ct in range(5):
            if ct < 4: off = half*160 + (ct >> 1)*64 + (ct & 1)*8; sh = 4
            else: off = half*160 + 128; sh = 3
            d = 226 + half*5 + ct
            e("v_lshlrev_b32 v6, %d, v3" % sh)
            e("s_add_u32 %s, %s, %d" % (s(sT1), s(sT0), off))
            e("v_add_u32 v6, %s, v6" % s(sT1))
            e("v_xor_b32 v6, v6, v5")
            e("v_add_u32 %s, v6, v2" % v(d))
    if SSH: get_nonce(e, "pfs", 250)
    if SSH and XL_AT == 2:
        if XL_DELAY: e("s_sleep %d" % XL_DELAY)
        pf_stats_loads(e)
        e("s_waitcnt vmcnt(40)")
    else: e("s_waitcnt vmcnt(0)")
    e("s_barrier")
    stamp(e, 2)
    if SSH and XL_AT == 0: pf_stats_loads(e)
    for i in range(3):
        e("s_mul_i32 %s, %s, 5120" % (s(sT0), s(68+i)))
        e("s_mul_i32 %s, %s, %d" % (s(sT1), s(sWave), 2*W2F_CB))
        e("s_add_u32 %s, %s, %s" % (s(sT0), s(sT0), s(sT1)))
        e("s_add_u32 %s, %s, %d" % (s(sT0), s(sT0), W2F_OFF))
        e("s_cmp_ge_u32 %s, %d" % (s(68+i), NKS)); e("s_cselect_b32 %s, 0x%x, %s" % (s(sT0), 0x40000000, s(sT0)))
        for t in range(10):
            d = 176 + t*4
            e("ds_read_b64_tr_b16 %s, %s" % (vr(d,2), v(226+t)))
            e("ds_read_b64_tr_b16 %s, %s offset:%d" % (vr(d+2,2), v(226+t), 16*1280))
        if i < 2:
            for t in range(10): e("v_add_u32 %s, 40960, %s" % (v(226+t), v(226+t)))
        for t in range(10):
            half, ct = divmod(t, 5)
            d = 176 + t*4
            e("s_add_u32 %s, %s, %d" % (s(sT1), s(sT0), half*W2F_CB + ct*1024))
            e("buffer_store_dwordx4 %s, %s, %s, %s offen sc1" % (vr(d,4), v(vL16), sr(sWS,4), s(sT1)))
    stamp(e, 3)
    e("s_waitcnt vmcnt(0)")
    e("s_barrier")
    e("s_cmp_lg_u32 %s, 0" % s(sWave))
    e("s_cbranch_scc1 L_pf_nosig")
    signal_count(e, CNT_P)
    e.lab("L_pf_nosig")
    stamp(e, 4)
    if SSH:
        if XL_AT == 1: pf_stats_loads(e)
        else: e("s_waitcnt vmcnt(0)")
        pf_stats_compute(e)
        stamp(e, 6)
    ph2_setup(e, F_SLOT)
    e("s_cmp_lg_u32 %s, 0" % s(sWave))
    e("s_cbranch_scc1 L_pf_nospin")
    spin_count(e, "pf", CNT_P, N_P, 250)
    e.lab("L_pf_nospin")
    e("s_barrier")
    get_nonce(e, "pf", 250)
    stamp(e, 5)
    if "ph1only" in OPTS: stamp_flush(e); e("s_endpgm")
    for g in w2l_groups(0, 25): e.ext(g)
    e("v_lshlrev_b32 v2, 2, %s" % v(vLane))
    e("buffer_load_dword %s, v2, %s, %s offen sc1" % (v(vPoll), sr(sWS,4), s(sFL)))
    for g in w2a_groups(5, PE_F): e.ext(g)
    e("s_mov_b32 %s, 1" % s(sMain))
    e("s_waitcnt vmcnt(%d)" % (5*(PE_F-5)))
    e("s_branch L_ph2")
    out += process_path(e.L, None, None, [])
    for role in ("attn", "ffn"):
        for w in range(4):
            tag = "%s_%d" % (role, w)
            pre = E(); pre.lab("L_" + tag)
            if role == "attn":
                cfg = attn_cfg(w)
                def extra(e, w=w):
                    read_addr_setup_attn(e)
                    attn_stash(e)
                    if w == 0:
                        e("s_cmp_lg_u32 s2, 0 ; rare"); e("s_cbranch_scc1 L_nononce ; rare")
                        e("s_memrealtime s[96:97] ; rare"); e("s_waitcnt lgkmcnt(0) ; rare")
                        e("s_or_b32 s96, s96, 1 ; rare"); e("v_mov_b32 v14, s96 ; rare"); e("v_mov_b32 v15, 0 ; rare")
                        e("buffer_store_dword v14, v15, %s, 0 offen sc1 ; rare" % sr(sDBG,4))
                        e.lab("L_nononce")
                        e("v_and_b32 v2, 7, %s" % v(vLane))
                        e("v_lshlrev_b32 v7, 4, v2")
                        e("v_mov_b32 v8, 0x3f803f80"); e("v_mov_b32 v9, v8"); e("v_mov_b32 v10, v8"); e("v_mov_b32 v11, v8")
                        e("ds_write_b128 v7, v[8:11]")
                        e("v_add_u32 v12, %d, v7" % A_SLOT); e("ds_write_b128 v12, v[8:11]")
                        e("v_add_u32 v13, %d, v7" % (2*A_SLOT)); e("ds_write_b128 v13, v[8:11]")
                body, post, side = role_main(pre, tag, cfg, attn_dma_list(w), vDO, w, 136, extra)
            else:
                cfg = ffn_cfg(w)
                body, post, side = role_main(pre, tag, cfg, ffn_dma_list(w), fDO, w, 144, read_addr_setup_ffn, units=("nounits" not in OPTS))
            post("s_branch L_ep_%s" % role)
            out += process_path(pre.L, "L_loop_" + tag, body, post.L)
            out += side
        ep = E()
        if role == "attn": attn_epilogue(ep)
        else: ffn_epilogue(ep)
        last = PE_A if role == "attn" else PE_F
        groups = w2a_groups(5, last) if "ph1only" not in OPTS else []
        nin = (min(ATT_W2A_IN, len(groups)) if role == "attn" else FFN_W2A_IN) if groups else 0
        poll = ["  v_lshlrev_b32 %s, 2, %s" % (v(vPoll), v(vLane)), "  buffer_load_dword %s, %s, %s, %s offen sc1" % (v(vPoll), v(vPoll), sr(sWS,4), s(sFL))]
        lines = ep.L
        if role == "attn" and "nopoll" not in OPTS:
            k = len(lines) - ATT_POLL_BACK
            while lines[k].strip().startswith(("s_cbranch", "s_cselect")) or lines[k-1].strip().startswith(("s_cmp", "v_cmp")): k -= 1
            lines = lines[:k] + poll + lines[k:]
        epl = sprinkle(lines, groups[:nin], start=4, end_gap=(ATT_ENDGAP if role == "attn" else 10)) if nin else lines
        fin = E()
        stamp(fin, 6)
        if role == "attn" and "ph1only" not in OPTS:
            fin("s_mov_b32 %s, 0" % s(sMain))
            for g in groups[nin:]: fin.ext(g)
            ao_setup(fin)
            check_flags(fin, MASK_F, vPoll, "L_att_fast")
            spin_flags(fin, "attf", MASK_F, 250)
            fin.lab("L_att_fast")
            stamp(fin, 7)
            for p in range(DA):
                for g in act_loads(p): fin.ext(["%s ; rare" % t for t in g])
            fin("s_branch L_ph2_main_A")
        else:
            fin("s_mov_b32 %s, 1" % s(sMain))
            if "nopoll" not in OPTS: fin.ext(poll)
            nb = min(W2A_BEFORE_SIG, len(groups) - nin)
            for g in groups[nin:nin+nb]: fin.ext(g)
            fin("s_waitcnt vmcnt(%d)" % nb)
            stamp(fin, 7)
            if "ph1only" in OPTS:
                stamp_flush(fin); fin("s_endpgm")
            else:
                fin("s_barrier")
                signal_rb(fin, role, None)
                for g in groups[nin+nb:]: fin.ext(g)
                fin("s_branch L_ph2")
        if "ep2x" in OPTS:
            rep = E()
            rep("s_waitcnt vmcnt(0) lgkmcnt(0)"); rep("s_barrier")
            stamp(rep, 12)
            rep("s_add_u32 s100, s100, 1"); rep("s_cmp_lt_u32 s100, 2"); rep("s_cbranch_scc1 L_ep_%s" % role)
            epl = epl + rep.L
        out += process_path(["L_ep_%s:" % role, "  s_nop 7", "  s_nop 1"] + epl + fin.L, None, None, [])
    out += phase2()
    out.append("L_end:")
    return out

def kd(name, nfv, accum, sg=102):
    return """.section .rodata,"a"
.p2align 6
.amdhsa_kernel %s
  .amdhsa_next_free_vgpr %d
  .amdhsa_next_free_sgpr %d
  .amdhsa_accum_offset %d
  .amdhsa_group_segment_fixed_size 0
  .amdhsa_kernarg_size 72
  .amdhsa_user_sgpr_count 2
  .amdhsa_user_sgpr_kernarg_segment_ptr 1
  .amdhsa_system_sgpr_workgroup_id_x 1
  .amdhsa_float_denorm_mode_32 3
.end_amdhsa_kernel
""" % (name, nfv, sg, accum)

HEADER = """; Kernarg (72 bytes): [0] A_x [8] A_wqkv [16] A_wo [24] B_x [32] B_w1 [40] B_w2 [48] out [56] debug [64] ws
; @launch grid=(256,1,1) block=(256,1,1) lds=163840
.amdgcn_target "amdgcn-amd-amdhsa--gfx950"
"""
def main():
    if len(sys.argv) > 2: OPTS.update(sys.argv[2].split(","))
    k = top()
    if "noalign" not in OPTS:
        from alignpass import align
        head = '.amdgcn_target "amdgcn-amd-amdhsa--gfx950"\n.text\n.p2align 8\nk:\n'
        k = align(head, k, "\ns_endpgm\nL_codeend:\n")
    txt = HEADER + ".text\n.globl %s\n.p2align 8\n.type %s,@function\n%s:\n" % (KNAME, KNAME, KNAME) + "\n".join(k) + "\ns_endpgm\nL_codeend:\n" + kd(KNAME, 512, 256)
    path = sys.argv[1] if len(sys.argv) > 1 else "out2.s"
    open(path, "w").write(txt)
    print("wrote", path, len(txt), "bytes;", len(k), "lines")
if __name__ == "__main__": main()
```

```python
import sys, struct, os
from irlib import *

KNAME = "parallel_sum__sliding_local_dilated__dense_activation_relu__prompt_kernel"
S_, D_, DFF = 2048, 640, 1728
X_BYTES = S_*D_*2; WQKV_BYTES = D_*3*D_*2; WO_BYTES = D_*D_*2; W1_BYTES = D_*DFF*2; W2_BYTES = DFF*D_*2
NKS = 74
ACT_OFF = 0; ACT_TB = NKS*4096
W2F_OFF = 10*1024*1024; W2F_CB = NKS*5120
RSTD_OFF = 14*1024*1024
STATS_OFF = 14*1024*1024 + 65536
STAMP_OFF = 16*1024*1024
WS_USED = 17*1024*1024
OOB = 0x7F000000
FLAG_OFF = 15*1024*1024
MASK_F, MASK_A, MASK_P = 0x7f, 0xff00, 0xffff0000
SPIN_MAX = 200000
PF_DELAY = int(os.environ.get('PFD', 0))
UNIT_LATE = int(os.environ.get('ULATE', 0))
XL_AT = int(os.environ.get('XLAT', 1))
XL_DELAY = int(os.environ.get('XLD', 0))
ROTN = int(os.environ.get('ROTN', 0))
EARLY_W2A = int(os.environ.get('EW', 0))
SSH = True
OPTS = set()
def f2u(x): return struct.unpack("<I", struct.pack("<f", x))[0]
def v(i): return "v%d" % i
def vr(i, n): return "v[%d:%d]" % (i, i+n-1)
def a(i): return "a%d" % i
def ar(i, n): return "a[%d:%d]" % (i, i+n-1)
def s(i): return "s%d" % i
def sr(i, n): return "s[%d:%d]" % (i, i+n-1)
MFMA = "v_mfma_f32_16x16x32_bf16"

class E:
    def __init__(self): self.L = []
    def __call__(self, t): self.L.append("  " + t)
    def lab(self, t): self.L.append(t + ":")
    def ext(self, lines):
        for t in lines: self.L.append(t if t.startswith("  ") or t.endswith(":") else "  " + t)

sWave = 22
sX, sW, sWS, sDBG = 24, 28, 32, 76
sRB, sCB, sKC, sSoX, sSoW, sDSlot, sRDelta, sIter = 36, 37, 38, 39, 40, 41, 42, 43
sT0, sT1, sT2, sT3 = 46, 47, 48, 49
sM = 50
sTB, sC2, sSig, sWB, sAB, sLA, sLB, sP0, sP1, sRB2 = 80, 81, 82, 83, 84, 85, 86, 87, 88, 89
sKQ = [4,5,6,7,8,9,10,11,12,13,14,15,18,19]
sNonce, sFL = 23, 45
sD0, sD1 = 90, 91
sXO, sXH = 92, 93
vLane = 255
vSt = 247
vPoll = 243
vNon = 252

def stamp(e, i):
    if "stamp" in OPTS:
        e("s_memrealtime s[96:97]"); e("s_memtime s[98:99]"); e("s_waitcnt lgkmcnt(0)")
        e("v_writelane_b32 %s, s96, %d" % (v(vSt), 2*i)); e("v_writelane_b32 %s, s98, %d" % (v(vSt), 2*i+1))
def stamp_flush(e):
    if "stamp" not in OPTS: return
    if "dbgst" in OPTS:
        uid = len(e.L)
        for wg, lst, base in ((0, [3,4,5,6,9,12], 2), (128, [3,4,5,7,9], 8), (240, [4,5,8], 13)):
            lab = "L_ds_%d_%d" % (wg, uid)
            e("s_cmp_lg_u32 s2, %d" % wg); e("s_cbranch_scc1 %s" % lab)
            e("s_cmp_lg_u32 %s, 0" % s(sWave)); e("s_cbranch_scc1 %s" % lab)
            e("v_readlane_b32 s96, %s, 0" % v(vSt))
            for n_, i in enumerate(lst):
                e("v_readlane_b32 s97, %s, %d" % (v(vSt), 2*i))
                e("s_nop 4")
                e("s_sub_u32 s97, s97, s96")
                e("v_mov_b32 v1, s97"); e("v_mov_b32 v2, %d" % (4*(base+n_)))
                e("buffer_store_dword v1, v2, %s, 0 offen" % sr(sDBG,4))
            e.lab(lab)
        return
    e("s_lshl_b32 s3, s2, 2"); e("s_add_u32 s3, s3, %s" % s(sWave)); e("s_lshl_b32 s3, s3, 8")
    e("s_add_u32 s3, s3, %d" % STAMP_OFF)
    e("v_lshlrev_b32 v1, 2, %s" % v(vLane))
    e("buffer_store_dword %s, v1, %s, s3 offen" % (v(vSt), sr(sWS,4)))

def srd(e, base, ptr, nbytes):
    e("s_mov_b32 %s, %s" % (s(base), s(ptr)))
    e("s_and_b32 %s, %s, 0xffff" % (s(base+1), s(ptr+1)))
    e("s_mov_b32 %s, %d" % (s(base+2), nbytes))
    e("s_mov_b32 %s, 0x20000" % s(base+3))

def check_flags(e, mask, val, oklab, rare=""):
    e("v_cmp_eq_u32 vcc, %s, %s%s" % (s(sNonce), v(val), rare))
    e("s_nop 3" + rare)
    e("s_and_b32 %s, vcc_lo, 0x%x%s" % (s(sT0), mask, rare))
    e("s_cmp_eq_u32 %s, 0x%x%s" % (s(sT0), mask, rare))
    e("s_cbranch_scc1 %s%s" % (oklab, rare))
def spin_flags(e, tag, mask, vtmp, have_first=None):
    R = " ; rare"
    if have_first is not None: check_flags(e, mask, have_first, "L_ok_%s" % tag)
    e("s_mov_b32 %s, 0" % s(sT1) + R)
    e("v_lshlrev_b32 %s, 2, %s" % (v(vtmp+1), v(vLane)) + R)
    e.lab("L_spin_%s" % tag)
    e("buffer_load_dword %s, %s, %s, %s offen sc1" % (v(vtmp), v(vtmp+1), sr(sWS,4), s(sFL)) + R)
    e("s_waitcnt vmcnt(0)" + R)
    check_flags(e, mask, vtmp, "L_ok_%s" % tag, R)
    e("s_sleep %d" % FSLEEP + R)
    e("s_add_u32 %s, %s, 1" % (s(sT1), s(sT1)) + R)
    e("s_cmp_lt_u32 %s, %d" % (s(sT1), SPIN_MAX) + R)
    e("s_cbranch_scc1 L_spin_%s" % tag + R)
    e.lab("L_ok_%s" % tag)
def get_nonce(e, tag, vtmp, have_first=None):
    R = " ; rare"
    if have_first is not None:
        e("v_readfirstlane_b32 %s, %s" % (s(sNonce), v(have_first)))
        e("s_nop 3")
        e("s_cmp_lg_u32 %s, 0" % s(sNonce))
        e("s_cbranch_scc1 L_nok_%s" % tag)
    e("s_mov_b32 %s, 0" % s(sT1) + R)
    e("v_mov_b32 %s, 0" % v(vtmp+1) + R)
    e.lab("L_nspin_%s" % tag)
    e("buffer_load_dword %s, %s, %s, 0 offen sc1" % (v(vtmp), v(vtmp+1), sr(sDBG,4)) + R)
    e("s_waitcnt vmcnt(0)" + R)
    e("v_readfirstlane_b32 %s, %s" % (s(sNonce), v(vtmp)) + R)
    e("s_nop 3" + R)
    e("s_cmp_lg_u32 %s, 0" % s(sNonce) + R)
    e("s_cbranch_scc1 L_nok_%s" % tag + R)
    e("s_sleep 8" + R)
    e("s_add_u32 %s, %s, 1" % (s(sT1), s(sT1)) + R)
    e("s_cmp_lt_u32 %s, %d" % (s(sT1), SPIN_MAX) + R)
    e("s_cbranch_scc1 L_nspin_%s" % tag + R)
    e.lab("L_nok_%s" % tag)
def signal_rb(e, tag, word_sgpr_expr, vt=(1, 2)):
    e("s_cmp_lg_u32 %s, 0" % s(sWave))
    e("s_cbranch_scc1 L_nosig_%s" % tag)
    R = " ; rare"
    e("s_and_b32 %s, %s, 1" % (s(sT0), s(sRB)) + R)
    e("s_lshl_b32 %s, %s, 4" % (s(sT0), s(sT0)) + R)
    a_, b_ = v(vt[0]), v(vt[1])
    e("v_add_u32 %s, %s, %s" % (a_, s(sT0), v(vLane)) + R)
    e("v_lshlrev_b32 %s, 3, %s" % (a_, a_) + R)
    e("s_lshr_b32 %s, %s, 1" % (s(sT0), s(sRB)) + R)
    e("v_add_u32 %s, %s, %s" % (a_, s(sT0), a_) + R)
    e("v_lshlrev_b32 %s, 7, %s" % (a_, a_) + R)
    e("s_lshl_b32 %s, %s, 2" % (s(sT0), s(sSig)) + R)
    e("s_add_u32 %s, %s, %d" % (s(sT0), s(sT0), FLAG_OFF) + R)
    e("v_mov_b32 %s, %s" % (b_, s(sNonce)) + R)
    e("s_mov_b32 exec_lo, 0xffff" + R); e("s_mov_b32 exec_hi, 0" + R)
    e("buffer_store_dword %s, %s, %s, %s offen sc1" % (b_, a_, sr(sWS,4), s(sT0)) + R)
    e("s_mov_b64 exec, -1" + R)
    e.lab("L_nosig_%s" % tag)

class Cfg: pass

def chunk_body(cfg, dma, last=False, rolled_tag=None, closing_vm=None, first_vm=None):
    NT = cfg.ntile; NF = 2*NT; R = cfg.ring; L = cfg.look; TAIL = cfg.tail
    assert NF % R == 0
    wreg = lambda f: cfg.wbase + (f % R)*4
    def wreads(f):
        kh, c = divmod(f % NF, NT); return cfg.wread(kh, c, wreg(f))
    def mf(f):
        kh, c = divmod(f % NF, NT); return cfg.mf(kh, c, wreg(f))
    NFIRST = cfg.nfirst
    items = []
    for f in range(0, NF - TAIL):
        g = f + L
        rd = wreads(g) if NFIRST <= g < NF else []
        if f == cfg.xread1_at: rd = rd + cfg.xreads(1)
        ms = []
        if f == 0 and "nostats" not in OPTS and not SSH: ms += cfg.stats(0)
        if f == NT and "nostats" not in OPTS and not SSH: ms += cfg.stats(1)
        ms += mf(f)
        items.append((rd, ms))
    issued = set(range(NFIRST)) | {f + L for f in range(0, NF - TAIL) if NFIRST <= f + L < NF}
    assert issued == set(range(NF)), (sorted(set(range(NF)) - issued))
    nm = sum(len(m) for _, m in items)
    out = []
    nd = len(dma)
    st = cfg.dma_start + cfg.dma_skew; en = nm - cfg.dma_endgap
    pos = [st + (en - st)*i // max(nd, 1) for i in range(nd)]
    cnt = 0; di = 0
    for rd, ms in items:
        rq = list(rd)
        for k, m in enumerate(ms):
            if rq:
                take = (len(rq) + (len(ms) - k) - 1) // (len(ms) - k)
                for _ in range(take): out.append(rq.pop(0))
            out.append(m); cnt += 1
            while di < nd and pos[di] <= cnt:
                out += dma[di]; di += 1
    assert di == nd
    if closing_vm is None: out.append("s_waitcnt lgkmcnt(0)")
    elif first_vm is not None:
        out.append("s_cmp_eq_u32 %s, 0" % s(sIter))
        out.append("s_cbranch_scc1 L_first_%s" % rolled_tag)
        out.append("s_waitcnt vmcnt(%d) lgkmcnt(0)" % closing_vm)
        out.append("L_join_%s:" % rolled_tag)
    else: out.append("s_waitcnt vmcnt(%d) lgkmcnt(0)" % closing_vm)
    out.append("s_barrier")
    aux = []
    if not last:
        aux += cfg.addr_update + cfg.xreads(0)
        for f in range(NFIRST): aux += wreads(f)
    if rolled_tag: aux += cfg.scal_update
    tail = []
    for f in range(NF - TAIL, NF): tail += mf(f)
    per = -(-len(aux) // max(len(tail), 1))
    for m in tail:
        out.append(m)
        for _ in range(per):
            if aux: out.append(aux.pop(0))
    out += aux
    if rolled_tag:
        out.append("s_cbranch_scc1 L_loop_%s" % rolled_tag)
    return ["  ; lgextra %d" % int(os.environ.get("LGX", 2))] + [t if t.endswith(":") else "  " + t for t in out] + ["  ; lgextra 0"]

sCp, sCm = 94, 95
def scal_update(slot, wstep, halo=False):
    t = []
    if "rotk" in OPTS:
        t.append("s_add_u32 %s, %s, 1" % (s(sKC), s(sKC)))
        t.append("s_cmp_eq_u32 %s, 10" % s(sKC))
        t.append("s_cselect_b32 %s, %d, %s" % (s(sKC), 1 if "c0" in OPTS else 0, s(sKC)))
        t.append("s_lshl_b32 %s, %s, 7" % (s(sSoX), s(sKC)))
        t.append("s_mul_i32 %s, %s, %d" % (s(sSoW), s(sKC), wstep))
    else:
        t.append("s_add_u32 %s, %s, 128" % (s(sSoX), s(sSoX)))
        t.append("s_add_u32 %s, %s, %d" % (s(sSoW), s(sSoW), wstep))
    t.append("s_cmp_eq_u32 %s, %d" % (s(sDSlot), 2*slot))
    t.append("s_cselect_b32 %s, %s, %s" % (s(sRDelta), s(sCm), s(sCp)))
    t.append("s_add_u32 %s, %s, %s" % (s(sDSlot), s(sDSlot), s(sRDelta)))
    t.append("s_add_u32 %s, %s, 1" % (s(sIter), s(sIter)))
    t.append("s_cmp_lt_u32 %s, 8" % s(sIter))
    return t
def addr_update(slot, regs):
    t = []
    t.append("s_cmp_eq_u32 %s, %d" % (s(sDSlot), slot))
    t.append("s_cselect_b32 %s, %s, %s" % (s(sRDelta), s(sCm), s(sCp)))
    for r in regs: t.append("v_add_u32 %s, %s, %s" % (v(r), s(sRDelta), v(r)))
    return t

vL16, vL16b = 241, 245
def w2_soff(p, dst):
    if p < 14: return ["s_mul_i32 %s, %s, 5" % (s(dst), s(sKQ[p])), "s_add_u32 %s, %s, %s" % (s(dst), s(dst), s(sWB))]
    return ["s_mul_i32 %s, %s, 5120" % (s(dst), s(sWave)), "s_add_u32 %s, %s, %s" % (s(dst), s(dst), s(sWB)),
            "s_add_u32 %s, %s, %d" % (s(dst), s(dst), 4*(p-14)*5120)]
def w2l_groups(q0, q1):
    G = []
    for q in range(q0, q1):
        p, ct = divmod(q, 5)
        g = []
        if ct == 0 or q == q0: g += w2_soff(p, sP0)
        g.append("s_add_u32 m0, %s, %d" % (s(sLA if q < 12 else sLB), (q if q < 12 else q - 12)*1024))
        g.append("s_add_u32 %s, %s, %d" % (s(sP1), s(sP0), ct*1024))
        g.append("buffer_load_dwordx4 %s, %s, %s offen sc1 lds" % (v(vL16), sr(sWS,4), s(sP1)))
        G.append(g)
    return G
def w2a_groups(p0, p1, sb=None):
    G = []
    if sb is None: sb = sP0
    for p in range(p0, p1):
        base = ((p - 5) % 12)*20
        for ct in range(5):
            g = []
            if ct == 0: g += w2_soff(p, sb)
            if ct < 4: g.append("buffer_load_dwordx4 %s, %s, %s, %s offen offset:%d sc1" % (ar(base+4*ct,4), v(vL16), sr(sWS,4), s(sb), ct*1024))
            else:      g.append("buffer_load_dwordx4 %s, %s, %s, %s offen sc1" % (ar(base+16,4), v(vL16b), sr(sWS,4), s(sb)))
            G.append(g)
    return G
def ph2_setup(e, slot):
    e("s_and_b32 %s, s2, 7" % s(sT0))
    e("s_lshr_b32 %s, s2, 3" % s(sT1))
    e("s_lshr_b32 %s, %s, 3" % (s(sTB), s(sT1)))
    e("s_lshl_b32 %s, %s, 2" % (s(sT0), s(sT0)))
    e("s_add_u32 %s, %s, %s" % (s(sTB), s(sTB), s(sT0)))
    e("s_and_b32 %s, %s, 7" % (s(sC2), s(sT1)))
    e("s_lshr_b32 %s, %s, 1" % (s(sRB2), s(sTB)))
    e("s_lshl_b32 %s, %s, 2" % (s(sRB2), s(sRB2)))
    e("s_mul_i32 %s, %s, %d" % (s(sWB), s(sC2), W2F_CB))
    if "fakecb" in OPTS: e("s_mov_b32 %s, 0" % s(sWB))
    e("s_add_u32 %s, %s, %d" % (s(sWB), s(sWB), W2F_OFF))
    e("s_mul_i32 %s, %s, %d" % (s(sAB), s(sTB), ACT_TB))
    if "faketb" in OPTS: e("s_and_b32 %s, s2, 7" % s(sAB)); e("s_mul_i32 %s, %s, %d" % (s(sAB), s(sAB), ACT_TB))
    if ACT_OFF: e("s_add_u32 %s, %s, %d" % (s(sAB), s(sAB), ACT_OFF))
    e("s_mul_i32 %s, %s, 12288" % (s(sLA), s(sWave)))
    e("s_add_u32 %s, %s, %d" % (s(sLA), s(sLA), slot))
    e("s_mul_i32 %s, %s, 13312" % (s(sLB), s(sWave)))
    e("s_add_u32 %s, %s, %d" % (s(sLB), s(sLB), 2*slot))
    e("s_mul_i32 %s, %s, 7" % (s(sT0), s(sC2)))
    e("s_lshr_b32 %s, %s, 2" % (s(sT0), s(sT0)))
    e("s_and_b32 %s, %s, 3" % (s(sT1), s(sTB)))
    e("s_mul_i32 %s, %s, 7" % (s(sT1), s(sT1)))
    e("s_lshr_b32 %s, %s, 1" % (s(sT1), s(sT1)))
    e("s_add_u32 %s, %s, %s" % (s(sT0), s(sT0), s(sT1)))
    e("s_sub_u32 %s, %s, 14" % (s(sT1), s(sT0)))
    e("s_cmp_ge_u32 %s, 14" % s(sT0))
    e("s_cselect_b32 %s, %s, %s" % (s(sT0), s(sT1), s(sT0)))
    e("s_lshl_b32 %s, %s, 2" % (s(sT0), s(sT0)))
    e("s_add_u32 %s, %s, %s" % (s(sT0), s(sT0), s(sWave)))
    e("s_add_u32 %s, %s, 20" % (s(sT0), s(sT0)))
    for p in range(14):
        e("s_lshl_b32 %s, %s, 10" % (s(sKQ[p]), s(sT0)))
        e("s_cmp_ge_u32 %s, %d" % (s(sT0), NKS))
        e("s_cselect_b32 %s, 0x10000000, %s" % (s(sKQ[p]), s(sKQ[p])))
        if p < 13:
            e("s_add_u32 %s, %s, 4" % (s(sT0), s(sT0)))
            e("s_sub_u32 %s, %s, 56" % (s(sT1), s(sT0)))
            e("s_cmp_ge_u32 %s, 76" % s(sT0))
            e("s_cselect_b32 %s, %s, %s" % (s(sT0), s(sT1), s(sT0)))
    e("v_add_u32 %s, 4096, %s" % (v(vL16b), v(vL16)))
    e("s_lshl_b32 %s, s2, 7" % s(sFL))
    e("s_add_u32 %s, %s, %d" % (s(sFL), s(sFL), FLAG_OFF))

vZero = 249

A_SLOT = 53248; A_XB = 18432; A_WPAIR = 1088
A_XJ = [[0,1,2,3,4],[5,6,7,8,9],[10,11,12,13],[14,15,16,17]]
vWA, vX0, vX1 = 160, 161, 162
vXE, vXOd, vWL = 163, 164, 165
aW, aXF, aONE = 0, 40, 240
aST = 244
def acc_own(T, c): return (T*15 + c)*4
def acc_halo(eidx): return 120 + eidx*4
vSumT = [136, 140]; vSqT = [144, 148]; vSumH, vSqH = 152, 156
def xf(kh, T): return aXF + (kh*3 + T)*4

def x_lane_setup(e, vE, vO):
    e("v_lshrrev_b32 v1, 3, %s" % v(vLane))
    e("v_and_b32 v2, 7, %s" % v(vLane))
    e("v_lshrrev_b32 v3, 4, %s" % v(vLane))
    e("v_mul_u32_u24 v4, 1280, v1")
    e("v_xor_b32 v5, v2, v3")
    e("v_lshl_add_u32 %s, v5, 4, v4" % v(vE))
    e("v_xor_b32 %s, 64, %s" % (v(vO), v(vE)))

def attn_lane_setup(e):
    x_lane_setup(e, vXE, vXOd)
    e("v_cmp_le_u32 vcc, 30, %s" % v(vLane))
    e("v_mov_b32 v9, 0x40000000")
    e("v_cndmask_b32_e64 v6, 0, 1, vcc")
    e("v_cmp_le_u32 vcc, 60, %s" % v(vLane))
    e("v_mul_u32_u24 v7, 30, v6")
    e("v_sub_u32 v7, %s, v7" % v(vLane))
    e("v_mul_u32_u24 v8, 26, v7")
    e("v_lshrrev_b32 v8, 8, v8")
    e("v_mul_u32_u24 v8, 1120, v8")
    e("v_mul_u32_u24 v6, 3840, v6")
    e("v_lshlrev_b32 v7, 4, v7")
    e("v_add3_u32 v6, v6, v7, v8")
    e("s_mul_i32 %s, %s, 160" % (s(sT0), s(sCB)))
    e("v_add_u32 v6, %s, v6" % s(sT0))
    e("v_cndmask_b32_e64 %s, v6, v9, vcc" % v(vWL))

vDO = 166
def attn_dma_list(w):
    L = []
    for grp in ([[0,1],[2,3,4]], [[5,6,7,8],[9]], [[10,11,12,13]], [[14,15,16,17]])[w]:
        for m, j in enumerate(grp):
            imm = m*1024
            L.append(("x", j*1024 if m == 0 else None, imm, vXOd if j & 1 else vXE, (j*8*1280 if j < 2 else (j-2)*8*1280) - imm, j < 2, w == 0 and j == 0))
    kh = w >> 1; rd = w & 1
    for m in range(8):
        k = 32*kh + 8*(m >> 1) + 4*rd + 2*(m & 1)
        L.append(("w", A_XB + (8*w + m)*A_WPAIR if m % 4 == 0 else None, (m & 3)*A_WPAIR, vWL, k*3840 - (m & 3)*A_WPAIR, False, False))
    return L
def ffn_dma_list(w):
    L = []
    for m in range(4):
        j = 4*w + m
        L.append(("x", 4*w*1024 if m == 0 else None, m*1024, fXOd if j & 1 else fXE, j*8*1280 - m*1024, False, False))
    for m in range(8):
        kh, grp = m >> 2, m & 3
        k = 32*kh + 16*(grp & 1) + 4*(grp >> 1)
        L.append(("w", F_XB + w*8192 + m*1024 if m % 4 == 0 else None, (m & 3)*1024, fWL, k*3456 + w*128 - (m & 3)*1024, False, False))
    return L
def dma_groups_salu(L):
    G = []; tmp = [sD0, sD1]
    for n, (kind, m0c, imm, lane, uc, halo, mask) in enumerate(L):
        g = []; t = tmp[n & 1]
        if m0c is not None: g.append("s_add_u32 m0, %s, %d" % (s(sDSlot), m0c))
        if kind == "x":
            g.append("s_add_u32 %s, %s, %s" % (s(t), s(sSoX), s(sXH if halo else sXO)))
            if uc: g.append("s_add_u32 %s, %s, %d" % (s(t), s(t), uc))
        else: g.append("s_add_u32 %s, %s, %d" % (s(t), s(sSoW), uc))
        if mask: g.append("s_mov_b32 exec_lo, 0xffffff00")
        g.append("buffer_load_dwordx4 %s, %s, %s offen offset:%d lds" % (v(lane), sr(sX if kind == "x" else sW,4), s(t), imm))
        if mask: g.append("s_mov_b32 exec_lo, -1")
        G.append(g)
    return G
def dma_offsets_setup(e, L, base):
    for n, (kind, m0c, imm, lane, uc, halo, mask) in enumerate(L):
        if kind == "x":
            e("s_add_u32 %s, %s, %d" % (s(sD0), s(sXH if halo else sXO), uc))
            e("v_add_u32 %s, %s, %s" % (v(base+n), s(sD0), v(lane)))
        else:
            e("v_add_u32 %s, %d, %s" % (v(base+n), uc, v(lane)))
def dma_groups_vgpr(L, base):
    G = []
    for n, (kind, m0c, imm, lane, uc, halo, mask) in enumerate(L):
        g = []
        if m0c is not None:
            m0 = "s_add_u32 m0, %s, %d" % (s(sDSlot), m0c)
            if G: G[-1].append(m0)
            else: G.append([m0])
        if mask: g.append("s_mov_b32 exec_lo, 0xffffff00")
        g.append("buffer_load_dwordx4 %s, %s, %s offen offset:%d lds" % (v(base+n), sr(sX if kind == "x" else sW,4), s(sSoX if kind == "x" else sSoW), imm))
        if mask: g.append("s_mov_b32 exec_lo, -1")
        G.append(g)
    return G

def attn_cfg(w):
    cfg = Cfg()
    cfg.ntile = 15; cfg.ring = 10; cfg.look = int(os.environ.get('LOOK', 6)); cfg.tail = int(os.environ.get('TAILA', 4)); cfg.nfirst = cfg.look; cfg.wbase = aW
    H = {w: 0, 5 + w: 1, 10 + w: 2}
    if w < 3: H[(4, 9, 14)[w]] = 3
    def wread(kh, c, reg):
        off = kh*16*A_WPAIR + 32*c
        return ["ds_read_b64_tr_b16 %s, %s offset:%d" % (ar(reg,2), v(vWA), off),
                "ds_read_b64_tr_b16 %s, %s offset:%d" % (ar(reg+2,2), v(vWA), off + 8*A_WPAIR)]
    def mf(kh, c, reg):
        out = []
        for T in (0, 1):
            d = vr(acc_own(T, c), 4)
            if c < 10: out.append("%s %s, %s, %s, %s" % (MFMA, d, ar(reg,4), ar(xf(kh,T),4), d))
            else:      out.append("%s %s, %s, %s, %s" % (MFMA, d, ar(xf(kh,T),4), ar(reg,4), d))
        if c in H and "nohalo" not in OPTS:
            d = vr(acc_halo(H[c]), 4)
            if c < 10: out.append("%s %s, %s, %s, %s" % (MFMA, d, ar(reg,4), ar(xf(kh,2),4), d))
            else:      out.append("%s %s, %s, %s, %s" % (MFMA, d, ar(xf(kh,2),4), ar(reg,4), d))
        return out
    def stats(kh):
        out = []
        for T in (0, 1):
            out.append("%s %s, %s, %s, %s" % (MFMA, vr(vSumT[T],4), ar(aONE,4), ar(xf(kh,T),4), vr(vSumT[T],4)))
            out.append("%s %s, %s, %s, %s" % (MFMA, vr(vSqT[T],4), ar(xf(kh,T),4), ar(xf(kh,T),4), vr(vSqT[T],4)))
        if w == 3:
            out.append("%s %s, %s, %s, %s" % (MFMA, vr(vSumH,4), ar(aONE,4), ar(xf(kh,2),4), vr(vSumH,4)))
            out.append("%s %s, %s, %s, %s" % (MFMA, vr(vSqH,4), ar(xf(kh,2),4), ar(xf(kh,2),4), vr(vSqH,4)))
        return out
    def xreads(kh):
        ad = vX1 if kh else vX0
        return ["ds_read_b128 %s, %s offset:%d" % (ar(xf(kh,0),4), v(ad), (1+2*w)*2048),
                "ds_read_b128 %s, %s offset:%d" % (ar(xf(kh,1),4), v(ad), (2+2*w)*2048),
                "ds_read_b128 %s, %s offset:%d" % (ar(xf(kh,2),4), v(ad), 0)]
    cfg.wread = wread; cfg.mf = mf; cfg.stats = stats; cfg.xreads = xreads
    cfg.xread1_at = 4
    cfg.addr_update = addr_update(A_SLOT, [vWA, vX0, vX1])
    cfg.scal_update = scal_update(A_SLOT, 64*3840, halo=(w == 0))
    cfg.dma_start = int(os.environ.get('DST', 2)); cfg.dma_skew = w*int(os.environ.get('DSK', 1)); cfg.dma_endgap = int(os.environ.get('DEG', 8))
    cfg.wstep = 64*3840; cfg.slot = A_SLOT
    return cfg

def xaddr_setup(e, X0, X1, base):
    e("v_and_b32 v1, 15, %s" % v(vLane))
    e("v_lshrrev_b32 v4, 4, %s" % v(vLane))
    e("v_lshrrev_b32 v2, 1, v1")
    e("v_xor_b32 v2, v2, v4")
    e("v_lshlrev_b32 v2, 4, v2")
    e("v_lshl_add_u32 v2, v1, 7, v2")
    e("v_add_u32 %s, %d, v2" % (v(X0), base))
    e("v_xor_b32 v2, 64, v2")
    e("v_add_u32 %s, %d, v2" % (v(X1), base))

def read_addr_setup_attn(e):
    e("v_and_b32 v1, 15, %s" % v(vLane))
    e("v_lshrrev_b32 v2, 2, v1")
    e("v_and_b32 v3, 3, v1")
    e("v_lshrrev_b32 v4, 4, %s" % v(vLane))
    e("v_lshrrev_b32 v5, 1, v2")
    e("v_lshl_add_u32 v5, v4, 1, v5")
    e("v_mul_u32_u24 v5, %d, v5" % A_WPAIR)
    e("v_and_b32 v2, 1, v2")
    e("v_mul_u32_u24 v2, 480, v2")
    e("v_lshlrev_b32 v3, 3, v3")
    e("v_add3_u32 v5, v5, v2, v3")
    e("v_add_u32 %s, %d, v5" % (v(vWA), A_XB))
    xaddr_setup(e, vX0, vX1, 0)

sSzO, sSz2 = 69, 70

def attn_first_dma(e, nchunks=2):
    e("s_and_b32 %s, %s, 1" % (s(sT0), s(sWave)))
    e("s_cmp_eq_u32 %s, 1" % s(sT0))
    e("s_cselect_b32 %s, 64, 0" % s(sT1))
    e("v_xor_b32 v10, %s, %s" % (s(sT1), v(vXE)))
    e("s_mul_i32 %s, %s, 10240" % (s(sT1), s(sWave)))
    e("s_add_u32 %s, %s, %s" % (s(sT2), s(sXH), s(sT1)))
    e("s_add_u32 %s, %s, %s" % (s(sT3), s(sXO), s(sT1)))
    e("s_sub_u32 %s, %s, 20480" % (s(sT3), s(sT3)))
    e("s_cmp_lt_u32 %s, 2" % s(sWave))
    e("s_cselect_b32 %s, %s, %s" % (s(sD0), s(sT2), s(sT3)))
    e("s_cselect_b32 %s, 0, 0x%x" % (s(sD1), OOB))
    e("s_cmp_eq_u32 %s, 0" % s(sWave))
    e("s_cselect_b32 %s, 0xffffff00, -1" % s(sP1))
    e("s_lshl_b32 %s, %s, 10" % (s(sP0), s(sWave)))
    e("s_lshr_b32 %s, %s, 1" % (s(sT1), s(sWave))); e("s_lshl_b32 %s, %s, 5" % (s(sT1), s(sT1)))
    e("s_lshl_b32 %s, %s, 2" % (s(sT0), s(sT0))); e("s_add_u32 %s, %s, %s" % (s(sT1), s(sT1), s(sT0)))
    e("s_mul_i32 %s, %s, 3840" % (s(sT1), s(sT1)))
    e("s_mul_i32 %s, %s, %d" % (s(sT0), s(sWave), 8*A_WPAIR))
    if "c0" in OPTS:
        assert nchunks == 1
        e("s_mov_b32 %s, %s" % (s(sRDelta), s(sKC))); e("s_mov_b32 %s, 0" % s(sKC))
    for ch in range(nchunks):
        slot = ch*A_SLOT
        e("s_lshl_b32 %s, %s, 7" % (s(sSoX), s(sKC)))
        e("s_mul_i32 %s, %s, %d" % (s(sSoW), s(sKC), 64*3840))
        e("s_add_u32 %s, %s, %s" % (s(sSoW), s(sSoW), s(sT1)))
        for m in range(5):
            if m == 0:
                e("s_add_u32 %s, %s, %s" % (s(sT2), s(sD0), s(sSoX)))
                e("s_add_u32 m0, %s, %d" % (s(sP0), slot))
                e("s_mov_b32 exec_lo, %s" % s(sP1))
            else:
                e("s_add_u32 %s, %s, %s" % (s(sT2), s(sT3), s(sSoX)))
                e("s_add_u32 %s, %s, %d" % (s(sT2), s(sT2), m*4*10240))
                if m == 4:
                    e("s_add_u32 %s, %s, %s" % (s(sT2), s(sT2), s(sD1)))
                    e("s_add_u32 %s, %s, %d" % (s(sIter), s(sP0), slot + m*4096))
                    e("s_cmp_lt_u32 %s, 2" % s(sWave))
                    e("s_cselect_b32 m0, %s, %d" % (s(sIter), 161792))
                else: e("s_add_u32 m0, %s, %d" % (s(sP0), slot + m*4096))
                e("s_nop 0")
            e("buffer_load_dwordx4 v10, %s, %s offen lds" % (sr(sX,4), s(sT2)))
            if m == 0: e("s_mov_b32 exec_lo, -1")
        for m in range(8):
            if m % 4 == 0: e("s_add_u32 m0, %s, %d" % (s(sT0), slot + A_XB + m*A_WPAIR))
            k = 8*(m >> 1) + 2*(m & 1)
            e("s_add_u32 %s, %s, %d" % (s(sT2), s(sSoW), k*3840 - (m & 3)*A_WPAIR))
            e("buffer_load_dwordx4 %s, %s, %s offen offset:%d lds" % (v(vWL), sr(sW,4), s(sT2), (m & 3)*A_WPAIR))
        e("s_add_u32 %s, %s, 1" % (s(sKC), s(sKC)))
        if "rotk" in OPTS:
            e("s_cmp_eq_u32 %s, 10" % s(sKC))
            e("s_cselect_b32 %s, 0, %s" % (s(sKC), s(sKC)))
    if "c0" in OPTS: e("s_add_u32 %s, %s, 1" % (s(sKC), s(sRDelta)))
    return 13
def ffn_first_dma(e, nchunks=2):
    e("s_mul_i32 %s, %s, %d" % (s(sT3), s(sWave), 4*10240))
    e("s_add_u32 %s, %s, %s" % (s(sT3), s(sT3), s(sXO)))
    e("s_lshl_b32 %s, %s, 12" % (s(sP0), s(sWave)))
    e("s_lshl_b32 %s, %s, 7" % (s(sT1), s(sWave)))
    e("s_lshl_b32 %s, %s, 13" % (s(sT0), s(sWave)))
    if "c0" in OPTS:
        assert nchunks == 1
        e("s_mov_b32 %s, %s" % (s(sRDelta), s(sKC))); e("s_mov_b32 %s, 0" % s(sKC))
    for ch in range(nchunks):
        slot = ch*F_SLOT
        e("s_lshl_b32 %s, %s, 7" % (s(sSoX), s(sKC)))
        e("s_add_u32 %s, %s, %s" % (s(sSoX), s(sSoX), s(sT3)))
        e("s_mul_i32 %s, %s, %d" % (s(sSoW), s(sKC), 64*3456))
        e("s_add_u32 %s, %s, %s" % (s(sSoW), s(sSoW), s(sT1)))
        e("s_add_u32 m0, %s, %d" % (s(sP0), slot))
        for m in range(4):
            e("s_add_u32 %s, %s, %d" % (s(sT2), s(sSoX), m*10240 - m*1024))
            e("buffer_load_dwordx4 %s, %s, %s offen offset:%d lds" % (v(fXOd if m & 1 else fXE), sr(sX,4), s(sT2), m*1024))
        for m in range(8):
            kh, grp = m >> 2, m & 3
            k = 32*kh + 16*(grp & 1) + 4*(grp >> 1)
            if m % 4 == 0: e("s_add_u32 m0, %s, %d" % (s(sT0), slot + F_XB + m*1024))
            e("s_add_u32 %s, %s, %d" % (s(sT2), s(sSoW), k*3456 - (m & 3)*1024))
            e("buffer_load_dwordx4 %s, %s, %s offen offset:%d lds" % (v(fWL), sr(sW,4), s(sT2), (m & 3)*1024))
        e("s_add_u32 %s, %s, 1" % (s(sKC), s(sKC)))
        if "rotk" in OPTS:
            e("s_cmp_eq_u32 %s, 10" % s(sKC))
            e("s_cselect_b32 %s, 0, %s" % (s(sKC), s(sKC)))
    if "c0" in OPTS: e("s_add_u32 %s, %s, 1" % (s(sKC), s(sRDelta)))
    return 12

sQ = 72
vPFo, vPFd = 182, 183
def coop_setup(e, w):
    e("s_lshr_b32 %s, s2, 3" % s(sT0)); e("s_sub_u32 %s, %s, 16" % (s(sT0), s(sT0)))
    e("s_and_b32 %s, s2, 1" % s(sT1))
    e("s_and_b32 %s, s2, 7" % s(sT2)); e("s_lshr_b32 %s, %s, 1" % (s(sT2), s(sT2)))
    e("v_mov_b32 v3, 0x40000000")
    if w < 2:
        e("s_mul_i32 %s, %s, 75" % (s(sT0), s(sT0)))
        e("s_lshl_b32 %s, %s, 10" % (s(sT1), s(sT1)))
        e("s_add_u32 %s, %s, %s" % (s(sT0), s(sT0), s(sT1)))
        e("s_add_u32 %s, %s, %d" % (s(sT0), s(sT0), (38*w - 16) & 0xffffffff))
        e("v_add_u32 v1, %s, %s" % (s(sT0), v(vLane)))
        e("v_max_i32 v1, 0, v1")
        e("v_mul_u32_u24 v1, 1280, v1")
        e("v_cmp_gt_u32 vcc, 38, %s" % v(vLane))
    elif w == 2:
        e("s_mul_i32 %s, %s, 42" % (s(sT0), s(sT0)))
        e("v_add_u32 v1, %s, %s" % (s(sT0), v(vLane)))
        e("v_mul_u32_u24 v2, 7282, v1"); e("v_lshrrev_b32 v2, 16, v2")
        e("v_mul_u32_u24 v4, 9, v2"); e("v_sub_u32 v4, v1, v4")
        e("v_mul_u32_u24 v5, 86, v4"); e("v_lshrrev_b32 v5, 8, v5")
        e("v_mul_u32_u24 v6, 3, v5"); e("v_sub_u32 v6, v4, v6")
        e("s_mul_i32 %s, %s, 320" % (s(sT2), s(sT2))); e("s_lshr_b32 %s, %s, 7" % (s(sT2), s(sT2)))
        e("v_add_u32 v6, %s, v6" % s(sT2))
        e("v_mul_u32_u24 v1, 3840, v2"); e("v_mul_u32_u24 v5, 1280, v5")
        e("v_lshl_add_u32 v1, v6, 7, v1"); e("v_add_u32 v1, v1, v5")
        e("v_cmp_gt_u32 vcc, 42, %s" % v(vLane))
    else:
        e("s_mul_i32 %s, %s, 55" % (s(sT0), s(sT0)))
        e("v_add_u32 v1, %s, %s" % (s(sT0), v(vLane)))
        e("v_mul_u32_u24 v2, 5462, v1"); e("v_lshrrev_b32 v2, 16, v2")
        e("v_mul_u32_u24 v4, 12, v2"); e("v_sub_u32 v4, v1, v4")
        e("s_mul_i32 %s, %s, 14" % (s(sT2), s(sT2))); e("s_lshr_b32 %s, %s, 3" % (s(sT2), s(sT2))); e("s_lshl_b32 %s, %s, 2" % (s(sT2), s(sT2)))
        e("v_add_u32 v4, %s, v4" % s(sT2))
        e("v_mul_u32_u24 v1, 3456, v2"); e("v_lshl_add_u32 v1, v4, 7, v1")
        e("v_cmp_gt_u32 vcc, 55, %s" % v(vLane))
    e("v_cndmask_b32_e64 %s, v3, v1, vcc" % v(vPFo))
COOP_D = 4
sSoQ = 44
def coop_load(w, extra_chunks):
    if w < 2: return ["buffer_load_dword %s, %s, %s, %s offen offset:%d ; rare" % (v(vPFd), v(vPFo), sr(sX,4), s(sSoX), 128*extra_chunks)]
    st_ = 64*3840 if w == 2 else 64*3456
    return ["s_add_u32 %s, %s, %d" % (s(sD1), s(sSoQ if w == 2 else sSoW), extra_chunks*st_),
            "buffer_load_dword %s, %s, %s, %s offen ; rare" % (v(vPFd), v(vPFo), sr(sQ if w == 2 else sW,4), s(sD1))]
def zero_acc(e, n):
    for i in range(4): e("v_mov_b32 %s, 0" % v(246 if False else 232+i))
    k = 0
    while k + 16 <= n:
        e("v_mfma_f32_32x32x16_bf16 %s, v[232:235], v[232:235], 0" % vr(k,16)); k += 16
    while k < n:
        e("v_mov_b32 %s, 0" % v(k)); k += 1
def role_main(e, tag, cfg, L, dobase, w, zero_n, extra_pre=None, units=False):
    wstep, slot = cfg.wstep, cfg.slot
    nd = len(L)
    coop = tag.startswith("ffn") and "coop" in OPTS
    def set_soff():
        e("s_lshl_b32 %s, %s, 7" % (s(sSoX), s(sKC)))
        e("s_mul_i32 %s, %s, %d" % (s(sSoW), s(sKC), wstep))
    def adv():
        e("s_add_u32 %s, %s, 1" % (s(sKC), s(sKC)))
        if "rotk" in OPTS:
            e("s_cmp_eq_u32 %s, 10" % s(sKC))
            e("s_cselect_b32 %s, %d, %s" % (s(sKC), 1 if "c0" in OPTS else 0, s(sKC)))
    npro = 13 if tag.startswith("attn") else 12
    e("v_lshlrev_b32 %s, 4, %s" % (v(vL16), v(vLane)))
    if units:
        unit_setup_dyn(e)
        e("s_mov_b32 %s, %d" % (s(sSzO), WO_BYTES)); e("s_mov_b32 %s, %d" % (s(sSz2), W2_BYTES))
        e("s_mov_b32 %s, %d" % (s(sUl), 3*slot))
        if 'late1' not in OPTS: unit_loads_dyn(e)
    npre = 0
    if coop:
        coop_setup(e, w)
        if w == 2: e("s_mov_b32 %s, %d" % (s(sSoQ), 64*3840))
        for x in range(1, COOP_D + 1):
            e.ext(coop_load(w, x)); npre += 1
    if extra_pre: extra_pre(e)
    dma_offsets_setup(e, L, dobase)
    zero_acc(e, zero_n)
    e("v_mov_b32 v254, 0x3f803f80")
    for i in range(4): e("v_accvgpr_write_b32 %s, v254" % a(aONE+i))
    e("v_mov_b32 %s, 0" % v(vZero))
    nyoung = npro + npre + (3 if units else 0)
    if "late1" in OPTS:
        set_soff()
        e("s_mov_b32 %s, %d" % (s(sDSlot), slot))
        for g in dma_groups_vgpr(L, dobase): e.ext(g)
        adv()
        nyoung = nd
        if units:
            unit_loads_dyn(e); nyoung += 3
    ph2_setup(e, slot)
    set_soff()
    e("s_mov_b32 %s, %d" % (s(sDSlot), 2*slot))
    e("s_mov_b32 %s, %d" % (s(sCp), slot))
    e("s_mov_b32 %s, %d" % (s(sCm), (-2*slot) & 0xffffffff))
    e("s_mov_b32 %s, 0" % s(sIter))
    if coop and w == 2: e("s_mov_b32 %s, %d" % (s(sSoQ), 2*64*3840))
    stamp(e, 2)
    e("s_waitcnt vmcnt(%d) lgkmcnt(0)" % nyoung)
    e("s_barrier")
    stamp(e, 3)
    R = cfg.ring
    e.ext(cfg.xreads(0))
    for f in range(cfg.nfirst):
        e.ext(cfg.wread(0, f, cfg.wbase + (f % R)*4))
    dma = dma_groups_vgpr(L, dobase)
    if "nopoll" not in OPTS:
        pg = ["s_cmp_lg_u32 %s, 7 ; rare" % s(sIter), "s_cbranch_scc0 L_pp_%s ; rare" % tag, "L_np_%s:" % tag]
        side = ["L_pp_%s:" % tag, "  buffer_load_dwordx2 %s, %s, %s, 0 offen sc1 ; rare" % (vr(vNon,2), v(vZero), sr(sDBG,4)), "  s_branch L_np_%s ; rare" % tag]
        if units:
            us = E(); unit_store_dyn(us, 216, full_wait=True)
            pg += ["s_cmp_lg_u32 %s, 1 ; rare" % s(sIter), "s_cbranch_scc0 L_pu_%s ; rare" % tag, "L_nu_%s:" % tag]
            side += ["L_pu_%s:" % tag] + us.L + ["  s_branch L_nu_%s" % tag]
        if units and w == 0:
            sg = E(); signal_count(sg, CNT_P)
            pg += ["s_cmp_lg_u32 %s, 2 ; rare" % s(sIter), "s_cbranch_scc0 L_ps_%s ; rare" % tag, "L_ns_%s:" % tag]
            side += ["L_ps_%s:" % tag] + sg.L + ["  s_branch L_ns_%s ; rare" % tag]
        dma = [pg] + dma
    else: side = []
    ncl = nd
    if coop:
        g = coop_load(w, COOP_D)
        if w == 2: g.append("s_add_u32 %s, %s, %d" % (s(sSoQ), s(sSoQ), 64*3840))
        dma = dma + [g]; ncl = nd + 2
    if "nodma" in OPTS: dma = []
    first_vm = None
    if coop:
        first_vm = min(63, nd + 1 + npre)
        side += ["L_first_%s:" % tag, "  s_waitcnt vmcnt(%d) lgkmcnt(0) ; rare" % first_vm, "  s_branch L_join_%s ; rare" % tag]
    body = chunk_body(cfg, dma, rolled_tag=tag, closing_vm=ncl if "nodma" not in OPTS else 0, first_vm=first_vm)
    post = E()
    stamp(post, 4)
    if "nopoll" not in OPTS:
        get_nonce(post, tag, 250, have_first=vNon)
        spin_count(post, "p_" + tag, CNT_P, N_P, 250, have_first=vNon+1)
    if "ph1only" in OPTS:
        post.ext(chunk_body(cfg, [], closing_vm=0))
        post.ext(chunk_body(cfg, [], last=True, closing_vm=None))
    else:
        ea = w2a_groups(9, 9 + EARLY_W2A, sD0)
        h_ = len(ea)//2
        def mix(a_, b_):
            out_ = []; n_ = max(len(a_), len(b_))
            for i_ in range(n_):
                if i_ < len(a_): out_.append(a_[i_])
                if i_ < len(b_): out_.append(b_[i_])
            return out_
        h_ = 5*((h_ + 4)//5) if ea else 0
        post.ext(chunk_body(cfg, mix(w2l_groups(0, 12), ea[:h_]), closing_vm=12 + h_))
        sg = []
        if SSH:
            post("v_and_b32 %s, 15, %s" % (v(vT16), v(vLane))); post("v_lshlrev_b32 %s, 4, %s" % (v(vT16), v(vT16)))
            if tag.startswith("attn"):
                post("s_lshl_b32 s74, %s, 7" % s(sRB)); post("s_sub_u32 s101, s74, 16")
                post("s_cmp_eq_u32 %s, 0" % s(sRB)); post("s_cselect_b32 s101, 0, s101")
                post("s_add_u32 s74, s74, %d" % (32*w)); post("s_add_u32 s75, s74, 16")
                sg = [stats_load_group(d, t) for d, t in zip(A_STD, A_STT)]
            else:
                post("s_lshl_b32 s73, %s, 7" % s(sRB)); post("s_add_u32 s73, s73, %d" % (64*(w >> 1)))
                post("s_add_u32 s74, s73, 16"); post("s_add_u32 s75, s73, 32"); post("s_add_u32 s101, s73, 48")
                sg = [stats_load_group(d, t) for d, t in zip(F_STD, F_STT)]
        post.ext(chunk_body(cfg, sg + mix(w2l_groups(12, 25), ea[h_:]), last=True, closing_vm=None))
    stamp(post, 5)
    return body, post, side

A_ND = [13, 13, 12, 12]

X_CS = 0
X_NM = 1024
X_RS = 2048
X_EX = 4096
vQp = 160
vKA, vKB, vKP = 180, 190, 200
vVp = 210
NEG = 0xf149f2ca
def stats_finalize(e, vsum, vsq, vt, out_nm, out_rs, out_std, smask):
    e("v_cndmask_b32_e64 %s, 0, %s, %s" % (v(vt), v(vsq+0), sr(smask,2)))
    for r in (1,2,3):
        e("v_cndmask_b32_e64 %s, %s, %s, %s" % (v(vt), v(vt), v(vsq+r), sr(smask+2*r,2)))
    e("v_mov_b32 %s, %s" % (v(vt+1), v(vt)))
    e("v_permlane32_swap_b32 %s, %s" % (v(vt), v(vt+1)))
    e("v_add_f32 %s, %s, %s" % (v(vt), v(vt), v(vt+1)))
    e("v_mov_b32 %s, %s" % (v(vt+1), v(vt)))
    e("v_permlane16_swap_b32 %s, %s" % (v(vt), v(vt+1)))
    e("v_add_f32 %s, %s, %s" % (v(vt), v(vt), v(vt+1)))
    e("v_mul_f32 %s, 0x%08x, %s" % (v(out_nm), f2u(-1.0/640), v(vsum)))
    e("v_mul_f32 %s, 0x%08x, %s" % (v(vt), f2u(1.0/640), v(vt)))
    e("v_fma_f32 %s, -%s, %s, %s" % (v(vt), v(out_nm), v(out_nm), v(vt)))
    e("v_max_f32 %s, 0, %s" % (v(vt), v(vt)))
    e("v_add_f32 %s, 0x%08x, %s" % (v(vt), f2u(1e-5), v(vt)))
    e("v_rsq_f32 %s, %s" % (v(out_rs), v(vt)))
    if out_std is not None:
        e("v_mul_f32 %s, %s, %s" % (v(out_std), v(vt), v(out_rs)))


def attn_stash(e):
    e("v_and_b32 v1, 15, %s" % v(vLane))
    e("v_lshrrev_b32 v2, 4, %s" % v(vLane))
    e("v_lshlrev_b32 v3, 2, v2")
    e("v_sub_u32 v3, v1, v3")
    e("v_and_b32 v4, 1, v1")
    e("v_mov_b32 v5, 0x%08x" % NEG)
    e("v_cmp_eq_u32 %s, 0, v4" % sr(sM+14,2))
    for r in range(4):
        e("v_subrev_u32 v6, %d, v3" % r)
        e("v_cmp_le_i32 %s, 0, v6" % sr(sM+16,2))
        if r & 1: e("s_andn2_b64 %s, exec, %s" % (sr(sM+18,2), sr(sM+14,2)))
        else:     e("s_mov_b64 %s, %s" % (sr(sM+18,2), sr(sM+14,2)))
        e("s_and_b64 %s, %s, %s" % (sr(sM+20,2), sr(sM+18,2), sr(sM+16,2)))
        e("s_andn2_b64 %s, %s, %s" % (sr(sM+22,2), sr(sM+18,2), sr(sM+16,2)))
        e("v_cndmask_b32_e64 v7, v5, 0, %s" % sr(sM+22,2)); e("v_accvgpr_write_b32 %s, v7" % a(aST+r))
        e("v_cndmask_b32_e64 v8, v5, 0, %s" % sr(sM+20,2)); e("v_accvgpr_write_b32 %s, v8" % a(aST+4+r))
    e("v_sub_u32 v6, v3, v4")
    e("v_mov_b32 v9, 0x0c0c0100"); e("v_mov_b32 v10, 0x01000c0c")
    e("v_cndmask_b32_e64 v9, v10, v9, %s" % sr(sM+14,2))
    e("v_mov_b32 v10, 0x0c0c0302"); e("v_mov_b32 v11, 0x03020c0c")
    e("v_cndmask_b32_e64 v10, v11, v10, %s" % sr(sM+14,2))
    e("v_mov_b32 v11, 0x0c0c0c0c")
    e("v_cmp_le_i32 %s, 0, v6" % sr(sM+16,2))
    e("v_cndmask_b32_e64 v12, v9, v11, %s" % sr(sM+16,2)); e("v_accvgpr_write_b32 %s, v12" % a(aST+8))
    e("v_cndmask_b32_e64 v13, v11, v9, %s" % sr(sM+16,2)); e("v_accvgpr_write_b32 %s, v13" % a(aST+10))
    e("v_cmp_le_i32 %s, 2, v6" % sr(sM+16,2))
    e("v_cndmask_b32_e64 v12, v10, v11, %s" % sr(sM+16,2)); e("v_accvgpr_write_b32 %s, v12" % a(aST+9))
    e("v_cndmask_b32_e64 v13, v11, v10, %s" % sr(sM+16,2)); e("v_accvgpr_write_b32 %s, v13" % a(aST+11))

def attn_epilogue(e):
    R = " ; rare"
    tNM = [240, 242]; tRS = [244, 246]; tSTD = [248, 249]
    vt = 166
    smask = sM
    A1, A2, A3, A4, A5, A6 = 176, 177, 178, 179, 250, 254
    ML = {1: 160, 2: 161, 3: 162}; MH = {0: 163, 1: 164, 2: 165}
    e("v_and_b32 v253, 15, %s" % v(vLane))
    e("v_lshlrev_b32 v253, 2, v253")
    e("v_lshrrev_b32 v252, 4, %s" % v(vLane))
    e("s_lshl_b32 %s, %s, 7" % (s(sT0), s(sWave)))
    e("s_lshl_b32 %s, %s, 6" % (s(sT1), s(sWave)))
    e("v_add_u32 %s, %s, v253" % (v(A1), s(sT0)))
    e("v_add_u32 %s, %s, v253" % (v(A4), s(sT1)))
    if SSH:
        e("s_waitcnt vmcnt(%d)" % (13 + N_EA9()))
        e("s_mov_b32 %s, 0" % s(sIter))
        stats_check(e, "attn", A_STD, A_STT)
        for T in (0, 1):
            e("v_mov_b32 %s, %s" % (v(tNM[T]), v(A_STD[T]))); e("v_mov_b32 %s, %s" % (v(tRS[T]), v(A_STD[T]+1))); e("v_mov_b32 %s, %s" % (v(tSTD[T]), v(A_STD[T]+2)))
            e("ds_write_b32 %s, %s offset:%d" % (v(A1), v(A_STD[T]), X_NM + 64 + T*64))
            e("ds_write_b32 %s, %s offset:%d" % (v(A1), v(A_STD[T]+1), X_RS + 64 + T*64))
        e("v_mov_b32 v152, %s" % v(A_STD[2])); e("v_mov_b32 v154, %s" % v(A_STD[2]+1))
        e("ds_write_b32 v253, %s offset:%d" % (v(A_STD[2]), X_NM))
        e("ds_write_b32 v253, %s offset:%d" % (v(A_STD[2]+1), X_RS))
    else:
      for T in (0, 1):
        stats_finalize(e, vSumT[T], vSqT[T], vt, tNM[T], tRS[T], tSTD[T], smask)
        e("ds_write_b32 %s, %s offset:%d" % (v(A1), v(tNM[T]), X_NM + 64 + T*64))
        e("ds_write_b32 %s, %s offset:%d" % (v(A1), v(tRS[T]), X_RS + 64 + T*64))
    for h in (1, 2, 3):
        e("v_cmp_le_u32 %s, %d, v252" % (sr(sM+16,2), h))
        e("v_cndmask_b32_e64 %s, 0, -1, %s" % (v(ML[h]), sr(sM+16,2)))
    for h in (0, 1, 2): e("v_not_b32 %s, %s" % (v(MH[h]), v(ML[h+1])))
    e("v_lshlrev_b32 v252, 4, v252")
    e("v_add_u32 %s, %s, v252" % (v(A2), s(sT0)))
    e("v_add_u32 %s, %s, v252" % (v(A3), s(sT1)))
    if not SSH:
        raise NotImplementedError
    e("s_mov_b32 exec_lo, 0x00010001"); e("s_mov_b32 exec_hi, 0x00010001")
    e("ds_write_b128 %s, %s offset:%d" % (v(A3), vr(acc_halo(0),4), X_CS))
    e("ds_write_b128 %s, %s offset:%d" % (v(A3), vr(acc_halo(1),4), X_CS + 5*64))
    e("s_cmp_gt_u32 %s, 1" % s(sWave))
    e("s_cbranch_scc1 L_e3a")
    e("s_mul_i32 %s, %s, 320" % (s(sT2), s(sWave)) + R)
    e("v_add_u32 v167, %s, v252" % s(sT2) + R)
    e("ds_write_b128 v167, %s offset:%d" % (vr(acc_halo(3),4), X_CS + 4*64) + R)
    e.lab("L_e3a")
    e("s_mov_b32 exec_lo, 0x0000ffff"); e("s_mov_b32 exec_hi, 0")
    e("ds_write_b32 %s, %s offset:%d" % (v(A4), v(acc_halo(2)), X_CS + 10*64))
    e("s_cmp_lg_u32 %s, 2" % s(sWave))
    e("s_cbranch_scc1 L_e3b")
    e("ds_write_b32 v253, %s offset:%d" % (v(acc_halo(3)), X_CS + 14*64) + R)
    e.lab("L_e3b")
    e("s_mov_b64 exec, -1")
    e("v_lshlrev_b32 v251, 3, %s" % v(vLane))
    e("s_lshl_b32 %s, %s, 9" % (s(sT2), s(sWave)))
    e("v_add_u32 %s, %s, v251" % (v(A5), s(sT2)))
    e("s_mul_i32 %s, %s, 5120" % (s(sT2), s(sWave)))
    e("v_add_u32 %s, %s, v251" % (v(A6), s(sT2)))
    e("s_waitcnt lgkmcnt(0)")
    e("s_barrier")
    if "epst" in OPTS: stamp(e, 8)
    CS4 = lambda c: 200 + 4*c
    nm4 = [136, 140]; rs4 = [144, 148]
    tHN, tHR = 152, 154
    csK = 156
    hn4, hr4 = 168, 172
    for c in range(5): e("ds_read_b128 %s, v252 offset:%d" % (vr(CS4(c),4), X_CS + c*64))
    for c in range(5, 10): e("ds_read_b128 %s, v252 offset:%d" % (vr(CS4(c),4), X_CS + c*64))
    e("ds_read_b128 %s, %s offset:%d" % (vr(csK,4), v(A3), X_CS + 5*64))
    def pkfma_bc(d, s0, sc, sfx=""):
        e("v_pk_fma_f32 %s, %s, %s, %s op_sel_hi:[1,0,1]%s" % (vr(d,2), vr(s0,2), vr(sc,2), vr(d,2), sfx))
    def pkmul_bc(d, sc, sfx=""):
        e("v_pk_mul_f32 %s, %s, %s op_sel_hi:[1,0]%s" % (vr(d,2), vr(d,2), vr(sc,2), sfx))
    t0, t1 = 166, 167
    for c in range(5):
        for T in (0, 1):
            d = acc_own(T, c); b = acc_own(T, 0)
            pkfma_bc(d, CS4(c), tNM[T]); pkfma_bc(d+2, CS4(c)+2, tNM[T])
            if c == 0:
                e("v_cvt_pk_bf16_f32 %s, %s, %s" % (v(d), v(d), v(d+1))); e("v_cvt_pk_bf16_f32 %s, %s, %s" % (v(d+1), v(d+2), v(d+3)))
            elif c == 4:
                e("v_cvt_pk_bf16_f32 %s, %s, %s" % (v(b+14), v(d), v(d+1))); e("v_cvt_pk_bf16_f32 %s, %s, %s" % (v(b+15), v(d+2), v(d+3)))
            else:
                e("v_cvt_pk_bf16_f32 %s, %s, %s" % (v(t0), v(d), v(d+1))); e("v_cvt_pk_bf16_f32 %s, %s, %s" % (v(t1), v(d+2), v(d+3)))
                e("v_and_b32 %s, %s, %s" % (v(d), v(t0), v(ML[c]))); e("v_and_b32 %s, %s, %s" % (v(d+1), v(t1), v(ML[c])))
                e("v_and_b32 %s, %s, %s" % (v(b+4*(c-1)+2), v(t0), v(MH[c-1]))); e("v_and_b32 %s, %s, %s" % (v(b+4*(c-1)+3), v(t1), v(MH[c-1])))
    for T in (0, 1):
        e("ds_read_b128 %s, %s offset:%d" % (vr(nm4[T],4), v(A2), X_NM + 64 + T*64))
        e("ds_read_b128 %s, %s offset:%d" % (vr(rs4[T],4), v(A2), X_RS + 64 + T*64))
    e("ds_read_b128 %s, v252 offset:%d" % (vr(hn4,4), X_NM))
    e("ds_read_b128 %s, v252 offset:%d" % (vr(hr4,4), X_RS))
    if "epst" in OPTS: stamp(e, 9)
    csd = [16, 18, 76, 78, 20]; csdW = 22
    for c in range(5, 10):
        for T in (0, 1):
            d = acc_own(T, c)
            pkfma_bc(d, CS4(c), tNM[T]); pkfma_bc(d+2, CS4(c)+2, tNM[T])
            pkmul_bc(d, tRS[T]); pkmul_bc(d+2, tRS[T])
            dst = (vKA, vKB)[T] + 2*(c-5)
            e("v_cvt_pk_bf16_f32 %s, %s, %s" % (v(dst), v(d), v(d+1)))
            e("v_cvt_pk_bf16_f32 %s, %s, %s" % (v(dst+1), v(d+2), v(d+3)))
        e("ds_write_b64 %s, %s offset:%d" % (v(A6), vr(vKB+2*(c-5),2), X_EX + 5120 + (c-5)*512))
        if c == 5:
            for i in range(5): e("ds_read_b32 %s, v253 offset:%d" % (v(csd[i]), X_CS + (10+i)*64))
            e("ds_read_b32 %s, %s offset:%d" % (v(csdW), v(A4), X_CS + 10*64))
    d = acc_halo(1)
    pkfma_bc(d, csK, tHN); pkfma_bc(d+2, csK+2, tHN); pkmul_bc(d, tHR); pkmul_bc(d+2, tHR)
    e("v_cvt_pk_bf16_f32 %s, %s, %s" % (v(d), v(d), v(d+1))); e("v_cvt_pk_bf16_f32 %s, %s, %s" % (v(d+1), v(d+2), v(d+3)))
    e("ds_write_b64 %s, %s offset:%d" % (v(A5), vr(d,2), X_EX))
    e("s_cmp_lg_u32 %s, 1" % s(sWave))
    e("s_cbranch_scc1 L_e3k")
    d = acc_halo(3)
    pkfma_bc(d, CS4(9), tHN, R); pkfma_bc(d+2, CS4(9)+2, tHN, R); pkmul_bc(d, tHR, R); pkmul_bc(d+2, tHR, R)
    e("v_cvt_pk_bf16_f32 %s, %s, %s" % (v(d), v(d), v(d+1)) + R); e("v_cvt_pk_bf16_f32 %s, %s, %s" % (v(d+1), v(d+2), v(d+3)) + R)
    e("ds_write_b64 v251, %s offset:%d" % (vr(d,2), X_EX + 4*512) + R)
    e.lab("L_e3k")
    def vtile(d, nm, rs, cd, sfx=""):
        for h_ in (0, 2):
            e("v_pk_fma_f32 %s, %s, %s, %s op_sel_hi:[1,0,1]%s" % (vr(d+h_,2), vr(nm+h_,2), vr(cd,2), vr(d+h_,2), sfx))
            e("v_pk_mul_f32 %s, %s, %s%s" % (vr(d+h_,2), vr(d+h_,2), vr(rs+h_,2), sfx))
    for i in range(5):
        c = 10 + i
        for T in (0, 1):
            d = acc_own(T, c)
            vtile(d, nm4[T], rs4[T], csd[i])
            dst = vVp + 6*i + 2 + 2*T
            e("v_cvt_pk_bf16_f32 %s, %s, %s" % (v(dst), v(d), v(d+1)))
            e("v_cvt_pk_bf16_f32 %s, %s, %s" % (v(dst+1), v(d+2), v(d+3)))
        e("ds_write_b64 %s, %s offset:%d" % (v(A6), vr(vVp+6*i+4,2), X_EX + 5120 + (5+i)*512))
    d = acc_halo(2)
    vtile(d, hn4, hr4, csdW)
    e("v_cvt_pk_bf16_f32 %s, %s, %s" % (v(d), v(d), v(d+1))); e("v_cvt_pk_bf16_f32 %s, %s, %s" % (v(d+1), v(d+2), v(d+3)))
    e("ds_write_b64 %s, %s offset:%d" % (v(A5), vr(d,2), X_EX + 5*512))
    e("s_cmp_lg_u32 %s, 2" % s(sWave))
    e("s_cbranch_scc1 L_e3v")
    d = acc_halo(3)
    vtile(d, hn4, hr4, csd[4], R)
    e("v_cvt_pk_bf16_f32 %s, %s, %s" % (v(d), v(d), v(d+1)) + R); e("v_cvt_pk_bf16_f32 %s, %s, %s" % (v(d+1), v(d+2), v(d+3)) + R)
    e("s_nop 1" + R)
    e("ds_write_b64 v251, %s offset:%d" % (vr(d,2), X_EX + 9*512) + R)
    e.lab("L_e3v")
    if "epst" in OPTS: stamp(e, 10)
    vBP, vBC, vBPA, vSel = 20, 24, 28, 32
    for r in range(4):
        e("v_accvgpr_read_b32 %s, %s" % (v(vBP+r), a(aST+r)))
        e("v_accvgpr_read_b32 %s, %s" % (v(vBC+r), a(aST+4+r)))
        e("v_accvgpr_read_b32 %s, %s" % (v(vSel+r), a(aST+8+r)))
    e("s_or_b32 %s, %s, %s" % (s(sT2), s(sWave), s(sRB)))
    e("s_cmp_eq_u32 %s, 0" % s(sT2))
    e("s_cselect_b32 %s, -1, 0" % s(sM+16)); e("s_cselect_b32 %s, -1, 0" % s(sM+17))
    e("v_mov_b32 v36, 0x%08x" % NEG)
    for r in range(4): e("v_cndmask_b32_e64 %s, %s, v36, %s" % (v(vBPA+r), v(vBP+r), sr(sM+16,2)))
    cF = [37, 38]
    for T in (0, 1):
        e("v_mul_f32 %s, 0x%08x, %s" % (v(cF[T]), f2u((20.0 ** -0.5) * 1.4426950408889634), v(tRS[T])))
    e("s_mov_b32 %s, 0xffff" % s(sM+8)); e("s_mov_b32 %s, 0" % s(sM+9))
    e("s_mov_b32 %s, -1" % s(sM+10)); e("s_mov_b32 %s, 0" % s(sM+11))
    e("s_mov_b32 %s, -1" % s(sM+12)); e("s_mov_b32 %s, 0xffff" % s(sM+13))
    attn_tile(e, 1, acc_own(1,0), vKA, vKB, lambda i: vVp+6*i+2, vBP, vBC, vSel, cF[1], tSTD[1])
    if "epst" in OPTS: stamp(e, 11)
    e("s_waitcnt lgkmcnt(0)")
    e("s_barrier")
    for i in range(5):
        e("ds_read_b64 %s, %s offset:%d" % (vr(vKP+2*i,2), v(A6), X_EX + i*512))
        e("ds_read_b64 %s, %s offset:%d" % (vr(vVp+6*i,2), v(A6), X_EX + (5+i)*512))
    attn_tile(e, 0, acc_own(0,0), vKP, vKA, lambda i: vVp+6*i, vBPA, vBC, vSel, cF[0], tSTD[0])

def attn_tile(e, T, qm, kprev, kcur, vfrag, bP, bC, vSel, cF, std):
    Qm = [qm + 4*h for h in range(4)]
    S0 = [80, 84, 88, 92]; S1 = [96, 100, 104, 108]
    P  = [112, 116, 120, 124]
    Lh = [128, 132, 40, 44]
    for h in range(4):
        e("%s %s, %s, %s, %s" % (MFMA, vr(S0[h],4), vr(kprev+2*h,4), vr(Qm[h],4), vr(bP,4)))
        e("%s %s, %s, %s, %s" % (MFMA, vr(S1[h],4), vr(kcur+2*h,4), vr(Qm[h],4), vr(bC,4)))
    va = [48, 50, 52, 54]; mx = [56, 57, 58, 59]
    for h in range(4):
        e("v_max3_f32 %s, %s, %s, %s" % (v(va[h]), v(S0[h]), v(S0[h]+1), v(S1[h])))
        e("v_max3_f32 %s, %s, %s, %s" % (v(va[h]+1), v(S0[h]+2), v(S0[h]+3), v(S1[h]+2)))
        e("v_max_f32 %s, %s, %s" % (v(va[h]), v(va[h]), v(S1[h]+1)))
        e("v_max_f32 %s, %s, %s" % (v(va[h]+1), v(va[h]+1), v(S1[h]+3)))
        e("v_max_f32 %s, %s, %s" % (v(mx[h]), v(va[h]), v(va[h]+1)))
    e("v_permlane32_swap_b32 %s, %s" % (v(mx[0]), v(mx[1])))
    e("v_permlane32_swap_b32 %s, %s" % (v(mx[2]), v(mx[3])))
    e("v_max_f32 %s, %s, %s" % (v(mx[0]), v(mx[0]), v(mx[1])))
    e("v_max_f32 %s, %s, %s" % (v(mx[2]), v(mx[2]), v(mx[3])))
    e("v_permlane16_swap_b32 %s, %s" % (v(mx[0]), v(mx[2])))
    e("v_max_f32 %s, %s, %s" % (v(mx[0]), v(mx[0]), v(mx[2])))
    e("v_mov_b32 %s, %s" % (v(mx[2]), v(mx[0])))
    e("v_permlane16_swap_b32 %s, %s" % (v(mx[0]), v(mx[2])))
    e("v_mov_b32 %s, %s" % (v(mx[1]), v(mx[0])))
    e("v_mov_b32 %s, %s" % (v(mx[3]), v(mx[2])))
    e("v_permlane32_swap_b32 %s, %s" % (v(mx[0]), v(mx[1])))
    e("v_permlane32_swap_b32 %s, %s" % (v(mx[2]), v(mx[3])))
    for h in range(4):
        e("v_mul_f32 %s, %s, %s" % (v(mx[h]), v(mx[h]), v(cF)))
    for h in range(4):
        e("v_fma_f32 %s, %s, %s, -%s" % (v(va[h]), v(va[h]), v(cF), v(mx[h])))
        e("v_fma_f32 %s, %s, %s, -%s" % (v(va[h]+1), v(va[h]+1), v(cF), v(mx[h])))
    for h in range(4):
        e("v_exp_f32 %s, %s" % (v(va[h]), v(va[h])))
        e("v_exp_f32 %s, %s" % (v(va[h]+1), v(va[h]+1)))
    for h in range(4):
        e("v_cvt_pk_bf16_f32 %s, %s, %s" % (v(va[h]), v(va[h]), v(va[h]+1)))
    for h in range(4):
        for k in range(4):
            e("v_perm_b32 %s, %s, %s, %s" % (v(P[h]+k), v(va[h]), v(va[h]), v(vSel+k)))
    pairs = [(0,0),(1,0),(1,1),(2,1),(2,2),(3,2),(3,3),(4,3)]
    O = {}
    free = S0 + S1
    for n, p_ in enumerate(pairs): O[p_] = free[n]
    for h in range(4):
        e("%s %s, %s, %s, 0" % (MFMA, vr(Lh[h],4), ar(aONE,4), vr(P[h],4)))
    for (i, h) in pairs:
        e("%s %s, %s, %s, 0" % (MFMA, vr(O[(i,h)],4), vr(vfrag(i),4), vr(P[h],4)))
    for h in range(4):
        e("v_rcp_f32 %s, %s" % (v(Lh[h]), v(Lh[h])))
    for h in range(4):
        e("v_mul_f32 %s, %s, %s" % (v(Lh[h]), v(Lh[h]), v(std)))
    F = [Lh[0], 60, 62, 64, Lh[3]]
    e("v_cndmask_b32_e64 %s, %s, %s, %s" % (v(F[1]), v(Lh[1]), v(Lh[0]), sr(sM+8,2)))
    e("v_cndmask_b32_e64 %s, %s, %s, %s" % (v(F[2]), v(Lh[2]), v(Lh[1]), sr(sM+10,2)))
    e("v_cndmask_b32_e64 %s, %s, %s, %s" % (v(F[3]), v(Lh[3]), v(Lh[2]), sr(sM+12,2)))
    Rr = {}
    Rr[0] = O[(0,0)]; Rr[4] = O[(4,3)]
    for i in (1, 2, 3):
        lo, hi = O[(i,i-1)], O[(i,i)]
        for r in range(4):
            e("v_cndmask_b32_e64 %s, %s, %s, %s" % (v(hi+r), v(hi+r), v(lo+r), sr(sM+8+2*(i-1),2)))
        Rr[i] = hi
    out = P[0]
    for i in range(5):
        e("v_pk_mul_f32 %s, %s, %s op_sel_hi:[1,0]" % (vr(Rr[i],2), vr(Rr[i],2), vr(F[i],2)))
        e("v_pk_mul_f32 %s, %s, %s op_sel_hi:[1,0]" % (vr(Rr[i]+2,2), vr(Rr[i]+2,2), vr(F[i],2)))
        e("v_cvt_pk_bf16_f32 %s, %s, %s" % (v(out+2*i), v(Rr[i]), v(Rr[i]+1)))
        e("v_cvt_pk_bf16_f32 %s, %s, %s" % (v(out+2*i+1), v(Rr[i]+2), v(Rr[i]+3)))
    e("s_lshl_b32 %s, %s, 1" % (s(sT0), s(sRB)))
    e("s_lshr_b32 %s, %s, 1" % (s(sT1), s(sWave)))
    e("s_add_u32 %s, %s, %s" % (s(sT0), s(sT0), s(sT1)))
    e("s_mul_i32 %s, %s, %d" % (s(sT0), s(sT0), ACT_TB))
    e("s_and_b32 %s, %s, 1" % (s(sT1), s(sWave)))
    e("s_lshl_b32 %s, %s, 11" % (s(sT1), s(sT1)))
    e("s_add_u32 %s, %s, %s" % (s(sT0), s(sT0), s(sT1)))
    e("s_add_u32 %s, %s, %d" % (s(sT0), s(sT0), ACT_OFF + T*1024))
    e("s_lshr_b32 %s, %s, 1" % (s(sT1), s(sCB)))
    e("s_mul_i32 %s, %s, 5" % (s(sT1), s(sT1)))
    e("s_and_b32 %s, %s, 1" % (s(sT2), s(sCB)))
    e("s_lshl_b32 %s, %s, 1" % (s(sT3), s(sT2)))
    e("s_add_u32 %s, %s, %s" % (s(sT3), s(sT3), s(sT1)))
    e("s_lshl_b32 %s, %s, 12" % (s(sT3), s(sT3)))
    e("s_add_u32 %s, %s, %s" % (s(sT3), s(sT3), s(sT0)))
    e("buffer_store_dwordx4 %s, %s, %s, %s offen sc1" % (vr(out,4), v(vL16), sr(sWS,4), s(sT3)))
    e("s_add_u32 %s, %s, 4096" % (s(sT3), s(sT3)))
    e("buffer_store_dwordx4 %s, %s, %s, %s offen sc1" % (vr(out+4,4), v(vL16), sr(sWS,4), s(sT3)))
    e("s_add_u32 %s, %s, 4" % (s(sT1), s(sT1)))
    e("s_lshl_b32 %s, %s, 12" % (s(sT1), s(sT1)))
    e("s_add_u32 %s, %s, %s" % (s(sT1), s(sT1), s(sT0)))
    e("s_lshl_b32 %s, %s, 3" % (s(sT2), s(sT2)))
    e("s_add_u32 %s, %s, %s" % (s(sT1), s(sT1), s(sT2)))
    e("buffer_store_dwordx2 %s, %s, %s, %s offen sc1" % (vr(out+8,2), v(vL16), sr(sWS,4), s(sT1)))

def sprinkle(lines, groups, start=0, end_gap=0):
    safe = []
    exec_full = True; skip = None
    n = len(lines)
    for i, t in enumerate(lines):
        tt = t.strip()
        prev = lines[i-1].strip() if i else ""
        ok = exec_full and skip is None
        if prev.startswith("s_cmp") or prev.startswith("v_cmp") or prev.startswith("s_and_b64") or prev.startswith("s_andn2") : ok = False
        if tt.startswith("s_cbranch") or tt.startswith("s_cselect") or tt.startswith("s_addc") or tt.endswith(":"): ok = False
        if tt.startswith("s_barrier") or tt.startswith("s_waitcnt"): ok = False
        if ok and start <= i < n - end_gap: safe.append(i)
        if tt.startswith("s_mov_b32 exec") : exec_full = False
        if tt.startswith("s_mov_b64 exec, -1"): exec_full = True
        if tt.startswith("s_cbranch"): skip = tt.split()[-1]
        if skip and tt == skip + ":": skip = None
    ng = len(groups)
    assert len(safe) >= ng, (len(safe), ng)
    at = {}
    for k in range(ng):
        at.setdefault(safe[k*len(safe)//ng], []).extend(groups[k])
    out = []
    for i, t in enumerate(lines):
        if i in at: out += ["  " + x for x in at[i]]
        out.append(t)
    return out

F_SLOT = 49152; F_XB = 16384
fWA = [160, 161, 162, 163]
F_X0, F_X1 = 164, 165
fXE, fXOd, fWL = 166, 167, 168
fDO = 169
def facc(T, c): return (T*8 + c)*4
fCS = 128
fSUM = [144, 148]
def fxf(kh, T): return aXF + (kh*4 + T)*4

def ffn_lane_setup(e):
    x_lane_setup(e, fXE, fXOd)
    e("v_lshrrev_b32 v6, 2, v1")
    e("v_lshlrev_b32 v6, 3, v6")
    e("v_and_b32 v7, 3, v1")
    e("v_add_u32 v6, v6, v7")
    e("v_mul_u32_u24 v6, 3456, v6")
    e("v_lshrrev_b32 v7, 1, v2")
    e("v_xor_b32 v7, v7, v3")
    e("v_lshlrev_b32 v7, 5, v7")
    e("v_and_b32 v8, 1, v2")
    e("v_lshlrev_b32 v8, 4, v8")
    e("v_add3_u32 v6, v6, v7, v8")
    e("s_lshl_b32 %s, %s, 9" % (s(sT0), s(sCB)))
    e("v_add_u32 %s, %s, v6" % (v(fWL), s(sT0)))

def ffn_cfg(w):
    cfg = Cfg()
    th, ch = w >> 1, w & 1
    cfg.ntile = 8; cfg.ring = 8; cfg.look = int(os.environ.get('LOOKF', 4)); cfg.tail = int(os.environ.get('TAILF', 2)); cfg.nfirst = cfg.look; cfg.wbase = aW
    def wread(kh, c, reg):
        off = (2*ch + (c >> 2))*8192 + kh*4096
        ad = v(fWA[c & 3])
        return ["ds_read_b64_tr_b16 %s, %s offset:%d" % (ar(reg,2), ad, off),
                "ds_read_b64_tr_b16 %s, %s offset:%d" % (ar(reg+2,2), ad, off + 2048)]
    def mf(kh, c, reg):
        out = []
        for T in range(4):
            d = vr(facc(T, c), 4)
            out.append("%s %s, %s, %s, %s" % (MFMA, d, ar(reg,4), ar(fxf(kh,T),4), d))
        if (c >> 2) == th and "nohalo" not in OPTS:
            d = vr(fCS + (c & 3)*4, 4)
            out.append("%s %s, %s, %s, %s" % (MFMA, d, ar(reg,4), ar(aONE,4), d))
        return out
    def stats(kh):
        return ["%s %s, %s, %s, %s" % (MFMA, vr(fSUM[j],4), ar(aONE,4), ar(fxf(kh,2*ch+j),4), vr(fSUM[j],4)) for j in (0,1)]
    def xreads(kh):
        ad = F_X1 if kh else F_X0
        return ["ds_read_b128 %s, %s offset:%d" % (ar(fxf(kh,T),4), v(ad), (4*th+T)*2048) for T in range(4)]
    cfg.wread = wread; cfg.mf = mf; cfg.stats = stats; cfg.xreads = xreads
    cfg.xread1_at = 2
    cfg.addr_update = addr_update(F_SLOT, fWA + [F_X0, F_X1])
    cfg.scal_update = scal_update(F_SLOT, 64*3456)
    cfg.dma_start = int(os.environ.get('DST', 2)); cfg.dma_skew = w*int(os.environ.get('DSK', 1)); cfg.dma_endgap = int(os.environ.get('DEG', 8))
    cfg.wstep = 64*3456; cfg.slot = F_SLOT
    return cfg

def read_addr_setup_ffn(e):
    e("v_and_b32 v1, 15, %s" % v(vLane))
    e("v_lshrrev_b32 v2, 2, v1")
    e("v_and_b32 v3, 3, v1")
    e("v_lshrrev_b32 v4, 4, %s" % v(vLane))
    e("v_lshl_add_u32 v2, v4, 2, v2")
    e("v_lshrrev_b32 v5, 1, v2")
    e("v_and_b32 v5, 3, v5")
    e("v_lshlrev_b32 v2, 7, v2")
    e("v_lshl_add_u32 v2, v3, 3, v2")
    e("v_add_u32 v2, %d, v2" % F_XB)
    for u in range(4):
        e("v_xor_b32 v6, %d, v5" % u)
        e("v_lshl_add_u32 %s, v6, 5, v2" % v(fWA[u]))
    xaddr_setup(e, F_X0, F_X1, 0)

def ffn_epilogue(e):
    e("s_lshr_b32 %s, %s, 1" % (s(sT0), s(sWave)))
    e("s_and_b32 %s, %s, 1" % (s(sT1), s(sWave)))
    e("v_and_b32 v253, 15, %s" % v(vLane)); e("v_lshlrev_b32 v253, 2, v253")
    e("v_lshrrev_b32 v252, 4, %s" % v(vLane)); e("v_lshlrev_b32 v252, 4, v252")
    e("s_lshl_b32 %s, %s, 8" % (s(sT2), s(sT0)))
    e("s_waitcnt vmcnt(%d)" % (13 + N_EA9()))
    e("s_mov_b32 %s, 0" % s(sIter))
    stats_check(e, "ffn", F_STD, F_STT)
    e("s_lshl_b32 %s, %s, 9" % (s(sT3), s(sT1)))
    e("v_add_u32 v254, %s, v252" % s(sT3))
    e("v_add_u32 v253, %s, v254" % s(sT2))
    e("s_mov_b32 exec_lo, 0x00010001"); e("s_mov_b32 exec_hi, 0x00010001")
    for q in range(4):
        e("ds_write_b128 v253, %s offset:%d" % (vr(fCS + q*4, 4), q*64))
    e("s_mov_b64 exec, -1")
    e("s_lshl_b32 %s, %s, 1" % (s(sT2), s(sRB)))
    e("s_add_u32 %s, %s, %s" % (s(sT0), s(sT0), s(sT2)))
    e("s_mul_i32 %s, %s, %d" % (s(sT0), s(sT0), ACT_TB))
    e("s_lshl_b32 %s, %s, 3" % (s(sT2), s(sCB)))
    e("s_lshl_b32 %s, %s, 2" % (s(sT3), s(sT1)))
    e("s_add_u32 %s, %s, %s" % (s(sT2), s(sT2), s(sT3)))
    e("s_add_u32 %s, %s, 20" % (s(sT2), s(sT2)))
    e("s_lshl_b32 %s, %s, 12" % (s(sT2), s(sT2)))
    e("s_add_u32 %s, %s, %s" % (s(sT0), s(sT0), s(sT2)))
    if ACT_OFF: e("s_add_u32 %s, %s, %d" % (s(sT0), s(sT0), ACT_OFF))
    e("s_mul_i32 %s, %s, 2" % (s(sT2), s(sCB)))
    e("s_add_u32 %s, %s, %s" % (s(sT2), s(sT2), s(sT1)))
    e("s_cmp_eq_u32 %s, 13" % s(sT2))
    e("s_cselect_b32 %s, 0x%x, 0" % (s(sT2), OOB))
    e("s_waitcnt lgkmcnt(0)")
    e("s_barrier")
    nm = F_STD
    CS = lambda c: 160 + 4*c
    for c in range(8): e("ds_read_b128 %s, v254 offset:%d" % (vr(CS(c),4), c*64))
    pk = [224, 228, 232, 236]
    n = 0
    for j in range(4):
        if j == 2: e("s_add_u32 %s, %s, %s" % (s(sT0), s(sT0), s(sT2)))
        for T in range(4):
            o = pk[n & 3]; n += 1
            for k in range(2):
                c = 2*j + k; d = facc(T, c); q = CS(c)
                e("v_pk_fma_f32 %s, %s, %s, %s op_sel_hi:[1,0,1]" % (vr(d,2), vr(q,2), vr(nm[T],2), vr(d,2)))
                e("v_pk_fma_f32 %s, %s, %s, %s op_sel_hi:[1,0,1]" % (vr(d+2,2), vr(q+2,2), vr(nm[T],2), vr(d+2,2)))
                e("v_cvt_pk_bf16_f32 %s, %s, %s" % (v(o+2*k), v(d), v(d+1)))
                e("v_cvt_pk_bf16_f32 %s, %s, %s" % (v(o+2*k+1), v(d+2), v(d+3)))
                e("v_pk_max_i16 %s, %s, 0" % (v(o+2*k), v(o+2*k)))
                e("v_pk_max_i16 %s, %s, 0" % (v(o+2*k+1), v(o+2*k+1)))
            e("buffer_store_dwordx4 %s, %s, %s, %s offen offset:%d sc1" % (vr(o,4), v(vL16), sr(sWS,4), s(sT0), T*1024))
        e("s_add_u32 %s, %s, 4096" % (s(sT0), s(sT0)))

U_ROW = 320
U_BYTES = 32*U_ROW
sPF = 60
vUO = [200, 201, 202]; vUH = [203, 204, 205]; vUT = [206, 207, 208]
sUW = [64, 65, 66]
sUl, sUn = 67, 68
def unit_setup_dyn(e):
    e("s_lshl_b32 %s, %s, 6" % (s(sT0), s(sWave)))
    for m in range(3):
        e("v_add_u32 v1, %s, %s" % (s(sT0), v(vLane)))
        if m: e("v_add_u32 v1, %d, v1" % (256*m))
        e("v_mul_u32_u24 v2, 3277, v1"); e("v_lshrrev_b32 v2, 16, v2")
        e("v_mul_u32_u24 v3, 20, v2"); e("v_sub_u32 v3, v1, v3")
        e("v_mul_u32_u24 v4, 1280, v2"); e("v_lshl_add_u32 %s, v3, 4, v4" % v(vUO[m]))
        e("v_lshrrev_b32 %s, 4, v2" % v(vUH[m]))
        if m == 2:
            e("v_mov_b32 v5, 0x40000000")
            e("v_cmp_le_u32 vcc, 640, v1")
            e("v_cndmask_b32_e64 %s, %s, v5, vcc" % (v(vUO[m]), v(vUO[m])))
            e("v_cndmask_b32_e64 %s, %s, 0, vcc" % (v(vUH[m]), v(vUH[m])))
    e("v_and_b32 v1, 15, %s" % v(vLane)); e("v_lshrrev_b32 v2, 2, v1"); e("v_and_b32 v3, 3, v1")
    e("v_lshrrev_b32 v4, 4, %s" % v(vLane)); e("v_lshl_add_u32 v2, v4, 2, v2")
    e("v_mul_u32_u24 v2, %d, v2" % U_ROW)
    for m in range(3):
        e("s_add_u32 %s, %s, %d" % (s(sT0), s(sWave), 4*m))
        e("s_cmp_ge_u32 %s, 5" % s(sT0)); e("s_cselect_b32 %s, 1, 0" % s(sT1))
        e("s_mul_i32 %s, %s, 5" % (s(sT2), s(sT1))); e("s_sub_u32 %s, %s, %s" % (s(sT2), s(sT0), s(sT2)))
        e("s_lshr_b32 %s, %s, 1" % (s(sT3), s(sT2))); e("s_lshl_b32 %s, %s, 6" % (s(sT3), s(sT3)))
        e("s_and_b32 %s, %s, 1" % (s(sD0), s(sT2))); e("s_lshl_b32 %s, %s, 3" % (s(sD0), s(sD0)))
        e("s_add_u32 %s, %s, %s" % (s(sT3), s(sT3), s(sD0)))
        e("s_mul_i32 %s, %s, 160" % (s(sD0), s(sT1))); e("s_add_u32 %s, %s, %s" % (s(sT3), s(sT3), s(sD0)))
        e("s_cmp_eq_u32 %s, 4" % s(sT2)); e("s_cselect_b32 %s, 3, 4" % s(sD0))
        e("v_lshlrev_b32 v5, %s, v3" % s(sD0))
        e("v_add3_u32 %s, v5, v2, %s" % (v(vUT[m]), s(sT3)))
        e("s_mul_i32 %s, %s, %d" % (s(sUW[m]), s(sT1), W2F_CB))
        e("s_lshl_b32 %s, %s, 10" % (s(sD0), s(sT2)))
        e("s_add_u32 %s, %s, %s" % (s(sUW[m]), s(sUW[m]), s(sD0)))
        e("s_cmp_ge_u32 %s, 10" % s(sT0)); e("s_cselect_b32 %s, 0x%x, %s" % (s(sUW[m]), 0x40000000, s(sUW[m])))
def unit_loads_dyn(e):
    sU = sUn
    e("s_lshr_b32 %s, %s, 2" % (s(sT0), s(sU)))
    e("s_and_b32 %s, %s, 3" % (s(sT1), s(sU)))
    e("s_mul_i32 %s, %s, 52" % (s(sT2), s(sT0))); e("s_lshr_b32 %s, %s, 8" % (s(sT2), s(sT2)))
    e("s_mul_i32 %s, %s, 5" % (s(sT3), s(sT2))); e("s_sub_u32 %s, %s, %s" % (s(sT3), s(sT0), s(sT3)))
    e("s_mul_i32 %s, %s, 160" % (s(sT2), s(sT2)))
    e("s_lshl_b32 %s, %s, 5" % (s(sD0), s(sT3)))
    e("s_cmp_ge_u32 %s, 2" % s(sT3)); e("s_cselect_b32 %s, 16, 0" % s(sD1))
    e("s_add_u32 %s, %s, %s" % (s(sD0), s(sD0), s(sD1)))
    e("s_cmp_eq_u32 %s, 4" % s(sT3)); e("s_cselect_b32 %s, 64, %s" % (s(sD0), s(sD0)))
    e("s_cselect_b32 %s, %d, 0" % (s(sD1), 64*1280))
    e("s_add_u32 %s, %s, %s" % (s(sD0), s(sD0), s(sT2)))
    e("s_sub_u32 %s, %s, 20" % (s(sT2), s(sT0))); e("s_lshl_b32 %s, %s, 5" % (s(sT2), s(sT2)))
    e("s_cmp_lt_u32 %s, 20" % s(sT0))
    e("s_cselect_b32 %s, %s, %s" % (s(sD0), s(sD0), s(sT2)))
    e("s_cselect_b32 %s, %s, 0" % (s(sD1), s(sD1)))
    e("s_cselect_b32 %s, s8, s14" % s(sPF))
    e("s_cselect_b32 %s, s9, s15" % s(sPF+1))
    e("s_cselect_b32 %s, %s, %s" % (s(sPF+2), s(sSzO), s(sSz2)))
    e("s_and_b32 %s, %s, 0xffff" % (s(sPF+1), s(sPF+1)))
    e("s_mov_b32 %s, 0x20000" % s(sPF+3))
    e("s_mul_i32 %s, %s, 1280" % (s(sD0), s(sD0)))
    e("s_mul_i32 %s, %s, 320" % (s(sT1), s(sT1)))
    e("s_add_u32 %s, %s, %s" % (s(sD0), s(sD0), s(sT1)))
    e("s_cmp_ge_u32 %s, %d" % (s(sU), 4*NKS)); e("s_cselect_b32 %s, 0x%x, %s" % (s(sD0), OOB, s(sD0)))
    e("s_lshl_b32 %s, %s, 10" % (s(sT0), s(sWave)))
    e("s_add_u32 %s, %s, %s" % (s(sT0), s(sT0), s(sUl)))
    for m in range(3):
        e("v_mad_u32_u24 %s, %s, %s, %s" % (v(210+m), v(vUH[m]), s(sD1), v(vUO[m])))
        if m < 2: e("s_add_u32 m0, %s, %d" % (s(sT0), 4096*m))
        else:
            e("s_add_u32 %s, %s, %d" % (s(sT1), s(sT0), 4096*m))
            e("s_cmp_ge_u32 %s, 2" % s(sWave))
            e("s_cselect_b32 m0, %d, %s" % (161792, s(sT1)))
        e("s_nop 0")
        e("buffer_load_dwordx4 %s, %s, %s offen lds" % (v(210+m), sr(sPF,4), s(sD0)))
def unit_store_dyn(e, vd=0, full_wait=False):
    sU = sUn
    e("s_lshr_b32 %s, %s, 2" % (s(sT0), s(sU)))
    e("s_and_b32 %s, %s, 3" % (s(sT1), s(sU)))
    e("s_mul_i32 %s, %s, 5120" % (s(sT0), s(sT0)))
    e("s_mul_i32 %s, %s, %d" % (s(sT1), s(sT1), 2*W2F_CB))
    e("s_add_u32 %s, %s, %s" % (s(sT0), s(sT0), s(sT1)))
    e("s_add_u32 %s, %s, %d" % (s(sT0), s(sT0), W2F_OFF))
    e("s_cmp_ge_u32 %s, %d" % (s(sU), 4*NKS)); e("s_cselect_b32 %s, 0x%x, %s" % (s(sT0), 0x30000000, s(sT0)))
    for m in range(3):
        e("v_add_u32 %s, %s, %s" % (v(213+m), s(sUl), v(vUT[m])))
        e("ds_read_b64_tr_b16 %s, %s" % (vr(vd+4*m,2), v(213+m)))
        e("ds_read_b64_tr_b16 %s, %s offset:%d" % (vr(vd+4*m+2,2), v(213+m), 16*U_ROW))
    for m in range(3):
        e("s_add_u32 %s, %s, %s" % (s(sT1), s(sT0), s(sUW[m])))
        e("s_waitcnt lgkmcnt(%d)" % (4 - 2*m if not full_wait else 0))
        e("buffer_store_dwordx4 %s, %s, %s, %s offen sc1" % (vr(vd+4*m,4), v(vL16), sr(sWS,4), s(sT1)))

def N_EA9():
    n = 5*EARLY_W2A
    h = 5*((n//2 + 4)//5) if n else 0
    return n - h
def pf_stats_loads(e):
    e("v_lshrrev_b32 v1, 4, %s" % v(vLane)); e("v_mul_u32_u24 v1, 1280, v1")
    e("v_and_b32 v2, 15, %s" % v(vLane)); e("v_lshl_add_u32 v14, v2, 4, v1")
    e("s_lshl_b32 %s, %s, 7" % (s(sT0), s(sCB))); e("s_lshl_b32 %s, %s, 5" % (s(sT1), s(sWave)))
    e("s_add_u32 %s, %s, %s" % (s(sT0), s(sT0), s(sT1))); e("s_mul_i32 %s, %s, 1280" % (s(sT0), s(sT0)))
    for grp in range(8):
        for i in range(5):
            e("buffer_load_dwordx4 %s, v14, %s, %s offen offset:%d ; rare" % (vr(16 + grp*20 + i*4, 4), sr(sX,4), s(sT0), i*256))
        e("s_add_u32 %s, %s, %d" % (s(sT0), s(sT0), 4*1280))
def pf_stats_compute(e):
    e("v_mov_b32 v15, 0x3f803f80")
    for grp in range(8):
        b = 16 + grp*20
        sm, sq = 176 + 2*grp, 177 + 2*grp
        e("v_mov_b32 %s, 0" % v(sm)); e("v_mov_b32 %s, 0" % v(sq))
        e("s_waitcnt vmcnt(%d)" % (35 - 5*grp))
        for i in range(20):
            e("v_dot2c_f32_bf16 %s, %s, v15" % (v(sm), v(b+i)))
            e("v_dot2c_f32_bf16 %s, %s, %s" % (v(sq), v(b+i), v(b+i)))
    for sh in (8, 4, 2, 1):
        for r in range(176, 192):
            e("v_add_f32_dpp %s, %s, %s row_ror:%d row_mask:0xf bank_mask:0xf" % (v(r), v(r), v(r), sh))
    e("v_lshrrev_b32 v1, 4, %s" % v(vLane)); e("v_lshlrev_b32 v1, 4, v1")
    e("s_lshl_b32 %s, %s, 7" % (s(sT0), s(sCB))); e("s_lshl_b32 %s, %s, 5" % (s(sT1), s(sWave)))
    e("s_add_u32 %s, %s, %s" % (s(sT0), s(sT0), s(sT1))); e("s_lshl_b32 %s, %s, 4" % (s(sT0), s(sT0)))
    e("s_add_u32 %s, %s, %d" % (s(sT0), s(sT0), STATS_OFF))
    for grp in range(8):
        sm, sq = 176 + 2*grp, 177 + 2*grp
        o = 16 + 4*grp
        e("v_mul_f32 %s, 0x%08x, %s" % (v(o), f2u(-1.0/640), v(sm)))
        e("v_mul_f32 %s, 0x%08x, %s" % (v(sq), f2u(1.0/640), v(sq)))
        e("v_fma_f32 %s, -%s, %s, %s" % (v(sq), v(o), v(o), v(sq)))
        e("v_max_f32 %s, 0, %s" % (v(sq), v(sq)))
        e("v_add_f32 %s, 0x%08x, %s" % (v(sq), f2u(1e-5), v(sq)))
        e("v_rsq_f32 %s, %s" % (v(o+1), v(sq)))
        e("v_mov_b32 %s, %s" % (v(o+3), s(sNonce)))
        e("v_mul_f32 %s, %s, %s" % (v(o+2), v(sq), v(o+1)))
    e("s_mov_b32 exec_lo, 0x00010001"); e("s_mov_b32 exec_hi, 0x00010001")
    for grp in range(8):
        e("buffer_store_dwordx4 %s, v1, %s, %s offen offset:%d sc1" % (vr(16+4*grp,4), sr(sWS,4), s(sT0), grp*64))
    e("s_mov_b64 exec, -1")
def stats_load_group(dst, tok_sgpr):
    return ["s_lshl_b32 %s, %s, 4" % (s(sP1), s(tok_sgpr)), "s_add_u32 %s, %s, %d" % (s(sP1), s(sP1), STATS_OFF),
            "buffer_load_dwordx4 %s, %s, %s, %s offen sc1" % (vr(dst,4), v(vT16), sr(sWS,4), s(sP1))]
A_STD, A_STT = [180, 184, 188], [74, 75, 101]
F_STD, F_STT = [200, 204, 208, 212], [73, 74, 75, 101]
vT16 = 251
def stats_check(e, tag, dsts, toks):
    R = " ; rare"
    e.lab("L_stc_%s" % tag)
    e("s_mov_b64 %s, exec" % sr(sM+16,2))
    for d in dsts:
        e("v_cmp_eq_u32 vcc, %s, %s" % (s(sNonce), v(d+3)))
        e("s_nop 1")
        e("s_and_b64 %s, %s, vcc" % (sr(sM+16,2), sr(sM+16,2)))
    e("s_cmp_eq_u64 %s, exec" % sr(sM+16,2))
    e("s_cbranch_scc1 L_stok_%s" % tag)
    e("s_add_u32 %s, %s, 1" % (s(sIter), s(sIter)) + R)
    e("s_cmp_gt_u32 %s, %d" % (s(sIter), SPIN_MAX) + R)
    e("s_cbranch_scc1 L_stok_%s" % tag + R)
    e("s_sleep 8" + R)
    for d, t in zip(dsts, toks):
        for x in stats_load_group(d, t): e(x + R)
    e("s_waitcnt vmcnt(0)" + R)
    e("s_branch L_stc_%s" % tag + R)
    e.lab("L_stok_%s" % tag)

def pf_loop(e, tag, fn, u0, n, lds0):
    e("s_add_u32 %s, %s, %d" % (s(sUn), s(sCB), 16*u0))
    e("s_mov_b32 %s, %d" % (s(sUl), lds0))
    e("s_mov_b32 %s, 0" % s(sIter))
    e.lab("L_pfl_%s" % tag)
    fn(e)
    e("s_add_u32 %s, %s, 16" % (s(sUn), s(sUn)))
    e("s_add_u32 %s, %s, %d" % (s(sUl), s(sUl), U_BYTES))
    e("s_add_u32 %s, %s, 1" % (s(sIter), s(sIter)))
    e("s_cmp_lt_u32 %s, %d" % (s(sIter), n))
    e("s_cbranch_scc1 L_pfl_%s" % tag)
N_FFN_UNITS = 2
def signal_count(e, off):
    R = " ; rare"
    e("v_mov_b32 v250, 1" + R); e("v_mov_b32 v251, 0" + R)
    e("s_mov_b32 exec_lo, 1" + R); e("s_mov_b32 exec_hi, 0" + R)
    e("buffer_atomic_add v250, v251, %s, 0 offen offset:%d sc1" % (sr(sDBG,4), off) + R)
    e("s_mov_b64 exec, -1" + R)
def spin_count(e, tag, off, target, vtmp, have_first=None):
    R = " ; rare"
    if have_first is not None:
        e("v_readfirstlane_b32 %s, %s" % (s(sT0), v(have_first)))
        e("s_nop 3")
        e("s_cmp_ge_u32 %s, %d" % (s(sT0), target))
        e("s_cbranch_scc1 L_cok_%s" % tag)
    e("s_mov_b32 %s, 0" % s(sT1) + R)
    e("v_mov_b32 %s, 0" % v(vtmp+1) + R)
    e.lab("L_cspin_%s" % tag)
    e("buffer_load_dword %s, %s, %s, 0 offen offset:%d sc1" % (v(vtmp), v(vtmp+1), sr(sDBG,4), off) + R)
    e("s_waitcnt vmcnt(0)" + R)
    e("v_readfirstlane_b32 %s, %s" % (s(sT0), v(vtmp)) + R)
    e("s_nop 3" + R)
    e("s_cmp_ge_u32 %s, %d" % (s(sT0), target) + R)
    e("s_cbranch_scc1 L_cok_%s" % tag + R)
    e("s_sleep %d" % CSLEEP + R)
    e("s_add_u32 %s, %s, 1" % (s(sT1), s(sT1)) + R)
    e("s_cmp_lt_u32 %s, %d" % (s(sT1), SPIN_MAX) + R)
    e("s_cbranch_scc1 L_cspin_%s" % tag + R)
    e.lab("L_cok_%s" % tag)
CSLEEP = 40
FSLEEP = int(os.environ.get('FSL', 8))
CNT_P, N_P = 4, 128

DA = 6
POLL_A_AT = int(os.environ.get('PAA', 5))
FFN_W2A_IN = 0
ATT_POLL_BACK = int(os.environ.get('APB', 90))
ATT_W2A_IN = int(os.environ.get('ATT_IN', 60))
ATT_ENDGAP = int(os.environ.get('ATT_GAP', 40))
W2A_BEFORE_SIG = int(os.environ.get('WBS', 12))

vAR = 80
vWR = 176
def act_soff(p, dst):
    if p < 14: return ["s_lshl_b32 %s, %s, 2" % (s(dst), s(sKQ[p])), "s_add_u32 %s, %s, %s" % (s(dst), s(dst), s(sAB))]
    return ["s_lshl_b32 %s, %s, 12" % (s(dst), s(sWave)), "s_add_u32 %s, %s, %s" % (s(dst), s(dst), s(sAB)),
            "s_add_u32 %s, %s, %d" % (s(dst), s(dst), 4*(p-14)*4096)]
vAO = [244, 246, 248, 249]
def act_loads(p):
    st = vAR + (p % DA)*16
    G = []
    for tt in range(4):
        g = act_soff(p, sD0) if tt == 0 else []
        g.append("buffer_load_dwordx4 %s, %s, %s, %s offen sc1" % (vr(st+4*tt,4), v(vAO[tt]), sr(sWS,4), s(sD0)))
        G.append(g)
    return G
PE_F = int(os.environ.get('PEF', 17))
XRES_AT = 14
BAR_AT = int(os.environ.get('BARAT', 5))
PE_A = int(os.environ.get('PEA', 17))
sMain = 100

def ao_setup(e, sfx=""):
    for tt in range(4):
        e("s_add_u32 %s, %s, %d%s" % (s(sT0), s(sWave), tt, sfx))
        e("s_and_b32 %s, %s, 3%s" % (s(sT0), s(sT0), sfx))
        e("s_lshl_b32 %s, %s, 10%s" % (s(sT0), s(sT0), sfx))
        e("v_add_u32 %s, %s, %s%s" % (v(vAO[tt]), s(sT0), v(vL16), sfx))

def build_main(tag, P0v):
    main = E()
    main.lab("L_ph2_main_" + tag)
    main("v_add_u32 v216, %s, %s" % (s(sLA), v(vL16)))
    main("v_add_u32 v217, %s, %s" % (s(sLB), v(vL16)))
    def wl_reads(p):
        out = []
        for ct in range(5):
            q = 5*p + ct
            ad, off = (216, q*1024) if q < 12 else (217, (q-12)*1024)
            out.append("ds_read_b128 %s, %s offset:%d" % (vr(vWR + (p & 1)*20 + ct*4, 4), v(ad), off))
        return out
    main.ext(wl_reads(0))
    main("v_lshlrev_b32 v218, 2, %s" % v(vLane))
    for tt in range(1, 4):
        main("s_add_u32 %s, %s, %d" % (s(sT0), s(sWave), tt))
        main("s_and_b32 %s, %s, 3" % (s(sT0), s(sT0)))
        main("s_mul_i32 %s, %s, 15360" % (s(sT0), s(sT0)))
        main("s_add_u32 %s, %s, %d" % (s(sT0), s(sT0), (tt-1)*5120))
        main("v_add_u32 %s, %s, %s" % (v(236+tt), s(sT0), v(vL16)))
    stamp(main, 9)
    NP = 19
    for p in range(NP):
        if "p2st" in OPTS and p in (1, 5, 9, 10, 14): stamp(main, {1: 1, 5: 2, 9: 3, 10: 4, 14: 5}[p])
        if "p2stb" in OPTS and p in (10, 12, 14, 16, 18): stamp(main, {10: 1, 12: 2, 14: 3, 16: 4, 18: 5}[p])
        ms = []
        order = [(ct, tt) for ct in range(5) for tt in range(4)] if p < NP - 1 else [(ct, tt) for tt in (1, 2, 3, 0) for ct in range(5)]
        for ct, tt in order:
            if p < 5: wsrc = vr(vWR + (p & 1)*20 + ct*4, 4)
            else:     wsrc = ar(((p - 5) % 12)*20 + ct*4, 4)
            d = vr((tt*5+ct)*4, 4)
            ms.append("%s %s, %s, %s, %s" % (MFMA, d, wsrc, vr(vAR + (p % DA)*16 + 4*tt, 4), d if p else "0"))
        aux = []
        if p + 1 < 5: aux += [[t] for t in wl_reads(p + 1)]
        q = p - 1 + DA
        if p >= 1 and q < NP:
            if q == 14:
                sp = E(); spin_flags(sp, "a" + tag, MASK_A, 250, have_first=219)
                main.ext(sp.L)
            aux += act_loads(q)
        if p == XRES_AT:
            rx = E()
            rx("v_and_b32 v220, 15, %s" % v(vLane)); rx("v_lshrrev_b32 v221, 4, %s" % v(vLane))
            rx("s_lshl_b32 %s, %s, 6" % (s(sT0), s(sTB))); rx("s_lshl_b32 %s, %s, 4" % (s(sT1), s(sWave)))
            rx("s_add_u32 %s, %s, %s" % (s(sT0), s(sT0), s(sT1)))
            rx("v_add_u32 v220, %s, v220" % s(sT0)); rx("v_lshlrev_b32 v222, 4, v220")
            rx("v_mul_u32_u24 v220, 1280, v220")
            rx("s_mul_i32 %s, %s, 160" % (s(sT1), s(sC2))); rx("v_add_u32 v220, %s, v220" % s(sT1))
            rx("v_lshl_add_u32 v240, v221, 4, v220"); rx("v_lshl_add_u32 v242, v221, 3, v220")
            rx("s_mov_b32 %s, %d" % (s(sT2), STATS_OFF + 4))
            rx("buffer_load_dwordx4 v[224:227], v240, %s, 0 offen" % sr(sX,4))
            rx("buffer_load_dwordx4 v[228:231], v240, %s, 0 offen offset:64" % sr(sX,4))
            rx("buffer_load_dwordx2 v[232:233], v242, %s, 0 offen offset:128" % sr(sX,4))
            rx("buffer_load_dword v234, v222, %s, %s offen sc1" % (sr(sWS,4), s(sT2)))
            aux += [[t.strip()] for t in rx.L]
        if p == POLL_A_AT:
            aux.append(["buffer_load_dword v219, v218, %s, %s offen sc1" % (sr(sWS,4), s(sFL))])
        if P0v <= p + 7 <= 16: aux += w2a_groups(p + 7, p + 8)
        if p == 10: aux += w2a_groups(17, 18)
        if p == 11: aux += w2a_groups(18, 19)
        if p == BAR_AT: aux.append(["s_barrier"])
        if tag == "A" and p == 1:
            sg = E(); sg("s_barrier"); signal_rb(sg, "attn", None, vt=(220, 221))
            main.ext(sg.L)
        n = len(ms); k = 0
        wq = [(tt, ct) for tt in range(1, 4) for ct in range(5)] if p == NP - 1 else []
        for i_, m in enumerate(ms):
            main(m)
            want = (i_ + 1)*len(aux) // n
            while k < want:
                main.ext(aux[k]); k += 1
            if wq and i_ >= 5:
                tt, ct = wq.pop(0)
                main("ds_write_b128 %s, %s offset:%d" % (v(236+tt), vr((tt*5+ct)*4,4), ct*1024))
        for tt, ct in wq:
            main("ds_write_b128 %s, %s offset:%d" % (v(236+tt), vr((tt*5+ct)*4,4), ct*1024))
    stamp(main, 10)
    main("s_branch L_ph2_tail")
    st = State(); d = []
    pre = []
    for g in w2a_groups(5, P0v): pre += ["  " + t for t in g]
    for p in range(DA):
        for g in act_loads(p): pre += ["  " + t for t in g]
    st = process(pre, st, d); st.hist = []
    o = []; st = process(main.L, st, o)
    return o, st

def phase2():
    e = E()
    e.lab("L_ph2")
    if "dlymid" in OPTS: e("s_sleep 64")
    stamp(e, 8)
    ao_setup(e)
    check_flags(e, MASK_F, vPoll, "L_ph2_ok2")
    spin_flags(e, "f", MASK_F, 250)
    e.lab("L_ph2_ok2")
    for p in range(DA):
        for g in act_loads(p): e.ext(["%s ; rare" % t for t in g])
    e("s_branch L_ph2_main_F")
    o0 = []; process(e.L, State(), o0)
    oF, stF = build_main("F", PE_F)
    oA, stA = build_main("A", PE_A)
    stA.merge(stF); stA.hist = []
    main = E()
    main.lab("L_ph2_tail")
    srd(main, sW, 16, X_BYTES)
    main("s_mul_i32 %s, %s, 15360" % (s(sT0), s(sWave)))
    main("v_add_u32 v236, %s, %s" % (s(sT0), v(vL16)))
    xr = [224, 226, 228, 230, 232]
    X = 180
    for ct in range(5):
        for hh in range(2):
            main("v_lshlrev_b32 %s, 16, %s" % (v(X + ct*4 + 2*hh), v(xr[ct]+hh)))
            main("v_and_b32 %s, 0xffff0000, %s" % (v(X + ct*4 + 2*hh + 1), v(xr[ct]+hh)))
    main("s_waitcnt lgkmcnt(0)")
    main("s_barrier")
    for k in range(3):
        for ct in range(5):
            main("ds_read_b128 %s, v236 offset:%d" % (vr(80 + (k*5+ct)*4, 4), (k*5+ct)*1024))
    o = 150
    for kk in range(2):
        for ct in range(5):
            for hh in range(2):
                r = ct*4 + 2*hh
                main("v_pk_add_f32 %s, %s, %s" % (vr(r,2), vr(r,2), vr(80 + 20*kk + r, 2)))
    for ct in range(5):
        for hh in range(2):
            r = ct*4 + 2*hh
            main("v_pk_add_f32 %s, %s, %s" % (vr(r,2), vr(r,2), vr(120 + r, 2)))
            main("v_pk_fma_f32 %s, %s, %s, %s op_sel_hi:[1,0,1]" % (vr(X+r,2), vr(r,2), vr(234,2), vr(X+r,2)))
            main("v_cvt_pk_bf16_f32 %s, %s, %s" % (v(o + 2*ct + hh), v(X+r), v(X+r+1)))
    fl = " sc1" if "outsc1" in OPTS else (" nt" if "outnt" in OPTS else "")
    main("buffer_store_dwordx4 %s, v240, %s, 0 offen%s" % (vr(o,4), sr(sW,4), fl))
    main("buffer_store_dwordx4 %s, v240, %s, 0 offen offset:64%s" % (vr(o+4,4), sr(sW,4), fl))
    main("buffer_store_dwordx2 %s, v242, %s, 0 offen offset:128%s" % (vr(o+8,2), sr(sW,4), fl))
    if "dlyend" in OPTS: main("s_sleep 64")
    stamp(main, 11)
    if "stamp" in OPTS: main("s_waitcnt vmcnt(0)")
    stamp(main, 12)
    stamp_flush(main)
    o2 = []; process(["  s_nop 7"] + main.L, stA, o2)
    return o0 + oF + oA + o2

def top():
    out = []
    e = E()
    e("s_load_dwordx16 s[4:19], s[0:1], 0")
    e("s_load_dwordx2 s[20:21], s[0:1], 64")
    e("s_cmp_ge_u32 s2, 256")
    e("s_cbranch_scc1 L_end")
    if "stamp" in OPTS: e("v_mov_b32 %s, 0" % v(vSt))
    if "ep2x" in OPTS: e("s_mov_b32 s100, 0")
    if "dlystart" in OPTS: e("s_sleep 64")
    e("s_getpc_b64 s[60:61]")
    e.lab("L_pcbase")
    e("s_lshr_b32 s3, s2, 3")
    e("s_lshl_b32 s3, s3, 12")
    e("v_lshl_add_u32 v2, v0, 4, s3")
    e("v_min_u32 v2, L_codeend-L_pcbase-16, v2")
    if "nopf" not in OPTS: e("global_load_dwordx4 v[236:239], v2, s[60:61]")
    e("v_and_b32 %s, 63, v0" % v(vLane))
    e("v_lshrrev_b32 v1, 6, v0")
    e("s_and_b32 s3, s2, 7")
    e("v_readfirstlane_b32 %s, v1" % s(sWave))
    e("s_lshr_b32 %s, s2, 3" % s(sT0))
    e("s_and_b32 %s, s3, 1" % s(sT1))
    e("s_lshr_b32 %s, s3, 1" % s(sT2))
    e("s_lshl_b32 %s, %s, 3" % (s(sT1), s(sT1)))
    e("s_cmp_ge_u32 %s, 30" % s(sT0))
    e("s_cbranch_scc1 L_role_pf")
    e("s_cmp_ge_u32 %s, 16" % s(sT0))
    e("s_cbranch_scc1 L_role_ffn")
    e("s_lshl_b32 %s, %s, 1" % (s(sCB), s(sT2)))
    e("s_lshr_b32 %s, %s, 3" % (s(sT3), s(sT0)))
    e("s_add_u32 %s, %s, %s" % (s(sCB), s(sCB), s(sT3)))
    e("s_and_b32 %s, %s, 7" % (s(sKC), s(sT0)))
    e("s_add_u32 %s, %s, %s" % (s(sRB), s(sT1), s(sKC)))
    e("s_mul_i32 %s, %s, 5" % (s(sT3), s(sT3)))
    e("s_add_u32 %s, %s, %s" % (s(sKC), s(sKC), s(sT3)))
    e("s_cmp_ge_u32 %s, 10" % s(sKC))
    e("s_cselect_b32 %s, 10, 0" % s(sT3))
    e("s_sub_u32 %s, %s, %s" % (s(sKC), s(sKC), s(sT3)))
    if "rotk" not in OPTS: e("s_mov_b32 %s, 0" % s(sKC))
    if "rot4" in OPTS:
        e("s_and_b32 %s, %s, 1" % (s(sT3), s(sCB))); e("s_lshl_b32 %s, %s, 1" % (s(sT3), s(sT3)))
        e("s_add_u32 %s, %s, %s" % (s(sT3), s(sT3), s(sRB))); e("s_and_b32 %s, %s, 3" % (s(sT3), s(sT3)))
        e("s_mul_i32 %s, %s, 5" % (s(sT3), s(sT3))); e("s_lshr_b32 %s, %s, 1" % (s(sKC), s(sT3)))
    if ROTN == 5:
        e("s_and_b32 %s, %s, 1" % (s(sT3), s(sCB))); e("s_mul_i32 %s, %s, 3" % (s(sT3), s(sT3)))
        e("s_add_u32 %s, %s, %s" % (s(sT3), s(sT3), s(sRB))); e("s_mul_i32 %s, %s, 52" % (s(sKC), s(sT3))); e("s_lshr_b32 %s, %s, 8" % (s(sKC), s(sKC)))
        e("s_mul_i32 %s, %s, 5" % (s(sKC), s(sKC))); e("s_sub_u32 %s, %s, %s" % (s(sKC), s(sT3), s(sKC))); e("s_lshl_b32 %s, %s, 1" % (s(sKC), s(sKC)))
    if ROTN == 3:
        e("s_and_b32 %s, %s, 1" % (s(sT3), s(sCB))); e("s_add_u32 %s, %s, %s" % (s(sT3), s(sT3), s(sRB)))
        e("s_mul_i32 %s, %s, 86" % (s(sKC), s(sT3))); e("s_lshr_b32 %s, %s, 8" % (s(sKC), s(sKC)))
        e("s_mul_i32 %s, %s, 3" % (s(sKC), s(sKC))); e("s_sub_u32 %s, %s, %s" % (s(sKC), s(sT3), s(sKC))); e("s_mul_i32 %s, %s, 3" % (s(sKC), s(sKC)))
    e("s_mul_i32 %s, %s, %d" % (s(sXO), s(sRB), 128*1280))
    e("s_sub_u32 %s, %s, %d" % (s(sXH), s(sXO), 16*1280))
    e("s_cmp_eq_u32 %s, 0" % s(sRB))
    e("s_cselect_b32 %s, 0, %s" % (s(sXH), s(sXH)))
    e("s_add_u32 %s, %s, 8" % (s(sSig), s(sCB)))
    attn_lane_setup(e)
    e("s_waitcnt lgkmcnt(0)")
    srd(e, sX, 4, X_BYTES); srd(e, sW, 6, WQKV_BYTES); srd(e, sWS, 20, WS_USED); srd(e, sDBG, 18, 256)
    stamp(e, 0)
    attn_first_dma(e, 1 if 'late1' in OPTS else 2)
    stamp(e, 1)
    for w in range(3):
        e("s_cmp_eq_u32 %s, %d" % (s(sWave), w))
        e("s_cbranch_scc1 L_attn_%d" % w)
    e("s_branch L_attn_3")
    e.lab("L_role_ffn")
    e("s_mul_i32 %s, %s, 14" % (s(sT2), s(sT2)))
    e("s_add_u32 %s, %s, %s" % (s(sT2), s(sT2), s(sT0)))
    e("s_sub_u32 %s, %s, 16" % (s(sT2), s(sT2)))
    e("s_lshr_b32 %s, %s, 3" % (s(sCB), s(sT2)))
    e("s_and_b32 %s, %s, 7" % (s(sKC), s(sT2)))
    e("s_add_u32 %s, %s, %s" % (s(sRB), s(sT1), s(sKC)))
    e("s_and_b32 %s, %s, 1" % (s(sT3), s(sCB)))
    e("s_mul_i32 %s, %s, 5" % (s(sT3), s(sT3)))
    e("s_add_u32 %s, %s, %s" % (s(sKC), s(sKC), s(sT3)))
    e("s_add_u32 %s, %s, 2" % (s(sKC), s(sKC)))
    e("s_cmp_ge_u32 %s, 10" % s(sKC))
    e("s_cselect_b32 %s, 10, 0" % s(sT3))
    e("s_sub_u32 %s, %s, %s" % (s(sKC), s(sKC), s(sT3)))
    if "rotk" not in OPTS: e("s_mov_b32 %s, 0" % s(sKC))
    if "rot4" in OPTS:
        e("s_and_b32 %s, %s, 1" % (s(sT3), s(sCB))); e("s_lshl_b32 %s, %s, 1" % (s(sT3), s(sT3)))
        e("s_add_u32 %s, %s, %s" % (s(sT3), s(sT3), s(sRB))); e("s_add_u32 %s, %s, 1" % (s(sT3), s(sT3))); e("s_and_b32 %s, %s, 3" % (s(sT3), s(sT3)))
        e("s_mul_i32 %s, %s, 5" % (s(sT3), s(sT3))); e("s_lshr_b32 %s, %s, 1" % (s(sKC), s(sT3)))
    if ROTN == 5:
        e("s_and_b32 %s, %s, 1" % (s(sT3), s(sCB))); e("s_mul_i32 %s, %s, 3" % (s(sT3), s(sT3))); e("s_add_u32 %s, %s, 1" % (s(sT3), s(sT3)))
        e("s_add_u32 %s, %s, %s" % (s(sT3), s(sT3), s(sRB))); e("s_mul_i32 %s, %s, 52" % (s(sKC), s(sT3))); e("s_lshr_b32 %s, %s, 8" % (s(sKC), s(sKC)))
        e("s_mul_i32 %s, %s, 5" % (s(sKC), s(sKC))); e("s_sub_u32 %s, %s, %s" % (s(sKC), s(sT3), s(sKC))); e("s_lshl_b32 %s, %s, 1" % (s(sKC), s(sKC)))
    if ROTN == 3:
        e("s_and_b32 %s, %s, 1" % (s(sT3), s(sCB))); e("s_add_u32 %s, %s, %s" % (s(sT3), s(sT3), s(sRB))); e("s_add_u32 %s, %s, 2" % (s(sT3), s(sT3)))
        e("s_mul_i32 %s, %s, 86" % (s(sKC), s(sT3))); e("s_lshr_b32 %s, %s, 8" % (s(sKC), s(sKC)))
        e("s_mul_i32 %s, %s, 3" % (s(sKC), s(sKC))); e("s_sub_u32 %s, %s, %s" % (s(sKC), s(sT3), s(sKC))); e("s_mul_i32 %s, %s, 3" % (s(sKC), s(sKC)))
    e("s_mul_i32 %s, %s, %d" % (s(sXO), s(sRB), 128*1280))
    e("s_mov_b32 %s, %s" % (s(sSig), s(sCB)))
    e("s_mul_i32 %s, %s, 7" % (s(sUn), s(sT1)))
    e("s_add_u32 %s, %s, %s" % (s(sUn), s(sUn), s(sT2)))
    ffn_lane_setup(e)
    e("s_waitcnt lgkmcnt(0)")
    srd(e, sX, 4, X_BYTES); srd(e, sW, 12, W1_BYTES); srd(e, sWS, 20, WS_USED); srd(e, sDBG, 18, 256); srd(e, sQ, 6, WQKV_BYTES)
    stamp(e, 0)
    ffn_first_dma(e, 1 if 'late1' in OPTS else 2)
    stamp(e, 1)
    for w in range(3):
        e("s_cmp_eq_u32 %s, %d" % (s(sWave), w))
        e("s_cbranch_scc1 L_ffn_%d" % w)
    e("s_branch L_ffn_3")
    e.lab("L_role_pf")
    e("s_lshl_b32 %s, s3, 1" % s(sCB))
    e("s_add_u32 %s, %s, %s" % (s(sCB), s(sCB), s(sT0)))
    e("s_sub_u32 %s, %s, 30" % (s(sCB), s(sCB)))
    e("s_waitcnt lgkmcnt(0)")
    srd(e, sX, 4, X_BYTES); srd(e, sWS, 20, WS_USED); srd(e, sDBG, 18, 256)
    stamp(e, 0)
    e("v_lshlrev_b32 %s, 4, %s" % (v(vL16), v(vLane)))
    srd(e, sPF, 14, W2_BYTES)
    e("s_mul_i32 %s, %s, 640" % (s(sT0), s(sWave)))
    for m in range(10):
        e("v_add_u32 v1, %s, %s" % (s(sT0), v(vLane)))
        if m: e("v_add_u32 v1, %d, v1" % (64*m))
        e("v_mul_u32_u24 v2, 3277, v1"); e("v_lshrrev_b32 v2, 18, v2")
        e("v_mul_u32_u24 v3, 80, v2"); e("v_sub_u32 v3, v1, v3")
        e("v_and_b32 v4, 7, v2"); e("v_lshlrev_b32 v4, 1, v4"); e("v_xor_b32 v3, v3, v4")
        e("v_mul_u32_u24 v2, 1280, v2"); e("v_lshl_add_u32 %s, v3, 4, v2" % v(216+m))
    if PF_DELAY: e("s_sleep %d" % PF_DELAY)
    if "pfnonce" in OPTS: get_nonce(e, "pf0", 250)
    for i in range(3):
        e("s_add_u32 %s, %s, %d" % (s(68+i), s(sCB), 28 + 16*i))
        e("s_sub_u32 %s, %s, 20" % (s(sT0), s(68+i)))
        e("s_mul_i32 %s, %s, 40960" % (s(sT0), s(sT0)))
        e("s_cmp_ge_u32 %s, %d" % (s(68+i), NKS)); e("s_cselect_b32 %s, 0x%x, %s" % (s(sT0), OOB, s(sT0)))
        e("s_mul_i32 %s, %s, 10240" % (s(sT1), s(sWave)))
        for m in range(10):
            e("s_add_u32 m0, %s, %d" % (s(sT1), i*40960 + 1024*m))
            e("s_nop 0")
            e("buffer_load_dwordx4 %s, %s, %s offen lds" % (v(216+m), sr(sPF,4), s(sT0)))
    stamp(e, 1)
    e("v_and_b32 v1, 15, %s" % v(vLane)); e("v_lshrrev_b32 v2, 2, v1"); e("v_and_b32 v3, 3, v1")
    e("v_lshrrev_b32 v4, 4, %s" % v(vLane)); e("v_lshl_add_u32 v2, v4, 2, v2")
    e("v_and_b32 v5, 7, v2"); e("v_lshlrev_b32 v5, 5, v5")
    e("v_mul_u32_u24 v2, 1280, v2")
    e("s_mul_i32 %s, %s, 320" % (s(sT0), s(sWave)))
    for half in range(2):
        for ct in range(5):
            if ct < 4: off = half*160 + (ct >> 1)*64 + (ct & 1)*8; sh = 4
            else: off = half*160 + 128; sh = 3
            d = 226 + half*5 + ct
            e("v_lshlrev_b32 v6, %d, v3" % sh)
            e("s_add_u32 %s, %s, %d" % (s(sT1), s(sT0), off))
            e("v_add_u32 v6, %s, v6" % s(sT1))
            e("v_xor_b32 v6, v6, v5")
            e("v_add_u32 %s, v6, v2" % v(d))
    if SSH and "pfnonce" not in OPTS: get_nonce(e, "pfs", 250)
    if SSH and XL_AT == 2:
        if XL_DELAY: e("s_sleep %d" % XL_DELAY)
        pf_stats_loads(e)
        e("s_waitcnt vmcnt(40)")
    else: e("s_waitcnt vmcnt(0)")
    e("s_barrier")
    stamp(e, 2)
    if SSH and XL_AT == 0: pf_stats_loads(e)
    for i in range(3):
        e("s_mul_i32 %s, %s, 5120" % (s(sT0), s(68+i)))
        e("s_mul_i32 %s, %s, %d" % (s(sT1), s(sWave), 2*W2F_CB))
        e("s_add_u32 %s, %s, %s" % (s(sT0), s(sT0), s(sT1)))
        e("s_add_u32 %s, %s, %d" % (s(sT0), s(sT0), W2F_OFF))
        e("s_cmp_ge_u32 %s, %d" % (s(68+i), NKS)); e("s_cselect_b32 %s, 0x%x, %s" % (s(sT0), 0x40000000, s(sT0)))
        for t in range(10):
            d = 176 + t*4
            e("ds_read_b64_tr_b16 %s, %s" % (vr(d,2), v(226+t)))
            e("ds_read_b64_tr_b16 %s, %s offset:%d" % (vr(d+2,2), v(226+t), 16*1280))
        if i < 2:
            for t in range(10): e("v_add_u32 %s, 40960, %s" % (v(226+t), v(226+t)))
        for t in range(10):
            half, ct = divmod(t, 5)
            d = 176 + t*4
            e("s_add_u32 %s, %s, %d" % (s(sT1), s(sT0), half*W2F_CB + ct*1024))
            e("buffer_store_dwordx4 %s, %s, %s, %s offen sc1" % (vr(d,4), v(vL16), sr(sWS,4), s(sT1)))
    stamp(e, 3)
    e("s_waitcnt vmcnt(0)")
    e("s_barrier")
    e("s_cmp_lg_u32 %s, 0" % s(sWave))
    e("s_cbranch_scc1 L_pf_nosig")
    signal_count(e, CNT_P)
    e.lab("L_pf_nosig")
    stamp(e, 4)
    if SSH:
        if XL_AT == 1: pf_stats_loads(e)
        else: e("s_waitcnt vmcnt(0)")
        pf_stats_compute(e)
        stamp(e, 6)
    ph2_setup(e, F_SLOT)
    e("s_cmp_lg_u32 %s, 0" % s(sWave))
    e("s_cbranch_scc1 L_pf_nospin")
    spin_count(e, "pf", CNT_P, N_P, 250)
    e.lab("L_pf_nospin")
    e("s_barrier")
    get_nonce(e, "pf", 250)
    stamp(e, 5)
    if "ph1only" in OPTS: stamp_flush(e); e("s_endpgm")
    for g in w2l_groups(0, 25): e.ext(g)
    e("v_lshlrev_b32 v2, 2, %s" % v(vLane))
    e("buffer_load_dword %s, v2, %s, %s offen sc1" % (v(vPoll), sr(sWS,4), s(sFL)))
    for g in w2a_groups(5, PE_F): e.ext(g)
    e("s_mov_b32 %s, 1" % s(sMain))
    e("s_waitcnt vmcnt(%d)" % (5*(PE_F-5)))
    e("s_branch L_ph2")
    out += process_path(e.L, None, None, [])
    for role in ("attn", "ffn"):
        for w in range(4):
            tag = "%s_%d" % (role, w)
            pre = E(); pre.lab("L_" + tag)
            if role == "attn":
                cfg = attn_cfg(w)
                def extra(e, w=w):
                    read_addr_setup_attn(e)
                    attn_stash(e)
                    if w == 0:
                        e("s_cmp_lg_u32 s2, 0 ; rare"); e("s_cbranch_scc1 L_nononce ; rare")
                        e("s_memrealtime s[96:97] ; rare"); e("s_waitcnt lgkmcnt(0) ; rare")
                        e("s_or_b32 s96, s96, 1 ; rare"); e("v_mov_b32 v14, s96 ; rare"); e("v_mov_b32 v15, 0 ; rare")
                        e("buffer_store_dword v14, v15, %s, 0 offen sc1 ; rare" % sr(sDBG,4))
                        e.lab("L_nononce")
                        e("v_and_b32 v2, 7, %s" % v(vLane))
                        e("v_lshlrev_b32 v7, 4, v2")
                        e("v_mov_b32 v8, 0x3f803f80"); e("v_mov_b32 v9, v8"); e("v_mov_b32 v10, v8"); e("v_mov_b32 v11, v8")
                        e("ds_write_b128 v7, v[8:11]")
                        e("v_add_u32 v12, %d, v7" % A_SLOT); e("ds_write_b128 v12, v[8:11]")
                        e("v_add_u32 v13, %d, v7" % (2*A_SLOT)); e("ds_write_b128 v13, v[8:11]")
                body, post, side = role_main(pre, tag, cfg, attn_dma_list(w), vDO, w, 136, extra)
            else:
                cfg = ffn_cfg(w)
                body, post, side = role_main(pre, tag, cfg, ffn_dma_list(w), fDO, w, 144, read_addr_setup_ffn, units=("nounits" not in OPTS))
            post("s_branch L_ep_%s" % role)
            out += process_path(pre.L, "L_loop_" + tag, body, post.L)
            out += side
        ep = E()
        if role == "attn": attn_epilogue(ep)
        else: ffn_epilogue(ep)
        last = PE_A if role == "attn" else PE_F
        groups = (w2a_groups(5, 9) + w2a_groups(9 + EARLY_W2A, last)) if "ph1only" not in OPTS else []
        nin = (min(ATT_W2A_IN, len(groups)) if role == "attn" else FFN_W2A_IN) if groups else 0
        poll = ["  v_lshlrev_b32 %s, 2, %s" % (v(vPoll), v(vLane)), "  buffer_load_dword %s, %s, %s, %s offen sc1" % (v(vPoll), v(vPoll), sr(sWS,4), s(sFL))]
        lines = ep.L
        if role == "attn" and "nopoll" not in OPTS:
            k = len(lines) - ATT_POLL_BACK
            while lines[k].strip().startswith(("s_cbranch", "s_cselect")) or lines[k-1].strip().startswith(("s_cmp", "v_cmp")): k -= 1
            lines = lines[:k] + poll + lines[k:]
        epl = sprinkle(lines, groups[:nin], start=4, end_gap=(ATT_ENDGAP if role == "attn" else 10)) if nin else lines
        fin = E()
        stamp(fin, 6)
        if role == "attn" and "ph1only" not in OPTS:
            fin("s_mov_b32 %s, 0" % s(sMain))
            for g in groups[nin:]: fin.ext(g)
            ao_setup(fin)
            check_flags(fin, MASK_F, vPoll, "L_att_fast")
            spin_flags(fin, "attf", MASK_F, 250)
            fin.lab("L_att_fast")
            stamp(fin, 7)
            for p in range(DA):
                for g in act_loads(p): fin.ext(["%s ; rare" % t for t in g])
            fin("s_branch L_ph2_main_A")
        else:
            fin("s_mov_b32 %s, 1" % s(sMain))
            if "nopoll" not in OPTS: fin.ext(poll)
            nb = min(W2A_BEFORE_SIG, len(groups) - nin)
            for g in groups[nin:nin+nb]: fin.ext(g)
            fin("s_waitcnt vmcnt(%d)" % nb)
            stamp(fin, 7)
            if "ph1only" in OPTS:
                stamp_flush(fin); fin("s_endpgm")
            else:
                fin("s_barrier")
                signal_rb(fin, role, None)
                for g in groups[nin+nb:]: fin.ext(g)
                fin("s_branch L_ph2")
        if "ep2x" in OPTS:
            rep = E()
            rep("s_waitcnt vmcnt(0) lgkmcnt(0)"); rep("s_barrier")
            stamp(rep, 12)
            rep("s_add_u32 s100, s100, 1"); rep("s_cmp_lt_u32 s100, 2"); rep("s_cbranch_scc1 L_ep_%s" % role)
            epl = epl + rep.L
        out += process_path(["L_ep_%s:" % role, "  s_nop 7", "  s_nop 1"] + epl + fin.L, None, None, [])
    out += phase2()
    out.append("L_end:")
    return out

def kd(name, nfv, accum, sg=102):
    return """.section .rodata,"a"
.p2align 6
.amdhsa_kernel %s
  .amdhsa_next_free_vgpr %d
  .amdhsa_next_free_sgpr %d
  .amdhsa_accum_offset %d
  .amdhsa_group_segment_fixed_size 0
  .amdhsa_kernarg_size 72
  .amdhsa_user_sgpr_count 2
  .amdhsa_user_sgpr_kernarg_segment_ptr 1
  .amdhsa_system_sgpr_workgroup_id_x 1
  .amdhsa_float_denorm_mode_32 3
.end_amdhsa_kernel
""" % (name, nfv, sg, accum)

HEADER = """; Kernarg (72 bytes): [0] A_x [8] A_wqkv [16] A_wo [24] B_x [32] B_w1 [40] B_w2 [48] out [56] debug [64] ws
; @launch grid=(256,1,1) block=(256,1,1) lds=163840
.amdgcn_target "amdgcn-amd-amdhsa--gfx950"
"""
def main():
    if len(sys.argv) > 2: OPTS.update(sys.argv[2].split(","))
    k = top()
    if "noalign" not in OPTS:
        from alignpass import align
        head = '.amdgcn_target "amdgcn-amd-amdhsa--gfx950"\n.text\n.p2align 8\nk:\n'
        k = align(head, k, "\ns_endpgm\nL_codeend:\n")
    txt = HEADER + ".text\n.globl %s\n.p2align 8\n.type %s,@function\n%s:\n" % (KNAME, KNAME, KNAME) + "\n".join(k) + "\ns_endpgm\nL_codeend:\n" + kd(KNAME, 512, 256)
    path = sys.argv[1] if len(sys.argv) > 1 else "out2.s"
    open(path, "w").write(txt)
    print("wrote", path, len(txt), "bytes;", len(k), "lines")
if __name__ == "__main__": main()
```

```python
import sys, struct, os
from irlib import *

KNAME = "parallel_sum__sliding_local_dilated__dense_activation_relu__prompt_kernel"
S_, D_, DFF = 2048, 640, 1728
X_BYTES = S_*D_*2; WQKV_BYTES = D_*3*D_*2; WO_BYTES = D_*D_*2; W1_BYTES = D_*DFF*2; W2_BYTES = DFF*D_*2
NKS = 74
ACT_OFF = 0; ACT_TB = NKS*4096
W2F_OFF = 10*1024*1024; W2F_CB = NKS*5120
RSTD_OFF = 14*1024*1024
STATS_OFF = 14*1024*1024 + 65536
STAMP_OFF = 16*1024*1024
WS_USED = 17*1024*1024
OOB = 0x7F000000
FLAG_OFF = 15*1024*1024
MASK_F, MASK_A, MASK_P = 0x7f, 0xff00, 0xffff0000
SPIN_MAX = 200000
PF_DELAY = int(os.environ.get('PFD', 0))
UNIT_LATE = int(os.environ.get('ULATE', 0))
XL_AT = int(os.environ.get('XLAT', 1))
XL_DELAY = int(os.environ.get('XLD', 0))
ROTN = int(os.environ.get('ROTN', 0))
EARLY_W2A = int(os.environ.get('EW', 0))
SSH = True
OPTS = set()
def f2u(x): return struct.unpack("<I", struct.pack("<f", x))[0]
def v(i): return "v%d" % i
def vr(i, n): return "v[%d:%d]" % (i, i+n-1)
def a(i): return "a%d" % i
def ar(i, n): return "a[%d:%d]" % (i, i+n-1)
def s(i): return "s%d" % i
def sr(i, n): return "s[%d:%d]" % (i, i+n-1)
MFMA = "v_mfma_f32_16x16x32_bf16"

class E:
    def __init__(self): self.L = []
    def __call__(self, t): self.L.append("  " + t)
    def lab(self, t): self.L.append(t + ":")
    def ext(self, lines):
        for t in lines: self.L.append(t if t.startswith("  ") or t.endswith(":") else "  " + t)

sWave = 22
sX, sW, sWS, sDBG = 24, 28, 32, 76
sRB, sCB, sKC, sSoX, sSoW, sDSlot, sRDelta, sIter = 36, 37, 38, 39, 40, 41, 42, 43
sT0, sT1, sT2, sT3 = 46, 47, 48, 49
sM = 50
sTB, sC2, sSig, sWB, sAB, sLA, sLB, sP0, sP1, sRB2 = 80, 81, 82, 83, 84, 85, 86, 87, 88, 89
sKQ = [4,5,6,7,8,9,10,11,12,13,14,15,18,19]
sNonce, sFL = 23, 45
sD0, sD1 = 90, 91
sXO, sXH = 92, 93
vLane = 255
vSt = 247
vPoll = 243
vNon = 252

def stamp(e, i):
    if "stamp" in OPTS:
        e("s_memrealtime s[96:97]"); e("s_memtime s[98:99]"); e("s_waitcnt lgkmcnt(0)")
        e("v_writelane_b32 %s, s96, %d" % (v(vSt), 2*i)); e("v_writelane_b32 %s, s98, %d" % (v(vSt), 2*i+1))
def stamp_flush(e):
    if "stamp" not in OPTS: return
    if "dbgst" in OPTS:
        uid = len(e.L)
        for wg, lst, base in ((0, [3,4,5,6,9,12], 2), (128, [3,4,5,7,9], 8), (240, [4,5,8], 13)):
            lab = "L_ds_%d_%d" % (wg, uid)
            e("s_cmp_lg_u32 s2, %d" % wg); e("s_cbranch_scc1 %s" % lab)
            e("s_cmp_lg_u32 %s, 0" % s(sWave)); e("s_cbranch_scc1 %s" % lab)
            e("v_readlane_b32 s96, %s, 0" % v(vSt))
            for n_, i in enumerate(lst):
                e("v_readlane_b32 s97, %s, %d" % (v(vSt), 2*i))
                e("s_nop 4")
                e("s_sub_u32 s97, s97, s96")
                e("v_mov_b32 v1, s97"); e("v_mov_b32 v2, %d" % (4*(base+n_)))
                e("buffer_store_dword v1, v2, %s, 0 offen" % sr(sDBG,4))
            e.lab(lab)
        return
    e("s_lshl_b32 s3, s2, 2"); e("s_add_u32 s3, s3, %s" % s(sWave)); e("s_lshl_b32 s3, s3, 8")
    e("s_add_u32 s3, s3, %d" % STAMP_OFF)
    e("v_lshlrev_b32 v1, 2, %s" % v(vLane))
    e("buffer_store_dword %s, v1, %s, s3 offen" % (v(vSt), sr(sWS,4)))

def srd(e, base, ptr, nbytes):
    e("s_mov_b32 %s, %s" % (s(base), s(ptr)))
    e("s_and_b32 %s, %s, 0xffff" % (s(base+1), s(ptr+1)))
    e("s_mov_b32 %s, %d" % (s(base+2), nbytes))
    e("s_mov_b32 %s, 0x20000" % s(base+3))

def check_flags(e, mask, val, oklab, rare=""):
    e("v_cmp_eq_u32 vcc, %s, %s%s" % (s(sNonce), v(val), rare))
    e("s_nop 3" + rare)
    e("s_and_b32 %s, vcc_lo, 0x%x%s" % (s(sT0), mask, rare))
    e("s_cmp_eq_u32 %s, 0x%x%s" % (s(sT0), mask, rare))
    e("s_cbranch_scc1 %s%s" % (oklab, rare))
def spin_flags(e, tag, mask, vtmp, have_first=None):
    R = " ; rare"
    if have_first is not None: check_flags(e, mask, have_first, "L_ok_%s" % tag)
    e("s_mov_b32 %s, 0" % s(sT1) + R)
    e("v_lshlrev_b32 %s, 2, %s" % (v(vtmp+1), v(vLane)) + R)
    e.lab("L_spin_%s" % tag)
    e("buffer_load_dword %s, %s, %s, %s offen sc1" % (v(vtmp), v(vtmp+1), sr(sWS,4), s(sFL)) + R)
    e("s_waitcnt vmcnt(0)" + R)
    check_flags(e, mask, vtmp, "L_ok_%s" % tag, R)
    e("s_sleep %d" % FSLEEP + R)
    e("s_add_u32 %s, %s, 1" % (s(sT1), s(sT1)) + R)
    e("s_cmp_lt_u32 %s, %d" % (s(sT1), SPIN_MAX) + R)
    e("s_cbranch_scc1 L_spin_%s" % tag + R)
    e.lab("L_ok_%s" % tag)
def get_nonce(e, tag, vtmp, have_first=None):
    R = " ; rare"
    if have_first is not None:
        e("v_readfirstlane_b32 %s, %s" % (s(sNonce), v(have_first)))
        e("s_nop 3")
        e("s_cmp_lg_u32 %s, 0" % s(sNonce))
        e("s_cbranch_scc1 L_nok_%s" % tag)
    e("s_mov_b32 %s, 0" % s(sT1) + R)
    e("v_mov_b32 %s, 0" % v(vtmp+1) + R)
    e.lab("L_nspin_%s" % tag)
    e("buffer_load_dword %s, %s, %s, 0 offen sc1" % (v(vtmp), v(vtmp+1), sr(sDBG,4)) + R)
    e("s_waitcnt vmcnt(0)" + R)
    e("v_readfirstlane_b32 %s, %s" % (s(sNonce), v(vtmp)) + R)
    e("s_nop 3" + R)
    e("s_cmp_lg_u32 %s, 0" % s(sNonce) + R)
    e("s_cbranch_scc1 L_nok_%s" % tag + R)
    e("s_sleep 8" + R)
    e("s_add_u32 %s, %s, 1" % (s(sT1), s(sT1)) + R)
    e("s_cmp_lt_u32 %s, %d" % (s(sT1), SPIN_MAX) + R)
    e("s_cbranch_scc1 L_nspin_%s" % tag + R)
    e.lab("L_nok_%s" % tag)
def signal_rb(e, tag, word_sgpr_expr, vt=(1, 2)):
    e("s_cmp_lg_u32 %s, 0" % s(sWave))
    e("s_cbranch_scc1 L_nosig_%s" % tag)
    R = " ; rare"
    e("s_and_b32 %s, %s, 1" % (s(sT0), s(sRB)) + R)
    e("s_lshl_b32 %s, %s, 4" % (s(sT0), s(sT0)) + R)
    a_, b_ = v(vt[0]), v(vt[1])
    e("v_add_u32 %s, %s, %s" % (a_, s(sT0), v(vLane)) + R)
    e("v_lshlrev_b32 %s, 3, %s" % (a_, a_) + R)
    e("s_lshr_b32 %s, %s, 1" % (s(sT0), s(sRB)) + R)
    e("v_add_u32 %s, %s, %s" % (a_, s(sT0), a_) + R)
    e("v_lshlrev_b32 %s, 7, %s" % (a_, a_) + R)
    e("s_lshl_b32 %s, %s, 2" % (s(sT0), s(sSig)) + R)
    e("s_add_u32 %s, %s, %d" % (s(sT0), s(sT0), FLAG_OFF) + R)
    e("v_mov_b32 %s, %s" % (b_, s(sNonce)) + R)
    e("s_mov_b32 exec_lo, 0xffff" + R); e("s_mov_b32 exec_hi, 0" + R)
    e("buffer_store_dword %s, %s, %s, %s offen sc1" % (b_, a_, sr(sWS,4), s(sT0)) + R)
    e("s_mov_b64 exec, -1" + R)
    e.lab("L_nosig_%s" % tag)

class Cfg: pass

def chunk_body(cfg, dma, last=False, rolled_tag=None, closing_vm=None, first_vm=None):
    NT = cfg.ntile; NF = 2*NT; R = cfg.ring; L = cfg.look; TAIL = cfg.tail
    assert NF % R == 0
    wreg = lambda f: cfg.wbase + (f % R)*4
    def wreads(f):
        kh, c = divmod(f % NF, NT); return cfg.wread(kh, c, wreg(f))
    def mf(f):
        kh, c = divmod(f % NF, NT); return cfg.mf(kh, c, wreg(f))
    NFIRST = cfg.nfirst
    items = []
    for f in range(0, NF - TAIL):
        g = f + L
        rd = wreads(g) if NFIRST <= g < NF else []
        if f == cfg.xread1_at: rd = rd + cfg.xreads(1)
        ms = []
        if f == 0 and "nostats" not in OPTS and not SSH: ms += cfg.stats(0)
        if f == NT and "nostats" not in OPTS and not SSH: ms += cfg.stats(1)
        ms += mf(f)
        items.append((rd, ms))
    issued = set(range(NFIRST)) | {f + L for f in range(0, NF - TAIL) if NFIRST <= f + L < NF}
    assert issued == set(range(NF)), (sorted(set(range(NF)) - issued))
    nm = sum(len(m) for _, m in items)
    out = []
    nd = len(dma)
    st = cfg.dma_start + cfg.dma_skew; en = nm - cfg.dma_endgap
    pos = [st + (en - st)*i // max(nd, 1) for i in range(nd)]
    cnt = 0; di = 0
    for rd, ms in items:
        rq = list(rd)
        for k, m in enumerate(ms):
            if rq:
                take = (len(rq) + (len(ms) - k) - 1) // (len(ms) - k)
                for _ in range(take): out.append(rq.pop(0))
            out.append(m); cnt += 1
            while di < nd and pos[di] <= cnt:
                out += dma[di]; di += 1
    assert di == nd
    if closing_vm is None: out.append("s_waitcnt lgkmcnt(0)")
    elif first_vm is not None:
        out.append("s_cmp_eq_u32 %s, 0" % s(sIter))
        out.append("s_cbranch_scc1 L_first_%s" % rolled_tag)
        out.append("s_waitcnt vmcnt(%d) lgkmcnt(0)" % closing_vm)
        out.append("L_join_%s:" % rolled_tag)
    else: out.append("s_waitcnt vmcnt(%d) lgkmcnt(0)" % closing_vm)
    out.append("s_barrier")
    aux = []
    if not last:
        aux += cfg.addr_update + cfg.xreads(0)
        for f in range(NFIRST): aux += wreads(f)
    if rolled_tag: aux += cfg.scal_update
    tail = []
    for f in range(NF - TAIL, NF): tail += mf(f)
    per = -(-len(aux) // max(len(tail), 1))
    for m in tail:
        out.append(m)
        for _ in range(per):
            if aux: out.append(aux.pop(0))
    out += aux
    if rolled_tag:
        out.append("s_cbranch_scc1 L_loop_%s" % rolled_tag)
    return ["  ; lgextra %d" % int(os.environ.get("LGX", 2))] + [t if t.endswith(":") else "  " + t for t in out] + ["  ; lgextra 0"]

sCp, sCm = 94, 95
def scal_update(slot, wstep, halo=False):
    t = []
    if "rotk" in OPTS:
        t.append("s_add_u32 %s, %s, 1" % (s(sKC), s(sKC)))
        t.append("s_cmp_eq_u32 %s, 10" % s(sKC))
        t.append("s_cselect_b32 %s, %d, %s" % (s(sKC), 1 if "c0" in OPTS else 0, s(sKC)))
        t.append("s_lshl_b32 %s, %s, 7" % (s(sSoX), s(sKC)))
        t.append("s_mul_i32 %s, %s, %d" % (s(sSoW), s(sKC), wstep))
    else:
        t.append("s_add_u32 %s, %s, 128" % (s(sSoX), s(sSoX)))
        t.append("s_add_u32 %s, %s, %d" % (s(sSoW), s(sSoW), wstep))
    t.append("s_cmp_eq_u32 %s, %d" % (s(sDSlot), 2*slot))
    t.append("s_cselect_b32 %s, %s, %s" % (s(sRDelta), s(sCm), s(sCp)))
    t.append("s_add_u32 %s, %s, %s" % (s(sDSlot), s(sDSlot), s(sRDelta)))
    t.append("s_add_u32 %s, %s, 1" % (s(sIter), s(sIter)))
    t.append("s_cmp_lt_u32 %s, 8" % s(sIter))
    return t
def addr_update(slot, regs):
    t = []
    t.append("s_cmp_eq_u32 %s, %d" % (s(sDSlot), slot))
    t.append("s_cselect_b32 %s, %s, %s" % (s(sRDelta), s(sCm), s(sCp)))
    for r in regs: t.append("v_add_u32 %s, %s, %s" % (v(r), s(sRDelta), v(r)))
    return t

vL16, vL16b = 241, 245
def w2_soff(p, dst):
    if p < 14: return ["s_mul_i32 %s, %s, 5" % (s(dst), s(sKQ[p])), "s_add_u32 %s, %s, %s" % (s(dst), s(dst), s(sWB))]
    return ["s_mul_i32 %s, %s, 5120" % (s(dst), s(sWave)), "s_add_u32 %s, %s, %s" % (s(dst), s(dst), s(sWB)),
            "s_add_u32 %s, %s, %d" % (s(dst), s(dst), 4*(p-14)*5120)]
def w2l_groups(q0, q1):
    G = []
    for q in range(q0, q1):
        p, ct = divmod(q, 5)
        g = []
        if ct == 0 or q == q0: g += w2_soff(p, sP0)
        g.append("s_add_u32 m0, %s, %d" % (s(sLA if q < 12 else sLB), (q if q < 12 else q - 12)*1024))
        g.append("s_add_u32 %s, %s, %d" % (s(sP1), s(sP0), ct*1024))
        g.append("buffer_load_dwordx4 %s, %s, %s offen sc1 lds" % (v(vL16), sr(sWS,4), s(sP1)))
        G.append(g)
    return G
def w2a_groups(p0, p1, sb=None):
    G = []
    if sb is None: sb = sP0
    for p in range(p0, p1):
        base = ((p - 5) % 12)*20
        for ct in range(5):
            g = []
            if ct == 0: g += w2_soff(p, sb)
            if ct < 4: g.append("buffer_load_dwordx4 %s, %s, %s, %s offen offset:%d sc1" % (ar(base+4*ct,4), v(vL16), sr(sWS,4), s(sb), ct*1024))
            else:      g.append("buffer_load_dwordx4 %s, %s, %s, %s offen sc1" % (ar(base+16,4), v(vL16b), sr(sWS,4), s(sb)))
            G.append(g)
    return G
def ph2_setup(e, slot):
    e("s_and_b32 %s, s2, 7" % s(sT0))
    e("s_lshr_b32 %s, s2, 3" % s(sT1))
    e("s_lshr_b32 %s, %s, 3" % (s(sTB), s(sT1)))
    e("s_lshl_b32 %s, %s, 2" % (s(sT0), s(sT0)))
    e("s_add_u32 %s, %s, %s" % (s(sTB), s(sTB), s(sT0)))
    e("s_and_b32 %s, %s, 7" % (s(sC2), s(sT1)))
    e("s_lshr_b32 %s, %s, 1" % (s(sRB2), s(sTB)))
    e("s_lshl_b32 %s, %s, 2" % (s(sRB2), s(sRB2)))
    e("s_mul_i32 %s, %s, %d" % (s(sWB), s(sC2), W2F_CB))
    if "fakecb" in OPTS: e("s_mov_b32 %s, 0" % s(sWB))
    e("s_add_u32 %s, %s, %d" % (s(sWB), s(sWB), W2F_OFF))
    e("s_mul_i32 %s, %s, %d" % (s(sAB), s(sTB), ACT_TB))
    if "faketb" in OPTS: e("s_and_b32 %s, s2, 7" % s(sAB)); e("s_mul_i32 %s, %s, %d" % (s(sAB), s(sAB), ACT_TB))
    if ACT_OFF: e("s_add_u32 %s, %s, %d" % (s(sAB), s(sAB), ACT_OFF))
    e("s_mul_i32 %s, %s, 12288" % (s(sLA), s(sWave)))
    e("s_add_u32 %s, %s, %d" % (s(sLA), s(sLA), slot))
    e("s_mul_i32 %s, %s, 13312" % (s(sLB), s(sWave)))
    e("s_add_u32 %s, %s, %d" % (s(sLB), s(sLB), 2*slot))
    e("s_mul_i32 %s, %s, 7" % (s(sT0), s(sC2)))
    e("s_lshr_b32 %s, %s, 2" % (s(sT0), s(sT0)))
    e("s_and_b32 %s, %s, 3" % (s(sT1), s(sTB)))
    e("s_mul_i32 %s, %s, 7" % (s(sT1), s(sT1)))
    e("s_lshr_b32 %s, %s, 1" % (s(sT1), s(sT1)))
    e("s_add_u32 %s, %s, %s" % (s(sT0), s(sT0), s(sT1)))
    e("s_sub_u32 %s, %s, 14" % (s(sT1), s(sT0)))
    e("s_cmp_ge_u32 %s, 14" % s(sT0))
    e("s_cselect_b32 %s, %s, %s" % (s(sT0), s(sT1), s(sT0)))
    e("s_lshl_b32 %s, %s, 2" % (s(sT0), s(sT0)))
    e("s_add_u32 %s, %s, %s" % (s(sT0), s(sT0), s(sWave)))
    e("s_add_u32 %s, %s, 20" % (s(sT0), s(sT0)))
    for p in range(14):
        e("s_lshl_b32 %s, %s, 10" % (s(sKQ[p]), s(sT0)))
        e("s_cmp_ge_u32 %s, %d" % (s(sT0), NKS))
        e("s_cselect_b32 %s, 0x10000000, %s" % (s(sKQ[p]), s(sKQ[p])))
        if p < 13:
            e("s_add_u32 %s, %s, 4" % (s(sT0), s(sT0)))
            e("s_sub_u32 %s, %s, 56" % (s(sT1), s(sT0)))
            e("s_cmp_ge_u32 %s, 76" % s(sT0))
            e("s_cselect_b32 %s, %s, %s" % (s(sT0), s(sT1), s(sT0)))
    e("v_add_u32 %s, 4096, %s" % (v(vL16b), v(vL16)))
    e("s_lshl_b32 %s, s2, 7" % s(sFL))
    e("s_add_u32 %s, %s, %d" % (s(sFL), s(sFL), FLAG_OFF))

vZero = 249

A_SLOT = 53248; A_XB = 18432; A_WPAIR = 1088
A_XJ = [[0,1,2,3,4],[5,6,7,8,9],[10,11,12,13],[14,15,16,17]]
vWA, vX0, vX1 = 160, 161, 162
vXE, vXOd, vWL = 163, 164, 165
aW, aXF, aONE = 0, 40, 240
aST = 244
def acc_own(T, c): return (T*15 + c)*4
def acc_halo(eidx): return 120 + eidx*4
vSumT = [136, 140]; vSqT = [144, 148]; vSumH, vSqH = 152, 156
def xf(kh, T): return aXF + (kh*3 + T)*4

def x_lane_setup(e, vE, vO):
    e("v_lshrrev_b32 v1, 3, %s" % v(vLane))
    e("v_and_b32 v2, 7, %s" % v(vLane))
    e("v_lshrrev_b32 v3, 4, %s" % v(vLane))
    e("v_mul_u32_u24 v4, 1280, v1")
    e("v_xor_b32 v5, v2, v3")
    e("v_lshl_add_u32 %s, v5, 4, v4" % v(vE))
    e("v_xor_b32 %s, 64, %s" % (v(vO), v(vE)))

def attn_lane_setup(e):
    x_lane_setup(e, vXE, vXOd)
    e("v_cmp_le_u32 vcc, 30, %s" % v(vLane))
    e("v_mov_b32 v9, 0x40000000")
    e("v_cndmask_b32_e64 v6, 0, 1, vcc")
    e("v_cmp_le_u32 vcc, 60, %s" % v(vLane))
    e("v_mul_u32_u24 v7, 30, v6")
    e("v_sub_u32 v7, %s, v7" % v(vLane))
    e("v_mul_u32_u24 v8, 26, v7")
    e("v_lshrrev_b32 v8, 8, v8")
    e("v_mul_u32_u24 v8, 1120, v8")
    e("v_mul_u32_u24 v6, 3840, v6")
    e("v_lshlrev_b32 v7, 4, v7")
    e("v_add3_u32 v6, v6, v7, v8")
    e("s_mul_i32 %s, %s, 160" % (s(sT0), s(sCB)))
    e("v_add_u32 v6, %s, v6" % s(sT0))
    e("v_cndmask_b32_e64 %s, v6, v9, vcc" % v(vWL))

vDO = 166
def attn_dma_list(w):
    L = []
    for grp in ([[0,1],[2,3,4]], [[5,6,7,8],[9]], [[10,11,12,13]], [[14,15,16,17]])[w]:
        for m, j in enumerate(grp):
            imm = m*1024
            L.append(("x", j*1024 if m == 0 else None, imm, vXOd if j & 1 else vXE, (j*8*1280 if j < 2 else (j-2)*8*1280) - imm, j < 2, w == 0 and j == 0))
    kh = w >> 1; rd = w & 1
    for m in range(8):
        k = 32*kh + 8*(m >> 1) + 4*rd + 2*(m & 1)
        L.append(("w", A_XB + (8*w + m)*A_WPAIR if m % 4 == 0 else None, (m & 3)*A_WPAIR, vWL, k*3840 - (m & 3)*A_WPAIR, False, False))
    return L
def ffn_dma_list(w):
    L = []
    for m in range(4):
        j = 4*w + m
        L.append(("x", 4*w*1024 if m == 0 else None, m*1024, fXOd if j & 1 else fXE, j*8*1280 - m*1024, False, False))
    for m in range(8):
        kh, grp = m >> 2, m & 3
        k = 32*kh + 16*(grp & 1) + 4*(grp >> 1)
        L.append(("w", F_XB + w*8192 + m*1024 if m % 4 == 0 else None, (m & 3)*1024, fWL, k*3456 + w*128 - (m & 3)*1024, False, False))
    return L
def dma_groups_salu(L):
    G = []; tmp = [sD0, sD1]
    for n, (kind, m0c, imm, lane, uc, halo, mask) in enumerate(L):
        g = []; t = tmp[n & 1]
        if m0c is not None: g.append("s_add_u32 m0, %s, %d" % (s(sDSlot), m0c))
        if kind == "x":
            g.append("s_add_u32 %s, %s, %s" % (s(t), s(sSoX), s(sXH if halo else sXO)))
            if uc: g.append("s_add_u32 %s, %s, %d" % (s(t), s(t), uc))
        else: g.append("s_add_u32 %s, %s, %d" % (s(t), s(sSoW), uc))
        if mask: g.append("s_mov_b32 exec_lo, 0xffffff00")
        g.append("buffer_load_dwordx4 %s, %s, %s offen offset:%d lds" % (v(lane), sr(sX if kind == "x" else sW,4), s(t), imm))
        if mask: g.append("s_mov_b32 exec_lo, -1")
        G.append(g)
    return G
def dma_offsets_setup(e, L, base):
    for n, (kind, m0c, imm, lane, uc, halo, mask) in enumerate(L):
        if kind == "x":
            e("s_add_u32 %s, %s, %d" % (s(sD0), s(sXH if halo else sXO), uc))
            e("v_add_u32 %s, %s, %s" % (v(base+n), s(sD0), v(lane)))
        else:
            e("v_add_u32 %s, %d, %s" % (v(base+n), uc, v(lane)))
def dma_groups_vgpr(L, base):
    G = []
    for n, (kind, m0c, imm, lane, uc, halo, mask) in enumerate(L):
        g = []
        if m0c is not None:
            m0 = "s_add_u32 m0, %s, %d" % (s(sDSlot), m0c)
            if G: G[-1].append(m0)
            else: G.append([m0])
        if mask: g.append("s_mov_b32 exec_lo, 0xffffff00")
        g.append("buffer_load_dwordx4 %s, %s, %s offen offset:%d lds" % (v(base+n), sr(sX if kind == "x" else sW,4), s(sSoX if kind == "x" else sSoW), imm))
        if mask: g.append("s_mov_b32 exec_lo, -1")
        G.append(g)
    return G

def attn_cfg(w):
    cfg = Cfg()
    cfg.ntile = 15; cfg.ring = 10; cfg.look = int(os.environ.get('LOOK', 6)); cfg.tail = int(os.environ.get('TAILA', 4)); cfg.nfirst = cfg.look; cfg.wbase = aW
    H = {w: 0, 5 + w: 1, 10 + w: 2}
    if w < 3: H[(4, 9, 14)[w]] = 3
    def wread(kh, c, reg):
        off = kh*16*A_WPAIR + 32*c
        return ["ds_read_b64_tr_b16 %s, %s offset:%d" % (ar(reg,2), v(vWA), off),
                "ds_read_b64_tr_b16 %s, %s offset:%d" % (ar(reg+2,2), v(vWA), off + 8*A_WPAIR)]
    def mf(kh, c, reg):
        out = []
        for T in (0, 1):
            d = vr(acc_own(T, c), 4)
            if c < 10: out.append("%s %s, %s, %s, %s" % (MFMA, d, ar(reg,4), ar(xf(kh,T),4), d))
            else:      out.append("%s %s, %s, %s, %s" % (MFMA, d, ar(xf(kh,T),4), ar(reg,4), d))
        if c in H and "nohalo" not in OPTS:
            d = vr(acc_halo(H[c]), 4)
            if c < 10: out.append("%s %s, %s, %s, %s" % (MFMA, d, ar(reg,4), ar(xf(kh,2),4), d))
            else:      out.append("%s %s, %s, %s, %s" % (MFMA, d, ar(xf(kh,2),4), ar(reg,4), d))
        return out
    def stats(kh):
        out = []
        for T in (0, 1):
            out.append("%s %s, %s, %s, %s" % (MFMA, vr(vSumT[T],4), ar(aONE,4), ar(xf(kh,T),4), vr(vSumT[T],4)))
            out.append("%s %s, %s, %s, %s" % (MFMA, vr(vSqT[T],4), ar(xf(kh,T),4), ar(xf(kh,T),4), vr(vSqT[T],4)))
        if w == 3:
            out.append("%s %s, %s, %s, %s" % (MFMA, vr(vSumH,4), ar(aONE,4), ar(xf(kh,2),4), vr(vSumH,4)))
            out.append("%s %s, %s, %s, %s" % (MFMA, vr(vSqH,4), ar(xf(kh,2),4), ar(xf(kh,2),4), vr(vSqH,4)))
        return out
    def xreads(kh):
        ad = vX1 if kh else vX0
        return ["ds_read_b128 %s, %s offset:%d" % (ar(xf(kh,0),4), v(ad), (1+2*w)*2048),
                "ds_read_b128 %s, %s offset:%d" % (ar(xf(kh,1),4), v(ad), (2+2*w)*2048),
                "ds_read_b128 %s, %s offset:%d" % (ar(xf(kh,2),4), v(ad), 0)]
    cfg.wread = wread; cfg.mf = mf; cfg.stats = stats; cfg.xreads = xreads
    cfg.xread1_at = 4
    cfg.addr_update = addr_update(A_SLOT, [vWA, vX0, vX1])
    cfg.scal_update = scal_update(A_SLOT, 64*3840, halo=(w == 0))
    cfg.dma_start = int(os.environ.get('DST', 2)); cfg.dma_skew = w*int(os.environ.get('DSK', 1)); cfg.dma_endgap = int(os.environ.get('DEG', 8))
    cfg.wstep = 64*3840; cfg.slot = A_SLOT
    return cfg

def xaddr_setup(e, X0, X1, base):
    e("v_and_b32 v1, 15, %s" % v(vLane))
    e("v_lshrrev_b32 v4, 4, %s" % v(vLane))
    e("v_lshrrev_b32 v2, 1, v1")
    e("v_xor_b32 v2, v2, v4")
    e("v_lshlrev_b32 v2, 4, v2")
    e("v_lshl_add_u32 v2, v1, 7, v2")
    e("v_add_u32 %s, %d, v2" % (v(X0), base))
    e("v_xor_b32 v2, 64, v2")
    e("v_add_u32 %s, %d, v2" % (v(X1), base))

def read_addr_setup_attn(e):
    e("v_and_b32 v1, 15, %s" % v(vLane))
    e("v_lshrrev_b32 v2, 2, v1")
    e("v_and_b32 v3, 3, v1")
    e("v_lshrrev_b32 v4, 4, %s" % v(vLane))
    e("v_lshrrev_b32 v5, 1, v2")
    e("v_lshl_add_u32 v5, v4, 1, v5")
    e("v_mul_u32_u24 v5, %d, v5" % A_WPAIR)
    e("v_and_b32 v2, 1, v2")
    e("v_mul_u32_u24 v2, 480, v2")
    e("v_lshlrev_b32 v3, 3, v3")
    e("v_add3_u32 v5, v5, v2, v3")
    e("v_add_u32 %s, %d, v5" % (v(vWA), A_XB))
    xaddr_setup(e, vX0, vX1, 0)

sSzO, sSz2 = 69, 70

def attn_first_pre(e):
    e("s_and_b32 %s, %s, 1" % (s(sT0), s(sWave)))
    e("s_cmp_eq_u32 %s, 1" % s(sT0))
    e("s_cselect_b32 %s, 64, 0" % s(sT1))
    e("v_xor_b32 v10, %s, %s" % (s(sT1), v(vXE)))
    e("s_mul_i32 %s, %s, 10240" % (s(sT1), s(sWave)))
    e("s_add_u32 %s, %s, %s" % (s(sT2), s(sXH), s(sT1)))
    e("s_add_u32 %s, %s, %s" % (s(sT3), s(sXO), s(sT1)))
    e("s_sub_u32 %s, %s, 20480" % (s(sT3), s(sT3)))
    e("s_cmp_lt_u32 %s, 2" % s(sWave))
    e("s_cselect_b32 %s, %s, %s" % (s(sD0), s(sT2), s(sT3)))
    e("s_cselect_b32 %s, 0, 0x%x" % (s(sD1), OOB))
    e("s_cmp_eq_u32 %s, 0" % s(sWave))
    e("s_cselect_b32 %s, 0xffffff00, -1" % s(sP1))
    e("s_lshl_b32 %s, %s, 10" % (s(sP0), s(sWave)))
    e("s_lshr_b32 %s, %s, 1" % (s(sT1), s(sWave))); e("s_lshl_b32 %s, %s, 5" % (s(sT1), s(sT1)))
    e("s_lshl_b32 %s, %s, 2" % (s(sT0), s(sT0))); e("s_add_u32 %s, %s, %s" % (s(sT1), s(sT1), s(sT0)))
    e("s_mul_i32 %s, %s, 3840" % (s(sT1), s(sT1)))
    e("s_mul_i32 %s, %s, %d" % (s(sT0), s(sWave), 8*A_WPAIR))
def attn_first_dma(e, nchunks=2, srdfn=None):
    if "c0" in OPTS:
        assert nchunks == 1
        e("s_mov_b32 %s, %s" % (s(sRDelta), s(sKC))); e("s_mov_b32 %s, 0" % s(sKC))
    for ch in range(nchunks):
        slot = ch*A_SLOT
        e("s_lshl_b32 %s, %s, 7" % (s(sSoX), s(sKC)))
        e("s_mul_i32 %s, %s, %d" % (s(sSoW), s(sKC), 64*3840))
        e("s_add_u32 %s, %s, %s" % (s(sSoW), s(sSoW), s(sT1)))
        for m in range(5):
            if m == 0:
                e("s_add_u32 %s, %s, %s" % (s(sT2), s(sD0), s(sSoX)))
                e("s_add_u32 m0, %s, %d" % (s(sP0), slot))
                e("s_mov_b32 exec_lo, %s" % s(sP1))
            else:
                e("s_add_u32 %s, %s, %s" % (s(sT2), s(sT3), s(sSoX)))
                e("s_add_u32 %s, %s, %d" % (s(sT2), s(sT2), m*4*10240))
                if m == 4:
                    e("s_add_u32 %s, %s, %s" % (s(sT2), s(sT2), s(sD1)))
                    e("s_add_u32 %s, %s, %d" % (s(sIter), s(sP0), slot + m*4096))
                    e("s_cmp_lt_u32 %s, 2" % s(sWave))
                    e("s_cselect_b32 m0, %s, %d" % (s(sIter), 161792))
                else: e("s_add_u32 m0, %s, %d" % (s(sP0), slot + m*4096))
                e("s_nop 0")
            e("buffer_load_dwordx4 v10, %s, %s offen lds" % (sr(sX,4), s(sT2)))
            if m == 0: e("s_mov_b32 exec_lo, -1")
        if srdfn and ch == 0: srdfn()
        for m in range(8):
            if m % 4 == 0: e("s_add_u32 m0, %s, %d" % (s(sT0), slot + A_XB + m*A_WPAIR))
            k = 8*(m >> 1) + 2*(m & 1)
            e("s_add_u32 %s, %s, %d" % (s(sT2), s(sSoW), k*3840 - (m & 3)*A_WPAIR))
            e("buffer_load_dwordx4 %s, %s, %s offen offset:%d lds" % (v(vWL), sr(sW,4), s(sT2), (m & 3)*A_WPAIR))
        e("s_add_u32 %s, %s, 1" % (s(sKC), s(sKC)))
        if "rotk" in OPTS:
            e("s_cmp_eq_u32 %s, 10" % s(sKC))
            e("s_cselect_b32 %s, 0, %s" % (s(sKC), s(sKC)))
    if "c0" in OPTS: e("s_add_u32 %s, %s, 1" % (s(sKC), s(sRDelta)))
    return 13
def ffn_first_pre(e):
    e("s_mul_i32 %s, %s, %d" % (s(sT3), s(sWave), 4*10240))
    e("s_add_u32 %s, %s, %s" % (s(sT3), s(sT3), s(sXO)))
    e("s_lshl_b32 %s, %s, 12" % (s(sP0), s(sWave)))
    e("s_lshl_b32 %s, %s, 7" % (s(sT1), s(sWave)))
    e("s_lshl_b32 %s, %s, 13" % (s(sT0), s(sWave)))
def ffn_first_dma(e, nchunks=2, srdfn=None):
    if "c0" in OPTS:
        assert nchunks == 1
        e("s_mov_b32 %s, %s" % (s(sRDelta), s(sKC))); e("s_mov_b32 %s, 0" % s(sKC))
    for ch in range(nchunks):
        slot = ch*F_SLOT
        e("s_lshl_b32 %s, %s, 7" % (s(sSoX), s(sKC)))
        e("s_add_u32 %s, %s, %s" % (s(sSoX), s(sSoX), s(sT3)))
        e("s_mul_i32 %s, %s, %d" % (s(sSoW), s(sKC), 64*3456))
        e("s_add_u32 %s, %s, %s" % (s(sSoW), s(sSoW), s(sT1)))
        e("s_add_u32 m0, %s, %d" % (s(sP0), slot))
        for m in range(4):
            e("s_add_u32 %s, %s, %d" % (s(sT2), s(sSoX), m*10240 - m*1024))
            e("buffer_load_dwordx4 %s, %s, %s offen offset:%d lds" % (v(fXOd if m & 1 else fXE), sr(sX,4), s(sT2), m*1024))
        if srdfn and ch == 0: srdfn()
        for m in range(8):
            kh, grp = m >> 2, m & 3
            k = 32*kh + 16*(grp & 1) + 4*(grp >> 1)
            if m % 4 == 0: e("s_add_u32 m0, %s, %d" % (s(sT0), slot + F_XB + m*1024))
            e("s_add_u32 %s, %s, %d" % (s(sT2), s(sSoW), k*3456 - (m & 3)*1024))
            e("buffer_load_dwordx4 %s, %s, %s offen offset:%d lds" % (v(fWL), sr(sW,4), s(sT2), (m & 3)*1024))
        e("s_add_u32 %s, %s, 1" % (s(sKC), s(sKC)))
        if "rotk" in OPTS:
            e("s_cmp_eq_u32 %s, 10" % s(sKC))
            e("s_cselect_b32 %s, 0, %s" % (s(sKC), s(sKC)))
    if "c0" in OPTS: e("s_add_u32 %s, %s, 1" % (s(sKC), s(sRDelta)))
    return 12

sQ = 72
vPFo, vPFd = 182, 183
def coop_setup(e, w):
    e("s_lshr_b32 %s, s2, 3" % s(sT0)); e("s_sub_u32 %s, %s, 16" % (s(sT0), s(sT0)))
    e("s_and_b32 %s, s2, 1" % s(sT1))
    e("s_and_b32 %s, s2, 7" % s(sT2)); e("s_lshr_b32 %s, %s, 1" % (s(sT2), s(sT2)))
    e("v_mov_b32 v3, 0x40000000")
    if w < 2:
        e("s_mul_i32 %s, %s, 75" % (s(sT0), s(sT0)))
        e("s_lshl_b32 %s, %s, 10" % (s(sT1), s(sT1)))
        e("s_add_u32 %s, %s, %s" % (s(sT0), s(sT0), s(sT1)))
        e("s_add_u32 %s, %s, %d" % (s(sT0), s(sT0), (38*w - 16) & 0xffffffff))
        e("v_add_u32 v1, %s, %s" % (s(sT0), v(vLane)))
        e("v_max_i32 v1, 0, v1")
        e("v_mul_u32_u24 v1, 1280, v1")
        e("v_cmp_gt_u32 vcc, 38, %s" % v(vLane))
    elif w == 2:
        e("s_mul_i32 %s, %s, 42" % (s(sT0), s(sT0)))
        e("v_add_u32 v1, %s, %s" % (s(sT0), v(vLane)))
        e("v_mul_u32_u24 v2, 7282, v1"); e("v_lshrrev_b32 v2, 16, v2")
        e("v_mul_u32_u24 v4, 9, v2"); e("v_sub_u32 v4, v1, v4")
        e("v_mul_u32_u24 v5, 86, v4"); e("v_lshrrev_b32 v5, 8, v5")
        e("v_mul_u32_u24 v6, 3, v5"); e("v_sub_u32 v6, v4, v6")
        e("s_mul_i32 %s, %s, 320" % (s(sT2), s(sT2))); e("s_lshr_b32 %s, %s, 7" % (s(sT2), s(sT2)))
        e("v_add_u32 v6, %s, v6" % s(sT2))
        e("v_mul_u32_u24 v1, 3840, v2"); e("v_mul_u32_u24 v5, 1280, v5")
        e("v_lshl_add_u32 v1, v6, 7, v1"); e("v_add_u32 v1, v1, v5")
        e("v_cmp_gt_u32 vcc, 42, %s" % v(vLane))
    else:
        e("s_mul_i32 %s, %s, 55" % (s(sT0), s(sT0)))
        e("v_add_u32 v1, %s, %s" % (s(sT0), v(vLane)))
        e("v_mul_u32_u24 v2, 5462, v1"); e("v_lshrrev_b32 v2, 16, v2")
        e("v_mul_u32_u24 v4, 12, v2"); e("v_sub_u32 v4, v1, v4")
        e("s_mul_i32 %s, %s, 14" % (s(sT2), s(sT2))); e("s_lshr_b32 %s, %s, 3" % (s(sT2), s(sT2))); e("s_lshl_b32 %s, %s, 2" % (s(sT2), s(sT2)))
        e("v_add_u32 v4, %s, v4" % s(sT2))
        e("v_mul_u32_u24 v1, 3456, v2"); e("v_lshl_add_u32 v1, v4, 7, v1")
        e("v_cmp_gt_u32 vcc, 55, %s" % v(vLane))
    e("v_cndmask_b32_e64 %s, v3, v1, vcc" % v(vPFo))
COOP_D = 4
sSoQ = 44
def coop_load(w, extra_chunks):
    if w < 2: return ["buffer_load_dword %s, %s, %s, %s offen offset:%d ; rare" % (v(vPFd), v(vPFo), sr(sX,4), s(sSoX), 128*extra_chunks)]
    st_ = 64*3840 if w == 2 else 64*3456
    return ["s_add_u32 %s, %s, %d" % (s(sD1), s(sSoQ if w == 2 else sSoW), extra_chunks*st_),
            "buffer_load_dword %s, %s, %s, %s offen ; rare" % (v(vPFd), v(vPFo), sr(sQ if w == 2 else sW,4), s(sD1))]
def zero_acc(e, n):
    for i in range(4): e("v_mov_b32 %s, 0" % v(246 if False else 232+i))
    k = 0
    while k + 16 <= n:
        e("v_mfma_f32_32x32x16_bf16 %s, v[232:235], v[232:235], 0" % vr(k,16)); k += 16
    while k < n:
        e("v_mov_b32 %s, 0" % v(k)); k += 1
def role_main(e, tag, cfg, L, dobase, w, zero_n, extra_pre=None, units=False):
    wstep, slot = cfg.wstep, cfg.slot
    nd = len(L)
    coop = tag.startswith("ffn") and "coop" in OPTS
    def set_soff():
        e("s_lshl_b32 %s, %s, 7" % (s(sSoX), s(sKC)))
        e("s_mul_i32 %s, %s, %d" % (s(sSoW), s(sKC), wstep))
    def adv():
        e("s_add_u32 %s, %s, 1" % (s(sKC), s(sKC)))
        if "rotk" in OPTS:
            e("s_cmp_eq_u32 %s, 10" % s(sKC))
            e("s_cselect_b32 %s, %d, %s" % (s(sKC), 1 if "c0" in OPTS else 0, s(sKC)))
    npro = 13 if tag.startswith("attn") else 12
    e("v_lshlrev_b32 %s, 4, %s" % (v(vL16), v(vLane)))
    if units:
        unit_setup_dyn(e)
        e("s_mov_b32 %s, %d" % (s(sSzO), WO_BYTES)); e("s_mov_b32 %s, %d" % (s(sSz2), W2_BYTES))
        e("s_mov_b32 %s, %d" % (s(sUl), 3*slot))
        if 'late1' not in OPTS: unit_loads_dyn(e)
    npre = 0
    if coop:
        coop_setup(e, w)
        if w == 2: e("s_mov_b32 %s, %d" % (s(sSoQ), 64*3840))
        for x in range(1, COOP_D + 1):
            e.ext(coop_load(w, x)); npre += 1
    if extra_pre: extra_pre(e)
    dma_offsets_setup(e, L, dobase)
    zero_acc(e, zero_n)
    e("v_mov_b32 v254, 0x3f803f80")
    for i in range(4): e("v_accvgpr_write_b32 %s, v254" % a(aONE+i))
    e("v_mov_b32 %s, 0" % v(vZero))
    nyoung = npro + npre + (3 if units else 0)
    if "late1" in OPTS:
        set_soff()
        e("s_mov_b32 %s, %d" % (s(sDSlot), slot))
        for g in dma_groups_vgpr(L, dobase): e.ext(g)
        adv()
        nyoung = nd
        if units:
            unit_loads_dyn(e); nyoung += 3
    ph2_setup(e, slot)
    set_soff()
    e("s_mov_b32 %s, %d" % (s(sDSlot), 2*slot))
    e("s_mov_b32 %s, %d" % (s(sCp), slot))
    e("s_mov_b32 %s, %d" % (s(sCm), (-2*slot) & 0xffffffff))
    e("s_mov_b32 %s, 0" % s(sIter))
    if coop and w == 2: e("s_mov_b32 %s, %d" % (s(sSoQ), 2*64*3840))
    stamp(e, 2)
    e("s_waitcnt vmcnt(%d) lgkmcnt(0)" % nyoung)
    e("s_barrier")
    stamp(e, 3)
    R = cfg.ring
    e.ext(cfg.xreads(0))
    for f in range(cfg.nfirst):
        e.ext(cfg.wread(0, f, cfg.wbase + (f % R)*4))
    dma = dma_groups_vgpr(L, dobase)
    if "nopoll" not in OPTS:
        pg = ["s_cmp_lg_u32 %s, 7 ; rare" % s(sIter), "s_cbranch_scc0 L_pp_%s ; rare" % tag, "L_np_%s:" % tag]
        side = ["L_pp_%s:" % tag, "  buffer_load_dwordx2 %s, %s, %s, 0 offen sc1 ; rare" % (vr(vNon,2), v(vZero), sr(sDBG,4)), "  s_branch L_np_%s ; rare" % tag]
        if units:
            us = E(); unit_store_dyn(us, 216, full_wait=True)
            pg += ["s_cmp_lg_u32 %s, 1 ; rare" % s(sIter), "s_cbranch_scc0 L_pu_%s ; rare" % tag, "L_nu_%s:" % tag]
            side += ["L_pu_%s:" % tag] + us.L + ["  s_branch L_nu_%s" % tag]
        if units and w == 0:
            sg = E(); signal_count(sg, CNT_P)
            pg += ["s_cmp_lg_u32 %s, 2 ; rare" % s(sIter), "s_cbranch_scc0 L_ps_%s ; rare" % tag, "L_ns_%s:" % tag]
            side += ["L_ps_%s:" % tag] + sg.L + ["  s_branch L_ns_%s ; rare" % tag]
        dma = [pg] + dma
    else: side = []
    ncl = nd
    if coop:
        g = coop_load(w, COOP_D)
        if w == 2: g.append("s_add_u32 %s, %s, %d" % (s(sSoQ), s(sSoQ), 64*3840))
        dma = dma + [g]; ncl = nd + 2
    if "nodma" in OPTS: dma = []
    first_vm = None
    if coop:
        first_vm = min(63, nd + 1 + npre)
        side += ["L_first_%s:" % tag, "  s_waitcnt vmcnt(%d) lgkmcnt(0) ; rare" % first_vm, "  s_branch L_join_%s ; rare" % tag]
    body = chunk_body(cfg, dma, rolled_tag=tag, closing_vm=ncl if "nodma" not in OPTS else 0, first_vm=first_vm)
    post = E()
    stamp(post, 4)
    if "nopoll" not in OPTS:
        get_nonce(post, tag, 250, have_first=vNon)
        spin_count(post, "p_" + tag, CNT_P, N_P, 250, have_first=vNon+1)
    if "ph1only" in OPTS:
        post.ext(chunk_body(cfg, [], closing_vm=0))
        post.ext(chunk_body(cfg, [], last=True, closing_vm=None))
    else:
        ea = w2a_groups(9, 9 + EARLY_W2A, sD0)
        h_ = len(ea)//2
        def mix(a_, b_):
            out_ = []; n_ = max(len(a_), len(b_))
            for i_ in range(n_):
                if i_ < len(a_): out_.append(a_[i_])
                if i_ < len(b_): out_.append(b_[i_])
            return out_
        h_ = 5*((h_ + 4)//5) if ea else 0
        post.ext(chunk_body(cfg, mix(w2l_groups(0, 12), ea[:h_]), closing_vm=12 + h_))
        sg = []
        if SSH:
            post("v_and_b32 %s, 15, %s" % (v(vT16), v(vLane))); post("v_lshlrev_b32 %s, 4, %s" % (v(vT16), v(vT16)))
            if tag.startswith("attn"):
                post("s_lshl_b32 s74, %s, 7" % s(sRB)); post("s_sub_u32 s101, s74, 16")
                post("s_cmp_eq_u32 %s, 0" % s(sRB)); post("s_cselect_b32 s101, 0, s101")
                post("s_add_u32 s74, s74, %d" % (32*w)); post("s_add_u32 s75, s74, 16")
                sg = [stats_load_group(d, t) for d, t in zip(A_STD, A_STT)]
            else:
                post("s_lshl_b32 s73, %s, 7" % s(sRB)); post("s_add_u32 s73, s73, %d" % (64*(w >> 1)))
                post("s_add_u32 s74, s73, 16"); post("s_add_u32 s75, s73, 32"); post("s_add_u32 s101, s73, 48")
                sg = [stats_load_group(d, t) for d, t in zip(F_STD, F_STT)]
        post.ext(chunk_body(cfg, sg + mix(w2l_groups(12, 25), ea[h_:]), last=True, closing_vm=None))
    stamp(post, 5)
    return body, post, side

A_ND = [13, 13, 12, 12]

X_CS = 0
X_NM = 1024
X_RS = 2048
X_EX = 4096
vQp = 160
vKA, vKB, vKP = 180, 190, 200
vVp = 210
NEG = 0xf149f2ca
def stats_finalize(e, vsum, vsq, vt, out_nm, out_rs, out_std, smask):
    e("v_cndmask_b32_e64 %s, 0, %s, %s" % (v(vt), v(vsq+0), sr(smask,2)))
    for r in (1,2,3):
        e("v_cndmask_b32_e64 %s, %s, %s, %s" % (v(vt), v(vt), v(vsq+r), sr(smask+2*r,2)))
    e("v_mov_b32 %s, %s" % (v(vt+1), v(vt)))
    e("v_permlane32_swap_b32 %s, %s" % (v(vt), v(vt+1)))
    e("v_add_f32 %s, %s, %s" % (v(vt), v(vt), v(vt+1)))
    e("v_mov_b32 %s, %s" % (v(vt+1), v(vt)))
    e("v_permlane16_swap_b32 %s, %s" % (v(vt), v(vt+1)))
    e("v_add_f32 %s, %s, %s" % (v(vt), v(vt), v(vt+1)))
    e("v_mul_f32 %s, 0x%08x, %s" % (v(out_nm), f2u(-1.0/640), v(vsum)))
    e("v_mul_f32 %s, 0x%08x, %s" % (v(vt), f2u(1.0/640), v(vt)))
    e("v_fma_f32 %s, -%s, %s, %s" % (v(vt), v(out_nm), v(out_nm), v(vt)))
    e("v_max_f32 %s, 0, %s" % (v(vt), v(vt)))
    e("v_add_f32 %s, 0x%08x, %s" % (v(vt), f2u(1e-5), v(vt)))
    e("v_rsq_f32 %s, %s" % (v(out_rs), v(vt)))
    if out_std is not None:
        e("v_mul_f32 %s, %s, %s" % (v(out_std), v(vt), v(out_rs)))


def attn_stash(e):
    e("v_and_b32 v1, 15, %s" % v(vLane))
    e("v_lshrrev_b32 v2, 4, %s" % v(vLane))
    e("v_lshlrev_b32 v3, 2, v2")
    e("v_sub_u32 v3, v1, v3")
    e("v_and_b32 v4, 1, v1")
    e("v_mov_b32 v5, 0x%08x" % NEG)
    e("v_cmp_eq_u32 %s, 0, v4" % sr(sM+14,2))
    for r in range(4):
        e("v_subrev_u32 v6, %d, v3" % r)
        e("v_cmp_le_i32 %s, 0, v6" % sr(sM+16,2))
        if r & 1: e("s_andn2_b64 %s, exec, %s" % (sr(sM+18,2), sr(sM+14,2)))
        else:     e("s_mov_b64 %s, %s" % (sr(sM+18,2), sr(sM+14,2)))
        e("s_and_b64 %s, %s, %s" % (sr(sM+20,2), sr(sM+18,2), sr(sM+16,2)))
        e("s_andn2_b64 %s, %s, %s" % (sr(sM+22,2), sr(sM+18,2), sr(sM+16,2)))
        e("v_cndmask_b32_e64 v7, v5, 0, %s" % sr(sM+22,2)); e("v_accvgpr_write_b32 %s, v7" % a(aST+r))
        e("v_cndmask_b32_e64 v8, v5, 0, %s" % sr(sM+20,2)); e("v_accvgpr_write_b32 %s, v8" % a(aST+4+r))
    e("v_sub_u32 v6, v3, v4")
    e("v_mov_b32 v9, 0x0c0c0100"); e("v_mov_b32 v10, 0x01000c0c")
    e("v_cndmask_b32_e64 v9, v10, v9, %s" % sr(sM+14,2))
    e("v_mov_b32 v10, 0x0c0c0302"); e("v_mov_b32 v11, 0x03020c0c")
    e("v_cndmask_b32_e64 v10, v11, v10, %s" % sr(sM+14,2))
    e("v_mov_b32 v11, 0x0c0c0c0c")
    e("v_cmp_le_i32 %s, 0, v6" % sr(sM+16,2))
    e("v_cndmask_b32_e64 v12, v9, v11, %s" % sr(sM+16,2)); e("v_accvgpr_write_b32 %s, v12" % a(aST+8))
    e("v_cndmask_b32_e64 v13, v11, v9, %s" % sr(sM+16,2)); e("v_accvgpr_write_b32 %s, v13" % a(aST+10))
    e("v_cmp_le_i32 %s, 2, v6" % sr(sM+16,2))
    e("v_cndmask_b32_e64 v12, v10, v11, %s" % sr(sM+16,2)); e("v_accvgpr_write_b32 %s, v12" % a(aST+9))
    e("v_cndmask_b32_e64 v13, v11, v10, %s" % sr(sM+16,2)); e("v_accvgpr_write_b32 %s, v13" % a(aST+11))

def attn_epilogue(e):
    R = " ; rare"
    tNM = [240, 242]; tRS = [244, 246]; tSTD = [248, 249]
    vt = 166
    smask = sM
    A1, A2, A3, A4, A5, A6 = 176, 177, 178, 179, 250, 254
    ML = {1: 160, 2: 161, 3: 162}; MH = {0: 163, 1: 164, 2: 165}
    e("v_and_b32 v253, 15, %s" % v(vLane))
    e("v_lshlrev_b32 v253, 2, v253")
    e("v_lshrrev_b32 v252, 4, %s" % v(vLane))
    e("s_lshl_b32 %s, %s, 7" % (s(sT0), s(sWave)))
    e("s_lshl_b32 %s, %s, 6" % (s(sT1), s(sWave)))
    e("v_add_u32 %s, %s, v253" % (v(A1), s(sT0)))
    e("v_add_u32 %s, %s, v253" % (v(A4), s(sT1)))
    if SSH:
        e("s_waitcnt vmcnt(%d)" % (13 + N_EA9()))
        e("s_mov_b32 %s, 0" % s(sIter))
        stats_check(e, "attn", A_STD, A_STT)
        for T in (0, 1):
            e("v_mov_b32 %s, %s" % (v(tNM[T]), v(A_STD[T]))); e("v_mov_b32 %s, %s" % (v(tRS[T]), v(A_STD[T]+1))); e("v_mov_b32 %s, %s" % (v(tSTD[T]), v(A_STD[T]+2)))
            e("ds_write_b32 %s, %s offset:%d" % (v(A1), v(A_STD[T]), X_NM + 64 + T*64))
            e("ds_write_b32 %s, %s offset:%d" % (v(A1), v(A_STD[T]+1), X_RS + 64 + T*64))
        e("v_mov_b32 v152, %s" % v(A_STD[2])); e("v_mov_b32 v154, %s" % v(A_STD[2]+1))
        e("ds_write_b32 v253, %s offset:%d" % (v(A_STD[2]), X_NM))
        e("ds_write_b32 v253, %s offset:%d" % (v(A_STD[2]+1), X_RS))
    else:
      for T in (0, 1):
        stats_finalize(e, vSumT[T], vSqT[T], vt, tNM[T], tRS[T], tSTD[T], smask)
        e("ds_write_b32 %s, %s offset:%d" % (v(A1), v(tNM[T]), X_NM + 64 + T*64))
        e("ds_write_b32 %s, %s offset:%d" % (v(A1), v(tRS[T]), X_RS + 64 + T*64))
    for h in (1, 2, 3):
        e("v_cmp_le_u32 %s, %d, v252" % (sr(sM+16,2), h))
        e("v_cndmask_b32_e64 %s, 0, -1, %s" % (v(ML[h]), sr(sM+16,2)))
    for h in (0, 1, 2): e("v_not_b32 %s, %s" % (v(MH[h]), v(ML[h+1])))
    e("v_lshlrev_b32 v252, 4, v252")
    e("v_add_u32 %s, %s, v252" % (v(A2), s(sT0)))
    e("v_add_u32 %s, %s, v252" % (v(A3), s(sT1)))
    if not SSH:
        raise NotImplementedError
    e("s_mov_b32 exec_lo, 0x00010001"); e("s_mov_b32 exec_hi, 0x00010001")
    e("ds_write_b128 %s, %s offset:%d" % (v(A3), vr(acc_halo(0),4), X_CS))
    e("ds_write_b128 %s, %s offset:%d" % (v(A3), vr(acc_halo(1),4), X_CS + 5*64))
    e("s_cmp_gt_u32 %s, 1" % s(sWave))
    e("s_cbranch_scc1 L_e3a")
    e("s_mul_i32 %s, %s, 320" % (s(sT2), s(sWave)) + R)
    e("v_add_u32 v167, %s, v252" % s(sT2) + R)
    e("ds_write_b128 v167, %s offset:%d" % (vr(acc_halo(3),4), X_CS + 4*64) + R)
    e.lab("L_e3a")
    e("s_mov_b32 exec_lo, 0x0000ffff"); e("s_mov_b32 exec_hi, 0")
    e("ds_write_b32 %s, %s offset:%d" % (v(A4), v(acc_halo(2)), X_CS + 10*64))
    e("s_cmp_lg_u32 %s, 2" % s(sWave))
    e("s_cbranch_scc1 L_e3b")
    e("ds_write_b32 v253, %s offset:%d" % (v(acc_halo(3)), X_CS + 14*64) + R)
    e.lab("L_e3b")
    e("s_mov_b64 exec, -1")
    e("v_lshlrev_b32 v251, 3, %s" % v(vLane))
    e("s_lshl_b32 %s, %s, 9" % (s(sT2), s(sWave)))
    e("v_add_u32 %s, %s, v251" % (v(A5), s(sT2)))
    e("s_mul_i32 %s, %s, 5120" % (s(sT2), s(sWave)))
    e("v_add_u32 %s, %s, v251" % (v(A6), s(sT2)))
    e("s_waitcnt lgkmcnt(0)")
    e("s_barrier")
    if "epst" in OPTS: stamp(e, 8)
    CS4 = lambda c: 200 + 4*c
    nm4 = [136, 140]; rs4 = [144, 148]
    tHN, tHR = 152, 154
    csK = 156
    hn4, hr4 = 168, 172
    for c in range(5): e("ds_read_b128 %s, v252 offset:%d" % (vr(CS4(c),4), X_CS + c*64))
    for c in range(5, 10): e("ds_read_b128 %s, v252 offset:%d" % (vr(CS4(c),4), X_CS + c*64))
    e("ds_read_b128 %s, %s offset:%d" % (vr(csK,4), v(A3), X_CS + 5*64))
    def pkfma_bc(d, s0, sc, sfx=""):
        e("v_pk_fma_f32 %s, %s, %s, %s op_sel_hi:[1,0,1]%s" % (vr(d,2), vr(s0,2), vr(sc,2), vr(d,2), sfx))
    def pkmul_bc(d, sc, sfx=""):
        e("v_pk_mul_f32 %s, %s, %s op_sel_hi:[1,0]%s" % (vr(d,2), vr(d,2), vr(sc,2), sfx))
    t0, t1 = 166, 167
    for c in range(5):
        for T in (0, 1):
            d = acc_own(T, c); b = acc_own(T, 0)
            pkfma_bc(d, CS4(c), tNM[T]); pkfma_bc(d+2, CS4(c)+2, tNM[T])
            if c == 0:
                e("v_cvt_pk_bf16_f32 %s, %s, %s" % (v(d), v(d), v(d+1))); e("v_cvt_pk_bf16_f32 %s, %s, %s" % (v(d+1), v(d+2), v(d+3)))
            elif c == 4:
                e("v_cvt_pk_bf16_f32 %s, %s, %s" % (v(b+14), v(d), v(d+1))); e("v_cvt_pk_bf16_f32 %s, %s, %s" % (v(b+15), v(d+2), v(d+3)))
            else:
                e("v_cvt_pk_bf16_f32 %s, %s, %s" % (v(t0), v(d), v(d+1))); e("v_cvt_pk_bf16_f32 %s, %s, %s" % (v(t1), v(d+2), v(d+3)))
                e("v_and_b32 %s, %s, %s" % (v(d), v(t0), v(ML[c]))); e("v_and_b32 %s, %s, %s" % (v(d+1), v(t1), v(ML[c])))
                e("v_and_b32 %s, %s, %s" % (v(b+4*(c-1)+2), v(t0), v(MH[c-1]))); e("v_and_b32 %s, %s, %s" % (v(b+4*(c-1)+3), v(t1), v(MH[c-1])))
    for T in (0, 1):
        e("ds_read_b128 %s, %s offset:%d" % (vr(nm4[T],4), v(A2), X_NM + 64 + T*64))
        e("ds_read_b128 %s, %s offset:%d" % (vr(rs4[T],4), v(A2), X_RS + 64 + T*64))
    e("ds_read_b128 %s, v252 offset:%d" % (vr(hn4,4), X_NM))
    e("ds_read_b128 %s, v252 offset:%d" % (vr(hr4,4), X_RS))
    if "epst" in OPTS: stamp(e, 9)
    csd = [16, 18, 76, 78, 20]; csdW = 22
    for c in range(5, 10):
        for T in (0, 1):
            d = acc_own(T, c)
            pkfma_bc(d, CS4(c), tNM[T]); pkfma_bc(d+2, CS4(c)+2, tNM[T])
            pkmul_bc(d, tRS[T]); pkmul_bc(d+2, tRS[T])
            dst = (vKA, vKB)[T] + 2*(c-5)
            e("v_cvt_pk_bf16_f32 %s, %s, %s" % (v(dst), v(d), v(d+1)))
            e("v_cvt_pk_bf16_f32 %s, %s, %s" % (v(dst+1), v(d+2), v(d+3)))
        e("ds_write_b64 %s, %s offset:%d" % (v(A6), vr(vKB+2*(c-5),2), X_EX + 5120 + (c-5)*512))
        if c == 5:
            for i in range(5): e("ds_read_b32 %s, v253 offset:%d" % (v(csd[i]), X_CS + (10+i)*64))
            e("ds_read_b32 %s, %s offset:%d" % (v(csdW), v(A4), X_CS + 10*64))
    d = acc_halo(1)
    pkfma_bc(d, csK, tHN); pkfma_bc(d+2, csK+2, tHN); pkmul_bc(d, tHR); pkmul_bc(d+2, tHR)
    e("v_cvt_pk_bf16_f32 %s, %s, %s" % (v(d), v(d), v(d+1))); e("v_cvt_pk_bf16_f32 %s, %s, %s" % (v(d+1), v(d+2), v(d+3)))
    e("ds_write_b64 %s, %s offset:%d" % (v(A5), vr(d,2), X_EX))
    e("s_cmp_lg_u32 %s, 1" % s(sWave))
    e("s_cbranch_scc1 L_e3k")
    d = acc_halo(3)
    pkfma_bc(d, CS4(9), tHN, R); pkfma_bc(d+2, CS4(9)+2, tHN, R); pkmul_bc(d, tHR, R); pkmul_bc(d+2, tHR, R)
    e("v_cvt_pk_bf16_f32 %s, %s, %s" % (v(d), v(d), v(d+1)) + R); e("v_cvt_pk_bf16_f32 %s, %s, %s" % (v(d+1), v(d+2), v(d+3)) + R)
    e("ds_write_b64 v251, %s offset:%d" % (vr(d,2), X_EX + 4*512) + R)
    e.lab("L_e3k")
    def vtile(d, nm, rs, cd, sfx=""):
        for h_ in (0, 2):
            e("v_pk_fma_f32 %s, %s, %s, %s op_sel_hi:[1,0,1]%s" % (vr(d+h_,2), vr(nm+h_,2), vr(cd,2), vr(d+h_,2), sfx))
            e("v_pk_mul_f32 %s, %s, %s%s" % (vr(d+h_,2), vr(d+h_,2), vr(rs+h_,2), sfx))
    for i in range(5):
        c = 10 + i
        for T in (0, 1):
            d = acc_own(T, c)
            vtile(d, nm4[T], rs4[T], csd[i])
            dst = vVp + 6*i + 2 + 2*T
            e("v_cvt_pk_bf16_f32 %s, %s, %s" % (v(dst), v(d), v(d+1)))
            e("v_cvt_pk_bf16_f32 %s, %s, %s" % (v(dst+1), v(d+2), v(d+3)))
        e("ds_write_b64 %s, %s offset:%d" % (v(A6), vr(vVp+6*i+4,2), X_EX + 5120 + (5+i)*512))
    d = acc_halo(2)
    vtile(d, hn4, hr4, csdW)
    e("v_cvt_pk_bf16_f32 %s, %s, %s" % (v(d), v(d), v(d+1))); e("v_cvt_pk_bf16_f32 %s, %s, %s" % (v(d+1), v(d+2), v(d+3)))
    e("ds_write_b64 %s, %s offset:%d" % (v(A5), vr(d,2), X_EX + 5*512))
    e("s_cmp_lg_u32 %s, 2" % s(sWave))
    e("s_cbranch_scc1 L_e3v")
    d = acc_halo(3)
    vtile(d, hn4, hr4, csd[4], R)
    e("v_cvt_pk_bf16_f32 %s, %s, %s" % (v(d), v(d), v(d+1)) + R); e("v_cvt_pk_bf16_f32 %s, %s, %s" % (v(d+1), v(d+2), v(d+3)) + R)
    e("s_nop 1" + R)
    e("ds_write_b64 v251, %s offset:%d" % (vr(d,2), X_EX + 9*512) + R)
    e.lab("L_e3v")
    if "epst" in OPTS: stamp(e, 10)
    vBP, vBC, vBPA, vSel = 20, 24, 28, 32
    for r in range(4):
        e("v_accvgpr_read_b32 %s, %s" % (v(vBP+r), a(aST+r)))
        e("v_accvgpr_read_b32 %s, %s" % (v(vBC+r), a(aST+4+r)))
        e("v_accvgpr_read_b32 %s, %s" % (v(vSel+r), a(aST+8+r)))
    e("s_or_b32 %s, %s, %s" % (s(sT2), s(sWave), s(sRB)))
    e("s_cmp_eq_u32 %s, 0" % s(sT2))
    e("s_cselect_b32 %s, -1, 0" % s(sM+16)); e("s_cselect_b32 %s, -1, 0" % s(sM+17))
    e("v_mov_b32 v36, 0x%08x" % NEG)
    for r in range(4): e("v_cndmask_b32_e64 %s, %s, v36, %s" % (v(vBPA+r), v(vBP+r), sr(sM+16,2)))
    cF = [37, 38]
    for T in (0, 1):
        e("v_mul_f32 %s, 0x%08x, %s" % (v(cF[T]), f2u((20.0 ** -0.5) * 1.4426950408889634), v(tRS[T])))
    e("s_mov_b32 %s, 0xffff" % s(sM+8)); e("s_mov_b32 %s, 0" % s(sM+9))
    e("s_mov_b32 %s, -1" % s(sM+10)); e("s_mov_b32 %s, 0" % s(sM+11))
    e("s_mov_b32 %s, -1" % s(sM+12)); e("s_mov_b32 %s, 0xffff" % s(sM+13))
    attn_tile(e, 1, acc_own(1,0), vKA, vKB, lambda i: vVp+6*i+2, vBP, vBC, vSel, cF[1], tSTD[1])
    if "epst" in OPTS: stamp(e, 11)
    e("s_waitcnt lgkmcnt(0)")
    e("s_barrier")
    for i in range(5):
        e("ds_read_b64 %s, %s offset:%d" % (vr(vKP+2*i,2), v(A6), X_EX + i*512))
        e("ds_read_b64 %s, %s offset:%d" % (vr(vVp+6*i,2), v(A6), X_EX + (5+i)*512))
    attn_tile(e, 0, acc_own(0,0), vKP, vKA, lambda i: vVp+6*i, vBPA, vBC, vSel, cF[0], tSTD[0])

def attn_tile(e, T, qm, kprev, kcur, vfrag, bP, bC, vSel, cF, std):
    Qm = [qm + 4*h for h in range(4)]
    S0 = [80, 84, 88, 92]; S1 = [96, 100, 104, 108]
    P  = [112, 116, 120, 124]
    Lh = [128, 132, 40, 44]
    for h in range(4):
        e("%s %s, %s, %s, %s" % (MFMA, vr(S0[h],4), vr(kprev+2*h,4), vr(Qm[h],4), vr(bP,4)))
        e("%s %s, %s, %s, %s" % (MFMA, vr(S1[h],4), vr(kcur+2*h,4), vr(Qm[h],4), vr(bC,4)))
    va = [48, 50, 52, 54]; mx = [56, 57, 58, 59]
    for h in range(4):
        e("v_max3_f32 %s, %s, %s, %s" % (v(va[h]), v(S0[h]), v(S0[h]+1), v(S1[h])))
        e("v_max3_f32 %s, %s, %s, %s" % (v(va[h]+1), v(S0[h]+2), v(S0[h]+3), v(S1[h]+2)))
        e("v_max_f32 %s, %s, %s" % (v(va[h]), v(va[h]), v(S1[h]+1)))
        e("v_max_f32 %s, %s, %s" % (v(va[h]+1), v(va[h]+1), v(S1[h]+3)))
        e("v_max_f32 %s, %s, %s" % (v(mx[h]), v(va[h]), v(va[h]+1)))
    e("v_permlane32_swap_b32 %s, %s" % (v(mx[0]), v(mx[1])))
    e("v_permlane32_swap_b32 %s, %s" % (v(mx[2]), v(mx[3])))
    e("v_max_f32 %s, %s, %s" % (v(mx[0]), v(mx[0]), v(mx[1])))
    e("v_max_f32 %s, %s, %s" % (v(mx[2]), v(mx[2]), v(mx[3])))
    e("v_permlane16_swap_b32 %s, %s" % (v(mx[0]), v(mx[2])))
    e("v_max_f32 %s, %s, %s" % (v(mx[0]), v(mx[0]), v(mx[2])))
    e("v_mov_b32 %s, %s" % (v(mx[2]), v(mx[0])))
    e("v_permlane16_swap_b32 %s, %s" % (v(mx[0]), v(mx[2])))
    e("v_mov_b32 %s, %s" % (v(mx[1]), v(mx[0])))
    e("v_mov_b32 %s, %s" % (v(mx[3]), v(mx[2])))
    e("v_permlane32_swap_b32 %s, %s" % (v(mx[0]), v(mx[1])))
    e("v_permlane32_swap_b32 %s, %s" % (v(mx[2]), v(mx[3])))
    for h in range(4):
        e("v_mul_f32 %s, %s, %s" % (v(mx[h]), v(mx[h]), v(cF)))
    for h in range(4):
        e("v_fma_f32 %s, %s, %s, -%s" % (v(va[h]), v(va[h]), v(cF), v(mx[h])))
        e("v_fma_f32 %s, %s, %s, -%s" % (v(va[h]+1), v(va[h]+1), v(cF), v(mx[h])))
    for h in range(4):
        e("v_exp_f32 %s, %s" % (v(va[h]), v(va[h])))
        e("v_exp_f32 %s, %s" % (v(va[h]+1), v(va[h]+1)))
    for h in range(4):
        e("v_cvt_pk_bf16_f32 %s, %s, %s" % (v(va[h]), v(va[h]), v(va[h]+1)))
    for h in range(4):
        for k in range(4):
            e("v_perm_b32 %s, %s, %s, %s" % (v(P[h]+k), v(va[h]), v(va[h]), v(vSel+k)))
    pairs = [(0,0),(1,0),(1,1),(2,1),(2,2),(3,2),(3,3),(4,3)]
    O = {}
    free = S0 + S1
    for n, p_ in enumerate(pairs): O[p_] = free[n]
    for h in range(4):
        e("%s %s, %s, %s, 0" % (MFMA, vr(Lh[h],4), ar(aONE,4), vr(P[h],4)))
    for (i, h) in pairs:
        e("%s %s, %s, %s, 0" % (MFMA, vr(O[(i,h)],4), vr(vfrag(i),4), vr(P[h],4)))
    for h in range(4):
        e("v_rcp_f32 %s, %s" % (v(Lh[h]), v(Lh[h])))
    for h in range(4):
        e("v_mul_f32 %s, %s, %s" % (v(Lh[h]), v(Lh[h]), v(std)))
    F = [Lh[0], 60, 62, 64, Lh[3]]
    e("v_cndmask_b32_e64 %s, %s, %s, %s" % (v(F[1]), v(Lh[1]), v(Lh[0]), sr(sM+8,2)))
    e("v_cndmask_b32_e64 %s, %s, %s, %s" % (v(F[2]), v(Lh[2]), v(Lh[1]), sr(sM+10,2)))
    e("v_cndmask_b32_e64 %s, %s, %s, %s" % (v(F[3]), v(Lh[3]), v(Lh[2]), sr(sM+12,2)))
    Rr = {}
    Rr[0] = O[(0,0)]; Rr[4] = O[(4,3)]
    for i in (1, 2, 3):
        lo, hi = O[(i,i-1)], O[(i,i)]
        for r in range(4):
            e("v_cndmask_b32_e64 %s, %s, %s, %s" % (v(hi+r), v(hi+r), v(lo+r), sr(sM+8+2*(i-1),2)))
        Rr[i] = hi
    out = P[0]
    for i in range(5):
        e("v_pk_mul_f32 %s, %s, %s op_sel_hi:[1,0]" % (vr(Rr[i],2), vr(Rr[i],2), vr(F[i],2)))
        e("v_pk_mul_f32 %s, %s, %s op_sel_hi:[1,0]" % (vr(Rr[i]+2,2), vr(Rr[i]+2,2), vr(F[i],2)))
        e("v_cvt_pk_bf16_f32 %s, %s, %s" % (v(out+2*i), v(Rr[i]), v(Rr[i]+1)))
        e("v_cvt_pk_bf16_f32 %s, %s, %s" % (v(out+2*i+1), v(Rr[i]+2), v(Rr[i]+3)))
    e("s_lshl_b32 %s, %s, 1" % (s(sT0), s(sRB)))
    e("s_lshr_b32 %s, %s, 1" % (s(sT1), s(sWave)))
    e("s_add_u32 %s, %s, %s" % (s(sT0), s(sT0), s(sT1)))
    e("s_mul_i32 %s, %s, %d" % (s(sT0), s(sT0), ACT_TB))
    e("s_and_b32 %s, %s, 1" % (s(sT1), s(sWave)))
    e("s_lshl_b32 %s, %s, 11" % (s(sT1), s(sT1)))
    e("s_add_u32 %s, %s, %s" % (s(sT0), s(sT0), s(sT1)))
    e("s_add_u32 %s, %s, %d" % (s(sT0), s(sT0), ACT_OFF + T*1024))
    e("s_lshr_b32 %s, %s, 1" % (s(sT1), s(sCB)))
    e("s_mul_i32 %s, %s, 5" % (s(sT1), s(sT1)))
    e("s_and_b32 %s, %s, 1" % (s(sT2), s(sCB)))
    e("s_lshl_b32 %s, %s, 1" % (s(sT3), s(sT2)))
    e("s_add_u32 %s, %s, %s" % (s(sT3), s(sT3), s(sT1)))
    e("s_lshl_b32 %s, %s, 12" % (s(sT3), s(sT3)))
    e("s_add_u32 %s, %s, %s" % (s(sT3), s(sT3), s(sT0)))
    e("buffer_store_dwordx4 %s, %s, %s, %s offen sc1" % (vr(out,4), v(vL16), sr(sWS,4), s(sT3)))
    e("s_add_u32 %s, %s, 4096" % (s(sT3), s(sT3)))
    e("buffer_store_dwordx4 %s, %s, %s, %s offen sc1" % (vr(out+4,4), v(vL16), sr(sWS,4), s(sT3)))
    e("s_add_u32 %s, %s, 4" % (s(sT1), s(sT1)))
    e("s_lshl_b32 %s, %s, 12" % (s(sT1), s(sT1)))
    e("s_add_u32 %s, %s, %s" % (s(sT1), s(sT1), s(sT0)))
    e("s_lshl_b32 %s, %s, 3" % (s(sT2), s(sT2)))
    e("s_add_u32 %s, %s, %s" % (s(sT1), s(sT1), s(sT2)))
    e("buffer_store_dwordx2 %s, %s, %s, %s offen sc1" % (vr(out+8,2), v(vL16), sr(sWS,4), s(sT1)))

def sprinkle(lines, groups, start=0, end_gap=0):
    safe = []
    exec_full = True; skip = None
    n = len(lines)
    for i, t in enumerate(lines):
        tt = t.strip()
        prev = lines[i-1].strip() if i else ""
        ok = exec_full and skip is None
        if prev.startswith("s_cmp") or prev.startswith("v_cmp") or prev.startswith("s_and_b64") or prev.startswith("s_andn2") : ok = False
        if tt.startswith("s_cbranch") or tt.startswith("s_cselect") or tt.startswith("s_addc") or tt.endswith(":"): ok = False
        if tt.startswith("s_barrier") or tt.startswith("s_waitcnt"): ok = False
        if ok and start <= i < n - end_gap: safe.append(i)
        if tt.startswith("s_mov_b32 exec") : exec_full = False
        if tt.startswith("s_mov_b64 exec, -1"): exec_full = True
        if tt.startswith("s_cbranch"): skip = tt.split()[-1]
        if skip and tt == skip + ":": skip = None
    ng = len(groups)
    assert len(safe) >= ng, (len(safe), ng)
    at = {}
    for k in range(ng):
        at.setdefault(safe[k*len(safe)//ng], []).extend(groups[k])
    out = []
    for i, t in enumerate(lines):
        if i in at: out += ["  " + x for x in at[i]]
        out.append(t)
    return out

F_SLOT = 49152; F_XB = 16384
fWA = [160, 161, 162, 163]
F_X0, F_X1 = 164, 165
fXE, fXOd, fWL = 166, 167, 168
fDO = 169
def facc(T, c): return (T*8 + c)*4
fCS = 128
fSUM = [144, 148]
def fxf(kh, T): return aXF + (kh*4 + T)*4

def ffn_lane_setup(e):
    x_lane_setup(e, fXE, fXOd)
    e("v_lshrrev_b32 v6, 2, v1")
    e("v_lshlrev_b32 v6, 3, v6")
    e("v_and_b32 v7, 3, v1")
    e("v_add_u32 v6, v6, v7")
    e("v_mul_u32_u24 v6, 3456, v6")
    e("v_lshrrev_b32 v7, 1, v2")
    e("v_xor_b32 v7, v7, v3")
    e("v_lshlrev_b32 v7, 5, v7")
    e("v_and_b32 v8, 1, v2")
    e("v_lshlrev_b32 v8, 4, v8")
    e("v_add3_u32 v6, v6, v7, v8")
    e("s_lshl_b32 %s, %s, 9" % (s(sT0), s(sCB)))
    e("v_add_u32 %s, %s, v6" % (v(fWL), s(sT0)))

def ffn_cfg(w):
    cfg = Cfg()
    th, ch = w >> 1, w & 1
    cfg.ntile = 8; cfg.ring = 8; cfg.look = int(os.environ.get('LOOKF', 4)); cfg.tail = int(os.environ.get('TAILF', 2)); cfg.nfirst = cfg.look; cfg.wbase = aW
    def wread(kh, c, reg):
        off = (2*ch + (c >> 2))*8192 + kh*4096
        ad = v(fWA[c & 3])
        return ["ds_read_b64_tr_b16 %s, %s offset:%d" % (ar(reg,2), ad, off),
                "ds_read_b64_tr_b16 %s, %s offset:%d" % (ar(reg+2,2), ad, off + 2048)]
    def mf(kh, c, reg):
        out = []
        for T in range(4):
            d = vr(facc(T, c), 4)
            out.append("%s %s, %s, %s, %s" % (MFMA, d, ar(reg,4), ar(fxf(kh,T),4), d))
        if (c >> 2) == th and "nohalo" not in OPTS:
            d = vr(fCS + (c & 3)*4, 4)
            out.append("%s %s, %s, %s, %s" % (MFMA, d, ar(reg,4), ar(aONE,4), d))
        return out
    def stats(kh):
        return ["%s %s, %s, %s, %s" % (MFMA, vr(fSUM[j],4), ar(aONE,4), ar(fxf(kh,2*ch+j),4), vr(fSUM[j],4)) for j in (0,1)]
    def xreads(kh):
        ad = F_X1 if kh else F_X0
        return ["ds_read_b128 %s, %s offset:%d" % (ar(fxf(kh,T),4), v(ad), (4*th+T)*2048) for T in range(4)]
    cfg.wread = wread; cfg.mf = mf; cfg.stats = stats; cfg.xreads = xreads
    cfg.xread1_at = 2
    cfg.addr_update = addr_update(F_SLOT, fWA + [F_X0, F_X1])
    cfg.scal_update = scal_update(F_SLOT, 64*3456)
    cfg.dma_start = int(os.environ.get('DST', 2)); cfg.dma_skew = w*int(os.environ.get('DSK', 1)); cfg.dma_endgap = int(os.environ.get('DEG', 8))
    cfg.wstep = 64*3456; cfg.slot = F_SLOT
    return cfg

def read_addr_setup_ffn(e):
    e("v_and_b32 v1, 15, %s" % v(vLane))
    e("v_lshrrev_b32 v2, 2, v1")
    e("v_and_b32 v3, 3, v1")
    e("v_lshrrev_b32 v4, 4, %s" % v(vLane))
    e("v_lshl_add_u32 v2, v4, 2, v2")
    e("v_lshrrev_b32 v5, 1, v2")
    e("v_and_b32 v5, 3, v5")
    e("v_lshlrev_b32 v2, 7, v2")
    e("v_lshl_add_u32 v2, v3, 3, v2")
    e("v_add_u32 v2, %d, v2" % F_XB)
    for u in range(4):
        e("v_xor_b32 v6, %d, v5" % u)
        e("v_lshl_add_u32 %s, v6, 5, v2" % v(fWA[u]))
    xaddr_setup(e, F_X0, F_X1, 0)

def ffn_epilogue(e):
    e("s_lshr_b32 %s, %s, 1" % (s(sT0), s(sWave)))
    e("s_and_b32 %s, %s, 1" % (s(sT1), s(sWave)))
    e("v_and_b32 v253, 15, %s" % v(vLane)); e("v_lshlrev_b32 v253, 2, v253")
    e("v_lshrrev_b32 v252, 4, %s" % v(vLane)); e("v_lshlrev_b32 v252, 4, v252")
    e("s_lshl_b32 %s, %s, 8" % (s(sT2), s(sT0)))
    e("s_waitcnt vmcnt(%d)" % (13 + N_EA9()))
    e("s_mov_b32 %s, 0" % s(sIter))
    stats_check(e, "ffn", F_STD, F_STT)
    e("s_lshl_b32 %s, %s, 9" % (s(sT3), s(sT1)))
    e("v_add_u32 v254, %s, v252" % s(sT3))
    e("v_add_u32 v253, %s, v254" % s(sT2))
    e("s_mov_b32 exec_lo, 0x00010001"); e("s_mov_b32 exec_hi, 0x00010001")
    for q in range(4):
        e("ds_write_b128 v253, %s offset:%d" % (vr(fCS + q*4, 4), q*64))
    e("s_mov_b64 exec, -1")
    e("s_lshl_b32 %s, %s, 1" % (s(sT2), s(sRB)))
    e("s_add_u32 %s, %s, %s" % (s(sT0), s(sT0), s(sT2)))
    e("s_mul_i32 %s, %s, %d" % (s(sT0), s(sT0), ACT_TB))
    e("s_lshl_b32 %s, %s, 3" % (s(sT2), s(sCB)))
    e("s_lshl_b32 %s, %s, 2" % (s(sT3), s(sT1)))
    e("s_add_u32 %s, %s, %s" % (s(sT2), s(sT2), s(sT3)))
    e("s_add_u32 %s, %s, 20" % (s(sT2), s(sT2)))
    e("s_lshl_b32 %s, %s, 12" % (s(sT2), s(sT2)))
    e("s_add_u32 %s, %s, %s" % (s(sT0), s(sT0), s(sT2)))
    if ACT_OFF: e("s_add_u32 %s, %s, %d" % (s(sT0), s(sT0), ACT_OFF))
    e("s_mul_i32 %s, %s, 2" % (s(sT2), s(sCB)))
    e("s_add_u32 %s, %s, %s" % (s(sT2), s(sT2), s(sT1)))
    e("s_cmp_eq_u32 %s, 13" % s(sT2))
    e("s_cselect_b32 %s, 0x%x, 0" % (s(sT2), OOB))
    e("s_waitcnt lgkmcnt(0)")
    e("s_barrier")
    nm = F_STD
    CS = lambda c: 160 + 4*c
    for c in range(8): e("ds_read_b128 %s, v254 offset:%d" % (vr(CS(c),4), c*64))
    pk = [224, 228, 232, 236]
    n = 0
    for j in range(4):
        if j == 2: e("s_add_u32 %s, %s, %s" % (s(sT0), s(sT0), s(sT2)))
        for T in range(4):
            o = pk[n & 3]; n += 1
            for k in range(2):
                c = 2*j + k; d = facc(T, c); q = CS(c)
                e("v_pk_fma_f32 %s, %s, %s, %s op_sel_hi:[1,0,1]" % (vr(d,2), vr(q,2), vr(nm[T],2), vr(d,2)))
                e("v_pk_fma_f32 %s, %s, %s, %s op_sel_hi:[1,0,1]" % (vr(d+2,2), vr(q+2,2), vr(nm[T],2), vr(d+2,2)))
                e("v_cvt_pk_bf16_f32 %s, %s, %s" % (v(o+2*k), v(d), v(d+1)))
                e("v_cvt_pk_bf16_f32 %s, %s, %s" % (v(o+2*k+1), v(d+2), v(d+3)))
                e("v_pk_max_i16 %s, %s, 0" % (v(o+2*k), v(o+2*k)))
                e("v_pk_max_i16 %s, %s, 0" % (v(o+2*k+1), v(o+2*k+1)))
            e("buffer_store_dwordx4 %s, %s, %s, %s offen offset:%d sc1" % (vr(o,4), v(vL16), sr(sWS,4), s(sT0), T*1024))
        e("s_add_u32 %s, %s, 4096" % (s(sT0), s(sT0)))

U_ROW = 320
U_BYTES = 32*U_ROW
sPF = 60
vUO = [200, 201, 202]; vUH = [203, 204, 205]; vUT = [206, 207, 208]
sUW = [64, 65, 66]
sUl, sUn = 67, 68
def unit_setup_dyn(e):
    e("s_lshl_b32 %s, %s, 6" % (s(sT0), s(sWave)))
    for m in range(3):
        e("v_add_u32 v1, %s, %s" % (s(sT0), v(vLane)))
        if m: e("v_add_u32 v1, %d, v1" % (256*m))
        e("v_mul_u32_u24 v2, 3277, v1"); e("v_lshrrev_b32 v2, 16, v2")
        e("v_mul_u32_u24 v3, 20, v2"); e("v_sub_u32 v3, v1, v3")
        e("v_mul_u32_u24 v4, 1280, v2"); e("v_lshl_add_u32 %s, v3, 4, v4" % v(vUO[m]))
        e("v_lshrrev_b32 %s, 4, v2" % v(vUH[m]))
        if m == 2:
            e("v_mov_b32 v5, 0x40000000")
            e("v_cmp_le_u32 vcc, 640, v1")
            e("v_cndmask_b32_e64 %s, %s, v5, vcc" % (v(vUO[m]), v(vUO[m])))
            e("v_cndmask_b32_e64 %s, %s, 0, vcc" % (v(vUH[m]), v(vUH[m])))
    e("v_and_b32 v1, 15, %s" % v(vLane)); e("v_lshrrev_b32 v2, 2, v1"); e("v_and_b32 v3, 3, v1")
    e("v_lshrrev_b32 v4, 4, %s" % v(vLane)); e("v_lshl_add_u32 v2, v4, 2, v2")
    e("v_mul_u32_u24 v2, %d, v2" % U_ROW)
    for m in range(3):
        e("s_add_u32 %s, %s, %d" % (s(sT0), s(sWave), 4*m))
        e("s_cmp_ge_u32 %s, 5" % s(sT0)); e("s_cselect_b32 %s, 1, 0" % s(sT1))
        e("s_mul_i32 %s, %s, 5" % (s(sT2), s(sT1))); e("s_sub_u32 %s, %s, %s" % (s(sT2), s(sT0), s(sT2)))
        e("s_lshr_b32 %s, %s, 1" % (s(sT3), s(sT2))); e("s_lshl_b32 %s, %s, 6" % (s(sT3), s(sT3)))
        e("s_and_b32 %s, %s, 1" % (s(sD0), s(sT2))); e("s_lshl_b32 %s, %s, 3" % (s(sD0), s(sD0)))
        e("s_add_u32 %s, %s, %s" % (s(sT3), s(sT3), s(sD0)))
        e("s_mul_i32 %s, %s, 160" % (s(sD0), s(sT1))); e("s_add_u32 %s, %s, %s" % (s(sT3), s(sT3), s(sD0)))
        e("s_cmp_eq_u32 %s, 4" % s(sT2)); e("s_cselect_b32 %s, 3, 4" % s(sD0))
        e("v_lshlrev_b32 v5, %s, v3" % s(sD0))
        e("v_add3_u32 %s, v5, v2, %s" % (v(vUT[m]), s(sT3)))
        e("s_mul_i32 %s, %s, %d" % (s(sUW[m]), s(sT1), W2F_CB))
        e("s_lshl_b32 %s, %s, 10" % (s(sD0), s(sT2)))
        e("s_add_u32 %s, %s, %s" % (s(sUW[m]), s(sUW[m]), s(sD0)))
        e("s_cmp_ge_u32 %s, 10" % s(sT0)); e("s_cselect_b32 %s, 0x%x, %s" % (s(sUW[m]), 0x40000000, s(sUW[m])))
def unit_loads_dyn(e):
    sU = sUn
    e("s_lshr_b32 %s, %s, 2" % (s(sT0), s(sU)))
    e("s_and_b32 %s, %s, 3" % (s(sT1), s(sU)))
    e("s_mul_i32 %s, %s, 52" % (s(sT2), s(sT0))); e("s_lshr_b32 %s, %s, 8" % (s(sT2), s(sT2)))
    e("s_mul_i32 %s, %s, 5" % (s(sT3), s(sT2))); e("s_sub_u32 %s, %s, %s" % (s(sT3), s(sT0), s(sT3)))
    e("s_mul_i32 %s, %s, 160" % (s(sT2), s(sT2)))
    e("s_lshl_b32 %s, %s, 5" % (s(sD0), s(sT3)))
    e("s_cmp_ge_u32 %s, 2" % s(sT3)); e("s_cselect_b32 %s, 16, 0" % s(sD1))
    e("s_add_u32 %s, %s, %s" % (s(sD0), s(sD0), s(sD1)))
    e("s_cmp_eq_u32 %s, 4" % s(sT3)); e("s_cselect_b32 %s, 64, %s" % (s(sD0), s(sD0)))
    e("s_cselect_b32 %s, %d, 0" % (s(sD1), 64*1280))
    e("s_add_u32 %s, %s, %s" % (s(sD0), s(sD0), s(sT2)))
    e("s_sub_u32 %s, %s, 20" % (s(sT2), s(sT0))); e("s_lshl_b32 %s, %s, 5" % (s(sT2), s(sT2)))
    e("s_cmp_lt_u32 %s, 20" % s(sT0))
    e("s_cselect_b32 %s, %s, %s" % (s(sD0), s(sD0), s(sT2)))
    e("s_cselect_b32 %s, %s, 0" % (s(sD1), s(sD1)))
    e("s_cselect_b32 %s, s8, s14" % s(sPF))
    e("s_cselect_b32 %s, s9, s15" % s(sPF+1))
    e("s_cselect_b32 %s, %s, %s" % (s(sPF+2), s(sSzO), s(sSz2)))
    e("s_and_b32 %s, %s, 0xffff" % (s(sPF+1), s(sPF+1)))
    e("s_mov_b32 %s, 0x20000" % s(sPF+3))
    e("s_mul_i32 %s, %s, 1280" % (s(sD0), s(sD0)))
    e("s_mul_i32 %s, %s, 320" % (s(sT1), s(sT1)))
    e("s_add_u32 %s, %s, %s" % (s(sD0), s(sD0), s(sT1)))
    e("s_cmp_ge_u32 %s, %d" % (s(sU), 4*NKS)); e("s_cselect_b32 %s, 0x%x, %s" % (s(sD0), OOB, s(sD0)))
    e("s_lshl_b32 %s, %s, 10" % (s(sT0), s(sWave)))
    e("s_add_u32 %s, %s, %s" % (s(sT0), s(sT0), s(sUl)))
    for m in range(3):
        e("v_mad_u32_u24 %s, %s, %s, %s" % (v(210+m), v(vUH[m]), s(sD1), v(vUO[m])))
        if m < 2: e("s_add_u32 m0, %s, %d" % (s(sT0), 4096*m))
        else:
            e("s_add_u32 %s, %s, %d" % (s(sT1), s(sT0), 4096*m))
            e("s_cmp_ge_u32 %s, 2" % s(sWave))
            e("s_cselect_b32 m0, %d, %s" % (161792, s(sT1)))
        e("s_nop 0")
        e("buffer_load_dwordx4 %s, %s, %s offen lds" % (v(210+m), sr(sPF,4), s(sD0)))
def unit_store_dyn(e, vd=0, full_wait=False):
    sU = sUn
    e("s_lshr_b32 %s, %s, 2" % (s(sT0), s(sU)))
    e("s_and_b32 %s, %s, 3" % (s(sT1), s(sU)))
    e("s_mul_i32 %s, %s, 5120" % (s(sT0), s(sT0)))
    e("s_mul_i32 %s, %s, %d" % (s(sT1), s(sT1), 2*W2F_CB))
    e("s_add_u32 %s, %s, %s" % (s(sT0), s(sT0), s(sT1)))
    e("s_add_u32 %s, %s, %d" % (s(sT0), s(sT0), W2F_OFF))
    e("s_cmp_ge_u32 %s, %d" % (s(sU), 4*NKS)); e("s_cselect_b32 %s, 0x%x, %s" % (s(sT0), 0x30000000, s(sT0)))
    for m in range(3):
        e("v_add_u32 %s, %s, %s" % (v(213+m), s(sUl), v(vUT[m])))
        e("ds_read_b64_tr_b16 %s, %s" % (vr(vd+4*m,2), v(213+m)))
        e("ds_read_b64_tr_b16 %s, %s offset:%d" % (vr(vd+4*m+2,2), v(213+m), 16*U_ROW))
    for m in range(3):
        e("s_add_u32 %s, %s, %s" % (s(sT1), s(sT0), s(sUW[m])))
        e("s_waitcnt lgkmcnt(%d)" % (4 - 2*m if not full_wait else 0))
        e("buffer_store_dwordx4 %s, %s, %s, %s offen sc1" % (vr(vd+4*m,4), v(vL16), sr(sWS,4), s(sT1)))

def N_EA9():
    n = 5*EARLY_W2A
    h = 5*((n//2 + 4)//5) if n else 0
    return n - h
def pf_stats_loads(e):
    e("v_lshrrev_b32 v1, 4, %s" % v(vLane)); e("v_mul_u32_u24 v1, 1280, v1")
    e("v_and_b32 v2, 15, %s" % v(vLane)); e("v_lshl_add_u32 v14, v2, 4, v1")
    e("s_lshl_b32 %s, %s, 7" % (s(sT0), s(sCB))); e("s_lshl_b32 %s, %s, 5" % (s(sT1), s(sWave)))
    e("s_add_u32 %s, %s, %s" % (s(sT0), s(sT0), s(sT1))); e("s_mul_i32 %s, %s, 1280" % (s(sT0), s(sT0)))
    for grp in range(8):
        for i in range(5):
            e("buffer_load_dwordx4 %s, v14, %s, %s offen offset:%d ; rare" % (vr(16 + grp*20 + i*4, 4), sr(sX,4), s(sT0), i*256))
        e("s_add_u32 %s, %s, %d" % (s(sT0), s(sT0), 4*1280))
def pf_stats_compute(e):
    e("v_mov_b32 v15, 0x3f803f80")
    for grp in range(8):
        b = 16 + grp*20
        sm, sq = 176 + 2*grp, 177 + 2*grp
        e("v_mov_b32 %s, 0" % v(sm)); e("v_mov_b32 %s, 0" % v(sq))
        e("s_waitcnt vmcnt(%d)" % (35 - 5*grp))
        for i in range(20):
            e("v_dot2c_f32_bf16 %s, %s, v15" % (v(sm), v(b+i)))
            e("v_dot2c_f32_bf16 %s, %s, %s" % (v(sq), v(b+i), v(b+i)))
    for sh in (8, 4, 2, 1):
        for r in range(176, 192):
            e("v_add_f32_dpp %s, %s, %s row_ror:%d row_mask:0xf bank_mask:0xf" % (v(r), v(r), v(r), sh))
    e("v_lshrrev_b32 v1, 4, %s" % v(vLane)); e("v_lshlrev_b32 v1, 4, v1")
    e("s_lshl_b32 %s, %s, 7" % (s(sT0), s(sCB))); e("s_lshl_b32 %s, %s, 5" % (s(sT1), s(sWave)))
    e("s_add_u32 %s, %s, %s" % (s(sT0), s(sT0), s(sT1))); e("s_lshl_b32 %s, %s, 4" % (s(sT0), s(sT0)))
    e("s_add_u32 %s, %s, %d" % (s(sT0), s(sT0), STATS_OFF))
    for grp in range(8):
        sm, sq = 176 + 2*grp, 177 + 2*grp
        o = 16 + 4*grp
        e("v_mul_f32 %s, 0x%08x, %s" % (v(o), f2u(-1.0/640), v(sm)))
        e("v_mul_f32 %s, 0x%08x, %s" % (v(sq), f2u(1.0/640), v(sq)))
        e("v_fma_f32 %s, -%s, %s, %s" % (v(sq), v(o), v(o), v(sq)))
        e("v_max_f32 %s, 0, %s" % (v(sq), v(sq)))
        e("v_add_f32 %s, 0x%08x, %s" % (v(sq), f2u(1e-5), v(sq)))
        e("v_rsq_f32 %s, %s" % (v(o+1), v(sq)))
        e("v_mov_b32 %s, %s" % (v(o+3), s(sNonce)))
        e("v_mul_f32 %s, %s, %s" % (v(o+2), v(sq), v(o+1)))
    e("s_mov_b32 exec_lo, 0x00010001"); e("s_mov_b32 exec_hi, 0x00010001")
    for grp in range(8):
        e("buffer_store_dwordx4 %s, v1, %s, %s offen offset:%d sc1" % (vr(16+4*grp,4), sr(sWS,4), s(sT0), grp*64))
    e("s_mov_b64 exec, -1")
def stats_load_group(dst, tok_sgpr):
    return ["s_lshl_b32 %s, %s, 4" % (s(sP1), s(tok_sgpr)), "s_add_u32 %s, %s, %d" % (s(sP1), s(sP1), STATS_OFF),
            "buffer_load_dwordx4 %s, %s, %s, %s offen sc1" % (vr(dst,4), v(vT16), sr(sWS,4), s(sP1))]
A_STD, A_STT = [180, 184, 188], [74, 75, 101]
F_STD, F_STT = [200, 204, 208, 212], [73, 74, 75, 101]
vT16 = 251
def stats_check(e, tag, dsts, toks):
    R = " ; rare"
    e.lab("L_stc_%s" % tag)
    e("s_mov_b64 %s, exec" % sr(sM+16,2))
    for d in dsts:
        e("v_cmp_eq_u32 vcc, %s, %s" % (s(sNonce), v(d+3)))
        e("s_nop 1")
        e("s_and_b64 %s, %s, vcc" % (sr(sM+16,2), sr(sM+16,2)))
    e("s_cmp_eq_u64 %s, exec" % sr(sM+16,2))
    e("s_cbranch_scc1 L_stok_%s" % tag)
    e("s_add_u32 %s, %s, 1" % (s(sIter), s(sIter)) + R)
    e("s_cmp_gt_u32 %s, %d" % (s(sIter), SPIN_MAX) + R)
    e("s_cbranch_scc1 L_stok_%s" % tag + R)
    e("s_sleep 8" + R)
    for d, t in zip(dsts, toks):
        for x in stats_load_group(d, t): e(x + R)
    e("s_waitcnt vmcnt(0)" + R)
    e("s_branch L_stc_%s" % tag + R)
    e.lab("L_stok_%s" % tag)

def pf_loop(e, tag, fn, u0, n, lds0):
    e("s_add_u32 %s, %s, %d" % (s(sUn), s(sCB), 16*u0))
    e("s_mov_b32 %s, %d" % (s(sUl), lds0))
    e("s_mov_b32 %s, 0" % s(sIter))
    e.lab("L_pfl_%s" % tag)
    fn(e)
    e("s_add_u32 %s, %s, 16" % (s(sUn), s(sUn)))
    e("s_add_u32 %s, %s, %d" % (s(sUl), s(sUl), U_BYTES))
    e("s_add_u32 %s, %s, 1" % (s(sIter), s(sIter)))
    e("s_cmp_lt_u32 %s, %d" % (s(sIter), n))
    e("s_cbranch_scc1 L_pfl_%s" % tag)
N_FFN_UNITS = 2
def signal_count(e, off):
    R = " ; rare"
    e("v_mov_b32 v250, 1" + R); e("v_mov_b32 v251, 0" + R)
    e("s_mov_b32 exec_lo, 1" + R); e("s_mov_b32 exec_hi, 0" + R)
    e("buffer_atomic_add v250, v251, %s, 0 offen offset:%d sc1" % (sr(sDBG,4), off) + R)
    e("s_mov_b64 exec, -1" + R)
def spin_count(e, tag, off, target, vtmp, have_first=None):
    R = " ; rare"
    if have_first is not None:
        e("v_readfirstlane_b32 %s, %s" % (s(sT0), v(have_first)))
        e("s_nop 3")
        e("s_cmp_ge_u32 %s, %d" % (s(sT0), target))
        e("s_cbranch_scc1 L_cok_%s" % tag)
    e("s_mov_b32 %s, 0" % s(sT1) + R)
    e("v_mov_b32 %s, 0" % v(vtmp+1) + R)
    e.lab("L_cspin_%s" % tag)
    e("buffer_load_dword %s, %s, %s, 0 offen offset:%d sc1" % (v(vtmp), v(vtmp+1), sr(sDBG,4), off) + R)
    e("s_waitcnt vmcnt(0)" + R)
    e("v_readfirstlane_b32 %s, %s" % (s(sT0), v(vtmp)) + R)
    e("s_nop 3" + R)
    e("s_cmp_ge_u32 %s, %d" % (s(sT0), target) + R)
    e("s_cbranch_scc1 L_cok_%s" % tag + R)
    e("s_sleep %d" % CSLEEP + R)
    e("s_add_u32 %s, %s, 1" % (s(sT1), s(sT1)) + R)
    e("s_cmp_lt_u32 %s, %d" % (s(sT1), SPIN_MAX) + R)
    e("s_cbranch_scc1 L_cspin_%s" % tag + R)
    e.lab("L_cok_%s" % tag)
CSLEEP = 40
FSLEEP = int(os.environ.get('FSL', 8))
CNT_P, N_P = 4, 128

DA = 6
POLL_A_AT = int(os.environ.get('PAA', 5))
FFN_W2A_IN = 0
ATT_POLL_BACK = int(os.environ.get('APB', 90))
ATT_W2A_IN = int(os.environ.get('ATT_IN', 60))
ATT_ENDGAP = int(os.environ.get('ATT_GAP', 40))
W2A_BEFORE_SIG = int(os.environ.get('WBS', 12))

vAR = 80
vWR = 176
def act_soff(p, dst):
    if p < 14: return ["s_lshl_b32 %s, %s, 2" % (s(dst), s(sKQ[p])), "s_add_u32 %s, %s, %s" % (s(dst), s(dst), s(sAB))]
    return ["s_lshl_b32 %s, %s, 12" % (s(dst), s(sWave)), "s_add_u32 %s, %s, %s" % (s(dst), s(dst), s(sAB)),
            "s_add_u32 %s, %s, %d" % (s(dst), s(dst), 4*(p-14)*4096)]
vAO = [244, 246, 248, 249]
def act_loads(p):
    st = vAR + (p % DA)*16
    G = []
    for tt in range(4):
        g = act_soff(p, sD0) if tt == 0 else []
        g.append("buffer_load_dwordx4 %s, %s, %s, %s offen sc1" % (vr(st+4*tt,4), v(vAO[tt]), sr(sWS,4), s(sD0)))
        G.append(g)
    return G
PE_F = int(os.environ.get('PEF', 17))
XRES_AT = 14
BAR_AT = int(os.environ.get('BARAT', 5))
PE_A = int(os.environ.get('PEA', 17))
sMain = 100

def ao_setup(e, sfx=""):
    for tt in range(4):
        e("s_add_u32 %s, %s, %d%s" % (s(sT0), s(sWave), tt, sfx))
        e("s_and_b32 %s, %s, 3%s" % (s(sT0), s(sT0), sfx))
        e("s_lshl_b32 %s, %s, 10%s" % (s(sT0), s(sT0), sfx))
        e("v_add_u32 %s, %s, %s%s" % (v(vAO[tt]), s(sT0), v(vL16), sfx))

def build_main(tag, P0v):
    main = E()
    main.lab("L_ph2_main_" + tag)
    main("v_add_u32 v216, %s, %s" % (s(sLA), v(vL16)))
    main("v_add_u32 v217, %s, %s" % (s(sLB), v(vL16)))
    def wl_reads(p):
        out = []
        for ct in range(5):
            q = 5*p + ct
            ad, off = (216, q*1024) if q < 12 else (217, (q-12)*1024)
            out.append("ds_read_b128 %s, %s offset:%d" % (vr(vWR + (p & 1)*20 + ct*4, 4), v(ad), off))
        return out
    main.ext(wl_reads(0))
    main("v_lshlrev_b32 v218, 2, %s" % v(vLane))
    for tt in range(1, 4):
        main("s_add_u32 %s, %s, %d" % (s(sT0), s(sWave), tt))
        main("s_and_b32 %s, %s, 3" % (s(sT0), s(sT0)))
        main("s_mul_i32 %s, %s, 15360" % (s(sT0), s(sT0)))
        main("s_add_u32 %s, %s, %d" % (s(sT0), s(sT0), (tt-1)*5120))
        main("v_add_u32 %s, %s, %s" % (v(236+tt), s(sT0), v(vL16)))
    stamp(main, 9)
    NP = 19
    for p in range(NP):
        if "p2st" in OPTS and p in (1, 5, 9, 10, 14): stamp(main, {1: 1, 5: 2, 9: 3, 10: 4, 14: 5}[p])
        if "p2stb" in OPTS and p in (10, 12, 14, 16, 18): stamp(main, {10: 1, 12: 2, 14: 3, 16: 4, 18: 5}[p])
        ms = []
        order = [(ct, tt) for ct in range(5) for tt in range(4)] if p < NP - 1 else [(ct, tt) for tt in (1, 2, 3, 0) for ct in range(5)]
        for ct, tt in order:
            if p < 5: wsrc = vr(vWR + (p & 1)*20 + ct*4, 4)
            else:     wsrc = ar(((p - 5) % 12)*20 + ct*4, 4)
            d = vr((tt*5+ct)*4, 4)
            ms.append("%s %s, %s, %s, %s" % (MFMA, d, wsrc, vr(vAR + (p % DA)*16 + 4*tt, 4), d if p else "0"))
        aux = []
        if p + 1 < 5: aux += [[t] for t in wl_reads(p + 1)]
        q = p - 1 + DA
        if p >= 1 and q < NP:
            if q == 14:
                sp = E(); spin_flags(sp, "a" + tag, MASK_A, 250, have_first=219)
                main.ext(sp.L)
            aux += act_loads(q)
        if p == XRES_AT:
            rx = E()
            rx("v_and_b32 v220, 15, %s" % v(vLane)); rx("v_lshrrev_b32 v221, 4, %s" % v(vLane))
            rx("s_lshl_b32 %s, %s, 6" % (s(sT0), s(sTB))); rx("s_lshl_b32 %s, %s, 4" % (s(sT1), s(sWave)))
            rx("s_add_u32 %s, %s, %s" % (s(sT0), s(sT0), s(sT1)))
            rx("v_add_u32 v220, %s, v220" % s(sT0)); rx("v_lshlrev_b32 v222, 4, v220")
            rx("v_mul_u32_u24 v220, 1280, v220")
            rx("s_mul_i32 %s, %s, 160" % (s(sT1), s(sC2))); rx("v_add_u32 v220, %s, v220" % s(sT1))
            rx("v_lshl_add_u32 v240, v221, 4, v220"); rx("v_lshl_add_u32 v242, v221, 3, v220")
            rx("s_mov_b32 %s, %d" % (s(sT2), STATS_OFF + 4))
            rx("buffer_load_dwordx4 v[224:227], v240, %s, 0 offen" % sr(sX,4))
            rx("buffer_load_dwordx4 v[228:231], v240, %s, 0 offen offset:64" % sr(sX,4))
            rx("buffer_load_dwordx2 v[232:233], v242, %s, 0 offen offset:128" % sr(sX,4))
            rx("buffer_load_dword v234, v222, %s, %s offen sc1" % (sr(sWS,4), s(sT2)))
            aux += [[t.strip()] for t in rx.L]
        if p == POLL_A_AT:
            aux.append(["buffer_load_dword v219, v218, %s, %s offen sc1" % (sr(sWS,4), s(sFL))])
        if P0v <= p + 7 <= 16: aux += w2a_groups(p + 7, p + 8)
        if p == 10: aux += w2a_groups(17, 18)
        if p == 11: aux += w2a_groups(18, 19)
        if p == BAR_AT: aux.append(["s_barrier"])
        if tag == "A" and p == 1:
            sg = E(); sg("s_barrier"); signal_rb(sg, "attn", None, vt=(220, 221))
            main.ext(sg.L)
        n = len(ms); k = 0
        wq = [(tt, ct) for tt in range(1, 4) for ct in range(5)] if p == NP - 1 else []
        for i_, m in enumerate(ms):
            main(m)
            want = (i_ + 1)*len(aux) // n
            while k < want:
                main.ext(aux[k]); k += 1
            if wq and i_ >= 5:
                tt, ct = wq.pop(0)
                main("ds_write_b128 %s, %s offset:%d" % (v(236+tt), vr((tt*5+ct)*4,4), ct*1024))
        for tt, ct in wq:
            main("ds_write_b128 %s, %s offset:%d" % (v(236+tt), vr((tt*5+ct)*4,4), ct*1024))
    stamp(main, 10)
    main("s_branch L_ph2_tail")
    st = State(); d = []
    pre = []
    for g in w2a_groups(5, P0v): pre += ["  " + t for t in g]
    for p in range(DA):
        for g in act_loads(p): pre += ["  " + t for t in g]
    st = process(pre, st, d); st.hist = []
    o = []; st = process(main.L, st, o)
    return o, st

def phase2():
    e = E()
    e.lab("L_ph2")
    if "dlymid" in OPTS: e("s_sleep 64")
    stamp(e, 8)
    ao_setup(e)
    check_flags(e, MASK_F, vPoll, "L_ph2_ok2")
    spin_flags(e, "f", MASK_F, 250)
    e.lab("L_ph2_ok2")
    for p in range(DA):
        for g in act_loads(p): e.ext(["%s ; rare" % t for t in g])
    e("s_branch L_ph2_main_F")
    o0 = []; process(e.L, State(), o0)
    oF, stF = build_main("F", PE_F)
    oA, stA = build_main("A", PE_A)
    stA.merge(stF); stA.hist = []
    main = E()
    main.lab("L_ph2_tail")
    srd(main, sW, 16, X_BYTES)
    main("s_mul_i32 %s, %s, 15360" % (s(sT0), s(sWave)))
    main("v_add_u32 v236, %s, %s" % (s(sT0), v(vL16)))
    xr = [224, 226, 228, 230, 232]
    X = 180
    for ct in range(5):
        for hh in range(2):
            main("v_lshlrev_b32 %s, 16, %s" % (v(X + ct*4 + 2*hh), v(xr[ct]+hh)))
            main("v_and_b32 %s, 0xffff0000, %s" % (v(X + ct*4 + 2*hh + 1), v(xr[ct]+hh)))
    main("s_waitcnt lgkmcnt(0)")
    main("s_barrier")
    for k in range(3):
        for ct in range(5):
            main("ds_read_b128 %s, v236 offset:%d" % (vr(80 + (k*5+ct)*4, 4), (k*5+ct)*1024))
    o = 150
    for kk in range(2):
        for ct in range(5):
            for hh in range(2):
                r = ct*4 + 2*hh
                main("v_pk_add_f32 %s, %s, %s" % (vr(r,2), vr(r,2), vr(80 + 20*kk + r, 2)))
    for ct in range(5):
        for hh in range(2):
            r = ct*4 + 2*hh
            main("v_pk_add_f32 %s, %s, %s" % (vr(r,2), vr(r,2), vr(120 + r, 2)))
            main("v_pk_fma_f32 %s, %s, %s, %s op_sel_hi:[1,0,1]" % (vr(X+r,2), vr(r,2), vr(234,2), vr(X+r,2)))
            main("v_cvt_pk_bf16_f32 %s, %s, %s" % (v(o + 2*ct + hh), v(X+r), v(X+r+1)))
    fl = " sc1" if "outsc1" in OPTS else (" nt" if "outnt" in OPTS else "")
    main("buffer_store_dwordx4 %s, v240, %s, 0 offen%s" % (vr(o,4), sr(sW,4), fl))
    main("buffer_store_dwordx4 %s, v240, %s, 0 offen offset:64%s" % (vr(o+4,4), sr(sW,4), fl))
    main("buffer_store_dwordx2 %s, v242, %s, 0 offen offset:128%s" % (vr(o+8,2), sr(sW,4), fl))
    if "dlyend" in OPTS: main("s_sleep 64")
    stamp(main, 11)
    if "stamp" in OPTS: main("s_waitcnt vmcnt(0)")
    stamp(main, 12)
    stamp_flush(main)
    o2 = []; process(["  s_nop 7"] + main.L, stA, o2)
    return o0 + oF + oA + o2

def top():
    out = []
    e = E()
    e("s_load_dwordx16 s[4:19], s[0:1], 0")
    e("s_load_dwordx2 s[20:21], s[0:1], 64")
    e("s_cmp_ge_u32 s2, 256")
    e("s_cbranch_scc1 L_end")
    if "stamp" in OPTS: e("v_mov_b32 %s, 0" % v(vSt))
    if "ep2x" in OPTS: e("s_mov_b32 s100, 0")
    if "dlystart" in OPTS: e("s_sleep 64")
    e("s_getpc_b64 s[60:61]")
    e.lab("L_pcbase")
    e("s_lshr_b32 s3, s2, 3")
    e("s_lshl_b32 s3, s3, 12")
    e("v_lshl_add_u32 v2, v0, 4, s3")
    e("v_min_u32 v2, L_codeend-L_pcbase-16, v2")
    if "nopf" not in OPTS: e("global_load_dwordx4 v[236:239], v2, s[60:61]")
    e("v_and_b32 %s, 63, v0" % v(vLane))
    e("v_lshrrev_b32 v1, 6, v0")
    e("s_and_b32 s3, s2, 7")
    e("v_readfirstlane_b32 %s, v1" % s(sWave))
    e("s_lshr_b32 %s, s2, 3" % s(sT0))
    e("s_and_b32 %s, s3, 1" % s(sT1))
    e("s_lshr_b32 %s, s3, 1" % s(sT2))
    e("s_lshl_b32 %s, %s, 3" % (s(sT1), s(sT1)))
    e("s_cmp_ge_u32 %s, 30" % s(sT0))
    e("s_cbranch_scc1 L_role_pf")
    e("s_cmp_ge_u32 %s, 16" % s(sT0))
    e("s_cbranch_scc1 L_role_ffn")
    e("s_lshl_b32 %s, %s, 1" % (s(sCB), s(sT2)))
    e("s_lshr_b32 %s, %s, 3" % (s(sT3), s(sT0)))
    e("s_add_u32 %s, %s, %s" % (s(sCB), s(sCB), s(sT3)))
    e("s_and_b32 %s, %s, 7" % (s(sKC), s(sT0)))
    e("s_add_u32 %s, %s, %s" % (s(sRB), s(sT1), s(sKC)))
    if "rot4" not in OPTS:
        e("s_mul_i32 %s, %s, 5" % (s(sT3), s(sT3)))
        e("s_add_u32 %s, %s, %s" % (s(sKC), s(sKC), s(sT3)))
        e("s_cmp_ge_u32 %s, 10" % s(sKC))
        e("s_cselect_b32 %s, 10, 0" % s(sT3))
        e("s_sub_u32 %s, %s, %s" % (s(sKC), s(sKC), s(sT3)))
    if "rotk" not in OPTS: e("s_mov_b32 %s, 0" % s(sKC))
    if "rot4" in OPTS:
        e("s_and_b32 %s, %s, 1" % (s(sT3), s(sCB))); e("s_lshl_b32 %s, %s, 1" % (s(sT3), s(sT3)))
        e("s_add_u32 %s, %s, %s" % (s(sT3), s(sT3), s(sRB))); e("s_and_b32 %s, %s, 3" % (s(sT3), s(sT3)))
        e("s_mul_i32 %s, %s, 5" % (s(sT3), s(sT3))); e("s_lshr_b32 %s, %s, 1" % (s(sKC), s(sT3)))
    if ROTN == 5:
        e("s_and_b32 %s, %s, 1" % (s(sT3), s(sCB))); e("s_mul_i32 %s, %s, 3" % (s(sT3), s(sT3)))
        e("s_add_u32 %s, %s, %s" % (s(sT3), s(sT3), s(sRB))); e("s_mul_i32 %s, %s, 52" % (s(sKC), s(sT3))); e("s_lshr_b32 %s, %s, 8" % (s(sKC), s(sKC)))
        e("s_mul_i32 %s, %s, 5" % (s(sKC), s(sKC))); e("s_sub_u32 %s, %s, %s" % (s(sKC), s(sT3), s(sKC))); e("s_lshl_b32 %s, %s, 1" % (s(sKC), s(sKC)))
    if ROTN == 3:
        e("s_and_b32 %s, %s, 1" % (s(sT3), s(sCB))); e("s_add_u32 %s, %s, %s" % (s(sT3), s(sT3), s(sRB)))
        e("s_mul_i32 %s, %s, 86" % (s(sKC), s(sT3))); e("s_lshr_b32 %s, %s, 8" % (s(sKC), s(sKC)))
        e("s_mul_i32 %s, %s, 3" % (s(sKC), s(sKC))); e("s_sub_u32 %s, %s, %s" % (s(sKC), s(sT3), s(sKC))); e("s_mul_i32 %s, %s, 3" % (s(sKC), s(sKC)))
    e("s_mul_i32 %s, %s, %d" % (s(sXO), s(sRB), 128*1280))
    e("s_sub_u32 %s, %s, %d" % (s(sXH), s(sXO), 16*1280))
    e("s_cmp_eq_u32 %s, 0" % s(sRB))
    e("s_cselect_b32 %s, 0, %s" % (s(sXH), s(sXH)))
    e("s_add_u32 %s, %s, 8" % (s(sSig), s(sCB)))
    attn_lane_setup(e)
    attn_first_pre(e)
    e("s_waitcnt lgkmcnt(0)")
    srd(e, sX, 4, X_BYTES)
    if "stamp" in OPTS: srd(e, sWS, 20, WS_USED)
    stamp(e, 0)
    attn_first_dma(e, 1 if 'late1' in OPTS else 2, lambda: srd(e, sW, 6, WQKV_BYTES))
    srd(e, sWS, 20, WS_USED); srd(e, sDBG, 18, 256)
    stamp(e, 1)
    for w in range(3):
        e("s_cmp_eq_u32 %s, %d" % (s(sWave), w))
        e("s_cbranch_scc1 L_attn_%d" % w)
    e("s_branch L_attn_3")
    e.lab("L_role_ffn")
    e("s_mul_i32 %s, %s, 14" % (s(sT2), s(sT2)))
    e("s_add_u32 %s, %s, %s" % (s(sT2), s(sT2), s(sT0)))
    e("s_sub_u32 %s, %s, 16" % (s(sT2), s(sT2)))
    e("s_lshr_b32 %s, %s, 3" % (s(sCB), s(sT2)))
    e("s_and_b32 %s, %s, 7" % (s(sKC), s(sT2)))
    e("s_add_u32 %s, %s, %s" % (s(sRB), s(sT1), s(sKC)))
    e("s_and_b32 %s, %s, 1" % (s(sT3), s(sCB)))
    e("s_mul_i32 %s, %s, 5" % (s(sT3), s(sT3)))
    e("s_add_u32 %s, %s, %s" % (s(sKC), s(sKC), s(sT3)))
    e("s_add_u32 %s, %s, 2" % (s(sKC), s(sKC)))
    e("s_cmp_ge_u32 %s, 10" % s(sKC))
    e("s_cselect_b32 %s, 10, 0" % s(sT3))
    e("s_sub_u32 %s, %s, %s" % (s(sKC), s(sKC), s(sT3)))
    if "rotk" not in OPTS: e("s_mov_b32 %s, 0" % s(sKC))
    if "rot4" in OPTS:
        e("s_and_b32 %s, %s, 1" % (s(sT3), s(sCB))); e("s_lshl_b32 %s, %s, 1" % (s(sT3), s(sT3)))
        e("s_add_u32 %s, %s, %s" % (s(sT3), s(sT3), s(sRB))); e("s_add_u32 %s, %s, 1" % (s(sT3), s(sT3))); e("s_and_b32 %s, %s, 3" % (s(sT3), s(sT3)))
        e("s_mul_i32 %s, %s, 5" % (s(sT3), s(sT3))); e("s_lshr_b32 %s, %s, 1" % (s(sKC), s(sT3)))
    if ROTN == 5:
        e("s_and_b32 %s, %s, 1" % (s(sT3), s(sCB))); e("s_mul_i32 %s, %s, 3" % (s(sT3), s(sT3))); e("s_add_u32 %s, %s, 1" % (s(sT3), s(sT3)))
        e("s_add_u32 %s, %s, %s" % (s(sT3), s(sT3), s(sRB))); e("s_mul_i32 %s, %s, 52" % (s(sKC), s(sT3))); e("s_lshr_b32 %s, %s, 8" % (s(sKC), s(sKC)))
        e("s_mul_i32 %s, %s, 5" % (s(sKC), s(sKC))); e("s_sub_u32 %s, %s, %s" % (s(sKC), s(sT3), s(sKC))); e("s_lshl_b32 %s, %s, 1" % (s(sKC), s(sKC)))
    if ROTN == 3:
        e("s_and_b32 %s, %s, 1" % (s(sT3), s(sCB))); e("s_add_u32 %s, %s, %s" % (s(sT3), s(sT3), s(sRB))); e("s_add_u32 %s, %s, 2" % (s(sT3), s(sT3)))
        e("s_mul_i32 %s, %s, 86" % (s(sKC), s(sT3))); e("s_lshr_b32 %s, %s, 8" % (s(sKC), s(sKC)))
        e("s_mul_i32 %s, %s, 3" % (s(sKC), s(sKC))); e("s_sub_u32 %s, %s, %s" % (s(sKC), s(sT3), s(sKC))); e("s_mul_i32 %s, %s, 3" % (s(sKC), s(sKC)))
    e("s_mul_i32 %s, %s, %d" % (s(sXO), s(sRB), 128*1280))
    e("s_mov_b32 %s, %s" % (s(sSig), s(sCB)))
    e("s_mul_i32 %s, %s, 7" % (s(sUn), s(sT1)))
    e("s_add_u32 %s, %s, %s" % (s(sUn), s(sUn), s(sT2)))
    ffn_lane_setup(e)
    ffn_first_pre(e)
    e("s_waitcnt lgkmcnt(0)")
    srd(e, sX, 4, X_BYTES)
    stamp(e, 0)
    ffn_first_dma(e, 1 if 'late1' in OPTS else 2, lambda: srd(e, sW, 12, W1_BYTES))
    srd(e, sWS, 20, WS_USED); srd(e, sDBG, 18, 256)
    if "coop" in OPTS: srd(e, sQ, 6, WQKV_BYTES)
    stamp(e, 1)
    for w in range(3):
        e("s_cmp_eq_u32 %s, %d" % (s(sWave), w))
        e("s_cbranch_scc1 L_ffn_%d" % w)
    e("s_branch L_ffn_3")
    e.lab("L_role_pf")
    e("s_lshl_b32 %s, s3, 1" % s(sCB))
    e("s_add_u32 %s, %s, %s" % (s(sCB), s(sCB), s(sT0)))
    e("s_sub_u32 %s, %s, 30" % (s(sCB), s(sCB)))
    e("s_waitcnt lgkmcnt(0)")
    srd(e, sX, 4, X_BYTES); srd(e, sWS, 20, WS_USED); srd(e, sDBG, 18, 256)
    stamp(e, 0)
    e("v_lshlrev_b32 %s, 4, %s" % (v(vL16), v(vLane)))
    srd(e, sPF, 14, W2_BYTES)
    e("s_mul_i32 %s, %s, 640" % (s(sT0), s(sWave)))
    for m in range(10):
        e("v_add_u32 v1, %s, %s" % (s(sT0), v(vLane)))
        if m: e("v_add_u32 v1, %d, v1" % (64*m))
        e("v_mul_u32_u24 v2, 3277, v1"); e("v_lshrrev_b32 v2, 18, v2")
        e("v_mul_u32_u24 v3, 80, v2"); e("v_sub_u32 v3, v1, v3")
        e("v_and_b32 v4, 7, v2"); e("v_lshlrev_b32 v4, 1, v4"); e("v_xor_b32 v3, v3, v4")
        e("v_mul_u32_u24 v2, 1280, v2"); e("v_lshl_add_u32 %s, v3, 4, v2" % v(216+m))
    if PF_DELAY: e("s_sleep %d" % PF_DELAY)
    if "pfnonce" in OPTS: get_nonce(e, "pf0", 250)
    for i in range(3):
        e("s_add_u32 %s, %s, %d" % (s(68+i), s(sCB), 28 + 16*i))
        e("s_sub_u32 %s, %s, 20" % (s(sT0), s(68+i)))
        e("s_mul_i32 %s, %s, 40960" % (s(sT0), s(sT0)))
        e("s_cmp_ge_u32 %s, %d" % (s(68+i), NKS)); e("s_cselect_b32 %s, 0x%x, %s" % (s(sT0), OOB, s(sT0)))
        e("s_mul_i32 %s, %s, 10240" % (s(sT1), s(sWave)))
        for m in range(10):
            e("s_add_u32 m0, %s, %d" % (s(sT1), i*40960 + 1024*m))
            e("s_nop 0")
            e("buffer_load_dwordx4 %s, %s, %s offen lds" % (v(216+m), sr(sPF,4), s(sT0)))
    stamp(e, 1)
    e("v_and_b32 v1, 15, %s" % v(vLane)); e("v_lshrrev_b32 v2, 2, v1"); e("v_and_b32 v3, 3, v1")
    e("v_lshrrev_b32 v4, 4, %s" % v(vLane)); e("v_lshl_add_u32 v2, v4, 2, v2")
    e("v_and_b32 v5, 7, v2"); e("v_lshlrev_b32 v5, 5, v5")
    e("v_mul_u32_u24 v2, 1280, v2")
    e("s_mul_i32 %s, %s, 320" % (s(sT0), s(sWave)))
    for half in range(2):
        for ct in range(5):
            if ct < 4: off = half*160 + (ct >> 1)*64 + (ct & 1)*8; sh = 4
            else: off = half*160 + 128; sh = 3
            d = 226 + half*5 + ct
            e("v_lshlrev_b32 v6, %d, v3" % sh)
            e("s_add_u32 %s, %s, %d" % (s(sT1), s(sT0), off))
            e("v_add_u32 v6, %s, v6" % s(sT1))
            e("v_xor_b32 v6, v6, v5")
            e("v_add_u32 %s, v6, v2" % v(d))
    if SSH and "pfnonce" not in OPTS: get_nonce(e, "pfs", 250)
    if SSH and XL_AT == 2:
        if XL_DELAY: e("s_sleep %d" % XL_DELAY)
        pf_stats_loads(e)
        e("s_waitcnt vmcnt(40)")
    else: e("s_waitcnt vmcnt(0)")
    e("s_barrier")
    stamp(e, 2)
    if SSH and XL_AT == 0: pf_stats_loads(e)
    for i in range(3):
        e("s_mul_i32 %s, %s, 5120" % (s(sT0), s(68+i)))
        e("s_mul_i32 %s, %s, %d" % (s(sT1), s(sWave), 2*W2F_CB))
        e("s_add_u32 %s, %s, %s" % (s(sT0), s(sT0), s(sT1)))
        e("s_add_u32 %s, %s, %d" % (s(sT0), s(sT0), W2F_OFF))
        e("s_cmp_ge_u32 %s, %d" % (s(68+i), NKS)); e("s_cselect_b32 %s, 0x%x, %s" % (s(sT0), 0x40000000, s(sT0)))
        for t in range(10):
            d = 176 + t*4
            e("ds_read_b64_tr_b16 %s, %s" % (vr(d,2), v(226+t)))
            e("ds_read_b64_tr_b16 %s, %s offset:%d" % (vr(d+2,2), v(226+t), 16*1280))
        if i < 2:
            for t in range(10): e("v_add_u32 %s, 40960, %s" % (v(226+t), v(226+t)))
        for t in range(10):
            half, ct = divmod(t, 5)
            d = 176 + t*4
            e("s_add_u32 %s, %s, %d" % (s(sT1), s(sT0), half*W2F_CB + ct*1024))
            e("buffer_store_dwordx4 %s, %s, %s, %s offen sc1" % (vr(d,4), v(vL16), sr(sWS,4), s(sT1)))
    stamp(e, 3)
    e("s_waitcnt vmcnt(0)")
    e("s_barrier")
    e("s_cmp_lg_u32 %s, 0" % s(sWave))
    e("s_cbranch_scc1 L_pf_nosig")
    signal_count(e, CNT_P)
    e.lab("L_pf_nosig")
    stamp(e, 4)
    if SSH:
        if XL_AT == 1: pf_stats_loads(e)
        else: e("s_waitcnt vmcnt(0)")
        pf_stats_compute(e)
        stamp(e, 6)
    ph2_setup(e, F_SLOT)
    e("s_cmp_lg_u32 %s, 0" % s(sWave))
    e("s_cbranch_scc1 L_pf_nospin")
    spin_count(e, "pf", CNT_P, N_P, 250)
    e.lab("L_pf_nospin")
    e("s_barrier")
    get_nonce(e, "pf", 250)
    stamp(e, 5)
    if "ph1only" in OPTS: stamp_flush(e); e("s_endpgm")
    for g in w2l_groups(0, 25): e.ext(g)
    e("v_lshlrev_b32 v2, 2, %s" % v(vLane))
    e("buffer_load_dword %s, v2, %s, %s offen sc1" % (v(vPoll), sr(sWS,4), s(sFL)))
    for g in w2a_groups(5, PE_F): e.ext(g)
    e("s_mov_b32 %s, 1" % s(sMain))
    e("s_waitcnt vmcnt(%d)" % (5*(PE_F-5)))
    e("s_branch L_ph2")
    out += process_path(e.L, None, None, [])
    for role in ("attn", "ffn"):
        for w in range(4):
            tag = "%s_%d" % (role, w)
            pre = E(); pre.lab("L_" + tag)
            if role == "attn":
                cfg = attn_cfg(w)
                def extra(e, w=w):
                    read_addr_setup_attn(e)
                    attn_stash(e)
                    if w == 0:
                        e("s_cmp_lg_u32 s2, 0 ; rare"); e("s_cbranch_scc1 L_nononce ; rare")
                        e("s_memrealtime s[96:97] ; rare"); e("s_waitcnt lgkmcnt(0) ; rare")
                        e("s_or_b32 s96, s96, 1 ; rare"); e("v_mov_b32 v14, s96 ; rare"); e("v_mov_b32 v15, 0 ; rare")
                        e("buffer_store_dword v14, v15, %s, 0 offen sc1 ; rare" % sr(sDBG,4))
                        e.lab("L_nononce")
                        e("v_and_b32 v2, 7, %s" % v(vLane))
                        e("v_lshlrev_b32 v7, 4, v2")
                        e("v_mov_b32 v8, 0x3f803f80"); e("v_mov_b32 v9, v8"); e("v_mov_b32 v10, v8"); e("v_mov_b32 v11, v8")
                        e("ds_write_b128 v7, v[8:11]")
                        e("v_add_u32 v12, %d, v7" % A_SLOT); e("ds_write_b128 v12, v[8:11]")
                        e("v_add_u32 v13, %d, v7" % (2*A_SLOT)); e("ds_write_b128 v13, v[8:11]")
                body, post, side = role_main(pre, tag, cfg, attn_dma_list(w), vDO, w, 136, extra)
            else:
                cfg = ffn_cfg(w)
                body, post, side = role_main(pre, tag, cfg, ffn_dma_list(w), fDO, w, 144, read_addr_setup_ffn, units=("nounits" not in OPTS))
            post("s_branch L_ep_%s" % role)
            out += process_path(pre.L, "L_loop_" + tag, body, post.L)
            out += side
        ep = E()
        if role == "attn": attn_epilogue(ep)
        else: ffn_epilogue(ep)
        last = PE_A if role == "attn" else PE_F
        groups = (w2a_groups(5, 9) + w2a_groups(9 + EARLY_W2A, last)) if "ph1only" not in OPTS else []
        nin = (min(ATT_W2A_IN, len(groups)) if role == "attn" else FFN_W2A_IN) if groups else 0
        poll = ["  v_lshlrev_b32 %s, 2, %s" % (v(vPoll), v(vLane)), "  buffer_load_dword %s, %s, %s, %s offen sc1" % (v(vPoll), v(vPoll), sr(sWS,4), s(sFL))]
        lines = ep.L
        if role == "attn" and "nopoll" not in OPTS:
            k = len(lines) - ATT_POLL_BACK
            while lines[k].strip().startswith(("s_cbranch", "s_cselect")) or lines[k-1].strip().startswith(("s_cmp", "v_cmp")): k -= 1
            lines = lines[:k] + poll + lines[k:]
        epl = sprinkle(lines, groups[:nin], start=4, end_gap=(ATT_ENDGAP if role == "attn" else 10)) if nin else lines
        fin = E()
        stamp(fin, 6)
        if role == "attn" and "ph1only" not in OPTS:
            fin("s_mov_b32 %s, 0" % s(sMain))
            for g in groups[nin:]: fin.ext(g)
            ao_setup(fin)
            check_flags(fin, MASK_F, vPoll, "L_att_fast")
            spin_flags(fin, "attf", MASK_F, 250)
            fin.lab("L_att_fast")
            stamp(fin, 7)
            for p in range(DA):
                for g in act_loads(p): fin.ext(["%s ; rare" % t for t in g])
            fin("s_branch L_ph2_main_A")
        else:
            fin("s_mov_b32 %s, 1" % s(sMain))
            if "nopoll" not in OPTS: fin.ext(poll)
            nb = min(W2A_BEFORE_SIG, len(groups) - nin)
            for g in groups[nin:nin+nb]: fin.ext(g)
            fin("s_waitcnt vmcnt(%d)" % nb)
            stamp(fin, 7)
            if "ph1only" in OPTS:
                stamp_flush(fin); fin("s_endpgm")
            else:
                fin("s_barrier")
                signal_rb(fin, role, None)
                for g in groups[nin+nb:]: fin.ext(g)
                fin("s_branch L_ph2")
        if "ep2x" in OPTS:
            rep = E()
            rep("s_waitcnt vmcnt(0) lgkmcnt(0)"); rep("s_barrier")
            stamp(rep, 12)
            rep("s_add_u32 s100, s100, 1"); rep("s_cmp_lt_u32 s100, 2"); rep("s_cbranch_scc1 L_ep_%s" % role)
            epl = epl + rep.L
        out += process_path(["L_ep_%s:" % role, "  s_nop 7", "  s_nop 1"] + epl + fin.L, None, None, [])
    out += phase2()
    out.append("L_end:")
    return out

def kd(name, nfv, accum, sg=102):
    return """.section .rodata,"a"
.p2align 6
.amdhsa_kernel %s
  .amdhsa_next_free_vgpr %d
  .amdhsa_next_free_sgpr %d
  .amdhsa_accum_offset %d
  .amdhsa_group_segment_fixed_size 0
  .amdhsa_kernarg_size 72
  .amdhsa_user_sgpr_count 2
  .amdhsa_user_sgpr_kernarg_segment_ptr 1
  .amdhsa_system_sgpr_workgroup_id_x 1
  .amdhsa_float_denorm_mode_32 3
.end_amdhsa_kernel
""" % (name, nfv, sg, accum)

HEADER = """; Kernarg (72 bytes): [0] A_x [8] A_wqkv [16] A_wo [24] B_x [32] B_w1 [40] B_w2 [48] out [56] debug [64] ws
;
;   ffn (112 wg): 128 tokens x 256 hidden columns, relu(xW1 - mean*colsum), writes h/rstd;  also re-lays out 1 unit of [wo;w2] in MFMA order.
;   helper (16 wg): re-lays out the rest of [wo;w2] and computes the token statistics {-mean, rstd, std}.
; @launch grid=(256,1,1) block=(256,1,1) lds=163840
.amdgcn_target "amdgcn-amd-amdhsa--gfx950"
"""
def main():
    if len(sys.argv) > 2: OPTS.update(sys.argv[2].split(","))
    k = top()
    if "noalign" not in OPTS:
        from alignpass import align
        head = '.amdgcn_target "amdgcn-amd-amdhsa--gfx950"\n.text\n.p2align 8\nk:\n'
        k = align(head, k, "\ns_endpgm\nL_codeend:\n")
    txt = HEADER + ".text\n.globl %s\n.p2align 8\n.type %s,@function\n%s:\n" % (KNAME, KNAME, KNAME) + "\n".join(k) + "\ns_endpgm\nL_codeend:\n" + kd(KNAME, 512, 256)
    path = sys.argv[1] if len(sys.argv) > 1 else "out2.s"
    open(path, "w").write(txt)
    print("wrote", path, len(txt), "bytes;", len(k), "lines")
if __name__ == "__main__": main()
```

```python
import sys, struct, os
from irlib import *

KNAME = "parallel_sum__sliding_local_dilated__dense_activation_relu__prompt_kernel"
S_, D_, DFF = 2048, 640, 1728
X_BYTES = S_*D_*2; WQKV_BYTES = D_*3*D_*2; WO_BYTES = D_*D_*2; W1_BYTES = D_*DFF*2; W2_BYTES = DFF*D_*2
NKS = 74
ACT_OFF = 0; ACT_TB = NKS*4096
W2F_OFF = 10*1024*1024; W2F_CB = NKS*5120
RSTD_OFF = 14*1024*1024
STATS_OFF = 14*1024*1024 + 65536
STAMP_OFF = 16*1024*1024
WS_USED = 17*1024*1024
OOB = 0x7F000000
FLAG_OFF = 15*1024*1024
MASK_F, MASK_A, MASK_P = 0x7f, 0xff00, 0xffff0000
SPIN_MAX = 200000
PF_DELAY = int(os.environ.get('PFD', 0))
UNIT_LATE = int(os.environ.get('ULATE', 0))
XL_AT = int(os.environ.get('XLAT', 1))
XL_DELAY = int(os.environ.get('XLD', 0))
ROTN = int(os.environ.get('ROTN', 0))
EARLY_W2A = int(os.environ.get('EW', 0))
POLL2 = int(os.environ.get('POLL2', 0))
FPOLL = int(os.environ.get('FPOLL', 0))
SSH = True
OPTS = set()
def f2u(x): return struct.unpack("<I", struct.pack("<f", x))[0]
def v(i): return "v%d" % i
def vr(i, n): return "v[%d:%d]" % (i, i+n-1)
def a(i): return "a%d" % i
def ar(i, n): return "a[%d:%d]" % (i, i+n-1)
def s(i): return "s%d" % i
def sr(i, n): return "s[%d:%d]" % (i, i+n-1)
MFMA = "v_mfma_f32_16x16x32_bf16"

class E:
    def __init__(self): self.L = []
    def __call__(self, t): self.L.append("  " + t)
    def lab(self, t): self.L.append(t + ":")
    def ext(self, lines):
        for t in lines: self.L.append(t if t.startswith("  ") or t.endswith(":") else "  " + t)

sWave = 22
sX, sW, sWS, sDBG = 24, 28, 32, 76
sRB, sCB, sKC, sSoX, sSoW, sDSlot, sRDelta, sIter = 36, 37, 38, 39, 40, 41, 42, 43
sT0, sT1, sT2, sT3 = 46, 47, 48, 49
sM = 50
sTB, sC2, sSig, sWB, sAB, sLA, sLB, sP0, sP1, sRB2 = 80, 81, 82, 83, 84, 85, 86, 87, 88, 89
sKQ = [4,5,6,7,8,9,10,11,12,13,14,15,18,19]
sNonce, sFL = 23, 45
sD0, sD1 = 90, 91
sXO, sXH = 92, 93
vLane = 255
vSt = 247
vPoll = 243
vNon = 252

def stamp(e, i):
    if "stamp" in OPTS:
        e("s_memrealtime s[96:97]"); e("s_memtime s[98:99]"); e("s_waitcnt lgkmcnt(0)")
        e("v_writelane_b32 %s, s96, %d" % (v(vSt), 2*i)); e("v_writelane_b32 %s, s98, %d" % (v(vSt), 2*i+1))
def stamp_flush(e):
    if "stamp" not in OPTS: return
    if "dbgst" in OPTS:
        uid = len(e.L)
        for wg, lst, base in ((0, [3,4,5,6,9,12], 2), (128, [3,4,5,7,9], 8), (240, [4,5,8], 13)):
            lab = "L_ds_%d_%d" % (wg, uid)
            e("s_cmp_lg_u32 s2, %d" % wg); e("s_cbranch_scc1 %s" % lab)
            e("s_cmp_lg_u32 %s, 0" % s(sWave)); e("s_cbranch_scc1 %s" % lab)
            e("v_readlane_b32 s96, %s, 0" % v(vSt))
            for n_, i in enumerate(lst):
                e("v_readlane_b32 s97, %s, %d" % (v(vSt), 2*i))
                e("s_nop 4")
                e("s_sub_u32 s97, s97, s96")
                e("v_mov_b32 v1, s97"); e("v_mov_b32 v2, %d" % (4*(base+n_)))
                e("buffer_store_dword v1, v2, %s, 0 offen" % sr(sDBG,4))
            e.lab(lab)
        return
    e("s_lshl_b32 s3, s2, 2"); e("s_add_u32 s3, s3, %s" % s(sWave)); e("s_lshl_b32 s3, s3, 8")
    e("s_add_u32 s3, s3, %d" % STAMP_OFF)
    e("v_lshlrev_b32 v1, 2, %s" % v(vLane))
    e("buffer_store_dword %s, v1, %s, s3 offen" % (v(vSt), sr(sWS,4)))

def srd(e, base, ptr, nbytes):
    e("s_mov_b32 %s, %s" % (s(base), s(ptr)))
    e("s_and_b32 %s, %s, 0xffff" % (s(base+1), s(ptr+1)))
    e("s_mov_b32 %s, %d" % (s(base+2), nbytes))
    e("s_mov_b32 %s, 0x20000" % s(base+3))

def check_flags(e, mask, val, oklab, rare=""):
    e("v_cmp_eq_u32 vcc, %s, %s%s" % (s(sNonce), v(val), rare))
    e("s_nop 3" + rare)
    e("s_and_b32 %s, vcc_lo, 0x%x%s" % (s(sT0), mask, rare))
    e("s_cmp_eq_u32 %s, 0x%x%s" % (s(sT0), mask, rare))
    e("s_cbranch_scc1 %s%s" % (oklab, rare))
def spin_flags(e, tag, mask, vtmp, have_first=None):
    R = " ; rare"
    if have_first is not None: check_flags(e, mask, have_first, "L_ok_%s" % tag)
    e("s_mov_b32 %s, 0" % s(sT1) + R)
    e("v_lshlrev_b32 %s, 2, %s" % (v(vtmp+1), v(vLane)) + R)
    e.lab("L_spin_%s" % tag)
    e("buffer_load_dword %s, %s, %s, %s offen sc1" % (v(vtmp), v(vtmp+1), sr(sWS,4), s(sFL)) + R)
    e("s_waitcnt vmcnt(0)" + R)
    check_flags(e, mask, vtmp, "L_ok_%s" % tag, R)
    e("s_sleep %d" % FSLEEP + R)
    e("s_add_u32 %s, %s, 1" % (s(sT1), s(sT1)) + R)
    e("s_cmp_lt_u32 %s, %d" % (s(sT1), SPIN_MAX) + R)
    e("s_cbranch_scc1 L_spin_%s" % tag + R)
    e.lab("L_ok_%s" % tag)
def get_nonce(e, tag, vtmp, have_first=None):
    R = " ; rare"
    if have_first is not None:
        e("v_readfirstlane_b32 %s, %s" % (s(sNonce), v(have_first)))
        e("s_nop 3")
        e("s_cmp_lg_u32 %s, 0" % s(sNonce))
        e("s_cbranch_scc1 L_nok_%s" % tag)
    e("s_mov_b32 %s, 0" % s(sT1) + R)
    e("v_mov_b32 %s, 0" % v(vtmp+1) + R)
    e.lab("L_nspin_%s" % tag)
    e("buffer_load_dword %s, %s, %s, 0 offen sc1" % (v(vtmp), v(vtmp+1), sr(sDBG,4)) + R)
    e("s_waitcnt vmcnt(0)" + R)
    e("v_readfirstlane_b32 %s, %s" % (s(sNonce), v(vtmp)) + R)
    e("s_nop 3" + R)
    e("s_cmp_lg_u32 %s, 0" % s(sNonce) + R)
    e("s_cbranch_scc1 L_nok_%s" % tag + R)
    e("s_sleep 8" + R)
    e("s_add_u32 %s, %s, 1" % (s(sT1), s(sT1)) + R)
    e("s_cmp_lt_u32 %s, %d" % (s(sT1), SPIN_MAX) + R)
    e("s_cbranch_scc1 L_nspin_%s" % tag + R)
    e.lab("L_nok_%s" % tag)
def signal_rb(e, tag, word_sgpr_expr, vt=(1, 2)):
    e("s_cmp_lg_u32 %s, 0" % s(sWave))
    e("s_cbranch_scc1 L_nosig_%s" % tag)
    R = " ; rare"
    e("s_and_b32 %s, %s, 1" % (s(sT0), s(sRB)) + R)
    e("s_lshl_b32 %s, %s, 4" % (s(sT0), s(sT0)) + R)
    a_, b_ = v(vt[0]), v(vt[1])
    e("v_add_u32 %s, %s, %s" % (a_, s(sT0), v(vLane)) + R)
    e("v_lshlrev_b32 %s, 3, %s" % (a_, a_) + R)
    e("s_lshr_b32 %s, %s, 1" % (s(sT0), s(sRB)) + R)
    e("v_add_u32 %s, %s, %s" % (a_, s(sT0), a_) + R)
    e("v_lshlrev_b32 %s, 7, %s" % (a_, a_) + R)
    e("s_lshl_b32 %s, %s, 2" % (s(sT0), s(sSig)) + R)
    e("s_add_u32 %s, %s, %d" % (s(sT0), s(sT0), FLAG_OFF) + R)
    e("v_mov_b32 %s, %s" % (b_, s(sNonce)) + R)
    e("s_mov_b32 exec_lo, 0xffff" + R); e("s_mov_b32 exec_hi, 0" + R)
    e("buffer_store_dword %s, %s, %s, %s offen sc1" % (b_, a_, sr(sWS,4), s(sT0)) + R)
    e("s_mov_b64 exec, -1" + R)
    e.lab("L_nosig_%s" % tag)

class Cfg: pass

def chunk_body(cfg, dma, last=False, rolled_tag=None, closing_vm=None, first_vm=None):
    NT = cfg.ntile; NF = 2*NT; R = cfg.ring; L = cfg.look; TAIL = cfg.tail
    assert NF % R == 0
    wreg = lambda f: cfg.wbase + (f % R)*4
    def wreads(f):
        kh, c = divmod(f % NF, NT); return cfg.wread(kh, c, wreg(f))
    def mf(f):
        kh, c = divmod(f % NF, NT); return cfg.mf(kh, c, wreg(f))
    NFIRST = cfg.nfirst
    items = []
    for f in range(0, NF - TAIL):
        g = f + L
        rd = wreads(g) if NFIRST <= g < NF else []
        if f == cfg.xread1_at: rd = rd + cfg.xreads(1)
        ms = []
        if f == 0 and "nostats" not in OPTS and not SSH: ms += cfg.stats(0)
        if f == NT and "nostats" not in OPTS and not SSH: ms += cfg.stats(1)
        ms += mf(f)
        items.append((rd, ms))
    issued = set(range(NFIRST)) | {f + L for f in range(0, NF - TAIL) if NFIRST <= f + L < NF}
    assert issued == set(range(NF)), (sorted(set(range(NF)) - issued))
    nm = sum(len(m) for _, m in items)
    out = []
    nd = len(dma)
    st = cfg.dma_start + cfg.dma_skew; en = nm - cfg.dma_endgap
    pos = [st + (en - st)*i // max(nd, 1) for i in range(nd)]
    cnt = 0; di = 0
    for rd, ms in items:
        rq = list(rd)
        for k, m in enumerate(ms):
            if rq:
                take = (len(rq) + (len(ms) - k) - 1) // (len(ms) - k)
                for _ in range(take): out.append(rq.pop(0))
            out.append(m); cnt += 1
            while di < nd and pos[di] <= cnt:
                out += dma[di]; di += 1
    assert di == nd
    if closing_vm is None: out.append("s_waitcnt lgkmcnt(0)")
    elif first_vm is not None:
        out.append("s_cmp_eq_u32 %s, 0" % s(sIter))
        out.append("s_cbranch_scc1 L_first_%s" % rolled_tag)
        out.append("s_waitcnt vmcnt(%d) lgkmcnt(0)" % closing_vm)
        out.append("L_join_%s:" % rolled_tag)
    else: out.append("s_waitcnt vmcnt(%d) lgkmcnt(0)" % closing_vm)
    out.append("s_barrier")
    aux = []
    if not last:
        aux += cfg.addr_update + cfg.xreads(0)
        for f in range(NFIRST): aux += wreads(f)
    if rolled_tag: aux += cfg.scal_update
    tail = []
    for f in range(NF - TAIL, NF): tail += mf(f)
    per = -(-len(aux) // max(len(tail), 1))
    for m in tail:
        out.append(m)
        for _ in range(per):
            if aux: out.append(aux.pop(0))
    out += aux
    if rolled_tag:
        out.append("s_cbranch_scc1 L_loop_%s" % rolled_tag)
    return ["  ; lgextra %d" % int(os.environ.get("LGX", 2))] + [t if t.endswith(":") else "  " + t for t in out] + ["  ; lgextra 0"]

sCp, sCm = 94, 95
def scal_update(slot, wstep, halo=False):
    t = []
    if "rotk" in OPTS:
        t.append("s_add_u32 %s, %s, 1" % (s(sKC), s(sKC)))
        t.append("s_cmp_eq_u32 %s, 10" % s(sKC))
        t.append("s_cselect_b32 %s, %d, %s" % (s(sKC), 1 if "c0" in OPTS else 0, s(sKC)))
        t.append("s_lshl_b32 %s, %s, 7" % (s(sSoX), s(sKC)))
        t.append("s_mul_i32 %s, %s, %d" % (s(sSoW), s(sKC), wstep))
    else:
        t.append("s_add_u32 %s, %s, 128" % (s(sSoX), s(sSoX)))
        t.append("s_add_u32 %s, %s, %d" % (s(sSoW), s(sSoW), wstep))
    t.append("s_cmp_eq_u32 %s, %d" % (s(sDSlot), 2*slot))
    t.append("s_cselect_b32 %s, %s, %s" % (s(sRDelta), s(sCm), s(sCp)))
    t.append("s_add_u32 %s, %s, %s" % (s(sDSlot), s(sDSlot), s(sRDelta)))
    t.append("s_add_u32 %s, %s, 1" % (s(sIter), s(sIter)))
    t.append("s_cmp_lt_u32 %s, 8" % s(sIter))
    return t
def addr_update(slot, regs):
    t = []
    t.append("s_cmp_eq_u32 %s, %d" % (s(sDSlot), slot))
    t.append("s_cselect_b32 %s, %s, %s" % (s(sRDelta), s(sCm), s(sCp)))
    for r in regs: t.append("v_add_u32 %s, %s, %s" % (v(r), s(sRDelta), v(r)))
    return t

vL16, vL16b = 241, 245
def w2_soff(p, dst):
    if p < 14: return ["s_mul_i32 %s, %s, 5" % (s(dst), s(sKQ[p])), "s_add_u32 %s, %s, %s" % (s(dst), s(dst), s(sWB))]
    return ["s_mul_i32 %s, %s, 5120" % (s(dst), s(sWave)), "s_add_u32 %s, %s, %s" % (s(dst), s(dst), s(sWB)),
            "s_add_u32 %s, %s, %d" % (s(dst), s(dst), 4*(p-14)*5120)]
def w2l_groups(q0, q1):
    G = []
    for q in range(q0, q1):
        p, ct = divmod(q, 5)
        g = []
        if ct == 0 or q == q0: g += w2_soff(p, sP0)
        g.append("s_add_u32 m0, %s, %d" % (s(sLA if q < 12 else sLB), (q if q < 12 else q - 12)*1024))
        g.append("s_add_u32 %s, %s, %d" % (s(sP1), s(sP0), ct*1024))
        g.append("buffer_load_dwordx4 %s, %s, %s offen sc1 lds" % (v(vL16), sr(sWS,4), s(sP1)))
        G.append(g)
    return G
def w2a_groups(p0, p1, sb=None):
    G = []
    if sb is None: sb = sP0
    for p in range(p0, p1):
        base = ((p - 5) % 12)*20
        for ct in range(5):
            g = []
            if ct == 0: g += w2_soff(p, sb)
            if ct < 4: g.append("buffer_load_dwordx4 %s, %s, %s, %s offen offset:%d sc1" % (ar(base+4*ct,4), v(vL16), sr(sWS,4), s(sb), ct*1024))
            else:      g.append("buffer_load_dwordx4 %s, %s, %s, %s offen sc1" % (ar(base+16,4), v(vL16b), sr(sWS,4), s(sb)))
            G.append(g)
    return G
def ph2_setup(e, slot):
    e("s_and_b32 %s, s2, 7" % s(sT0))
    e("s_lshr_b32 %s, s2, 3" % s(sT1))
    e("s_lshr_b32 %s, %s, 3" % (s(sTB), s(sT1)))
    e("s_lshl_b32 %s, %s, 2" % (s(sT0), s(sT0)))
    e("s_add_u32 %s, %s, %s" % (s(sTB), s(sTB), s(sT0)))
    e("s_and_b32 %s, %s, 7" % (s(sC2), s(sT1)))
    e("s_lshr_b32 %s, %s, 1" % (s(sRB2), s(sTB)))
    e("s_lshl_b32 %s, %s, 2" % (s(sRB2), s(sRB2)))
    e("s_mul_i32 %s, %s, %d" % (s(sWB), s(sC2), W2F_CB))
    if "fakecb" in OPTS: e("s_mov_b32 %s, 0" % s(sWB))
    e("s_add_u32 %s, %s, %d" % (s(sWB), s(sWB), W2F_OFF))
    e("s_mul_i32 %s, %s, %d" % (s(sAB), s(sTB), ACT_TB))
    if "faketb" in OPTS: e("s_and_b32 %s, s2, 7" % s(sAB)); e("s_mul_i32 %s, %s, %d" % (s(sAB), s(sAB), ACT_TB))
    if ACT_OFF: e("s_add_u32 %s, %s, %d" % (s(sAB), s(sAB), ACT_OFF))
    e("s_mul_i32 %s, %s, 12288" % (s(sLA), s(sWave)))
    e("s_add_u32 %s, %s, %d" % (s(sLA), s(sLA), slot))
    e("s_mul_i32 %s, %s, 13312" % (s(sLB), s(sWave)))
    e("s_add_u32 %s, %s, %d" % (s(sLB), s(sLB), 2*slot))
    e("s_mul_i32 %s, %s, 7" % (s(sT0), s(sC2)))
    e("s_lshr_b32 %s, %s, 2" % (s(sT0), s(sT0)))
    e("s_and_b32 %s, %s, 3" % (s(sT1), s(sTB)))
    e("s_mul_i32 %s, %s, 7" % (s(sT1), s(sT1)))
    e("s_lshr_b32 %s, %s, 1" % (s(sT1), s(sT1)))
    e("s_add_u32 %s, %s, %s" % (s(sT0), s(sT0), s(sT1)))
    e("s_sub_u32 %s, %s, 14" % (s(sT1), s(sT0)))
    e("s_cmp_ge_u32 %s, 14" % s(sT0))
    e("s_cselect_b32 %s, %s, %s" % (s(sT0), s(sT1), s(sT0)))
    e("s_lshl_b32 %s, %s, 2" % (s(sT0), s(sT0)))
    e("s_add_u32 %s, %s, %s" % (s(sT0), s(sT0), s(sWave)))
    e("s_add_u32 %s, %s, 20" % (s(sT0), s(sT0)))
    for p in range(14):
        e("s_lshl_b32 %s, %s, 10" % (s(sKQ[p]), s(sT0)))
        e("s_cmp_ge_u32 %s, %d" % (s(sT0), NKS))
        e("s_cselect_b32 %s, 0x10000000, %s" % (s(sKQ[p]), s(sKQ[p])))
        if p < 13:
            e("s_add_u32 %s, %s, 4" % (s(sT0), s(sT0)))
            e("s_sub_u32 %s, %s, 56" % (s(sT1), s(sT0)))
            e("s_cmp_ge_u32 %s, 76" % s(sT0))
            e("s_cselect_b32 %s, %s, %s" % (s(sT0), s(sT1), s(sT0)))
    e("v_add_u32 %s, 4096, %s" % (v(vL16b), v(vL16)))
    e("s_lshl_b32 %s, s2, 7" % s(sFL))
    e("s_add_u32 %s, %s, %d" % (s(sFL), s(sFL), FLAG_OFF))

vZero = 249

A_SLOT = 53248; A_XB = 18432; A_WPAIR = 1088
A_XJ = [[0,1,2,3,4],[5,6,7,8,9],[10,11,12,13],[14,15,16,17]]
vWA, vX0, vX1 = 160, 161, 162
vXE, vXOd, vWL = 163, 164, 165
aW, aXF, aONE = 0, 40, 240
aST = 244
def acc_own(T, c): return (T*15 + c)*4
def acc_halo(eidx): return 120 + eidx*4
vSumT = [136, 140]; vSqT = [144, 148]; vSumH, vSqH = 152, 156
def xf(kh, T): return aXF + (kh*3 + T)*4

def x_lane_setup(e, vE, vO):
    e("v_lshrrev_b32 v1, 3, %s" % v(vLane))
    e("v_and_b32 v2, 7, %s" % v(vLane))
    e("v_lshrrev_b32 v3, 4, %s" % v(vLane))
    e("v_mul_u32_u24 v4, 1280, v1")
    e("v_xor_b32 v5, v2, v3")
    e("v_lshl_add_u32 %s, v5, 4, v4" % v(vE))
    e("v_xor_b32 %s, 64, %s" % (v(vO), v(vE)))

def attn_lane_setup(e):
    x_lane_setup(e, vXE, vXOd)
    e("v_cmp_le_u32 vcc, 30, %s" % v(vLane))
    e("v_mov_b32 v9, 0x40000000")
    e("v_cndmask_b32_e64 v6, 0, 1, vcc")
    e("v_cmp_le_u32 vcc, 60, %s" % v(vLane))
    e("v_mul_u32_u24 v7, 30, v6")
    e("v_sub_u32 v7, %s, v7" % v(vLane))
    e("v_mul_u32_u24 v8, 26, v7")
    e("v_lshrrev_b32 v8, 8, v8")
    e("v_mul_u32_u24 v8, 1120, v8")
    e("v_mul_u32_u24 v6, 3840, v6")
    e("v_lshlrev_b32 v7, 4, v7")
    e("v_add3_u32 v6, v6, v7, v8")
    e("s_mul_i32 %s, %s, 160" % (s(sT0), s(sCB)))
    e("v_add_u32 v6, %s, v6" % s(sT0))
    e("v_cndmask_b32_e64 %s, v6, v9, vcc" % v(vWL))

vDO = 166
def attn_dma_list(w):
    L = []
    for grp in ([[0,1],[2,3,4]], [[5,6,7,8],[9]], [[10,11,12,13]], [[14,15,16,17]])[w]:
        for m, j in enumerate(grp):
            imm = m*1024
            L.append(("x", j*1024 if m == 0 else None, imm, vXOd if j & 1 else vXE, (j*8*1280 if j < 2 else (j-2)*8*1280) - imm, j < 2, w == 0 and j == 0))
    kh = w >> 1; rd = w & 1
    for m in range(8):
        k = 32*kh + 8*(m >> 1) + 4*rd + 2*(m & 1)
        L.append(("w", A_XB + (8*w + m)*A_WPAIR if m % 4 == 0 else None, (m & 3)*A_WPAIR, vWL, k*3840 - (m & 3)*A_WPAIR, False, False))
    return L
def ffn_dma_list(w):
    L = []
    for m in range(4):
        j = 4*w + m
        L.append(("x", 4*w*1024 if m == 0 else None, m*1024, fXOd if j & 1 else fXE, j*8*1280 - m*1024, False, False))
    for m in range(8):
        kh, grp = m >> 2, m & 3
        k = 32*kh + 16*(grp & 1) + 4*(grp >> 1)
        L.append(("w", F_XB + w*8192 + m*1024 if m % 4 == 0 else None, (m & 3)*1024, fWL, k*3456 + w*128 - (m & 3)*1024, False, False))
    return L
def dma_groups_salu(L):
    G = []; tmp = [sD0, sD1]
    for n, (kind, m0c, imm, lane, uc, halo, mask) in enumerate(L):
        g = []; t = tmp[n & 1]
        if m0c is not None: g.append("s_add_u32 m0, %s, %d" % (s(sDSlot), m0c))
        if kind == "x":
            g.append("s_add_u32 %s, %s, %s" % (s(t), s(sSoX), s(sXH if halo else sXO)))
            if uc: g.append("s_add_u32 %s, %s, %d" % (s(t), s(t), uc))
        else: g.append("s_add_u32 %s, %s, %d" % (s(t), s(sSoW), uc))
        if mask: g.append("s_mov_b32 exec_lo, 0xffffff00")
        g.append("buffer_load_dwordx4 %s, %s, %s offen offset:%d lds" % (v(lane), sr(sX if kind == "x" else sW,4), s(t), imm))
        if mask: g.append("s_mov_b32 exec_lo, -1")
        G.append(g)
    return G
def dma_offsets_setup(e, L, base):
    for n, (kind, m0c, imm, lane, uc, halo, mask) in enumerate(L):
        if kind == "x":
            e("s_add_u32 %s, %s, %d" % (s(sD0), s(sXH if halo else sXO), uc))
            e("v_add_u32 %s, %s, %s" % (v(base+n), s(sD0), v(lane)))
        else:
            e("v_add_u32 %s, %d, %s" % (v(base+n), uc, v(lane)))
def dma_groups_vgpr(L, base):
    G = []
    for n, (kind, m0c, imm, lane, uc, halo, mask) in enumerate(L):
        g = []
        if m0c is not None:
            m0 = "s_add_u32 m0, %s, %d" % (s(sDSlot), m0c)
            if G: G[-1].append(m0)
            else: G.append([m0])
        if mask: g.append("s_mov_b32 exec_lo, 0xffffff00")
        g.append("buffer_load_dwordx4 %s, %s, %s offen offset:%d lds" % (v(base+n), sr(sX if kind == "x" else sW,4), s(sSoX if kind == "x" else sSoW), imm))
        if mask: g.append("s_mov_b32 exec_lo, -1")
        G.append(g)
    return G

def attn_cfg(w):
    cfg = Cfg()
    cfg.ntile = 15; cfg.ring = 10; cfg.look = int(os.environ.get('LOOK', 6)); cfg.tail = int(os.environ.get('TAILA', 4)); cfg.nfirst = cfg.look; cfg.wbase = aW
    H = {w: 0, 5 + w: 1, 10 + w: 2}
    if w < 3: H[(4, 9, 14)[w]] = 3
    def wread(kh, c, reg):
        off = kh*16*A_WPAIR + 32*c
        return ["ds_read_b64_tr_b16 %s, %s offset:%d" % (ar(reg,2), v(vWA), off),
                "ds_read_b64_tr_b16 %s, %s offset:%d" % (ar(reg+2,2), v(vWA), off + 8*A_WPAIR)]
    def mf(kh, c, reg):
        out = []
        for T in (0, 1):
            d = vr(acc_own(T, c), 4)
            if c < 10: out.append("%s %s, %s, %s, %s" % (MFMA, d, ar(reg,4), ar(xf(kh,T),4), d))
            else:      out.append("%s %s, %s, %s, %s" % (MFMA, d, ar(xf(kh,T),4), ar(reg,4), d))
        if c in H and "nohalo" not in OPTS:
            d = vr(acc_halo(H[c]), 4)
            if c < 10: out.append("%s %s, %s, %s, %s" % (MFMA, d, ar(reg,4), ar(xf(kh,2),4), d))
            else:      out.append("%s %s, %s, %s, %s" % (MFMA, d, ar(xf(kh,2),4), ar(reg,4), d))
        return out
    def stats(kh):
        out = []
        for T in (0, 1):
            out.append("%s %s, %s, %s, %s" % (MFMA, vr(vSumT[T],4), ar(aONE,4), ar(xf(kh,T),4), vr(vSumT[T],4)))
            out.append("%s %s, %s, %s, %s" % (MFMA, vr(vSqT[T],4), ar(xf(kh,T),4), ar(xf(kh,T),4), vr(vSqT[T],4)))
        if w == 3:
            out.append("%s %s, %s, %s, %s" % (MFMA, vr(vSumH,4), ar(aONE,4), ar(xf(kh,2),4), vr(vSumH,4)))
            out.append("%s %s, %s, %s, %s" % (MFMA, vr(vSqH,4), ar(xf(kh,2),4), ar(xf(kh,2),4), vr(vSqH,4)))
        return out
    def xreads(kh):
        ad = vX1 if kh else vX0
        return ["ds_read_b128 %s, %s offset:%d" % (ar(xf(kh,0),4), v(ad), (1+2*w)*2048),
                "ds_read_b128 %s, %s offset:%d" % (ar(xf(kh,1),4), v(ad), (2+2*w)*2048),
                "ds_read_b128 %s, %s offset:%d" % (ar(xf(kh,2),4), v(ad), 0)]
    cfg.wread = wread; cfg.mf = mf; cfg.stats = stats; cfg.xreads = xreads
    cfg.xread1_at = 4
    cfg.addr_update = addr_update(A_SLOT, [vWA, vX0, vX1])
    cfg.scal_update = scal_update(A_SLOT, 64*3840, halo=(w == 0))
    cfg.dma_start = int(os.environ.get('DST', 2)); cfg.dma_skew = w*int(os.environ.get('DSK', 1)); cfg.dma_endgap = int(os.environ.get('DEG', 8))
    cfg.wstep = 64*3840; cfg.slot = A_SLOT
    return cfg

def xaddr_setup(e, X0, X1, base):
    e("v_and_b32 v1, 15, %s" % v(vLane))
    e("v_lshrrev_b32 v4, 4, %s" % v(vLane))
    e("v_lshrrev_b32 v2, 1, v1")
    e("v_xor_b32 v2, v2, v4")
    e("v_lshlrev_b32 v2, 4, v2")
    e("v_lshl_add_u32 v2, v1, 7, v2")
    e("v_add_u32 %s, %d, v2" % (v(X0), base))
    e("v_xor_b32 v2, 64, v2")
    e("v_add_u32 %s, %d, v2" % (v(X1), base))

def read_addr_setup_attn(e):
    e("v_and_b32 v1, 15, %s" % v(vLane))
    e("v_lshrrev_b32 v2, 2, v1")
    e("v_and_b32 v3, 3, v1")
    e("v_lshrrev_b32 v4, 4, %s" % v(vLane))
    e("v_lshrrev_b32 v5, 1, v2")
    e("v_lshl_add_u32 v5, v4, 1, v5")
    e("v_mul_u32_u24 v5, %d, v5" % A_WPAIR)
    e("v_and_b32 v2, 1, v2")
    e("v_mul_u32_u24 v2, 480, v2")
    e("v_lshlrev_b32 v3, 3, v3")
    e("v_add3_u32 v5, v5, v2, v3")
    e("v_add_u32 %s, %d, v5" % (v(vWA), A_XB))
    xaddr_setup(e, vX0, vX1, 0)

sSzO, sSz2 = 69, 70

def attn_first_dma(e, nchunks=2):
    e("s_and_b32 %s, %s, 1" % (s(sT0), s(sWave)))
    e("s_cmp_eq_u32 %s, 1" % s(sT0))
    e("s_cselect_b32 %s, 64, 0" % s(sT1))
    e("v_xor_b32 v10, %s, %s" % (s(sT1), v(vXE)))
    e("s_mul_i32 %s, %s, 10240" % (s(sT1), s(sWave)))
    e("s_add_u32 %s, %s, %s" % (s(sT2), s(sXH), s(sT1)))
    e("s_add_u32 %s, %s, %s" % (s(sT3), s(sXO), s(sT1)))
    e("s_sub_u32 %s, %s, 20480" % (s(sT3), s(sT3)))
    e("s_cmp_lt_u32 %s, 2" % s(sWave))
    e("s_cselect_b32 %s, %s, %s" % (s(sD0), s(sT2), s(sT3)))
    e("s_cselect_b32 %s, 0, 0x%x" % (s(sD1), OOB))
    e("s_cmp_eq_u32 %s, 0" % s(sWave))
    e("s_cselect_b32 %s, 0xffffff00, -1" % s(sP1))
    e("s_lshl_b32 %s, %s, 10" % (s(sP0), s(sWave)))
    e("s_lshr_b32 %s, %s, 1" % (s(sT1), s(sWave))); e("s_lshl_b32 %s, %s, 5" % (s(sT1), s(sT1)))
    e("s_lshl_b32 %s, %s, 2" % (s(sT0), s(sT0))); e("s_add_u32 %s, %s, %s" % (s(sT1), s(sT1), s(sT0)))
    e("s_mul_i32 %s, %s, 3840" % (s(sT1), s(sT1)))
    e("s_mul_i32 %s, %s, %d" % (s(sT0), s(sWave), 8*A_WPAIR))
    if "c0" in OPTS:
        assert nchunks == 1
        e("s_mov_b32 %s, %s" % (s(sRDelta), s(sKC))); e("s_mov_b32 %s, 0" % s(sKC))
    for ch in range(nchunks):
        slot = ch*A_SLOT
        e("s_lshl_b32 %s, %s, 7" % (s(sSoX), s(sKC)))
        e("s_mul_i32 %s, %s, %d" % (s(sSoW), s(sKC), 64*3840))
        e("s_add_u32 %s, %s, %s" % (s(sSoW), s(sSoW), s(sT1)))
        for m in range(5):
            if m == 0:
                e("s_add_u32 %s, %s, %s" % (s(sT2), s(sD0), s(sSoX)))
                e("s_add_u32 m0, %s, %d" % (s(sP0), slot))
                e("s_mov_b32 exec_lo, %s" % s(sP1))
            else:
                e("s_add_u32 %s, %s, %s" % (s(sT2), s(sT3), s(sSoX)))
                e("s_add_u32 %s, %s, %d" % (s(sT2), s(sT2), m*4*10240))
                if m == 4:
                    e("s_add_u32 %s, %s, %s" % (s(sT2), s(sT2), s(sD1)))
                    e("s_add_u32 %s, %s, %d" % (s(sIter), s(sP0), slot + m*4096))
                    e("s_cmp_lt_u32 %s, 2" % s(sWave))
                    e("s_cselect_b32 m0, %s, %d" % (s(sIter), 161792))
                else: e("s_add_u32 m0, %s, %d" % (s(sP0), slot + m*4096))
                e("s_nop 0")
            e("buffer_load_dwordx4 v10, %s, %s offen lds" % (sr(sX,4), s(sT2)))
            if m == 0: e("s_mov_b32 exec_lo, -1")
        for m in range(8):
            if m % 4 == 0: e("s_add_u32 m0, %s, %d" % (s(sT0), slot + A_XB + m*A_WPAIR))
            k = 8*(m >> 1) + 2*(m & 1)
            e("s_add_u32 %s, %s, %d" % (s(sT2), s(sSoW), k*3840 - (m & 3)*A_WPAIR))
            e("buffer_load_dwordx4 %s, %s, %s offen offset:%d lds" % (v(vWL), sr(sW,4), s(sT2), (m & 3)*A_WPAIR))
        e("s_add_u32 %s, %s, 1" % (s(sKC), s(sKC)))
        if "rotk" in OPTS:
            e("s_cmp_eq_u32 %s, 10" % s(sKC))
            e("s_cselect_b32 %s, 0, %s" % (s(sKC), s(sKC)))
    if "c0" in OPTS: e("s_add_u32 %s, %s, 1" % (s(sKC), s(sRDelta)))
    return 13
def ffn_first_dma(e, nchunks=2):
    e("s_mul_i32 %s, %s, %d" % (s(sT3), s(sWave), 4*10240))
    e("s_add_u32 %s, %s, %s" % (s(sT3), s(sT3), s(sXO)))
    e("s_lshl_b32 %s, %s, 12" % (s(sP0), s(sWave)))
    e("s_lshl_b32 %s, %s, 7" % (s(sT1), s(sWave)))
    e("s_lshl_b32 %s, %s, 13" % (s(sT0), s(sWave)))
    if "c0" in OPTS:
        assert nchunks == 1
        e("s_mov_b32 %s, %s" % (s(sRDelta), s(sKC))); e("s_mov_b32 %s, 0" % s(sKC))
    for ch in range(nchunks):
        slot = ch*F_SLOT
        e("s_lshl_b32 %s, %s, 7" % (s(sSoX), s(sKC)))
        e("s_add_u32 %s, %s, %s" % (s(sSoX), s(sSoX), s(sT3)))
        e("s_mul_i32 %s, %s, %d" % (s(sSoW), s(sKC), 64*3456))
        e("s_add_u32 %s, %s, %s" % (s(sSoW), s(sSoW), s(sT1)))
        e("s_add_u32 m0, %s, %d" % (s(sP0), slot))
        for m in range(4):
            e("s_add_u32 %s, %s, %d" % (s(sT2), s(sSoX), m*10240 - m*1024))
            e("buffer_load_dwordx4 %s, %s, %s offen offset:%d lds" % (v(fXOd if m & 1 else fXE), sr(sX,4), s(sT2), m*1024))
        for m in range(8):
            kh, grp = m >> 2, m & 3
            k = 32*kh + 16*(grp & 1) + 4*(grp >> 1)
            if m % 4 == 0: e("s_add_u32 m0, %s, %d" % (s(sT0), slot + F_XB + m*1024))
            e("s_add_u32 %s, %s, %d" % (s(sT2), s(sSoW), k*3456 - (m & 3)*1024))
            e("buffer_load_dwordx4 %s, %s, %s offen offset:%d lds" % (v(fWL), sr(sW,4), s(sT2), (m & 3)*1024))
        e("s_add_u32 %s, %s, 1" % (s(sKC), s(sKC)))
        if "rotk" in OPTS:
            e("s_cmp_eq_u32 %s, 10" % s(sKC))
            e("s_cselect_b32 %s, 0, %s" % (s(sKC), s(sKC)))
    if "c0" in OPTS: e("s_add_u32 %s, %s, 1" % (s(sKC), s(sRDelta)))
    return 12

sQ = 72
vPFo, vPFd = 182, 183
def coop_setup(e, w):
    e("s_lshr_b32 %s, s2, 3" % s(sT0)); e("s_sub_u32 %s, %s, 16" % (s(sT0), s(sT0)))
    e("s_and_b32 %s, s2, 1" % s(sT1))
    e("s_and_b32 %s, s2, 7" % s(sT2)); e("s_lshr_b32 %s, %s, 1" % (s(sT2), s(sT2)))
    e("v_mov_b32 v3, 0x40000000")
    if w < 2:
        e("s_mul_i32 %s, %s, 75" % (s(sT0), s(sT0)))
        e("s_lshl_b32 %s, %s, 10" % (s(sT1), s(sT1)))
        e("s_add_u32 %s, %s, %s" % (s(sT0), s(sT0), s(sT1)))
        e("s_add_u32 %s, %s, %d" % (s(sT0), s(sT0), (38*w - 16) & 0xffffffff))
        e("v_add_u32 v1, %s, %s" % (s(sT0), v(vLane)))
        e("v_max_i32 v1, 0, v1")
        e("v_mul_u32_u24 v1, 1280, v1")
        e("v_cmp_gt_u32 vcc, 38, %s" % v(vLane))
    elif w == 2:
        e("s_mul_i32 %s, %s, 42" % (s(sT0), s(sT0)))
        e("v_add_u32 v1, %s, %s" % (s(sT0), v(vLane)))
        e("v_mul_u32_u24 v2, 7282, v1"); e("v_lshrrev_b32 v2, 16, v2")
        e("v_mul_u32_u24 v4, 9, v2"); e("v_sub_u32 v4, v1, v4")
        e("v_mul_u32_u24 v5, 86, v4"); e("v_lshrrev_b32 v5, 8, v5")
        e("v_mul_u32_u24 v6, 3, v5"); e("v_sub_u32 v6, v4, v6")
        e("s_mul_i32 %s, %s, 320" % (s(sT2), s(sT2))); e("s_lshr_b32 %s, %s, 7" % (s(sT2), s(sT2)))
        e("v_add_u32 v6, %s, v6" % s(sT2))
        e("v_mul_u32_u24 v1, 3840, v2"); e("v_mul_u32_u24 v5, 1280, v5")
        e("v_lshl_add_u32 v1, v6, 7, v1"); e("v_add_u32 v1, v1, v5")
        e("v_cmp_gt_u32 vcc, 42, %s" % v(vLane))
    else:
        e("s_mul_i32 %s, %s, 55" % (s(sT0), s(sT0)))
        e("v_add_u32 v1, %s, %s" % (s(sT0), v(vLane)))
        e("v_mul_u32_u24 v2, 5462, v1"); e("v_lshrrev_b32 v2, 16, v2")
        e("v_mul_u32_u24 v4, 12, v2"); e("v_sub_u32 v4, v1, v4")
        e("s_mul_i32 %s, %s, 14" % (s(sT2), s(sT2))); e("s_lshr_b32 %s, %s, 3" % (s(sT2), s(sT2))); e("s_lshl_b32 %s, %s, 2" % (s(sT2), s(sT2)))
        e("v_add_u32 v4, %s, v4" % s(sT2))
        e("v_mul_u32_u24 v1, 3456, v2"); e("v_lshl_add_u32 v1, v4, 7, v1")
        e("v_cmp_gt_u32 vcc, 55, %s" % v(vLane))
    e("v_cndmask_b32_e64 %s, v3, v1, vcc" % v(vPFo))
COOP_D = 4
sSoQ = 44
def coop_load(w, extra_chunks):
    if w < 2: return ["buffer_load_dword %s, %s, %s, %s offen offset:%d ; rare" % (v(vPFd), v(vPFo), sr(sX,4), s(sSoX), 128*extra_chunks)]
    st_ = 64*3840 if w == 2 else 64*3456
    return ["s_add_u32 %s, %s, %d" % (s(sD1), s(sSoQ if w == 2 else sSoW), extra_chunks*st_),
            "buffer_load_dword %s, %s, %s, %s offen ; rare" % (v(vPFd), v(vPFo), sr(sQ if w == 2 else sW,4), s(sD1))]
def zero_acc(e, n):
    for i in range(4): e("v_mov_b32 %s, 0" % v(246 if False else 232+i))
    k = 0
    while k + 16 <= n:
        e("v_mfma_f32_32x32x16_bf16 %s, v[232:235], v[232:235], 0" % vr(k,16)); k += 16
    while k < n:
        e("v_mov_b32 %s, 0" % v(k)); k += 1
def role_main(e, tag, cfg, L, dobase, w, zero_n, extra_pre=None, units=False):
    wstep, slot = cfg.wstep, cfg.slot
    nd = len(L)
    coop = tag.startswith("ffn") and "coop" in OPTS
    def set_soff():
        e("s_lshl_b32 %s, %s, 7" % (s(sSoX), s(sKC)))
        e("s_mul_i32 %s, %s, %d" % (s(sSoW), s(sKC), wstep))
    def adv():
        e("s_add_u32 %s, %s, 1" % (s(sKC), s(sKC)))
        if "rotk" in OPTS:
            e("s_cmp_eq_u32 %s, 10" % s(sKC))
            e("s_cselect_b32 %s, %d, %s" % (s(sKC), 1 if "c0" in OPTS else 0, s(sKC)))
    npro = 13 if tag.startswith("attn") else 12
    e("v_lshlrev_b32 %s, 4, %s" % (v(vL16), v(vLane)))
    if units:
        unit_setup_dyn(e)
        e("s_mov_b32 %s, %d" % (s(sSzO), WO_BYTES)); e("s_mov_b32 %s, %d" % (s(sSz2), W2_BYTES))
        e("s_mov_b32 %s, %d" % (s(sUl), 3*slot))
        if 'late1' not in OPTS: unit_loads_dyn(e)
    npre = 0
    if coop:
        coop_setup(e, w)
        if w == 2: e("s_mov_b32 %s, %d" % (s(sSoQ), 64*3840))
        for x in range(1, COOP_D + 1):
            e.ext(coop_load(w, x)); npre += 1
    if extra_pre: extra_pre(e)
    dma_offsets_setup(e, L, dobase)
    zero_acc(e, zero_n)
    e("v_mov_b32 v254, 0x3f803f80")
    for i in range(4): e("v_accvgpr_write_b32 %s, v254" % a(aONE+i))
    e("v_mov_b32 %s, 0" % v(vZero))
    nyoung = npro + npre + (3 if units else 0)
    if "late1" in OPTS:
        set_soff()
        e("s_mov_b32 %s, %d" % (s(sDSlot), slot))
        for g in dma_groups_vgpr(L, dobase): e.ext(g)
        adv()
        nyoung = nd
        if units:
            unit_loads_dyn(e); nyoung += 3
    ph2_setup(e, slot)
    set_soff()
    e("s_mov_b32 %s, %d" % (s(sDSlot), 2*slot))
    e("s_mov_b32 %s, %d" % (s(sCp), slot))
    e("s_mov_b32 %s, %d" % (s(sCm), (-2*slot) & 0xffffffff))
    e("s_mov_b32 %s, 0" % s(sIter))
    if coop and w == 2: e("s_mov_b32 %s, %d" % (s(sSoQ), 2*64*3840))
    stamp(e, 2)
    e("s_waitcnt vmcnt(%d) lgkmcnt(0)" % nyoung)
    e("s_barrier")
    stamp(e, 3)
    R = cfg.ring
    e.ext(cfg.xreads(0))
    for f in range(cfg.nfirst):
        e.ext(cfg.wread(0, f, cfg.wbase + (f % R)*4))
    dma = dma_groups_vgpr(L, dobase)
    if "nopoll" not in OPTS:
        pg = ["s_cmp_lg_u32 %s, 7 ; rare" % s(sIter), "s_cbranch_scc0 L_pp_%s ; rare" % tag, "L_np_%s:" % tag]
        side = ["L_pp_%s:" % tag, "  buffer_load_dwordx2 %s, %s, %s, 0 offen sc1 ; rare" % (vr(vNon,2), v(vZero), sr(sDBG,4)), "  s_branch L_np_%s ; rare" % tag]
        if units:
            us = E(); unit_store_dyn(us, 216, full_wait=True)
            pg += ["s_cmp_lg_u32 %s, 1 ; rare" % s(sIter), "s_cbranch_scc0 L_pu_%s ; rare" % tag, "L_nu_%s:" % tag]
            side += ["L_pu_%s:" % tag] + us.L + ["  s_branch L_nu_%s" % tag]
        if units and w == 0:
            sg = E(); signal_count(sg, CNT_P)
            pg += ["s_cmp_lg_u32 %s, 2 ; rare" % s(sIter), "s_cbranch_scc0 L_ps_%s ; rare" % tag, "L_ns_%s:" % tag]
            side += ["L_ps_%s:" % tag] + sg.L + ["  s_branch L_ns_%s ; rare" % tag]
        dma = [pg] + dma
    else: side = []
    ncl = nd
    if coop:
        g = coop_load(w, COOP_D)
        if w == 2: g.append("s_add_u32 %s, %s, %d" % (s(sSoQ), s(sSoQ), 64*3840))
        dma = dma + [g]; ncl = nd + 2
    if "nodma" in OPTS: dma = []
    first_vm = None
    if coop:
        first_vm = min(63, nd + 1 + npre)
        side += ["L_first_%s:" % tag, "  s_waitcnt vmcnt(%d) lgkmcnt(0) ; rare" % first_vm, "  s_branch L_join_%s ; rare" % tag]
    body = chunk_body(cfg, dma, rolled_tag=tag, closing_vm=ncl if "nodma" not in OPTS else 0, first_vm=first_vm)
    post = E()
    stamp(post, 4)
    if "nopoll" not in OPTS:
        get_nonce(post, tag, 250, have_first=vNon)
        spin_count(post, "p_" + tag, CNT_P, N_P, 250, have_first=vNon+1)
    if "ph1only" in OPTS:
        post.ext(chunk_body(cfg, [], closing_vm=0))
        post.ext(chunk_body(cfg, [], last=True, closing_vm=None))
    else:
        ea = w2a_groups(9, 9 + EARLY_W2A, sD0)
        h_ = len(ea)//2
        def mix(a_, b_):
            out_ = []; n_ = max(len(a_), len(b_))
            for i_ in range(n_):
                if i_ < len(a_): out_.append(a_[i_])
                if i_ < len(b_): out_.append(b_[i_])
            return out_
        h_ = 5*((h_ + 4)//5) if ea else 0
        post.ext(chunk_body(cfg, mix(w2l_groups(0, 12), ea[:h_]), closing_vm=12 + h_))
        sg = []
        if SSH:
            post("v_and_b32 %s, 15, %s" % (v(vT16), v(vLane))); post("v_lshlrev_b32 %s, 4, %s" % (v(vT16), v(vT16)))
            if tag.startswith("attn"):
                post("s_lshl_b32 s74, %s, 7" % s(sRB)); post("s_sub_u32 s101, s74, 16")
                post("s_cmp_eq_u32 %s, 0" % s(sRB)); post("s_cselect_b32 s101, 0, s101")
                post("s_add_u32 s74, s74, %d" % (32*w)); post("s_add_u32 s75, s74, 16")
                sg = [stats_load_group(d, t) for d, t in zip(A_STD, A_STT)]
            else:
                post("s_lshl_b32 s73, %s, 7" % s(sRB)); post("s_add_u32 s73, s73, %d" % (64*(w >> 1)))
                post("s_add_u32 s74, s73, 16"); post("s_add_u32 s75, s73, 32"); post("s_add_u32 s101, s73, 48")
                sg = [stats_load_group(d, t) for d, t in zip(F_STD, F_STT)]
        post.ext(chunk_body(cfg, sg + mix(w2l_groups(12, 25), ea[h_:]), last=True, closing_vm=None))
    stamp(post, 5)
    return body, post, side

A_ND = [13, 13, 12, 12]

X_CS = 0
X_NM = 1024
X_RS = 2048
X_EX = 4096
vQp = 160
vKA, vKB, vKP = 180, 190, 200
vVp = 210
NEG = 0xf149f2ca
def stats_finalize(e, vsum, vsq, vt, out_nm, out_rs, out_std, smask):
    e("v_cndmask_b32_e64 %s, 0, %s, %s" % (v(vt), v(vsq+0), sr(smask,2)))
    for r in (1,2,3):
        e("v_cndmask_b32_e64 %s, %s, %s, %s" % (v(vt), v(vt), v(vsq+r), sr(smask+2*r,2)))
    e("v_mov_b32 %s, %s" % (v(vt+1), v(vt)))
    e("v_permlane32_swap_b32 %s, %s" % (v(vt), v(vt+1)))
    e("v_add_f32 %s, %s, %s" % (v(vt), v(vt), v(vt+1)))
    e("v_mov_b32 %s, %s" % (v(vt+1), v(vt)))
    e("v_permlane16_swap_b32 %s, %s" % (v(vt), v(vt+1)))
    e("v_add_f32 %s, %s, %s" % (v(vt), v(vt), v(vt+1)))
    e("v_mul_f32 %s, 0x%08x, %s" % (v(out_nm), f2u(-1.0/640), v(vsum)))
    e("v_mul_f32 %s, 0x%08x, %s" % (v(vt), f2u(1.0/640), v(vt)))
    e("v_fma_f32 %s, -%s, %s, %s" % (v(vt), v(out_nm), v(out_nm), v(vt)))
    e("v_max_f32 %s, 0, %s" % (v(vt), v(vt)))
    e("v_add_f32 %s, 0x%08x, %s" % (v(vt), f2u(1e-5), v(vt)))
    e("v_rsq_f32 %s, %s" % (v(out_rs), v(vt)))
    if out_std is not None:
        e("v_mul_f32 %s, %s, %s" % (v(out_std), v(vt), v(out_rs)))


def attn_stash(e):
    e("v_and_b32 v1, 15, %s" % v(vLane))
    e("v_lshrrev_b32 v2, 4, %s" % v(vLane))
    e("v_lshlrev_b32 v3, 2, v2")
    e("v_sub_u32 v3, v1, v3")
    e("v_and_b32 v4, 1, v1")
    e("v_mov_b32 v5, 0x%08x" % NEG)
    e("v_cmp_eq_u32 %s, 0, v4" % sr(sM+14,2))
    for r in range(4):
        e("v_subrev_u32 v6, %d, v3" % r)
        e("v_cmp_le_i32 %s, 0, v6" % sr(sM+16,2))
        if r & 1: e("s_andn2_b64 %s, exec, %s" % (sr(sM+18,2), sr(sM+14,2)))
        else:     e("s_mov_b64 %s, %s" % (sr(sM+18,2), sr(sM+14,2)))
        e("s_and_b64 %s, %s, %s" % (sr(sM+20,2), sr(sM+18,2), sr(sM+16,2)))
        e("s_andn2_b64 %s, %s, %s" % (sr(sM+22,2), sr(sM+18,2), sr(sM+16,2)))
        e("v_cndmask_b32_e64 v7, v5, 0, %s" % sr(sM+22,2)); e("v_accvgpr_write_b32 %s, v7" % a(aST+r))
        e("v_cndmask_b32_e64 v8, v5, 0, %s" % sr(sM+20,2)); e("v_accvgpr_write_b32 %s, v8" % a(aST+4+r))
    e("v_sub_u32 v6, v3, v4")
    e("v_mov_b32 v9, 0x0c0c0100"); e("v_mov_b32 v10, 0x01000c0c")
    e("v_cndmask_b32_e64 v9, v10, v9, %s" % sr(sM+14,2))
    e("v_mov_b32 v10, 0x0c0c0302"); e("v_mov_b32 v11, 0x03020c0c")
    e("v_cndmask_b32_e64 v10, v11, v10, %s" % sr(sM+14,2))
    e("v_mov_b32 v11, 0x0c0c0c0c")
    e("v_cmp_le_i32 %s, 0, v6" % sr(sM+16,2))
    e("v_cndmask_b32_e64 v12, v9, v11, %s" % sr(sM+16,2)); e("v_accvgpr_write_b32 %s, v12" % a(aST+8))
    e("v_cndmask_b32_e64 v13, v11, v9, %s" % sr(sM+16,2)); e("v_accvgpr_write_b32 %s, v13" % a(aST+10))
    e("v_cmp_le_i32 %s, 2, v6" % sr(sM+16,2))
    e("v_cndmask_b32_e64 v12, v10, v11, %s" % sr(sM+16,2)); e("v_accvgpr_write_b32 %s, v12" % a(aST+9))
    e("v_cndmask_b32_e64 v13, v11, v10, %s" % sr(sM+16,2)); e("v_accvgpr_write_b32 %s, v13" % a(aST+11))

def attn_epilogue(e):
    R = " ; rare"
    tNM = [240, 242]; tRS = [244, 246]; tSTD = [248, 249]
    vt = 166
    smask = sM
    A1, A2, A3, A4, A5, A6 = 176, 177, 178, 179, 250, 254
    ML = {1: 160, 2: 161, 3: 162}; MH = {0: 163, 1: 164, 2: 165}
    e("v_and_b32 v253, 15, %s" % v(vLane))
    e("v_lshlrev_b32 v253, 2, v253")
    e("v_lshrrev_b32 v252, 4, %s" % v(vLane))
    e("s_lshl_b32 %s, %s, 7" % (s(sT0), s(sWave)))
    e("s_lshl_b32 %s, %s, 6" % (s(sT1), s(sWave)))
    e("v_add_u32 %s, %s, v253" % (v(A1), s(sT0)))
    e("v_add_u32 %s, %s, v253" % (v(A4), s(sT1)))
    if SSH:
        e("s_waitcnt vmcnt(%d)" % (13 + N_EA9()))
        e("s_mov_b32 %s, 0" % s(sIter))
        stats_check(e, "attn", A_STD, A_STT)
        for T in (0, 1):
            e("v_mov_b32 %s, %s" % (v(tNM[T]), v(A_STD[T]))); e("v_mov_b32 %s, %s" % (v(tRS[T]), v(A_STD[T]+1))); e("v_mov_b32 %s, %s" % (v(tSTD[T]), v(A_STD[T]+2)))
            e("ds_write_b32 %s, %s offset:%d" % (v(A1), v(A_STD[T]), X_NM + 64 + T*64))
            e("ds_write_b32 %s, %s offset:%d" % (v(A1), v(A_STD[T]+1), X_RS + 64 + T*64))
        e("v_mov_b32 v152, %s" % v(A_STD[2])); e("v_mov_b32 v154, %s" % v(A_STD[2]+1))
        e("ds_write_b32 v253, %s offset:%d" % (v(A_STD[2]), X_NM))
        e("ds_write_b32 v253, %s offset:%d" % (v(A_STD[2]+1), X_RS))
    else:
      for T in (0, 1):
        stats_finalize(e, vSumT[T], vSqT[T], vt, tNM[T], tRS[T], tSTD[T], smask)
        e("ds_write_b32 %s, %s offset:%d" % (v(A1), v(tNM[T]), X_NM + 64 + T*64))
        e("ds_write_b32 %s, %s offset:%d" % (v(A1), v(tRS[T]), X_RS + 64 + T*64))
    for h in (1, 2, 3):
        e("v_cmp_le_u32 %s, %d, v252" % (sr(sM+16,2), h))
        e("v_cndmask_b32_e64 %s, 0, -1, %s" % (v(ML[h]), sr(sM+16,2)))
    for h in (0, 1, 2): e("v_not_b32 %s, %s" % (v(MH[h]), v(ML[h+1])))
    e("v_lshlrev_b32 v252, 4, v252")
    e("v_add_u32 %s, %s, v252" % (v(A2), s(sT0)))
    e("v_add_u32 %s, %s, v252" % (v(A3), s(sT1)))
    if not SSH:
        raise NotImplementedError
    e("s_mov_b32 exec_lo, 0x00010001"); e("s_mov_b32 exec_hi, 0x00010001")
    e("ds_write_b128 %s, %s offset:%d" % (v(A3), vr(acc_halo(0),4), X_CS))
    e("ds_write_b128 %s, %s offset:%d" % (v(A3), vr(acc_halo(1),4), X_CS + 5*64))
    e("s_cmp_gt_u32 %s, 1" % s(sWave))
    e("s_cbranch_scc1 L_e3a")
    e("s_mul_i32 %s, %s, 320" % (s(sT2), s(sWave)) + R)
    e("v_add_u32 v167, %s, v252" % s(sT2) + R)
    e("ds_write_b128 v167, %s offset:%d" % (vr(acc_halo(3),4), X_CS + 4*64) + R)
    e.lab("L_e3a")
    e("s_mov_b32 exec_lo, 0x0000ffff"); e("s_mov_b32 exec_hi, 0")
    e("ds_write_b32 %s, %s offset:%d" % (v(A4), v(acc_halo(2)), X_CS + 10*64))
    e("s_cmp_lg_u32 %s, 2" % s(sWave))
    e("s_cbranch_scc1 L_e3b")
    e("ds_write_b32 v253, %s offset:%d" % (v(acc_halo(3)), X_CS + 14*64) + R)
    e.lab("L_e3b")
    e("s_mov_b64 exec, -1")
    e("v_lshlrev_b32 v251, 3, %s" % v(vLane))
    e("s_lshl_b32 %s, %s, 9" % (s(sT2), s(sWave)))
    e("v_add_u32 %s, %s, v251" % (v(A5), s(sT2)))
    e("s_mul_i32 %s, %s, 5120" % (s(sT2), s(sWave)))
    e("v_add_u32 %s, %s, v251" % (v(A6), s(sT2)))
    e("s_waitcnt lgkmcnt(0)")
    e("s_barrier")
    if "epst" in OPTS: stamp(e, 8)
    CS4 = lambda c: 200 + 4*c
    nm4 = [136, 140]; rs4 = [144, 148]
    tHN, tHR = 152, 154
    csK = 156
    hn4, hr4 = 168, 172
    for c in range(5): e("ds_read_b128 %s, v252 offset:%d" % (vr(CS4(c),4), X_CS + c*64))
    for c in range(5, 10): e("ds_read_b128 %s, v252 offset:%d" % (vr(CS4(c),4), X_CS + c*64))
    e("ds_read_b128 %s, %s offset:%d" % (vr(csK,4), v(A3), X_CS + 5*64))
    def pkfma_bc(d, s0, sc, sfx=""):
        e("v_pk_fma_f32 %s, %s, %s, %s op_sel_hi:[1,0,1]%s" % (vr(d,2), vr(s0,2), vr(sc,2), vr(d,2), sfx))
    def pkmul_bc(d, sc, sfx=""):
        e("v_pk_mul_f32 %s, %s, %s op_sel_hi:[1,0]%s" % (vr(d,2), vr(d,2), vr(sc,2), sfx))
    t0, t1 = 166, 167
    for c in range(5):
        for T in (0, 1):
            d = acc_own(T, c); b = acc_own(T, 0)
            pkfma_bc(d, CS4(c), tNM[T]); pkfma_bc(d+2, CS4(c)+2, tNM[T])
            if c == 0:
                e("v_cvt_pk_bf16_f32 %s, %s, %s" % (v(d), v(d), v(d+1))); e("v_cvt_pk_bf16_f32 %s, %s, %s" % (v(d+1), v(d+2), v(d+3)))
            elif c == 4:
                e("v_cvt_pk_bf16_f32 %s, %s, %s" % (v(b+14), v(d), v(d+1))); e("v_cvt_pk_bf16_f32 %s, %s, %s" % (v(b+15), v(d+2), v(d+3)))
            else:
                e("v_cvt_pk_bf16_f32 %s, %s, %s" % (v(t0), v(d), v(d+1))); e("v_cvt_pk_bf16_f32 %s, %s, %s" % (v(t1), v(d+2), v(d+3)))
                e("v_and_b32 %s, %s, %s" % (v(d), v(t0), v(ML[c]))); e("v_and_b32 %s, %s, %s" % (v(d+1), v(t1), v(ML[c])))
                e("v_and_b32 %s, %s, %s" % (v(b+4*(c-1)+2), v(t0), v(MH[c-1]))); e("v_and_b32 %s, %s, %s" % (v(b+4*(c-1)+3), v(t1), v(MH[c-1])))
    for T in (0, 1):
        e("ds_read_b128 %s, %s offset:%d" % (vr(nm4[T],4), v(A2), X_NM + 64 + T*64))
        e("ds_read_b128 %s, %s offset:%d" % (vr(rs4[T],4), v(A2), X_RS + 64 + T*64))
    e("ds_read_b128 %s, v252 offset:%d" % (vr(hn4,4), X_NM))
    e("ds_read_b128 %s, v252 offset:%d" % (vr(hr4,4), X_RS))
    if "epst" in OPTS: stamp(e, 9)
    csd = [16, 18, 76, 78, 20]; csdW = 22
    for c in range(5, 10):
        for T in (0, 1):
            d = acc_own(T, c)
            pkfma_bc(d, CS4(c), tNM[T]); pkfma_bc(d+2, CS4(c)+2, tNM[T])
            pkmul_bc(d, tRS[T]); pkmul_bc(d+2, tRS[T])
            dst = (vKA, vKB)[T] + 2*(c-5)
            e("v_cvt_pk_bf16_f32 %s, %s, %s" % (v(dst), v(d), v(d+1)))
            e("v_cvt_pk_bf16_f32 %s, %s, %s" % (v(dst+1), v(d+2), v(d+3)))
        e("ds_write_b64 %s, %s offset:%d" % (v(A6), vr(vKB+2*(c-5),2), X_EX + 5120 + (c-5)*512))
        if c == 5:
            for i in range(5): e("ds_read_b32 %s, v253 offset:%d" % (v(csd[i]), X_CS + (10+i)*64))
            e("ds_read_b32 %s, %s offset:%d" % (v(csdW), v(A4), X_CS + 10*64))
    d = acc_halo(1)
    pkfma_bc(d, csK, tHN); pkfma_bc(d+2, csK+2, tHN); pkmul_bc(d, tHR); pkmul_bc(d+2, tHR)
    e("v_cvt_pk_bf16_f32 %s, %s, %s" % (v(d), v(d), v(d+1))); e("v_cvt_pk_bf16_f32 %s, %s, %s" % (v(d+1), v(d+2), v(d+3)))
    e("ds_write_b64 %s, %s offset:%d" % (v(A5), vr(d,2), X_EX))
    e("s_cmp_lg_u32 %s, 1" % s(sWave))
    e("s_cbranch_scc1 L_e3k")
    d = acc_halo(3)
    pkfma_bc(d, CS4(9), tHN, R); pkfma_bc(d+2, CS4(9)+2, tHN, R); pkmul_bc(d, tHR, R); pkmul_bc(d+2, tHR, R)
    e("v_cvt_pk_bf16_f32 %s, %s, %s" % (v(d), v(d), v(d+1)) + R); e("v_cvt_pk_bf16_f32 %s, %s, %s" % (v(d+1), v(d+2), v(d+3)) + R)
    e("ds_write_b64 v251, %s offset:%d" % (vr(d,2), X_EX + 4*512) + R)
    e.lab("L_e3k")
    def vtile(d, nm, rs, cd, sfx=""):
        for h_ in (0, 2):
            e("v_pk_fma_f32 %s, %s, %s, %s op_sel_hi:[1,0,1]%s" % (vr(d+h_,2), vr(nm+h_,2), vr(cd,2), vr(d+h_,2), sfx))
            e("v_pk_mul_f32 %s, %s, %s%s" % (vr(d+h_,2), vr(d+h_,2), vr(rs+h_,2), sfx))
    for i in range(5):
        c = 10 + i
        for T in (0, 1):
            d = acc_own(T, c)
            vtile(d, nm4[T], rs4[T], csd[i])
            dst = vVp + 6*i + 2 + 2*T
            e("v_cvt_pk_bf16_f32 %s, %s, %s" % (v(dst), v(d), v(d+1)))
            e("v_cvt_pk_bf16_f32 %s, %s, %s" % (v(dst+1), v(d+2), v(d+3)))
        e("ds_write_b64 %s, %s offset:%d" % (v(A6), vr(vVp+6*i+4,2), X_EX + 5120 + (5+i)*512))
    d = acc_halo(2)
    vtile(d, hn4, hr4, csdW)
    e("v_cvt_pk_bf16_f32 %s, %s, %s" % (v(d), v(d), v(d+1))); e("v_cvt_pk_bf16_f32 %s, %s, %s" % (v(d+1), v(d+2), v(d+3)))
    e("ds_write_b64 %s, %s offset:%d" % (v(A5), vr(d,2), X_EX + 5*512))
    e("s_cmp_lg_u32 %s, 2" % s(sWave))
    e("s_cbranch_scc1 L_e3v")
    d = acc_halo(3)
    vtile(d, hn4, hr4, csd[4], R)
    e("v_cvt_pk_bf16_f32 %s, %s, %s" % (v(d), v(d), v(d+1)) + R); e("v_cvt_pk_bf16_f32 %s, %s, %s" % (v(d+1), v(d+2), v(d+3)) + R)
    e("s_nop 1" + R)
    e("ds_write_b64 v251, %s offset:%d" % (vr(d,2), X_EX + 9*512) + R)
    e.lab("L_e3v")
    if "epst" in OPTS: stamp(e, 10)
    vBP, vBC, vBPA, vSel = 20, 24, 28, 32
    for r in range(4):
        e("v_accvgpr_read_b32 %s, %s" % (v(vBP+r), a(aST+r)))
        e("v_accvgpr_read_b32 %s, %s" % (v(vBC+r), a(aST+4+r)))
        e("v_accvgpr_read_b32 %s, %s" % (v(vSel+r), a(aST+8+r)))
    e("s_or_b32 %s, %s, %s" % (s(sT2), s(sWave), s(sRB)))
    e("s_cmp_eq_u32 %s, 0" % s(sT2))
    e("s_cselect_b32 %s, -1, 0" % s(sM+16)); e("s_cselect_b32 %s, -1, 0" % s(sM+17))
    e("v_mov_b32 v36, 0x%08x" % NEG)
    for r in range(4): e("v_cndmask_b32_e64 %s, %s, v36, %s" % (v(vBPA+r), v(vBP+r), sr(sM+16,2)))
    cF = [37, 38]
    for T in (0, 1):
        e("v_mul_f32 %s, 0x%08x, %s" % (v(cF[T]), f2u((20.0 ** -0.5) * 1.4426950408889634), v(tRS[T])))
    e("s_mov_b32 %s, 0xffff" % s(sM+8)); e("s_mov_b32 %s, 0" % s(sM+9))
    e("s_mov_b32 %s, -1" % s(sM+10)); e("s_mov_b32 %s, 0" % s(sM+11))
    e("s_mov_b32 %s, -1" % s(sM+12)); e("s_mov_b32 %s, 0xffff" % s(sM+13))
    attn_tile(e, 1, acc_own(1,0), vKA, vKB, lambda i: vVp+6*i+2, vBP, vBC, vSel, cF[1], tSTD[1])
    if "epst" in OPTS: stamp(e, 11)
    e("s_waitcnt lgkmcnt(0)")
    e("s_barrier")
    for i in range(5):
        e("ds_read_b64 %s, %s offset:%d" % (vr(vKP+2*i,2), v(A6), X_EX + i*512))
        e("ds_read_b64 %s, %s offset:%d" % (vr(vVp+6*i,2), v(A6), X_EX + (5+i)*512))
    attn_tile(e, 0, acc_own(0,0), vKP, vKA, lambda i: vVp+6*i, vBPA, vBC, vSel, cF[0], tSTD[0])

def attn_tile(e, T, qm, kprev, kcur, vfrag, bP, bC, vSel, cF, std):
    Qm = [qm + 4*h for h in range(4)]
    S0 = [80, 84, 88, 92]; S1 = [96, 100, 104, 108]
    P  = [112, 116, 120, 124]
    Lh = [128, 132, 40, 44]
    for h in range(4):
        e("%s %s, %s, %s, %s" % (MFMA, vr(S0[h],4), vr(kprev+2*h,4), vr(Qm[h],4), vr(bP,4)))
        e("%s %s, %s, %s, %s" % (MFMA, vr(S1[h],4), vr(kcur+2*h,4), vr(Qm[h],4), vr(bC,4)))
    va = [48, 50, 52, 54]; mx = [56, 57, 58, 59]
    for h in range(4):
        e("v_max3_f32 %s, %s, %s, %s" % (v(va[h]), v(S0[h]), v(S0[h]+1), v(S1[h])))
        e("v_max3_f32 %s, %s, %s, %s" % (v(va[h]+1), v(S0[h]+2), v(S0[h]+3), v(S1[h]+2)))
        e("v_max_f32 %s, %s, %s" % (v(va[h]), v(va[h]), v(S1[h]+1)))
        e("v_max_f32 %s, %s, %s" % (v(va[h]+1), v(va[h]+1), v(S1[h]+3)))
        e("v_max_f32 %s, %s, %s" % (v(mx[h]), v(va[h]), v(va[h]+1)))
    e("v_permlane32_swap_b32 %s, %s" % (v(mx[0]), v(mx[1])))
    e("v_permlane32_swap_b32 %s, %s" % (v(mx[2]), v(mx[3])))
    e("v_max_f32 %s, %s, %s" % (v(mx[0]), v(mx[0]), v(mx[1])))
    e("v_max_f32 %s, %s, %s" % (v(mx[2]), v(mx[2]), v(mx[3])))
    e("v_permlane16_swap_b32 %s, %s" % (v(mx[0]), v(mx[2])))
    e("v_max_f32 %s, %s, %s" % (v(mx[0]), v(mx[0]), v(mx[2])))
    e("v_mov_b32 %s, %s" % (v(mx[2]), v(mx[0])))
    e("v_permlane16_swap_b32 %s, %s" % (v(mx[0]), v(mx[2])))
    e("v_mov_b32 %s, %s" % (v(mx[1]), v(mx[0])))
    e("v_mov_b32 %s, %s" % (v(mx[3]), v(mx[2])))
    e("v_permlane32_swap_b32 %s, %s" % (v(mx[0]), v(mx[1])))
    e("v_permlane32_swap_b32 %s, %s" % (v(mx[2]), v(mx[3])))
    for h in range(4):
        e("v_mul_f32 %s, %s, %s" % (v(mx[h]), v(mx[h]), v(cF)))
    for h in range(4):
        e("v_fma_f32 %s, %s, %s, -%s" % (v(va[h]), v(va[h]), v(cF), v(mx[h])))
        e("v_fma_f32 %s, %s, %s, -%s" % (v(va[h]+1), v(va[h]+1), v(cF), v(mx[h])))
    for h in range(4):
        e("v_exp_f32 %s, %s" % (v(va[h]), v(va[h])))
        e("v_exp_f32 %s, %s" % (v(va[h]+1), v(va[h]+1)))
    for h in range(4):
        e("v_cvt_pk_bf16_f32 %s, %s, %s" % (v(va[h]), v(va[h]), v(va[h]+1)))
    for h in range(4):
        for k in range(4):
            e("v_perm_b32 %s, %s, %s, %s" % (v(P[h]+k), v(va[h]), v(va[h]), v(vSel+k)))
    pairs = [(0,0),(1,0),(1,1),(2,1),(2,2),(3,2),(3,3),(4,3)]
    O = {}
    free = S0 + S1
    for n, p_ in enumerate(pairs): O[p_] = free[n]
    for h in range(4):
        e("%s %s, %s, %s, 0" % (MFMA, vr(Lh[h],4), ar(aONE,4), vr(P[h],4)))
    for (i, h) in pairs:
        e("%s %s, %s, %s, 0" % (MFMA, vr(O[(i,h)],4), vr(vfrag(i),4), vr(P[h],4)))
    for h in range(4):
        e("v_rcp_f32 %s, %s" % (v(Lh[h]), v(Lh[h])))
    for h in range(4):
        e("v_mul_f32 %s, %s, %s" % (v(Lh[h]), v(Lh[h]), v(std)))
    F = [Lh[0], 60, 62, 64, Lh[3]]
    e("v_cndmask_b32_e64 %s, %s, %s, %s" % (v(F[1]), v(Lh[1]), v(Lh[0]), sr(sM+8,2)))
    e("v_cndmask_b32_e64 %s, %s, %s, %s" % (v(F[2]), v(Lh[2]), v(Lh[1]), sr(sM+10,2)))
    e("v_cndmask_b32_e64 %s, %s, %s, %s" % (v(F[3]), v(Lh[3]), v(Lh[2]), sr(sM+12,2)))
    Rr = {}
    Rr[0] = O[(0,0)]; Rr[4] = O[(4,3)]
    for i in (1, 2, 3):
        lo, hi = O[(i,i-1)], O[(i,i)]
        for r in range(4):
            e("v_cndmask_b32_e64 %s, %s, %s, %s" % (v(hi+r), v(hi+r), v(lo+r), sr(sM+8+2*(i-1),2)))
        Rr[i] = hi
    out = P[0]
    for i in range(5):
        e("v_pk_mul_f32 %s, %s, %s op_sel_hi:[1,0]" % (vr(Rr[i],2), vr(Rr[i],2), vr(F[i],2)))
        e("v_pk_mul_f32 %s, %s, %s op_sel_hi:[1,0]" % (vr(Rr[i]+2,2), vr(Rr[i]+2,2), vr(F[i],2)))
        e("v_cvt_pk_bf16_f32 %s, %s, %s" % (v(out+2*i), v(Rr[i]), v(Rr[i]+1)))
        e("v_cvt_pk_bf16_f32 %s, %s, %s" % (v(out+2*i+1), v(Rr[i]+2), v(Rr[i]+3)))
    e("s_lshl_b32 %s, %s, 1" % (s(sT0), s(sRB)))
    e("s_lshr_b32 %s, %s, 1" % (s(sT1), s(sWave)))
    e("s_add_u32 %s, %s, %s" % (s(sT0), s(sT0), s(sT1)))
    e("s_mul_i32 %s, %s, %d" % (s(sT0), s(sT0), ACT_TB))
    e("s_and_b32 %s, %s, 1" % (s(sT1), s(sWave)))
    e("s_lshl_b32 %s, %s, 11" % (s(sT1), s(sT1)))
    e("s_add_u32 %s, %s, %s" % (s(sT0), s(sT0), s(sT1)))
    e("s_add_u32 %s, %s, %d" % (s(sT0), s(sT0), ACT_OFF + T*1024))
    e("s_lshr_b32 %s, %s, 1" % (s(sT1), s(sCB)))
    e("s_mul_i32 %s, %s, 5" % (s(sT1), s(sT1)))
    e("s_and_b32 %s, %s, 1" % (s(sT2), s(sCB)))
    e("s_lshl_b32 %s, %s, 1" % (s(sT3), s(sT2)))
    e("s_add_u32 %s, %s, %s" % (s(sT3), s(sT3), s(sT1)))
    e("s_lshl_b32 %s, %s, 12" % (s(sT3), s(sT3)))
    e("s_add_u32 %s, %s, %s" % (s(sT3), s(sT3), s(sT0)))
    e("buffer_store_dwordx4 %s, %s, %s, %s offen sc1" % (vr(out,4), v(vL16), sr(sWS,4), s(sT3)))
    e("s_add_u32 %s, %s, 4096" % (s(sT3), s(sT3)))
    e("buffer_store_dwordx4 %s, %s, %s, %s offen sc1" % (vr(out+4,4), v(vL16), sr(sWS,4), s(sT3)))
    e("s_add_u32 %s, %s, 4" % (s(sT1), s(sT1)))
    e("s_lshl_b32 %s, %s, 12" % (s(sT1), s(sT1)))
    e("s_add_u32 %s, %s, %s" % (s(sT1), s(sT1), s(sT0)))
    e("s_lshl_b32 %s, %s, 3" % (s(sT2), s(sT2)))
    e("s_add_u32 %s, %s, %s" % (s(sT1), s(sT1), s(sT2)))
    e("buffer_store_dwordx2 %s, %s, %s, %s offen sc1" % (vr(out+8,2), v(vL16), sr(sWS,4), s(sT1)))

def sprinkle(lines, groups, start=0, end_gap=0):
    safe = []
    exec_full = True; skip = None
    n = len(lines)
    for i, t in enumerate(lines):
        tt = t.strip()
        prev = lines[i-1].strip() if i else ""
        ok = exec_full and skip is None
        if prev.startswith("s_cmp") or prev.startswith("v_cmp") or prev.startswith("s_and_b64") or prev.startswith("s_andn2") : ok = False
        if tt.startswith("s_cbranch") or tt.startswith("s_cselect") or tt.startswith("s_addc") or tt.endswith(":"): ok = False
        if tt.startswith("s_barrier") or tt.startswith("s_waitcnt"): ok = False
        if ok and start <= i < n - end_gap: safe.append(i)
        if tt.startswith("s_mov_b32 exec") : exec_full = False
        if tt.startswith("s_mov_b64 exec, -1"): exec_full = True
        if tt.startswith("s_cbranch"): skip = tt.split()[-1]
        if skip and tt == skip + ":": skip = None
    ng = len(groups)
    assert len(safe) >= ng, (len(safe), ng)
    at = {}
    for k in range(ng):
        at.setdefault(safe[k*len(safe)//ng], []).extend(groups[k])
    out = []
    for i, t in enumerate(lines):
        if i in at: out += ["  " + x for x in at[i]]
        out.append(t)
    return out

F_SLOT = 49152; F_XB = 16384
fWA = [160, 161, 162, 163]
F_X0, F_X1 = 164, 165
fXE, fXOd, fWL = 166, 167, 168
fDO = 169
def facc(T, c): return (T*8 + c)*4
fCS = 128
fSUM = [144, 148]
def fxf(kh, T): return aXF + (kh*4 + T)*4

def ffn_lane_setup(e):
    x_lane_setup(e, fXE, fXOd)
    e("v_lshrrev_b32 v6, 2, v1")
    e("v_lshlrev_b32 v6, 3, v6")
    e("v_and_b32 v7, 3, v1")
    e("v_add_u32 v6, v6, v7")
    e("v_mul_u32_u24 v6, 3456, v6")
    e("v_lshrrev_b32 v7, 1, v2")
    e("v_xor_b32 v7, v7, v3")
    e("v_lshlrev_b32 v7, 5, v7")
    e("v_and_b32 v8, 1, v2")
    e("v_lshlrev_b32 v8, 4, v8")
    e("v_add3_u32 v6, v6, v7, v8")
    e("s_lshl_b32 %s, %s, 9" % (s(sT0), s(sCB)))
    e("v_add_u32 %s, %s, v6" % (v(fWL), s(sT0)))

def ffn_cfg(w):
    cfg = Cfg()
    th, ch = w >> 1, w & 1
    cfg.ntile = 8; cfg.ring = 8; cfg.look = int(os.environ.get('LOOKF', 4)); cfg.tail = int(os.environ.get('TAILF', 2)); cfg.nfirst = cfg.look; cfg.wbase = aW
    def wread(kh, c, reg):
        off = (2*ch + (c >> 2))*8192 + kh*4096
        ad = v(fWA[c & 3])
        return ["ds_read_b64_tr_b16 %s, %s offset:%d" % (ar(reg,2), ad, off),
                "ds_read_b64_tr_b16 %s, %s offset:%d" % (ar(reg+2,2), ad, off + 2048)]
    def mf(kh, c, reg):
        out = []
        for T in range(4):
            d = vr(facc(T, c), 4)
            out.append("%s %s, %s, %s, %s" % (MFMA, d, ar(reg,4), ar(fxf(kh,T),4), d))
        if (c >> 2) == th and "nohalo" not in OPTS:
            d = vr(fCS + (c & 3)*4, 4)
            out.append("%s %s, %s, %s, %s" % (MFMA, d, ar(reg,4), ar(aONE,4), d))
        return out
    def stats(kh):
        return ["%s %s, %s, %s, %s" % (MFMA, vr(fSUM[j],4), ar(aONE,4), ar(fxf(kh,2*ch+j),4), vr(fSUM[j],4)) for j in (0,1)]
    def xreads(kh):
        ad = F_X1 if kh else F_X0
        return ["ds_read_b128 %s, %s offset:%d" % (ar(fxf(kh,T),4), v(ad), (4*th+T)*2048) for T in range(4)]
    cfg.wread = wread; cfg.mf = mf; cfg.stats = stats; cfg.xreads = xreads
    cfg.xread1_at = 2
    cfg.addr_update = addr_update(F_SLOT, fWA + [F_X0, F_X1])
    cfg.scal_update = scal_update(F_SLOT, 64*3456)
    cfg.dma_start = int(os.environ.get('DST', 2)); cfg.dma_skew = w*int(os.environ.get('DSK', 1)); cfg.dma_endgap = int(os.environ.get('DEG', 8))
    cfg.wstep = 64*3456; cfg.slot = F_SLOT
    return cfg

def read_addr_setup_ffn(e):
    e("v_and_b32 v1, 15, %s" % v(vLane))
    e("v_lshrrev_b32 v2, 2, v1")
    e("v_and_b32 v3, 3, v1")
    e("v_lshrrev_b32 v4, 4, %s" % v(vLane))
    e("v_lshl_add_u32 v2, v4, 2, v2")
    e("v_lshrrev_b32 v5, 1, v2")
    e("v_and_b32 v5, 3, v5")
    e("v_lshlrev_b32 v2, 7, v2")
    e("v_lshl_add_u32 v2, v3, 3, v2")
    e("v_add_u32 v2, %d, v2" % F_XB)
    for u in range(4):
        e("v_xor_b32 v6, %d, v5" % u)
        e("v_lshl_add_u32 %s, v6, 5, v2" % v(fWA[u]))
    xaddr_setup(e, F_X0, F_X1, 0)

def ffn_epilogue(e):
    e("s_lshr_b32 %s, %s, 1" % (s(sT0), s(sWave)))
    e("s_and_b32 %s, %s, 1" % (s(sT1), s(sWave)))
    e("v_and_b32 v253, 15, %s" % v(vLane)); e("v_lshlrev_b32 v253, 2, v253")
    e("v_lshrrev_b32 v252, 4, %s" % v(vLane)); e("v_lshlrev_b32 v252, 4, v252")
    e("s_lshl_b32 %s, %s, 8" % (s(sT2), s(sT0)))
    e("s_waitcnt vmcnt(%d)" % (13 + N_EA9()))
    e("s_mov_b32 %s, 0" % s(sIter))
    stats_check(e, "ffn", F_STD, F_STT)
    e("s_lshl_b32 %s, %s, 9" % (s(sT3), s(sT1)))
    e("v_add_u32 v254, %s, v252" % s(sT3))
    e("v_add_u32 v253, %s, v254" % s(sT2))
    e("s_mov_b32 exec_lo, 0x00010001"); e("s_mov_b32 exec_hi, 0x00010001")
    for q in range(4):
        e("ds_write_b128 v253, %s offset:%d" % (vr(fCS + q*4, 4), q*64))
    e("s_mov_b64 exec, -1")
    e("s_lshl_b32 %s, %s, 1" % (s(sT2), s(sRB)))
    e("s_add_u32 %s, %s, %s" % (s(sT0), s(sT0), s(sT2)))
    e("s_mul_i32 %s, %s, %d" % (s(sT0), s(sT0), ACT_TB))
    e("s_lshl_b32 %s, %s, 3" % (s(sT2), s(sCB)))
    e("s_lshl_b32 %s, %s, 2" % (s(sT3), s(sT1)))
    e("s_add_u32 %s, %s, %s" % (s(sT2), s(sT2), s(sT3)))
    e("s_add_u32 %s, %s, 20" % (s(sT2), s(sT2)))
    e("s_lshl_b32 %s, %s, 12" % (s(sT2), s(sT2)))
    e("s_add_u32 %s, %s, %s" % (s(sT0), s(sT0), s(sT2)))
    if ACT_OFF: e("s_add_u32 %s, %s, %d" % (s(sT0), s(sT0), ACT_OFF))
    e("s_mul_i32 %s, %s, 2" % (s(sT2), s(sCB)))
    e("s_add_u32 %s, %s, %s" % (s(sT2), s(sT2), s(sT1)))
    e("s_cmp_eq_u32 %s, 13" % s(sT2))
    e("s_cselect_b32 %s, 0x%x, 0" % (s(sT2), OOB))
    e("s_waitcnt lgkmcnt(0)")
    e("s_barrier")
    nm = F_STD
    CS = lambda c: 160 + 4*c
    for c in range(8): e("ds_read_b128 %s, v254 offset:%d" % (vr(CS(c),4), c*64))
    pk = [224, 228, 232, 236]
    n = 0
    for j in range(4):
        if j == 2: e("s_add_u32 %s, %s, %s" % (s(sT0), s(sT0), s(sT2)))
        for T in range(4):
            o = pk[n & 3]; n += 1
            for k in range(2):
                c = 2*j + k; d = facc(T, c); q = CS(c)
                e("v_pk_fma_f32 %s, %s, %s, %s op_sel_hi:[1,0,1]" % (vr(d,2), vr(q,2), vr(nm[T],2), vr(d,2)))
                e("v_pk_fma_f32 %s, %s, %s, %s op_sel_hi:[1,0,1]" % (vr(d+2,2), vr(q+2,2), vr(nm[T],2), vr(d+2,2)))
                e("v_cvt_pk_bf16_f32 %s, %s, %s" % (v(o+2*k), v(d), v(d+1)))
                e("v_cvt_pk_bf16_f32 %s, %s, %s" % (v(o+2*k+1), v(d+2), v(d+3)))
                e("v_pk_max_i16 %s, %s, 0" % (v(o+2*k), v(o+2*k)))
                e("v_pk_max_i16 %s, %s, 0" % (v(o+2*k+1), v(o+2*k+1)))
            e("buffer_store_dwordx4 %s, %s, %s, %s offen offset:%d sc1" % (vr(o,4), v(vL16), sr(sWS,4), s(sT0), T*1024))
        e("s_add_u32 %s, %s, 4096" % (s(sT0), s(sT0)))

U_ROW = 320
U_BYTES = 32*U_ROW
sPF = 60
vUO = [200, 201, 202]; vUH = [203, 204, 205]; vUT = [206, 207, 208]
sUW = [64, 65, 66]
sUl, sUn = 67, 68
def unit_setup_dyn(e):
    e("s_lshl_b32 %s, %s, 6" % (s(sT0), s(sWave)))
    for m in range(3):
        e("v_add_u32 v1, %s, %s" % (s(sT0), v(vLane)))
        if m: e("v_add_u32 v1, %d, v1" % (256*m))
        e("v_mul_u32_u24 v2, 3277, v1"); e("v_lshrrev_b32 v2, 16, v2")
        e("v_mul_u32_u24 v3, 20, v2"); e("v_sub_u32 v3, v1, v3")
        e("v_mul_u32_u24 v4, 1280, v2"); e("v_lshl_add_u32 %s, v3, 4, v4" % v(vUO[m]))
        e("v_lshrrev_b32 %s, 4, v2" % v(vUH[m]))
        if m == 2:
            e("v_mov_b32 v5, 0x40000000")
            e("v_cmp_le_u32 vcc, 640, v1")
            e("v_cndmask_b32_e64 %s, %s, v5, vcc" % (v(vUO[m]), v(vUO[m])))
            e("v_cndmask_b32_e64 %s, %s, 0, vcc" % (v(vUH[m]), v(vUH[m])))
    e("v_and_b32 v1, 15, %s" % v(vLane)); e("v_lshrrev_b32 v2, 2, v1"); e("v_and_b32 v3, 3, v1")
    e("v_lshrrev_b32 v4, 4, %s" % v(vLane)); e("v_lshl_add_u32 v2, v4, 2, v2")
    e("v_mul_u32_u24 v2, %d, v2" % U_ROW)
    for m in range(3):
        e("s_add_u32 %s, %s, %d" % (s(sT0), s(sWave), 4*m))
        e("s_cmp_ge_u32 %s, 5" % s(sT0)); e("s_cselect_b32 %s, 1, 0" % s(sT1))
        e("s_mul_i32 %s, %s, 5" % (s(sT2), s(sT1))); e("s_sub_u32 %s, %s, %s" % (s(sT2), s(sT0), s(sT2)))
        e("s_lshr_b32 %s, %s, 1" % (s(sT3), s(sT2))); e("s_lshl_b32 %s, %s, 6" % (s(sT3), s(sT3)))
        e("s_and_b32 %s, %s, 1" % (s(sD0), s(sT2))); e("s_lshl_b32 %s, %s, 3" % (s(sD0), s(sD0)))
        e("s_add_u32 %s, %s, %s" % (s(sT3), s(sT3), s(sD0)))
        e("s_mul_i32 %s, %s, 160" % (s(sD0), s(sT1))); e("s_add_u32 %s, %s, %s" % (s(sT3), s(sT3), s(sD0)))
        e("s_cmp_eq_u32 %s, 4" % s(sT2)); e("s_cselect_b32 %s, 3, 4" % s(sD0))
        e("v_lshlrev_b32 v5, %s, v3" % s(sD0))
        e("v_add3_u32 %s, v5, v2, %s" % (v(vUT[m]), s(sT3)))
        e("s_mul_i32 %s, %s, %d" % (s(sUW[m]), s(sT1), W2F_CB))
        e("s_lshl_b32 %s, %s, 10" % (s(sD0), s(sT2)))
        e("s_add_u32 %s, %s, %s" % (s(sUW[m]), s(sUW[m]), s(sD0)))
        e("s_cmp_ge_u32 %s, 10" % s(sT0)); e("s_cselect_b32 %s, 0x%x, %s" % (s(sUW[m]), 0x40000000, s(sUW[m])))
def unit_loads_dyn(e):
    sU = sUn
    e("s_lshr_b32 %s, %s, 2" % (s(sT0), s(sU)))
    e("s_and_b32 %s, %s, 3" % (s(sT1), s(sU)))
    e("s_mul_i32 %s, %s, 52" % (s(sT2), s(sT0))); e("s_lshr_b32 %s, %s, 8" % (s(sT2), s(sT2)))
    e("s_mul_i32 %s, %s, 5" % (s(sT3), s(sT2))); e("s_sub_u32 %s, %s, %s" % (s(sT3), s(sT0), s(sT3)))
    e("s_mul_i32 %s, %s, 160" % (s(sT2), s(sT2)))
    e("s_lshl_b32 %s, %s, 5" % (s(sD0), s(sT3)))
    e("s_cmp_ge_u32 %s, 2" % s(sT3)); e("s_cselect_b32 %s, 16, 0" % s(sD1))
    e("s_add_u32 %s, %s, %s" % (s(sD0), s(sD0), s(sD1)))
    e("s_cmp_eq_u32 %s, 4" % s(sT3)); e("s_cselect_b32 %s, 64, %s" % (s(sD0), s(sD0)))
    e("s_cselect_b32 %s, %d, 0" % (s(sD1), 64*1280))
    e("s_add_u32 %s, %s, %s" % (s(sD0), s(sD0), s(sT2)))
    e("s_sub_u32 %s, %s, 20" % (s(sT2), s(sT0))); e("s_lshl_b32 %s, %s, 5" % (s(sT2), s(sT2)))
    e("s_cmp_lt_u32 %s, 20" % s(sT0))
    e("s_cselect_b32 %s, %s, %s" % (s(sD0), s(sD0), s(sT2)))
    e("s_cselect_b32 %s, %s, 0" % (s(sD1), s(sD1)))
    e("s_cselect_b32 %s, s8, s14" % s(sPF))
    e("s_cselect_b32 %s, s9, s15" % s(sPF+1))
    e("s_cselect_b32 %s, %s, %s" % (s(sPF+2), s(sSzO), s(sSz2)))
    e("s_and_b32 %s, %s, 0xffff" % (s(sPF+1), s(sPF+1)))
    e("s_mov_b32 %s, 0x20000" % s(sPF+3))
    e("s_mul_i32 %s, %s, 1280" % (s(sD0), s(sD0)))
    e("s_mul_i32 %s, %s, 320" % (s(sT1), s(sT1)))
    e("s_add_u32 %s, %s, %s" % (s(sD0), s(sD0), s(sT1)))
    e("s_cmp_ge_u32 %s, %d" % (s(sU), 4*NKS)); e("s_cselect_b32 %s, 0x%x, %s" % (s(sD0), OOB, s(sD0)))
    e("s_lshl_b32 %s, %s, 10" % (s(sT0), s(sWave)))
    e("s_add_u32 %s, %s, %s" % (s(sT0), s(sT0), s(sUl)))
    for m in range(3):
        e("v_mad_u32_u24 %s, %s, %s, %s" % (v(210+m), v(vUH[m]), s(sD1), v(vUO[m])))
        if m < 2: e("s_add_u32 m0, %s, %d" % (s(sT0), 4096*m))
        else:
            e("s_add_u32 %s, %s, %d" % (s(sT1), s(sT0), 4096*m))
            e("s_cmp_ge_u32 %s, 2" % s(sWave))
            e("s_cselect_b32 m0, %d, %s" % (161792, s(sT1)))
        e("s_nop 0")
        e("buffer_load_dwordx4 %s, %s, %s offen lds" % (v(210+m), sr(sPF,4), s(sD0)))
def unit_store_dyn(e, vd=0, full_wait=False):
    sU = sUn
    e("s_lshr_b32 %s, %s, 2" % (s(sT0), s(sU)))
    e("s_and_b32 %s, %s, 3" % (s(sT1), s(sU)))
    e("s_mul_i32 %s, %s, 5120" % (s(sT0), s(sT0)))
    e("s_mul_i32 %s, %s, %d" % (s(sT1), s(sT1), 2*W2F_CB))
    e("s_add_u32 %s, %s, %s" % (s(sT0), s(sT0), s(sT1)))
    e("s_add_u32 %s, %s, %d" % (s(sT0), s(sT0), W2F_OFF))
    e("s_cmp_ge_u32 %s, %d" % (s(sU), 4*NKS)); e("s_cselect_b32 %s, 0x%x, %s" % (s(sT0), 0x30000000, s(sT0)))
    for m in range(3):
        e("v_add_u32 %s, %s, %s" % (v(213+m), s(sUl), v(vUT[m])))
        e("ds_read_b64_tr_b16 %s, %s" % (vr(vd+4*m,2), v(213+m)))
        e("ds_read_b64_tr_b16 %s, %s offset:%d" % (vr(vd+4*m+2,2), v(213+m), 16*U_ROW))
    for m in range(3):
        e("s_add_u32 %s, %s, %s" % (s(sT1), s(sT0), s(sUW[m])))
        e("s_waitcnt lgkmcnt(%d)" % (4 - 2*m if not full_wait else 0))
        e("buffer_store_dwordx4 %s, %s, %s, %s offen sc1" % (vr(vd+4*m,4), v(vL16), sr(sWS,4), s(sT1)))

def N_EA9():
    n = 5*EARLY_W2A
    h = 5*((n//2 + 4)//5) if n else 0
    return n - h
def pf_stats_loads(e):
    e("v_lshrrev_b32 v1, 4, %s" % v(vLane)); e("v_mul_u32_u24 v1, 1280, v1")
    e("v_and_b32 v2, 15, %s" % v(vLane)); e("v_lshl_add_u32 v14, v2, 4, v1")
    e("s_lshl_b32 %s, %s, 7" % (s(sT0), s(sCB))); e("s_lshl_b32 %s, %s, 5" % (s(sT1), s(sWave)))
    e("s_add_u32 %s, %s, %s" % (s(sT0), s(sT0), s(sT1))); e("s_mul_i32 %s, %s, 1280" % (s(sT0), s(sT0)))
    for grp in range(8):
        for i in range(5):
            e("buffer_load_dwordx4 %s, v14, %s, %s offen offset:%d ; rare" % (vr(16 + grp*20 + i*4, 4), sr(sX,4), s(sT0), i*256))
        e("s_add_u32 %s, %s, %d" % (s(sT0), s(sT0), 4*1280))
def pf_stats_compute(e):
    e("v_mov_b32 v15, 0x3f803f80")
    for grp in range(8):
        b = 16 + grp*20
        sm, sq = 176 + 2*grp, 177 + 2*grp
        e("v_mov_b32 %s, 0" % v(sm)); e("v_mov_b32 %s, 0" % v(sq))
        e("s_waitcnt vmcnt(%d)" % (35 - 5*grp))
        for i in range(20):
            e("v_dot2c_f32_bf16 %s, %s, v15" % (v(sm), v(b+i)))
            e("v_dot2c_f32_bf16 %s, %s, %s" % (v(sq), v(b+i), v(b+i)))
    for sh in (8, 4, 2, 1):
        for r in range(176, 192):
            e("v_add_f32_dpp %s, %s, %s row_ror:%d row_mask:0xf bank_mask:0xf" % (v(r), v(r), v(r), sh))
    e("v_lshrrev_b32 v1, 4, %s" % v(vLane)); e("v_lshlrev_b32 v1, 4, v1")
    e("s_lshl_b32 %s, %s, 7" % (s(sT0), s(sCB))); e("s_lshl_b32 %s, %s, 5" % (s(sT1), s(sWave)))
    e("s_add_u32 %s, %s, %s" % (s(sT0), s(sT0), s(sT1))); e("s_lshl_b32 %s, %s, 4" % (s(sT0), s(sT0)))
    e("s_add_u32 %s, %s, %d" % (s(sT0), s(sT0), STATS_OFF))
    for grp in range(8):
        sm, sq = 176 + 2*grp, 177 + 2*grp
        o = 16 + 4*grp
        e("v_mul_f32 %s, 0x%08x, %s" % (v(o), f2u(-1.0/640), v(sm)))
        e("v_mul_f32 %s, 0x%08x, %s" % (v(sq), f2u(1.0/640), v(sq)))
        e("v_fma_f32 %s, -%s, %s, %s" % (v(sq), v(o), v(o), v(sq)))
        e("v_max_f32 %s, 0, %s" % (v(sq), v(sq)))
        e("v_add_f32 %s, 0x%08x, %s" % (v(sq), f2u(1e-5), v(sq)))
        e("v_rsq_f32 %s, %s" % (v(o+1), v(sq)))
        e("v_mov_b32 %s, %s" % (v(o+3), s(sNonce)))
        e("v_mul_f32 %s, %s, %s" % (v(o+2), v(sq), v(o+1)))
    e("s_mov_b32 exec_lo, 0x00010001"); e("s_mov_b32 exec_hi, 0x00010001")
    for grp in range(8):
        e("buffer_store_dwordx4 %s, v1, %s, %s offen offset:%d sc1" % (vr(16+4*grp,4), sr(sWS,4), s(sT0), grp*64))
    e("s_mov_b64 exec, -1")
def stats_load_group(dst, tok_sgpr):
    return ["s_lshl_b32 %s, %s, 4" % (s(sP1), s(tok_sgpr)), "s_add_u32 %s, %s, %d" % (s(sP1), s(sP1), STATS_OFF),
            "buffer_load_dwordx4 %s, %s, %s, %s offen sc1" % (vr(dst,4), v(vT16), sr(sWS,4), s(sP1))]
A_STD, A_STT = [180, 184, 188], [74, 75, 101]
F_STD, F_STT = [200, 204, 208, 212], [73, 74, 75, 101]
vT16 = 251
def stats_check(e, tag, dsts, toks):
    R = " ; rare"
    e.lab("L_stc_%s" % tag)
    e("s_mov_b64 %s, exec" % sr(sM+16,2))
    for d in dsts:
        e("v_cmp_eq_u32 vcc, %s, %s" % (s(sNonce), v(d+3)))
        e("s_nop 1")
        e("s_and_b64 %s, %s, vcc" % (sr(sM+16,2), sr(sM+16,2)))
    e("s_cmp_eq_u64 %s, exec" % sr(sM+16,2))
    e("s_cbranch_scc1 L_stok_%s" % tag)
    e("s_add_u32 %s, %s, 1" % (s(sIter), s(sIter)) + R)
    e("s_cmp_gt_u32 %s, %d" % (s(sIter), SPIN_MAX) + R)
    e("s_cbranch_scc1 L_stok_%s" % tag + R)
    e("s_sleep 8" + R)
    for d, t in zip(dsts, toks):
        for x in stats_load_group(d, t): e(x + R)
    e("s_waitcnt vmcnt(0)" + R)
    e("s_branch L_stc_%s" % tag + R)
    e.lab("L_stok_%s" % tag)

def pf_loop(e, tag, fn, u0, n, lds0):
    e("s_add_u32 %s, %s, %d" % (s(sUn), s(sCB), 16*u0))
    e("s_mov_b32 %s, %d" % (s(sUl), lds0))
    e("s_mov_b32 %s, 0" % s(sIter))
    e.lab("L_pfl_%s" % tag)
    fn(e)
    e("s_add_u32 %s, %s, 16" % (s(sUn), s(sUn)))
    e("s_add_u32 %s, %s, %d" % (s(sUl), s(sUl), U_BYTES))
    e("s_add_u32 %s, %s, 1" % (s(sIter), s(sIter)))
    e("s_cmp_lt_u32 %s, %d" % (s(sIter), n))
    e("s_cbranch_scc1 L_pfl_%s" % tag)
N_FFN_UNITS = 2
def signal_count(e, off):
    R = " ; rare"
    e("v_mov_b32 v250, 1" + R); e("v_mov_b32 v251, 0" + R)
    e("s_mov_b32 exec_lo, 1" + R); e("s_mov_b32 exec_hi, 0" + R)
    e("buffer_atomic_add v250, v251, %s, 0 offen offset:%d sc1" % (sr(sDBG,4), off) + R)
    e("s_mov_b64 exec, -1" + R)
def spin_count(e, tag, off, target, vtmp, have_first=None):
    R = " ; rare"
    if have_first is not None:
        e("v_readfirstlane_b32 %s, %s" % (s(sT0), v(have_first)))
        e("s_nop 3")
        e("s_cmp_ge_u32 %s, %d" % (s(sT0), target))
        e("s_cbranch_scc1 L_cok_%s" % tag)
    e("s_mov_b32 %s, 0" % s(sT1) + R)
    e("v_mov_b32 %s, 0" % v(vtmp+1) + R)
    e.lab("L_cspin_%s" % tag)
    e("buffer_load_dword %s, %s, %s, 0 offen offset:%d sc1" % (v(vtmp), v(vtmp+1), sr(sDBG,4), off) + R)
    e("s_waitcnt vmcnt(0)" + R)
    e("v_readfirstlane_b32 %s, %s" % (s(sT0), v(vtmp)) + R)
    e("s_nop 3" + R)
    e("s_cmp_ge_u32 %s, %d" % (s(sT0), target) + R)
    e("s_cbranch_scc1 L_cok_%s" % tag + R)
    e("s_sleep %d" % CSLEEP + R)
    e("s_add_u32 %s, %s, 1" % (s(sT1), s(sT1)) + R)
    e("s_cmp_lt_u32 %s, %d" % (s(sT1), SPIN_MAX) + R)
    e("s_cbranch_scc1 L_cspin_%s" % tag + R)
    e.lab("L_cok_%s" % tag)
CSLEEP = 40
FSLEEP = int(os.environ.get('FSL', 8))
CNT_P, N_P = 4, 128

DA = 6
POLL_A_AT = int(os.environ.get('PAA', 5))
FFN_W2A_IN = 0
ATT_POLL_BACK = int(os.environ.get('APB', 90))
ATT_W2A_IN = int(os.environ.get('ATT_IN', 60))
ATT_ENDGAP = int(os.environ.get('ATT_GAP', 40))
W2A_BEFORE_SIG = int(os.environ.get('WBS', 12))

vAR = 80
vWR = 176
def act_soff(p, dst):
    if p < 14: return ["s_lshl_b32 %s, %s, 2" % (s(dst), s(sKQ[p])), "s_add_u32 %s, %s, %s" % (s(dst), s(dst), s(sAB))]
    return ["s_lshl_b32 %s, %s, 12" % (s(dst), s(sWave)), "s_add_u32 %s, %s, %s" % (s(dst), s(dst), s(sAB)),
            "s_add_u32 %s, %s, %d" % (s(dst), s(dst), 4*(p-14)*4096)]
vAO = [244, 246, 248, 249]
def act_loads(p):
    st = vAR + (p % DA)*16
    G = []
    for tt in range(4):
        g = act_soff(p, sD0) if tt == 0 else []
        g.append("buffer_load_dwordx4 %s, %s, %s, %s offen sc1" % (vr(st+4*tt,4), v(vAO[tt]), sr(sWS,4), s(sD0)))
        G.append(g)
    return G
PE_F = int(os.environ.get('PEF', 17))
XRES_AT = 14
BAR_AT = int(os.environ.get('BARAT', 5))
PE_A = int(os.environ.get('PEA', 17))
sMain = 100

def ao_setup(e, sfx=""):
    for tt in range(4):
        e("s_add_u32 %s, %s, %d%s" % (s(sT0), s(sWave), tt, sfx))
        e("s_and_b32 %s, %s, 3%s" % (s(sT0), s(sT0), sfx))
        e("s_lshl_b32 %s, %s, 10%s" % (s(sT0), s(sT0), sfx))
        e("v_add_u32 %s, %s, %s%s" % (v(vAO[tt]), s(sT0), v(vL16), sfx))

def build_main(tag, P0v):
    main = E()
    main.lab("L_ph2_main_" + tag)
    main("v_add_u32 v216, %s, %s" % (s(sLA), v(vL16)))
    main("v_add_u32 v217, %s, %s" % (s(sLB), v(vL16)))
    def wl_reads(p):
        out = []
        for ct in range(5):
            q = 5*p + ct
            ad, off = (216, q*1024) if q < 12 else (217, (q-12)*1024)
            out.append("ds_read_b128 %s, %s offset:%d" % (vr(vWR + (p & 1)*20 + ct*4, 4), v(ad), off))
        return out
    main.ext(wl_reads(0))
    main("v_lshlrev_b32 v218, 2, %s" % v(vLane))
    for tt in range(1, 4):
        main("s_add_u32 %s, %s, %d" % (s(sT0), s(sWave), tt))
        main("s_and_b32 %s, %s, 3" % (s(sT0), s(sT0)))
        main("s_mul_i32 %s, %s, 15360" % (s(sT0), s(sT0)))
        main("s_add_u32 %s, %s, %d" % (s(sT0), s(sT0), (tt-1)*5120))
        main("v_add_u32 %s, %s, %s" % (v(236+tt), s(sT0), v(vL16)))
    stamp(main, 9)
    NP = 19
    for p in range(NP):
        if "p2st" in OPTS and p in (1, 5, 9, 10, 14): stamp(main, {1: 1, 5: 2, 9: 3, 10: 4, 14: 5}[p])
        if "p2stb" in OPTS and p in (10, 12, 14, 16, 18): stamp(main, {10: 1, 12: 2, 14: 3, 16: 4, 18: 5}[p])
        ms = []
        order = [(ct, tt) for ct in range(5) for tt in range(4)] if p < NP - 1 else [(ct, tt) for tt in (1, 2, 3, 0) for ct in range(5)]
        for ct, tt in order:
            if p < 5: wsrc = vr(vWR + (p & 1)*20 + ct*4, 4)
            else:     wsrc = ar(((p - 5) % 12)*20 + ct*4, 4)
            d = vr((tt*5+ct)*4, 4)
            ms.append("%s %s, %s, %s, %s" % (MFMA, d, wsrc, vr(vAR + (p % DA)*16 + 4*tt, 4), d if p else "0"))
        aux = []
        if p + 1 < 5: aux += [[t] for t in wl_reads(p + 1)]
        q = p - 1 + DA
        if p >= 1 and q < NP:
            if q == 14:
                sp = E(); spin_flags(sp, "a" + tag, MASK_A, 250, have_first=219)
                main.ext(sp.L)
            aux += act_loads(q)
        if p == XRES_AT:
            rx = E()
            rx("v_and_b32 v220, 15, %s" % v(vLane)); rx("v_lshrrev_b32 v221, 4, %s" % v(vLane))
            rx("s_lshl_b32 %s, %s, 6" % (s(sT0), s(sTB))); rx("s_lshl_b32 %s, %s, 4" % (s(sT1), s(sWave)))
            rx("s_add_u32 %s, %s, %s" % (s(sT0), s(sT0), s(sT1)))
            rx("v_add_u32 v220, %s, v220" % s(sT0)); rx("v_lshlrev_b32 v222, 4, v220")
            rx("v_mul_u32_u24 v220, 1280, v220")
            rx("s_mul_i32 %s, %s, 160" % (s(sT1), s(sC2))); rx("v_add_u32 v220, %s, v220" % s(sT1))
            rx("v_lshl_add_u32 v240, v221, 4, v220"); rx("v_lshl_add_u32 v242, v221, 3, v220")
            rx("s_mov_b32 %s, %d" % (s(sT2), STATS_OFF + 4))
            rx("buffer_load_dwordx4 v[224:227], v240, %s, 0 offen" % sr(sX,4))
            rx("buffer_load_dwordx4 v[228:231], v240, %s, 0 offen offset:64" % sr(sX,4))
            rx("buffer_load_dwordx2 v[232:233], v242, %s, 0 offen offset:128" % sr(sX,4))
            rx("buffer_load_dword v234, v222, %s, %s offen sc1" % (sr(sWS,4), s(sT2)))
            aux += [[t.strip()] for t in rx.L]
        if p == POLL_A_AT:
            aux.append(["buffer_load_dword v219, v218, %s, %s offen sc1" % (sr(sWS,4), s(sFL))])
        if P0v <= p + 7 <= 16: aux += w2a_groups(p + 7, p + 8)
        if p == 10: aux += w2a_groups(17, 18)
        if p == 11: aux += w2a_groups(18, 19)
        if p == BAR_AT: aux.append(["s_barrier"])
        if tag == "A" and p == 1:
            sg = E(); sg("s_barrier"); signal_rb(sg, "attn", None, vt=(220, 221))
            main.ext(sg.L)
        n = len(ms); k = 0
        wq = [(tt, ct) for tt in range(1, 4) for ct in range(5)] if p == NP - 1 else []
        for i_, m in enumerate(ms):
            main(m)
            want = (i_ + 1)*len(aux) // n
            while k < want:
                main.ext(aux[k]); k += 1
            if wq and i_ >= 5:
                tt, ct = wq.pop(0)
                main("ds_write_b128 %s, %s offset:%d" % (v(236+tt), vr((tt*5+ct)*4,4), ct*1024))
        for tt, ct in wq:
            main("ds_write_b128 %s, %s offset:%d" % (v(236+tt), vr((tt*5+ct)*4,4), ct*1024))
    stamp(main, 10)
    main("s_branch L_ph2_tail")
    st = State(); d = []
    pre = []
    for g in w2a_groups(5, P0v): pre += ["  " + t for t in g]
    for p in range(DA):
        for g in act_loads(p): pre += ["  " + t for t in g]
    st = process(pre, st, d); st.hist = []
    o = []; st = process(main.L, st, o)
    return o, st

def phase2():
    e = E()
    e.lab("L_ph2")
    if "dlymid" in OPTS: e("s_sleep 64")
    stamp(e, 8)
    ao_setup(e)
    check_flags(e, MASK_F, vPoll, "L_ph2_ok2")
    spin_flags(e, "f", MASK_F, 250)
    e.lab("L_ph2_ok2")
    for p in range(DA):
        for g in act_loads(p): e.ext(["%s ; rare" % t for t in g])
    e("s_branch L_ph2_main_F")
    o0 = []; process(e.L, State(), o0)
    oF, stF = build_main("F", PE_F)
    oA, stA = build_main("A", PE_A)
    stA.merge(stF); stA.hist = []
    main = E()
    main.lab("L_ph2_tail")
    srd(main, sW, 16, X_BYTES)
    main("s_mul_i32 %s, %s, 15360" % (s(sT0), s(sWave)))
    main("v_add_u32 v236, %s, %s" % (s(sT0), v(vL16)))
    xr = [224, 226, 228, 230, 232]
    X = 180
    for ct in range(5):
        for hh in range(2):
            main("v_lshlrev_b32 %s, 16, %s" % (v(X + ct*4 + 2*hh), v(xr[ct]+hh)))
            main("v_and_b32 %s, 0xffff0000, %s" % (v(X + ct*4 + 2*hh + 1), v(xr[ct]+hh)))
    main("s_waitcnt lgkmcnt(0)")
    main("s_barrier")
    for k in range(3):
        for ct in range(5):
            main("ds_read_b128 %s, v236 offset:%d" % (vr(80 + (k*5+ct)*4, 4), (k*5+ct)*1024))
    o = 150
    for kk in range(2):
        for ct in range(5):
            for hh in range(2):
                r = ct*4 + 2*hh
                main("v_pk_add_f32 %s, %s, %s" % (vr(r,2), vr(r,2), vr(80 + 20*kk + r, 2)))
    for ct in range(5):
        for hh in range(2):
            r = ct*4 + 2*hh
            main("v_pk_add_f32 %s, %s, %s" % (vr(r,2), vr(r,2), vr(120 + r, 2)))
            main("v_pk_fma_f32 %s, %s, %s, %s op_sel_hi:[1,0,1]" % (vr(X+r,2), vr(r,2), vr(234,2), vr(X+r,2)))
            main("v_cvt_pk_bf16_f32 %s, %s, %s" % (v(o + 2*ct + hh), v(X+r), v(X+r+1)))
    fl = " sc1" if "outsc1" in OPTS else (" nt" if "outnt" in OPTS else "")
    main("buffer_store_dwordx4 %s, v240, %s, 0 offen%s" % (vr(o,4), sr(sW,4), fl))
    main("buffer_store_dwordx4 %s, v240, %s, 0 offen offset:64%s" % (vr(o+4,4), sr(sW,4), fl))
    main("buffer_store_dwordx2 %s, v242, %s, 0 offen offset:128%s" % (vr(o+8,2), sr(sW,4), fl))
    if "dlyend" in OPTS: main("s_sleep 64")
    stamp(main, 11)
    if "stamp" in OPTS: main("s_waitcnt vmcnt(0)")
    stamp(main, 12)
    stamp_flush(main)
    o2 = []; process(["  s_nop 7"] + main.L, stA, o2)
    return o0 + oF + oA + o2

def top():
    out = []
    e = E()
    e("s_load_dwordx16 s[4:19], s[0:1], 0")
    e("s_load_dwordx2 s[20:21], s[0:1], 64")
    e("s_cmp_ge_u32 s2, 256")
    e("s_cbranch_scc1 L_end")
    if "stamp" in OPTS: e("v_mov_b32 %s, 0" % v(vSt))
    if "ep2x" in OPTS: e("s_mov_b32 s100, 0")
    if "dlystart" in OPTS: e("s_sleep 64")
    e("s_getpc_b64 s[60:61]")
    e.lab("L_pcbase")
    e("s_lshr_b32 s3, s2, 3")
    e("s_lshl_b32 s3, s3, 12")
    e("v_lshl_add_u32 v2, v0, 4, s3")
    e("v_min_u32 v2, L_codeend-L_pcbase-16, v2")
    if "nopf" not in OPTS: e("global_load_dwordx4 v[236:239], v2, s[60:61]")
    e("v_and_b32 %s, 63, v0" % v(vLane))
    e("v_lshrrev_b32 v1, 6, v0")
    e("s_and_b32 s3, s2, 7")
    e("v_readfirstlane_b32 %s, v1" % s(sWave))
    e("s_lshr_b32 %s, s2, 3" % s(sT0))
    e("s_and_b32 %s, s3, 1" % s(sT1))
    e("s_lshr_b32 %s, s3, 1" % s(sT2))
    e("s_lshl_b32 %s, %s, 3" % (s(sT1), s(sT1)))
    e("s_cmp_ge_u32 %s, 30" % s(sT0))
    e("s_cbranch_scc1 L_role_pf")
    e("s_cmp_ge_u32 %s, 16" % s(sT0))
    e("s_cbranch_scc1 L_role_ffn")
    e("s_lshl_b32 %s, %s, 1" % (s(sCB), s(sT2)))
    e("s_lshr_b32 %s, %s, 3" % (s(sT3), s(sT0)))
    e("s_add_u32 %s, %s, %s" % (s(sCB), s(sCB), s(sT3)))
    e("s_and_b32 %s, %s, 7" % (s(sKC), s(sT0)))
    e("s_add_u32 %s, %s, %s" % (s(sRB), s(sT1), s(sKC)))
    e("s_mul_i32 %s, %s, 5" % (s(sT3), s(sT3)))
    e("s_add_u32 %s, %s, %s" % (s(sKC), s(sKC), s(sT3)))
    e("s_cmp_ge_u32 %s, 10" % s(sKC))
    e("s_cselect_b32 %s, 10, 0" % s(sT3))
    e("s_sub_u32 %s, %s, %s" % (s(sKC), s(sKC), s(sT3)))
    if "rotk" not in OPTS: e("s_mov_b32 %s, 0" % s(sKC))
    if "rot4" in OPTS:
        e("s_and_b32 %s, %s, 1" % (s(sT3), s(sCB))); e("s_lshl_b32 %s, %s, 1" % (s(sT3), s(sT3)))
        e("s_add_u32 %s, %s, %s" % (s(sT3), s(sT3), s(sRB))); e("s_and_b32 %s, %s, 3" % (s(sT3), s(sT3)))
        e("s_mul_i32 %s, %s, 5" % (s(sT3), s(sT3))); e("s_lshr_b32 %s, %s, 1" % (s(sKC), s(sT3)))
    if ROTN == 5:
        e("s_and_b32 %s, %s, 1" % (s(sT3), s(sCB))); e("s_mul_i32 %s, %s, 3" % (s(sT3), s(sT3)))
        e("s_add_u32 %s, %s, %s" % (s(sT3), s(sT3), s(sRB))); e("s_mul_i32 %s, %s, 52" % (s(sKC), s(sT3))); e("s_lshr_b32 %s, %s, 8" % (s(sKC), s(sKC)))
        e("s_mul_i32 %s, %s, 5" % (s(sKC), s(sKC))); e("s_sub_u32 %s, %s, %s" % (s(sKC), s(sT3), s(sKC))); e("s_lshl_b32 %s, %s, 1" % (s(sKC), s(sKC)))
    if ROTN == 3:
        e("s_and_b32 %s, %s, 1" % (s(sT3), s(sCB))); e("s_add_u32 %s, %s, %s" % (s(sT3), s(sT3), s(sRB)))
        e("s_mul_i32 %s, %s, 86" % (s(sKC), s(sT3))); e("s_lshr_b32 %s, %s, 8" % (s(sKC), s(sKC)))
        e("s_mul_i32 %s, %s, 3" % (s(sKC), s(sKC))); e("s_sub_u32 %s, %s, %s" % (s(sKC), s(sT3), s(sKC))); e("s_mul_i32 %s, %s, 3" % (s(sKC), s(sKC)))
    e("s_mul_i32 %s, %s, %d" % (s(sXO), s(sRB), 128*1280))
    e("s_sub_u32 %s, %s, %d" % (s(sXH), s(sXO), 16*1280))
    e("s_cmp_eq_u32 %s, 0" % s(sRB))
    e("s_cselect_b32 %s, 0, %s" % (s(sXH), s(sXH)))
    e("s_add_u32 %s, %s, 8" % (s(sSig), s(sCB)))
    attn_lane_setup(e)
    e("s_waitcnt lgkmcnt(0)")
    srd(e, sX, 4, X_BYTES); srd(e, sW, 6, WQKV_BYTES); srd(e, sWS, 20, WS_USED); srd(e, sDBG, 18, 256)
    stamp(e, 0)
    attn_first_dma(e, 1 if 'late1' in OPTS else 2)
    stamp(e, 1)
    for w in range(3):
        e("s_cmp_eq_u32 %s, %d" % (s(sWave), w))
        e("s_cbranch_scc1 L_attn_%d" % w)
    e("s_branch L_attn_3")
    e.lab("L_role_ffn")
    e("s_mul_i32 %s, %s, 14" % (s(sT2), s(sT2)))
    e("s_add_u32 %s, %s, %s" % (s(sT2), s(sT2), s(sT0)))
    e("s_sub_u32 %s, %s, 16" % (s(sT2), s(sT2)))
    e("s_lshr_b32 %s, %s, 3" % (s(sCB), s(sT2)))
    e("s_and_b32 %s, %s, 7" % (s(sKC), s(sT2)))
    e("s_add_u32 %s, %s, %s" % (s(sRB), s(sT1), s(sKC)))
    e("s_and_b32 %s, %s, 1" % (s(sT3), s(sCB)))
    e("s_mul_i32 %s, %s, 5" % (s(sT3), s(sT3)))
    e("s_add_u32 %s, %s, %s" % (s(sKC), s(sKC), s(sT3)))
    e("s_add_u32 %s, %s, 2" % (s(sKC), s(sKC)))
    e("s_cmp_ge_u32 %s, 10" % s(sKC))
    e("s_cselect_b32 %s, 10, 0" % s(sT3))
    e("s_sub_u32 %s, %s, %s" % (s(sKC), s(sKC), s(sT3)))
    if "rotk" not in OPTS: e("s_mov_b32 %s, 0" % s(sKC))
    if "rot4" in OPTS:
        e("s_and_b32 %s, %s, 1" % (s(sT3), s(sCB))); e("s_lshl_b32 %s, %s, 1" % (s(sT3), s(sT3)))
        e("s_add_u32 %s, %s, %s" % (s(sT3), s(sT3), s(sRB))); e("s_add_u32 %s, %s, 1" % (s(sT3), s(sT3))); e("s_and_b32 %s, %s, 3" % (s(sT3), s(sT3)))
        e("s_mul_i32 %s, %s, 5" % (s(sT3), s(sT3))); e("s_lshr_b32 %s, %s, 1" % (s(sKC), s(sT3)))
    if ROTN == 5:
        e("s_and_b32 %s, %s, 1" % (s(sT3), s(sCB))); e("s_mul_i32 %s, %s, 3" % (s(sT3), s(sT3))); e("s_add_u32 %s, %s, 1" % (s(sT3), s(sT3)))
        e("s_add_u32 %s, %s, %s" % (s(sT3), s(sT3), s(sRB))); e("s_mul_i32 %s, %s, 52" % (s(sKC), s(sT3))); e("s_lshr_b32 %s, %s, 8" % (s(sKC), s(sKC)))
        e("s_mul_i32 %s, %s, 5" % (s(sKC), s(sKC))); e("s_sub_u32 %s, %s, %s" % (s(sKC), s(sT3), s(sKC))); e("s_lshl_b32 %s, %s, 1" % (s(sKC), s(sKC)))
    if ROTN == 3:
        e("s_and_b32 %s, %s, 1" % (s(sT3), s(sCB))); e("s_add_u32 %s, %s, %s" % (s(sT3), s(sT3), s(sRB))); e("s_add_u32 %s, %s, 2" % (s(sT3), s(sT3)))
        e("s_mul_i32 %s, %s, 86" % (s(sKC), s(sT3))); e("s_lshr_b32 %s, %s, 8" % (s(sKC), s(sKC)))
        e("s_mul_i32 %s, %s, 3" % (s(sKC), s(sKC))); e("s_sub_u32 %s, %s, %s" % (s(sKC), s(sT3), s(sKC))); e("s_mul_i32 %s, %s, 3" % (s(sKC), s(sKC)))
    e("s_mul_i32 %s, %s, %d" % (s(sXO), s(sRB), 128*1280))
    e("s_mov_b32 %s, %s" % (s(sSig), s(sCB)))
    e("s_mul_i32 %s, %s, 7" % (s(sUn), s(sT1)))
    e("s_add_u32 %s, %s, %s" % (s(sUn), s(sUn), s(sT2)))
    ffn_lane_setup(e)
    e("s_waitcnt lgkmcnt(0)")
    srd(e, sX, 4, X_BYTES); srd(e, sW, 12, W1_BYTES); srd(e, sWS, 20, WS_USED); srd(e, sDBG, 18, 256); srd(e, sQ, 6, WQKV_BYTES)
    stamp(e, 0)
    ffn_first_dma(e, 1 if 'late1' in OPTS else 2)
    stamp(e, 1)
    for w in range(3):
        e("s_cmp_eq_u32 %s, %d" % (s(sWave), w))
        e("s_cbranch_scc1 L_ffn_%d" % w)
    e("s_branch L_ffn_3")
    e.lab("L_role_pf")
    e("s_lshl_b32 %s, s3, 1" % s(sCB))
    e("s_add_u32 %s, %s, %s" % (s(sCB), s(sCB), s(sT0)))
    e("s_sub_u32 %s, %s, 30" % (s(sCB), s(sCB)))
    e("s_waitcnt lgkmcnt(0)")
    srd(e, sX, 4, X_BYTES); srd(e, sWS, 20, WS_USED); srd(e, sDBG, 18, 256)
    stamp(e, 0)
    e("v_lshlrev_b32 %s, 4, %s" % (v(vL16), v(vLane)))
    srd(e, sPF, 14, W2_BYTES)
    e("s_mul_i32 %s, %s, 640" % (s(sT0), s(sWave)))
    for m in range(10):
        e("v_add_u32 v1, %s, %s" % (s(sT0), v(vLane)))
        if m: e("v_add_u32 v1, %d, v1" % (64*m))
        e("v_mul_u32_u24 v2, 3277, v1"); e("v_lshrrev_b32 v2, 18, v2")
        e("v_mul_u32_u24 v3, 80, v2"); e("v_sub_u32 v3, v1, v3")
        e("v_and_b32 v4, 7, v2"); e("v_lshlrev_b32 v4, 1, v4"); e("v_xor_b32 v3, v3, v4")
        e("v_mul_u32_u24 v2, 1280, v2"); e("v_lshl_add_u32 %s, v3, 4, v2" % v(216+m))
    if PF_DELAY: e("s_sleep %d" % PF_DELAY)
    if "pfnonce" in OPTS: get_nonce(e, "pf0", 250)
    for i in range(3):
        e("s_add_u32 %s, %s, %d" % (s(68+i), s(sCB), 28 + 16*i))
        e("s_sub_u32 %s, %s, 20" % (s(sT0), s(68+i)))
        e("s_mul_i32 %s, %s, 40960" % (s(sT0), s(sT0)))
        e("s_cmp_ge_u32 %s, %d" % (s(68+i), NKS)); e("s_cselect_b32 %s, 0x%x, %s" % (s(sT0), OOB, s(sT0)))
        e("s_mul_i32 %s, %s, 10240" % (s(sT1), s(sWave)))
        for m in range(10):
            e("s_add_u32 m0, %s, %d" % (s(sT1), i*40960 + 1024*m))
            e("s_nop 0")
            e("buffer_load_dwordx4 %s, %s, %s offen lds" % (v(216+m), sr(sPF,4), s(sT0)))
    stamp(e, 1)
    e("v_and_b32 v1, 15, %s" % v(vLane)); e("v_lshrrev_b32 v2, 2, v1"); e("v_and_b32 v3, 3, v1")
    e("v_lshrrev_b32 v4, 4, %s" % v(vLane)); e("v_lshl_add_u32 v2, v4, 2, v2")
    e("v_and_b32 v5, 7, v2"); e("v_lshlrev_b32 v5, 5, v5")
    e("v_mul_u32_u24 v2, 1280, v2")
    e("s_mul_i32 %s, %s, 320" % (s(sT0), s(sWave)))
    for half in range(2):
        for ct in range(5):
            if ct < 4: off = half*160 + (ct >> 1)*64 + (ct & 1)*8; sh = 4
            else: off = half*160 + 128; sh = 3
            d = 226 + half*5 + ct
            e("v_lshlrev_b32 v6, %d, v3" % sh)
            e("s_add_u32 %s, %s, %d" % (s(sT1), s(sT0), off))
            e("v_add_u32 v6, %s, v6" % s(sT1))
            e("v_xor_b32 v6, v6, v5")
            e("v_add_u32 %s, v6, v2" % v(d))
    if SSH and "pfnonce" not in OPTS: get_nonce(e, "pfs", 250)
    if SSH and XL_AT == 2:
        if XL_DELAY: e("s_sleep %d" % XL_DELAY)
        pf_stats_loads(e)
        e("s_waitcnt vmcnt(40)")
    else: e("s_waitcnt vmcnt(0)")
    e("s_barrier")
    stamp(e, 2)
    if SSH and XL_AT == 0: pf_stats_loads(e)
    for i in range(3):
        e("s_mul_i32 %s, %s, 5120" % (s(sT0), s(68+i)))
        e("s_mul_i32 %s, %s, %d" % (s(sT1), s(sWave), 2*W2F_CB))
        e("s_add_u32 %s, %s, %s" % (s(sT0), s(sT0), s(sT1)))
        e("s_add_u32 %s, %s, %d" % (s(sT0), s(sT0), W2F_OFF))
        e("s_cmp_ge_u32 %s, %d" % (s(68+i), NKS)); e("s_cselect_b32 %s, 0x%x, %s" % (s(sT0), 0x40000000, s(sT0)))
        for t in range(10):
            d = 176 + t*4
            e("ds_read_b64_tr_b16 %s, %s" % (vr(d,2), v(226+t)))
            e("ds_read_b64_tr_b16 %s, %s offset:%d" % (vr(d+2,2), v(226+t), 16*1280))
        if i < 2:
            for t in range(10): e("v_add_u32 %s, 40960, %s" % (v(226+t), v(226+t)))
        for t in range(10):
            half, ct = divmod(t, 5)
            d = 176 + t*4
            e("s_add_u32 %s, %s, %d" % (s(sT1), s(sT0), half*W2F_CB + ct*1024))
            e("buffer_store_dwordx4 %s, %s, %s, %s offen sc1" % (vr(d,4), v(vL16), sr(sWS,4), s(sT1)))
    stamp(e, 3)
    e("s_waitcnt vmcnt(0)")
    e("s_barrier")
    e("s_cmp_lg_u32 %s, 0" % s(sWave))
    e("s_cbranch_scc1 L_pf_nosig")
    signal_count(e, CNT_P)
    e.lab("L_pf_nosig")
    stamp(e, 4)
    if SSH:
        if XL_AT == 1: pf_stats_loads(e)
        else: e("s_waitcnt vmcnt(0)")
        pf_stats_compute(e)
        stamp(e, 6)
    ph2_setup(e, F_SLOT)
    e("s_cmp_lg_u32 %s, 0" % s(sWave))
    e("s_cbranch_scc1 L_pf_nospin")
    spin_count(e, "pf", CNT_P, N_P, 250)
    e.lab("L_pf_nospin")
    e("s_barrier")
    get_nonce(e, "pf", 250)
    stamp(e, 5)
    if "ph1only" in OPTS: stamp_flush(e); e("s_endpgm")
    for g in w2l_groups(0, 25): e.ext(g)
    e("v_lshlrev_b32 v2, 2, %s" % v(vLane))
    e("buffer_load_dword %s, v2, %s, %s offen sc1" % (v(vPoll), sr(sWS,4), s(sFL)))
    for g in w2a_groups(5, PE_F): e.ext(g)
    e("s_mov_b32 %s, 1" % s(sMain))
    e("s_waitcnt vmcnt(%d)" % (5*(PE_F-5)))
    e("s_branch L_ph2")
    out += process_path(e.L, None, None, [])
    for role in ("attn", "ffn"):
        for w in range(4):
            tag = "%s_%d" % (role, w)
            pre = E(); pre.lab("L_" + tag)
            if role == "attn":
                cfg = attn_cfg(w)
                def extra(e, w=w):
                    read_addr_setup_attn(e)
                    attn_stash(e)
                    if w == 0:
                        e("s_cmp_lg_u32 s2, 0 ; rare"); e("s_cbranch_scc1 L_nononce ; rare")
                        e("s_memrealtime s[96:97] ; rare"); e("s_waitcnt lgkmcnt(0) ; rare")
                        e("s_or_b32 s96, s96, 1 ; rare"); e("v_mov_b32 v14, s96 ; rare"); e("v_mov_b32 v15, 0 ; rare")
                        e("buffer_store_dword v14, v15, %s, 0 offen sc1 ; rare" % sr(sDBG,4))
                        e.lab("L_nononce")
                        e("v_and_b32 v2, 7, %s" % v(vLane))
                        e("v_lshlrev_b32 v7, 4, v2")
                        e("v_mov_b32 v8, 0x3f803f80"); e("v_mov_b32 v9, v8"); e("v_mov_b32 v10, v8"); e("v_mov_b32 v11, v8")
                        e("ds_write_b128 v7, v[8:11]")
                        e("v_add_u32 v12, %d, v7" % A_SLOT); e("ds_write_b128 v12, v[8:11]")
                        e("v_add_u32 v13, %d, v7" % (2*A_SLOT)); e("ds_write_b128 v13, v[8:11]")
                body, post, side = role_main(pre, tag, cfg, attn_dma_list(w), vDO, w, 136, extra)
            else:
                cfg = ffn_cfg(w)
                body, post, side = role_main(pre, tag, cfg, ffn_dma_list(w), fDO, w, 144, read_addr_setup_ffn, units=("nounits" not in OPTS))
            post("s_branch L_ep_%s" % role)
            out += process_path(pre.L, "L_loop_" + tag, body, post.L)
            out += side
        ep = E()
        if role == "attn": attn_epilogue(ep)
        else: ffn_epilogue(ep)
        last = PE_A if role == "attn" else PE_F
        groups = (w2a_groups(5, 9) + w2a_groups(9 + EARLY_W2A, last)) if "ph1only" not in OPTS else []
        nin = (min(ATT_W2A_IN, len(groups)) if role == "attn" else FFN_W2A_IN) if groups else 0
        poll = ["  v_lshlrev_b32 %s, 2, %s" % (v(vPoll), v(vLane)), "  buffer_load_dword %s, %s, %s, %s offen sc1" % (v(vPoll), v(vPoll), sr(sWS,4), s(sFL))]
        lines = ep.L
        if role == "attn" and "nopoll" not in OPTS:
            def ins(lines, back, code):
                k = len(lines) - back
                while lines[k].strip().startswith(("s_cbranch", "s_cselect")) or lines[k-1].strip().startswith(("s_cmp", "v_cmp")): k -= 1
                return lines[:k] + code + lines[k:]
            lines = ins(lines, ATT_POLL_BACK, poll)
            if POLL2:
                p1 = ["  v_lshlrev_b32 v136, 2, %s" % v(vLane), "  buffer_load_dword v136, v136, %s, %s offen sc1" % (sr(sWS,4), s(sFL))]
                lines = ins(lines, POLL2, p1)
        epl = sprinkle(lines, groups[:nin], start=4, end_gap=(ATT_ENDGAP if role == "attn" else 10)) if nin else lines
        fin = E()
        stamp(fin, 6)
        if role == "attn" and "ph1only" not in OPTS:
            fin("s_mov_b32 %s, 0" % s(sMain))
            for g in groups[nin:]: fin.ext(g)
            ao_setup(fin)
            if POLL2: check_flags(fin, MASK_F, 136, "L_att_fast")
            check_flags(fin, MASK_F, vPoll, "L_att_fast")
            spin_flags(fin, "attf", MASK_F, 250)
            fin.lab("L_att_fast")
            stamp(fin, 7)
            for p in range(DA):
                for g in act_loads(p): fin.ext(["%s ; rare" % t for t in g])
            fin("s_branch L_ph2_main_A")
        else:
            fin("s_mov_b32 %s, 1" % s(sMain))
            if "nopoll" not in OPTS: fin.ext(poll)
            nb = min(W2A_BEFORE_SIG, len(groups) - nin)
            for g in groups[nin:nin+nb]: fin.ext(g)
            fin("s_waitcnt vmcnt(%d)" % nb)
            stamp(fin, 7)
            if "ph1only" in OPTS:
                stamp_flush(fin); fin("s_endpgm")
            else:
                fin("s_barrier")
                signal_rb(fin, role, None)
                rest = groups[nin+nb:]
                if FPOLL and len(rest) > FPOLL:
                    for g in rest[:len(rest)-FPOLL]: fin.ext(g)
                    fin.ext(poll)
                    for g in rest[len(rest)-FPOLL:]: fin.ext(g)
                    fin("s_waitcnt vmcnt(%d)" % FPOLL)
                else:
                    for g in rest: fin.ext(g)
                fin("s_branch L_ph2")
        if "ep2x" in OPTS:
            rep = E()
            rep("s_waitcnt vmcnt(0) lgkmcnt(0)"); rep("s_barrier")
            stamp(rep, 12)
            rep("s_add_u32 s100, s100, 1"); rep("s_cmp_lt_u32 s100, 2"); rep("s_cbranch_scc1 L_ep_%s" % role)
            epl = epl + rep.L
        out += process_path(["L_ep_%s:" % role, "  s_nop 7", "  s_nop 1"] + epl + fin.L, None, None, [])
    out += phase2()
    out.append("L_end:")
    return out

def kd(name, nfv, accum, sg=102):
    return """.section .rodata,"a"
.p2align 6
.amdhsa_kernel %s
  .amdhsa_next_free_vgpr %d
  .amdhsa_next_free_sgpr %d
  .amdhsa_accum_offset %d
  .amdhsa_group_segment_fixed_size 0
  .amdhsa_kernarg_size 72
  .amdhsa_user_sgpr_count 2
  .amdhsa_user_sgpr_kernarg_segment_ptr 1
  .amdhsa_system_sgpr_workgroup_id_x 1
  .amdhsa_float_denorm_mode_32 3
.end_amdhsa_kernel
""" % (name, nfv, sg, accum)

HEADER = """; Kernarg (72 bytes): [0] A_x [8] A_wqkv [16] A_wo [24] B_x [32] B_w1 [40] B_w2 [48] out [56] debug [64] ws
; @launch grid=(256,1,1) block=(256,1,1) lds=163840
.amdgcn_target "amdgcn-amd-amdhsa--gfx950"
"""
def main():
    if len(sys.argv) > 2: OPTS.update(sys.argv[2].split(","))
    k = top()
    if "noalign" not in OPTS:
        from alignpass import align
        head = '.amdgcn_target "amdgcn-amd-amdhsa--gfx950"\n.text\n.p2align 8\nk:\n'
        k = align(head, k, "\ns_endpgm\nL_codeend:\n")
    txt = HEADER + ".text\n.globl %s\n.p2align 8\n.type %s,@function\n%s:\n" % (KNAME, KNAME, KNAME) + "\n".join(k) + "\ns_endpgm\nL_codeend:\n" + kd(KNAME, 512, 256)
    path = sys.argv[1] if len(sys.argv) > 1 else "out2.s"
    open(path, "w").write(txt)
    print("wrote", path, len(txt), "bytes;", len(k), "lines")
if __name__ == "__main__": main()
```
